```python
import torch

def _softmax(x, axis=-1):
    return torch.softmax(x, dim=axis)
def _gelu(x):
    return torch.nn.functional.gelu(x, approximate="tanh")
def _silu(x):
    return torch.nn.functional.silu(x)
def _sigmoid(x):
    return torch.sigmoid(x)
def _layernorm(x, axis=-1, eps=1e-5):
    m = x.mean(dim=axis, keepdim=True)
    v = x.var(dim=axis, keepdim=True, unbiased=False)
    return (x - m) / torch.sqrt(v + eps)
def _scatter_add(tgt, idx, src, axis=0):
    return tgt.clone().index_add_(axis, idx, src)
def _segment_sum(src, seg, n):
    out = torch.zeros((n,) + src.shape[1:], dtype=src.dtype)
    return out.index_add_(0, seg, src)
def _pad(x, pw):
    flat = tuple(v for pair in reversed(pw) for v in pair)
    return torch.nn.functional.pad(x, flat)

kernel_name = 'concat_heads__mha_block__mha_block__prompt'

def setup_inputs():

    _w = (lambda a: (lambda t: t.to(torch.bfloat16) if t.is_floating_point() else t)(torch.as_tensor(a)))
    def _A_setup():
        B, S, D, H = 1, 2048, 640, 32
        return {
            "x": _w((lambda *s: torch.randn(*s, dtype=torch.bfloat16) * 0.2)(B, S, D)),
            "wqkv": _w((lambda *s: torch.randn(*s, dtype=torch.bfloat16) * 0.2)(D, 3 * D)),
            "wo": _w((lambda *s: torch.randn(*s, dtype=torch.bfloat16) * 0.05)(D, D)),
        }
    _A_in = _A_setup()

    def _B_setup():
        B, S, D, H = 1, 2048, 640, 32
        return {
            "x": _w((lambda *s: torch.randn(*s, dtype=torch.bfloat16) * 0.2)(B, S, D)),
            "wqkv": _w((lambda *s: torch.randn(*s, dtype=torch.bfloat16) * 0.2)(D, 3 * D)),
            "wo": _w((lambda *s: torch.randn(*s, dtype=torch.bfloat16) * 0.05)(D, D)),
        }
    _B_in = _B_setup()

    return {
        "A_x": _A_in["x"],
        "A_wqkv": _A_in["wqkv"],
        "A_wo": _A_in["wo"],
        "B_x": _B_in["x"],
        "B_wqkv": _B_in["wqkv"],
        "B_wo": _B_in["wo"],
    }

def reference(A_x, A_wqkv, A_wo, B_x, B_wqkv, B_wo):
    def _A_ref(x, wqkv, wo):
        B, S, D = x.shape
        H = 32
        Dh = D // H
        qkv = (lambda x, *d: x.permute(*d))((x @ wqkv).reshape(B, S, 3, H, Dh), 2, 0, 3, 1, 4)
        q, k, v = qkv[0], qkv[1], qkv[2]
        scores = torch.einsum("bhqd,bhkd->bhqk", q, k) * (Dh ** -0.5)
        p = _softmax(scores, axis=-1)
        o = torch.einsum("bhqk,bhkd->bhqd", p, v)
        return (lambda x, *d: x.permute(*d))(o, 0, 2, 1, 3).reshape(B, S, D) @ wo

    def _B_ref(x, wqkv, wo):
        B, S, D = x.shape
        H = 32
        Dh = D // H
        qkv = (lambda x, *d: x.permute(*d))((x @ wqkv).reshape(B, S, 3, H, Dh), 2, 0, 3, 1, 4)
        q, k, v = qkv[0], qkv[1], qkv[2]
        scores = torch.einsum("bhqd,bhkd->bhqk", q, k) * (Dh ** -0.5)
        p = _softmax(scores, axis=-1)
        o = torch.einsum("bhqk,bhkd->bhqd", p, v)
        return (lambda x, *d: x.permute(*d))(o, 0, 2, 1, 3).reshape(B, S, D) @ wo

    a = _A_ref(A_x, A_wqkv, A_wo)
    b = _B_ref(B_x, B_wqkv, B_wo)
    return torch.concatenate([a, b], axis=-1)
```

```python
class Asm:
    def __init__(self):
        self.lines = []
    def __call__(self, s):
        for l in s.split('\n'):
            self.lines.append(l if (l.endswith(':') or l.startswith('.') or l.startswith(';')) else '    ' + l.strip())
    def label(self, n):
        self.lines.append(n + ':')
    def text(self):
        return '\n'.join(self.lines) + '\n'

def vr(b, n=1):
    return f'v{b}' if n == 1 else f'v[{b}:{b+n-1}]'
def ar(b, n=1):
    return f'a{b}' if n == 1 else f'a[{b}:{b+n-1}]'
def sr(b, n=1):
    return f's{b}' if n == 1 else f's[{b}:{b+n-1}]'

class VAlloc:
    def __init__(self, start=0):
        self.n = start
    def __call__(self, cnt=1, align=None):
        if align is None:
            align = 1 if cnt == 1 else (2 if cnt == 2 else 4)
        self.n = (self.n + align - 1) // align * align
        b = self.n
        self.n += cnt
        return b

WS_KV = 0
KV_HEAD = 64 * 2560
WS_Q = 64 * KV_HEAD
Q_HEAD = 64 * 1280
WS_O = WS_Q + 64 * Q_HEAD
O_BLOCK = 64 * 32 * 1280
WS_END = WS_O + 2 * O_BLOCK

def descriptor(name, nv, ns, accum=None):
    if accum is None:
        accum = (nv + 3) // 4 * 4
    return f'''.p2align 6
.amdhsa_kernel {name}
  .amdhsa_next_free_vgpr {nv}
  .amdhsa_next_free_sgpr {ns}
  .amdhsa_accum_offset {accum}
  .amdhsa_group_segment_fixed_size 0
  .amdhsa_kernarg_size 72
  .amdhsa_user_sgpr_count 2
  .amdhsa_user_sgpr_kernarg_segment_ptr 1
  .amdhsa_system_sgpr_workgroup_id_x 1
.end_amdhsa_kernel
'''
```

```python
from common import *

RING = 3 * 40960
ONES = RING + 128
ATTN_LDS = ONES + 7 * 2560 + 640 + 16
ATTN_LDS = (ATTN_LDS + 63) // 64 * 64

def gen_attn(name='attn_kernel', opts=None):
    opts = opts or {}
    a = Asm()
    V = VAlloc(0)
    vTid = V(); vLane = V(); vT0 = V(); vT1 = V()
    vT2 = V(); vT3 = V(); vT4 = V(); vT5 = V()
    vIdx = V()
    vaK1 = V(); vaK2 = V(); vaV = V()
    vbK1 = V(); vbK2 = V(); vbV = V(); vmK2 = V(); vmV = V()
    vDma = V()
    vQo = V(); vQo2 = V()
    Q1 = [V(4), V(4)]; Q2 = [V(2), V(2)]
    K1 = [V(4), V(4)]; K2 = [V(2), V(2)]
    V0 = [V(4), V(4)]; V1 = [V(4), V(4)]
    O = [V(16), V(16)]
    S = [V(16), V(16)]
    nv = V.n
    sWs = 4
    sW = 6
    sBH = 7
    SRD = 8
    sKV = 12
    sG = 13
    sOff = 14
    sT = 15
    sHi = 16
    sQ = 18
    sT2 = 19
    sM = 20
    sM2 = 22
    sOo = 24
    ns = 32

    a(f'.globl {name}\n.p2align 8\n.type {name},@function')
    a.label(name)
    a(f'''s_cmp_ge_u32 s2, 256
s_cbranch_scc1 {name}_done
s_load_dwordx2 {sr(sWs,2)}, s[0:1], 64
v_lshrrev_b32 {vr(vT0)}, 6, v0
v_and_b32 {vr(vLane)}, 63, v0
s_and_b32 {sr(sT)}, s2, 7
v_readfirstlane_b32 {sr(sW)}, {vr(vT0)}
s_lshr_b32 {sr(sT2)}, s2, 3
s_lshl_b32 {sr(sBH)}, {sr(sT)}, 3
s_lshr_b32 {sr(sT)}, {sr(sT2)}, 2
s_add_u32 {sr(sBH)}, {sr(sBH)}, {sr(sT)}
s_and_b32 {sr(sT2)}, {sr(sT2)}, 3
s_lshl_b32 {sr(sT2)}, {sr(sT2)}, 4
s_lshl_b32 {sr(sT)}, {sr(sW)}, 1
s_add_u32 {sr(sT2)}, {sr(sT2)}, {sr(sT)}
s_mul_i32 {sr(sKV)}, {sr(sBH)}, {KV_HEAD}
s_mul_i32 {sr(sQ)}, {sr(sBH)}, {Q_HEAD}
s_mul_i32 {sr(sT)}, {sr(sT2)}, 1280
s_add_u32 {sr(sQ)}, {sr(sQ)}, {sr(sT)}
s_add_u32 {sr(sQ)}, {sr(sQ)}, {WS_Q}
s_lshr_b32 {sr(sT)}, {sr(sBH)}, 5
s_lshl_b32 {sr(sT)}, {sr(sT)}, 6
s_add_u32 {sr(sT)}, {sr(sT)}, {sr(sT2)}
s_lshl_b32 {sr(sT)}, {sr(sT)}, 5
s_and_b32 {sr(sT2)}, {sr(sBH)}, 31
s_add_u32 {sr(sT)}, {sr(sT)}, {sr(sT2)}
s_mul_i32 {sr(sOo)}, {sr(sT)}, 1280
s_add_u32 {sr(sOo)}, {sr(sOo)}, {WS_O}
s_mov_b32 {sr(sHi)}, 0
s_mov_b32 {sr(sHi+1)}, -1
s_mov_b32 {sr(SRD+2)}, {WS_END}
s_mov_b32 {sr(SRD+3)}, 0x20000''')
    a(f'''v_lshlrev_b32 {vr(vQo)}, 4, {vr(vLane)}
v_lshlrev_b32 {vr(vT0)}, 3, {vr(vLane)}
v_add_u32 {vr(vT0)}, 1024, {vr(vT0)}
v_mov_b32 {vr(vT1)}, 0x40000000
v_cndmask_b32_e64 {vr(vQo2)}, {vr(vT0)}, {vr(vT1)}, {sr(sHi,2)}
s_lshl_b32 {sr(sT)}, {sr(sW)}, 10
v_add_u32 {vr(vDma)}, {sr(sT)}, {vr(vQo)}
s_waitcnt lgkmcnt(0)
s_mov_b32 {sr(SRD)}, {sr(sWs)}
s_mov_b32 {sr(SRD+1)}, {sr(sWs+1)}''')
    a(f'''buffer_load_dwordx4 {vr(Q1[0],4)}, {vr(vQo)}, {sr(SRD,4)}, {sr(sQ)} offen
buffer_load_dwordx2 {vr(Q2[0],2)}, {vr(vQo2)}, {sr(SRD,4)}, {sr(sQ)} offen
buffer_load_dwordx4 {vr(Q1[1],4)}, {vr(vQo)}, {sr(SRD,4)}, {sr(sQ)} offen offset:1280
buffer_load_dwordx2 {vr(Q2[1],2)}, {vr(vQo2)}, {sr(SRD,4)}, {sr(sQ)} offen offset:1280''')
    a(f's_lshl_b32 {sr(sT2)}, {sr(sW)}, 10')
    a(f's_mov_b32 {sr(sT)}, {sr(sKV)}')
    for jj in range(15):
        a(f's_add_u32 m0, {sr(sT2)}, {jj*8192}')
        if jj:
            a(f's_add_u32 {sr(sT)}, {sr(sT)}, 8192')
        else:
            a('s_nop 0')
        a(f'buffer_load_dwordx4 {vr(vDma)}, {sr(SRD,4)}, {sr(sT)} offen lds')
    a(f'''v_lshlrev_b32 {vr(vbK1)}, 4, {vr(vLane)}
v_mov_b32 {vr(vT1)}, {ONES}
v_cndmask_b32_e64 {vr(vbK2)}, {vr(vT0)}, {vr(vT1)}, {sr(sHi,2)}
v_cndmask_b32_e64 {vr(vmK2)}, 1, 0, {sr(sHi,2)}
v_and_b32 {vr(vT2)}, 31, {vr(vLane)}
v_lshrrev_b32 {vr(vT3)}, 5, {vr(vLane)}
v_mul_u32_u24 {vr(vT3)}, 320, {vr(vT3)}
v_lshl_add_u32 {vr(vT3)}, {vr(vT2)}, 4, {vr(vT3)}
v_add_u32 {vr(vT3)}, 1280, {vr(vT3)}
v_cmp_gt_u32 vcc, 20, {vr(vT2)}
v_mov_b32 {vr(vIdx)}, 0xdddddddd
v_mov_b32 {vr(vaK1)}, {vr(vbK1)}
v_cndmask_b32 {vr(vbV)}, {vr(vT1)}, {vr(vT3)}, vcc
v_cndmask_b32_e64 {vr(vmV)}, 0, 1, vcc
v_mov_b32 {vr(vaK2)}, {vr(vbK2)}
v_mov_b32 {vr(vaV)}, {vr(vbV)}''')
    a(f'''v_lshrrev_b32 {vr(vT2)}, 1, {vr(vLane)}
v_and_b32 {vr(vT2)}, 7, {vr(vT2)}
v_mul_u32_u24 {vr(vT2)}, 2560, {vr(vT2)}
v_and_b32 {vr(vT3)}, 1, {vr(vLane)}
v_mul_u32_u24 {vr(vT3)}, 640, {vr(vT3)}
v_add3_u32 {vr(vT2)}, {vr(vT2)}, {vr(vT3)}, {vr(vT1)}''')
    for i in range(4):
        a(f'v_mov_b32 {vr(S[0]+i)}, 0x3f803f80')
    a(f'ds_write_b128 {vr(vT2)}, {vr(S[0],4)}')
    for t in range(2):
        for i in range(16):
            a(f'v_mov_b32 {vr(O[t]+i)}, 0')
    for i in range(4):
        a(f'v_mov_b32 {vr(V1[1]+i)}, 0')
    a(f's_mov_b32 {sr(sG)}, 0')
    a('s_waitcnt vmcnt(12) lgkmcnt(0)')
    a('s_barrier')
    def rdK(st, u):
        a(f'ds_read_b128 {vr(K1[st],4)}, {vr(vaK1)} offset:{2560*u}')
        a(f'ds_read_b64 {vr(K2[st],2)}, {vr(vaK2)} offset:{2560*u}')
    def rdV(st, u):
        a(f'ds_read_b128 {vr(V0[st],4)}, {vr(vaV)} offset:{2560*u}')
        a(f'ds_read_b128 {vr(V1[st],4)}, {vr(vaV)} offset:{2560*u+640}')
    def qk16(t, st):
        a(f'v_mfma_f32_32x32x16_bf16 {vr(S[t],16)}, {vr(K1[st],4)}, {vr(Q1[t],4)}, 0')
    def qk8(t, st):
        a(f'v_mfma_f32_32x32x8_bf16 {vr(S[t],16)}, {vr(K2[st],2)}, {vr(Q2[t],2)}, {vr(S[t],16)}')
    def pv(t, st, n):
        Vf = (V0, V1)[n][st]
        a(f'v_smfmac_f32_32x32x32_bf16 {vr(O[t],16)}, {vr(Vf,4)}, {vr(S[t]+8*n,8)}, {vr(vIdx)}')
    def rowmax(t, dst):
        s = S[t]
        a(f'v_max3_f32 {vr(dst)}, {vr(s)}, {vr(s+1)}, {vr(s+2)}')
        for i in range(3, 15, 2):
            a(f'v_max3_f32 {vr(dst)}, {vr(dst)}, {vr(s+i)}, {vr(s+i+1)}')
        a(f'v_max_f32 {vr(dst)}, {vr(dst)}, {vr(s+15)}')
    def crosshalf(x, y):
        a(f'v_mov_b32 {vr(y)}, {vr(x)}')
        a('s_nop 1')
        a(f'v_permlane32_swap_b32 {vr(x)}, {vr(y)}')
        a('s_nop 1')
    rdK(0, 0); rdK(1, 1); rdV(0, 0)
    a('s_waitcnt lgkmcnt(4)')
    qk16(0, 0); qk16(1, 0); qk8(0, 0); qk8(1, 0)
    a('s_nop 15')
    for t in range(2):
        rowmax(t, vT0)
        crosshalf(vT0, vT1)
        a(f'''v_max_f32 {vr(vT0)}, {vr(vT0)}, {vr(vT1)}
v_sub_f32 {vr(vT0)}, 0, {vr(vT0)}
v_and_b32 {vr(vT1)}, 0xffff0000, {vr(vT0)}
v_sub_f32 {vr(vT0)}, {vr(vT0)}, {vr(vT1)}
v_and_b32 {vr(vT2)}, 0xffff0000, {vr(vT0)}
v_sub_f32 {vr(vT0)}, {vr(vT0)}, {vr(vT2)}
v_lshrrev_b32 {vr(vT1)}, 16, {vr(vT1)}
v_or_b32 {vr(vT1)}, {vr(vT1)}, {vr(vT2)}
v_lshrrev_b32 {vr(vT0)}, 16, {vr(vT0)}
v_cndmask_b32_e64 {vr(Q2[t])}, {vr(Q2[t])}, {vr(vT1)}, {sr(sHi,2)}
v_cndmask_b32_e64 {vr(Q2[t]+1)}, {vr(Q2[t]+1)}, {vr(vT0)}, {sr(sHi,2)}''')
    for i in range(8, 16):
        a(f'v_mov_b32 {vr(S[1]+i)}, 0')
    qk16(0, 0); qk8(0, 0)
    a('s_waitcnt lgkmcnt(0)')
    a('s_nop 15')
    a('.p2align 6')
    a.label(f'{name}_loop')
    def ex(t, i):
        a(f'v_exp_f32 {vr(S[t]+i)}, {vr(S[t]+i)}')
    for j in range(8):
        for t in range(2):
            pj = j if t == 1 else j - 1
            nj = j if t == 0 else j + 1
            ex(t, 0); ex(t, 1)
            pv(1 - t, pj % 2, 1)
            ex(t, 2); ex(t, 3); ex(t, 4)
            qk16(1 - t, nj % 2)
            ex(t, 5); ex(t, 6); ex(t, 7)
            qk8(1 - t, nj % 2)
            ex(t, 8)
            if t == 0:
                if j == 7:
                    a(f'v_mad_u32_u24 {vr(vaV)}, {vr(vmV)}, {sr(sOff)}, {vr(vbV)}')
                rdV((j + 1) % 2, (j + 1) % 8)
            else:
                if j == 6:
                    a(f'''s_add_u32 {sr(sT)}, {sr(sG)}, 1
s_cmp_ge_u32 {sr(sT)}, 6
s_cselect_b32 {sr(sT2)}, 6, 0
s_sub_u32 {sr(sT)}, {sr(sT)}, {sr(sT2)}
s_mul_i32 {sr(sOff)}, {sr(sT)}, 20480
s_waitcnt vmcnt(10)
s_cmp_eq_u32 {sr(sG)}, 0
s_cbranch_scc1 {name}_b0
s_waitcnt vmcnt(0)''')
                    a.label(f'{name}_b0')
                    a(f'''s_barrier
v_add_u32 {vr(vaK1)}, {sr(sOff)}, {vr(vbK1)}
v_mad_u32_u24 {vr(vaK2)}, {vr(vmK2)}, {sr(sOff)}, {vr(vbK2)}
s_cmp_eq_u32 {sr(sG)}, 2
s_cbranch_scc1 {name}_sg3''')
                    a.label(f'{name}_sg3ret')
                rdK(j % 2, (j + 2) % 8)
            ex(t, 9); ex(t, 10); ex(t, 11)
            pv(t, j % 2, 0)
            ex(t, 12)
            a('s_waitcnt lgkmcnt(2)')
            ex(t, 13); ex(t, 14); ex(t, 15)
    a(f'''s_add_u32 {sr(sG)}, {sr(sG)}, 1
s_cmp_lt_u32 {sr(sG)}, 8
s_cbranch_scc1 {name}_loop''')
    a('s_nop 1')
    pv(1, 1, 1)
    a('s_nop 15')
    a('s_waitcnt lgkmcnt(0)')
    L = [vT2, vT3]
    for t in range(2):
        a(f'v_mov_b32 {vr(vT0)}, {vr(O[t]+8)}')
        crosshalf(vT0, L[t])
        a(f'v_mul_f32 {vr(vT1)}, 0, {vr(O[t])}')
        for i in range(1, 12):
            a(f'v_fmac_f32 {vr(vT1)}, 0, {vr(O[t]+i)}')
        a(f'v_add_f32 {vr(vT1)}, {vr(vT1)}, {vr(L[t])}')
        a(f'v_cmp_gt_f32 vcc, 0x53800000, {vr(vT1)}')
        a(f's_mov_b64 {sr(sM if t == 0 else sM2,2)}, vcc')
        a(f'v_cmp_lt_f32 vcc, 0x35800000, {vr(vT1)}')
        a(f's_and_b64 {sr(sM if t == 0 else sM2,2)}, {sr(sM if t == 0 else sM2,2)}, vcc')
    a(f'''s_and_b64 {sr(sM,2)}, {sr(sM,2)}, {sr(sM2,2)}
s_cmp_eq_u64 {sr(sM,2)}, -1
s_cbranch_scc0 {name}_fallback''')
    a.label(f'{name}_store')
    for t in range(2):
        a(f'v_rcp_f32 {vr(vT0)}, {vr(L[t])}')
        a('s_nop 0')
        for i in range(12):
            a(f'v_mul_f32 {vr(O[t]+i)}, {vr(O[t]+i)}, {vr(vT0)}')
        for i in range(6):
            a(f'v_cvt_pk_bf16_f32 {vr(S[t]+i)}, {vr(O[t]+2*i)}, {vr(O[t]+2*i+1)}')
        if t == 1:
            a(f's_add_u32 {sr(sOo)}, {sr(sOo)}, {32*1280}')
        a(f'buffer_store_dwordx4 {vr(S[t],4)}, {vr(vQo)}, {sr(SRD,4)}, {sr(sOo)} offen')
        a(f'buffer_store_dwordx2 {vr(S[t]+4,2)}, {vr(vQo2)}, {sr(SRD,4)}, {sr(sOo)} offen')
    a.label(f'{name}_done')
    a('s_endpgm')
    a.label(f'{name}_sg3')
    a(f's_lshl_b32 {sr(sT2)}, {sr(sW)}, 10')
    a(f's_add_u32 {sr(sT)}, {sr(sKV)}, {15*8192}')
    for jj in range(5):
        a(f's_add_u32 m0, {sr(sT2)}, {jj*8192}')
        if jj:
            a(f's_add_u32 {sr(sT)}, {sr(sT)}, 8192')
        else:
            a('s_nop 0')
        a(f'buffer_load_dwordx4 {vr(vDma)}, {sr(SRD,4)}, {sr(sT)} offen lds')
    a(f's_branch {name}_sg3ret')
    a.label(f'{name}_fallback')
    M = [vT4, vT5]
    vKo2 = vaK2; vVo = vaV
    a(f'''v_cndmask_b32_e64 {vr(Q2[0])}, {vr(Q2[0])}, 0, {sr(sHi,2)}
v_cndmask_b32_e64 {vr(Q2[0]+1)}, {vr(Q2[0]+1)}, 0, {sr(sHi,2)}
v_cndmask_b32_e64 {vr(Q2[1])}, {vr(Q2[1])}, 0, {sr(sHi,2)}
v_cndmask_b32_e64 {vr(Q2[1]+1)}, {vr(Q2[1]+1)}, 0, {sr(sHi,2)}
v_mov_b32 {vr(M[0])}, 0xff800000
v_mov_b32 {vr(M[1])}, 0xff800000
v_mov_b32 {vr(vT1)}, 0x40000000
v_cmp_eq_u32 vcc, 1, {vr(vmV)}
s_mov_b32 {sr(sT)}, {sr(sKV)}
s_mov_b32 {sr(sG)}, 0
v_cndmask_b32 {vr(vVo)}, {vr(vT1)}, {vr(vbV)}, vcc
s_mov_b64 {sr(sM2,2)}, vcc''')
    a.label(f'{name}_fb1')
    a(f'''buffer_load_dwordx4 {vr(K1[0],4)}, {vr(vQo)}, {sr(SRD,4)}, {sr(sT)} offen
buffer_load_dwordx2 {vr(K2[0],2)}, {vr(vQo2)}, {sr(SRD,4)}, {sr(sT)} offen
s_waitcnt vmcnt(0)''')
    qk16(0, 0); qk16(1, 0); qk8(0, 0); qk8(1, 0)
    a('s_nop 15')
    for t in range(2):
        rowmax(t, vT0)
        a(f'v_max_f32 {vr(M[t])}, {vr(M[t])}, {vr(vT0)}')
    a(f'''s_add_u32 {sr(sT)}, {sr(sT)}, 2560
s_add_u32 {sr(sG)}, {sr(sG)}, 1
s_cmp_lt_u32 {sr(sG)}, 64
s_cbranch_scc1 {name}_fb1''')
    for t in range(2):
        crosshalf(M[t], vT1)
        a(f'v_max_f32 {vr(M[t])}, {vr(M[t])}, {vr(vT1)}')
        for i in range(16):
            a(f'v_mov_b32 {vr(O[t]+i)}, 0')
    a(f's_mov_b32 {sr(sT)}, {sr(sKV)}')
    a(f's_mov_b32 {sr(sG)}, 0')
    a(f'v_mov_b32 {vr(vT1)}, 0x3f803f80')
    a.label(f'{name}_fb2')
    a(f'''buffer_load_dwordx4 {vr(K1[0],4)}, {vr(vQo)}, {sr(SRD,4)}, {sr(sT)} offen
buffer_load_dwordx2 {vr(K2[0],2)}, {vr(vQo2)}, {sr(SRD,4)}, {sr(sT)} offen
buffer_load_dwordx4 {vr(V0[0],4)}, {vr(vVo)}, {sr(SRD,4)}, {sr(sT)} offen
buffer_load_dwordx4 {vr(V1[0],4)}, {vr(vVo)}, {sr(SRD,4)}, {sr(sT)} offen offset:640
s_waitcnt vmcnt(0)''')
    qk16(0, 0); qk16(1, 0); qk8(0, 0); qk8(1, 0)
    for i in range(4):
        a(f'v_cndmask_b32_e64 {vr(V0[0]+i)}, {vr(vT1)}, {vr(V0[0]+i)}, {sr(sM2,2)}')
        a(f'v_cndmask_b32_e64 {vr(V1[0]+i)}, {vr(vT1)}, {vr(V1[0]+i)}, {sr(sM2,2)}')
    a('s_nop 15')
    for t in range(2):
        for i in range(16):
            a(f'v_sub_f32 {vr(S[t]+i)}, {vr(S[t]+i)}, {vr(M[t])}')
        for i in range(16):
            ex(t, i)
    a('s_nop 1')
    for t in range(2):
        pv(t, 0, 0); pv(t, 0, 1)
    a(f'''s_add_u32 {sr(sT)}, {sr(sT)}, 2560
s_add_u32 {sr(sG)}, {sr(sG)}, 1
s_cmp_lt_u32 {sr(sG)}, 64
s_cbranch_scc1 {name}_fb2''')
    a('s_nop 15')
    for t in range(2):
        a(f'v_mov_b32 {vr(vT0)}, {vr(O[t]+8)}')
        crosshalf(vT0, L[t])
    a(f's_branch {name}_store')
    return a.text(), descriptor(name, nv, ns), f'; @launch kernel={name} grid=(256,1,1) block=(512,1,1) lds={ATTN_LDS}'
```

```python
from common import *

OUT_LDS = 640 * 160

def gen_out(name='oproj_kernel', opts=None):
    a = Asm()
    V = VAlloc(0)
    vTid = V(); vLane = V(); vT0 = V(); vT1 = V(); vT2 = V(); vT3 = V()
    vDW = V(); vAo = V(); vAt = V(); vWr = V(); vWr2 = V(); vWt = V(); vWt2 = V(); vOo = V()
    A = [[V(4) for _ in range(5)] for _ in range(4)]
    Wf = [[V(4) for _ in range(5)] for _ in range(2)]
    acc = [V(4) for _ in range(5)]
    nv = V.n
    SW = 8; SA = 12; SO = 16
    sW = 22; sB = 23; sMt = 24; sNt = 25; sT = 26; sT2 = 27; sM0 = 28; sA = 29
    ns = 40
    a(f'.globl {name}\n.p2align 8\n.type {name},@function')
    a.label(name)
    a(f'''s_cmp_ge_u32 s2, 256
s_cbranch_scc1 {name}_done
s_and_b32 {sr(sT)}, s2, 7
s_lshr_b32 {sr(sB)}, {sr(sT)}, 2
s_mul_i32 {sr(sT2)}, {sr(sB)}, 24
s_load_dwordx2 s[6:7], s[0:1], 48
s_load_dwordx2 s[20:21], s[0:1], 64
s_add_u32 s0, s0, {sr(sT2)}
s_addc_u32 s1, s1, 0
s_load_dwordx2 s[4:5], s[0:1], 16
v_lshrrev_b32 {vr(vT0)}, 6, v0
v_and_b32 {vr(vLane)}, 63, v0
s_and_b32 {sr(sT)}, {sr(sT)}, 3
v_readfirstlane_b32 {sr(sW)}, {vr(vT0)}
s_lshr_b32 {sr(sT2)}, s2, 3
s_and_b32 {sr(sNt)}, {sr(sT2)}, 7
s_lshr_b32 {sr(sT2)}, {sr(sT2)}, 3
s_lshl_b32 {sr(sMt)}, {sr(sT)}, 2
s_add_u32 {sr(sMt)}, {sr(sMt)}, {sr(sT2)}
s_mov_b32 {sr(SW+2)}, {640*1280}
s_mov_b32 {sr(SW+3)}, 0x20000
s_mov_b32 {sr(SA+2)}, {WS_END}
s_mov_b32 {sr(SA+3)}, 0x20000
s_mov_b32 {sr(SO+2)}, {2048*2560}
s_mov_b32 {sr(SO+3)}, 0x20000''')
    a(f'''s_lshl_b32 {sr(sT)}, {sr(sW)}, 6
v_add_u32 {vr(vT0)}, {sr(sT)}, {vr(vLane)}
v_mul_u32_u24 {vr(vT1)}, 6554, {vr(vT0)}
v_lshrrev_b32 {vr(vT1)}, 16, {vr(vT1)}
v_mul_u32_u24 {vr(vT2)}, 10, {vr(vT1)}
v_sub_u32 {vr(vT0)}, {vr(vT0)}, {vr(vT2)}
v_mul_u32_u24 {vr(vT1)}, 1280, {vr(vT1)}
v_lshl_add_u32 {vr(vT0)}, {vr(vT0)}, 4, {vr(vT1)}
s_mul_i32 {sr(sT)}, {sr(sNt)}, 160
v_add_u32 {vr(vDW)}, {sr(sT)}, {vr(vT0)}
s_lshl_b32 {sr(sM0)}, {sr(sW)}, 10''')
    a(f'''s_lshl_b32 {sr(sT)}, {sr(sMt)}, 2
s_lshr_b32 {sr(sT2)}, {sr(sW)}, 1
s_add_u32 {sr(sT)}, {sr(sT)}, {sr(sT2)}
s_lshl_b32 {sr(sT2)}, {sr(sB)}, 6
s_add_u32 {sr(sT)}, {sr(sT)}, {sr(sT2)}
s_mul_i32 {sr(sA)}, {sr(sT)}, {32*1280}
s_add_u32 {sr(sA)}, {sr(sA)}, {WS_O}
s_and_b32 {sr(sT)}, {sr(sW)}, 1
s_lshl_b32 {sr(sT)}, {sr(sT)}, 4
v_and_b32 {vr(vT0)}, 15, {vr(vLane)}
v_add_u32 {vr(vT0)}, {sr(sT)}, {vr(vT0)}
v_lshrrev_b32 {vr(vT1)}, 5, {vr(vLane)}
v_mul_u32_u24 {vr(vT1)}, 1280, {vr(vT1)}
v_bfe_u32 {vr(vT2)}, {vr(vLane)}, 4, 1
v_lshl_add_u32 {vr(vT1)}, {vr(vT2)}, 9, {vr(vT1)}
v_lshl_add_u32 {vr(vAo)}, {vr(vT0)}, 4, {vr(vT1)}
v_lshrrev_b32 {vr(vT1)}, 4, {vr(vLane)}
v_mul_u32_u24 {vr(vT1)}, 1280, {vr(vT1)}
v_lshl_add_u32 {vr(vT1)}, {vr(vT0)}, 3, {vr(vT1)}
v_add_u32 {vr(vAt)}, 1024, {vr(vT1)}
s_waitcnt lgkmcnt(0)
s_mov_b32 {sr(SW)}, s4
s_mov_b32 {sr(SW+1)}, s5
s_mov_b32 {sr(SA)}, s20
s_mov_b32 {sr(SA+1)}, s21
s_mov_b32 {sr(SO)}, s6
s_mov_b32 {sr(SO+1)}, s7''')
    for j in range(4):
        a(f's_cmp_ge_u32 {sr(sW)}, 5')
        a(f's_cbranch_scc1 {name}_skipw{j}')
        for aa in range(5*j, 5*j+5):
            a(f's_add_u32 m0, {sr(sM0)}, {aa*5120}')
            a(f's_mov_b32 {sr(sT)}, {aa*32*1280}')
            a(f'buffer_load_dwordx4 {vr(vDW)}, {sr(SW,4)}, {sr(sT)} offen lds')
        a.label(f'{name}_skipw{j}')
        for p in range(4):
            a(f's_add_u32 {sr(sT)}, {sr(sA)}, {(8*j+2*p)*1280}')
            a(f'buffer_load_dwordx4 {vr(A[j][p],4)}, {vr(vAo)}, {sr(SA,4)}, {sr(sT)} offen')
        a(f's_add_u32 {sr(sT)}, {sr(sA)}, {(8*j)*1280}')
        a(f'buffer_load_dwordx2 {vr(A[j][4],2)}, {vr(vAt)}, {sr(SA,4)}, {sr(sT)} offen')
        a(f's_add_u32 {sr(sT)}, {sr(sA)}, {(8*j+4)*1280}')
        a(f'buffer_load_dwordx2 {vr(A[j][4]+2,2)}, {vr(vAt)}, {sr(SA,4)}, {sr(sT)} offen')
    a(f'''v_bfe_u32 {vr(vT0)}, {vr(vLane)}, 2, 2
v_lshrrev_b32 {vr(vT1)}, 5, {vr(vLane)}
v_mul_u32_u24 {vr(vT1)}, 20, {vr(vT1)}
v_bfe_u32 {vr(vT2)}, {vr(vLane)}, 4, 1
v_lshl_add_u32 {vr(vT1)}, {vr(vT2)}, 2, {vr(vT1)}
v_add_u32 {vr(vT1)}, {vr(vT1)}, {vr(vT0)}
v_mul_u32_u24 {vr(vT1)}, 160, {vr(vT1)}
v_and_b32 {vr(vT2)}, 3, {vr(vLane)}
v_lshl_add_u32 {vr(vWr)}, {vr(vT2)}, 3, {vr(vT1)}
v_add_u32 {vr(vWr2)}, {320*160}, {vr(vWr)}
v_lshrrev_b32 {vr(vT1)}, 4, {vr(vLane)}
v_mul_u32_u24 {vr(vT1)}, 20, {vr(vT1)}
v_add3_u32 {vr(vT1)}, {vr(vT1)}, {vr(vT0)}, 16
v_mul_u32_u24 {vr(vT1)}, 160, {vr(vT1)}
v_lshl_add_u32 {vr(vWt)}, {vr(vT2)}, 3, {vr(vT1)}
v_add_u32 {vr(vWt2)}, {320*160}, {vr(vWt)}''')
    a(f'''s_lshl_b32 {sr(sT)}, {sr(sMt)}, 7
s_lshl_b32 {sr(sT2)}, {sr(sW)}, 4
s_add_u32 {sr(sT)}, {sr(sT)}, {sr(sT2)}
v_and_b32 {vr(vT0)}, 15, {vr(vLane)}
v_add_u32 {vr(vT0)}, {sr(sT)}, {vr(vT0)}
v_mul_u32_u24 {vr(vT0)}, 2560, {vr(vT0)}
v_lshrrev_b32 {vr(vT1)}, 4, {vr(vLane)}
v_lshl_add_u32 {vr(vT0)}, {vr(vT1)}, 3, {vr(vT0)}
s_mul_i32 {sr(sT)}, {sr(sB)}, 1280
s_mul_i32 {sr(sT2)}, {sr(sNt)}, 160
s_add_u32 {sr(sT)}, {sr(sT)}, {sr(sT2)}
v_add_u32 {vr(vOo)}, {sr(sT)}, {vr(vT0)}''')
    for t in range(5):
        for i in range(4):
            a(f'v_mov_b32 {vr(acc[t]+i)}, 0')
    def rdW(fs, j, p):
        out = []
        jj = j % 2
        for t in range(5):
            for rd in range(2):
                if p < 4:
                    base = vWr if j < 2 else vWr2
                    off = (20*(8*jj+2*p) + 8*rd)*160 + t*32
                else:
                    base = vWt if j < 2 else vWt2
                    off = (20*(8*jj+4*rd))*160 + t*32
                out.append(f'ds_read_b64_tr_b16 {vr(Wf[fs][t]+2*rd,2)}, {vr(base)} offset:{off}')
        return out
    def mf(fs, j, p):
        return [f'v_mfma_f32_16x16x32_bf16 {vr(acc[t],4)}, {vr(Wf[fs][t],4)}, {vr(A[j][p],4)}, {vr(acc[t],4)}' for t in range(5)]
    steps = [(j, p) for j in range(4) for p in range(5)]
    prev = None
    for n, (j, p) in enumerate(steps):
        fs = n % 2
        if p == 0:
            a(f's_cmp_ge_u32 {sr(sW)}, 5')
            a(f's_cbranch_scc1 {name}_w{j}a')
            a(f's_waitcnt vmcnt({11*(3-j)})')
            a(f's_branch {name}_w{j}b')
            a.label(f'{name}_w{j}a')
            a(f's_waitcnt vmcnt({6*(3-j)})')
            a.label(f'{name}_w{j}b')
            a('s_barrier')
        for r in rdW(fs, j, p):
            a(r)
        if prev is not None:
            a('s_waitcnt lgkmcnt(10)')
            for m in mf(1 - fs, *prev):
                a(m)
        prev = (j, p)
    a('s_waitcnt lgkmcnt(0)')
    for m in mf(1, *prev):
        a(m)
    a('s_nop 7')
    for t in range(5):
        a(f'v_cvt_pk_bf16_f32 {vr(acc[t])}, {vr(acc[t])}, {vr(acc[t]+1)}')
        a(f'v_cvt_pk_bf16_f32 {vr(acc[t]+1)}, {vr(acc[t]+2)}, {vr(acc[t]+3)}')
        a(f'buffer_store_dwordx2 {vr(acc[t],2)}, {vr(vOo)}, {sr(SO,4)}, 0 offen offset:{t*32}')
    a.label(f'{name}_done')
    a('s_endpgm')
    return a.text(), descriptor(name, nv, ns), f'; @launch kernel={name} grid=(256,1,1) block=(512,1,1) lds={OUT_LDS}'
```

```python
from common import *
import math, struct

XST = 32768
WB = 3 * XST
WST = 16384
QKV_LDS = WB + 3 * WST
def f32bits(x):
    return struct.unpack('<I', struct.pack('<f', x))[0]
QSCALE = f32bits(math.log2(math.e) / math.sqrt(20.0))

def gen_qkv(name='qkv_kernel', opts=None):
    a = Asm()
    V = VAlloc(0)
    vTid = V(); vLane = V(); vT0 = V(); vT1 = V(); vT2 = V(); vT3 = V(); vT4 = V(); vT5 = V()
    vDX = V(); vDW = V()
    vX = [V() for _ in range(4)]
    vX2 = [V() for _ in range(4)]
    vW = [V(), V()]
    vEo = [V() for _ in range(8)]
    F = [dict(x=[V(4), V(4)], w=[V(4), V(4)]) for _ in range(2)]
    acc = [[V(16), V(16)], [V(16), V(16)]]
    nv = V.n
    sPx = 4; sPw = 6
    SX = 8; SW = 12; SO = 16
    sWs = 20
    sW = 22; sB = 23; sMt = 24; sNt = 25; sT = 26; sT2 = 27
    sM0x = 28; sM0w = 29; sScale = 30; sHS = 31; sB0 = 32; sB1 = 33; sCol = 34; sTy = 35
    ns = 40
    a(f'.globl {name}\n.p2align 8\n.type {name},@function')
    a.label(name)
    a(f'''s_cmp_ge_u32 s2, 240
s_cbranch_scc1 {name}_done
s_and_b32 {sr(sT)}, s2, 7
s_lshr_b32 {sr(sB)}, {sr(sT)}, 2
s_mul_i32 {sr(sT2)}, {sr(sB)}, 24
s_add_u32 s0, s0, {sr(sT2)}
s_addc_u32 s1, s1, 0
s_load_dwordx4 s[4:7], s[0:1], 0
s_sub_u32 s0, s0, {sr(sT2)}
s_subb_u32 s1, s1, 0
s_load_dwordx2 {sr(sWs,2)}, s[0:1], 64
v_lshrrev_b32 {vr(vT0)}, 6, v0
v_and_b32 {vr(vLane)}, 63, v0
s_and_b32 {sr(sT)}, {sr(sT)}, 3
v_readfirstlane_b32 {sr(sW)}, {vr(vT0)}
s_lshr_b32 {sr(sT2)}, s2, 3
s_cmp_ge_u32 {sr(sT2)}, 15
s_cselect_b32 {sr(sMt)}, 1, 0
s_cselect_b32 {sr(sNt)}, 15, 0
s_sub_u32 {sr(sNt)}, {sr(sT2)}, {sr(sNt)}
s_lshl_b32 {sr(sT)}, {sr(sT)}, 1
s_add_u32 {sr(sMt)}, {sr(sMt)}, {sr(sT)}
s_mov_b32 {sr(SX+2)}, {2048*1280}
s_mov_b32 {sr(SX+3)}, 0x20000
s_mov_b32 {sr(SW+2)}, {640*3840}
s_mov_b32 {sr(SW+3)}, 0x20000
s_mov_b32 {sr(SO+2)}, {WS_END}
s_mov_b32 {sr(SO+3)}, 0x20000''')
    a(f'''s_lshl_b32 {sr(sT)}, {sr(sMt)}, 8
s_lshl_b32 {sr(sT2)}, {sr(sW)}, 3
s_add_u32 {sr(sT)}, {sr(sT)}, {sr(sT2)}
v_lshrrev_b32 {vr(vT0)}, 3, {vr(vLane)}
v_add_u32 {vr(vT0)}, {sr(sT)}, {vr(vT0)}
v_mul_u32_u24 {vr(vT0)}, 1280, {vr(vT0)}
s_and_b32 {sr(sT)}, {sr(sW)}, 1
s_lshl_b32 {sr(sT)}, {sr(sT)}, 2
v_lshrrev_b32 {vr(vT1)}, 4, {vr(vLane)}
v_add_u32 {vr(vT2)}, {sr(sT)}, {vr(vT1)}
v_and_b32 {vr(vT3)}, 7, {vr(vLane)}
v_xor_b32 {vr(vT2)}, {vr(vT2)}, {vr(vT3)}
v_lshl_add_u32 {vr(vDX)}, {vr(vT2)}, 4, {vr(vT0)}
v_add_u32 {vr(vT0)}, {sr(sT2)}, {vr(vT1)}
v_mul_u32_u24 {vr(vT0)}, 3840, {vr(vT0)}
v_and_b32 {vr(vT3)}, 15, {vr(vLane)}
v_lshlrev_b32 {vr(vT1)}, 2, {vr(vT1)}
v_xor_b32 {vr(vT3)}, {vr(vT3)}, {vr(vT1)}
v_lshl_add_u32 {vr(vT0)}, {vr(vT3)}, 4, {vr(vT0)}
s_lshl_b32 {sr(sT)}, {sr(sNt)}, 8
v_add_u32 {vr(vDW)}, {sr(sT)}, {vr(vT0)}
s_lshl_b32 {sr(sM0x)}, {sr(sW)}, 10
s_lshl_b32 {sr(sM0w)}, {sr(sW)}, 11
s_waitcnt lgkmcnt(0)
s_mov_b32 {sr(SX)}, s4
s_mov_b32 {sr(SX+1)}, s5
s_mov_b32 {sr(SW)}, s6
s_mov_b32 {sr(SW+1)}, s7
s_mov_b32 {sr(SO)}, {sr(sWs)}
s_mov_b32 {sr(SO+1)}, {sr(sWs+1)}''')
    def dma_list(step):
        st = step % 3
        out = []
        for jj in range(4):
            out.append(f's_add_u32 m0, {sr(sM0x)}, {st*XST + jj*8192}\ns_mov_b32 {sr(sT)}, {jj*81920 + 128*step}\nbuffer_load_dwordx4 {vr(vDX)}, {sr(SX,4)}, {sr(sT)} offen lds')
        for jj in range(2):
            out.append(f's_add_u32 m0, {sr(sM0w)}, {WB + st*WST + jj*1024}\ns_mov_b32 {sr(sT)}, {(step*64 + jj*4)*3840}\nbuffer_load_dwordx4 {vr(vDW)}, {sr(SW,4)}, {sr(sT)} offen lds')
        return out
    for step in range(3):
        for d in dma_list(step):
            a(d)
    a(f'''s_and_b32 {sr(sT)}, {sr(sW)}, 3
s_lshl_b32 {sr(sT)}, {sr(sT)}, 6
v_and_b32 {vr(vT0)}, 31, {vr(vLane)}
v_lshrrev_b32 {vr(vT1)}, 5, {vr(vLane)}
v_lshrrev_b32 {vr(vT2)}, 1, {vr(vT0)}
v_and_b32 {vr(vT2)}, 7, {vr(vT2)}
v_xor_b32 {vr(vT2)}, {vr(vT2)}, {vr(vT1)}
v_add_u32 {vr(vT0)}, {sr(sT)}, {vr(vT0)}
v_lshlrev_b32 {vr(vT0)}, 7, {vr(vT0)}
v_lshl_add_u32 {vr(vX[0])}, {vr(vT2)}, 4, {vr(vT0)}''')
    for s4 in range(1, 4):
        a(f'v_xor_b32 {vr(vX[s4])}, {s4<<5}, {vr(vX[0])}')
    for s4 in range(4):
        a(f'v_add_u32 {vr(vX2[s4])}, {2*XST}, {vr(vX[s4])}')
    a(f'''v_bfe_u32 {vr(vT0)}, {vr(vLane)}, 2, 2
v_lshl_add_u32 {vr(vT2)}, {vr(vT1)}, 3, {vr(vT0)}
v_lshlrev_b32 {vr(vT2)}, 8, {vr(vT2)}
v_bfe_u32 {vr(vT3)}, {vr(vLane)}, 4, 1
v_lshl_add_u32 {vr(vT2)}, {vr(vT3)}, 5, {vr(vT2)}
v_and_b32 {vr(vT3)}, 3, {vr(vLane)}
v_lshl_add_u32 {vr(vT2)}, {vr(vT3)}, 3, {vr(vT2)}
v_add_u32 {vr(vT2)}, {WB}, {vr(vT2)}
s_lshr_b32 {sr(sT)}, {sr(sW)}, 2
s_lshl_b32 {sr(sT)}, {sr(sT)}, 1
v_xor_b32 {vr(vT0)}, {sr(sT)}, {vr(vT0)}
v_lshl_add_u32 {vr(vW[0])}, {vr(vT0)}, 6, {vr(vT2)}
v_xor_b32 {vr(vW[1])}, 64, {vr(vW[0])}''')
    for fi in range(2):
        for ti in range(2):
            for i in range(16):
                a(f'v_mov_b32 {vr(acc[fi][ti]+i)}, 0')
    a(f'''s_cmp_ge_u32 {sr(sNt)}, 5
s_cselect_b32 {sr(sTy)}, 1, 0
s_cmp_ge_u32 {sr(sNt)}, 10
s_cselect_b32 {sr(sTy)}, 2, {sr(sTy)}
s_mul_i32 {sr(sT)}, {sr(sTy)}, 5
s_sub_u32 {sr(sCol)}, {sr(sNt)}, {sr(sT)}
s_lshl_b32 {sr(sCol)}, {sr(sCol)}, 7
s_lshr_b32 {sr(sT)}, {sr(sW)}, 2
s_lshl_b32 {sr(sT)}, {sr(sT)}, 6
s_add_u32 {sr(sCol)}, {sr(sCol)}, {sr(sT)}
s_cmp_eq_u32 {sr(sTy)}, 2
s_cbranch_scc1 {name}_V''')

    def reads(fs, step, s4):
        st = step % 3
        xa = (vX2 if st == 2 else vX)[s4]
        xo = XST if st == 1 else 0
        out = []
        out.append(f'ds_read_b128 {vr(F[fs]["x"][0],4)}, {vr(xa)} offset:{xo}')
        for bi in range(2):
            for rd in range(2):
                out.append(f'ds_read_b64_tr_b16 {vr(F[fs]["w"][bi]+2*rd,2)}, {vr(vW[bi])} offset:{st*WST + (16*s4+4*rd)*256}')
        out.append(f'ds_read_b128 {vr(F[fs]["x"][1],4)}, {vr(xa)} offset:{xo+4096}')
        return out
    def mfmas(fs, isV):
        out = []
        for ti in range(2):
            for fi in range(2):
                A, B = F[fs]['w'][fi], F[fs]['x'][ti]
                if isV:
                    A, B = B, A
                out.append(f'v_mfma_f32_32x32x16_bf16 {vr(acc[fi][ti],16)}, {vr(A,4)}, {vr(B,4)}, {vr(acc[fi][ti],16)}')
        return out
    def mainloop(isV):
        for step in range(10):
            if step > 0:
                a('s_waitcnt lgkmcnt(0)')
            a(f's_waitcnt vmcnt({12 if step == 0 else (6 if step < 9 else 0)})')
            a('s_barrier')
            for r in reads(0, step, 0):
                a(r)
            if step > 0:
                m = mfmas(1, isV)
                d = dma_list(step + 2) if step + 2 < 10 else []
                for i in range(4):
                    a(m[i])
                    for dd in d[i*2:(i+1)*2] if i < 3 else []:
                        a(dd)
            for s4 in range(1, 4):
                fs = s4 % 2
                for r in reads(fs, step, s4):
                    a(r)
                a('s_waitcnt lgkmcnt(6)')
                for m in mfmas(1 - fs, isV):
                    a(m)
        a('s_waitcnt lgkmcnt(0)')
        for m in mfmas(1, isV):
            a(m)
    mainloop(False)
    a(f'''s_cmp_eq_u32 {sr(sTy)}, 0
s_cselect_b32 {sr(sScale)}, {QSCALE}, 1.0
s_cselect_b32 {sr(sB0)}, {WS_Q}, {WS_KV}
s_lshl_b32 {sr(sHS)}, {Q_HEAD}, {sr(sTy)}
s_lshl_b32 {sr(sT2)}, 1280, {sr(sTy)}
s_lshl_b32 {sr(sT)}, {sr(sB)}, 5
s_mul_i32 {sr(sT)}, {sr(sT)}, {sr(sHS)}
s_add_u32 {sr(sB0)}, {sr(sB0)}, {sr(sT)}
s_lshl_b32 {sr(sT)}, {sr(sMt)}, 3
s_and_b32 {sr(sB1)}, {sr(sW)}, 3
s_lshl_b32 {sr(sB1)}, {sr(sB1)}, 1
s_add_u32 {sr(sT)}, {sr(sT)}, {sr(sB1)}
s_mul_i32 {sr(sT)}, {sr(sT)}, {sr(sT2)}
s_add_u32 {sr(sB0)}, {sr(sB0)}, {sr(sT)}
s_add_u32 {sr(sB1)}, {sr(sB0)}, {sr(sT2)}
v_and_b32 {vr(vT0)}, 31, {vr(vLane)}
v_and_b32 {vr(vT1)}, 0x13, {vr(vT0)}
v_bfe_u32 {vr(vT2)}, {vr(vT0)}, 2, 1
v_lshl_or_b32 {vr(vT1)}, {vr(vT2)}, 3, {vr(vT1)}
v_bfe_u32 {vr(vT2)}, {vr(vT0)}, 3, 1
v_lshl_or_b32 {vr(vT1)}, {vr(vT2)}, 2, {vr(vT1)}
s_cmp_eq_u32 {sr(sTy)}, 0
s_cselect_b64 vcc, -1, 0
v_cndmask_b32 {vr(vT0)}, {vr(vT1)}, {vr(vT0)}, vcc
v_lshrrev_b32 {vr(vT1)}, 5, {vr(vLane)}
v_lshlrev_b32 {vr(vT1)}, 2, {vr(vT1)}
v_add_u32 {vr(vT1)}, {sr(sCol)}, {vr(vT1)}''')
    for fi in range(2):
        for g in range(4):
            e = vEo[fi*4+g]
            a(f'''v_add_u32 {vr(vT2)}, {fi*32+8*g}, {vr(vT1)}
v_mul_u32_u24 {vr(vT3)}, 3277, {vr(vT2)}
v_lshrrev_b32 {vr(vT3)}, 16, {vr(vT3)}
v_mul_u32_u24 {vr(vT4)}, 20, {vr(vT3)}
v_sub_u32 {vr(vT2)}, {vr(vT2)}, {vr(vT4)}
v_mul_u32_u24 {vr(e)}, {sr(sHS)}, {vr(vT3)}
v_cmp_gt_u32 vcc, 16, {vr(vT2)}
v_lshrrev_b32 {vr(vT3)}, 3, {vr(vT2)}
v_lshlrev_b32 {vr(vT3)}, 9, {vr(vT3)}
v_and_b32 {vr(vT4)}, 4, {vr(vT2)}
v_lshl_add_u32 {vr(vT3)}, {vr(vT4)}, 1, {vr(vT3)}
v_cndmask_b32_e64 {vr(vT4)}, 3, 4, vcc
v_lshlrev_b32 {vr(vT4)}, {vr(vT4)}, {vr(vT0)}
v_add3_u32 {vr(e)}, {vr(e)}, {vr(vT3)}, {vr(vT4)}''')
    for ti in range(2):
        for fi in range(2):
            r0 = acc[fi][ti]
            for i in range(16):
                a(f'v_mul_f32 {vr(r0+i)}, {sr(sScale)}, {vr(r0+i)}')
            for i in range(8):
                a(f'v_cvt_pk_bf16_f32 {vr(r0+i)}, {vr(r0+2*i)}, {vr(r0+2*i+1)}')
            for g in range(4):
                a(f'buffer_store_dwordx2 {vr(r0+2*g,2)}, {vr(vEo[fi*4+g])}, {sr(SO,4)}, {sr(sB0 if ti == 0 else sB1)} offen')
    a('s_endpgm')
    a.label(f'{name}_V')
    mainloop(True)
    a(f'''s_lshl_b32 {sr(sT)}, {sr(sB)}, 5
s_mul_i32 {sr(sB0)}, {sr(sT)}, {KV_HEAD}
s_lshl_b32 {sr(sT)}, {sr(sMt)}, 3
s_and_b32 {sr(sB1)}, {sr(sW)}, 3
s_lshl_b32 {sr(sB1)}, {sr(sB1)}, 1
s_add_u32 {sr(sT)}, {sr(sT)}, {sr(sB1)}
s_mul_i32 {sr(sT)}, {sr(sT)}, 2560
s_add_u32 {sr(sB0)}, {sr(sB0)}, {sr(sT)}
s_add_u32 {sr(sB0)}, {sr(sB0)}, {WS_KV + 1280}
s_mov_b32 {sr(sHS)}, {KV_HEAD}
v_and_b32 {vr(vT0)}, 31, {vr(vLane)}
v_add_u32 {vr(vT0)}, {sr(sCol)}, {vr(vT0)}
v_lshrrev_b32 {vr(vT1)}, 5, {vr(vLane)}
v_mul_u32_u24 {vr(vT1)}, 320, {vr(vT1)}''')
    for fi in range(2):
        e = vEo[fi]
        a(f'''v_add_u32 {vr(vT2)}, {fi*32}, {vr(vT0)}
v_mul_u32_u24 {vr(vT3)}, 3277, {vr(vT2)}
v_lshrrev_b32 {vr(vT3)}, 16, {vr(vT3)}
v_mul_u32_u24 {vr(vT4)}, 20, {vr(vT3)}
v_sub_u32 {vr(vT2)}, {vr(vT2)}, {vr(vT4)}
v_mul_u32_u24 {vr(e)}, {sr(sHS)}, {vr(vT3)}
v_lshlrev_b32 {vr(vT2)}, 4, {vr(vT2)}
v_add3_u32 {vr(e)}, {vr(e)}, {vr(vT2)}, {vr(vT1)}''')
    for ti in range(2):
        for fi in range(2):
            r0 = acc[fi][ti]
            for i in range(8):
                a(f'v_cvt_pk_bf16_f32 {vr(r0+i)}, {vr(r0+2*i)}, {vr(r0+2*i+1)}')
            for n in range(2):
                a(f'buffer_store_dwordx4 {vr(r0+4*n,4)}, {vr(vEo[fi])}, {sr(SO,4)}, {sr(sB0)} offen offset:{ti*2560 + n*640}')
    a.label(f'{name}_done')
    a('s_endpgm')
    return a.text(), descriptor(name, nv, ns), f'; @launch kernel={name} grid=(240,1,1) block=(512,1,1) lds={QKV_LDS}'
```

```python
import sys
from common import *
from k_attn import gen_attn
from k_qkv import gen_qkv
from k_out import gen_out
HDR = open('concat_heads__mha_block__mha_block__prompt.s.ref').read().split('; Override')[0]
def build(opts=None):
    ks = [gen_qkv(opts=opts), gen_attn(opts=opts), gen_out(opts=opts)]
    out = HDR
    for k in ks:
        out += k[2] + '\n'
    out += '.amdgcn_target "amdgcn-amd-amdhsa--gfx950"\n.text\n'
    for k in ks:
        out += k[0]
    out += '.section .rodata,"a"\n'
    for k in ks:
        out += k[1]
    return out
if __name__ == '__main__':
    path = sys.argv[1] if len(sys.argv) > 1 else 'concat_heads__mha_block__mha_block__prompt.s'
    open(path, 'w').write(build())
```

```python
class Asm:
    def __init__(self):
        self.lines = []
    def __call__(self, s):
        for l in s.split('\n'):
            if l.strip() == 'SKIP': continue
            self.lines.append(l if (l.endswith(':') or l.startswith('.') or l.startswith(';')) else '    ' + l.strip())
    def label(self, n):
        self.lines.append(n + ':')
    def text(self):
        return '\n'.join(self.lines) + '\n'

def vr(b, n=1):
    return f'v{b}' if n == 1 else f'v[{b}:{b+n-1}]'
def ar(b, n=1):
    return f'a{b}' if n == 1 else f'a[{b}:{b+n-1}]'
def sr(b, n=1):
    return f's{b}' if n == 1 else f's[{b}:{b+n-1}]'

class VAlloc:
    def __init__(self, start=0):
        self.n = start
    def __call__(self, cnt=1, align=None):
        if align is None:
            align = 1 if cnt == 1 else (2 if cnt == 2 else 4)
        self.n = (self.n + align - 1) // align * align
        b = self.n
        self.n += cnt
        return b

WS_KV = 0
KV_HEAD = 64 * 2560
WS_Q = 64 * KV_HEAD
Q_HEAD = 64 * 1280
WS_O = WS_Q + 64 * Q_HEAD
O_BLOCK = 64 * 32 * 1280
WS_END = WS_O + 2 * O_BLOCK

def descriptor(name, nv, ns, accum=None):
    if accum is None:
        accum = (nv + 3) // 4 * 4
    return f'''.p2align 6
.amdhsa_kernel {name}
  .amdhsa_next_free_vgpr {nv}
  .amdhsa_next_free_sgpr {ns}
  .amdhsa_accum_offset {accum}
  .amdhsa_group_segment_fixed_size 0
  .amdhsa_kernarg_size 72
  .amdhsa_user_sgpr_count 2
  .amdhsa_user_sgpr_kernarg_segment_ptr 1
  .amdhsa_system_sgpr_workgroup_id_x 1
.end_amdhsa_kernel
'''

DIAG = 0x2000000
class Stamper:
    def __init__(self, a, on, kidx, sbase, srd_ws_ptr, vtmp):
        self.a, self.on, self.k, self.sb, self.n = a, on, kidx, sbase, 0
        self.ws = srd_ws_ptr; self.vt = vtmp
    def nsgpr(self):
        return self.sb + 38
    def rt(self):
        if not self.on: return
        self.a(f's_memrealtime s[{self.sb+2*self.n}:{self.sb+2*self.n+1}]\ns_waitcnt lgkmcnt(0)')
        self.n += 1
    def __call__(self):
        if not self.on: return
        self.a(f's_memtime s[{self.sb+2*self.n}:{self.sb+2*self.n+1}]\ns_waitcnt lgkmcnt(0)')
        self.n += 1
    def flush(self, sW):
        if not self.on: return
        a = self.a; b = (self.sb + 28 + 3) // 4 * 4; vt = self.vt
        a(f's_mov_b32 s{b}, s{self.ws}\ns_mov_b32 s{b+1}, s{self.ws+1}\ns_mov_b32 s{b+2}, 0x10000000\ns_mov_b32 s{b+3}, 0x20000')
        a(f's_lshl_b32 s{b+4}, s2, 4\ns_add_u32 s{b+4}, s{b+4}, s{sW}\ns_lshl_b32 s{b+4}, s{b+4}, 6\ns_add_u32 s{b+4}, s{b+4}, {DIAG + self.k*0x100000}')
        a(f's_mov_b64 exec, 1\nv_mov_b32 v{vt}, 0')
        for i in range(self.n):
            a(f'v_mov_b32 v{vt+1}, s{self.sb+2*i}\nbuffer_store_dword v{vt+1}, v{vt}, s[{b}:{b+3}], s{b+4} offen offset:{4*i}\ns_nop 1')
        a('s_mov_b64 exec, -1')
```

```python
from common import *
import math, struct

def f32bits(x):
    return struct.unpack('<I', struct.pack('<f', x))[0]
QSCALE = f32bits(math.log2(math.e) / math.sqrt(20.0))

XSZ = 16384
STG = XSZ + 30720
SLOT = 40960
ONES = 3 * SLOT + 128
QST = 131584
LDS_TOTAL = QST + 20480
F_WS_KV = 0
F_WS_O = 64 * KV_HEAD
F_FLAG1 = F_WS_O + 2 * 32 * 32 * 2560
F_FLAG2 = F_FLAG1 + 16 * 256
F_EPOCH = F_FLAG2 + 32 * 256
F_WS_END = F_EPOCH + 256
TAGK = 0x9E3779B9
POLL_LIMIT = 1 << 16

def gen_fused(name='fused_kernel', opts=None):
    opts = opts or {}
    a = Asm()
    SC = ' sc1'
    SX, SWQ, SWS, SDBG, SWO, SOUT = 8, 12, 16, 20, 24, 28
    sW, sB, sMt, sHg, sT, sT2, sT3 = 32, 33, 34, 35, 36, 37, 38
    sM0a, sM0b, sM0c = 39, 40, 41
    sHi = 42
    sG, sOff, sOo = 44, 45, 46
    sKV = 47
    sM, sM2 = 48, 50
    sRdy, sCnt, sNeed, sI, sSlot, sSrc = 52, 53, 54, 55, 56, 57
    sScale = 58
    sA = 60
    sPub, sPub2 = 55, 56
    sTag = 61
    sMt3, sCg = 4, 5
    sKK, sXo, sWo = 3, 53, 54
    ns = 64
    vLane, vT0, vT1, vT2, vT3, vT4, vT5 = 1, 2, 3, 4, 5, 6, 7
    VBASE = 8
    st = Stamper(a, opts.get('stamp'), 0, 62, 6, vT0)
    if st.on: ns = st.nsgpr()
    sset = opts.get('sset', 0)
    def st0():
        if sset == 0: st()
    def st1():
        if sset == 1: st()
    maxv = [0]
    def done_alloc(V):
        maxv[0] = max(maxv[0], V.n)

    a(f'.globl {name}\n.p2align 8\n.type {name},@function')
    a.label(name)
    a(f'''s_cmp_ge_u32 s2, 256
s_cbranch_scc1 {name}_done
s_bfe_u32 {sr(sB)}, s2, 0x10002
s_load_dwordx4 {sr(SOUT,4)}, s[0:1], 48
s_load_dwordx2 s[6:7], s[0:1], 64
s_mul_i32 {sr(sT2)}, {sr(sB)}, 24
s_add_u32 s0, s0, {sr(sT2)}
s_addc_u32 s1, s1, 0
s_load_dwordx4 {sr(SX,4)}, s[0:1], 0
s_load_dwordx2 {sr(SWO,2)}, s[0:1], 16
v_lshrrev_b32 {vr(vT0)}, 6, v0
v_and_b32 {vr(vLane)}, 63, v0
s_lshr_b32 {sr(sT)}, s2, 3
v_readfirstlane_b32 {sr(sW)}, {vr(vT0)}
s_and_b32 {sr(sMt)}, {sr(sT)}, 7
s_lshr_b32 {sr(sHg)}, {sr(sT)}, 3
s_and_b32 {sr(sT)}, s2, 1
s_lshl_b32 {sr(sT)}, {sr(sT)}, 3
s_add_u32 {sr(sMt)}, {sr(sMt)}, {sr(sT)}
s_and_b32 {sr(sT)}, s2, 2
s_lshl_b32 {sr(sT)}, {sr(sT)}, 1
s_add_u32 {sr(sHg)}, {sr(sHg)}, {sr(sT)}
s_mov_b32 {sr(sHi)}, 0
s_mov_b32 {sr(sHi+1)}, -1
s_bfe_u32 {sr(sCg)}, s2, 0x30003
s_and_b32 {sr(sMt3)}, s2, 3
s_lshl_b32 {sr(sMt3)}, {sr(sMt3)}, 2
s_lshr_b32 {sr(sT)}, s2, 6
s_add_u32 {sr(sMt3)}, {sr(sMt3)}, {sr(sT)}
s_waitcnt lgkmcnt(0)
s_mov_b32 {sr(SWQ)}, {sr(SX+2)}
s_mov_b32 {sr(SWQ+1)}, {sr(SX+3)}
s_mov_b32 {sr(SDBG)}, {sr(SOUT+2)}
s_mov_b32 {sr(SDBG+1)}, {sr(SOUT+3)}
s_mov_b32 {sr(SWS)}, s6
s_mov_b32 {sr(SWS+1)}, s7
s_mov_b32 {sr(SX+2)}, {2048*1280}
s_mov_b32 {sr(SX+3)}, 0x20000
s_mov_b32 {sr(SWQ+2)}, {640*3840}
s_mov_b32 {sr(SWQ+3)}, 0x20000
s_mov_b32 {sr(SWS+2)}, {F_WS_END}
s_mov_b32 {sr(SWS+3)}, 0x20000
s_mov_b32 {sr(SDBG+2)}, 256
s_mov_b32 {sr(SDBG+3)}, 0x20000
s_mov_b32 {sr(SWO+2)}, {640*1280}
s_mov_b32 {sr(SWO+3)}, 0x20000
s_mov_b32 {sr(SOUT+2)}, {2048*2560}
s_mov_b32 {sr(SOUT+3)}, 0x20000
s_lshl_b32 {sr(sT)}, {sr(sB)}, 3
s_add_u32 {sr(sT)}, {sr(sT)}, {sr(sHg)}
s_mul_i32 {sr(sKV)}, {sr(sT)}, {4*KV_HEAD}''')
    rot = opts.get('rot', 4)
    a(f's_lshr_b32 {sr(sT)}, s2, 3')
    a(f's_and_b32 {sr(sT2)}, {sr(sT)}, 7')
    a(f's_lshr_b32 {sr(sT)}, {sr(sT)}, 3')
    a(f's_add_u32 {sr(sT)}, {sr(sT)}, {sr(sT2)}')
    if rot == 0:
        a(f's_mov_b32 {sr(sKK)}, 0')
    elif rot == 10:
        a(f's_lshr_b32 {sr(sT)}, s2, 6')
        a(f's_mul_i32 {sr(sT)}, {sr(sT)}, 3')
        a(f's_add_u32 {sr(sKK)}, {sr(sT)}, {sr(sT2)}')
        a(f's_cmp_ge_u32 {sr(sKK)}, 10')
        a(f's_cselect_b32 {sr(sT)}, 10, 0')
        a(f's_sub_u32 {sr(sKK)}, {sr(sKK)}, {sr(sT)}')
    else:
        tab = {3: [0, 3, 6], 4: [0, 3, 5, 8], 2: [0, 5], 5: [0, 2, 4, 6, 8]}[rot]
        lo = sum(tab[i % rot] << (4*i) for i in range(8)); hi = sum(tab[(i+8) % rot] << (4*i) for i in range(3))
        a(f's_mov_b32 {sr(sM)}, {lo}')
        a(f's_mov_b32 {sr(sM+1)}, {hi}')
        a(f's_lshl_b32 {sr(sT)}, {sr(sT)}, 2')
        a(f's_lshr_b64 {sr(sM,2)}, {sr(sM,2)}, {sr(sT)}')
        a(f's_and_b32 {sr(sKK)}, {sr(sM)}, 15')
    st.rt(); st()
    a(f'''s_cmp_eq_u32 {sr(sW)}, 8
s_cbranch_scc1 {name}_helper''')

    VP = VAlloc(VBASE)
    vIdx = VP()
    vaK1 = VP(); vaK2 = VP(); vaV = VP()
    vbK1 = VP(); vbK2 = VP(); vbV = VP(); vmK2 = VP(); vmV = VP()
    vQo = VP(); vQo2 = VP(); vQs1 = VP(); vQs2 = VP(); vOn = VP(); vPub = VP()
    VB2 = VP.n
    V = VAlloc(VB2)
    vEp7 = V(); vCi7 = V(); vZ7 = V()
    vXr = [[V(), V()] for _ in range(3)]
    vWr = [V() for _ in range(3)]
    vE = [V() for _ in range(16)]
    Xf = [[V(4), V(4)], [V(4), V(4)]]
    Wf = [[V(4) for _ in range(4)] for _ in range(2)]
    acc = [[V(4), V(4)] for _ in range(8)]
    done_alloc(V)
    vDX = Wf[0][0]; vDW = [Wf[0][0] + 1, Wf[0][0] + 2]
    a(f'''s_lshl_b32 {sr(sT)}, {sr(sMt)}, 7
s_lshl_b32 {sr(sT2)}, {sr(sW)}, 3
s_add_u32 {sr(sT)}, {sr(sT)}, {sr(sT2)}
v_lshrrev_b32 {vr(vT0)}, 3, {vr(vLane)}
v_add_u32 {vr(vT0)}, {sr(sT)}, {vr(vT0)}
v_mul_u32_u24 {vr(vT0)}, 1280, {vr(vT0)}
s_and_b32 {sr(sT)}, {sr(sW)}, 1
s_lshl_b32 {sr(sT)}, {sr(sT)}, 2
v_lshrrev_b32 {vr(vT1)}, 4, {vr(vLane)}
v_add_u32 {vr(vT2)}, {sr(sT)}, {vr(vT1)}
v_and_b32 {vr(vT3)}, 7, {vr(vLane)}
v_xor_b32 {vr(vT2)}, {vr(vT2)}, {vr(vT3)}
v_lshl_add_u32 {vr(vDX)}, {vr(vT2)}, 4, {vr(vT0)}
s_lshl_b32 {sr(sM0a)}, {sr(sW)}, 10
s_add_u32 {sr(sT)}, {sr(sW)}, 8
s_cmp_eq_u32 {sr(sW)}, 7
s_cselect_b32 {sr(sT)}, 7, {sr(sT)}
s_lshl_b32 {sr(sM0b)}, {sr(sT)}, 10
s_mul_i32 {sr(sT3)}, {sr(sHg)}, 160''')
    for pi, sm in ((0, sM0a), (1, sM0b)):
        a(f'''s_lshr_b32 {sr(sT)}, {sr(sm)}, 4
v_add_u32 {vr(vT0)}, {sr(sT)}, {vr(vLane)}
v_mul_u32_u24 {vr(vT1)}, 2185, {vr(vT0)}
v_lshrrev_b32 {vr(vT1)}, 16, {vr(vT1)}
v_mul_u32_u24 {vr(vT2)}, 30, {vr(vT1)}
v_sub_u32 {vr(vT0)}, {vr(vT0)}, {vr(vT2)}
v_and_b32 {vr(vT2)}, 0x13, {vr(vT1)}
v_bfe_u32 {vr(vT3)}, {vr(vT1)}, 2, 1
v_lshl_or_b32 {vr(vT2)}, {vr(vT3)}, 3, {vr(vT2)}
v_bfe_u32 {vr(vT3)}, {vr(vT1)}, 3, 1
v_lshl_or_b32 {vr(vT2)}, {vr(vT3)}, 2, {vr(vT2)}
v_mul_u32_u24 {vr(vT2)}, 3840, {vr(vT2)}
v_mul_u32_u24 {vr(vT1)}, 26, {vr(vT0)}
v_lshrrev_b32 {vr(vT1)}, 8, {vr(vT1)}
v_mul_u32_u24 {vr(vT1)}, {1280-160}, {vr(vT1)}
v_lshl_add_u32 {vr(vT0)}, {vr(vT0)}, 4, {vr(vT1)}
v_add3_u32 {vr(vDW[pi])}, {vr(vT0)}, {vr(vT2)}, {sr(sT3)}''')
    def dma_list(step):
        sg = (step % 3) * STG
        out = []
        pre = f's_lshl_b32 {sr(sXo)}, {sr(sKK)}, 7\ns_mul_i32 {sr(sWo)}, {sr(sKK)}, {64*3840}\ns_add_u32 {sr(sKK)}, {sr(sKK)}, 1\ns_cmp_eq_u32 {sr(sKK)}, 10\ns_cselect_b32 {sr(sKK)}, 0, {sr(sKK)}\n'
        for jj in range(2):
            out.append((pre if jj == 0 else '') + f's_add_u32 m0, {sr(sM0a)}, {sg + jj*8192}\ns_add_u32 {sr(sT)}, {sr(sXo)}, {jj*81920}\nbuffer_load_dwordx4 {vr(vDX)}, {sr(SX,4)}, {sr(sT)} offen lds')
        for half in range(2):
            for pi, sm in ((0, sM0a), (1, sM0b)):
                out.append(f's_add_u32 m0, {sr(sm)}, {sg + XSZ + half*15360}\ns_add_u32 {sr(sT)}, {sr(sWo)}, {half*32*3840}\nbuffer_load_dwordx4 {vr(vDW[pi])}, {sr(SWQ,4)}, {sr(sT)} offen lds')
        return out
    st1()
    for d in dma_list(0):
        a(d)
    st1()
    a('s_barrier')
    st1()
    a(f'''s_cmp_eq_u32 {sr(sW)}, 7
s_cselect_b32 {sr(sM)}, 1, 0
s_mov_b32 {sr(sM+1)}, 0
v_mov_b32 {vr(vT1)}, 0x40000000
v_cndmask_b32_e64 {vr(vZ7)}, {vr(vT1)}, 0, {sr(sM,2)}
s_mov_b32 {sr(sT)}, {F_EPOCH}
buffer_load_dword {vr(vEp7)}, {vr(vZ7)}, {sr(SWS,4)}, {sr(sT)} offen{SC}''')
    a(f'''s_and_b32 {sr(sT)}, {sr(sW)}, 3
s_lshl_b32 {sr(sT)}, {sr(sT)}, 5
v_and_b32 {vr(vT0)}, 15, {vr(vLane)}
v_lshrrev_b32 {vr(vT1)}, 4, {vr(vLane)}
v_lshrrev_b32 {vr(vT2)}, 1, {vr(vT0)}
v_xor_b32 {vr(vT2)}, {vr(vT2)}, {vr(vT1)}
v_add_u32 {vr(vT0)}, {sr(sT)}, {vr(vT0)}
v_lshlrev_b32 {vr(vT0)}, 7, {vr(vT0)}
v_lshl_add_u32 {vr(vXr[0][0])}, {vr(vT2)}, 4, {vr(vT0)}
v_xor_b32 {vr(vXr[0][1])}, 64, {vr(vXr[0][0])}
v_lshrrev_b32 {vr(vT0)}, 5, {vr(vLane)}
v_lshlrev_b32 {vr(vT0)}, 4, {vr(vT0)}
v_bfe_u32 {vr(vT2)}, {vr(vLane)}, 4, 1
v_lshl_add_u32 {vr(vT0)}, {vr(vT2)}, 2, {vr(vT0)}
v_bfe_u32 {vr(vT2)}, {vr(vLane)}, 2, 2
v_add_u32 {vr(vT0)}, {vr(vT0)}, {vr(vT2)}
v_mul_u32_u24 {vr(vT0)}, 480, {vr(vT0)}
v_and_b32 {vr(vT2)}, 3, {vr(vLane)}
v_lshl_add_u32 {vr(vT0)}, {vr(vT2)}, 3, {vr(vT0)}
s_lshr_b32 {sr(sT)}, {sr(sW)}, 2
s_lshl_b32 {sr(sT)}, {sr(sT)}, 8
s_add_u32 {sr(sT)}, {sr(sT)}, {XSZ}
v_add_u32 {vr(vWr[0])}, {sr(sT)}, {vr(vT0)}''')
    for s_ in (1, 2):
        a(f'v_add_u32 {vr(vXr[s_][0])}, {s_*STG}, {vr(vXr[0][0])}')
        a(f'v_add_u32 {vr(vXr[s_][1])}, {s_*STG}, {vr(vXr[0][1])}')
        a(f'v_add_u32 {vr(vWr[s_])}, {s_*STG}, {vr(vWr[0])}')
    a(f'''s_lshr_b32 {sr(sT)}, {sr(sW)}, 1
s_mul_i32 {sr(sT2)}, {sr(sT)}, 10240
v_lshlrev_b32 {vr(vQo)}, 4, {vr(vLane)}
v_lshlrev_b32 {vr(vT0)}, 3, {vr(vLane)}
v_add_u32 {vr(vT0)}, 1024, {vr(vT0)}
v_mov_b32 {vr(vT1)}, 0x40000000
v_cndmask_b32_e64 {vr(vQo2)}, {vr(vT0)}, {vr(vT1)}, {sr(sHi,2)}
v_add_u32 {vr(vbK1)}, {sr(sT2)}, {vr(vQo)}
v_add_u32 {vr(vT0)}, {sr(sT2)}, {vr(vT0)}
v_mov_b32 {vr(vT1)}, {ONES}
v_cndmask_b32_e64 {vr(vbK2)}, {vr(vT0)}, {vr(vT1)}, {sr(sHi,2)}
v_cndmask_b32_e64 {vr(vmK2)}, 1, 0, {sr(sHi,2)}
v_and_b32 {vr(vT2)}, 31, {vr(vLane)}
v_lshrrev_b32 {vr(vT3)}, 5, {vr(vLane)}
v_mul_u32_u24 {vr(vT3)}, 320, {vr(vT3)}
v_lshl_add_u32 {vr(vT3)}, {vr(vT2)}, 4, {vr(vT3)}
s_add_u32 {sr(sT3)}, {sr(sT2)}, 1280
v_add_u32 {vr(vT3)}, {sr(sT3)}, {vr(vT3)}
v_cmp_gt_u32 vcc, 20, {vr(vT2)}
v_mov_b32 {vr(vIdx)}, 0xdddddddd
v_mov_b32 {vr(vaK1)}, {vr(vbK1)}
v_cndmask_b32 {vr(vbV)}, {vr(vT1)}, {vr(vT3)}, vcc
v_cndmask_b32_e64 {vr(vmV)}, 0, 1, vcc
v_cmp_lt_u32 vcc, 20, {vr(vT2)}
v_add_u32 {vr(vT3)}, 16, {vr(vT1)}
v_mov_b32 {vr(vaK2)}, {vr(vbK2)}
v_cndmask_b32 {vr(vbV)}, {vr(vbV)}, {vr(vT3)}, vcc
v_mov_b32 {vr(vaV)}, {vr(vbV)}
v_bfe_u32 {vr(vT2)}, {vr(vLane)}, 1, 2
v_mul_u32_u24 {vr(vT2)}, 2560, {vr(vT2)}
v_and_b32 {vr(vT3)}, 1, {vr(vLane)}
v_mul_u32_u24 {vr(vT3)}, 640, {vr(vT3)}
v_add3_u32 {vr(vOn)}, {vr(vT2)}, {vr(vT3)}, {vr(vT1)}''')
    a(f'''s_mul_i32 {sr(sT2)}, {sr(sW)}, 2560
s_add_u32 {sr(sT2)}, {sr(sT2)}, {QST}
v_add_u32 {vr(vQs1)}, {sr(sT2)}, {vr(vQo)}
v_and_b32 {vr(vQs2)}, 31, {vr(vLane)}
v_lshlrev_b32 {vr(vQs2)}, 3, {vr(vQs2)}
s_add_u32 {sr(sT2)}, {sr(sT2)}, 1024
v_add_u32 {vr(vQs2)}, {sr(sT2)}, {vr(vQs2)}
s_lshl_b32 {sr(sT2)}, {sr(sB)}, 4
s_add_u32 {sr(sT2)}, {sr(sT2)}, {sr(sMt)}
s_lshl_b32 {sr(sT2)}, {sr(sT2)}, 1
s_and_b32 {sr(sT3)}, {sr(sW)}, 1
s_add_u32 {sr(sT2)}, {sr(sT2)}, {sr(sT3)}
s_lshl_b32 {sr(sT2)}, {sr(sT2)}, 5
s_lshl_b32 {sr(sT3)}, {sr(sHg)}, 2
s_add_u32 {sr(sT2)}, {sr(sT2)}, {sr(sT3)}
s_add_u32 {sr(sT2)}, {sr(sT2)}, {sr(sT)}
s_mul_i32 {sr(sOo)}, {sr(sT2)}, 2560
s_add_u32 {sr(sOo)}, {sr(sOo)}, {F_WS_O}
s_mul_i32 {sr(sT)}, {sr(sT)}, {KV_HEAD}
s_add_u32 {sr(sKV)}, {sr(sKV)}, {sr(sT)}''')
    a(f'''s_and_b32 {sr(sT)}, {sr(sW)}, 1
s_mul_i32 {sr(sT)}, {sr(sT)}, 5120
v_add_u32 {vr(vPub)}, {sr(sT)}, {vr(vbK1)}
s_mul_i32 {sr(sT2)}, {sr(sMt)}, 10240
s_add_u32 {sr(sT)}, {sr(sT)}, {sr(sT2)}
s_add_u32 {sr(sPub)}, {sr(sT)}, {sr(sKV)}
s_add_u32 {sr(sPub2)}, {sr(sPub)}, 4096''')
    for ct in range(8):
        for tt in range(2):
            for i in range(4):
                a(f'v_mov_b32 {vr(acc[ct][tt]+i)}, 0')
    a(f's_mov_b32 {sr(sScale)}, {QSCALE}')
    a(f's_mov_b32 {sr(sScale+1)}, {QSCALE}')
    a(f's_and_b32 {sr(sT3)}, {sr(sW)}, 3')
    a(f's_cmp_ge_u32 {sr(sW)}, 4')
    a(f's_cbranch_scc1 {name}_p1b')

    def p1_variant(wn):
        kinds = ([('Q', i) for i in range(5)] + [('K', i) for i in range(3)]) if wn == 0 else ([('K', 3), ('K', 4)] + [('V', i) for i in range(5)])
        nct = len(kinds)
        a(f'''v_and_b32 {vr(vT0)}, 15, {vr(vLane)}
v_lshrrev_b32 {vr(vT1)}, 4, {vr(vLane)}''')
        eaddr = {}
        ne = 0
        for ct, (k, i) in enumerate(kinds):
            if k in 'QK':
                hs, ts, base = (5120, 1280, QST) if k == 'Q' else (10240, 2560, 0)
                e0, e1 = vE[ne], vE[ne+1]; ne += 2
                eaddr[ct] = (e0, e1)
                a(f'''v_lshl_add_u32 {vr(vT2)}, {vr(vT1)}, 2, {16*i}
v_mul_u32_u24 {vr(vT3)}, 3277, {vr(vT2)}
v_lshrrev_b32 {vr(vT3)}, 16, {vr(vT3)}
v_mul_u32_u24 {vr(vT4)}, 20, {vr(vT3)}
v_sub_u32 {vr(vT2)}, {vr(vT2)}, {vr(vT4)}
v_cmp_gt_u32 vcc, 16, {vr(vT2)}
v_mul_u32_u24 {vr(e0)}, {hs}, {vr(vT3)}
v_lshrrev_b32 {vr(vT3)}, 3, {vr(vT2)}
v_lshlrev_b32 {vr(vT3)}, 9, {vr(vT3)}
v_and_b32 {vr(vT4)}, 4, {vr(vT2)}
v_lshl_add_u32 {vr(vT3)}, {vr(vT4)}, 1, {vr(vT3)}
v_cndmask_b32_e64 {vr(vT4)}, 3, 4, vcc
v_lshlrev_b32 {vr(vT5)}, {vr(vT4)}, {vr(vT0)}
v_add3_u32 {vr(e0)}, {vr(e0)}, {vr(vT3)}, {vr(vT5)}
s_mul_i32 {sr(sT)}, {sr(sT3)}, {ts}
s_add_u32 {sr(sT)}, {sr(sT)}, {base}
v_add_u32 {vr(e0)}, {sr(sT)}, {vr(e0)}
v_lshlrev_b32 {vr(vT4)}, {vr(vT4)}, 16
v_add_u32 {vr(e1)}, {vr(e0)}, {vr(vT4)}'''.replace(f'v_lshlrev_b32 {vr(vT4)}, {vr(vT4)}, 16', f'v_lshlrev_b32_e64 {vr(vT4)}, {vr(vT4)}, 16'))
            else:
                e0 = vE[ne]; ne += 1
                eaddr[ct] = (e0,)
                a(f'''v_add_u32 {vr(vT2)}, {16*i}, {vr(vT0)}
v_mul_u32_u24 {vr(vT3)}, 3277, {vr(vT2)}
v_lshrrev_b32 {vr(vT3)}, 16, {vr(vT3)}
v_mul_u32_u24 {vr(vT4)}, 20, {vr(vT3)}
v_sub_u32 {vr(vT2)}, {vr(vT2)}, {vr(vT4)}
v_mul_u32_u24 {vr(e0)}, 10240, {vr(vT3)}
v_lshl_add_u32 {vr(e0)}, {vr(vT2)}, 4, {vr(e0)}
v_lshrrev_b32 {vr(vT3)}, 1, {vr(vT1)}
v_mul_u32_u24 {vr(vT3)}, 320, {vr(vT3)}
v_and_b32 {vr(vT4)}, 1, {vr(vT1)}
v_lshl_add_u32 {vr(vT3)}, {vr(vT4)}, 3, {vr(vT3)}
s_mul_i32 {sr(sT)}, {sr(sT3)}, 2560
s_add_u32 {sr(sT)}, {sr(sT)}, 1280
v_add3_u32 {vr(e0)}, {vr(e0)}, {vr(vT3)}, {sr(sT)}''')
        grp = [list(range(0, 4)), list(range(4, nct))]
        def rd_x(step, s2):
            return [f'ds_read_b128 {vr(Xf[s2][tt],4)}, {vr(vXr[step%3][s2])} offset:{tt*2048}' for tt in range(2)]
        def rd_w(step, s2, h, idx):
            ct = grp[h][idx]
            return [f'ds_read_b64_tr_b16 {vr(Wf[h][idx]+2*rd,2)}, {vr(vWr[step%3])} offset:{(32*s2+8*rd)*480 + ct*32}' for rd in range(2)]
        def mf(s2, h, idx):
            ct = grp[h][idx]
            out = []
            for tt in range(2):
                A, B = Wf[h][idx], Xf[s2][tt]
                if kinds[ct][0] == 'V':
                    A, B = B, A
                out.append(f'v_mfma_f32_16x16x32_bf16 {vr(acc[ct][tt],4)}, {vr(A,4)}, {vr(B,4)}, {vr(acc[ct][tt],4)}')
            return out
        n0, n1 = 2 + 2*len(grp[0]), 2*len(grp[1])
        def phase(s2, h, nxt, extra=()):
            extra = list(extra)
            if nxt is not None and h == 0:
                for r in rd_x(*nxt): a(r)
            for idx in range(len(grp[h])):
                for m in mf(s2, h, idx): a(m)
                if nxt is not None:
                    for r in rd_w(nxt[0], nxt[1], h, idx): a(r)
                for e in extra[idx*2:(idx+1)*2]: a(e)
        st1()
        a('s_waitcnt vmcnt(0)')
        a('s_barrier')
        st()
        for r in rd_x(0, 0): a(r)
        for idx in range(len(grp[0])):
            for r in rd_w(0, 0, 0, idx): a(r)
        for idx in range(len(grp[1])):
            for r in rd_w(0, 0, 1, idx): a(r)
        for step in range(10):
            a(f's_waitcnt lgkmcnt({n1})')
            phase(0, 0, (step, 1))
            a(f's_waitcnt lgkmcnt({n0})')
            phase(0, 1, (step, 1))
            a('s_waitcnt lgkmcnt(0)')
            a('s_barrier')
            if step == 0 and wn == 1:
                a(f'v_mov_b32 {vr(vCi7)}, 1')
                a(f'buffer_atomic_add {vr(vCi7)}, {vr(vZ7)}, {sr(SDBG,4)}, 0 offen sc0')
            if step in (0, 4): st0()
            if step in (0, 1, 2, 8): st1()
            nx = (step + 1, 0) if step < 9 else None
            phase(1, 0, nx)
            phase(1, 1, nx)
        st0()
        if wn == 1:
            a(f'''s_waitcnt vmcnt(0)
v_cmp_eq_u32 vcc, 255, {vr(vCi7)}
v_add_u32 {vr(vEp7)}, {TAGK}, {vr(vEp7)}
v_mov_b32 {vr(vT1)}, 0x40000000
s_mov_b32 {sr(sT)}, {F_EPOCH}
v_cndmask_b32 {vr(vZ7)}, {vr(vT1)}, {vr(vZ7)}, vcc
buffer_store_dword {vr(vEp7)}, {vr(vZ7)}, {sr(SWS,4)}, {sr(sT)} offen{SC}''')
        order = list(range(nct))
        for ct in order:
            k = kinds[ct][0]
            for tt in range(2):
                r0 = acc[ct][tt]
                if k == 'Q':
                    a(f'v_pk_mul_f32 {vr(r0,2)}, {vr(r0,2)}, {sr(sScale,2)}')
                    a(f'v_pk_mul_f32 {vr(r0+2,2)}, {vr(r0+2,2)}, {sr(sScale,2)}')
                a(f'v_cvt_pk_bf16_f32 {vr(r0)}, {vr(r0)}, {vr(r0+1)}')
                a(f'v_cvt_pk_bf16_f32 {vr(r0+1)}, {vr(r0+2)}, {vr(r0+3)}')
                if k == 'V':
                    a(f'ds_write_b64 {vr(eaddr[ct][0])}, {vr(r0,2)} offset:{tt*640}')
                else:
                    a(f'ds_write_b64 {vr(eaddr[ct][tt])}, {vr(r0,2)}')
    n_st = st.n
    p1_variant(0)
    a(f's_branch {name}_p2')
    a.label(f'{name}_p1b')
    st.n = n_st
    p1_variant(1)
    a.label(f'{name}_p2')

    V = VAlloc(VB2)
    Q1 = [V(4), V(4)]; Q2 = [V(2), V(2)]
    K1 = [V(4), V(4)]; K2 = [V(2), V(2)]
    V0 = [V(4), V(4)]; V1 = [V(4), V(4)]
    O = [V(16), V(16)]
    S = [V(16), V(16)]
    done_alloc(V)
    for i in range(4):
        a(f'v_mov_b32 {vr(S[0]+i)}, 0x3f803f80')
        a(f'v_mov_b32 {vr(S[0]+4+i)}, 0')
    a(f'ds_write_b128 {vr(vOn)}, {vr(S[0],4)}')
    a(f'ds_write_b128 {vr(vOn)}, {vr(S[0]+4,4)} offset:16')
    for t in range(2):
        for i in range(16):
            a(f'v_mov_b32 {vr(O[t]+i)}, 0')
    for i in range(4):
        a(f'v_mov_b32 {vr(V1[1]+i)}, 0')
    a(f's_mov_b32 {sr(sG)}, 0')
    a(f's_mov_b32 {sr(sOff)}, 0')
    a('s_waitcnt lgkmcnt(0)')
    a('s_barrier')
    st0()
    for q in range(5):
        a(f'ds_read_b128 {vr(S[0]+4*q,4)}, {vr(vPub)} offset:{q*1024}')
    def rdK(s_, u):
        a(f'ds_read_b128 {vr(K1[s_],4)}, {vr(vaK1)} offset:{2560*u}')
        a(f'ds_read_b64 {vr(K2[s_],2)}, {vr(vaK2)} offset:{2560*u}')
    def rdV(s_, u):
        a(f'ds_read_b128 {vr(V0[s_],4)}, {vr(vaV)} offset:{2560*u}')
        a(f'ds_read_b128 {vr(V1[s_],4)}, {vr(vaV)} offset:{2560*u+640}')
    def qk16(t, s_):
        a(f'v_mfma_f32_32x32x16_bf16 {vr(S[t],16)}, {vr(K1[s_],4)}, {vr(Q1[t],4)}, 0')
    def qk8(t, s_):
        a(f'v_mfma_f32_32x32x8_bf16 {vr(S[t],16)}, {vr(K2[s_],2)}, {vr(Q2[t],2)}, {vr(S[t],16)}')
    def pv(t, s_, n):
        Vf = (V0, V1)[n][s_]
        a(f'v_smfmac_f32_32x32x32_bf16 {vr(O[t],16)}, {vr(Vf,4)}, {vr(S[t]+8*n,8)}, {vr(vIdx)}')
    def rowmax(t, dst):
        s = S[t]
        a(f'v_max3_f32 {vr(dst)}, {vr(s)}, {vr(s+1)}, {vr(s+2)}')
        for i in range(3, 15, 2):
            a(f'v_max3_f32 {vr(dst)}, {vr(dst)}, {vr(s+i)}, {vr(s+i+1)}')
        a(f'v_max_f32 {vr(dst)}, {vr(dst)}, {vr(s+15)}')
    def crosshalf(x, y):
        a(f'v_mov_b32 {vr(y)}, {vr(x)}')
        a('s_nop 1')
        a(f'v_permlane32_swap_b32 {vr(x)}, {vr(y)}')
        a('s_nop 1')
    for t in range(2):
        a(f'ds_read_b128 {vr(Q1[t],4)}, {vr(vQs1)} offset:{1280*t}')
        a(f'ds_read_b64 {vr(Q2[t],2)}, {vr(vQs2)} offset:{1280*t}')
    rdK(0, 0); rdK(1, 1); rdV(0, 0)
    a('s_waitcnt lgkmcnt(10)')
    for q in range(5):
        a(f'buffer_store_dwordx4 {vr(S[0]+4*q,4)}, {vr(vQo)}, {sr(SWS,4)}, {sr(sPub if q < 4 else sPub2)} offen offset:{(q%4)*1024}{SC}')
    a('s_waitcnt lgkmcnt(4)')
    for t in range(2):
        a(f'v_cndmask_b32_e64 {vr(Q2[t])}, {vr(Q2[t])}, 0, {sr(sHi,2)}')
        a(f'v_cndmask_b32_e64 {vr(Q2[t]+1)}, {vr(Q2[t]+1)}, 0, {sr(sHi,2)}')
    qk16(0, 0); qk16(1, 0); qk8(0, 0); qk8(1, 0)
    a('s_nop 15')
    for t in range(2):
        rowmax(t, vT0)
        crosshalf(vT0, vT1)
        a(f'''v_max_f32 {vr(vT0)}, {vr(vT0)}, {vr(vT1)}
v_sub_f32 {vr(vT0)}, 0, {vr(vT0)}
v_and_b32 {vr(vT1)}, 0xffff0000, {vr(vT0)}
v_sub_f32 {vr(vT0)}, {vr(vT0)}, {vr(vT1)}
v_and_b32 {vr(vT2)}, 0xffff0000, {vr(vT0)}
v_sub_f32 {vr(vT0)}, {vr(vT0)}, {vr(vT2)}
v_lshrrev_b32 {vr(vT1)}, 16, {vr(vT1)}
v_or_b32 {vr(vT1)}, {vr(vT1)}, {vr(vT2)}
v_lshrrev_b32 {vr(vT0)}, 16, {vr(vT0)}
v_cndmask_b32_e64 {vr(Q2[t])}, {vr(Q2[t])}, {vr(vT1)}, {sr(sHi,2)}
v_cndmask_b32_e64 {vr(Q2[t]+1)}, {vr(Q2[t]+1)}, {vr(vT0)}, {sr(sHi,2)}''')
    for i in range(8, 16):
        a(f'v_mov_b32 {vr(S[1]+i)}, 0')
    qk16(0, 0); qk8(0, 0)
    a('s_waitcnt vmcnt(0) lgkmcnt(0)')
    a('s_barrier')
    a('s_nop 9')
    prio = opts.get('prio', 1)
    if prio:
        a('s_setprio 2')
    st0()
    a('.p2align 6')
    a.label(f'{name}_loop')
    def ex(t, i):
        a(f'v_exp_f32 {vr(S[t]+i)}, {vr(S[t]+i)}')
    sched = 'e e P2 e e e e Q16 e e e e Q8 R e e e e P1 W e e'.split()
    for j in range(4):
        for t in range(2):
            pj = j if t == 1 else j - 1
            nj = j if t == 0 else j + 1
            if prio and t == 0:
                a(f's_setprio {(2, 1, 0, 3)[j]}')
            e = 0
            for tok in sched:
                if tok == 'e':
                    ex(t, e); e += 1
                elif tok == 'P2':
                    pv(1 - t, pj % 2, 1)
                elif tok == 'P1':
                    pv(t, j % 2, 0)
                elif tok == 'Q16':
                    qk16(1 - t, nj % 2)
                elif tok == 'Q8':
                    qk8(1 - t, nj % 2)
                elif tok == 'W':
                    a('s_waitcnt lgkmcnt(2)')
                elif tok == 'R':
                    if t == 0:
                        if j == 3:
                            a(f'v_mad_u32_u24 {vr(vaV)}, {vr(vmV)}, {sr(sOff)}, {vr(vbV)}')
                        rdV((j + 1) % 2, (j + 1) % 4)
                    else:
                        if j == 2:
                            a(f'''s_add_u32 {sr(sOff)}, {sr(sOff)}, {SLOT}
s_cmp_ge_u32 {sr(sOff)}, {3*SLOT}
s_cselect_b32 {sr(sOff)}, 0, {sr(sOff)}
s_waitcnt lgkmcnt(0)
s_barrier
v_add_u32 {vr(vaK1)}, {sr(sOff)}, {vr(vbK1)}
v_mad_u32_u24 {vr(vaK2)}, {vr(vmK2)}, {sr(sOff)}, {vr(vbK2)}''')
                        rdK(j % 2, (j + 2) % 4)
    a(f'''s_add_u32 {sr(sG)}, {sr(sG)}, 1
s_cmp_lt_u32 {sr(sG)}, 16
s_cbranch_scc1 {name}_loop''')
    a('s_nop 1')
    pv(1, 1, 1)
    if prio:
        a('s_setprio 0')
    a('s_nop 15')
    a('s_waitcnt lgkmcnt(0)')
    st0()
    L = [vT2, vT3]
    for t in range(2):
        sm = sM if t == 0 else sM2
        a(f'v_mov_b32 {vr(vT0)}, {vr(O[t]+8)}')
        crosshalf(vT0, L[t])
        a(f'v_mul_f32 {vr(vT1)}, 0, {vr(O[t])}')
        for i in range(1, 12):
            a(f'v_fmac_f32 {vr(vT1)}, 0, {vr(O[t]+i)}')
        a(f'v_add_f32 {vr(vT1)}, {vr(vT1)}, {vr(L[t])}')
        a(f'v_cmp_gt_f32 vcc, 0x53800000, {vr(vT1)}')
        a(f's_mov_b64 {sr(sm,2)}, vcc')
        a(f'v_cmp_lt_f32 vcc, 0x35800000, {vr(vT1)}')
        a(f's_and_b64 {sr(sm,2)}, {sr(sm,2)}, vcc')
    a(f'''s_and_b64 {sr(sM,2)}, {sr(sM,2)}, {sr(sM2,2)}
s_cmp_eq_u64 {sr(sM,2)}, -1
s_cbranch_scc0 {name}_fallback''')
    a.label(f'{name}_store')
    for t in range(2):
        a(f'v_rcp_f32 {vr(vT0)}, {vr(L[t])}')
        a('s_nop 0')
        for i in range(12):
            a(f'v_mul_f32 {vr(O[t]+i)}, {vr(O[t]+i)}, {vr(vT0)}')
        for i in range(4):
            a(f'v_cvt_pk_bf16_f32 {vr(S[t]+i)}, {vr(O[t]+2*i)}, {vr(O[t]+2*i+1)}')
        for i in range(2):
            a(f'v_cvt_pk_bf16_f32 {vr(S[0]+4+2*t+i)}, {vr(O[t]+8+2*i)}, {vr(O[t]+8+2*i+1)}')
        a(f'buffer_store_dwordx4 {vr(S[t],4)}, {vr(vQo)}, {sr(SWS,4)}, {sr(sOo)} offen offset:{1024*t}{SC}')
    a(f'v_mov_b32 {vr(vT1)}, 0x40000000')
    a(f'v_cndmask_b32_e64 {vr(vT0)}, {vr(vQo)}, {vr(vT1)}, {sr(sHi,2)}')
    a(f'buffer_store_dwordx4 {vr(S[0]+4,4)}, {vr(vT0)}, {sr(SWS,4)}, {sr(sOo)} offen offset:2048{SC}')

    V = VAlloc(VBASE)
    vAo = V(); vAt = V(); vWm = [V(), V()]; vWt = [V(), V()]; vOo = V()
    acc3 = [V(4) for _ in range(5)]
    base3 = max(V.n, S[1] + 16)
    V.n = base3
    Wg = [[V(4) for _ in range(5)] for _ in range(2)]
    done_alloc(V)
    VA = VAlloc(acc3[4] + 4)
    A = [[None]*5 for _ in range(4)]
    for j in range(4):
        for p in range(5):
            if VA.n + 4 > base3 and VA.n < V.n:
                VA.n = V.n
            A[j][p] = VA(4)
    done_alloc(VA)
    a(f'''s_lshl_b32 {sr(sT)}, {sr(sB)}, 4
s_add_u32 {sr(sT)}, {sr(sT)}, {sr(sMt3)}
s_lshl_b32 {sr(sT)}, {sr(sT)}, 1
s_lshr_b32 {sr(sT2)}, {sr(sW)}, 2
s_add_u32 {sr(sT)}, {sr(sT)}, {sr(sT2)}
s_mul_i32 {sr(sA)}, {sr(sT)}, {32*2560}
s_add_u32 {sr(sA)}, {sr(sA)}, {F_WS_O}
s_and_b32 {sr(sT)}, {sr(sW)}, 1
s_lshl_b32 {sr(sT)}, {sr(sT)}, 4
s_bfe_u32 {sr(sT2)}, {sr(sW)}, 0x10001
v_and_b32 {vr(vT0)}, 15, {vr(vLane)}
v_add_u32 {vr(vT0)}, {sr(sT)}, {vr(vT0)}
v_lshlrev_b32 {vr(vT0)}, 4, {vr(vT0)}
v_lshrrev_b32 {vr(vT1)}, 5, {vr(vLane)}
v_mul_u32_u24 {vr(vT1)}, 2560, {vr(vT1)}
v_bfe_u32 {vr(vT2)}, {vr(vLane)}, 4, 1
v_lshl_add_u32 {vr(vT1)}, {vr(vT2)}, 9, {vr(vT1)}
s_lshl_b32 {sr(sT3)}, {sr(sT2)}, 10
v_add3_u32 {vr(vAo)}, {vr(vT0)}, {vr(vT1)}, {sr(sT3)}
v_lshrrev_b32 {vr(vT1)}, 4, {vr(vLane)}
v_mul_u32_u24 {vr(vT1)}, 2560, {vr(vT1)}
s_lshl_b32 {sr(sT3)}, {sr(sT2)}, 3
s_add_u32 {sr(sT3)}, {sr(sT3)}, 2048
v_add3_u32 {vr(vAt)}, {vr(vT0)}, {vr(vT1)}, {sr(sT3)}
v_bfe_u32 {vr(vT0)}, {vr(vLane)}, 2, 2
v_lshrrev_b32 {vr(vT1)}, 5, {vr(vLane)}
v_mul_u32_u24 {vr(vT1)}, 20, {vr(vT1)}
v_bfe_u32 {vr(vT2)}, {vr(vLane)}, 4, 1
v_lshl_add_u32 {vr(vT1)}, {vr(vT2)}, 2, {vr(vT1)}
v_add_u32 {vr(vT1)}, {vr(vT1)}, {vr(vT0)}
v_mul_u32_u24 {vr(vT1)}, 160, {vr(vT1)}
v_and_b32 {vr(vT2)}, 3, {vr(vLane)}
v_lshl_add_u32 {vr(vWm[0])}, {vr(vT2)}, 3, {vr(vT1)}
v_add_u32 {vr(vWm[1])}, {320*160}, {vr(vWm[0])}
v_lshrrev_b32 {vr(vT1)}, 4, {vr(vLane)}
v_mul_u32_u24 {vr(vT1)}, 20, {vr(vT1)}
v_add3_u32 {vr(vT1)}, {vr(vT1)}, {vr(vT0)}, 16
v_mul_u32_u24 {vr(vT1)}, 160, {vr(vT1)}
v_lshl_add_u32 {vr(vWt[0])}, {vr(vT2)}, 3, {vr(vT1)}
v_add_u32 {vr(vWt[1])}, {320*160}, {vr(vWt[0])}
s_lshl_b32 {sr(sT)}, {sr(sMt3)}, 7
s_lshl_b32 {sr(sT2)}, {sr(sW)}, 4
s_add_u32 {sr(sT)}, {sr(sT)}, {sr(sT2)}
v_and_b32 {vr(vT0)}, 15, {vr(vLane)}
v_add_u32 {vr(vT0)}, {sr(sT)}, {vr(vT0)}
v_mul_u32_u24 {vr(vT0)}, 2560, {vr(vT0)}
v_lshrrev_b32 {vr(vT1)}, 4, {vr(vLane)}
v_lshl_add_u32 {vr(vT0)}, {vr(vT1)}, 3, {vr(vT0)}
s_mul_i32 {sr(sT)}, {sr(sB)}, 1280
s_mul_i32 {sr(sT2)}, {sr(sCg)}, 160
s_add_u32 {sr(sT)}, {sr(sT)}, {sr(sT2)}
v_add_u32 {vr(vOo)}, {sr(sT)}, {vr(vT0)}''')
    for t in range(5):
        for i in range(4):
            a(f'v_mov_b32 {vr(acc3[t]+i)}, 0')
    a('s_waitcnt vmcnt(0)')
    a('s_barrier')
    st0()
    a('s_barrier')
    st0()
    for j in range(4):
        for p in range(4):
            a(f's_add_u32 {sr(sT)}, {sr(sA)}, {(8*j+2*p)*2560}')
            a(f'buffer_load_dwordx4 {vr(A[j][p],4)}, {vr(vAo)}, {sr(SWS,4)}, {sr(sT)} offen{SC}')
        a(f's_add_u32 {sr(sT)}, {sr(sA)}, {(8*j)*2560}')
        a(f'buffer_load_dwordx2 {vr(A[j][4],2)}, {vr(vAt)}, {sr(SWS,4)}, {sr(sT)} offen{SC}')
        a(f's_add_u32 {sr(sT)}, {sr(sA)}, {(8*j+4)*2560}')
        a(f'buffer_load_dwordx2 {vr(A[j][4]+2,2)}, {vr(vAt)}, {sr(SWS,4)}, {sr(sT)} offen{SC}')
    def rdW3(fs, j, p, t):
        jj = j % 2
        out = []
        for rd in range(2):
            if p < 4:
                base, off = vWm[j // 2], (20*(8*jj+2*p) + 8*rd)*160 + t*32
            else:
                base, off = vWt[j // 2], (20*(8*jj+4*rd))*160 + t*32
            out.append(f'ds_read_b64_tr_b16 {vr(Wg[fs][t]+2*rd,2)}, {vr(base)} offset:{off}')
        return out
    steps = [(j, p) for j in range(4) for p in range(5)]
    for n in range(2):
        for t in range(5):
            for r in rdW3(n, *steps[n], t): a(r)
    for n, (j, p) in enumerate(steps):
        fs = n % 2
        vm = 6*(3-j) + ((5-p) if p < 4 else 0)
        lg = 10 if n < 19 else 0
        a(f's_waitcnt vmcnt({vm}) lgkmcnt({lg})')
        for t in range(5):
            a(f'v_mfma_f32_16x16x32_bf16 {vr(acc3[t],4)}, {vr(Wg[fs][t],4)}, {vr(A[j][p],4)}, {vr(acc3[t],4)}')
            if n + 2 < 20:
                for r in rdW3(fs, *steps[n+2], t): a(r)
    a('s_nop 7')
    st0()
    for t in range(5):
        a(f'v_cvt_pk_bf16_f32 {vr(acc3[t])}, {vr(acc3[t])}, {vr(acc3[t]+1)}')
        a(f'v_cvt_pk_bf16_f32 {vr(acc3[t]+1)}, {vr(acc3[t]+2)}, {vr(acc3[t]+3)}')
        a(f'buffer_store_dwordx2 {vr(acc3[t],2)}, {vr(vOo)}, {sr(SOUT,4)}, 0 offen offset:{t*32}')
    if st.on:
        a('s_waitcnt vmcnt(0)')
    st(); st.rt(); st.flush(sW)
    n_total = st.n
    a.label(f'{name}_done')
    a('s_endpgm')

    a.label(f'{name}_fallback')
    M = [vT4, vT5]
    vVo = vaV
    a(f'''v_cndmask_b32_e64 {vr(Q2[0])}, {vr(Q2[0])}, 0, {sr(sHi,2)}
v_cndmask_b32_e64 {vr(Q2[0]+1)}, {vr(Q2[0]+1)}, 0, {sr(sHi,2)}
v_cndmask_b32_e64 {vr(Q2[1])}, {vr(Q2[1])}, 0, {sr(sHi,2)}
v_cndmask_b32_e64 {vr(Q2[1]+1)}, {vr(Q2[1]+1)}, 0, {sr(sHi,2)}
v_mov_b32 {vr(M[0])}, 0xff800000
v_mov_b32 {vr(M[1])}, 0xff800000
v_mov_b32 {vr(vT1)}, 0x40000000
s_lshr_b32 {sr(sT)}, {sr(sW)}, 1
s_mul_i32 {sr(sT)}, {sr(sT)}, 10240
v_subrev_u32 {vr(vT0)}, {sr(sT)}, {vr(vbV)}
v_cmp_eq_u32 vcc, 1, {vr(vmV)}
s_mov_b32 {sr(sT)}, {sr(sKV)}
s_mov_b32 {sr(sG)}, 0
v_cndmask_b32 {vr(vVo)}, {vr(vT1)}, {vr(vT0)}, vcc
s_mov_b64 {sr(sM2,2)}, vcc''')
    a.label(f'{name}_fb1')
    a(f'''buffer_load_dwordx4 {vr(K1[0],4)}, {vr(vQo)}, {sr(SWS,4)}, {sr(sT)} offen{SC}
buffer_load_dwordx2 {vr(K2[0],2)}, {vr(vQo2)}, {sr(SWS,4)}, {sr(sT)} offen{SC}
s_waitcnt vmcnt(0)''')
    qk16(0, 0); qk16(1, 0); qk8(0, 0); qk8(1, 0)
    a('s_nop 15')
    for t in range(2):
        rowmax(t, vT0)
        a(f'v_max_f32 {vr(M[t])}, {vr(M[t])}, {vr(vT0)}')
    a(f'''s_add_u32 {sr(sT)}, {sr(sT)}, 2560
s_add_u32 {sr(sG)}, {sr(sG)}, 1
s_cmp_lt_u32 {sr(sG)}, 64
s_cbranch_scc1 {name}_fb1''')
    for t in range(2):
        crosshalf(M[t], vT1)
        a(f'v_max_f32 {vr(M[t])}, {vr(M[t])}, {vr(vT1)}')
        for i in range(16):
            a(f'v_mov_b32 {vr(O[t]+i)}, 0')
    a(f's_mov_b32 {sr(sT)}, {sr(sKV)}')
    a(f's_mov_b32 {sr(sG)}, 0')
    a(f'v_mov_b32 {vr(vT1)}, 0x3f803f80')
    a.label(f'{name}_fb2')
    a(f'''buffer_load_dwordx4 {vr(K1[0],4)}, {vr(vQo)}, {sr(SWS,4)}, {sr(sT)} offen{SC}
buffer_load_dwordx2 {vr(K2[0],2)}, {vr(vQo2)}, {sr(SWS,4)}, {sr(sT)} offen{SC}
buffer_load_dwordx4 {vr(V0[0],4)}, {vr(vVo)}, {sr(SWS,4)}, {sr(sT)} offen{SC}
buffer_load_dwordx4 {vr(V1[0],4)}, {vr(vVo)}, {sr(SWS,4)}, {sr(sT)} offen offset:640{SC}
s_waitcnt vmcnt(0)''')
    qk16(0, 0); qk16(1, 0); qk8(0, 0); qk8(1, 0)
    for i in range(4):
        a(f'v_cndmask_b32_e64 {vr(V0[0]+i)}, {vr(vT1)}, {vr(V0[0]+i)}, {sr(sM2,2)}')
        a(f'v_cndmask_b32_e64 {vr(V1[0]+i)}, {vr(vT1)}, {vr(V1[0]+i)}, {sr(sM2,2)}')
    a('s_nop 15')
    for t in range(2):
        for i in range(16):
            a(f'v_sub_f32 {vr(S[t]+i)}, {vr(S[t]+i)}, {vr(M[t])}')
        for i in range(16):
            ex(t, i)
    a('s_nop 1')
    for t in range(2):
        pv(t, 0, 0); pv(t, 0, 1)
    a(f'''s_add_u32 {sr(sT)}, {sr(sT)}, 2560
s_add_u32 {sr(sG)}, {sr(sG)}, 1
s_cmp_lt_u32 {sr(sG)}, 64
s_cbranch_scc1 {name}_fb2''')
    a('s_nop 15')
    for t in range(2):
        a(f'v_mov_b32 {vr(vT0)}, {vr(O[t]+8)}')
        crosshalf(vT0, L[t])
    a(f's_branch {name}_store')

    a.label(f'{name}_helper')
    st.n = 2
    V = VAlloc(VBASE)
    vEp = V(); vFl2 = V(); vL16 = V(); vP = V(); vPo1 = V(); vPo2 = V(); vFl = V(); vPo = V()
    vW3 = [V() for _ in range(5)]
    vPf = [V() for _ in range(4)]
    vHX = [V() for _ in range(4)]
    vHW = [V() for _ in range(15)]
    done_alloc(V)
    a('s_setprio 3')
    a(f'v_mov_b32 {vr(vT0)}, {F_EPOCH}')
    a(f'buffer_load_dword {vr(vEp)}, {vr(vT0)}, {sr(SWS,4)}, 0 offen{SC}')
    a(f'v_lshlrev_b32 {vr(vL16)}, 4, {vr(vLane)}')
    a(f'''s_lshl_b32 {sr(sT)}, {sr(sMt)}, 7
v_lshrrev_b32 {vr(vT0)}, 3, {vr(vLane)}
v_add_u32 {vr(vT0)}, {sr(sT)}, {vr(vT0)}
v_mul_u32_u24 {vr(vT0)}, 1280, {vr(vT0)}
v_lshrrev_b32 {vr(vT1)}, 4, {vr(vLane)}
v_and_b32 {vr(vT3)}, 7, {vr(vLane)}
v_xor_b32 {vr(vT2)}, {vr(vT1)}, {vr(vT3)}
v_lshl_add_u32 {vr(vHX[0])}, {vr(vT2)}, 4, {vr(vT0)}
v_xor_b32 {vr(vT2)}, 64, {vr(vHX[0])}
v_add_u32 {vr(vHX[1])}, {10240-1024}, {vr(vT2)}
v_add_u32 {vr(vHX[2])}, {2*(10240-1024)}, {vr(vHX[0])}
v_add_u32 {vr(vHX[3])}, {3*(10240-1024)}, {vr(vT2)}
s_mul_i32 {sr(sT3)}, {sr(sHg)}, 160''')
    for pi in range(15):
        a(f'''v_add_u32 {vr(vT0)}, {64*pi}, {vr(vLane)}
v_mul_u32_u24 {vr(vT1)}, 2185, {vr(vT0)}
v_lshrrev_b32 {vr(vT1)}, 16, {vr(vT1)}
v_mul_u32_u24 {vr(vT2)}, 30, {vr(vT1)}
v_sub_u32 {vr(vT0)}, {vr(vT0)}, {vr(vT2)}
v_and_b32 {vr(vT2)}, 0x13, {vr(vT1)}
v_bfe_u32 {vr(vT3)}, {vr(vT1)}, 2, 1
v_lshl_or_b32 {vr(vT2)}, {vr(vT3)}, 3, {vr(vT2)}
v_bfe_u32 {vr(vT3)}, {vr(vT1)}, 3, 1
v_lshl_or_b32 {vr(vT2)}, {vr(vT3)}, 2, {vr(vT2)}
v_mul_u32_u24 {vr(vT2)}, 3840, {vr(vT2)}
v_mul_u32_u24 {vr(vT1)}, 26, {vr(vT0)}
v_lshrrev_b32 {vr(vT1)}, 8, {vr(vT1)}
v_mul_u32_u24 {vr(vT1)}, {1280-160}, {vr(vT1)}
v_lshl_add_u32 {vr(vT0)}, {vr(vT0)}, 4, {vr(vT1)}
s_sub_u32 {sr(sT)}, {sr(sT3)}, {(pi%4)*1024}
v_add3_u32 {vr(vHW[pi])}, {vr(vT0)}, {vr(vT2)}, {sr(sT)}''')
    def next_k():
        a(f'''s_add_u32 {sr(sKK)}, {sr(sKK)}, 1
s_cmp_eq_u32 {sr(sKK)}, 10
s_cselect_b32 {sr(sKK)}, 0, {sr(sKK)}
s_lshl_b32 {sr(sXo)}, {sr(sKK)}, 7
s_mul_i32 {sr(sWo)}, {sr(sKK)}, {64*3840}''')
    def issue_x():
        for jj in range(16):
            if jj % 4 == 0:
                a(f's_add_u32 m0, {sr(sSlot)}, {jj*1024}')
                a(f's_add_u32 {sr(sT)}, {sr(sXo)}, {jj*10240}')
            a(f'buffer_load_dwordx4 {vr(vHX[jj%4])}, {sr(SX,4)}, {sr(sT)} offen offset:{(jj%4)*1024} lds')
    def issue_w():
        for half in range(2):
            for pi in range(15):
                if pi % 4 == 0:
                    a(f's_add_u32 m0, {sr(sSlot)}, {XSZ + half*15360 + pi*1024}')
                    a(f's_add_u32 {sr(sT)}, {sr(sWo)}, {half*32*3840}')
                a(f'buffer_load_dwordx4 {vr(vHW[pi])}, {sr(SWQ,4)}, {sr(sT)} offen offset:{(pi%4)*1024} lds')
    def issue_stage():
        next_k(); issue_x(); issue_w()
        a(f'''s_add_u32 {sr(sSlot)}, {sr(sSlot)}, {STG}
s_cmp_ge_u32 {sr(sSlot)}, {3*STG}
s_cselect_b32 {sr(sSlot)}, 0, {sr(sSlot)}''')
    xfirst = opts.get('xfirst', 1)
    if xfirst and opts.get('pfw', 1):
        a(f'''s_lshr_b32 {sr(sT)}, s2, 6
s_mul_i32 {sr(sT)}, {sr(sT)}, 3
s_add_u32 {sr(sT)}, {sr(sT)}, 8
s_bfe_u32 {sr(sT2)}, s2, 0x30003
s_lshr_b32 {sr(sCnt)}, {sr(sT2)}, 2
s_add_u32 {sr(sT)}, {sr(sT)}, {sr(sCnt)}
s_cmp_ge_u32 {sr(sT)}, 10
s_cselect_b32 {sr(sCnt)}, 10, 0
s_sub_u32 {sr(sT)}, {sr(sT)}, {sr(sCnt)}
s_lshl_b32 {sr(sT)}, {sr(sT)}, 6
s_and_b32 {sr(sT2)}, {sr(sT2)}, 3
s_lshl_b32 {sr(sT2)}, {sr(sT2)}, 4
s_add_u32 {sr(sT)}, {sr(sT)}, {sr(sT2)}
s_mul_i32 {sr(sT)}, {sr(sT)}, 3840
s_add_u32 {sr(sRdy)}, {sr(sT)}, {sr(sT3)}
v_lshrrev_b32 {vr(vT0)}, 3, {vr(vLane)}
v_mul_u32_u24 {vr(vT0)}, 3840, {vr(vT0)}
v_bfe_u32 {vr(vT1)}, {vr(vLane)}, 1, 2
v_mul_u32_u24 {vr(vT2)}, 1280, {vr(vT1)}
v_and_b32 {vr(vT3)}, 1, {vr(vLane)}
v_mul_u32_u24 {vr(vT3)}, 156, {vr(vT3)}
v_add3_u32 {vr(vT0)}, {vr(vT0)}, {vr(vT2)}, {vr(vT3)}
v_cmp_eq_u32 vcc, 3, {vr(vT1)}
v_mov_b32 {vr(vT2)}, 0x40000000
s_nop 0
v_cndmask_b32 {vr(vPo)}, {vr(vT0)}, {vr(vT2)}, vcc''')
    a(f's_mov_b32 {sr(sSlot)}, {STG}')
    st1()
    a('s_barrier')
    st1()
    if xfirst:
        next_k(); issue_x()
        a(f's_mov_b32 {sr(sSrc)}, {sr(sWo)}')
        a(f's_mov_b32 {sr(sSlot)}, {2*STG}')
        next_k(); issue_x()
        if opts.get('pfw', 1):
            a(f'buffer_load_dword {vr(vPf[0])}, {vr(vPo)}, {sr(SWQ,4)}, {sr(sRdy)} offen')
            a(f's_add_u32 {sr(sRdy)}, {sr(sRdy)}, {8*3840}')
            a(f'buffer_load_dword {vr(vPf[1])}, {vr(vPo)}, {sr(SWQ,4)}, {sr(sRdy)} offen')
        st1()
        a('s_barrier')
        a(f's_mov_b32 {sr(sSlot)}, {STG}')
        a(f's_mov_b32 {sr(sI)}, {sr(sWo)}')
        a(f's_mov_b32 {sr(sWo)}, {sr(sSrc)}')
        issue_w()
        a(f's_mov_b32 {sr(sSlot)}, {2*STG}')
        a(f's_mov_b32 {sr(sWo)}, {sr(sI)}')
        issue_w()
        a(f's_mov_b32 {sr(sSlot)}, 0')
        a('s_waitcnt vmcnt(30)')
        a('s_barrier')
        st1()
        first_i = 1
    else:
        issue_stage()
        st1()
        a('s_barrier')
        st1()
        first_i = 0
    a(f's_mov_b32 {sr(sI)}, {first_i}')
    a.label(f'{name}_hg')
    issue_stage()
    a('s_waitcnt vmcnt(46)')
    a('s_barrier')
    a(f's_add_u32 {sr(sI)}, {sr(sI)}, 1')
    a(f's_cmp_lt_u32 {sr(sI)}, 8')
    a(f's_cbranch_scc1 {name}_hg')
    st1()
    a(f'''s_lshl_b32 {sr(sT)}, {sr(sB)}, 3
s_add_u32 {sr(sT)}, {sr(sT)}, {sr(sHg)}
s_lshl_b32 {sr(sT)}, {sr(sT)}, 8
s_add_u32 {sr(sT)}, {sr(sT)}, {F_FLAG1}
v_lshl_add_u32 {vr(vT0)}, {vr(vLane)}, 2, {sr(sT)}
v_cmp_gt_u32 vcc, 16, {vr(vLane)}
v_mov_b32 {vr(vT1)}, 0x40000000
s_lshl_b32 {sr(sT2)}, {sr(sMt)}, 2
s_add_u32 {sr(sT)}, {sr(sT)}, {sr(sT2)}
v_cndmask_b32 {vr(vPo1)}, {vr(vT1)}, {vr(vT0)}, vcc
v_mov_b32 {vr(vT0)}, {sr(sT)}
v_cmp_eq_u32 vcc, 0, {vr(vLane)}
s_lshl_b32 {sr(sT)}, {sr(sB)}, 4
s_add_u32 {sr(sT2)}, {sr(sT)}, {sr(sMt)}
v_cndmask_b32 {vr(vFl)}, {vr(vT1)}, {vr(vT0)}, vcc
s_lshl_b32 {sr(sT2)}, {sr(sT2)}, 6
s_add_u32 {sr(sT2)}, {sr(sT2)}, {sr(sHg)}
s_lshl_b32 {sr(sT2)}, {sr(sT2)}, 2
s_add_u32 {sr(sT2)}, {sr(sT2)}, {F_FLAG2}
v_mov_b32 {vr(vT0)}, {sr(sT2)}
v_cndmask_b32 {vr(vFl2)}, {vr(vT1)}, {vr(vT0)}, vcc
s_add_u32 {sr(sT)}, {sr(sT)}, {sr(sMt3)}
s_lshl_b32 {sr(sT)}, {sr(sT)}, 8
s_add_u32 {sr(sT)}, {sr(sT)}, {F_FLAG2}
v_lshl_add_u32 {vr(vT0)}, {vr(vLane)}, 2, {sr(sT)}
v_cmp_gt_u32 vcc, 8, {vr(vLane)}
s_nop 1
v_cndmask_b32 {vr(vPo2)}, {vr(vT1)}, {vr(vT0)}, vcc''')
    a(f's_mul_i32 {sr(sT3)}, {sr(sCg)}, 160')
    for r in range(5):
        a(f'''v_add_u32 {vr(vT0)}, {64*r}, {vr(vLane)}
v_mul_u32_u24 {vr(vT1)}, 6554, {vr(vT0)}
v_lshrrev_b32 {vr(vT1)}, 16, {vr(vT1)}
v_mul_u32_u24 {vr(vT1)}, {1280-160}, {vr(vT1)}
v_lshl_add_u32 {vr(vT0)}, {vr(vT0)}, 4, {vr(vT1)}
v_add_u32 {vr(vT0)}, {sr(sT3)}, {vr(vT0)}
v_subrev_u32 {vr(vW3[r])}, {(r%4)*1024}, {vr(vT0)}''')
    a(f'''s_lshr_b32 {sr(sT)}, s2, 3
s_mul_i32 {sr(sT)}, {sr(sT)}, {20*1280}
v_lshl_add_u32 {vr(vT0)}, {vr(vLane)}, 7, {sr(sT)}
v_cmp_gt_u32 vcc, 50, {vr(vLane)}
v_mov_b32 {vr(vT1)}, 0x40000000
s_mov_b32 {sr(sRdy)}, 0
v_cndmask_b32 {vr(vPo)}, {vr(vT1)}, {vr(vT0)}, vcc''')
    a(f'''v_readfirstlane_b32 {sr(sTag)}, {vr(vEp)}
s_waitcnt vmcnt(0)
s_add_u32 {sr(sTag)}, {sr(sTag)}, {TAGK}
s_barrier
v_mov_b32 {vr(vEp)}, {sr(sTag)}
s_barrier''')
    st0()
    a('s_barrier')
    a('s_barrier')
    a(f'buffer_store_dword {vr(vEp)}, {vr(vFl)}, {sr(SWS,4)}, 0 offen{SC}')
    st0()
    pollid = [0]
    def poll(voff, cmp, bit):
        n = pollid[0]; pollid[0] += 1
        test = f's_bitcmp1_b32 {sr(sRdy)}, {sr(bit)}' if bit is not None else f's_cmp_eq_u32 {sr(sRdy)}, 0xff'
        a(test)
        a(f's_cbranch_scc1 {name}_pd{n}')
        a(f's_mov_b32 {sr(sCnt)}, {POLL_LIMIT}')
        a.label(f'{name}_pl{n}')
        a(f'''buffer_load_dword {vr(vP)}, {vr(voff)}, {sr(SWS,4)}, 0 offen{SC}
s_waitcnt vmcnt(0)
v_cmp_eq_u32 vcc, {sr(sTag)}, {vr(vP)}
s_and_b32 {sr(sRdy)}, vcc_lo, {'0xffff' if bit is not None else '0xff'}
{test}
s_cbranch_scc1 {name}_pd{n}
s_sleep 1
s_sub_u32 {sr(sCnt)}, {sr(sCnt)}, 1
s_cmp_lg_u32 {sr(sCnt)}, 0
s_cbranch_scc1 {name}_pl{n}''')
        a.label(f'{name}_pd{n}')
        if opts.get('inv'):
            a('buffer_inv sc1')
    def issue_group():
        a(f's_add_u32 {sr(sNeed)}, {sr(sMt)}, {sr(sI)}')
        a(f's_and_b32 {sr(sNeed)}, {sr(sNeed)}, 15')
        poll(vPo1, 'v_cmp_ne_u32', sNeed)
        a(f's_mul_i32 {sr(sT)}, {sr(sNeed)}, 10240')
        a(f's_add_u32 {sr(sSrc)}, {sr(sKV)}, {sr(sT)}')
        for hs in range(4):
            for q in range(10):
                if q % 4 == 0:
                    a(f's_add_u32 m0, {sr(sSlot)}, {hs*10240 + q*1024}')
                    a(f's_add_u32 {sr(sT)}, {sr(sSrc)}, {hs*KV_HEAD + q*1024}')
                a(f'buffer_load_dwordx4 {vr(vL16)}, {sr(SWS,4)}, {sr(sT)} offen offset:{(q%4)*1024}{SC} lds')
        a(f'''s_add_u32 {sr(sSlot)}, {sr(sSlot)}, {SLOT}
s_cmp_ge_u32 {sr(sSlot)}, {3*SLOT}
s_cselect_b32 {sr(sSlot)}, 0, {sr(sSlot)}
s_add_u32 {sr(sI)}, {sr(sI)}, 1''')
    a(f's_mov_b32 {sr(sI)}, 1')
    a(f's_mov_b32 {sr(sSlot)}, {SLOT}')
    issue_group()
    st0()
    a.label(f'{name}_hl')
    issue_group()
    a('s_waitcnt vmcnt(40)')
    a('s_barrier')
    a(f's_cmp_eq_u32 {sr(sI)}, 8')
    a(f's_cbranch_scc0 {name}_hnp')
    for q in range(4):
        a(f's_mov_b32 {sr(sT)}, {q*6400}')
        a(f'buffer_load_dword {vr(vPf[q])}, {vr(vPo)}, {sr(SWO,4)}, {sr(sT)} offen')
    a.label(f'{name}_hnp')
    a(f's_cmp_lt_u32 {sr(sI)}, 16')
    a(f's_cbranch_scc1 {name}_hl')
    a('s_waitcnt vmcnt(0)')
    a('s_barrier')
    a('s_barrier')
    st0()
    a(f's_mov_b32 {sr(sI)}, 0')
    a(f's_mov_b32 {sr(sSlot)}, 0')
    a.label(f'{name}_hw')
    a(f's_mov_b32 m0, {sr(sSlot)}')
    a(f's_add_u32 {sr(sT)}, {sr(sSlot)}, 4096')
    for r in range(4):
        a(f'buffer_load_dwordx4 {vr(vW3[r])}, {sr(SWO,4)}, {sr(sI)} offen offset:{r*1024} lds')
    a(f's_mov_b32 m0, {sr(sT)}')
    a(f's_add_u32 {sr(sSlot)}, {sr(sSlot)}, 5120')
    a(f'buffer_load_dwordx4 {vr(vW3[4])}, {sr(SWO,4)}, {sr(sI)} offen lds')
    a(f's_add_u32 {sr(sI)}, {sr(sI)}, {32*1280}')
    a(f's_cmp_lt_u32 {sr(sI)}, {640*1280}')
    a(f's_cbranch_scc1 {name}_hw')
    a(f's_mov_b32 {sr(sRdy)}, 0')
    st0()
    a('s_barrier')
    a(f'buffer_store_dword {vr(vEp)}, {vr(vFl2)}, {sr(SWS,4)}, 0 offen{SC}')
    poll(vPo2, 'v_cmp_eq_u32', None)
    a('s_waitcnt vmcnt(0)')
    a('s_barrier')
    if st.on:
        while st.n < n_total - 1: st()
        st.rt(); st.flush(sW)
    a('s_endpgm')
    nv = maxv[0]
    assert nv <= 168, nv
    return a.text(), descriptor(name, nv, ns), f'; @launch kernel={name} grid=(256,1,1) block=(576,1,1) lds={LDS_TOTAL}', n_total
```

```python
import sys
from common import *
from k_f2 import gen_fused
HDR = open('concat_heads__mha_block__mha_block__prompt.s.ref').read().split('; Override')[0]
def build(opts=None):
    final = opts.get('final')
    k = gen_fused(name='concat_heads__mha_block__mha_block__prompt_kernel' if final else 'fused_kernel', opts=opts)
    if final:
        import re
        k = (k[0], k[1], re.sub(r'kernel=\S+ ', '', k[2]), k[3])
    print('stamps', k[3], file=sys.stderr)
    doc = '''; One persistent launch, 256 workgroups (one per CU) of 8 compute waves + 1 loader wave.
'''
    return HDR + doc + k[2] + '\n.amdgcn_target "amdgcn-amd-amdhsa--gfx950"\n.text\n' + k[0] + '.section .rodata,"a"\n' + k[1]
if __name__ == '__main__':
    path = sys.argv[1]
    opts = {}
    for o in sys.argv[2:]:
        k, _, v = o.partition('=')
        opts[k] = int(v) if v else 1
    open(path, 'w').write(build(opts))
```

```python
from common import *
import math, struct

def f32bits(x):
    return struct.unpack('<I', struct.pack('<f', x))[0]
QSCALE = f32bits(math.log2(math.e) / math.sqrt(20.0))

XSZ = 16384
STG = XSZ + 30720
SLOT = 40960
LW_RDY = 3 * SLOT
LW_CNT = 3 * SLOT + 8
LW_CNT1 = 3 * SLOT + 12
LW_PW = 131392
ONES = 3 * SLOT + 128
QST = 131584
LDS_TOTAL = QST + 25600
WO_LO = SLOT
F_WS_KV = 0
F_WS_O = 64 * KV_HEAD
F_FLAG1 = F_WS_O + 2 * 32 * 32 * 2560
F_FLAG2 = F_FLAG1 + 16 * 256
F_EPOCH = F_FLAG2 + 32 * 256
F_WS_END = F_EPOCH + 256
TAGK = 0x9E3779B9
POLL_LIMIT = 1 << 16
OOB = 0x40000000

def gen_fused(name='fused_kernel', opts=None):
    opts = opts or {}
    a = Asm()
    SC = ' sc1'
    nobar = opts.get('nobar', 0)
    loc = opts.get('loc', 1)
    sKK, sMt3, sCg = 3, 4, 5
    SX, SWQ, SWS, SDBG, SWO, SOUT = 8, 12, 16, 20, 24, 28
    sW, sB, sMt, sHg, sT, sT2, sT3 = 32, 33, 34, 35, 36, 37, 38
    sM0a, sM0b = 39, 40
    sDone = 41
    sHi = 42
    sG, sOff, sOo, sKV = 44, 45, 46, 47
    sM, sM2 = 48, 50
    sRdy, sCnt, sNeed, sI, sSlot, sSrc = 52, 53, 54, 55, 56, 57
    sXo, sWo = 53, 54
    sScale = 58
    sA, sTag = 60, 61
    sPub, sPub2 = 56, 57
    ns = 64
    vLane, vT0, vT1, vT2, vT3, vT4, vT5 = 1, 2, 3, 4, 5, 6, 7
    VBASE = 8
    st = Stamper(a, opts.get('stamp'), 0, 62, 6, vT0)
    if st.on: ns = st.nsgpr()
    sset = opts.get('sset', 0)
    def st0():
        if sset == 0: st()
    def st1():
        if sset == 1: st()
    maxv = [0]
    def done_alloc(V):
        maxv[0] = max(maxv[0], V.n)

    a(f'.globl {name}\n.p2align 8\n.type {name},@function')
    a.label(name)
    if st.on:
        a('s_memrealtime s[62:63]\ns_memtime s[64:65]')
        st.n = 2
    a(f'''s_cmp_ge_u32 s2, 256
s_cbranch_scc1 {name}_done
s_bfe_u32 {sr(sB)}, s2, 0x10002
s_load_dwordx4 {sr(SOUT,4)}, s[0:1], 48
s_load_dwordx2 s[6:7], s[0:1], 64
s_mul_i32 {sr(sT2)}, {sr(sB)}, 24
s_add_u32 s0, s0, {sr(sT2)}
s_addc_u32 s1, s1, 0
s_load_dwordx4 {sr(SX,4)}, s[0:1], 0
s_load_dwordx2 {sr(SWO,2)}, s[0:1], 16
v_lshrrev_b32 {vr(vT0)}, 6, v0
v_and_b32 {vr(vLane)}, 63, v0
s_lshr_b32 {sr(sT)}, s2, 3
v_readfirstlane_b32 {sr(sW)}, {vr(vT0)}
s_and_b32 {sr(sMt)}, {sr(sT)}, 7
s_lshr_b32 {sr(sHg)}, {sr(sT)}, 3
s_mul_i32 {sr(sKK)}, {sr(sHg)}, 3
s_add_u32 {sr(sKK)}, {sr(sKK)}, {sr(sMt)}
s_cmp_ge_u32 {sr(sKK)}, 10
s_cselect_b32 {sr(sT)}, 10, 0
s_sub_u32 {sr(sKK)}, {sr(sKK)}, {sr(sT)}
s_and_b32 {sr(sT)}, s2, 1
s_lshl_b32 {sr(sT)}, {sr(sT)}, 3
s_add_u32 {sr(sMt)}, {sr(sMt)}, {sr(sT)}
s_and_b32 {sr(sT)}, s2, 2
s_lshl_b32 {sr(sT)}, {sr(sT)}, 1
s_add_u32 {sr(sHg)}, {sr(sHg)}, {sr(sT)}
s_mov_b32 {sr(sHi)}, 0
s_mov_b32 {sr(sHi+1)}, -1
s_bfe_u32 {sr(sCg)}, s2, 0x30003
s_and_b32 {sr(sMt3)}, s2, 1
s_lshl_b32 {sr(sMt3)}, {sr(sMt3)}, 2
s_and_b32 {sr(sT)}, s2, 2
s_add_u32 {sr(sMt3)}, {sr(sMt3)}, {sr(sT)}
s_lshl_b32 {sr(sMt3)}, {sr(sMt3)}, 1
s_lshr_b32 {sr(sT)}, s2, 6
s_add_u32 {sr(sMt3)}, {sr(sMt3)}, {sr(sT)}
s_lshl_b32 {sr(sT)}, {sr(sB)}, 3
s_add_u32 {sr(sT)}, {sr(sT)}, {sr(sHg)}
s_mul_i32 {sr(sKV)}, {sr(sT)}, {4*KV_HEAD}
s_mul_i32 {sr(sT3)}, {sr(sHg)}, 160
s_waitcnt lgkmcnt(0)
s_mov_b32 {sr(SWQ)}, {sr(SX+2)}
s_mov_b32 {sr(SWQ+1)}, {sr(SX+3)}
s_mov_b32 {sr(SDBG)}, {sr(SOUT+2)}
s_mov_b32 {sr(SDBG+1)}, {sr(SOUT+3)}
s_mov_b32 {sr(SWS)}, s6
s_mov_b32 {sr(SWS+1)}, s7
s_mov_b32 {sr(SX+2)}, {2048*1280}
s_mov_b32 {sr(SX+3)}, 0x20000
s_mov_b32 {sr(SWQ+2)}, {640*3840}
s_mov_b32 {sr(SWQ+3)}, 0x20000
s_mov_b32 {sr(SWS+2)}, {F_WS_END}
s_mov_b32 {sr(SWS+3)}, 0x20000
s_mov_b32 {sr(SDBG+2)}, 256
s_mov_b32 {sr(SDBG+3)}, 0x20000
s_mov_b32 {sr(SWO+2)}, {640*1280}
s_mov_b32 {sr(SWO+3)}, 0x20000
s_mov_b32 {sr(SOUT+2)}, {2048*2560}
s_mov_b32 {sr(SOUT+3)}, 0x20000''')
    st1()
    n_common = st.n
    a(f'''s_cmp_ge_u32 {sr(sW)}, 8
s_cbranch_scc1 {name}_helper''')

    def w_pattern(dst, first, last):
        a(f'''{first}
v_mul_u32_u24 {vr(vT1)}, 2185, {vr(vT0)}
v_lshrrev_b32 {vr(vT1)}, 16, {vr(vT1)}
v_mul_u32_u24 {vr(vT2)}, 30, {vr(vT1)}
v_sub_u32 {vr(vT0)}, {vr(vT0)}, {vr(vT2)}
v_and_b32 {vr(vT2)}, 0x13, {vr(vT1)}
v_bfe_u32 {vr(vT3)}, {vr(vT1)}, 2, 1
v_lshl_or_b32 {vr(vT2)}, {vr(vT3)}, 3, {vr(vT2)}
v_bfe_u32 {vr(vT3)}, {vr(vT1)}, 3, 1
v_lshl_or_b32 {vr(vT2)}, {vr(vT3)}, 2, {vr(vT2)}
v_mul_u32_u24 {vr(vT2)}, 3840, {vr(vT2)}
v_mul_u32_u24 {vr(vT1)}, 26, {vr(vT0)}
v_lshrrev_b32 {vr(vT1)}, 8, {vr(vT1)}
v_mul_u32_u24 {vr(vT1)}, {1280-160}, {vr(vT1)}
v_lshl_add_u32 {vr(vT0)}, {vr(vT0)}, 4, {vr(vT1)}
v_add3_u32 {vr(dst)}, {vr(vT0)}, {vr(vT2)}, {last}''')

    VP = VAlloc(VBASE)
    vIdx = VP()
    vaK1 = VP(); vaK2 = VP(); vaV = VP()
    vbK1 = VP(); vbK2 = VP(); vbV = VP(); vmK2 = VP(); vmV = VP()
    vQo = VP(); vQo2 = VP(); vQs1 = VP(); vQs2 = VP(); vPub = VP()
    VB2 = VP.n
    V = VAlloc(VB2)
    vEp7 = V(); vCi7 = V(); vZ7 = V()
    vXr = [[V(), V()] for _ in range(3)]
    vWa = [V() for _ in range(3)]
    vWb = [V() for _ in range(3)]
    vE = [V() for _ in range(6)]
    Xf = [[V(4), V(4)], [V(4), V(4)]]
    Wf = [[V(4) for _ in range(4)] for _ in range(2)]
    acc = [[V(4), V(4)] for _ in range(8)]
    done_alloc(V)
    vDX = Wf[0][0]; vDW = [Wf[0][0] + 1, Wf[0][0] + 2]
    a(f'''s_lshl_b32 {sr(sT)}, {sr(sMt)}, 7
s_lshl_b32 {sr(sT2)}, {sr(sW)}, 3
s_add_u32 {sr(sT)}, {sr(sT)}, {sr(sT2)}
v_lshrrev_b32 {vr(vT0)}, 3, {vr(vLane)}
v_add_u32 {vr(vT0)}, {sr(sT)}, {vr(vT0)}
v_mul_u32_u24 {vr(vT0)}, 1280, {vr(vT0)}
s_and_b32 {sr(sT)}, {sr(sW)}, 1
s_lshl_b32 {sr(sT)}, {sr(sT)}, 2
v_lshrrev_b32 {vr(vT1)}, 4, {vr(vLane)}
v_add_u32 {vr(vT2)}, {sr(sT)}, {vr(vT1)}
v_and_b32 {vr(vT3)}, 7, {vr(vLane)}
v_xor_b32 {vr(vT2)}, {vr(vT2)}, {vr(vT3)}
v_lshl_add_u32 {vr(vDX)}, {vr(vT2)}, 4, {vr(vT0)}
s_lshl_b32 {sr(sM0a)}, {sr(sW)}, 10
s_lshl_b32 {sr(sXo)}, {sr(sKK)}, 7
s_mul_i32 {sr(sWo)}, {sr(sKK)}, {64*3840}
s_mov_b32 m0, {sr(sM0a)}
s_add_u32 {sr(sT)}, {sr(sXo)}, 81920
buffer_load_dwordx4 {vr(vDX)}, {sr(SX,4)}, {sr(sXo)} offen lds
s_add_u32 m0, {sr(sM0a)}, 8192
s_add_u32 {sr(sT2)}, {sr(sW)}, 8
buffer_load_dwordx4 {vr(vDX)}, {sr(SX,4)}, {sr(sT)} offen lds
s_cmp_eq_u32 {sr(sW)}, 7
s_cselect_b32 {sr(sT2)}, 7, {sr(sT2)}
s_lshl_b32 {sr(sM0b)}, {sr(sT2)}, 10''')
    for pi, sm in ((0, sM0a), (1, sM0b)):
        a(f's_lshr_b32 {sr(sT)}, {sr(sm)}, 4')
        w_pattern(vDW[pi], f'v_add_u32 {vr(vT0)}, {sr(sT)}, {vr(vLane)}', sr(sT3))
        for half in range(2):
            a(f's_add_u32 m0, {sr(sm)}, {XSZ + half*15360}')
            a(f's_add_u32 {sr(sT)}, {sr(sWo)}, {half*32*3840}')
            a(f'buffer_load_dwordx4 {vr(vDW[pi])}, {sr(SWQ,4)}, {sr(sT)} offen lds')
    st1()
    a('s_barrier')
    st1()
    a(f'''s_cmp_eq_u32 {sr(sW)}, 7
s_cselect_b32 {sr(sM)}, 1, 0
s_mov_b32 {sr(sM+1)}, 0
v_mov_b32 {vr(vT1)}, {OOB}
v_cndmask_b32_e64 {vr(vZ7)}, {vr(vT1)}, 0, {sr(sM,2)}
v_mov_b32 {vr(vT0)}, {F_EPOCH}
buffer_load_dword {vr(vEp7)}, {vr(vT0)}, {sr(SWS,4)}, 0 offen{SC}''')
    a(f'''s_and_b32 {sr(sT)}, {sr(sW)}, 3
s_lshl_b32 {sr(sT)}, {sr(sT)}, 5
v_and_b32 {vr(vT0)}, 15, {vr(vLane)}
v_lshrrev_b32 {vr(vT1)}, 4, {vr(vLane)}
v_lshrrev_b32 {vr(vT2)}, 1, {vr(vT0)}
v_xor_b32 {vr(vT2)}, {vr(vT2)}, {vr(vT1)}
v_add_u32 {vr(vT0)}, {sr(sT)}, {vr(vT0)}
v_lshlrev_b32 {vr(vT0)}, 7, {vr(vT0)}
v_lshl_add_u32 {vr(vXr[0][0])}, {vr(vT2)}, 4, {vr(vT0)}
v_xor_b32 {vr(vXr[0][1])}, 64, {vr(vXr[0][0])}
v_lshrrev_b32 {vr(vT0)}, 5, {vr(vLane)}
v_lshlrev_b32 {vr(vT0)}, 4, {vr(vT0)}
v_bfe_u32 {vr(vT2)}, {vr(vLane)}, 4, 1
v_lshl_add_u32 {vr(vT0)}, {vr(vT2)}, 2, {vr(vT0)}
v_bfe_u32 {vr(vT2)}, {vr(vLane)}, 2, 2
v_add_u32 {vr(vT0)}, {vr(vT0)}, {vr(vT2)}
v_mul_u32_u24 {vr(vT0)}, 480, {vr(vT0)}
v_add_u32 {vr(vT5)}, {XSZ}, {vr(vT0)}
v_bfe_u32 {vr(vT2)}, {vr(vLane)}, 1, 1
v_mul_u32_u24 {vr(vT2)}, 40, {vr(vT2)}
v_and_b32 {vr(vT3)}, 1, {vr(vLane)}
v_lshl_add_u32 {vr(vT2)}, {vr(vT3)}, 4, {vr(vT2)}
v_add_u32 {vr(vWa[0])}, {vr(vT5)}, {vr(vT2)}
s_cmp_ge_u32 {sr(sW)}, 4
s_cselect_b32 {sr(sT)}, 8, 40
v_and_b32 {vr(vT2)}, 3, {vr(vLane)}
v_mad_u32_u24 {vr(vWb[0])}, {vr(vT2)}, {sr(sT)}, {vr(vT5)}''')
    for s_ in (1, 2):
        a(f'v_add_u32 {vr(vXr[s_][0])}, {s_*STG}, {vr(vXr[0][0])}')
        a(f'v_add_u32 {vr(vXr[s_][1])}, {s_*STG}, {vr(vXr[0][1])}')
        a(f'v_add_u32 {vr(vWa[s_])}, {s_*STG}, {vr(vWa[0])}')
        a(f'v_add_u32 {vr(vWb[s_])}, {s_*STG}, {vr(vWb[0])}')
    a(f'''s_lshr_b32 {sr(sT)}, {sr(sW)}, 1
s_mul_i32 {sr(sT2)}, {sr(sT)}, 10240
v_lshlrev_b32 {vr(vQo)}, 4, {vr(vLane)}
v_lshlrev_b32 {vr(vT0)}, 3, {vr(vLane)}
v_add_u32 {vr(vT0)}, 1024, {vr(vT0)}
v_mov_b32 {vr(vT1)}, {OOB}
v_cndmask_b32_e64 {vr(vQo2)}, {vr(vT0)}, {vr(vT1)}, {sr(sHi,2)}
v_add_u32 {vr(vbK1)}, {sr(sT2)}, {vr(vQo)}
v_add_u32 {vr(vT0)}, {sr(sT2)}, {vr(vT0)}
v_mov_b32 {vr(vT1)}, {ONES}
v_cndmask_b32_e64 {vr(vbK2)}, {vr(vT0)}, {vr(vT1)}, {sr(sHi,2)}
v_cndmask_b32_e64 {vr(vmK2)}, 1, 0, {sr(sHi,2)}
v_and_b32 {vr(vT2)}, 31, {vr(vLane)}
v_lshrrev_b32 {vr(vT3)}, 5, {vr(vLane)}
v_mul_u32_u24 {vr(vT3)}, 320, {vr(vT3)}
v_lshl_add_u32 {vr(vT3)}, {vr(vT2)}, 4, {vr(vT3)}
s_add_u32 {sr(sT3)}, {sr(sT2)}, 1280
v_add_u32 {vr(vT3)}, {sr(sT3)}, {vr(vT3)}
v_cmp_gt_u32 vcc, 20, {vr(vT2)}
v_mov_b32 {vr(vIdx)}, 0xdddddddd
v_mov_b32 {vr(vaK1)}, {vr(vbK1)}
v_cndmask_b32 {vr(vbV)}, {vr(vT1)}, {vr(vT3)}, vcc
v_cndmask_b32_e64 {vr(vmV)}, 0, 1, vcc
v_cmp_lt_u32 vcc, 20, {vr(vT2)}
v_add_u32 {vr(vT3)}, 16, {vr(vT1)}
v_mov_b32 {vr(vaK2)}, {vr(vbK2)}
v_cndmask_b32 {vr(vbV)}, {vr(vbV)}, {vr(vT3)}, vcc
v_mov_b32 {vr(vaV)}, {vr(vbV)}
s_mul_i32 {sr(sT2)}, {sr(sW)}, 2560
s_add_u32 {sr(sT2)}, {sr(sT2)}, {QST}
v_add_u32 {vr(vQs1)}, {sr(sT2)}, {vr(vQo)}
v_and_b32 {vr(vQs2)}, 31, {vr(vLane)}
v_lshlrev_b32 {vr(vQs2)}, 3, {vr(vQs2)}
s_add_u32 {sr(sT2)}, {sr(sT2)}, 1024
v_add_u32 {vr(vQs2)}, {sr(sT2)}, {vr(vQs2)}
s_lshl_b32 {sr(sT2)}, {sr(sB)}, 4
s_add_u32 {sr(sT2)}, {sr(sT2)}, {sr(sMt)}
s_lshl_b32 {sr(sT2)}, {sr(sT2)}, 1
s_and_b32 {sr(sT3)}, {sr(sW)}, 1
s_add_u32 {sr(sT2)}, {sr(sT2)}, {sr(sT3)}
s_lshl_b32 {sr(sT2)}, {sr(sT2)}, 5
s_lshl_b32 {sr(sT3)}, {sr(sHg)}, 2
s_add_u32 {sr(sT2)}, {sr(sT2)}, {sr(sT3)}
s_add_u32 {sr(sT2)}, {sr(sT2)}, {sr(sT)}
s_mul_i32 {sr(sOo)}, {sr(sT2)}, 2560
s_add_u32 {sr(sOo)}, {sr(sOo)}, {F_WS_O}
s_mul_i32 {sr(sT)}, {sr(sT)}, {KV_HEAD}
s_add_u32 {sr(sKV)}, {sr(sKV)}, {sr(sT)}
s_and_b32 {sr(sT)}, {sr(sW)}, 1
s_mul_i32 {sr(sT)}, {sr(sT)}, 5120
v_add_u32 {vr(vPub)}, {sr(sT)}, {vr(vbK1)}
s_mul_i32 {sr(sT2)}, {sr(sMt)}, 10240
s_add_u32 {sr(sT)}, {sr(sT)}, {sr(sT2)}
s_add_u32 {sr(sPub)}, {sr(sT)}, {sr(sKV)}
s_add_u32 {sr(sPub2)}, {sr(sPub)}, 4096''')
    for ct in range(8):
        for tt in range(2):
            for i in range(4):
                a(f'v_mov_b32 {vr(acc[ct][tt]+i)}, 0')
    a(f'''s_mov_b32 {sr(sScale)}, {QSCALE}
s_mov_b32 {sr(sScale+1)}, {QSCALE}
s_and_b32 {sr(sT3)}, {sr(sW)}, 3
v_and_b32 {vr(vT0)}, 15, {vr(vLane)}
v_lshrrev_b32 {vr(vT1)}, 4, {vr(vLane)}
v_lshrrev_b32 {vr(vT2)}, 2, {vr(vT0)}
v_and_b32 {vr(vT3)}, 3, {vr(vT0)}
v_lshl_add_u32 {vr(vT4)}, {vr(vT2)}, 3, {vr(vT3)}
v_lshrrev_b32 {vr(vT2)}, 1, {vr(vT1)}
v_and_b32 {vr(vT3)}, 1, {vr(vT1)}
s_mul_i32 {sr(sT)}, {sr(sT3)}, 2560
v_mul_u32_u24 {vr(vE[0])}, 10240, {vr(vT2)}
v_lshl_add_u32 {vr(vE[0])}, {vr(vT3)}, 9, {vr(vE[0])}
v_lshl_add_u32 {vr(vE[0])}, {vr(vT4)}, 4, {vr(vE[0])}
v_add_u32 {vr(vE[0])}, {sr(sT)}, {vr(vE[0])}
s_cmp_ge_u32 {sr(sW)}, 4
s_cbranch_scc1 {name}_p1b''')

    def p1_variant(wn):
        if wn == 0:
            kinds = [('P', 0, 0, 0), ('P', 0, 0, 1), ('P', 0, 1, 0), ('P', 0, 1, 1), ('T', 0, 0, 0), ('P', 1, 0, 0), ('P', 1, 0, 1), ('T', 1, 0, 0)]
            a(f'''s_add_u32 {sr(sT2)}, {sr(sT)}, 1024
v_mul_u32_u24 {vr(vE[1])}, 10240, {vr(vT1)}
v_lshl_add_u32 {vr(vE[1])}, {vr(vT4)}, 3, {vr(vE[1])}
v_add_u32 {vr(vE[1])}, {sr(sT2)}, {vr(vE[1])}
s_mul_i32 {sr(sT)}, {sr(sT3)}, 1280
s_add_u32 {sr(sT)}, {sr(sT)}, {QST}
v_mul_u32_u24 {vr(vE[2])}, 5120, {vr(vT2)}
v_lshl_add_u32 {vr(vE[2])}, {vr(vT3)}, 9, {vr(vE[2])}
v_lshl_add_u32 {vr(vE[2])}, {vr(vT0)}, 4, {vr(vE[2])}
v_add_u32 {vr(vE[2])}, {sr(sT)}, {vr(vE[2])}
s_add_u32 {sr(sT)}, {sr(sT)}, 1024
v_mul_u32_u24 {vr(vE[3])}, 5120, {vr(vT1)}
v_lshl_add_u32 {vr(vE[3])}, {vr(vT0)}, 3, {vr(vE[3])}
v_add_u32 {vr(vE[3])}, {sr(sT)}, {vr(vE[3])}''')
        else:
            kinds = [('P', 1, 1, 0), ('P', 1, 1, 1)] + [('V', 2, i, 0) for i in range(5)]
            a(f'''s_add_u32 {sr(sT)}, {sr(sT)}, 1280
v_mul_u32_u24 {vr(vT2)}, 640, {vr(vT2)}
v_mul_u32_u24 {vr(vT3)}, 320, {vr(vT3)}
v_add3_u32 {vr(vT5)}, {vr(vT2)}, {vr(vT3)}, {sr(sT)}''')
            for i in range(5):
                a(f'''v_add_u32 {vr(vT2)}, {16*i}, {vr(vT0)}
v_mul_u32_u24 {vr(vT3)}, 3277, {vr(vT2)}
v_lshrrev_b32 {vr(vT3)}, 16, {vr(vT3)}
v_mul_u32_u24 {vr(vT3)}, {10240-320}, {vr(vT3)}
v_lshl_add_u32 {vr(vT2)}, {vr(vT2)}, 4, {vr(vT3)}
v_add_u32 {vr(vE[1+i])}, {vr(vT2)}, {vr(vT5)}''')
        nct = len(kinds)
        grp = [list(range(0, 4)), list(range(4, nct))]
        def rd_x(step, s2):
            return [f'ds_read_b128 {vr(Xf[s2][tt],4)}, {vr(vXr[step%3][s2])} offset:{tt*2048}' for tt in range(2)]
        def rd_w(step, s2, h, idx):
            ty, sec, sub, e = kinds[grp[h][idx]]
            base = (vWa if ty == 'P' else vWb)[step % 3]
            col = sec*160 + {'P': sub*80 + e*8, 'T': 32, 'V': sub*32}[ty]
            return [f'ds_read_b64_tr_b16 {vr(Wf[h][idx]+2*rd,2)}, {vr(base)} offset:{(32*s2+8*rd)*480 + col}' for rd in range(2)]
        def mf(s2, h, idx):
            ct = grp[h][idx]
            out = []
            for tt in range(2):
                A, B = Wf[h][idx], Xf[s2][tt]
                if kinds[ct][0] == 'V':
                    A, B = B, A
                out.append(f'v_mfma_f32_16x16x32_bf16 {vr(acc[ct][tt],4)}, {vr(A,4)}, {vr(B,4)}, {vr(acc[ct][tt],4)}')
            return out
        n0, n1 = 2 + 2*len(grp[0]), 2*len(grp[1])
        def phase(s2, h, nxt):
            if nxt is not None and h == 0:
                for r in rd_x(*nxt): a(r)
            for idx in range(len(grp[h])):
                for m in mf(s2, h, idx): a(m)
                if nxt is not None:
                    for r in rd_w(nxt[0], nxt[1], h, idx): a(r)
        st1()
        a('s_waitcnt vmcnt(0)')
        a(f'v_readfirstlane_b32 {sr(sTag)}, {vr(vEp7)}')
        a('s_barrier')
        a(f's_add_u32 {sr(sTag)}, {sr(sTag)}, {TAGK}')
        st()
        for r in rd_x(0, 0): a(r)
        for h in range(2):
            for idx in range(len(grp[h])):
                for r in rd_w(0, 0, h, idx): a(r)
        for step in range(10):
            a(f's_waitcnt lgkmcnt({n1})')
            phase(0, 0, (step, 1))
            a(f's_waitcnt lgkmcnt({n0})')
            phase(0, 1, (step, 1))
            a('s_waitcnt lgkmcnt(0)')
            a('s_barrier')
            if step == 0 and wn == 1:
                a(f'v_mov_b32 {vr(vCi7)}, 1')
                a(f'buffer_atomic_add {vr(vCi7)}, {vr(vZ7)}, {sr(SDBG,4)}, 0 offen sc0')
            if step in (0, 4): st0()
            if step in (0, 1, 2, 8): st1()
            nx = (step + 1, 0) if step < 9 else None
            phase(1, 0, nx)
            phase(1, 1, nx)
        st0()
        if wn == 1:
            a(f'''s_waitcnt vmcnt(0)
v_cmp_eq_u32 vcc, 255, {vr(vCi7)}
v_add_u32 {vr(vEp7)}, {TAGK}, {vr(vEp7)}
v_mov_b32 {vr(vT1)}, {OOB}
s_mov_b32 {sr(sT)}, {F_EPOCH}
v_cndmask_b32 {vr(vZ7)}, {vr(vT1)}, {vr(vZ7)}, vcc
buffer_store_dword {vr(vEp7)}, {vr(vZ7)}, {sr(SWS,4)}, {sr(sT)} offen{SC}''')
        def scale(r0):
            a(f'v_pk_mul_f32 {vr(r0,2)}, {vr(r0,2)}, {sr(sScale,2)}')
            a(f'v_pk_mul_f32 {vr(r0+2,2)}, {vr(r0+2,2)}, {sr(sScale,2)}')
        def pack4(d, x, y):
            a(f'v_cvt_pk_bf16_f32 {vr(d)}, {vr(x)}, {vr(x+1)}')
            a(f'v_cvt_pk_bf16_f32 {vr(d+1)}, {vr(x+2)}, {vr(x+3)}')
            if y is not None:
                a(f'v_cvt_pk_bf16_f32 {vr(d+2)}, {vr(y)}, {vr(y+1)}')
                a(f'v_cvt_pk_bf16_f32 {vr(d+3)}, {vr(y+2)}, {vr(y+3)}')
        def stage(want):
          ct = 0
          while ct < nct:
            ty, sec, sub, e = kinds[ct]
            if (sec == 0) != want:
                ct += 1
                continue
            if ty == 'P':
                for tt in range(2):
                    x, y = acc[ct][tt], acc[ct+1][tt]
                    if sec == 0:
                        scale(x); scale(y)
                    pack4(x, x, y)
                    if sec == 0:
                        a(f'ds_write_b128 {vr(vE[2])}, {vr(x,4)} offset:{sub*10240 + tt*256}')
                    else:
                        a(f'ds_write_b128 {vr(vE[0])}, {vr(x,4)} offset:{sub*20480 + tt*64}')
                ct += 2
            elif ty == 'T':
                for tt in range(2):
                    x = acc[ct][tt]
                    if sec == 0:
                        scale(x)
                    pack4(x, x, None)
                    if sec == 0:
                        a(f'ds_write_b64 {vr(vE[3])}, {vr(x,2)} offset:{tt*128}')
                    else:
                        a(f'ds_write_b64 {vr(vE[1])}, {vr(x,2)} offset:{tt*32}')
                ct += 1
            else:
                x, y = acc[ct][0], acc[ct][1]
                pack4(x, x, y)
                a(f'ds_write_b128 {vr(vE[1+sub])}, {vr(x,4)}')
                ct += 1
        stage(False)
        a('s_waitcnt lgkmcnt(0)')
        a('s_barrier')
        PB = Xf[0][0]
        assert Wf[0][0] == PB + 16
        for q in range(5):
            a(f'ds_read_b128 {vr(PB+4*q,4)}, {vr(vPub)} offset:{q*1024}')
        stage(True)
        nq = 6 if wn == 0 else 0
        for q in range(5):
            a(f's_waitcnt lgkmcnt({4 - q + nq})')
            a(f'buffer_store_dwordx4 {vr(PB+4*q,4)}, {vr(vQo)}, {sr(SWS,4)}, {sr(sPub if q < 4 else sPub2)} offen offset:{(q%4)*1024}{SC}')
        a('s_nop 1')
    n_st = st.n
    p1_variant(0)
    a(f's_branch {name}_p2')
    a.label(f'{name}_p1b')
    st.n = n_st
    p1_variant(1)
    a.label(f'{name}_p2')

    V = VAlloc(VB2 + 3)
    Q1 = [V(4), V(4)]; Q2 = [V(2), V(2)]
    K1 = [V(4), V(4)]; K2 = [V(2), V(2)]
    V0 = [V(4), V(4)]; V1 = [V(4), V(4)]
    O = [V(16), V(16)]
    S = [V(16), V(16)]
    vPw = V(2); vPa = V(); vPo_ = V(); vPg = V()
    done_alloc(V)
    for t in range(2):
        for i in range(16):
            a(f'v_mov_b32 {vr(O[t]+i)}, 0')
    for i in range(4):
        a(f'v_mov_b32 {vr(V1[1]+i)}, 0')
    a(f's_mov_b32 {sr(sG)}, 0')
    a(f's_mov_b32 {sr(sOff)}, 0')
    if nobar:
        a(f'''s_lshl_b32 {sr(sT)}, {sr(sW)}, 3
s_add_u32 {sr(sT2)}, {sr(sT)}, {LW_PW + 4}
s_xor_b32 {sr(sT)}, {sr(sT)}, 32
s_add_u32 {sr(sT)}, {sr(sT)}, {LW_PW}
v_mov_b32 {vr(vPa)}, {sr(sT)}
v_mov_b32 {vr(vPo_)}, {sr(sT2)}
v_mov_b32 {vr(vPg)}, 0''')
    a('s_waitcnt lgkmcnt(0)')
    a('s_barrier')
    st0()
    def rdK(s_, u, part='R'):
        if part != 'Rb': a(f'ds_read_b128 {vr(K1[s_],4)}, {vr(vaK1)} offset:{2560*u}')
        if part != 'Ra': a(f'ds_read_b64 {vr(K2[s_],2)}, {vr(vaK2)} offset:{2560*u}')
    def rdV(s_, u, part='R'):
        if part != 'Rb': a(f'ds_read_b128 {vr(V0[s_],4)}, {vr(vaV)} offset:{2560*u}')
        if part != 'Ra': a(f'ds_read_b128 {vr(V1[s_],4)}, {vr(vaV)} offset:{2560*u+640}')
    def qk16(t, s_):
        a(f'v_mfma_f32_32x32x16_bf16 {vr(S[t],16)}, {vr(K1[s_],4)}, {vr(Q1[t],4)}, 0')
    def qk8(t, s_):
        a(f'v_mfma_f32_32x32x8_bf16 {vr(S[t],16)}, {vr(K2[s_],2)}, {vr(Q2[t],2)}, {vr(S[t],16)}')
    def pv(t, s_, n):
        Vf = (V0, V1)[n][s_]
        a(f'v_smfmac_f32_32x32x32_bf16 {vr(O[t],16)}, {vr(Vf,4)}, {vr(S[t]+8*n,8)}, {vr(vIdx)}')
    def rowmax(t, dst):
        s = S[t]
        a(f'v_max3_f32 {vr(dst)}, {vr(s)}, {vr(s+1)}, {vr(s+2)}')
        for i in range(3, 15, 2):
            a(f'v_max3_f32 {vr(dst)}, {vr(dst)}, {vr(s+i)}, {vr(s+i+1)}')
        a(f'v_max_f32 {vr(dst)}, {vr(dst)}, {vr(s+15)}')
    def crosshalf(x, y):
        a(f'v_mov_b32 {vr(y)}, {vr(x)}')
        a('s_nop 1')
        a(f'v_permlane32_swap_b32 {vr(x)}, {vr(y)}')
        a('s_nop 1')
    for t in range(2):
        a(f'ds_read_b128 {vr(Q1[t],4)}, {vr(vQs1)} offset:{1280*t}')
        a(f'ds_read_b64 {vr(Q2[t],2)}, {vr(vQs2)} offset:{1280*t}')
    rdK(0, 0); rdK(1, 1); rdV(0, 0)
    a('s_waitcnt lgkmcnt(4)')
    for t in range(2):
        a(f'v_cndmask_b32_e64 {vr(Q2[t])}, {vr(Q2[t])}, 0, {sr(sHi,2)}')
        a(f'v_cndmask_b32_e64 {vr(Q2[t]+1)}, {vr(Q2[t]+1)}, 0, {sr(sHi,2)}')
    qk16(0, 0); qk8(0, 0); qk16(1, 0); qk8(1, 0)
    a('s_nop 9')
    for t in range(2):
        if t == 1: a('s_nop 1')
        rowmax(t, vT0)
        crosshalf(vT0, vT1)
        a(f'''v_max_f32 {vr(vT0)}, {vr(vT0)}, {vr(vT1)}
v_sub_f32 {vr(vT0)}, 0, {vr(vT0)}
v_and_b32 {vr(vT1)}, 0xffff0000, {vr(vT0)}
v_sub_f32 {vr(vT0)}, {vr(vT0)}, {vr(vT1)}
v_and_b32 {vr(vT2)}, 0xffff0000, {vr(vT0)}
v_sub_f32 {vr(vT0)}, {vr(vT0)}, {vr(vT2)}
v_lshrrev_b32 {vr(vT1)}, 16, {vr(vT1)}
v_or_b32 {vr(vT1)}, {vr(vT1)}, {vr(vT2)}
v_lshrrev_b32 {vr(vT0)}, 16, {vr(vT0)}
v_cndmask_b32_e64 {vr(Q2[t])}, {vr(Q2[t])}, {vr(vT1)}, {sr(sHi,2)}
v_cndmask_b32_e64 {vr(Q2[t]+1)}, {vr(Q2[t]+1)}, {vr(vT0)}, {sr(sHi,2)}''')
        if t == 0:
            qk16(0, 0)
            a('s_nop 0')
            qk8(0, 0)
    for i in range(8, 16):
        a(f'v_mov_b32 {vr(S[1]+i)}, 0')
    a(f'''s_lshl_b32 {sr(sT)}, {sr(sB)}, 3
s_add_u32 {sr(sT)}, {sr(sT)}, {sr(sHg)}
s_lshl_b32 {sr(sT)}, {sr(sT)}, 6
s_add_u32 {sr(sT)}, {sr(sT)}, {sr(sMt)}
s_lshl_b32 {sr(sT)}, {sr(sT)}, 2
s_add_u32 {sr(sT)}, {sr(sT)}, {F_FLAG1}
s_mov_b64 exec, 1
v_mov_b32 {vr(vT0)}, 1
v_mov_b32 {vr(vT2)}, {LW_CNT1}
v_mov_b32 {vr(vT1)}, {sr(sTag)}
v_mov_b32 {vr(vT3)}, {sr(sT)}
s_waitcnt vmcnt(0)
ds_add_rtn_u32 {vr(vT0)}, {vr(vT2)}, {vr(vT0)}
s_waitcnt lgkmcnt(0)
v_readfirstlane_b32 {sr(sT)}, {vr(vT0)}
s_cmp_eq_u32 {sr(sT)}, 7
s_cbranch_scc0 {name}_nl1
buffer_store_dword {vr(vT1)}, {vr(vT3)}, {sr(SWS,4)}, 0 offen{SC}''')
    a.label(f'{name}_nl1')
    a('s_mov_b64 exec, -1')
    prio = opts.get('prio', 1)
    st0()
    if sset == 2: st()
    a('.p2align 6')
    a.label(f'{name}_loop')
    def ex(t, i):
        a(f'v_exp_f32 {vr(S[t]+i)}, {vr(S[t]+i)}')
    scheds = {1: 'e e P2 e e e e Q16 e e e e Q8 R e e e e P1 W e e',
              2: 'e e P2 e e e e Q16 e e e Q8 R e e e e e P1 W e e',
              3: 'e e P2 e e e e Q16 e e e e Q8 e R e e e P1 e W e',
              4: 'e e P2 e e e Q16 e e e e Q8 R e e e e P1 W e e e',
              5: 'e e W P2 e e e e Ra Q16 e e e e Rb Q8 e e e e P1 e e',
              6: 'e e W P2 e e e e R Q16 e e e e Q8 e e e e P1 e e',
              7: 'e e W P2 e e e e Q16 e e e e Ra Q8 e e e e Rb P1 e e',
              8: 'e e P2 e e e e Ra Q16 e e e e Rb Q8 e e e e W P1 e e',
              9: 'e e P2 e e e e Q16 e e e e Q8 e e e e R W P1 e e',
              10: 'e e P2 Ra e e e e Q16 Rb e e e e Q8 W e e e e P1 e e',
              11: 'e e P2 Ra e e e e Q16 Rb e e e e Q8 e e e e P1 W e e',
              12: 'e e P2 R e e e e Q16 e e e e Q8 e e e e P1 W e e'}
    sched = scheds[opts.get('sched', 1)].split()
    unroll = opts.get('unroll', 1)
    ptab = {1: {(0, 0): 2, (1, 0): 1, (2, 0): 0, (3, 0): 3},
            2: {(3, 0): 1, (1, 0): 0},
            3: {(3, 0): 3, (3, 1): 2, (0, 1): 1, (1, 1): 0},
            6: {(3, 0): 3, (0, 1): 2, (1, 1): 1, (2, 0): 0}}.get(prio, {})
    for rep in range(unroll):
      for j in range(4):
        for t in range(2):
            pj = j if t == 1 else j - 1
            nj = j if t == 0 else j + 1
            if (j, t) in ptab and nobar != 1:
                a(f's_setprio {ptab[(j, t)]}')
            e = 0
            for tok in sched:
                if tok == 'e':
                    ex(t, e); e += 1
                elif tok == 'P2':
                    pv(1 - t, pj % 2, 1)
                elif tok == 'P1':
                    pv(t, j % 2, 0)
                elif tok == 'Q16':
                    qk16(1 - t, nj % 2)
                elif tok == 'Q8':
                    qk8(1 - t, nj % 2)
                elif tok == 'W':
                    a(f's_waitcnt lgkmcnt({3 if nobar and (j, t) in ((2, 0), (2, 1)) else 2})')
                elif tok == 'Rb':
                    if t == 0: rdV((j + 1) % 2, (j + 1) % 4, 'Rb')
                    else: rdK(j % 2, (j + 2) % 4, 'Rb')
                elif tok in ('R', 'Ra'):
                    if t == 0:
                        if j == 3:
                            a(f'v_mad_u32_u24 {vr(vaV)}, {vr(vmV)}, {sr(sOff)}, {vr(vbV)}')
                        rdV((j + 1) % 2, (j + 1) % 4, tok)
                        if j == 2 and nobar:
                            a(f'ds_read_b64 {vr(vPw,2)}, {vr(vPa)}')
                    else:
                        if j == 2:
                            a(f'''s_add_u32 {sr(sOff)}, {sr(sOff)}, {SLOT}
s_cmp_ge_u32 {sr(sOff)}, {3*SLOT}
s_cselect_b32 {sr(sOff)}, 0, {sr(sOff)}''')
                            if nobar:
                                a(f'''v_add_u32 {vr(vPg)}, 1, {vr(vPg)}
s_add_u32 {sr(sT3)}, {sr(sG)}, {rep + 1}
s_waitcnt lgkmcnt(0)
v_readfirstlane_b32 {sr(sT)}, {vr(vPw)}
v_readfirstlane_b32 {sr(sT2)}, {vr(vPw+1)}
ds_write_b32 {vr(vPo_)}, {vr(vPg)}''')
                                if nobar == 1:
                                    a(f'''s_setprio 0
s_cmp_lt_u32 {sr(sT2)}, {sr(sT3)}
s_cbranch_scc1 {name}_lo{rep}
s_setprio 1''')
                                    a.label(f'{name}_lo{rep}')
                                elif nobar == 2:
                                    a(f's_add_u32 {sr(sT2)}, {sr(sT2)}, {1 + opts.get("slack", 0)}')
                                    a(f's_min_u32 {sr(sT)}, {sr(sT)}, {sr(sT2)}')
                                a(f's_cmp_gt_u32 {sr(sT)}, {sr(sT3)}')
                                a(f's_cbranch_scc0 {name}_spin{rep}')
                                a.label(f'{name}_spun{rep}')
                            else:
                                a('s_waitcnt lgkmcnt(0)')
                                a('s_barrier')
                            if sset == 2 and st.on:
                                for K in (0, 1, 2, 3, 8, 14):
                                    a(f's_cmp_eq_u32 {sr(sG)}, {K}')
                                    a(f's_cbranch_scc0 {name}_sk{K}')
                                    st()
                                    a.label(f'{name}_sk{K}')
                            a(f'''v_add_u32 {vr(vaK1)}, {sr(sOff)}, {vr(vbK1)}
v_mad_u32_u24 {vr(vaK2)}, {vr(vmK2)}, {sr(sOff)}, {vr(vbK2)}''')
                        rdK(j % 2, (j + 2) % 4, tok)
            assert e == 16
    a(f'''s_add_u32 {sr(sG)}, {sr(sG)}, {unroll}
s_cmp_lt_u32 {sr(sG)}, 16
s_cbranch_scc1 {name}_loop''')
    a('s_nop 1')
    pv(1, 1, 1)
    if ptab or nobar:
        a('s_setprio 0')
    st0()
    if sset in (2, 3): st()
    L = [vT2, vT3]
    a('s_waitcnt lgkmcnt(0)')
    a(f's_mov_b32 {sr(sI)}, 0')
    a.label(f'{name}_store')
    a(f's_mov_b32 {sr(sM)}, 0xaaaaaaaa')
    a(f's_mov_b32 {sr(sM+1)}, 0xaaaaaaaa')
    for t in range(2):
        a(f'v_mov_b32 {vr(vT0)}, {vr(O[t]+8)}')
        crosshalf(vT0, L[t])
        a(f'v_rcp_f32 {vr(vT0)}, {vr(L[t])}')
        a('s_nop 0')
        for i in range(12):
            a(f'v_mul_f32 {vr(O[t]+i)}, {vr(O[t]+i)}, {vr(vT0)}')
        for i in range(4):
            a(f'v_cvt_pk_bf16_f32 {vr(S[t]+i)}, {vr(O[t]+2*i)}, {vr(O[t]+2*i+1)}')
        a(f'buffer_store_dwordx4 {vr(S[t],4)}, {vr(vQo)}, {sr(SWS,4)}, {sr(sOo)} offen offset:{1024*t}{SC}')
        for i in range(2):
            a(f'v_cvt_pk_bf16_f32 {vr(S[0]+4+2*t+i)}, {vr(O[t]+8+2*i)}, {vr(O[t]+8+2*i+1)}')
    ta, tb, X, Y = S[0]+4, S[0]+6, S[0]+8, S[0]+12
    a(f'''v_cndmask_b32_e64 {vr(X)}, {vr(tb)}, {vr(ta)}, {sr(sM,2)}
v_cndmask_b32_e64 {vr(X+1)}, {vr(tb+1)}, {vr(ta+1)}, {sr(sM,2)}
v_lshrrev_b32 {vr(vT0)}, 1, {vr(vLane)}
v_and_b32 {vr(vT1)}, 1, {vr(vLane)}
v_mov_b32_dpp {vr(X+2)}, {vr(X)} quad_perm:[1,0,3,2] row_mask:0xf bank_mask:0xf
v_mov_b32_dpp {vr(X+3)}, {vr(X+1)} quad_perm:[1,0,3,2] row_mask:0xf bank_mask:0xf
v_lshlrev_b32 {vr(vT0)}, 4, {vr(vT0)}
v_lshl_add_u32 {vr(vT0)}, {vr(vT1)}, 8, {vr(vT0)}
v_mov_b32 {vr(vT1)}, {OOB}
v_cndmask_b32_e64 {vr(Y)}, {vr(ta)}, {vr(X+2)}, {sr(sM,2)}
v_cndmask_b32_e64 {vr(Y+1)}, {vr(ta+1)}, {vr(X+3)}, {sr(sM,2)}
v_cndmask_b32_e64 {vr(Y+2)}, {vr(X+2)}, {vr(tb)}, {sr(sM,2)}
v_cndmask_b32_e64 {vr(Y+3)}, {vr(X+3)}, {vr(tb+1)}, {sr(sM,2)}
v_cndmask_b32_e64 {vr(vT0)}, {vr(vT0)}, {vr(vT1)}, {sr(sHi,2)}
buffer_store_dwordx4 {vr(Y,4)}, {vr(vT0)}, {sr(SWS,4)}, {sr(sOo)} offen offset:2048{SC}''')
    st0()
    for t in range(2):
        sm = sM if t == 0 else sM2
        a(f'v_mul_f32 {vr(vT1)}, 0, {vr(O[t])}')
        for i in range(1, 12):
            a(f'v_fmac_f32 {vr(vT1)}, 0, {vr(O[t]+i)}')
        a(f'v_add_f32 {vr(vT1)}, {vr(vT1)}, {vr(L[t])}')
        a(f'v_cmp_gt_f32 vcc, 0x53800000, {vr(vT1)}')
        a(f's_mov_b64 {sr(sm,2)}, vcc')
        a(f'v_cmp_lt_f32 vcc, 0x35800000, {vr(vT1)}')
        a(f's_and_b64 {sr(sm,2)}, {sr(sm,2)}, vcc')
    a(f'''s_and_b64 {sr(sM,2)}, {sr(sM,2)}, {sr(sM2,2)}
s_cmp_eq_u64 {sr(sM,2)}, -1
s_cselect_b32 {sr(sT)}, 1, {sr(sI)}
s_cmp_eq_u32 {sr(sT)}, 0
s_cbranch_scc1 {name}_fallback''')

    V = VAlloc(VBASE)
    vAo = V(); vAt = V(); vWm0 = V(); vWt0 = V(); vOo = V(); vRd = V(); vDn = V()
    vWm = [V() for _ in range(4)]; vWt = [V() for _ in range(4)]
    acc3 = [V(4) for _ in range(5)]
    assert V.n <= S[0]
    Wg = [[V(4) for _ in range(5)] for _ in range(2)]
    A = [[V(4) for _ in range(5)] for _ in range(4)]
    done_alloc(V)
    a(f'''s_lshl_b32 {sr(sT)}, {sr(sB)}, 4
s_add_u32 {sr(sT)}, {sr(sT)}, {sr(sMt3)}
s_lshl_b32 {sr(sT)}, {sr(sT)}, 1
s_lshr_b32 {sr(sT2)}, {sr(sW)}, 2
s_add_u32 {sr(sT)}, {sr(sT)}, {sr(sT2)}
s_mul_i32 {sr(sA)}, {sr(sT)}, {32*2560}
s_add_u32 {sr(sA)}, {sr(sA)}, {F_WS_O}
s_and_b32 {sr(sT)}, {sr(sW)}, 1
s_lshl_b32 {sr(sT)}, {sr(sT)}, 4
s_bfe_u32 {sr(sT2)}, {sr(sW)}, 0x10001
v_and_b32 {vr(vT0)}, 15, {vr(vLane)}
v_add_u32 {vr(vT0)}, {sr(sT)}, {vr(vT0)}
v_lshlrev_b32 {vr(vT0)}, 4, {vr(vT0)}
v_lshrrev_b32 {vr(vT1)}, 5, {vr(vLane)}
v_mul_u32_u24 {vr(vT1)}, 2560, {vr(vT1)}
v_bfe_u32 {vr(vT2)}, {vr(vLane)}, 4, 1
v_lshl_add_u32 {vr(vT1)}, {vr(vT2)}, 9, {vr(vT1)}
s_lshl_b32 {sr(sT3)}, {sr(sT2)}, 10
v_add3_u32 {vr(vAo)}, {vr(vT0)}, {vr(vT1)}, {sr(sT3)}
v_lshrrev_b32 {vr(vT1)}, 4, {vr(vLane)}
v_mul_u32_u24 {vr(vT1)}, 2560, {vr(vT1)}
s_lshl_b32 {sr(sT3)}, {sr(sT2)}, 8
s_add_u32 {sr(sT3)}, {sr(sT3)}, 2048
v_lshrrev_b32 {vr(vT0)}, 1, {vr(vT0)}
v_add3_u32 {vr(vAt)}, {vr(vT0)}, {vr(vT1)}, {sr(sT3)}
v_bfe_u32 {vr(vT0)}, {vr(vLane)}, 2, 2
v_lshrrev_b32 {vr(vT1)}, 5, {vr(vLane)}
v_mul_u32_u24 {vr(vT1)}, 20, {vr(vT1)}
v_bfe_u32 {vr(vT2)}, {vr(vLane)}, 4, 1
v_lshl_add_u32 {vr(vT1)}, {vr(vT2)}, 2, {vr(vT1)}
v_add_u32 {vr(vT1)}, {vr(vT1)}, {vr(vT0)}
v_mul_u32_u24 {vr(vT1)}, 160, {vr(vT1)}
v_and_b32 {vr(vT2)}, 3, {vr(vLane)}
v_lshl_add_u32 {vr(vWm0)}, {vr(vT2)}, 3, {vr(vT1)}
v_lshrrev_b32 {vr(vT1)}, 4, {vr(vLane)}
v_mul_u32_u24 {vr(vT1)}, 20, {vr(vT1)}
v_add3_u32 {vr(vT1)}, {vr(vT1)}, {vr(vT0)}, 16
v_mul_u32_u24 {vr(vT1)}, 160, {vr(vT1)}
v_lshl_add_u32 {vr(vWt0)}, {vr(vT2)}, 3, {vr(vT1)}
s_lshl_b32 {sr(sT)}, {sr(sMt3)}, 7
s_lshl_b32 {sr(sT2)}, {sr(sW)}, 4
s_add_u32 {sr(sT)}, {sr(sT)}, {sr(sT2)}
v_and_b32 {vr(vT0)}, 15, {vr(vLane)}
v_add_u32 {vr(vT0)}, {sr(sT)}, {vr(vT0)}
v_mul_u32_u24 {vr(vT0)}, 2560, {vr(vT0)}
v_lshrrev_b32 {vr(vT1)}, 4, {vr(vLane)}
v_lshl_add_u32 {vr(vT0)}, {vr(vT1)}, 3, {vr(vT0)}
s_mul_i32 {sr(sT)}, {sr(sB)}, 1280
s_mul_i32 {sr(sT2)}, {sr(sCg)}, 160
s_add_u32 {sr(sT)}, {sr(sT)}, {sr(sT2)}
v_add_u32 {vr(vOo)}, {sr(sT)}, {vr(vT0)}
v_mov_b32 {vr(vRd)}, {LW_RDY}
s_lshl_b32 {sr(sT)}, {sr(sB)}, 4
s_add_u32 {sr(sT)}, {sr(sT)}, {sr(sMt)}
s_lshl_b32 {sr(sT)}, {sr(sT)}, 6
s_add_u32 {sr(sT)}, {sr(sT)}, {sr(sHg)}
s_lshl_b32 {sr(sT)}, {sr(sT)}, 2
s_add_u32 {sr(sT)}, {sr(sT)}, {F_FLAG2}
v_mov_b32 {vr(vDn)}, {sr(sT)}
v_add_u32 {vr(vWm0)}, {WO_LO}, {vr(vWm0)}
v_add_u32 {vr(vWt0)}, {WO_LO}, {vr(vWt0)}
s_and_b32 {sr(sT3)}, {sr(sCg)}, {opts.get('rot3', 3)}
s_lshl_b32 {sr(sT3)}, {sr(sT3)}, 1
s_mov_b32 {sr(sDone)}, 0''')
    for t in range(5):
        for i in range(4):
            a(f'v_mov_b32 {vr(acc3[t]+i)}, 0')
    tid_ = [0]
    base3 = st.n
    if sset == 3: st.n += 4
    def read_rdy():
        a(f'''ds_read_b64 {vr(vT0,2)}, {vr(vRd)}
s_waitcnt lgkmcnt(0)
v_and_b32 {vr(vT0)}, {vr(vT0)}, {vr(vT1)}
s_nop 0
v_readfirstlane_b32 {sr(sT)}, {vr(vT0)}
s_andn2_b32 {sr(sT)}, {sr(sT)}, {sr(sDone)}''')
    def loads(s_):
        a(f'''s_lshl_b32 {sr(sT2)}, {sr(sT)}, 8
s_or_b32 {sr(sT)}, {sr(sT)}, {sr(sT2)}
s_lshr_b32 {sr(sT)}, {sr(sT)}, {sr(sT3)}
s_ff1_i32_b32 {sr(sT)}, {sr(sT)}
s_add_u32 {sr(sT)}, {sr(sT)}, {sr(sT3)}
s_and_b32 {sr(sT)}, {sr(sT)}, 7
s_bitset1_b32 {sr(sDone)}, {sr(sT)}
s_mul_i32 {sr(sT2)}, {sr(sT)}, 10240
s_add_u32 {sr(sT2)}, {sr(sT2)}, {sr(sA)}
s_cmp_eq_u32 {sr(sT)}, 6
s_mul_i32 {sr(sT)}, {sr(sT)}, 12800
s_cselect_b32 {sr(sT)}, {QST - WO_LO}, {sr(sT)}''')
        for p in range(4):
            a(f'buffer_load_dwordx4 {vr(A[s_][p],4)}, {vr(vAo)}, {sr(SWS,4)}, {sr(sT2)} offen{SC}')
            if p == 0:
                a(f'buffer_load_dwordx2 {vr(A[s_][4],2)}, {vr(vAt)}, {sr(SWS,4)}, {sr(sT2)} offen{SC}')
            if p == 2:
                a(f'buffer_load_dwordx2 {vr(A[s_][4]+2,2)}, {vr(vAt)}, {sr(SWS,4)}, {sr(sT2)} offen{SC}')
            if p < 3:
                a(f's_add_u32 {sr(sT2)}, {sr(sT2)}, 5120')
        a(f'v_add_u32 {vr(vWm[s_])}, {sr(sT)}, {vr(vWm0)}')
        a(f'v_add_u32 {vr(vWt[s_])}, {sr(sT)}, {vr(vWt0)}')
        if sset == 3 and st.on:
            a(f's_memtime s[{62+2*(base3+s_)}:{63+2*(base3+s_)}]\ns_waitcnt lgkmcnt(0)')
    def take_group(s_):
        n = tid_[0]; tid_[0] += 1
        a.label(f'{name}_tg{n}')
        read_rdy()
        a(f'''s_cbranch_scc1 {name}_tgd{n}
s_sleep 1
s_branch {name}_tg{n}''')
        a.label(f'{name}_tgd{n}')
        loads(s_)
    a('s_waitcnt vmcnt(0)')
    a(f'''s_mov_b64 exec, 1
v_mov_b32 {vr(vT0)}, 1
ds_add_rtn_u32 {vr(vT0)}, {vr(vRd)}, {vr(vT0)} offset:8
v_mov_b32 {vr(vT1)}, {sr(sTag)}
v_mov_b32 {vr(vT2)}, 0xff
s_waitcnt lgkmcnt(0)
v_readfirstlane_b32 {sr(sT)}, {vr(vT0)}
s_cmp_eq_u32 {sr(sT)}, 7
s_cbranch_scc0 {name}_nl
buffer_store_dword {vr(vT1)}, {vr(vDn)}, {sr(SWS,4)}, 0 offen{SC}
ds_write_b32 {vr(vRd)}, {vr(vT2)} offset:4''')
    a.label(f'{name}_nl')
    a('s_mov_b64 exec, -1')
    if sset == 3: st()
    def rdW3(fs, j, p, t):
        out = []
        for rd in range(2):
            if p < 4:
                base, off = vWm[j], (20*(2*p) + 8*rd)*160 + t*32
            else:
                base, off = vWt[j], (20*(4*rd))*160 + t*32
            out.append(f'ds_read_b64_tr_b16 {vr(Wg[fs][t]+2*rd,2)}, {vr(base)} offset:{off}')
        return out
    st0()
    steps = [(j, p) for j in range(4) for p in range(5)]
    for j in range(4):
        take_group(j)
    for n in range(2):
        for t in range(5):
            for r in rdW3(n, *steps[n], t): a(r)
    left = {0: 5, 1: 3, 2: 2, 3: 0, 4: 0}
    for n, (j, p) in enumerate(steps):
        fs = n % 2
        a(f's_waitcnt vmcnt({6*(3-j) + left[p]}) lgkmcnt({10 if n < 19 else 0})')
        if sset == 3 and n in (0, 18): st()
        for t in range(5):
            a(f'v_mfma_f32_16x16x32_bf16 {vr(acc3[t],4)}, {vr(Wg[fs][t],4)}, {vr(A[j][p],4)}, {vr(acc3[t],4)}')
            if n + 2 < 20:
                for r in rdW3(fs, *steps[n+2], t): a(r)
    a('s_nop 3')
    st0()
    if sset == 3: st()
    OUTF = {0: '', 1: ' nt', 2: ' sc1'}[opts.get('outf', 0)]
    for t in range(5):
        a(f'v_cvt_pk_bf16_f32 {vr(acc3[t])}, {vr(acc3[t])}, {vr(acc3[t]+1)}')
        a(f'v_cvt_pk_bf16_f32 {vr(acc3[t]+1)}, {vr(acc3[t]+2)}, {vr(acc3[t]+3)}')
        a(f'buffer_store_dwordx2 {vr(acc3[t],2)}, {vr(vOo)}, {sr(SOUT,4)}, 0 offen offset:{t*32}{OUTF}')
    if st.on:
        a('s_waitcnt vmcnt(0)')
    st(); st.rt(); st.flush(sW)
    n_total = st.n
    a.label(f'{name}_done')
    a('s_endpgm')

    if nobar:
        for rep in range(unroll):
            a.label(f'{name}_spin{rep}')
            a(f'''ds_read_b64 {vr(vPw,2)}, {vr(vPa)}
s_waitcnt lgkmcnt(0)
v_readfirstlane_b32 {sr(sT)}, {vr(vPw)}''')
            if nobar == 2:
                a(f'''v_readfirstlane_b32 {sr(sT2)}, {vr(vPw+1)}
s_add_u32 {sr(sT2)}, {sr(sT2)}, {1 + opts.get("slack", 0)}
s_min_u32 {sr(sT)}, {sr(sT)}, {sr(sT2)}''')
            a(f'''s_cmp_gt_u32 {sr(sT)}, {sr(sT3)}
s_cbranch_scc0 {name}_spin{rep}
s_branch {name}_spun{rep}''')
    a.label(f'{name}_fallback')
    M = [vT4, vT5]
    vVo = vaV
    a(f'''v_cndmask_b32_e64 {vr(Q2[0])}, {vr(Q2[0])}, 0, {sr(sHi,2)}
v_cndmask_b32_e64 {vr(Q2[0]+1)}, {vr(Q2[0]+1)}, 0, {sr(sHi,2)}
v_cndmask_b32_e64 {vr(Q2[1])}, {vr(Q2[1])}, 0, {sr(sHi,2)}
v_cndmask_b32_e64 {vr(Q2[1]+1)}, {vr(Q2[1]+1)}, 0, {sr(sHi,2)}
v_mov_b32 {vr(M[0])}, 0xff800000
v_mov_b32 {vr(M[1])}, 0xff800000
v_mov_b32 {vr(vT1)}, {OOB}
s_lshr_b32 {sr(sT)}, {sr(sW)}, 1
s_mul_i32 {sr(sT)}, {sr(sT)}, 10240
v_subrev_u32 {vr(vT0)}, {sr(sT)}, {vr(vbV)}
v_cmp_eq_u32 vcc, 1, {vr(vmV)}
s_mov_b32 {sr(sT)}, {sr(sKV)}
s_mov_b32 {sr(sG)}, 0
v_cndmask_b32 {vr(vVo)}, {vr(vT1)}, {vr(vT0)}, vcc
s_mov_b64 {sr(sM2,2)}, vcc
s_waitcnt vmcnt(0)''')
    a.label(f'{name}_fb1')
    a(f'''buffer_load_dwordx4 {vr(K1[0],4)}, {vr(vQo)}, {sr(SWS,4)}, {sr(sT)} offen{SC}
buffer_load_dwordx2 {vr(K2[0],2)}, {vr(vQo2)}, {sr(SWS,4)}, {sr(sT)} offen{SC}
s_waitcnt vmcnt(0)''')
    qk16(0, 0); qk16(1, 0); qk8(0, 0); qk8(1, 0)
    a('s_nop 15')
    for t in range(2):
        rowmax(t, vT0)
        a(f'v_max_f32 {vr(M[t])}, {vr(M[t])}, {vr(vT0)}')
    a(f'''s_add_u32 {sr(sT)}, {sr(sT)}, 2560
s_add_u32 {sr(sG)}, {sr(sG)}, 1
s_cmp_lt_u32 {sr(sG)}, 64
s_cbranch_scc1 {name}_fb1''')
    for t in range(2):
        crosshalf(M[t], vT1)
        a(f'v_max_f32 {vr(M[t])}, {vr(M[t])}, {vr(vT1)}')
        for i in range(16):
            a(f'v_mov_b32 {vr(O[t]+i)}, 0')
    a(f's_mov_b32 {sr(sT)}, {sr(sKV)}')
    a(f's_mov_b32 {sr(sG)}, 0')
    a(f'v_mov_b32 {vr(vT1)}, 0x3f803f80')
    a.label(f'{name}_fb2')
    a(f'''buffer_load_dwordx4 {vr(K1[0],4)}, {vr(vQo)}, {sr(SWS,4)}, {sr(sT)} offen{SC}
buffer_load_dwordx2 {vr(K2[0],2)}, {vr(vQo2)}, {sr(SWS,4)}, {sr(sT)} offen{SC}
buffer_load_dwordx4 {vr(V0[0],4)}, {vr(vVo)}, {sr(SWS,4)}, {sr(sT)} offen{SC}
buffer_load_dwordx4 {vr(V1[0],4)}, {vr(vVo)}, {sr(SWS,4)}, {sr(sT)} offen offset:640{SC}
s_waitcnt vmcnt(0)''')
    qk16(0, 0); qk16(1, 0); qk8(0, 0); qk8(1, 0)
    for i in range(4):
        a(f'v_cndmask_b32_e64 {vr(V0[0]+i)}, {vr(vT1)}, {vr(V0[0]+i)}, {sr(sM2,2)}')
        a(f'v_cndmask_b32_e64 {vr(V1[0]+i)}, {vr(vT1)}, {vr(V1[0]+i)}, {sr(sM2,2)}')
    a('s_nop 15')
    for t in range(2):
        for i in range(16):
            a(f'v_sub_f32 {vr(S[t]+i)}, {vr(S[t]+i)}, {vr(M[t])}')
        for i in range(16):
            ex(t, i)
    a('s_nop 1')
    for t in range(2):
        pv(t, 0, 0); pv(t, 0, 1)
    a(f'''s_add_u32 {sr(sT)}, {sr(sT)}, 2560
s_add_u32 {sr(sG)}, {sr(sG)}, 1
s_cmp_lt_u32 {sr(sG)}, 64
s_cbranch_scc1 {name}_fb2''')
    a('s_nop 15')
    a(f's_mov_b32 {sr(sI)}, 1')
    a(f's_branch {name}_store')

    a.label(f'{name}_helper')
    st.n = n_common
    V = VAlloc(VBASE)
    vEp = V(); vL16 = V(); vFl = V()
    VH = V.n
    a('s_setprio 3')
    a(f'v_mov_b32 {vr(vT0)}, {F_EPOCH}')
    a(f'buffer_load_dword {vr(vEp)}, {vr(vT0)}, {sr(SWS,4)}, 0 offen{SC}')
    a(f'v_lshlrev_b32 {vr(vL16)}, 4, {vr(vLane)}')
    vP = V(); vC8 = V(8); vPwa = V(); vFu = V(); vPo1 = V(); vPo2 = V(); vPo = V(); vLw = V()
    vW3 = [V() for _ in range(5)]
    vPf = [V() for _ in range(4)]
    vHX = [V() for _ in range(4)]
    vHW = [V() for _ in range(15)]
    done_alloc(V)
    a(f'''s_lshl_b32 {sr(sT)}, {sr(sMt)}, 7
v_lshrrev_b32 {vr(vT0)}, 3, {vr(vLane)}
v_add_u32 {vr(vT0)}, {sr(sT)}, {vr(vT0)}
v_mul_u32_u24 {vr(vT0)}, 1280, {vr(vT0)}
v_lshrrev_b32 {vr(vT1)}, 4, {vr(vLane)}
v_and_b32 {vr(vT3)}, 7, {vr(vLane)}
v_xor_b32 {vr(vT2)}, {vr(vT1)}, {vr(vT3)}
v_lshl_add_u32 {vr(vHX[0])}, {vr(vT2)}, 4, {vr(vT0)}
v_xor_b32 {vr(vT2)}, 64, {vr(vHX[0])}
v_add_u32 {vr(vHX[1])}, {10240-1024}, {vr(vT2)}
v_add_u32 {vr(vHX[2])}, {2*(10240-1024)}, {vr(vHX[0])}
v_add_u32 {vr(vHX[3])}, {3*(10240-1024)}, {vr(vT2)}''')
    for pi in range(15):
        a(f's_sub_u32 {sr(sT)}, {sr(sT3)}, {(pi%4)*1024}')
        w_pattern(vHW[pi], f'v_add_u32 {vr(vT0)}, {64*pi}, {vr(vLane)}', sr(sT))
    def next_k():
        a(f'''s_add_u32 {sr(sKK)}, {sr(sKK)}, 1
s_cmp_eq_u32 {sr(sKK)}, 10
s_cselect_b32 {sr(sKK)}, 0, {sr(sKK)}
s_lshl_b32 {sr(sXo)}, {sr(sKK)}, 7
s_mul_i32 {sr(sWo)}, {sr(sKK)}, {64*3840}''')
    def issue_x():
        for jj in range(16):
            if jj % 4 == 0:
                a(f's_add_u32 m0, {sr(sSlot)}, {jj*1024}')
                a(f's_add_u32 {sr(sT)}, {sr(sXo)}, {jj*10240}')
            a(f'buffer_load_dwordx4 {vr(vHX[jj%4])}, {sr(SX,4)}, {sr(sT)} offen offset:{(jj%4)*1024} lds')
    def issue_w():
        for half in range(2):
            for pi in range(15):
                if pi % 4 == 0:
                    a(f's_add_u32 m0, {sr(sSlot)}, {XSZ + half*15360 + pi*1024}')
                    a(f's_add_u32 {sr(sT)}, {sr(sWo)}, {half*32*3840}')
                a(f'buffer_load_dwordx4 {vr(vHW[pi])}, {sr(SWQ,4)}, {sr(sT)} offen offset:{(pi%4)*1024} lds')
    def issue_stage():
        next_k(); issue_x(); issue_w()
        a(f'''s_add_u32 {sr(sSlot)}, {sr(sSlot)}, {STG}
s_cmp_ge_u32 {sr(sSlot)}, {3*STG}
s_cselect_b32 {sr(sSlot)}, 0, {sr(sSlot)}''')
    pfw = opts.get('pfw', 1)
    if pfw:
        a(f'''s_lshr_b32 {sr(sT)}, s2, 6
s_mul_i32 {sr(sT)}, {sr(sT)}, 3
s_add_u32 {sr(sT)}, {sr(sT)}, 8
s_bfe_u32 {sr(sT2)}, s2, 0x30003
s_lshr_b32 {sr(sI)}, {sr(sT2)}, 2
s_add_u32 {sr(sT)}, {sr(sT)}, {sr(sI)}
s_cmp_ge_u32 {sr(sT)}, 10
s_cselect_b32 {sr(sI)}, 10, 0
s_sub_u32 {sr(sT)}, {sr(sT)}, {sr(sI)}
s_lshl_b32 {sr(sT)}, {sr(sT)}, 6
s_and_b32 {sr(sT2)}, {sr(sT2)}, 3
s_lshl_b32 {sr(sT2)}, {sr(sT2)}, 4
s_add_u32 {sr(sT)}, {sr(sT)}, {sr(sT2)}
s_mul_i32 {sr(sT)}, {sr(sT)}, 3840
s_add_u32 {sr(sRdy)}, {sr(sT)}, {sr(sT3)}
v_lshrrev_b32 {vr(vT0)}, 3, {vr(vLane)}
v_mul_u32_u24 {vr(vT0)}, 3840, {vr(vT0)}
v_bfe_u32 {vr(vT1)}, {vr(vLane)}, 1, 2
v_mul_u32_u24 {vr(vT2)}, 1280, {vr(vT1)}
v_and_b32 {vr(vT3)}, 1, {vr(vLane)}
v_mul_u32_u24 {vr(vT3)}, 156, {vr(vT3)}
v_add3_u32 {vr(vT0)}, {vr(vT0)}, {vr(vT2)}, {vr(vT3)}
v_cmp_eq_u32 vcc, 3, {vr(vT1)}
v_mov_b32 {vr(vT2)}, {OOB}
s_nop 0
v_cndmask_b32 {vr(vPo)}, {vr(vT0)}, {vr(vT2)}, vcc''')
    a(f's_mov_b32 {sr(sSlot)}, {STG}')
    st1()
    a('s_barrier')
    st1()
    if pfw:
        a(f'buffer_load_dword {vr(vPf[0])}, {vr(vPo)}, {sr(SWQ,4)}, {sr(sRdy)} offen')
        a(f's_add_u32 {sr(sRdy)}, {sr(sRdy)}, {8*3840}')
        a(f'buffer_load_dword {vr(vPf[1])}, {vr(vPo)}, {sr(SWQ,4)}, {sr(sRdy)} offen')
    if opts.get('xfirst', 0):
        next_k(); issue_x()
        a(f's_mov_b32 {sr(sSrc)}, {sr(sWo)}')
        a(f's_mov_b32 {sr(sSlot)}, {2*STG}')
        next_k(); issue_x()
        st1()
        if opts.get('xfirst') == 1: a('s_barrier')
        a(f's_mov_b32 {sr(sSlot)}, {STG}')
        a(f's_mov_b32 {sr(sI)}, {sr(sWo)}')
        a(f's_mov_b32 {sr(sWo)}, {sr(sSrc)}')
        issue_w()
        if opts.get('xfirst') == 2: a('s_barrier')
        a(f's_mov_b32 {sr(sSlot)}, {2*STG}')
        a(f's_mov_b32 {sr(sWo)}, {sr(sI)}')
        issue_w()
        a(f's_mov_b32 {sr(sSlot)}, 0')
        a('s_waitcnt vmcnt(30)')
        a('s_barrier')
        st1()
        a(f's_mov_b32 {sr(sI)}, 1')
    else:
        issue_stage()
        st1()
        a('s_barrier')
        st1()
        a(f's_mov_b32 {sr(sI)}, 0')
    a.label(f'{name}_hg')
    issue_stage()
    a('s_waitcnt vmcnt(46)')
    a('s_barrier')
    a(f's_add_u32 {sr(sI)}, {sr(sI)}, 1')
    a(f's_cmp_lt_u32 {sr(sI)}, 8')
    a(f's_cbranch_scc1 {name}_hg')
    st1()
    a(f'''s_lshl_b32 {sr(sT)}, {sr(sB)}, 3
s_add_u32 {sr(sT)}, {sr(sT)}, {sr(sHg)}
s_lshl_b32 {sr(sT)}, {sr(sT)}, 8
s_add_u32 {sr(sT)}, {sr(sT)}, {F_FLAG1}
v_lshl_add_u32 {vr(vT0)}, {vr(vLane)}, 2, {sr(sT)}
v_cmp_gt_u32 vcc, 16, {vr(vLane)}
v_mov_b32 {vr(vT1)}, {OOB}
s_lshl_b32 {sr(sT)}, {sr(sB)}, 4
v_cndmask_b32 {vr(vPo1)}, {vr(vT1)}, {vr(vT0)}, vcc
s_add_u32 {sr(sT)}, {sr(sT)}, {sr(sMt3)}
s_lshl_b32 {sr(sT)}, {sr(sT)}, 8
s_add_u32 {sr(sT)}, {sr(sT)}, {F_FLAG2}
v_lshl_add_u32 {vr(vT0)}, {vr(vLane)}, 2, {sr(sT)}
v_cmp_gt_u32 vcc, 8, {vr(vLane)}
v_mov_b32 {vr(vLw)}, {LW_RDY}
s_mul_i32 {sr(sT3)}, {sr(sCg)}, 160
v_cndmask_b32 {vr(vPo2)}, {vr(vT1)}, {vr(vT0)}, vcc''')
    for r in range(5):
        a(f'''v_add_u32 {vr(vT0)}, {64*r}, {vr(vLane)}
v_mul_u32_u24 {vr(vT1)}, 6554, {vr(vT0)}
v_lshrrev_b32 {vr(vT1)}, 16, {vr(vT1)}
v_mul_u32_u24 {vr(vT1)}, {1280-160}, {vr(vT1)}
v_lshl_add_u32 {vr(vT0)}, {vr(vT0)}, 4, {vr(vT1)}
v_add_u32 {vr(vT0)}, {sr(sT3)}, {vr(vT0)}
v_subrev_u32 {vr(vW3[r])}, {(r%4)*1024}, {vr(vT0)}''')
    a(f'''s_lshr_b32 {sr(sT)}, s2, 3
s_mul_i32 {sr(sT)}, {sr(sT)}, {20*1280}
v_lshl_add_u32 {vr(vT0)}, {vr(vLane)}, 7, {sr(sT)}
v_cmp_gt_u32 vcc, 50, {vr(vLane)}
v_mov_b32 {vr(vT1)}, {OOB}
s_mov_b32 {sr(sRdy)}, 0
v_cndmask_b32 {vr(vPo)}, {vr(vT1)}, {vr(vT0)}, vcc
v_readfirstlane_b32 {sr(sTag)}, {vr(vEp)}
s_lshl_b32 {sr(sDone)}, 1, {sr(sMt)}
s_waitcnt vmcnt(0)
s_add_u32 {sr(sTag)}, {sr(sTag)}, {TAGK}
s_barrier
v_bfe_u32 {vr(vT2)}, {vr(vLane)}, 1, 2
v_mul_u32_u24 {vr(vT2)}, 2560, {vr(vT2)}
v_and_b32 {vr(vT3)}, 1, {vr(vLane)}
v_mul_u32_u24 {vr(vT3)}, 640, {vr(vT3)}
v_add_u32 {vr(vT2)}, {vr(vT2)}, {vr(vT3)}
v_add_u32 {vr(vT2)}, {ONES}, {vr(vT2)}
v_mov_b32 {vr(vC8)}, 0x3f803f80
v_mov_b32 {vr(vC8+1)}, 0x3f803f80
v_mov_b32 {vr(vC8+2)}, 0x3f803f80
v_mov_b32 {vr(vC8+3)}, 0x3f803f80
v_mov_b32 {vr(vC8+4)}, 0
v_mov_b32 {vr(vC8+5)}, 0
v_mov_b32 {vr(vC8+6)}, 0
v_mov_b32 {vr(vC8+7)}, 0
s_barrier
ds_write_b128 {vr(vT2)}, {vr(vC8,4)}
ds_write_b128 {vr(vT2)}, {vr(vC8+4,4)} offset:16
ds_write_b128 {vr(vLw)}, {vr(vC8+4,4)}
s_waitcnt lgkmcnt(0)''')
    st0()
    a('s_barrier')
    a('s_barrier')
    gid = [0]
    def issue_group():
        n = gid[0]; gid[0] += 1
        a(f'''s_andn2_b32 {sr(sT)}, {sr(sRdy)}, {sr(sDone)}
s_cbranch_scc1 {name}_pd{n}
s_mov_b32 {sr(sCnt)}, {POLL_LIMIT}''')
        a.label(f'{name}_pl{n}')
        a(f'''buffer_load_dword {vr(vP)}, {vr(vPo1)}, {sr(SWS,4)}, 0 offen{SC}
s_waitcnt vmcnt(0)
v_cmp_eq_u32 vcc, {sr(sTag)}, {vr(vP)}
s_and_b32 {sr(sRdy)}, vcc_lo, 0xffff
s_andn2_b32 {sr(sT)}, {sr(sRdy)}, {sr(sDone)}
s_cbranch_scc1 {name}_pd{n}
s_sleep 1
s_sub_u32 {sr(sCnt)}, {sr(sCnt)}, 1
s_cmp_lg_u32 {sr(sCnt)}, 0
s_cbranch_scc1 {name}_pl{n}
s_mov_b32 {sr(sRdy)}, 0xffff
s_andn2_b32 {sr(sT)}, {sr(sRdy)}, {sr(sDone)}''')
        a.label(f'{name}_pd{n}')
        a(f'''s_lshl_b32 {sr(sT2)}, {sr(sT)}, 16
s_or_b32 {sr(sT)}, {sr(sT)}, {sr(sT2)}
s_lshr_b32 {sr(sT)}, {sr(sT)}, {sr(sMt)}
s_ff1_i32_b32 {sr(sT)}, {sr(sT)}
s_add_u32 {sr(sNeed)}, {sr(sT)}, {sr(sMt)}
s_and_b32 {sr(sNeed)}, {sr(sNeed)}, 15
s_bitset1_b32 {sr(sDone)}, {sr(sNeed)}
s_mul_i32 {sr(sT)}, {sr(sNeed)}, 10240
s_add_u32 {sr(sSrc)}, {sr(sKV)}, {sr(sT)}''')
        for hs in range(4):
            for q in range(10):
                if q % 4 == 0:
                    a(f's_add_u32 m0, {sr(sSlot)}, {hs*10240 + q*1024}')
                    a(f's_add_u32 {sr(sT)}, {sr(sSrc)}, {hs*KV_HEAD + q*1024}')
                a(f'buffer_load_dwordx4 {vr(vL16)}, {sr(SWS,4)}, {sr(sT)} offen offset:{(q%4)*1024}{SC} lds')
        a(f'''s_add_u32 {sr(sSlot)}, {sr(sSlot)}, {SLOT}
s_cmp_ge_u32 {sr(sSlot)}, {3*SLOT}
s_cselect_b32 {sr(sSlot)}, 0, {sr(sSlot)}
s_add_u32 {sr(sI)}, {sr(sI)}, 1''')
    a(f's_mov_b32 {sr(sI)}, 1')
    a(f's_mov_b32 {sr(sSlot)}, {SLOT}')
    wq = [0]
    def wait_prog(val):
        n = wq[0]; wq[0] += 1
        a.label(f'{name}_wp{n}')
        a(f'''ds_read_b32 {vr(vP)}, {vr(vPwa)} offset:4
s_waitcnt lgkmcnt(0)
v_cmp_le_u32 vcc, {val}, {vr(vP)}
s_and_b32 {sr(sT)}, vcc_lo, 0x1ff
s_cmp_eq_u32 {sr(sT)}, 0x1ff
s_cbranch_scc1 {name}_wpd{n}
s_sleep 2
s_branch {name}_wp{n}''')
        a.label(f'{name}_wpd{n}')
    def set_full(val):
        a(f'v_mov_b32 {vr(vFu)}, {val}')
        a(f'ds_write_b32 {vr(vPwa)}, {vr(vFu)}')
    if nobar:
        a(f'v_min_u32 {vr(vPwa)}, 8, {vr(vLane)}')
        a(f'v_lshlrev_b32 {vr(vPwa)}, 3, {vr(vPwa)}')
        a(f'v_add_u32 {vr(vPwa)}, {LW_PW}, {vr(vPwa)}')
    issue_group()
    st0()
    a.label(f'{name}_hl')
    if nobar:
        a('s_waitcnt vmcnt(0)')
        set_full(sr(sI))
        a(f's_max_u32 {sr(sSrc)}, {sr(sI)}, 2')
        a(f's_sub_u32 {sr(sSrc)}, {sr(sSrc)}, 2')
        wait_prog(sr(sSrc))
        issue_group()
    else:
        issue_group()
        a('s_waitcnt vmcnt(40)')
        a('s_barrier')
    wid = [0]
    def wo_rows(r0, r1, lds):
        n = wid[0]; wid[0] += 1
        a(f's_mov_b32 {sr(sSrc)}, {r0*1280}')
        a(f's_mov_b32 {sr(sT2)}, {lds}')
        a.label(f'{name}_hw{n}x')
        a(f's_mov_b32 m0, {sr(sT2)}')
        a(f's_add_u32 {sr(sT)}, {sr(sT2)}, 4096')
        for r in range(4):
            a(f'buffer_load_dwordx4 {vr(vW3[r])}, {sr(SWO,4)}, {sr(sSrc)} offen offset:{r*1024} lds')
        a(f's_mov_b32 m0, {sr(sT)}')
        a(f's_add_u32 {sr(sT2)}, {sr(sT2)}, 5120')
        a(f'buffer_load_dwordx4 {vr(vW3[4])}, {sr(SWO,4)}, {sr(sSrc)} offen lds')
        a(f's_add_u32 {sr(sSrc)}, {sr(sSrc)}, {32*1280}')
        a(f's_cmp_lt_u32 {sr(sSrc)}, {r1*1280}')
        a(f's_cbranch_scc1 {name}_hw{n}x')
    a(f's_cmp_eq_u32 {sr(sI)}, 6')
    a(f's_cbranch_scc0 {name}_hnp')
    for q in range(4):
        a(f's_mov_b32 {sr(sT)}, {q*6400}')
        a(f'buffer_load_dword {vr(vPf[q])}, {vr(vPo)}, {sr(SWO,4)}, {sr(sT)} offen')
    a.label(f'{name}_hnp')
    a(f's_cmp_eq_u32 {sr(sI)}, 10')
    a(f's_cbranch_scc0 {name}_hnq')
    wo_rows(480, 640, QST)
    a.label(f'{name}_hnq')
    a(f's_cmp_lt_u32 {sr(sI)}, 16')
    a(f's_cbranch_scc1 {name}_hl')
    if nobar:
        a('s_waitcnt vmcnt(0)')
        set_full(64)
        wait_prog(14)
        wo_rows(0, 256, WO_LO)
        wait_prog(15)
    else:
        wo_rows(0, 256, WO_LO)
        a('s_waitcnt vmcnt(40)')
        a('s_barrier')
    wo_rows(256, 480, WO_LO + 40960)
    a(f'''s_lshl_b32 {sr(sT)}, {sr(sB)}, 4
s_add_u32 {sr(sT)}, {sr(sT)}, {sr(sMt3)}
s_lshl_b32 {sr(sT)}, {sr(sT)}, 1
s_lshr_b32 {sr(sT2)}, {sr(sCg)}, 2
s_add_u32 {sr(sT)}, {sr(sT)}, {sr(sT2)}
s_mul_i32 {sr(sT)}, {sr(sT)}, {32*2560}
s_and_b32 {sr(sT2)}, {sr(sCg)}, 3
s_mul_i32 {sr(sT2)}, {sr(sT2)}, 5120
s_add_u32 {sr(sT)}, {sr(sT)}, {sr(sT2)}
s_add_u32 {sr(sT)}, {sr(sT)}, {F_WS_O}
v_lshl_add_u32 {vr(vT0)}, {vr(vLane)}, 7, {sr(sT)}
v_cmp_gt_u32 vcc, 40, {vr(vLane)}
v_mov_b32 {vr(vT1)}, {OOB}
s_mov_b32 {sr(sDone)}, 0
s_mov_b32 {sr(sCnt)}, {POLL_LIMIT}
v_cndmask_b32 {vr(vPo)}, {vr(vT1)}, {vr(vT0)}, vcc''')
    pid = [0]
    pfo = opts.get('pfo', 2)
    def poll2():
        a(f'''buffer_load_dword {vr(vP)}, {vr(vPo2)}, {sr(SWS,4)}, 0 offen{SC}
s_sub_u32 {sr(sCnt)}, {sr(sCnt)}, 1
s_waitcnt vmcnt(0)
v_cmp_eq_u32 vcc, {sr(sTag)}, {vr(vP)}
s_cmp_eq_u32 {sr(sCnt)}, 0
s_cselect_b32 {sr(sT)}, 0xff, vcc_lo
s_lshr_b32 {sr(sT2)}, {sr(sT)}, 1
s_and_b32 {sr(sT)}, {sr(sT)}, {sr(sT2)}
s_and_b32 {sr(sRdy)}, {sr(sT)}, 0x55''')
        if pfo:
            a(f's_andn2_b32 {sr(sSrc)}, {sr(sRdy)}, {sr(sDone)}')
            a(f's_or_b32 {sr(sDone)}, {sr(sDone)}, {sr(sRdy)}')
            for j in range(4):
                n = pid[0]; pid[0] += 1
                a(f's_bitcmp1_b32 {sr(sSrc)}, {2*j}')
                a(f's_cbranch_scc0 {name}_po{n}')
                a(f's_mov_b32 {sr(sT)}, {j*20480}')
                a(f'buffer_load_dword {vr(vPf[j])}, {vr(vPo)}, {sr(SWS,4)}, {sr(sT)} offen{SC}')
                a.label(f'{name}_po{n}')
            if pfo == 2:
                a('s_waitcnt vmcnt(0)')
        a(f'v_mov_b32 {vr(vP)}, {sr(sRdy)}')
        a(f'ds_write_b32 {vr(vLw)}, {vr(vP)}')
    poll2()
    if nobar:
        wait_prog(16)
    else:
        a('s_barrier')
    st0()
    st0()
    a.label(f'{name}_p3l')
    poll2()
    a(f's_cmp_eq_u32 {sr(sRdy)}, 0x55')
    a(f's_cbranch_scc0 {name}_p3l')
    a.label(f'{name}_p3e')
    if st.on:
        while st.n < n_total - 1: st()
        st.rt(); st.flush(sW)
    a('s_endpgm')
    nv = maxv[0]
    assert nv <= 168, nv
    return a.text(), descriptor(name, nv, ns), f'; @launch kernel={name} grid=(256,1,1) block=(576,1,1) lds={LDS_TOTAL}', n_total
```

```python
from common import *
import math, struct

def f32bits(x):
    return struct.unpack('<I', struct.pack('<f', x))[0]
QSCALE = f32bits(math.log2(math.e) / math.sqrt(20.0))

XSZ = 16384
STG = XSZ + 30720
SLOT = 40960
LW_RDY = 3 * SLOT
LW_CNT = 3 * SLOT + 8
LW_CNT1 = 3 * SLOT + 12
LW_PW = 131392
ONES = 3 * SLOT + 128
QST = 131584
LDS_TOTAL = QST + 25600
WO_LO = SLOT
F_WS_KV = 0
F_WS_O = 64 * KV_HEAD
F_FLAG1 = F_WS_O + 2 * 32 * 32 * 2560
F_FLAG2 = F_FLAG1 + 16 * 256
F_EPOCH = F_FLAG2 + 32 * 256
F_WS_END = F_EPOCH + 256
TAGK = 0x9E3779B9
POLL_LIMIT = 1 << 16
OOB = 0x40000000

def gen_fused(name='fused_kernel', opts=None):
    opts = opts or {}
    a = Asm()
    SC = ' sc1'
    nobar = opts.get('nobar', 0)
    loc = opts.get('loc', 1)
    sKK, sMt3, sCg = 3, 4, 5
    SX, SWQ, SWS, SDBG, SWO, SOUT = 8, 12, 16, 20, 24, 28
    sW, sB, sMt, sHg, sT, sT2, sT3 = 32, 33, 34, 35, 36, 37, 38
    sM0a, sM0b = 39, 40
    sDone = 41
    sHi = 42
    sG, sOff, sOo, sKV = 44, 45, 46, 47
    sM, sM2 = 48, 50
    sRdy, sCnt, sNeed, sI, sSlot, sSrc = 52, 53, 54, 55, 56, 57
    sXo, sWo = 53, 54
    sScale = 58
    sA, sTag = 60, 61
    sPub, sPub2 = 56, 57
    ns = 64
    vLane, vT0, vT1, vT2, vT3, vT4, vT5 = 1, 2, 3, 4, 5, 6, 7
    VBASE = 8
    st = Stamper(a, opts.get('stamp'), 0, 62, 6, vT0)
    if st.on: ns = st.nsgpr()
    sset = opts.get('sset', 0)
    def st0():
        if sset == 0: st()
    def st1():
        if sset == 1: st()
    maxv = [0]
    def done_alloc(V):
        maxv[0] = max(maxv[0], V.n)

    a(f'.globl {name}\n.p2align 8\n.type {name},@function')
    a.label(name)
    if st.on:
        a('s_memrealtime s[62:63]\ns_memtime s[64:65]')
        st.n = 2
    dbgt = opts.get('dbgt')
    if dbgt:
        ns = 80
        a('s_memrealtime s[62:63]')
    def rts(k):
        if dbgt: a(f's_memrealtime s[{62+2*k}:{63+2*k}]\ns_waitcnt lgkmcnt(0)')
    a(f'''s_cmp_ge_u32 s2, 256
s_cbranch_scc1 {name}_done
s_bfe_u32 {sr(sB)}, s2, 0x10002
s_load_dwordx4 {sr(SOUT,4)}, s[0:1], 48
s_load_dwordx2 s[6:7], s[0:1], 64
s_mul_i32 {sr(sT2)}, {sr(sB)}, 24
s_add_u32 s0, s0, {sr(sT2)}
s_addc_u32 s1, s1, 0
s_load_dwordx4 {sr(SX,4)}, s[0:1], 0
s_load_dwordx2 {sr(SWO,2)}, s[0:1], 16
v_lshrrev_b32 {vr(vT0)}, 6, v0
v_and_b32 {vr(vLane)}, 63, v0
s_lshr_b32 {sr(sT)}, s2, 3
v_readfirstlane_b32 {sr(sW)}, {vr(vT0)}
s_and_b32 {sr(sMt)}, {sr(sT)}, 7
s_lshr_b32 {sr(sHg)}, {sr(sT)}, 3
s_mul_i32 {sr(sKK)}, {sr(sHg)}, 3
s_add_u32 {sr(sKK)}, {sr(sKK)}, {sr(sMt)}
s_cmp_ge_u32 {sr(sKK)}, 10
s_cselect_b32 {sr(sT)}, 10, 0
s_sub_u32 {sr(sKK)}, {sr(sKK)}, {sr(sT)}
s_and_b32 {sr(sT)}, s2, 1
s_lshl_b32 {sr(sT)}, {sr(sT)}, 3
s_add_u32 {sr(sMt)}, {sr(sMt)}, {sr(sT)}
s_and_b32 {sr(sT)}, s2, 2
s_lshl_b32 {sr(sT)}, {sr(sT)}, 1
s_add_u32 {sr(sHg)}, {sr(sHg)}, {sr(sT)}
s_mov_b32 {sr(sHi)}, 0
s_mov_b32 {sr(sHi+1)}, -1
s_bfe_u32 {sr(sCg)}, s2, 0x30003
s_and_b32 {sr(sMt3)}, s2, 1
s_lshl_b32 {sr(sMt3)}, {sr(sMt3)}, 2
s_and_b32 {sr(sT)}, s2, 2
s_add_u32 {sr(sMt3)}, {sr(sMt3)}, {sr(sT)}
s_lshl_b32 {sr(sMt3)}, {sr(sMt3)}, 1
s_lshr_b32 {sr(sT)}, s2, 6
s_add_u32 {sr(sMt3)}, {sr(sMt3)}, {sr(sT)}
s_lshl_b32 {sr(sT)}, {sr(sB)}, 3
s_add_u32 {sr(sT)}, {sr(sT)}, {sr(sHg)}
s_mul_i32 {sr(sKV)}, {sr(sT)}, {4*KV_HEAD}
s_mul_i32 {sr(sT3)}, {sr(sHg)}, 160
s_waitcnt lgkmcnt(0)
s_mov_b32 {sr(SWQ)}, {sr(SX+2)}
s_mov_b32 {sr(SWQ+1)}, {sr(SX+3)}
s_mov_b32 {sr(SDBG)}, {sr(SOUT+2)}
s_mov_b32 {sr(SDBG+1)}, {sr(SOUT+3)}
s_mov_b32 {sr(SWS)}, s6
s_mov_b32 {sr(SWS+1)}, s7
s_mov_b32 {sr(SX+2)}, {2048*1280}
s_mov_b32 {sr(SX+3)}, 0x20000
s_mov_b32 {sr(SWQ+2)}, {640*3840}
s_mov_b32 {sr(SWQ+3)}, 0x20000
s_mov_b32 {sr(SWS+2)}, {F_WS_END}
s_mov_b32 {sr(SWS+3)}, 0x20000
s_mov_b32 {sr(SDBG+2)}, 256
s_mov_b32 {sr(SDBG+3)}, 0x20000
s_mov_b32 {sr(SWO+2)}, {640*1280}
s_mov_b32 {sr(SWO+3)}, 0x20000
s_mov_b32 {sr(SOUT+2)}, {2048*2560}
s_mov_b32 {sr(SOUT+3)}, 0x20000''')
    st1()
    n_common = st.n
    a(f'''s_cmp_ge_u32 {sr(sW)}, 8
s_cbranch_scc1 {name}_helper''')

    def w_pattern(dst, first, last):
        a(f'''{first}
v_mul_u32_u24 {vr(vT1)}, 2185, {vr(vT0)}
v_lshrrev_b32 {vr(vT1)}, 16, {vr(vT1)}
v_mul_u32_u24 {vr(vT2)}, 30, {vr(vT1)}
v_sub_u32 {vr(vT0)}, {vr(vT0)}, {vr(vT2)}
v_and_b32 {vr(vT2)}, 0x13, {vr(vT1)}
v_bfe_u32 {vr(vT3)}, {vr(vT1)}, 2, 1
v_lshl_or_b32 {vr(vT2)}, {vr(vT3)}, 3, {vr(vT2)}
v_bfe_u32 {vr(vT3)}, {vr(vT1)}, 3, 1
v_lshl_or_b32 {vr(vT2)}, {vr(vT3)}, 2, {vr(vT2)}
v_mul_u32_u24 {vr(vT2)}, 3840, {vr(vT2)}
v_mul_u32_u24 {vr(vT1)}, 26, {vr(vT0)}
v_lshrrev_b32 {vr(vT1)}, 8, {vr(vT1)}
v_mul_u32_u24 {vr(vT1)}, {1280-160}, {vr(vT1)}
v_lshl_add_u32 {vr(vT0)}, {vr(vT0)}, 4, {vr(vT1)}
v_add3_u32 {vr(dst)}, {vr(vT0)}, {vr(vT2)}, {last}''')

    VP = VAlloc(VBASE)
    vIdx = VP()
    vaK1 = VP(); vaK2 = VP(); vaV = VP()
    vbK1 = VP(); vbK2 = VP(); vbV = VP(); vmK2 = VP(); vmV = VP()
    vQo = VP(); vQo2 = VP(); vQs1 = VP(); vQs2 = VP(); vPub = VP()
    VB2 = VP.n
    V = VAlloc(VB2)
    vEp7 = V(); vCi7 = V(); vZ7 = V()
    vXr = [[V(), V()] for _ in range(3)]
    vWa = [V() for _ in range(3)]
    vWb = [V() for _ in range(3)]
    vE = [V() for _ in range(6)]
    Xf = [[V(4), V(4)], [V(4), V(4)]]
    Wf = [[V(4) for _ in range(4)] for _ in range(2)]
    acc = [[V(4), V(4)] for _ in range(8)]
    done_alloc(V)
    vDX = Wf[0][0]; vDW = [Wf[0][0] + 1, Wf[0][0] + 2]
    a(f'''s_lshl_b32 {sr(sT)}, {sr(sMt)}, 7
s_lshl_b32 {sr(sT2)}, {sr(sW)}, 3
s_add_u32 {sr(sT)}, {sr(sT)}, {sr(sT2)}
v_lshrrev_b32 {vr(vT0)}, 3, {vr(vLane)}
v_add_u32 {vr(vT0)}, {sr(sT)}, {vr(vT0)}
v_mul_u32_u24 {vr(vT0)}, 1280, {vr(vT0)}
s_and_b32 {sr(sT)}, {sr(sW)}, 1
s_lshl_b32 {sr(sT)}, {sr(sT)}, 2
v_lshrrev_b32 {vr(vT1)}, 4, {vr(vLane)}
v_add_u32 {vr(vT2)}, {sr(sT)}, {vr(vT1)}
v_and_b32 {vr(vT3)}, 7, {vr(vLane)}
v_xor_b32 {vr(vT2)}, {vr(vT2)}, {vr(vT3)}
v_lshl_add_u32 {vr(vDX)}, {vr(vT2)}, 4, {vr(vT0)}
s_lshl_b32 {sr(sM0a)}, {sr(sW)}, 10
s_lshl_b32 {sr(sXo)}, {sr(sKK)}, 7
s_mul_i32 {sr(sWo)}, {sr(sKK)}, {64*3840}
s_mov_b32 m0, {sr(sM0a)}
s_add_u32 {sr(sT)}, {sr(sXo)}, 81920
buffer_load_dwordx4 {vr(vDX)}, {sr(SX,4)}, {sr(sXo)} offen lds
s_add_u32 m0, {sr(sM0a)}, 8192
s_add_u32 {sr(sT2)}, {sr(sW)}, 8
buffer_load_dwordx4 {vr(vDX)}, {sr(SX,4)}, {sr(sT)} offen lds
s_cmp_eq_u32 {sr(sW)}, 7
s_cselect_b32 {sr(sT2)}, 7, {sr(sT2)}
s_lshl_b32 {sr(sM0b)}, {sr(sT2)}, 10''')
    for pi, sm in ((0, sM0a), (1, sM0b)):
        a(f's_lshr_b32 {sr(sT)}, {sr(sm)}, 4')
        w_pattern(vDW[pi], f'v_add_u32 {vr(vT0)}, {sr(sT)}, {vr(vLane)}', sr(sT3))
        for half in range(2):
            a(f's_add_u32 m0, {sr(sm)}, {XSZ + half*15360}')
            a(f's_add_u32 {sr(sT)}, {sr(sWo)}, {half*32*3840}')
            a(f'buffer_load_dwordx4 {vr(vDW[pi])}, {sr(SWQ,4)}, {sr(sT)} offen lds')
    st1()
    a('s_barrier')
    st1()
    a(f'''s_cmp_eq_u32 {sr(sW)}, 7
s_cselect_b32 {sr(sM)}, 1, 0
s_mov_b32 {sr(sM+1)}, 0
v_mov_b32 {vr(vT1)}, {OOB}
v_cndmask_b32_e64 {vr(vZ7)}, {vr(vT1)}, 0, {sr(sM,2)}
v_mov_b32 {vr(vT0)}, {F_EPOCH}
buffer_load_dword {vr(vEp7)}, {vr(vT0)}, {sr(SWS,4)}, 0 offen{SC}''')
    a(f'''s_and_b32 {sr(sT)}, {sr(sW)}, 3
s_lshl_b32 {sr(sT)}, {sr(sT)}, 5
v_and_b32 {vr(vT0)}, 15, {vr(vLane)}
v_lshrrev_b32 {vr(vT1)}, 4, {vr(vLane)}
v_lshrrev_b32 {vr(vT2)}, 1, {vr(vT0)}
v_xor_b32 {vr(vT2)}, {vr(vT2)}, {vr(vT1)}
v_add_u32 {vr(vT0)}, {sr(sT)}, {vr(vT0)}
v_lshlrev_b32 {vr(vT0)}, 7, {vr(vT0)}
v_lshl_add_u32 {vr(vXr[0][0])}, {vr(vT2)}, 4, {vr(vT0)}
v_xor_b32 {vr(vXr[0][1])}, 64, {vr(vXr[0][0])}
v_lshrrev_b32 {vr(vT0)}, 5, {vr(vLane)}
v_lshlrev_b32 {vr(vT0)}, 4, {vr(vT0)}
v_bfe_u32 {vr(vT2)}, {vr(vLane)}, 4, 1
v_lshl_add_u32 {vr(vT0)}, {vr(vT2)}, 2, {vr(vT0)}
v_bfe_u32 {vr(vT2)}, {vr(vLane)}, 2, 2
v_add_u32 {vr(vT0)}, {vr(vT0)}, {vr(vT2)}
v_mul_u32_u24 {vr(vT0)}, 480, {vr(vT0)}
v_add_u32 {vr(vT5)}, {XSZ}, {vr(vT0)}
v_bfe_u32 {vr(vT2)}, {vr(vLane)}, 1, 1
v_mul_u32_u24 {vr(vT2)}, 40, {vr(vT2)}
v_and_b32 {vr(vT3)}, 1, {vr(vLane)}
v_lshl_add_u32 {vr(vT2)}, {vr(vT3)}, 4, {vr(vT2)}
v_add_u32 {vr(vWa[0])}, {vr(vT5)}, {vr(vT2)}
s_cmp_ge_u32 {sr(sW)}, 4
s_cselect_b32 {sr(sT)}, 8, 40
v_and_b32 {vr(vT2)}, 3, {vr(vLane)}
v_mad_u32_u24 {vr(vWb[0])}, {vr(vT2)}, {sr(sT)}, {vr(vT5)}''')
    for s_ in (1, 2):
        a(f'v_add_u32 {vr(vXr[s_][0])}, {s_*STG}, {vr(vXr[0][0])}')
        a(f'v_add_u32 {vr(vXr[s_][1])}, {s_*STG}, {vr(vXr[0][1])}')
        a(f'v_add_u32 {vr(vWa[s_])}, {s_*STG}, {vr(vWa[0])}')
        a(f'v_add_u32 {vr(vWb[s_])}, {s_*STG}, {vr(vWb[0])}')
    a(f'''s_lshr_b32 {sr(sT)}, {sr(sW)}, 1
s_mul_i32 {sr(sT2)}, {sr(sT)}, 10240
v_lshlrev_b32 {vr(vQo)}, 4, {vr(vLane)}
v_lshlrev_b32 {vr(vT0)}, 3, {vr(vLane)}
v_add_u32 {vr(vT0)}, 1024, {vr(vT0)}
v_mov_b32 {vr(vT1)}, {OOB}
v_cndmask_b32_e64 {vr(vQo2)}, {vr(vT0)}, {vr(vT1)}, {sr(sHi,2)}
v_add_u32 {vr(vbK1)}, {sr(sT2)}, {vr(vQo)}
v_add_u32 {vr(vT0)}, {sr(sT2)}, {vr(vT0)}
v_mov_b32 {vr(vT1)}, {ONES}
v_cndmask_b32_e64 {vr(vbK2)}, {vr(vT0)}, {vr(vT1)}, {sr(sHi,2)}
v_cndmask_b32_e64 {vr(vmK2)}, 1, 0, {sr(sHi,2)}
v_and_b32 {vr(vT2)}, 31, {vr(vLane)}
v_lshrrev_b32 {vr(vT3)}, 5, {vr(vLane)}
v_mul_u32_u24 {vr(vT3)}, 320, {vr(vT3)}
v_lshl_add_u32 {vr(vT3)}, {vr(vT2)}, 4, {vr(vT3)}
s_add_u32 {sr(sT3)}, {sr(sT2)}, 1280
v_add_u32 {vr(vT3)}, {sr(sT3)}, {vr(vT3)}
v_cmp_gt_u32 vcc, 20, {vr(vT2)}
v_mov_b32 {vr(vIdx)}, 0xdddddddd
v_mov_b32 {vr(vaK1)}, {vr(vbK1)}
v_cndmask_b32 {vr(vbV)}, {vr(vT1)}, {vr(vT3)}, vcc
v_cndmask_b32_e64 {vr(vmV)}, 0, 1, vcc
v_cmp_lt_u32 vcc, 20, {vr(vT2)}
v_add_u32 {vr(vT3)}, 16, {vr(vT1)}
v_mov_b32 {vr(vaK2)}, {vr(vbK2)}
v_cndmask_b32 {vr(vbV)}, {vr(vbV)}, {vr(vT3)}, vcc
v_mov_b32 {vr(vaV)}, {vr(vbV)}
s_mul_i32 {sr(sT2)}, {sr(sW)}, 2560
s_add_u32 {sr(sT2)}, {sr(sT2)}, {QST}
v_add_u32 {vr(vQs1)}, {sr(sT2)}, {vr(vQo)}
v_and_b32 {vr(vQs2)}, 31, {vr(vLane)}
v_lshlrev_b32 {vr(vQs2)}, 3, {vr(vQs2)}
s_add_u32 {sr(sT2)}, {sr(sT2)}, 1024
v_add_u32 {vr(vQs2)}, {sr(sT2)}, {vr(vQs2)}
s_lshl_b32 {sr(sT2)}, {sr(sB)}, 4
s_add_u32 {sr(sT2)}, {sr(sT2)}, {sr(sMt)}
s_lshl_b32 {sr(sT2)}, {sr(sT2)}, 1
s_and_b32 {sr(sT3)}, {sr(sW)}, 1
s_add_u32 {sr(sT2)}, {sr(sT2)}, {sr(sT3)}
s_lshl_b32 {sr(sT2)}, {sr(sT2)}, 5
s_lshl_b32 {sr(sT3)}, {sr(sHg)}, 2
s_add_u32 {sr(sT2)}, {sr(sT2)}, {sr(sT3)}
s_add_u32 {sr(sT2)}, {sr(sT2)}, {sr(sT)}
s_mul_i32 {sr(sOo)}, {sr(sT2)}, 2560
s_add_u32 {sr(sOo)}, {sr(sOo)}, {F_WS_O}
s_mul_i32 {sr(sT)}, {sr(sT)}, {KV_HEAD}
s_add_u32 {sr(sKV)}, {sr(sKV)}, {sr(sT)}
s_and_b32 {sr(sT)}, {sr(sW)}, 1
s_mul_i32 {sr(sT)}, {sr(sT)}, 5120
v_add_u32 {vr(vPub)}, {sr(sT)}, {vr(vbK1)}
s_mul_i32 {sr(sT2)}, {sr(sMt)}, 10240
s_add_u32 {sr(sT)}, {sr(sT)}, {sr(sT2)}
s_add_u32 {sr(sPub)}, {sr(sT)}, {sr(sKV)}
s_add_u32 {sr(sPub2)}, {sr(sPub)}, 4096''')
    for ct in range(8):
        for tt in range(2):
            for i in range(4):
                a(f'v_mov_b32 {vr(acc[ct][tt]+i)}, 0')
    a(f'''s_mov_b32 {sr(sScale)}, {QSCALE}
s_mov_b32 {sr(sScale+1)}, {QSCALE}
s_and_b32 {sr(sT3)}, {sr(sW)}, 3
v_and_b32 {vr(vT0)}, 15, {vr(vLane)}
v_lshrrev_b32 {vr(vT1)}, 4, {vr(vLane)}
v_lshrrev_b32 {vr(vT2)}, 2, {vr(vT0)}
v_and_b32 {vr(vT3)}, 3, {vr(vT0)}
v_lshl_add_u32 {vr(vT4)}, {vr(vT2)}, 3, {vr(vT3)}
v_lshrrev_b32 {vr(vT2)}, 1, {vr(vT1)}
v_and_b32 {vr(vT3)}, 1, {vr(vT1)}
s_mul_i32 {sr(sT)}, {sr(sT3)}, 2560
v_mul_u32_u24 {vr(vE[0])}, 10240, {vr(vT2)}
v_lshl_add_u32 {vr(vE[0])}, {vr(vT3)}, 9, {vr(vE[0])}
v_lshl_add_u32 {vr(vE[0])}, {vr(vT4)}, 4, {vr(vE[0])}
v_add_u32 {vr(vE[0])}, {sr(sT)}, {vr(vE[0])}
s_cmp_ge_u32 {sr(sW)}, 4
s_cbranch_scc1 {name}_p1b''')

    def p1_variant(wn):
        if wn == 0:
            kinds = [('P', 0, 0, 0), ('P', 0, 0, 1), ('P', 0, 1, 0), ('P', 0, 1, 1), ('T', 0, 0, 0), ('P', 1, 0, 0), ('P', 1, 0, 1), ('T', 1, 0, 0)]
            a(f'''s_add_u32 {sr(sT2)}, {sr(sT)}, 1024
v_mul_u32_u24 {vr(vE[1])}, 10240, {vr(vT1)}
v_lshl_add_u32 {vr(vE[1])}, {vr(vT4)}, 3, {vr(vE[1])}
v_add_u32 {vr(vE[1])}, {sr(sT2)}, {vr(vE[1])}
s_mul_i32 {sr(sT)}, {sr(sT3)}, 1280
s_add_u32 {sr(sT)}, {sr(sT)}, {QST}
v_mul_u32_u24 {vr(vE[2])}, 5120, {vr(vT2)}
v_lshl_add_u32 {vr(vE[2])}, {vr(vT3)}, 9, {vr(vE[2])}
v_lshl_add_u32 {vr(vE[2])}, {vr(vT0)}, 4, {vr(vE[2])}
v_add_u32 {vr(vE[2])}, {sr(sT)}, {vr(vE[2])}
s_add_u32 {sr(sT)}, {sr(sT)}, 1024
v_mul_u32_u24 {vr(vE[3])}, 5120, {vr(vT1)}
v_lshl_add_u32 {vr(vE[3])}, {vr(vT0)}, 3, {vr(vE[3])}
v_add_u32 {vr(vE[3])}, {sr(sT)}, {vr(vE[3])}''')
        else:
            kinds = [('P', 1, 1, 0), ('P', 1, 1, 1)] + [('V', 2, i, 0) for i in range(5)]
            a(f'''s_add_u32 {sr(sT)}, {sr(sT)}, 1280
v_mul_u32_u24 {vr(vT2)}, 640, {vr(vT2)}
v_mul_u32_u24 {vr(vT3)}, 320, {vr(vT3)}
v_add3_u32 {vr(vT5)}, {vr(vT2)}, {vr(vT3)}, {sr(sT)}''')
            for i in range(5):
                a(f'''v_add_u32 {vr(vT2)}, {16*i}, {vr(vT0)}
v_mul_u32_u24 {vr(vT3)}, 3277, {vr(vT2)}
v_lshrrev_b32 {vr(vT3)}, 16, {vr(vT3)}
v_mul_u32_u24 {vr(vT3)}, {10240-320}, {vr(vT3)}
v_lshl_add_u32 {vr(vT2)}, {vr(vT2)}, 4, {vr(vT3)}
v_add_u32 {vr(vE[1+i])}, {vr(vT2)}, {vr(vT5)}''')
        nct = len(kinds)
        grp = [list(range(0, 4)), list(range(4, nct))]
        def rd_x(step, s2):
            return [f'ds_read_b128 {vr(Xf[s2][tt],4)}, {vr(vXr[step%3][s2])} offset:{tt*2048}' for tt in range(2)]
        def rd_w(step, s2, h, idx):
            ty, sec, sub, e = kinds[grp[h][idx]]
            base = (vWa if ty == 'P' else vWb)[step % 3]
            col = sec*160 + {'P': sub*80 + e*8, 'T': 32, 'V': sub*32}[ty]
            return [f'ds_read_b64_tr_b16 {vr(Wf[h][idx]+2*rd,2)}, {vr(base)} offset:{(32*s2+8*rd)*480 + col}' for rd in range(2)]
        def mf(s2, h, idx):
            ct = grp[h][idx]
            out = []
            for tt in range(2):
                A, B = Wf[h][idx], Xf[s2][tt]
                if kinds[ct][0] == 'V':
                    A, B = B, A
                out.append(f'v_mfma_f32_16x16x32_bf16 {vr(acc[ct][tt],4)}, {vr(A,4)}, {vr(B,4)}, {vr(acc[ct][tt],4)}')
            return out
        n0, n1 = 2 + 2*len(grp[0]), 2*len(grp[1])
        def phase(s2, h, nxt):
            if nxt is not None and h == 0:
                for r in rd_x(*nxt): a(r)
            for idx in range(len(grp[h])):
                for m in mf(s2, h, idx): a(m)
                if nxt is not None:
                    for r in rd_w(nxt[0], nxt[1], h, idx): a(r)
        st1()
        a('s_waitcnt vmcnt(0)')
        a(f'v_readfirstlane_b32 {sr(sTag)}, {vr(vEp7)}')
        a('s_barrier')
        a(f's_add_u32 {sr(sTag)}, {sr(sTag)}, {TAGK}')
        rts(1)
        st()
        for r in rd_x(0, 0): a(r)
        for h in range(2):
            for idx in range(len(grp[h])):
                for r in rd_w(0, 0, h, idx): a(r)
        for step in range(10):
            a(f's_waitcnt lgkmcnt({n1})')
            phase(0, 0, (step, 1))
            a(f's_waitcnt lgkmcnt({n0})')
            phase(0, 1, (step, 1))
            a('s_waitcnt lgkmcnt(0)')
            a('s_barrier')
            if step == 0 and wn == 1:
                a(f'v_mov_b32 {vr(vCi7)}, 1')
                a(f'buffer_atomic_add {vr(vCi7)}, {vr(vZ7)}, {sr(SDBG,4)}, 0 offen sc0')
            if step in (0, 4): st0()
            if step in (0, 1, 2, 8): st1()
            nx = (step + 1, 0) if step < 9 else None
            phase(1, 0, nx)
            phase(1, 1, nx)
        st0()
        rts(2)
        if wn == 1:
            a(f'''s_waitcnt vmcnt(0)
v_cmp_eq_u32 vcc, 255, {vr(vCi7)}
v_add_u32 {vr(vEp7)}, {TAGK}, {vr(vEp7)}
v_mov_b32 {vr(vT1)}, {OOB}
s_mov_b32 {sr(sT)}, {F_EPOCH}
v_cndmask_b32 {vr(vZ7)}, {vr(vT1)}, {vr(vZ7)}, vcc
buffer_store_dword {vr(vEp7)}, {vr(vZ7)}, {sr(SWS,4)}, {sr(sT)} offen{SC}''')
        def scale(r0):
            a(f'v_pk_mul_f32 {vr(r0,2)}, {vr(r0,2)}, {sr(sScale,2)}')
            a(f'v_pk_mul_f32 {vr(r0+2,2)}, {vr(r0+2,2)}, {sr(sScale,2)}')
        def pack4(d, x, y):
            a(f'v_cvt_pk_bf16_f32 {vr(d)}, {vr(x)}, {vr(x+1)}')
            a(f'v_cvt_pk_bf16_f32 {vr(d+1)}, {vr(x+2)}, {vr(x+3)}')
            if y is not None:
                a(f'v_cvt_pk_bf16_f32 {vr(d+2)}, {vr(y)}, {vr(y+1)}')
                a(f'v_cvt_pk_bf16_f32 {vr(d+3)}, {vr(y+2)}, {vr(y+3)}')
        def stage(want):
          ct = 0
          while ct < nct:
            ty, sec, sub, e = kinds[ct]
            if (sec == 0) != want:
                ct += 1
                continue
            if ty == 'P':
                for tt in range(2):
                    x, y = acc[ct][tt], acc[ct+1][tt]
                    if sec == 0:
                        scale(x); scale(y)
                    pack4(x, x, y)
                    if sec == 0:
                        a(f'ds_write_b128 {vr(vE[2])}, {vr(x,4)} offset:{sub*10240 + tt*256}')
                    else:
                        a(f'ds_write_b128 {vr(vE[0])}, {vr(x,4)} offset:{sub*20480 + tt*64}')
                ct += 2
            elif ty == 'T':
                for tt in range(2):
                    x = acc[ct][tt]
                    if sec == 0:
                        scale(x)
                    pack4(x, x, None)
                    if sec == 0:
                        a(f'ds_write_b64 {vr(vE[3])}, {vr(x,2)} offset:{tt*128}')
                    else:
                        a(f'ds_write_b64 {vr(vE[1])}, {vr(x,2)} offset:{tt*32}')
                ct += 1
            else:
                x, y = acc[ct][0], acc[ct][1]
                pack4(x, x, y)
                a(f'ds_write_b128 {vr(vE[1+sub])}, {vr(x,4)}')
                ct += 1
        stage(False)
        a('s_waitcnt lgkmcnt(0)')
        a('s_barrier')
        PB = Xf[0][0]
        assert Wf[0][0] == PB + 16
        for q in range(5):
            a(f'ds_read_b128 {vr(PB+4*q,4)}, {vr(vPub)} offset:{q*1024}')
        stage(True)
        nq = 6 if wn == 0 else 0
        for q in range(5):
            a(f's_waitcnt lgkmcnt({4 - q + nq})')
            a(f'buffer_store_dwordx4 {vr(PB+4*q,4)}, {vr(vQo)}, {sr(SWS,4)}, {sr(sPub if q < 4 else sPub2)} offen offset:{(q%4)*1024}{SC}')
        a('s_nop 1')
    n_st = st.n
    p1_variant(0)
    a(f's_branch {name}_p2')
    a.label(f'{name}_p1b')
    st.n = n_st
    p1_variant(1)
    a.label(f'{name}_p2')

    V = VAlloc(VB2 + 3)
    Q1 = [V(4), V(4)]; Q2 = [V(2), V(2)]
    K1 = [V(4), V(4)]; K2 = [V(2), V(2)]
    V0 = [V(4), V(4)]; V1 = [V(4), V(4)]
    O = [V(16), V(16)]
    S = [V(16), V(16)]
    vPw = V(2); vPa = V(); vPo_ = V(); vPg = V()
    done_alloc(V)
    for t in range(2):
        for i in range(16):
            a(f'v_mov_b32 {vr(O[t]+i)}, 0')
    for i in range(4):
        a(f'v_mov_b32 {vr(V1[1]+i)}, 0')
    a(f's_mov_b32 {sr(sG)}, 0')
    a(f's_mov_b32 {sr(sOff)}, 0')
    if nobar:
        a(f'''s_lshl_b32 {sr(sT)}, {sr(sW)}, 3
s_add_u32 {sr(sT2)}, {sr(sT)}, {LW_PW + 4}
s_xor_b32 {sr(sT)}, {sr(sT)}, 32
s_add_u32 {sr(sT)}, {sr(sT)}, {LW_PW}
v_mov_b32 {vr(vPa)}, {sr(sT)}
v_mov_b32 {vr(vPo_)}, {sr(sT2)}
v_mov_b32 {vr(vPg)}, 0''')
    a('s_waitcnt lgkmcnt(0)')
    a('s_barrier')
    st0()
    def rdK(s_, u, part='R'):
        if part != 'Rb': a(f'ds_read_b128 {vr(K1[s_],4)}, {vr(vaK1)} offset:{2560*u}')
        if part != 'Ra': a(f'ds_read_b64 {vr(K2[s_],2)}, {vr(vaK2)} offset:{2560*u}')
    def rdV(s_, u, part='R'):
        if part != 'Rb': a(f'ds_read_b128 {vr(V0[s_],4)}, {vr(vaV)} offset:{2560*u}')
        if part != 'Ra': a(f'ds_read_b128 {vr(V1[s_],4)}, {vr(vaV)} offset:{2560*u+640}')
    def qk16(t, s_):
        a(f'v_mfma_f32_32x32x16_bf16 {vr(S[t],16)}, {vr(K1[s_],4)}, {vr(Q1[t],4)}, 0')
    def qk8(t, s_):
        a(f'v_mfma_f32_32x32x8_bf16 {vr(S[t],16)}, {vr(K2[s_],2)}, {vr(Q2[t],2)}, {vr(S[t],16)}')
    def pv(t, s_, n):
        Vf = (V0, V1)[n][s_]
        a(f'v_smfmac_f32_32x32x32_bf16 {vr(O[t],16)}, {vr(Vf,4)}, {vr(S[t]+8*n,8)}, {vr(vIdx)}')
    def rowmax(t, dst):
        s = S[t]
        a(f'v_max3_f32 {vr(dst)}, {vr(s)}, {vr(s+1)}, {vr(s+2)}')
        for i in range(3, 15, 2):
            a(f'v_max3_f32 {vr(dst)}, {vr(dst)}, {vr(s+i)}, {vr(s+i+1)}')
        a(f'v_max_f32 {vr(dst)}, {vr(dst)}, {vr(s+15)}')
    def crosshalf(x, y):
        a(f'v_mov_b32 {vr(y)}, {vr(x)}')
        a('s_nop 1')
        a(f'v_permlane32_swap_b32 {vr(x)}, {vr(y)}')
        a('s_nop 1')
    for t in range(2):
        a(f'ds_read_b128 {vr(Q1[t],4)}, {vr(vQs1)} offset:{1280*t}')
        a(f'ds_read_b64 {vr(Q2[t],2)}, {vr(vQs2)} offset:{1280*t}')
    rdK(0, 0); rdK(1, 1); rdV(0, 0)
    a('s_waitcnt lgkmcnt(4)')
    for t in range(2):
        a(f'v_cndmask_b32_e64 {vr(Q2[t])}, {vr(Q2[t])}, 0, {sr(sHi,2)}')
        a(f'v_cndmask_b32_e64 {vr(Q2[t]+1)}, {vr(Q2[t]+1)}, 0, {sr(sHi,2)}')
    qk16(0, 0); qk8(0, 0); qk16(1, 0); qk8(1, 0)
    a('s_nop 9')
    for t in range(2):
        if t == 1: a('s_nop 1')
        rowmax(t, vT0)
        crosshalf(vT0, vT1)
        a(f'''v_max_f32 {vr(vT0)}, {vr(vT0)}, {vr(vT1)}
v_sub_f32 {vr(vT0)}, 0, {vr(vT0)}
v_and_b32 {vr(vT1)}, 0xffff0000, {vr(vT0)}
v_sub_f32 {vr(vT0)}, {vr(vT0)}, {vr(vT1)}
v_and_b32 {vr(vT2)}, 0xffff0000, {vr(vT0)}
v_sub_f32 {vr(vT0)}, {vr(vT0)}, {vr(vT2)}
v_lshrrev_b32 {vr(vT1)}, 16, {vr(vT1)}
v_or_b32 {vr(vT1)}, {vr(vT1)}, {vr(vT2)}
v_lshrrev_b32 {vr(vT0)}, 16, {vr(vT0)}
v_cndmask_b32_e64 {vr(Q2[t])}, {vr(Q2[t])}, {vr(vT1)}, {sr(sHi,2)}
v_cndmask_b32_e64 {vr(Q2[t]+1)}, {vr(Q2[t]+1)}, {vr(vT0)}, {sr(sHi,2)}''')
        if t == 0:
            qk16(0, 0)
            a('s_nop 0')
            qk8(0, 0)
    for i in range(8, 16):
        a(f'v_mov_b32 {vr(S[1]+i)}, 0')
    a(f'''s_lshl_b32 {sr(sT)}, {sr(sB)}, 3
s_add_u32 {sr(sT)}, {sr(sT)}, {sr(sHg)}
s_lshl_b32 {sr(sT)}, {sr(sT)}, 6
s_add_u32 {sr(sT)}, {sr(sT)}, {sr(sMt)}
s_lshl_b32 {sr(sT)}, {sr(sT)}, 2
s_add_u32 {sr(sT)}, {sr(sT)}, {F_FLAG1}
s_mov_b64 exec, 1
v_mov_b32 {vr(vT0)}, 1
v_mov_b32 {vr(vT2)}, {LW_CNT1}
v_mov_b32 {vr(vT1)}, {sr(sTag)}
v_mov_b32 {vr(vT3)}, {sr(sT)}
s_waitcnt vmcnt(0)
ds_add_rtn_u32 {vr(vT0)}, {vr(vT2)}, {vr(vT0)}
s_waitcnt lgkmcnt(0)
v_readfirstlane_b32 {sr(sT)}, {vr(vT0)}
s_cmp_eq_u32 {sr(sT)}, 7
s_cbranch_scc0 {name}_nl1
buffer_store_dword {vr(vT1)}, {vr(vT3)}, {sr(SWS,4)}, 0 offen{SC}''')
    a.label(f'{name}_nl1')
    a('s_mov_b64 exec, -1')
    prio = opts.get('prio', 1)
    rts(3)
    st0()
    if sset == 2: st()
    a('.p2align 6')
    a.label(f'{name}_loop')
    def ex(t, i):
        a(f'v_exp_f32 {vr(S[t]+i)}, {vr(S[t]+i)}')
    scheds = {1: 'e e P2 e e e e Q16 e e e e Q8 R e e e e P1 W e e',
              2: 'e e P2 e e e e Q16 e e e Q8 R e e e e e P1 W e e',
              3: 'e e P2 e e e e Q16 e e e e Q8 e R e e e P1 e W e',
              4: 'e e P2 e e e Q16 e e e e Q8 R e e e e P1 W e e e',
              5: 'e e W P2 e e e e Ra Q16 e e e e Rb Q8 e e e e P1 e e',
              6: 'e e W P2 e e e e R Q16 e e e e Q8 e e e e P1 e e',
              7: 'e e W P2 e e e e Q16 e e e e Ra Q8 e e e e Rb P1 e e',
              8: 'e e P2 e e e e Ra Q16 e e e e Rb Q8 e e e e W P1 e e',
              9: 'e e P2 e e e e Q16 e e e e Q8 e e e e R W P1 e e',
              10: 'e e P2 Ra e e e e Q16 Rb e e e e Q8 W e e e e P1 e e',
              11: 'e e P2 Ra e e e e Q16 Rb e e e e Q8 e e e e P1 W e e',
              12: 'e e P2 R e e e e Q16 e e e e Q8 e e e e P1 W e e'}
    sched = scheds[opts.get('sched', 1)].split()
    unroll = opts.get('unroll', 1)
    ptab = {1: {(0, 0): 2, (1, 0): 1, (2, 0): 0, (3, 0): 3},
            2: {(3, 0): 1, (1, 0): 0},
            3: {(3, 0): 3, (3, 1): 2, (0, 1): 1, (1, 1): 0},
            6: {(3, 0): 3, (0, 1): 2, (1, 1): 1, (2, 0): 0}}.get(prio, {})
    for rep in range(unroll):
      for j in range(4):
        for t in range(2):
            pj = j if t == 1 else j - 1
            nj = j if t == 0 else j + 1
            if (j, t) in ptab and nobar != 1:
                a(f's_setprio {ptab[(j, t)]}')
            e = 0
            for tok in sched:
                if tok == 'e':
                    ex(t, e); e += 1
                elif tok == 'P2':
                    pv(1 - t, pj % 2, 1)
                elif tok == 'P1':
                    pv(t, j % 2, 0)
                elif tok == 'Q16':
                    qk16(1 - t, nj % 2)
                elif tok == 'Q8':
                    qk8(1 - t, nj % 2)
                elif tok == 'W':
                    a(f's_waitcnt lgkmcnt({3 if nobar and (j, t) in ((2, 0), (2, 1)) else 2})')
                elif tok == 'Rb':
                    if t == 0: rdV((j + 1) % 2, (j + 1) % 4, 'Rb')
                    else: rdK(j % 2, (j + 2) % 4, 'Rb')
                elif tok in ('R', 'Ra'):
                    if t == 0:
                        if j == 3:
                            a(f'v_mad_u32_u24 {vr(vaV)}, {vr(vmV)}, {sr(sOff)}, {vr(vbV)}')
                        rdV((j + 1) % 2, (j + 1) % 4, tok)
                        if j == 2 and nobar:
                            a(f'ds_read_b64 {vr(vPw,2)}, {vr(vPa)}')
                    else:
                        if j == 2:
                            a(f'''s_add_u32 {sr(sOff)}, {sr(sOff)}, {SLOT}
s_cmp_ge_u32 {sr(sOff)}, {3*SLOT}
s_cselect_b32 {sr(sOff)}, 0, {sr(sOff)}''')
                            if nobar:
                                a(f'''v_add_u32 {vr(vPg)}, 1, {vr(vPg)}
s_add_u32 {sr(sT3)}, {sr(sG)}, {rep + 1}
s_waitcnt lgkmcnt(0)
v_readfirstlane_b32 {sr(sT)}, {vr(vPw)}
v_readfirstlane_b32 {sr(sT2)}, {vr(vPw+1)}
ds_write_b32 {vr(vPo_)}, {vr(vPg)}''')
                                if nobar == 1:
                                    a(f'''s_setprio 0
s_cmp_lt_u32 {sr(sT2)}, {sr(sT3)}
s_cbranch_scc1 {name}_lo{rep}
s_setprio 1''')
                                    a.label(f'{name}_lo{rep}')
                                elif nobar == 2:
                                    a(f's_add_u32 {sr(sT2)}, {sr(sT2)}, {1 + opts.get("slack", 0)}')
                                    a(f's_min_u32 {sr(sT)}, {sr(sT)}, {sr(sT2)}')
                                a(f's_cmp_gt_u32 {sr(sT)}, {sr(sT3)}')
                                a(f's_cbranch_scc0 {name}_spin{rep}')
                                a.label(f'{name}_spun{rep}')
                            else:
                                a('s_waitcnt lgkmcnt(0)')
                                a('s_barrier')
                            if sset == 2 and st.on:
                                for K in (0, 1, 2, 3, 8, 14):
                                    a(f's_cmp_eq_u32 {sr(sG)}, {K}')
                                    a(f's_cbranch_scc0 {name}_sk{K}')
                                    st()
                                    a.label(f'{name}_sk{K}')
                            a(f'''v_add_u32 {vr(vaK1)}, {sr(sOff)}, {vr(vbK1)}
v_mad_u32_u24 {vr(vaK2)}, {vr(vmK2)}, {sr(sOff)}, {vr(vbK2)}''')
                        rdK(j % 2, (j + 2) % 4, tok)
            assert e == 16
    a(f'''s_add_u32 {sr(sG)}, {sr(sG)}, {unroll}
s_cmp_lt_u32 {sr(sG)}, 16
s_cbranch_scc1 {name}_loop''')
    a('s_nop 1')
    pv(1, 1, 1)
    if ptab or nobar:
        a('s_setprio 0')
    st0()
    if sset in (2, 3): st()
    L = [vT2, vT3]
    rts(4)
    a('s_waitcnt lgkmcnt(0)')
    a(f's_mov_b32 {sr(sI)}, 0')
    a.label(f'{name}_store')
    a(f's_mov_b32 {sr(sM)}, 0xaaaaaaaa')
    a(f's_mov_b32 {sr(sM+1)}, 0xaaaaaaaa')
    for t in range(2):
        a(f'v_mov_b32 {vr(vT0)}, {vr(O[t]+8)}')
        crosshalf(vT0, L[t])
        a(f'v_rcp_f32 {vr(vT0)}, {vr(L[t])}')
        a('s_nop 0')
        for i in range(12):
            a(f'v_mul_f32 {vr(O[t]+i)}, {vr(O[t]+i)}, {vr(vT0)}')
        for i in range(4):
            a(f'v_cvt_pk_bf16_f32 {vr(S[t]+i)}, {vr(O[t]+2*i)}, {vr(O[t]+2*i+1)}')
        a(f'buffer_store_dwordx4 {vr(S[t],4)}, {vr(vQo)}, {sr(SWS,4)}, {sr(sOo)} offen offset:{1024*t}{SC}')
        for i in range(2):
            a(f'v_cvt_pk_bf16_f32 {vr(S[0]+4+2*t+i)}, {vr(O[t]+8+2*i)}, {vr(O[t]+8+2*i+1)}')
    ta, tb, X, Y = S[0]+4, S[0]+6, S[0]+8, S[0]+12
    a(f'''v_cndmask_b32_e64 {vr(X)}, {vr(tb)}, {vr(ta)}, {sr(sM,2)}
v_cndmask_b32_e64 {vr(X+1)}, {vr(tb+1)}, {vr(ta+1)}, {sr(sM,2)}
v_lshrrev_b32 {vr(vT0)}, 1, {vr(vLane)}
v_and_b32 {vr(vT1)}, 1, {vr(vLane)}
v_mov_b32_dpp {vr(X+2)}, {vr(X)} quad_perm:[1,0,3,2] row_mask:0xf bank_mask:0xf
v_mov_b32_dpp {vr(X+3)}, {vr(X+1)} quad_perm:[1,0,3,2] row_mask:0xf bank_mask:0xf
v_lshlrev_b32 {vr(vT0)}, 4, {vr(vT0)}
v_lshl_add_u32 {vr(vT0)}, {vr(vT1)}, 8, {vr(vT0)}
v_mov_b32 {vr(vT1)}, {OOB}
v_cndmask_b32_e64 {vr(Y)}, {vr(ta)}, {vr(X+2)}, {sr(sM,2)}
v_cndmask_b32_e64 {vr(Y+1)}, {vr(ta+1)}, {vr(X+3)}, {sr(sM,2)}
v_cndmask_b32_e64 {vr(Y+2)}, {vr(X+2)}, {vr(tb)}, {sr(sM,2)}
v_cndmask_b32_e64 {vr(Y+3)}, {vr(X+3)}, {vr(tb+1)}, {sr(sM,2)}
v_cndmask_b32_e64 {vr(vT0)}, {vr(vT0)}, {vr(vT1)}, {sr(sHi,2)}
buffer_store_dwordx4 {vr(Y,4)}, {vr(vT0)}, {sr(SWS,4)}, {sr(sOo)} offen offset:2048{SC}''')
    st0()
    for t in range(2):
        sm = sM if t == 0 else sM2
        a(f'v_mul_f32 {vr(vT1)}, 0, {vr(O[t])}')
        for i in range(1, 12):
            a(f'v_fmac_f32 {vr(vT1)}, 0, {vr(O[t]+i)}')
        a(f'v_add_f32 {vr(vT1)}, {vr(vT1)}, {vr(L[t])}')
        a(f'v_cmp_gt_f32 vcc, 0x53800000, {vr(vT1)}')
        a(f's_mov_b64 {sr(sm,2)}, vcc')
        a(f'v_cmp_lt_f32 vcc, 0x35800000, {vr(vT1)}')
        a(f's_and_b64 {sr(sm,2)}, {sr(sm,2)}, vcc')
    a(f'''s_and_b64 {sr(sM,2)}, {sr(sM,2)}, {sr(sM2,2)}
s_cmp_eq_u64 {sr(sM,2)}, -1
s_cselect_b32 {sr(sT)}, 1, {sr(sI)}
s_cmp_eq_u32 {sr(sT)}, 0
s_cbranch_scc1 {name}_fallback''')

    V = VAlloc(VBASE)
    vAo = V(); vAt = V(); vWm0 = V(); vWt0 = V(); vOo = V(); vRd = V(); vDn = V()
    vWm = [V() for _ in range(4)]; vWt = [V() for _ in range(4)]
    acc3 = [V(4) for _ in range(5)]
    assert V.n <= S[0]
    Wg = [[V(4) for _ in range(5)] for _ in range(2)]
    A = [[V(4) for _ in range(5)] for _ in range(4)]
    done_alloc(V)
    a(f'''s_lshl_b32 {sr(sT)}, {sr(sB)}, 4
s_add_u32 {sr(sT)}, {sr(sT)}, {sr(sMt3)}
s_lshl_b32 {sr(sT)}, {sr(sT)}, 1
s_lshr_b32 {sr(sT2)}, {sr(sW)}, 2
s_add_u32 {sr(sT)}, {sr(sT)}, {sr(sT2)}
s_mul_i32 {sr(sA)}, {sr(sT)}, {32*2560}
s_add_u32 {sr(sA)}, {sr(sA)}, {F_WS_O}
s_and_b32 {sr(sT)}, {sr(sW)}, 1
s_lshl_b32 {sr(sT)}, {sr(sT)}, 4
s_bfe_u32 {sr(sT2)}, {sr(sW)}, 0x10001
v_and_b32 {vr(vT0)}, 15, {vr(vLane)}
v_add_u32 {vr(vT0)}, {sr(sT)}, {vr(vT0)}
v_lshlrev_b32 {vr(vT0)}, 4, {vr(vT0)}
v_lshrrev_b32 {vr(vT1)}, 5, {vr(vLane)}
v_mul_u32_u24 {vr(vT1)}, 2560, {vr(vT1)}
v_bfe_u32 {vr(vT2)}, {vr(vLane)}, 4, 1
v_lshl_add_u32 {vr(vT1)}, {vr(vT2)}, 9, {vr(vT1)}
s_lshl_b32 {sr(sT3)}, {sr(sT2)}, 10
v_add3_u32 {vr(vAo)}, {vr(vT0)}, {vr(vT1)}, {sr(sT3)}
v_lshrrev_b32 {vr(vT1)}, 4, {vr(vLane)}
v_mul_u32_u24 {vr(vT1)}, 2560, {vr(vT1)}
s_lshl_b32 {sr(sT3)}, {sr(sT2)}, 8
s_add_u32 {sr(sT3)}, {sr(sT3)}, 2048
v_lshrrev_b32 {vr(vT0)}, 1, {vr(vT0)}
v_add3_u32 {vr(vAt)}, {vr(vT0)}, {vr(vT1)}, {sr(sT3)}
v_bfe_u32 {vr(vT0)}, {vr(vLane)}, 2, 2
v_lshrrev_b32 {vr(vT1)}, 5, {vr(vLane)}
v_mul_u32_u24 {vr(vT1)}, 20, {vr(vT1)}
v_bfe_u32 {vr(vT2)}, {vr(vLane)}, 4, 1
v_lshl_add_u32 {vr(vT1)}, {vr(vT2)}, 2, {vr(vT1)}
v_add_u32 {vr(vT1)}, {vr(vT1)}, {vr(vT0)}
v_mul_u32_u24 {vr(vT1)}, 160, {vr(vT1)}
v_and_b32 {vr(vT2)}, 3, {vr(vLane)}
v_lshl_add_u32 {vr(vWm0)}, {vr(vT2)}, 3, {vr(vT1)}
v_lshrrev_b32 {vr(vT1)}, 4, {vr(vLane)}
v_mul_u32_u24 {vr(vT1)}, 20, {vr(vT1)}
v_add3_u32 {vr(vT1)}, {vr(vT1)}, {vr(vT0)}, 16
v_mul_u32_u24 {vr(vT1)}, 160, {vr(vT1)}
v_lshl_add_u32 {vr(vWt0)}, {vr(vT2)}, 3, {vr(vT1)}
s_lshl_b32 {sr(sT)}, {sr(sMt3)}, 7
s_lshl_b32 {sr(sT2)}, {sr(sW)}, 4
s_add_u32 {sr(sT)}, {sr(sT)}, {sr(sT2)}
v_and_b32 {vr(vT0)}, 15, {vr(vLane)}
v_add_u32 {vr(vT0)}, {sr(sT)}, {vr(vT0)}
v_mul_u32_u24 {vr(vT0)}, 2560, {vr(vT0)}
v_lshrrev_b32 {vr(vT1)}, 4, {vr(vLane)}
v_lshl_add_u32 {vr(vT0)}, {vr(vT1)}, 3, {vr(vT0)}
s_mul_i32 {sr(sT)}, {sr(sB)}, 1280
s_mul_i32 {sr(sT2)}, {sr(sCg)}, 160
s_add_u32 {sr(sT)}, {sr(sT)}, {sr(sT2)}
v_add_u32 {vr(vOo)}, {sr(sT)}, {vr(vT0)}
v_mov_b32 {vr(vRd)}, {LW_RDY}
s_lshl_b32 {sr(sT)}, {sr(sB)}, 4
s_add_u32 {sr(sT)}, {sr(sT)}, {sr(sMt)}
s_lshl_b32 {sr(sT)}, {sr(sT)}, 6
s_add_u32 {sr(sT)}, {sr(sT)}, {sr(sHg)}
s_lshl_b32 {sr(sT)}, {sr(sT)}, 2
s_add_u32 {sr(sT)}, {sr(sT)}, {F_FLAG2}
v_mov_b32 {vr(vDn)}, {sr(sT)}
v_add_u32 {vr(vWm0)}, {WO_LO}, {vr(vWm0)}
v_add_u32 {vr(vWt0)}, {WO_LO}, {vr(vWt0)}
s_and_b32 {sr(sT3)}, {sr(sCg)}, {opts.get('rot3', 3)}
s_lshl_b32 {sr(sT3)}, {sr(sT3)}, 1
s_mov_b32 {sr(sDone)}, 0''')
    for t in range(5):
        for i in range(4):
            a(f'v_mov_b32 {vr(acc3[t]+i)}, 0')
    tid_ = [0]
    base3 = st.n
    if sset == 3: st.n += 4
    def read_rdy():
        a(f'''ds_read_b64 {vr(vT0,2)}, {vr(vRd)}
s_waitcnt lgkmcnt(0)
v_and_b32 {vr(vT0)}, {vr(vT0)}, {vr(vT1)}
s_nop 0
v_readfirstlane_b32 {sr(sT)}, {vr(vT0)}
s_andn2_b32 {sr(sT)}, {sr(sT)}, {sr(sDone)}''')
    def loads(s_):
        a(f'''s_lshl_b32 {sr(sT2)}, {sr(sT)}, 8
s_or_b32 {sr(sT)}, {sr(sT)}, {sr(sT2)}
s_lshr_b32 {sr(sT)}, {sr(sT)}, {sr(sT3)}
s_ff1_i32_b32 {sr(sT)}, {sr(sT)}
s_add_u32 {sr(sT)}, {sr(sT)}, {sr(sT3)}
s_and_b32 {sr(sT)}, {sr(sT)}, 7
s_bitset1_b32 {sr(sDone)}, {sr(sT)}
s_mul_i32 {sr(sT2)}, {sr(sT)}, 10240
s_add_u32 {sr(sT2)}, {sr(sT2)}, {sr(sA)}
s_cmp_eq_u32 {sr(sT)}, 6
s_mul_i32 {sr(sT)}, {sr(sT)}, 12800
s_cselect_b32 {sr(sT)}, {QST - WO_LO}, {sr(sT)}''')
        for p in range(4):
            a(f'buffer_load_dwordx4 {vr(A[s_][p],4)}, {vr(vAo)}, {sr(SWS,4)}, {sr(sT2)} offen{SC}')
            if p == 0:
                a(f'buffer_load_dwordx2 {vr(A[s_][4],2)}, {vr(vAt)}, {sr(SWS,4)}, {sr(sT2)} offen{SC}')
            if p == 2:
                a(f'buffer_load_dwordx2 {vr(A[s_][4]+2,2)}, {vr(vAt)}, {sr(SWS,4)}, {sr(sT2)} offen{SC}')
            if p < 3:
                a(f's_add_u32 {sr(sT2)}, {sr(sT2)}, 5120')
        a(f'v_add_u32 {vr(vWm[s_])}, {sr(sT)}, {vr(vWm0)}')
        a(f'v_add_u32 {vr(vWt[s_])}, {sr(sT)}, {vr(vWt0)}')
        if sset == 3 and st.on:
            a(f's_memtime s[{62+2*(base3+s_)}:{63+2*(base3+s_)}]\ns_waitcnt lgkmcnt(0)')
    def take_group(s_):
        n = tid_[0]; tid_[0] += 1
        a.label(f'{name}_tg{n}')
        read_rdy()
        a(f'''s_cbranch_scc1 {name}_tgd{n}
s_sleep 1
s_branch {name}_tg{n}''')
        a.label(f'{name}_tgd{n}')
        loads(s_)
    a('s_waitcnt vmcnt(0)')
    a(f'''s_mov_b64 exec, 1
v_mov_b32 {vr(vT0)}, 1
ds_add_rtn_u32 {vr(vT0)}, {vr(vRd)}, {vr(vT0)} offset:8
v_mov_b32 {vr(vT1)}, {sr(sTag)}
v_mov_b32 {vr(vT2)}, 0xff
s_waitcnt lgkmcnt(0)
v_readfirstlane_b32 {sr(sT)}, {vr(vT0)}
s_cmp_eq_u32 {sr(sT)}, 7
s_cbranch_scc0 {name}_nl
buffer_store_dword {vr(vT1)}, {vr(vDn)}, {sr(SWS,4)}, 0 offen{SC}
ds_write_b32 {vr(vRd)}, {vr(vT2)} offset:4''')
    a.label(f'{name}_nl')
    a('s_mov_b64 exec, -1')
    if sset == 3: st()
    def rdW3(fs, j, p, t):
        out = []
        for rd in range(2):
            if p < 4:
                base, off = vWm[j], (20*(2*p) + 8*rd)*160 + t*32
            else:
                base, off = vWt[j], (20*(4*rd))*160 + t*32
            out.append(f'ds_read_b64_tr_b16 {vr(Wg[fs][t]+2*rd,2)}, {vr(base)} offset:{off}')
        return out
    st0()
    steps = [(j, p) for j in range(4) for p in range(5)]
    for j in range(4):
        take_group(j)
    for n in range(2):
        for t in range(5):
            for r in rdW3(n, *steps[n], t): a(r)
    left = {0: 5, 1: 3, 2: 2, 3: 0, 4: 0}
    for n, (j, p) in enumerate(steps):
        fs = n % 2
        a(f's_waitcnt vmcnt({6*(3-j) + left[p]}) lgkmcnt({10 if n < 19 else 0})')
        if sset == 3 and n in (0, 18): st()
        for t in range(5):
            a(f'v_mfma_f32_16x16x32_bf16 {vr(acc3[t],4)}, {vr(Wg[fs][t],4)}, {vr(A[j][p],4)}, {vr(acc3[t],4)}')
            if n + 2 < 20:
                for r in rdW3(fs, *steps[n+2], t): a(r)
    a('s_nop 3')
    st0()
    if sset == 3: st()
    OUTF = {0: '', 1: ' nt', 2: ' sc1'}[opts.get('outf', 0)]
    for t in range(5):
        a(f'v_cvt_pk_bf16_f32 {vr(acc3[t])}, {vr(acc3[t])}, {vr(acc3[t]+1)}')
        a(f'v_cvt_pk_bf16_f32 {vr(acc3[t]+1)}, {vr(acc3[t]+2)}, {vr(acc3[t]+3)}')
        a(f'buffer_store_dwordx2 {vr(acc3[t],2)}, {vr(vOo)}, {sr(SOUT,4)}, 0 offen offset:{t*32}{OUTF}')
    if dbgt:
        a('s_waitcnt vmcnt(0)')
        rts(5)
        a('s_mov_b64 exec, 1')
        a(f's_not_b32 s62, s62')
        for k in range(6):
            a(f'v_mov_b32 {vr(vT0)}, {4+4*k}')
            a(f'v_mov_b32 {vr(vT1)}, s{62+2*k}')
            a(f'buffer_atomic_umax {vr(vT1)}, {vr(vT0)}, {sr(SDBG,4)}, 0 offen')
            a('s_nop 1')
    if st.on:
        a('s_waitcnt vmcnt(0)')
    st(); st.rt(); st.flush(sW)
    n_total = st.n
    a.label(f'{name}_done')
    a('s_endpgm')

    if nobar:
        for rep in range(unroll):
            a.label(f'{name}_spin{rep}')
            a(f'''ds_read_b64 {vr(vPw,2)}, {vr(vPa)}
s_waitcnt lgkmcnt(0)
v_readfirstlane_b32 {sr(sT)}, {vr(vPw)}''')
            if nobar == 2:
                a(f'''v_readfirstlane_b32 {sr(sT2)}, {vr(vPw+1)}
s_add_u32 {sr(sT2)}, {sr(sT2)}, {1 + opts.get("slack", 0)}
s_min_u32 {sr(sT)}, {sr(sT)}, {sr(sT2)}''')
            a(f'''s_cmp_gt_u32 {sr(sT)}, {sr(sT3)}
s_cbranch_scc0 {name}_spin{rep}
s_branch {name}_spun{rep}''')
    a.label(f'{name}_fallback')
    M = [vT4, vT5]
    vVo = vaV
    a(f'''v_cndmask_b32_e64 {vr(Q2[0])}, {vr(Q2[0])}, 0, {sr(sHi,2)}
v_cndmask_b32_e64 {vr(Q2[0]+1)}, {vr(Q2[0]+1)}, 0, {sr(sHi,2)}
v_cndmask_b32_e64 {vr(Q2[1])}, {vr(Q2[1])}, 0, {sr(sHi,2)}
v_cndmask_b32_e64 {vr(Q2[1]+1)}, {vr(Q2[1]+1)}, 0, {sr(sHi,2)}
v_mov_b32 {vr(M[0])}, 0xff800000
v_mov_b32 {vr(M[1])}, 0xff800000
v_mov_b32 {vr(vT1)}, {OOB}
s_lshr_b32 {sr(sT)}, {sr(sW)}, 1
s_mul_i32 {sr(sT)}, {sr(sT)}, 10240
v_subrev_u32 {vr(vT0)}, {sr(sT)}, {vr(vbV)}
v_cmp_eq_u32 vcc, 1, {vr(vmV)}
s_mov_b32 {sr(sT)}, {sr(sKV)}
s_mov_b32 {sr(sG)}, 0
v_cndmask_b32 {vr(vVo)}, {vr(vT1)}, {vr(vT0)}, vcc
s_mov_b64 {sr(sM2,2)}, vcc
s_waitcnt vmcnt(0)''')
    a.label(f'{name}_fb1')
    a(f'''buffer_load_dwordx4 {vr(K1[0],4)}, {vr(vQo)}, {sr(SWS,4)}, {sr(sT)} offen{SC}
buffer_load_dwordx2 {vr(K2[0],2)}, {vr(vQo2)}, {sr(SWS,4)}, {sr(sT)} offen{SC}
s_waitcnt vmcnt(0)''')
    qk16(0, 0); qk16(1, 0); qk8(0, 0); qk8(1, 0)
    a('s_nop 15')
    for t in range(2):
        rowmax(t, vT0)
        a(f'v_max_f32 {vr(M[t])}, {vr(M[t])}, {vr(vT0)}')
    a(f'''s_add_u32 {sr(sT)}, {sr(sT)}, 2560
s_add_u32 {sr(sG)}, {sr(sG)}, 1
s_cmp_lt_u32 {sr(sG)}, 64
s_cbranch_scc1 {name}_fb1''')
    for t in range(2):
        crosshalf(M[t], vT1)
        a(f'v_max_f32 {vr(M[t])}, {vr(M[t])}, {vr(vT1)}')
        for i in range(16):
            a(f'v_mov_b32 {vr(O[t]+i)}, 0')
    a(f's_mov_b32 {sr(sT)}, {sr(sKV)}')
    a(f's_mov_b32 {sr(sG)}, 0')
    a(f'v_mov_b32 {vr(vT1)}, 0x3f803f80')
    a.label(f'{name}_fb2')
    a(f'''buffer_load_dwordx4 {vr(K1[0],4)}, {vr(vQo)}, {sr(SWS,4)}, {sr(sT)} offen{SC}
buffer_load_dwordx2 {vr(K2[0],2)}, {vr(vQo2)}, {sr(SWS,4)}, {sr(sT)} offen{SC}
buffer_load_dwordx4 {vr(V0[0],4)}, {vr(vVo)}, {sr(SWS,4)}, {sr(sT)} offen{SC}
buffer_load_dwordx4 {vr(V1[0],4)}, {vr(vVo)}, {sr(SWS,4)}, {sr(sT)} offen offset:640{SC}
s_waitcnt vmcnt(0)''')
    qk16(0, 0); qk16(1, 0); qk8(0, 0); qk8(1, 0)
    for i in range(4):
        a(f'v_cndmask_b32_e64 {vr(V0[0]+i)}, {vr(vT1)}, {vr(V0[0]+i)}, {sr(sM2,2)}')
        a(f'v_cndmask_b32_e64 {vr(V1[0]+i)}, {vr(vT1)}, {vr(V1[0]+i)}, {sr(sM2,2)}')
    a('s_nop 15')
    for t in range(2):
        for i in range(16):
            a(f'v_sub_f32 {vr(S[t]+i)}, {vr(S[t]+i)}, {vr(M[t])}')
        for i in range(16):
            ex(t, i)
    a('s_nop 1')
    for t in range(2):
        pv(t, 0, 0); pv(t, 0, 1)
    a(f'''s_add_u32 {sr(sT)}, {sr(sT)}, 2560
s_add_u32 {sr(sG)}, {sr(sG)}, 1
s_cmp_lt_u32 {sr(sG)}, 64
s_cbranch_scc1 {name}_fb2''')
    a('s_nop 15')
    a(f's_mov_b32 {sr(sI)}, 1')
    a(f's_branch {name}_store')

    a.label(f'{name}_helper')
    st.n = n_common
    V = VAlloc(VBASE)
    vEp = V(); vL16 = V(); vFl = V()
    VH = V.n
    a('s_setprio 3')
    a(f'v_mov_b32 {vr(vT0)}, {F_EPOCH}')
    a(f'buffer_load_dword {vr(vEp)}, {vr(vT0)}, {sr(SWS,4)}, 0 offen{SC}')
    a(f'v_lshlrev_b32 {vr(vL16)}, 4, {vr(vLane)}')
    vP = V(); vC8 = V(8); vPwa = V(); vFu = V(); vPo1 = V(); vPo2 = V(); vPo = V(); vLw = V()
    vW3 = [V() for _ in range(5)]
    vPf = [V() for _ in range(4)]
    vHX = [V() for _ in range(4)]
    vHW = [V() for _ in range(15)]
    done_alloc(V)
    a(f'''s_lshl_b32 {sr(sT)}, {sr(sMt)}, 7
v_lshrrev_b32 {vr(vT0)}, 3, {vr(vLane)}
v_add_u32 {vr(vT0)}, {sr(sT)}, {vr(vT0)}
v_mul_u32_u24 {vr(vT0)}, 1280, {vr(vT0)}
v_lshrrev_b32 {vr(vT1)}, 4, {vr(vLane)}
v_and_b32 {vr(vT3)}, 7, {vr(vLane)}
v_xor_b32 {vr(vT2)}, {vr(vT1)}, {vr(vT3)}
v_lshl_add_u32 {vr(vHX[0])}, {vr(vT2)}, 4, {vr(vT0)}
v_xor_b32 {vr(vT2)}, 64, {vr(vHX[0])}
v_add_u32 {vr(vHX[1])}, {10240-1024}, {vr(vT2)}
v_add_u32 {vr(vHX[2])}, {2*(10240-1024)}, {vr(vHX[0])}
v_add_u32 {vr(vHX[3])}, {3*(10240-1024)}, {vr(vT2)}''')
    for pi in range(15):
        a(f's_sub_u32 {sr(sT)}, {sr(sT3)}, {(pi%4)*1024}')
        w_pattern(vHW[pi], f'v_add_u32 {vr(vT0)}, {64*pi}, {vr(vLane)}', sr(sT))
    def next_k():
        a(f'''s_add_u32 {sr(sKK)}, {sr(sKK)}, 1
s_cmp_eq_u32 {sr(sKK)}, 10
s_cselect_b32 {sr(sKK)}, 0, {sr(sKK)}
s_lshl_b32 {sr(sXo)}, {sr(sKK)}, 7
s_mul_i32 {sr(sWo)}, {sr(sKK)}, {64*3840}''')
    def issue_x():
        for jj in range(16):
            if jj % 4 == 0:
                a(f's_add_u32 m0, {sr(sSlot)}, {jj*1024}')
                a(f's_add_u32 {sr(sT)}, {sr(sXo)}, {jj*10240}')
            a(f'buffer_load_dwordx4 {vr(vHX[jj%4])}, {sr(SX,4)}, {sr(sT)} offen offset:{(jj%4)*1024} lds')
    def issue_w():
        for half in range(2):
            for pi in range(15):
                if pi % 4 == 0:
                    a(f's_add_u32 m0, {sr(sSlot)}, {XSZ + half*15360 + pi*1024}')
                    a(f's_add_u32 {sr(sT)}, {sr(sWo)}, {half*32*3840}')
                a(f'buffer_load_dwordx4 {vr(vHW[pi])}, {sr(SWQ,4)}, {sr(sT)} offen offset:{(pi%4)*1024} lds')
    def issue_stage():
        next_k(); issue_x(); issue_w()
        a(f'''s_add_u32 {sr(sSlot)}, {sr(sSlot)}, {STG}
s_cmp_ge_u32 {sr(sSlot)}, {3*STG}
s_cselect_b32 {sr(sSlot)}, 0, {sr(sSlot)}''')
    pfw = opts.get('pfw', 1)
    if pfw:
        a(f'''s_lshr_b32 {sr(sT)}, s2, 6
s_mul_i32 {sr(sT)}, {sr(sT)}, 3
s_add_u32 {sr(sT)}, {sr(sT)}, 8
s_bfe_u32 {sr(sT2)}, s2, 0x30003
s_lshr_b32 {sr(sI)}, {sr(sT2)}, 2
s_add_u32 {sr(sT)}, {sr(sT)}, {sr(sI)}
s_cmp_ge_u32 {sr(sT)}, 10
s_cselect_b32 {sr(sI)}, 10, 0
s_sub_u32 {sr(sT)}, {sr(sT)}, {sr(sI)}
s_lshl_b32 {sr(sT)}, {sr(sT)}, 6
s_and_b32 {sr(sT2)}, {sr(sT2)}, 3
s_lshl_b32 {sr(sT2)}, {sr(sT2)}, 4
s_add_u32 {sr(sT)}, {sr(sT)}, {sr(sT2)}
s_mul_i32 {sr(sT)}, {sr(sT)}, 3840
s_add_u32 {sr(sRdy)}, {sr(sT)}, {sr(sT3)}
v_lshrrev_b32 {vr(vT0)}, 3, {vr(vLane)}
v_mul_u32_u24 {vr(vT0)}, 3840, {vr(vT0)}
v_bfe_u32 {vr(vT1)}, {vr(vLane)}, 1, 2
v_mul_u32_u24 {vr(vT2)}, 1280, {vr(vT1)}
v_and_b32 {vr(vT3)}, 1, {vr(vLane)}
v_mul_u32_u24 {vr(vT3)}, 156, {vr(vT3)}
v_add3_u32 {vr(vT0)}, {vr(vT0)}, {vr(vT2)}, {vr(vT3)}
v_cmp_eq_u32 vcc, 3, {vr(vT1)}
v_mov_b32 {vr(vT2)}, {OOB}
s_nop 0
v_cndmask_b32 {vr(vPo)}, {vr(vT0)}, {vr(vT2)}, vcc''')
    a(f's_mov_b32 {sr(sSlot)}, {STG}')
    st1()
    a('s_barrier')
    st1()
    if pfw:
        a(f'buffer_load_dword {vr(vPf[0])}, {vr(vPo)}, {sr(SWQ,4)}, {sr(sRdy)} offen')
        a(f's_add_u32 {sr(sRdy)}, {sr(sRdy)}, {8*3840}')
        a(f'buffer_load_dword {vr(vPf[1])}, {vr(vPo)}, {sr(SWQ,4)}, {sr(sRdy)} offen')
    if opts.get('xfirst', 0):
        next_k(); issue_x()
        a(f's_mov_b32 {sr(sSrc)}, {sr(sWo)}')
        a(f's_mov_b32 {sr(sSlot)}, {2*STG}')
        next_k(); issue_x()
        st1()
        if opts.get('xfirst') == 1: a('s_barrier')
        a(f's_mov_b32 {sr(sSlot)}, {STG}')
        a(f's_mov_b32 {sr(sI)}, {sr(sWo)}')
        a(f's_mov_b32 {sr(sWo)}, {sr(sSrc)}')
        issue_w()
        if opts.get('xfirst') == 2: a('s_barrier')
        a(f's_mov_b32 {sr(sSlot)}, {2*STG}')
        a(f's_mov_b32 {sr(sWo)}, {sr(sI)}')
        issue_w()
        a(f's_mov_b32 {sr(sSlot)}, 0')
        a('s_waitcnt vmcnt(30)')
        a('s_barrier')
        st1()
        a(f's_mov_b32 {sr(sI)}, 1')
    else:
        issue_stage()
        st1()
        a('s_barrier')
        st1()
        a(f's_mov_b32 {sr(sI)}, 0')
    a.label(f'{name}_hg')
    issue_stage()
    a('s_waitcnt vmcnt(46)')
    a('s_barrier')
    a(f's_add_u32 {sr(sI)}, {sr(sI)}, 1')
    a(f's_cmp_lt_u32 {sr(sI)}, 8')
    a(f's_cbranch_scc1 {name}_hg')
    st1()
    a(f'''s_lshl_b32 {sr(sT)}, {sr(sB)}, 3
s_add_u32 {sr(sT)}, {sr(sT)}, {sr(sHg)}
s_lshl_b32 {sr(sT)}, {sr(sT)}, 8
s_add_u32 {sr(sT)}, {sr(sT)}, {F_FLAG1}
v_lshl_add_u32 {vr(vT0)}, {vr(vLane)}, 2, {sr(sT)}
v_cmp_gt_u32 vcc, 16, {vr(vLane)}
v_mov_b32 {vr(vT1)}, {OOB}
s_lshl_b32 {sr(sT)}, {sr(sB)}, 4
v_cndmask_b32 {vr(vPo1)}, {vr(vT1)}, {vr(vT0)}, vcc
s_add_u32 {sr(sT)}, {sr(sT)}, {sr(sMt3)}
s_lshl_b32 {sr(sT)}, {sr(sT)}, 8
s_add_u32 {sr(sT)}, {sr(sT)}, {F_FLAG2}
v_lshl_add_u32 {vr(vT0)}, {vr(vLane)}, 2, {sr(sT)}
v_cmp_gt_u32 vcc, 8, {vr(vLane)}
v_mov_b32 {vr(vLw)}, {LW_RDY}
s_mul_i32 {sr(sT3)}, {sr(sCg)}, 160
v_cndmask_b32 {vr(vPo2)}, {vr(vT1)}, {vr(vT0)}, vcc''')
    for r in range(5):
        a(f'''v_add_u32 {vr(vT0)}, {64*r}, {vr(vLane)}
v_mul_u32_u24 {vr(vT1)}, 6554, {vr(vT0)}
v_lshrrev_b32 {vr(vT1)}, 16, {vr(vT1)}
v_mul_u32_u24 {vr(vT1)}, {1280-160}, {vr(vT1)}
v_lshl_add_u32 {vr(vT0)}, {vr(vT0)}, 4, {vr(vT1)}
v_add_u32 {vr(vT0)}, {sr(sT3)}, {vr(vT0)}
v_subrev_u32 {vr(vW3[r])}, {(r%4)*1024}, {vr(vT0)}''')
    a(f'''s_lshr_b32 {sr(sT)}, s2, 3
s_mul_i32 {sr(sT)}, {sr(sT)}, {20*1280}
v_lshl_add_u32 {vr(vT0)}, {vr(vLane)}, 7, {sr(sT)}
v_cmp_gt_u32 vcc, 50, {vr(vLane)}
v_mov_b32 {vr(vT1)}, {OOB}
s_mov_b32 {sr(sRdy)}, 0
v_cndmask_b32 {vr(vPo)}, {vr(vT1)}, {vr(vT0)}, vcc
v_readfirstlane_b32 {sr(sTag)}, {vr(vEp)}
s_lshl_b32 {sr(sDone)}, 1, {sr(sMt)}
s_waitcnt vmcnt(0)
s_add_u32 {sr(sTag)}, {sr(sTag)}, {TAGK}
s_barrier
v_bfe_u32 {vr(vT2)}, {vr(vLane)}, 1, 2
v_mul_u32_u24 {vr(vT2)}, 2560, {vr(vT2)}
v_and_b32 {vr(vT3)}, 1, {vr(vLane)}
v_mul_u32_u24 {vr(vT3)}, 640, {vr(vT3)}
v_add_u32 {vr(vT2)}, {vr(vT2)}, {vr(vT3)}
v_add_u32 {vr(vT2)}, {ONES}, {vr(vT2)}
v_mov_b32 {vr(vC8)}, 0x3f803f80
v_mov_b32 {vr(vC8+1)}, 0x3f803f80
v_mov_b32 {vr(vC8+2)}, 0x3f803f80
v_mov_b32 {vr(vC8+3)}, 0x3f803f80
v_mov_b32 {vr(vC8+4)}, 0
v_mov_b32 {vr(vC8+5)}, 0
v_mov_b32 {vr(vC8+6)}, 0
v_mov_b32 {vr(vC8+7)}, 0
s_barrier
ds_write_b128 {vr(vT2)}, {vr(vC8,4)}
ds_write_b128 {vr(vT2)}, {vr(vC8+4,4)} offset:16
ds_write_b128 {vr(vLw)}, {vr(vC8+4,4)}
s_waitcnt lgkmcnt(0)''')
    st0()
    a('s_barrier')
    a('s_barrier')
    gid = [0]
    def issue_group():
        n = gid[0]; gid[0] += 1
        a(f'''s_andn2_b32 {sr(sT)}, {sr(sRdy)}, {sr(sDone)}
s_cbranch_scc1 {name}_pd{n}
s_mov_b32 {sr(sCnt)}, {POLL_LIMIT}''')
        a.label(f'{name}_pl{n}')
        a(f'''buffer_load_dword {vr(vP)}, {vr(vPo1)}, {sr(SWS,4)}, 0 offen{SC}
s_waitcnt vmcnt(0)
v_cmp_eq_u32 vcc, {sr(sTag)}, {vr(vP)}
s_and_b32 {sr(sRdy)}, vcc_lo, 0xffff
s_andn2_b32 {sr(sT)}, {sr(sRdy)}, {sr(sDone)}
s_cbranch_scc1 {name}_pd{n}
s_sleep 1
s_sub_u32 {sr(sCnt)}, {sr(sCnt)}, 1
s_cmp_lg_u32 {sr(sCnt)}, 0
s_cbranch_scc1 {name}_pl{n}
s_mov_b32 {sr(sRdy)}, 0xffff
s_andn2_b32 {sr(sT)}, {sr(sRdy)}, {sr(sDone)}''')
        a.label(f'{name}_pd{n}')
        a(f'''s_lshl_b32 {sr(sT2)}, {sr(sT)}, 16
s_or_b32 {sr(sT)}, {sr(sT)}, {sr(sT2)}
s_lshr_b32 {sr(sT)}, {sr(sT)}, {sr(sMt)}
s_ff1_i32_b32 {sr(sT)}, {sr(sT)}
s_add_u32 {sr(sNeed)}, {sr(sT)}, {sr(sMt)}
s_and_b32 {sr(sNeed)}, {sr(sNeed)}, 15
s_bitset1_b32 {sr(sDone)}, {sr(sNeed)}
s_mul_i32 {sr(sT)}, {sr(sNeed)}, 10240
s_add_u32 {sr(sSrc)}, {sr(sKV)}, {sr(sT)}''')
        for hs in range(4):
            for q in range(10):
                if q % 4 == 0:
                    a(f's_add_u32 m0, {sr(sSlot)}, {hs*10240 + q*1024}')
                    a(f's_add_u32 {sr(sT)}, {sr(sSrc)}, {hs*KV_HEAD + q*1024}')
                a(f'buffer_load_dwordx4 {vr(vL16)}, {sr(SWS,4)}, {sr(sT)} offen offset:{(q%4)*1024}{SC} lds')
        a(f'''s_add_u32 {sr(sSlot)}, {sr(sSlot)}, {SLOT}
s_cmp_ge_u32 {sr(sSlot)}, {3*SLOT}
s_cselect_b32 {sr(sSlot)}, 0, {sr(sSlot)}
s_add_u32 {sr(sI)}, {sr(sI)}, 1''')
    a(f's_mov_b32 {sr(sI)}, 1')
    a(f's_mov_b32 {sr(sSlot)}, {SLOT}')
    wq = [0]
    def wait_prog(val):
        n = wq[0]; wq[0] += 1
        a.label(f'{name}_wp{n}')
        a(f'''ds_read_b32 {vr(vP)}, {vr(vPwa)} offset:4
s_waitcnt lgkmcnt(0)
v_cmp_le_u32 vcc, {val}, {vr(vP)}
s_and_b32 {sr(sT)}, vcc_lo, 0x1ff
s_cmp_eq_u32 {sr(sT)}, 0x1ff
s_cbranch_scc1 {name}_wpd{n}
s_sleep 2
s_branch {name}_wp{n}''')
        a.label(f'{name}_wpd{n}')
    def set_full(val):
        a(f'v_mov_b32 {vr(vFu)}, {val}')
        a(f'ds_write_b32 {vr(vPwa)}, {vr(vFu)}')
    if nobar:
        a(f'v_min_u32 {vr(vPwa)}, 8, {vr(vLane)}')
        a(f'v_lshlrev_b32 {vr(vPwa)}, 3, {vr(vPwa)}')
        a(f'v_add_u32 {vr(vPwa)}, {LW_PW}, {vr(vPwa)}')
    issue_group()
    st0()
    a.label(f'{name}_hl')
    if nobar:
        a('s_waitcnt vmcnt(0)')
        set_full(sr(sI))
        a(f's_max_u32 {sr(sSrc)}, {sr(sI)}, 2')
        a(f's_sub_u32 {sr(sSrc)}, {sr(sSrc)}, 2')
        wait_prog(sr(sSrc))
        issue_group()
    else:
        issue_group()
        a('s_waitcnt vmcnt(40)')
        a('s_barrier')
    wid = [0]
    def wo_rows(r0, r1, lds):
        n = wid[0]; wid[0] += 1
        a(f's_mov_b32 {sr(sSrc)}, {r0*1280}')
        a(f's_mov_b32 {sr(sT2)}, {lds}')
        a.label(f'{name}_hw{n}x')
        a(f's_mov_b32 m0, {sr(sT2)}')
        a(f's_add_u32 {sr(sT)}, {sr(sT2)}, 4096')
        for r in range(4):
            a(f'buffer_load_dwordx4 {vr(vW3[r])}, {sr(SWO,4)}, {sr(sSrc)} offen offset:{r*1024} lds')
        a(f's_mov_b32 m0, {sr(sT)}')
        a(f's_add_u32 {sr(sT2)}, {sr(sT2)}, 5120')
        a(f'buffer_load_dwordx4 {vr(vW3[4])}, {sr(SWO,4)}, {sr(sSrc)} offen lds')
        a(f's_add_u32 {sr(sSrc)}, {sr(sSrc)}, {32*1280}')
        a(f's_cmp_lt_u32 {sr(sSrc)}, {r1*1280}')
        a(f's_cbranch_scc1 {name}_hw{n}x')
    a(f's_cmp_eq_u32 {sr(sI)}, 6')
    a(f's_cbranch_scc0 {name}_hnp')
    for q in range(4):
        a(f's_mov_b32 {sr(sT)}, {q*6400}')
        a(f'buffer_load_dword {vr(vPf[q])}, {vr(vPo)}, {sr(SWO,4)}, {sr(sT)} offen')
    a.label(f'{name}_hnp')
    a(f's_cmp_eq_u32 {sr(sI)}, 10')
    a(f's_cbranch_scc0 {name}_hnq')
    wo_rows(480, 640, QST)
    a.label(f'{name}_hnq')
    a(f's_cmp_lt_u32 {sr(sI)}, 16')
    a(f's_cbranch_scc1 {name}_hl')
    if nobar:
        a('s_waitcnt vmcnt(0)')
        set_full(64)
        wait_prog(14)
        wo_rows(0, 256, WO_LO)
        wait_prog(15)
    else:
        wo_rows(0, 256, WO_LO)
        a('s_waitcnt vmcnt(40)')
        a('s_barrier')
    wo_rows(256, 480, WO_LO + 40960)
    a(f'''s_lshl_b32 {sr(sT)}, {sr(sB)}, 4
s_add_u32 {sr(sT)}, {sr(sT)}, {sr(sMt3)}
s_lshl_b32 {sr(sT)}, {sr(sT)}, 1
s_lshr_b32 {sr(sT2)}, {sr(sCg)}, 2
s_add_u32 {sr(sT)}, {sr(sT)}, {sr(sT2)}
s_mul_i32 {sr(sT)}, {sr(sT)}, {32*2560}
s_and_b32 {sr(sT2)}, {sr(sCg)}, 3
s_mul_i32 {sr(sT2)}, {sr(sT2)}, 5120
s_add_u32 {sr(sT)}, {sr(sT)}, {sr(sT2)}
s_add_u32 {sr(sT)}, {sr(sT)}, {F_WS_O}
v_lshl_add_u32 {vr(vT0)}, {vr(vLane)}, 7, {sr(sT)}
v_cmp_gt_u32 vcc, 40, {vr(vLane)}
v_mov_b32 {vr(vT1)}, {OOB}
s_mov_b32 {sr(sDone)}, 0
s_mov_b32 {sr(sCnt)}, {POLL_LIMIT}
v_cndmask_b32 {vr(vPo)}, {vr(vT1)}, {vr(vT0)}, vcc''')
    pid = [0]
    pfo = opts.get('pfo', 2)
    def poll2():
        a(f'''buffer_load_dword {vr(vP)}, {vr(vPo2)}, {sr(SWS,4)}, 0 offen{SC}
s_sub_u32 {sr(sCnt)}, {sr(sCnt)}, 1
s_waitcnt vmcnt(0)
v_cmp_eq_u32 vcc, {sr(sTag)}, {vr(vP)}
s_cmp_eq_u32 {sr(sCnt)}, 0
s_cselect_b32 {sr(sT)}, 0xff, vcc_lo
s_lshr_b32 {sr(sT2)}, {sr(sT)}, 1
s_and_b32 {sr(sT)}, {sr(sT)}, {sr(sT2)}
s_and_b32 {sr(sRdy)}, {sr(sT)}, 0x55''')
        if pfo:
            a(f's_andn2_b32 {sr(sSrc)}, {sr(sRdy)}, {sr(sDone)}')
            a(f's_or_b32 {sr(sDone)}, {sr(sDone)}, {sr(sRdy)}')
            for j in range(4):
                n = pid[0]; pid[0] += 1
                a(f's_bitcmp1_b32 {sr(sSrc)}, {2*j}')
                a(f's_cbranch_scc0 {name}_po{n}')
                a(f's_mov_b32 {sr(sT)}, {j*20480}')
                a(f'buffer_load_dword {vr(vPf[j])}, {vr(vPo)}, {sr(SWS,4)}, {sr(sT)} offen{SC}')
                a.label(f'{name}_po{n}')
            if pfo == 2:
                a('s_waitcnt vmcnt(0)')
        a(f'v_mov_b32 {vr(vP)}, {sr(sRdy)}')
        a(f'ds_write_b32 {vr(vLw)}, {vr(vP)}')
    poll2()
    if nobar:
        wait_prog(16)
    else:
        a('s_barrier')
    st0()
    st0()
    a.label(f'{name}_p3l')
    poll2()
    a(f's_cmp_eq_u32 {sr(sRdy)}, 0x55')
    a(f's_cbranch_scc0 {name}_p3l')
    a.label(f'{name}_p3e')
    if st.on:
        while st.n < n_total - 1: st()
        st.rt(); st.flush(sW)
    a('s_endpgm')
    nv = maxv[0]
    assert nv <= 168, nv
    return a.text(), descriptor(name, nv, ns), f'; @launch kernel={name} grid=(256,1,1) block=(576,1,1) lds={LDS_TOTAL}', n_total
```

```python
from common import *
import math, struct

def f32bits(x):
    return struct.unpack('<I', struct.pack('<f', x))[0]
QSCALE = f32bits(math.log2(math.e) / math.sqrt(20.0))

XSZ = 16384
STG = XSZ + 30720
SLOT = 40960
LW_RDY = 3 * SLOT
LW_CNT = 3 * SLOT + 8
LW_CNT1 = 3 * SLOT + 12
LW_PW = 131392
ONES = 3 * SLOT + 128
QST = 131584
LDS_TOTAL = QST + 25600
WO_LO = SLOT
F_WS_KV = 0
F_WS_O = 64 * KV_HEAD
F_FLAG1 = F_WS_O + 2 * 32 * 32 * 2560
F_FLAG2 = F_FLAG1 + 16 * 256
F_EPOCH = F_FLAG2 + 32 * 256
F_WS_END = F_EPOCH + 256
TAGK = 0x9E3779B9
POLL_LIMIT = 1 << 16
OOB = 0x40000000

def gen_fused(name='fused_kernel', opts=None):
    opts = opts or {}
    a = Asm()
    SC = ' sc1'
    FL = {0: ' sc1', 1: ' sc0 sc1', 2: '', 3: ' sc1 nt', 4: ' nt'}
    SST = FL[opts.get('sst', 0)]
    SLD = FL[opts.get('sld', 0)]
    stag = opts.get('stag', 0)
    hsplit = opts.get('hsplit', 1)
    nobar = opts.get('nobar', 0)
    loc = opts.get('loc', 1)
    sKK, sMt3, sCg = 3, 4, 5
    SX, SWQ, SWS, SDBG, SWO, SOUT = 8, 12, 16, 20, 24, 28
    sW, sB, sMt, sHg, sT, sT2, sT3 = 32, 33, 34, 35, 36, 37, 38
    sM0a, sM0b = 39, 40
    sDone = 41
    sHi = 42
    sG, sOff, sOo, sKV = 44, 45, 46, 47
    sM, sM2 = 48, 50
    sRdy, sCnt, sNeed, sI, sSlot, sSrc = 52, 53, 54, 55, 56, 57
    sXo, sWo = 53, 54
    sScale = 58
    sA, sTag = 60, 61
    sPub, sPub2 = 56, 57
    ns = 64
    vLane, vT0, vT1, vT2, vT3, vT4, vT5 = 1, 2, 3, 4, 5, 6, 7
    VBASE = 8
    st = Stamper(a, opts.get('stamp'), 0, 62, 6, vT0)
    if st.on: ns = st.nsgpr()
    sset = opts.get('sset', 0)
    def st0():
        if sset == 0: st()
    def st1():
        if sset == 1: st()
    def st4():
        if sset == 4: st()
    maxv = [0]
    def done_alloc(V):
        maxv[0] = max(maxv[0], V.n)

    a(f'.globl {name}\n.p2align 8\n.type {name},@function')
    a.label(name)
    if st.on:
        a('s_memrealtime s[62:63]\ns_memtime s[64:65]')
        st.n = 2
    dbgt = opts.get('dbgt')
    SWAP = 's_nop 0'
    if opts.get('swap', 1):
        SWAP = f's_lshr_b32 {sr(sT)}, s2, 1\ns_xor_b32 {sr(sT)}, {sr(sT)}, s2\ns_and_b32 {sr(sT)}, {sr(sT)}, 1\ns_mul_i32 {sr(sT)}, {sr(sT)}, 3\ns_xor_b32 s2, s2, {sr(sT)}'
    if dbgt:
        ns = 80
        a('s_memrealtime s[62:63]')
    def rts(k):
        if dbgt: a(f's_memrealtime s[{62+2*k}:{63+2*k}]\ns_waitcnt lgkmcnt(0)')
    a(f'''s_cmp_ge_u32 s2, 256
s_cbranch_scc1 {name}_done
{SWAP}
s_bfe_u32 {sr(sB)}, s2, 0x10002
s_load_dwordx4 {sr(SOUT,4)}, s[0:1], 48
s_load_dwordx2 s[6:7], s[0:1], 64
s_mul_i32 {sr(sT2)}, {sr(sB)}, 24
s_add_u32 s0, s0, {sr(sT2)}
s_addc_u32 s1, s1, 0
s_load_dwordx4 {sr(SX,4)}, s[0:1], 0
s_load_dwordx2 {sr(SWO,2)}, s[0:1], 16
v_lshrrev_b32 {vr(vT0)}, 6, v0
v_and_b32 {vr(vLane)}, 63, v0
s_lshr_b32 {sr(sT)}, s2, 3
v_readfirstlane_b32 {sr(sW)}, {vr(vT0)}
s_and_b32 {sr(sMt)}, {sr(sT)}, 7
s_lshr_b32 {sr(sHg)}, {sr(sT)}, 3
s_mul_i32 {sr(sKK)}, {sr(sHg)}, 3
s_add_u32 {sr(sKK)}, {sr(sKK)}, {sr(sMt)}
s_cmp_ge_u32 {sr(sKK)}, 10
s_cselect_b32 {sr(sT)}, 10, 0
s_sub_u32 {sr(sKK)}, {sr(sKK)}, {sr(sT)}
{f's_mov_b32 {sr(sKK)}, 0' if stag else 's_nop 0'}
s_and_b32 {sr(sT)}, s2, 1
s_lshl_b32 {sr(sT)}, {sr(sT)}, 3
s_add_u32 {sr(sMt)}, {sr(sMt)}, {sr(sT)}
s_and_b32 {sr(sT)}, s2, 2
s_lshl_b32 {sr(sT)}, {sr(sT)}, 1
s_add_u32 {sr(sHg)}, {sr(sHg)}, {sr(sT)}
s_mov_b32 {sr(sHi)}, 0
s_mov_b32 {sr(sHi+1)}, -1
s_bfe_u32 {sr(sCg)}, s2, 0x30003
s_and_b32 {sr(sMt3)}, s2, 1
s_lshl_b32 {sr(sMt3)}, {sr(sMt3)}, 2
s_and_b32 {sr(sT)}, s2, 2
s_add_u32 {sr(sMt3)}, {sr(sMt3)}, {sr(sT)}
s_lshl_b32 {sr(sMt3)}, {sr(sMt3)}, 1
s_lshr_b32 {sr(sT)}, s2, 6
s_add_u32 {sr(sMt3)}, {sr(sMt3)}, {sr(sT)}
s_lshl_b32 {sr(sT)}, {sr(sB)}, 3
s_add_u32 {sr(sT)}, {sr(sT)}, {sr(sHg)}
s_mul_i32 {sr(sKV)}, {sr(sT)}, {4*KV_HEAD}
s_mul_i32 {sr(sT3)}, {sr(sHg)}, 160
s_waitcnt lgkmcnt(0)
s_mov_b32 {sr(SWQ)}, {sr(SX+2)}
s_mov_b32 {sr(SWQ+1)}, {sr(SX+3)}
s_mov_b32 {sr(SDBG)}, {sr(SOUT+2)}
s_mov_b32 {sr(SDBG+1)}, {sr(SOUT+3)}
s_mov_b32 {sr(SWS)}, s6
s_mov_b32 {sr(SWS+1)}, s7
s_mov_b32 {sr(SX+2)}, {2048*1280}
s_mov_b32 {sr(SX+3)}, 0x20000
s_mov_b32 {sr(SWQ+2)}, {640*3840}
s_mov_b32 {sr(SWQ+3)}, 0x20000
s_mov_b32 {sr(SWS+2)}, {F_WS_END}
s_mov_b32 {sr(SWS+3)}, 0x20000
s_mov_b32 {sr(SDBG+2)}, 256
s_mov_b32 {sr(SDBG+3)}, 0x20000
s_mov_b32 {sr(SWO+2)}, {640*1280}
s_mov_b32 {sr(SWO+3)}, 0x20000
s_mov_b32 {sr(SOUT+2)}, {2048*2560}
s_mov_b32 {sr(SOUT+3)}, 0x20000''')
    st1()
    n_common = st.n
    a(f'''s_cmp_ge_u32 {sr(sW)}, 8
s_cbranch_scc1 {name}_helper''')

    def w_pattern(dst, first, last):
        a(f'''{first}
v_mul_u32_u24 {vr(vT1)}, 2185, {vr(vT0)}
v_lshrrev_b32 {vr(vT1)}, 16, {vr(vT1)}
v_mul_u32_u24 {vr(vT2)}, 30, {vr(vT1)}
v_sub_u32 {vr(vT0)}, {vr(vT0)}, {vr(vT2)}
v_and_b32 {vr(vT2)}, 0x13, {vr(vT1)}
v_bfe_u32 {vr(vT3)}, {vr(vT1)}, 2, 1
v_lshl_or_b32 {vr(vT2)}, {vr(vT3)}, 3, {vr(vT2)}
v_bfe_u32 {vr(vT3)}, {vr(vT1)}, 3, 1
v_lshl_or_b32 {vr(vT2)}, {vr(vT3)}, 2, {vr(vT2)}
v_mul_u32_u24 {vr(vT2)}, 3840, {vr(vT2)}
v_mul_u32_u24 {vr(vT1)}, 26, {vr(vT0)}
v_lshrrev_b32 {vr(vT1)}, 8, {vr(vT1)}
v_mul_u32_u24 {vr(vT1)}, {1280-160}, {vr(vT1)}
v_lshl_add_u32 {vr(vT0)}, {vr(vT0)}, 4, {vr(vT1)}
v_add3_u32 {vr(dst)}, {vr(vT0)}, {vr(vT2)}, {last}''')

    VP = VAlloc(VBASE)
    vIdx = VP()
    vaK1 = VP(); vaK2 = VP(); vaV = VP()
    vbK1 = VP(); vbK2 = VP(); vbV = VP(); vmK2 = VP(); vmV = VP()
    vQo = VP(); vQo2 = VP(); vQs1 = VP(); vQs2 = VP(); vPub = VP()
    VB2 = VP.n
    V = VAlloc(VB2)
    vEp7 = V(); vCi7 = V(); vZ7 = V()
    vXr = [[V(), V()] for _ in range(3)]
    vWa = [V() for _ in range(3)]
    vWb = [V() for _ in range(3)]
    vE = [V() for _ in range(6)]
    Xf = [[V(4), V(4)], [V(4), V(4)]]
    Wf = [[V(4) for _ in range(4)] for _ in range(2)]
    acc = [[V(4), V(4)] for _ in range(8)]
    done_alloc(V)
    vDX = Wf[0][0]; vDW = [Wf[0][0] + 1, Wf[0][0] + 2]
    a(f'''s_lshl_b32 {sr(sT)}, {sr(sMt)}, 7
s_lshl_b32 {sr(sT2)}, {sr(sW)}, 3
s_add_u32 {sr(sT)}, {sr(sT)}, {sr(sT2)}
v_lshrrev_b32 {vr(vT0)}, 3, {vr(vLane)}
v_add_u32 {vr(vT0)}, {sr(sT)}, {vr(vT0)}
v_mul_u32_u24 {vr(vT0)}, 1280, {vr(vT0)}
s_and_b32 {sr(sT)}, {sr(sW)}, 1
s_lshl_b32 {sr(sT)}, {sr(sT)}, 2
v_lshrrev_b32 {vr(vT1)}, 4, {vr(vLane)}
v_add_u32 {vr(vT2)}, {sr(sT)}, {vr(vT1)}
v_and_b32 {vr(vT3)}, 7, {vr(vLane)}
v_xor_b32 {vr(vT2)}, {vr(vT2)}, {vr(vT3)}
v_lshl_add_u32 {vr(vDX)}, {vr(vT2)}, 4, {vr(vT0)}
s_lshl_b32 {sr(sM0a)}, {sr(sW)}, 10
s_lshl_b32 {sr(sXo)}, {sr(sKK)}, 7
s_mul_i32 {sr(sWo)}, {sr(sKK)}, {64*3840}
s_mov_b32 m0, {sr(sM0a)}
s_add_u32 {sr(sT)}, {sr(sXo)}, 81920
buffer_load_dwordx4 {vr(vDX)}, {sr(SX,4)}, {sr(sXo)} offen lds
s_add_u32 m0, {sr(sM0a)}, 8192
s_add_u32 {sr(sT2)}, {sr(sW)}, 8
buffer_load_dwordx4 {vr(vDX)}, {sr(SX,4)}, {sr(sT)} offen lds
s_cmp_eq_u32 {sr(sW)}, 7
s_cselect_b32 {sr(sT2)}, 7, {sr(sT2)}
s_lshl_b32 {sr(sM0b)}, {sr(sT2)}, 10''')
    for pi, sm in ((0, sM0a), (1, sM0b)):
        a(f's_lshr_b32 {sr(sT)}, {sr(sm)}, 4')
        w_pattern(vDW[pi], f'v_add_u32 {vr(vT0)}, {sr(sT)}, {vr(vLane)}', sr(sT3))
        for half in range(2):
            a(f's_add_u32 m0, {sr(sm)}, {XSZ + half*15360}')
            a(f's_add_u32 {sr(sT)}, {sr(sWo)}, {half*32*3840}')
            a(f'buffer_load_dwordx4 {vr(vDW[pi])}, {sr(SWQ,4)}, {sr(sT)} offen lds')
    st1()
    a('s_barrier')
    st1()
    a(f'''s_cmp_eq_u32 {sr(sW)}, 7
s_cselect_b32 {sr(sM)}, 1, 0
s_mov_b32 {sr(sM+1)}, 0
v_mov_b32 {vr(vT1)}, {OOB}
v_cndmask_b32_e64 {vr(vZ7)}, {vr(vT1)}, 0, {sr(sM,2)}
v_mov_b32 {vr(vT0)}, {F_EPOCH}
buffer_load_dword {vr(vEp7)}, {vr(vT0)}, {sr(SWS,4)}, 0 offen{SC}''')
    a(f'''s_and_b32 {sr(sT)}, {sr(sW)}, 3
s_lshl_b32 {sr(sT)}, {sr(sT)}, 5
v_and_b32 {vr(vT0)}, 15, {vr(vLane)}
v_lshrrev_b32 {vr(vT1)}, 4, {vr(vLane)}
v_lshrrev_b32 {vr(vT2)}, 1, {vr(vT0)}
v_xor_b32 {vr(vT2)}, {vr(vT2)}, {vr(vT1)}
v_add_u32 {vr(vT0)}, {sr(sT)}, {vr(vT0)}
v_lshlrev_b32 {vr(vT0)}, 7, {vr(vT0)}
v_lshl_add_u32 {vr(vXr[0][0])}, {vr(vT2)}, 4, {vr(vT0)}
v_xor_b32 {vr(vXr[0][1])}, 64, {vr(vXr[0][0])}
v_lshrrev_b32 {vr(vT0)}, 5, {vr(vLane)}
v_lshlrev_b32 {vr(vT0)}, 4, {vr(vT0)}
v_bfe_u32 {vr(vT2)}, {vr(vLane)}, 4, 1
v_lshl_add_u32 {vr(vT0)}, {vr(vT2)}, 2, {vr(vT0)}
v_bfe_u32 {vr(vT2)}, {vr(vLane)}, 2, 2
v_add_u32 {vr(vT0)}, {vr(vT0)}, {vr(vT2)}
v_mul_u32_u24 {vr(vT0)}, 480, {vr(vT0)}
v_add_u32 {vr(vT5)}, {XSZ}, {vr(vT0)}
v_bfe_u32 {vr(vT2)}, {vr(vLane)}, 1, 1
v_mul_u32_u24 {vr(vT2)}, 40, {vr(vT2)}
v_and_b32 {vr(vT3)}, 1, {vr(vLane)}
v_lshl_add_u32 {vr(vT2)}, {vr(vT3)}, 4, {vr(vT2)}
v_add_u32 {vr(vWa[0])}, {vr(vT5)}, {vr(vT2)}
s_cmp_ge_u32 {sr(sW)}, 4
s_cselect_b32 {sr(sT)}, 8, 40
v_and_b32 {vr(vT2)}, 3, {vr(vLane)}
v_mad_u32_u24 {vr(vWb[0])}, {vr(vT2)}, {sr(sT)}, {vr(vT5)}''')
    for s_ in (1, 2):
        a(f'v_add_u32 {vr(vXr[s_][0])}, {s_*STG}, {vr(vXr[0][0])}')
        a(f'v_add_u32 {vr(vXr[s_][1])}, {s_*STG}, {vr(vXr[0][1])}')
        a(f'v_add_u32 {vr(vWa[s_])}, {s_*STG}, {vr(vWa[0])}')
        a(f'v_add_u32 {vr(vWb[s_])}, {s_*STG}, {vr(vWb[0])}')
    a(f'''s_lshr_b32 {sr(sT)}, {sr(sW)}, 1
s_mul_i32 {sr(sT2)}, {sr(sT)}, 10240
v_lshlrev_b32 {vr(vQo)}, 4, {vr(vLane)}
v_lshlrev_b32 {vr(vT0)}, 3, {vr(vLane)}
v_add_u32 {vr(vT0)}, 1024, {vr(vT0)}
v_mov_b32 {vr(vT1)}, {OOB}
v_cndmask_b32_e64 {vr(vQo2)}, {vr(vT0)}, {vr(vT1)}, {sr(sHi,2)}
v_add_u32 {vr(vbK1)}, {sr(sT2)}, {vr(vQo)}
v_add_u32 {vr(vT0)}, {sr(sT2)}, {vr(vT0)}
v_mov_b32 {vr(vT1)}, {ONES}
v_cndmask_b32_e64 {vr(vbK2)}, {vr(vT0)}, {vr(vT1)}, {sr(sHi,2)}
v_cndmask_b32_e64 {vr(vmK2)}, 1, 0, {sr(sHi,2)}
v_and_b32 {vr(vT2)}, 31, {vr(vLane)}
v_lshrrev_b32 {vr(vT3)}, 5, {vr(vLane)}
v_mul_u32_u24 {vr(vT3)}, 320, {vr(vT3)}
v_lshl_add_u32 {vr(vT3)}, {vr(vT2)}, 4, {vr(vT3)}
s_add_u32 {sr(sT3)}, {sr(sT2)}, 1280
v_add_u32 {vr(vT3)}, {sr(sT3)}, {vr(vT3)}
v_cmp_gt_u32 vcc, 20, {vr(vT2)}
v_mov_b32 {vr(vIdx)}, 0xdddddddd
v_mov_b32 {vr(vaK1)}, {vr(vbK1)}
v_cndmask_b32 {vr(vbV)}, {vr(vT1)}, {vr(vT3)}, vcc
v_cndmask_b32_e64 {vr(vmV)}, 0, 1, vcc
v_cmp_lt_u32 vcc, 20, {vr(vT2)}
v_add_u32 {vr(vT3)}, 16, {vr(vT1)}
v_mov_b32 {vr(vaK2)}, {vr(vbK2)}
v_cndmask_b32 {vr(vbV)}, {vr(vbV)}, {vr(vT3)}, vcc
v_mov_b32 {vr(vaV)}, {vr(vbV)}
s_mul_i32 {sr(sT2)}, {sr(sW)}, 2560
s_add_u32 {sr(sT2)}, {sr(sT2)}, {QST}
v_add_u32 {vr(vQs1)}, {sr(sT2)}, {vr(vQo)}
v_and_b32 {vr(vQs2)}, 31, {vr(vLane)}
v_lshlrev_b32 {vr(vQs2)}, 3, {vr(vQs2)}
s_add_u32 {sr(sT2)}, {sr(sT2)}, 1024
v_add_u32 {vr(vQs2)}, {sr(sT2)}, {vr(vQs2)}
s_lshl_b32 {sr(sT2)}, {sr(sB)}, 4
s_add_u32 {sr(sT2)}, {sr(sT2)}, {sr(sMt)}
s_lshl_b32 {sr(sT2)}, {sr(sT2)}, 1
s_and_b32 {sr(sT3)}, {sr(sW)}, 1
s_add_u32 {sr(sT2)}, {sr(sT2)}, {sr(sT3)}
s_lshl_b32 {sr(sT2)}, {sr(sT2)}, 5
s_lshl_b32 {sr(sT3)}, {sr(sHg)}, 2
s_add_u32 {sr(sT2)}, {sr(sT2)}, {sr(sT3)}
s_add_u32 {sr(sT2)}, {sr(sT2)}, {sr(sT)}
s_mul_i32 {sr(sOo)}, {sr(sT2)}, 2560
s_add_u32 {sr(sOo)}, {sr(sOo)}, {F_WS_O}
s_mul_i32 {sr(sT)}, {sr(sT)}, {KV_HEAD}
s_add_u32 {sr(sKV)}, {sr(sKV)}, {sr(sT)}
s_and_b32 {sr(sT)}, {sr(sW)}, 1
s_mul_i32 {sr(sT)}, {sr(sT)}, 5120
v_add_u32 {vr(vPub)}, {sr(sT)}, {vr(vbK1)}
s_mul_i32 {sr(sT2)}, {sr(sMt)}, 10240
s_add_u32 {sr(sT)}, {sr(sT)}, {sr(sT2)}
s_add_u32 {sr(sPub)}, {sr(sT)}, {sr(sKV)}
s_add_u32 {sr(sPub2)}, {sr(sPub)}, 4096''')
    for ct in range(8):
        for tt in range(2):
            for i in range(4):
                a(f'v_mov_b32 {vr(acc[ct][tt]+i)}, 0')
    a(f'''s_mov_b32 {sr(sScale)}, {QSCALE}
s_mov_b32 {sr(sScale+1)}, {QSCALE}
s_and_b32 {sr(sT3)}, {sr(sW)}, 3
v_and_b32 {vr(vT0)}, 15, {vr(vLane)}
v_lshrrev_b32 {vr(vT1)}, 4, {vr(vLane)}
v_lshrrev_b32 {vr(vT2)}, 2, {vr(vT0)}
v_and_b32 {vr(vT3)}, 3, {vr(vT0)}
v_lshl_add_u32 {vr(vT4)}, {vr(vT2)}, 3, {vr(vT3)}
v_lshrrev_b32 {vr(vT2)}, 1, {vr(vT1)}
v_and_b32 {vr(vT3)}, 1, {vr(vT1)}
s_mul_i32 {sr(sT)}, {sr(sT3)}, 2560
v_mul_u32_u24 {vr(vE[0])}, 10240, {vr(vT2)}
v_lshl_add_u32 {vr(vE[0])}, {vr(vT3)}, 9, {vr(vE[0])}
v_lshl_add_u32 {vr(vE[0])}, {vr(vT4)}, 4, {vr(vE[0])}
v_add_u32 {vr(vE[0])}, {sr(sT)}, {vr(vE[0])}
s_cmp_ge_u32 {sr(sW)}, 4
s_cbranch_scc1 {name}_p1b''')

    def p1_variant(wn):
        if wn == 0:
            kinds = [('P', 0, 0, 0), ('P', 0, 0, 1), ('P', 0, 1, 0), ('P', 0, 1, 1), ('T', 0, 0, 0), ('P', 1, 0, 0), ('P', 1, 0, 1), ('T', 1, 0, 0)]
            a(f'''s_add_u32 {sr(sT2)}, {sr(sT)}, 1024
v_mul_u32_u24 {vr(vE[1])}, 10240, {vr(vT1)}
v_lshl_add_u32 {vr(vE[1])}, {vr(vT4)}, 3, {vr(vE[1])}
v_add_u32 {vr(vE[1])}, {sr(sT2)}, {vr(vE[1])}
s_mul_i32 {sr(sT)}, {sr(sT3)}, 1280
s_add_u32 {sr(sT)}, {sr(sT)}, {QST}
v_mul_u32_u24 {vr(vE[2])}, 5120, {vr(vT2)}
v_lshl_add_u32 {vr(vE[2])}, {vr(vT3)}, 9, {vr(vE[2])}
v_lshl_add_u32 {vr(vE[2])}, {vr(vT0)}, 4, {vr(vE[2])}
v_add_u32 {vr(vE[2])}, {sr(sT)}, {vr(vE[2])}
s_add_u32 {sr(sT)}, {sr(sT)}, 1024
v_mul_u32_u24 {vr(vE[3])}, 5120, {vr(vT1)}
v_lshl_add_u32 {vr(vE[3])}, {vr(vT0)}, 3, {vr(vE[3])}
v_add_u32 {vr(vE[3])}, {sr(sT)}, {vr(vE[3])}''')
        else:
            kinds = [('P', 1, 1, 0), ('P', 1, 1, 1)] + [('V', 2, i, 0) for i in range(5)]
            a(f'''s_add_u32 {sr(sT)}, {sr(sT)}, 1280
v_mul_u32_u24 {vr(vT2)}, 640, {vr(vT2)}
v_mul_u32_u24 {vr(vT3)}, 320, {vr(vT3)}
v_add3_u32 {vr(vT5)}, {vr(vT2)}, {vr(vT3)}, {sr(sT)}''')
            for i in range(5):
                a(f'''v_add_u32 {vr(vT2)}, {16*i}, {vr(vT0)}
v_mul_u32_u24 {vr(vT3)}, 3277, {vr(vT2)}
v_lshrrev_b32 {vr(vT3)}, 16, {vr(vT3)}
v_mul_u32_u24 {vr(vT3)}, {10240-320}, {vr(vT3)}
v_lshl_add_u32 {vr(vT2)}, {vr(vT2)}, 4, {vr(vT3)}
v_add_u32 {vr(vE[1+i])}, {vr(vT2)}, {vr(vT5)}''')
        nct = len(kinds)
        grp = [list(range(0, 4)), list(range(4, nct))]
        def rd_x(step, s2):
            return [f'ds_read_b128 {vr(Xf[s2][tt],4)}, {vr(vXr[step%3][s2])} offset:{tt*2048}' for tt in range(2)]
        def rd_w(step, s2, h, idx):
            ty, sec, sub, e = kinds[grp[h][idx]]
            base = (vWa if ty == 'P' else vWb)[step % 3]
            col = sec*160 + {'P': sub*80 + e*8, 'T': 32, 'V': sub*32}[ty]
            return [f'ds_read_b64_tr_b16 {vr(Wf[h][idx]+2*rd,2)}, {vr(base)} offset:{(32*s2+8*rd)*480 + col}' for rd in range(2)]
        def mf(s2, h, idx):
            ct = grp[h][idx]
            out = []
            for tt in range(2):
                A, B = Wf[h][idx], Xf[s2][tt]
                if kinds[ct][0] == 'V':
                    A, B = B, A
                out.append(f'v_mfma_f32_16x16x32_bf16 {vr(acc[ct][tt],4)}, {vr(A,4)}, {vr(B,4)}, {vr(acc[ct][tt],4)}')
            return out
        n0, n1 = 2 + 2*len(grp[0]), 2*len(grp[1])
        def phase(s2, h, nxt):
            if nxt is not None and h == 0:
                for r in rd_x(*nxt): a(r)
            for idx in range(len(grp[h])):
                for m in mf(s2, h, idx): a(m)
                if nxt is not None:
                    for r in rd_w(nxt[0], nxt[1], h, idx): a(r)
        st1()
        a('s_waitcnt vmcnt(0)')
        a(f'v_readfirstlane_b32 {sr(sTag)}, {vr(vEp7)}')
        a('s_barrier')
        a(f's_add_u32 {sr(sTag)}, {sr(sTag)}, {TAGK}')
        rts(1)
        st()
        for r in rd_x(0, 0): a(r)
        for h in range(2):
            for idx in range(len(grp[h])):
                for r in rd_w(0, 0, h, idx): a(r)
        for step in range(10):
            if step == 9 and hsplit:
                a('s_barrier')
            a(f's_waitcnt lgkmcnt({n1})')
            phase(0, 0, (step, 1))
            a(f's_waitcnt lgkmcnt({n0})')
            phase(0, 1, (step, 1))
            a('s_waitcnt lgkmcnt(0)')
            a('s_barrier')
            if step == 0 and wn == 1:
                a(f'v_mov_b32 {vr(vCi7)}, 1')
                a(f'buffer_atomic_add {vr(vCi7)}, {vr(vZ7)}, {sr(SDBG,4)}, 0 offen sc0')
            if step in (0, 4): st0()
            if step in (0, 1, 2, 8): st1()
            if step in (8, 9): st4()
            nx = (step + 1, 0) if step < 9 else None
            phase(1, 0, nx)
            phase(1, 1, nx)
        st0(); st4()
        rts(2)
        if wn == 1:
            a(f'''s_waitcnt vmcnt(0)
v_cmp_eq_u32 vcc, 255, {vr(vCi7)}
v_add_u32 {vr(vEp7)}, {TAGK}, {vr(vEp7)}
v_mov_b32 {vr(vT1)}, {OOB}
s_mov_b32 {sr(sT)}, {F_EPOCH}
v_cndmask_b32 {vr(vZ7)}, {vr(vT1)}, {vr(vZ7)}, vcc
buffer_store_dword {vr(vEp7)}, {vr(vZ7)}, {sr(SWS,4)}, {sr(sT)} offen{SC}''')
        def scale(r0):
            a(f'v_pk_mul_f32 {vr(r0,2)}, {vr(r0,2)}, {sr(sScale,2)}')
            a(f'v_pk_mul_f32 {vr(r0+2,2)}, {vr(r0+2,2)}, {sr(sScale,2)}')
        def pack4(d, x, y):
            a(f'v_cvt_pk_bf16_f32 {vr(d)}, {vr(x)}, {vr(x+1)}')
            a(f'v_cvt_pk_bf16_f32 {vr(d+1)}, {vr(x+2)}, {vr(x+3)}')
            if y is not None:
                a(f'v_cvt_pk_bf16_f32 {vr(d+2)}, {vr(y)}, {vr(y+1)}')
                a(f'v_cvt_pk_bf16_f32 {vr(d+3)}, {vr(y+2)}, {vr(y+3)}')
        def stage(want):
          ct = 0
          while ct < nct:
            ty, sec, sub, e = kinds[ct]
            if (sec == 0) != want:
                ct += 1
                continue
            if ty == 'P':
                for tt in range(2):
                    x, y = acc[ct][tt], acc[ct+1][tt]
                    if sec == 0:
                        scale(x); scale(y)
                    pack4(x, x, y)
                    if sec == 0:
                        a(f'ds_write_b128 {vr(vE[2])}, {vr(x,4)} offset:{sub*10240 + tt*256}')
                    else:
                        a(f'ds_write_b128 {vr(vE[0])}, {vr(x,4)} offset:{sub*20480 + tt*64}')
                ct += 2
            elif ty == 'T':
                for tt in range(2):
                    x = acc[ct][tt]
                    if sec == 0:
                        scale(x)
                    pack4(x, x, None)
                    if sec == 0:
                        a(f'ds_write_b64 {vr(vE[3])}, {vr(x,2)} offset:{tt*128}')
                    else:
                        a(f'ds_write_b64 {vr(vE[1])}, {vr(x,2)} offset:{tt*32}')
                ct += 1
            else:
                x, y = acc[ct][0], acc[ct][1]
                pack4(x, x, y)
                a(f'ds_write_b128 {vr(vE[1+sub])}, {vr(x,4)}')
                ct += 1
        stage(False)
        a('s_waitcnt lgkmcnt(0)')
        st4()
        a('s_barrier')
        st4()
        PB = Xf[0][0]
        assert Wf[0][0] == PB + 16
        for q in range(5):
            a(f'ds_read_b128 {vr(PB+4*q,4)}, {vr(vPub)} offset:{q*1024}')
        stage(True)
        nq = 6 if wn == 0 else 0
        for q in range(5):
            a(f's_waitcnt lgkmcnt({4 - q + nq})')
            a(f'buffer_store_dwordx4 {vr(PB+4*q,4)}, {vr(vQo)}, {sr(SWS,4)}, {sr(sPub if q < 4 else sPub2)} offen offset:{(q%4)*1024}{SST}')
        a('s_nop 1')
        st4()
    n_st = st.n
    p1_variant(0)
    a(f's_branch {name}_p2')
    a.label(f'{name}_p1b')
    st.n = n_st
    p1_variant(1)
    a.label(f'{name}_p2')

    V = VAlloc(VB2 + 3)
    Q1 = [V(4), V(4)]; Q2 = [V(2), V(2)]
    K1 = [V(4), V(4)]; K2 = [V(2), V(2)]
    V0 = [V(4), V(4)]; V1 = [V(4), V(4)]
    O = [V(16), V(16)]
    S = [V(16), V(16)]
    vPw = V(2); vPa = V(); vPo_ = V(); vPg = V()
    done_alloc(V)
    for t in range(2):
        for i in range(16):
            a(f'v_mov_b32 {vr(O[t]+i)}, 0')
    for i in range(4):
        a(f'v_mov_b32 {vr(V1[1]+i)}, 0')
    a(f's_mov_b32 {sr(sG)}, 0')
    a(f's_mov_b32 {sr(sOff)}, 0')
    if nobar:
        a(f'''s_lshl_b32 {sr(sT)}, {sr(sW)}, 3
s_add_u32 {sr(sT2)}, {sr(sT)}, {LW_PW + 4}
s_xor_b32 {sr(sT)}, {sr(sT)}, 32
s_add_u32 {sr(sT)}, {sr(sT)}, {LW_PW}
v_mov_b32 {vr(vPa)}, {sr(sT)}
v_mov_b32 {vr(vPo_)}, {sr(sT2)}
v_mov_b32 {vr(vPg)}, 0''')
    a('s_waitcnt lgkmcnt(0)')
    a('s_barrier')
    st0(); st4()
    def rdK(s_, u, part='R'):
        if part != 'Rb': a(f'ds_read_b128 {vr(K1[s_],4)}, {vr(vaK1)} offset:{2560*u}')
        if part != 'Ra': a(f'ds_read_b64 {vr(K2[s_],2)}, {vr(vaK2)} offset:{2560*u}')
    def rdV(s_, u, part='R'):
        if part != 'Rb': a(f'ds_read_b128 {vr(V0[s_],4)}, {vr(vaV)} offset:{2560*u}')
        if part != 'Ra': a(f'ds_read_b128 {vr(V1[s_],4)}, {vr(vaV)} offset:{2560*u+640}')
    def qk16(t, s_):
        a(f'v_mfma_f32_32x32x16_bf16 {vr(S[t],16)}, {vr(K1[s_],4)}, {vr(Q1[t],4)}, 0')
    def qk8(t, s_):
        a(f'v_mfma_f32_32x32x8_bf16 {vr(S[t],16)}, {vr(K2[s_],2)}, {vr(Q2[t],2)}, {vr(S[t],16)}')
    def pv(t, s_, n):
        Vf = (V0, V1)[n][s_]
        a(f'v_smfmac_f32_32x32x32_bf16 {vr(O[t],16)}, {vr(Vf,4)}, {vr(S[t]+8*n,8)}, {vr(vIdx)}')
    def rowmax(t, dst):
        s = S[t]
        a(f'v_max3_f32 {vr(dst)}, {vr(s)}, {vr(s+1)}, {vr(s+2)}')
        for i in range(3, 15, 2):
            a(f'v_max3_f32 {vr(dst)}, {vr(dst)}, {vr(s+i)}, {vr(s+i+1)}')
        a(f'v_max_f32 {vr(dst)}, {vr(dst)}, {vr(s+15)}')
    def crosshalf(x, y):
        a(f'v_mov_b32 {vr(y)}, {vr(x)}')
        a('s_nop 1')
        a(f'v_permlane32_swap_b32 {vr(x)}, {vr(y)}')
        a('s_nop 1')
    for t in range(2):
        a(f'ds_read_b128 {vr(Q1[t],4)}, {vr(vQs1)} offset:{1280*t}')
        a(f'ds_read_b64 {vr(Q2[t],2)}, {vr(vQs2)} offset:{1280*t}')
    rdK(0, 0); rdK(1, 1); rdV(0, 0)
    a('s_waitcnt lgkmcnt(4)')
    for t in range(2):
        a(f'v_cndmask_b32_e64 {vr(Q2[t])}, {vr(Q2[t])}, 0, {sr(sHi,2)}')
        a(f'v_cndmask_b32_e64 {vr(Q2[t]+1)}, {vr(Q2[t]+1)}, 0, {sr(sHi,2)}')
    qk16(0, 0); qk8(0, 0); qk16(1, 0); qk8(1, 0)
    a('s_nop 9')
    for t in range(2):
        if t == 1: a('s_nop 1')
        rowmax(t, vT0)
        crosshalf(vT0, vT1)
        a(f'''v_max_f32 {vr(vT0)}, {vr(vT0)}, {vr(vT1)}
v_sub_f32 {vr(vT0)}, 0, {vr(vT0)}
v_and_b32 {vr(vT1)}, 0xffff0000, {vr(vT0)}
v_sub_f32 {vr(vT0)}, {vr(vT0)}, {vr(vT1)}
v_and_b32 {vr(vT2)}, 0xffff0000, {vr(vT0)}
v_sub_f32 {vr(vT0)}, {vr(vT0)}, {vr(vT2)}
v_lshrrev_b32 {vr(vT1)}, 16, {vr(vT1)}
v_or_b32 {vr(vT1)}, {vr(vT1)}, {vr(vT2)}
v_lshrrev_b32 {vr(vT0)}, 16, {vr(vT0)}
v_cndmask_b32_e64 {vr(Q2[t])}, {vr(Q2[t])}, {vr(vT1)}, {sr(sHi,2)}
v_cndmask_b32_e64 {vr(Q2[t]+1)}, {vr(Q2[t]+1)}, {vr(vT0)}, {sr(sHi,2)}''')
        if t == 0:
            qk16(0, 0)
            a('s_nop 0')
            qk8(0, 0)
    for i in range(8, 16):
        a(f'v_mov_b32 {vr(S[1]+i)}, 0')
    st4()
    a(f'''s_lshl_b32 {sr(sT)}, {sr(sB)}, 3
s_add_u32 {sr(sT)}, {sr(sT)}, {sr(sHg)}
s_lshl_b32 {sr(sT)}, {sr(sT)}, 6
s_add_u32 {sr(sT)}, {sr(sT)}, {sr(sMt)}
s_lshl_b32 {sr(sT)}, {sr(sT)}, 2
s_add_u32 {sr(sT)}, {sr(sT)}, {F_FLAG1}
s_mov_b64 exec, 1
v_mov_b32 {vr(vT0)}, 1
v_mov_b32 {vr(vT2)}, {LW_CNT1}
v_mov_b32 {vr(vT1)}, {sr(sTag)}
v_mov_b32 {vr(vT3)}, {sr(sT)}
s_waitcnt vmcnt(0)
ds_add_rtn_u32 {vr(vT0)}, {vr(vT2)}, {vr(vT0)}
s_waitcnt lgkmcnt(0)
v_readfirstlane_b32 {sr(sT)}, {vr(vT0)}
s_cmp_eq_u32 {sr(sT)}, 7
s_cbranch_scc0 {name}_nl1
buffer_store_dword {vr(vT1)}, {vr(vT3)}, {sr(SWS,4)}, 0 offen{SC}''')
    a.label(f'{name}_nl1')
    a('s_mov_b64 exec, -1')
    prio = opts.get('prio', 1)
    rts(3)
    st0(); st4()
    if sset == 2: st()
    a('.p2align 6')
    a.label(f'{name}_loop')
    def ex(t, i):
        a(f'v_exp_f32 {vr(S[t]+i)}, {vr(S[t]+i)}')
    scheds = {1: 'e e P2 e e e e Q16 e e e e Q8 R e e e e P1 W e e',
              2: 'e e P2 e e e e Q16 e e e Q8 R e e e e e P1 W e e',
              3: 'e e P2 e e e e Q16 e e e e Q8 e R e e e P1 e W e',
              4: 'e e P2 e e e Q16 e e e e Q8 R e e e e P1 W e e e',
              5: 'e e W P2 e e e e Ra Q16 e e e e Rb Q8 e e e e P1 e e',
              6: 'e e W P2 e e e e R Q16 e e e e Q8 e e e e P1 e e',
              7: 'e e W P2 e e e e Q16 e e e e Ra Q8 e e e e Rb P1 e e',
              8: 'e e P2 e e e e Ra Q16 e e e e Rb Q8 e e e e W P1 e e',
              9: 'e e P2 e e e e Q16 e e e e Q8 e e e e R W P1 e e',
              10: 'e e P2 Ra e e e e Q16 Rb e e e e Q8 W e e e e P1 e e',
              11: 'e e P2 Ra e e e e Q16 Rb e e e e Q8 e e e e P1 W e e',
              12: 'e e P2 R e e e e Q16 e e e e Q8 e e e e P1 W e e'}
    sched = scheds[opts.get('sched', 11)].split()
    unroll = opts.get('unroll', 1)
    ptab = {1: {(0, 0): 2, (1, 0): 1, (2, 0): 0, (3, 0): 3},
            2: {(3, 0): 1, (1, 0): 0},
            3: {(3, 0): 3, (3, 1): 2, (0, 1): 1, (1, 1): 0},
            6: {(3, 0): 3, (0, 1): 2, (1, 1): 1, (2, 0): 0}}.get(prio, {})
    for rep in range(unroll):
      for j in range(4):
        for t in range(2):
            pj = j if t == 1 else j - 1
            nj = j if t == 0 else j + 1
            if (j, t) in ptab and nobar != 1:
                a(f's_setprio {ptab[(j, t)]}')
            e = 0
            for tok in sched:
                if tok == 'e':
                    ex(t, e); e += 1
                elif tok == 'P2':
                    pv(1 - t, pj % 2, 1)
                elif tok == 'P1':
                    pv(t, j % 2, 0)
                elif tok == 'Q16':
                    qk16(1 - t, nj % 2)
                elif tok == 'Q8':
                    qk8(1 - t, nj % 2)
                elif tok == 'W':
                    a(f's_waitcnt lgkmcnt({3 if nobar and (j, t) in ((2, 0), (2, 1)) else 2})')
                elif tok == 'Rb':
                    if t == 0: rdV((j + 1) % 2, (j + 1) % 4, 'Rb')
                    else: rdK(j % 2, (j + 2) % 4, 'Rb')
                elif tok in ('R', 'Ra'):
                    if t == 0:
                        if j == 3:
                            a(f'v_mad_u32_u24 {vr(vaV)}, {vr(vmV)}, {sr(sOff)}, {vr(vbV)}')
                        rdV((j + 1) % 2, (j + 1) % 4, tok)
                        if j == 2 and nobar:
                            a(f'ds_read_b64 {vr(vPw,2)}, {vr(vPa)}')
                    else:
                        if j == 2:
                            a(f'''s_add_u32 {sr(sOff)}, {sr(sOff)}, {SLOT}
s_cmp_ge_u32 {sr(sOff)}, {3*SLOT}
s_cselect_b32 {sr(sOff)}, 0, {sr(sOff)}''')
                            if nobar:
                                a(f'''v_add_u32 {vr(vPg)}, 1, {vr(vPg)}
s_add_u32 {sr(sT3)}, {sr(sG)}, {rep + 1}
s_waitcnt lgkmcnt(0)
v_readfirstlane_b32 {sr(sT)}, {vr(vPw)}
v_readfirstlane_b32 {sr(sT2)}, {vr(vPw+1)}
ds_write_b32 {vr(vPo_)}, {vr(vPg)}''')
                                if nobar == 1:
                                    a(f'''s_setprio 0
s_cmp_lt_u32 {sr(sT2)}, {sr(sT3)}
s_cbranch_scc1 {name}_lo{rep}
s_setprio 1''')
                                    a.label(f'{name}_lo{rep}')
                                elif nobar == 2:
                                    a(f's_add_u32 {sr(sT2)}, {sr(sT2)}, {1 + opts.get("slack", 0)}')
                                    a(f's_min_u32 {sr(sT)}, {sr(sT)}, {sr(sT2)}')
                                a(f's_cmp_gt_u32 {sr(sT)}, {sr(sT3)}')
                                a(f's_cbranch_scc0 {name}_spin{rep}')
                                a.label(f'{name}_spun{rep}')
                            else:
                                a('s_waitcnt lgkmcnt(0)')
                                a('s_barrier')
                            if sset == 2 and st.on:
                                for K in (0, 1, 2, 3, 8, 14):
                                    a(f's_cmp_eq_u32 {sr(sG)}, {K}')
                                    a(f's_cbranch_scc0 {name}_sk{K}')
                                    st()
                                    a.label(f'{name}_sk{K}')
                            a(f'''v_add_u32 {vr(vaK1)}, {sr(sOff)}, {vr(vbK1)}
v_mad_u32_u24 {vr(vaK2)}, {vr(vmK2)}, {sr(sOff)}, {vr(vbK2)}''')
                        rdK(j % 2, (j + 2) % 4, tok)
            assert e == 16
    a(f'''s_add_u32 {sr(sG)}, {sr(sG)}, {unroll}
s_cmp_lt_u32 {sr(sG)}, 16
s_cbranch_scc1 {name}_loop''')
    a('s_nop 1')
    pv(1, 1, 1)
    if ptab or nobar:
        a('s_setprio 0')
    st0()
    if sset in (2, 3): st()
    L = [vT2, vT3]
    rts(4)
    a('s_waitcnt lgkmcnt(0)')
    a(f's_mov_b32 {sr(sI)}, 0')
    a.label(f'{name}_store')
    a(f's_mov_b32 {sr(sM)}, 0xaaaaaaaa')
    a(f's_mov_b32 {sr(sM+1)}, 0xaaaaaaaa')
    for t in range(2):
        a(f'v_mov_b32 {vr(vT0)}, {vr(O[t]+8)}')
        crosshalf(vT0, L[t])
        a(f'v_rcp_f32 {vr(vT0)}, {vr(L[t])}')
        a('s_nop 0')
        for i in range(12):
            a(f'v_mul_f32 {vr(O[t]+i)}, {vr(O[t]+i)}, {vr(vT0)}')
        for i in range(4):
            a(f'v_cvt_pk_bf16_f32 {vr(S[t]+i)}, {vr(O[t]+2*i)}, {vr(O[t]+2*i+1)}')
        a(f'buffer_store_dwordx4 {vr(S[t],4)}, {vr(vQo)}, {sr(SWS,4)}, {sr(sOo)} offen offset:{1024*t}{SST}')
        for i in range(2):
            a(f'v_cvt_pk_bf16_f32 {vr(S[0]+4+2*t+i)}, {vr(O[t]+8+2*i)}, {vr(O[t]+8+2*i+1)}')
    ta, tb, X, Y = S[0]+4, S[0]+6, S[0]+8, S[0]+12
    a(f'''v_cndmask_b32_e64 {vr(X)}, {vr(tb)}, {vr(ta)}, {sr(sM,2)}
v_cndmask_b32_e64 {vr(X+1)}, {vr(tb+1)}, {vr(ta+1)}, {sr(sM,2)}
v_lshrrev_b32 {vr(vT0)}, 1, {vr(vLane)}
v_and_b32 {vr(vT1)}, 1, {vr(vLane)}
v_mov_b32_dpp {vr(X+2)}, {vr(X)} quad_perm:[1,0,3,2] row_mask:0xf bank_mask:0xf
v_mov_b32_dpp {vr(X+3)}, {vr(X+1)} quad_perm:[1,0,3,2] row_mask:0xf bank_mask:0xf
v_lshlrev_b32 {vr(vT0)}, 4, {vr(vT0)}
v_lshl_add_u32 {vr(vT0)}, {vr(vT1)}, 8, {vr(vT0)}
v_mov_b32 {vr(vT1)}, {OOB}
v_cndmask_b32_e64 {vr(Y)}, {vr(ta)}, {vr(X+2)}, {sr(sM,2)}
v_cndmask_b32_e64 {vr(Y+1)}, {vr(ta+1)}, {vr(X+3)}, {sr(sM,2)}
v_cndmask_b32_e64 {vr(Y+2)}, {vr(X+2)}, {vr(tb)}, {sr(sM,2)}
v_cndmask_b32_e64 {vr(Y+3)}, {vr(X+3)}, {vr(tb+1)}, {sr(sM,2)}
v_cndmask_b32_e64 {vr(vT0)}, {vr(vT0)}, {vr(vT1)}, {sr(sHi,2)}
buffer_store_dwordx4 {vr(Y,4)}, {vr(vT0)}, {sr(SWS,4)}, {sr(sOo)} offen offset:2048{SST}''')
    st0()
    for t in range(2):
        sm = sM if t == 0 else sM2
        a(f'v_mul_f32 {vr(vT1)}, 0, {vr(O[t])}')
        for i in range(1, 12):
            a(f'v_fmac_f32 {vr(vT1)}, 0, {vr(O[t]+i)}')
        a(f'v_add_f32 {vr(vT1)}, {vr(vT1)}, {vr(L[t])}')
        a(f'v_cmp_gt_f32 vcc, 0x53800000, {vr(vT1)}')
        a(f's_mov_b64 {sr(sm,2)}, vcc')
        a(f'v_cmp_lt_f32 vcc, 0x35800000, {vr(vT1)}')
        a(f's_and_b64 {sr(sm,2)}, {sr(sm,2)}, vcc')
    a(f'''s_and_b64 {sr(sM,2)}, {sr(sM,2)}, {sr(sM2,2)}
s_cmp_eq_u64 {sr(sM,2)}, -1
s_cselect_b32 {sr(sT)}, 1, {sr(sI)}
s_cmp_eq_u32 {sr(sT)}, 0
s_cbranch_scc1 {name}_fallback''')

    V = VAlloc(VBASE)
    vAo = V(); vAt = V(); vWm0 = V(); vWt0 = V(); vOo = V(); vRd = V(); vDn = V()
    vWm = [V() for _ in range(4)]; vWt = [V() for _ in range(4)]
    acc3 = [V(4) for _ in range(5)]
    assert V.n <= S[0]
    Wg = [[V(4) for _ in range(5)] for _ in range(2)]
    A = [[V(4) for _ in range(5)] for _ in range(4)]
    done_alloc(V)
    a(f'''s_lshl_b32 {sr(sT)}, {sr(sB)}, 4
s_add_u32 {sr(sT)}, {sr(sT)}, {sr(sMt3)}
s_lshl_b32 {sr(sT)}, {sr(sT)}, 1
s_lshr_b32 {sr(sT2)}, {sr(sW)}, 2
s_add_u32 {sr(sT)}, {sr(sT)}, {sr(sT2)}
s_mul_i32 {sr(sA)}, {sr(sT)}, {32*2560}
s_add_u32 {sr(sA)}, {sr(sA)}, {F_WS_O}
s_and_b32 {sr(sT)}, {sr(sW)}, 1
s_lshl_b32 {sr(sT)}, {sr(sT)}, 4
s_bfe_u32 {sr(sT2)}, {sr(sW)}, 0x10001
v_and_b32 {vr(vT0)}, 15, {vr(vLane)}
v_add_u32 {vr(vT0)}, {sr(sT)}, {vr(vT0)}
v_lshlrev_b32 {vr(vT0)}, 4, {vr(vT0)}
v_lshrrev_b32 {vr(vT1)}, 5, {vr(vLane)}
v_mul_u32_u24 {vr(vT1)}, 2560, {vr(vT1)}
v_bfe_u32 {vr(vT2)}, {vr(vLane)}, 4, 1
v_lshl_add_u32 {vr(vT1)}, {vr(vT2)}, 9, {vr(vT1)}
s_lshl_b32 {sr(sT3)}, {sr(sT2)}, 10
v_add3_u32 {vr(vAo)}, {vr(vT0)}, {vr(vT1)}, {sr(sT3)}
v_lshrrev_b32 {vr(vT1)}, 4, {vr(vLane)}
v_mul_u32_u24 {vr(vT1)}, 2560, {vr(vT1)}
s_lshl_b32 {sr(sT3)}, {sr(sT2)}, 8
s_add_u32 {sr(sT3)}, {sr(sT3)}, 2048
v_lshrrev_b32 {vr(vT0)}, 1, {vr(vT0)}
v_add3_u32 {vr(vAt)}, {vr(vT0)}, {vr(vT1)}, {sr(sT3)}
v_bfe_u32 {vr(vT0)}, {vr(vLane)}, 2, 2
v_lshrrev_b32 {vr(vT1)}, 5, {vr(vLane)}
v_mul_u32_u24 {vr(vT1)}, 20, {vr(vT1)}
v_bfe_u32 {vr(vT2)}, {vr(vLane)}, 4, 1
v_lshl_add_u32 {vr(vT1)}, {vr(vT2)}, 2, {vr(vT1)}
v_add_u32 {vr(vT1)}, {vr(vT1)}, {vr(vT0)}
v_mul_u32_u24 {vr(vT1)}, 160, {vr(vT1)}
v_and_b32 {vr(vT2)}, 3, {vr(vLane)}
v_lshl_add_u32 {vr(vWm0)}, {vr(vT2)}, 3, {vr(vT1)}
v_lshrrev_b32 {vr(vT1)}, 4, {vr(vLane)}
v_mul_u32_u24 {vr(vT1)}, 20, {vr(vT1)}
v_add3_u32 {vr(vT1)}, {vr(vT1)}, {vr(vT0)}, 16
v_mul_u32_u24 {vr(vT1)}, 160, {vr(vT1)}
v_lshl_add_u32 {vr(vWt0)}, {vr(vT2)}, 3, {vr(vT1)}
s_lshl_b32 {sr(sT)}, {sr(sMt3)}, 7
s_lshl_b32 {sr(sT2)}, {sr(sW)}, 4
s_add_u32 {sr(sT)}, {sr(sT)}, {sr(sT2)}
v_and_b32 {vr(vT0)}, 15, {vr(vLane)}
v_add_u32 {vr(vT0)}, {sr(sT)}, {vr(vT0)}
v_mul_u32_u24 {vr(vT0)}, 2560, {vr(vT0)}
v_lshrrev_b32 {vr(vT1)}, 4, {vr(vLane)}
v_lshl_add_u32 {vr(vT0)}, {vr(vT1)}, 3, {vr(vT0)}
s_mul_i32 {sr(sT)}, {sr(sB)}, 1280
s_mul_i32 {sr(sT2)}, {sr(sCg)}, 160
s_add_u32 {sr(sT)}, {sr(sT)}, {sr(sT2)}
v_add_u32 {vr(vOo)}, {sr(sT)}, {vr(vT0)}
v_mov_b32 {vr(vRd)}, {LW_RDY}
s_lshl_b32 {sr(sT)}, {sr(sB)}, 4
s_add_u32 {sr(sT)}, {sr(sT)}, {sr(sMt)}
s_lshl_b32 {sr(sT)}, {sr(sT)}, 6
s_add_u32 {sr(sT)}, {sr(sT)}, {sr(sHg)}
s_lshl_b32 {sr(sT)}, {sr(sT)}, 2
s_add_u32 {sr(sT)}, {sr(sT)}, {F_FLAG2}
v_mov_b32 {vr(vDn)}, {sr(sT)}
v_add_u32 {vr(vWm0)}, {WO_LO}, {vr(vWm0)}
v_add_u32 {vr(vWt0)}, {WO_LO}, {vr(vWt0)}
s_and_b32 {sr(sT3)}, {sr(sCg)}, {opts.get('rot3', 3)}
s_lshl_b32 {sr(sT3)}, {sr(sT3)}, 1
s_mov_b32 {sr(sDone)}, 0''')
    for t in range(5):
        for i in range(4):
            a(f'v_mov_b32 {vr(acc3[t]+i)}, 0')
    tid_ = [0]
    base3 = st.n
    if sset == 3: st.n += 4
    def read_rdy():
        a(f'''ds_read_b64 {vr(vT0,2)}, {vr(vRd)}
s_waitcnt lgkmcnt(0)
v_and_b32 {vr(vT0)}, {vr(vT0)}, {vr(vT1)}
s_nop 0
v_readfirstlane_b32 {sr(sT)}, {vr(vT0)}
s_andn2_b32 {sr(sT)}, {sr(sT)}, {sr(sDone)}''')
    def loads(s_):
        a(f'''s_lshl_b32 {sr(sT2)}, {sr(sT)}, 8
s_or_b32 {sr(sT)}, {sr(sT)}, {sr(sT2)}
s_lshr_b32 {sr(sT)}, {sr(sT)}, {sr(sT3)}
s_ff1_i32_b32 {sr(sT)}, {sr(sT)}
s_add_u32 {sr(sT)}, {sr(sT)}, {sr(sT3)}
s_and_b32 {sr(sT)}, {sr(sT)}, 7
s_bitset1_b32 {sr(sDone)}, {sr(sT)}
s_mul_i32 {sr(sT2)}, {sr(sT)}, 10240
s_add_u32 {sr(sT2)}, {sr(sT2)}, {sr(sA)}
s_cmp_eq_u32 {sr(sT)}, 6
s_mul_i32 {sr(sT)}, {sr(sT)}, 12800
s_cselect_b32 {sr(sT)}, {QST - WO_LO}, {sr(sT)}''')
        for p in range(4):
            a(f'buffer_load_dwordx4 {vr(A[s_][p],4)}, {vr(vAo)}, {sr(SWS,4)}, {sr(sT2)} offen{SLD}')
            if p == 0:
                a(f'buffer_load_dwordx2 {vr(A[s_][4],2)}, {vr(vAt)}, {sr(SWS,4)}, {sr(sT2)} offen{SLD}')
            if p == 2:
                a(f'buffer_load_dwordx2 {vr(A[s_][4]+2,2)}, {vr(vAt)}, {sr(SWS,4)}, {sr(sT2)} offen{SLD}')
            if p < 3:
                a(f's_add_u32 {sr(sT2)}, {sr(sT2)}, 5120')
        a(f'v_add_u32 {vr(vWm[s_])}, {sr(sT)}, {vr(vWm0)}')
        a(f'v_add_u32 {vr(vWt[s_])}, {sr(sT)}, {vr(vWt0)}')
        if sset == 3 and st.on:
            a(f's_memtime s[{62+2*(base3+s_)}:{63+2*(base3+s_)}]\ns_waitcnt lgkmcnt(0)')
    def take_group(s_):
        n = tid_[0]; tid_[0] += 1
        a.label(f'{name}_tg{n}')
        read_rdy()
        a(f'''s_cbranch_scc1 {name}_tgd{n}
s_sleep 1
s_branch {name}_tg{n}''')
        a.label(f'{name}_tgd{n}')
        loads(s_)
    a('s_waitcnt vmcnt(0)')
    a(f'''s_mov_b64 exec, 1
v_mov_b32 {vr(vT0)}, 1
ds_add_rtn_u32 {vr(vT0)}, {vr(vRd)}, {vr(vT0)} offset:8
v_mov_b32 {vr(vT1)}, {sr(sTag)}
v_mov_b32 {vr(vT2)}, 0xff
s_waitcnt lgkmcnt(0)
v_readfirstlane_b32 {sr(sT)}, {vr(vT0)}
s_cmp_eq_u32 {sr(sT)}, 7
s_cbranch_scc0 {name}_nl
buffer_store_dword {vr(vT1)}, {vr(vDn)}, {sr(SWS,4)}, 0 offen{SC}
ds_write_b32 {vr(vRd)}, {vr(vT2)} offset:4''')
    a.label(f'{name}_nl')
    a('s_mov_b64 exec, -1')
    if sset == 3: st()
    def rdW3(fs, j, p, t):
        out = []
        for rd in range(2):
            if p < 4:
                base, off = vWm[j], (20*(2*p) + 8*rd)*160 + t*32
            else:
                base, off = vWt[j], (20*(4*rd))*160 + t*32
            out.append(f'ds_read_b64_tr_b16 {vr(Wg[fs][t]+2*rd,2)}, {vr(base)} offset:{off}')
        return out
    if opts.get('evt', 1):
        st0()
        sJ = sG
        a(f's_mov_b32 {sr(sI)}, 0')
        a(f's_mov_b32 {sr(sJ)}, 0')
        a.label(f'{name}_ev')
        a(f's_cmp_lt_u32 {sr(sI)}, 4')
        a(f's_cbranch_scc0 {name}_evc')
        read_rdy()
        a(f's_cbranch_scc0 {name}_evn')
        for i in range(4):
            if i < 3:
                a(f's_cmp_eq_u32 {sr(sI)}, {i}')
                a(f's_cbranch_scc0 {name}_evt{i}')
            loads(i)
            a(f's_mov_b32 {sr(sI)}, {i+1}')
            a(f's_branch {name}_ev')
            a.label(f'{name}_evt{i}')
        a.label(f'{name}_evn')
        a(f'''s_getreg_b32 {sr(sT)}, hwreg(HW_REG_IB_STS)
s_bfe_u32 {sr(sT2)}, {sr(sT)}, 0x20016
s_lshl_b32 {sr(sT2)}, {sr(sT2)}, 4
s_and_b32 {sr(sT)}, {sr(sT)}, 15
s_or_b32 {sr(sT)}, {sr(sT)}, {sr(sT2)}
s_add_u32 {sr(sT)}, {sr(sT)}, 6
s_sub_u32 {sr(sT2)}, {sr(sI)}, {sr(sJ)}
s_mul_i32 {sr(sT2)}, {sr(sT2)}, 6
s_cmp_le_u32 {sr(sT)}, {sr(sT2)}
s_cbranch_scc1 {name}_evc
s_sleep 1
s_branch {name}_ev''')
        a.label(f'{name}_evc')
        for j in range(4):
            if j < 3:
                a(f's_cmp_eq_u32 {sr(sJ)}, {j}')
                a(f's_cbranch_scc0 {name}_evk{j}')
            for p in range(2):
                for t in range(5):
                    for r in rdW3(p, j, p, t): a(r)
            for k in range(4, j + 1, -1):
                a(f's_cmp_eq_u32 {sr(sI)}, {k}')
                a(f's_cbranch_scc0 {name}_evw{j}_{k}')
                a(f's_waitcnt vmcnt({6*(k-j-1)})')
                a(f's_branch {name}_evx{j}')
                a.label(f'{name}_evw{j}_{k}')
            a('s_waitcnt vmcnt(0)')
            a.label(f'{name}_evx{j}')
            if sset == 3 and j in (0, 3): st()
            for p in range(5):
                fs = p % 2
                a(f's_waitcnt lgkmcnt({10 if p < 4 else 0})')
                for t in range(5):
                    a(f'v_mfma_f32_16x16x32_bf16 {vr(acc3[t],4)}, {vr(Wg[fs][t],4)}, {vr(A[j][p],4)}, {vr(acc3[t],4)}')
                    if p + 2 < 5:
                        for r in rdW3(fs, j, p + 2, t): a(r)
            if j < 3:
                a(f's_mov_b32 {sr(sJ)}, {j+1}')
                a(f's_branch {name}_ev')
                a.label(f'{name}_evk{j}')
    else:
        st0()
        steps = [(j, p) for j in range(4) for p in range(5)]
        for j in range(4):
            take_group(j)
        for n in range(2):
            for t in range(5):
                for r in rdW3(n, *steps[n], t): a(r)
        left = {0: 5, 1: 3, 2: 2, 3: 0, 4: 0}
        for n, (j, p) in enumerate(steps):
            fs = n % 2
            a(f's_waitcnt vmcnt({6*(3-j) + left[p]}) lgkmcnt({10 if n < 19 else 0})')
            if sset == 3 and n in (0, 18): st()
            for t in range(5):
                a(f'v_mfma_f32_16x16x32_bf16 {vr(acc3[t],4)}, {vr(Wg[fs][t],4)}, {vr(A[j][p],4)}, {vr(acc3[t],4)}')
                if n + 2 < 20:
                    for r in rdW3(fs, *steps[n+2], t): a(r)

    a('s_nop 3')
    st0()
    if sset == 3: st()
    OUTF = {0: '', 1: ' nt', 2: ' sc1'}[opts.get('outf', 0)]
    for t in range(5):
        a(f'v_cvt_pk_bf16_f32 {vr(acc3[t])}, {vr(acc3[t])}, {vr(acc3[t]+1)}')
        a(f'v_cvt_pk_bf16_f32 {vr(acc3[t]+1)}, {vr(acc3[t]+2)}, {vr(acc3[t]+3)}')
        a(f'buffer_store_dwordx2 {vr(acc3[t],2)}, {vr(vOo)}, {sr(SOUT,4)}, 0 offen offset:{t*32}{OUTF}')
    if dbgt:
        a('s_waitcnt vmcnt(0)')
        rts(5)
        a('s_mov_b64 exec, 1')
        a(f's_not_b32 s62, s62')
        for k in range(6):
            a(f'v_mov_b32 {vr(vT0)}, {4+4*k}')
            a(f'v_mov_b32 {vr(vT1)}, s{62+2*k}')
            a(f'buffer_atomic_umax {vr(vT1)}, {vr(vT0)}, {sr(SDBG,4)}, 0 offen')
            a('s_nop 1')
    if st.on:
        a('s_waitcnt vmcnt(0)')
    st(); st.rt(); st.flush(sW)
    n_total = st.n
    a.label(f'{name}_done')
    a('s_endpgm')

    if nobar:
        for rep in range(unroll):
            a.label(f'{name}_spin{rep}')
            a(f'''ds_read_b64 {vr(vPw,2)}, {vr(vPa)}
s_waitcnt lgkmcnt(0)
v_readfirstlane_b32 {sr(sT)}, {vr(vPw)}''')
            if nobar == 2:
                a(f'''v_readfirstlane_b32 {sr(sT2)}, {vr(vPw+1)}
s_add_u32 {sr(sT2)}, {sr(sT2)}, {1 + opts.get("slack", 0)}
s_min_u32 {sr(sT)}, {sr(sT)}, {sr(sT2)}''')
            a(f'''s_cmp_gt_u32 {sr(sT)}, {sr(sT3)}
s_cbranch_scc0 {name}_spin{rep}
s_branch {name}_spun{rep}''')
    a.label(f'{name}_fallback')
    M = [vT4, vT5]
    vVo = vaV
    a(f'''v_cndmask_b32_e64 {vr(Q2[0])}, {vr(Q2[0])}, 0, {sr(sHi,2)}
v_cndmask_b32_e64 {vr(Q2[0]+1)}, {vr(Q2[0]+1)}, 0, {sr(sHi,2)}
v_cndmask_b32_e64 {vr(Q2[1])}, {vr(Q2[1])}, 0, {sr(sHi,2)}
v_cndmask_b32_e64 {vr(Q2[1]+1)}, {vr(Q2[1]+1)}, 0, {sr(sHi,2)}
v_mov_b32 {vr(M[0])}, 0xff800000
v_mov_b32 {vr(M[1])}, 0xff800000
v_mov_b32 {vr(vT1)}, {OOB}
s_lshr_b32 {sr(sT)}, {sr(sW)}, 1
s_mul_i32 {sr(sT)}, {sr(sT)}, 10240
v_subrev_u32 {vr(vT0)}, {sr(sT)}, {vr(vbV)}
v_cmp_eq_u32 vcc, 1, {vr(vmV)}
s_mov_b32 {sr(sT)}, {sr(sKV)}
s_mov_b32 {sr(sG)}, 0
v_cndmask_b32 {vr(vVo)}, {vr(vT1)}, {vr(vT0)}, vcc
s_mov_b64 {sr(sM2,2)}, vcc
s_waitcnt vmcnt(0)''')
    a.label(f'{name}_fb1')
    a(f'''buffer_load_dwordx4 {vr(K1[0],4)}, {vr(vQo)}, {sr(SWS,4)}, {sr(sT)} offen{SC}
buffer_load_dwordx2 {vr(K2[0],2)}, {vr(vQo2)}, {sr(SWS,4)}, {sr(sT)} offen{SC}
s_waitcnt vmcnt(0)''')
    qk16(0, 0); qk16(1, 0); qk8(0, 0); qk8(1, 0)
    a('s_nop 15')
    for t in range(2):
        rowmax(t, vT0)
        a(f'v_max_f32 {vr(M[t])}, {vr(M[t])}, {vr(vT0)}')
    a(f'''s_add_u32 {sr(sT)}, {sr(sT)}, 2560
s_add_u32 {sr(sG)}, {sr(sG)}, 1
s_cmp_lt_u32 {sr(sG)}, 64
s_cbranch_scc1 {name}_fb1''')
    for t in range(2):
        crosshalf(M[t], vT1)
        a(f'v_max_f32 {vr(M[t])}, {vr(M[t])}, {vr(vT1)}')
        for i in range(16):
            a(f'v_mov_b32 {vr(O[t]+i)}, 0')
    a(f's_mov_b32 {sr(sT)}, {sr(sKV)}')
    a(f's_mov_b32 {sr(sG)}, 0')
    a(f'v_mov_b32 {vr(vT1)}, 0x3f803f80')
    a.label(f'{name}_fb2')
    a(f'''buffer_load_dwordx4 {vr(K1[0],4)}, {vr(vQo)}, {sr(SWS,4)}, {sr(sT)} offen{SC}
buffer_load_dwordx2 {vr(K2[0],2)}, {vr(vQo2)}, {sr(SWS,4)}, {sr(sT)} offen{SC}
buffer_load_dwordx4 {vr(V0[0],4)}, {vr(vVo)}, {sr(SWS,4)}, {sr(sT)} offen{SC}
buffer_load_dwordx4 {vr(V1[0],4)}, {vr(vVo)}, {sr(SWS,4)}, {sr(sT)} offen offset:640{SC}
s_waitcnt vmcnt(0)''')
    qk16(0, 0); qk16(1, 0); qk8(0, 0); qk8(1, 0)
    for i in range(4):
        a(f'v_cndmask_b32_e64 {vr(V0[0]+i)}, {vr(vT1)}, {vr(V0[0]+i)}, {sr(sM2,2)}')
        a(f'v_cndmask_b32_e64 {vr(V1[0]+i)}, {vr(vT1)}, {vr(V1[0]+i)}, {sr(sM2,2)}')
    a('s_nop 15')
    for t in range(2):
        for i in range(16):
            a(f'v_sub_f32 {vr(S[t]+i)}, {vr(S[t]+i)}, {vr(M[t])}')
        for i in range(16):
            ex(t, i)
    a('s_nop 1')
    for t in range(2):
        pv(t, 0, 0); pv(t, 0, 1)
    a(f'''s_add_u32 {sr(sT)}, {sr(sT)}, 2560
s_add_u32 {sr(sG)}, {sr(sG)}, 1
s_cmp_lt_u32 {sr(sG)}, 64
s_cbranch_scc1 {name}_fb2''')
    a('s_nop 15')
    a(f's_mov_b32 {sr(sI)}, 1')
    a(f's_branch {name}_store')

    a.label(f'{name}_helper')
    st.n = n_common
    V = VAlloc(VBASE)
    vEp = V(); vL16 = V(); vFl = V()
    VH = V.n
    a('s_setprio 3')
    a(f'v_mov_b32 {vr(vT0)}, {F_EPOCH}')
    a(f'buffer_load_dword {vr(vEp)}, {vr(vT0)}, {sr(SWS,4)}, 0 offen{SC}')
    a(f'v_lshlrev_b32 {vr(vL16)}, 4, {vr(vLane)}')
    vP = V(); vC8 = V(8); vPwa = V(); vFu = V(); vPo1 = V(); vPo2 = V(); vPo = V(); vLw = V()
    vW3 = [V() for _ in range(5)]
    vPf = [V() for _ in range(4)]
    vHX = [V() for _ in range(4)]
    vHW = [V() for _ in range(15)]
    vIx = V(); vIw = V(); vSx = V(); vSw = V(); vJ = [V() for _ in range(6)]
    done_alloc(V)
    if stag:
        a(f'''s_lshr_b32 {sr(sT)}, s2, 3
s_and_b32 {sr(sT2)}, s2, 1
s_lshl_b32 {sr(sT2)}, {sr(sT2)}, 5
s_add_u32 {sr(sT2)}, {sr(sT2)}, {sr(sT)}
s_lshl_b32 {sr(sT2)}, {sr(sT2)}, 5
v_and_b32 {vr(vT0)}, 31, {vr(vLane)}
v_add_u32 {vr(vT2)}, {sr(sT2)}, {vr(vT0)}
v_mul_u32_u24 {vr(vT2)}, 1280, {vr(vT2)}
v_lshrrev_b32 {vr(vT1)}, 5, {vr(vLane)}
v_lshl_add_u32 {vr(vIx)}, {vr(vT1)}, 7, {vr(vT2)}
buffer_load_dword {vr(vJ[0])}, {vr(vIx)}, {sr(SX,4)}, 0 offen
v_cmp_le_u32 vcc, 15, {vr(vT0)}
s_lshl_b32 {sr(sT)}, {sr(sT)}, 1
s_bfe_u32 {sr(sT2)}, s2, 0x10001
v_cndmask_b32_e64 {vr(vT2)}, 0, 1, vcc
v_mul_u32_u24 {vr(vT3)}, 15, {vr(vT2)}
v_sub_u32 {vr(vT3)}, {vr(vT0)}, {vr(vT3)}
v_lshl_add_u32 {vr(vT2)}, {vr(vT1)}, 6, {vr(vT2)}
v_add_u32 {vr(vT2)}, {sr(sT)}, {vr(vT2)}
v_mul_u32_u24 {vr(vT2)}, 3840, {vr(vT2)}
v_mul_u32_u24 {vr(vT4)}, 52, {vr(vT3)}
v_lshrrev_b32 {vr(vT4)}, 8, {vr(vT4)}
v_mul_u32_u24 {vr(vT4)}, {1280-640}, {vr(vT4)}
v_lshl_add_u32 {vr(vT4)}, {vr(vT3)}, 7, {vr(vT4)}
s_mul_i32 {sr(sT2)}, {sr(sT2)}, 640
v_add3_u32 {vr(vIw)}, {vr(vT2)}, {vr(vT4)}, {sr(sT2)}
v_cmp_le_u32 vcc, 30, {vr(vT0)}
v_mov_b32 {vr(vT2)}, {OOB}
s_mov_b32 {sr(sT)}, {128*3840}
v_cndmask_b32 {vr(vIw)}, {vr(vIw)}, {vr(vT2)}, vcc
buffer_load_dword {vr(vJ[1])}, {vr(vIw)}, {sr(SWQ,4)}, 0 offen''')
        if stag >= 2:
            a(f'buffer_load_dword {vr(vJ[2])}, {vr(vIx)}, {sr(SX,4)}, 0 offen offset:256')
            a(f'buffer_load_dword {vr(vJ[3])}, {vr(vIw)}, {sr(SWQ,4)}, {sr(sT)} offen')
        a(f'''s_bfe_u32 {sr(sT)}, s2, 0x30003
s_and_b32 {sr(sI)}, s2, 1
s_lshl_b32 {sr(sI)}, {sr(sI)}, 3
s_add_u32 {sr(sI)}, {sr(sI)}, {sr(sT)}
s_lshl_b32 {sr(sI)}, {sr(sI)}, 7
v_add_u32 {vr(vT0)}, {sr(sI)}, {vr(vLane)}
v_mul_u32_u24 {vr(vSx)}, 1280, {vr(vT0)}
v_mul_u32_u24 {vr(vT1)}, 4370, {vr(vLane)}
v_lshrrev_b32 {vr(vT1)}, 16, {vr(vT1)}
v_mul_u32_u24 {vr(vT2)}, 15, {vr(vT1)}
v_sub_u32 {vr(vT3)}, {vr(vLane)}, {vr(vT2)}
s_lshl_b32 {sr(sT)}, {sr(sT)}, 3
v_add_u32 {vr(vT1)}, {sr(sT)}, {vr(vT1)}
v_mul_u32_u24 {vr(vT1)}, 3840, {vr(vT1)}
v_mul_u32_u24 {vr(vT4)}, 52, {vr(vT3)}
v_lshrrev_b32 {vr(vT4)}, 8, {vr(vT4)}
v_mul_u32_u24 {vr(vT4)}, {1280-640}, {vr(vT4)}
v_lshl_add_u32 {vr(vT4)}, {vr(vT3)}, 7, {vr(vT4)}
v_add3_u32 {vr(vSw)}, {vr(vT1)}, {vr(vT4)}, {sr(sT2)}
v_cmp_le_u32 vcc, 60, {vr(vLane)}
v_mov_b32 {vr(vT2)}, {OOB}
s_lshr_b32 {sr(sM0a)}, s2, 6
v_cndmask_b32 {vr(vSw)}, {vr(vSw)}, {vr(vT2)}, vcc''')
    sgid = [0]
    def stag_pf():
        if not stag: return
        n = sgid[0]; sgid[0] += 1
        AH = opts.get('ahead', 2)
        a(f'''s_add_u32 {sr(sT)}, {sr(sKK)}, {1 + AH}
s_and_b32 {sr(sT2)}, {sr(sT)}, 3
s_cmp_eq_u32 {sr(sT2)}, {sr(sM0a)}
s_cselect_b32 {sr(sT2)}, {sr(sT)}, 99
s_cmp_lt_u32 {sr(sT2)}, {2*stag}
s_cselect_b32 {sr(sT2)}, 99, {sr(sT2)}
s_cmp_lt_u32 {sr(sT2)}, 10
s_cbranch_scc0 {name}_sp{n}
s_lshl_b32 {sr(sT2)}, {sr(sT)}, 7
buffer_load_dword {vr(vJ[0])}, {vr(vSx)}, {sr(SX,4)}, {sr(sT2)} offen
s_add_u32 {sr(sT2)}, {sr(sT2)}, {64*1280}
buffer_load_dword {vr(vJ[1])}, {vr(vSx)}, {sr(SX,4)}, {sr(sT2)} offen
s_mul_i32 {sr(sT2)}, {sr(sT)}, {64*3840}
buffer_load_dword {vr(vJ[2])}, {vr(vSw)}, {sr(SWQ,4)}, {sr(sT2)} offen
s_add_u32 {sr(sT2)}, {sr(sT2)}, {4*3840}
buffer_load_dword {vr(vJ[3])}, {vr(vSw)}, {sr(SWQ,4)}, {sr(sT2)} offen''')
        a.label(f'{name}_sp{n}')
    a(f'''s_lshl_b32 {sr(sT)}, {sr(sMt)}, 7
v_lshrrev_b32 {vr(vT0)}, 3, {vr(vLane)}
v_add_u32 {vr(vT0)}, {sr(sT)}, {vr(vT0)}
v_mul_u32_u24 {vr(vT0)}, 1280, {vr(vT0)}
v_lshrrev_b32 {vr(vT1)}, 4, {vr(vLane)}
v_and_b32 {vr(vT3)}, 7, {vr(vLane)}
v_xor_b32 {vr(vT2)}, {vr(vT1)}, {vr(vT3)}
v_lshl_add_u32 {vr(vHX[0])}, {vr(vT2)}, 4, {vr(vT0)}
v_xor_b32 {vr(vT2)}, 64, {vr(vHX[0])}
v_add_u32 {vr(vHX[1])}, {10240-1024}, {vr(vT2)}
v_add_u32 {vr(vHX[2])}, {2*(10240-1024)}, {vr(vHX[0])}
v_add_u32 {vr(vHX[3])}, {3*(10240-1024)}, {vr(vT2)}''')
    for pi in range(15):
        a(f's_sub_u32 {sr(sT)}, {sr(sT3)}, {(pi%4)*1024}')
        w_pattern(vHW[pi], f'v_add_u32 {vr(vT0)}, {64*pi}, {vr(vLane)}', sr(sT))
    def next_k():
        a(f'''s_add_u32 {sr(sKK)}, {sr(sKK)}, 1
s_cmp_eq_u32 {sr(sKK)}, 10
s_cselect_b32 {sr(sKK)}, 0, {sr(sKK)}
s_lshl_b32 {sr(sXo)}, {sr(sKK)}, 7
s_mul_i32 {sr(sWo)}, {sr(sKK)}, {64*3840}''')
    def issue_x():
        for jj in range(16):
            if jj % 4 == 0:
                a(f's_add_u32 m0, {sr(sSlot)}, {jj*1024}')
                a(f's_add_u32 {sr(sT)}, {sr(sXo)}, {jj*10240}')
            a(f'buffer_load_dwordx4 {vr(vHX[jj%4])}, {sr(SX,4)}, {sr(sT)} offen offset:{(jj%4)*1024} lds')
    def issue_w():
        for half in range(2):
            for pi in range(15):
                if pi % 4 == 0:
                    a(f's_add_u32 m0, {sr(sSlot)}, {XSZ + half*15360 + pi*1024}')
                    a(f's_add_u32 {sr(sT)}, {sr(sWo)}, {half*32*3840}')
                a(f'buffer_load_dwordx4 {vr(vHW[pi])}, {sr(SWQ,4)}, {sr(sT)} offen offset:{(pi%4)*1024} lds')
    def issue_stage():
        stag_pf(); next_k(); issue_x(); issue_w()
        a(f'''s_add_u32 {sr(sSlot)}, {sr(sSlot)}, {STG}
s_cmp_ge_u32 {sr(sSlot)}, {3*STG}
s_cselect_b32 {sr(sSlot)}, 0, {sr(sSlot)}''')
    pfw = opts.get('pfw', 1) and not stag
    if pfw:
        a(f'''s_lshr_b32 {sr(sT)}, s2, 6
s_mul_i32 {sr(sT)}, {sr(sT)}, 3
s_add_u32 {sr(sT)}, {sr(sT)}, 8
s_bfe_u32 {sr(sT2)}, s2, 0x30003
s_lshr_b32 {sr(sI)}, {sr(sT2)}, 2
s_add_u32 {sr(sT)}, {sr(sT)}, {sr(sI)}
s_cmp_ge_u32 {sr(sT)}, 10
s_cselect_b32 {sr(sI)}, 10, 0
s_sub_u32 {sr(sT)}, {sr(sT)}, {sr(sI)}
s_lshl_b32 {sr(sT)}, {sr(sT)}, 6
s_and_b32 {sr(sT2)}, {sr(sT2)}, 3
s_lshl_b32 {sr(sT2)}, {sr(sT2)}, 4
s_add_u32 {sr(sT)}, {sr(sT)}, {sr(sT2)}
s_mul_i32 {sr(sT)}, {sr(sT)}, 3840
s_add_u32 {sr(sRdy)}, {sr(sT)}, {sr(sT3)}
v_lshrrev_b32 {vr(vT0)}, 3, {vr(vLane)}
v_mul_u32_u24 {vr(vT0)}, 3840, {vr(vT0)}
v_bfe_u32 {vr(vT1)}, {vr(vLane)}, 1, 2
v_mul_u32_u24 {vr(vT2)}, 1280, {vr(vT1)}
v_and_b32 {vr(vT3)}, 1, {vr(vLane)}
v_mul_u32_u24 {vr(vT3)}, 156, {vr(vT3)}
v_add3_u32 {vr(vT0)}, {vr(vT0)}, {vr(vT2)}, {vr(vT3)}
v_cmp_eq_u32 vcc, 3, {vr(vT1)}
v_mov_b32 {vr(vT2)}, {OOB}
s_nop 0
v_cndmask_b32 {vr(vPo)}, {vr(vT0)}, {vr(vT2)}, vcc''')
    a(f's_mov_b32 {sr(sSlot)}, {STG}')
    st1()
    a('s_barrier')
    st1()
    if pfw:
        a(f'buffer_load_dword {vr(vPf[0])}, {vr(vPo)}, {sr(SWQ,4)}, {sr(sRdy)} offen')
        a(f's_add_u32 {sr(sRdy)}, {sr(sRdy)}, {8*3840}')
        a(f'buffer_load_dword {vr(vPf[1])}, {vr(vPo)}, {sr(SWQ,4)}, {sr(sRdy)} offen')
    if opts.get('xfirst', 0):
        next_k(); issue_x()
        a(f's_mov_b32 {sr(sSrc)}, {sr(sWo)}')
        a(f's_mov_b32 {sr(sSlot)}, {2*STG}')
        next_k(); issue_x()
        st1()
        if opts.get('xfirst') == 1: a('s_barrier')
        a(f's_mov_b32 {sr(sSlot)}, {STG}')
        a(f's_mov_b32 {sr(sI)}, {sr(sWo)}')
        a(f's_mov_b32 {sr(sWo)}, {sr(sSrc)}')
        issue_w()
        if opts.get('xfirst') == 2: a('s_barrier')
        a(f's_mov_b32 {sr(sSlot)}, {2*STG}')
        a(f's_mov_b32 {sr(sWo)}, {sr(sI)}')
        issue_w()
        a(f's_mov_b32 {sr(sSlot)}, 0')
        a('s_waitcnt vmcnt(30)')
        a('s_barrier')
        st1()
        a(f's_mov_b32 {sr(sI)}, 1')
    else:
        issue_stage()
        st1()
        a('s_barrier')
        st1()
        a(f's_mov_b32 {sr(sI)}, 0')
    a.label(f'{name}_hg')
    issue_stage()
    a('s_waitcnt vmcnt(46)')
    a('s_barrier')
    a(f's_add_u32 {sr(sI)}, {sr(sI)}, 1')
    a(f's_cmp_lt_u32 {sr(sI)}, 8')
    a(f's_cbranch_scc1 {name}_hg')
    st1()
    a(f'''s_lshl_b32 {sr(sT)}, {sr(sB)}, 3
s_add_u32 {sr(sT)}, {sr(sT)}, {sr(sHg)}
s_lshl_b32 {sr(sT)}, {sr(sT)}, 8
s_add_u32 {sr(sT)}, {sr(sT)}, {F_FLAG1}
v_lshl_add_u32 {vr(vT0)}, {vr(vLane)}, 2, {sr(sT)}
v_cmp_gt_u32 vcc, 16, {vr(vLane)}
v_mov_b32 {vr(vT1)}, {OOB}
s_lshl_b32 {sr(sT)}, {sr(sB)}, 4
v_cndmask_b32 {vr(vPo1)}, {vr(vT1)}, {vr(vT0)}, vcc
s_add_u32 {sr(sT)}, {sr(sT)}, {sr(sMt3)}
s_lshl_b32 {sr(sT)}, {sr(sT)}, 8
s_add_u32 {sr(sT)}, {sr(sT)}, {F_FLAG2}
v_lshl_add_u32 {vr(vT0)}, {vr(vLane)}, 2, {sr(sT)}
v_cmp_gt_u32 vcc, 8, {vr(vLane)}
v_mov_b32 {vr(vLw)}, {LW_RDY}
s_mul_i32 {sr(sT3)}, {sr(sCg)}, 160
v_cndmask_b32 {vr(vPo2)}, {vr(vT1)}, {vr(vT0)}, vcc''')
    for r in range(5):
        a(f'''v_add_u32 {vr(vT0)}, {64*r}, {vr(vLane)}
v_mul_u32_u24 {vr(vT1)}, 6554, {vr(vT0)}
v_lshrrev_b32 {vr(vT1)}, 16, {vr(vT1)}
v_mul_u32_u24 {vr(vT1)}, {1280-160}, {vr(vT1)}
v_lshl_add_u32 {vr(vT0)}, {vr(vT0)}, 4, {vr(vT1)}
v_add_u32 {vr(vT0)}, {sr(sT3)}, {vr(vT0)}
v_subrev_u32 {vr(vW3[r])}, {(r%4)*1024}, {vr(vT0)}''')
    a(f'''s_lshr_b32 {sr(sT)}, s2, 3
s_mul_i32 {sr(sT)}, {sr(sT)}, {20*1280}
v_lshl_add_u32 {vr(vT0)}, {vr(vLane)}, 7, {sr(sT)}
v_cmp_gt_u32 vcc, 50, {vr(vLane)}
v_mov_b32 {vr(vT1)}, {OOB}
s_mov_b32 {sr(sRdy)}, 0
v_cndmask_b32 {vr(vPo)}, {vr(vT1)}, {vr(vT0)}, vcc
v_readfirstlane_b32 {sr(sTag)}, {vr(vEp)}
s_lshl_b32 {sr(sDone)}, 1, {sr(sMt)}
s_waitcnt vmcnt({15 if hsplit else 0})
s_add_u32 {sr(sTag)}, {sr(sTag)}, {TAGK}
s_barrier
s_waitcnt vmcnt(0)
{'s_barrier' if hsplit else 's_nop 0'}
v_bfe_u32 {vr(vT2)}, {vr(vLane)}, 1, 2
v_mul_u32_u24 {vr(vT2)}, 2560, {vr(vT2)}
v_and_b32 {vr(vT3)}, 1, {vr(vLane)}
v_mul_u32_u24 {vr(vT3)}, 640, {vr(vT3)}
v_add_u32 {vr(vT2)}, {vr(vT2)}, {vr(vT3)}
v_add_u32 {vr(vT2)}, {ONES}, {vr(vT2)}
v_mov_b32 {vr(vC8)}, 0x3f803f80
v_mov_b32 {vr(vC8+1)}, 0x3f803f80
v_mov_b32 {vr(vC8+2)}, 0x3f803f80
v_mov_b32 {vr(vC8+3)}, 0x3f803f80
v_mov_b32 {vr(vC8+4)}, 0
v_mov_b32 {vr(vC8+5)}, 0
v_mov_b32 {vr(vC8+6)}, 0
v_mov_b32 {vr(vC8+7)}, 0
s_barrier
ds_write_b128 {vr(vT2)}, {vr(vC8,4)}
ds_write_b128 {vr(vT2)}, {vr(vC8+4,4)} offset:16
ds_write_b128 {vr(vLw)}, {vr(vC8+4,4)}
s_waitcnt lgkmcnt(0)''')
    st0()
    a('s_barrier')
    a('s_barrier')
    gid = [0]
    def issue_group():
        n = gid[0]; gid[0] += 1
        a(f'''s_andn2_b32 {sr(sT)}, {sr(sRdy)}, {sr(sDone)}
s_cbranch_scc1 {name}_pd{n}
s_mov_b32 {sr(sCnt)}, {POLL_LIMIT}''')
        a.label(f'{name}_pl{n}')
        a(f'''buffer_load_dword {vr(vP)}, {vr(vPo1)}, {sr(SWS,4)}, 0 offen{SC}
s_waitcnt vmcnt(0)
v_cmp_eq_u32 vcc, {sr(sTag)}, {vr(vP)}
s_and_b32 {sr(sRdy)}, vcc_lo, 0xffff
s_andn2_b32 {sr(sT)}, {sr(sRdy)}, {sr(sDone)}
s_cbranch_scc1 {name}_pd{n}
s_sleep 1
s_sub_u32 {sr(sCnt)}, {sr(sCnt)}, 1
s_cmp_lg_u32 {sr(sCnt)}, 0
s_cbranch_scc1 {name}_pl{n}
s_mov_b32 {sr(sRdy)}, 0xffff
s_andn2_b32 {sr(sT)}, {sr(sRdy)}, {sr(sDone)}''')
        a.label(f'{name}_pd{n}')
        a(f'''s_lshl_b32 {sr(sT2)}, {sr(sT)}, 16
s_or_b32 {sr(sT)}, {sr(sT)}, {sr(sT2)}
s_lshr_b32 {sr(sT)}, {sr(sT)}, {sr(sMt)}
s_ff1_i32_b32 {sr(sT)}, {sr(sT)}
s_add_u32 {sr(sNeed)}, {sr(sT)}, {sr(sMt)}
s_and_b32 {sr(sNeed)}, {sr(sNeed)}, 15
s_bitset1_b32 {sr(sDone)}, {sr(sNeed)}
s_mul_i32 {sr(sT)}, {sr(sNeed)}, 10240
s_add_u32 {sr(sSrc)}, {sr(sKV)}, {sr(sT)}''')
        for hs in range(4):
            for q in range(10):
                if q % 4 == 0:
                    a(f's_add_u32 m0, {sr(sSlot)}, {hs*10240 + q*1024}')
                    a(f's_add_u32 {sr(sT)}, {sr(sSrc)}, {hs*KV_HEAD + q*1024}')
                a(f'buffer_load_dwordx4 {vr(vL16)}, {sr(SWS,4)}, {sr(sT)} offen offset:{(q%4)*1024}{SLD} lds')
        a(f'''s_add_u32 {sr(sSlot)}, {sr(sSlot)}, {SLOT}
s_cmp_ge_u32 {sr(sSlot)}, {3*SLOT}
s_cselect_b32 {sr(sSlot)}, 0, {sr(sSlot)}
s_add_u32 {sr(sI)}, {sr(sI)}, 1''')
    a(f's_mov_b32 {sr(sI)}, 1')
    a(f's_mov_b32 {sr(sSlot)}, {SLOT}')
    wq = [0]
    def wait_prog(val):
        n = wq[0]; wq[0] += 1
        a.label(f'{name}_wp{n}')
        a(f'''ds_read_b32 {vr(vP)}, {vr(vPwa)} offset:4
s_waitcnt lgkmcnt(0)
v_cmp_le_u32 vcc, {val}, {vr(vP)}
s_and_b32 {sr(sT)}, vcc_lo, 0x1ff
s_cmp_eq_u32 {sr(sT)}, 0x1ff
s_cbranch_scc1 {name}_wpd{n}
s_sleep 2
s_branch {name}_wp{n}''')
        a.label(f'{name}_wpd{n}')
    def set_full(val):
        a(f'v_mov_b32 {vr(vFu)}, {val}')
        a(f'ds_write_b32 {vr(vPwa)}, {vr(vFu)}')
    if nobar:
        a(f'v_min_u32 {vr(vPwa)}, 8, {vr(vLane)}')
        a(f'v_lshlrev_b32 {vr(vPwa)}, 3, {vr(vPwa)}')
        a(f'v_add_u32 {vr(vPwa)}, {LW_PW}, {vr(vPwa)}')
    issue_group()
    st0()
    a.label(f'{name}_hl')
    if nobar:
        a('s_waitcnt vmcnt(0)')
        set_full(sr(sI))
        a(f's_max_u32 {sr(sSrc)}, {sr(sI)}, 2')
        a(f's_sub_u32 {sr(sSrc)}, {sr(sSrc)}, 2')
        wait_prog(sr(sSrc))
        issue_group()
    else:
        issue_group()
        a('s_waitcnt vmcnt(40)')
        a('s_barrier')
    wid = [0]
    def wo_rows(r0, r1, lds):
        n = wid[0]; wid[0] += 1
        a(f's_mov_b32 {sr(sSrc)}, {r0*1280}')
        a(f's_mov_b32 {sr(sT2)}, {lds}')
        a.label(f'{name}_hw{n}x')
        a(f's_mov_b32 m0, {sr(sT2)}')
        a(f's_add_u32 {sr(sT)}, {sr(sT2)}, 4096')
        for r in range(4):
            a(f'buffer_load_dwordx4 {vr(vW3[r])}, {sr(SWO,4)}, {sr(sSrc)} offen offset:{r*1024} lds')
        a(f's_mov_b32 m0, {sr(sT)}')
        a(f's_add_u32 {sr(sT2)}, {sr(sT2)}, 5120')
        a(f'buffer_load_dwordx4 {vr(vW3[4])}, {sr(SWO,4)}, {sr(sSrc)} offen lds')
        a(f's_add_u32 {sr(sSrc)}, {sr(sSrc)}, {32*1280}')
        a(f's_cmp_lt_u32 {sr(sSrc)}, {r1*1280}')
        a(f's_cbranch_scc1 {name}_hw{n}x')
    a(f's_cmp_eq_u32 {sr(sI)}, 6')
    a(f's_cbranch_scc0 {name}_hnp')
    for q in range(4):
        a(f's_mov_b32 {sr(sT)}, {q*6400}')
        a(f'buffer_load_dword {vr(vPf[q])}, {vr(vPo)}, {sr(SWO,4)}, {sr(sT)} offen')
    a.label(f'{name}_hnp')
    a(f's_cmp_eq_u32 {sr(sI)}, 10')
    a(f's_cbranch_scc0 {name}_hnq')
    wo_rows(480, 640, QST)
    a.label(f'{name}_hnq')
    a(f's_cmp_lt_u32 {sr(sI)}, 16')
    a(f's_cbranch_scc1 {name}_hl')
    if nobar:
        a('s_waitcnt vmcnt(0)')
        set_full(64)
        wait_prog(14)
        wo_rows(0, 256, WO_LO)
        wait_prog(15)
    else:
        wo_rows(0, 256, WO_LO)
        a('s_waitcnt vmcnt(40)')
        a('s_barrier')
    wo_rows(256, 480, WO_LO + 40960)
    a(f'''s_lshl_b32 {sr(sT)}, {sr(sB)}, 4
s_add_u32 {sr(sT)}, {sr(sT)}, {sr(sMt3)}
s_lshl_b32 {sr(sT)}, {sr(sT)}, 1
s_lshr_b32 {sr(sT2)}, {sr(sCg)}, 2
s_add_u32 {sr(sT)}, {sr(sT)}, {sr(sT2)}
s_mul_i32 {sr(sT)}, {sr(sT)}, {32*2560}
s_and_b32 {sr(sT2)}, {sr(sCg)}, 3
s_mul_i32 {sr(sT2)}, {sr(sT2)}, 5120
s_add_u32 {sr(sT)}, {sr(sT)}, {sr(sT2)}
s_add_u32 {sr(sT)}, {sr(sT)}, {F_WS_O}
v_lshl_add_u32 {vr(vT0)}, {vr(vLane)}, 7, {sr(sT)}
v_cmp_gt_u32 vcc, 40, {vr(vLane)}
v_mov_b32 {vr(vT1)}, {OOB}
s_mov_b32 {sr(sDone)}, 0
s_mov_b32 {sr(sCnt)}, {POLL_LIMIT}
v_cndmask_b32 {vr(vPo)}, {vr(vT1)}, {vr(vT0)}, vcc''')
    pid = [0]
    pfo = opts.get('pfo', 2)
    def poll2():
        a(f'''buffer_load_dword {vr(vP)}, {vr(vPo2)}, {sr(SWS,4)}, 0 offen{SC}
s_sub_u32 {sr(sCnt)}, {sr(sCnt)}, 1
s_waitcnt vmcnt(0)
v_cmp_eq_u32 vcc, {sr(sTag)}, {vr(vP)}
s_cmp_eq_u32 {sr(sCnt)}, 0
s_cselect_b32 {sr(sT)}, 0xff, vcc_lo
s_lshr_b32 {sr(sT2)}, {sr(sT)}, 1
s_and_b32 {sr(sT)}, {sr(sT)}, {sr(sT2)}
s_and_b32 {sr(sRdy)}, {sr(sT)}, 0x55''')
        if pfo:
            a(f's_andn2_b32 {sr(sSrc)}, {sr(sRdy)}, {sr(sDone)}')
            a(f's_or_b32 {sr(sDone)}, {sr(sDone)}, {sr(sRdy)}')
            for j in range(4):
                n = pid[0]; pid[0] += 1
                a(f's_bitcmp1_b32 {sr(sSrc)}, {2*j}')
                a(f's_cbranch_scc0 {name}_po{n}')
                a(f's_mov_b32 {sr(sT)}, {j*20480}')
                a(f'buffer_load_dword {vr(vPf[j])}, {vr(vPo)}, {sr(SWS,4)}, {sr(sT)} offen{SC}')
                a.label(f'{name}_po{n}')
            if pfo == 2:
                a('s_waitcnt vmcnt(0)')
        a(f'v_mov_b32 {vr(vP)}, {sr(sRdy)}')
        a(f'ds_write_b32 {vr(vLw)}, {vr(vP)}')
    poll2()
    if nobar:
        wait_prog(16)
    else:
        a('s_barrier')
    st0()
    st0()
    a.label(f'{name}_p3l')
    poll2()
    a(f's_cmp_eq_u32 {sr(sRdy)}, 0x55')
    a(f's_cbranch_scc0 {name}_p3l')
    a.label(f'{name}_p3e')
    if st.on:
        while st.n < n_total - 1: st()
        st.rt(); st.flush(sW)
    a('s_endpgm')
    nv = maxv[0]
    assert nv <= 168, nv
    return a.text(), descriptor(name, nv, ns), f'; @launch kernel={name} grid=(256,1,1) block=(576,1,1) lds={LDS_TOTAL}', n_total
```

```python
from common import *
import math, struct

def f32bits(x):
    return struct.unpack('<I', struct.pack('<f', x))[0]
QSCALE = f32bits(math.log2(math.e) / math.sqrt(20.0))

XSZ = 16384
STG = XSZ + 30720
SLOT = 40960
LW_RDY = 3 * SLOT
LW_CNT = 3 * SLOT + 8
LW_CNT1 = 3 * SLOT + 12
LW_PW = 131392
ONES = 3 * SLOT + 128
QST = 131584
LDS_TOTAL = QST + 25600
WO_LO = SLOT
F_WS_KV = 0
F_WS_O = 64 * KV_HEAD
F_FLAG1 = F_WS_O + 2 * 32 * 32 * 2560
F_FLAG2 = F_FLAG1 + 16 * 256
F_EPOCH = F_FLAG2 + 32 * 256
F_WS_END = F_EPOCH + 256
TAGK = 0x9E3779B9
POLL_LIMIT = 1 << 16
OOB = 0x40000000

def gen_fused(name='fused_kernel', opts=None):
    opts = opts or {}
    a = Asm()
    SC = ' sc1'
    FL = {0: ' sc1', 1: ' sc0 sc1', 2: '', 3: ' sc1 nt', 4: ' nt'}
    SST = FL[opts.get('sst', 0)]
    SLD = FL[opts.get('sld', 0)]
    stag = opts.get('stag', 0)
    hsplit = opts.get('hsplit', 1)
    nobar = opts.get('nobar', 0)
    loc = opts.get('loc', 1)
    sKK, sMt3, sCg = 3, 4, 5
    SX, SWQ, SWS, SDBG, SWO, SOUT = 8, 12, 16, 20, 24, 28
    sW, sB, sMt, sHg, sT, sT2, sT3 = 32, 33, 34, 35, 36, 37, 38
    sM0a, sM0b = 39, 40
    sDone = 41
    sHi = 42
    sG, sOff, sOo, sKV = 44, 45, 46, 47
    sM, sM2 = 48, 50
    sRdy, sCnt, sNeed, sI, sSlot, sSrc = 52, 53, 54, 55, 56, 57
    sXo, sWo = 53, 54
    sScale = 58
    sA, sTag = 60, 61
    sPub, sPub2 = 56, 57
    ns = 64
    vLane, vT0, vT1, vT2, vT3, vT4, vT5 = 1, 2, 3, 4, 5, 6, 7
    VBASE = 8
    st = Stamper(a, opts.get('stamp'), 0, 62, 6, vT0)
    if st.on: ns = st.nsgpr()
    sset = opts.get('sset', 0)
    def st0():
        if sset == 0: st()
    def st1():
        if sset == 1: st()
    def st4():
        if sset == 4: st()
    maxv = [0]
    def done_alloc(V):
        maxv[0] = max(maxv[0], V.n)

    a(f'.globl {name}\n.p2align 8\n.type {name},@function')
    a.label(name)
    if st.on:
        a('s_memrealtime s[62:63]\ns_memtime s[64:65]')
        st.n = 2
    dbgt = opts.get('dbgt')
    SWAP = 's_nop 0'
    if opts.get('swap', 0):
        SWAP = f's_lshr_b32 {sr(sT)}, s2, 1\ns_xor_b32 {sr(sT)}, {sr(sT)}, s2\ns_and_b32 {sr(sT)}, {sr(sT)}, 1\ns_mul_i32 {sr(sT)}, {sr(sT)}, 3\ns_xor_b32 s2, s2, {sr(sT)}'
    if dbgt:
        ns = 80
        a('s_memrealtime s[62:63]')
    def rts(k):
        if dbgt: a(f's_memrealtime s[{62+2*k}:{63+2*k}]\ns_waitcnt lgkmcnt(0)')
    a(f'''s_cmp_ge_u32 s2, 256
s_cbranch_scc1 {name}_done
{SWAP}
s_bfe_u32 {sr(sB)}, s2, 0x10002
s_load_dwordx4 {sr(SOUT,4)}, s[0:1], 48
s_load_dwordx2 s[6:7], s[0:1], 64
s_mul_i32 {sr(sT2)}, {sr(sB)}, 24
s_add_u32 s0, s0, {sr(sT2)}
s_addc_u32 s1, s1, 0
s_load_dwordx4 {sr(SX,4)}, s[0:1], 0
s_load_dwordx2 {sr(SWO,2)}, s[0:1], 16
v_lshrrev_b32 {vr(vT0)}, 6, v0
v_and_b32 {vr(vLane)}, 63, v0
s_lshr_b32 {sr(sT)}, s2, 3
v_readfirstlane_b32 {sr(sW)}, {vr(vT0)}
s_and_b32 {sr(sMt)}, {sr(sT)}, 7
s_lshr_b32 {sr(sHg)}, {sr(sT)}, 3
s_mul_i32 {sr(sKK)}, {sr(sHg)}, 3
s_add_u32 {sr(sKK)}, {sr(sKK)}, {sr(sMt)}
s_cmp_ge_u32 {sr(sKK)}, 10
s_cselect_b32 {sr(sT)}, 10, 0
s_sub_u32 {sr(sKK)}, {sr(sKK)}, {sr(sT)}
{f's_mov_b32 {sr(sKK)}, 0' if stag else 's_nop 0'}
s_and_b32 {sr(sT)}, s2, 1
s_lshl_b32 {sr(sT)}, {sr(sT)}, 3
s_add_u32 {sr(sMt)}, {sr(sMt)}, {sr(sT)}
s_and_b32 {sr(sT)}, s2, 2
s_lshl_b32 {sr(sT)}, {sr(sT)}, 1
s_add_u32 {sr(sHg)}, {sr(sHg)}, {sr(sT)}
s_mov_b32 {sr(sHi)}, 0
s_mov_b32 {sr(sHi+1)}, -1
s_bfe_u32 {sr(sCg)}, s2, 0x30003
s_and_b32 {sr(sMt3)}, s2, 1
s_lshl_b32 {sr(sMt3)}, {sr(sMt3)}, 2
s_and_b32 {sr(sT)}, s2, 2
s_add_u32 {sr(sMt3)}, {sr(sMt3)}, {sr(sT)}
s_lshl_b32 {sr(sMt3)}, {sr(sMt3)}, 1
s_lshr_b32 {sr(sT)}, s2, 6
s_add_u32 {sr(sMt3)}, {sr(sMt3)}, {sr(sT)}
s_lshl_b32 {sr(sT)}, {sr(sB)}, 3
s_add_u32 {sr(sT)}, {sr(sT)}, {sr(sHg)}
s_mul_i32 {sr(sKV)}, {sr(sT)}, {4*KV_HEAD}
s_mul_i32 {sr(sT3)}, {sr(sHg)}, 160
s_waitcnt lgkmcnt(0)
s_mov_b32 {sr(SWQ)}, {sr(SX+2)}
s_mov_b32 {sr(SWQ+1)}, {sr(SX+3)}
s_mov_b32 {sr(SDBG)}, {sr(SOUT+2)}
s_mov_b32 {sr(SDBG+1)}, {sr(SOUT+3)}
s_mov_b32 {sr(SWS)}, s6
s_mov_b32 {sr(SWS+1)}, s7
s_mov_b32 {sr(SX+2)}, {2048*1280}
s_mov_b32 {sr(SX+3)}, 0x20000
s_mov_b32 {sr(SWQ+2)}, {640*3840}
s_mov_b32 {sr(SWQ+3)}, 0x20000
s_mov_b32 {sr(SWS+2)}, {F_WS_END}
s_mov_b32 {sr(SWS+3)}, 0x20000
s_mov_b32 {sr(SDBG+2)}, 256
s_mov_b32 {sr(SDBG+3)}, 0x20000
s_mov_b32 {sr(SWO+2)}, {640*1280}
s_mov_b32 {sr(SWO+3)}, 0x20000
s_mov_b32 {sr(SOUT+2)}, {2048*2560}
s_mov_b32 {sr(SOUT+3)}, 0x20000''')
    st1()
    n_common = st.n
    a(f'''s_cmp_ge_u32 {sr(sW)}, 8
s_cbranch_scc1 {name}_helper''')

    def w_pattern(dst, first, last):
        a(f'''{first}
v_mul_u32_u24 {vr(vT1)}, 2185, {vr(vT0)}
v_lshrrev_b32 {vr(vT1)}, 16, {vr(vT1)}
v_mul_u32_u24 {vr(vT2)}, 30, {vr(vT1)}
v_sub_u32 {vr(vT0)}, {vr(vT0)}, {vr(vT2)}
v_and_b32 {vr(vT2)}, 0x13, {vr(vT1)}
v_bfe_u32 {vr(vT3)}, {vr(vT1)}, 2, 1
v_lshl_or_b32 {vr(vT2)}, {vr(vT3)}, 3, {vr(vT2)}
v_bfe_u32 {vr(vT3)}, {vr(vT1)}, 3, 1
v_lshl_or_b32 {vr(vT2)}, {vr(vT3)}, 2, {vr(vT2)}
v_mul_u32_u24 {vr(vT2)}, 3840, {vr(vT2)}
v_mul_u32_u24 {vr(vT1)}, 26, {vr(vT0)}
v_lshrrev_b32 {vr(vT1)}, 8, {vr(vT1)}
v_mul_u32_u24 {vr(vT1)}, {1280-160}, {vr(vT1)}
v_lshl_add_u32 {vr(vT0)}, {vr(vT0)}, 4, {vr(vT1)}
v_add3_u32 {vr(dst)}, {vr(vT0)}, {vr(vT2)}, {last}''')

    VP = VAlloc(VBASE)
    vIdx = VP()
    vaK1 = VP(); vaK2 = VP(); vaV = VP()
    vbK1 = VP(); vbK2 = VP(); vbV = VP(); vmK2 = VP(); vmV = VP()
    vQo = VP(); vQo2 = VP(); vQs1 = VP(); vQs2 = VP(); vPub = VP()
    VB2 = VP.n
    V = VAlloc(VB2)
    vEp7 = V(); vCi7 = V(); vZ7 = V()
    vXr = [[V(), V()] for _ in range(3)]
    vWa = [V() for _ in range(3)]
    vWb = [V() for _ in range(3)]
    vE = [V() for _ in range(6)]
    Xf = [[V(4), V(4)], [V(4), V(4)]]
    Wf = [[V(4) for _ in range(4)] for _ in range(2)]
    acc = [[V(4), V(4)] for _ in range(8)]
    done_alloc(V)
    vDX = Wf[0][0]; vDW = [Wf[0][0] + 1, Wf[0][0] + 2]
    a(f'''s_lshl_b32 {sr(sT)}, {sr(sMt)}, 7
s_lshl_b32 {sr(sT2)}, {sr(sW)}, 3
s_add_u32 {sr(sT)}, {sr(sT)}, {sr(sT2)}
v_lshrrev_b32 {vr(vT0)}, 3, {vr(vLane)}
v_add_u32 {vr(vT0)}, {sr(sT)}, {vr(vT0)}
v_mul_u32_u24 {vr(vT0)}, 1280, {vr(vT0)}
s_and_b32 {sr(sT)}, {sr(sW)}, 1
s_lshl_b32 {sr(sT)}, {sr(sT)}, 2
v_lshrrev_b32 {vr(vT1)}, 4, {vr(vLane)}
v_add_u32 {vr(vT2)}, {sr(sT)}, {vr(vT1)}
v_and_b32 {vr(vT3)}, 7, {vr(vLane)}
v_xor_b32 {vr(vT2)}, {vr(vT2)}, {vr(vT3)}
v_lshl_add_u32 {vr(vDX)}, {vr(vT2)}, 4, {vr(vT0)}
s_lshl_b32 {sr(sM0a)}, {sr(sW)}, 10
s_lshl_b32 {sr(sXo)}, {sr(sKK)}, 7
s_mul_i32 {sr(sWo)}, {sr(sKK)}, {64*3840}
s_mov_b32 m0, {sr(sM0a)}
s_add_u32 {sr(sT)}, {sr(sXo)}, 81920
buffer_load_dwordx4 {vr(vDX)}, {sr(SX,4)}, {sr(sXo)} offen lds
s_add_u32 m0, {sr(sM0a)}, 8192
s_add_u32 {sr(sT2)}, {sr(sW)}, 8
buffer_load_dwordx4 {vr(vDX)}, {sr(SX,4)}, {sr(sT)} offen lds
s_cmp_eq_u32 {sr(sW)}, 7
s_cselect_b32 {sr(sT2)}, 7, {sr(sT2)}
s_lshl_b32 {sr(sM0b)}, {sr(sT2)}, 10''')
    for pi, sm in ((0, sM0a), (1, sM0b)):
        a(f's_lshr_b32 {sr(sT)}, {sr(sm)}, 4')
        w_pattern(vDW[pi], f'v_add_u32 {vr(vT0)}, {sr(sT)}, {vr(vLane)}', sr(sT3))
        for half in range(2):
            a(f's_add_u32 m0, {sr(sm)}, {XSZ + half*15360}')
            a(f's_add_u32 {sr(sT)}, {sr(sWo)}, {half*32*3840}')
            a(f'buffer_load_dwordx4 {vr(vDW[pi])}, {sr(SWQ,4)}, {sr(sT)} offen lds')
    st1()
    a('s_barrier')
    st1()
    a(f'''s_cmp_eq_u32 {sr(sW)}, 7
s_cselect_b32 {sr(sM)}, 1, 0
s_mov_b32 {sr(sM+1)}, 0
v_mov_b32 {vr(vT1)}, {OOB}
v_cndmask_b32_e64 {vr(vZ7)}, {vr(vT1)}, 0, {sr(sM,2)}
v_mov_b32 {vr(vT0)}, {F_EPOCH}
buffer_load_dword {vr(vEp7)}, {vr(vT0)}, {sr(SWS,4)}, 0 offen{SC}''')
    a(f'''s_and_b32 {sr(sT)}, {sr(sW)}, 3
s_lshl_b32 {sr(sT)}, {sr(sT)}, 5
v_and_b32 {vr(vT0)}, 15, {vr(vLane)}
v_lshrrev_b32 {vr(vT1)}, 4, {vr(vLane)}
v_lshrrev_b32 {vr(vT2)}, 1, {vr(vT0)}
v_xor_b32 {vr(vT2)}, {vr(vT2)}, {vr(vT1)}
v_add_u32 {vr(vT0)}, {sr(sT)}, {vr(vT0)}
v_lshlrev_b32 {vr(vT0)}, 7, {vr(vT0)}
v_lshl_add_u32 {vr(vXr[0][0])}, {vr(vT2)}, 4, {vr(vT0)}
v_xor_b32 {vr(vXr[0][1])}, 64, {vr(vXr[0][0])}
v_lshrrev_b32 {vr(vT0)}, 5, {vr(vLane)}
v_lshlrev_b32 {vr(vT0)}, 4, {vr(vT0)}
v_bfe_u32 {vr(vT2)}, {vr(vLane)}, 4, 1
v_lshl_add_u32 {vr(vT0)}, {vr(vT2)}, 2, {vr(vT0)}
v_bfe_u32 {vr(vT2)}, {vr(vLane)}, 2, 2
v_add_u32 {vr(vT0)}, {vr(vT0)}, {vr(vT2)}
v_mul_u32_u24 {vr(vT0)}, 480, {vr(vT0)}
v_add_u32 {vr(vT5)}, {XSZ}, {vr(vT0)}
v_bfe_u32 {vr(vT2)}, {vr(vLane)}, 1, 1
v_mul_u32_u24 {vr(vT2)}, 40, {vr(vT2)}
v_and_b32 {vr(vT3)}, 1, {vr(vLane)}
v_lshl_add_u32 {vr(vT2)}, {vr(vT3)}, 4, {vr(vT2)}
v_add_u32 {vr(vWa[0])}, {vr(vT5)}, {vr(vT2)}
s_cmp_ge_u32 {sr(sW)}, 4
s_cselect_b32 {sr(sT)}, 8, 40
v_and_b32 {vr(vT2)}, 3, {vr(vLane)}
v_mad_u32_u24 {vr(vWb[0])}, {vr(vT2)}, {sr(sT)}, {vr(vT5)}''')
    for s_ in (1, 2):
        a(f'v_add_u32 {vr(vXr[s_][0])}, {s_*STG}, {vr(vXr[0][0])}')
        a(f'v_add_u32 {vr(vXr[s_][1])}, {s_*STG}, {vr(vXr[0][1])}')
        a(f'v_add_u32 {vr(vWa[s_])}, {s_*STG}, {vr(vWa[0])}')
        a(f'v_add_u32 {vr(vWb[s_])}, {s_*STG}, {vr(vWb[0])}')
    a(f'''s_lshr_b32 {sr(sT)}, {sr(sW)}, 1
s_mul_i32 {sr(sT2)}, {sr(sT)}, 10240
v_lshlrev_b32 {vr(vQo)}, 4, {vr(vLane)}
v_lshlrev_b32 {vr(vT0)}, 3, {vr(vLane)}
v_add_u32 {vr(vT0)}, 1024, {vr(vT0)}
v_mov_b32 {vr(vT1)}, {OOB}
v_cndmask_b32_e64 {vr(vQo2)}, {vr(vT0)}, {vr(vT1)}, {sr(sHi,2)}
v_add_u32 {vr(vbK1)}, {sr(sT2)}, {vr(vQo)}
v_add_u32 {vr(vT0)}, {sr(sT2)}, {vr(vT0)}
v_mov_b32 {vr(vT1)}, {ONES}
v_cndmask_b32_e64 {vr(vbK2)}, {vr(vT0)}, {vr(vT1)}, {sr(sHi,2)}
v_cndmask_b32_e64 {vr(vmK2)}, 1, 0, {sr(sHi,2)}
v_and_b32 {vr(vT2)}, 31, {vr(vLane)}
v_lshrrev_b32 {vr(vT3)}, 5, {vr(vLane)}
v_mul_u32_u24 {vr(vT3)}, 320, {vr(vT3)}
v_lshl_add_u32 {vr(vT3)}, {vr(vT2)}, 4, {vr(vT3)}
s_add_u32 {sr(sT3)}, {sr(sT2)}, 1280
v_add_u32 {vr(vT3)}, {sr(sT3)}, {vr(vT3)}
v_cmp_gt_u32 vcc, 20, {vr(vT2)}
v_mov_b32 {vr(vIdx)}, 0xdddddddd
v_mov_b32 {vr(vaK1)}, {vr(vbK1)}
v_cndmask_b32 {vr(vbV)}, {vr(vT1)}, {vr(vT3)}, vcc
v_cndmask_b32_e64 {vr(vmV)}, 0, 1, vcc
v_cmp_lt_u32 vcc, 20, {vr(vT2)}
v_add_u32 {vr(vT3)}, 16, {vr(vT1)}
v_mov_b32 {vr(vaK2)}, {vr(vbK2)}
v_cndmask_b32 {vr(vbV)}, {vr(vbV)}, {vr(vT3)}, vcc
v_mov_b32 {vr(vaV)}, {vr(vbV)}
s_mul_i32 {sr(sT2)}, {sr(sW)}, 2560
s_add_u32 {sr(sT2)}, {sr(sT2)}, {QST}
v_add_u32 {vr(vQs1)}, {sr(sT2)}, {vr(vQo)}
v_and_b32 {vr(vQs2)}, 31, {vr(vLane)}
v_lshlrev_b32 {vr(vQs2)}, 3, {vr(vQs2)}
s_add_u32 {sr(sT2)}, {sr(sT2)}, 1024
v_add_u32 {vr(vQs2)}, {sr(sT2)}, {vr(vQs2)}
s_lshl_b32 {sr(sT2)}, {sr(sB)}, 4
s_add_u32 {sr(sT2)}, {sr(sT2)}, {sr(sMt)}
s_lshl_b32 {sr(sT2)}, {sr(sT2)}, 1
s_and_b32 {sr(sT3)}, {sr(sW)}, 1
s_add_u32 {sr(sT2)}, {sr(sT2)}, {sr(sT3)}
s_lshl_b32 {sr(sT2)}, {sr(sT2)}, 5
s_lshl_b32 {sr(sT3)}, {sr(sHg)}, 2
s_add_u32 {sr(sT2)}, {sr(sT2)}, {sr(sT3)}
s_add_u32 {sr(sT2)}, {sr(sT2)}, {sr(sT)}
s_mul_i32 {sr(sOo)}, {sr(sT2)}, 2560
s_add_u32 {sr(sOo)}, {sr(sOo)}, {F_WS_O}
s_mul_i32 {sr(sT)}, {sr(sT)}, {KV_HEAD}
s_add_u32 {sr(sKV)}, {sr(sKV)}, {sr(sT)}
s_and_b32 {sr(sT)}, {sr(sW)}, 1
s_mul_i32 {sr(sT)}, {sr(sT)}, 5120
v_add_u32 {vr(vPub)}, {sr(sT)}, {vr(vbK1)}
s_mul_i32 {sr(sT2)}, {sr(sMt)}, 10240
s_add_u32 {sr(sT)}, {sr(sT)}, {sr(sT2)}
s_add_u32 {sr(sPub)}, {sr(sT)}, {sr(sKV)}
s_add_u32 {sr(sPub2)}, {sr(sPub)}, 4096''')
    for ct in range(8):
        for tt in range(2):
            for i in range(4):
                a(f'v_mov_b32 {vr(acc[ct][tt]+i)}, 0')
    a(f'''s_mov_b32 {sr(sScale)}, {QSCALE}
s_mov_b32 {sr(sScale+1)}, {QSCALE}
s_and_b32 {sr(sT3)}, {sr(sW)}, 3
v_and_b32 {vr(vT0)}, 15, {vr(vLane)}
v_lshrrev_b32 {vr(vT1)}, 4, {vr(vLane)}
v_lshrrev_b32 {vr(vT2)}, 2, {vr(vT0)}
v_and_b32 {vr(vT3)}, 3, {vr(vT0)}
v_lshl_add_u32 {vr(vT4)}, {vr(vT2)}, 3, {vr(vT3)}
v_lshrrev_b32 {vr(vT2)}, 1, {vr(vT1)}
v_and_b32 {vr(vT3)}, 1, {vr(vT1)}
s_mul_i32 {sr(sT)}, {sr(sT3)}, 2560
v_mul_u32_u24 {vr(vE[0])}, 10240, {vr(vT2)}
v_lshl_add_u32 {vr(vE[0])}, {vr(vT3)}, 9, {vr(vE[0])}
v_lshl_add_u32 {vr(vE[0])}, {vr(vT4)}, 4, {vr(vE[0])}
v_add_u32 {vr(vE[0])}, {sr(sT)}, {vr(vE[0])}
s_cmp_ge_u32 {sr(sW)}, 4
s_cbranch_scc1 {name}_p1b''')

    def p1_variant(wn):
        if wn == 0:
            kinds = [('P', 0, 0, 0), ('P', 0, 0, 1), ('P', 0, 1, 0), ('P', 0, 1, 1), ('T', 0, 0, 0), ('P', 1, 0, 0), ('P', 1, 0, 1), ('T', 1, 0, 0)]
            a(f'''s_add_u32 {sr(sT2)}, {sr(sT)}, 1024
v_mul_u32_u24 {vr(vE[1])}, 10240, {vr(vT1)}
v_lshl_add_u32 {vr(vE[1])}, {vr(vT4)}, 3, {vr(vE[1])}
v_add_u32 {vr(vE[1])}, {sr(sT2)}, {vr(vE[1])}
s_mul_i32 {sr(sT)}, {sr(sT3)}, 1280
s_add_u32 {sr(sT)}, {sr(sT)}, {QST}
v_mul_u32_u24 {vr(vE[2])}, 5120, {vr(vT2)}
v_lshl_add_u32 {vr(vE[2])}, {vr(vT3)}, 9, {vr(vE[2])}
v_lshl_add_u32 {vr(vE[2])}, {vr(vT0)}, 4, {vr(vE[2])}
v_add_u32 {vr(vE[2])}, {sr(sT)}, {vr(vE[2])}
s_add_u32 {sr(sT)}, {sr(sT)}, 1024
v_mul_u32_u24 {vr(vE[3])}, 5120, {vr(vT1)}
v_lshl_add_u32 {vr(vE[3])}, {vr(vT0)}, 3, {vr(vE[3])}
v_add_u32 {vr(vE[3])}, {sr(sT)}, {vr(vE[3])}''')
        else:
            kinds = [('P', 1, 1, 0), ('P', 1, 1, 1)] + [('V', 2, i, 0) for i in range(5)]
            a(f'''s_add_u32 {sr(sT)}, {sr(sT)}, 1280
v_mul_u32_u24 {vr(vT2)}, 640, {vr(vT2)}
v_mul_u32_u24 {vr(vT3)}, 320, {vr(vT3)}
v_add3_u32 {vr(vT5)}, {vr(vT2)}, {vr(vT3)}, {sr(sT)}''')
            for i in range(5):
                a(f'''v_add_u32 {vr(vT2)}, {16*i}, {vr(vT0)}
v_mul_u32_u24 {vr(vT3)}, 3277, {vr(vT2)}
v_lshrrev_b32 {vr(vT3)}, 16, {vr(vT3)}
v_mul_u32_u24 {vr(vT3)}, {10240-320}, {vr(vT3)}
v_lshl_add_u32 {vr(vT2)}, {vr(vT2)}, 4, {vr(vT3)}
v_add_u32 {vr(vE[1+i])}, {vr(vT2)}, {vr(vT5)}''')
        nct = len(kinds)
        grp = [list(range(0, 4)), list(range(4, nct))]
        def rd_x(step, s2):
            return [f'ds_read_b128 {vr(Xf[s2][tt],4)}, {vr(vXr[step%3][s2])} offset:{tt*2048}' for tt in range(2)]
        def rd_w(step, s2, h, idx):
            ty, sec, sub, e = kinds[grp[h][idx]]
            base = (vWa if ty == 'P' else vWb)[step % 3]
            col = sec*160 + {'P': sub*80 + e*8, 'T': 32, 'V': sub*32}[ty]
            return [f'ds_read_b64_tr_b16 {vr(Wf[h][idx]+2*rd,2)}, {vr(base)} offset:{(32*s2+8*rd)*480 + col}' for rd in range(2)]
        def mf(s2, h, idx):
            ct = grp[h][idx]
            out = []
            for tt in range(2):
                A, B = Wf[h][idx], Xf[s2][tt]
                if kinds[ct][0] == 'V':
                    A, B = B, A
                out.append(f'v_mfma_f32_16x16x32_bf16 {vr(acc[ct][tt],4)}, {vr(A,4)}, {vr(B,4)}, {vr(acc[ct][tt],4)}')
            return out
        n0, n1 = 2 + 2*len(grp[0]), 2*len(grp[1])
        def phase(s2, h, nxt):
            if nxt is not None and h == 0:
                for r in rd_x(*nxt): a(r)
            for idx in range(len(grp[h])):
                for m in mf(s2, h, idx): a(m)
                if nxt is not None:
                    for r in rd_w(nxt[0], nxt[1], h, idx): a(r)
        st1()
        a('s_waitcnt vmcnt(0)')
        a(f'v_readfirstlane_b32 {sr(sTag)}, {vr(vEp7)}')
        a('s_barrier')
        a(f's_add_u32 {sr(sTag)}, {sr(sTag)}, {TAGK}')
        rts(1)
        st()
        for r in rd_x(0, 0): a(r)
        for h in range(2):
            for idx in range(len(grp[h])):
                for r in rd_w(0, 0, h, idx): a(r)
        for step in range(10):
            if step == 9 and hsplit:
                a('s_barrier')
            a(f's_waitcnt lgkmcnt({n1})')
            phase(0, 0, (step, 1))
            a(f's_waitcnt lgkmcnt({n0})')
            phase(0, 1, (step, 1))
            a('s_waitcnt lgkmcnt(0)')
            a('s_barrier')
            if step == 0 and wn == 1:
                a(f'v_mov_b32 {vr(vCi7)}, 1')
                a(f'buffer_atomic_add {vr(vCi7)}, {vr(vZ7)}, {sr(SDBG,4)}, 0 offen sc0')
            if step in (0, 4): st0()
            if step in (0, 1, 2, 8): st1()
            if step in (8, 9): st4()
            nx = (step + 1, 0) if step < 9 else None
            phase(1, 0, nx)
            phase(1, 1, nx)
        st0(); st4()
        rts(2)
        if wn == 1:
            a(f'''s_waitcnt vmcnt(0)
v_cmp_eq_u32 vcc, 255, {vr(vCi7)}
v_add_u32 {vr(vEp7)}, {TAGK}, {vr(vEp7)}
v_mov_b32 {vr(vT1)}, {OOB}
s_mov_b32 {sr(sT)}, {F_EPOCH}
v_cndmask_b32 {vr(vZ7)}, {vr(vT1)}, {vr(vZ7)}, vcc
buffer_store_dword {vr(vEp7)}, {vr(vZ7)}, {sr(SWS,4)}, {sr(sT)} offen{SC}''')
        def scale(r0):
            a(f'v_pk_mul_f32 {vr(r0,2)}, {vr(r0,2)}, {sr(sScale,2)}')
            a(f'v_pk_mul_f32 {vr(r0+2,2)}, {vr(r0+2,2)}, {sr(sScale,2)}')
        def pack4(d, x, y):
            a(f'v_cvt_pk_bf16_f32 {vr(d)}, {vr(x)}, {vr(x+1)}')
            a(f'v_cvt_pk_bf16_f32 {vr(d+1)}, {vr(x+2)}, {vr(x+3)}')
            if y is not None:
                a(f'v_cvt_pk_bf16_f32 {vr(d+2)}, {vr(y)}, {vr(y+1)}')
                a(f'v_cvt_pk_bf16_f32 {vr(d+3)}, {vr(y+2)}, {vr(y+3)}')
        def stage(want):
          ct = 0
          while ct < nct:
            ty, sec, sub, e = kinds[ct]
            if (sec == 0) != want:
                ct += 1
                continue
            if ty == 'P':
                for tt in range(2):
                    x, y = acc[ct][tt], acc[ct+1][tt]
                    if sec == 0:
                        scale(x); scale(y)
                    pack4(x, x, y)
                    if sec == 0:
                        a(f'ds_write_b128 {vr(vE[2])}, {vr(x,4)} offset:{sub*10240 + tt*256}')
                    else:
                        a(f'ds_write_b128 {vr(vE[0])}, {vr(x,4)} offset:{sub*20480 + tt*64}')
                ct += 2
            elif ty == 'T':
                for tt in range(2):
                    x = acc[ct][tt]
                    if sec == 0:
                        scale(x)
                    pack4(x, x, None)
                    if sec == 0:
                        a(f'ds_write_b64 {vr(vE[3])}, {vr(x,2)} offset:{tt*128}')
                    else:
                        a(f'ds_write_b64 {vr(vE[1])}, {vr(x,2)} offset:{tt*32}')
                ct += 1
            else:
                x, y = acc[ct][0], acc[ct][1]
                pack4(x, x, y)
                a(f'ds_write_b128 {vr(vE[1+sub])}, {vr(x,4)}')
                ct += 1
        stage(False)
        a('s_waitcnt lgkmcnt(0)')
        st4()
        a('s_barrier')
        st4()
        PB = Xf[0][0]
        assert Wf[0][0] == PB + 16
        for q in range(5):
            a(f'ds_read_b128 {vr(PB+4*q,4)}, {vr(vPub)} offset:{q*1024}')
        stage(True)
        nq = 6 if wn == 0 else 0
        for q in range(5):
            a(f's_waitcnt lgkmcnt({4 - q + nq})')
            a(f'buffer_store_dwordx4 {vr(PB+4*q,4)}, {vr(vQo)}, {sr(SWS,4)}, {sr(sPub if q < 4 else sPub2)} offen offset:{(q%4)*1024}{SST}')
        a('s_nop 1')
        st4()
    n_st = st.n
    p1_variant(0)
    a(f's_branch {name}_p2')
    a.label(f'{name}_p1b')
    st.n = n_st
    p1_variant(1)
    a.label(f'{name}_p2')

    V = VAlloc(VB2 + 3)
    Q1 = [V(4), V(4)]; Q2 = [V(2), V(2)]
    K1 = [V(4), V(4)]; K2 = [V(2), V(2)]
    V0 = [V(4), V(4)]; V1 = [V(4), V(4)]
    O = [V(16), V(16)]
    S = [V(16), V(16)]
    vPw = V(2); vPa = V(); vPo_ = V(); vPg = V()
    done_alloc(V)
    for t in range(2):
        for i in range(16):
            a(f'v_mov_b32 {vr(O[t]+i)}, 0')
    for i in range(4):
        a(f'v_mov_b32 {vr(V1[1]+i)}, 0')
    a(f's_mov_b32 {sr(sG)}, 0')
    a(f's_mov_b32 {sr(sOff)}, 0')
    if nobar:
        a(f'''s_lshl_b32 {sr(sT)}, {sr(sW)}, 3
s_add_u32 {sr(sT2)}, {sr(sT)}, {LW_PW + 4}
s_xor_b32 {sr(sT)}, {sr(sT)}, 32
s_add_u32 {sr(sT)}, {sr(sT)}, {LW_PW}
v_mov_b32 {vr(vPa)}, {sr(sT)}
v_mov_b32 {vr(vPo_)}, {sr(sT2)}
v_mov_b32 {vr(vPg)}, 0''')
    a('s_waitcnt lgkmcnt(0)')
    a('s_barrier')
    st0(); st4()
    def rdK(s_, u, part='R'):
        if part != 'Rb': a(f'ds_read_b128 {vr(K1[s_],4)}, {vr(vaK1)} offset:{2560*u}')
        if part != 'Ra': a(f'ds_read_b64 {vr(K2[s_],2)}, {vr(vaK2)} offset:{2560*u}')
    def rdV(s_, u, part='R'):
        if part != 'Rb': a(f'ds_read_b128 {vr(V0[s_],4)}, {vr(vaV)} offset:{2560*u}')
        if part != 'Ra': a(f'ds_read_b128 {vr(V1[s_],4)}, {vr(vaV)} offset:{2560*u+640}')
    def qk16(t, s_):
        a(f'v_mfma_f32_32x32x16_bf16 {vr(S[t],16)}, {vr(K1[s_],4)}, {vr(Q1[t],4)}, 0')
    def qk8(t, s_):
        a(f'v_mfma_f32_32x32x8_bf16 {vr(S[t],16)}, {vr(K2[s_],2)}, {vr(Q2[t],2)}, {vr(S[t],16)}')
    def pv(t, s_, n):
        Vf = (V0, V1)[n][s_]
        a(f'v_smfmac_f32_32x32x32_bf16 {vr(O[t],16)}, {vr(Vf,4)}, {vr(S[t]+8*n,8)}, {vr(vIdx)}')
    def rowmax(t, dst):
        s = S[t]
        a(f'v_max3_f32 {vr(dst)}, {vr(s)}, {vr(s+1)}, {vr(s+2)}')
        for i in range(3, 15, 2):
            a(f'v_max3_f32 {vr(dst)}, {vr(dst)}, {vr(s+i)}, {vr(s+i+1)}')
        a(f'v_max_f32 {vr(dst)}, {vr(dst)}, {vr(s+15)}')
    def crosshalf(x, y):
        a(f'v_mov_b32 {vr(y)}, {vr(x)}')
        a('s_nop 1')
        a(f'v_permlane32_swap_b32 {vr(x)}, {vr(y)}')
        a('s_nop 1')
    for t in range(2):
        a(f'ds_read_b128 {vr(Q1[t],4)}, {vr(vQs1)} offset:{1280*t}')
        a(f'ds_read_b64 {vr(Q2[t],2)}, {vr(vQs2)} offset:{1280*t}')
    rdK(0, 0); rdK(1, 1); rdV(0, 0)
    a('s_waitcnt lgkmcnt(4)')
    for t in range(2):
        a(f'v_cndmask_b32_e64 {vr(Q2[t])}, {vr(Q2[t])}, 0, {sr(sHi,2)}')
        a(f'v_cndmask_b32_e64 {vr(Q2[t]+1)}, {vr(Q2[t]+1)}, 0, {sr(sHi,2)}')
    qk16(0, 0); qk8(0, 0); qk16(1, 0); qk8(1, 0)
    a('s_nop 9')
    for t in range(2):
        if t == 1: a('s_nop 1')
        rowmax(t, vT0)
        crosshalf(vT0, vT1)
        a(f'''v_max_f32 {vr(vT0)}, {vr(vT0)}, {vr(vT1)}
v_sub_f32 {vr(vT0)}, 0, {vr(vT0)}
v_and_b32 {vr(vT1)}, 0xffff0000, {vr(vT0)}
v_sub_f32 {vr(vT0)}, {vr(vT0)}, {vr(vT1)}
v_and_b32 {vr(vT2)}, 0xffff0000, {vr(vT0)}
v_sub_f32 {vr(vT0)}, {vr(vT0)}, {vr(vT2)}
v_lshrrev_b32 {vr(vT1)}, 16, {vr(vT1)}
v_or_b32 {vr(vT1)}, {vr(vT1)}, {vr(vT2)}
v_lshrrev_b32 {vr(vT0)}, 16, {vr(vT0)}
v_cndmask_b32_e64 {vr(Q2[t])}, {vr(Q2[t])}, {vr(vT1)}, {sr(sHi,2)}
v_cndmask_b32_e64 {vr(Q2[t]+1)}, {vr(Q2[t]+1)}, {vr(vT0)}, {sr(sHi,2)}''')
        if t == 0:
            qk16(0, 0)
            a('s_nop 0')
            qk8(0, 0)
    for i in range(8, 16):
        a(f'v_mov_b32 {vr(S[1]+i)}, 0')
    st4()
    a(f'''s_lshl_b32 {sr(sT)}, {sr(sB)}, 3
s_add_u32 {sr(sT)}, {sr(sT)}, {sr(sHg)}
s_lshl_b32 {sr(sT)}, {sr(sT)}, 6
s_add_u32 {sr(sT)}, {sr(sT)}, {sr(sMt)}
s_lshl_b32 {sr(sT)}, {sr(sT)}, 2
s_add_u32 {sr(sT)}, {sr(sT)}, {F_FLAG1}
s_mov_b64 exec, 1
v_mov_b32 {vr(vT0)}, 1
v_mov_b32 {vr(vT2)}, {LW_CNT1}
v_mov_b32 {vr(vT1)}, {sr(sTag)}
v_mov_b32 {vr(vT3)}, {sr(sT)}
s_waitcnt vmcnt(0)
ds_add_rtn_u32 {vr(vT0)}, {vr(vT2)}, {vr(vT0)}
s_waitcnt lgkmcnt(0)
v_readfirstlane_b32 {sr(sT)}, {vr(vT0)}
s_cmp_eq_u32 {sr(sT)}, 7
s_cbranch_scc0 {name}_nl1
buffer_store_dword {vr(vT1)}, {vr(vT3)}, {sr(SWS,4)}, 0 offen{SC}''')
    a.label(f'{name}_nl1')
    a('s_mov_b64 exec, -1')
    prio = opts.get('prio', 1)
    rts(3)
    st0(); st4()
    if sset == 2: st()
    a('.p2align 6')
    a.label(f'{name}_loop')
    def ex(t, i):
        a(f'v_exp_f32 {vr(S[t]+i)}, {vr(S[t]+i)}')
    scheds = {1: 'e e P2 e e e e Q16 e e e e Q8 R e e e e P1 W e e',
              2: 'e e P2 e e e e Q16 e e e Q8 R e e e e e P1 W e e',
              3: 'e e P2 e e e e Q16 e e e e Q8 e R e e e P1 e W e',
              4: 'e e P2 e e e Q16 e e e e Q8 R e e e e P1 W e e e',
              5: 'e e W P2 e e e e Ra Q16 e e e e Rb Q8 e e e e P1 e e',
              6: 'e e W P2 e e e e R Q16 e e e e Q8 e e e e P1 e e',
              7: 'e e W P2 e e e e Q16 e e e e Ra Q8 e e e e Rb P1 e e',
              8: 'e e P2 e e e e Ra Q16 e e e e Rb Q8 e e e e W P1 e e',
              9: 'e e P2 e e e e Q16 e e e e Q8 e e e e R W P1 e e',
              10: 'e e P2 Ra e e e e Q16 Rb e e e e Q8 W e e e e P1 e e',
              11: 'e e P2 Ra e e e e Q16 Rb e e e e Q8 e e e e P1 W e e',
              12: 'e e P2 R e e e e Q16 e e e e Q8 e e e e P1 W e e'}
    sched = scheds[opts.get('sched', 11)].split()
    unroll = opts.get('unroll', 1)
    ptab = {1: {(0, 0): 2, (1, 0): 1, (2, 0): 0, (3, 0): 3},
            2: {(3, 0): 1, (1, 0): 0},
            3: {(3, 0): 3, (3, 1): 2, (0, 1): 1, (1, 1): 0},
            6: {(3, 0): 3, (0, 1): 2, (1, 1): 1, (2, 0): 0}}.get(prio, {})
    for rep in range(unroll):
      for j in range(4):
        for t in range(2):
            pj = j if t == 1 else j - 1
            nj = j if t == 0 else j + 1
            if (j, t) in ptab and nobar != 1:
                a(f's_setprio {ptab[(j, t)]}')
            e = 0
            for tok in sched:
                if tok == 'e':
                    ex(t, e); e += 1
                elif tok == 'P2':
                    pv(1 - t, pj % 2, 1)
                elif tok == 'P1':
                    pv(t, j % 2, 0)
                elif tok == 'Q16':
                    qk16(1 - t, nj % 2)
                elif tok == 'Q8':
                    qk8(1 - t, nj % 2)
                elif tok == 'W':
                    a(f's_waitcnt lgkmcnt({3 if nobar and (j, t) in ((2, 0), (2, 1)) else 2})')
                elif tok == 'Rb':
                    if t == 0: rdV((j + 1) % 2, (j + 1) % 4, 'Rb')
                    else: rdK(j % 2, (j + 2) % 4, 'Rb')
                elif tok in ('R', 'Ra'):
                    if t == 0:
                        if j == 3:
                            a(f'v_mad_u32_u24 {vr(vaV)}, {vr(vmV)}, {sr(sOff)}, {vr(vbV)}')
                        rdV((j + 1) % 2, (j + 1) % 4, tok)
                        if j == 2 and nobar:
                            a(f'ds_read_b64 {vr(vPw,2)}, {vr(vPa)}')
                    else:
                        if j == 2:
                            a(f'''s_add_u32 {sr(sOff)}, {sr(sOff)}, {SLOT}
s_cmp_ge_u32 {sr(sOff)}, {3*SLOT}
s_cselect_b32 {sr(sOff)}, 0, {sr(sOff)}''')
                            if nobar:
                                a(f'''v_add_u32 {vr(vPg)}, 1, {vr(vPg)}
s_add_u32 {sr(sT3)}, {sr(sG)}, {rep + 1}
s_waitcnt lgkmcnt(0)
v_readfirstlane_b32 {sr(sT)}, {vr(vPw)}
v_readfirstlane_b32 {sr(sT2)}, {vr(vPw+1)}
ds_write_b32 {vr(vPo_)}, {vr(vPg)}''')
                                if nobar == 1:
                                    a(f'''s_setprio 0
s_cmp_lt_u32 {sr(sT2)}, {sr(sT3)}
s_cbranch_scc1 {name}_lo{rep}
s_setprio 1''')
                                    a.label(f'{name}_lo{rep}')
                                elif nobar == 2:
                                    a(f's_add_u32 {sr(sT2)}, {sr(sT2)}, {1 + opts.get("slack", 0)}')
                                    a(f's_min_u32 {sr(sT)}, {sr(sT)}, {sr(sT2)}')
                                a(f's_cmp_gt_u32 {sr(sT)}, {sr(sT3)}')
                                a(f's_cbranch_scc0 {name}_spin{rep}')
                                a.label(f'{name}_spun{rep}')
                            else:
                                a('s_waitcnt lgkmcnt(0)')
                                a('s_barrier')
                            if sset == 2 and st.on:
                                for K in (0, 1, 2, 3, 8, 14):
                                    a(f's_cmp_eq_u32 {sr(sG)}, {K}')
                                    a(f's_cbranch_scc0 {name}_sk{K}')
                                    st()
                                    a.label(f'{name}_sk{K}')
                            a(f'''v_add_u32 {vr(vaK1)}, {sr(sOff)}, {vr(vbK1)}
v_mad_u32_u24 {vr(vaK2)}, {vr(vmK2)}, {sr(sOff)}, {vr(vbK2)}''')
                        rdK(j % 2, (j + 2) % 4, tok)
            assert e == 16
    a(f'''s_add_u32 {sr(sG)}, {sr(sG)}, {unroll}
s_cmp_lt_u32 {sr(sG)}, 16
s_cbranch_scc1 {name}_loop''')
    a('s_nop 1')
    pv(1, 1, 1)
    if ptab or nobar:
        a('s_setprio 0')
    st0()
    if sset in (2, 3): st()
    L = [vT2, vT3]
    rts(4)
    a('s_waitcnt lgkmcnt(0)')
    a(f's_mov_b32 {sr(sI)}, 0')
    a.label(f'{name}_store')
    a(f's_mov_b32 {sr(sM)}, 0xaaaaaaaa')
    a(f's_mov_b32 {sr(sM+1)}, 0xaaaaaaaa')
    for t in range(2):
        a(f'v_mov_b32 {vr(vT0)}, {vr(O[t]+8)}')
        crosshalf(vT0, L[t])
        a(f'v_rcp_f32 {vr(vT0)}, {vr(L[t])}')
        a('s_nop 0')
        for i in range(12):
            a(f'v_mul_f32 {vr(O[t]+i)}, {vr(O[t]+i)}, {vr(vT0)}')
        for i in range(4):
            a(f'v_cvt_pk_bf16_f32 {vr(S[t]+i)}, {vr(O[t]+2*i)}, {vr(O[t]+2*i+1)}')
        a(f'buffer_store_dwordx4 {vr(S[t],4)}, {vr(vQo)}, {sr(SWS,4)}, {sr(sOo)} offen offset:{1024*t}{SST}')
        for i in range(2):
            a(f'v_cvt_pk_bf16_f32 {vr(S[0]+4+2*t+i)}, {vr(O[t]+8+2*i)}, {vr(O[t]+8+2*i+1)}')
    ta, tb, X, Y = S[0]+4, S[0]+6, S[0]+8, S[0]+12
    a(f'''v_cndmask_b32_e64 {vr(X)}, {vr(tb)}, {vr(ta)}, {sr(sM,2)}
v_cndmask_b32_e64 {vr(X+1)}, {vr(tb+1)}, {vr(ta+1)}, {sr(sM,2)}
v_lshrrev_b32 {vr(vT0)}, 1, {vr(vLane)}
v_and_b32 {vr(vT1)}, 1, {vr(vLane)}
v_mov_b32_dpp {vr(X+2)}, {vr(X)} quad_perm:[1,0,3,2] row_mask:0xf bank_mask:0xf
v_mov_b32_dpp {vr(X+3)}, {vr(X+1)} quad_perm:[1,0,3,2] row_mask:0xf bank_mask:0xf
v_lshlrev_b32 {vr(vT0)}, 4, {vr(vT0)}
v_lshl_add_u32 {vr(vT0)}, {vr(vT1)}, 8, {vr(vT0)}
v_mov_b32 {vr(vT1)}, {OOB}
v_cndmask_b32_e64 {vr(Y)}, {vr(ta)}, {vr(X+2)}, {sr(sM,2)}
v_cndmask_b32_e64 {vr(Y+1)}, {vr(ta+1)}, {vr(X+3)}, {sr(sM,2)}
v_cndmask_b32_e64 {vr(Y+2)}, {vr(X+2)}, {vr(tb)}, {sr(sM,2)}
v_cndmask_b32_e64 {vr(Y+3)}, {vr(X+3)}, {vr(tb+1)}, {sr(sM,2)}
v_cndmask_b32_e64 {vr(vT0)}, {vr(vT0)}, {vr(vT1)}, {sr(sHi,2)}
buffer_store_dwordx4 {vr(Y,4)}, {vr(vT0)}, {sr(SWS,4)}, {sr(sOo)} offen offset:2048{SST}''')
    st0()
    for t in range(2):
        sm = sM if t == 0 else sM2
        a(f'v_mul_f32 {vr(vT1)}, 0, {vr(O[t])}')
        for i in range(1, 12):
            a(f'v_fmac_f32 {vr(vT1)}, 0, {vr(O[t]+i)}')
        a(f'v_add_f32 {vr(vT1)}, {vr(vT1)}, {vr(L[t])}')
        a(f'v_cmp_gt_f32 vcc, 0x53800000, {vr(vT1)}')
        a(f's_mov_b64 {sr(sm,2)}, vcc')
        a(f'v_cmp_lt_f32 vcc, 0x35800000, {vr(vT1)}')
        a(f's_and_b64 {sr(sm,2)}, {sr(sm,2)}, vcc')
    a(f'''s_and_b64 {sr(sM,2)}, {sr(sM,2)}, {sr(sM2,2)}
s_cmp_eq_u64 {sr(sM,2)}, -1
s_cselect_b32 {sr(sT)}, 1, {sr(sI)}
s_cmp_eq_u32 {sr(sT)}, 0
s_cbranch_scc1 {name}_fallback''')

    V = VAlloc(VBASE)
    vAo = V(); vAt = V(); vWm0 = V(); vWt0 = V(); vOo = V(); vRd = V(); vDn = V()
    vWm = [V() for _ in range(4)]; vWt = [V() for _ in range(4)]
    acc3 = [V(4) for _ in range(5)]
    assert V.n <= S[0]
    Wg = [[V(4) for _ in range(5)] for _ in range(2)]
    A = [[V(4) for _ in range(5)] for _ in range(4)]
    done_alloc(V)
    a(f'''s_lshl_b32 {sr(sT)}, {sr(sB)}, 4
s_add_u32 {sr(sT)}, {sr(sT)}, {sr(sMt3)}
s_lshl_b32 {sr(sT)}, {sr(sT)}, 1
s_lshr_b32 {sr(sT2)}, {sr(sW)}, 2
s_add_u32 {sr(sT)}, {sr(sT)}, {sr(sT2)}
s_mul_i32 {sr(sA)}, {sr(sT)}, {32*2560}
s_add_u32 {sr(sA)}, {sr(sA)}, {F_WS_O}
s_and_b32 {sr(sT)}, {sr(sW)}, 1
s_lshl_b32 {sr(sT)}, {sr(sT)}, 4
s_bfe_u32 {sr(sT2)}, {sr(sW)}, 0x10001
v_and_b32 {vr(vT0)}, 15, {vr(vLane)}
v_add_u32 {vr(vT0)}, {sr(sT)}, {vr(vT0)}
v_lshlrev_b32 {vr(vT0)}, 4, {vr(vT0)}
v_lshrrev_b32 {vr(vT1)}, 5, {vr(vLane)}
v_mul_u32_u24 {vr(vT1)}, 2560, {vr(vT1)}
v_bfe_u32 {vr(vT2)}, {vr(vLane)}, 4, 1
v_lshl_add_u32 {vr(vT1)}, {vr(vT2)}, 9, {vr(vT1)}
s_lshl_b32 {sr(sT3)}, {sr(sT2)}, 10
v_add3_u32 {vr(vAo)}, {vr(vT0)}, {vr(vT1)}, {sr(sT3)}
v_lshrrev_b32 {vr(vT1)}, 4, {vr(vLane)}
v_mul_u32_u24 {vr(vT1)}, 2560, {vr(vT1)}
s_lshl_b32 {sr(sT3)}, {sr(sT2)}, 8
s_add_u32 {sr(sT3)}, {sr(sT3)}, 2048
v_lshrrev_b32 {vr(vT0)}, 1, {vr(vT0)}
v_add3_u32 {vr(vAt)}, {vr(vT0)}, {vr(vT1)}, {sr(sT3)}
v_bfe_u32 {vr(vT0)}, {vr(vLane)}, 2, 2
v_lshrrev_b32 {vr(vT1)}, 5, {vr(vLane)}
v_mul_u32_u24 {vr(vT1)}, 20, {vr(vT1)}
v_bfe_u32 {vr(vT2)}, {vr(vLane)}, 4, 1
v_lshl_add_u32 {vr(vT1)}, {vr(vT2)}, 2, {vr(vT1)}
v_add_u32 {vr(vT1)}, {vr(vT1)}, {vr(vT0)}
v_mul_u32_u24 {vr(vT1)}, 160, {vr(vT1)}
v_and_b32 {vr(vT2)}, 3, {vr(vLane)}
v_lshl_add_u32 {vr(vWm0)}, {vr(vT2)}, 3, {vr(vT1)}
v_lshrrev_b32 {vr(vT1)}, 4, {vr(vLane)}
v_mul_u32_u24 {vr(vT1)}, 20, {vr(vT1)}
v_add3_u32 {vr(vT1)}, {vr(vT1)}, {vr(vT0)}, 16
v_mul_u32_u24 {vr(vT1)}, 160, {vr(vT1)}
v_lshl_add_u32 {vr(vWt0)}, {vr(vT2)}, 3, {vr(vT1)}
s_lshl_b32 {sr(sT)}, {sr(sMt3)}, 7
s_lshl_b32 {sr(sT2)}, {sr(sW)}, 4
s_add_u32 {sr(sT)}, {sr(sT)}, {sr(sT2)}
v_and_b32 {vr(vT0)}, 15, {vr(vLane)}
v_add_u32 {vr(vT0)}, {sr(sT)}, {vr(vT0)}
v_mul_u32_u24 {vr(vT0)}, 2560, {vr(vT0)}
v_lshrrev_b32 {vr(vT1)}, 4, {vr(vLane)}
v_lshl_add_u32 {vr(vT0)}, {vr(vT1)}, 3, {vr(vT0)}
s_mul_i32 {sr(sT)}, {sr(sB)}, 1280
s_mul_i32 {sr(sT2)}, {sr(sCg)}, 160
s_add_u32 {sr(sT)}, {sr(sT)}, {sr(sT2)}
v_add_u32 {vr(vOo)}, {sr(sT)}, {vr(vT0)}
v_mov_b32 {vr(vRd)}, {LW_RDY}
s_lshl_b32 {sr(sT)}, {sr(sB)}, 4
s_add_u32 {sr(sT)}, {sr(sT)}, {sr(sMt)}
s_lshl_b32 {sr(sT)}, {sr(sT)}, 6
s_add_u32 {sr(sT)}, {sr(sT)}, {sr(sHg)}
s_lshl_b32 {sr(sT)}, {sr(sT)}, 2
s_add_u32 {sr(sT)}, {sr(sT)}, {F_FLAG2}
v_mov_b32 {vr(vDn)}, {sr(sT)}
v_add_u32 {vr(vWm0)}, {WO_LO}, {vr(vWm0)}
v_add_u32 {vr(vWt0)}, {WO_LO}, {vr(vWt0)}
s_and_b32 {sr(sT3)}, {sr(sCg)}, {opts.get('rot3', 3)}
s_lshl_b32 {sr(sT3)}, {sr(sT3)}, 1
s_mov_b32 {sr(sDone)}, 0''')
    for t in range(5):
        for i in range(4):
            a(f'v_mov_b32 {vr(acc3[t]+i)}, 0')
    tid_ = [0]
    base3 = st.n
    if sset == 3: st.n += 4
    def read_rdy():
        a(f'''ds_read_b64 {vr(vT0,2)}, {vr(vRd)}
s_waitcnt lgkmcnt(0)
v_and_b32 {vr(vT0)}, {vr(vT0)}, {vr(vT1)}
s_nop 0
v_readfirstlane_b32 {sr(sT)}, {vr(vT0)}
s_andn2_b32 {sr(sT)}, {sr(sT)}, {sr(sDone)}''')
    def loads(s_):
        a(f'''s_lshl_b32 {sr(sT2)}, {sr(sT)}, 8
s_or_b32 {sr(sT)}, {sr(sT)}, {sr(sT2)}
s_lshr_b32 {sr(sT)}, {sr(sT)}, {sr(sT3)}
s_ff1_i32_b32 {sr(sT)}, {sr(sT)}
s_add_u32 {sr(sT)}, {sr(sT)}, {sr(sT3)}
s_and_b32 {sr(sT)}, {sr(sT)}, 7
s_bitset1_b32 {sr(sDone)}, {sr(sT)}
s_mul_i32 {sr(sT2)}, {sr(sT)}, 10240
s_add_u32 {sr(sT2)}, {sr(sT2)}, {sr(sA)}
s_cmp_eq_u32 {sr(sT)}, 6
s_mul_i32 {sr(sT)}, {sr(sT)}, 12800
s_cselect_b32 {sr(sT)}, {QST - WO_LO}, {sr(sT)}''')
        for p in range(4):
            a(f'buffer_load_dwordx4 {vr(A[s_][p],4)}, {vr(vAo)}, {sr(SWS,4)}, {sr(sT2)} offen{SLD}')
            if p == 0:
                a(f'buffer_load_dwordx2 {vr(A[s_][4],2)}, {vr(vAt)}, {sr(SWS,4)}, {sr(sT2)} offen{SLD}')
            if p == 2:
                a(f'buffer_load_dwordx2 {vr(A[s_][4]+2,2)}, {vr(vAt)}, {sr(SWS,4)}, {sr(sT2)} offen{SLD}')
            if p < 3:
                a(f's_add_u32 {sr(sT2)}, {sr(sT2)}, 5120')
        a(f'v_add_u32 {vr(vWm[s_])}, {sr(sT)}, {vr(vWm0)}')
        a(f'v_add_u32 {vr(vWt[s_])}, {sr(sT)}, {vr(vWt0)}')
        if sset == 3 and st.on:
            a(f's_memtime s[{62+2*(base3+s_)}:{63+2*(base3+s_)}]\ns_waitcnt lgkmcnt(0)')
    def take_group(s_):
        n = tid_[0]; tid_[0] += 1
        a.label(f'{name}_tg{n}')
        read_rdy()
        a(f'''s_cbranch_scc1 {name}_tgd{n}
s_sleep 1
s_branch {name}_tg{n}''')
        a.label(f'{name}_tgd{n}')
        loads(s_)
    a('s_waitcnt vmcnt(0)')
    a(f'''s_mov_b64 exec, 1
v_mov_b32 {vr(vT0)}, 1
ds_add_rtn_u32 {vr(vT0)}, {vr(vRd)}, {vr(vT0)} offset:8
v_mov_b32 {vr(vT1)}, {sr(sTag)}
v_mov_b32 {vr(vT2)}, 0xff
s_waitcnt lgkmcnt(0)
v_readfirstlane_b32 {sr(sT)}, {vr(vT0)}
s_cmp_eq_u32 {sr(sT)}, 7
s_cbranch_scc0 {name}_nl
buffer_store_dword {vr(vT1)}, {vr(vDn)}, {sr(SWS,4)}, 0 offen{SC}
ds_write_b32 {vr(vRd)}, {vr(vT2)} offset:4''')
    a.label(f'{name}_nl')
    a('s_mov_b64 exec, -1')
    if sset == 3: st()
    def rdW3(fs, j, p, t):
        out = []
        for rd in range(2):
            if p < 4:
                base, off = vWm[j], (20*(2*p) + 8*rd)*160 + t*32
            else:
                base, off = vWt[j], (20*(4*rd))*160 + t*32
            out.append(f'ds_read_b64_tr_b16 {vr(Wg[fs][t]+2*rd,2)}, {vr(base)} offset:{off}')
        return out
    if opts.get('evt', 1):
        st0()
        sJ = sG
        a(f's_mov_b32 {sr(sI)}, 0')
        a(f's_mov_b32 {sr(sJ)}, 0')
        a.label(f'{name}_ev')
        a(f's_cmp_lt_u32 {sr(sI)}, 4')
        a(f's_cbranch_scc0 {name}_evc')
        read_rdy()
        a(f's_cbranch_scc0 {name}_evn')
        for i in range(4):
            if i < 3:
                a(f's_cmp_eq_u32 {sr(sI)}, {i}')
                a(f's_cbranch_scc0 {name}_evt{i}')
            loads(i)
            a(f's_mov_b32 {sr(sI)}, {i+1}')
            a(f's_branch {name}_ev')
            a.label(f'{name}_evt{i}')
        a.label(f'{name}_evn')
        a(f'''s_getreg_b32 {sr(sT)}, hwreg(HW_REG_IB_STS)
s_bfe_u32 {sr(sT2)}, {sr(sT)}, 0x20016
s_lshl_b32 {sr(sT2)}, {sr(sT2)}, 4
s_and_b32 {sr(sT)}, {sr(sT)}, 15
s_or_b32 {sr(sT)}, {sr(sT)}, {sr(sT2)}
s_add_u32 {sr(sT)}, {sr(sT)}, 6
s_sub_u32 {sr(sT2)}, {sr(sI)}, {sr(sJ)}
s_mul_i32 {sr(sT2)}, {sr(sT2)}, 6
s_cmp_le_u32 {sr(sT)}, {sr(sT2)}
s_cbranch_scc1 {name}_evc
s_sleep 1
s_branch {name}_ev''')
        a.label(f'{name}_evc')
        for j in range(4):
            if j < 3:
                a(f's_cmp_eq_u32 {sr(sJ)}, {j}')
                a(f's_cbranch_scc0 {name}_evk{j}')
            for p in range(2):
                for t in range(5):
                    for r in rdW3(p, j, p, t): a(r)
            for k in range(4, j + 1, -1):
                a(f's_cmp_eq_u32 {sr(sI)}, {k}')
                a(f's_cbranch_scc0 {name}_evw{j}_{k}')
                a(f's_waitcnt vmcnt({6*(k-j-1)})')
                a(f's_branch {name}_evx{j}')
                a.label(f'{name}_evw{j}_{k}')
            a('s_waitcnt vmcnt(0)')
            a.label(f'{name}_evx{j}')
            if sset == 3 and j in (0, 3): st()
            for p in range(5):
                fs = p % 2
                a(f's_waitcnt lgkmcnt({10 if p < 4 else 0})')
                for t in range(5):
                    a(f'v_mfma_f32_16x16x32_bf16 {vr(acc3[t],4)}, {vr(Wg[fs][t],4)}, {vr(A[j][p],4)}, {vr(acc3[t],4)}')
                    if p + 2 < 5:
                        for r in rdW3(fs, j, p + 2, t): a(r)
            if j < 3:
                a(f's_mov_b32 {sr(sJ)}, {j+1}')
                a(f's_branch {name}_ev')
                a.label(f'{name}_evk{j}')
    else:
        st0()
        steps = [(j, p) for j in range(4) for p in range(5)]
        for j in range(4):
            take_group(j)
        for n in range(2):
            for t in range(5):
                for r in rdW3(n, *steps[n], t): a(r)
        left = {0: 5, 1: 3, 2: 2, 3: 0, 4: 0}
        for n, (j, p) in enumerate(steps):
            fs = n % 2
            a(f's_waitcnt vmcnt({6*(3-j) + left[p]}) lgkmcnt({10 if n < 19 else 0})')
            if sset == 3 and n in (0, 18): st()
            for t in range(5):
                a(f'v_mfma_f32_16x16x32_bf16 {vr(acc3[t],4)}, {vr(Wg[fs][t],4)}, {vr(A[j][p],4)}, {vr(acc3[t],4)}')
                if n + 2 < 20:
                    for r in rdW3(fs, *steps[n+2], t): a(r)

    a('s_nop 3')
    st0()
    if sset == 3: st()
    OUTF = {0: '', 1: ' nt', 2: ' sc1'}[opts.get('outf', 0)]
    for t in range(5):
        a(f'v_cvt_pk_bf16_f32 {vr(acc3[t])}, {vr(acc3[t])}, {vr(acc3[t]+1)}')
        a(f'v_cvt_pk_bf16_f32 {vr(acc3[t]+1)}, {vr(acc3[t]+2)}, {vr(acc3[t]+3)}')
        a(f'buffer_store_dwordx2 {vr(acc3[t],2)}, {vr(vOo)}, {sr(SOUT,4)}, 0 offen offset:{t*32}{OUTF}')
    if dbgt:
        a('s_waitcnt vmcnt(0)')
        rts(5)
        a('s_mov_b64 exec, 1')
        a(f's_not_b32 s62, s62')
        for k in range(6):
            a(f'v_mov_b32 {vr(vT0)}, {4+4*k}')
            a(f'v_mov_b32 {vr(vT1)}, s{62+2*k}')
            a(f'buffer_atomic_umax {vr(vT1)}, {vr(vT0)}, {sr(SDBG,4)}, 0 offen')
            a('s_nop 1')
    if st.on:
        a('s_waitcnt vmcnt(0)')
    st(); st.rt(); st.flush(sW)
    n_total = st.n
    a.label(f'{name}_done')
    a('s_endpgm')

    if nobar:
        for rep in range(unroll):
            a.label(f'{name}_spin{rep}')
            a(f'''ds_read_b64 {vr(vPw,2)}, {vr(vPa)}
s_waitcnt lgkmcnt(0)
v_readfirstlane_b32 {sr(sT)}, {vr(vPw)}''')
            if nobar == 2:
                a(f'''v_readfirstlane_b32 {sr(sT2)}, {vr(vPw+1)}
s_add_u32 {sr(sT2)}, {sr(sT2)}, {1 + opts.get("slack", 0)}
s_min_u32 {sr(sT)}, {sr(sT)}, {sr(sT2)}''')
            a(f'''s_cmp_gt_u32 {sr(sT)}, {sr(sT3)}
s_cbranch_scc0 {name}_spin{rep}
s_branch {name}_spun{rep}''')
    a.label(f'{name}_fallback')
    M = [vT4, vT5]
    vVo = vaV
    a(f'''v_cndmask_b32_e64 {vr(Q2[0])}, {vr(Q2[0])}, 0, {sr(sHi,2)}
v_cndmask_b32_e64 {vr(Q2[0]+1)}, {vr(Q2[0]+1)}, 0, {sr(sHi,2)}
v_cndmask_b32_e64 {vr(Q2[1])}, {vr(Q2[1])}, 0, {sr(sHi,2)}
v_cndmask_b32_e64 {vr(Q2[1]+1)}, {vr(Q2[1]+1)}, 0, {sr(sHi,2)}
v_mov_b32 {vr(M[0])}, 0xff800000
v_mov_b32 {vr(M[1])}, 0xff800000
v_mov_b32 {vr(vT1)}, {OOB}
s_lshr_b32 {sr(sT)}, {sr(sW)}, 1
s_mul_i32 {sr(sT)}, {sr(sT)}, 10240
v_subrev_u32 {vr(vT0)}, {sr(sT)}, {vr(vbV)}
v_cmp_eq_u32 vcc, 1, {vr(vmV)}
s_mov_b32 {sr(sT)}, {sr(sKV)}
s_mov_b32 {sr(sG)}, 0
v_cndmask_b32 {vr(vVo)}, {vr(vT1)}, {vr(vT0)}, vcc
s_mov_b64 {sr(sM2,2)}, vcc
s_waitcnt vmcnt(0)''')
    a.label(f'{name}_fb1')
    a(f'''buffer_load_dwordx4 {vr(K1[0],4)}, {vr(vQo)}, {sr(SWS,4)}, {sr(sT)} offen{SC}
buffer_load_dwordx2 {vr(K2[0],2)}, {vr(vQo2)}, {sr(SWS,4)}, {sr(sT)} offen{SC}
s_waitcnt vmcnt(0)''')
    qk16(0, 0); qk16(1, 0); qk8(0, 0); qk8(1, 0)
    a('s_nop 15')
    for t in range(2):
        rowmax(t, vT0)
        a(f'v_max_f32 {vr(M[t])}, {vr(M[t])}, {vr(vT0)}')
    a(f'''s_add_u32 {sr(sT)}, {sr(sT)}, 2560
s_add_u32 {sr(sG)}, {sr(sG)}, 1
s_cmp_lt_u32 {sr(sG)}, 64
s_cbranch_scc1 {name}_fb1''')
    for t in range(2):
        crosshalf(M[t], vT1)
        a(f'v_max_f32 {vr(M[t])}, {vr(M[t])}, {vr(vT1)}')
        for i in range(16):
            a(f'v_mov_b32 {vr(O[t]+i)}, 0')
    a(f's_mov_b32 {sr(sT)}, {sr(sKV)}')
    a(f's_mov_b32 {sr(sG)}, 0')
    a(f'v_mov_b32 {vr(vT1)}, 0x3f803f80')
    a.label(f'{name}_fb2')
    a(f'''buffer_load_dwordx4 {vr(K1[0],4)}, {vr(vQo)}, {sr(SWS,4)}, {sr(sT)} offen{SC}
buffer_load_dwordx2 {vr(K2[0],2)}, {vr(vQo2)}, {sr(SWS,4)}, {sr(sT)} offen{SC}
buffer_load_dwordx4 {vr(V0[0],4)}, {vr(vVo)}, {sr(SWS,4)}, {sr(sT)} offen{SC}
buffer_load_dwordx4 {vr(V1[0],4)}, {vr(vVo)}, {sr(SWS,4)}, {sr(sT)} offen offset:640{SC}
s_waitcnt vmcnt(0)''')
    qk16(0, 0); qk16(1, 0); qk8(0, 0); qk8(1, 0)
    for i in range(4):
        a(f'v_cndmask_b32_e64 {vr(V0[0]+i)}, {vr(vT1)}, {vr(V0[0]+i)}, {sr(sM2,2)}')
        a(f'v_cndmask_b32_e64 {vr(V1[0]+i)}, {vr(vT1)}, {vr(V1[0]+i)}, {sr(sM2,2)}')
    a('s_nop 15')
    for t in range(2):
        for i in range(16):
            a(f'v_sub_f32 {vr(S[t]+i)}, {vr(S[t]+i)}, {vr(M[t])}')
        for i in range(16):
            ex(t, i)
    a('s_nop 1')
    for t in range(2):
        pv(t, 0, 0); pv(t, 0, 1)
    a(f'''s_add_u32 {sr(sT)}, {sr(sT)}, 2560
s_add_u32 {sr(sG)}, {sr(sG)}, 1
s_cmp_lt_u32 {sr(sG)}, 64
s_cbranch_scc1 {name}_fb2''')
    a('s_nop 15')
    a(f's_mov_b32 {sr(sI)}, 1')
    a(f's_branch {name}_store')

    a.label(f'{name}_helper')
    st.n = n_common
    V = VAlloc(VBASE)
    vEp = V(); vL16 = V(); vFl = V()
    VH = V.n
    a('s_setprio 3')
    if opts.get('cpf', 1):
        a(f'''s_getpc_b64 {sr(sM,2)}
{name}_pc:
s_sub_u32 {sr(sM)}, {sr(sM)}, {name}_pc - {name}
s_subb_u32 {sr(sM+1)}, {sr(sM+1)}, 0
s_lshr_b32 {sr(sT)}, s2, 3
v_lshlrev_b32 {vr(vT0)}, 5, {vr(vLane)}
v_add_u32 {vr(vT0)}, {sr(sT)}, {vr(vT0)}
v_lshlrev_b32 {vr(vT0)}, 7, {vr(vT0)}
v_min_u32 {vr(vT0)}, {name}_end - {name} - 4, {vr(vT0)}
s_mov_b64 exec, 0xfff
global_load_dword {vr(vFl)}, {vr(vT0)}, {sr(sM,2)}
s_mov_b64 exec, -1''')
    a(f'v_mov_b32 {vr(vT0)}, {F_EPOCH}')
    a(f'buffer_load_dword {vr(vEp)}, {vr(vT0)}, {sr(SWS,4)}, 0 offen{SC}')
    a(f'v_lshlrev_b32 {vr(vL16)}, 4, {vr(vLane)}')
    vP = V(); vC8 = V(8); vPwa = V(); vFu = V(); vPo1 = V(); vPo2 = V(); vPo = V(); vLw = V()
    vW3 = [V() for _ in range(5)]
    vPf = [V() for _ in range(4)]
    vHX = [V() for _ in range(4)]
    vHW = [V() for _ in range(15)]
    vIx = V(); vIw = V(); vSx = V(); vSw = V(); vJ = [V() for _ in range(6)]
    done_alloc(V)
    if stag:
        a(f'''s_lshr_b32 {sr(sT)}, s2, 3
s_and_b32 {sr(sT2)}, s2, 1
s_lshl_b32 {sr(sT2)}, {sr(sT2)}, 5
s_add_u32 {sr(sT2)}, {sr(sT2)}, {sr(sT)}
s_lshl_b32 {sr(sT2)}, {sr(sT2)}, 5
v_and_b32 {vr(vT0)}, 31, {vr(vLane)}
v_add_u32 {vr(vT2)}, {sr(sT2)}, {vr(vT0)}
v_mul_u32_u24 {vr(vT2)}, 1280, {vr(vT2)}
v_lshrrev_b32 {vr(vT1)}, 5, {vr(vLane)}
v_lshl_add_u32 {vr(vIx)}, {vr(vT1)}, 7, {vr(vT2)}
buffer_load_dword {vr(vJ[0])}, {vr(vIx)}, {sr(SX,4)}, 0 offen
v_cmp_le_u32 vcc, 15, {vr(vT0)}
s_lshl_b32 {sr(sT)}, {sr(sT)}, 1
s_bfe_u32 {sr(sT2)}, s2, 0x10001
v_cndmask_b32_e64 {vr(vT2)}, 0, 1, vcc
v_mul_u32_u24 {vr(vT3)}, 15, {vr(vT2)}
v_sub_u32 {vr(vT3)}, {vr(vT0)}, {vr(vT3)}
v_lshl_add_u32 {vr(vT2)}, {vr(vT1)}, 6, {vr(vT2)}
v_add_u32 {vr(vT2)}, {sr(sT)}, {vr(vT2)}
v_mul_u32_u24 {vr(vT2)}, 3840, {vr(vT2)}
v_mul_u32_u24 {vr(vT4)}, 52, {vr(vT3)}
v_lshrrev_b32 {vr(vT4)}, 8, {vr(vT4)}
v_mul_u32_u24 {vr(vT4)}, {1280-640}, {vr(vT4)}
v_lshl_add_u32 {vr(vT4)}, {vr(vT3)}, 7, {vr(vT4)}
s_mul_i32 {sr(sT2)}, {sr(sT2)}, 640
v_add3_u32 {vr(vIw)}, {vr(vT2)}, {vr(vT4)}, {sr(sT2)}
v_cmp_le_u32 vcc, 30, {vr(vT0)}
v_mov_b32 {vr(vT2)}, {OOB}
s_mov_b32 {sr(sT)}, {128*3840}
v_cndmask_b32 {vr(vIw)}, {vr(vIw)}, {vr(vT2)}, vcc
buffer_load_dword {vr(vJ[1])}, {vr(vIw)}, {sr(SWQ,4)}, 0 offen''')
        if stag >= 2:
            a(f'buffer_load_dword {vr(vJ[2])}, {vr(vIx)}, {sr(SX,4)}, 0 offen offset:256')
            a(f'buffer_load_dword {vr(vJ[3])}, {vr(vIw)}, {sr(SWQ,4)}, {sr(sT)} offen')
        a(f'''s_bfe_u32 {sr(sT)}, s2, 0x30003
s_and_b32 {sr(sI)}, s2, 1
s_lshl_b32 {sr(sI)}, {sr(sI)}, 3
s_add_u32 {sr(sI)}, {sr(sI)}, {sr(sT)}
s_lshl_b32 {sr(sI)}, {sr(sI)}, 7
v_add_u32 {vr(vT0)}, {sr(sI)}, {vr(vLane)}
v_mul_u32_u24 {vr(vSx)}, 1280, {vr(vT0)}
v_mul_u32_u24 {vr(vT1)}, 4370, {vr(vLane)}
v_lshrrev_b32 {vr(vT1)}, 16, {vr(vT1)}
v_mul_u32_u24 {vr(vT2)}, 15, {vr(vT1)}
v_sub_u32 {vr(vT3)}, {vr(vLane)}, {vr(vT2)}
s_lshl_b32 {sr(sT)}, {sr(sT)}, 3
v_add_u32 {vr(vT1)}, {sr(sT)}, {vr(vT1)}
v_mul_u32_u24 {vr(vT1)}, 3840, {vr(vT1)}
v_mul_u32_u24 {vr(vT4)}, 52, {vr(vT3)}
v_lshrrev_b32 {vr(vT4)}, 8, {vr(vT4)}
v_mul_u32_u24 {vr(vT4)}, {1280-640}, {vr(vT4)}
v_lshl_add_u32 {vr(vT4)}, {vr(vT3)}, 7, {vr(vT4)}
v_add3_u32 {vr(vSw)}, {vr(vT1)}, {vr(vT4)}, {sr(sT2)}
v_cmp_le_u32 vcc, 60, {vr(vLane)}
v_mov_b32 {vr(vT2)}, {OOB}
s_lshr_b32 {sr(sM0a)}, s2, 6
v_cndmask_b32 {vr(vSw)}, {vr(vSw)}, {vr(vT2)}, vcc''')
    sgid = [0]
    def stag_pf():
        if not stag: return
        n = sgid[0]; sgid[0] += 1
        AH = opts.get('ahead', 2)
        a(f'''s_add_u32 {sr(sT)}, {sr(sKK)}, {1 + AH}
s_and_b32 {sr(sT2)}, {sr(sT)}, 3
s_cmp_eq_u32 {sr(sT2)}, {sr(sM0a)}
s_cselect_b32 {sr(sT2)}, {sr(sT)}, 99
s_cmp_lt_u32 {sr(sT2)}, {2*stag}
s_cselect_b32 {sr(sT2)}, 99, {sr(sT2)}
s_cmp_lt_u32 {sr(sT2)}, 10
s_cbranch_scc0 {name}_sp{n}
s_lshl_b32 {sr(sT2)}, {sr(sT)}, 7
buffer_load_dword {vr(vJ[0])}, {vr(vSx)}, {sr(SX,4)}, {sr(sT2)} offen
s_add_u32 {sr(sT2)}, {sr(sT2)}, {64*1280}
buffer_load_dword {vr(vJ[1])}, {vr(vSx)}, {sr(SX,4)}, {sr(sT2)} offen
s_mul_i32 {sr(sT2)}, {sr(sT)}, {64*3840}
buffer_load_dword {vr(vJ[2])}, {vr(vSw)}, {sr(SWQ,4)}, {sr(sT2)} offen
s_add_u32 {sr(sT2)}, {sr(sT2)}, {4*3840}
buffer_load_dword {vr(vJ[3])}, {vr(vSw)}, {sr(SWQ,4)}, {sr(sT2)} offen''')
        a.label(f'{name}_sp{n}')
    a(f'''s_lshl_b32 {sr(sT)}, {sr(sMt)}, 7
v_lshrrev_b32 {vr(vT0)}, 3, {vr(vLane)}
v_add_u32 {vr(vT0)}, {sr(sT)}, {vr(vT0)}
v_mul_u32_u24 {vr(vT0)}, 1280, {vr(vT0)}
v_lshrrev_b32 {vr(vT1)}, 4, {vr(vLane)}
v_and_b32 {vr(vT3)}, 7, {vr(vLane)}
v_xor_b32 {vr(vT2)}, {vr(vT1)}, {vr(vT3)}
v_lshl_add_u32 {vr(vHX[0])}, {vr(vT2)}, 4, {vr(vT0)}
v_xor_b32 {vr(vT2)}, 64, {vr(vHX[0])}
v_add_u32 {vr(vHX[1])}, {10240-1024}, {vr(vT2)}
v_add_u32 {vr(vHX[2])}, {2*(10240-1024)}, {vr(vHX[0])}
v_add_u32 {vr(vHX[3])}, {3*(10240-1024)}, {vr(vT2)}''')
    for pi in range(15):
        a(f's_sub_u32 {sr(sT)}, {sr(sT3)}, {(pi%4)*1024}')
        w_pattern(vHW[pi], f'v_add_u32 {vr(vT0)}, {64*pi}, {vr(vLane)}', sr(sT))
    def next_k():
        a(f'''s_add_u32 {sr(sKK)}, {sr(sKK)}, 1
s_cmp_eq_u32 {sr(sKK)}, 10
s_cselect_b32 {sr(sKK)}, 0, {sr(sKK)}
s_lshl_b32 {sr(sXo)}, {sr(sKK)}, 7
s_mul_i32 {sr(sWo)}, {sr(sKK)}, {64*3840}''')
    def issue_x():
        for jj in range(16):
            if jj % 4 == 0:
                a(f's_add_u32 m0, {sr(sSlot)}, {jj*1024}')
                a(f's_add_u32 {sr(sT)}, {sr(sXo)}, {jj*10240}')
            a(f'buffer_load_dwordx4 {vr(vHX[jj%4])}, {sr(SX,4)}, {sr(sT)} offen offset:{(jj%4)*1024} lds')
    def issue_w():
        for half in range(2):
            for pi in range(15):
                if pi % 4 == 0:
                    a(f's_add_u32 m0, {sr(sSlot)}, {XSZ + half*15360 + pi*1024}')
                    a(f's_add_u32 {sr(sT)}, {sr(sWo)}, {half*32*3840}')
                a(f'buffer_load_dwordx4 {vr(vHW[pi])}, {sr(SWQ,4)}, {sr(sT)} offen offset:{(pi%4)*1024} lds')
    def issue_stage():
        stag_pf(); next_k(); issue_x(); issue_w()
        a(f'''s_add_u32 {sr(sSlot)}, {sr(sSlot)}, {STG}
s_cmp_ge_u32 {sr(sSlot)}, {3*STG}
s_cselect_b32 {sr(sSlot)}, 0, {sr(sSlot)}''')
    pfw = opts.get('pfw', 1) and not stag
    if pfw:
        a(f'''s_lshr_b32 {sr(sT)}, s2, 6
s_mul_i32 {sr(sT)}, {sr(sT)}, 3
s_add_u32 {sr(sT)}, {sr(sT)}, 8
s_bfe_u32 {sr(sT2)}, s2, 0x30003
s_lshr_b32 {sr(sI)}, {sr(sT2)}, 2
s_add_u32 {sr(sT)}, {sr(sT)}, {sr(sI)}
s_cmp_ge_u32 {sr(sT)}, 10
s_cselect_b32 {sr(sI)}, 10, 0
s_sub_u32 {sr(sT)}, {sr(sT)}, {sr(sI)}
s_lshl_b32 {sr(sT)}, {sr(sT)}, 6
s_and_b32 {sr(sT2)}, {sr(sT2)}, 3
s_lshl_b32 {sr(sT2)}, {sr(sT2)}, 4
s_add_u32 {sr(sT)}, {sr(sT)}, {sr(sT2)}
s_mul_i32 {sr(sT)}, {sr(sT)}, 3840
s_add_u32 {sr(sRdy)}, {sr(sT)}, {sr(sT3)}
v_lshrrev_b32 {vr(vT0)}, 3, {vr(vLane)}
v_mul_u32_u24 {vr(vT0)}, 3840, {vr(vT0)}
v_bfe_u32 {vr(vT1)}, {vr(vLane)}, 1, 2
v_mul_u32_u24 {vr(vT2)}, 1280, {vr(vT1)}
v_and_b32 {vr(vT3)}, 1, {vr(vLane)}
v_mul_u32_u24 {vr(vT3)}, 156, {vr(vT3)}
v_add3_u32 {vr(vT0)}, {vr(vT0)}, {vr(vT2)}, {vr(vT3)}
v_cmp_eq_u32 vcc, 3, {vr(vT1)}
v_mov_b32 {vr(vT2)}, {OOB}
s_nop 0
v_cndmask_b32 {vr(vPo)}, {vr(vT0)}, {vr(vT2)}, vcc''')
    a(f's_mov_b32 {sr(sSlot)}, {STG}')
    st1()
    a('s_barrier')
    st1()
    if pfw:
        a(f'buffer_load_dword {vr(vPf[0])}, {vr(vPo)}, {sr(SWQ,4)}, {sr(sRdy)} offen')
        a(f's_add_u32 {sr(sRdy)}, {sr(sRdy)}, {8*3840}')
        a(f'buffer_load_dword {vr(vPf[1])}, {vr(vPo)}, {sr(SWQ,4)}, {sr(sRdy)} offen')
    if opts.get('xfirst', 0):
        next_k(); issue_x()
        a(f's_mov_b32 {sr(sSrc)}, {sr(sWo)}')
        a(f's_mov_b32 {sr(sSlot)}, {2*STG}')
        next_k(); issue_x()
        st1()
        if opts.get('xfirst') == 1: a('s_barrier')
        a(f's_mov_b32 {sr(sSlot)}, {STG}')
        a(f's_mov_b32 {sr(sI)}, {sr(sWo)}')
        a(f's_mov_b32 {sr(sWo)}, {sr(sSrc)}')
        issue_w()
        if opts.get('xfirst') == 2: a('s_barrier')
        a(f's_mov_b32 {sr(sSlot)}, {2*STG}')
        a(f's_mov_b32 {sr(sWo)}, {sr(sI)}')
        issue_w()
        a(f's_mov_b32 {sr(sSlot)}, 0')
        a('s_waitcnt vmcnt(30)')
        a('s_barrier')
        st1()
        a(f's_mov_b32 {sr(sI)}, 1')
    else:
        issue_stage()
        st1()
        a('s_barrier')
        st1()
        a(f's_mov_b32 {sr(sI)}, 0')
    a.label(f'{name}_hg')
    issue_stage()
    a('s_waitcnt vmcnt(46)')
    a('s_barrier')
    a(f's_add_u32 {sr(sI)}, {sr(sI)}, 1')
    a(f's_cmp_lt_u32 {sr(sI)}, 8')
    a(f's_cbranch_scc1 {name}_hg')
    st1()
    a(f'''s_lshl_b32 {sr(sT)}, {sr(sB)}, 3
s_add_u32 {sr(sT)}, {sr(sT)}, {sr(sHg)}
s_lshl_b32 {sr(sT)}, {sr(sT)}, 8
s_add_u32 {sr(sT)}, {sr(sT)}, {F_FLAG1}
v_lshl_add_u32 {vr(vT0)}, {vr(vLane)}, 2, {sr(sT)}
v_cmp_gt_u32 vcc, 16, {vr(vLane)}
v_mov_b32 {vr(vT1)}, {OOB}
s_lshl_b32 {sr(sT)}, {sr(sB)}, 4
v_cndmask_b32 {vr(vPo1)}, {vr(vT1)}, {vr(vT0)}, vcc
s_add_u32 {sr(sT)}, {sr(sT)}, {sr(sMt3)}
s_lshl_b32 {sr(sT)}, {sr(sT)}, 8
s_add_u32 {sr(sT)}, {sr(sT)}, {F_FLAG2}
v_lshl_add_u32 {vr(vT0)}, {vr(vLane)}, 2, {sr(sT)}
v_cmp_gt_u32 vcc, 8, {vr(vLane)}
v_mov_b32 {vr(vLw)}, {LW_RDY}
s_mul_i32 {sr(sT3)}, {sr(sCg)}, 160
v_cndmask_b32 {vr(vPo2)}, {vr(vT1)}, {vr(vT0)}, vcc''')
    for r in range(5):
        a(f'''v_add_u32 {vr(vT0)}, {64*r}, {vr(vLane)}
v_mul_u32_u24 {vr(vT1)}, 6554, {vr(vT0)}
v_lshrrev_b32 {vr(vT1)}, 16, {vr(vT1)}
v_mul_u32_u24 {vr(vT1)}, {1280-160}, {vr(vT1)}
v_lshl_add_u32 {vr(vT0)}, {vr(vT0)}, 4, {vr(vT1)}
v_add_u32 {vr(vT0)}, {sr(sT3)}, {vr(vT0)}
v_subrev_u32 {vr(vW3[r])}, {(r%4)*1024}, {vr(vT0)}''')
    a(f'''s_lshr_b32 {sr(sT)}, s2, 3
s_mul_i32 {sr(sT)}, {sr(sT)}, {20*1280}
v_lshl_add_u32 {vr(vT0)}, {vr(vLane)}, 7, {sr(sT)}
v_cmp_gt_u32 vcc, 50, {vr(vLane)}
v_mov_b32 {vr(vT1)}, {OOB}
s_mov_b32 {sr(sRdy)}, 0
v_cndmask_b32 {vr(vPo)}, {vr(vT1)}, {vr(vT0)}, vcc
v_readfirstlane_b32 {sr(sTag)}, {vr(vEp)}
s_lshl_b32 {sr(sDone)}, 1, {sr(sMt)}
s_waitcnt vmcnt({15 if hsplit else 0})
s_add_u32 {sr(sTag)}, {sr(sTag)}, {TAGK}
s_barrier
s_waitcnt vmcnt(0)
{'s_barrier' if hsplit else 's_nop 0'}
v_bfe_u32 {vr(vT2)}, {vr(vLane)}, 1, 2
v_mul_u32_u24 {vr(vT2)}, 2560, {vr(vT2)}
v_and_b32 {vr(vT3)}, 1, {vr(vLane)}
v_mul_u32_u24 {vr(vT3)}, 640, {vr(vT3)}
v_add_u32 {vr(vT2)}, {vr(vT2)}, {vr(vT3)}
v_add_u32 {vr(vT2)}, {ONES}, {vr(vT2)}
v_mov_b32 {vr(vC8)}, 0x3f803f80
v_mov_b32 {vr(vC8+1)}, 0x3f803f80
v_mov_b32 {vr(vC8+2)}, 0x3f803f80
v_mov_b32 {vr(vC8+3)}, 0x3f803f80
v_mov_b32 {vr(vC8+4)}, 0
v_mov_b32 {vr(vC8+5)}, 0
v_mov_b32 {vr(vC8+6)}, 0
v_mov_b32 {vr(vC8+7)}, 0
s_barrier
ds_write_b128 {vr(vT2)}, {vr(vC8,4)}
ds_write_b128 {vr(vT2)}, {vr(vC8+4,4)} offset:16
ds_write_b128 {vr(vLw)}, {vr(vC8+4,4)}
s_waitcnt lgkmcnt(0)''')
    st0()
    a('s_barrier')
    a('s_barrier')
    gid = [0]
    def issue_group():
        n = gid[0]; gid[0] += 1
        a(f'''s_andn2_b32 {sr(sT)}, {sr(sRdy)}, {sr(sDone)}
s_cbranch_scc1 {name}_pd{n}
s_mov_b32 {sr(sCnt)}, {POLL_LIMIT}''')
        a.label(f'{name}_pl{n}')
        a(f'''buffer_load_dword {vr(vP)}, {vr(vPo1)}, {sr(SWS,4)}, 0 offen{SC}
s_waitcnt vmcnt(0)
v_cmp_eq_u32 vcc, {sr(sTag)}, {vr(vP)}
s_and_b32 {sr(sRdy)}, vcc_lo, 0xffff
s_andn2_b32 {sr(sT)}, {sr(sRdy)}, {sr(sDone)}
s_cbranch_scc1 {name}_pd{n}
s_sleep 1
s_sub_u32 {sr(sCnt)}, {sr(sCnt)}, 1
s_cmp_lg_u32 {sr(sCnt)}, 0
s_cbranch_scc1 {name}_pl{n}
s_mov_b32 {sr(sRdy)}, 0xffff
s_andn2_b32 {sr(sT)}, {sr(sRdy)}, {sr(sDone)}''')
        a.label(f'{name}_pd{n}')
        a(f'''s_lshl_b32 {sr(sT2)}, {sr(sT)}, 16
s_or_b32 {sr(sT)}, {sr(sT)}, {sr(sT2)}
s_lshr_b32 {sr(sT)}, {sr(sT)}, {sr(sMt)}
s_ff1_i32_b32 {sr(sT)}, {sr(sT)}
s_add_u32 {sr(sNeed)}, {sr(sT)}, {sr(sMt)}
s_and_b32 {sr(sNeed)}, {sr(sNeed)}, 15
s_bitset1_b32 {sr(sDone)}, {sr(sNeed)}
s_mul_i32 {sr(sT)}, {sr(sNeed)}, 10240
s_add_u32 {sr(sSrc)}, {sr(sKV)}, {sr(sT)}''')
        for hs in range(4):
            for q in range(10):
                if q % 4 == 0:
                    a(f's_add_u32 m0, {sr(sSlot)}, {hs*10240 + q*1024}')
                    a(f's_add_u32 {sr(sT)}, {sr(sSrc)}, {hs*KV_HEAD + q*1024}')
                a(f'buffer_load_dwordx4 {vr(vL16)}, {sr(SWS,4)}, {sr(sT)} offen offset:{(q%4)*1024}{SLD} lds')
        a(f'''s_add_u32 {sr(sSlot)}, {sr(sSlot)}, {SLOT}
s_cmp_ge_u32 {sr(sSlot)}, {3*SLOT}
s_cselect_b32 {sr(sSlot)}, 0, {sr(sSlot)}
s_add_u32 {sr(sI)}, {sr(sI)}, 1''')
    a(f's_mov_b32 {sr(sI)}, 1')
    a(f's_mov_b32 {sr(sSlot)}, {SLOT}')
    wq = [0]
    def wait_prog(val):
        n = wq[0]; wq[0] += 1
        a.label(f'{name}_wp{n}')
        a(f'''ds_read_b32 {vr(vP)}, {vr(vPwa)} offset:4
s_waitcnt lgkmcnt(0)
v_cmp_le_u32 vcc, {val}, {vr(vP)}
s_and_b32 {sr(sT)}, vcc_lo, 0x1ff
s_cmp_eq_u32 {sr(sT)}, 0x1ff
s_cbranch_scc1 {name}_wpd{n}
s_sleep 2
s_branch {name}_wp{n}''')
        a.label(f'{name}_wpd{n}')
    def set_full(val):
        a(f'v_mov_b32 {vr(vFu)}, {val}')
        a(f'ds_write_b32 {vr(vPwa)}, {vr(vFu)}')
    if nobar:
        a(f'v_min_u32 {vr(vPwa)}, 8, {vr(vLane)}')
        a(f'v_lshlrev_b32 {vr(vPwa)}, 3, {vr(vPwa)}')
        a(f'v_add_u32 {vr(vPwa)}, {LW_PW}, {vr(vPwa)}')
    issue_group()
    st0()
    a.label(f'{name}_hl')
    if nobar:
        a('s_waitcnt vmcnt(0)')
        set_full(sr(sI))
        a(f's_max_u32 {sr(sSrc)}, {sr(sI)}, 2')
        a(f's_sub_u32 {sr(sSrc)}, {sr(sSrc)}, 2')
        wait_prog(sr(sSrc))
        issue_group()
    else:
        issue_group()
        a('s_waitcnt vmcnt(40)')
        a('s_barrier')
    wid = [0]
    def wo_rows(r0, r1, lds):
        n = wid[0]; wid[0] += 1
        a(f's_mov_b32 {sr(sSrc)}, {r0*1280}')
        a(f's_mov_b32 {sr(sT2)}, {lds}')
        a.label(f'{name}_hw{n}x')
        a(f's_mov_b32 m0, {sr(sT2)}')
        a(f's_add_u32 {sr(sT)}, {sr(sT2)}, 4096')
        for r in range(4):
            a(f'buffer_load_dwordx4 {vr(vW3[r])}, {sr(SWO,4)}, {sr(sSrc)} offen offset:{r*1024} lds')
        a(f's_mov_b32 m0, {sr(sT)}')
        a(f's_add_u32 {sr(sT2)}, {sr(sT2)}, 5120')
        a(f'buffer_load_dwordx4 {vr(vW3[4])}, {sr(SWO,4)}, {sr(sSrc)} offen lds')
        a(f's_add_u32 {sr(sSrc)}, {sr(sSrc)}, {32*1280}')
        a(f's_cmp_lt_u32 {sr(sSrc)}, {r1*1280}')
        a(f's_cbranch_scc1 {name}_hw{n}x')
    a(f's_cmp_eq_u32 {sr(sI)}, 6')
    a(f's_cbranch_scc0 {name}_hnp')
    for q in range(4):
        a(f's_mov_b32 {sr(sT)}, {q*6400}')
        a(f'buffer_load_dword {vr(vPf[q])}, {vr(vPo)}, {sr(SWO,4)}, {sr(sT)} offen')
    a.label(f'{name}_hnp')
    a(f's_cmp_eq_u32 {sr(sI)}, 10')
    a(f's_cbranch_scc0 {name}_hnq')
    wo_rows(480, 640, QST)
    a.label(f'{name}_hnq')
    a(f's_cmp_lt_u32 {sr(sI)}, 16')
    a(f's_cbranch_scc1 {name}_hl')
    if nobar:
        a('s_waitcnt vmcnt(0)')
        set_full(64)
        wait_prog(14)
        wo_rows(0, 256, WO_LO)
        wait_prog(15)
    else:
        wo_rows(0, 256, WO_LO)
        a('s_waitcnt vmcnt(40)')
        a('s_barrier')
    wo_rows(256, 480, WO_LO + 40960)
    a(f'''s_lshl_b32 {sr(sT)}, {sr(sB)}, 4
s_add_u32 {sr(sT)}, {sr(sT)}, {sr(sMt3)}
s_lshl_b32 {sr(sT)}, {sr(sT)}, 1
s_lshr_b32 {sr(sT2)}, {sr(sCg)}, 2
s_add_u32 {sr(sT)}, {sr(sT)}, {sr(sT2)}
s_mul_i32 {sr(sT)}, {sr(sT)}, {32*2560}
s_and_b32 {sr(sT2)}, {sr(sCg)}, 3
s_mul_i32 {sr(sT2)}, {sr(sT2)}, 5120
s_add_u32 {sr(sT)}, {sr(sT)}, {sr(sT2)}
s_add_u32 {sr(sT)}, {sr(sT)}, {F_WS_O}
v_lshl_add_u32 {vr(vT0)}, {vr(vLane)}, 7, {sr(sT)}
v_cmp_gt_u32 vcc, 40, {vr(vLane)}
v_mov_b32 {vr(vT1)}, {OOB}
s_mov_b32 {sr(sDone)}, 0
s_mov_b32 {sr(sCnt)}, {POLL_LIMIT}
v_cndmask_b32 {vr(vPo)}, {vr(vT1)}, {vr(vT0)}, vcc''')
    pid = [0]
    pfo = opts.get('pfo', 2)
    def poll2():
        a(f'''buffer_load_dword {vr(vP)}, {vr(vPo2)}, {sr(SWS,4)}, 0 offen{SC}
s_sub_u32 {sr(sCnt)}, {sr(sCnt)}, 1
s_waitcnt vmcnt(0)
v_cmp_eq_u32 vcc, {sr(sTag)}, {vr(vP)}
s_cmp_eq_u32 {sr(sCnt)}, 0
s_cselect_b32 {sr(sT)}, 0xff, vcc_lo
s_lshr_b32 {sr(sT2)}, {sr(sT)}, 1
s_and_b32 {sr(sT)}, {sr(sT)}, {sr(sT2)}
s_and_b32 {sr(sRdy)}, {sr(sT)}, 0x55''')
        if pfo:
            a(f's_andn2_b32 {sr(sSrc)}, {sr(sRdy)}, {sr(sDone)}')
            a(f's_or_b32 {sr(sDone)}, {sr(sDone)}, {sr(sRdy)}')
            for j in range(4):
                n = pid[0]; pid[0] += 1
                a(f's_bitcmp1_b32 {sr(sSrc)}, {2*j}')
                a(f's_cbranch_scc0 {name}_po{n}')
                a(f's_mov_b32 {sr(sT)}, {j*20480}')
                a(f'buffer_load_dword {vr(vPf[j])}, {vr(vPo)}, {sr(SWS,4)}, {sr(sT)} offen{SC}')
                a.label(f'{name}_po{n}')
            if pfo == 2:
                a('s_waitcnt vmcnt(0)')
        a(f'v_mov_b32 {vr(vP)}, {sr(sRdy)}')
        a(f'ds_write_b32 {vr(vLw)}, {vr(vP)}')
    poll2()
    if nobar:
        wait_prog(16)
    else:
        a('s_barrier')
    st0()
    st0()
    a.label(f'{name}_p3l')
    poll2()
    a(f's_cmp_eq_u32 {sr(sRdy)}, 0x55')
    a(f's_cbranch_scc0 {name}_p3l')
    a.label(f'{name}_p3e')
    if st.on:
        while st.n < n_total - 1: st()
        st.rt(); st.flush(sW)
    a('s_endpgm')
    a.label(f'{name}_end')
    nv = maxv[0]
    assert nv <= 168, nv
    return a.text(), descriptor(name, nv, ns), f'; @launch kernel={name} grid=(256,1,1) block=(576,1,1) lds={LDS_TOTAL}', n_total
```

```python
from common import *
import math, struct

def f32bits(x):
    return struct.unpack('<I', struct.pack('<f', x))[0]
QSCALE = f32bits(math.log2(math.e) / math.sqrt(20.0))

XSZ = 16384
STG = XSZ + 30720
SLOT = 40960
LW_RDY = 3 * SLOT
LW_CNT = 3 * SLOT + 8
LW_CNT1 = 3 * SLOT + 12
LW_PW = 131392
ONES = 3 * SLOT + 128
QST = 131584
LDS_TOTAL = QST + 25600
WO_LO = SLOT
F_WS_KV = 0
F_WS_O = 64 * KV_HEAD
F_FLAG1 = F_WS_O + 2 * 32 * 32 * 2560
F_FLAG2 = F_FLAG1 + 16 * 256
F_EPOCH = F_FLAG2 + 32 * 256
F_WS_END = F_EPOCH + 256
TAGK = 0x9E3779B9
POLL_LIMIT = 1 << 16
OOB = 0x40000000

def gen_fused(name='fused_kernel', opts=None):
    opts = opts or {}
    a = Asm()
    SC = ' sc1'
    FL = {0: ' sc1', 1: ' sc0 sc1', 2: '', 3: ' sc1 nt', 4: ' nt'}
    SST = FL[opts.get('sst', 0)]
    SLD = FL[opts.get('sld', 0)]
    stag = opts.get('stag', 0)
    hsplit = opts.get('hsplit', 1)
    nobar = opts.get('nobar', 0)
    loc = opts.get('loc', 1)
    sKK, sMt3, sCg = 3, 4, 5
    SX, SWQ, SWS, SDBG, SWO, SOUT = 8, 12, 16, 20, 24, 28
    sW, sB, sMt, sHg, sT, sT2, sT3 = 32, 33, 34, 35, 36, 37, 38
    sM0a, sM0b = 39, 40
    sDone = 41
    sHi = 42
    sG, sOff, sOo, sKV = 44, 45, 46, 47
    sM, sM2 = 48, 50
    sRdy, sCnt, sNeed, sI, sSlot, sSrc = 52, 53, 54, 55, 56, 57
    sXo, sWo = 53, 54
    sScale = 58
    sA, sTag = 60, 61
    sPub, sPub2 = 56, 57
    ns = 64
    vLane, vT0, vT1, vT2, vT3, vT4, vT5 = 1, 2, 3, 4, 5, 6, 7
    VBASE = 8
    st = Stamper(a, opts.get('stamp'), 0, 62, 6, vT0)
    if st.on: ns = st.nsgpr()
    sset = opts.get('sset', 0)
    def st0():
        if sset == 0: st()
    def st1():
        if sset == 1: st()
    def st4():
        if sset == 4: st()
    maxv = [0]
    def done_alloc(V):
        maxv[0] = max(maxv[0], V.n)

    a(f'.globl {name}\n.p2align 8\n.type {name},@function')
    a.label(name)
    if st.on:
        a('s_memrealtime s[62:63]\ns_memtime s[64:65]')
        st.n = 2
    dbgt = opts.get('dbgt')
    SWAP = 's_nop 0'
    if opts.get('swap', 0):
        SWAP = f's_lshr_b32 {sr(sT)}, s2, 1\ns_xor_b32 {sr(sT)}, {sr(sT)}, s2\ns_and_b32 {sr(sT)}, {sr(sT)}, 1\ns_mul_i32 {sr(sT)}, {sr(sT)}, 3\ns_xor_b32 s2, s2, {sr(sT)}'
    if dbgt:
        ns = 80
        a('s_memrealtime s[62:63]')
    def rts(k):
        if dbgt: a(f's_memrealtime s[{62+2*k}:{63+2*k}]\ns_waitcnt lgkmcnt(0)')
    a(f'''s_cmp_ge_u32 s2, 256
s_cbranch_scc1 {name}_done
{SWAP}
s_bfe_u32 {sr(sB)}, s2, 0x10002
s_load_dwordx4 {sr(SOUT,4)}, s[0:1], 48
s_load_dwordx2 s[6:7], s[0:1], 64
s_mul_i32 {sr(sT2)}, {sr(sB)}, 24
s_add_u32 s0, s0, {sr(sT2)}
s_addc_u32 s1, s1, 0
s_load_dwordx4 {sr(SX,4)}, s[0:1], 0
s_load_dwordx2 {sr(SWO,2)}, s[0:1], 16
v_lshrrev_b32 {vr(vT0)}, 6, v0
v_and_b32 {vr(vLane)}, 63, v0
s_lshr_b32 {sr(sT)}, s2, 3
v_readfirstlane_b32 {sr(sW)}, {vr(vT0)}
s_and_b32 {sr(sMt)}, {sr(sT)}, 7
s_lshr_b32 {sr(sHg)}, {sr(sT)}, 3
s_mul_i32 {sr(sKK)}, {sr(sHg)}, 3
s_add_u32 {sr(sKK)}, {sr(sKK)}, {sr(sMt)}
s_cmp_ge_u32 {sr(sKK)}, 10
s_cselect_b32 {sr(sT)}, 10, 0
s_sub_u32 {sr(sKK)}, {sr(sKK)}, {sr(sT)}
{f's_mov_b32 {sr(sKK)}, 0' if (stag or opts.get('rot0')) else 's_nop 0'}
s_and_b32 {sr(sT)}, s2, 1
s_lshl_b32 {sr(sT)}, {sr(sT)}, 3
s_add_u32 {sr(sMt)}, {sr(sMt)}, {sr(sT)}
s_and_b32 {sr(sT)}, s2, 2
s_lshl_b32 {sr(sT)}, {sr(sT)}, 1
s_add_u32 {sr(sHg)}, {sr(sHg)}, {sr(sT)}
s_mov_b32 {sr(sHi)}, 0
s_mov_b32 {sr(sHi+1)}, -1
s_bfe_u32 {sr(sCg)}, s2, 0x30003
s_and_b32 {sr(sMt3)}, s2, 1
s_lshl_b32 {sr(sMt3)}, {sr(sMt3)}, 2
s_and_b32 {sr(sT)}, s2, 2
s_add_u32 {sr(sMt3)}, {sr(sMt3)}, {sr(sT)}
s_lshl_b32 {sr(sMt3)}, {sr(sMt3)}, 1
s_lshr_b32 {sr(sT)}, s2, 6
s_add_u32 {sr(sMt3)}, {sr(sMt3)}, {sr(sT)}
s_lshl_b32 {sr(sT)}, {sr(sB)}, 3
s_add_u32 {sr(sT)}, {sr(sT)}, {sr(sHg)}
s_mul_i32 {sr(sKV)}, {sr(sT)}, {4*KV_HEAD}
s_mul_i32 {sr(sT3)}, {sr(sHg)}, 160
s_waitcnt lgkmcnt(0)
s_mov_b32 {sr(SWQ)}, {sr(SX+2)}
s_mov_b32 {sr(SWQ+1)}, {sr(SX+3)}
s_mov_b32 {sr(SDBG)}, {sr(SOUT+2)}
s_mov_b32 {sr(SDBG+1)}, {sr(SOUT+3)}
s_mov_b32 {sr(SWS)}, s6
s_mov_b32 {sr(SWS+1)}, s7
s_mov_b32 {sr(SX+2)}, {2048*1280}
s_mov_b32 {sr(SX+3)}, 0x20000
s_mov_b32 {sr(SWQ+2)}, {640*3840}
s_mov_b32 {sr(SWQ+3)}, 0x20000
s_mov_b32 {sr(SWS+2)}, {F_WS_END}
s_mov_b32 {sr(SWS+3)}, 0x20000
s_mov_b32 {sr(SDBG+2)}, 256
s_mov_b32 {sr(SDBG+3)}, 0x20000
s_mov_b32 {sr(SWO+2)}, {640*1280}
s_mov_b32 {sr(SWO+3)}, 0x20000
s_mov_b32 {sr(SOUT+2)}, {2048*2560}
s_mov_b32 {sr(SOUT+3)}, 0x20000''')
    st1()
    n_common = st.n
    a(f'''s_cmp_ge_u32 {sr(sW)}, 8
s_cbranch_scc1 {name}_helper''')

    def w_pattern(dst, first, last):
        a(f'''{first}
v_mul_u32_u24 {vr(vT1)}, 2185, {vr(vT0)}
v_lshrrev_b32 {vr(vT1)}, 16, {vr(vT1)}
v_mul_u32_u24 {vr(vT2)}, 30, {vr(vT1)}
v_sub_u32 {vr(vT0)}, {vr(vT0)}, {vr(vT2)}
v_and_b32 {vr(vT2)}, 0x13, {vr(vT1)}
v_bfe_u32 {vr(vT3)}, {vr(vT1)}, 2, 1
v_lshl_or_b32 {vr(vT2)}, {vr(vT3)}, 3, {vr(vT2)}
v_bfe_u32 {vr(vT3)}, {vr(vT1)}, 3, 1
v_lshl_or_b32 {vr(vT2)}, {vr(vT3)}, 2, {vr(vT2)}
v_mul_u32_u24 {vr(vT2)}, 3840, {vr(vT2)}
v_mul_u32_u24 {vr(vT1)}, 26, {vr(vT0)}
v_lshrrev_b32 {vr(vT1)}, 8, {vr(vT1)}
v_mul_u32_u24 {vr(vT1)}, {1280-160}, {vr(vT1)}
v_lshl_add_u32 {vr(vT0)}, {vr(vT0)}, 4, {vr(vT1)}
v_add3_u32 {vr(dst)}, {vr(vT0)}, {vr(vT2)}, {last}''')

    VP = VAlloc(VBASE)
    vIdx = VP()
    vaK1 = VP(); vaK2 = VP(); vaV = VP()
    vbK1 = VP(); vbK2 = VP(); vbV = VP(); vmK2 = VP(); vmV = VP()
    vQo = VP(); vQo2 = VP(); vQs1 = VP(); vQs2 = VP(); vPub = VP()
    VB2 = VP.n
    V = VAlloc(VB2)
    vEp7 = V(); vCi7 = V(); vZ7 = V()
    vXr = [[V(), V()] for _ in range(3)]
    vWa = [V() for _ in range(3)]
    vWb = [V() for _ in range(3)]
    vE = [V() for _ in range(6)]
    Xf = [[V(4), V(4)], [V(4), V(4)]]
    Wf = [[V(4) for _ in range(4)] for _ in range(2)]
    acc = [[V(4), V(4)] for _ in range(8)]
    done_alloc(V)
    vDX = Wf[0][0]; vDW = [Wf[0][0] + 1, Wf[0][0] + 2]
    a(f'''s_lshl_b32 {sr(sT)}, {sr(sMt)}, 7
s_lshl_b32 {sr(sT2)}, {sr(sW)}, 3
s_add_u32 {sr(sT)}, {sr(sT)}, {sr(sT2)}
v_lshrrev_b32 {vr(vT0)}, 3, {vr(vLane)}
v_add_u32 {vr(vT0)}, {sr(sT)}, {vr(vT0)}
v_mul_u32_u24 {vr(vT0)}, 1280, {vr(vT0)}
s_and_b32 {sr(sT)}, {sr(sW)}, 1
s_lshl_b32 {sr(sT)}, {sr(sT)}, 2
v_lshrrev_b32 {vr(vT1)}, 4, {vr(vLane)}
v_add_u32 {vr(vT2)}, {sr(sT)}, {vr(vT1)}
v_and_b32 {vr(vT3)}, 7, {vr(vLane)}
v_xor_b32 {vr(vT2)}, {vr(vT2)}, {vr(vT3)}
v_lshl_add_u32 {vr(vDX)}, {vr(vT2)}, 4, {vr(vT0)}
s_lshl_b32 {sr(sM0a)}, {sr(sW)}, 10
s_lshl_b32 {sr(sXo)}, {sr(sKK)}, 7
s_mul_i32 {sr(sWo)}, {sr(sKK)}, {64*3840}
s_mov_b32 m0, {sr(sM0a)}
s_add_u32 {sr(sT)}, {sr(sXo)}, 81920
buffer_load_dwordx4 {vr(vDX)}, {sr(SX,4)}, {sr(sXo)} offen lds
s_add_u32 m0, {sr(sM0a)}, 8192
s_add_u32 {sr(sT2)}, {sr(sW)}, 8
buffer_load_dwordx4 {vr(vDX)}, {sr(SX,4)}, {sr(sT)} offen lds
s_cmp_eq_u32 {sr(sW)}, 7
s_cselect_b32 {sr(sT2)}, 7, {sr(sT2)}
s_lshl_b32 {sr(sM0b)}, {sr(sT2)}, 10''')
    for pi, sm in ((0, sM0a), (1, sM0b)):
        a(f's_lshr_b32 {sr(sT)}, {sr(sm)}, 4')
        w_pattern(vDW[pi], f'v_add_u32 {vr(vT0)}, {sr(sT)}, {vr(vLane)}', sr(sT3))
        for half in range(2):
            a(f's_add_u32 m0, {sr(sm)}, {XSZ + half*15360}')
            a(f's_add_u32 {sr(sT)}, {sr(sWo)}, {half*32*3840}')
            a(f'buffer_load_dwordx4 {vr(vDW[pi])}, {sr(SWQ,4)}, {sr(sT)} offen lds')
    st1()
    a('s_barrier')
    st1()
    a(f'''s_cmp_eq_u32 {sr(sW)}, 7
s_cselect_b32 {sr(sM)}, 1, 0
s_mov_b32 {sr(sM+1)}, 0
v_mov_b32 {vr(vT1)}, {OOB}
v_cndmask_b32_e64 {vr(vZ7)}, {vr(vT1)}, 0, {sr(sM,2)}
v_mov_b32 {vr(vT0)}, {F_EPOCH}
buffer_load_dword {vr(vEp7)}, {vr(vT0)}, {sr(SWS,4)}, 0 offen{SC}''')
    a(f'''s_and_b32 {sr(sT)}, {sr(sW)}, 3
s_lshl_b32 {sr(sT)}, {sr(sT)}, 5
v_and_b32 {vr(vT0)}, 15, {vr(vLane)}
v_lshrrev_b32 {vr(vT1)}, 4, {vr(vLane)}
v_lshrrev_b32 {vr(vT2)}, 1, {vr(vT0)}
v_xor_b32 {vr(vT2)}, {vr(vT2)}, {vr(vT1)}
v_add_u32 {vr(vT0)}, {sr(sT)}, {vr(vT0)}
v_lshlrev_b32 {vr(vT0)}, 7, {vr(vT0)}
v_lshl_add_u32 {vr(vXr[0][0])}, {vr(vT2)}, 4, {vr(vT0)}
v_xor_b32 {vr(vXr[0][1])}, 64, {vr(vXr[0][0])}
v_lshrrev_b32 {vr(vT0)}, 5, {vr(vLane)}
v_lshlrev_b32 {vr(vT0)}, 4, {vr(vT0)}
v_bfe_u32 {vr(vT2)}, {vr(vLane)}, 4, 1
v_lshl_add_u32 {vr(vT0)}, {vr(vT2)}, 2, {vr(vT0)}
v_bfe_u32 {vr(vT2)}, {vr(vLane)}, 2, 2
v_add_u32 {vr(vT0)}, {vr(vT0)}, {vr(vT2)}
v_mul_u32_u24 {vr(vT0)}, 480, {vr(vT0)}
v_add_u32 {vr(vT5)}, {XSZ}, {vr(vT0)}
v_bfe_u32 {vr(vT2)}, {vr(vLane)}, 1, 1
v_mul_u32_u24 {vr(vT2)}, 40, {vr(vT2)}
v_and_b32 {vr(vT3)}, 1, {vr(vLane)}
v_lshl_add_u32 {vr(vT2)}, {vr(vT3)}, 4, {vr(vT2)}
v_add_u32 {vr(vWa[0])}, {vr(vT5)}, {vr(vT2)}
s_cmp_ge_u32 {sr(sW)}, 4
s_cselect_b32 {sr(sT)}, 8, 40
v_and_b32 {vr(vT2)}, 3, {vr(vLane)}
v_mad_u32_u24 {vr(vWb[0])}, {vr(vT2)}, {sr(sT)}, {vr(vT5)}''')
    for s_ in (1, 2):
        a(f'v_add_u32 {vr(vXr[s_][0])}, {s_*STG}, {vr(vXr[0][0])}')
        a(f'v_add_u32 {vr(vXr[s_][1])}, {s_*STG}, {vr(vXr[0][1])}')
        a(f'v_add_u32 {vr(vWa[s_])}, {s_*STG}, {vr(vWa[0])}')
        a(f'v_add_u32 {vr(vWb[s_])}, {s_*STG}, {vr(vWb[0])}')
    a(f'''s_lshr_b32 {sr(sT)}, {sr(sW)}, 1
s_mul_i32 {sr(sT2)}, {sr(sT)}, 10240
v_lshlrev_b32 {vr(vQo)}, 4, {vr(vLane)}
v_lshlrev_b32 {vr(vT0)}, 3, {vr(vLane)}
v_add_u32 {vr(vT0)}, 1024, {vr(vT0)}
v_mov_b32 {vr(vT1)}, {OOB}
v_cndmask_b32_e64 {vr(vQo2)}, {vr(vT0)}, {vr(vT1)}, {sr(sHi,2)}
v_add_u32 {vr(vbK1)}, {sr(sT2)}, {vr(vQo)}
v_add_u32 {vr(vT0)}, {sr(sT2)}, {vr(vT0)}
v_mov_b32 {vr(vT1)}, {ONES}
v_cndmask_b32_e64 {vr(vbK2)}, {vr(vT0)}, {vr(vT1)}, {sr(sHi,2)}
v_cndmask_b32_e64 {vr(vmK2)}, 1, 0, {sr(sHi,2)}
v_and_b32 {vr(vT2)}, 31, {vr(vLane)}
v_lshrrev_b32 {vr(vT3)}, 5, {vr(vLane)}
v_mul_u32_u24 {vr(vT3)}, 320, {vr(vT3)}
v_lshl_add_u32 {vr(vT3)}, {vr(vT2)}, 4, {vr(vT3)}
s_add_u32 {sr(sT3)}, {sr(sT2)}, 1280
v_add_u32 {vr(vT3)}, {sr(sT3)}, {vr(vT3)}
v_cmp_gt_u32 vcc, 20, {vr(vT2)}
v_mov_b32 {vr(vIdx)}, 0xdddddddd
v_mov_b32 {vr(vaK1)}, {vr(vbK1)}
v_cndmask_b32 {vr(vbV)}, {vr(vT1)}, {vr(vT3)}, vcc
v_cndmask_b32_e64 {vr(vmV)}, 0, 1, vcc
v_cmp_lt_u32 vcc, 20, {vr(vT2)}
v_add_u32 {vr(vT3)}, 16, {vr(vT1)}
v_mov_b32 {vr(vaK2)}, {vr(vbK2)}
v_cndmask_b32 {vr(vbV)}, {vr(vbV)}, {vr(vT3)}, vcc
v_mov_b32 {vr(vaV)}, {vr(vbV)}
s_mul_i32 {sr(sT2)}, {sr(sW)}, 2560
s_add_u32 {sr(sT2)}, {sr(sT2)}, {QST}
v_add_u32 {vr(vQs1)}, {sr(sT2)}, {vr(vQo)}
v_and_b32 {vr(vQs2)}, 31, {vr(vLane)}
v_lshlrev_b32 {vr(vQs2)}, 3, {vr(vQs2)}
s_add_u32 {sr(sT2)}, {sr(sT2)}, 1024
v_add_u32 {vr(vQs2)}, {sr(sT2)}, {vr(vQs2)}
s_lshl_b32 {sr(sT2)}, {sr(sB)}, 4
s_add_u32 {sr(sT2)}, {sr(sT2)}, {sr(sMt)}
s_lshl_b32 {sr(sT2)}, {sr(sT2)}, 1
s_and_b32 {sr(sT3)}, {sr(sW)}, 1
s_add_u32 {sr(sT2)}, {sr(sT2)}, {sr(sT3)}
s_lshl_b32 {sr(sT2)}, {sr(sT2)}, 5
s_lshl_b32 {sr(sT3)}, {sr(sHg)}, 2
s_add_u32 {sr(sT2)}, {sr(sT2)}, {sr(sT3)}
s_add_u32 {sr(sT2)}, {sr(sT2)}, {sr(sT)}
s_mul_i32 {sr(sOo)}, {sr(sT2)}, 2560
s_add_u32 {sr(sOo)}, {sr(sOo)}, {F_WS_O}
s_mul_i32 {sr(sT)}, {sr(sT)}, {KV_HEAD}
s_add_u32 {sr(sKV)}, {sr(sKV)}, {sr(sT)}
s_and_b32 {sr(sT)}, {sr(sW)}, 1
s_mul_i32 {sr(sT)}, {sr(sT)}, 5120
v_add_u32 {vr(vPub)}, {sr(sT)}, {vr(vbK1)}
s_mul_i32 {sr(sT2)}, {sr(sMt)}, 10240
s_add_u32 {sr(sT)}, {sr(sT)}, {sr(sT2)}
s_add_u32 {sr(sPub)}, {sr(sT)}, {sr(sKV)}
s_add_u32 {sr(sPub2)}, {sr(sPub)}, 4096''')
    for ct in range(8):
        for tt in range(2):
            for i in range(4):
                a(f'v_mov_b32 {vr(acc[ct][tt]+i)}, 0')
    a(f'''s_mov_b32 {sr(sScale)}, {QSCALE}
s_mov_b32 {sr(sScale+1)}, {QSCALE}
s_and_b32 {sr(sT3)}, {sr(sW)}, 3
v_and_b32 {vr(vT0)}, 15, {vr(vLane)}
v_lshrrev_b32 {vr(vT1)}, 4, {vr(vLane)}
v_lshrrev_b32 {vr(vT2)}, 2, {vr(vT0)}
v_and_b32 {vr(vT3)}, 3, {vr(vT0)}
v_lshl_add_u32 {vr(vT4)}, {vr(vT2)}, 3, {vr(vT3)}
v_lshrrev_b32 {vr(vT2)}, 1, {vr(vT1)}
v_and_b32 {vr(vT3)}, 1, {vr(vT1)}
s_mul_i32 {sr(sT)}, {sr(sT3)}, 2560
v_mul_u32_u24 {vr(vE[0])}, 10240, {vr(vT2)}
v_lshl_add_u32 {vr(vE[0])}, {vr(vT3)}, 9, {vr(vE[0])}
v_lshl_add_u32 {vr(vE[0])}, {vr(vT4)}, 4, {vr(vE[0])}
v_add_u32 {vr(vE[0])}, {sr(sT)}, {vr(vE[0])}
s_cmp_ge_u32 {sr(sW)}, 4
s_cbranch_scc1 {name}_p1b''')

    def p1_variant(wn):
        if wn == 0:
            kinds = [('P', 0, 0, 0), ('P', 0, 0, 1), ('P', 0, 1, 0), ('P', 0, 1, 1), ('T', 0, 0, 0), ('P', 1, 0, 0), ('P', 1, 0, 1), ('T', 1, 0, 0)]
            a(f'''s_add_u32 {sr(sT2)}, {sr(sT)}, 1024
v_mul_u32_u24 {vr(vE[1])}, 10240, {vr(vT1)}
v_lshl_add_u32 {vr(vE[1])}, {vr(vT4)}, 3, {vr(vE[1])}
v_add_u32 {vr(vE[1])}, {sr(sT2)}, {vr(vE[1])}
s_mul_i32 {sr(sT)}, {sr(sT3)}, 1280
s_add_u32 {sr(sT)}, {sr(sT)}, {QST}
v_mul_u32_u24 {vr(vE[2])}, 5120, {vr(vT2)}
v_lshl_add_u32 {vr(vE[2])}, {vr(vT3)}, 9, {vr(vE[2])}
v_lshl_add_u32 {vr(vE[2])}, {vr(vT0)}, 4, {vr(vE[2])}
v_add_u32 {vr(vE[2])}, {sr(sT)}, {vr(vE[2])}
s_add_u32 {sr(sT)}, {sr(sT)}, 1024
v_mul_u32_u24 {vr(vE[3])}, 5120, {vr(vT1)}
v_lshl_add_u32 {vr(vE[3])}, {vr(vT0)}, 3, {vr(vE[3])}
v_add_u32 {vr(vE[3])}, {sr(sT)}, {vr(vE[3])}''')
        else:
            kinds = [('P', 1, 1, 0), ('P', 1, 1, 1)] + [('V', 2, i, 0) for i in range(5)]
            a(f'''s_add_u32 {sr(sT)}, {sr(sT)}, 1280
v_mul_u32_u24 {vr(vT2)}, 640, {vr(vT2)}
v_mul_u32_u24 {vr(vT3)}, 320, {vr(vT3)}
v_add3_u32 {vr(vT5)}, {vr(vT2)}, {vr(vT3)}, {sr(sT)}''')
            for i in range(5):
                a(f'''v_add_u32 {vr(vT2)}, {16*i}, {vr(vT0)}
v_mul_u32_u24 {vr(vT3)}, 3277, {vr(vT2)}
v_lshrrev_b32 {vr(vT3)}, 16, {vr(vT3)}
v_mul_u32_u24 {vr(vT3)}, {10240-320}, {vr(vT3)}
v_lshl_add_u32 {vr(vT2)}, {vr(vT2)}, 4, {vr(vT3)}
v_add_u32 {vr(vE[1+i])}, {vr(vT2)}, {vr(vT5)}''')
        nct = len(kinds)
        grp = [list(range(0, 4)), list(range(4, nct))]
        def rd_x(step, s2):
            return [f'ds_read_b128 {vr(Xf[s2][tt],4)}, {vr(vXr[step%3][s2])} offset:{tt*2048}' for tt in range(2)]
        def rd_w(step, s2, h, idx):
            ty, sec, sub, e = kinds[grp[h][idx]]
            base = (vWa if ty == 'P' else vWb)[step % 3]
            col = sec*160 + {'P': sub*80 + e*8, 'T': 32, 'V': sub*32}[ty]
            return [f'ds_read_b64_tr_b16 {vr(Wf[h][idx]+2*rd,2)}, {vr(base)} offset:{(32*s2+8*rd)*480 + col}' for rd in range(2)]
        def mf(s2, h, idx):
            ct = grp[h][idx]
            out = []
            for tt in range(2):
                A, B = Wf[h][idx], Xf[s2][tt]
                if kinds[ct][0] == 'V':
                    A, B = B, A
                out.append(f'v_mfma_f32_16x16x32_bf16 {vr(acc[ct][tt],4)}, {vr(A,4)}, {vr(B,4)}, {vr(acc[ct][tt],4)}')
            return out
        n0, n1 = 2 + 2*len(grp[0]), 2*len(grp[1])
        def phase(s2, h, nxt):
            if nxt is not None and h == 0:
                for r in rd_x(*nxt): a(r)
            for idx in range(len(grp[h])):
                for m in mf(s2, h, idx): a(m)
                if nxt is not None:
                    for r in rd_w(nxt[0], nxt[1], h, idx): a(r)
        st1()
        a('s_waitcnt vmcnt(0)')
        a(f'v_readfirstlane_b32 {sr(sTag)}, {vr(vEp7)}')
        a('s_barrier')
        a(f's_add_u32 {sr(sTag)}, {sr(sTag)}, {TAGK}')
        rts(1)
        st()
        for r in rd_x(0, 0): a(r)
        for h in range(2):
            for idx in range(len(grp[h])):
                for r in rd_w(0, 0, h, idx): a(r)
        for step in range(10):
            if step == 9 and hsplit:
                a('s_barrier')
            a(f's_waitcnt lgkmcnt({n1})')
            phase(0, 0, (step, 1))
            a(f's_waitcnt lgkmcnt({n0})')
            phase(0, 1, (step, 1))
            a('s_waitcnt lgkmcnt(0)')
            a('s_barrier')
            if step == 0 and wn == 1:
                a(f'v_mov_b32 {vr(vCi7)}, 1')
                a(f'buffer_atomic_add {vr(vCi7)}, {vr(vZ7)}, {sr(SDBG,4)}, 0 offen sc0')
            if step in (0, 4): st0()
            if step in (0, 1, 2, 8): st1()
            if step in (8, 9): st4()
            nx = (step + 1, 0) if step < 9 else None
            phase(1, 0, nx)
            phase(1, 1, nx)
        st0(); st4()
        rts(2)
        if wn == 1:
            a(f'''s_waitcnt vmcnt(0)
v_cmp_eq_u32 vcc, 255, {vr(vCi7)}
v_add_u32 {vr(vEp7)}, {TAGK}, {vr(vEp7)}
v_mov_b32 {vr(vT1)}, {OOB}
s_mov_b32 {sr(sT)}, {F_EPOCH}
v_cndmask_b32 {vr(vZ7)}, {vr(vT1)}, {vr(vZ7)}, vcc
buffer_store_dword {vr(vEp7)}, {vr(vZ7)}, {sr(SWS,4)}, {sr(sT)} offen{SC}''')
        def scale(r0):
            a(f'v_pk_mul_f32 {vr(r0,2)}, {vr(r0,2)}, {sr(sScale,2)}')
            a(f'v_pk_mul_f32 {vr(r0+2,2)}, {vr(r0+2,2)}, {sr(sScale,2)}')
        def pack4(d, x, y):
            a(f'v_cvt_pk_bf16_f32 {vr(d)}, {vr(x)}, {vr(x+1)}')
            a(f'v_cvt_pk_bf16_f32 {vr(d+1)}, {vr(x+2)}, {vr(x+3)}')
            if y is not None:
                a(f'v_cvt_pk_bf16_f32 {vr(d+2)}, {vr(y)}, {vr(y+1)}')
                a(f'v_cvt_pk_bf16_f32 {vr(d+3)}, {vr(y+2)}, {vr(y+3)}')
        def stage(want):
          ct = 0
          while ct < nct:
            ty, sec, sub, e = kinds[ct]
            if (sec == 0) != want:
                ct += 1
                continue
            if ty == 'P':
                for tt in range(2):
                    x, y = acc[ct][tt], acc[ct+1][tt]
                    if sec == 0:
                        scale(x); scale(y)
                    pack4(x, x, y)
                    if sec == 0:
                        a(f'ds_write_b128 {vr(vE[2])}, {vr(x,4)} offset:{sub*10240 + tt*256}')
                    else:
                        a(f'ds_write_b128 {vr(vE[0])}, {vr(x,4)} offset:{sub*20480 + tt*64}')
                ct += 2
            elif ty == 'T':
                for tt in range(2):
                    x = acc[ct][tt]
                    if sec == 0:
                        scale(x)
                    pack4(x, x, None)
                    if sec == 0:
                        a(f'ds_write_b64 {vr(vE[3])}, {vr(x,2)} offset:{tt*128}')
                    else:
                        a(f'ds_write_b64 {vr(vE[1])}, {vr(x,2)} offset:{tt*32}')
                ct += 1
            else:
                x, y = acc[ct][0], acc[ct][1]
                pack4(x, x, y)
                a(f'ds_write_b128 {vr(vE[1+sub])}, {vr(x,4)}')
                ct += 1
        stage(False)
        a('s_waitcnt lgkmcnt(0)')
        st4()
        a('s_barrier')
        st4()
        PB = Xf[0][0]
        assert Wf[0][0] == PB + 16
        for q in range(5):
            a(f'ds_read_b128 {vr(PB+4*q,4)}, {vr(vPub)} offset:{q*1024}')
        stage(True)
        nq = 6 if wn == 0 else 0
        for q in range(5):
            a(f's_waitcnt lgkmcnt({4 - q + nq})')
            a(f'buffer_store_dwordx4 {vr(PB+4*q,4)}, {vr(vQo)}, {sr(SWS,4)}, {sr(sPub if q < 4 else sPub2)} offen offset:{(q%4)*1024}{SST}')
        a('s_nop 1')
        st4()
    n_st = st.n
    p1_variant(0)
    a(f's_branch {name}_p2')
    a.label(f'{name}_p1b')
    st.n = n_st
    p1_variant(1)
    a.label(f'{name}_p2')

    V = VAlloc(VB2 + 3)
    Q1 = [V(4), V(4)]; Q2 = [V(2), V(2)]
    K1 = [V(4), V(4)]; K2 = [V(2), V(2)]
    V0 = [V(4), V(4)]; V1 = [V(4), V(4)]
    O = [V(16), V(16)]
    S = [V(16), V(16)]
    vPw = V(2); vPa = V(); vPo_ = V(); vPg = V()
    done_alloc(V)
    for t in range(2):
        for i in range(16):
            a(f'v_mov_b32 {vr(O[t]+i)}, 0')
    for i in range(4):
        a(f'v_mov_b32 {vr(V1[1]+i)}, 0')
    a(f's_mov_b32 {sr(sG)}, 0')
    a(f's_mov_b32 {sr(sOff)}, 0')
    if nobar:
        a(f'''s_lshl_b32 {sr(sT)}, {sr(sW)}, 3
s_add_u32 {sr(sT2)}, {sr(sT)}, {LW_PW + 4}
s_xor_b32 {sr(sT)}, {sr(sT)}, 32
s_add_u32 {sr(sT)}, {sr(sT)}, {LW_PW}
v_mov_b32 {vr(vPa)}, {sr(sT)}
v_mov_b32 {vr(vPo_)}, {sr(sT2)}
v_mov_b32 {vr(vPg)}, 0''')
    a('s_waitcnt lgkmcnt(0)')
    a('s_barrier')
    st0(); st4()
    def rdK(s_, u, part='R'):
        if part != 'Rb': a(f'ds_read_b128 {vr(K1[s_],4)}, {vr(vaK1)} offset:{2560*u}')
        if part != 'Ra': a(f'ds_read_b64 {vr(K2[s_],2)}, {vr(vaK2)} offset:{2560*u}')
    def rdV(s_, u, part='R'):
        if part != 'Rb': a(f'ds_read_b128 {vr(V0[s_],4)}, {vr(vaV)} offset:{2560*u}')
        if part != 'Ra': a(f'ds_read_b128 {vr(V1[s_],4)}, {vr(vaV)} offset:{2560*u+640}')
    def qk16(t, s_):
        a(f'v_mfma_f32_32x32x16_bf16 {vr(S[t],16)}, {vr(K1[s_],4)}, {vr(Q1[t],4)}, 0')
    def qk8(t, s_):
        a(f'v_mfma_f32_32x32x8_bf16 {vr(S[t],16)}, {vr(K2[s_],2)}, {vr(Q2[t],2)}, {vr(S[t],16)}')
    def pv(t, s_, n):
        Vf = (V0, V1)[n][s_]
        a(f'v_smfmac_f32_32x32x32_bf16 {vr(O[t],16)}, {vr(Vf,4)}, {vr(S[t]+8*n,8)}, {vr(vIdx)}')
    def rowmax(t, dst):
        s = S[t]
        a(f'v_max3_f32 {vr(dst)}, {vr(s)}, {vr(s+1)}, {vr(s+2)}')
        for i in range(3, 15, 2):
            a(f'v_max3_f32 {vr(dst)}, {vr(dst)}, {vr(s+i)}, {vr(s+i+1)}')
        a(f'v_max_f32 {vr(dst)}, {vr(dst)}, {vr(s+15)}')
    def crosshalf(x, y):
        a(f'v_mov_b32 {vr(y)}, {vr(x)}')
        a('s_nop 1')
        a(f'v_permlane32_swap_b32 {vr(x)}, {vr(y)}')
        a('s_nop 1')
    for t in range(2):
        a(f'ds_read_b128 {vr(Q1[t],4)}, {vr(vQs1)} offset:{1280*t}')
        a(f'ds_read_b64 {vr(Q2[t],2)}, {vr(vQs2)} offset:{1280*t}')
    rdK(0, 0); rdK(1, 1); rdV(0, 0)
    a('s_waitcnt lgkmcnt(4)')
    for t in range(2):
        a(f'v_cndmask_b32_e64 {vr(Q2[t])}, {vr(Q2[t])}, 0, {sr(sHi,2)}')
        a(f'v_cndmask_b32_e64 {vr(Q2[t]+1)}, {vr(Q2[t]+1)}, 0, {sr(sHi,2)}')
    qk16(0, 0); qk8(0, 0); qk16(1, 0); qk8(1, 0)
    a('s_nop 9')
    for t in range(2):
        if t == 1: a('s_nop 1')
        rowmax(t, vT0)
        crosshalf(vT0, vT1)
        a(f'''v_max_f32 {vr(vT0)}, {vr(vT0)}, {vr(vT1)}
v_sub_f32 {vr(vT0)}, 0, {vr(vT0)}
v_and_b32 {vr(vT1)}, 0xffff0000, {vr(vT0)}
v_sub_f32 {vr(vT0)}, {vr(vT0)}, {vr(vT1)}
v_and_b32 {vr(vT2)}, 0xffff0000, {vr(vT0)}
v_sub_f32 {vr(vT0)}, {vr(vT0)}, {vr(vT2)}
v_lshrrev_b32 {vr(vT1)}, 16, {vr(vT1)}
v_or_b32 {vr(vT1)}, {vr(vT1)}, {vr(vT2)}
v_lshrrev_b32 {vr(vT0)}, 16, {vr(vT0)}
v_cndmask_b32_e64 {vr(Q2[t])}, {vr(Q2[t])}, {vr(vT1)}, {sr(sHi,2)}
v_cndmask_b32_e64 {vr(Q2[t]+1)}, {vr(Q2[t]+1)}, {vr(vT0)}, {sr(sHi,2)}''')
        if t == 0:
            qk16(0, 0)
            a('s_nop 0')
            qk8(0, 0)
    for i in range(8, 16):
        a(f'v_mov_b32 {vr(S[1]+i)}, 0')
    st4()
    a(f'''s_lshl_b32 {sr(sT)}, {sr(sB)}, 3
s_add_u32 {sr(sT)}, {sr(sT)}, {sr(sHg)}
s_lshl_b32 {sr(sT)}, {sr(sT)}, 6
s_add_u32 {sr(sT)}, {sr(sT)}, {sr(sMt)}
s_lshl_b32 {sr(sT)}, {sr(sT)}, 2
s_add_u32 {sr(sT)}, {sr(sT)}, {F_FLAG1}
s_mov_b64 exec, 1
v_mov_b32 {vr(vT0)}, 1
v_mov_b32 {vr(vT2)}, {LW_CNT1}
v_mov_b32 {vr(vT1)}, {sr(sTag)}
v_mov_b32 {vr(vT3)}, {sr(sT)}
s_waitcnt vmcnt(0)
ds_add_rtn_u32 {vr(vT0)}, {vr(vT2)}, {vr(vT0)}
s_waitcnt lgkmcnt(0)
v_readfirstlane_b32 {sr(sT)}, {vr(vT0)}
s_cmp_eq_u32 {sr(sT)}, 7
s_cbranch_scc0 {name}_nl1
buffer_store_dword {vr(vT1)}, {vr(vT3)}, {sr(SWS,4)}, 0 offen{SC}''')
    a.label(f'{name}_nl1')
    a('s_mov_b64 exec, -1')
    prio = opts.get('prio', 1)
    rts(3)
    st0(); st4()
    if sset == 2: st()
    a('.p2align 6')
    a.label(f'{name}_loop')
    def ex(t, i):
        a(f'v_exp_f32 {vr(S[t]+i)}, {vr(S[t]+i)}')
    scheds = {1: 'e e P2 e e e e Q16 e e e e Q8 R e e e e P1 W e e',
              2: 'e e P2 e e e e Q16 e e e Q8 R e e e e e P1 W e e',
              3: 'e e P2 e e e e Q16 e e e e Q8 e R e e e P1 e W e',
              4: 'e e P2 e e e Q16 e e e e Q8 R e e e e P1 W e e e',
              5: 'e e W P2 e e e e Ra Q16 e e e e Rb Q8 e e e e P1 e e',
              6: 'e e W P2 e e e e R Q16 e e e e Q8 e e e e P1 e e',
              7: 'e e W P2 e e e e Q16 e e e e Ra Q8 e e e e Rb P1 e e',
              8: 'e e P2 e e e e Ra Q16 e e e e Rb Q8 e e e e W P1 e e',
              9: 'e e P2 e e e e Q16 e e e e Q8 e e e e R W P1 e e',
              10: 'e e P2 Ra e e e e Q16 Rb e e e e Q8 W e e e e P1 e e',
              11: 'e e P2 Ra e e e e Q16 Rb e e e e Q8 e e e e P1 W e e',
              12: 'e e P2 R e e e e Q16 e e e e Q8 e e e e P1 W e e'}
    sched = scheds[opts.get('sched', 11)].split()
    unroll = opts.get('unroll', 1)
    ptab = {1: {(0, 0): 2, (1, 0): 1, (2, 0): 0, (3, 0): 3},
            2: {(3, 0): 1, (1, 0): 0},
            3: {(3, 0): 3, (3, 1): 2, (0, 1): 1, (1, 1): 0},
            6: {(3, 0): 3, (0, 1): 2, (1, 1): 1, (2, 0): 0}}.get(prio, {})
    for rep in range(unroll):
      for j in range(4):
        for t in range(2):
            pj = j if t == 1 else j - 1
            nj = j if t == 0 else j + 1
            if (j, t) in ptab and nobar != 1:
                a(f's_setprio {ptab[(j, t)]}')
            e = 0
            for tok in sched:
                if tok == 'e':
                    ex(t, e); e += 1
                elif tok == 'P2':
                    pv(1 - t, pj % 2, 1)
                elif tok == 'P1':
                    pv(t, j % 2, 0)
                elif tok == 'Q16':
                    qk16(1 - t, nj % 2)
                elif tok == 'Q8':
                    qk8(1 - t, nj % 2)
                elif tok == 'W':
                    a(f's_waitcnt lgkmcnt({3 if nobar and (j, t) in ((2, 0), (2, 1)) else 2})')
                elif tok == 'Rb':
                    if t == 0: rdV((j + 1) % 2, (j + 1) % 4, 'Rb')
                    else: rdK(j % 2, (j + 2) % 4, 'Rb')
                elif tok in ('R', 'Ra'):
                    if t == 0:
                        if j == 3:
                            a(f'v_mad_u32_u24 {vr(vaV)}, {vr(vmV)}, {sr(sOff)}, {vr(vbV)}')
                        rdV((j + 1) % 2, (j + 1) % 4, tok)
                        if j == 2 and nobar:
                            a(f'ds_read_b64 {vr(vPw,2)}, {vr(vPa)}')
                    else:
                        if j == 2:
                            a(f'''s_add_u32 {sr(sOff)}, {sr(sOff)}, {SLOT}
s_cmp_ge_u32 {sr(sOff)}, {3*SLOT}
s_cselect_b32 {sr(sOff)}, 0, {sr(sOff)}''')
                            if nobar:
                                a(f'''v_add_u32 {vr(vPg)}, 1, {vr(vPg)}
s_add_u32 {sr(sT3)}, {sr(sG)}, {rep + 1}
s_waitcnt lgkmcnt(0)
v_readfirstlane_b32 {sr(sT)}, {vr(vPw)}
v_readfirstlane_b32 {sr(sT2)}, {vr(vPw+1)}
ds_write_b32 {vr(vPo_)}, {vr(vPg)}''')
                                if nobar == 1:
                                    a(f'''s_setprio 0
s_cmp_lt_u32 {sr(sT2)}, {sr(sT3)}
s_cbranch_scc1 {name}_lo{rep}
s_setprio 1''')
                                    a.label(f'{name}_lo{rep}')
                                elif nobar == 2:
                                    a(f's_add_u32 {sr(sT2)}, {sr(sT2)}, {1 + opts.get("slack", 0)}')
                                    a(f's_min_u32 {sr(sT)}, {sr(sT)}, {sr(sT2)}')
                                a(f's_cmp_gt_u32 {sr(sT)}, {sr(sT3)}')
                                a(f's_cbranch_scc0 {name}_spin{rep}')
                                a.label(f'{name}_spun{rep}')
                            else:
                                a('s_waitcnt lgkmcnt(0)')
                                a('s_barrier')
                            if sset == 2 and st.on:
                                for K in (0, 1, 2, 3, 8, 14):
                                    a(f's_cmp_eq_u32 {sr(sG)}, {K}')
                                    a(f's_cbranch_scc0 {name}_sk{K}')
                                    st()
                                    a.label(f'{name}_sk{K}')
                            a(f'''v_add_u32 {vr(vaK1)}, {sr(sOff)}, {vr(vbK1)}
v_mad_u32_u24 {vr(vaK2)}, {vr(vmK2)}, {sr(sOff)}, {vr(vbK2)}''')
                        rdK(j % 2, (j + 2) % 4, tok)
            assert e == 16
    a(f'''s_add_u32 {sr(sG)}, {sr(sG)}, {unroll}
s_cmp_lt_u32 {sr(sG)}, 16
s_cbranch_scc1 {name}_loop''')
    a('s_nop 1')
    pv(1, 1, 1)
    if ptab or nobar:
        a('s_setprio 0')
    st0()
    if sset in (2, 3): st()
    L = [vT2, vT3]
    rts(4)
    a('s_waitcnt lgkmcnt(0)')
    a(f's_mov_b32 {sr(sI)}, 0')
    a.label(f'{name}_store')
    a(f's_mov_b32 {sr(sM)}, 0xaaaaaaaa')
    a(f's_mov_b32 {sr(sM+1)}, 0xaaaaaaaa')
    for t in range(2):
        a(f'v_mov_b32 {vr(vT0)}, {vr(O[t]+8)}')
        crosshalf(vT0, L[t])
        a(f'v_rcp_f32 {vr(vT0)}, {vr(L[t])}')
        a('s_nop 0')
        for i in range(12):
            a(f'v_mul_f32 {vr(O[t]+i)}, {vr(O[t]+i)}, {vr(vT0)}')
        for i in range(4):
            a(f'v_cvt_pk_bf16_f32 {vr(S[t]+i)}, {vr(O[t]+2*i)}, {vr(O[t]+2*i+1)}')
        a(f'buffer_store_dwordx4 {vr(S[t],4)}, {vr(vQo)}, {sr(SWS,4)}, {sr(sOo)} offen offset:{1024*t}{SST}')
        for i in range(2):
            a(f'v_cvt_pk_bf16_f32 {vr(S[0]+4+2*t+i)}, {vr(O[t]+8+2*i)}, {vr(O[t]+8+2*i+1)}')
    ta, tb, X, Y = S[0]+4, S[0]+6, S[0]+8, S[0]+12
    a(f'''v_cndmask_b32_e64 {vr(X)}, {vr(tb)}, {vr(ta)}, {sr(sM,2)}
v_cndmask_b32_e64 {vr(X+1)}, {vr(tb+1)}, {vr(ta+1)}, {sr(sM,2)}
v_lshrrev_b32 {vr(vT0)}, 1, {vr(vLane)}
v_and_b32 {vr(vT1)}, 1, {vr(vLane)}
v_mov_b32_dpp {vr(X+2)}, {vr(X)} quad_perm:[1,0,3,2] row_mask:0xf bank_mask:0xf
v_mov_b32_dpp {vr(X+3)}, {vr(X+1)} quad_perm:[1,0,3,2] row_mask:0xf bank_mask:0xf
v_lshlrev_b32 {vr(vT0)}, 4, {vr(vT0)}
v_lshl_add_u32 {vr(vT0)}, {vr(vT1)}, 8, {vr(vT0)}
v_mov_b32 {vr(vT1)}, {OOB}
v_cndmask_b32_e64 {vr(Y)}, {vr(ta)}, {vr(X+2)}, {sr(sM,2)}
v_cndmask_b32_e64 {vr(Y+1)}, {vr(ta+1)}, {vr(X+3)}, {sr(sM,2)}
v_cndmask_b32_e64 {vr(Y+2)}, {vr(X+2)}, {vr(tb)}, {sr(sM,2)}
v_cndmask_b32_e64 {vr(Y+3)}, {vr(X+3)}, {vr(tb+1)}, {sr(sM,2)}
v_cndmask_b32_e64 {vr(vT0)}, {vr(vT0)}, {vr(vT1)}, {sr(sHi,2)}
buffer_store_dwordx4 {vr(Y,4)}, {vr(vT0)}, {sr(SWS,4)}, {sr(sOo)} offen offset:2048{SST}''')
    st0()
    for t in range(2):
        sm = sM if t == 0 else sM2
        a(f'v_mul_f32 {vr(vT1)}, 0, {vr(O[t])}')
        for i in range(1, 12):
            a(f'v_fmac_f32 {vr(vT1)}, 0, {vr(O[t]+i)}')
        a(f'v_add_f32 {vr(vT1)}, {vr(vT1)}, {vr(L[t])}')
        a(f'v_cmp_gt_f32 vcc, 0x53800000, {vr(vT1)}')
        a(f's_mov_b64 {sr(sm,2)}, vcc')
        a(f'v_cmp_lt_f32 vcc, 0x35800000, {vr(vT1)}')
        a(f's_and_b64 {sr(sm,2)}, {sr(sm,2)}, vcc')
    a(f'''s_and_b64 {sr(sM,2)}, {sr(sM,2)}, {sr(sM2,2)}
s_cmp_eq_u64 {sr(sM,2)}, -1
s_cselect_b32 {sr(sT)}, 1, {sr(sI)}
s_cmp_eq_u32 {sr(sT)}, 0
s_cbranch_scc1 {name}_fallback''')

    V = VAlloc(VBASE)
    vAo = V(); vAt = V(); vWm0 = V(); vWt0 = V(); vOo = V(); vRd = V(); vDn = V()
    vWm = [V() for _ in range(4)]; vWt = [V() for _ in range(4)]
    acc3 = [V(4) for _ in range(5)]
    assert V.n <= S[0]
    Wg = [[V(4) for _ in range(5)] for _ in range(2)]
    A = [[V(4) for _ in range(5)] for _ in range(4)]
    done_alloc(V)
    a(f'''s_lshl_b32 {sr(sT)}, {sr(sB)}, 4
s_add_u32 {sr(sT)}, {sr(sT)}, {sr(sMt3)}
s_lshl_b32 {sr(sT)}, {sr(sT)}, 1
s_lshr_b32 {sr(sT2)}, {sr(sW)}, 2
s_add_u32 {sr(sT)}, {sr(sT)}, {sr(sT2)}
s_mul_i32 {sr(sA)}, {sr(sT)}, {32*2560}
s_add_u32 {sr(sA)}, {sr(sA)}, {F_WS_O}
s_and_b32 {sr(sT)}, {sr(sW)}, 1
s_lshl_b32 {sr(sT)}, {sr(sT)}, 4
s_bfe_u32 {sr(sT2)}, {sr(sW)}, 0x10001
v_and_b32 {vr(vT0)}, 15, {vr(vLane)}
v_add_u32 {vr(vT0)}, {sr(sT)}, {vr(vT0)}
v_lshlrev_b32 {vr(vT0)}, 4, {vr(vT0)}
v_lshrrev_b32 {vr(vT1)}, 5, {vr(vLane)}
v_mul_u32_u24 {vr(vT1)}, 2560, {vr(vT1)}
v_bfe_u32 {vr(vT2)}, {vr(vLane)}, 4, 1
v_lshl_add_u32 {vr(vT1)}, {vr(vT2)}, 9, {vr(vT1)}
s_lshl_b32 {sr(sT3)}, {sr(sT2)}, 10
v_add3_u32 {vr(vAo)}, {vr(vT0)}, {vr(vT1)}, {sr(sT3)}
v_lshrrev_b32 {vr(vT1)}, 4, {vr(vLane)}
v_mul_u32_u24 {vr(vT1)}, 2560, {vr(vT1)}
s_lshl_b32 {sr(sT3)}, {sr(sT2)}, 8
s_add_u32 {sr(sT3)}, {sr(sT3)}, 2048
v_lshrrev_b32 {vr(vT0)}, 1, {vr(vT0)}
v_add3_u32 {vr(vAt)}, {vr(vT0)}, {vr(vT1)}, {sr(sT3)}
v_bfe_u32 {vr(vT0)}, {vr(vLane)}, 2, 2
v_lshrrev_b32 {vr(vT1)}, 5, {vr(vLane)}
v_mul_u32_u24 {vr(vT1)}, 20, {vr(vT1)}
v_bfe_u32 {vr(vT2)}, {vr(vLane)}, 4, 1
v_lshl_add_u32 {vr(vT1)}, {vr(vT2)}, 2, {vr(vT1)}
v_add_u32 {vr(vT1)}, {vr(vT1)}, {vr(vT0)}
v_mul_u32_u24 {vr(vT1)}, 160, {vr(vT1)}
v_and_b32 {vr(vT2)}, 3, {vr(vLane)}
v_lshl_add_u32 {vr(vWm0)}, {vr(vT2)}, 3, {vr(vT1)}
v_lshrrev_b32 {vr(vT1)}, 4, {vr(vLane)}
v_mul_u32_u24 {vr(vT1)}, 20, {vr(vT1)}
v_add3_u32 {vr(vT1)}, {vr(vT1)}, {vr(vT0)}, 16
v_mul_u32_u24 {vr(vT1)}, 160, {vr(vT1)}
v_lshl_add_u32 {vr(vWt0)}, {vr(vT2)}, 3, {vr(vT1)}
s_lshl_b32 {sr(sT)}, {sr(sMt3)}, 7
s_lshl_b32 {sr(sT2)}, {sr(sW)}, 4
s_add_u32 {sr(sT)}, {sr(sT)}, {sr(sT2)}
v_and_b32 {vr(vT0)}, 15, {vr(vLane)}
v_add_u32 {vr(vT0)}, {sr(sT)}, {vr(vT0)}
v_mul_u32_u24 {vr(vT0)}, 2560, {vr(vT0)}
v_lshrrev_b32 {vr(vT1)}, 4, {vr(vLane)}
v_lshl_add_u32 {vr(vT0)}, {vr(vT1)}, 3, {vr(vT0)}
s_mul_i32 {sr(sT)}, {sr(sB)}, 1280
s_mul_i32 {sr(sT2)}, {sr(sCg)}, 160
s_add_u32 {sr(sT)}, {sr(sT)}, {sr(sT2)}
v_add_u32 {vr(vOo)}, {sr(sT)}, {vr(vT0)}
v_mov_b32 {vr(vRd)}, {LW_RDY}
s_lshl_b32 {sr(sT)}, {sr(sB)}, 4
s_add_u32 {sr(sT)}, {sr(sT)}, {sr(sMt)}
s_lshl_b32 {sr(sT)}, {sr(sT)}, 6
s_add_u32 {sr(sT)}, {sr(sT)}, {sr(sHg)}
s_lshl_b32 {sr(sT)}, {sr(sT)}, 2
s_add_u32 {sr(sT)}, {sr(sT)}, {F_FLAG2}
v_mov_b32 {vr(vDn)}, {sr(sT)}
v_add_u32 {vr(vWm0)}, {WO_LO}, {vr(vWm0)}
v_add_u32 {vr(vWt0)}, {WO_LO}, {vr(vWt0)}
s_and_b32 {sr(sT3)}, {sr(sCg)}, {opts.get('rot3', 3)}
s_lshl_b32 {sr(sT3)}, {sr(sT3)}, 1
s_mov_b32 {sr(sDone)}, 0''')
    for t in range(5):
        for i in range(4):
            a(f'v_mov_b32 {vr(acc3[t]+i)}, 0')
    tid_ = [0]
    base3 = st.n
    if sset == 3: st.n += 4
    def read_rdy():
        a(f'''ds_read_b64 {vr(vT0,2)}, {vr(vRd)}
s_waitcnt lgkmcnt(0)
v_and_b32 {vr(vT0)}, {vr(vT0)}, {vr(vT1)}
s_nop 0
v_readfirstlane_b32 {sr(sT)}, {vr(vT0)}
s_andn2_b32 {sr(sT)}, {sr(sT)}, {sr(sDone)}''')
    def loads(s_):
        a(f'''s_lshl_b32 {sr(sT2)}, {sr(sT)}, 8
s_or_b32 {sr(sT)}, {sr(sT)}, {sr(sT2)}
s_lshr_b32 {sr(sT)}, {sr(sT)}, {sr(sT3)}
s_ff1_i32_b32 {sr(sT)}, {sr(sT)}
s_add_u32 {sr(sT)}, {sr(sT)}, {sr(sT3)}
s_and_b32 {sr(sT)}, {sr(sT)}, 7
s_bitset1_b32 {sr(sDone)}, {sr(sT)}
s_mul_i32 {sr(sT2)}, {sr(sT)}, 10240
s_add_u32 {sr(sT2)}, {sr(sT2)}, {sr(sA)}
s_cmp_eq_u32 {sr(sT)}, 6
s_mul_i32 {sr(sT)}, {sr(sT)}, 12800
s_cselect_b32 {sr(sT)}, {QST - WO_LO}, {sr(sT)}''')
        for p in range(4):
            a(f'buffer_load_dwordx4 {vr(A[s_][p],4)}, {vr(vAo)}, {sr(SWS,4)}, {sr(sT2)} offen{SLD}')
            if p == 0:
                a(f'buffer_load_dwordx2 {vr(A[s_][4],2)}, {vr(vAt)}, {sr(SWS,4)}, {sr(sT2)} offen{SLD}')
            if p == 2:
                a(f'buffer_load_dwordx2 {vr(A[s_][4]+2,2)}, {vr(vAt)}, {sr(SWS,4)}, {sr(sT2)} offen{SLD}')
            if p < 3:
                a(f's_add_u32 {sr(sT2)}, {sr(sT2)}, 5120')
        a(f'v_add_u32 {vr(vWm[s_])}, {sr(sT)}, {vr(vWm0)}')
        a(f'v_add_u32 {vr(vWt[s_])}, {sr(sT)}, {vr(vWt0)}')
        if sset == 3 and st.on:
            a(f's_memtime s[{62+2*(base3+s_)}:{63+2*(base3+s_)}]\ns_waitcnt lgkmcnt(0)')
    def take_group(s_):
        n = tid_[0]; tid_[0] += 1
        a.label(f'{name}_tg{n}')
        read_rdy()
        a(f'''s_cbranch_scc1 {name}_tgd{n}
s_sleep 1
s_branch {name}_tg{n}''')
        a.label(f'{name}_tgd{n}')
        loads(s_)
    a('s_waitcnt vmcnt(0)')
    a(f'''s_mov_b64 exec, 1
v_mov_b32 {vr(vT0)}, 1
ds_add_rtn_u32 {vr(vT0)}, {vr(vRd)}, {vr(vT0)} offset:8
v_mov_b32 {vr(vT1)}, {sr(sTag)}
v_mov_b32 {vr(vT2)}, 0xff
s_waitcnt lgkmcnt(0)
v_readfirstlane_b32 {sr(sT)}, {vr(vT0)}
s_cmp_eq_u32 {sr(sT)}, 7
s_cbranch_scc0 {name}_nl
buffer_store_dword {vr(vT1)}, {vr(vDn)}, {sr(SWS,4)}, 0 offen{SC}
ds_write_b32 {vr(vRd)}, {vr(vT2)} offset:4''')
    a.label(f'{name}_nl')
    a('s_mov_b64 exec, -1')
    if sset == 3: st()
    def rdW3(fs, j, p, t):
        out = []
        for rd in range(2):
            if p < 4:
                base, off = vWm[j], (20*(2*p) + 8*rd)*160 + t*32
            else:
                base, off = vWt[j], (20*(4*rd))*160 + t*32
            out.append(f'ds_read_b64_tr_b16 {vr(Wg[fs][t]+2*rd,2)}, {vr(base)} offset:{off}')
        return out
    if opts.get('evt', 1):
        st0()
        sJ = sG
        a(f's_mov_b32 {sr(sI)}, 0')
        a(f's_mov_b32 {sr(sJ)}, 0')
        a.label(f'{name}_ev')
        a(f's_cmp_lt_u32 {sr(sI)}, 4')
        a(f's_cbranch_scc0 {name}_evc')
        read_rdy()
        a(f's_cbranch_scc0 {name}_evn')
        for i in range(4):
            if i < 3:
                a(f's_cmp_eq_u32 {sr(sI)}, {i}')
                a(f's_cbranch_scc0 {name}_evt{i}')
            loads(i)
            a(f's_mov_b32 {sr(sI)}, {i+1}')
            a(f's_branch {name}_ev')
            a.label(f'{name}_evt{i}')
        a.label(f'{name}_evn')
        a(f'''s_getreg_b32 {sr(sT)}, hwreg(HW_REG_IB_STS)
s_bfe_u32 {sr(sT2)}, {sr(sT)}, 0x20016
s_lshl_b32 {sr(sT2)}, {sr(sT2)}, 4
s_and_b32 {sr(sT)}, {sr(sT)}, 15
s_or_b32 {sr(sT)}, {sr(sT)}, {sr(sT2)}
s_add_u32 {sr(sT)}, {sr(sT)}, 6
s_sub_u32 {sr(sT2)}, {sr(sI)}, {sr(sJ)}
s_mul_i32 {sr(sT2)}, {sr(sT2)}, 6
s_cmp_le_u32 {sr(sT)}, {sr(sT2)}
s_cbranch_scc1 {name}_evc
s_sleep 1
s_branch {name}_ev''')
        a.label(f'{name}_evc')
        for j in range(4):
            if j < 3:
                a(f's_cmp_eq_u32 {sr(sJ)}, {j}')
                a(f's_cbranch_scc0 {name}_evk{j}')
            for p in range(2):
                for t in range(5):
                    for r in rdW3(p, j, p, t): a(r)
            for k in range(4, j + 1, -1):
                a(f's_cmp_eq_u32 {sr(sI)}, {k}')
                a(f's_cbranch_scc0 {name}_evw{j}_{k}')
                a(f's_waitcnt vmcnt({6*(k-j-1)})')
                a(f's_branch {name}_evx{j}')
                a.label(f'{name}_evw{j}_{k}')
            a('s_waitcnt vmcnt(0)')
            a.label(f'{name}_evx{j}')
            if sset == 3 and j in (0, 3): st()
            for p in range(5):
                fs = p % 2
                a(f's_waitcnt lgkmcnt({10 if p < 4 else 0})')
                for t in range(5):
                    a(f'v_mfma_f32_16x16x32_bf16 {vr(acc3[t],4)}, {vr(Wg[fs][t],4)}, {vr(A[j][p],4)}, {vr(acc3[t],4)}')
                    if p + 2 < 5:
                        for r in rdW3(fs, j, p + 2, t): a(r)
            if j < 3:
                a(f's_mov_b32 {sr(sJ)}, {j+1}')
                a(f's_branch {name}_ev')
                a.label(f'{name}_evk{j}')
    else:
        st0()
        steps = [(j, p) for j in range(4) for p in range(5)]
        for j in range(4):
            take_group(j)
        for n in range(2):
            for t in range(5):
                for r in rdW3(n, *steps[n], t): a(r)
        left = {0: 5, 1: 3, 2: 2, 3: 0, 4: 0}
        for n, (j, p) in enumerate(steps):
            fs = n % 2
            a(f's_waitcnt vmcnt({6*(3-j) + left[p]}) lgkmcnt({10 if n < 19 else 0})')
            if sset == 3 and n in (0, 18): st()
            for t in range(5):
                a(f'v_mfma_f32_16x16x32_bf16 {vr(acc3[t],4)}, {vr(Wg[fs][t],4)}, {vr(A[j][p],4)}, {vr(acc3[t],4)}')
                if n + 2 < 20:
                    for r in rdW3(fs, *steps[n+2], t): a(r)

    a('s_nop 3')
    st0()
    if sset == 3: st()
    OUTF = {0: '', 1: ' nt', 2: ' sc1'}[opts.get('outf', 0)]
    for t in range(5):
        a(f'v_cvt_pk_bf16_f32 {vr(acc3[t])}, {vr(acc3[t])}, {vr(acc3[t]+1)}')
        a(f'v_cvt_pk_bf16_f32 {vr(acc3[t]+1)}, {vr(acc3[t]+2)}, {vr(acc3[t]+3)}')
        a(f'buffer_store_dwordx2 {vr(acc3[t],2)}, {vr(vOo)}, {sr(SOUT,4)}, 0 offen offset:{t*32}{OUTF}')
    if dbgt:
        a('s_waitcnt vmcnt(0)')
        rts(5)
        a('s_mov_b64 exec, 1')
        a(f's_not_b32 s62, s62')
        for k in range(6):
            a(f'v_mov_b32 {vr(vT0)}, {4+4*k}')
            a(f'v_mov_b32 {vr(vT1)}, s{62+2*k}')
            a(f'buffer_atomic_umax {vr(vT1)}, {vr(vT0)}, {sr(SDBG,4)}, 0 offen')
            a('s_nop 1')
    if st.on:
        a('s_waitcnt vmcnt(0)')
    st(); st.rt(); st.flush(sW)
    n_total = st.n
    a.label(f'{name}_done')
    a('s_endpgm')

    if nobar:
        for rep in range(unroll):
            a.label(f'{name}_spin{rep}')
            a(f'''ds_read_b64 {vr(vPw,2)}, {vr(vPa)}
s_waitcnt lgkmcnt(0)
v_readfirstlane_b32 {sr(sT)}, {vr(vPw)}''')
            if nobar == 2:
                a(f'''v_readfirstlane_b32 {sr(sT2)}, {vr(vPw+1)}
s_add_u32 {sr(sT2)}, {sr(sT2)}, {1 + opts.get("slack", 0)}
s_min_u32 {sr(sT)}, {sr(sT)}, {sr(sT2)}''')
            a(f'''s_cmp_gt_u32 {sr(sT)}, {sr(sT3)}
s_cbranch_scc0 {name}_spin{rep}
s_branch {name}_spun{rep}''')
    a.label(f'{name}_fallback')
    M = [vT4, vT5]
    vVo = vaV
    a(f'''v_cndmask_b32_e64 {vr(Q2[0])}, {vr(Q2[0])}, 0, {sr(sHi,2)}
v_cndmask_b32_e64 {vr(Q2[0]+1)}, {vr(Q2[0]+1)}, 0, {sr(sHi,2)}
v_cndmask_b32_e64 {vr(Q2[1])}, {vr(Q2[1])}, 0, {sr(sHi,2)}
v_cndmask_b32_e64 {vr(Q2[1]+1)}, {vr(Q2[1]+1)}, 0, {sr(sHi,2)}
v_mov_b32 {vr(M[0])}, 0xff800000
v_mov_b32 {vr(M[1])}, 0xff800000
v_mov_b32 {vr(vT1)}, {OOB}
s_lshr_b32 {sr(sT)}, {sr(sW)}, 1
s_mul_i32 {sr(sT)}, {sr(sT)}, 10240
v_subrev_u32 {vr(vT0)}, {sr(sT)}, {vr(vbV)}
v_cmp_eq_u32 vcc, 1, {vr(vmV)}
s_mov_b32 {sr(sT)}, {sr(sKV)}
s_mov_b32 {sr(sG)}, 0
v_cndmask_b32 {vr(vVo)}, {vr(vT1)}, {vr(vT0)}, vcc
s_mov_b64 {sr(sM2,2)}, vcc
s_waitcnt vmcnt(0)''')
    a.label(f'{name}_fb1')
    a(f'''buffer_load_dwordx4 {vr(K1[0],4)}, {vr(vQo)}, {sr(SWS,4)}, {sr(sT)} offen{SC}
buffer_load_dwordx2 {vr(K2[0],2)}, {vr(vQo2)}, {sr(SWS,4)}, {sr(sT)} offen{SC}
s_waitcnt vmcnt(0)''')
    qk16(0, 0); qk16(1, 0); qk8(0, 0); qk8(1, 0)
    a('s_nop 15')
    for t in range(2):
        rowmax(t, vT0)
        a(f'v_max_f32 {vr(M[t])}, {vr(M[t])}, {vr(vT0)}')
    a(f'''s_add_u32 {sr(sT)}, {sr(sT)}, 2560
s_add_u32 {sr(sG)}, {sr(sG)}, 1
s_cmp_lt_u32 {sr(sG)}, 64
s_cbranch_scc1 {name}_fb1''')
    for t in range(2):
        crosshalf(M[t], vT1)
        a(f'v_max_f32 {vr(M[t])}, {vr(M[t])}, {vr(vT1)}')
        for i in range(16):
            a(f'v_mov_b32 {vr(O[t]+i)}, 0')
    a(f's_mov_b32 {sr(sT)}, {sr(sKV)}')
    a(f's_mov_b32 {sr(sG)}, 0')
    a(f'v_mov_b32 {vr(vT1)}, 0x3f803f80')
    a.label(f'{name}_fb2')
    a(f'''buffer_load_dwordx4 {vr(K1[0],4)}, {vr(vQo)}, {sr(SWS,4)}, {sr(sT)} offen{SC}
buffer_load_dwordx2 {vr(K2[0],2)}, {vr(vQo2)}, {sr(SWS,4)}, {sr(sT)} offen{SC}
buffer_load_dwordx4 {vr(V0[0],4)}, {vr(vVo)}, {sr(SWS,4)}, {sr(sT)} offen{SC}
buffer_load_dwordx4 {vr(V1[0],4)}, {vr(vVo)}, {sr(SWS,4)}, {sr(sT)} offen offset:640{SC}
s_waitcnt vmcnt(0)''')
    qk16(0, 0); qk16(1, 0); qk8(0, 0); qk8(1, 0)
    for i in range(4):
        a(f'v_cndmask_b32_e64 {vr(V0[0]+i)}, {vr(vT1)}, {vr(V0[0]+i)}, {sr(sM2,2)}')
        a(f'v_cndmask_b32_e64 {vr(V1[0]+i)}, {vr(vT1)}, {vr(V1[0]+i)}, {sr(sM2,2)}')
    a('s_nop 15')
    for t in range(2):
        for i in range(16):
            a(f'v_sub_f32 {vr(S[t]+i)}, {vr(S[t]+i)}, {vr(M[t])}')
        for i in range(16):
            ex(t, i)
    a('s_nop 1')
    for t in range(2):
        pv(t, 0, 0); pv(t, 0, 1)
    a(f'''s_add_u32 {sr(sT)}, {sr(sT)}, 2560
s_add_u32 {sr(sG)}, {sr(sG)}, 1
s_cmp_lt_u32 {sr(sG)}, 64
s_cbranch_scc1 {name}_fb2''')
    a('s_nop 15')
    a(f's_mov_b32 {sr(sI)}, 1')
    a(f's_branch {name}_store')

    a.label(f'{name}_helper')
    st.n = n_common
    V = VAlloc(VBASE)
    vEp = V(); vL16 = V(); vFl = V()
    VH = V.n
    a('s_setprio 3')
    if opts.get('cpf', 0):
        a(f'''s_getpc_b64 {sr(sM,2)}
{name}_pc:
s_sub_u32 {sr(sM)}, {sr(sM)}, {name}_pc - {name}
s_subb_u32 {sr(sM+1)}, {sr(sM+1)}, 0
s_lshr_b32 {sr(sT)}, s2, 3
v_lshlrev_b32 {vr(vT0)}, 5, {vr(vLane)}
v_add_u32 {vr(vT0)}, {sr(sT)}, {vr(vT0)}
v_lshlrev_b32 {vr(vT0)}, 7, {vr(vT0)}
v_min_u32 {vr(vT0)}, {name}_end - {name} - 4, {vr(vT0)}
s_mov_b64 exec, 0xfff
global_load_dword {vr(vFl)}, {vr(vT0)}, {sr(sM,2)}
s_mov_b64 exec, -1''')
    elate = opts.get('elate', 1)
    if not elate:
        a(f'v_mov_b32 {vr(vT0)}, {F_EPOCH}')
        a(f'buffer_load_dword {vr(vEp)}, {vr(vT0)}, {sr(SWS,4)}, 0 offen{SC}')
    a(f'v_lshlrev_b32 {vr(vL16)}, 4, {vr(vLane)}')
    vP = V(); vC8 = V(8); vPwa = V(); vFu = V(); vPo1 = V(); vPo2 = V(); vPo = V(); vLw = V()
    vW3 = [V() for _ in range(5)]
    vPf = [V() for _ in range(4)]
    vHX = [V() for _ in range(4)]
    vHW = [V() for _ in range(15)]
    vIx = V(); vIw = V(); vSx = V(); vSw = V(); vJ = [V() for _ in range(6)]
    done_alloc(V)
    if stag:
        a(f'''s_lshr_b32 {sr(sT)}, s2, 3
s_and_b32 {sr(sT2)}, s2, 1
s_lshl_b32 {sr(sT2)}, {sr(sT2)}, 5
s_add_u32 {sr(sT2)}, {sr(sT2)}, {sr(sT)}
s_lshl_b32 {sr(sT2)}, {sr(sT2)}, 5
v_and_b32 {vr(vT0)}, 31, {vr(vLane)}
v_add_u32 {vr(vT2)}, {sr(sT2)}, {vr(vT0)}
v_mul_u32_u24 {vr(vT2)}, 1280, {vr(vT2)}
v_lshrrev_b32 {vr(vT1)}, 5, {vr(vLane)}
v_lshl_add_u32 {vr(vIx)}, {vr(vT1)}, 7, {vr(vT2)}
buffer_load_dword {vr(vJ[0])}, {vr(vIx)}, {sr(SX,4)}, 0 offen
v_cmp_le_u32 vcc, 15, {vr(vT0)}
s_lshl_b32 {sr(sT)}, {sr(sT)}, 1
s_bfe_u32 {sr(sT2)}, s2, 0x10001
v_cndmask_b32_e64 {vr(vT2)}, 0, 1, vcc
v_mul_u32_u24 {vr(vT3)}, 15, {vr(vT2)}
v_sub_u32 {vr(vT3)}, {vr(vT0)}, {vr(vT3)}
v_lshl_add_u32 {vr(vT2)}, {vr(vT1)}, 6, {vr(vT2)}
v_add_u32 {vr(vT2)}, {sr(sT)}, {vr(vT2)}
v_mul_u32_u24 {vr(vT2)}, 3840, {vr(vT2)}
v_mul_u32_u24 {vr(vT4)}, 52, {vr(vT3)}
v_lshrrev_b32 {vr(vT4)}, 8, {vr(vT4)}
v_mul_u32_u24 {vr(vT4)}, {1280-640}, {vr(vT4)}
v_lshl_add_u32 {vr(vT4)}, {vr(vT3)}, 7, {vr(vT4)}
s_mul_i32 {sr(sT2)}, {sr(sT2)}, 640
v_add3_u32 {vr(vIw)}, {vr(vT2)}, {vr(vT4)}, {sr(sT2)}
v_cmp_le_u32 vcc, 30, {vr(vT0)}
v_mov_b32 {vr(vT2)}, {OOB}
s_mov_b32 {sr(sT)}, {128*3840}
v_cndmask_b32 {vr(vIw)}, {vr(vIw)}, {vr(vT2)}, vcc
buffer_load_dword {vr(vJ[1])}, {vr(vIw)}, {sr(SWQ,4)}, 0 offen''')
        if stag >= 2:
            a(f'buffer_load_dword {vr(vJ[2])}, {vr(vIx)}, {sr(SX,4)}, 0 offen offset:256')
            a(f'buffer_load_dword {vr(vJ[3])}, {vr(vIw)}, {sr(SWQ,4)}, {sr(sT)} offen')
        a(f'''s_bfe_u32 {sr(sT)}, s2, 0x30003
s_and_b32 {sr(sI)}, s2, 1
s_lshl_b32 {sr(sI)}, {sr(sI)}, 3
s_add_u32 {sr(sI)}, {sr(sI)}, {sr(sT)}
s_lshl_b32 {sr(sI)}, {sr(sI)}, 7
v_add_u32 {vr(vT0)}, {sr(sI)}, {vr(vLane)}
v_mul_u32_u24 {vr(vSx)}, 1280, {vr(vT0)}
v_mul_u32_u24 {vr(vT1)}, 4370, {vr(vLane)}
v_lshrrev_b32 {vr(vT1)}, 16, {vr(vT1)}
v_mul_u32_u24 {vr(vT2)}, 15, {vr(vT1)}
v_sub_u32 {vr(vT3)}, {vr(vLane)}, {vr(vT2)}
s_lshl_b32 {sr(sT)}, {sr(sT)}, 3
v_add_u32 {vr(vT1)}, {sr(sT)}, {vr(vT1)}
v_mul_u32_u24 {vr(vT1)}, 3840, {vr(vT1)}
v_mul_u32_u24 {vr(vT4)}, 52, {vr(vT3)}
v_lshrrev_b32 {vr(vT4)}, 8, {vr(vT4)}
v_mul_u32_u24 {vr(vT4)}, {1280-640}, {vr(vT4)}
v_lshl_add_u32 {vr(vT4)}, {vr(vT3)}, 7, {vr(vT4)}
v_add3_u32 {vr(vSw)}, {vr(vT1)}, {vr(vT4)}, {sr(sT2)}
v_cmp_le_u32 vcc, 60, {vr(vLane)}
v_mov_b32 {vr(vT2)}, {OOB}
s_lshr_b32 {sr(sM0a)}, s2, 6
v_cndmask_b32 {vr(vSw)}, {vr(vSw)}, {vr(vT2)}, vcc''')
    sgid = [0]
    def stag_pf():
        if not stag: return
        n = sgid[0]; sgid[0] += 1
        AH = opts.get('ahead', 2)
        a(f'''s_add_u32 {sr(sT)}, {sr(sKK)}, {1 + AH}
s_and_b32 {sr(sT2)}, {sr(sT)}, 3
s_cmp_eq_u32 {sr(sT2)}, {sr(sM0a)}
s_cselect_b32 {sr(sT2)}, {sr(sT)}, 99
s_cmp_lt_u32 {sr(sT2)}, {2*stag}
s_cselect_b32 {sr(sT2)}, 99, {sr(sT2)}
s_cmp_lt_u32 {sr(sT2)}, 10
s_cbranch_scc0 {name}_sp{n}
s_lshl_b32 {sr(sT2)}, {sr(sT)}, 7
buffer_load_dword {vr(vJ[0])}, {vr(vSx)}, {sr(SX,4)}, {sr(sT2)} offen
s_add_u32 {sr(sT2)}, {sr(sT2)}, {64*1280}
buffer_load_dword {vr(vJ[1])}, {vr(vSx)}, {sr(SX,4)}, {sr(sT2)} offen
s_mul_i32 {sr(sT2)}, {sr(sT)}, {64*3840}
buffer_load_dword {vr(vJ[2])}, {vr(vSw)}, {sr(SWQ,4)}, {sr(sT2)} offen
s_add_u32 {sr(sT2)}, {sr(sT2)}, {4*3840}
buffer_load_dword {vr(vJ[3])}, {vr(vSw)}, {sr(SWQ,4)}, {sr(sT2)} offen''')
        a.label(f'{name}_sp{n}')
    a(f'''s_lshl_b32 {sr(sT)}, {sr(sMt)}, 7
v_lshrrev_b32 {vr(vT0)}, 3, {vr(vLane)}
v_add_u32 {vr(vT0)}, {sr(sT)}, {vr(vT0)}
v_mul_u32_u24 {vr(vT0)}, 1280, {vr(vT0)}
v_lshrrev_b32 {vr(vT1)}, 4, {vr(vLane)}
v_and_b32 {vr(vT3)}, 7, {vr(vLane)}
v_xor_b32 {vr(vT2)}, {vr(vT1)}, {vr(vT3)}
v_lshl_add_u32 {vr(vHX[0])}, {vr(vT2)}, 4, {vr(vT0)}
v_xor_b32 {vr(vT2)}, 64, {vr(vHX[0])}
v_add_u32 {vr(vHX[1])}, {10240-1024}, {vr(vT2)}
v_add_u32 {vr(vHX[2])}, {2*(10240-1024)}, {vr(vHX[0])}
v_add_u32 {vr(vHX[3])}, {3*(10240-1024)}, {vr(vT2)}''')
    for pi in range(15):
        a(f's_sub_u32 {sr(sT)}, {sr(sT3)}, {(pi%4)*1024}')
        w_pattern(vHW[pi], f'v_add_u32 {vr(vT0)}, {64*pi}, {vr(vLane)}', sr(sT))
    def next_k():
        a(f'''s_add_u32 {sr(sKK)}, {sr(sKK)}, 1
s_cmp_eq_u32 {sr(sKK)}, 10
s_cselect_b32 {sr(sKK)}, 0, {sr(sKK)}
s_lshl_b32 {sr(sXo)}, {sr(sKK)}, 7
s_mul_i32 {sr(sWo)}, {sr(sKK)}, {64*3840}''')
    def issue_x():
        for jj in range(16):
            if jj % 4 == 0:
                a(f's_add_u32 m0, {sr(sSlot)}, {jj*1024}')
                a(f's_add_u32 {sr(sT)}, {sr(sXo)}, {jj*10240}')
            a(f'buffer_load_dwordx4 {vr(vHX[jj%4])}, {sr(SX,4)}, {sr(sT)} offen offset:{(jj%4)*1024} lds')
    def issue_w():
        for half in range(2):
            for pi in range(15):
                if pi % 4 == 0:
                    a(f's_add_u32 m0, {sr(sSlot)}, {XSZ + half*15360 + pi*1024}')
                    a(f's_add_u32 {sr(sT)}, {sr(sWo)}, {half*32*3840}')
                a(f'buffer_load_dwordx4 {vr(vHW[pi])}, {sr(SWQ,4)}, {sr(sT)} offen offset:{(pi%4)*1024} lds')
    def issue_stage():
        stag_pf(); next_k(); issue_x(); issue_w()
        a(f'''s_add_u32 {sr(sSlot)}, {sr(sSlot)}, {STG}
s_cmp_ge_u32 {sr(sSlot)}, {3*STG}
s_cselect_b32 {sr(sSlot)}, 0, {sr(sSlot)}''')
    pfw = opts.get('pfw', 1) and not stag and not opts.get('rot0')
    if pfw:
        a(f'''s_lshr_b32 {sr(sT)}, s2, 6
s_mul_i32 {sr(sT)}, {sr(sT)}, 3
s_add_u32 {sr(sT)}, {sr(sT)}, 8
s_bfe_u32 {sr(sT2)}, s2, 0x30003
s_lshr_b32 {sr(sI)}, {sr(sT2)}, 2
s_add_u32 {sr(sT)}, {sr(sT)}, {sr(sI)}
s_cmp_ge_u32 {sr(sT)}, 10
s_cselect_b32 {sr(sI)}, 10, 0
s_sub_u32 {sr(sT)}, {sr(sT)}, {sr(sI)}
s_lshl_b32 {sr(sT)}, {sr(sT)}, 6
s_and_b32 {sr(sT2)}, {sr(sT2)}, 3
s_lshl_b32 {sr(sT2)}, {sr(sT2)}, 4
s_add_u32 {sr(sT)}, {sr(sT)}, {sr(sT2)}
s_mul_i32 {sr(sT)}, {sr(sT)}, 3840
s_add_u32 {sr(sRdy)}, {sr(sT)}, {sr(sT3)}
v_lshrrev_b32 {vr(vT0)}, 3, {vr(vLane)}
v_mul_u32_u24 {vr(vT0)}, 3840, {vr(vT0)}
v_bfe_u32 {vr(vT1)}, {vr(vLane)}, 1, 2
v_mul_u32_u24 {vr(vT2)}, 1280, {vr(vT1)}
v_and_b32 {vr(vT3)}, 1, {vr(vLane)}
v_mul_u32_u24 {vr(vT3)}, 156, {vr(vT3)}
v_add3_u32 {vr(vT0)}, {vr(vT0)}, {vr(vT2)}, {vr(vT3)}
v_cmp_eq_u32 vcc, 3, {vr(vT1)}
v_mov_b32 {vr(vT2)}, {OOB}
s_nop 0
v_cndmask_b32 {vr(vPo)}, {vr(vT0)}, {vr(vT2)}, vcc''')
    a(f's_mov_b32 {sr(sSlot)}, {STG}')
    st1()
    a('s_barrier')
    st1()
    if elate:
        a(f'v_mov_b32 {vr(vT0)}, {F_EPOCH}')
        a(f'buffer_load_dword {vr(vEp)}, {vr(vT0)}, {sr(SWS,4)}, 0 offen{SC}')
    if pfw:
        a(f'buffer_load_dword {vr(vPf[0])}, {vr(vPo)}, {sr(SWQ,4)}, {sr(sRdy)} offen')
        a(f's_add_u32 {sr(sRdy)}, {sr(sRdy)}, {8*3840}')
        a(f'buffer_load_dword {vr(vPf[1])}, {vr(vPo)}, {sr(SWQ,4)}, {sr(sRdy)} offen')
    if opts.get('xfirst', 0):
        next_k(); issue_x()
        a(f's_mov_b32 {sr(sSrc)}, {sr(sWo)}')
        a(f's_mov_b32 {sr(sSlot)}, {2*STG}')
        next_k(); issue_x()
        st1()
        if opts.get('xfirst') == 1: a('s_barrier')
        a(f's_mov_b32 {sr(sSlot)}, {STG}')
        a(f's_mov_b32 {sr(sI)}, {sr(sWo)}')
        a(f's_mov_b32 {sr(sWo)}, {sr(sSrc)}')
        issue_w()
        if opts.get('xfirst') == 2: a('s_barrier')
        a(f's_mov_b32 {sr(sSlot)}, {2*STG}')
        a(f's_mov_b32 {sr(sWo)}, {sr(sI)}')
        issue_w()
        a(f's_mov_b32 {sr(sSlot)}, 0')
        a('s_waitcnt vmcnt(30)')
        a('s_barrier')
        st1()
        a(f's_mov_b32 {sr(sI)}, 1')
    else:
        issue_stage()
        st1()
        a('s_barrier')
        st1()
        a(f's_mov_b32 {sr(sI)}, 0')
    a.label(f'{name}_hg')
    issue_stage()
    a('s_waitcnt vmcnt(46)')
    a('s_barrier')
    a(f's_add_u32 {sr(sI)}, {sr(sI)}, 1')
    a(f's_cmp_lt_u32 {sr(sI)}, 8')
    a(f's_cbranch_scc1 {name}_hg')
    st1()
    a(f'''s_lshl_b32 {sr(sT)}, {sr(sB)}, 3
s_add_u32 {sr(sT)}, {sr(sT)}, {sr(sHg)}
s_lshl_b32 {sr(sT)}, {sr(sT)}, 8
s_add_u32 {sr(sT)}, {sr(sT)}, {F_FLAG1}
v_lshl_add_u32 {vr(vT0)}, {vr(vLane)}, 2, {sr(sT)}
v_cmp_gt_u32 vcc, 16, {vr(vLane)}
v_mov_b32 {vr(vT1)}, {OOB}
s_lshl_b32 {sr(sT)}, {sr(sB)}, 4
v_cndmask_b32 {vr(vPo1)}, {vr(vT1)}, {vr(vT0)}, vcc
s_add_u32 {sr(sT)}, {sr(sT)}, {sr(sMt3)}
s_lshl_b32 {sr(sT)}, {sr(sT)}, 8
s_add_u32 {sr(sT)}, {sr(sT)}, {F_FLAG2}
v_lshl_add_u32 {vr(vT0)}, {vr(vLane)}, 2, {sr(sT)}
v_cmp_gt_u32 vcc, 8, {vr(vLane)}
v_mov_b32 {vr(vLw)}, {LW_RDY}
s_mul_i32 {sr(sT3)}, {sr(sCg)}, 160
v_cndmask_b32 {vr(vPo2)}, {vr(vT1)}, {vr(vT0)}, vcc''')
    for r in range(5):
        a(f'''v_add_u32 {vr(vT0)}, {64*r}, {vr(vLane)}
v_mul_u32_u24 {vr(vT1)}, 6554, {vr(vT0)}
v_lshrrev_b32 {vr(vT1)}, 16, {vr(vT1)}
v_mul_u32_u24 {vr(vT1)}, {1280-160}, {vr(vT1)}
v_lshl_add_u32 {vr(vT0)}, {vr(vT0)}, 4, {vr(vT1)}
v_add_u32 {vr(vT0)}, {sr(sT3)}, {vr(vT0)}
v_subrev_u32 {vr(vW3[r])}, {(r%4)*1024}, {vr(vT0)}''')
    a(f'''s_lshr_b32 {sr(sT)}, s2, 3
s_mul_i32 {sr(sT)}, {sr(sT)}, {20*1280}
v_lshl_add_u32 {vr(vT0)}, {vr(vLane)}, 7, {sr(sT)}
v_cmp_gt_u32 vcc, 50, {vr(vLane)}
v_mov_b32 {vr(vT1)}, {OOB}
s_mov_b32 {sr(sRdy)}, 0
v_cndmask_b32 {vr(vPo)}, {vr(vT1)}, {vr(vT0)}, vcc
v_readfirstlane_b32 {sr(sTag)}, {vr(vEp)}
s_lshl_b32 {sr(sDone)}, 1, {sr(sMt)}
s_waitcnt vmcnt({15 if hsplit else 0})
s_add_u32 {sr(sTag)}, {sr(sTag)}, {TAGK}
s_barrier
s_waitcnt vmcnt(0)
{'s_barrier' if hsplit else 's_nop 0'}
v_bfe_u32 {vr(vT2)}, {vr(vLane)}, 1, 2
v_mul_u32_u24 {vr(vT2)}, 2560, {vr(vT2)}
v_and_b32 {vr(vT3)}, 1, {vr(vLane)}
v_mul_u32_u24 {vr(vT3)}, 640, {vr(vT3)}
v_add_u32 {vr(vT2)}, {vr(vT2)}, {vr(vT3)}
v_add_u32 {vr(vT2)}, {ONES}, {vr(vT2)}
v_mov_b32 {vr(vC8)}, 0x3f803f80
v_mov_b32 {vr(vC8+1)}, 0x3f803f80
v_mov_b32 {vr(vC8+2)}, 0x3f803f80
v_mov_b32 {vr(vC8+3)}, 0x3f803f80
v_mov_b32 {vr(vC8+4)}, 0
v_mov_b32 {vr(vC8+5)}, 0
v_mov_b32 {vr(vC8+6)}, 0
v_mov_b32 {vr(vC8+7)}, 0
s_barrier
ds_write_b128 {vr(vT2)}, {vr(vC8,4)}
ds_write_b128 {vr(vT2)}, {vr(vC8+4,4)} offset:16
ds_write_b128 {vr(vLw)}, {vr(vC8+4,4)}
s_waitcnt lgkmcnt(0)''')
    st0()
    a('s_barrier')
    a('s_barrier')
    gid = [0]
    def issue_group():
        n = gid[0]; gid[0] += 1
        a(f'''s_andn2_b32 {sr(sT)}, {sr(sRdy)}, {sr(sDone)}
s_cbranch_scc1 {name}_pd{n}
s_mov_b32 {sr(sCnt)}, {POLL_LIMIT}''')
        a.label(f'{name}_pl{n}')
        a(f'''buffer_load_dword {vr(vP)}, {vr(vPo1)}, {sr(SWS,4)}, 0 offen{SC}
s_waitcnt vmcnt(0)
v_cmp_eq_u32 vcc, {sr(sTag)}, {vr(vP)}
s_and_b32 {sr(sRdy)}, vcc_lo, 0xffff
s_andn2_b32 {sr(sT)}, {sr(sRdy)}, {sr(sDone)}
s_cbranch_scc1 {name}_pd{n}
s_sleep 1
s_sub_u32 {sr(sCnt)}, {sr(sCnt)}, 1
s_cmp_lg_u32 {sr(sCnt)}, 0
s_cbranch_scc1 {name}_pl{n}
s_mov_b32 {sr(sRdy)}, 0xffff
s_andn2_b32 {sr(sT)}, {sr(sRdy)}, {sr(sDone)}''')
        a.label(f'{name}_pd{n}')
        a(f'''s_lshl_b32 {sr(sT2)}, {sr(sT)}, 16
s_or_b32 {sr(sT)}, {sr(sT)}, {sr(sT2)}
s_lshr_b32 {sr(sT)}, {sr(sT)}, {sr(sMt)}
s_ff1_i32_b32 {sr(sT)}, {sr(sT)}
s_add_u32 {sr(sNeed)}, {sr(sT)}, {sr(sMt)}
s_and_b32 {sr(sNeed)}, {sr(sNeed)}, 15
s_bitset1_b32 {sr(sDone)}, {sr(sNeed)}
s_mul_i32 {sr(sT)}, {sr(sNeed)}, 10240
s_add_u32 {sr(sSrc)}, {sr(sKV)}, {sr(sT)}''')
        for hs in range(4):
            for q in range(10):
                if q % 4 == 0:
                    a(f's_add_u32 m0, {sr(sSlot)}, {hs*10240 + q*1024}')
                    a(f's_add_u32 {sr(sT)}, {sr(sSrc)}, {hs*KV_HEAD + q*1024}')
                a(f'buffer_load_dwordx4 {vr(vL16)}, {sr(SWS,4)}, {sr(sT)} offen offset:{(q%4)*1024}{SLD} lds')
        a(f'''s_add_u32 {sr(sSlot)}, {sr(sSlot)}, {SLOT}
s_cmp_ge_u32 {sr(sSlot)}, {3*SLOT}
s_cselect_b32 {sr(sSlot)}, 0, {sr(sSlot)}
s_add_u32 {sr(sI)}, {sr(sI)}, 1''')
    a(f's_mov_b32 {sr(sI)}, 1')
    a(f's_mov_b32 {sr(sSlot)}, {SLOT}')
    wq = [0]
    def wait_prog(val):
        n = wq[0]; wq[0] += 1
        a.label(f'{name}_wp{n}')
        a(f'''ds_read_b32 {vr(vP)}, {vr(vPwa)} offset:4
s_waitcnt lgkmcnt(0)
v_cmp_le_u32 vcc, {val}, {vr(vP)}
s_and_b32 {sr(sT)}, vcc_lo, 0x1ff
s_cmp_eq_u32 {sr(sT)}, 0x1ff
s_cbranch_scc1 {name}_wpd{n}
s_sleep 2
s_branch {name}_wp{n}''')
        a.label(f'{name}_wpd{n}')
    def set_full(val):
        a(f'v_mov_b32 {vr(vFu)}, {val}')
        a(f'ds_write_b32 {vr(vPwa)}, {vr(vFu)}')
    if nobar:
        a(f'v_min_u32 {vr(vPwa)}, 8, {vr(vLane)}')
        a(f'v_lshlrev_b32 {vr(vPwa)}, 3, {vr(vPwa)}')
        a(f'v_add_u32 {vr(vPwa)}, {LW_PW}, {vr(vPwa)}')
    issue_group()
    st0()
    a.label(f'{name}_hl')
    if nobar:
        a('s_waitcnt vmcnt(0)')
        set_full(sr(sI))
        a(f's_max_u32 {sr(sSrc)}, {sr(sI)}, 2')
        a(f's_sub_u32 {sr(sSrc)}, {sr(sSrc)}, 2')
        wait_prog(sr(sSrc))
        issue_group()
    else:
        issue_group()
        a('s_waitcnt vmcnt(40)')
        a('s_barrier')
    wid = [0]
    def wo_rows(r0, r1, lds):
        n = wid[0]; wid[0] += 1
        a(f's_mov_b32 {sr(sSrc)}, {r0*1280}')
        a(f's_mov_b32 {sr(sT2)}, {lds}')
        a.label(f'{name}_hw{n}x')
        a(f's_mov_b32 m0, {sr(sT2)}')
        a(f's_add_u32 {sr(sT)}, {sr(sT2)}, 4096')
        for r in range(4):
            a(f'buffer_load_dwordx4 {vr(vW3[r])}, {sr(SWO,4)}, {sr(sSrc)} offen offset:{r*1024} lds')
        a(f's_mov_b32 m0, {sr(sT)}')
        a(f's_add_u32 {sr(sT2)}, {sr(sT2)}, 5120')
        a(f'buffer_load_dwordx4 {vr(vW3[4])}, {sr(SWO,4)}, {sr(sSrc)} offen lds')
        a(f's_add_u32 {sr(sSrc)}, {sr(sSrc)}, {32*1280}')
        a(f's_cmp_lt_u32 {sr(sSrc)}, {r1*1280}')
        a(f's_cbranch_scc1 {name}_hw{n}x')
    a(f's_cmp_eq_u32 {sr(sI)}, 6')
    a(f's_cbranch_scc0 {name}_hnp')
    for q in range(4):
        a(f's_mov_b32 {sr(sT)}, {q*6400}')
        a(f'buffer_load_dword {vr(vPf[q])}, {vr(vPo)}, {sr(SWO,4)}, {sr(sT)} offen')
    a.label(f'{name}_hnp')
    a(f's_cmp_eq_u32 {sr(sI)}, 10')
    a(f's_cbranch_scc0 {name}_hnq')
    wo_rows(480, 640, QST)
    a.label(f'{name}_hnq')
    a(f's_cmp_lt_u32 {sr(sI)}, 16')
    a(f's_cbranch_scc1 {name}_hl')
    if nobar:
        a('s_waitcnt vmcnt(0)')
        set_full(64)
        wait_prog(14)
        wo_rows(0, 256, WO_LO)
        wait_prog(15)
    else:
        wo_rows(0, 256, WO_LO)
        a('s_waitcnt vmcnt(40)')
        a('s_barrier')
    wo_rows(256, 480, WO_LO + 40960)
    a(f'''s_lshl_b32 {sr(sT)}, {sr(sB)}, 4
s_add_u32 {sr(sT)}, {sr(sT)}, {sr(sMt3)}
s_lshl_b32 {sr(sT)}, {sr(sT)}, 1
s_lshr_b32 {sr(sT2)}, {sr(sCg)}, 2
s_add_u32 {sr(sT)}, {sr(sT)}, {sr(sT2)}
s_mul_i32 {sr(sT)}, {sr(sT)}, {32*2560}
s_and_b32 {sr(sT2)}, {sr(sCg)}, 3
s_mul_i32 {sr(sT2)}, {sr(sT2)}, 5120
s_add_u32 {sr(sT)}, {sr(sT)}, {sr(sT2)}
s_add_u32 {sr(sT)}, {sr(sT)}, {F_WS_O}
v_lshl_add_u32 {vr(vT0)}, {vr(vLane)}, 7, {sr(sT)}
v_cmp_gt_u32 vcc, 40, {vr(vLane)}
v_mov_b32 {vr(vT1)}, {OOB}
s_mov_b32 {sr(sDone)}, 0
s_mov_b32 {sr(sCnt)}, {POLL_LIMIT}
v_cndmask_b32 {vr(vPo)}, {vr(vT1)}, {vr(vT0)}, vcc''')
    pid = [0]
    pfo = opts.get('pfo', 2)
    def poll2():
        a(f'''buffer_load_dword {vr(vP)}, {vr(vPo2)}, {sr(SWS,4)}, 0 offen{SC}
s_sub_u32 {sr(sCnt)}, {sr(sCnt)}, 1
s_waitcnt vmcnt(0)
v_cmp_eq_u32 vcc, {sr(sTag)}, {vr(vP)}
s_cmp_eq_u32 {sr(sCnt)}, 0
s_cselect_b32 {sr(sT)}, 0xff, vcc_lo
s_lshr_b32 {sr(sT2)}, {sr(sT)}, 1
s_and_b32 {sr(sT)}, {sr(sT)}, {sr(sT2)}
s_and_b32 {sr(sRdy)}, {sr(sT)}, 0x55''')
        if pfo:
            a(f's_andn2_b32 {sr(sSrc)}, {sr(sRdy)}, {sr(sDone)}')
            a(f's_or_b32 {sr(sDone)}, {sr(sDone)}, {sr(sRdy)}')
            for j in range(4):
                n = pid[0]; pid[0] += 1
                a(f's_bitcmp1_b32 {sr(sSrc)}, {2*j}')
                a(f's_cbranch_scc0 {name}_po{n}')
                a(f's_mov_b32 {sr(sT)}, {j*20480}')
                a(f'buffer_load_dword {vr(vPf[j])}, {vr(vPo)}, {sr(SWS,4)}, {sr(sT)} offen{SC}')
                a.label(f'{name}_po{n}')
            if pfo == 2:
                a('s_waitcnt vmcnt(0)')
        a(f'v_mov_b32 {vr(vP)}, {sr(sRdy)}')
        a(f'ds_write_b32 {vr(vLw)}, {vr(vP)}')
    poll2()
    if nobar:
        wait_prog(16)
    else:
        a('s_barrier')
    st0()
    st0()
    a.label(f'{name}_p3l')
    poll2()
    a(f's_cmp_eq_u32 {sr(sRdy)}, 0x55')
    a(f's_cbranch_scc0 {name}_p3l')
    a.label(f'{name}_p3e')
    if st.on:
        while st.n < n_total - 1: st()
        st.rt(); st.flush(sW)
    a('s_endpgm')
    a.label(f'{name}_end')
    nv = maxv[0]
    assert nv <= 168, nv
    return a.text(), descriptor(name, nv, ns), f'; @launch kernel={name} grid=(256,1,1) block=(576,1,1) lds={LDS_TOTAL}', n_total
```

```python
from common import *
import math, struct

def f32bits(x):
    return struct.unpack('<I', struct.pack('<f', x))[0]
QSCALE = f32bits(math.log2(math.e) / math.sqrt(20.0))

XSZ = 16384
STG = XSZ + 30720
SLOT = 40960
LW_RDY = 3 * SLOT
LW_CNT = 3 * SLOT + 8
LW_CNT1 = 3 * SLOT + 12
LW_PW = 131392
ONES = 3 * SLOT + 128
QST = 131584
LDS_TOTAL = QST + 25600
WO_LO = SLOT
F_WS_KV = 0
F_WS_O = 64 * KV_HEAD
F_FLAG1 = F_WS_O + 2 * 32 * 32 * 2560
F_FLAG2 = F_FLAG1 + 16 * 256
F_EPOCH = F_FLAG2 + 32 * 256
F_WS_END = F_EPOCH + 256
TAGK = 0x9E3779B9
POLL_LIMIT = 1 << 16
OOB = 0x40000000

def gen_fused(name='fused_kernel', opts=None):
    opts = opts or {}
    a = Asm()
    SC = ' sc1'
    FL = {0: ' sc1', 1: ' sc0 sc1', 2: '', 3: ' sc1 nt', 4: ' nt'}
    SST = FL[opts.get('sst', 0)]
    SLD = FL[opts.get('sld', 0)]
    stag = opts.get('stag', 0)
    hsplit = opts.get('hsplit', 1)
    nobar = opts.get('nobar', 0)
    loc = opts.get('loc', 1)
    sKK, sMt3, sCg = 3, 4, 5
    SX, SWQ, SWS, SDBG, SWO, SOUT = 8, 12, 16, 20, 24, 28
    sW, sB, sMt, sHg, sT, sT2, sT3 = 32, 33, 34, 35, 36, 37, 38
    sM0a, sM0b = 39, 40
    sDone = 41
    sHi = 42
    sG, sOff, sOo, sKV = 44, 45, 46, 47
    sM, sM2 = 48, 50
    sRdy, sCnt, sNeed, sI, sSlot, sSrc = 52, 53, 54, 55, 56, 57
    sXo, sWo = 53, 54
    sScale = 58
    sA, sTag = 60, 61
    sPub, sPub2 = 56, 57
    ns = 64
    vLane, vT0, vT1, vT2, vT3, vT4, vT5 = 1, 2, 3, 4, 5, 6, 7
    VBASE = 8
    st = Stamper(a, opts.get('stamp'), 0, 62, 6, vT0)
    if st.on: ns = st.nsgpr()
    sset = opts.get('sset', 0)
    def st0():
        if sset == 0: st()
    def st1():
        if sset == 1: st()
    def st4():
        if sset == 4: st()
    maxv = [0]
    def done_alloc(V):
        maxv[0] = max(maxv[0], V.n)

    a(f'.globl {name}\n.p2align 8\n.type {name},@function')
    a.label(name)
    if st.on:
        a('s_memrealtime s[62:63]\ns_memtime s[64:65]')
        st.n = 2
    dbgt = opts.get('dbgt')
    SWAP = 's_nop 0'
    if opts.get('swap', 0):
        SWAP = f's_lshr_b32 {sr(sT)}, s2, 1\ns_xor_b32 {sr(sT)}, {sr(sT)}, s2\ns_and_b32 {sr(sT)}, {sr(sT)}, 1\ns_mul_i32 {sr(sT)}, {sr(sT)}, 3\ns_xor_b32 s2, s2, {sr(sT)}'
    if dbgt:
        ns = 80
        a('s_memrealtime s[62:63]')
    def rts(k):
        if dbgt: a(f's_memrealtime s[{62+2*k}:{63+2*k}]\ns_waitcnt lgkmcnt(0)')
    a(f'''s_cmp_ge_u32 s2, 256
s_cbranch_scc1 {name}_done
{SWAP}
s_bfe_u32 {sr(sB)}, s2, 0x10002
s_load_dwordx4 {sr(SOUT,4)}, s[0:1], 48
s_load_dwordx2 s[6:7], s[0:1], 64
s_mul_i32 {sr(sT2)}, {sr(sB)}, 24
s_add_u32 s0, s0, {sr(sT2)}
s_addc_u32 s1, s1, 0
s_load_dwordx4 {sr(SX,4)}, s[0:1], 0
s_load_dwordx2 {sr(SWO,2)}, s[0:1], 16
v_lshrrev_b32 {vr(vT0)}, 6, v0
v_and_b32 {vr(vLane)}, 63, v0
s_lshr_b32 {sr(sT)}, s2, 3
v_readfirstlane_b32 {sr(sW)}, {vr(vT0)}
s_and_b32 {sr(sMt)}, {sr(sT)}, 7
s_lshr_b32 {sr(sHg)}, {sr(sT)}, 3
s_mul_i32 {sr(sKK)}, {sr(sHg)}, 3
s_add_u32 {sr(sKK)}, {sr(sKK)}, {sr(sMt)}
s_cmp_ge_u32 {sr(sKK)}, 10
s_cselect_b32 {sr(sT)}, 10, 0
s_sub_u32 {sr(sKK)}, {sr(sKK)}, {sr(sT)}
{f's_mov_b32 {sr(sKK)}, 0' if (stag or opts.get('rot0')) else 's_nop 0'}
s_and_b32 {sr(sT)}, s2, 1
s_lshl_b32 {sr(sT)}, {sr(sT)}, 3
s_add_u32 {sr(sMt)}, {sr(sMt)}, {sr(sT)}
s_and_b32 {sr(sT)}, s2, 2
s_lshl_b32 {sr(sT)}, {sr(sT)}, 1
s_add_u32 {sr(sHg)}, {sr(sHg)}, {sr(sT)}
s_mov_b32 {sr(sHi)}, 0
s_mov_b32 {sr(sHi+1)}, -1
s_bfe_u32 {sr(sCg)}, s2, 0x30003
s_and_b32 {sr(sMt3)}, s2, 1
s_lshl_b32 {sr(sMt3)}, {sr(sMt3)}, 2
s_and_b32 {sr(sT)}, s2, 2
s_add_u32 {sr(sMt3)}, {sr(sMt3)}, {sr(sT)}
s_lshl_b32 {sr(sMt3)}, {sr(sMt3)}, 1
s_lshr_b32 {sr(sT)}, s2, 6
s_add_u32 {sr(sMt3)}, {sr(sMt3)}, {sr(sT)}
s_lshl_b32 {sr(sT)}, {sr(sB)}, 3
s_add_u32 {sr(sT)}, {sr(sT)}, {sr(sHg)}
s_mul_i32 {sr(sKV)}, {sr(sT)}, {4*KV_HEAD}
s_mul_i32 {sr(sT3)}, {sr(sHg)}, 160
s_waitcnt lgkmcnt(0)
s_mov_b32 {sr(SWQ)}, {sr(SX+2)}
s_mov_b32 {sr(SWQ+1)}, {sr(SX+3)}
s_mov_b32 {sr(SDBG)}, {sr(SOUT+2)}
s_mov_b32 {sr(SDBG+1)}, {sr(SOUT+3)}
s_mov_b32 {sr(SWS)}, s6
s_mov_b32 {sr(SWS+1)}, s7
s_mov_b32 {sr(SX+2)}, {2048*1280}
s_mov_b32 {sr(SX+3)}, 0x20000
s_mov_b32 {sr(SWQ+2)}, {640*3840}
s_mov_b32 {sr(SWQ+3)}, 0x20000
s_mov_b32 {sr(SWS+2)}, {F_WS_END}
s_mov_b32 {sr(SWS+3)}, 0x20000
s_mov_b32 {sr(SDBG+2)}, 256
s_mov_b32 {sr(SDBG+3)}, 0x20000
s_mov_b32 {sr(SWO+2)}, {640*1280}
s_mov_b32 {sr(SWO+3)}, 0x20000
s_mov_b32 {sr(SOUT+2)}, {2048*2560}
s_mov_b32 {sr(SOUT+3)}, 0x20000''')
    st1()
    n_common = st.n
    a(f'''s_cmp_ge_u32 {sr(sW)}, 8
s_cbranch_scc1 {name}_helper''')

    def w_pattern(dst, first, last):
        a(f'''{first}
v_mul_u32_u24 {vr(vT1)}, 2185, {vr(vT0)}
v_lshrrev_b32 {vr(vT1)}, 16, {vr(vT1)}
v_mul_u32_u24 {vr(vT2)}, 30, {vr(vT1)}
v_sub_u32 {vr(vT0)}, {vr(vT0)}, {vr(vT2)}
v_and_b32 {vr(vT2)}, 0x13, {vr(vT1)}
v_bfe_u32 {vr(vT3)}, {vr(vT1)}, 2, 1
v_lshl_or_b32 {vr(vT2)}, {vr(vT3)}, 3, {vr(vT2)}
v_bfe_u32 {vr(vT3)}, {vr(vT1)}, 3, 1
v_lshl_or_b32 {vr(vT2)}, {vr(vT3)}, 2, {vr(vT2)}
v_mul_u32_u24 {vr(vT2)}, 3840, {vr(vT2)}
v_mul_u32_u24 {vr(vT1)}, 26, {vr(vT0)}
v_lshrrev_b32 {vr(vT1)}, 8, {vr(vT1)}
v_mul_u32_u24 {vr(vT1)}, {1280-160}, {vr(vT1)}
v_lshl_add_u32 {vr(vT0)}, {vr(vT0)}, 4, {vr(vT1)}
v_add3_u32 {vr(dst)}, {vr(vT0)}, {vr(vT2)}, {last}''')

    VP = VAlloc(VBASE)
    vIdx = VP()
    vaK1 = VP(); vaK2 = VP(); vaV = VP()
    vbK1 = VP(); vbK2 = VP(); vbV = VP(); vmK2 = VP(); vmV = VP()
    vQo = VP(); vQo2 = VP(); vQs1 = VP(); vQs2 = VP(); vPub = VP()
    VB2 = VP.n
    V = VAlloc(VB2)
    vEp7 = V(); vCi7 = V(); vZ7 = V()
    vXr = [[V(), V()] for _ in range(3)]
    vWa = [V() for _ in range(3)]
    vWb = [V() for _ in range(3)]
    vE = [V() for _ in range(6)]
    Xf = [[V(4), V(4)], [V(4), V(4)]]
    Wf = [[V(4) for _ in range(4)] for _ in range(2)]
    acc = [[V(4), V(4)] for _ in range(8)]
    done_alloc(V)
    vDX = Wf[0][0]; vDW = [Wf[0][0] + 1, Wf[0][0] + 2]
    a(f'''s_lshl_b32 {sr(sT)}, {sr(sMt)}, 7
s_lshl_b32 {sr(sT2)}, {sr(sW)}, 3
s_add_u32 {sr(sT)}, {sr(sT)}, {sr(sT2)}
v_lshrrev_b32 {vr(vT0)}, 3, {vr(vLane)}
v_add_u32 {vr(vT0)}, {sr(sT)}, {vr(vT0)}
v_mul_u32_u24 {vr(vT0)}, 1280, {vr(vT0)}
s_and_b32 {sr(sT)}, {sr(sW)}, 1
s_lshl_b32 {sr(sT)}, {sr(sT)}, 2
v_lshrrev_b32 {vr(vT1)}, 4, {vr(vLane)}
v_add_u32 {vr(vT2)}, {sr(sT)}, {vr(vT1)}
v_and_b32 {vr(vT3)}, 7, {vr(vLane)}
v_xor_b32 {vr(vT2)}, {vr(vT2)}, {vr(vT3)}
v_lshl_add_u32 {vr(vDX)}, {vr(vT2)}, 4, {vr(vT0)}
s_lshl_b32 {sr(sM0a)}, {sr(sW)}, 10
s_lshl_b32 {sr(sXo)}, {sr(sKK)}, 7
s_mul_i32 {sr(sWo)}, {sr(sKK)}, {64*3840}
s_mov_b32 m0, {sr(sM0a)}
s_add_u32 {sr(sT)}, {sr(sXo)}, 81920
buffer_load_dwordx4 {vr(vDX)}, {sr(SX,4)}, {sr(sXo)} offen lds
s_add_u32 m0, {sr(sM0a)}, 8192
s_add_u32 {sr(sT2)}, {sr(sW)}, 8
buffer_load_dwordx4 {vr(vDX)}, {sr(SX,4)}, {sr(sT)} offen lds
s_cmp_eq_u32 {sr(sW)}, 7
s_cselect_b32 {sr(sT2)}, 7, {sr(sT2)}
s_lshl_b32 {sr(sM0b)}, {sr(sT2)}, 10''')
    for pi, sm in ((0, sM0a), (1, sM0b)):
        a(f's_lshr_b32 {sr(sT)}, {sr(sm)}, 4')
        w_pattern(vDW[pi], f'v_add_u32 {vr(vT0)}, {sr(sT)}, {vr(vLane)}', sr(sT3))
        for half in range(2):
            a(f's_add_u32 m0, {sr(sm)}, {XSZ + half*15360}')
            a(f's_add_u32 {sr(sT)}, {sr(sWo)}, {half*32*3840}')
            a(f'buffer_load_dwordx4 {vr(vDW[pi])}, {sr(SWQ,4)}, {sr(sT)} offen lds')
    st1()
    a('s_barrier')
    st1()
    a(f'''s_cmp_eq_u32 {sr(sW)}, 7
s_cselect_b32 {sr(sM)}, 1, 0
s_mov_b32 {sr(sM+1)}, 0
v_mov_b32 {vr(vT1)}, {OOB}
v_cndmask_b32_e64 {vr(vZ7)}, {vr(vT1)}, 0, {sr(sM,2)}
v_mov_b32 {vr(vT0)}, {F_EPOCH}
buffer_load_dword {vr(vEp7)}, {vr(vT0)}, {sr(SWS,4)}, 0 offen{SC}''')
    a(f'''s_and_b32 {sr(sT)}, {sr(sW)}, 3
s_lshl_b32 {sr(sT)}, {sr(sT)}, 5
v_and_b32 {vr(vT0)}, 15, {vr(vLane)}
v_lshrrev_b32 {vr(vT1)}, 4, {vr(vLane)}
v_lshrrev_b32 {vr(vT2)}, 1, {vr(vT0)}
v_xor_b32 {vr(vT2)}, {vr(vT2)}, {vr(vT1)}
v_add_u32 {vr(vT0)}, {sr(sT)}, {vr(vT0)}
v_lshlrev_b32 {vr(vT0)}, 7, {vr(vT0)}
v_lshl_add_u32 {vr(vXr[0][0])}, {vr(vT2)}, 4, {vr(vT0)}
v_xor_b32 {vr(vXr[0][1])}, 64, {vr(vXr[0][0])}
v_lshrrev_b32 {vr(vT0)}, 5, {vr(vLane)}
v_lshlrev_b32 {vr(vT0)}, 4, {vr(vT0)}
v_bfe_u32 {vr(vT2)}, {vr(vLane)}, 4, 1
v_lshl_add_u32 {vr(vT0)}, {vr(vT2)}, 2, {vr(vT0)}
v_bfe_u32 {vr(vT2)}, {vr(vLane)}, 2, 2
v_add_u32 {vr(vT0)}, {vr(vT0)}, {vr(vT2)}
v_mul_u32_u24 {vr(vT0)}, 480, {vr(vT0)}
v_add_u32 {vr(vT5)}, {XSZ}, {vr(vT0)}
v_bfe_u32 {vr(vT2)}, {vr(vLane)}, 1, 1
v_mul_u32_u24 {vr(vT2)}, 40, {vr(vT2)}
v_and_b32 {vr(vT3)}, 1, {vr(vLane)}
v_lshl_add_u32 {vr(vT2)}, {vr(vT3)}, 4, {vr(vT2)}
v_add_u32 {vr(vWa[0])}, {vr(vT5)}, {vr(vT2)}
s_cmp_ge_u32 {sr(sW)}, 4
s_cselect_b32 {sr(sT)}, 8, 40
v_and_b32 {vr(vT2)}, 3, {vr(vLane)}
v_mad_u32_u24 {vr(vWb[0])}, {vr(vT2)}, {sr(sT)}, {vr(vT5)}''')
    for s_ in (1, 2):
        a(f'v_add_u32 {vr(vXr[s_][0])}, {s_*STG}, {vr(vXr[0][0])}')
        a(f'v_add_u32 {vr(vXr[s_][1])}, {s_*STG}, {vr(vXr[0][1])}')
        a(f'v_add_u32 {vr(vWa[s_])}, {s_*STG}, {vr(vWa[0])}')
        a(f'v_add_u32 {vr(vWb[s_])}, {s_*STG}, {vr(vWb[0])}')
    a(f'''s_lshr_b32 {sr(sT)}, {sr(sW)}, 1
s_mul_i32 {sr(sT2)}, {sr(sT)}, 10240
v_lshlrev_b32 {vr(vQo)}, 4, {vr(vLane)}
v_lshlrev_b32 {vr(vT0)}, 3, {vr(vLane)}
v_add_u32 {vr(vT0)}, 1024, {vr(vT0)}
v_mov_b32 {vr(vT1)}, {OOB}
v_cndmask_b32_e64 {vr(vQo2)}, {vr(vT0)}, {vr(vT1)}, {sr(sHi,2)}
v_add_u32 {vr(vbK1)}, {sr(sT2)}, {vr(vQo)}
v_add_u32 {vr(vT0)}, {sr(sT2)}, {vr(vT0)}
v_mov_b32 {vr(vT1)}, {ONES}
v_cndmask_b32_e64 {vr(vbK2)}, {vr(vT0)}, {vr(vT1)}, {sr(sHi,2)}
v_cndmask_b32_e64 {vr(vmK2)}, 1, 0, {sr(sHi,2)}
v_and_b32 {vr(vT2)}, 31, {vr(vLane)}
v_lshrrev_b32 {vr(vT3)}, 5, {vr(vLane)}
v_mul_u32_u24 {vr(vT3)}, 320, {vr(vT3)}
v_lshl_add_u32 {vr(vT3)}, {vr(vT2)}, 4, {vr(vT3)}
s_add_u32 {sr(sT3)}, {sr(sT2)}, 1280
v_add_u32 {vr(vT3)}, {sr(sT3)}, {vr(vT3)}
v_cmp_gt_u32 vcc, 20, {vr(vT2)}
v_mov_b32 {vr(vIdx)}, 0xdddddddd
v_mov_b32 {vr(vaK1)}, {vr(vbK1)}
v_cndmask_b32 {vr(vbV)}, {vr(vT1)}, {vr(vT3)}, vcc
v_cndmask_b32_e64 {vr(vmV)}, 0, 1, vcc
v_cmp_lt_u32 vcc, 20, {vr(vT2)}
v_add_u32 {vr(vT3)}, 16, {vr(vT1)}
v_mov_b32 {vr(vaK2)}, {vr(vbK2)}
v_cndmask_b32 {vr(vbV)}, {vr(vbV)}, {vr(vT3)}, vcc
v_mov_b32 {vr(vaV)}, {vr(vbV)}
s_mul_i32 {sr(sT2)}, {sr(sW)}, 2560
s_add_u32 {sr(sT2)}, {sr(sT2)}, {QST}
v_add_u32 {vr(vQs1)}, {sr(sT2)}, {vr(vQo)}
v_and_b32 {vr(vQs2)}, 31, {vr(vLane)}
v_lshlrev_b32 {vr(vQs2)}, 3, {vr(vQs2)}
s_add_u32 {sr(sT2)}, {sr(sT2)}, 1024
v_add_u32 {vr(vQs2)}, {sr(sT2)}, {vr(vQs2)}
s_lshl_b32 {sr(sT2)}, {sr(sB)}, 4
s_add_u32 {sr(sT2)}, {sr(sT2)}, {sr(sMt)}
s_lshl_b32 {sr(sT2)}, {sr(sT2)}, 1
s_and_b32 {sr(sT3)}, {sr(sW)}, 1
s_add_u32 {sr(sT2)}, {sr(sT2)}, {sr(sT3)}
s_lshl_b32 {sr(sT2)}, {sr(sT2)}, 5
s_lshl_b32 {sr(sT3)}, {sr(sHg)}, 2
s_add_u32 {sr(sT2)}, {sr(sT2)}, {sr(sT3)}
s_add_u32 {sr(sT2)}, {sr(sT2)}, {sr(sT)}
s_mul_i32 {sr(sOo)}, {sr(sT2)}, 2560
s_add_u32 {sr(sOo)}, {sr(sOo)}, {F_WS_O}
s_mul_i32 {sr(sT)}, {sr(sT)}, {KV_HEAD}
s_add_u32 {sr(sKV)}, {sr(sKV)}, {sr(sT)}
s_and_b32 {sr(sT)}, {sr(sW)}, 1
s_mul_i32 {sr(sT)}, {sr(sT)}, 5120
v_add_u32 {vr(vPub)}, {sr(sT)}, {vr(vbK1)}
s_mul_i32 {sr(sT2)}, {sr(sMt)}, 10240
s_add_u32 {sr(sT)}, {sr(sT)}, {sr(sT2)}
s_add_u32 {sr(sPub)}, {sr(sT)}, {sr(sKV)}
s_add_u32 {sr(sPub2)}, {sr(sPub)}, 4096''')
    for ct in range(8):
        for tt in range(2):
            for i in range(4):
                a(f'v_mov_b32 {vr(acc[ct][tt]+i)}, 0')
    a(f'''s_mov_b32 {sr(sScale)}, {QSCALE}
s_mov_b32 {sr(sScale+1)}, {QSCALE}
s_and_b32 {sr(sT3)}, {sr(sW)}, 3
v_and_b32 {vr(vT0)}, 15, {vr(vLane)}
v_lshrrev_b32 {vr(vT1)}, 4, {vr(vLane)}
v_lshrrev_b32 {vr(vT2)}, 2, {vr(vT0)}
v_and_b32 {vr(vT3)}, 3, {vr(vT0)}
v_lshl_add_u32 {vr(vT4)}, {vr(vT2)}, 3, {vr(vT3)}
v_lshrrev_b32 {vr(vT2)}, 1, {vr(vT1)}
v_and_b32 {vr(vT3)}, 1, {vr(vT1)}
s_mul_i32 {sr(sT)}, {sr(sT3)}, 2560
v_mul_u32_u24 {vr(vE[0])}, 10240, {vr(vT2)}
v_lshl_add_u32 {vr(vE[0])}, {vr(vT3)}, 9, {vr(vE[0])}
v_lshl_add_u32 {vr(vE[0])}, {vr(vT4)}, 4, {vr(vE[0])}
v_add_u32 {vr(vE[0])}, {sr(sT)}, {vr(vE[0])}
s_cmp_ge_u32 {sr(sW)}, 4
s_cbranch_scc1 {name}_p1b''')

    def p1_variant(wn):
        if wn == 0:
            kinds = [('P', 0, 0, 0), ('P', 0, 0, 1), ('P', 0, 1, 0), ('P', 0, 1, 1), ('T', 0, 0, 0), ('P', 1, 0, 0), ('P', 1, 0, 1), ('T', 1, 0, 0)]
            a(f'''s_add_u32 {sr(sT2)}, {sr(sT)}, 1024
v_mul_u32_u24 {vr(vE[1])}, 10240, {vr(vT1)}
v_lshl_add_u32 {vr(vE[1])}, {vr(vT4)}, 3, {vr(vE[1])}
v_add_u32 {vr(vE[1])}, {sr(sT2)}, {vr(vE[1])}
s_mul_i32 {sr(sT)}, {sr(sT3)}, 1280
s_add_u32 {sr(sT)}, {sr(sT)}, {QST}
v_mul_u32_u24 {vr(vE[2])}, 5120, {vr(vT2)}
v_lshl_add_u32 {vr(vE[2])}, {vr(vT3)}, 9, {vr(vE[2])}
v_lshl_add_u32 {vr(vE[2])}, {vr(vT0)}, 4, {vr(vE[2])}
v_add_u32 {vr(vE[2])}, {sr(sT)}, {vr(vE[2])}
s_add_u32 {sr(sT)}, {sr(sT)}, 1024
v_mul_u32_u24 {vr(vE[3])}, 5120, {vr(vT1)}
v_lshl_add_u32 {vr(vE[3])}, {vr(vT0)}, 3, {vr(vE[3])}
v_add_u32 {vr(vE[3])}, {sr(sT)}, {vr(vE[3])}''')
        else:
            kinds = [('P', 1, 1, 0), ('P', 1, 1, 1)] + [('V', 2, i, 0) for i in range(5)]
            a(f'''s_add_u32 {sr(sT)}, {sr(sT)}, 1280
v_mul_u32_u24 {vr(vT2)}, 640, {vr(vT2)}
v_mul_u32_u24 {vr(vT3)}, 320, {vr(vT3)}
v_add3_u32 {vr(vT5)}, {vr(vT2)}, {vr(vT3)}, {sr(sT)}''')
            for i in range(5):
                a(f'''v_add_u32 {vr(vT2)}, {16*i}, {vr(vT0)}
v_mul_u32_u24 {vr(vT3)}, 3277, {vr(vT2)}
v_lshrrev_b32 {vr(vT3)}, 16, {vr(vT3)}
v_mul_u32_u24 {vr(vT3)}, {10240-320}, {vr(vT3)}
v_lshl_add_u32 {vr(vT2)}, {vr(vT2)}, 4, {vr(vT3)}
v_add_u32 {vr(vE[1+i])}, {vr(vT2)}, {vr(vT5)}''')
        nct = len(kinds)
        grp = [list(range(0, 4)), list(range(4, nct))]
        def rd_x(step, s2):
            return [f'ds_read_b128 {vr(Xf[s2][tt],4)}, {vr(vXr[step%3][s2])} offset:{tt*2048}' for tt in range(2)]
        def rd_w(step, s2, h, idx):
            ty, sec, sub, e = kinds[grp[h][idx]]
            base = (vWa if ty == 'P' else vWb)[step % 3]
            col = sec*160 + {'P': sub*80 + e*8, 'T': 32, 'V': sub*32}[ty]
            return [f'ds_read_b64_tr_b16 {vr(Wf[h][idx]+2*rd,2)}, {vr(base)} offset:{(32*s2+8*rd)*480 + col}' for rd in range(2)]
        def mf(s2, h, idx):
            ct = grp[h][idx]
            out = []
            for tt in range(2):
                A, B = Wf[h][idx], Xf[s2][tt]
                if kinds[ct][0] == 'V':
                    A, B = B, A
                out.append(f'v_mfma_f32_16x16x32_bf16 {vr(acc[ct][tt],4)}, {vr(A,4)}, {vr(B,4)}, {vr(acc[ct][tt],4)}')
            return out
        n0, n1 = 2 + 2*len(grp[0]), 2*len(grp[1])
        def phase(s2, h, nxt):
            if nxt is not None and h == 0:
                for r in rd_x(*nxt): a(r)
            for idx in range(len(grp[h])):
                for m in mf(s2, h, idx): a(m)
                if nxt is not None:
                    for r in rd_w(nxt[0], nxt[1], h, idx): a(r)
        st1()
        a('s_waitcnt vmcnt(0)')
        a(f'v_readfirstlane_b32 {sr(sTag)}, {vr(vEp7)}')
        a('s_barrier')
        a(f's_add_u32 {sr(sTag)}, {sr(sTag)}, {TAGK}')
        rts(1)
        st()
        for r in rd_x(0, 0): a(r)
        for h in range(2):
            for idx in range(len(grp[h])):
                for r in rd_w(0, 0, h, idx): a(r)
        for step in range(10):
            if step == 9 and hsplit:
                a('s_barrier')
            a(f's_waitcnt lgkmcnt({n1})')
            phase(0, 0, (step, 1))
            a(f's_waitcnt lgkmcnt({n0})')
            phase(0, 1, (step, 1))
            a('s_waitcnt lgkmcnt(0)')
            a('s_barrier')
            if step == 0 and wn == 1:
                a(f'v_mov_b32 {vr(vCi7)}, 1')
                a(f'buffer_atomic_add {vr(vCi7)}, {vr(vZ7)}, {sr(SDBG,4)}, 0 offen sc0')
            if step in (0, 4): st0()
            if step in (0, 1, 2, 8): st1()
            if step in (8, 9): st4()
            nx = (step + 1, 0) if step < 9 else None
            phase(1, 0, nx)
            phase(1, 1, nx)
        st0(); st4()
        rts(2)
        if wn == 1:
            a(f'''s_waitcnt vmcnt(0)
v_cmp_eq_u32 vcc, 255, {vr(vCi7)}
v_add_u32 {vr(vEp7)}, {TAGK}, {vr(vEp7)}
v_mov_b32 {vr(vT1)}, {OOB}
s_mov_b32 {sr(sT)}, {F_EPOCH}
v_cndmask_b32 {vr(vZ7)}, {vr(vT1)}, {vr(vZ7)}, vcc
buffer_store_dword {vr(vEp7)}, {vr(vZ7)}, {sr(SWS,4)}, {sr(sT)} offen{SC}''')
        def scale(r0):
            a(f'v_pk_mul_f32 {vr(r0,2)}, {vr(r0,2)}, {sr(sScale,2)}')
            a(f'v_pk_mul_f32 {vr(r0+2,2)}, {vr(r0+2,2)}, {sr(sScale,2)}')
        def pack4(d, x, y):
            a(f'v_cvt_pk_bf16_f32 {vr(d)}, {vr(x)}, {vr(x+1)}')
            a(f'v_cvt_pk_bf16_f32 {vr(d+1)}, {vr(x+2)}, {vr(x+3)}')
            if y is not None:
                a(f'v_cvt_pk_bf16_f32 {vr(d+2)}, {vr(y)}, {vr(y+1)}')
                a(f'v_cvt_pk_bf16_f32 {vr(d+3)}, {vr(y+2)}, {vr(y+3)}')
        def stage(want):
          ct = 0
          while ct < nct:
            ty, sec, sub, e = kinds[ct]
            if (sec == 0) != want:
                ct += 1
                continue
            if ty == 'P':
                for tt in range(2):
                    x, y = acc[ct][tt], acc[ct+1][tt]
                    if sec == 0:
                        scale(x); scale(y)
                    pack4(x, x, y)
                    if sec == 0:
                        a(f'ds_write_b128 {vr(vE[2])}, {vr(x,4)} offset:{sub*10240 + tt*256}')
                    else:
                        a(f'ds_write_b128 {vr(vE[0])}, {vr(x,4)} offset:{sub*20480 + tt*64}')
                ct += 2
            elif ty == 'T':
                for tt in range(2):
                    x = acc[ct][tt]
                    if sec == 0:
                        scale(x)
                    pack4(x, x, None)
                    if sec == 0:
                        a(f'ds_write_b64 {vr(vE[3])}, {vr(x,2)} offset:{tt*128}')
                    else:
                        a(f'ds_write_b64 {vr(vE[1])}, {vr(x,2)} offset:{tt*32}')
                ct += 1
            else:
                x, y = acc[ct][0], acc[ct][1]
                pack4(x, x, y)
                a(f'ds_write_b128 {vr(vE[1+sub])}, {vr(x,4)}')
                ct += 1
        stage(False)
        a('s_waitcnt lgkmcnt(0)')
        st4()
        a('s_barrier')
        st4()
        PB = Xf[0][0]
        assert Wf[0][0] == PB + 16
        for q in range(5):
            a(f'ds_read_b128 {vr(PB+4*q,4)}, {vr(vPub)} offset:{q*1024}')
        stage(True)
        nq = 6 if wn == 0 else 0
        for q in range(5):
            a(f's_waitcnt lgkmcnt({4 - q + nq})')
            a(f'buffer_store_dwordx4 {vr(PB+4*q,4)}, {vr(vQo)}, {sr(SWS,4)}, {sr(sPub if q < 4 else sPub2)} offen offset:{(q%4)*1024}{SST}')
        a('s_nop 1')
        st4()
    n_st = st.n
    p1_variant(0)
    a(f's_branch {name}_p2')
    a.label(f'{name}_p1b')
    st.n = n_st
    p1_variant(1)
    a.label(f'{name}_p2')

    V = VAlloc(VB2 + 3)
    Q1 = [V(4), V(4)]; Q2 = [V(2), V(2)]
    K1 = [V(4), V(4)]; K2 = [V(2), V(2)]
    V0 = [V(4), V(4)]; V1 = [V(4), V(4)]
    O = [V(16), V(16)]
    S = [V(16), V(16)]
    vPw = V(2); vPa = V(); vPo_ = V(); vPg = V()
    done_alloc(V)
    for t in range(2):
        for i in range(16):
            a(f'v_mov_b32 {vr(O[t]+i)}, 0')
    for i in range(4):
        a(f'v_mov_b32 {vr(V1[1]+i)}, 0')
    a(f's_mov_b32 {sr(sG)}, 0')
    a(f's_mov_b32 {sr(sOff)}, 0')
    if nobar:
        a(f'''s_lshl_b32 {sr(sT)}, {sr(sW)}, 3
s_add_u32 {sr(sT2)}, {sr(sT)}, {LW_PW + 4}
s_xor_b32 {sr(sT)}, {sr(sT)}, 32
s_add_u32 {sr(sT)}, {sr(sT)}, {LW_PW}
v_mov_b32 {vr(vPa)}, {sr(sT)}
v_mov_b32 {vr(vPo_)}, {sr(sT2)}
v_mov_b32 {vr(vPg)}, 0''')
    a('s_waitcnt lgkmcnt(0)')
    a('s_barrier')
    st0(); st4()
    def rdK(s_, u, part='R'):
        if part != 'Rb': a(f'ds_read_b128 {vr(K1[s_],4)}, {vr(vaK1)} offset:{2560*u}')
        if part != 'Ra': a(f'ds_read_b64 {vr(K2[s_],2)}, {vr(vaK2)} offset:{2560*u}')
    def rdV(s_, u, part='R'):
        if part != 'Rb': a(f'ds_read_b128 {vr(V0[s_],4)}, {vr(vaV)} offset:{2560*u}')
        if part != 'Ra': a(f'ds_read_b128 {vr(V1[s_],4)}, {vr(vaV)} offset:{2560*u+640}')
    def qk16(t, s_):
        a(f'v_mfma_f32_32x32x16_bf16 {vr(S[t],16)}, {vr(K1[s_],4)}, {vr(Q1[t],4)}, 0')
    def qk8(t, s_):
        a(f'v_mfma_f32_32x32x8_bf16 {vr(S[t],16)}, {vr(K2[s_],2)}, {vr(Q2[t],2)}, {vr(S[t],16)}')
    def pv(t, s_, n):
        Vf = (V0, V1)[n][s_]
        a(f'v_smfmac_f32_32x32x32_bf16 {vr(O[t],16)}, {vr(Vf,4)}, {vr(S[t]+8*n,8)}, {vr(vIdx)}')
    def rowmax(t, dst):
        s = S[t]
        a(f'v_max3_f32 {vr(dst)}, {vr(s)}, {vr(s+1)}, {vr(s+2)}')
        for i in range(3, 15, 2):
            a(f'v_max3_f32 {vr(dst)}, {vr(dst)}, {vr(s+i)}, {vr(s+i+1)}')
        a(f'v_max_f32 {vr(dst)}, {vr(dst)}, {vr(s+15)}')
    def crosshalf(x, y):
        a(f'v_mov_b32 {vr(y)}, {vr(x)}')
        a('s_nop 1')
        a(f'v_permlane32_swap_b32 {vr(x)}, {vr(y)}')
        a('s_nop 1')
    for t in range(2):
        a(f'ds_read_b128 {vr(Q1[t],4)}, {vr(vQs1)} offset:{1280*t}')
        a(f'ds_read_b64 {vr(Q2[t],2)}, {vr(vQs2)} offset:{1280*t}')
    rdK(0, 0); rdK(1, 1); rdV(0, 0)
    a('s_waitcnt lgkmcnt(4)')
    for t in range(2):
        a(f'v_cndmask_b32_e64 {vr(Q2[t])}, {vr(Q2[t])}, 0, {sr(sHi,2)}')
        a(f'v_cndmask_b32_e64 {vr(Q2[t]+1)}, {vr(Q2[t]+1)}, 0, {sr(sHi,2)}')
    qk16(0, 0); qk8(0, 0); qk16(1, 0); qk8(1, 0)
    a('s_nop 9')
    for t in range(2):
        if t == 1: a('s_nop 1')
        rowmax(t, vT0)
        crosshalf(vT0, vT1)
        a(f'''v_max_f32 {vr(vT0)}, {vr(vT0)}, {vr(vT1)}
v_sub_f32 {vr(vT0)}, 0, {vr(vT0)}
v_and_b32 {vr(vT1)}, 0xffff0000, {vr(vT0)}
v_sub_f32 {vr(vT0)}, {vr(vT0)}, {vr(vT1)}
v_and_b32 {vr(vT2)}, 0xffff0000, {vr(vT0)}
v_sub_f32 {vr(vT0)}, {vr(vT0)}, {vr(vT2)}
v_lshrrev_b32 {vr(vT1)}, 16, {vr(vT1)}
v_or_b32 {vr(vT1)}, {vr(vT1)}, {vr(vT2)}
v_lshrrev_b32 {vr(vT0)}, 16, {vr(vT0)}
v_cndmask_b32_e64 {vr(Q2[t])}, {vr(Q2[t])}, {vr(vT1)}, {sr(sHi,2)}
v_cndmask_b32_e64 {vr(Q2[t]+1)}, {vr(Q2[t]+1)}, {vr(vT0)}, {sr(sHi,2)}''')
        if t == 0:
            qk16(0, 0)
            a('s_nop 0')
            qk8(0, 0)
    for i in range(8, 16):
        a(f'v_mov_b32 {vr(S[1]+i)}, 0')
    st4()
    a(f'''s_lshl_b32 {sr(sT)}, {sr(sB)}, 3
s_add_u32 {sr(sT)}, {sr(sT)}, {sr(sHg)}
s_lshl_b32 {sr(sT)}, {sr(sT)}, 6
s_add_u32 {sr(sT)}, {sr(sT)}, {sr(sMt)}
s_lshl_b32 {sr(sT)}, {sr(sT)}, 2
s_add_u32 {sr(sT)}, {sr(sT)}, {F_FLAG1}
s_mov_b64 exec, 1
v_mov_b32 {vr(vT0)}, 1
v_mov_b32 {vr(vT2)}, {LW_CNT1}
v_mov_b32 {vr(vT1)}, {sr(sTag)}
v_mov_b32 {vr(vT3)}, {sr(sT)}
s_waitcnt vmcnt(0)
ds_add_rtn_u32 {vr(vT0)}, {vr(vT2)}, {vr(vT0)}
s_waitcnt lgkmcnt(0)
v_readfirstlane_b32 {sr(sT)}, {vr(vT0)}
s_cmp_eq_u32 {sr(sT)}, 7
s_cbranch_scc0 {name}_nl1
buffer_store_dword {vr(vT1)}, {vr(vT3)}, {sr(SWS,4)}, 0 offen{SC}''')
    a.label(f'{name}_nl1')
    a('s_mov_b64 exec, -1')
    prio = opts.get('prio', 1)
    rts(3)
    st0(); st4()
    if sset == 2: st()
    a('.p2align 6')
    a.label(f'{name}_loop')
    def ex(t, i):
        a(f'v_exp_f32 {vr(S[t]+i)}, {vr(S[t]+i)}')
    scheds = {1: 'e e P2 e e e e Q16 e e e e Q8 R e e e e P1 W e e',
              2: 'e e P2 e e e e Q16 e e e Q8 R e e e e e P1 W e e',
              3: 'e e P2 e e e e Q16 e e e e Q8 e R e e e P1 e W e',
              4: 'e e P2 e e e Q16 e e e e Q8 R e e e e P1 W e e e',
              5: 'e e W P2 e e e e Ra Q16 e e e e Rb Q8 e e e e P1 e e',
              6: 'e e W P2 e e e e R Q16 e e e e Q8 e e e e P1 e e',
              7: 'e e W P2 e e e e Q16 e e e e Ra Q8 e e e e Rb P1 e e',
              8: 'e e P2 e e e e Ra Q16 e e e e Rb Q8 e e e e W P1 e e',
              9: 'e e P2 e e e e Q16 e e e e Q8 e e e e R W P1 e e',
              10: 'e e P2 Ra e e e e Q16 Rb e e e e Q8 W e e e e P1 e e',
              11: 'e e P2 Ra e e e e Q16 Rb e e e e Q8 e e e e P1 W e e',
              12: 'e e P2 R e e e e Q16 e e e e Q8 e e e e P1 W e e'}
    sched = scheds[opts.get('sched', 11)].split()
    unroll = opts.get('unroll', 1)
    ptab = {1: {(0, 0): 2, (1, 0): 1, (2, 0): 0, (3, 0): 3},
            2: {(3, 0): 1, (1, 0): 0},
            3: {(3, 0): 3, (3, 1): 2, (0, 1): 1, (1, 1): 0},
            6: {(3, 0): 3, (0, 1): 2, (1, 1): 1, (2, 0): 0}}.get(prio, {})
    for rep in range(unroll):
      for j in range(4):
        for t in range(2):
            pj = j if t == 1 else j - 1
            nj = j if t == 0 else j + 1
            if (j, t) in ptab and nobar != 1:
                a(f's_setprio {ptab[(j, t)]}')
            e = 0
            for tok in sched:
                if tok == 'e':
                    ex(t, e); e += 1
                elif tok == 'P2':
                    pv(1 - t, pj % 2, 1)
                elif tok == 'P1':
                    pv(t, j % 2, 0)
                elif tok == 'Q16':
                    qk16(1 - t, nj % 2)
                elif tok == 'Q8':
                    qk8(1 - t, nj % 2)
                elif tok == 'W':
                    a(f's_waitcnt lgkmcnt({3 if nobar and (j, t) in ((2, 0), (2, 1)) else 2})')
                elif tok == 'Rb':
                    if t == 0: rdV((j + 1) % 2, (j + 1) % 4, 'Rb')
                    else: rdK(j % 2, (j + 2) % 4, 'Rb')
                elif tok in ('R', 'Ra'):
                    if t == 0:
                        if j == 3:
                            a(f'v_mad_u32_u24 {vr(vaV)}, {vr(vmV)}, {sr(sOff)}, {vr(vbV)}')
                        rdV((j + 1) % 2, (j + 1) % 4, tok)
                        if j == 2 and nobar:
                            a(f'ds_read_b64 {vr(vPw,2)}, {vr(vPa)}')
                    else:
                        if j == 2:
                            a(f'''s_add_u32 {sr(sOff)}, {sr(sOff)}, {SLOT}
s_cmp_ge_u32 {sr(sOff)}, {3*SLOT}
s_cselect_b32 {sr(sOff)}, 0, {sr(sOff)}''')
                            if nobar:
                                a(f'''v_add_u32 {vr(vPg)}, 1, {vr(vPg)}
s_add_u32 {sr(sT3)}, {sr(sG)}, {rep + 1}
s_waitcnt lgkmcnt(0)
v_readfirstlane_b32 {sr(sT)}, {vr(vPw)}
v_readfirstlane_b32 {sr(sT2)}, {vr(vPw+1)}
ds_write_b32 {vr(vPo_)}, {vr(vPg)}''')
                                if nobar == 1:
                                    a(f'''s_setprio 0
s_cmp_lt_u32 {sr(sT2)}, {sr(sT3)}
s_cbranch_scc1 {name}_lo{rep}
s_setprio 1''')
                                    a.label(f'{name}_lo{rep}')
                                elif nobar == 2:
                                    a(f's_add_u32 {sr(sT2)}, {sr(sT2)}, {1 + opts.get("slack", 0)}')
                                    a(f's_min_u32 {sr(sT)}, {sr(sT)}, {sr(sT2)}')
                                a(f's_cmp_gt_u32 {sr(sT)}, {sr(sT3)}')
                                a(f's_cbranch_scc0 {name}_spin{rep}')
                                a.label(f'{name}_spun{rep}')
                            else:
                                a('s_waitcnt lgkmcnt(0)')
                                a('s_barrier')
                            if sset == 2 and st.on:
                                for K in (0, 1, 2, 3, 8, 14):
                                    a(f's_cmp_eq_u32 {sr(sG)}, {K}')
                                    a(f's_cbranch_scc0 {name}_sk{K}')
                                    st()
                                    a.label(f'{name}_sk{K}')
                            a(f'''v_add_u32 {vr(vaK1)}, {sr(sOff)}, {vr(vbK1)}
v_mad_u32_u24 {vr(vaK2)}, {vr(vmK2)}, {sr(sOff)}, {vr(vbK2)}''')
                        rdK(j % 2, (j + 2) % 4, tok)
            assert e == 16
    a(f'''s_add_u32 {sr(sG)}, {sr(sG)}, {unroll}
s_cmp_lt_u32 {sr(sG)}, 16
s_cbranch_scc1 {name}_loop''')
    a('s_nop 1')
    pv(1, 1, 1)
    if ptab or nobar:
        a('s_setprio 0')
    st0()
    if sset in (2, 3): st()
    L = [vT2, vT3]
    rts(4)
    a('s_waitcnt lgkmcnt(0)')
    a(f's_mov_b32 {sr(sI)}, 0')
    a.label(f'{name}_store')
    a(f's_mov_b32 {sr(sM)}, 0xaaaaaaaa')
    a(f's_mov_b32 {sr(sM+1)}, 0xaaaaaaaa')
    for t in range(2):
        a(f'v_mov_b32 {vr(vT0)}, {vr(O[t]+8)}')
        crosshalf(vT0, L[t])
        a(f'v_rcp_f32 {vr(vT0)}, {vr(L[t])}')
        a('s_nop 0')
        for i in range(12):
            a(f'v_mul_f32 {vr(O[t]+i)}, {vr(O[t]+i)}, {vr(vT0)}')
        for i in range(4):
            a(f'v_cvt_pk_bf16_f32 {vr(S[t]+i)}, {vr(O[t]+2*i)}, {vr(O[t]+2*i+1)}')
        a(f'buffer_store_dwordx4 {vr(S[t],4)}, {vr(vQo)}, {sr(SWS,4)}, {sr(sOo)} offen offset:{1024*t}{SST}')
        for i in range(2):
            a(f'v_cvt_pk_bf16_f32 {vr(S[0]+4+2*t+i)}, {vr(O[t]+8+2*i)}, {vr(O[t]+8+2*i+1)}')
    ta, tb, X, Y = S[0]+4, S[0]+6, S[0]+8, S[0]+12
    a(f'''v_cndmask_b32_e64 {vr(X)}, {vr(tb)}, {vr(ta)}, {sr(sM,2)}
v_cndmask_b32_e64 {vr(X+1)}, {vr(tb+1)}, {vr(ta+1)}, {sr(sM,2)}
v_lshrrev_b32 {vr(vT0)}, 1, {vr(vLane)}
v_and_b32 {vr(vT1)}, 1, {vr(vLane)}
v_mov_b32_dpp {vr(X+2)}, {vr(X)} quad_perm:[1,0,3,2] row_mask:0xf bank_mask:0xf
v_mov_b32_dpp {vr(X+3)}, {vr(X+1)} quad_perm:[1,0,3,2] row_mask:0xf bank_mask:0xf
v_lshlrev_b32 {vr(vT0)}, 4, {vr(vT0)}
v_lshl_add_u32 {vr(vT0)}, {vr(vT1)}, 8, {vr(vT0)}
v_mov_b32 {vr(vT1)}, {OOB}
v_cndmask_b32_e64 {vr(Y)}, {vr(ta)}, {vr(X+2)}, {sr(sM,2)}
v_cndmask_b32_e64 {vr(Y+1)}, {vr(ta+1)}, {vr(X+3)}, {sr(sM,2)}
v_cndmask_b32_e64 {vr(Y+2)}, {vr(X+2)}, {vr(tb)}, {sr(sM,2)}
v_cndmask_b32_e64 {vr(Y+3)}, {vr(X+3)}, {vr(tb+1)}, {sr(sM,2)}
v_cndmask_b32_e64 {vr(vT0)}, {vr(vT0)}, {vr(vT1)}, {sr(sHi,2)}
buffer_store_dwordx4 {vr(Y,4)}, {vr(vT0)}, {sr(SWS,4)}, {sr(sOo)} offen offset:2048{SST}''')
    st0()
    for t in range(2):
        sm = sM if t == 0 else sM2
        a(f'v_mul_f32 {vr(vT1)}, 0, {vr(O[t])}')
        for i in range(1, 12):
            a(f'v_fmac_f32 {vr(vT1)}, 0, {vr(O[t]+i)}')
        a(f'v_add_f32 {vr(vT1)}, {vr(vT1)}, {vr(L[t])}')
        a(f'v_cmp_gt_f32 vcc, 0x53800000, {vr(vT1)}')
        a(f's_mov_b64 {sr(sm,2)}, vcc')
        a(f'v_cmp_lt_f32 vcc, 0x35800000, {vr(vT1)}')
        a(f's_and_b64 {sr(sm,2)}, {sr(sm,2)}, vcc')
    a(f'''s_and_b64 {sr(sM,2)}, {sr(sM,2)}, {sr(sM2,2)}
s_cmp_eq_u64 {sr(sM,2)}, -1
s_cselect_b32 {sr(sT)}, 1, {sr(sI)}
s_cmp_eq_u32 {sr(sT)}, 0
s_cbranch_scc1 {name}_fallback''')

    V = VAlloc(VBASE)
    vAo = V(); vAt = V(); vWm0 = V(); vWt0 = V(); vOo = V(); vRd = V(); vDn = V()
    vWm = [V() for _ in range(4)]; vWt = [V() for _ in range(4)]
    acc3 = [V(4) for _ in range(5)]
    assert V.n <= S[0]
    Wg = [[V(4) for _ in range(5)] for _ in range(2)]
    A = [[V(4) for _ in range(5)] for _ in range(4)]
    done_alloc(V)
    a(f'''s_lshl_b32 {sr(sT)}, {sr(sB)}, 4
s_add_u32 {sr(sT)}, {sr(sT)}, {sr(sMt3)}
s_lshl_b32 {sr(sT)}, {sr(sT)}, 1
s_lshr_b32 {sr(sT2)}, {sr(sW)}, 2
s_add_u32 {sr(sT)}, {sr(sT)}, {sr(sT2)}
s_mul_i32 {sr(sA)}, {sr(sT)}, {32*2560}
s_add_u32 {sr(sA)}, {sr(sA)}, {F_WS_O}
s_and_b32 {sr(sT)}, {sr(sW)}, 1
s_lshl_b32 {sr(sT)}, {sr(sT)}, 4
s_bfe_u32 {sr(sT2)}, {sr(sW)}, 0x10001
v_and_b32 {vr(vT0)}, 15, {vr(vLane)}
v_add_u32 {vr(vT0)}, {sr(sT)}, {vr(vT0)}
v_lshlrev_b32 {vr(vT0)}, 4, {vr(vT0)}
v_lshrrev_b32 {vr(vT1)}, 5, {vr(vLane)}
v_mul_u32_u24 {vr(vT1)}, 2560, {vr(vT1)}
v_bfe_u32 {vr(vT2)}, {vr(vLane)}, 4, 1
v_lshl_add_u32 {vr(vT1)}, {vr(vT2)}, 9, {vr(vT1)}
s_lshl_b32 {sr(sT3)}, {sr(sT2)}, 10
v_add3_u32 {vr(vAo)}, {vr(vT0)}, {vr(vT1)}, {sr(sT3)}
v_lshrrev_b32 {vr(vT1)}, 4, {vr(vLane)}
v_mul_u32_u24 {vr(vT1)}, 2560, {vr(vT1)}
s_lshl_b32 {sr(sT3)}, {sr(sT2)}, 8
s_add_u32 {sr(sT3)}, {sr(sT3)}, 2048
v_lshrrev_b32 {vr(vT0)}, 1, {vr(vT0)}
v_add3_u32 {vr(vAt)}, {vr(vT0)}, {vr(vT1)}, {sr(sT3)}
v_bfe_u32 {vr(vT0)}, {vr(vLane)}, 2, 2
v_lshrrev_b32 {vr(vT1)}, 5, {vr(vLane)}
v_mul_u32_u24 {vr(vT1)}, 20, {vr(vT1)}
v_bfe_u32 {vr(vT2)}, {vr(vLane)}, 4, 1
v_lshl_add_u32 {vr(vT1)}, {vr(vT2)}, 2, {vr(vT1)}
v_add_u32 {vr(vT1)}, {vr(vT1)}, {vr(vT0)}
v_mul_u32_u24 {vr(vT1)}, 160, {vr(vT1)}
v_and_b32 {vr(vT2)}, 3, {vr(vLane)}
v_lshl_add_u32 {vr(vWm0)}, {vr(vT2)}, 3, {vr(vT1)}
v_lshrrev_b32 {vr(vT1)}, 4, {vr(vLane)}
v_mul_u32_u24 {vr(vT1)}, 20, {vr(vT1)}
v_add3_u32 {vr(vT1)}, {vr(vT1)}, {vr(vT0)}, 16
v_mul_u32_u24 {vr(vT1)}, 160, {vr(vT1)}
v_lshl_add_u32 {vr(vWt0)}, {vr(vT2)}, 3, {vr(vT1)}
s_lshl_b32 {sr(sT)}, {sr(sMt3)}, 7
s_lshl_b32 {sr(sT2)}, {sr(sW)}, 4
s_add_u32 {sr(sT)}, {sr(sT)}, {sr(sT2)}
v_and_b32 {vr(vT0)}, 15, {vr(vLane)}
v_add_u32 {vr(vT0)}, {sr(sT)}, {vr(vT0)}
v_mul_u32_u24 {vr(vT0)}, 2560, {vr(vT0)}
v_lshrrev_b32 {vr(vT1)}, 4, {vr(vLane)}
v_lshl_add_u32 {vr(vT0)}, {vr(vT1)}, 3, {vr(vT0)}
s_mul_i32 {sr(sT)}, {sr(sB)}, 1280
s_mul_i32 {sr(sT2)}, {sr(sCg)}, 160
s_add_u32 {sr(sT)}, {sr(sT)}, {sr(sT2)}
v_add_u32 {vr(vOo)}, {sr(sT)}, {vr(vT0)}
v_mov_b32 {vr(vRd)}, {LW_RDY}
s_lshl_b32 {sr(sT)}, {sr(sB)}, 4
s_add_u32 {sr(sT)}, {sr(sT)}, {sr(sMt)}
s_lshl_b32 {sr(sT)}, {sr(sT)}, 6
s_add_u32 {sr(sT)}, {sr(sT)}, {sr(sHg)}
s_lshl_b32 {sr(sT)}, {sr(sT)}, 2
s_add_u32 {sr(sT)}, {sr(sT)}, {F_FLAG2}
v_mov_b32 {vr(vDn)}, {sr(sT)}
v_add_u32 {vr(vWm0)}, {WO_LO}, {vr(vWm0)}
v_add_u32 {vr(vWt0)}, {WO_LO}, {vr(vWt0)}
s_and_b32 {sr(sT3)}, {sr(sCg)}, {opts.get('rot3', 3)}
s_lshl_b32 {sr(sT3)}, {sr(sT3)}, 1
s_mov_b32 {sr(sDone)}, 0''')
    for t in range(5):
        for i in range(4):
            a(f'v_mov_b32 {vr(acc3[t]+i)}, 0')
    tid_ = [0]
    base3 = st.n
    if sset == 3: st.n += 4
    def read_rdy():
        a(f'''ds_read_b64 {vr(vT0,2)}, {vr(vRd)}
s_waitcnt lgkmcnt(0)
v_and_b32 {vr(vT0)}, {vr(vT0)}, {vr(vT1)}
s_nop 0
v_readfirstlane_b32 {sr(sT)}, {vr(vT0)}
s_andn2_b32 {sr(sT)}, {sr(sT)}, {sr(sDone)}''')
    def loads(s_):
        a(f'''s_lshl_b32 {sr(sT2)}, {sr(sT)}, 8
s_or_b32 {sr(sT)}, {sr(sT)}, {sr(sT2)}
s_lshr_b32 {sr(sT)}, {sr(sT)}, {sr(sT3)}
s_ff1_i32_b32 {sr(sT)}, {sr(sT)}
s_add_u32 {sr(sT)}, {sr(sT)}, {sr(sT3)}
s_and_b32 {sr(sT)}, {sr(sT)}, 7
s_bitset1_b32 {sr(sDone)}, {sr(sT)}
s_mul_i32 {sr(sT2)}, {sr(sT)}, 10240
s_add_u32 {sr(sT2)}, {sr(sT2)}, {sr(sA)}
s_cmp_eq_u32 {sr(sT)}, 6
s_mul_i32 {sr(sT)}, {sr(sT)}, 12800
s_cselect_b32 {sr(sT)}, {QST - WO_LO}, {sr(sT)}''')
        for p in range(4):
            a(f'buffer_load_dwordx4 {vr(A[s_][p],4)}, {vr(vAo)}, {sr(SWS,4)}, {sr(sT2)} offen{SLD}')
            if p == 0:
                a(f'buffer_load_dwordx2 {vr(A[s_][4],2)}, {vr(vAt)}, {sr(SWS,4)}, {sr(sT2)} offen{SLD}')
            if p == 2:
                a(f'buffer_load_dwordx2 {vr(A[s_][4]+2,2)}, {vr(vAt)}, {sr(SWS,4)}, {sr(sT2)} offen{SLD}')
            if p < 3:
                a(f's_add_u32 {sr(sT2)}, {sr(sT2)}, 5120')
        a(f'v_add_u32 {vr(vWm[s_])}, {sr(sT)}, {vr(vWm0)}')
        a(f'v_add_u32 {vr(vWt[s_])}, {sr(sT)}, {vr(vWt0)}')
        if sset == 3 and st.on:
            a(f's_memtime s[{62+2*(base3+s_)}:{63+2*(base3+s_)}]\ns_waitcnt lgkmcnt(0)')
    def take_group(s_):
        n = tid_[0]; tid_[0] += 1
        a.label(f'{name}_tg{n}')
        read_rdy()
        a(f'''s_cbranch_scc1 {name}_tgd{n}
s_sleep 1
s_branch {name}_tg{n}''')
        a.label(f'{name}_tgd{n}')
        loads(s_)
    a('s_waitcnt vmcnt(0)')
    a(f'''s_mov_b64 exec, 1
v_mov_b32 {vr(vT0)}, 1
ds_add_rtn_u32 {vr(vT0)}, {vr(vRd)}, {vr(vT0)} offset:8
v_mov_b32 {vr(vT1)}, {sr(sTag)}
v_mov_b32 {vr(vT2)}, 0xff
s_waitcnt lgkmcnt(0)
v_readfirstlane_b32 {sr(sT)}, {vr(vT0)}
s_cmp_eq_u32 {sr(sT)}, 7
s_cbranch_scc0 {name}_nl
buffer_store_dword {vr(vT1)}, {vr(vDn)}, {sr(SWS,4)}, 0 offen{SC}
ds_write_b32 {vr(vRd)}, {vr(vT2)} offset:4''')
    a.label(f'{name}_nl')
    a('s_mov_b64 exec, -1')
    if sset == 3: st()
    def rdW3(fs, j, p, t):
        out = []
        for rd in range(2):
            if p < 4:
                base, off = vWm[j], (20*(2*p) + 8*rd)*160 + t*32
            else:
                base, off = vWt[j], (20*(4*rd))*160 + t*32
            out.append(f'ds_read_b64_tr_b16 {vr(Wg[fs][t]+2*rd,2)}, {vr(base)} offset:{off}')
        return out
    if opts.get('evt', 1):
        st0()
        sJ = sG
        a(f's_mov_b32 {sr(sI)}, 0')
        a(f's_mov_b32 {sr(sJ)}, 0')
        a.label(f'{name}_ev')
        a(f's_cmp_lt_u32 {sr(sI)}, 4')
        a(f's_cbranch_scc0 {name}_evc')
        read_rdy()
        a(f's_cbranch_scc0 {name}_evn')
        for i in range(4):
            if i < 3:
                a(f's_cmp_eq_u32 {sr(sI)}, {i}')
                a(f's_cbranch_scc0 {name}_evt{i}')
            loads(i)
            a(f's_mov_b32 {sr(sI)}, {i+1}')
            a(f's_branch {name}_ev')
            a.label(f'{name}_evt{i}')
        a.label(f'{name}_evn')
        a(f'''s_getreg_b32 {sr(sT)}, hwreg(HW_REG_IB_STS)
s_bfe_u32 {sr(sT2)}, {sr(sT)}, 0x20016
s_lshl_b32 {sr(sT2)}, {sr(sT2)}, 4
s_and_b32 {sr(sT)}, {sr(sT)}, 15
s_or_b32 {sr(sT)}, {sr(sT)}, {sr(sT2)}
s_add_u32 {sr(sT)}, {sr(sT)}, 6
s_sub_u32 {sr(sT2)}, {sr(sI)}, {sr(sJ)}
s_mul_i32 {sr(sT2)}, {sr(sT2)}, 6
s_cmp_le_u32 {sr(sT)}, {sr(sT2)}
s_cbranch_scc1 {name}_evc
s_sleep 1
s_branch {name}_ev''')
        a.label(f'{name}_evc')
        for j in range(4):
            if j < 3:
                a(f's_cmp_eq_u32 {sr(sJ)}, {j}')
                a(f's_cbranch_scc0 {name}_evk{j}')
            for p in range(2):
                for t in range(5):
                    for r in rdW3(p, j, p, t): a(r)
            for k in range(4, j + 1, -1):
                a(f's_cmp_eq_u32 {sr(sI)}, {k}')
                a(f's_cbranch_scc0 {name}_evw{j}_{k}')
                a(f's_waitcnt vmcnt({6*(k-j-1)})')
                a(f's_branch {name}_evx{j}')
                a.label(f'{name}_evw{j}_{k}')
            a('s_waitcnt vmcnt(0)')
            a.label(f'{name}_evx{j}')
            if sset == 3 and j in (0, 3): st()
            for p in range(5):
                fs = p % 2
                a(f's_waitcnt lgkmcnt({10 if p < 4 else 0})')
                for t in range(5):
                    a(f'v_mfma_f32_16x16x32_bf16 {vr(acc3[t],4)}, {vr(Wg[fs][t],4)}, {vr(A[j][p],4)}, {vr(acc3[t],4)}')
                    if p + 2 < 5:
                        for r in rdW3(fs, j, p + 2, t): a(r)
            if j < 3:
                a(f's_mov_b32 {sr(sJ)}, {j+1}')
                a(f's_branch {name}_ev')
                a.label(f'{name}_evk{j}')
    else:
        st0()
        steps = [(j, p) for j in range(4) for p in range(5)]
        for j in range(4):
            take_group(j)
        for n in range(2):
            for t in range(5):
                for r in rdW3(n, *steps[n], t): a(r)
        left = {0: 5, 1: 3, 2: 2, 3: 0, 4: 0}
        for n, (j, p) in enumerate(steps):
            fs = n % 2
            a(f's_waitcnt vmcnt({6*(3-j) + left[p]}) lgkmcnt({10 if n < 19 else 0})')
            if sset == 3 and n in (0, 18): st()
            for t in range(5):
                a(f'v_mfma_f32_16x16x32_bf16 {vr(acc3[t],4)}, {vr(Wg[fs][t],4)}, {vr(A[j][p],4)}, {vr(acc3[t],4)}')
                if n + 2 < 20:
                    for r in rdW3(fs, *steps[n+2], t): a(r)

    a('s_nop 3')
    st0()
    if sset == 3: st()
    OUTF = {0: '', 1: ' nt', 2: ' sc1'}[opts.get('outf', 0)]
    for t in range(5):
        a(f'v_cvt_pk_bf16_f32 {vr(acc3[t])}, {vr(acc3[t])}, {vr(acc3[t]+1)}')
        a(f'v_cvt_pk_bf16_f32 {vr(acc3[t]+1)}, {vr(acc3[t]+2)}, {vr(acc3[t]+3)}')
        a(f'buffer_store_dwordx2 {vr(acc3[t],2)}, {vr(vOo)}, {sr(SOUT,4)}, 0 offen offset:{t*32}{OUTF}')
    if dbgt:
        a('s_waitcnt vmcnt(0)')
        rts(5)
        a('s_mov_b64 exec, 1')
        a(f's_not_b32 s62, s62')
        for k in range(6):
            a(f'v_mov_b32 {vr(vT0)}, {4+4*k}')
            a(f'v_mov_b32 {vr(vT1)}, s{62+2*k}')
            a(f'buffer_atomic_umax {vr(vT1)}, {vr(vT0)}, {sr(SDBG,4)}, 0 offen')
            a('s_nop 1')
    if st.on:
        a('s_waitcnt vmcnt(0)')
    st(); st.rt(); st.flush(sW)
    n_total = st.n
    a.label(f'{name}_done')
    a('s_endpgm')

    if nobar:
        for rep in range(unroll):
            a.label(f'{name}_spin{rep}')
            a(f'''ds_read_b64 {vr(vPw,2)}, {vr(vPa)}
s_waitcnt lgkmcnt(0)
v_readfirstlane_b32 {sr(sT)}, {vr(vPw)}''')
            if nobar == 2:
                a(f'''v_readfirstlane_b32 {sr(sT2)}, {vr(vPw+1)}
s_add_u32 {sr(sT2)}, {sr(sT2)}, {1 + opts.get("slack", 0)}
s_min_u32 {sr(sT)}, {sr(sT)}, {sr(sT2)}''')
            a(f'''s_cmp_gt_u32 {sr(sT)}, {sr(sT3)}
s_cbranch_scc0 {name}_spin{rep}
s_branch {name}_spun{rep}''')
    a.label(f'{name}_fallback')
    M = [vT4, vT5]
    vVo = vaV
    a(f'''v_cndmask_b32_e64 {vr(Q2[0])}, {vr(Q2[0])}, 0, {sr(sHi,2)}
v_cndmask_b32_e64 {vr(Q2[0]+1)}, {vr(Q2[0]+1)}, 0, {sr(sHi,2)}
v_cndmask_b32_e64 {vr(Q2[1])}, {vr(Q2[1])}, 0, {sr(sHi,2)}
v_cndmask_b32_e64 {vr(Q2[1]+1)}, {vr(Q2[1]+1)}, 0, {sr(sHi,2)}
v_mov_b32 {vr(M[0])}, 0xff800000
v_mov_b32 {vr(M[1])}, 0xff800000
v_mov_b32 {vr(vT1)}, {OOB}
s_lshr_b32 {sr(sT)}, {sr(sW)}, 1
s_mul_i32 {sr(sT)}, {sr(sT)}, 10240
v_subrev_u32 {vr(vT0)}, {sr(sT)}, {vr(vbV)}
v_cmp_eq_u32 vcc, 1, {vr(vmV)}
s_mov_b32 {sr(sT)}, {sr(sKV)}
s_mov_b32 {sr(sG)}, 0
v_cndmask_b32 {vr(vVo)}, {vr(vT1)}, {vr(vT0)}, vcc
s_mov_b64 {sr(sM2,2)}, vcc
s_waitcnt vmcnt(0)''')
    a.label(f'{name}_fb1')
    a(f'''buffer_load_dwordx4 {vr(K1[0],4)}, {vr(vQo)}, {sr(SWS,4)}, {sr(sT)} offen{SC}
buffer_load_dwordx2 {vr(K2[0],2)}, {vr(vQo2)}, {sr(SWS,4)}, {sr(sT)} offen{SC}
s_waitcnt vmcnt(0)''')
    qk16(0, 0); qk16(1, 0); qk8(0, 0); qk8(1, 0)
    a('s_nop 15')
    for t in range(2):
        rowmax(t, vT0)
        a(f'v_max_f32 {vr(M[t])}, {vr(M[t])}, {vr(vT0)}')
    a(f'''s_add_u32 {sr(sT)}, {sr(sT)}, 2560
s_add_u32 {sr(sG)}, {sr(sG)}, 1
s_cmp_lt_u32 {sr(sG)}, 64
s_cbranch_scc1 {name}_fb1''')
    for t in range(2):
        crosshalf(M[t], vT1)
        a(f'v_max_f32 {vr(M[t])}, {vr(M[t])}, {vr(vT1)}')
        for i in range(16):
            a(f'v_mov_b32 {vr(O[t]+i)}, 0')
    a(f's_mov_b32 {sr(sT)}, {sr(sKV)}')
    a(f's_mov_b32 {sr(sG)}, 0')
    a(f'v_mov_b32 {vr(vT1)}, 0x3f803f80')
    a.label(f'{name}_fb2')
    a(f'''buffer_load_dwordx4 {vr(K1[0],4)}, {vr(vQo)}, {sr(SWS,4)}, {sr(sT)} offen{SC}
buffer_load_dwordx2 {vr(K2[0],2)}, {vr(vQo2)}, {sr(SWS,4)}, {sr(sT)} offen{SC}
buffer_load_dwordx4 {vr(V0[0],4)}, {vr(vVo)}, {sr(SWS,4)}, {sr(sT)} offen{SC}
buffer_load_dwordx4 {vr(V1[0],4)}, {vr(vVo)}, {sr(SWS,4)}, {sr(sT)} offen offset:640{SC}
s_waitcnt vmcnt(0)''')
    qk16(0, 0); qk16(1, 0); qk8(0, 0); qk8(1, 0)
    for i in range(4):
        a(f'v_cndmask_b32_e64 {vr(V0[0]+i)}, {vr(vT1)}, {vr(V0[0]+i)}, {sr(sM2,2)}')
        a(f'v_cndmask_b32_e64 {vr(V1[0]+i)}, {vr(vT1)}, {vr(V1[0]+i)}, {sr(sM2,2)}')
    a('s_nop 15')
    for t in range(2):
        for i in range(16):
            a(f'v_sub_f32 {vr(S[t]+i)}, {vr(S[t]+i)}, {vr(M[t])}')
        for i in range(16):
            ex(t, i)
    a('s_nop 1')
    for t in range(2):
        pv(t, 0, 0); pv(t, 0, 1)
    a(f'''s_add_u32 {sr(sT)}, {sr(sT)}, 2560
s_add_u32 {sr(sG)}, {sr(sG)}, 1
s_cmp_lt_u32 {sr(sG)}, 64
s_cbranch_scc1 {name}_fb2''')
    a('s_nop 15')
    a(f's_mov_b32 {sr(sI)}, 1')
    a(f's_branch {name}_store')

    a.label(f'{name}_helper')
    st.n = n_common
    V = VAlloc(VBASE)
    vEp = V(); vL16 = V(); vFl = V()
    VH = V.n
    a('s_setprio 3')
    if opts.get('cpf', 0):
        a(f'''s_getpc_b64 {sr(sM,2)}
{name}_pc:
s_sub_u32 {sr(sM)}, {sr(sM)}, {name}_pc - {name}
s_subb_u32 {sr(sM+1)}, {sr(sM+1)}, 0
s_lshr_b32 {sr(sT)}, s2, 3
v_lshlrev_b32 {vr(vT0)}, 5, {vr(vLane)}
v_add_u32 {vr(vT0)}, {sr(sT)}, {vr(vT0)}
v_lshlrev_b32 {vr(vT0)}, 7, {vr(vT0)}
v_min_u32 {vr(vT0)}, {name}_end - {name} - 4, {vr(vT0)}
s_mov_b64 exec, 0xfff
global_load_dword {vr(vFl)}, {vr(vT0)}, {sr(sM,2)}
s_mov_b64 exec, -1''')
    elate = opts.get('elate', 0)
    if not elate:
        a(f'v_mov_b32 {vr(vT0)}, {F_EPOCH}')
        a(f'buffer_load_dword {vr(vEp)}, {vr(vT0)}, {sr(SWS,4)}, 0 offen{SC}')
    tlb = opts.get('tlb', 0)
    if tlb & 1:
        a(f'''v_lshlrev_b32 {vr(vT1)}, 18, {vr(vLane)}
buffer_load_dword {vr(vFl)}, {vr(vT1)}, {sr(SWS,4)}, 0 offen''')
    if tlb & 2:
        a(f'''v_lshlrev_b32 {vr(vT1)}, 18, {vr(vLane)}
buffer_load_dword {vr(vT2)}, {vr(vT1)}, {sr(SOUT,4)}, 0 offen
buffer_load_dword {vr(vT3)}, {vr(vT1)}, {sr(SWO,4)}, 0 offen''')
    if tlb & 4:
        a(f'''v_lshlrev_b32 {vr(vT1)}, 21, {vr(vLane)}
buffer_load_dword {vr(vFl)}, {vr(vT1)}, {sr(SWS,4)}, 0 offen
buffer_load_dword {vr(vT4)}, {vr(vT1)}, {sr(SOUT,4)}, 0 offen
buffer_load_dword {vr(vT5)}, {vr(vT1)}, {sr(SWO,4)}, 0 offen''')
    a(f'v_lshlrev_b32 {vr(vL16)}, 4, {vr(vLane)}')
    vP = V(); vC8 = V(8); vPwa = V(); vFu = V(); vPo1 = V(); vPo2 = V(); vPo = V(); vLw = V()
    vW3 = [V() for _ in range(5)]
    vPf = [V() for _ in range(4)]
    vHX = [V() for _ in range(4)]
    vHW = [V() for _ in range(15)]
    vIx = V(); vIw = V(); vSx = V(); vSw = V(); vJ = [V() for _ in range(6)]
    done_alloc(V)
    if stag:
        a(f'''s_lshr_b32 {sr(sT)}, s2, 3
s_and_b32 {sr(sT2)}, s2, 1
s_lshl_b32 {sr(sT2)}, {sr(sT2)}, 5
s_add_u32 {sr(sT2)}, {sr(sT2)}, {sr(sT)}
s_lshl_b32 {sr(sT2)}, {sr(sT2)}, 5
v_and_b32 {vr(vT0)}, 31, {vr(vLane)}
v_add_u32 {vr(vT2)}, {sr(sT2)}, {vr(vT0)}
v_mul_u32_u24 {vr(vT2)}, 1280, {vr(vT2)}
v_lshrrev_b32 {vr(vT1)}, 5, {vr(vLane)}
v_lshl_add_u32 {vr(vIx)}, {vr(vT1)}, 7, {vr(vT2)}
buffer_load_dword {vr(vJ[0])}, {vr(vIx)}, {sr(SX,4)}, 0 offen
v_cmp_le_u32 vcc, 15, {vr(vT0)}
s_lshl_b32 {sr(sT)}, {sr(sT)}, 1
s_bfe_u32 {sr(sT2)}, s2, 0x10001
v_cndmask_b32_e64 {vr(vT2)}, 0, 1, vcc
v_mul_u32_u24 {vr(vT3)}, 15, {vr(vT2)}
v_sub_u32 {vr(vT3)}, {vr(vT0)}, {vr(vT3)}
v_lshl_add_u32 {vr(vT2)}, {vr(vT1)}, 6, {vr(vT2)}
v_add_u32 {vr(vT2)}, {sr(sT)}, {vr(vT2)}
v_mul_u32_u24 {vr(vT2)}, 3840, {vr(vT2)}
v_mul_u32_u24 {vr(vT4)}, 52, {vr(vT3)}
v_lshrrev_b32 {vr(vT4)}, 8, {vr(vT4)}
v_mul_u32_u24 {vr(vT4)}, {1280-640}, {vr(vT4)}
v_lshl_add_u32 {vr(vT4)}, {vr(vT3)}, 7, {vr(vT4)}
s_mul_i32 {sr(sT2)}, {sr(sT2)}, 640
v_add3_u32 {vr(vIw)}, {vr(vT2)}, {vr(vT4)}, {sr(sT2)}
v_cmp_le_u32 vcc, 30, {vr(vT0)}
v_mov_b32 {vr(vT2)}, {OOB}
s_mov_b32 {sr(sT)}, {128*3840}
v_cndmask_b32 {vr(vIw)}, {vr(vIw)}, {vr(vT2)}, vcc
buffer_load_dword {vr(vJ[1])}, {vr(vIw)}, {sr(SWQ,4)}, 0 offen''')
        if stag >= 2:
            a(f'buffer_load_dword {vr(vJ[2])}, {vr(vIx)}, {sr(SX,4)}, 0 offen offset:256')
            a(f'buffer_load_dword {vr(vJ[3])}, {vr(vIw)}, {sr(SWQ,4)}, {sr(sT)} offen')
        a(f'''s_bfe_u32 {sr(sT)}, s2, 0x30003
s_and_b32 {sr(sI)}, s2, 1
s_lshl_b32 {sr(sI)}, {sr(sI)}, 3
s_add_u32 {sr(sI)}, {sr(sI)}, {sr(sT)}
s_lshl_b32 {sr(sI)}, {sr(sI)}, 7
v_add_u32 {vr(vT0)}, {sr(sI)}, {vr(vLane)}
v_mul_u32_u24 {vr(vSx)}, 1280, {vr(vT0)}
v_mul_u32_u24 {vr(vT1)}, 4370, {vr(vLane)}
v_lshrrev_b32 {vr(vT1)}, 16, {vr(vT1)}
v_mul_u32_u24 {vr(vT2)}, 15, {vr(vT1)}
v_sub_u32 {vr(vT3)}, {vr(vLane)}, {vr(vT2)}
s_lshl_b32 {sr(sT)}, {sr(sT)}, 3
v_add_u32 {vr(vT1)}, {sr(sT)}, {vr(vT1)}
v_mul_u32_u24 {vr(vT1)}, 3840, {vr(vT1)}
v_mul_u32_u24 {vr(vT4)}, 52, {vr(vT3)}
v_lshrrev_b32 {vr(vT4)}, 8, {vr(vT4)}
v_mul_u32_u24 {vr(vT4)}, {1280-640}, {vr(vT4)}
v_lshl_add_u32 {vr(vT4)}, {vr(vT3)}, 7, {vr(vT4)}
v_add3_u32 {vr(vSw)}, {vr(vT1)}, {vr(vT4)}, {sr(sT2)}
v_cmp_le_u32 vcc, 60, {vr(vLane)}
v_mov_b32 {vr(vT2)}, {OOB}
s_lshr_b32 {sr(sM0a)}, s2, 6
v_cndmask_b32 {vr(vSw)}, {vr(vSw)}, {vr(vT2)}, vcc''')
    sgid = [0]
    def stag_pf():
        if not stag: return
        n = sgid[0]; sgid[0] += 1
        AH = opts.get('ahead', 2)
        a(f'''s_add_u32 {sr(sT)}, {sr(sKK)}, {1 + AH}
s_and_b32 {sr(sT2)}, {sr(sT)}, 3
s_cmp_eq_u32 {sr(sT2)}, {sr(sM0a)}
s_cselect_b32 {sr(sT2)}, {sr(sT)}, 99
s_cmp_lt_u32 {sr(sT2)}, {2*stag}
s_cselect_b32 {sr(sT2)}, 99, {sr(sT2)}
s_cmp_lt_u32 {sr(sT2)}, 10
s_cbranch_scc0 {name}_sp{n}
s_lshl_b32 {sr(sT2)}, {sr(sT)}, 7
buffer_load_dword {vr(vJ[0])}, {vr(vSx)}, {sr(SX,4)}, {sr(sT2)} offen
s_add_u32 {sr(sT2)}, {sr(sT2)}, {64*1280}
buffer_load_dword {vr(vJ[1])}, {vr(vSx)}, {sr(SX,4)}, {sr(sT2)} offen
s_mul_i32 {sr(sT2)}, {sr(sT)}, {64*3840}
buffer_load_dword {vr(vJ[2])}, {vr(vSw)}, {sr(SWQ,4)}, {sr(sT2)} offen
s_add_u32 {sr(sT2)}, {sr(sT2)}, {4*3840}
buffer_load_dword {vr(vJ[3])}, {vr(vSw)}, {sr(SWQ,4)}, {sr(sT2)} offen''')
        a.label(f'{name}_sp{n}')
    a(f'''s_lshl_b32 {sr(sT)}, {sr(sMt)}, 7
v_lshrrev_b32 {vr(vT0)}, 3, {vr(vLane)}
v_add_u32 {vr(vT0)}, {sr(sT)}, {vr(vT0)}
v_mul_u32_u24 {vr(vT0)}, 1280, {vr(vT0)}
v_lshrrev_b32 {vr(vT1)}, 4, {vr(vLane)}
v_and_b32 {vr(vT3)}, 7, {vr(vLane)}
v_xor_b32 {vr(vT2)}, {vr(vT1)}, {vr(vT3)}
v_lshl_add_u32 {vr(vHX[0])}, {vr(vT2)}, 4, {vr(vT0)}
v_xor_b32 {vr(vT2)}, 64, {vr(vHX[0])}
v_add_u32 {vr(vHX[1])}, {10240-1024}, {vr(vT2)}
v_add_u32 {vr(vHX[2])}, {2*(10240-1024)}, {vr(vHX[0])}
v_add_u32 {vr(vHX[3])}, {3*(10240-1024)}, {vr(vT2)}''')
    for pi in range(15):
        a(f's_sub_u32 {sr(sT)}, {sr(sT3)}, {(pi%4)*1024}')
        w_pattern(vHW[pi], f'v_add_u32 {vr(vT0)}, {64*pi}, {vr(vLane)}', sr(sT))
    def next_k():
        a(f'''s_add_u32 {sr(sKK)}, {sr(sKK)}, 1
s_cmp_eq_u32 {sr(sKK)}, 10
s_cselect_b32 {sr(sKK)}, 0, {sr(sKK)}
s_lshl_b32 {sr(sXo)}, {sr(sKK)}, 7
s_mul_i32 {sr(sWo)}, {sr(sKK)}, {64*3840}''')
    def issue_x():
        for jj in range(16):
            if jj % 4 == 0:
                a(f's_add_u32 m0, {sr(sSlot)}, {jj*1024}')
                a(f's_add_u32 {sr(sT)}, {sr(sXo)}, {jj*10240}')
            a(f'buffer_load_dwordx4 {vr(vHX[jj%4])}, {sr(SX,4)}, {sr(sT)} offen offset:{(jj%4)*1024} lds')
    def issue_w():
        for half in range(2):
            for pi in range(15):
                if pi % 4 == 0:
                    a(f's_add_u32 m0, {sr(sSlot)}, {XSZ + half*15360 + pi*1024}')
                    a(f's_add_u32 {sr(sT)}, {sr(sWo)}, {half*32*3840}')
                a(f'buffer_load_dwordx4 {vr(vHW[pi])}, {sr(SWQ,4)}, {sr(sT)} offen offset:{(pi%4)*1024} lds')
    def issue_stage():
        stag_pf(); next_k(); issue_x(); issue_w()
        a(f'''s_add_u32 {sr(sSlot)}, {sr(sSlot)}, {STG}
s_cmp_ge_u32 {sr(sSlot)}, {3*STG}
s_cselect_b32 {sr(sSlot)}, 0, {sr(sSlot)}''')
    pfw = opts.get('pfw', 1) and not stag and not opts.get('rot0')
    if pfw:
        a(f'''s_lshr_b32 {sr(sT)}, s2, 6
s_mul_i32 {sr(sT)}, {sr(sT)}, 3
s_add_u32 {sr(sT)}, {sr(sT)}, 8
s_bfe_u32 {sr(sT2)}, s2, 0x30003
s_lshr_b32 {sr(sI)}, {sr(sT2)}, 2
s_add_u32 {sr(sT)}, {sr(sT)}, {sr(sI)}
s_cmp_ge_u32 {sr(sT)}, 10
s_cselect_b32 {sr(sI)}, 10, 0
s_sub_u32 {sr(sT)}, {sr(sT)}, {sr(sI)}
s_lshl_b32 {sr(sT)}, {sr(sT)}, 6
s_and_b32 {sr(sT2)}, {sr(sT2)}, 3
s_lshl_b32 {sr(sT2)}, {sr(sT2)}, 4
s_add_u32 {sr(sT)}, {sr(sT)}, {sr(sT2)}
s_mul_i32 {sr(sT)}, {sr(sT)}, 3840
s_add_u32 {sr(sRdy)}, {sr(sT)}, {sr(sT3)}
v_lshrrev_b32 {vr(vT0)}, 3, {vr(vLane)}
v_mul_u32_u24 {vr(vT0)}, 3840, {vr(vT0)}
v_bfe_u32 {vr(vT1)}, {vr(vLane)}, 1, 2
v_mul_u32_u24 {vr(vT2)}, 1280, {vr(vT1)}
v_and_b32 {vr(vT3)}, 1, {vr(vLane)}
v_mul_u32_u24 {vr(vT3)}, 156, {vr(vT3)}
v_add3_u32 {vr(vT0)}, {vr(vT0)}, {vr(vT2)}, {vr(vT3)}
v_cmp_eq_u32 vcc, 3, {vr(vT1)}
v_mov_b32 {vr(vT2)}, {OOB}
s_nop 0
v_cndmask_b32 {vr(vPo)}, {vr(vT0)}, {vr(vT2)}, vcc''')
    a(f's_mov_b32 {sr(sSlot)}, {STG}')
    st1()
    a('s_barrier')
    st1()
    if elate:
        a(f'v_mov_b32 {vr(vT0)}, {F_EPOCH}')
        a(f'buffer_load_dword {vr(vEp)}, {vr(vT0)}, {sr(SWS,4)}, 0 offen{SC}')
    if pfw:
        a(f'buffer_load_dword {vr(vPf[0])}, {vr(vPo)}, {sr(SWQ,4)}, {sr(sRdy)} offen')
        a(f's_add_u32 {sr(sRdy)}, {sr(sRdy)}, {8*3840}')
        a(f'buffer_load_dword {vr(vPf[1])}, {vr(vPo)}, {sr(SWQ,4)}, {sr(sRdy)} offen')
    if opts.get('xfirst', 0):
        next_k(); issue_x()
        a(f's_mov_b32 {sr(sSrc)}, {sr(sWo)}')
        a(f's_mov_b32 {sr(sSlot)}, {2*STG}')
        next_k(); issue_x()
        st1()
        if opts.get('xfirst') == 1: a('s_barrier')
        a(f's_mov_b32 {sr(sSlot)}, {STG}')
        a(f's_mov_b32 {sr(sI)}, {sr(sWo)}')
        a(f's_mov_b32 {sr(sWo)}, {sr(sSrc)}')
        issue_w()
        if opts.get('xfirst') == 2: a('s_barrier')
        a(f's_mov_b32 {sr(sSlot)}, {2*STG}')
        a(f's_mov_b32 {sr(sWo)}, {sr(sI)}')
        issue_w()
        a(f's_mov_b32 {sr(sSlot)}, 0')
        a('s_waitcnt vmcnt(30)')
        a('s_barrier')
        st1()
        a(f's_mov_b32 {sr(sI)}, 1')
    else:
        issue_stage()
        st1()
        a('s_barrier')
        st1()
        a(f's_mov_b32 {sr(sI)}, 0')
    a.label(f'{name}_hg')
    issue_stage()
    a('s_waitcnt vmcnt(46)')
    a('s_barrier')
    a(f's_add_u32 {sr(sI)}, {sr(sI)}, 1')
    a(f's_cmp_lt_u32 {sr(sI)}, 8')
    a(f's_cbranch_scc1 {name}_hg')
    st1()
    a(f'''s_lshl_b32 {sr(sT)}, {sr(sB)}, 3
s_add_u32 {sr(sT)}, {sr(sT)}, {sr(sHg)}
s_lshl_b32 {sr(sT)}, {sr(sT)}, 8
s_add_u32 {sr(sT)}, {sr(sT)}, {F_FLAG1}
v_lshl_add_u32 {vr(vT0)}, {vr(vLane)}, 2, {sr(sT)}
v_cmp_gt_u32 vcc, 16, {vr(vLane)}
v_mov_b32 {vr(vT1)}, {OOB}
s_lshl_b32 {sr(sT)}, {sr(sB)}, 4
v_cndmask_b32 {vr(vPo1)}, {vr(vT1)}, {vr(vT0)}, vcc
s_add_u32 {sr(sT)}, {sr(sT)}, {sr(sMt3)}
s_lshl_b32 {sr(sT)}, {sr(sT)}, 8
s_add_u32 {sr(sT)}, {sr(sT)}, {F_FLAG2}
v_lshl_add_u32 {vr(vT0)}, {vr(vLane)}, 2, {sr(sT)}
v_cmp_gt_u32 vcc, 8, {vr(vLane)}
v_mov_b32 {vr(vLw)}, {LW_RDY}
s_mul_i32 {sr(sT3)}, {sr(sCg)}, 160
v_cndmask_b32 {vr(vPo2)}, {vr(vT1)}, {vr(vT0)}, vcc''')
    for r in range(5):
        a(f'''v_add_u32 {vr(vT0)}, {64*r}, {vr(vLane)}
v_mul_u32_u24 {vr(vT1)}, 6554, {vr(vT0)}
v_lshrrev_b32 {vr(vT1)}, 16, {vr(vT1)}
v_mul_u32_u24 {vr(vT1)}, {1280-160}, {vr(vT1)}
v_lshl_add_u32 {vr(vT0)}, {vr(vT0)}, 4, {vr(vT1)}
v_add_u32 {vr(vT0)}, {sr(sT3)}, {vr(vT0)}
v_subrev_u32 {vr(vW3[r])}, {(r%4)*1024}, {vr(vT0)}''')
    a(f'''s_lshr_b32 {sr(sT)}, s2, 3
s_mul_i32 {sr(sT)}, {sr(sT)}, {20*1280}
v_lshl_add_u32 {vr(vT0)}, {vr(vLane)}, 7, {sr(sT)}
v_cmp_gt_u32 vcc, 50, {vr(vLane)}
v_mov_b32 {vr(vT1)}, {OOB}
s_mov_b32 {sr(sRdy)}, 0
v_cndmask_b32 {vr(vPo)}, {vr(vT1)}, {vr(vT0)}, vcc
v_readfirstlane_b32 {sr(sTag)}, {vr(vEp)}
s_lshl_b32 {sr(sDone)}, 1, {sr(sMt)}
s_waitcnt vmcnt({15 if hsplit else 0})
s_add_u32 {sr(sTag)}, {sr(sTag)}, {TAGK}
s_barrier
s_waitcnt vmcnt(0)
{'s_barrier' if hsplit else 's_nop 0'}
v_bfe_u32 {vr(vT2)}, {vr(vLane)}, 1, 2
v_mul_u32_u24 {vr(vT2)}, 2560, {vr(vT2)}
v_and_b32 {vr(vT3)}, 1, {vr(vLane)}
v_mul_u32_u24 {vr(vT3)}, 640, {vr(vT3)}
v_add_u32 {vr(vT2)}, {vr(vT2)}, {vr(vT3)}
v_add_u32 {vr(vT2)}, {ONES}, {vr(vT2)}
v_mov_b32 {vr(vC8)}, 0x3f803f80
v_mov_b32 {vr(vC8+1)}, 0x3f803f80
v_mov_b32 {vr(vC8+2)}, 0x3f803f80
v_mov_b32 {vr(vC8+3)}, 0x3f803f80
v_mov_b32 {vr(vC8+4)}, 0
v_mov_b32 {vr(vC8+5)}, 0
v_mov_b32 {vr(vC8+6)}, 0
v_mov_b32 {vr(vC8+7)}, 0
s_barrier
ds_write_b128 {vr(vT2)}, {vr(vC8,4)}
ds_write_b128 {vr(vT2)}, {vr(vC8+4,4)} offset:16
ds_write_b128 {vr(vLw)}, {vr(vC8+4,4)}
s_waitcnt lgkmcnt(0)''')
    st0()
    a('s_barrier')
    a('s_barrier')
    gid = [0]
    def issue_group():
        n = gid[0]; gid[0] += 1
        a(f'''s_andn2_b32 {sr(sT)}, {sr(sRdy)}, {sr(sDone)}
s_cbranch_scc1 {name}_pd{n}
s_mov_b32 {sr(sCnt)}, {POLL_LIMIT}''')
        a.label(f'{name}_pl{n}')
        a(f'''buffer_load_dword {vr(vP)}, {vr(vPo1)}, {sr(SWS,4)}, 0 offen{SC}
s_waitcnt vmcnt(0)
v_cmp_eq_u32 vcc, {sr(sTag)}, {vr(vP)}
s_and_b32 {sr(sRdy)}, vcc_lo, 0xffff
s_andn2_b32 {sr(sT)}, {sr(sRdy)}, {sr(sDone)}
s_cbranch_scc1 {name}_pd{n}
s_sleep 1
s_sub_u32 {sr(sCnt)}, {sr(sCnt)}, 1
s_cmp_lg_u32 {sr(sCnt)}, 0
s_cbranch_scc1 {name}_pl{n}
s_mov_b32 {sr(sRdy)}, 0xffff
s_andn2_b32 {sr(sT)}, {sr(sRdy)}, {sr(sDone)}''')
        a.label(f'{name}_pd{n}')
        a(f'''s_lshl_b32 {sr(sT2)}, {sr(sT)}, 16
s_or_b32 {sr(sT)}, {sr(sT)}, {sr(sT2)}
s_lshr_b32 {sr(sT)}, {sr(sT)}, {sr(sMt)}
s_ff1_i32_b32 {sr(sT)}, {sr(sT)}
s_add_u32 {sr(sNeed)}, {sr(sT)}, {sr(sMt)}
s_and_b32 {sr(sNeed)}, {sr(sNeed)}, 15
s_bitset1_b32 {sr(sDone)}, {sr(sNeed)}
s_mul_i32 {sr(sT)}, {sr(sNeed)}, 10240
s_add_u32 {sr(sSrc)}, {sr(sKV)}, {sr(sT)}''')
        for hs in range(4):
            for q in range(10):
                if q % 4 == 0:
                    a(f's_add_u32 m0, {sr(sSlot)}, {hs*10240 + q*1024}')
                    a(f's_add_u32 {sr(sT)}, {sr(sSrc)}, {hs*KV_HEAD + q*1024}')
                a(f'buffer_load_dwordx4 {vr(vL16)}, {sr(SWS,4)}, {sr(sT)} offen offset:{(q%4)*1024}{SLD} lds')
        a(f'''s_add_u32 {sr(sSlot)}, {sr(sSlot)}, {SLOT}
s_cmp_ge_u32 {sr(sSlot)}, {3*SLOT}
s_cselect_b32 {sr(sSlot)}, 0, {sr(sSlot)}
s_add_u32 {sr(sI)}, {sr(sI)}, 1''')
    a(f's_mov_b32 {sr(sI)}, 1')
    a(f's_mov_b32 {sr(sSlot)}, {SLOT}')
    wq = [0]
    def wait_prog(val):
        n = wq[0]; wq[0] += 1
        a.label(f'{name}_wp{n}')
        a(f'''ds_read_b32 {vr(vP)}, {vr(vPwa)} offset:4
s_waitcnt lgkmcnt(0)
v_cmp_le_u32 vcc, {val}, {vr(vP)}
s_and_b32 {sr(sT)}, vcc_lo, 0x1ff
s_cmp_eq_u32 {sr(sT)}, 0x1ff
s_cbranch_scc1 {name}_wpd{n}
s_sleep 2
s_branch {name}_wp{n}''')
        a.label(f'{name}_wpd{n}')
    def set_full(val):
        a(f'v_mov_b32 {vr(vFu)}, {val}')
        a(f'ds_write_b32 {vr(vPwa)}, {vr(vFu)}')
    if nobar:
        a(f'v_min_u32 {vr(vPwa)}, 8, {vr(vLane)}')
        a(f'v_lshlrev_b32 {vr(vPwa)}, 3, {vr(vPwa)}')
        a(f'v_add_u32 {vr(vPwa)}, {LW_PW}, {vr(vPwa)}')
    issue_group()
    st0()
    a.label(f'{name}_hl')
    if nobar:
        a('s_waitcnt vmcnt(0)')
        set_full(sr(sI))
        a(f's_max_u32 {sr(sSrc)}, {sr(sI)}, 2')
        a(f's_sub_u32 {sr(sSrc)}, {sr(sSrc)}, 2')
        wait_prog(sr(sSrc))
        issue_group()
    else:
        issue_group()
        a('s_waitcnt vmcnt(40)')
        a('s_barrier')
    wid = [0]
    def wo_rows(r0, r1, lds):
        n = wid[0]; wid[0] += 1
        a(f's_mov_b32 {sr(sSrc)}, {r0*1280}')
        a(f's_mov_b32 {sr(sT2)}, {lds}')
        a.label(f'{name}_hw{n}x')
        a(f's_mov_b32 m0, {sr(sT2)}')
        a(f's_add_u32 {sr(sT)}, {sr(sT2)}, 4096')
        for r in range(4):
            a(f'buffer_load_dwordx4 {vr(vW3[r])}, {sr(SWO,4)}, {sr(sSrc)} offen offset:{r*1024} lds')
        a(f's_mov_b32 m0, {sr(sT)}')
        a(f's_add_u32 {sr(sT2)}, {sr(sT2)}, 5120')
        a(f'buffer_load_dwordx4 {vr(vW3[4])}, {sr(SWO,4)}, {sr(sSrc)} offen lds')
        a(f's_add_u32 {sr(sSrc)}, {sr(sSrc)}, {32*1280}')
        a(f's_cmp_lt_u32 {sr(sSrc)}, {r1*1280}')
        a(f's_cbranch_scc1 {name}_hw{n}x')
    a(f's_cmp_eq_u32 {sr(sI)}, 6')
    a(f's_cbranch_scc0 {name}_hnp')
    for q in range(4):
        a(f's_mov_b32 {sr(sT)}, {q*6400}')
        a(f'buffer_load_dword {vr(vPf[q])}, {vr(vPo)}, {sr(SWO,4)}, {sr(sT)} offen')
    a.label(f'{name}_hnp')
    a(f's_cmp_eq_u32 {sr(sI)}, 10')
    a(f's_cbranch_scc0 {name}_hnq')
    wo_rows(480, 640, QST)
    a.label(f'{name}_hnq')
    a(f's_cmp_lt_u32 {sr(sI)}, 16')
    a(f's_cbranch_scc1 {name}_hl')
    if nobar:
        a('s_waitcnt vmcnt(0)')
        set_full(64)
        wait_prog(14)
        wo_rows(0, 256, WO_LO)
        wait_prog(15)
    else:
        wo_rows(0, 256, WO_LO)
        a('s_waitcnt vmcnt(40)')
        a('s_barrier')
    wo_rows(256, 480, WO_LO + 40960)
    a(f'''s_lshl_b32 {sr(sT)}, {sr(sB)}, 4
s_add_u32 {sr(sT)}, {sr(sT)}, {sr(sMt3)}
s_lshl_b32 {sr(sT)}, {sr(sT)}, 1
s_lshr_b32 {sr(sT2)}, {sr(sCg)}, 2
s_add_u32 {sr(sT)}, {sr(sT)}, {sr(sT2)}
s_mul_i32 {sr(sT)}, {sr(sT)}, {32*2560}
s_and_b32 {sr(sT2)}, {sr(sCg)}, 3
s_mul_i32 {sr(sT2)}, {sr(sT2)}, 5120
s_add_u32 {sr(sT)}, {sr(sT)}, {sr(sT2)}
s_add_u32 {sr(sT)}, {sr(sT)}, {F_WS_O}
v_lshl_add_u32 {vr(vT0)}, {vr(vLane)}, 7, {sr(sT)}
v_cmp_gt_u32 vcc, 40, {vr(vLane)}
v_mov_b32 {vr(vT1)}, {OOB}
s_mov_b32 {sr(sDone)}, 0
s_mov_b32 {sr(sCnt)}, {POLL_LIMIT}
v_cndmask_b32 {vr(vPo)}, {vr(vT1)}, {vr(vT0)}, vcc''')
    pid = [0]
    pfo = opts.get('pfo', 2)
    def poll2():
        a(f'''buffer_load_dword {vr(vP)}, {vr(vPo2)}, {sr(SWS,4)}, 0 offen{SC}
s_sub_u32 {sr(sCnt)}, {sr(sCnt)}, 1
s_waitcnt vmcnt(0)
v_cmp_eq_u32 vcc, {sr(sTag)}, {vr(vP)}
s_cmp_eq_u32 {sr(sCnt)}, 0
s_cselect_b32 {sr(sT)}, 0xff, vcc_lo
s_lshr_b32 {sr(sT2)}, {sr(sT)}, 1
s_and_b32 {sr(sT)}, {sr(sT)}, {sr(sT2)}
s_and_b32 {sr(sRdy)}, {sr(sT)}, 0x55''')
        if pfo:
            a(f's_andn2_b32 {sr(sSrc)}, {sr(sRdy)}, {sr(sDone)}')
            a(f's_or_b32 {sr(sDone)}, {sr(sDone)}, {sr(sRdy)}')
            for j in range(4):
                n = pid[0]; pid[0] += 1
                a(f's_bitcmp1_b32 {sr(sSrc)}, {2*j}')
                a(f's_cbranch_scc0 {name}_po{n}')
                a(f's_mov_b32 {sr(sT)}, {j*20480}')
                a(f'buffer_load_dword {vr(vPf[j])}, {vr(vPo)}, {sr(SWS,4)}, {sr(sT)} offen{SC}')
                a.label(f'{name}_po{n}')
            if pfo == 2:
                a('s_waitcnt vmcnt(0)')
        a(f'v_mov_b32 {vr(vP)}, {sr(sRdy)}')
        a(f'ds_write_b32 {vr(vLw)}, {vr(vP)}')
    poll2()
    if nobar:
        wait_prog(16)
    else:
        a('s_barrier')
    st0()
    st0()
    a.label(f'{name}_p3l')
    poll2()
    a(f's_cmp_eq_u32 {sr(sRdy)}, 0x55')
    a(f's_cbranch_scc0 {name}_p3l')
    a.label(f'{name}_p3e')
    if st.on:
        while st.n < n_total - 1: st()
        st.rt(); st.flush(sW)
    a('s_endpgm')
    a.label(f'{name}_end')
    nv = maxv[0]
    assert nv <= 168, nv
    return a.text(), descriptor(name, nv, ns), f'; @launch kernel={name} grid=(256,1,1) block=(576,1,1) lds={LDS_TOTAL}', n_total
```

```python
from common import *
import math, struct

def f32bits(x):
    return struct.unpack('<I', struct.pack('<f', x))[0]
QSCALE = f32bits(math.log2(math.e) / math.sqrt(20.0))

XSZ = 16384
STG = XSZ + 30720
SLOT = 40960
LW_RDY = 3 * SLOT
LW_CNT = 3 * SLOT + 8
LW_CNT1 = 3 * SLOT + 12
LW_PW = 131392
ONES = 3 * SLOT + 128
QST = 131584
LDS_TOTAL = QST + 25600
WO_LO = SLOT
F_WS_KV = 0
F_WS_O = 64 * KV_HEAD
F_FLAG1 = F_WS_O + 2 * 32 * 32 * 2560
F_FLAG2 = F_FLAG1 + 16 * 256
F_EPOCH = F_FLAG2 + 32 * 256
F_WS_END = F_EPOCH + 256
TAGK = 0x9E3779B9
POLL_LIMIT = 1 << 16
OOB = 0x40000000

def gen_fused(name='fused_kernel', opts=None):
    opts = opts or {}
    a = Asm()
    SC = ' sc1'
    FL = {0: ' sc1', 1: ' sc0 sc1', 2: '', 3: ' sc1 nt', 4: ' nt'}
    SST = FL[opts.get('sst', 0)]
    SLD = FL[opts.get('sld', 0)]
    stag = opts.get('stag', 0)
    hsplit = opts.get('hsplit', 1)
    nobar = opts.get('nobar', 0)
    loc = opts.get('loc', 1)
    sKK, sMt3, sCg = 3, 4, 5
    SX, SWQ, SWS, SDBG, SWO, SOUT = 8, 12, 16, 20, 24, 28
    sW, sB, sMt, sHg, sT, sT2, sT3 = 32, 33, 34, 35, 36, 37, 38
    sM0a, sM0b = 39, 40
    sDone = 41
    sHi = 42
    sG, sOff, sOo, sKV = 44, 45, 46, 47
    sM, sM2 = 48, 50
    sRdy, sCnt, sNeed, sI, sSlot, sSrc = 52, 53, 54, 55, 56, 57
    sXo, sWo = 53, 54
    sScale = 58
    sA, sTag = 60, 61
    sPub, sPub2 = 56, 57
    ns = 64
    vLane, vT0, vT1, vT2, vT3, vT4, vT5 = 1, 2, 3, 4, 5, 6, 7
    VBASE = 8
    st = Stamper(a, opts.get('stamp'), 0, 62, 6, vT0)
    if st.on: ns = st.nsgpr()
    sset = opts.get('sset', 0)
    def st0():
        if sset == 0: st()
    def st1():
        if sset == 1: st()
    def st4():
        if sset == 4: st()
    maxv = [0]
    def done_alloc(V):
        maxv[0] = max(maxv[0], V.n)

    a(f'.globl {name}\n.p2align 8\n.type {name},@function')
    a.label(name)
    if st.on:
        a('s_memrealtime s[62:63]\ns_memtime s[64:65]')
        st.n = 2
    dbgt = opts.get('dbgt')
    SWAP = 's_nop 0'
    if opts.get('swap', 0):
        SWAP = f's_lshr_b32 {sr(sT)}, s2, 1\ns_xor_b32 {sr(sT)}, {sr(sT)}, s2\ns_and_b32 {sr(sT)}, {sr(sT)}, 1\ns_mul_i32 {sr(sT)}, {sr(sT)}, 3\ns_xor_b32 s2, s2, {sr(sT)}'
    if dbgt:
        ns = 80
        a('s_memrealtime s[62:63]')
    def rts(k):
        if dbgt: a(f's_memrealtime s[{62+2*k}:{63+2*k}]\ns_waitcnt lgkmcnt(0)')
    a(f'''s_cmp_ge_u32 s2, 256
s_cbranch_scc1 {name}_done
{SWAP}
s_bfe_u32 {sr(sB)}, s2, 0x10002
s_load_dwordx4 {sr(SOUT,4)}, s[0:1], 48
s_load_dwordx2 s[6:7], s[0:1], 64
s_mul_i32 {sr(sT2)}, {sr(sB)}, 24
s_add_u32 s0, s0, {sr(sT2)}
s_addc_u32 s1, s1, 0
s_load_dwordx4 {sr(SX,4)}, s[0:1], 0
s_load_dwordx2 {sr(SWO,2)}, s[0:1], 16
v_lshrrev_b32 {vr(vT0)}, 6, v0
v_and_b32 {vr(vLane)}, 63, v0
s_lshr_b32 {sr(sT)}, s2, 3
v_readfirstlane_b32 {sr(sW)}, {vr(vT0)}
s_and_b32 {sr(sMt)}, {sr(sT)}, 7
s_lshr_b32 {sr(sHg)}, {sr(sT)}, 3
s_mul_i32 {sr(sKK)}, {sr(sHg)}, 3
s_add_u32 {sr(sKK)}, {sr(sKK)}, {sr(sMt)}
s_cmp_ge_u32 {sr(sKK)}, 10
s_cselect_b32 {sr(sT)}, 10, 0
s_sub_u32 {sr(sKK)}, {sr(sKK)}, {sr(sT)}
{f's_mov_b32 {sr(sKK)}, 0' if (stag or opts.get('rot0')) else 's_nop 0'}
s_and_b32 {sr(sT)}, s2, 1
s_lshl_b32 {sr(sT)}, {sr(sT)}, 3
s_add_u32 {sr(sMt)}, {sr(sMt)}, {sr(sT)}
s_and_b32 {sr(sT)}, s2, 2
s_lshl_b32 {sr(sT)}, {sr(sT)}, 1
s_add_u32 {sr(sHg)}, {sr(sHg)}, {sr(sT)}
s_mov_b32 {sr(sHi)}, 0
s_mov_b32 {sr(sHi+1)}, -1
s_bfe_u32 {sr(sCg)}, s2, 0x30003
s_and_b32 {sr(sMt3)}, s2, 1
s_lshl_b32 {sr(sMt3)}, {sr(sMt3)}, 2
s_and_b32 {sr(sT)}, s2, 2
s_add_u32 {sr(sMt3)}, {sr(sMt3)}, {sr(sT)}
s_lshl_b32 {sr(sMt3)}, {sr(sMt3)}, 1
s_lshr_b32 {sr(sT)}, s2, 6
s_add_u32 {sr(sMt3)}, {sr(sMt3)}, {sr(sT)}
s_lshl_b32 {sr(sT)}, {sr(sB)}, 3
s_add_u32 {sr(sT)}, {sr(sT)}, {sr(sHg)}
s_mul_i32 {sr(sKV)}, {sr(sT)}, {4*KV_HEAD}
s_mul_i32 {sr(sT3)}, {sr(sHg)}, 160
s_waitcnt lgkmcnt(0)
s_mov_b32 {sr(SWQ)}, {sr(SX+2)}
s_mov_b32 {sr(SWQ+1)}, {sr(SX+3)}
s_mov_b32 {sr(SDBG)}, {sr(SOUT+2)}
s_mov_b32 {sr(SDBG+1)}, {sr(SOUT+3)}
s_mov_b32 {sr(SWS)}, s6
s_mov_b32 {sr(SWS+1)}, s7
s_mov_b32 {sr(SX+2)}, {2048*1280}
s_mov_b32 {sr(SX+3)}, 0x20000
s_mov_b32 {sr(SWQ+2)}, {640*3840}
s_mov_b32 {sr(SWQ+3)}, 0x20000
s_mov_b32 {sr(SWS+2)}, {F_WS_END}
s_mov_b32 {sr(SWS+3)}, 0x20000
s_mov_b32 {sr(SDBG+2)}, 256
s_mov_b32 {sr(SDBG+3)}, 0x20000
s_mov_b32 {sr(SWO+2)}, {640*1280}
s_mov_b32 {sr(SWO+3)}, 0x20000
s_mov_b32 {sr(SOUT+2)}, {2048*2560}
s_mov_b32 {sr(SOUT+3)}, 0x20000''')
    st1()
    n_common = st.n
    a(f'''s_cmp_ge_u32 {sr(sW)}, 8
s_cbranch_scc1 {name}_helper''')

    def w_pattern(dst, first, last):
        a(f'''{first}
v_mul_u32_u24 {vr(vT1)}, 2185, {vr(vT0)}
v_lshrrev_b32 {vr(vT1)}, 16, {vr(vT1)}
v_mul_u32_u24 {vr(vT2)}, 30, {vr(vT1)}
v_sub_u32 {vr(vT0)}, {vr(vT0)}, {vr(vT2)}
v_and_b32 {vr(vT2)}, 0x13, {vr(vT1)}
v_bfe_u32 {vr(vT3)}, {vr(vT1)}, 2, 1
v_lshl_or_b32 {vr(vT2)}, {vr(vT3)}, 3, {vr(vT2)}
v_bfe_u32 {vr(vT3)}, {vr(vT1)}, 3, 1
v_lshl_or_b32 {vr(vT2)}, {vr(vT3)}, 2, {vr(vT2)}
v_mul_u32_u24 {vr(vT2)}, 3840, {vr(vT2)}
v_mul_u32_u24 {vr(vT1)}, 26, {vr(vT0)}
v_lshrrev_b32 {vr(vT1)}, 8, {vr(vT1)}
v_mul_u32_u24 {vr(vT1)}, {1280-160}, {vr(vT1)}
v_lshl_add_u32 {vr(vT0)}, {vr(vT0)}, 4, {vr(vT1)}
v_add3_u32 {vr(dst)}, {vr(vT0)}, {vr(vT2)}, {last}''')

    VP = VAlloc(VBASE)
    vIdx = VP()
    vaK1 = VP(); vaK2 = VP(); vaV = VP()
    vbK1 = VP(); vbK2 = VP(); vbV = VP(); vmK2 = VP(); vmV = VP()
    vQo = VP(); vQo2 = VP(); vQs1 = VP(); vQs2 = VP(); vPub = VP()
    VB2 = VP.n
    V = VAlloc(VB2)
    vEp7 = V(); vCi7 = V(); vZ7 = V()
    vXr = [[V(), V()] for _ in range(3)]
    vWa = [V() for _ in range(3)]
    vWb = [V() for _ in range(3)]
    vE = [V() for _ in range(6)]
    Xf = [[V(4), V(4)], [V(4), V(4)]]
    Wf = [[V(4) for _ in range(4)] for _ in range(2)]
    acc = [[V(4), V(4)] for _ in range(8)]
    done_alloc(V)
    vDX = Wf[0][0]; vDW = [Wf[0][0] + 1, Wf[0][0] + 2]
    a(f'''s_lshl_b32 {sr(sT)}, {sr(sMt)}, 7
s_lshl_b32 {sr(sT2)}, {sr(sW)}, 3
s_add_u32 {sr(sT)}, {sr(sT)}, {sr(sT2)}
v_lshrrev_b32 {vr(vT0)}, 3, {vr(vLane)}
v_add_u32 {vr(vT0)}, {sr(sT)}, {vr(vT0)}
v_mul_u32_u24 {vr(vT0)}, 1280, {vr(vT0)}
s_and_b32 {sr(sT)}, {sr(sW)}, 1
s_lshl_b32 {sr(sT)}, {sr(sT)}, 2
v_lshrrev_b32 {vr(vT1)}, 4, {vr(vLane)}
v_add_u32 {vr(vT2)}, {sr(sT)}, {vr(vT1)}
v_and_b32 {vr(vT3)}, 7, {vr(vLane)}
v_xor_b32 {vr(vT2)}, {vr(vT2)}, {vr(vT3)}
v_lshl_add_u32 {vr(vDX)}, {vr(vT2)}, 4, {vr(vT0)}
s_lshl_b32 {sr(sM0a)}, {sr(sW)}, 10
s_lshl_b32 {sr(sXo)}, {sr(sKK)}, 7
s_mul_i32 {sr(sWo)}, {sr(sKK)}, {64*3840}
s_mov_b32 m0, {sr(sM0a)}
s_add_u32 {sr(sT)}, {sr(sXo)}, 81920
buffer_load_dwordx4 {vr(vDX)}, {sr(SX,4)}, {sr(sXo)} offen lds
s_add_u32 m0, {sr(sM0a)}, 8192
s_add_u32 {sr(sT2)}, {sr(sW)}, 8
buffer_load_dwordx4 {vr(vDX)}, {sr(SX,4)}, {sr(sT)} offen lds
s_cmp_eq_u32 {sr(sW)}, 7
s_cselect_b32 {sr(sT2)}, 7, {sr(sT2)}
s_lshl_b32 {sr(sM0b)}, {sr(sT2)}, 10''')
    for pi, sm in ((0, sM0a), (1, sM0b)):
        a(f's_lshr_b32 {sr(sT)}, {sr(sm)}, 4')
        w_pattern(vDW[pi], f'v_add_u32 {vr(vT0)}, {sr(sT)}, {vr(vLane)}', sr(sT3))
        for half in range(2):
            a(f's_add_u32 m0, {sr(sm)}, {XSZ + half*15360}')
            a(f's_add_u32 {sr(sT)}, {sr(sWo)}, {half*32*3840}')
            a(f'buffer_load_dwordx4 {vr(vDW[pi])}, {sr(SWQ,4)}, {sr(sT)} offen lds')
    st1()
    a('s_barrier')
    st1()
    a(f'''s_cmp_eq_u32 {sr(sW)}, 7
s_cselect_b32 {sr(sM)}, 1, 0
s_mov_b32 {sr(sM+1)}, 0
v_mov_b32 {vr(vT1)}, {OOB}
v_cndmask_b32_e64 {vr(vZ7)}, {vr(vT1)}, 0, {sr(sM,2)}
v_mov_b32 {vr(vT0)}, {F_EPOCH}
buffer_load_dword {vr(vEp7)}, {vr(vT0)}, {sr(SWS,4)}, 0 offen{SC}''')
    a(f'''s_and_b32 {sr(sT)}, {sr(sW)}, 3
s_lshl_b32 {sr(sT)}, {sr(sT)}, 5
v_and_b32 {vr(vT0)}, 15, {vr(vLane)}
v_lshrrev_b32 {vr(vT1)}, 4, {vr(vLane)}
v_lshrrev_b32 {vr(vT2)}, 1, {vr(vT0)}
v_xor_b32 {vr(vT2)}, {vr(vT2)}, {vr(vT1)}
v_add_u32 {vr(vT0)}, {sr(sT)}, {vr(vT0)}
v_lshlrev_b32 {vr(vT0)}, 7, {vr(vT0)}
v_lshl_add_u32 {vr(vXr[0][0])}, {vr(vT2)}, 4, {vr(vT0)}
v_xor_b32 {vr(vXr[0][1])}, 64, {vr(vXr[0][0])}
v_lshrrev_b32 {vr(vT0)}, 5, {vr(vLane)}
v_lshlrev_b32 {vr(vT0)}, 4, {vr(vT0)}
v_bfe_u32 {vr(vT2)}, {vr(vLane)}, 4, 1
v_lshl_add_u32 {vr(vT0)}, {vr(vT2)}, 2, {vr(vT0)}
v_bfe_u32 {vr(vT2)}, {vr(vLane)}, 2, 2
v_add_u32 {vr(vT0)}, {vr(vT0)}, {vr(vT2)}
v_mul_u32_u24 {vr(vT0)}, 480, {vr(vT0)}
v_add_u32 {vr(vT5)}, {XSZ}, {vr(vT0)}
v_bfe_u32 {vr(vT2)}, {vr(vLane)}, 1, 1
v_mul_u32_u24 {vr(vT2)}, 40, {vr(vT2)}
v_and_b32 {vr(vT3)}, 1, {vr(vLane)}
v_lshl_add_u32 {vr(vT2)}, {vr(vT3)}, 4, {vr(vT2)}
v_add_u32 {vr(vWa[0])}, {vr(vT5)}, {vr(vT2)}
s_cmp_ge_u32 {sr(sW)}, 4
s_cselect_b32 {sr(sT)}, 8, 40
v_and_b32 {vr(vT2)}, 3, {vr(vLane)}
v_mad_u32_u24 {vr(vWb[0])}, {vr(vT2)}, {sr(sT)}, {vr(vT5)}''')
    for s_ in (1, 2):
        a(f'v_add_u32 {vr(vXr[s_][0])}, {s_*STG}, {vr(vXr[0][0])}')
        a(f'v_add_u32 {vr(vXr[s_][1])}, {s_*STG}, {vr(vXr[0][1])}')
        a(f'v_add_u32 {vr(vWa[s_])}, {s_*STG}, {vr(vWa[0])}')
        a(f'v_add_u32 {vr(vWb[s_])}, {s_*STG}, {vr(vWb[0])}')
    a(f'''s_lshr_b32 {sr(sT)}, {sr(sW)}, 1
s_mul_i32 {sr(sT2)}, {sr(sT)}, 10240
v_lshlrev_b32 {vr(vQo)}, 4, {vr(vLane)}
v_lshlrev_b32 {vr(vT0)}, 3, {vr(vLane)}
v_add_u32 {vr(vT0)}, 1024, {vr(vT0)}
v_mov_b32 {vr(vT1)}, {OOB}
v_cndmask_b32_e64 {vr(vQo2)}, {vr(vT0)}, {vr(vT1)}, {sr(sHi,2)}
v_add_u32 {vr(vbK1)}, {sr(sT2)}, {vr(vQo)}
v_add_u32 {vr(vT0)}, {sr(sT2)}, {vr(vT0)}
v_mov_b32 {vr(vT1)}, {ONES}
v_cndmask_b32_e64 {vr(vbK2)}, {vr(vT0)}, {vr(vT1)}, {sr(sHi,2)}
v_cndmask_b32_e64 {vr(vmK2)}, 1, 0, {sr(sHi,2)}
v_and_b32 {vr(vT2)}, 31, {vr(vLane)}
v_lshrrev_b32 {vr(vT3)}, 5, {vr(vLane)}
v_mul_u32_u24 {vr(vT3)}, 320, {vr(vT3)}
v_lshl_add_u32 {vr(vT3)}, {vr(vT2)}, 4, {vr(vT3)}
s_add_u32 {sr(sT3)}, {sr(sT2)}, 1280
v_add_u32 {vr(vT3)}, {sr(sT3)}, {vr(vT3)}
v_cmp_gt_u32 vcc, 20, {vr(vT2)}
v_mov_b32 {vr(vIdx)}, 0xdddddddd
v_mov_b32 {vr(vaK1)}, {vr(vbK1)}
v_cndmask_b32 {vr(vbV)}, {vr(vT1)}, {vr(vT3)}, vcc
v_cndmask_b32_e64 {vr(vmV)}, 0, 1, vcc
v_cmp_lt_u32 vcc, 20, {vr(vT2)}
v_add_u32 {vr(vT3)}, 16, {vr(vT1)}
v_mov_b32 {vr(vaK2)}, {vr(vbK2)}
v_cndmask_b32 {vr(vbV)}, {vr(vbV)}, {vr(vT3)}, vcc
v_mov_b32 {vr(vaV)}, {vr(vbV)}
s_mul_i32 {sr(sT2)}, {sr(sW)}, 2560
s_add_u32 {sr(sT2)}, {sr(sT2)}, {QST}
v_add_u32 {vr(vQs1)}, {sr(sT2)}, {vr(vQo)}
v_and_b32 {vr(vQs2)}, 31, {vr(vLane)}
v_lshlrev_b32 {vr(vQs2)}, 3, {vr(vQs2)}
s_add_u32 {sr(sT2)}, {sr(sT2)}, 1024
v_add_u32 {vr(vQs2)}, {sr(sT2)}, {vr(vQs2)}
s_lshl_b32 {sr(sT2)}, {sr(sB)}, 4
s_add_u32 {sr(sT2)}, {sr(sT2)}, {sr(sMt)}
s_lshl_b32 {sr(sT2)}, {sr(sT2)}, 1
s_and_b32 {sr(sT3)}, {sr(sW)}, 1
s_add_u32 {sr(sT2)}, {sr(sT2)}, {sr(sT3)}
s_lshl_b32 {sr(sT2)}, {sr(sT2)}, 5
s_lshl_b32 {sr(sT3)}, {sr(sHg)}, 2
s_add_u32 {sr(sT2)}, {sr(sT2)}, {sr(sT3)}
s_add_u32 {sr(sT2)}, {sr(sT2)}, {sr(sT)}
s_mul_i32 {sr(sOo)}, {sr(sT2)}, 2560
s_add_u32 {sr(sOo)}, {sr(sOo)}, {F_WS_O}
s_mul_i32 {sr(sT)}, {sr(sT)}, {KV_HEAD}
s_add_u32 {sr(sKV)}, {sr(sKV)}, {sr(sT)}
s_and_b32 {sr(sT)}, {sr(sW)}, 1
s_mul_i32 {sr(sT)}, {sr(sT)}, 5120
v_add_u32 {vr(vPub)}, {sr(sT)}, {vr(vbK1)}
s_mul_i32 {sr(sT2)}, {sr(sMt)}, 10240
s_add_u32 {sr(sT)}, {sr(sT)}, {sr(sT2)}
s_add_u32 {sr(sPub)}, {sr(sT)}, {sr(sKV)}
s_add_u32 {sr(sPub2)}, {sr(sPub)}, 4096''')
    for ct in range(8):
        for tt in range(2):
            for i in range(4):
                a(f'v_mov_b32 {vr(acc[ct][tt]+i)}, 0')
    a(f'''s_mov_b32 {sr(sScale)}, {QSCALE}
s_mov_b32 {sr(sScale+1)}, {QSCALE}
s_and_b32 {sr(sT3)}, {sr(sW)}, 3
v_and_b32 {vr(vT0)}, 15, {vr(vLane)}
v_lshrrev_b32 {vr(vT1)}, 4, {vr(vLane)}
v_lshrrev_b32 {vr(vT2)}, 2, {vr(vT0)}
v_and_b32 {vr(vT3)}, 3, {vr(vT0)}
v_lshl_add_u32 {vr(vT4)}, {vr(vT2)}, 3, {vr(vT3)}
v_lshrrev_b32 {vr(vT2)}, 1, {vr(vT1)}
v_and_b32 {vr(vT3)}, 1, {vr(vT1)}
s_mul_i32 {sr(sT)}, {sr(sT3)}, 2560
v_mul_u32_u24 {vr(vE[0])}, 10240, {vr(vT2)}
v_lshl_add_u32 {vr(vE[0])}, {vr(vT3)}, 9, {vr(vE[0])}
v_lshl_add_u32 {vr(vE[0])}, {vr(vT4)}, 4, {vr(vE[0])}
v_add_u32 {vr(vE[0])}, {sr(sT)}, {vr(vE[0])}
s_cmp_ge_u32 {sr(sW)}, 4
s_cbranch_scc1 {name}_p1b''')

    def p1_variant(wn):
        if wn == 0:
            kinds = [('P', 0, 0, 0), ('P', 0, 0, 1), ('P', 0, 1, 0), ('P', 0, 1, 1), ('T', 0, 0, 0), ('P', 1, 0, 0), ('P', 1, 0, 1), ('T', 1, 0, 0)]
            a(f'''s_add_u32 {sr(sT2)}, {sr(sT)}, 1024
v_mul_u32_u24 {vr(vE[1])}, 10240, {vr(vT1)}
v_lshl_add_u32 {vr(vE[1])}, {vr(vT4)}, 3, {vr(vE[1])}
v_add_u32 {vr(vE[1])}, {sr(sT2)}, {vr(vE[1])}
s_mul_i32 {sr(sT)}, {sr(sT3)}, 1280
s_add_u32 {sr(sT)}, {sr(sT)}, {QST}
v_mul_u32_u24 {vr(vE[2])}, 5120, {vr(vT2)}
v_lshl_add_u32 {vr(vE[2])}, {vr(vT3)}, 9, {vr(vE[2])}
v_lshl_add_u32 {vr(vE[2])}, {vr(vT0)}, 4, {vr(vE[2])}
v_add_u32 {vr(vE[2])}, {sr(sT)}, {vr(vE[2])}
s_add_u32 {sr(sT)}, {sr(sT)}, 1024
v_mul_u32_u24 {vr(vE[3])}, 5120, {vr(vT1)}
v_lshl_add_u32 {vr(vE[3])}, {vr(vT0)}, 3, {vr(vE[3])}
v_add_u32 {vr(vE[3])}, {sr(sT)}, {vr(vE[3])}''')
        else:
            kinds = [('P', 1, 1, 0), ('P', 1, 1, 1)] + [('V', 2, i, 0) for i in range(5)]
            a(f'''s_add_u32 {sr(sT)}, {sr(sT)}, 1280
v_mul_u32_u24 {vr(vT2)}, 640, {vr(vT2)}
v_mul_u32_u24 {vr(vT3)}, 320, {vr(vT3)}
v_add3_u32 {vr(vT5)}, {vr(vT2)}, {vr(vT3)}, {sr(sT)}''')
            for i in range(5):
                a(f'''v_add_u32 {vr(vT2)}, {16*i}, {vr(vT0)}
v_mul_u32_u24 {vr(vT3)}, 3277, {vr(vT2)}
v_lshrrev_b32 {vr(vT3)}, 16, {vr(vT3)}
v_mul_u32_u24 {vr(vT3)}, {10240-320}, {vr(vT3)}
v_lshl_add_u32 {vr(vT2)}, {vr(vT2)}, 4, {vr(vT3)}
v_add_u32 {vr(vE[1+i])}, {vr(vT2)}, {vr(vT5)}''')
        nct = len(kinds)
        grp = [list(range(0, 4)), list(range(4, nct))]
        def rd_x(step, s2):
            return [f'ds_read_b128 {vr(Xf[s2][tt],4)}, {vr(vXr[step%3][s2])} offset:{tt*2048}' for tt in range(2)]
        def rd_w(step, s2, h, idx):
            ty, sec, sub, e = kinds[grp[h][idx]]
            base = (vWa if ty == 'P' else vWb)[step % 3]
            col = sec*160 + {'P': sub*80 + e*8, 'T': 32, 'V': sub*32}[ty]
            return [f'ds_read_b64_tr_b16 {vr(Wf[h][idx]+2*rd,2)}, {vr(base)} offset:{(32*s2+8*rd)*480 + col}' for rd in range(2)]
        def mf(s2, h, idx):
            ct = grp[h][idx]
            out = []
            for tt in range(2):
                A, B = Wf[h][idx], Xf[s2][tt]
                if kinds[ct][0] == 'V':
                    A, B = B, A
                out.append(f'v_mfma_f32_16x16x32_bf16 {vr(acc[ct][tt],4)}, {vr(A,4)}, {vr(B,4)}, {vr(acc[ct][tt],4)}')
            return out
        n0, n1 = 2 + 2*len(grp[0]), 2*len(grp[1])
        def phase(s2, h, nxt):
            if nxt is not None and h == 0:
                for r in rd_x(*nxt): a(r)
            for idx in range(len(grp[h])):
                for m in mf(s2, h, idx): a(m)
                if nxt is not None:
                    for r in rd_w(nxt[0], nxt[1], h, idx): a(r)
        st1()
        a('s_waitcnt vmcnt(0)')
        a(f'v_readfirstlane_b32 {sr(sTag)}, {vr(vEp7)}')
        a('s_barrier')
        a(f's_add_u32 {sr(sTag)}, {sr(sTag)}, {TAGK}')
        rts(1)
        st()
        for r in rd_x(0, 0): a(r)
        for h in range(2):
            for idx in range(len(grp[h])):
                for r in rd_w(0, 0, h, idx): a(r)
        for step in range(10):
            if step == 9 and hsplit:
                a('s_barrier')
            a(f's_waitcnt lgkmcnt({n1})')
            phase(0, 0, (step, 1))
            a(f's_waitcnt lgkmcnt({n0})')
            phase(0, 1, (step, 1))
            a('s_waitcnt lgkmcnt(0)')
            a('s_barrier')
            if step == 0 and wn == 1:
                a(f'v_mov_b32 {vr(vCi7)}, 1')
                a(f'buffer_atomic_add {vr(vCi7)}, {vr(vZ7)}, {sr(SDBG,4)}, 0 offen sc0')
            if step in (0, 4): st0()
            if step in (0, 1, 2, 8): st1()
            if step in (8, 9): st4()
            nx = (step + 1, 0) if step < 9 else None
            phase(1, 0, nx)
            phase(1, 1, nx)
        st0(); st4()
        rts(2)
        if wn == 1:
            a(f'''s_waitcnt vmcnt(0)
v_cmp_eq_u32 vcc, 255, {vr(vCi7)}
v_add_u32 {vr(vEp7)}, {TAGK}, {vr(vEp7)}
v_mov_b32 {vr(vT1)}, {OOB}
s_mov_b32 {sr(sT)}, {F_EPOCH}
v_cndmask_b32 {vr(vZ7)}, {vr(vT1)}, {vr(vZ7)}, vcc
buffer_store_dword {vr(vEp7)}, {vr(vZ7)}, {sr(SWS,4)}, {sr(sT)} offen{SC}''')
        def scale(r0):
            a(f'v_pk_mul_f32 {vr(r0,2)}, {vr(r0,2)}, {sr(sScale,2)}')
            a(f'v_pk_mul_f32 {vr(r0+2,2)}, {vr(r0+2,2)}, {sr(sScale,2)}')
        def pack4(d, x, y):
            a(f'v_cvt_pk_bf16_f32 {vr(d)}, {vr(x)}, {vr(x+1)}')
            a(f'v_cvt_pk_bf16_f32 {vr(d+1)}, {vr(x+2)}, {vr(x+3)}')
            if y is not None:
                a(f'v_cvt_pk_bf16_f32 {vr(d+2)}, {vr(y)}, {vr(y+1)}')
                a(f'v_cvt_pk_bf16_f32 {vr(d+3)}, {vr(y+2)}, {vr(y+3)}')
        def stage(want):
          ct = 0
          while ct < nct:
            ty, sec, sub, e = kinds[ct]
            if (sec == 0) != want:
                ct += 1
                continue
            if ty == 'P':
                for tt in range(2):
                    x, y = acc[ct][tt], acc[ct+1][tt]
                    if sec == 0:
                        scale(x); scale(y)
                    pack4(x, x, y)
                    if sec == 0:
                        a(f'ds_write_b128 {vr(vE[2])}, {vr(x,4)} offset:{sub*10240 + tt*256}')
                    else:
                        a(f'ds_write_b128 {vr(vE[0])}, {vr(x,4)} offset:{sub*20480 + tt*64}')
                ct += 2
            elif ty == 'T':
                for tt in range(2):
                    x = acc[ct][tt]
                    if sec == 0:
                        scale(x)
                    pack4(x, x, None)
                    if sec == 0:
                        a(f'ds_write_b64 {vr(vE[3])}, {vr(x,2)} offset:{tt*128}')
                    else:
                        a(f'ds_write_b64 {vr(vE[1])}, {vr(x,2)} offset:{tt*32}')
                ct += 1
            else:
                x, y = acc[ct][0], acc[ct][1]
                pack4(x, x, y)
                a(f'ds_write_b128 {vr(vE[1+sub])}, {vr(x,4)}')
                ct += 1
        stage(False)
        a('s_waitcnt lgkmcnt(0)')
        st4()
        a('s_barrier')
        st4()
        PB = Xf[0][0]
        assert Wf[0][0] == PB + 16
        for q in range(5):
            a(f'ds_read_b128 {vr(PB+4*q,4)}, {vr(vPub)} offset:{q*1024}')
        stage(True)
        nq = 6 if wn == 0 else 0
        for q in range(5):
            a(f's_waitcnt lgkmcnt({4 - q + nq})')
            a(f'buffer_store_dwordx4 {vr(PB+4*q,4)}, {vr(vQo)}, {sr(SWS,4)}, {sr(sPub if q < 4 else sPub2)} offen offset:{(q%4)*1024}{SST}')
        a('s_nop 1')
        st4()
    n_st = st.n
    p1_variant(0)
    a(f's_branch {name}_p2')
    a.label(f'{name}_p1b')
    st.n = n_st
    p1_variant(1)
    a.label(f'{name}_p2')

    V = VAlloc(VB2 + 3)
    Q1 = [V(4), V(4)]; Q2 = [V(2), V(2)]
    K1 = [V(4), V(4)]; K2 = [V(2), V(2)]
    V0 = [V(4), V(4)]; V1 = [V(4), V(4)]
    O = [V(16), V(16)]
    S = [V(16), V(16)]
    vPw = V(2); vPa = V(); vPo_ = V(); vPg = V()
    done_alloc(V)
    for t in range(2):
        for i in range(16):
            a(f'v_mov_b32 {vr(O[t]+i)}, 0')
    for i in range(4):
        a(f'v_mov_b32 {vr(V1[1]+i)}, 0')
    a(f's_mov_b32 {sr(sG)}, 0')
    a(f's_mov_b32 {sr(sOff)}, 0')
    if nobar:
        a(f'''s_lshl_b32 {sr(sT)}, {sr(sW)}, 3
s_add_u32 {sr(sT2)}, {sr(sT)}, {LW_PW + 4}
s_xor_b32 {sr(sT)}, {sr(sT)}, 32
s_add_u32 {sr(sT)}, {sr(sT)}, {LW_PW}
v_mov_b32 {vr(vPa)}, {sr(sT)}
v_mov_b32 {vr(vPo_)}, {sr(sT2)}
v_mov_b32 {vr(vPg)}, 0''')
    a('s_waitcnt lgkmcnt(0)')
    a('s_barrier')
    st0(); st4()
    def rdK(s_, u, part='R'):
        if part != 'Rb': a(f'ds_read_b128 {vr(K1[s_],4)}, {vr(vaK1)} offset:{2560*u}')
        if part != 'Ra': a(f'ds_read_b64 {vr(K2[s_],2)}, {vr(vaK2)} offset:{2560*u}')
    def rdV(s_, u, part='R'):
        if part != 'Rb': a(f'ds_read_b128 {vr(V0[s_],4)}, {vr(vaV)} offset:{2560*u}')
        if part != 'Ra': a(f'ds_read_b128 {vr(V1[s_],4)}, {vr(vaV)} offset:{2560*u+640}')
    def qk16(t, s_):
        a(f'v_mfma_f32_32x32x16_bf16 {vr(S[t],16)}, {vr(K1[s_],4)}, {vr(Q1[t],4)}, 0')
    def qk8(t, s_):
        a(f'v_mfma_f32_32x32x8_bf16 {vr(S[t],16)}, {vr(K2[s_],2)}, {vr(Q2[t],2)}, {vr(S[t],16)}')
    def pv(t, s_, n):
        Vf = (V0, V1)[n][s_]
        a(f'v_smfmac_f32_32x32x32_bf16 {vr(O[t],16)}, {vr(Vf,4)}, {vr(S[t]+8*n,8)}, {vr(vIdx)}')
    def rowmax(t, dst):
        s = S[t]
        a(f'v_max3_f32 {vr(dst)}, {vr(s)}, {vr(s+1)}, {vr(s+2)}')
        for i in range(3, 15, 2):
            a(f'v_max3_f32 {vr(dst)}, {vr(dst)}, {vr(s+i)}, {vr(s+i+1)}')
        a(f'v_max_f32 {vr(dst)}, {vr(dst)}, {vr(s+15)}')
    def crosshalf(x, y):
        a(f'v_mov_b32 {vr(y)}, {vr(x)}')
        a('s_nop 1')
        a(f'v_permlane32_swap_b32 {vr(x)}, {vr(y)}')
        a('s_nop 1')
    for t in range(2):
        a(f'ds_read_b128 {vr(Q1[t],4)}, {vr(vQs1)} offset:{1280*t}')
        a(f'ds_read_b64 {vr(Q2[t],2)}, {vr(vQs2)} offset:{1280*t}')
    rdK(0, 0); rdK(1, 1); rdV(0, 0)
    a('s_waitcnt lgkmcnt(4)')
    for t in range(2):
        a(f'v_cndmask_b32_e64 {vr(Q2[t])}, {vr(Q2[t])}, 0, {sr(sHi,2)}')
        a(f'v_cndmask_b32_e64 {vr(Q2[t]+1)}, {vr(Q2[t]+1)}, 0, {sr(sHi,2)}')
    qk16(0, 0); qk8(0, 0); qk16(1, 0); qk8(1, 0)
    a('s_nop 9')
    for t in range(2):
        if t == 1: a('s_nop 1')
        rowmax(t, vT0)
        crosshalf(vT0, vT1)
        a(f'''v_max_f32 {vr(vT0)}, {vr(vT0)}, {vr(vT1)}
v_sub_f32 {vr(vT0)}, 0, {vr(vT0)}
v_and_b32 {vr(vT1)}, 0xffff0000, {vr(vT0)}
v_sub_f32 {vr(vT0)}, {vr(vT0)}, {vr(vT1)}
v_and_b32 {vr(vT2)}, 0xffff0000, {vr(vT0)}
v_sub_f32 {vr(vT0)}, {vr(vT0)}, {vr(vT2)}
v_lshrrev_b32 {vr(vT1)}, 16, {vr(vT1)}
v_or_b32 {vr(vT1)}, {vr(vT1)}, {vr(vT2)}
v_lshrrev_b32 {vr(vT0)}, 16, {vr(vT0)}
v_cndmask_b32_e64 {vr(Q2[t])}, {vr(Q2[t])}, {vr(vT1)}, {sr(sHi,2)}
v_cndmask_b32_e64 {vr(Q2[t]+1)}, {vr(Q2[t]+1)}, {vr(vT0)}, {sr(sHi,2)}''')
        if t == 0:
            qk16(0, 0)
            a('s_nop 0')
            qk8(0, 0)
    for i in range(8, 16):
        a(f'v_mov_b32 {vr(S[1]+i)}, 0')
    st4()
    a(f'''s_lshl_b32 {sr(sT)}, {sr(sB)}, 3
s_add_u32 {sr(sT)}, {sr(sT)}, {sr(sHg)}
s_lshl_b32 {sr(sT)}, {sr(sT)}, 6
s_add_u32 {sr(sT)}, {sr(sT)}, {sr(sMt)}
s_lshl_b32 {sr(sT)}, {sr(sT)}, 2
s_add_u32 {sr(sT)}, {sr(sT)}, {F_FLAG1}
s_mov_b64 exec, 1
v_mov_b32 {vr(vT0)}, 1
v_mov_b32 {vr(vT2)}, {LW_CNT1}
v_mov_b32 {vr(vT1)}, {sr(sTag)}
v_mov_b32 {vr(vT3)}, {sr(sT)}
s_waitcnt vmcnt(0)
ds_add_rtn_u32 {vr(vT0)}, {vr(vT2)}, {vr(vT0)}
s_waitcnt lgkmcnt(0)
v_readfirstlane_b32 {sr(sT)}, {vr(vT0)}
s_cmp_eq_u32 {sr(sT)}, 7
s_cbranch_scc0 {name}_nl1
buffer_store_dword {vr(vT1)}, {vr(vT3)}, {sr(SWS,4)}, 0 offen{SC}''')
    a.label(f'{name}_nl1')
    a('s_mov_b64 exec, -1')
    prio = opts.get('prio', 1)
    rts(3)
    st0(); st4()
    if sset == 2: st()
    a('.p2align 6')
    a.label(f'{name}_loop')
    def ex(t, i):
        a(f'v_exp_f32 {vr(S[t]+i)}, {vr(S[t]+i)}')
    scheds = {1: 'e e P2 e e e e Q16 e e e e Q8 R e e e e P1 W e e',
              2: 'e e P2 e e e e Q16 e e e Q8 R e e e e e P1 W e e',
              3: 'e e P2 e e e e Q16 e e e e Q8 e R e e e P1 e W e',
              4: 'e e P2 e e e Q16 e e e e Q8 R e e e e P1 W e e e',
              5: 'e e W P2 e e e e Ra Q16 e e e e Rb Q8 e e e e P1 e e',
              6: 'e e W P2 e e e e R Q16 e e e e Q8 e e e e P1 e e',
              7: 'e e W P2 e e e e Q16 e e e e Ra Q8 e e e e Rb P1 e e',
              8: 'e e P2 e e e e Ra Q16 e e e e Rb Q8 e e e e W P1 e e',
              9: 'e e P2 e e e e Q16 e e e e Q8 e e e e R W P1 e e',
              10: 'e e P2 Ra e e e e Q16 Rb e e e e Q8 W e e e e P1 e e',
              11: 'e e P2 Ra e e e e Q16 Rb e e e e Q8 e e e e P1 W e e',
              12: 'e e P2 R e e e e Q16 e e e e Q8 e e e e P1 W e e'}
    sched = scheds[opts.get('sched', 11)].split()
    unroll = opts.get('unroll', 1)
    ptab = {1: {(0, 0): 2, (1, 0): 1, (2, 0): 0, (3, 0): 3},
            2: {(3, 0): 1, (1, 0): 0},
            3: {(3, 0): 3, (3, 1): 2, (0, 1): 1, (1, 1): 0},
            6: {(3, 0): 3, (0, 1): 2, (1, 1): 1, (2, 0): 0}}.get(prio, {})
    for rep in range(unroll):
      for j in range(4):
        for t in range(2):
            pj = j if t == 1 else j - 1
            nj = j if t == 0 else j + 1
            if (j, t) in ptab and nobar != 1:
                a(f's_setprio {ptab[(j, t)]}')
            e = 0
            for tok in sched:
                if tok == 'e':
                    ex(t, e); e += 1
                elif tok == 'P2':
                    pv(1 - t, pj % 2, 1)
                elif tok == 'P1':
                    pv(t, j % 2, 0)
                elif tok == 'Q16':
                    qk16(1 - t, nj % 2)
                elif tok == 'Q8':
                    qk8(1 - t, nj % 2)
                elif tok == 'W':
                    a(f's_waitcnt lgkmcnt({3 if nobar and (j, t) in ((2, 0), (2, 1)) else 2})')
                elif tok == 'Rb':
                    if t == 0: rdV((j + 1) % 2, (j + 1) % 4, 'Rb')
                    else: rdK(j % 2, (j + 2) % 4, 'Rb')
                elif tok in ('R', 'Ra'):
                    if t == 0:
                        if j == 3:
                            a(f'v_mad_u32_u24 {vr(vaV)}, {vr(vmV)}, {sr(sOff)}, {vr(vbV)}')
                        rdV((j + 1) % 2, (j + 1) % 4, tok)
                        if j == 2 and nobar:
                            a(f'ds_read_b64 {vr(vPw,2)}, {vr(vPa)}')
                    else:
                        if j == 2:
                            a(f'''s_add_u32 {sr(sOff)}, {sr(sOff)}, {SLOT}
s_cmp_ge_u32 {sr(sOff)}, {3*SLOT}
s_cselect_b32 {sr(sOff)}, 0, {sr(sOff)}''')
                            if nobar:
                                a(f'''v_add_u32 {vr(vPg)}, 1, {vr(vPg)}
s_add_u32 {sr(sT3)}, {sr(sG)}, {rep + 1}
s_waitcnt lgkmcnt(0)
v_readfirstlane_b32 {sr(sT)}, {vr(vPw)}
v_readfirstlane_b32 {sr(sT2)}, {vr(vPw+1)}
ds_write_b32 {vr(vPo_)}, {vr(vPg)}''')
                                if nobar == 1:
                                    a(f'''s_setprio 0
s_cmp_lt_u32 {sr(sT2)}, {sr(sT3)}
s_cbranch_scc1 {name}_lo{rep}
s_setprio 1''')
                                    a.label(f'{name}_lo{rep}')
                                elif nobar == 2:
                                    a(f's_add_u32 {sr(sT2)}, {sr(sT2)}, {1 + opts.get("slack", 0)}')
                                    a(f's_min_u32 {sr(sT)}, {sr(sT)}, {sr(sT2)}')
                                a(f's_cmp_gt_u32 {sr(sT)}, {sr(sT3)}')
                                a(f's_cbranch_scc0 {name}_spin{rep}')
                                a.label(f'{name}_spun{rep}')
                            else:
                                a('s_waitcnt lgkmcnt(0)')
                                a('s_barrier')
                            if sset == 2 and st.on:
                                for K in (0, 1, 2, 3, 8, 14):
                                    a(f's_cmp_eq_u32 {sr(sG)}, {K}')
                                    a(f's_cbranch_scc0 {name}_sk{K}')
                                    st()
                                    a.label(f'{name}_sk{K}')
                            a(f'''v_add_u32 {vr(vaK1)}, {sr(sOff)}, {vr(vbK1)}
v_mad_u32_u24 {vr(vaK2)}, {vr(vmK2)}, {sr(sOff)}, {vr(vbK2)}''')
                        rdK(j % 2, (j + 2) % 4, tok)
            assert e == 16
    a(f'''s_add_u32 {sr(sG)}, {sr(sG)}, {unroll}
s_cmp_lt_u32 {sr(sG)}, 16
s_cbranch_scc1 {name}_loop''')
    a('s_nop 1')
    pv(1, 1, 1)
    if ptab or nobar:
        a('s_setprio 0')
    st0()
    if sset in (2, 3): st()
    L = [vT2, vT3]
    rts(4)
    a('s_waitcnt lgkmcnt(0)')
    a(f's_mov_b32 {sr(sI)}, 0')
    a.label(f'{name}_store')
    a(f's_mov_b32 {sr(sM)}, 0xaaaaaaaa')
    a(f's_mov_b32 {sr(sM+1)}, 0xaaaaaaaa')
    for t in range(2):
        a(f'v_mov_b32 {vr(vT0)}, {vr(O[t]+8)}')
        crosshalf(vT0, L[t])
        a(f'v_rcp_f32 {vr(vT0)}, {vr(L[t])}')
        a('s_nop 0')
        for i in range(12):
            a(f'v_mul_f32 {vr(O[t]+i)}, {vr(O[t]+i)}, {vr(vT0)}')
        for i in range(4):
            a(f'v_cvt_pk_bf16_f32 {vr(S[t]+i)}, {vr(O[t]+2*i)}, {vr(O[t]+2*i+1)}')
        a(f'buffer_store_dwordx4 {vr(S[t],4)}, {vr(vQo)}, {sr(SWS,4)}, {sr(sOo)} offen offset:{1024*t}{SST}')
        for i in range(2):
            a(f'v_cvt_pk_bf16_f32 {vr(S[0]+4+2*t+i)}, {vr(O[t]+8+2*i)}, {vr(O[t]+8+2*i+1)}')
    ta, tb, X, Y = S[0]+4, S[0]+6, S[0]+8, S[0]+12
    a(f'''v_cndmask_b32_e64 {vr(X)}, {vr(tb)}, {vr(ta)}, {sr(sM,2)}
v_cndmask_b32_e64 {vr(X+1)}, {vr(tb+1)}, {vr(ta+1)}, {sr(sM,2)}
v_lshrrev_b32 {vr(vT0)}, 1, {vr(vLane)}
v_and_b32 {vr(vT1)}, 1, {vr(vLane)}
v_mov_b32_dpp {vr(X+2)}, {vr(X)} quad_perm:[1,0,3,2] row_mask:0xf bank_mask:0xf
v_mov_b32_dpp {vr(X+3)}, {vr(X+1)} quad_perm:[1,0,3,2] row_mask:0xf bank_mask:0xf
v_lshlrev_b32 {vr(vT0)}, 4, {vr(vT0)}
v_lshl_add_u32 {vr(vT0)}, {vr(vT1)}, 8, {vr(vT0)}
v_mov_b32 {vr(vT1)}, {OOB}
v_cndmask_b32_e64 {vr(Y)}, {vr(ta)}, {vr(X+2)}, {sr(sM,2)}
v_cndmask_b32_e64 {vr(Y+1)}, {vr(ta+1)}, {vr(X+3)}, {sr(sM,2)}
v_cndmask_b32_e64 {vr(Y+2)}, {vr(X+2)}, {vr(tb)}, {sr(sM,2)}
v_cndmask_b32_e64 {vr(Y+3)}, {vr(X+3)}, {vr(tb+1)}, {sr(sM,2)}
v_cndmask_b32_e64 {vr(vT0)}, {vr(vT0)}, {vr(vT1)}, {sr(sHi,2)}
buffer_store_dwordx4 {vr(Y,4)}, {vr(vT0)}, {sr(SWS,4)}, {sr(sOo)} offen offset:2048{SST}''')
    st0()
    for t in range(2):
        sm = sM if t == 0 else sM2
        a(f'v_mul_f32 {vr(vT1)}, 0, {vr(O[t])}')
        for i in range(1, 12):
            a(f'v_fmac_f32 {vr(vT1)}, 0, {vr(O[t]+i)}')
        a(f'v_add_f32 {vr(vT1)}, {vr(vT1)}, {vr(L[t])}')
        a(f'v_cmp_gt_f32 vcc, 0x53800000, {vr(vT1)}')
        a(f's_mov_b64 {sr(sm,2)}, vcc')
        a(f'v_cmp_lt_f32 vcc, 0x35800000, {vr(vT1)}')
        a(f's_and_b64 {sr(sm,2)}, {sr(sm,2)}, vcc')
    a(f'''s_and_b64 {sr(sM,2)}, {sr(sM,2)}, {sr(sM2,2)}
s_cmp_eq_u64 {sr(sM,2)}, -1
s_cselect_b32 {sr(sT)}, 1, {sr(sI)}
s_cmp_eq_u32 {sr(sT)}, 0
s_cbranch_scc1 {name}_fallback''')

    V = VAlloc(VBASE)
    vAo = V(); vAt = V(); vWm0 = V(); vWt0 = V(); vOo = V(); vRd = V(); vDn = V()
    vWm = [V() for _ in range(4)]; vWt = [V() for _ in range(4)]
    acc3 = [V(4) for _ in range(5)]
    assert V.n <= S[0]
    Wg = [[V(4) for _ in range(5)] for _ in range(2)]
    A = [[V(4) for _ in range(5)] for _ in range(4)]
    done_alloc(V)
    a(f'''s_lshl_b32 {sr(sT)}, {sr(sB)}, 4
s_add_u32 {sr(sT)}, {sr(sT)}, {sr(sMt3)}
s_lshl_b32 {sr(sT)}, {sr(sT)}, 1
s_lshr_b32 {sr(sT2)}, {sr(sW)}, 2
s_add_u32 {sr(sT)}, {sr(sT)}, {sr(sT2)}
s_mul_i32 {sr(sA)}, {sr(sT)}, {32*2560}
s_add_u32 {sr(sA)}, {sr(sA)}, {F_WS_O}
s_and_b32 {sr(sT)}, {sr(sW)}, 1
s_lshl_b32 {sr(sT)}, {sr(sT)}, 4
s_bfe_u32 {sr(sT2)}, {sr(sW)}, 0x10001
v_and_b32 {vr(vT0)}, 15, {vr(vLane)}
v_add_u32 {vr(vT0)}, {sr(sT)}, {vr(vT0)}
v_lshlrev_b32 {vr(vT0)}, 4, {vr(vT0)}
v_lshrrev_b32 {vr(vT1)}, 5, {vr(vLane)}
v_mul_u32_u24 {vr(vT1)}, 2560, {vr(vT1)}
v_bfe_u32 {vr(vT2)}, {vr(vLane)}, 4, 1
v_lshl_add_u32 {vr(vT1)}, {vr(vT2)}, 9, {vr(vT1)}
s_lshl_b32 {sr(sT3)}, {sr(sT2)}, 10
v_add3_u32 {vr(vAo)}, {vr(vT0)}, {vr(vT1)}, {sr(sT3)}
v_lshrrev_b32 {vr(vT1)}, 4, {vr(vLane)}
v_mul_u32_u24 {vr(vT1)}, 2560, {vr(vT1)}
s_lshl_b32 {sr(sT3)}, {sr(sT2)}, 8
s_add_u32 {sr(sT3)}, {sr(sT3)}, 2048
v_lshrrev_b32 {vr(vT0)}, 1, {vr(vT0)}
v_add3_u32 {vr(vAt)}, {vr(vT0)}, {vr(vT1)}, {sr(sT3)}
v_bfe_u32 {vr(vT0)}, {vr(vLane)}, 2, 2
v_lshrrev_b32 {vr(vT1)}, 5, {vr(vLane)}
v_mul_u32_u24 {vr(vT1)}, 20, {vr(vT1)}
v_bfe_u32 {vr(vT2)}, {vr(vLane)}, 4, 1
v_lshl_add_u32 {vr(vT1)}, {vr(vT2)}, 2, {vr(vT1)}
v_add_u32 {vr(vT1)}, {vr(vT1)}, {vr(vT0)}
v_mul_u32_u24 {vr(vT1)}, 160, {vr(vT1)}
v_and_b32 {vr(vT2)}, 3, {vr(vLane)}
v_lshl_add_u32 {vr(vWm0)}, {vr(vT2)}, 3, {vr(vT1)}
v_lshrrev_b32 {vr(vT1)}, 4, {vr(vLane)}
v_mul_u32_u24 {vr(vT1)}, 20, {vr(vT1)}
v_add3_u32 {vr(vT1)}, {vr(vT1)}, {vr(vT0)}, 16
v_mul_u32_u24 {vr(vT1)}, 160, {vr(vT1)}
v_lshl_add_u32 {vr(vWt0)}, {vr(vT2)}, 3, {vr(vT1)}
s_lshl_b32 {sr(sT)}, {sr(sMt3)}, 7
s_lshl_b32 {sr(sT2)}, {sr(sW)}, 4
s_add_u32 {sr(sT)}, {sr(sT)}, {sr(sT2)}
v_and_b32 {vr(vT0)}, 15, {vr(vLane)}
v_add_u32 {vr(vT0)}, {sr(sT)}, {vr(vT0)}
v_mul_u32_u24 {vr(vT0)}, 2560, {vr(vT0)}
v_lshrrev_b32 {vr(vT1)}, 4, {vr(vLane)}
v_lshl_add_u32 {vr(vT0)}, {vr(vT1)}, 3, {vr(vT0)}
s_mul_i32 {sr(sT)}, {sr(sB)}, 1280
s_mul_i32 {sr(sT2)}, {sr(sCg)}, 160
s_add_u32 {sr(sT)}, {sr(sT)}, {sr(sT2)}
v_add_u32 {vr(vOo)}, {sr(sT)}, {vr(vT0)}
v_mov_b32 {vr(vRd)}, {LW_RDY}
s_lshl_b32 {sr(sT)}, {sr(sB)}, 4
s_add_u32 {sr(sT)}, {sr(sT)}, {sr(sMt)}
s_lshl_b32 {sr(sT)}, {sr(sT)}, 6
s_add_u32 {sr(sT)}, {sr(sT)}, {sr(sHg)}
s_lshl_b32 {sr(sT)}, {sr(sT)}, 2
s_add_u32 {sr(sT)}, {sr(sT)}, {F_FLAG2}
v_mov_b32 {vr(vDn)}, {sr(sT)}
v_add_u32 {vr(vWm0)}, {WO_LO}, {vr(vWm0)}
v_add_u32 {vr(vWt0)}, {WO_LO}, {vr(vWt0)}
s_and_b32 {sr(sT3)}, {sr(sCg)}, {opts.get('rot3', 3)}
s_lshl_b32 {sr(sT3)}, {sr(sT3)}, 1
s_mov_b32 {sr(sDone)}, 0''')
    for t in range(5):
        for i in range(4):
            a(f'v_mov_b32 {vr(acc3[t]+i)}, 0')
    tid_ = [0]
    base3 = st.n
    if sset == 3: st.n += 4
    def read_rdy():
        a(f'''ds_read_b64 {vr(vT0,2)}, {vr(vRd)}
s_waitcnt lgkmcnt(0)
v_and_b32 {vr(vT0)}, {vr(vT0)}, {vr(vT1)}
s_nop 0
v_readfirstlane_b32 {sr(sT)}, {vr(vT0)}
s_andn2_b32 {sr(sT)}, {sr(sT)}, {sr(sDone)}''')
    def loads(s_):
        a(f'''s_lshl_b32 {sr(sT2)}, {sr(sT)}, 8
s_or_b32 {sr(sT)}, {sr(sT)}, {sr(sT2)}
s_lshr_b32 {sr(sT)}, {sr(sT)}, {sr(sT3)}
s_ff1_i32_b32 {sr(sT)}, {sr(sT)}
s_add_u32 {sr(sT)}, {sr(sT)}, {sr(sT3)}
s_and_b32 {sr(sT)}, {sr(sT)}, 7
s_bitset1_b32 {sr(sDone)}, {sr(sT)}
s_mul_i32 {sr(sT2)}, {sr(sT)}, 10240
s_add_u32 {sr(sT2)}, {sr(sT2)}, {sr(sA)}
s_cmp_eq_u32 {sr(sT)}, 6
s_mul_i32 {sr(sT)}, {sr(sT)}, 12800
s_cselect_b32 {sr(sT)}, {QST - WO_LO}, {sr(sT)}''')
        for p in range(4):
            a(f'buffer_load_dwordx4 {vr(A[s_][p],4)}, {vr(vAo)}, {sr(SWS,4)}, {sr(sT2)} offen{SLD}')
            if p == 0:
                a(f'buffer_load_dwordx2 {vr(A[s_][4],2)}, {vr(vAt)}, {sr(SWS,4)}, {sr(sT2)} offen{SLD}')
            if p == 2:
                a(f'buffer_load_dwordx2 {vr(A[s_][4]+2,2)}, {vr(vAt)}, {sr(SWS,4)}, {sr(sT2)} offen{SLD}')
            if p < 3:
                a(f's_add_u32 {sr(sT2)}, {sr(sT2)}, 5120')
        a(f'v_add_u32 {vr(vWm[s_])}, {sr(sT)}, {vr(vWm0)}')
        a(f'v_add_u32 {vr(vWt[s_])}, {sr(sT)}, {vr(vWt0)}')
        if sset == 3 and st.on:
            a(f's_memtime s[{62+2*(base3+s_)}:{63+2*(base3+s_)}]\ns_waitcnt lgkmcnt(0)')
    def take_group(s_):
        n = tid_[0]; tid_[0] += 1
        a.label(f'{name}_tg{n}')
        read_rdy()
        a(f'''s_cbranch_scc1 {name}_tgd{n}
s_sleep 1
s_branch {name}_tg{n}''')
        a.label(f'{name}_tgd{n}')
        loads(s_)
    a('s_waitcnt vmcnt(0)')
    a(f'''s_mov_b64 exec, 1
v_mov_b32 {vr(vT0)}, 1
ds_add_rtn_u32 {vr(vT0)}, {vr(vRd)}, {vr(vT0)} offset:8
v_mov_b32 {vr(vT1)}, {sr(sTag)}
v_mov_b32 {vr(vT2)}, 0xff
s_waitcnt lgkmcnt(0)
v_readfirstlane_b32 {sr(sT)}, {vr(vT0)}
s_cmp_eq_u32 {sr(sT)}, 7
s_cbranch_scc0 {name}_nl
buffer_store_dword {vr(vT1)}, {vr(vDn)}, {sr(SWS,4)}, 0 offen{SC}
ds_write_b32 {vr(vRd)}, {vr(vT2)} offset:4''')
    a.label(f'{name}_nl')
    a('s_mov_b64 exec, -1')
    if sset == 3: st()
    def rdW3(fs, j, p, t):
        out = []
        for rd in range(2):
            if p < 4:
                base, off = vWm[j], (20*(2*p) + 8*rd)*160 + t*32
            else:
                base, off = vWt[j], (20*(4*rd))*160 + t*32
            out.append(f'ds_read_b64_tr_b16 {vr(Wg[fs][t]+2*rd,2)}, {vr(base)} offset:{off}')
        return out
    if opts.get('evt', 1):
        st0()
        sJ = sG
        a(f's_mov_b32 {sr(sI)}, 0')
        a(f's_mov_b32 {sr(sJ)}, 0')
        a.label(f'{name}_ev')
        a(f's_cmp_lt_u32 {sr(sI)}, 4')
        a(f's_cbranch_scc0 {name}_evc')
        read_rdy()
        a(f's_cbranch_scc0 {name}_evn')
        for i in range(4):
            if i < 3:
                a(f's_cmp_eq_u32 {sr(sI)}, {i}')
                a(f's_cbranch_scc0 {name}_evt{i}')
            loads(i)
            a(f's_mov_b32 {sr(sI)}, {i+1}')
            a(f's_branch {name}_ev')
            a.label(f'{name}_evt{i}')
        a.label(f'{name}_evn')
        a(f'''s_getreg_b32 {sr(sT)}, hwreg(HW_REG_IB_STS)
s_bfe_u32 {sr(sT2)}, {sr(sT)}, 0x20016
s_lshl_b32 {sr(sT2)}, {sr(sT2)}, 4
s_and_b32 {sr(sT)}, {sr(sT)}, 15
s_or_b32 {sr(sT)}, {sr(sT)}, {sr(sT2)}
s_add_u32 {sr(sT)}, {sr(sT)}, 6
s_sub_u32 {sr(sT2)}, {sr(sI)}, {sr(sJ)}
s_mul_i32 {sr(sT2)}, {sr(sT2)}, 6
s_cmp_le_u32 {sr(sT)}, {sr(sT2)}
s_cbranch_scc1 {name}_evc
s_sleep 1
s_branch {name}_ev''')
        a.label(f'{name}_evc')
        for j in range(4):
            if j < 3:
                a(f's_cmp_eq_u32 {sr(sJ)}, {j}')
                a(f's_cbranch_scc0 {name}_evk{j}')
            for p in range(2):
                for t in range(5):
                    for r in rdW3(p, j, p, t): a(r)
            for k in range(4, j + 1, -1):
                a(f's_cmp_eq_u32 {sr(sI)}, {k}')
                a(f's_cbranch_scc0 {name}_evw{j}_{k}')
                a(f's_waitcnt vmcnt({6*(k-j-1)})')
                a(f's_branch {name}_evx{j}')
                a.label(f'{name}_evw{j}_{k}')
            a('s_waitcnt vmcnt(0)')
            a.label(f'{name}_evx{j}')
            if sset == 3 and j in (0, 3): st()
            for p in range(5):
                fs = p % 2
                a(f's_waitcnt lgkmcnt({10 if p < 4 else 0})')
                for t in range(5):
                    a(f'v_mfma_f32_16x16x32_bf16 {vr(acc3[t],4)}, {vr(Wg[fs][t],4)}, {vr(A[j][p],4)}, {vr(acc3[t],4)}')
                    if p + 2 < 5:
                        for r in rdW3(fs, j, p + 2, t): a(r)
            if j < 3:
                a(f's_mov_b32 {sr(sJ)}, {j+1}')
                a(f's_branch {name}_ev')
                a.label(f'{name}_evk{j}')
    else:
        st0()
        steps = [(j, p) for j in range(4) for p in range(5)]
        for j in range(4):
            take_group(j)
        for n in range(2):
            for t in range(5):
                for r in rdW3(n, *steps[n], t): a(r)
        left = {0: 5, 1: 3, 2: 2, 3: 0, 4: 0}
        for n, (j, p) in enumerate(steps):
            fs = n % 2
            a(f's_waitcnt vmcnt({6*(3-j) + left[p]}) lgkmcnt({10 if n < 19 else 0})')
            if sset == 3 and n in (0, 18): st()
            for t in range(5):
                a(f'v_mfma_f32_16x16x32_bf16 {vr(acc3[t],4)}, {vr(Wg[fs][t],4)}, {vr(A[j][p],4)}, {vr(acc3[t],4)}')
                if n + 2 < 20:
                    for r in rdW3(fs, *steps[n+2], t): a(r)

    a('s_nop 3')
    st0()
    if sset == 3: st()
    OUTF = {0: '', 1: ' nt', 2: ' sc1'}[opts.get('outf', 0)]
    for t in range(5):
        a(f'v_cvt_pk_bf16_f32 {vr(acc3[t])}, {vr(acc3[t])}, {vr(acc3[t]+1)}')
        a(f'v_cvt_pk_bf16_f32 {vr(acc3[t]+1)}, {vr(acc3[t]+2)}, {vr(acc3[t]+3)}')
        a(f'buffer_store_dwordx2 {vr(acc3[t],2)}, {vr(vOo)}, {sr(SOUT,4)}, 0 offen offset:{t*32}{OUTF}')
    if dbgt:
        a('s_waitcnt vmcnt(0)')
        rts(5)
        a('s_mov_b64 exec, 1')
        a(f's_not_b32 s62, s62')
        for k in range(6):
            a(f'v_mov_b32 {vr(vT0)}, {4+4*k}')
            a(f'v_mov_b32 {vr(vT1)}, s{62+2*k}')
            a(f'buffer_atomic_umax {vr(vT1)}, {vr(vT0)}, {sr(SDBG,4)}, 0 offen')
            a('s_nop 1')
    if st.on:
        a('s_waitcnt vmcnt(0)')
    st(); st.rt(); st.flush(sW)
    n_total = st.n
    a.label(f'{name}_done')
    a('s_endpgm')

    if nobar:
        for rep in range(unroll):
            a.label(f'{name}_spin{rep}')
            a(f'''ds_read_b64 {vr(vPw,2)}, {vr(vPa)}
s_waitcnt lgkmcnt(0)
v_readfirstlane_b32 {sr(sT)}, {vr(vPw)}''')
            if nobar == 2:
                a(f'''v_readfirstlane_b32 {sr(sT2)}, {vr(vPw+1)}
s_add_u32 {sr(sT2)}, {sr(sT2)}, {1 + opts.get("slack", 0)}
s_min_u32 {sr(sT)}, {sr(sT)}, {sr(sT2)}''')
            a(f'''s_cmp_gt_u32 {sr(sT)}, {sr(sT3)}
s_cbranch_scc0 {name}_spin{rep}
s_branch {name}_spun{rep}''')
    a.label(f'{name}_fallback')
    M = [vT4, vT5]
    vVo = vaV
    a(f'''v_cndmask_b32_e64 {vr(Q2[0])}, {vr(Q2[0])}, 0, {sr(sHi,2)}
v_cndmask_b32_e64 {vr(Q2[0]+1)}, {vr(Q2[0]+1)}, 0, {sr(sHi,2)}
v_cndmask_b32_e64 {vr(Q2[1])}, {vr(Q2[1])}, 0, {sr(sHi,2)}
v_cndmask_b32_e64 {vr(Q2[1]+1)}, {vr(Q2[1]+1)}, 0, {sr(sHi,2)}
v_mov_b32 {vr(M[0])}, 0xff800000
v_mov_b32 {vr(M[1])}, 0xff800000
v_mov_b32 {vr(vT1)}, {OOB}
s_lshr_b32 {sr(sT)}, {sr(sW)}, 1
s_mul_i32 {sr(sT)}, {sr(sT)}, 10240
v_subrev_u32 {vr(vT0)}, {sr(sT)}, {vr(vbV)}
v_cmp_eq_u32 vcc, 1, {vr(vmV)}
s_mov_b32 {sr(sT)}, {sr(sKV)}
s_mov_b32 {sr(sG)}, 0
v_cndmask_b32 {vr(vVo)}, {vr(vT1)}, {vr(vT0)}, vcc
s_mov_b64 {sr(sM2,2)}, vcc
s_waitcnt vmcnt(0)''')
    a.label(f'{name}_fb1')
    a(f'''buffer_load_dwordx4 {vr(K1[0],4)}, {vr(vQo)}, {sr(SWS,4)}, {sr(sT)} offen{SC}
buffer_load_dwordx2 {vr(K2[0],2)}, {vr(vQo2)}, {sr(SWS,4)}, {sr(sT)} offen{SC}
s_waitcnt vmcnt(0)''')
    qk16(0, 0); qk16(1, 0); qk8(0, 0); qk8(1, 0)
    a('s_nop 15')
    for t in range(2):
        rowmax(t, vT0)
        a(f'v_max_f32 {vr(M[t])}, {vr(M[t])}, {vr(vT0)}')
    a(f'''s_add_u32 {sr(sT)}, {sr(sT)}, 2560
s_add_u32 {sr(sG)}, {sr(sG)}, 1
s_cmp_lt_u32 {sr(sG)}, 64
s_cbranch_scc1 {name}_fb1''')
    for t in range(2):
        crosshalf(M[t], vT1)
        a(f'v_max_f32 {vr(M[t])}, {vr(M[t])}, {vr(vT1)}')
        for i in range(16):
            a(f'v_mov_b32 {vr(O[t]+i)}, 0')
    a(f's_mov_b32 {sr(sT)}, {sr(sKV)}')
    a(f's_mov_b32 {sr(sG)}, 0')
    a(f'v_mov_b32 {vr(vT1)}, 0x3f803f80')
    a.label(f'{name}_fb2')
    a(f'''buffer_load_dwordx4 {vr(K1[0],4)}, {vr(vQo)}, {sr(SWS,4)}, {sr(sT)} offen{SC}
buffer_load_dwordx2 {vr(K2[0],2)}, {vr(vQo2)}, {sr(SWS,4)}, {sr(sT)} offen{SC}
buffer_load_dwordx4 {vr(V0[0],4)}, {vr(vVo)}, {sr(SWS,4)}, {sr(sT)} offen{SC}
buffer_load_dwordx4 {vr(V1[0],4)}, {vr(vVo)}, {sr(SWS,4)}, {sr(sT)} offen offset:640{SC}
s_waitcnt vmcnt(0)''')
    qk16(0, 0); qk16(1, 0); qk8(0, 0); qk8(1, 0)
    for i in range(4):
        a(f'v_cndmask_b32_e64 {vr(V0[0]+i)}, {vr(vT1)}, {vr(V0[0]+i)}, {sr(sM2,2)}')
        a(f'v_cndmask_b32_e64 {vr(V1[0]+i)}, {vr(vT1)}, {vr(V1[0]+i)}, {sr(sM2,2)}')
    a('s_nop 15')
    for t in range(2):
        for i in range(16):
            a(f'v_sub_f32 {vr(S[t]+i)}, {vr(S[t]+i)}, {vr(M[t])}')
        for i in range(16):
            ex(t, i)
    a('s_nop 1')
    for t in range(2):
        pv(t, 0, 0); pv(t, 0, 1)
    a(f'''s_add_u32 {sr(sT)}, {sr(sT)}, 2560
s_add_u32 {sr(sG)}, {sr(sG)}, 1
s_cmp_lt_u32 {sr(sG)}, 64
s_cbranch_scc1 {name}_fb2''')
    a('s_nop 15')
    a(f's_mov_b32 {sr(sI)}, 1')
    a(f's_branch {name}_store')

    a.label(f'{name}_helper')
    st.n = n_common
    V = VAlloc(VBASE)
    vEp = V(); vL16 = V(); vFl = V()
    VH = V.n
    a('s_setprio 3')
    if opts.get('cpf', 0):
        a(f'''s_getpc_b64 {sr(sM,2)}
{name}_pc:
s_sub_u32 {sr(sM)}, {sr(sM)}, {name}_pc - {name}
s_subb_u32 {sr(sM+1)}, {sr(sM+1)}, 0
s_lshr_b32 {sr(sT)}, s2, 3
v_lshlrev_b32 {vr(vT0)}, 5, {vr(vLane)}
v_add_u32 {vr(vT0)}, {sr(sT)}, {vr(vT0)}
v_lshlrev_b32 {vr(vT0)}, 7, {vr(vT0)}
v_min_u32 {vr(vT0)}, {name}_end - {name} - 4, {vr(vT0)}
s_mov_b64 exec, 0xfff
global_load_dword {vr(vFl)}, {vr(vT0)}, {sr(sM,2)}
s_mov_b64 exec, -1''')
    elate = opts.get('elate', 0)
    if not elate:
        a(f'v_mov_b32 {vr(vT0)}, {F_EPOCH}')
        a(f'buffer_load_dword {vr(vEp)}, {vr(vT0)}, {sr(SWS,4)}, 0 offen{SC}')
    stl = opts.get('stl', 0)
    if stl:
        ns = max(ns, 72)
        if stl & 1:
            a(f's_mul_i32 {sr(sT)}, {sr(sMt3)}, {128*2560}')
            a(f's_load_dword s64, {sr(SOUT,2)}, {sr(sT)}')
            a(f's_add_u32 {sr(sT)}, {sr(sT)}, {128*2560-4}')
            a(f's_load_dword s65, {sr(SOUT,2)}, {sr(sT)}')
        if stl & 2:
            a(f's_load_dword s66, {sr(SWO,2)}, 0')
        if stl & 4:
            a(f's_load_dword s67, {sr(SWS,2)}, {sr(sKV)}')
            a(f's_add_u32 {sr(sT)}, {sr(sKV)}, {4*KV_HEAD-4}')
            a(f's_load_dword s68, {sr(SWS,2)}, {sr(sT)}')
        if stl & 8:
            for k, m in ((69, sMt), (70, sMt3)):
                a(f's_lshl_b32 {sr(sT)}, {sr(sB)}, 4')
                a(f's_add_u32 {sr(sT)}, {sr(sT)}, {sr(m)}')
                a(f's_mul_i32 {sr(sT)}, {sr(sT)}, {2*32*2560}')
                a(f's_add_u32 {sr(sT)}, {sr(sT)}, {F_WS_O}')
                a(f's_load_dword s{k}, {sr(SWS,2)}, {sr(sT)}')
    tlb = opts.get('tlb', 0)
    if tlb & 1:
        a(f'''v_lshlrev_b32 {vr(vT1)}, 18, {vr(vLane)}
buffer_load_dword {vr(vFl)}, {vr(vT1)}, {sr(SWS,4)}, 0 offen''')
    if tlb & 2:
        a(f'''v_lshlrev_b32 {vr(vT1)}, 18, {vr(vLane)}
buffer_load_dword {vr(vT2)}, {vr(vT1)}, {sr(SOUT,4)}, 0 offen
buffer_load_dword {vr(vT3)}, {vr(vT1)}, {sr(SWO,4)}, 0 offen''')
    if tlb & 4:
        a(f'''v_lshlrev_b32 {vr(vT1)}, 21, {vr(vLane)}
buffer_load_dword {vr(vFl)}, {vr(vT1)}, {sr(SWS,4)}, 0 offen
buffer_load_dword {vr(vT4)}, {vr(vT1)}, {sr(SOUT,4)}, 0 offen
buffer_load_dword {vr(vT5)}, {vr(vT1)}, {sr(SWO,4)}, 0 offen''')
    a(f'v_lshlrev_b32 {vr(vL16)}, 4, {vr(vLane)}')
    vP = V(); vC8 = V(8); vPwa = V(); vFu = V(); vPo1 = V(); vPo2 = V(); vPo = V(); vLw = V()
    vW3 = [V() for _ in range(5)]
    vPf = [V() for _ in range(4)]
    vHX = [V() for _ in range(4)]
    vHW = [V() for _ in range(15)]
    vIx = V(); vIw = V(); vSx = V(); vSw = V(); vJ = [V() for _ in range(6)]
    done_alloc(V)
    if stag:
        a(f'''s_lshr_b32 {sr(sT)}, s2, 3
s_and_b32 {sr(sT2)}, s2, 1
s_lshl_b32 {sr(sT2)}, {sr(sT2)}, 5
s_add_u32 {sr(sT2)}, {sr(sT2)}, {sr(sT)}
s_lshl_b32 {sr(sT2)}, {sr(sT2)}, 5
v_and_b32 {vr(vT0)}, 31, {vr(vLane)}
v_add_u32 {vr(vT2)}, {sr(sT2)}, {vr(vT0)}
v_mul_u32_u24 {vr(vT2)}, 1280, {vr(vT2)}
v_lshrrev_b32 {vr(vT1)}, 5, {vr(vLane)}
v_lshl_add_u32 {vr(vIx)}, {vr(vT1)}, 7, {vr(vT2)}
buffer_load_dword {vr(vJ[0])}, {vr(vIx)}, {sr(SX,4)}, 0 offen
v_cmp_le_u32 vcc, 15, {vr(vT0)}
s_lshl_b32 {sr(sT)}, {sr(sT)}, 1
s_bfe_u32 {sr(sT2)}, s2, 0x10001
v_cndmask_b32_e64 {vr(vT2)}, 0, 1, vcc
v_mul_u32_u24 {vr(vT3)}, 15, {vr(vT2)}
v_sub_u32 {vr(vT3)}, {vr(vT0)}, {vr(vT3)}
v_lshl_add_u32 {vr(vT2)}, {vr(vT1)}, 6, {vr(vT2)}
v_add_u32 {vr(vT2)}, {sr(sT)}, {vr(vT2)}
v_mul_u32_u24 {vr(vT2)}, 3840, {vr(vT2)}
v_mul_u32_u24 {vr(vT4)}, 52, {vr(vT3)}
v_lshrrev_b32 {vr(vT4)}, 8, {vr(vT4)}
v_mul_u32_u24 {vr(vT4)}, {1280-640}, {vr(vT4)}
v_lshl_add_u32 {vr(vT4)}, {vr(vT3)}, 7, {vr(vT4)}
s_mul_i32 {sr(sT2)}, {sr(sT2)}, 640
v_add3_u32 {vr(vIw)}, {vr(vT2)}, {vr(vT4)}, {sr(sT2)}
v_cmp_le_u32 vcc, 30, {vr(vT0)}
v_mov_b32 {vr(vT2)}, {OOB}
s_mov_b32 {sr(sT)}, {128*3840}
v_cndmask_b32 {vr(vIw)}, {vr(vIw)}, {vr(vT2)}, vcc
buffer_load_dword {vr(vJ[1])}, {vr(vIw)}, {sr(SWQ,4)}, 0 offen''')
        if stag >= 2:
            a(f'buffer_load_dword {vr(vJ[2])}, {vr(vIx)}, {sr(SX,4)}, 0 offen offset:256')
            a(f'buffer_load_dword {vr(vJ[3])}, {vr(vIw)}, {sr(SWQ,4)}, {sr(sT)} offen')
        a(f'''s_bfe_u32 {sr(sT)}, s2, 0x30003
s_and_b32 {sr(sI)}, s2, 1
s_lshl_b32 {sr(sI)}, {sr(sI)}, 3
s_add_u32 {sr(sI)}, {sr(sI)}, {sr(sT)}
s_lshl_b32 {sr(sI)}, {sr(sI)}, 7
v_add_u32 {vr(vT0)}, {sr(sI)}, {vr(vLane)}
v_mul_u32_u24 {vr(vSx)}, 1280, {vr(vT0)}
v_mul_u32_u24 {vr(vT1)}, 4370, {vr(vLane)}
v_lshrrev_b32 {vr(vT1)}, 16, {vr(vT1)}
v_mul_u32_u24 {vr(vT2)}, 15, {vr(vT1)}
v_sub_u32 {vr(vT3)}, {vr(vLane)}, {vr(vT2)}
s_lshl_b32 {sr(sT)}, {sr(sT)}, 3
v_add_u32 {vr(vT1)}, {sr(sT)}, {vr(vT1)}
v_mul_u32_u24 {vr(vT1)}, 3840, {vr(vT1)}
v_mul_u32_u24 {vr(vT4)}, 52, {vr(vT3)}
v_lshrrev_b32 {vr(vT4)}, 8, {vr(vT4)}
v_mul_u32_u24 {vr(vT4)}, {1280-640}, {vr(vT4)}
v_lshl_add_u32 {vr(vT4)}, {vr(vT3)}, 7, {vr(vT4)}
v_add3_u32 {vr(vSw)}, {vr(vT1)}, {vr(vT4)}, {sr(sT2)}
v_cmp_le_u32 vcc, 60, {vr(vLane)}
v_mov_b32 {vr(vT2)}, {OOB}
s_lshr_b32 {sr(sM0a)}, s2, 6
v_cndmask_b32 {vr(vSw)}, {vr(vSw)}, {vr(vT2)}, vcc''')
    sgid = [0]
    def stag_pf():
        if not stag: return
        n = sgid[0]; sgid[0] += 1
        AH = opts.get('ahead', 2)
        a(f'''s_add_u32 {sr(sT)}, {sr(sKK)}, {1 + AH}
s_and_b32 {sr(sT2)}, {sr(sT)}, 3
s_cmp_eq_u32 {sr(sT2)}, {sr(sM0a)}
s_cselect_b32 {sr(sT2)}, {sr(sT)}, 99
s_cmp_lt_u32 {sr(sT2)}, {2*stag}
s_cselect_b32 {sr(sT2)}, 99, {sr(sT2)}
s_cmp_lt_u32 {sr(sT2)}, 10
s_cbranch_scc0 {name}_sp{n}
s_lshl_b32 {sr(sT2)}, {sr(sT)}, 7
buffer_load_dword {vr(vJ[0])}, {vr(vSx)}, {sr(SX,4)}, {sr(sT2)} offen
s_add_u32 {sr(sT2)}, {sr(sT2)}, {64*1280}
buffer_load_dword {vr(vJ[1])}, {vr(vSx)}, {sr(SX,4)}, {sr(sT2)} offen
s_mul_i32 {sr(sT2)}, {sr(sT)}, {64*3840}
buffer_load_dword {vr(vJ[2])}, {vr(vSw)}, {sr(SWQ,4)}, {sr(sT2)} offen
s_add_u32 {sr(sT2)}, {sr(sT2)}, {4*3840}
buffer_load_dword {vr(vJ[3])}, {vr(vSw)}, {sr(SWQ,4)}, {sr(sT2)} offen''')
        a.label(f'{name}_sp{n}')
    a(f'''s_lshl_b32 {sr(sT)}, {sr(sMt)}, 7
v_lshrrev_b32 {vr(vT0)}, 3, {vr(vLane)}
v_add_u32 {vr(vT0)}, {sr(sT)}, {vr(vT0)}
v_mul_u32_u24 {vr(vT0)}, 1280, {vr(vT0)}
v_lshrrev_b32 {vr(vT1)}, 4, {vr(vLane)}
v_and_b32 {vr(vT3)}, 7, {vr(vLane)}
v_xor_b32 {vr(vT2)}, {vr(vT1)}, {vr(vT3)}
v_lshl_add_u32 {vr(vHX[0])}, {vr(vT2)}, 4, {vr(vT0)}
v_xor_b32 {vr(vT2)}, 64, {vr(vHX[0])}
v_add_u32 {vr(vHX[1])}, {10240-1024}, {vr(vT2)}
v_add_u32 {vr(vHX[2])}, {2*(10240-1024)}, {vr(vHX[0])}
v_add_u32 {vr(vHX[3])}, {3*(10240-1024)}, {vr(vT2)}''')
    for pi in range(15):
        a(f's_sub_u32 {sr(sT)}, {sr(sT3)}, {(pi%4)*1024}')
        w_pattern(vHW[pi], f'v_add_u32 {vr(vT0)}, {64*pi}, {vr(vLane)}', sr(sT))
    def next_k():
        a(f'''s_add_u32 {sr(sKK)}, {sr(sKK)}, 1
s_cmp_eq_u32 {sr(sKK)}, 10
s_cselect_b32 {sr(sKK)}, 0, {sr(sKK)}
s_lshl_b32 {sr(sXo)}, {sr(sKK)}, 7
s_mul_i32 {sr(sWo)}, {sr(sKK)}, {64*3840}''')
    def issue_x():
        for jj in range(16):
            if jj % 4 == 0:
                a(f's_add_u32 m0, {sr(sSlot)}, {jj*1024}')
                a(f's_add_u32 {sr(sT)}, {sr(sXo)}, {jj*10240}')
            a(f'buffer_load_dwordx4 {vr(vHX[jj%4])}, {sr(SX,4)}, {sr(sT)} offen offset:{(jj%4)*1024} lds')
    def issue_w():
        for half in range(2):
            for pi in range(15):
                if pi % 4 == 0:
                    a(f's_add_u32 m0, {sr(sSlot)}, {XSZ + half*15360 + pi*1024}')
                    a(f's_add_u32 {sr(sT)}, {sr(sWo)}, {half*32*3840}')
                a(f'buffer_load_dwordx4 {vr(vHW[pi])}, {sr(SWQ,4)}, {sr(sT)} offen offset:{(pi%4)*1024} lds')
    def issue_stage():
        stag_pf(); next_k(); issue_x(); issue_w()
        a(f'''s_add_u32 {sr(sSlot)}, {sr(sSlot)}, {STG}
s_cmp_ge_u32 {sr(sSlot)}, {3*STG}
s_cselect_b32 {sr(sSlot)}, 0, {sr(sSlot)}''')
    pfw = opts.get('pfw', 1) and not stag and not opts.get('rot0')
    if pfw:
        a(f'''s_lshr_b32 {sr(sT)}, s2, 6
s_mul_i32 {sr(sT)}, {sr(sT)}, 3
s_add_u32 {sr(sT)}, {sr(sT)}, 8
s_bfe_u32 {sr(sT2)}, s2, 0x30003
s_lshr_b32 {sr(sI)}, {sr(sT2)}, 2
s_add_u32 {sr(sT)}, {sr(sT)}, {sr(sI)}
s_cmp_ge_u32 {sr(sT)}, 10
s_cselect_b32 {sr(sI)}, 10, 0
s_sub_u32 {sr(sT)}, {sr(sT)}, {sr(sI)}
s_lshl_b32 {sr(sT)}, {sr(sT)}, 6
s_and_b32 {sr(sT2)}, {sr(sT2)}, 3
s_lshl_b32 {sr(sT2)}, {sr(sT2)}, 4
s_add_u32 {sr(sT)}, {sr(sT)}, {sr(sT2)}
s_mul_i32 {sr(sT)}, {sr(sT)}, 3840
s_add_u32 {sr(sRdy)}, {sr(sT)}, {sr(sT3)}
v_lshrrev_b32 {vr(vT0)}, 3, {vr(vLane)}
v_mul_u32_u24 {vr(vT0)}, 3840, {vr(vT0)}
v_bfe_u32 {vr(vT1)}, {vr(vLane)}, 1, 2
v_mul_u32_u24 {vr(vT2)}, 1280, {vr(vT1)}
v_and_b32 {vr(vT3)}, 1, {vr(vLane)}
v_mul_u32_u24 {vr(vT3)}, 156, {vr(vT3)}
v_add3_u32 {vr(vT0)}, {vr(vT0)}, {vr(vT2)}, {vr(vT3)}
v_cmp_eq_u32 vcc, 3, {vr(vT1)}
v_mov_b32 {vr(vT2)}, {OOB}
s_nop 0
v_cndmask_b32 {vr(vPo)}, {vr(vT0)}, {vr(vT2)}, vcc''')
    a(f's_mov_b32 {sr(sSlot)}, {STG}')
    st1()
    a('s_barrier')
    st1()
    if elate:
        a(f'v_mov_b32 {vr(vT0)}, {F_EPOCH}')
        a(f'buffer_load_dword {vr(vEp)}, {vr(vT0)}, {sr(SWS,4)}, 0 offen{SC}')
    if pfw:
        a(f'buffer_load_dword {vr(vPf[0])}, {vr(vPo)}, {sr(SWQ,4)}, {sr(sRdy)} offen')
        a(f's_add_u32 {sr(sRdy)}, {sr(sRdy)}, {8*3840}')
        a(f'buffer_load_dword {vr(vPf[1])}, {vr(vPo)}, {sr(SWQ,4)}, {sr(sRdy)} offen')
    if opts.get('xfirst', 0):
        next_k(); issue_x()
        a(f's_mov_b32 {sr(sSrc)}, {sr(sWo)}')
        a(f's_mov_b32 {sr(sSlot)}, {2*STG}')
        next_k(); issue_x()
        st1()
        if opts.get('xfirst') == 1: a('s_barrier')
        a(f's_mov_b32 {sr(sSlot)}, {STG}')
        a(f's_mov_b32 {sr(sI)}, {sr(sWo)}')
        a(f's_mov_b32 {sr(sWo)}, {sr(sSrc)}')
        issue_w()
        if opts.get('xfirst') == 2: a('s_barrier')
        a(f's_mov_b32 {sr(sSlot)}, {2*STG}')
        a(f's_mov_b32 {sr(sWo)}, {sr(sI)}')
        issue_w()
        a(f's_mov_b32 {sr(sSlot)}, 0')
        a('s_waitcnt vmcnt(30)')
        a('s_barrier')
        st1()
        a(f's_mov_b32 {sr(sI)}, 1')
    else:
        issue_stage()
        st1()
        a('s_barrier')
        st1()
        a(f's_mov_b32 {sr(sI)}, 0')
    a.label(f'{name}_hg')
    issue_stage()
    a('s_waitcnt vmcnt(46)')
    a('s_barrier')
    a(f's_add_u32 {sr(sI)}, {sr(sI)}, 1')
    a(f's_cmp_lt_u32 {sr(sI)}, 8')
    a(f's_cbranch_scc1 {name}_hg')
    st1()
    a(f'''s_lshl_b32 {sr(sT)}, {sr(sB)}, 3
s_add_u32 {sr(sT)}, {sr(sT)}, {sr(sHg)}
s_lshl_b32 {sr(sT)}, {sr(sT)}, 8
s_add_u32 {sr(sT)}, {sr(sT)}, {F_FLAG1}
v_lshl_add_u32 {vr(vT0)}, {vr(vLane)}, 2, {sr(sT)}
v_cmp_gt_u32 vcc, 16, {vr(vLane)}
v_mov_b32 {vr(vT1)}, {OOB}
s_lshl_b32 {sr(sT)}, {sr(sB)}, 4
v_cndmask_b32 {vr(vPo1)}, {vr(vT1)}, {vr(vT0)}, vcc
s_add_u32 {sr(sT)}, {sr(sT)}, {sr(sMt3)}
s_lshl_b32 {sr(sT)}, {sr(sT)}, 8
s_add_u32 {sr(sT)}, {sr(sT)}, {F_FLAG2}
v_lshl_add_u32 {vr(vT0)}, {vr(vLane)}, 2, {sr(sT)}
v_cmp_gt_u32 vcc, 8, {vr(vLane)}
v_mov_b32 {vr(vLw)}, {LW_RDY}
s_mul_i32 {sr(sT3)}, {sr(sCg)}, 160
v_cndmask_b32 {vr(vPo2)}, {vr(vT1)}, {vr(vT0)}, vcc''')
    for r in range(5):
        a(f'''v_add_u32 {vr(vT0)}, {64*r}, {vr(vLane)}
v_mul_u32_u24 {vr(vT1)}, 6554, {vr(vT0)}
v_lshrrev_b32 {vr(vT1)}, 16, {vr(vT1)}
v_mul_u32_u24 {vr(vT1)}, {1280-160}, {vr(vT1)}
v_lshl_add_u32 {vr(vT0)}, {vr(vT0)}, 4, {vr(vT1)}
v_add_u32 {vr(vT0)}, {sr(sT3)}, {vr(vT0)}
v_subrev_u32 {vr(vW3[r])}, {(r%4)*1024}, {vr(vT0)}''')
    a(f'''s_lshr_b32 {sr(sT)}, s2, 3
s_mul_i32 {sr(sT)}, {sr(sT)}, {20*1280}
v_lshl_add_u32 {vr(vT0)}, {vr(vLane)}, 7, {sr(sT)}
v_cmp_gt_u32 vcc, 50, {vr(vLane)}
v_mov_b32 {vr(vT1)}, {OOB}
s_mov_b32 {sr(sRdy)}, 0
v_cndmask_b32 {vr(vPo)}, {vr(vT1)}, {vr(vT0)}, vcc
v_readfirstlane_b32 {sr(sTag)}, {vr(vEp)}
s_lshl_b32 {sr(sDone)}, 1, {sr(sMt)}
s_waitcnt vmcnt({15 if hsplit else 0})
s_add_u32 {sr(sTag)}, {sr(sTag)}, {TAGK}
s_barrier
s_waitcnt vmcnt(0)
{'s_barrier' if hsplit else 's_nop 0'}
v_bfe_u32 {vr(vT2)}, {vr(vLane)}, 1, 2
v_mul_u32_u24 {vr(vT2)}, 2560, {vr(vT2)}
v_and_b32 {vr(vT3)}, 1, {vr(vLane)}
v_mul_u32_u24 {vr(vT3)}, 640, {vr(vT3)}
v_add_u32 {vr(vT2)}, {vr(vT2)}, {vr(vT3)}
v_add_u32 {vr(vT2)}, {ONES}, {vr(vT2)}
v_mov_b32 {vr(vC8)}, 0x3f803f80
v_mov_b32 {vr(vC8+1)}, 0x3f803f80
v_mov_b32 {vr(vC8+2)}, 0x3f803f80
v_mov_b32 {vr(vC8+3)}, 0x3f803f80
v_mov_b32 {vr(vC8+4)}, 0
v_mov_b32 {vr(vC8+5)}, 0
v_mov_b32 {vr(vC8+6)}, 0
v_mov_b32 {vr(vC8+7)}, 0
s_barrier
ds_write_b128 {vr(vT2)}, {vr(vC8,4)}
ds_write_b128 {vr(vT2)}, {vr(vC8+4,4)} offset:16
ds_write_b128 {vr(vLw)}, {vr(vC8+4,4)}
s_waitcnt lgkmcnt(0)''')
    st0()
    a('s_barrier')
    a('s_barrier')
    gid = [0]
    def issue_group():
        n = gid[0]; gid[0] += 1
        a(f'''s_andn2_b32 {sr(sT)}, {sr(sRdy)}, {sr(sDone)}
s_cbranch_scc1 {name}_pd{n}
s_mov_b32 {sr(sCnt)}, {POLL_LIMIT}''')
        a.label(f'{name}_pl{n}')
        a(f'''buffer_load_dword {vr(vP)}, {vr(vPo1)}, {sr(SWS,4)}, 0 offen{SC}
s_waitcnt vmcnt(0)
v_cmp_eq_u32 vcc, {sr(sTag)}, {vr(vP)}
s_and_b32 {sr(sRdy)}, vcc_lo, 0xffff
s_andn2_b32 {sr(sT)}, {sr(sRdy)}, {sr(sDone)}
s_cbranch_scc1 {name}_pd{n}
s_sleep 1
s_sub_u32 {sr(sCnt)}, {sr(sCnt)}, 1
s_cmp_lg_u32 {sr(sCnt)}, 0
s_cbranch_scc1 {name}_pl{n}
s_mov_b32 {sr(sRdy)}, 0xffff
s_andn2_b32 {sr(sT)}, {sr(sRdy)}, {sr(sDone)}''')
        a.label(f'{name}_pd{n}')
        a(f'''s_lshl_b32 {sr(sT2)}, {sr(sT)}, 16
s_or_b32 {sr(sT)}, {sr(sT)}, {sr(sT2)}
s_lshr_b32 {sr(sT)}, {sr(sT)}, {sr(sMt)}
s_ff1_i32_b32 {sr(sT)}, {sr(sT)}
s_add_u32 {sr(sNeed)}, {sr(sT)}, {sr(sMt)}
s_and_b32 {sr(sNeed)}, {sr(sNeed)}, 15
s_bitset1_b32 {sr(sDone)}, {sr(sNeed)}
s_mul_i32 {sr(sT)}, {sr(sNeed)}, 10240
s_add_u32 {sr(sSrc)}, {sr(sKV)}, {sr(sT)}''')
        for hs in range(4):
            for q in range(10):
                if q % 4 == 0:
                    a(f's_add_u32 m0, {sr(sSlot)}, {hs*10240 + q*1024}')
                    a(f's_add_u32 {sr(sT)}, {sr(sSrc)}, {hs*KV_HEAD + q*1024}')
                a(f'buffer_load_dwordx4 {vr(vL16)}, {sr(SWS,4)}, {sr(sT)} offen offset:{(q%4)*1024}{SLD} lds')
        a(f'''s_add_u32 {sr(sSlot)}, {sr(sSlot)}, {SLOT}
s_cmp_ge_u32 {sr(sSlot)}, {3*SLOT}
s_cselect_b32 {sr(sSlot)}, 0, {sr(sSlot)}
s_add_u32 {sr(sI)}, {sr(sI)}, 1''')
    a(f's_mov_b32 {sr(sI)}, 1')
    a(f's_mov_b32 {sr(sSlot)}, {SLOT}')
    wq = [0]
    def wait_prog(val):
        n = wq[0]; wq[0] += 1
        a.label(f'{name}_wp{n}')
        a(f'''ds_read_b32 {vr(vP)}, {vr(vPwa)} offset:4
s_waitcnt lgkmcnt(0)
v_cmp_le_u32 vcc, {val}, {vr(vP)}
s_and_b32 {sr(sT)}, vcc_lo, 0x1ff
s_cmp_eq_u32 {sr(sT)}, 0x1ff
s_cbranch_scc1 {name}_wpd{n}
s_sleep 2
s_branch {name}_wp{n}''')
        a.label(f'{name}_wpd{n}')
    def set_full(val):
        a(f'v_mov_b32 {vr(vFu)}, {val}')
        a(f'ds_write_b32 {vr(vPwa)}, {vr(vFu)}')
    if nobar:
        a(f'v_min_u32 {vr(vPwa)}, 8, {vr(vLane)}')
        a(f'v_lshlrev_b32 {vr(vPwa)}, 3, {vr(vPwa)}')
        a(f'v_add_u32 {vr(vPwa)}, {LW_PW}, {vr(vPwa)}')
    issue_group()
    st0()
    a.label(f'{name}_hl')
    if nobar:
        a('s_waitcnt vmcnt(0)')
        set_full(sr(sI))
        a(f's_max_u32 {sr(sSrc)}, {sr(sI)}, 2')
        a(f's_sub_u32 {sr(sSrc)}, {sr(sSrc)}, 2')
        wait_prog(sr(sSrc))
        issue_group()
    else:
        issue_group()
        a('s_waitcnt vmcnt(40)')
        a('s_barrier')
    wid = [0]
    def wo_rows(r0, r1, lds):
        n = wid[0]; wid[0] += 1
        a(f's_mov_b32 {sr(sSrc)}, {r0*1280}')
        a(f's_mov_b32 {sr(sT2)}, {lds}')
        a.label(f'{name}_hw{n}x')
        a(f's_mov_b32 m0, {sr(sT2)}')
        a(f's_add_u32 {sr(sT)}, {sr(sT2)}, 4096')
        for r in range(4):
            a(f'buffer_load_dwordx4 {vr(vW3[r])}, {sr(SWO,4)}, {sr(sSrc)} offen offset:{r*1024} lds')
        a(f's_mov_b32 m0, {sr(sT)}')
        a(f's_add_u32 {sr(sT2)}, {sr(sT2)}, 5120')
        a(f'buffer_load_dwordx4 {vr(vW3[4])}, {sr(SWO,4)}, {sr(sSrc)} offen lds')
        a(f's_add_u32 {sr(sSrc)}, {sr(sSrc)}, {32*1280}')
        a(f's_cmp_lt_u32 {sr(sSrc)}, {r1*1280}')
        a(f's_cbranch_scc1 {name}_hw{n}x')
    a(f's_cmp_eq_u32 {sr(sI)}, 6')
    a(f's_cbranch_scc0 {name}_hnp')
    for q in range(4):
        a(f's_mov_b32 {sr(sT)}, {q*6400}')
        a(f'buffer_load_dword {vr(vPf[q])}, {vr(vPo)}, {sr(SWO,4)}, {sr(sT)} offen')
    a.label(f'{name}_hnp')
    a(f's_cmp_eq_u32 {sr(sI)}, 10')
    a(f's_cbranch_scc0 {name}_hnq')
    wo_rows(480, 640, QST)
    a.label(f'{name}_hnq')
    a(f's_cmp_lt_u32 {sr(sI)}, 16')
    a(f's_cbranch_scc1 {name}_hl')
    if nobar:
        a('s_waitcnt vmcnt(0)')
        set_full(64)
        wait_prog(14)
        wo_rows(0, 256, WO_LO)
        wait_prog(15)
    else:
        wo_rows(0, 256, WO_LO)
        a('s_waitcnt vmcnt(40)')
        a('s_barrier')
    wo_rows(256, 480, WO_LO + 40960)
    a(f'''s_lshl_b32 {sr(sT)}, {sr(sB)}, 4
s_add_u32 {sr(sT)}, {sr(sT)}, {sr(sMt3)}
s_lshl_b32 {sr(sT)}, {sr(sT)}, 1
s_lshr_b32 {sr(sT2)}, {sr(sCg)}, 2
s_add_u32 {sr(sT)}, {sr(sT)}, {sr(sT2)}
s_mul_i32 {sr(sT)}, {sr(sT)}, {32*2560}
s_and_b32 {sr(sT2)}, {sr(sCg)}, 3
s_mul_i32 {sr(sT2)}, {sr(sT2)}, 5120
s_add_u32 {sr(sT)}, {sr(sT)}, {sr(sT2)}
s_add_u32 {sr(sT)}, {sr(sT)}, {F_WS_O}
v_lshl_add_u32 {vr(vT0)}, {vr(vLane)}, 7, {sr(sT)}
v_cmp_gt_u32 vcc, 40, {vr(vLane)}
v_mov_b32 {vr(vT1)}, {OOB}
s_mov_b32 {sr(sDone)}, 0
s_mov_b32 {sr(sCnt)}, {POLL_LIMIT}
v_cndmask_b32 {vr(vPo)}, {vr(vT1)}, {vr(vT0)}, vcc''')
    pid = [0]
    pfo = opts.get('pfo', 2)
    def poll2():
        a(f'''buffer_load_dword {vr(vP)}, {vr(vPo2)}, {sr(SWS,4)}, 0 offen{SC}
s_sub_u32 {sr(sCnt)}, {sr(sCnt)}, 1
s_waitcnt vmcnt(0)
v_cmp_eq_u32 vcc, {sr(sTag)}, {vr(vP)}
s_cmp_eq_u32 {sr(sCnt)}, 0
s_cselect_b32 {sr(sT)}, 0xff, vcc_lo
s_lshr_b32 {sr(sT2)}, {sr(sT)}, 1
s_and_b32 {sr(sT)}, {sr(sT)}, {sr(sT2)}
s_and_b32 {sr(sRdy)}, {sr(sT)}, 0x55''')
        if pfo:
            a(f's_andn2_b32 {sr(sSrc)}, {sr(sRdy)}, {sr(sDone)}')
            a(f's_or_b32 {sr(sDone)}, {sr(sDone)}, {sr(sRdy)}')
            for j in range(4):
                n = pid[0]; pid[0] += 1
                a(f's_bitcmp1_b32 {sr(sSrc)}, {2*j}')
                a(f's_cbranch_scc0 {name}_po{n}')
                a(f's_mov_b32 {sr(sT)}, {j*20480}')
                a(f'buffer_load_dword {vr(vPf[j])}, {vr(vPo)}, {sr(SWS,4)}, {sr(sT)} offen{SC}')
                a.label(f'{name}_po{n}')
            if pfo == 2:
                a('s_waitcnt vmcnt(0)')
        a(f'v_mov_b32 {vr(vP)}, {sr(sRdy)}')
        a(f'ds_write_b32 {vr(vLw)}, {vr(vP)}')
    poll2()
    if nobar:
        wait_prog(16)
    else:
        a('s_barrier')
    st0()
    st0()
    a.label(f'{name}_p3l')
    poll2()
    a(f's_cmp_eq_u32 {sr(sRdy)}, 0x55')
    a(f's_cbranch_scc0 {name}_p3l')
    a.label(f'{name}_p3e')
    if st.on:
        while st.n < n_total - 1: st()
        st.rt(); st.flush(sW)
    a('s_endpgm')
    a.label(f'{name}_end')
    nv = maxv[0]
    assert nv <= 168, nv
    return a.text(), descriptor(name, nv, ns), f'; @launch kernel={name} grid=(256,1,1) block=(576,1,1) lds={LDS_TOTAL}', n_total
```

```python
from common import *
import math, struct

def f32bits(x):
    return struct.unpack('<I', struct.pack('<f', x))[0]
QSCALE = f32bits(math.log2(math.e) / math.sqrt(20.0))

XSZ = 16384
STG = XSZ + 30720
SLOT = 40960
LW_RDY = 3 * SLOT
LW_CNT = 3 * SLOT + 8
LW_CNT1 = 3 * SLOT + 12
LW_PW = 131392
ONES = 3 * SLOT + 128
QST = 131584
LDS_TOTAL = QST + 25600
WO_LO = SLOT
F_WS_KV = 0
F_WS_O = 64 * KV_HEAD
F_FLAG1 = F_WS_O + 2 * 32 * 32 * 2560
F_FLAG2 = F_FLAG1 + 16 * 256
F_EPOCH = F_FLAG2 + 32 * 256
F_WS_END = F_EPOCH + 256
TAGK = 0x9E3779B9
POLL_LIMIT = 1 << 16
OOB = 0x40000000

def gen_fused(name='fused_kernel', opts=None):
    opts = opts or {}
    a = Asm()
    SC = ' sc1'
    FL = {0: ' sc1', 1: ' sc0 sc1', 2: '', 3: ' sc1 nt', 4: ' nt'}
    SST = FL[opts.get('sst', 0)]
    SLD = FL[opts.get('sld', 0)]
    stag = opts.get('stag', 0)
    pub4 = opts.get('pub4', 0)
    hsplit = opts.get('hsplit', 1)
    nobar = opts.get('nobar', 0)
    loc = opts.get('loc', 1)
    sKK, sMt3, sCg = 3, 4, 5
    SX, SWQ, SWS, SDBG, SWO, SOUT = 8, 12, 16, 20, 24, 28
    sW, sB, sMt, sHg, sT, sT2, sT3 = 32, 33, 34, 35, 36, 37, 38
    sM0a, sM0b = 39, 40
    sDone = 41
    sHi = 42
    sG, sOff, sOo, sKV = 44, 45, 46, 47
    sM, sM2 = 48, 50
    sRdy, sCnt, sNeed, sI, sSlot, sSrc = 52, 53, 54, 55, 56, 57
    sXo, sWo = 53, 54
    sScale = 58
    sA, sTag = 60, 61
    sPub, sPub2 = 56, 57
    ns = 64
    vLane, vT0, vT1, vT2, vT3, vT4, vT5 = 1, 2, 3, 4, 5, 6, 7
    VBASE = 8
    st = Stamper(a, opts.get('stamp'), 0, 62, 6, vT0)
    if st.on: ns = st.nsgpr()
    sset = opts.get('sset', 0)
    def st0():
        if sset == 0: st()
    def st1():
        if sset == 1: st()
    def st4():
        if sset == 4: st()
    maxv = [0]
    def done_alloc(V):
        maxv[0] = max(maxv[0], V.n)

    a(f'.globl {name}\n.p2align 8\n.type {name},@function')
    a.label(name)
    if st.on:
        a('s_memrealtime s[62:63]\ns_memtime s[64:65]')
        st.n = 2
    dbgt = opts.get('dbgt')
    SWAP = 's_nop 0'
    if opts.get('swap', 0):
        SWAP = f's_lshr_b32 {sr(sT)}, s2, 1\ns_xor_b32 {sr(sT)}, {sr(sT)}, s2\ns_and_b32 {sr(sT)}, {sr(sT)}, 1\ns_mul_i32 {sr(sT)}, {sr(sT)}, 3\ns_xor_b32 s2, s2, {sr(sT)}'
    if dbgt:
        ns = 80
        a('s_memrealtime s[62:63]')
    def rts(k):
        if dbgt: a(f's_memrealtime s[{62+2*k}:{63+2*k}]\ns_waitcnt lgkmcnt(0)')
    a(f'''s_cmp_ge_u32 s2, 256
s_cbranch_scc1 {name}_done
{SWAP}
s_bfe_u32 {sr(sB)}, s2, 0x10002
s_load_dwordx4 {sr(SOUT,4)}, s[0:1], 48
s_load_dwordx2 s[6:7], s[0:1], 64
s_mul_i32 {sr(sT2)}, {sr(sB)}, 24
s_add_u32 s0, s0, {sr(sT2)}
s_addc_u32 s1, s1, 0
s_load_dwordx4 {sr(SX,4)}, s[0:1], 0
s_load_dwordx2 {sr(SWO,2)}, s[0:1], 16
v_lshrrev_b32 {vr(vT0)}, 6, v0
v_and_b32 {vr(vLane)}, 63, v0
s_lshr_b32 {sr(sT)}, s2, 3
v_readfirstlane_b32 {sr(sW)}, {vr(vT0)}
s_and_b32 {sr(sMt)}, {sr(sT)}, 7
s_lshr_b32 {sr(sHg)}, {sr(sT)}, 3
s_mul_i32 {sr(sKK)}, {sr(sHg)}, 3
s_add_u32 {sr(sKK)}, {sr(sKK)}, {sr(sMt)}
s_cmp_ge_u32 {sr(sKK)}, 10
s_cselect_b32 {sr(sT)}, 10, 0
s_sub_u32 {sr(sKK)}, {sr(sKK)}, {sr(sT)}
{f's_mov_b32 {sr(sKK)}, 0' if (stag or opts.get('rot0')) else 's_nop 0'}
s_and_b32 {sr(sT)}, s2, 1
s_lshl_b32 {sr(sT)}, {sr(sT)}, 3
s_add_u32 {sr(sMt)}, {sr(sMt)}, {sr(sT)}
s_and_b32 {sr(sT)}, s2, 2
s_lshl_b32 {sr(sT)}, {sr(sT)}, 1
s_add_u32 {sr(sHg)}, {sr(sHg)}, {sr(sT)}
s_mov_b32 {sr(sHi)}, 0
s_mov_b32 {sr(sHi+1)}, -1
s_bfe_u32 {sr(sCg)}, s2, 0x30003
s_and_b32 {sr(sMt3)}, s2, 1
s_lshl_b32 {sr(sMt3)}, {sr(sMt3)}, 2
s_and_b32 {sr(sT)}, s2, 2
s_add_u32 {sr(sMt3)}, {sr(sMt3)}, {sr(sT)}
s_lshl_b32 {sr(sMt3)}, {sr(sMt3)}, 1
s_lshr_b32 {sr(sT)}, s2, 6
s_add_u32 {sr(sMt3)}, {sr(sMt3)}, {sr(sT)}
s_lshl_b32 {sr(sT)}, {sr(sB)}, 3
s_add_u32 {sr(sT)}, {sr(sT)}, {sr(sHg)}
s_mul_i32 {sr(sKV)}, {sr(sT)}, {4*KV_HEAD}
s_mul_i32 {sr(sT3)}, {sr(sHg)}, 160
s_waitcnt lgkmcnt(0)
s_mov_b32 {sr(SWQ)}, {sr(SX+2)}
s_mov_b32 {sr(SWQ+1)}, {sr(SX+3)}
s_mov_b32 {sr(SDBG)}, {sr(SOUT+2)}
s_mov_b32 {sr(SDBG+1)}, {sr(SOUT+3)}
s_mov_b32 {sr(SWS)}, s6
s_mov_b32 {sr(SWS+1)}, s7
s_mov_b32 {sr(SX+2)}, {2048*1280}
s_mov_b32 {sr(SX+3)}, 0x20000
s_mov_b32 {sr(SWQ+2)}, {640*3840}
s_mov_b32 {sr(SWQ+3)}, 0x20000
s_mov_b32 {sr(SWS+2)}, {F_WS_END}
s_mov_b32 {sr(SWS+3)}, 0x20000
s_mov_b32 {sr(SDBG+2)}, 256
s_mov_b32 {sr(SDBG+3)}, 0x20000
s_mov_b32 {sr(SWO+2)}, {640*1280}
s_mov_b32 {sr(SWO+3)}, 0x20000
s_mov_b32 {sr(SOUT+2)}, {2048*2560}
s_mov_b32 {sr(SOUT+3)}, 0x20000''')
    st1()
    n_common = st.n
    a(f'''s_cmp_ge_u32 {sr(sW)}, 8
s_cbranch_scc1 {name}_helper''')

    def w_pattern(dst, first, last):
        a(f'''{first}
v_mul_u32_u24 {vr(vT1)}, 2185, {vr(vT0)}
v_lshrrev_b32 {vr(vT1)}, 16, {vr(vT1)}
v_mul_u32_u24 {vr(vT2)}, 30, {vr(vT1)}
v_sub_u32 {vr(vT0)}, {vr(vT0)}, {vr(vT2)}
v_and_b32 {vr(vT2)}, 0x13, {vr(vT1)}
v_bfe_u32 {vr(vT3)}, {vr(vT1)}, 2, 1
v_lshl_or_b32 {vr(vT2)}, {vr(vT3)}, 3, {vr(vT2)}
v_bfe_u32 {vr(vT3)}, {vr(vT1)}, 3, 1
v_lshl_or_b32 {vr(vT2)}, {vr(vT3)}, 2, {vr(vT2)}
v_mul_u32_u24 {vr(vT2)}, 3840, {vr(vT2)}
v_mul_u32_u24 {vr(vT1)}, 26, {vr(vT0)}
v_lshrrev_b32 {vr(vT1)}, 8, {vr(vT1)}
v_mul_u32_u24 {vr(vT1)}, {1280-160}, {vr(vT1)}
v_lshl_add_u32 {vr(vT0)}, {vr(vT0)}, 4, {vr(vT1)}
v_add3_u32 {vr(dst)}, {vr(vT0)}, {vr(vT2)}, {last}''')

    VP = VAlloc(VBASE)
    vIdx = VP()
    vaK1 = VP(); vaK2 = VP(); vaV = VP()
    vbK1 = VP(); vbK2 = VP(); vbV = VP(); vmK2 = VP(); vmV = VP()
    vQo = VP(); vQo2 = VP(); vQs1 = VP(); vQs2 = VP(); vPub = VP()
    VB2 = VP.n
    V = VAlloc(VB2)
    vEp7 = V(); vCi7 = V(); vZ7 = V()
    vXr = [[V(), V()] for _ in range(3)]
    vWa = [V() for _ in range(3)]
    vWb = [V() for _ in range(3)]
    vE = [V() for _ in range(6)]
    Xf = [[V(4), V(4)], [V(4), V(4)]]
    Wf = [[V(4) for _ in range(4)] for _ in range(2)]
    acc = [[V(4), V(4)] for _ in range(8)]
    done_alloc(V)
    vDX = Wf[0][0]; vDW = [Wf[0][0] + 1, Wf[0][0] + 2]
    a(f'''s_lshl_b32 {sr(sT)}, {sr(sMt)}, 7
s_lshl_b32 {sr(sT2)}, {sr(sW)}, 3
s_add_u32 {sr(sT)}, {sr(sT)}, {sr(sT2)}
v_lshrrev_b32 {vr(vT0)}, 3, {vr(vLane)}
v_add_u32 {vr(vT0)}, {sr(sT)}, {vr(vT0)}
v_mul_u32_u24 {vr(vT0)}, 1280, {vr(vT0)}
s_and_b32 {sr(sT)}, {sr(sW)}, 1
s_lshl_b32 {sr(sT)}, {sr(sT)}, 2
v_lshrrev_b32 {vr(vT1)}, 4, {vr(vLane)}
v_add_u32 {vr(vT2)}, {sr(sT)}, {vr(vT1)}
v_and_b32 {vr(vT3)}, 7, {vr(vLane)}
v_xor_b32 {vr(vT2)}, {vr(vT2)}, {vr(vT3)}
v_lshl_add_u32 {vr(vDX)}, {vr(vT2)}, 4, {vr(vT0)}
s_lshl_b32 {sr(sM0a)}, {sr(sW)}, 10
s_lshl_b32 {sr(sXo)}, {sr(sKK)}, 7
s_mul_i32 {sr(sWo)}, {sr(sKK)}, {64*3840}
s_mov_b32 m0, {sr(sM0a)}
s_add_u32 {sr(sT)}, {sr(sXo)}, 81920
buffer_load_dwordx4 {vr(vDX)}, {sr(SX,4)}, {sr(sXo)} offen lds
s_add_u32 m0, {sr(sM0a)}, 8192
s_add_u32 {sr(sT2)}, {sr(sW)}, 8
buffer_load_dwordx4 {vr(vDX)}, {sr(SX,4)}, {sr(sT)} offen lds
s_cmp_eq_u32 {sr(sW)}, 7
s_cselect_b32 {sr(sT2)}, 7, {sr(sT2)}
s_lshl_b32 {sr(sM0b)}, {sr(sT2)}, 10''')
    for pi, sm in ((0, sM0a), (1, sM0b)):
        a(f's_lshr_b32 {sr(sT)}, {sr(sm)}, 4')
        w_pattern(vDW[pi], f'v_add_u32 {vr(vT0)}, {sr(sT)}, {vr(vLane)}', sr(sT3))
        for half in range(2):
            a(f's_add_u32 m0, {sr(sm)}, {XSZ + half*15360}')
            a(f's_add_u32 {sr(sT)}, {sr(sWo)}, {half*32*3840}')
            a(f'buffer_load_dwordx4 {vr(vDW[pi])}, {sr(SWQ,4)}, {sr(sT)} offen lds')
    st1()
    a('s_barrier')
    st1()
    a(f'''s_cmp_eq_u32 {sr(sW)}, 7
s_cselect_b32 {sr(sM)}, 1, 0
s_mov_b32 {sr(sM+1)}, 0
v_mov_b32 {vr(vT1)}, {OOB}
v_cndmask_b32_e64 {vr(vZ7)}, {vr(vT1)}, 0, {sr(sM,2)}
v_mov_b32 {vr(vT0)}, {F_EPOCH}
buffer_load_dword {vr(vEp7)}, {vr(vT0)}, {sr(SWS,4)}, 0 offen{SC}''')
    a(f'''s_and_b32 {sr(sT)}, {sr(sW)}, 3
s_lshl_b32 {sr(sT)}, {sr(sT)}, 5
v_and_b32 {vr(vT0)}, 15, {vr(vLane)}
v_lshrrev_b32 {vr(vT1)}, 4, {vr(vLane)}
v_lshrrev_b32 {vr(vT2)}, 1, {vr(vT0)}
v_xor_b32 {vr(vT2)}, {vr(vT2)}, {vr(vT1)}
v_add_u32 {vr(vT0)}, {sr(sT)}, {vr(vT0)}
v_lshlrev_b32 {vr(vT0)}, 7, {vr(vT0)}
v_lshl_add_u32 {vr(vXr[0][0])}, {vr(vT2)}, 4, {vr(vT0)}
v_xor_b32 {vr(vXr[0][1])}, 64, {vr(vXr[0][0])}
v_lshrrev_b32 {vr(vT0)}, 5, {vr(vLane)}
v_lshlrev_b32 {vr(vT0)}, 4, {vr(vT0)}
v_bfe_u32 {vr(vT2)}, {vr(vLane)}, 4, 1
v_lshl_add_u32 {vr(vT0)}, {vr(vT2)}, 2, {vr(vT0)}
v_bfe_u32 {vr(vT2)}, {vr(vLane)}, 2, 2
v_add_u32 {vr(vT0)}, {vr(vT0)}, {vr(vT2)}
v_mul_u32_u24 {vr(vT0)}, 480, {vr(vT0)}
v_add_u32 {vr(vT5)}, {XSZ}, {vr(vT0)}
v_bfe_u32 {vr(vT2)}, {vr(vLane)}, 1, 1
v_mul_u32_u24 {vr(vT2)}, 40, {vr(vT2)}
v_and_b32 {vr(vT3)}, 1, {vr(vLane)}
v_lshl_add_u32 {vr(vT2)}, {vr(vT3)}, 4, {vr(vT2)}
v_add_u32 {vr(vWa[0])}, {vr(vT5)}, {vr(vT2)}
s_cmp_ge_u32 {sr(sW)}, 4
s_cselect_b32 {sr(sT)}, 8, 40
v_and_b32 {vr(vT2)}, 3, {vr(vLane)}
v_mad_u32_u24 {vr(vWb[0])}, {vr(vT2)}, {sr(sT)}, {vr(vT5)}''')
    for s_ in (1, 2):
        a(f'v_add_u32 {vr(vXr[s_][0])}, {s_*STG}, {vr(vXr[0][0])}')
        a(f'v_add_u32 {vr(vXr[s_][1])}, {s_*STG}, {vr(vXr[0][1])}')
        a(f'v_add_u32 {vr(vWa[s_])}, {s_*STG}, {vr(vWa[0])}')
        a(f'v_add_u32 {vr(vWb[s_])}, {s_*STG}, {vr(vWb[0])}')
    a(f'''s_lshr_b32 {sr(sT)}, {sr(sW)}, 1
s_mul_i32 {sr(sT2)}, {sr(sT)}, 10240
v_lshlrev_b32 {vr(vQo)}, 4, {vr(vLane)}
v_lshlrev_b32 {vr(vT0)}, 3, {vr(vLane)}
v_add_u32 {vr(vT0)}, 1024, {vr(vT0)}
v_mov_b32 {vr(vT1)}, {OOB}
v_cndmask_b32_e64 {vr(vQo2)}, {vr(vT0)}, {vr(vT1)}, {sr(sHi,2)}
v_add_u32 {vr(vbK1)}, {sr(sT2)}, {vr(vQo)}
v_add_u32 {vr(vT0)}, {sr(sT2)}, {vr(vT0)}
v_mov_b32 {vr(vT1)}, {ONES}
v_cndmask_b32_e64 {vr(vbK2)}, {vr(vT0)}, {vr(vT1)}, {sr(sHi,2)}
v_cndmask_b32_e64 {vr(vmK2)}, 1, 0, {sr(sHi,2)}
v_and_b32 {vr(vT2)}, 31, {vr(vLane)}
v_lshrrev_b32 {vr(vT3)}, 5, {vr(vLane)}
v_mul_u32_u24 {vr(vT3)}, 320, {vr(vT3)}
v_lshl_add_u32 {vr(vT3)}, {vr(vT2)}, 4, {vr(vT3)}
s_add_u32 {sr(sT3)}, {sr(sT2)}, 1280
v_add_u32 {vr(vT3)}, {sr(sT3)}, {vr(vT3)}
v_cmp_gt_u32 vcc, 20, {vr(vT2)}
v_mov_b32 {vr(vIdx)}, 0xdddddddd
v_mov_b32 {vr(vaK1)}, {vr(vbK1)}
v_cndmask_b32 {vr(vbV)}, {vr(vT1)}, {vr(vT3)}, vcc
v_cndmask_b32_e64 {vr(vmV)}, 0, 1, vcc
v_cmp_lt_u32 vcc, 20, {vr(vT2)}
v_add_u32 {vr(vT3)}, 16, {vr(vT1)}
v_mov_b32 {vr(vaK2)}, {vr(vbK2)}
v_cndmask_b32 {vr(vbV)}, {vr(vbV)}, {vr(vT3)}, vcc
v_mov_b32 {vr(vaV)}, {vr(vbV)}
s_mul_i32 {sr(sT2)}, {sr(sW)}, 2560
s_add_u32 {sr(sT2)}, {sr(sT2)}, {QST}
v_add_u32 {vr(vQs1)}, {sr(sT2)}, {vr(vQo)}
v_and_b32 {vr(vQs2)}, 31, {vr(vLane)}
v_lshlrev_b32 {vr(vQs2)}, 3, {vr(vQs2)}
s_add_u32 {sr(sT2)}, {sr(sT2)}, 1024
v_add_u32 {vr(vQs2)}, {sr(sT2)}, {vr(vQs2)}
s_lshl_b32 {sr(sT2)}, {sr(sB)}, 4
s_add_u32 {sr(sT2)}, {sr(sT2)}, {sr(sMt)}
s_lshl_b32 {sr(sT2)}, {sr(sT2)}, 1
s_and_b32 {sr(sT3)}, {sr(sW)}, 1
s_add_u32 {sr(sT2)}, {sr(sT2)}, {sr(sT3)}
s_lshl_b32 {sr(sT2)}, {sr(sT2)}, 5
s_lshl_b32 {sr(sT3)}, {sr(sHg)}, 2
s_add_u32 {sr(sT2)}, {sr(sT2)}, {sr(sT3)}
s_add_u32 {sr(sT2)}, {sr(sT2)}, {sr(sT)}
s_mul_i32 {sr(sOo)}, {sr(sT2)}, 2560
s_add_u32 {sr(sOo)}, {sr(sOo)}, {F_WS_O}
s_mov_b32 {sr(sPub2)}, {sr(sKV)}
s_mul_i32 {sr(sT)}, {sr(sT)}, {KV_HEAD}
s_add_u32 {sr(sKV)}, {sr(sKV)}, {sr(sT)}''')
    if pub4:
        a(f'''s_and_b32 {sr(sT)}, {sr(sW)}, 3
s_mul_i32 {sr(sT2)}, {sr(sT)}, 10240
v_add_u32 {vr(vPub)}, {sr(sT2)}, {vr(vQo)}
s_mul_i32 {sr(sT)}, {sr(sT)}, {KV_HEAD}
s_mul_i32 {sr(sT2)}, {sr(sMt)}, 10240
s_add_u32 {sr(sT)}, {sr(sT)}, {sr(sT2)}
s_add_u32 {sr(sPub)}, {sr(sT)}, {sr(sPub2)}''')
    else:
        a(f'''s_and_b32 {sr(sT)}, {sr(sW)}, 1
s_mul_i32 {sr(sT)}, {sr(sT)}, 5120
v_add_u32 {vr(vPub)}, {sr(sT)}, {vr(vbK1)}
s_mul_i32 {sr(sT2)}, {sr(sMt)}, 10240
s_add_u32 {sr(sT)}, {sr(sT)}, {sr(sT2)}
s_add_u32 {sr(sPub)}, {sr(sT)}, {sr(sKV)}
s_add_u32 {sr(sPub2)}, {sr(sPub)}, 4096''')
    for ct in range(8):
        for tt in range(2):
            for i in range(4):
                a(f'v_mov_b32 {vr(acc[ct][tt]+i)}, 0')
    a(f'''s_mov_b32 {sr(sScale)}, {QSCALE}
s_mov_b32 {sr(sScale+1)}, {QSCALE}
s_and_b32 {sr(sT3)}, {sr(sW)}, 3
v_and_b32 {vr(vT0)}, 15, {vr(vLane)}
v_lshrrev_b32 {vr(vT1)}, 4, {vr(vLane)}
v_lshrrev_b32 {vr(vT2)}, 2, {vr(vT0)}
v_and_b32 {vr(vT3)}, 3, {vr(vT0)}
v_lshl_add_u32 {vr(vT4)}, {vr(vT2)}, 3, {vr(vT3)}
v_lshrrev_b32 {vr(vT2)}, 1, {vr(vT1)}
v_and_b32 {vr(vT3)}, 1, {vr(vT1)}
s_mul_i32 {sr(sT)}, {sr(sT3)}, 2560
v_mul_u32_u24 {vr(vE[0])}, 10240, {vr(vT2)}
v_lshl_add_u32 {vr(vE[0])}, {vr(vT3)}, 9, {vr(vE[0])}
v_lshl_add_u32 {vr(vE[0])}, {vr(vT4)}, 4, {vr(vE[0])}
v_add_u32 {vr(vE[0])}, {sr(sT)}, {vr(vE[0])}
s_cmp_ge_u32 {sr(sW)}, 4
s_cbranch_scc1 {name}_p1b''')

    def p1_variant(wn):
        if wn == 0:
            kinds = [('P', 0, 0, 0), ('P', 0, 0, 1), ('P', 0, 1, 0), ('P', 0, 1, 1), ('T', 0, 0, 0), ('P', 1, 0, 0), ('P', 1, 0, 1), ('T', 1, 0, 0)]
            a(f'''s_add_u32 {sr(sT2)}, {sr(sT)}, 1024
v_mul_u32_u24 {vr(vE[1])}, 10240, {vr(vT1)}
v_lshl_add_u32 {vr(vE[1])}, {vr(vT4)}, 3, {vr(vE[1])}
v_add_u32 {vr(vE[1])}, {sr(sT2)}, {vr(vE[1])}
s_mul_i32 {sr(sT)}, {sr(sT3)}, 1280
s_add_u32 {sr(sT)}, {sr(sT)}, {QST}
v_mul_u32_u24 {vr(vE[2])}, 5120, {vr(vT2)}
v_lshl_add_u32 {vr(vE[2])}, {vr(vT3)}, 9, {vr(vE[2])}
v_lshl_add_u32 {vr(vE[2])}, {vr(vT0)}, 4, {vr(vE[2])}
v_add_u32 {vr(vE[2])}, {sr(sT)}, {vr(vE[2])}
s_add_u32 {sr(sT)}, {sr(sT)}, 1024
v_mul_u32_u24 {vr(vE[3])}, 5120, {vr(vT1)}
v_lshl_add_u32 {vr(vE[3])}, {vr(vT0)}, 3, {vr(vE[3])}
v_add_u32 {vr(vE[3])}, {sr(sT)}, {vr(vE[3])}''')
        else:
            kinds = [('P', 1, 1, 0), ('P', 1, 1, 1)] + [('V', 2, i, 0) for i in range(5)]
            a(f'''s_add_u32 {sr(sT)}, {sr(sT)}, 1280
v_mul_u32_u24 {vr(vT2)}, 640, {vr(vT2)}
v_mul_u32_u24 {vr(vT3)}, 320, {vr(vT3)}
v_add3_u32 {vr(vT5)}, {vr(vT2)}, {vr(vT3)}, {sr(sT)}''')
            for i in range(5):
                a(f'''v_add_u32 {vr(vT2)}, {16*i}, {vr(vT0)}
v_mul_u32_u24 {vr(vT3)}, 3277, {vr(vT2)}
v_lshrrev_b32 {vr(vT3)}, 16, {vr(vT3)}
v_mul_u32_u24 {vr(vT3)}, {10240-320}, {vr(vT3)}
v_lshl_add_u32 {vr(vT2)}, {vr(vT2)}, 4, {vr(vT3)}
v_add_u32 {vr(vE[1+i])}, {vr(vT2)}, {vr(vT5)}''')
        nct = len(kinds)
        grp = [list(range(0, 4)), list(range(4, nct))]
        def rd_x(step, s2):
            return [f'ds_read_b128 {vr(Xf[s2][tt],4)}, {vr(vXr[step%3][s2])} offset:{tt*2048}' for tt in range(2)]
        def rd_w(step, s2, h, idx):
            ty, sec, sub, e = kinds[grp[h][idx]]
            base = (vWa if ty == 'P' else vWb)[step % 3]
            col = sec*160 + {'P': sub*80 + e*8, 'T': 32, 'V': sub*32}[ty]
            return [f'ds_read_b64_tr_b16 {vr(Wf[h][idx]+2*rd,2)}, {vr(base)} offset:{(32*s2+8*rd)*480 + col}' for rd in range(2)]
        def mf(s2, h, idx):
            ct = grp[h][idx]
            out = []
            for tt in range(2):
                A, B = Wf[h][idx], Xf[s2][tt]
                if kinds[ct][0] == 'V':
                    A, B = B, A
                out.append(f'v_mfma_f32_16x16x32_bf16 {vr(acc[ct][tt],4)}, {vr(A,4)}, {vr(B,4)}, {vr(acc[ct][tt],4)}')
            return out
        n0, n1 = 2 + 2*len(grp[0]), 2*len(grp[1])
        def phase(s2, h, nxt):
            if nxt is not None and h == 0:
                for r in rd_x(*nxt): a(r)
            for idx in range(len(grp[h])):
                for m in mf(s2, h, idx): a(m)
                if nxt is not None:
                    for r in rd_w(nxt[0], nxt[1], h, idx): a(r)
        st1()
        a('s_waitcnt vmcnt(0)')
        a(f'v_readfirstlane_b32 {sr(sTag)}, {vr(vEp7)}')
        a('s_barrier')
        a(f's_add_u32 {sr(sTag)}, {sr(sTag)}, {TAGK}')
        rts(1)
        st()
        for r in rd_x(0, 0): a(r)
        for h in range(2):
            for idx in range(len(grp[h])):
                for r in rd_w(0, 0, h, idx): a(r)
        for step in range(10):
            if step == 9 and hsplit:
                a('s_barrier')
            a(f's_waitcnt lgkmcnt({n1})')
            phase(0, 0, (step, 1))
            a(f's_waitcnt lgkmcnt({n0})')
            phase(0, 1, (step, 1))
            a('s_waitcnt lgkmcnt(0)')
            a('s_barrier')
            if step == 0 and wn == 1:
                a(f'v_mov_b32 {vr(vCi7)}, 1')
                a(f'buffer_atomic_add {vr(vCi7)}, {vr(vZ7)}, {sr(SDBG,4)}, 0 offen sc0')
            if step in (0, 4): st0()
            if step in (0, 1, 2, 8): st1()
            if step in (8, 9): st4()
            nx = (step + 1, 0) if step < 9 else None
            phase(1, 0, nx)
            phase(1, 1, nx)
        st0(); st4()
        rts(2)
        if wn == 1:
            a(f'''s_waitcnt vmcnt(0)
v_cmp_eq_u32 vcc, 255, {vr(vCi7)}
v_add_u32 {vr(vEp7)}, {TAGK}, {vr(vEp7)}
v_mov_b32 {vr(vT1)}, {OOB}
s_mov_b32 {sr(sT)}, {F_EPOCH}
v_cndmask_b32 {vr(vZ7)}, {vr(vT1)}, {vr(vZ7)}, vcc
buffer_store_dword {vr(vEp7)}, {vr(vZ7)}, {sr(SWS,4)}, {sr(sT)} offen{SC}''')
        def scale(r0):
            a(f'v_pk_mul_f32 {vr(r0,2)}, {vr(r0,2)}, {sr(sScale,2)}')
            a(f'v_pk_mul_f32 {vr(r0+2,2)}, {vr(r0+2,2)}, {sr(sScale,2)}')
        def pack4(d, x, y):
            a(f'v_cvt_pk_bf16_f32 {vr(d)}, {vr(x)}, {vr(x+1)}')
            a(f'v_cvt_pk_bf16_f32 {vr(d+1)}, {vr(x+2)}, {vr(x+3)}')
            if y is not None:
                a(f'v_cvt_pk_bf16_f32 {vr(d+2)}, {vr(y)}, {vr(y+1)}')
                a(f'v_cvt_pk_bf16_f32 {vr(d+3)}, {vr(y+2)}, {vr(y+3)}')
        def stage(want):
          ct = 0
          while ct < nct:
            ty, sec, sub, e = kinds[ct]
            if (sec == 0) != want:
                ct += 1
                continue
            if ty == 'P':
                for tt in range(2):
                    x, y = acc[ct][tt], acc[ct+1][tt]
                    if sec == 0:
                        scale(x); scale(y)
                    pack4(x, x, y)
                    if sec == 0:
                        a(f'ds_write_b128 {vr(vE[2])}, {vr(x,4)} offset:{sub*10240 + tt*256}')
                    else:
                        a(f'ds_write_b128 {vr(vE[0])}, {vr(x,4)} offset:{sub*20480 + tt*64}')
                ct += 2
            elif ty == 'T':
                for tt in range(2):
                    x = acc[ct][tt]
                    if sec == 0:
                        scale(x)
                    pack4(x, x, None)
                    if sec == 0:
                        a(f'ds_write_b64 {vr(vE[3])}, {vr(x,2)} offset:{tt*128}')
                    else:
                        a(f'ds_write_b64 {vr(vE[1])}, {vr(x,2)} offset:{tt*32}')
                ct += 1
            else:
                x, y = acc[ct][0], acc[ct][1]
                pack4(x, x, y)
                a(f'ds_write_b128 {vr(vE[1+sub])}, {vr(x,4)}')
                ct += 1
        stage(False)
        a('s_waitcnt lgkmcnt(0)')
        st4()
        a('s_barrier')
        st4()
        PB = Xf[0][0]
        assert Wf[0][0] == PB + 16
        if pub4:
            if wn == 0:
                stage(True)
            else:
                for q in range(10):
                    a(f'ds_read_b128 {vr(PB+4*q,4)}, {vr(vPub)} offset:{q*1024}')
                for q in range(10):
                    if q == 4: a(f's_add_u32 {sr(sPub)}, {sr(sPub)}, 4096')
                    if q == 8: a(f's_add_u32 {sr(sPub)}, {sr(sPub)}, 4096')
                    a(f's_waitcnt lgkmcnt({9 - q})')
                    a(f'buffer_store_dwordx4 {vr(PB+4*q,4)}, {vr(vQo)}, {sr(SWS,4)}, {sr(sPub)} offen offset:{(q%4)*1024}{SST}')
        else:
          for q in range(5):
            a(f'ds_read_b128 {vr(PB+4*q,4)}, {vr(vPub)} offset:{q*1024}')
          stage(True)
          nq = 6 if wn == 0 else 0
          for q in range(5):
            a(f's_waitcnt lgkmcnt({4 - q + nq})')
            a(f'buffer_store_dwordx4 {vr(PB+4*q,4)}, {vr(vQo)}, {sr(SWS,4)}, {sr(sPub if q < 4 else sPub2)} offen offset:{(q%4)*1024}{SST}')
        a('s_nop 1')
        st4()
    n_st = st.n
    p1_variant(0)
    a(f's_branch {name}_p2')
    a.label(f'{name}_p1b')
    st.n = n_st
    p1_variant(1)
    a.label(f'{name}_p2')

    V = VAlloc(VB2 + 3)
    Q1 = [V(4), V(4)]; Q2 = [V(2), V(2)]
    K1 = [V(4), V(4)]; K2 = [V(2), V(2)]
    V0 = [V(4), V(4)]; V1 = [V(4), V(4)]
    O = [V(16), V(16)]
    S = [V(16), V(16)]
    vPw = V(2); vPa = V(); vPo_ = V(); vPg = V()
    done_alloc(V)
    for t in range(2):
        for i in range(16):
            a(f'v_mov_b32 {vr(O[t]+i)}, 0')
    for i in range(4):
        a(f'v_mov_b32 {vr(V1[1]+i)}, 0')
    a(f's_mov_b32 {sr(sG)}, 0')
    a(f's_mov_b32 {sr(sOff)}, 0')
    if nobar:
        a(f'''s_lshl_b32 {sr(sT)}, {sr(sW)}, 3
s_add_u32 {sr(sT2)}, {sr(sT)}, {LW_PW + 4}
s_xor_b32 {sr(sT)}, {sr(sT)}, 32
s_add_u32 {sr(sT)}, {sr(sT)}, {LW_PW}
v_mov_b32 {vr(vPa)}, {sr(sT)}
v_mov_b32 {vr(vPo_)}, {sr(sT2)}
v_mov_b32 {vr(vPg)}, 0''')
    a('s_waitcnt lgkmcnt(0)')
    a('s_barrier')
    st0(); st4()
    def rdK(s_, u, part='R'):
        if part != 'Rb': a(f'ds_read_b128 {vr(K1[s_],4)}, {vr(vaK1)} offset:{2560*u}')
        if part != 'Ra': a(f'ds_read_b64 {vr(K2[s_],2)}, {vr(vaK2)} offset:{2560*u}')
    def rdV(s_, u, part='R'):
        if part != 'Rb': a(f'ds_read_b128 {vr(V0[s_],4)}, {vr(vaV)} offset:{2560*u}')
        if part != 'Ra': a(f'ds_read_b128 {vr(V1[s_],4)}, {vr(vaV)} offset:{2560*u+640}')
    def qk16(t, s_):
        a(f'v_mfma_f32_32x32x16_bf16 {vr(S[t],16)}, {vr(K1[s_],4)}, {vr(Q1[t],4)}, 0')
    def qk8(t, s_):
        a(f'v_mfma_f32_32x32x8_bf16 {vr(S[t],16)}, {vr(K2[s_],2)}, {vr(Q2[t],2)}, {vr(S[t],16)}')
    def pv(t, s_, n):
        Vf = (V0, V1)[n][s_]
        a(f'v_smfmac_f32_32x32x32_bf16 {vr(O[t],16)}, {vr(Vf,4)}, {vr(S[t]+8*n,8)}, {vr(vIdx)}')
    def rowmax(t, dst):
        s = S[t]
        a(f'v_max3_f32 {vr(dst)}, {vr(s)}, {vr(s+1)}, {vr(s+2)}')
        for i in range(3, 15, 2):
            a(f'v_max3_f32 {vr(dst)}, {vr(dst)}, {vr(s+i)}, {vr(s+i+1)}')
        a(f'v_max_f32 {vr(dst)}, {vr(dst)}, {vr(s+15)}')
    def crosshalf(x, y):
        a(f'v_mov_b32 {vr(y)}, {vr(x)}')
        a('s_nop 1')
        a(f'v_permlane32_swap_b32 {vr(x)}, {vr(y)}')
        a('s_nop 1')
    for t in range(2):
        a(f'ds_read_b128 {vr(Q1[t],4)}, {vr(vQs1)} offset:{1280*t}')
        a(f'ds_read_b64 {vr(Q2[t],2)}, {vr(vQs2)} offset:{1280*t}')
    rdK(0, 0); rdK(1, 1); rdV(0, 0)
    a('s_waitcnt lgkmcnt(4)')
    for t in range(2):
        a(f'v_cndmask_b32_e64 {vr(Q2[t])}, {vr(Q2[t])}, 0, {sr(sHi,2)}')
        a(f'v_cndmask_b32_e64 {vr(Q2[t]+1)}, {vr(Q2[t]+1)}, 0, {sr(sHi,2)}')
    qk16(0, 0); qk8(0, 0); qk16(1, 0); qk8(1, 0)
    a('s_nop 9')
    for t in range(2):
        if t == 1: a('s_nop 1')
        rowmax(t, vT0)
        crosshalf(vT0, vT1)
        a(f'''v_max_f32 {vr(vT0)}, {vr(vT0)}, {vr(vT1)}
v_sub_f32 {vr(vT0)}, 0, {vr(vT0)}
v_and_b32 {vr(vT1)}, 0xffff0000, {vr(vT0)}
v_sub_f32 {vr(vT0)}, {vr(vT0)}, {vr(vT1)}
v_and_b32 {vr(vT2)}, 0xffff0000, {vr(vT0)}
v_sub_f32 {vr(vT0)}, {vr(vT0)}, {vr(vT2)}
v_lshrrev_b32 {vr(vT1)}, 16, {vr(vT1)}
v_or_b32 {vr(vT1)}, {vr(vT1)}, {vr(vT2)}
v_lshrrev_b32 {vr(vT0)}, 16, {vr(vT0)}
v_cndmask_b32_e64 {vr(Q2[t])}, {vr(Q2[t])}, {vr(vT1)}, {sr(sHi,2)}
v_cndmask_b32_e64 {vr(Q2[t]+1)}, {vr(Q2[t]+1)}, {vr(vT0)}, {sr(sHi,2)}''')
        if t == 0:
            qk16(0, 0)
            a('s_nop 0')
            qk8(0, 0)
    for i in range(8, 16):
        a(f'v_mov_b32 {vr(S[1]+i)}, 0')
    st4()
    a(f'''s_lshl_b32 {sr(sT)}, {sr(sB)}, 3
s_add_u32 {sr(sT)}, {sr(sT)}, {sr(sHg)}
s_lshl_b32 {sr(sT)}, {sr(sT)}, 6
s_add_u32 {sr(sT)}, {sr(sT)}, {sr(sMt)}
s_lshl_b32 {sr(sT)}, {sr(sT)}, 2
s_add_u32 {sr(sT)}, {sr(sT)}, {F_FLAG1}
s_mov_b64 exec, 1
v_mov_b32 {vr(vT0)}, 1
v_mov_b32 {vr(vT2)}, {LW_CNT1}
v_mov_b32 {vr(vT1)}, {sr(sTag)}
v_mov_b32 {vr(vT3)}, {sr(sT)}
s_waitcnt vmcnt(0)
ds_add_rtn_u32 {vr(vT0)}, {vr(vT2)}, {vr(vT0)}
s_waitcnt lgkmcnt(0)
v_readfirstlane_b32 {sr(sT)}, {vr(vT0)}
s_cmp_eq_u32 {sr(sT)}, 7
s_cbranch_scc0 {name}_nl1
buffer_store_dword {vr(vT1)}, {vr(vT3)}, {sr(SWS,4)}, 0 offen{SC}''')
    a.label(f'{name}_nl1')
    a('s_mov_b64 exec, -1')
    prio = opts.get('prio', 1)
    rts(3)
    st0(); st4()
    if sset == 2: st()
    a('.p2align 6')
    a.label(f'{name}_loop')
    def ex(t, i):
        a(f'v_exp_f32 {vr(S[t]+i)}, {vr(S[t]+i)}')
    scheds = {1: 'e e P2 e e e e Q16 e e e e Q8 R e e e e P1 W e e',
              2: 'e e P2 e e e e Q16 e e e Q8 R e e e e e P1 W e e',
              3: 'e e P2 e e e e Q16 e e e e Q8 e R e e e P1 e W e',
              4: 'e e P2 e e e Q16 e e e e Q8 R e e e e P1 W e e e',
              5: 'e e W P2 e e e e Ra Q16 e e e e Rb Q8 e e e e P1 e e',
              6: 'e e W P2 e e e e R Q16 e e e e Q8 e e e e P1 e e',
              7: 'e e W P2 e e e e Q16 e e e e Ra Q8 e e e e Rb P1 e e',
              8: 'e e P2 e e e e Ra Q16 e e e e Rb Q8 e e e e W P1 e e',
              9: 'e e P2 e e e e Q16 e e e e Q8 e e e e R W P1 e e',
              10: 'e e P2 Ra e e e e Q16 Rb e e e e Q8 W e e e e P1 e e',
              11: 'e e P2 Ra e e e e Q16 Rb e e e e Q8 e e e e P1 W e e',
              12: 'e e P2 R e e e e Q16 e e e e Q8 e e e e P1 W e e'}
    sched = scheds[opts.get('sched', 11)].split()
    unroll = opts.get('unroll', 1)
    ptab = {1: {(0, 0): 2, (1, 0): 1, (2, 0): 0, (3, 0): 3},
            2: {(3, 0): 1, (1, 0): 0},
            3: {(3, 0): 3, (3, 1): 2, (0, 1): 1, (1, 1): 0},
            6: {(3, 0): 3, (0, 1): 2, (1, 1): 1, (2, 0): 0}}.get(prio, {})
    for rep in range(unroll):
      for j in range(4):
        for t in range(2):
            pj = j if t == 1 else j - 1
            nj = j if t == 0 else j + 1
            if (j, t) in ptab and nobar != 1:
                a(f's_setprio {ptab[(j, t)]}')
            e = 0
            for tok in sched:
                if tok == 'e':
                    ex(t, e); e += 1
                elif tok == 'P2':
                    pv(1 - t, pj % 2, 1)
                elif tok == 'P1':
                    pv(t, j % 2, 0)
                elif tok == 'Q16':
                    qk16(1 - t, nj % 2)
                elif tok == 'Q8':
                    qk8(1 - t, nj % 2)
                elif tok == 'W':
                    a(f's_waitcnt lgkmcnt({3 if nobar and (j, t) in ((2, 0), (2, 1)) else 2})')
                elif tok == 'Rb':
                    if t == 0: rdV((j + 1) % 2, (j + 1) % 4, 'Rb')
                    else: rdK(j % 2, (j + 2) % 4, 'Rb')
                elif tok in ('R', 'Ra'):
                    if t == 0:
                        if j == 3:
                            a(f'v_mad_u32_u24 {vr(vaV)}, {vr(vmV)}, {sr(sOff)}, {vr(vbV)}')
                        rdV((j + 1) % 2, (j + 1) % 4, tok)
                        if j == 2 and nobar:
                            a(f'ds_read_b64 {vr(vPw,2)}, {vr(vPa)}')
                    else:
                        if j == 2:
                            a(f'''s_add_u32 {sr(sOff)}, {sr(sOff)}, {SLOT}
s_cmp_ge_u32 {sr(sOff)}, {3*SLOT}
s_cselect_b32 {sr(sOff)}, 0, {sr(sOff)}''')
                            if nobar:
                                a(f'''v_add_u32 {vr(vPg)}, 1, {vr(vPg)}
s_add_u32 {sr(sT3)}, {sr(sG)}, {rep + 1}
s_waitcnt lgkmcnt(0)
v_readfirstlane_b32 {sr(sT)}, {vr(vPw)}
v_readfirstlane_b32 {sr(sT2)}, {vr(vPw+1)}
ds_write_b32 {vr(vPo_)}, {vr(vPg)}''')
                                if nobar == 1:
                                    a(f'''s_setprio 0
s_cmp_lt_u32 {sr(sT2)}, {sr(sT3)}
s_cbranch_scc1 {name}_lo{rep}
s_setprio 1''')
                                    a.label(f'{name}_lo{rep}')
                                elif nobar == 2:
                                    a(f's_add_u32 {sr(sT2)}, {sr(sT2)}, {1 + opts.get("slack", 0)}')
                                    a(f's_min_u32 {sr(sT)}, {sr(sT)}, {sr(sT2)}')
                                a(f's_cmp_gt_u32 {sr(sT)}, {sr(sT3)}')
                                a(f's_cbranch_scc0 {name}_spin{rep}')
                                a.label(f'{name}_spun{rep}')
                            else:
                                a('s_waitcnt lgkmcnt(0)')
                                a('s_barrier')
                            if sset == 2 and st.on:
                                for K in (0, 1, 2, 3, 8, 14):
                                    a(f's_cmp_eq_u32 {sr(sG)}, {K}')
                                    a(f's_cbranch_scc0 {name}_sk{K}')
                                    st()
                                    a.label(f'{name}_sk{K}')
                            a(f'''v_add_u32 {vr(vaK1)}, {sr(sOff)}, {vr(vbK1)}
v_mad_u32_u24 {vr(vaK2)}, {vr(vmK2)}, {sr(sOff)}, {vr(vbK2)}''')
                        rdK(j % 2, (j + 2) % 4, tok)
            assert e == 16
    a(f'''s_add_u32 {sr(sG)}, {sr(sG)}, {unroll}
s_cmp_lt_u32 {sr(sG)}, 16
s_cbranch_scc1 {name}_loop''')
    a('s_nop 1')
    pv(1, 1, 1)
    if ptab or nobar:
        a('s_setprio 0')
    st0()
    if sset in (2, 3): st()
    L = [vT2, vT3]
    rts(4)
    a('s_waitcnt lgkmcnt(0)')
    a(f's_mov_b32 {sr(sI)}, 0')
    a.label(f'{name}_store')
    a(f's_mov_b32 {sr(sM)}, 0xaaaaaaaa')
    a(f's_mov_b32 {sr(sM+1)}, 0xaaaaaaaa')
    for t in range(2):
        a(f'v_mov_b32 {vr(vT0)}, {vr(O[t]+8)}')
        crosshalf(vT0, L[t])
        a(f'v_rcp_f32 {vr(vT0)}, {vr(L[t])}')
        a('s_nop 0')
        for i in range(12):
            a(f'v_mul_f32 {vr(O[t]+i)}, {vr(O[t]+i)}, {vr(vT0)}')
        for i in range(4):
            a(f'v_cvt_pk_bf16_f32 {vr(S[t]+i)}, {vr(O[t]+2*i)}, {vr(O[t]+2*i+1)}')
        a(f'buffer_store_dwordx4 {vr(S[t],4)}, {vr(vQo)}, {sr(SWS,4)}, {sr(sOo)} offen offset:{1024*t}{SST}')
        for i in range(2):
            a(f'v_cvt_pk_bf16_f32 {vr(S[0]+4+2*t+i)}, {vr(O[t]+8+2*i)}, {vr(O[t]+8+2*i+1)}')
    ta, tb, X, Y = S[0]+4, S[0]+6, S[0]+8, S[0]+12
    a(f'''v_cndmask_b32_e64 {vr(X)}, {vr(tb)}, {vr(ta)}, {sr(sM,2)}
v_cndmask_b32_e64 {vr(X+1)}, {vr(tb+1)}, {vr(ta+1)}, {sr(sM,2)}
v_lshrrev_b32 {vr(vT0)}, 1, {vr(vLane)}
v_and_b32 {vr(vT1)}, 1, {vr(vLane)}
v_mov_b32_dpp {vr(X+2)}, {vr(X)} quad_perm:[1,0,3,2] row_mask:0xf bank_mask:0xf
v_mov_b32_dpp {vr(X+3)}, {vr(X+1)} quad_perm:[1,0,3,2] row_mask:0xf bank_mask:0xf
v_lshlrev_b32 {vr(vT0)}, 4, {vr(vT0)}
v_lshl_add_u32 {vr(vT0)}, {vr(vT1)}, 8, {vr(vT0)}
v_mov_b32 {vr(vT1)}, {OOB}
v_cndmask_b32_e64 {vr(Y)}, {vr(ta)}, {vr(X+2)}, {sr(sM,2)}
v_cndmask_b32_e64 {vr(Y+1)}, {vr(ta+1)}, {vr(X+3)}, {sr(sM,2)}
v_cndmask_b32_e64 {vr(Y+2)}, {vr(X+2)}, {vr(tb)}, {sr(sM,2)}
v_cndmask_b32_e64 {vr(Y+3)}, {vr(X+3)}, {vr(tb+1)}, {sr(sM,2)}
v_cndmask_b32_e64 {vr(vT0)}, {vr(vT0)}, {vr(vT1)}, {sr(sHi,2)}
buffer_store_dwordx4 {vr(Y,4)}, {vr(vT0)}, {sr(SWS,4)}, {sr(sOo)} offen offset:2048{SST}''')
    st0()
    for t in range(2):
        sm = sM if t == 0 else sM2
        a(f'v_mul_f32 {vr(vT1)}, 0, {vr(O[t])}')
        for i in range(1, 12):
            a(f'v_fmac_f32 {vr(vT1)}, 0, {vr(O[t]+i)}')
        a(f'v_add_f32 {vr(vT1)}, {vr(vT1)}, {vr(L[t])}')
        a(f'v_cmp_gt_f32 vcc, 0x53800000, {vr(vT1)}')
        a(f's_mov_b64 {sr(sm,2)}, vcc')
        a(f'v_cmp_lt_f32 vcc, 0x35800000, {vr(vT1)}')
        a(f's_and_b64 {sr(sm,2)}, {sr(sm,2)}, vcc')
    a(f'''s_and_b64 {sr(sM,2)}, {sr(sM,2)}, {sr(sM2,2)}
s_cmp_eq_u64 {sr(sM,2)}, -1
s_cselect_b32 {sr(sT)}, 1, {sr(sI)}
s_cmp_eq_u32 {sr(sT)}, 0
s_cbranch_scc1 {name}_fallback''')

    V = VAlloc(VBASE)
    vAo = V(); vAt = V(); vWm0 = V(); vWt0 = V(); vOo = V(); vRd = V(); vDn = V()
    vWm = [V() for _ in range(4)]; vWt = [V() for _ in range(4)]
    acc3 = [V(4) for _ in range(5)]
    assert V.n <= S[0]
    Wg = [[V(4) for _ in range(5)] for _ in range(2)]
    A = [[V(4) for _ in range(5)] for _ in range(4)]
    done_alloc(V)
    a(f'''s_lshl_b32 {sr(sT)}, {sr(sB)}, 4
s_add_u32 {sr(sT)}, {sr(sT)}, {sr(sMt3)}
s_lshl_b32 {sr(sT)}, {sr(sT)}, 1
s_lshr_b32 {sr(sT2)}, {sr(sW)}, 2
s_add_u32 {sr(sT)}, {sr(sT)}, {sr(sT2)}
s_mul_i32 {sr(sA)}, {sr(sT)}, {32*2560}
s_add_u32 {sr(sA)}, {sr(sA)}, {F_WS_O}
s_and_b32 {sr(sT)}, {sr(sW)}, 1
s_lshl_b32 {sr(sT)}, {sr(sT)}, 4
s_bfe_u32 {sr(sT2)}, {sr(sW)}, 0x10001
v_and_b32 {vr(vT0)}, 15, {vr(vLane)}
v_add_u32 {vr(vT0)}, {sr(sT)}, {vr(vT0)}
v_lshlrev_b32 {vr(vT0)}, 4, {vr(vT0)}
v_lshrrev_b32 {vr(vT1)}, 5, {vr(vLane)}
v_mul_u32_u24 {vr(vT1)}, 2560, {vr(vT1)}
v_bfe_u32 {vr(vT2)}, {vr(vLane)}, 4, 1
v_lshl_add_u32 {vr(vT1)}, {vr(vT2)}, 9, {vr(vT1)}
s_lshl_b32 {sr(sT3)}, {sr(sT2)}, 10
v_add3_u32 {vr(vAo)}, {vr(vT0)}, {vr(vT1)}, {sr(sT3)}
v_lshrrev_b32 {vr(vT1)}, 4, {vr(vLane)}
v_mul_u32_u24 {vr(vT1)}, 2560, {vr(vT1)}
s_lshl_b32 {sr(sT3)}, {sr(sT2)}, 8
s_add_u32 {sr(sT3)}, {sr(sT3)}, 2048
v_lshrrev_b32 {vr(vT0)}, 1, {vr(vT0)}
v_add3_u32 {vr(vAt)}, {vr(vT0)}, {vr(vT1)}, {sr(sT3)}
v_bfe_u32 {vr(vT0)}, {vr(vLane)}, 2, 2
v_lshrrev_b32 {vr(vT1)}, 5, {vr(vLane)}
v_mul_u32_u24 {vr(vT1)}, 20, {vr(vT1)}
v_bfe_u32 {vr(vT2)}, {vr(vLane)}, 4, 1
v_lshl_add_u32 {vr(vT1)}, {vr(vT2)}, 2, {vr(vT1)}
v_add_u32 {vr(vT1)}, {vr(vT1)}, {vr(vT0)}
v_mul_u32_u24 {vr(vT1)}, 160, {vr(vT1)}
v_and_b32 {vr(vT2)}, 3, {vr(vLane)}
v_lshl_add_u32 {vr(vWm0)}, {vr(vT2)}, 3, {vr(vT1)}
v_lshrrev_b32 {vr(vT1)}, 4, {vr(vLane)}
v_mul_u32_u24 {vr(vT1)}, 20, {vr(vT1)}
v_add3_u32 {vr(vT1)}, {vr(vT1)}, {vr(vT0)}, 16
v_mul_u32_u24 {vr(vT1)}, 160, {vr(vT1)}
v_lshl_add_u32 {vr(vWt0)}, {vr(vT2)}, 3, {vr(vT1)}
s_lshl_b32 {sr(sT)}, {sr(sMt3)}, 7
s_lshl_b32 {sr(sT2)}, {sr(sW)}, 4
s_add_u32 {sr(sT)}, {sr(sT)}, {sr(sT2)}
v_and_b32 {vr(vT0)}, 15, {vr(vLane)}
v_add_u32 {vr(vT0)}, {sr(sT)}, {vr(vT0)}
v_mul_u32_u24 {vr(vT0)}, 2560, {vr(vT0)}
v_lshrrev_b32 {vr(vT1)}, 4, {vr(vLane)}
v_lshl_add_u32 {vr(vT0)}, {vr(vT1)}, 3, {vr(vT0)}
s_mul_i32 {sr(sT)}, {sr(sB)}, 1280
s_mul_i32 {sr(sT2)}, {sr(sCg)}, 160
s_add_u32 {sr(sT)}, {sr(sT)}, {sr(sT2)}
v_add_u32 {vr(vOo)}, {sr(sT)}, {vr(vT0)}
v_mov_b32 {vr(vRd)}, {LW_RDY}
s_lshl_b32 {sr(sT)}, {sr(sB)}, 4
s_add_u32 {sr(sT)}, {sr(sT)}, {sr(sMt)}
s_lshl_b32 {sr(sT)}, {sr(sT)}, 6
s_add_u32 {sr(sT)}, {sr(sT)}, {sr(sHg)}
s_lshl_b32 {sr(sT)}, {sr(sT)}, 2
s_add_u32 {sr(sT)}, {sr(sT)}, {F_FLAG2}
v_mov_b32 {vr(vDn)}, {sr(sT)}
v_add_u32 {vr(vWm0)}, {WO_LO}, {vr(vWm0)}
v_add_u32 {vr(vWt0)}, {WO_LO}, {vr(vWt0)}
s_and_b32 {sr(sT3)}, {sr(sCg)}, {opts.get('rot3', 3)}
s_lshl_b32 {sr(sT3)}, {sr(sT3)}, 1
s_mov_b32 {sr(sDone)}, 0''')
    for t in range(5):
        for i in range(4):
            a(f'v_mov_b32 {vr(acc3[t]+i)}, 0')
    tid_ = [0]
    base3 = st.n
    if sset == 3: st.n += 4
    def read_rdy():
        a(f'''ds_read_b64 {vr(vT0,2)}, {vr(vRd)}
s_waitcnt lgkmcnt(0)
v_and_b32 {vr(vT0)}, {vr(vT0)}, {vr(vT1)}
s_nop 0
v_readfirstlane_b32 {sr(sT)}, {vr(vT0)}
s_andn2_b32 {sr(sT)}, {sr(sT)}, {sr(sDone)}''')
    def loads(s_):
        a(f'''s_lshl_b32 {sr(sT2)}, {sr(sT)}, 8
s_or_b32 {sr(sT)}, {sr(sT)}, {sr(sT2)}
s_lshr_b32 {sr(sT)}, {sr(sT)}, {sr(sT3)}
s_ff1_i32_b32 {sr(sT)}, {sr(sT)}
s_add_u32 {sr(sT)}, {sr(sT)}, {sr(sT3)}
s_and_b32 {sr(sT)}, {sr(sT)}, 7
s_bitset1_b32 {sr(sDone)}, {sr(sT)}
s_mul_i32 {sr(sT2)}, {sr(sT)}, 10240
s_add_u32 {sr(sT2)}, {sr(sT2)}, {sr(sA)}
s_cmp_eq_u32 {sr(sT)}, 6
s_mul_i32 {sr(sT)}, {sr(sT)}, 12800
s_cselect_b32 {sr(sT)}, {QST - WO_LO}, {sr(sT)}''')
        for p in range(4):
            a(f'buffer_load_dwordx4 {vr(A[s_][p],4)}, {vr(vAo)}, {sr(SWS,4)}, {sr(sT2)} offen{SLD}')
            if p == 0:
                a(f'buffer_load_dwordx2 {vr(A[s_][4],2)}, {vr(vAt)}, {sr(SWS,4)}, {sr(sT2)} offen{SLD}')
            if p == 2:
                a(f'buffer_load_dwordx2 {vr(A[s_][4]+2,2)}, {vr(vAt)}, {sr(SWS,4)}, {sr(sT2)} offen{SLD}')
            if p < 3:
                a(f's_add_u32 {sr(sT2)}, {sr(sT2)}, 5120')
        a(f'v_add_u32 {vr(vWm[s_])}, {sr(sT)}, {vr(vWm0)}')
        a(f'v_add_u32 {vr(vWt[s_])}, {sr(sT)}, {vr(vWt0)}')
        if sset == 3 and st.on:
            a(f's_memtime s[{62+2*(base3+s_)}:{63+2*(base3+s_)}]\ns_waitcnt lgkmcnt(0)')
    def take_group(s_):
        n = tid_[0]; tid_[0] += 1
        a.label(f'{name}_tg{n}')
        read_rdy()
        a(f'''s_cbranch_scc1 {name}_tgd{n}
s_sleep 1
s_branch {name}_tg{n}''')
        a.label(f'{name}_tgd{n}')
        loads(s_)
    a('s_waitcnt vmcnt(0)')
    a(f'''s_mov_b64 exec, 1
v_mov_b32 {vr(vT0)}, 1
ds_add_rtn_u32 {vr(vT0)}, {vr(vRd)}, {vr(vT0)} offset:8
v_mov_b32 {vr(vT1)}, {sr(sTag)}
v_mov_b32 {vr(vT2)}, 0xff
s_waitcnt lgkmcnt(0)
v_readfirstlane_b32 {sr(sT)}, {vr(vT0)}
s_cmp_eq_u32 {sr(sT)}, 7
s_cbranch_scc0 {name}_nl
buffer_store_dword {vr(vT1)}, {vr(vDn)}, {sr(SWS,4)}, 0 offen{SC}
ds_write_b32 {vr(vRd)}, {vr(vT2)} offset:4''')
    a.label(f'{name}_nl')
    a('s_mov_b64 exec, -1')
    if sset == 3: st()
    def rdW3(fs, j, p, t):
        out = []
        for rd in range(2):
            if p < 4:
                base, off = vWm[j], (20*(2*p) + 8*rd)*160 + t*32
            else:
                base, off = vWt[j], (20*(4*rd))*160 + t*32
            out.append(f'ds_read_b64_tr_b16 {vr(Wg[fs][t]+2*rd,2)}, {vr(base)} offset:{off}')
        return out
    if opts.get('evt', 1):
        st0()
        sJ = sG
        a(f's_mov_b32 {sr(sI)}, 0')
        a(f's_mov_b32 {sr(sJ)}, 0')
        a.label(f'{name}_ev')
        a(f's_cmp_lt_u32 {sr(sI)}, 4')
        a(f's_cbranch_scc0 {name}_evc')
        read_rdy()
        a(f's_cbranch_scc0 {name}_evn')
        for i in range(4):
            if i < 3:
                a(f's_cmp_eq_u32 {sr(sI)}, {i}')
                a(f's_cbranch_scc0 {name}_evt{i}')
            loads(i)
            a(f's_mov_b32 {sr(sI)}, {i+1}')
            a(f's_branch {name}_ev')
            a.label(f'{name}_evt{i}')
        a.label(f'{name}_evn')
        a(f'''s_getreg_b32 {sr(sT)}, hwreg(HW_REG_IB_STS)
s_bfe_u32 {sr(sT2)}, {sr(sT)}, 0x20016
s_lshl_b32 {sr(sT2)}, {sr(sT2)}, 4
s_and_b32 {sr(sT)}, {sr(sT)}, 15
s_or_b32 {sr(sT)}, {sr(sT)}, {sr(sT2)}
s_add_u32 {sr(sT)}, {sr(sT)}, 6
s_sub_u32 {sr(sT2)}, {sr(sI)}, {sr(sJ)}
s_mul_i32 {sr(sT2)}, {sr(sT2)}, 6
s_cmp_le_u32 {sr(sT)}, {sr(sT2)}
s_cbranch_scc1 {name}_evc
s_sleep 1
s_branch {name}_ev''')
        a.label(f'{name}_evc')
        for j in range(4):
            if j < 3:
                a(f's_cmp_eq_u32 {sr(sJ)}, {j}')
                a(f's_cbranch_scc0 {name}_evk{j}')
            for p in range(2):
                for t in range(5):
                    for r in rdW3(p, j, p, t): a(r)
            for k in range(4, j + 1, -1):
                a(f's_cmp_eq_u32 {sr(sI)}, {k}')
                a(f's_cbranch_scc0 {name}_evw{j}_{k}')
                a(f's_waitcnt vmcnt({6*(k-j-1)})')
                a(f's_branch {name}_evx{j}')
                a.label(f'{name}_evw{j}_{k}')
            a('s_waitcnt vmcnt(0)')
            a.label(f'{name}_evx{j}')
            if sset == 3 and j in (0, 3): st()
            for p in range(5):
                fs = p % 2
                a(f's_waitcnt lgkmcnt({10 if p < 4 else 0})')
                for t in range(5):
                    a(f'v_mfma_f32_16x16x32_bf16 {vr(acc3[t],4)}, {vr(Wg[fs][t],4)}, {vr(A[j][p],4)}, {vr(acc3[t],4)}')
                    if p + 2 < 5:
                        for r in rdW3(fs, j, p + 2, t): a(r)
            if j < 3:
                a(f's_mov_b32 {sr(sJ)}, {j+1}')
                a(f's_branch {name}_ev')
                a.label(f'{name}_evk{j}')
    else:
        st0()
        steps = [(j, p) for j in range(4) for p in range(5)]
        for j in range(4):
            take_group(j)
        for n in range(2):
            for t in range(5):
                for r in rdW3(n, *steps[n], t): a(r)
        left = {0: 5, 1: 3, 2: 2, 3: 0, 4: 0}
        for n, (j, p) in enumerate(steps):
            fs = n % 2
            a(f's_waitcnt vmcnt({6*(3-j) + left[p]}) lgkmcnt({10 if n < 19 else 0})')
            if sset == 3 and n in (0, 18): st()
            for t in range(5):
                a(f'v_mfma_f32_16x16x32_bf16 {vr(acc3[t],4)}, {vr(Wg[fs][t],4)}, {vr(A[j][p],4)}, {vr(acc3[t],4)}')
                if n + 2 < 20:
                    for r in rdW3(fs, *steps[n+2], t): a(r)

    a('s_nop 3')
    st0()
    if sset == 3: st()
    OUTF = {0: '', 1: ' nt', 2: ' sc1'}[opts.get('outf', 0)]
    for t in range(5):
        a(f'v_cvt_pk_bf16_f32 {vr(acc3[t])}, {vr(acc3[t])}, {vr(acc3[t]+1)}')
        a(f'v_cvt_pk_bf16_f32 {vr(acc3[t]+1)}, {vr(acc3[t]+2)}, {vr(acc3[t]+3)}')
        a(f'buffer_store_dwordx2 {vr(acc3[t],2)}, {vr(vOo)}, {sr(SOUT,4)}, 0 offen offset:{t*32}{OUTF}')
    if dbgt:
        a('s_waitcnt vmcnt(0)')
        rts(5)
        a('s_mov_b64 exec, 1')
        a(f's_not_b32 s62, s62')
        for k in range(6):
            a(f'v_mov_b32 {vr(vT0)}, {4+4*k}')
            a(f'v_mov_b32 {vr(vT1)}, s{62+2*k}')
            a(f'buffer_atomic_umax {vr(vT1)}, {vr(vT0)}, {sr(SDBG,4)}, 0 offen')
            a('s_nop 1')
    if st.on:
        a('s_waitcnt vmcnt(0)')
    st(); st.rt(); st.flush(sW)
    n_total = st.n
    a.label(f'{name}_done')
    a('s_endpgm')

    if nobar:
        for rep in range(unroll):
            a.label(f'{name}_spin{rep}')
            a(f'''ds_read_b64 {vr(vPw,2)}, {vr(vPa)}
s_waitcnt lgkmcnt(0)
v_readfirstlane_b32 {sr(sT)}, {vr(vPw)}''')
            if nobar == 2:
                a(f'''v_readfirstlane_b32 {sr(sT2)}, {vr(vPw+1)}
s_add_u32 {sr(sT2)}, {sr(sT2)}, {1 + opts.get("slack", 0)}
s_min_u32 {sr(sT)}, {sr(sT)}, {sr(sT2)}''')
            a(f'''s_cmp_gt_u32 {sr(sT)}, {sr(sT3)}
s_cbranch_scc0 {name}_spin{rep}
s_branch {name}_spun{rep}''')
    a.label(f'{name}_fallback')
    M = [vT4, vT5]
    vVo = vaV
    a(f'''v_cndmask_b32_e64 {vr(Q2[0])}, {vr(Q2[0])}, 0, {sr(sHi,2)}
v_cndmask_b32_e64 {vr(Q2[0]+1)}, {vr(Q2[0]+1)}, 0, {sr(sHi,2)}
v_cndmask_b32_e64 {vr(Q2[1])}, {vr(Q2[1])}, 0, {sr(sHi,2)}
v_cndmask_b32_e64 {vr(Q2[1]+1)}, {vr(Q2[1]+1)}, 0, {sr(sHi,2)}
v_mov_b32 {vr(M[0])}, 0xff800000
v_mov_b32 {vr(M[1])}, 0xff800000
v_mov_b32 {vr(vT1)}, {OOB}
s_lshr_b32 {sr(sT)}, {sr(sW)}, 1
s_mul_i32 {sr(sT)}, {sr(sT)}, 10240
v_subrev_u32 {vr(vT0)}, {sr(sT)}, {vr(vbV)}
v_cmp_eq_u32 vcc, 1, {vr(vmV)}
s_mov_b32 {sr(sT)}, {sr(sKV)}
s_mov_b32 {sr(sG)}, 0
v_cndmask_b32 {vr(vVo)}, {vr(vT1)}, {vr(vT0)}, vcc
s_mov_b64 {sr(sM2,2)}, vcc
s_waitcnt vmcnt(0)''')
    a.label(f'{name}_fb1')
    a(f'''buffer_load_dwordx4 {vr(K1[0],4)}, {vr(vQo)}, {sr(SWS,4)}, {sr(sT)} offen{SC}
buffer_load_dwordx2 {vr(K2[0],2)}, {vr(vQo2)}, {sr(SWS,4)}, {sr(sT)} offen{SC}
s_waitcnt vmcnt(0)''')
    qk16(0, 0); qk16(1, 0); qk8(0, 0); qk8(1, 0)
    a('s_nop 15')
    for t in range(2):
        rowmax(t, vT0)
        a(f'v_max_f32 {vr(M[t])}, {vr(M[t])}, {vr(vT0)}')
    a(f'''s_add_u32 {sr(sT)}, {sr(sT)}, 2560
s_add_u32 {sr(sG)}, {sr(sG)}, 1
s_cmp_lt_u32 {sr(sG)}, 64
s_cbranch_scc1 {name}_fb1''')
    for t in range(2):
        crosshalf(M[t], vT1)
        a(f'v_max_f32 {vr(M[t])}, {vr(M[t])}, {vr(vT1)}')
        for i in range(16):
            a(f'v_mov_b32 {vr(O[t]+i)}, 0')
    a(f's_mov_b32 {sr(sT)}, {sr(sKV)}')
    a(f's_mov_b32 {sr(sG)}, 0')
    a(f'v_mov_b32 {vr(vT1)}, 0x3f803f80')
    a.label(f'{name}_fb2')
    a(f'''buffer_load_dwordx4 {vr(K1[0],4)}, {vr(vQo)}, {sr(SWS,4)}, {sr(sT)} offen{SC}
buffer_load_dwordx2 {vr(K2[0],2)}, {vr(vQo2)}, {sr(SWS,4)}, {sr(sT)} offen{SC}
buffer_load_dwordx4 {vr(V0[0],4)}, {vr(vVo)}, {sr(SWS,4)}, {sr(sT)} offen{SC}
buffer_load_dwordx4 {vr(V1[0],4)}, {vr(vVo)}, {sr(SWS,4)}, {sr(sT)} offen offset:640{SC}
s_waitcnt vmcnt(0)''')
    qk16(0, 0); qk16(1, 0); qk8(0, 0); qk8(1, 0)
    for i in range(4):
        a(f'v_cndmask_b32_e64 {vr(V0[0]+i)}, {vr(vT1)}, {vr(V0[0]+i)}, {sr(sM2,2)}')
        a(f'v_cndmask_b32_e64 {vr(V1[0]+i)}, {vr(vT1)}, {vr(V1[0]+i)}, {sr(sM2,2)}')
    a('s_nop 15')
    for t in range(2):
        for i in range(16):
            a(f'v_sub_f32 {vr(S[t]+i)}, {vr(S[t]+i)}, {vr(M[t])}')
        for i in range(16):
            ex(t, i)
    a('s_nop 1')
    for t in range(2):
        pv(t, 0, 0); pv(t, 0, 1)
    a(f'''s_add_u32 {sr(sT)}, {sr(sT)}, 2560
s_add_u32 {sr(sG)}, {sr(sG)}, 1
s_cmp_lt_u32 {sr(sG)}, 64
s_cbranch_scc1 {name}_fb2''')
    a('s_nop 15')
    a(f's_mov_b32 {sr(sI)}, 1')
    a(f's_branch {name}_store')

    a.label(f'{name}_helper')
    st.n = n_common
    V = VAlloc(VBASE)
    vEp = V(); vL16 = V(); vFl = V()
    VH = V.n
    a('s_setprio 3')
    if opts.get('cpf', 0):
        a(f'''s_getpc_b64 {sr(sM,2)}
{name}_pc:
s_sub_u32 {sr(sM)}, {sr(sM)}, {name}_pc - {name}
s_subb_u32 {sr(sM+1)}, {sr(sM+1)}, 0
s_lshr_b32 {sr(sT)}, s2, 3
v_lshlrev_b32 {vr(vT0)}, 5, {vr(vLane)}
v_add_u32 {vr(vT0)}, {sr(sT)}, {vr(vT0)}
v_lshlrev_b32 {vr(vT0)}, 7, {vr(vT0)}
v_min_u32 {vr(vT0)}, {name}_end - {name} - 4, {vr(vT0)}
s_mov_b64 exec, 0xfff
global_load_dword {vr(vFl)}, {vr(vT0)}, {sr(sM,2)}
s_mov_b64 exec, -1''')
    elate = opts.get('elate', 0)
    if not elate:
        a(f'v_mov_b32 {vr(vT0)}, {F_EPOCH}')
        a(f'buffer_load_dword {vr(vEp)}, {vr(vT0)}, {sr(SWS,4)}, 0 offen{SC}')
    stl = opts.get('stl', 0)
    if stl:
        ns = max(ns, 72)
        if stl & 1:
            a(f's_mul_i32 {sr(sT)}, {sr(sMt3)}, {128*2560}')
            a(f's_load_dword s64, {sr(SOUT,2)}, {sr(sT)}')
            a(f's_add_u32 {sr(sT)}, {sr(sT)}, {128*2560-4}')
            a(f's_load_dword s65, {sr(SOUT,2)}, {sr(sT)}')
        if stl & 2:
            a(f's_load_dword s66, {sr(SWO,2)}, 0')
        if stl & 4:
            a(f's_load_dword s67, {sr(SWS,2)}, {sr(sKV)}')
            a(f's_add_u32 {sr(sT)}, {sr(sKV)}, {4*KV_HEAD-4}')
            a(f's_load_dword s68, {sr(SWS,2)}, {sr(sT)}')
        if stl & 8:
            for k, m in ((69, sMt), (70, sMt3)):
                a(f's_lshl_b32 {sr(sT)}, {sr(sB)}, 4')
                a(f's_add_u32 {sr(sT)}, {sr(sT)}, {sr(m)}')
                a(f's_mul_i32 {sr(sT)}, {sr(sT)}, {2*32*2560}')
                a(f's_add_u32 {sr(sT)}, {sr(sT)}, {F_WS_O}')
                a(f's_load_dword s{k}, {sr(SWS,2)}, {sr(sT)}')
    tlb = opts.get('tlb', 0)
    if tlb & 1:
        a(f'''v_lshlrev_b32 {vr(vT1)}, 18, {vr(vLane)}
buffer_load_dword {vr(vFl)}, {vr(vT1)}, {sr(SWS,4)}, 0 offen''')
    if tlb & 2:
        a(f'''v_lshlrev_b32 {vr(vT1)}, 18, {vr(vLane)}
buffer_load_dword {vr(vT2)}, {vr(vT1)}, {sr(SOUT,4)}, 0 offen
buffer_load_dword {vr(vT3)}, {vr(vT1)}, {sr(SWO,4)}, 0 offen''')
    if tlb & 4:
        a(f'''v_lshlrev_b32 {vr(vT1)}, 21, {vr(vLane)}
buffer_load_dword {vr(vFl)}, {vr(vT1)}, {sr(SWS,4)}, 0 offen
buffer_load_dword {vr(vT4)}, {vr(vT1)}, {sr(SOUT,4)}, 0 offen
buffer_load_dword {vr(vT5)}, {vr(vT1)}, {sr(SWO,4)}, 0 offen''')
    a(f'v_lshlrev_b32 {vr(vL16)}, 4, {vr(vLane)}')
    vP = V(); vC8 = V(8); vPwa = V(); vFu = V(); vPo1 = V(); vPo2 = V(); vPo = V(); vLw = V()
    vW3 = [V() for _ in range(5)]
    vPf = [V() for _ in range(4)]
    vHX = [V() for _ in range(4)]
    vHW = [V() for _ in range(15)]
    vIx = V(); vIw = V(); vSx = V(); vSw = V(); vJ = [V() for _ in range(6)]
    done_alloc(V)
    if stag:
        a(f'''s_lshr_b32 {sr(sT)}, s2, 3
s_and_b32 {sr(sT2)}, s2, 1
s_lshl_b32 {sr(sT2)}, {sr(sT2)}, 5
s_add_u32 {sr(sT2)}, {sr(sT2)}, {sr(sT)}
s_lshl_b32 {sr(sT2)}, {sr(sT2)}, 5
v_and_b32 {vr(vT0)}, 31, {vr(vLane)}
v_add_u32 {vr(vT2)}, {sr(sT2)}, {vr(vT0)}
v_mul_u32_u24 {vr(vT2)}, 1280, {vr(vT2)}
v_lshrrev_b32 {vr(vT1)}, 5, {vr(vLane)}
v_lshl_add_u32 {vr(vIx)}, {vr(vT1)}, 7, {vr(vT2)}
buffer_load_dword {vr(vJ[0])}, {vr(vIx)}, {sr(SX,4)}, 0 offen
v_cmp_le_u32 vcc, 15, {vr(vT0)}
s_lshl_b32 {sr(sT)}, {sr(sT)}, 1
s_bfe_u32 {sr(sT2)}, s2, 0x10001
v_cndmask_b32_e64 {vr(vT2)}, 0, 1, vcc
v_mul_u32_u24 {vr(vT3)}, 15, {vr(vT2)}
v_sub_u32 {vr(vT3)}, {vr(vT0)}, {vr(vT3)}
v_lshl_add_u32 {vr(vT2)}, {vr(vT1)}, 6, {vr(vT2)}
v_add_u32 {vr(vT2)}, {sr(sT)}, {vr(vT2)}
v_mul_u32_u24 {vr(vT2)}, 3840, {vr(vT2)}
v_mul_u32_u24 {vr(vT4)}, 52, {vr(vT3)}
v_lshrrev_b32 {vr(vT4)}, 8, {vr(vT4)}
v_mul_u32_u24 {vr(vT4)}, {1280-640}, {vr(vT4)}
v_lshl_add_u32 {vr(vT4)}, {vr(vT3)}, 7, {vr(vT4)}
s_mul_i32 {sr(sT2)}, {sr(sT2)}, 640
v_add3_u32 {vr(vIw)}, {vr(vT2)}, {vr(vT4)}, {sr(sT2)}
v_cmp_le_u32 vcc, 30, {vr(vT0)}
v_mov_b32 {vr(vT2)}, {OOB}
s_mov_b32 {sr(sT)}, {128*3840}
v_cndmask_b32 {vr(vIw)}, {vr(vIw)}, {vr(vT2)}, vcc
buffer_load_dword {vr(vJ[1])}, {vr(vIw)}, {sr(SWQ,4)}, 0 offen''')
        if stag >= 2:
            a(f'buffer_load_dword {vr(vJ[2])}, {vr(vIx)}, {sr(SX,4)}, 0 offen offset:256')
            a(f'buffer_load_dword {vr(vJ[3])}, {vr(vIw)}, {sr(SWQ,4)}, {sr(sT)} offen')
        a(f'''s_bfe_u32 {sr(sT)}, s2, 0x30003
s_and_b32 {sr(sI)}, s2, 1
s_lshl_b32 {sr(sI)}, {sr(sI)}, 3
s_add_u32 {sr(sI)}, {sr(sI)}, {sr(sT)}
s_lshl_b32 {sr(sI)}, {sr(sI)}, 7
v_add_u32 {vr(vT0)}, {sr(sI)}, {vr(vLane)}
v_mul_u32_u24 {vr(vSx)}, 1280, {vr(vT0)}
v_mul_u32_u24 {vr(vT1)}, 4370, {vr(vLane)}
v_lshrrev_b32 {vr(vT1)}, 16, {vr(vT1)}
v_mul_u32_u24 {vr(vT2)}, 15, {vr(vT1)}
v_sub_u32 {vr(vT3)}, {vr(vLane)}, {vr(vT2)}
s_lshl_b32 {sr(sT)}, {sr(sT)}, 3
v_add_u32 {vr(vT1)}, {sr(sT)}, {vr(vT1)}
v_mul_u32_u24 {vr(vT1)}, 3840, {vr(vT1)}
v_mul_u32_u24 {vr(vT4)}, 52, {vr(vT3)}
v_lshrrev_b32 {vr(vT4)}, 8, {vr(vT4)}
v_mul_u32_u24 {vr(vT4)}, {1280-640}, {vr(vT4)}
v_lshl_add_u32 {vr(vT4)}, {vr(vT3)}, 7, {vr(vT4)}
v_add3_u32 {vr(vSw)}, {vr(vT1)}, {vr(vT4)}, {sr(sT2)}
v_cmp_le_u32 vcc, 60, {vr(vLane)}
v_mov_b32 {vr(vT2)}, {OOB}
s_lshr_b32 {sr(sM0a)}, s2, 6
v_cndmask_b32 {vr(vSw)}, {vr(vSw)}, {vr(vT2)}, vcc''')
    sgid = [0]
    def stag_pf():
        if not stag: return
        n = sgid[0]; sgid[0] += 1
        AH = opts.get('ahead', 2)
        a(f'''s_add_u32 {sr(sT)}, {sr(sKK)}, {1 + AH}
s_and_b32 {sr(sT2)}, {sr(sT)}, 3
s_cmp_eq_u32 {sr(sT2)}, {sr(sM0a)}
s_cselect_b32 {sr(sT2)}, {sr(sT)}, 99
s_cmp_lt_u32 {sr(sT2)}, {2*stag}
s_cselect_b32 {sr(sT2)}, 99, {sr(sT2)}
s_cmp_lt_u32 {sr(sT2)}, 10
s_cbranch_scc0 {name}_sp{n}
s_lshl_b32 {sr(sT2)}, {sr(sT)}, 7
buffer_load_dword {vr(vJ[0])}, {vr(vSx)}, {sr(SX,4)}, {sr(sT2)} offen
s_add_u32 {sr(sT2)}, {sr(sT2)}, {64*1280}
buffer_load_dword {vr(vJ[1])}, {vr(vSx)}, {sr(SX,4)}, {sr(sT2)} offen
s_mul_i32 {sr(sT2)}, {sr(sT)}, {64*3840}
buffer_load_dword {vr(vJ[2])}, {vr(vSw)}, {sr(SWQ,4)}, {sr(sT2)} offen
s_add_u32 {sr(sT2)}, {sr(sT2)}, {4*3840}
buffer_load_dword {vr(vJ[3])}, {vr(vSw)}, {sr(SWQ,4)}, {sr(sT2)} offen''')
        a.label(f'{name}_sp{n}')
    a(f'''s_lshl_b32 {sr(sT)}, {sr(sMt)}, 7
v_lshrrev_b32 {vr(vT0)}, 3, {vr(vLane)}
v_add_u32 {vr(vT0)}, {sr(sT)}, {vr(vT0)}
v_mul_u32_u24 {vr(vT0)}, 1280, {vr(vT0)}
v_lshrrev_b32 {vr(vT1)}, 4, {vr(vLane)}
v_and_b32 {vr(vT3)}, 7, {vr(vLane)}
v_xor_b32 {vr(vT2)}, {vr(vT1)}, {vr(vT3)}
v_lshl_add_u32 {vr(vHX[0])}, {vr(vT2)}, 4, {vr(vT0)}
v_xor_b32 {vr(vT2)}, 64, {vr(vHX[0])}
v_add_u32 {vr(vHX[1])}, {10240-1024}, {vr(vT2)}
v_add_u32 {vr(vHX[2])}, {2*(10240-1024)}, {vr(vHX[0])}
v_add_u32 {vr(vHX[3])}, {3*(10240-1024)}, {vr(vT2)}''')
    for pi in range(15):
        a(f's_sub_u32 {sr(sT)}, {sr(sT3)}, {(pi%4)*1024}')
        w_pattern(vHW[pi], f'v_add_u32 {vr(vT0)}, {64*pi}, {vr(vLane)}', sr(sT))
    def next_k():
        a(f'''s_add_u32 {sr(sKK)}, {sr(sKK)}, 1
s_cmp_eq_u32 {sr(sKK)}, 10
s_cselect_b32 {sr(sKK)}, 0, {sr(sKK)}
s_lshl_b32 {sr(sXo)}, {sr(sKK)}, 7
s_mul_i32 {sr(sWo)}, {sr(sKK)}, {64*3840}''')
    def issue_x():
        for jj in range(16):
            if jj % 4 == 0:
                a(f's_add_u32 m0, {sr(sSlot)}, {jj*1024}')
                a(f's_add_u32 {sr(sT)}, {sr(sXo)}, {jj*10240}')
            a(f'buffer_load_dwordx4 {vr(vHX[jj%4])}, {sr(SX,4)}, {sr(sT)} offen offset:{(jj%4)*1024} lds')
    def issue_w():
        for half in range(2):
            for pi in range(15):
                if pi % 4 == 0:
                    a(f's_add_u32 m0, {sr(sSlot)}, {XSZ + half*15360 + pi*1024}')
                    a(f's_add_u32 {sr(sT)}, {sr(sWo)}, {half*32*3840}')
                a(f'buffer_load_dwordx4 {vr(vHW[pi])}, {sr(SWQ,4)}, {sr(sT)} offen offset:{(pi%4)*1024} lds')
    def issue_stage():
        stag_pf(); next_k(); issue_x(); issue_w()
        a(f'''s_add_u32 {sr(sSlot)}, {sr(sSlot)}, {STG}
s_cmp_ge_u32 {sr(sSlot)}, {3*STG}
s_cselect_b32 {sr(sSlot)}, 0, {sr(sSlot)}''')
    pfw = opts.get('pfw', 1) and not stag and not opts.get('rot0')
    if pfw:
        a(f'''s_lshr_b32 {sr(sT)}, s2, 6
s_mul_i32 {sr(sT)}, {sr(sT)}, 3
s_add_u32 {sr(sT)}, {sr(sT)}, 8
s_bfe_u32 {sr(sT2)}, s2, 0x30003
s_lshr_b32 {sr(sI)}, {sr(sT2)}, 2
s_add_u32 {sr(sT)}, {sr(sT)}, {sr(sI)}
s_cmp_ge_u32 {sr(sT)}, 10
s_cselect_b32 {sr(sI)}, 10, 0
s_sub_u32 {sr(sT)}, {sr(sT)}, {sr(sI)}
s_lshl_b32 {sr(sT)}, {sr(sT)}, 6
s_and_b32 {sr(sT2)}, {sr(sT2)}, 3
s_lshl_b32 {sr(sT2)}, {sr(sT2)}, 4
s_add_u32 {sr(sT)}, {sr(sT)}, {sr(sT2)}
s_mul_i32 {sr(sT)}, {sr(sT)}, 3840
s_add_u32 {sr(sRdy)}, {sr(sT)}, {sr(sT3)}
v_lshrrev_b32 {vr(vT0)}, 3, {vr(vLane)}
v_mul_u32_u24 {vr(vT0)}, 3840, {vr(vT0)}
v_bfe_u32 {vr(vT1)}, {vr(vLane)}, 1, 2
v_mul_u32_u24 {vr(vT2)}, 1280, {vr(vT1)}
v_and_b32 {vr(vT3)}, 1, {vr(vLane)}
v_mul_u32_u24 {vr(vT3)}, 156, {vr(vT3)}
v_add3_u32 {vr(vT0)}, {vr(vT0)}, {vr(vT2)}, {vr(vT3)}
v_cmp_eq_u32 vcc, 3, {vr(vT1)}
v_mov_b32 {vr(vT2)}, {OOB}
s_nop 0
v_cndmask_b32 {vr(vPo)}, {vr(vT0)}, {vr(vT2)}, vcc''')
    a(f's_mov_b32 {sr(sSlot)}, {STG}')
    st1()
    a('s_barrier')
    st1()
    if elate:
        a(f'v_mov_b32 {vr(vT0)}, {F_EPOCH}')
        a(f'buffer_load_dword {vr(vEp)}, {vr(vT0)}, {sr(SWS,4)}, 0 offen{SC}')
    if pfw:
        a(f'buffer_load_dword {vr(vPf[0])}, {vr(vPo)}, {sr(SWQ,4)}, {sr(sRdy)} offen')
        a(f's_add_u32 {sr(sRdy)}, {sr(sRdy)}, {8*3840}')
        a(f'buffer_load_dword {vr(vPf[1])}, {vr(vPo)}, {sr(SWQ,4)}, {sr(sRdy)} offen')
    if opts.get('xfirst', 0):
        next_k(); issue_x()
        a(f's_mov_b32 {sr(sSrc)}, {sr(sWo)}')
        a(f's_mov_b32 {sr(sSlot)}, {2*STG}')
        next_k(); issue_x()
        st1()
        if opts.get('xfirst') == 1: a('s_barrier')
        a(f's_mov_b32 {sr(sSlot)}, {STG}')
        a(f's_mov_b32 {sr(sI)}, {sr(sWo)}')
        a(f's_mov_b32 {sr(sWo)}, {sr(sSrc)}')
        issue_w()
        if opts.get('xfirst') == 2: a('s_barrier')
        a(f's_mov_b32 {sr(sSlot)}, {2*STG}')
        a(f's_mov_b32 {sr(sWo)}, {sr(sI)}')
        issue_w()
        a(f's_mov_b32 {sr(sSlot)}, 0')
        a('s_waitcnt vmcnt(30)')
        a('s_barrier')
        st1()
        a(f's_mov_b32 {sr(sI)}, 1')
    else:
        issue_stage()
        st1()
        a('s_barrier')
        st1()
        a(f's_mov_b32 {sr(sI)}, 0')
    a.label(f'{name}_hg')
    issue_stage()
    a('s_waitcnt vmcnt(46)')
    a('s_barrier')
    a(f's_add_u32 {sr(sI)}, {sr(sI)}, 1')
    a(f's_cmp_lt_u32 {sr(sI)}, 8')
    a(f's_cbranch_scc1 {name}_hg')
    st1()
    a(f'''s_lshl_b32 {sr(sT)}, {sr(sB)}, 3
s_add_u32 {sr(sT)}, {sr(sT)}, {sr(sHg)}
s_lshl_b32 {sr(sT)}, {sr(sT)}, 8
s_add_u32 {sr(sT)}, {sr(sT)}, {F_FLAG1}
v_lshl_add_u32 {vr(vT0)}, {vr(vLane)}, 2, {sr(sT)}
v_cmp_gt_u32 vcc, 16, {vr(vLane)}
v_mov_b32 {vr(vT1)}, {OOB}
s_lshl_b32 {sr(sT)}, {sr(sB)}, 4
v_cndmask_b32 {vr(vPo1)}, {vr(vT1)}, {vr(vT0)}, vcc
s_add_u32 {sr(sT)}, {sr(sT)}, {sr(sMt3)}
s_lshl_b32 {sr(sT)}, {sr(sT)}, 8
s_add_u32 {sr(sT)}, {sr(sT)}, {F_FLAG2}
v_lshl_add_u32 {vr(vT0)}, {vr(vLane)}, 2, {sr(sT)}
v_cmp_gt_u32 vcc, 8, {vr(vLane)}
v_mov_b32 {vr(vLw)}, {LW_RDY}
s_mul_i32 {sr(sT3)}, {sr(sCg)}, 160
v_cndmask_b32 {vr(vPo2)}, {vr(vT1)}, {vr(vT0)}, vcc''')
    for r in range(5):
        a(f'''v_add_u32 {vr(vT0)}, {64*r}, {vr(vLane)}
v_mul_u32_u24 {vr(vT1)}, 6554, {vr(vT0)}
v_lshrrev_b32 {vr(vT1)}, 16, {vr(vT1)}
v_mul_u32_u24 {vr(vT1)}, {1280-160}, {vr(vT1)}
v_lshl_add_u32 {vr(vT0)}, {vr(vT0)}, 4, {vr(vT1)}
v_add_u32 {vr(vT0)}, {sr(sT3)}, {vr(vT0)}
v_subrev_u32 {vr(vW3[r])}, {(r%4)*1024}, {vr(vT0)}''')
    a(f'''s_lshr_b32 {sr(sT)}, s2, 3
s_mul_i32 {sr(sT)}, {sr(sT)}, {20*1280}
v_lshl_add_u32 {vr(vT0)}, {vr(vLane)}, 7, {sr(sT)}
v_cmp_gt_u32 vcc, 50, {vr(vLane)}
v_mov_b32 {vr(vT1)}, {OOB}
s_mov_b32 {sr(sRdy)}, 0
v_cndmask_b32 {vr(vPo)}, {vr(vT1)}, {vr(vT0)}, vcc
v_readfirstlane_b32 {sr(sTag)}, {vr(vEp)}
s_lshl_b32 {sr(sDone)}, 1, {sr(sMt)}
s_waitcnt vmcnt({15 if hsplit else 0})
s_add_u32 {sr(sTag)}, {sr(sTag)}, {TAGK}
s_barrier
s_waitcnt vmcnt(0)
{'s_barrier' if hsplit else 's_nop 0'}
v_bfe_u32 {vr(vT2)}, {vr(vLane)}, 1, 2
v_mul_u32_u24 {vr(vT2)}, 2560, {vr(vT2)}
v_and_b32 {vr(vT3)}, 1, {vr(vLane)}
v_mul_u32_u24 {vr(vT3)}, 640, {vr(vT3)}
v_add_u32 {vr(vT2)}, {vr(vT2)}, {vr(vT3)}
v_add_u32 {vr(vT2)}, {ONES}, {vr(vT2)}
v_mov_b32 {vr(vC8)}, 0x3f803f80
v_mov_b32 {vr(vC8+1)}, 0x3f803f80
v_mov_b32 {vr(vC8+2)}, 0x3f803f80
v_mov_b32 {vr(vC8+3)}, 0x3f803f80
v_mov_b32 {vr(vC8+4)}, 0
v_mov_b32 {vr(vC8+5)}, 0
v_mov_b32 {vr(vC8+6)}, 0
v_mov_b32 {vr(vC8+7)}, 0
s_barrier
ds_write_b128 {vr(vT2)}, {vr(vC8,4)}
ds_write_b128 {vr(vT2)}, {vr(vC8+4,4)} offset:16
ds_write_b128 {vr(vLw)}, {vr(vC8+4,4)}
s_waitcnt lgkmcnt(0)''')
    st0()
    a('s_barrier')
    a('s_barrier')
    gid = [0]
    def issue_group():
        n = gid[0]; gid[0] += 1
        a(f'''s_andn2_b32 {sr(sT)}, {sr(sRdy)}, {sr(sDone)}
s_cbranch_scc1 {name}_pd{n}
s_mov_b32 {sr(sCnt)}, {POLL_LIMIT}''')
        a.label(f'{name}_pl{n}')
        a(f'''buffer_load_dword {vr(vP)}, {vr(vPo1)}, {sr(SWS,4)}, 0 offen{SC}
s_waitcnt vmcnt(0)
v_cmp_eq_u32 vcc, {sr(sTag)}, {vr(vP)}
s_and_b32 {sr(sRdy)}, vcc_lo, 0xffff
s_andn2_b32 {sr(sT)}, {sr(sRdy)}, {sr(sDone)}
s_cbranch_scc1 {name}_pd{n}
s_sleep 1
s_sub_u32 {sr(sCnt)}, {sr(sCnt)}, 1
s_cmp_lg_u32 {sr(sCnt)}, 0
s_cbranch_scc1 {name}_pl{n}
s_mov_b32 {sr(sRdy)}, 0xffff
s_andn2_b32 {sr(sT)}, {sr(sRdy)}, {sr(sDone)}''')
        a.label(f'{name}_pd{n}')
        a(f'''s_lshl_b32 {sr(sT2)}, {sr(sT)}, 16
s_or_b32 {sr(sT)}, {sr(sT)}, {sr(sT2)}
s_lshr_b32 {sr(sT)}, {sr(sT)}, {sr(sMt)}
s_ff1_i32_b32 {sr(sT)}, {sr(sT)}
s_add_u32 {sr(sNeed)}, {sr(sT)}, {sr(sMt)}
s_and_b32 {sr(sNeed)}, {sr(sNeed)}, 15
s_bitset1_b32 {sr(sDone)}, {sr(sNeed)}
s_mul_i32 {sr(sT)}, {sr(sNeed)}, 10240
s_add_u32 {sr(sSrc)}, {sr(sKV)}, {sr(sT)}''')
        for hs in range(4):
            for q in range(10):
                if q % 4 == 0:
                    a(f's_add_u32 m0, {sr(sSlot)}, {hs*10240 + q*1024}')
                    a(f's_add_u32 {sr(sT)}, {sr(sSrc)}, {hs*KV_HEAD + q*1024}')
                a(f'buffer_load_dwordx4 {vr(vL16)}, {sr(SWS,4)}, {sr(sT)} offen offset:{(q%4)*1024}{SLD} lds')
        a(f'''s_add_u32 {sr(sSlot)}, {sr(sSlot)}, {SLOT}
s_cmp_ge_u32 {sr(sSlot)}, {3*SLOT}
s_cselect_b32 {sr(sSlot)}, 0, {sr(sSlot)}
s_add_u32 {sr(sI)}, {sr(sI)}, 1''')
    a(f's_mov_b32 {sr(sI)}, 1')
    a(f's_mov_b32 {sr(sSlot)}, {SLOT}')
    wq = [0]
    def wait_prog(val):
        n = wq[0]; wq[0] += 1
        a.label(f'{name}_wp{n}')
        a(f'''ds_read_b32 {vr(vP)}, {vr(vPwa)} offset:4
s_waitcnt lgkmcnt(0)
v_cmp_le_u32 vcc, {val}, {vr(vP)}
s_and_b32 {sr(sT)}, vcc_lo, 0x1ff
s_cmp_eq_u32 {sr(sT)}, 0x1ff
s_cbranch_scc1 {name}_wpd{n}
s_sleep 2
s_branch {name}_wp{n}''')
        a.label(f'{name}_wpd{n}')
    def set_full(val):
        a(f'v_mov_b32 {vr(vFu)}, {val}')
        a(f'ds_write_b32 {vr(vPwa)}, {vr(vFu)}')
    if nobar:
        a(f'v_min_u32 {vr(vPwa)}, 8, {vr(vLane)}')
        a(f'v_lshlrev_b32 {vr(vPwa)}, 3, {vr(vPwa)}')
        a(f'v_add_u32 {vr(vPwa)}, {LW_PW}, {vr(vPwa)}')
    issue_group()
    st0()
    if opts.get('b1', 1) and not nobar:
        a('s_waitcnt vmcnt(0)')
        a('s_barrier')
        issue_group()
    a.label(f'{name}_hl')
    if nobar:
        a('s_waitcnt vmcnt(0)')
        set_full(sr(sI))
        a(f's_max_u32 {sr(sSrc)}, {sr(sI)}, 2')
        a(f's_sub_u32 {sr(sSrc)}, {sr(sSrc)}, 2')
        wait_prog(sr(sSrc))
        issue_group()
    else:
        issue_group()
        a('s_waitcnt vmcnt(40)')
        a('s_barrier')
    wid = [0]
    def wo_rows(r0, r1, lds):
        n = wid[0]; wid[0] += 1
        a(f's_mov_b32 {sr(sSrc)}, {r0*1280}')
        a(f's_mov_b32 {sr(sT2)}, {lds}')
        a.label(f'{name}_hw{n}x')
        a(f's_mov_b32 m0, {sr(sT2)}')
        a(f's_add_u32 {sr(sT)}, {sr(sT2)}, 4096')
        for r in range(4):
            a(f'buffer_load_dwordx4 {vr(vW3[r])}, {sr(SWO,4)}, {sr(sSrc)} offen offset:{r*1024} lds')
        a(f's_mov_b32 m0, {sr(sT)}')
        a(f's_add_u32 {sr(sT2)}, {sr(sT2)}, 5120')
        a(f'buffer_load_dwordx4 {vr(vW3[4])}, {sr(SWO,4)}, {sr(sSrc)} offen lds')
        a(f's_add_u32 {sr(sSrc)}, {sr(sSrc)}, {32*1280}')
        a(f's_cmp_lt_u32 {sr(sSrc)}, {r1*1280}')
        a(f's_cbranch_scc1 {name}_hw{n}x')
    a(f's_cmp_eq_u32 {sr(sI)}, 6')
    a(f's_cbranch_scc0 {name}_hnp')
    for q in range(4):
        a(f's_mov_b32 {sr(sT)}, {q*6400}')
        a(f'buffer_load_dword {vr(vPf[q])}, {vr(vPo)}, {sr(SWO,4)}, {sr(sT)} offen')
    a.label(f'{name}_hnp')
    a(f's_cmp_eq_u32 {sr(sI)}, 10')
    a(f's_cbranch_scc0 {name}_hnq')
    wo_rows(480, 640, QST)
    a.label(f'{name}_hnq')
    a(f's_cmp_lt_u32 {sr(sI)}, 16')
    a(f's_cbranch_scc1 {name}_hl')
    if nobar:
        a('s_waitcnt vmcnt(0)')
        set_full(64)
        wait_prog(14)
        wo_rows(0, 256, WO_LO)
        wait_prog(15)
    else:
        wo_rows(0, 256, WO_LO)
        a('s_waitcnt vmcnt(40)')
        a('s_barrier')
    wo_rows(256, 480, WO_LO + 40960)
    a(f'''s_lshl_b32 {sr(sT)}, {sr(sB)}, 4
s_add_u32 {sr(sT)}, {sr(sT)}, {sr(sMt3)}
s_lshl_b32 {sr(sT)}, {sr(sT)}, 1
s_lshr_b32 {sr(sT2)}, {sr(sCg)}, 2
s_add_u32 {sr(sT)}, {sr(sT)}, {sr(sT2)}
s_mul_i32 {sr(sT)}, {sr(sT)}, {32*2560}
s_and_b32 {sr(sT2)}, {sr(sCg)}, 3
s_mul_i32 {sr(sT2)}, {sr(sT2)}, 5120
s_add_u32 {sr(sT)}, {sr(sT)}, {sr(sT2)}
s_add_u32 {sr(sT)}, {sr(sT)}, {F_WS_O}
v_lshl_add_u32 {vr(vT0)}, {vr(vLane)}, 7, {sr(sT)}
v_cmp_gt_u32 vcc, 40, {vr(vLane)}
v_mov_b32 {vr(vT1)}, {OOB}
s_mov_b32 {sr(sDone)}, 0
s_mov_b32 {sr(sCnt)}, {POLL_LIMIT}
v_cndmask_b32 {vr(vPo)}, {vr(vT1)}, {vr(vT0)}, vcc''')
    pid = [0]
    pfo = opts.get('pfo', 2)
    def poll2():
        a(f'''buffer_load_dword {vr(vP)}, {vr(vPo2)}, {sr(SWS,4)}, 0 offen{SC}
s_sub_u32 {sr(sCnt)}, {sr(sCnt)}, 1
s_waitcnt vmcnt(0)
v_cmp_eq_u32 vcc, {sr(sTag)}, {vr(vP)}
s_cmp_eq_u32 {sr(sCnt)}, 0
s_cselect_b32 {sr(sT)}, 0xff, vcc_lo
s_lshr_b32 {sr(sT2)}, {sr(sT)}, 1
s_and_b32 {sr(sT)}, {sr(sT)}, {sr(sT2)}
s_and_b32 {sr(sRdy)}, {sr(sT)}, 0x55''')
        if pfo:
            a(f's_andn2_b32 {sr(sSrc)}, {sr(sRdy)}, {sr(sDone)}')
            a(f's_or_b32 {sr(sDone)}, {sr(sDone)}, {sr(sRdy)}')
            for j in range(4):
                n = pid[0]; pid[0] += 1
                a(f's_bitcmp1_b32 {sr(sSrc)}, {2*j}')
                a(f's_cbranch_scc0 {name}_po{n}')
                a(f's_mov_b32 {sr(sT)}, {j*20480}')
                a(f'buffer_load_dword {vr(vPf[j])}, {vr(vPo)}, {sr(SWS,4)}, {sr(sT)} offen{SC}')
                a.label(f'{name}_po{n}')
            if pfo == 2:
                a('s_waitcnt vmcnt(0)')
        a(f'v_mov_b32 {vr(vP)}, {sr(sRdy)}')
        a(f'ds_write_b32 {vr(vLw)}, {vr(vP)}')
    poll2()
    if nobar:
        wait_prog(16)
    else:
        a('s_barrier')
    st0()
    st0()
    a.label(f'{name}_p3l')
    poll2()
    a(f's_cmp_eq_u32 {sr(sRdy)}, 0x55')
    a(f's_cbranch_scc0 {name}_p3l')
    a.label(f'{name}_p3e')
    if st.on:
        while st.n < n_total - 1: st()
        st.rt(); st.flush(sW)
    a('s_endpgm')
    a.label(f'{name}_end')
    nv = maxv[0]
    assert nv <= 168, nv
    return a.text(), descriptor(name, nv, ns), f'; @launch kernel={name} grid=(256,1,1) block=(576,1,1) lds={LDS_TOTAL}', n_total
```

```python
from common import *
import math, struct

def f32bits(x):
    return struct.unpack('<I', struct.pack('<f', x))[0]
QSCALE = f32bits(math.log2(math.e) / math.sqrt(20.0))

XSZ = 16384
STG = XSZ + 30720
SLOT = 40960
LW_RDY = 3 * SLOT
LW_CNT = 3 * SLOT + 8
LW_CNT1 = 3 * SLOT + 12
LW_PW = 131392
ONES = 3 * SLOT + 128
QST = 131584
LDS_TOTAL = QST + 25600
WO_LO = SLOT
F_WS_KV = 0
F_WS_O = 64 * KV_HEAD
F_FLAG1 = F_WS_O + 2 * 32 * 32 * 2560
F_FLAG2 = F_FLAG1 + 16 * 256
F_EPOCH = F_FLAG2 + 32 * 256
F_WS_END = F_EPOCH + 256
TAGK = 0x9E3779B9
POLL_LIMIT = 1 << 16
OOB = 0x40000000

def gen_fused(name='fused_kernel', opts=None):
    opts = opts or {}
    a = Asm()
    SC = ' sc1'
    FL = {0: ' sc1', 1: ' sc0 sc1', 2: '', 3: ' sc1 nt', 4: ' nt'}
    SST = FL[opts.get('sst', 0)]
    SLD = FL[opts.get('sld', 0)]
    stag = opts.get('stag', 0)
    pub4 = opts.get('pub4', 1)
    hsplit = opts.get('hsplit', 1)
    nobar = opts.get('nobar', 0)
    loc = opts.get('loc', 1)
    sKK, sMt3, sCg = 3, 4, 5
    SX, SWQ, SWS, SDBG, SWO, SOUT = 8, 12, 16, 20, 24, 28
    sW, sB, sMt, sHg, sT, sT2, sT3 = 32, 33, 34, 35, 36, 37, 38
    sM0a, sM0b = 39, 40
    sDone = 41
    sHi = 42
    sG, sOff, sOo, sKV = 44, 45, 46, 47
    sM, sM2 = 48, 50
    sRdy, sCnt, sNeed, sI, sSlot, sSrc = 52, 53, 54, 55, 56, 57
    sXo, sWo = 53, 54
    sScale = 58
    sA, sTag = 60, 61
    sPub, sPub2 = 56, 57
    ns = 64
    vLane, vT0, vT1, vT2, vT3, vT4, vT5 = 1, 2, 3, 4, 5, 6, 7
    VBASE = 8
    st = Stamper(a, opts.get('stamp'), 0, 62, 6, vT0)
    if st.on: ns = st.nsgpr()
    sset = opts.get('sset', 0)
    def st0():
        if sset == 0: st()
    def st1():
        if sset == 1: st()
    def st4():
        if sset == 4: st()
    maxv = [0]
    def done_alloc(V):
        maxv[0] = max(maxv[0], V.n)

    a(f'.globl {name}\n.p2align 8\n.type {name},@function')
    a.label(name)
    if st.on:
        a('s_memrealtime s[62:63]\ns_memtime s[64:65]')
        st.n = 2
    dbgt = opts.get('dbgt')
    SWAP = 's_nop 0'
    if opts.get('swap', 0):
        SWAP = f's_lshr_b32 {sr(sT)}, s2, 1\ns_xor_b32 {sr(sT)}, {sr(sT)}, s2\ns_and_b32 {sr(sT)}, {sr(sT)}, 1\ns_mul_i32 {sr(sT)}, {sr(sT)}, 3\ns_xor_b32 s2, s2, {sr(sT)}'
    if dbgt:
        ns = 80
        a('s_memrealtime s[62:63]')
    def rts(k):
        if dbgt: a(f's_memrealtime s[{62+2*k}:{63+2*k}]\ns_waitcnt lgkmcnt(0)')
    a(f'''s_cmp_ge_u32 s2, 256
s_cbranch_scc1 {name}_done
{SWAP}
s_bfe_u32 {sr(sB)}, s2, 0x10002
s_load_dwordx4 {sr(SOUT,4)}, s[0:1], 48
s_load_dwordx2 s[6:7], s[0:1], 64
s_mul_i32 {sr(sT2)}, {sr(sB)}, 24
s_add_u32 s0, s0, {sr(sT2)}
s_addc_u32 s1, s1, 0
s_load_dwordx4 {sr(SX,4)}, s[0:1], 0
s_load_dwordx2 {sr(SWO,2)}, s[0:1], 16
v_lshrrev_b32 {vr(vT0)}, 6, v0
v_and_b32 {vr(vLane)}, 63, v0
s_lshr_b32 {sr(sT)}, s2, 3
v_readfirstlane_b32 {sr(sW)}, {vr(vT0)}
s_and_b32 {sr(sMt)}, {sr(sT)}, 7
s_lshr_b32 {sr(sHg)}, {sr(sT)}, 3
s_mul_i32 {sr(sKK)}, {sr(sHg)}, 3
s_add_u32 {sr(sKK)}, {sr(sKK)}, {sr(sMt)}
s_cmp_ge_u32 {sr(sKK)}, 10
s_cselect_b32 {sr(sT)}, 10, 0
s_sub_u32 {sr(sKK)}, {sr(sKK)}, {sr(sT)}
{f's_mov_b32 {sr(sKK)}, 0' if (stag or opts.get('rot0')) else 's_nop 0'}
s_and_b32 {sr(sT)}, s2, 1
s_lshl_b32 {sr(sT)}, {sr(sT)}, 3
s_add_u32 {sr(sMt)}, {sr(sMt)}, {sr(sT)}
s_and_b32 {sr(sT)}, s2, 2
s_lshl_b32 {sr(sT)}, {sr(sT)}, 1
s_add_u32 {sr(sHg)}, {sr(sHg)}, {sr(sT)}
s_mov_b32 {sr(sHi)}, 0
s_mov_b32 {sr(sHi+1)}, -1
s_bfe_u32 {sr(sCg)}, s2, 0x30003
s_and_b32 {sr(sMt3)}, s2, 1
s_lshl_b32 {sr(sMt3)}, {sr(sMt3)}, 2
s_and_b32 {sr(sT)}, s2, 2
s_add_u32 {sr(sMt3)}, {sr(sMt3)}, {sr(sT)}
s_lshl_b32 {sr(sMt3)}, {sr(sMt3)}, 1
s_lshr_b32 {sr(sT)}, s2, 6
s_add_u32 {sr(sMt3)}, {sr(sMt3)}, {sr(sT)}
s_lshl_b32 {sr(sT)}, {sr(sB)}, 3
s_add_u32 {sr(sT)}, {sr(sT)}, {sr(sHg)}
s_mul_i32 {sr(sKV)}, {sr(sT)}, {4*KV_HEAD}
s_mul_i32 {sr(sT3)}, {sr(sHg)}, 160
s_waitcnt lgkmcnt(0)
s_mov_b32 {sr(SWQ)}, {sr(SX+2)}
s_mov_b32 {sr(SWQ+1)}, {sr(SX+3)}
s_mov_b32 {sr(SDBG)}, {sr(SOUT+2)}
s_mov_b32 {sr(SDBG+1)}, {sr(SOUT+3)}
s_mov_b32 {sr(SWS)}, s6
s_mov_b32 {sr(SWS+1)}, s7
s_mov_b32 {sr(SX+2)}, {2048*1280}
s_mov_b32 {sr(SX+3)}, 0x20000
s_mov_b32 {sr(SWQ+2)}, {640*3840}
s_mov_b32 {sr(SWQ+3)}, 0x20000
s_mov_b32 {sr(SWS+2)}, {F_WS_END}
s_mov_b32 {sr(SWS+3)}, 0x20000
s_mov_b32 {sr(SDBG+2)}, 256
s_mov_b32 {sr(SDBG+3)}, 0x20000
s_mov_b32 {sr(SWO+2)}, {640*1280}
s_mov_b32 {sr(SWO+3)}, 0x20000
s_mov_b32 {sr(SOUT+2)}, {2048*2560}
s_mov_b32 {sr(SOUT+3)}, 0x20000''')
    st1()
    n_common = st.n
    a(f'''s_cmp_ge_u32 {sr(sW)}, 8
s_cbranch_scc1 {name}_helper''')

    def w_pattern(dst, first, last):
        a(f'''{first}
v_mul_u32_u24 {vr(vT1)}, 2185, {vr(vT0)}
v_lshrrev_b32 {vr(vT1)}, 16, {vr(vT1)}
v_mul_u32_u24 {vr(vT2)}, 30, {vr(vT1)}
v_sub_u32 {vr(vT0)}, {vr(vT0)}, {vr(vT2)}
v_and_b32 {vr(vT2)}, 0x13, {vr(vT1)}
v_bfe_u32 {vr(vT3)}, {vr(vT1)}, 2, 1
v_lshl_or_b32 {vr(vT2)}, {vr(vT3)}, 3, {vr(vT2)}
v_bfe_u32 {vr(vT3)}, {vr(vT1)}, 3, 1
v_lshl_or_b32 {vr(vT2)}, {vr(vT3)}, 2, {vr(vT2)}
v_mul_u32_u24 {vr(vT2)}, 3840, {vr(vT2)}
v_mul_u32_u24 {vr(vT1)}, 26, {vr(vT0)}
v_lshrrev_b32 {vr(vT1)}, 8, {vr(vT1)}
v_mul_u32_u24 {vr(vT1)}, {1280-160}, {vr(vT1)}
v_lshl_add_u32 {vr(vT0)}, {vr(vT0)}, 4, {vr(vT1)}
v_add3_u32 {vr(dst)}, {vr(vT0)}, {vr(vT2)}, {last}''')

    VP = VAlloc(VBASE)
    vIdx = VP()
    vaK1 = VP(); vaK2 = VP(); vaV = VP()
    vbK1 = VP(); vbK2 = VP(); vbV = VP(); vmK2 = VP(); vmV = VP()
    vQo = VP(); vQo2 = VP(); vQs1 = VP(); vQs2 = VP(); vPub = VP()
    VB2 = VP.n
    V = VAlloc(VB2)
    vEp7 = V(); vCi7 = V(); vZ7 = V()
    vXr = [[V(), V()] for _ in range(3)]
    vWa = [V() for _ in range(3)]
    vWb = [V() for _ in range(3)]
    vE = [V() for _ in range(6)]
    Xf = [[V(4), V(4)], [V(4), V(4)]]
    Wf = [[V(4) for _ in range(4)] for _ in range(2)]
    acc = [[V(4), V(4)] for _ in range(8)]
    done_alloc(V)
    vDX = Wf[0][0]; vDW = [Wf[0][0] + 1, Wf[0][0] + 2]
    a(f'''s_lshl_b32 {sr(sT)}, {sr(sMt)}, 7
s_lshl_b32 {sr(sT2)}, {sr(sW)}, 3
s_add_u32 {sr(sT)}, {sr(sT)}, {sr(sT2)}
v_lshrrev_b32 {vr(vT0)}, 3, {vr(vLane)}
v_add_u32 {vr(vT0)}, {sr(sT)}, {vr(vT0)}
v_mul_u32_u24 {vr(vT0)}, 1280, {vr(vT0)}
s_and_b32 {sr(sT)}, {sr(sW)}, 1
s_lshl_b32 {sr(sT)}, {sr(sT)}, 2
v_lshrrev_b32 {vr(vT1)}, 4, {vr(vLane)}
v_add_u32 {vr(vT2)}, {sr(sT)}, {vr(vT1)}
v_and_b32 {vr(vT3)}, 7, {vr(vLane)}
v_xor_b32 {vr(vT2)}, {vr(vT2)}, {vr(vT3)}
v_lshl_add_u32 {vr(vDX)}, {vr(vT2)}, 4, {vr(vT0)}
s_lshl_b32 {sr(sM0a)}, {sr(sW)}, 10
s_lshl_b32 {sr(sXo)}, {sr(sKK)}, 7
s_mul_i32 {sr(sWo)}, {sr(sKK)}, {64*3840}
s_mov_b32 m0, {sr(sM0a)}
s_add_u32 {sr(sT)}, {sr(sXo)}, 81920
buffer_load_dwordx4 {vr(vDX)}, {sr(SX,4)}, {sr(sXo)} offen lds
s_add_u32 m0, {sr(sM0a)}, 8192
s_add_u32 {sr(sT2)}, {sr(sW)}, 8
buffer_load_dwordx4 {vr(vDX)}, {sr(SX,4)}, {sr(sT)} offen lds
s_cmp_eq_u32 {sr(sW)}, 7
s_cselect_b32 {sr(sT2)}, 7, {sr(sT2)}
s_lshl_b32 {sr(sM0b)}, {sr(sT2)}, 10''')
    for pi, sm in ((0, sM0a), (1, sM0b)):
        a(f's_lshr_b32 {sr(sT)}, {sr(sm)}, 4')
        w_pattern(vDW[pi], f'v_add_u32 {vr(vT0)}, {sr(sT)}, {vr(vLane)}', sr(sT3))
        for half in range(2):
            a(f's_add_u32 m0, {sr(sm)}, {XSZ + half*15360}')
            a(f's_add_u32 {sr(sT)}, {sr(sWo)}, {half*32*3840}')
            a(f'buffer_load_dwordx4 {vr(vDW[pi])}, {sr(SWQ,4)}, {sr(sT)} offen lds')
    st1()
    a('s_barrier')
    st1()
    a(f'''s_cmp_eq_u32 {sr(sW)}, 7
s_cselect_b32 {sr(sM)}, 1, 0
s_mov_b32 {sr(sM+1)}, 0
v_mov_b32 {vr(vT1)}, {OOB}
v_cndmask_b32_e64 {vr(vZ7)}, {vr(vT1)}, 0, {sr(sM,2)}
v_mov_b32 {vr(vT0)}, {F_EPOCH}
buffer_load_dword {vr(vEp7)}, {vr(vT0)}, {sr(SWS,4)}, 0 offen{SC}''')
    a(f'''s_and_b32 {sr(sT)}, {sr(sW)}, 3
s_lshl_b32 {sr(sT)}, {sr(sT)}, 5
v_and_b32 {vr(vT0)}, 15, {vr(vLane)}
v_lshrrev_b32 {vr(vT1)}, 4, {vr(vLane)}
v_lshrrev_b32 {vr(vT2)}, 1, {vr(vT0)}
v_xor_b32 {vr(vT2)}, {vr(vT2)}, {vr(vT1)}
v_add_u32 {vr(vT0)}, {sr(sT)}, {vr(vT0)}
v_lshlrev_b32 {vr(vT0)}, 7, {vr(vT0)}
v_lshl_add_u32 {vr(vXr[0][0])}, {vr(vT2)}, 4, {vr(vT0)}
v_xor_b32 {vr(vXr[0][1])}, 64, {vr(vXr[0][0])}
v_lshrrev_b32 {vr(vT0)}, 5, {vr(vLane)}
v_lshlrev_b32 {vr(vT0)}, 4, {vr(vT0)}
v_bfe_u32 {vr(vT2)}, {vr(vLane)}, 4, 1
v_lshl_add_u32 {vr(vT0)}, {vr(vT2)}, 2, {vr(vT0)}
v_bfe_u32 {vr(vT2)}, {vr(vLane)}, 2, 2
v_add_u32 {vr(vT0)}, {vr(vT0)}, {vr(vT2)}
v_mul_u32_u24 {vr(vT0)}, 480, {vr(vT0)}
v_add_u32 {vr(vT5)}, {XSZ}, {vr(vT0)}
v_bfe_u32 {vr(vT2)}, {vr(vLane)}, 1, 1
v_mul_u32_u24 {vr(vT2)}, 40, {vr(vT2)}
v_and_b32 {vr(vT3)}, 1, {vr(vLane)}
v_lshl_add_u32 {vr(vT2)}, {vr(vT3)}, 4, {vr(vT2)}
v_add_u32 {vr(vWa[0])}, {vr(vT5)}, {vr(vT2)}
s_cmp_ge_u32 {sr(sW)}, 4
s_cselect_b32 {sr(sT)}, 8, 40
v_and_b32 {vr(vT2)}, 3, {vr(vLane)}
v_mad_u32_u24 {vr(vWb[0])}, {vr(vT2)}, {sr(sT)}, {vr(vT5)}''')
    for s_ in (1, 2):
        a(f'v_add_u32 {vr(vXr[s_][0])}, {s_*STG}, {vr(vXr[0][0])}')
        a(f'v_add_u32 {vr(vXr[s_][1])}, {s_*STG}, {vr(vXr[0][1])}')
        a(f'v_add_u32 {vr(vWa[s_])}, {s_*STG}, {vr(vWa[0])}')
        a(f'v_add_u32 {vr(vWb[s_])}, {s_*STG}, {vr(vWb[0])}')
    a(f'''s_lshr_b32 {sr(sT)}, {sr(sW)}, 1
s_mul_i32 {sr(sT2)}, {sr(sT)}, 10240
v_lshlrev_b32 {vr(vQo)}, 4, {vr(vLane)}
v_lshlrev_b32 {vr(vT0)}, 3, {vr(vLane)}
v_add_u32 {vr(vT0)}, 1024, {vr(vT0)}
v_mov_b32 {vr(vT1)}, {OOB}
v_cndmask_b32_e64 {vr(vQo2)}, {vr(vT0)}, {vr(vT1)}, {sr(sHi,2)}
v_add_u32 {vr(vbK1)}, {sr(sT2)}, {vr(vQo)}
v_add_u32 {vr(vT0)}, {sr(sT2)}, {vr(vT0)}
v_mov_b32 {vr(vT1)}, {ONES}
v_cndmask_b32_e64 {vr(vbK2)}, {vr(vT0)}, {vr(vT1)}, {sr(sHi,2)}
v_cndmask_b32_e64 {vr(vmK2)}, 1, 0, {sr(sHi,2)}
v_and_b32 {vr(vT2)}, 31, {vr(vLane)}
v_lshrrev_b32 {vr(vT3)}, 5, {vr(vLane)}
v_mul_u32_u24 {vr(vT3)}, 320, {vr(vT3)}
v_lshl_add_u32 {vr(vT3)}, {vr(vT2)}, 4, {vr(vT3)}
s_add_u32 {sr(sT3)}, {sr(sT2)}, 1280
v_add_u32 {vr(vT3)}, {sr(sT3)}, {vr(vT3)}
v_cmp_gt_u32 vcc, 20, {vr(vT2)}
v_mov_b32 {vr(vIdx)}, 0xdddddddd
v_mov_b32 {vr(vaK1)}, {vr(vbK1)}
v_cndmask_b32 {vr(vbV)}, {vr(vT1)}, {vr(vT3)}, vcc
v_cndmask_b32_e64 {vr(vmV)}, 0, 1, vcc
v_cmp_lt_u32 vcc, 20, {vr(vT2)}
v_add_u32 {vr(vT3)}, 16, {vr(vT1)}
v_mov_b32 {vr(vaK2)}, {vr(vbK2)}
v_cndmask_b32 {vr(vbV)}, {vr(vbV)}, {vr(vT3)}, vcc
v_mov_b32 {vr(vaV)}, {vr(vbV)}
s_mul_i32 {sr(sT2)}, {sr(sW)}, 2560
s_add_u32 {sr(sT2)}, {sr(sT2)}, {QST}
v_add_u32 {vr(vQs1)}, {sr(sT2)}, {vr(vQo)}
v_and_b32 {vr(vQs2)}, 31, {vr(vLane)}
v_lshlrev_b32 {vr(vQs2)}, 3, {vr(vQs2)}
s_add_u32 {sr(sT2)}, {sr(sT2)}, 1024
v_add_u32 {vr(vQs2)}, {sr(sT2)}, {vr(vQs2)}
s_lshl_b32 {sr(sT2)}, {sr(sB)}, 4
s_add_u32 {sr(sT2)}, {sr(sT2)}, {sr(sMt)}
s_lshl_b32 {sr(sT2)}, {sr(sT2)}, 1
s_and_b32 {sr(sT3)}, {sr(sW)}, 1
s_add_u32 {sr(sT2)}, {sr(sT2)}, {sr(sT3)}
s_lshl_b32 {sr(sT2)}, {sr(sT2)}, 5
s_lshl_b32 {sr(sT3)}, {sr(sHg)}, 2
s_add_u32 {sr(sT2)}, {sr(sT2)}, {sr(sT3)}
s_add_u32 {sr(sT2)}, {sr(sT2)}, {sr(sT)}
s_mul_i32 {sr(sOo)}, {sr(sT2)}, 2560
s_add_u32 {sr(sOo)}, {sr(sOo)}, {F_WS_O}
s_mov_b32 {sr(sPub2)}, {sr(sKV)}
s_mul_i32 {sr(sT)}, {sr(sT)}, {KV_HEAD}
s_add_u32 {sr(sKV)}, {sr(sKV)}, {sr(sT)}''')
    if pub4:
        a(f'''s_and_b32 {sr(sT)}, {sr(sW)}, 3
s_mul_i32 {sr(sT2)}, {sr(sT)}, 10240
v_add_u32 {vr(vPub)}, {sr(sT2)}, {vr(vQo)}
s_mul_i32 {sr(sT)}, {sr(sT)}, {KV_HEAD}
s_mul_i32 {sr(sT2)}, {sr(sMt)}, 10240
s_add_u32 {sr(sT)}, {sr(sT)}, {sr(sT2)}
s_add_u32 {sr(sPub)}, {sr(sT)}, {sr(sPub2)}''')
    else:
        a(f'''s_and_b32 {sr(sT)}, {sr(sW)}, 1
s_mul_i32 {sr(sT)}, {sr(sT)}, 5120
v_add_u32 {vr(vPub)}, {sr(sT)}, {vr(vbK1)}
s_mul_i32 {sr(sT2)}, {sr(sMt)}, 10240
s_add_u32 {sr(sT)}, {sr(sT)}, {sr(sT2)}
s_add_u32 {sr(sPub)}, {sr(sT)}, {sr(sKV)}
s_add_u32 {sr(sPub2)}, {sr(sPub)}, 4096''')
    for ct in range(8):
        for tt in range(2):
            for i in range(4):
                a(f'v_mov_b32 {vr(acc[ct][tt]+i)}, 0')
    a(f'''s_mov_b32 {sr(sScale)}, {QSCALE}
s_mov_b32 {sr(sScale+1)}, {QSCALE}
s_and_b32 {sr(sT3)}, {sr(sW)}, 3
v_and_b32 {vr(vT0)}, 15, {vr(vLane)}
v_lshrrev_b32 {vr(vT1)}, 4, {vr(vLane)}
v_lshrrev_b32 {vr(vT2)}, 2, {vr(vT0)}
v_and_b32 {vr(vT3)}, 3, {vr(vT0)}
v_lshl_add_u32 {vr(vT4)}, {vr(vT2)}, 3, {vr(vT3)}
v_lshrrev_b32 {vr(vT2)}, 1, {vr(vT1)}
v_and_b32 {vr(vT3)}, 1, {vr(vT1)}
s_mul_i32 {sr(sT)}, {sr(sT3)}, 2560
v_mul_u32_u24 {vr(vE[0])}, 10240, {vr(vT2)}
v_lshl_add_u32 {vr(vE[0])}, {vr(vT3)}, 9, {vr(vE[0])}
v_lshl_add_u32 {vr(vE[0])}, {vr(vT4)}, 4, {vr(vE[0])}
v_add_u32 {vr(vE[0])}, {sr(sT)}, {vr(vE[0])}
s_cmp_ge_u32 {sr(sW)}, 4
s_cbranch_scc1 {name}_p1b''')

    def p1_variant(wn):
        if wn == 0:
            kinds = [('P', 0, 0, 0), ('P', 0, 0, 1), ('P', 0, 1, 0), ('P', 0, 1, 1), ('T', 0, 0, 0), ('P', 1, 0, 0), ('P', 1, 0, 1), ('T', 1, 0, 0)]
            a(f'''s_add_u32 {sr(sT2)}, {sr(sT)}, 1024
v_mul_u32_u24 {vr(vE[1])}, 10240, {vr(vT1)}
v_lshl_add_u32 {vr(vE[1])}, {vr(vT4)}, 3, {vr(vE[1])}
v_add_u32 {vr(vE[1])}, {sr(sT2)}, {vr(vE[1])}
s_mul_i32 {sr(sT)}, {sr(sT3)}, 1280
s_add_u32 {sr(sT)}, {sr(sT)}, {QST}
v_mul_u32_u24 {vr(vE[2])}, 5120, {vr(vT2)}
v_lshl_add_u32 {vr(vE[2])}, {vr(vT3)}, 9, {vr(vE[2])}
v_lshl_add_u32 {vr(vE[2])}, {vr(vT0)}, 4, {vr(vE[2])}
v_add_u32 {vr(vE[2])}, {sr(sT)}, {vr(vE[2])}
s_add_u32 {sr(sT)}, {sr(sT)}, 1024
v_mul_u32_u24 {vr(vE[3])}, 5120, {vr(vT1)}
v_lshl_add_u32 {vr(vE[3])}, {vr(vT0)}, 3, {vr(vE[3])}
v_add_u32 {vr(vE[3])}, {sr(sT)}, {vr(vE[3])}''')
        else:
            kinds = [('P', 1, 1, 0), ('P', 1, 1, 1)] + [('V', 2, i, 0) for i in range(5)]
            a(f'''s_add_u32 {sr(sT)}, {sr(sT)}, 1280
v_mul_u32_u24 {vr(vT2)}, 640, {vr(vT2)}
v_mul_u32_u24 {vr(vT3)}, 320, {vr(vT3)}
v_add3_u32 {vr(vT5)}, {vr(vT2)}, {vr(vT3)}, {sr(sT)}''')
            for i in range(5):
                a(f'''v_add_u32 {vr(vT2)}, {16*i}, {vr(vT0)}
v_mul_u32_u24 {vr(vT3)}, 3277, {vr(vT2)}
v_lshrrev_b32 {vr(vT3)}, 16, {vr(vT3)}
v_mul_u32_u24 {vr(vT3)}, {10240-320}, {vr(vT3)}
v_lshl_add_u32 {vr(vT2)}, {vr(vT2)}, 4, {vr(vT3)}
v_add_u32 {vr(vE[1+i])}, {vr(vT2)}, {vr(vT5)}''')
        nct = len(kinds)
        grp = [list(range(0, 4)), list(range(4, nct))]
        def rd_x(step, s2):
            return [f'ds_read_b128 {vr(Xf[s2][tt],4)}, {vr(vXr[step%3][s2])} offset:{tt*2048}' for tt in range(2)]
        def rd_w(step, s2, h, idx):
            ty, sec, sub, e = kinds[grp[h][idx]]
            base = (vWa if ty == 'P' else vWb)[step % 3]
            col = sec*160 + {'P': sub*80 + e*8, 'T': 32, 'V': sub*32}[ty]
            return [f'ds_read_b64_tr_b16 {vr(Wf[h][idx]+2*rd,2)}, {vr(base)} offset:{(32*s2+8*rd)*480 + col}' for rd in range(2)]
        def mf(s2, h, idx):
            ct = grp[h][idx]
            out = []
            for tt in range(2):
                A, B = Wf[h][idx], Xf[s2][tt]
                if kinds[ct][0] == 'V':
                    A, B = B, A
                out.append(f'v_mfma_f32_16x16x32_bf16 {vr(acc[ct][tt],4)}, {vr(A,4)}, {vr(B,4)}, {vr(acc[ct][tt],4)}')
            return out
        n0, n1 = 2 + 2*len(grp[0]), 2*len(grp[1])
        def phase(s2, h, nxt):
            if nxt is not None and h == 0:
                for r in rd_x(*nxt): a(r)
            for idx in range(len(grp[h])):
                for m in mf(s2, h, idx): a(m)
                if nxt is not None:
                    for r in rd_w(nxt[0], nxt[1], h, idx): a(r)
        st1()
        a('s_waitcnt vmcnt(0)')
        a(f'v_readfirstlane_b32 {sr(sTag)}, {vr(vEp7)}')
        a('s_barrier')
        a(f's_add_u32 {sr(sTag)}, {sr(sTag)}, {TAGK}')
        rts(1)
        st()
        for r in rd_x(0, 0): a(r)
        for h in range(2):
            for idx in range(len(grp[h])):
                for r in rd_w(0, 0, h, idx): a(r)
        for step in range(10):
            if step == 9 and hsplit:
                a('s_barrier')
            a(f's_waitcnt lgkmcnt({n1})')
            phase(0, 0, (step, 1))
            a(f's_waitcnt lgkmcnt({n0})')
            phase(0, 1, (step, 1))
            a('s_waitcnt lgkmcnt(0)')
            a('s_barrier')
            if step == 0 and wn == 1:
                a(f'v_mov_b32 {vr(vCi7)}, 1')
                a(f'buffer_atomic_add {vr(vCi7)}, {vr(vZ7)}, {sr(SDBG,4)}, 0 offen sc0')
            if step in (0, 4): st0()
            if step in (0, 1, 2, 8): st1()
            if step in (8, 9): st4()
            nx = (step + 1, 0) if step < 9 else None
            phase(1, 0, nx)
            phase(1, 1, nx)
        st0(); st4()
        rts(2)
        if wn == 1:
            a(f'''s_waitcnt vmcnt(0)
v_cmp_eq_u32 vcc, 255, {vr(vCi7)}
v_add_u32 {vr(vEp7)}, {TAGK}, {vr(vEp7)}
v_mov_b32 {vr(vT1)}, {OOB}
s_mov_b32 {sr(sT)}, {F_EPOCH}
v_cndmask_b32 {vr(vZ7)}, {vr(vT1)}, {vr(vZ7)}, vcc
buffer_store_dword {vr(vEp7)}, {vr(vZ7)}, {sr(SWS,4)}, {sr(sT)} offen{SC}''')
        def scale(r0):
            a(f'v_pk_mul_f32 {vr(r0,2)}, {vr(r0,2)}, {sr(sScale,2)}')
            a(f'v_pk_mul_f32 {vr(r0+2,2)}, {vr(r0+2,2)}, {sr(sScale,2)}')
        def pack4(d, x, y):
            a(f'v_cvt_pk_bf16_f32 {vr(d)}, {vr(x)}, {vr(x+1)}')
            a(f'v_cvt_pk_bf16_f32 {vr(d+1)}, {vr(x+2)}, {vr(x+3)}')
            if y is not None:
                a(f'v_cvt_pk_bf16_f32 {vr(d+2)}, {vr(y)}, {vr(y+1)}')
                a(f'v_cvt_pk_bf16_f32 {vr(d+3)}, {vr(y+2)}, {vr(y+3)}')
        def stage(want):
          ct = 0
          while ct < nct:
            ty, sec, sub, e = kinds[ct]
            if (sec == 0) != want:
                ct += 1
                continue
            if ty == 'P':
                for tt in range(2):
                    x, y = acc[ct][tt], acc[ct+1][tt]
                    if sec == 0:
                        scale(x); scale(y)
                    pack4(x, x, y)
                    if sec == 0:
                        a(f'ds_write_b128 {vr(vE[2])}, {vr(x,4)} offset:{sub*10240 + tt*256}')
                    else:
                        a(f'ds_write_b128 {vr(vE[0])}, {vr(x,4)} offset:{sub*20480 + tt*64}')
                ct += 2
            elif ty == 'T':
                for tt in range(2):
                    x = acc[ct][tt]
                    if sec == 0:
                        scale(x)
                    pack4(x, x, None)
                    if sec == 0:
                        a(f'ds_write_b64 {vr(vE[3])}, {vr(x,2)} offset:{tt*128}')
                    else:
                        a(f'ds_write_b64 {vr(vE[1])}, {vr(x,2)} offset:{tt*32}')
                ct += 1
            else:
                x, y = acc[ct][0], acc[ct][1]
                pack4(x, x, y)
                a(f'ds_write_b128 {vr(vE[1+sub])}, {vr(x,4)}')
                ct += 1
        stage(False)
        a('s_waitcnt lgkmcnt(0)')
        st4()
        a('s_barrier')
        st4()
        PB = Xf[0][0]
        assert Wf[0][0] == PB + 16
        if pub4:
            if wn == 0:
                stage(True)
            else:
                for q in range(10):
                    a(f'ds_read_b128 {vr(PB+4*q,4)}, {vr(vPub)} offset:{q*1024}')
                for q in range(10):
                    if q == 4: a(f's_add_u32 {sr(sPub)}, {sr(sPub)}, 4096')
                    if q == 8: a(f's_add_u32 {sr(sPub)}, {sr(sPub)}, 4096')
                    a(f's_waitcnt lgkmcnt({9 - q})')
                    a(f'buffer_store_dwordx4 {vr(PB+4*q,4)}, {vr(vQo)}, {sr(SWS,4)}, {sr(sPub)} offen offset:{(q%4)*1024}{SST}')
        else:
          for q in range(5):
            a(f'ds_read_b128 {vr(PB+4*q,4)}, {vr(vPub)} offset:{q*1024}')
          stage(True)
          nq = 6 if wn == 0 else 0
          for q in range(5):
            a(f's_waitcnt lgkmcnt({4 - q + nq})')
            a(f'buffer_store_dwordx4 {vr(PB+4*q,4)}, {vr(vQo)}, {sr(SWS,4)}, {sr(sPub if q < 4 else sPub2)} offen offset:{(q%4)*1024}{SST}')
        a('s_nop 1')
        st4()
    n_st = st.n
    p1_variant(0)
    a(f's_branch {name}_p2')
    a.label(f'{name}_p1b')
    st.n = n_st
    p1_variant(1)
    a.label(f'{name}_p2')

    V = VAlloc(VB2 + 3)
    Q1 = [V(4), V(4)]; Q2 = [V(2), V(2)]
    K1 = [V(4), V(4)]; K2 = [V(2), V(2)]
    V0 = [V(4), V(4)]; V1 = [V(4), V(4)]
    O = [V(16), V(16)]
    S = [V(16), V(16)]
    vPw = V(2); vPa = V(); vPo_ = V(); vPg = V()
    done_alloc(V)
    for t in range(2):
        for i in range(16):
            a(f'v_mov_b32 {vr(O[t]+i)}, 0')
    for i in range(4):
        a(f'v_mov_b32 {vr(V1[1]+i)}, 0')
    a(f's_mov_b32 {sr(sG)}, 0')
    a(f's_mov_b32 {sr(sOff)}, 0')
    if nobar:
        a(f'''s_lshl_b32 {sr(sT)}, {sr(sW)}, 3
s_add_u32 {sr(sT2)}, {sr(sT)}, {LW_PW + 4}
s_xor_b32 {sr(sT)}, {sr(sT)}, 32
s_add_u32 {sr(sT)}, {sr(sT)}, {LW_PW}
v_mov_b32 {vr(vPa)}, {sr(sT)}
v_mov_b32 {vr(vPo_)}, {sr(sT2)}
v_mov_b32 {vr(vPg)}, 0''')
    a('s_waitcnt lgkmcnt(0)')
    a('s_barrier')
    st0(); st4()
    def rdK(s_, u, part='R'):
        if part != 'Rb': a(f'ds_read_b128 {vr(K1[s_],4)}, {vr(vaK1)} offset:{2560*u}')
        if part != 'Ra': a(f'ds_read_b64 {vr(K2[s_],2)}, {vr(vaK2)} offset:{2560*u}')
    def rdV(s_, u, part='R'):
        if part != 'Rb': a(f'ds_read_b128 {vr(V0[s_],4)}, {vr(vaV)} offset:{2560*u}')
        if part != 'Ra': a(f'ds_read_b128 {vr(V1[s_],4)}, {vr(vaV)} offset:{2560*u+640}')
    def qk16(t, s_):
        a(f'v_mfma_f32_32x32x16_bf16 {vr(S[t],16)}, {vr(K1[s_],4)}, {vr(Q1[t],4)}, 0')
    def qk8(t, s_):
        a(f'v_mfma_f32_32x32x8_bf16 {vr(S[t],16)}, {vr(K2[s_],2)}, {vr(Q2[t],2)}, {vr(S[t],16)}')
    def pv(t, s_, n):
        Vf = (V0, V1)[n][s_]
        a(f'v_smfmac_f32_32x32x32_bf16 {vr(O[t],16)}, {vr(Vf,4)}, {vr(S[t]+8*n,8)}, {vr(vIdx)}')
    def rowmax(t, dst):
        s = S[t]
        a(f'v_max3_f32 {vr(dst)}, {vr(s)}, {vr(s+1)}, {vr(s+2)}')
        for i in range(3, 15, 2):
            a(f'v_max3_f32 {vr(dst)}, {vr(dst)}, {vr(s+i)}, {vr(s+i+1)}')
        a(f'v_max_f32 {vr(dst)}, {vr(dst)}, {vr(s+15)}')
    def crosshalf(x, y):
        a(f'v_mov_b32 {vr(y)}, {vr(x)}')
        a('s_nop 1')
        a(f'v_permlane32_swap_b32 {vr(x)}, {vr(y)}')
        a('s_nop 1')
    for t in range(2):
        a(f'ds_read_b128 {vr(Q1[t],4)}, {vr(vQs1)} offset:{1280*t}')
        a(f'ds_read_b64 {vr(Q2[t],2)}, {vr(vQs2)} offset:{1280*t}')
    rdK(0, 0); rdK(1, 1); rdV(0, 0)
    a('s_waitcnt lgkmcnt(4)')
    for t in range(2):
        a(f'v_cndmask_b32_e64 {vr(Q2[t])}, {vr(Q2[t])}, 0, {sr(sHi,2)}')
        a(f'v_cndmask_b32_e64 {vr(Q2[t]+1)}, {vr(Q2[t]+1)}, 0, {sr(sHi,2)}')
    qk16(0, 0); qk8(0, 0); qk16(1, 0); qk8(1, 0)
    a('s_nop 9')
    for t in range(2):
        if t == 1: a('s_nop 1')
        rowmax(t, vT0)
        crosshalf(vT0, vT1)
        a(f'''v_max_f32 {vr(vT0)}, {vr(vT0)}, {vr(vT1)}
v_sub_f32 {vr(vT0)}, 0, {vr(vT0)}
v_and_b32 {vr(vT1)}, 0xffff0000, {vr(vT0)}
v_sub_f32 {vr(vT0)}, {vr(vT0)}, {vr(vT1)}
v_and_b32 {vr(vT2)}, 0xffff0000, {vr(vT0)}
v_sub_f32 {vr(vT0)}, {vr(vT0)}, {vr(vT2)}
v_lshrrev_b32 {vr(vT1)}, 16, {vr(vT1)}
v_or_b32 {vr(vT1)}, {vr(vT1)}, {vr(vT2)}
v_lshrrev_b32 {vr(vT0)}, 16, {vr(vT0)}
v_cndmask_b32_e64 {vr(Q2[t])}, {vr(Q2[t])}, {vr(vT1)}, {sr(sHi,2)}
v_cndmask_b32_e64 {vr(Q2[t]+1)}, {vr(Q2[t]+1)}, {vr(vT0)}, {sr(sHi,2)}''')
        if t == 0:
            qk16(0, 0)
            a('s_nop 0')
            qk8(0, 0)
    for i in range(8, 16):
        a(f'v_mov_b32 {vr(S[1]+i)}, 0')
    st4()
    a(f'''s_lshl_b32 {sr(sT)}, {sr(sB)}, 3
s_add_u32 {sr(sT)}, {sr(sT)}, {sr(sHg)}
s_lshl_b32 {sr(sT)}, {sr(sT)}, 6
s_add_u32 {sr(sT)}, {sr(sT)}, {sr(sMt)}
s_lshl_b32 {sr(sT)}, {sr(sT)}, 2
s_add_u32 {sr(sT)}, {sr(sT)}, {F_FLAG1}
s_mov_b64 exec, 1
v_mov_b32 {vr(vT0)}, 1
v_mov_b32 {vr(vT2)}, {LW_CNT1}
v_mov_b32 {vr(vT1)}, {sr(sTag)}
v_mov_b32 {vr(vT3)}, {sr(sT)}
s_waitcnt vmcnt(0)
ds_add_rtn_u32 {vr(vT0)}, {vr(vT2)}, {vr(vT0)}
s_waitcnt lgkmcnt(0)
v_readfirstlane_b32 {sr(sT)}, {vr(vT0)}
s_cmp_eq_u32 {sr(sT)}, 7
s_cbranch_scc0 {name}_nl1
buffer_store_dword {vr(vT1)}, {vr(vT3)}, {sr(SWS,4)}, 0 offen{SC}''')
    a.label(f'{name}_nl1')
    a('s_mov_b64 exec, -1')
    prio = opts.get('prio', 1)
    rts(3)
    st0(); st4()
    if sset == 2: st()
    a('.p2align 6')
    a.label(f'{name}_loop')
    def ex(t, i):
        a(f'v_exp_f32 {vr(S[t]+i)}, {vr(S[t]+i)}')
    scheds = {1: 'e e P2 e e e e Q16 e e e e Q8 R e e e e P1 W e e',
              2: 'e e P2 e e e e Q16 e e e Q8 R e e e e e P1 W e e',
              3: 'e e P2 e e e e Q16 e e e e Q8 e R e e e P1 e W e',
              4: 'e e P2 e e e Q16 e e e e Q8 R e e e e P1 W e e e',
              5: 'e e W P2 e e e e Ra Q16 e e e e Rb Q8 e e e e P1 e e',
              6: 'e e W P2 e e e e R Q16 e e e e Q8 e e e e P1 e e',
              7: 'e e W P2 e e e e Q16 e e e e Ra Q8 e e e e Rb P1 e e',
              8: 'e e P2 e e e e Ra Q16 e e e e Rb Q8 e e e e W P1 e e',
              9: 'e e P2 e e e e Q16 e e e e Q8 e e e e R W P1 e e',
              10: 'e e P2 Ra e e e e Q16 Rb e e e e Q8 W e e e e P1 e e',
              11: 'e e P2 Ra e e e e Q16 Rb e e e e Q8 e e e e P1 W e e',
              12: 'e e P2 R e e e e Q16 e e e e Q8 e e e e P1 W e e',
              13: 'e e P2 R W e e e e Q16 e e e e Q8 e e e e P1 e e',
              14: 'e e P2 Ra e e e e Q16 e e e e Q8 e e e e P1 Rb W e e',
              15: 'e e P2 R e e e e Q16 e e e e Q8 W e e e e P1 e e'}
    sched = scheds[opts.get('sched', 12)].split()
    unroll = opts.get('unroll', 1)
    ptab = {1: {(0, 0): 2, (1, 0): 1, (2, 0): 0, (3, 0): 3},
            2: {(3, 0): 1, (1, 0): 0},
            3: {(3, 0): 3, (3, 1): 2, (0, 1): 1, (1, 1): 0},
            6: {(3, 0): 3, (0, 1): 2, (1, 1): 1, (2, 0): 0}}.get(prio, {})
    for rep in range(unroll):
      for j in range(4):
        for t in range(2):
            pj = j if t == 1 else j - 1
            nj = j if t == 0 else j + 1
            if (j, t) in ptab and nobar != 1:
                a(f's_setprio {ptab[(j, t)]}')
            e = 0
            for tok in sched:
                if tok == 'e':
                    ex(t, e); e += 1
                elif tok == 'P2':
                    pv(1 - t, pj % 2, 1)
                elif tok == 'P1':
                    pv(t, j % 2, 0)
                elif tok == 'Q16':
                    qk16(1 - t, nj % 2)
                elif tok == 'Q8':
                    qk8(1 - t, nj % 2)
                elif tok == 'W':
                    a(f's_waitcnt lgkmcnt({3 if nobar and (j, t) in ((2, 0), (2, 1)) else 2})')
                elif tok == 'Rb':
                    if t == 0: rdV((j + 1) % 2, (j + 1) % 4, 'Rb')
                    else: rdK(j % 2, (j + 2) % 4, 'Rb')
                elif tok in ('R', 'Ra'):
                    if t == 0:
                        if j == 3:
                            a(f'v_mad_u32_u24 {vr(vaV)}, {vr(vmV)}, {sr(sOff)}, {vr(vbV)}')
                        rdV((j + 1) % 2, (j + 1) % 4, tok)
                        if j == 2 and nobar:
                            a(f'ds_read_b64 {vr(vPw,2)}, {vr(vPa)}')
                    else:
                        if j == 2:
                            a(f'''s_add_u32 {sr(sOff)}, {sr(sOff)}, {SLOT}
s_cmp_ge_u32 {sr(sOff)}, {3*SLOT}
s_cselect_b32 {sr(sOff)}, 0, {sr(sOff)}''')
                            if nobar:
                                a(f'''v_add_u32 {vr(vPg)}, 1, {vr(vPg)}
s_add_u32 {sr(sT3)}, {sr(sG)}, {rep + 1}
s_waitcnt lgkmcnt(0)
v_readfirstlane_b32 {sr(sT)}, {vr(vPw)}
v_readfirstlane_b32 {sr(sT2)}, {vr(vPw+1)}
ds_write_b32 {vr(vPo_)}, {vr(vPg)}''')
                                if nobar == 1:
                                    a(f'''s_setprio 0
s_cmp_lt_u32 {sr(sT2)}, {sr(sT3)}
s_cbranch_scc1 {name}_lo{rep}
s_setprio 1''')
                                    a.label(f'{name}_lo{rep}')
                                elif nobar == 2:
                                    a(f's_add_u32 {sr(sT2)}, {sr(sT2)}, {1 + opts.get("slack", 0)}')
                                    a(f's_min_u32 {sr(sT)}, {sr(sT)}, {sr(sT2)}')
                                a(f's_cmp_gt_u32 {sr(sT)}, {sr(sT3)}')
                                a(f's_cbranch_scc0 {name}_spin{rep}')
                                a.label(f'{name}_spun{rep}')
                            else:
                                a('s_waitcnt lgkmcnt(0)')
                                a('s_barrier')
                            if sset == 2 and st.on:
                                for K in (0, 1, 2, 3, 8, 14):
                                    a(f's_cmp_eq_u32 {sr(sG)}, {K}')
                                    a(f's_cbranch_scc0 {name}_sk{K}')
                                    st()
                                    a.label(f'{name}_sk{K}')
                            a(f'''v_add_u32 {vr(vaK1)}, {sr(sOff)}, {vr(vbK1)}
v_mad_u32_u24 {vr(vaK2)}, {vr(vmK2)}, {sr(sOff)}, {vr(vbK2)}''')
                        rdK(j % 2, (j + 2) % 4, tok)
            assert e == 16
    a(f'''s_add_u32 {sr(sG)}, {sr(sG)}, {unroll}
s_cmp_lt_u32 {sr(sG)}, 16
s_cbranch_scc1 {name}_loop''')
    a('s_nop 1')
    pv(1, 1, 1)
    if ptab or nobar:
        a('s_setprio 0')
    st0()
    if sset in (2, 3): st()
    L = [vT2, vT3]
    rts(4)
    a('s_waitcnt lgkmcnt(0)')
    a(f's_mov_b32 {sr(sI)}, 0')
    a.label(f'{name}_store')
    a(f's_mov_b32 {sr(sM)}, 0xaaaaaaaa')
    a(f's_mov_b32 {sr(sM+1)}, 0xaaaaaaaa')
    for t in range(2):
        a(f'v_mov_b32 {vr(vT0)}, {vr(O[t]+8)}')
        crosshalf(vT0, L[t])
        a(f'v_rcp_f32 {vr(vT0)}, {vr(L[t])}')
        a('s_nop 0')
        for i in range(12):
            a(f'v_mul_f32 {vr(O[t]+i)}, {vr(O[t]+i)}, {vr(vT0)}')
        for i in range(4):
            a(f'v_cvt_pk_bf16_f32 {vr(S[t]+i)}, {vr(O[t]+2*i)}, {vr(O[t]+2*i+1)}')
        a(f'buffer_store_dwordx4 {vr(S[t],4)}, {vr(vQo)}, {sr(SWS,4)}, {sr(sOo)} offen offset:{1024*t}{SST}')
        for i in range(2):
            a(f'v_cvt_pk_bf16_f32 {vr(S[0]+4+2*t+i)}, {vr(O[t]+8+2*i)}, {vr(O[t]+8+2*i+1)}')
    ta, tb, X, Y = S[0]+4, S[0]+6, S[0]+8, S[0]+12
    a(f'''v_cndmask_b32_e64 {vr(X)}, {vr(tb)}, {vr(ta)}, {sr(sM,2)}
v_cndmask_b32_e64 {vr(X+1)}, {vr(tb+1)}, {vr(ta+1)}, {sr(sM,2)}
v_lshrrev_b32 {vr(vT0)}, 1, {vr(vLane)}
v_and_b32 {vr(vT1)}, 1, {vr(vLane)}
v_mov_b32_dpp {vr(X+2)}, {vr(X)} quad_perm:[1,0,3,2] row_mask:0xf bank_mask:0xf
v_mov_b32_dpp {vr(X+3)}, {vr(X+1)} quad_perm:[1,0,3,2] row_mask:0xf bank_mask:0xf
v_lshlrev_b32 {vr(vT0)}, 4, {vr(vT0)}
v_lshl_add_u32 {vr(vT0)}, {vr(vT1)}, 8, {vr(vT0)}
v_mov_b32 {vr(vT1)}, {OOB}
v_cndmask_b32_e64 {vr(Y)}, {vr(ta)}, {vr(X+2)}, {sr(sM,2)}
v_cndmask_b32_e64 {vr(Y+1)}, {vr(ta+1)}, {vr(X+3)}, {sr(sM,2)}
v_cndmask_b32_e64 {vr(Y+2)}, {vr(X+2)}, {vr(tb)}, {sr(sM,2)}
v_cndmask_b32_e64 {vr(Y+3)}, {vr(X+3)}, {vr(tb+1)}, {sr(sM,2)}
v_cndmask_b32_e64 {vr(vT0)}, {vr(vT0)}, {vr(vT1)}, {sr(sHi,2)}
buffer_store_dwordx4 {vr(Y,4)}, {vr(vT0)}, {sr(SWS,4)}, {sr(sOo)} offen offset:2048{SST}''')
    st0()
    for t in range(2):
        sm = sM if t == 0 else sM2
        a(f'v_mul_f32 {vr(vT1)}, 0, {vr(O[t])}')
        for i in range(1, 12):
            a(f'v_fmac_f32 {vr(vT1)}, 0, {vr(O[t]+i)}')
        a(f'v_add_f32 {vr(vT1)}, {vr(vT1)}, {vr(L[t])}')
        a(f'v_cmp_gt_f32 vcc, 0x53800000, {vr(vT1)}')
        a(f's_mov_b64 {sr(sm,2)}, vcc')
        a(f'v_cmp_lt_f32 vcc, 0x35800000, {vr(vT1)}')
        a(f's_and_b64 {sr(sm,2)}, {sr(sm,2)}, vcc')
    a(f'''s_and_b64 {sr(sM,2)}, {sr(sM,2)}, {sr(sM2,2)}
s_cmp_eq_u64 {sr(sM,2)}, -1
s_cselect_b32 {sr(sT)}, 1, {sr(sI)}
s_cmp_eq_u32 {sr(sT)}, 0
s_cbranch_scc1 {name}_fallback''')

    V = VAlloc(VBASE)
    vAo = V(); vAt = V(); vWm0 = V(); vWt0 = V(); vOo = V(); vRd = V(); vDn = V()
    vWm = [V() for _ in range(4)]; vWt = [V() for _ in range(4)]
    acc3 = [V(4) for _ in range(5)]
    assert V.n <= S[0]
    Wg = [[V(4) for _ in range(5)] for _ in range(2)]
    A = [[V(4) for _ in range(5)] for _ in range(4)]
    done_alloc(V)
    a(f'''s_lshl_b32 {sr(sT)}, {sr(sB)}, 4
s_add_u32 {sr(sT)}, {sr(sT)}, {sr(sMt3)}
s_lshl_b32 {sr(sT)}, {sr(sT)}, 1
s_lshr_b32 {sr(sT2)}, {sr(sW)}, 2
s_add_u32 {sr(sT)}, {sr(sT)}, {sr(sT2)}
s_mul_i32 {sr(sA)}, {sr(sT)}, {32*2560}
s_add_u32 {sr(sA)}, {sr(sA)}, {F_WS_O}
s_and_b32 {sr(sT)}, {sr(sW)}, 1
s_lshl_b32 {sr(sT)}, {sr(sT)}, 4
s_bfe_u32 {sr(sT2)}, {sr(sW)}, 0x10001
v_and_b32 {vr(vT0)}, 15, {vr(vLane)}
v_add_u32 {vr(vT0)}, {sr(sT)}, {vr(vT0)}
v_lshlrev_b32 {vr(vT0)}, 4, {vr(vT0)}
v_lshrrev_b32 {vr(vT1)}, 5, {vr(vLane)}
v_mul_u32_u24 {vr(vT1)}, 2560, {vr(vT1)}
v_bfe_u32 {vr(vT2)}, {vr(vLane)}, 4, 1
v_lshl_add_u32 {vr(vT1)}, {vr(vT2)}, 9, {vr(vT1)}
s_lshl_b32 {sr(sT3)}, {sr(sT2)}, 10
v_add3_u32 {vr(vAo)}, {vr(vT0)}, {vr(vT1)}, {sr(sT3)}
v_lshrrev_b32 {vr(vT1)}, 4, {vr(vLane)}
v_mul_u32_u24 {vr(vT1)}, 2560, {vr(vT1)}
s_lshl_b32 {sr(sT3)}, {sr(sT2)}, 8
s_add_u32 {sr(sT3)}, {sr(sT3)}, 2048
v_lshrrev_b32 {vr(vT0)}, 1, {vr(vT0)}
v_add3_u32 {vr(vAt)}, {vr(vT0)}, {vr(vT1)}, {sr(sT3)}
v_bfe_u32 {vr(vT0)}, {vr(vLane)}, 2, 2
v_lshrrev_b32 {vr(vT1)}, 5, {vr(vLane)}
v_mul_u32_u24 {vr(vT1)}, 20, {vr(vT1)}
v_bfe_u32 {vr(vT2)}, {vr(vLane)}, 4, 1
v_lshl_add_u32 {vr(vT1)}, {vr(vT2)}, 2, {vr(vT1)}
v_add_u32 {vr(vT1)}, {vr(vT1)}, {vr(vT0)}
v_mul_u32_u24 {vr(vT1)}, 160, {vr(vT1)}
v_and_b32 {vr(vT2)}, 3, {vr(vLane)}
v_lshl_add_u32 {vr(vWm0)}, {vr(vT2)}, 3, {vr(vT1)}
v_lshrrev_b32 {vr(vT1)}, 4, {vr(vLane)}
v_mul_u32_u24 {vr(vT1)}, 20, {vr(vT1)}
v_add3_u32 {vr(vT1)}, {vr(vT1)}, {vr(vT0)}, 16
v_mul_u32_u24 {vr(vT1)}, 160, {vr(vT1)}
v_lshl_add_u32 {vr(vWt0)}, {vr(vT2)}, 3, {vr(vT1)}
s_lshl_b32 {sr(sT)}, {sr(sMt3)}, 7
s_lshl_b32 {sr(sT2)}, {sr(sW)}, 4
s_add_u32 {sr(sT)}, {sr(sT)}, {sr(sT2)}
v_and_b32 {vr(vT0)}, 15, {vr(vLane)}
v_add_u32 {vr(vT0)}, {sr(sT)}, {vr(vT0)}
v_mul_u32_u24 {vr(vT0)}, 2560, {vr(vT0)}
v_lshrrev_b32 {vr(vT1)}, 4, {vr(vLane)}
v_lshl_add_u32 {vr(vT0)}, {vr(vT1)}, 3, {vr(vT0)}
s_mul_i32 {sr(sT)}, {sr(sB)}, 1280
s_mul_i32 {sr(sT2)}, {sr(sCg)}, 160
s_add_u32 {sr(sT)}, {sr(sT)}, {sr(sT2)}
v_add_u32 {vr(vOo)}, {sr(sT)}, {vr(vT0)}
v_mov_b32 {vr(vRd)}, {LW_RDY}
s_lshl_b32 {sr(sT)}, {sr(sB)}, 4
s_add_u32 {sr(sT)}, {sr(sT)}, {sr(sMt)}
s_lshl_b32 {sr(sT)}, {sr(sT)}, 6
s_add_u32 {sr(sT)}, {sr(sT)}, {sr(sHg)}
s_lshl_b32 {sr(sT)}, {sr(sT)}, 2
s_add_u32 {sr(sT)}, {sr(sT)}, {F_FLAG2}
v_mov_b32 {vr(vDn)}, {sr(sT)}
v_add_u32 {vr(vWm0)}, {WO_LO}, {vr(vWm0)}
v_add_u32 {vr(vWt0)}, {WO_LO}, {vr(vWt0)}
s_and_b32 {sr(sT3)}, {sr(sCg)}, {opts.get('rot3', 3)}
s_lshl_b32 {sr(sT3)}, {sr(sT3)}, 1
s_mov_b32 {sr(sDone)}, 0''')
    for t in range(5):
        for i in range(4):
            a(f'v_mov_b32 {vr(acc3[t]+i)}, 0')
    tid_ = [0]
    base3 = st.n
    if sset == 3: st.n += 4
    def read_rdy():
        a(f'''ds_read_b64 {vr(vT0,2)}, {vr(vRd)}
s_waitcnt lgkmcnt(0)
v_and_b32 {vr(vT0)}, {vr(vT0)}, {vr(vT1)}
s_nop 0
v_readfirstlane_b32 {sr(sT)}, {vr(vT0)}
s_andn2_b32 {sr(sT)}, {sr(sT)}, {sr(sDone)}''')
    def loads(s_):
        a(f'''s_lshl_b32 {sr(sT2)}, {sr(sT)}, 8
s_or_b32 {sr(sT)}, {sr(sT)}, {sr(sT2)}
s_lshr_b32 {sr(sT)}, {sr(sT)}, {sr(sT3)}
s_ff1_i32_b32 {sr(sT)}, {sr(sT)}
s_add_u32 {sr(sT)}, {sr(sT)}, {sr(sT3)}
s_and_b32 {sr(sT)}, {sr(sT)}, 7
s_bitset1_b32 {sr(sDone)}, {sr(sT)}
s_mul_i32 {sr(sT2)}, {sr(sT)}, 10240
s_add_u32 {sr(sT2)}, {sr(sT2)}, {sr(sA)}
s_cmp_eq_u32 {sr(sT)}, 6
s_mul_i32 {sr(sT)}, {sr(sT)}, 12800
s_cselect_b32 {sr(sT)}, {QST - WO_LO}, {sr(sT)}''')
        for p in range(4):
            a(f'buffer_load_dwordx4 {vr(A[s_][p],4)}, {vr(vAo)}, {sr(SWS,4)}, {sr(sT2)} offen{SLD}')
            if p == 0:
                a(f'buffer_load_dwordx2 {vr(A[s_][4],2)}, {vr(vAt)}, {sr(SWS,4)}, {sr(sT2)} offen{SLD}')
            if p == 2:
                a(f'buffer_load_dwordx2 {vr(A[s_][4]+2,2)}, {vr(vAt)}, {sr(SWS,4)}, {sr(sT2)} offen{SLD}')
            if p < 3:
                a(f's_add_u32 {sr(sT2)}, {sr(sT2)}, 5120')
        a(f'v_add_u32 {vr(vWm[s_])}, {sr(sT)}, {vr(vWm0)}')
        a(f'v_add_u32 {vr(vWt[s_])}, {sr(sT)}, {vr(vWt0)}')
        if sset == 3 and st.on:
            a(f's_memtime s[{62+2*(base3+s_)}:{63+2*(base3+s_)}]\ns_waitcnt lgkmcnt(0)')
    def take_group(s_):
        n = tid_[0]; tid_[0] += 1
        a.label(f'{name}_tg{n}')
        read_rdy()
        a(f'''s_cbranch_scc1 {name}_tgd{n}
s_sleep 1
s_branch {name}_tg{n}''')
        a.label(f'{name}_tgd{n}')
        loads(s_)
    a('s_waitcnt vmcnt(0)')
    a(f'''s_mov_b64 exec, 1
v_mov_b32 {vr(vT0)}, 1
ds_add_rtn_u32 {vr(vT0)}, {vr(vRd)}, {vr(vT0)} offset:8
v_mov_b32 {vr(vT1)}, {sr(sTag)}
v_mov_b32 {vr(vT2)}, 0xff
s_waitcnt lgkmcnt(0)
v_readfirstlane_b32 {sr(sT)}, {vr(vT0)}
s_cmp_eq_u32 {sr(sT)}, 7
s_cbranch_scc0 {name}_nl
buffer_store_dword {vr(vT1)}, {vr(vDn)}, {sr(SWS,4)}, 0 offen{SC}
ds_write_b32 {vr(vRd)}, {vr(vT2)} offset:4''')
    a.label(f'{name}_nl')
    a('s_mov_b64 exec, -1')
    if sset == 3: st()
    def rdW3(fs, j, p, t):
        out = []
        for rd in range(2):
            if p < 4:
                base, off = vWm[j], (20*(2*p) + 8*rd)*160 + t*32
            else:
                base, off = vWt[j], (20*(4*rd))*160 + t*32
            out.append(f'ds_read_b64_tr_b16 {vr(Wg[fs][t]+2*rd,2)}, {vr(base)} offset:{off}')
        return out
    if opts.get('evt', 1):
        st0()
        sJ = sG
        a(f's_mov_b32 {sr(sI)}, 0')
        a(f's_mov_b32 {sr(sJ)}, 0')
        a.label(f'{name}_ev')
        a(f's_cmp_lt_u32 {sr(sI)}, 4')
        a(f's_cbranch_scc0 {name}_evc')
        read_rdy()
        a(f's_cbranch_scc0 {name}_evn')
        for i in range(4):
            if i < 3:
                a(f's_cmp_eq_u32 {sr(sI)}, {i}')
                a(f's_cbranch_scc0 {name}_evt{i}')
            loads(i)
            a(f's_mov_b32 {sr(sI)}, {i+1}')
            a(f's_branch {name}_ev')
            a.label(f'{name}_evt{i}')
        a.label(f'{name}_evn')
        a(f'''s_getreg_b32 {sr(sT)}, hwreg(HW_REG_IB_STS)
s_bfe_u32 {sr(sT2)}, {sr(sT)}, 0x20016
s_lshl_b32 {sr(sT2)}, {sr(sT2)}, 4
s_and_b32 {sr(sT)}, {sr(sT)}, 15
s_or_b32 {sr(sT)}, {sr(sT)}, {sr(sT2)}
s_add_u32 {sr(sT)}, {sr(sT)}, 6
s_sub_u32 {sr(sT2)}, {sr(sI)}, {sr(sJ)}
s_mul_i32 {sr(sT2)}, {sr(sT2)}, 6
s_cmp_le_u32 {sr(sT)}, {sr(sT2)}
s_cbranch_scc1 {name}_evc
s_sleep 1
s_branch {name}_ev''')
        a.label(f'{name}_evc')
        for j in range(4):
            if j < 3:
                a(f's_cmp_eq_u32 {sr(sJ)}, {j}')
                a(f's_cbranch_scc0 {name}_evk{j}')
            for p in range(2):
                for t in range(5):
                    for r in rdW3(p, j, p, t): a(r)
            for k in range(4, j + 1, -1):
                a(f's_cmp_eq_u32 {sr(sI)}, {k}')
                a(f's_cbranch_scc0 {name}_evw{j}_{k}')
                a(f's_waitcnt vmcnt({6*(k-j-1)})')
                a(f's_branch {name}_evx{j}')
                a.label(f'{name}_evw{j}_{k}')
            a('s_waitcnt vmcnt(0)')
            a.label(f'{name}_evx{j}')
            if sset == 3 and j in (0, 3): st()
            for p in range(5):
                fs = p % 2
                a(f's_waitcnt lgkmcnt({10 if p < 4 else 0})')
                for t in range(5):
                    a(f'v_mfma_f32_16x16x32_bf16 {vr(acc3[t],4)}, {vr(Wg[fs][t],4)}, {vr(A[j][p],4)}, {vr(acc3[t],4)}')
                    if p + 2 < 5:
                        for r in rdW3(fs, j, p + 2, t): a(r)
            if j < 3:
                a(f's_mov_b32 {sr(sJ)}, {j+1}')
                a(f's_branch {name}_ev')
                a.label(f'{name}_evk{j}')
    else:
        st0()
        steps = [(j, p) for j in range(4) for p in range(5)]
        for j in range(4):
            take_group(j)
        for n in range(2):
            for t in range(5):
                for r in rdW3(n, *steps[n], t): a(r)
        left = {0: 5, 1: 3, 2: 2, 3: 0, 4: 0}
        for n, (j, p) in enumerate(steps):
            fs = n % 2
            a(f's_waitcnt vmcnt({6*(3-j) + left[p]}) lgkmcnt({10 if n < 19 else 0})')
            if sset == 3 and n in (0, 18): st()
            for t in range(5):
                a(f'v_mfma_f32_16x16x32_bf16 {vr(acc3[t],4)}, {vr(Wg[fs][t],4)}, {vr(A[j][p],4)}, {vr(acc3[t],4)}')
                if n + 2 < 20:
                    for r in rdW3(fs, *steps[n+2], t): a(r)

    a('s_nop 3')
    st0()
    if sset == 3: st()
    OUTF = {0: '', 1: ' nt', 2: ' sc1'}[opts.get('outf', 0)]
    for t in range(5):
        a(f'v_cvt_pk_bf16_f32 {vr(acc3[t])}, {vr(acc3[t])}, {vr(acc3[t]+1)}')
        a(f'v_cvt_pk_bf16_f32 {vr(acc3[t]+1)}, {vr(acc3[t]+2)}, {vr(acc3[t]+3)}')
        a(f'buffer_store_dwordx2 {vr(acc3[t],2)}, {vr(vOo)}, {sr(SOUT,4)}, 0 offen offset:{t*32}{OUTF}')
    if dbgt:
        a('s_waitcnt vmcnt(0)')
        rts(5)
        a('s_mov_b64 exec, 1')
        a(f's_not_b32 s62, s62')
        for k in range(6):
            a(f'v_mov_b32 {vr(vT0)}, {4+4*k}')
            a(f'v_mov_b32 {vr(vT1)}, s{62+2*k}')
            a(f'buffer_atomic_umax {vr(vT1)}, {vr(vT0)}, {sr(SDBG,4)}, 0 offen')
            a('s_nop 1')
    if st.on:
        a('s_waitcnt vmcnt(0)')
    st(); st.rt(); st.flush(sW)
    n_total = st.n
    a.label(f'{name}_done')
    a('s_endpgm')

    if nobar:
        for rep in range(unroll):
            a.label(f'{name}_spin{rep}')
            a(f'''ds_read_b64 {vr(vPw,2)}, {vr(vPa)}
s_waitcnt lgkmcnt(0)
v_readfirstlane_b32 {sr(sT)}, {vr(vPw)}''')
            if nobar == 2:
                a(f'''v_readfirstlane_b32 {sr(sT2)}, {vr(vPw+1)}
s_add_u32 {sr(sT2)}, {sr(sT2)}, {1 + opts.get("slack", 0)}
s_min_u32 {sr(sT)}, {sr(sT)}, {sr(sT2)}''')
            a(f'''s_cmp_gt_u32 {sr(sT)}, {sr(sT3)}
s_cbranch_scc0 {name}_spin{rep}
s_branch {name}_spun{rep}''')
    a.label(f'{name}_fallback')
    M = [vT4, vT5]
    vVo = vaV
    a(f'''v_cndmask_b32_e64 {vr(Q2[0])}, {vr(Q2[0])}, 0, {sr(sHi,2)}
v_cndmask_b32_e64 {vr(Q2[0]+1)}, {vr(Q2[0]+1)}, 0, {sr(sHi,2)}
v_cndmask_b32_e64 {vr(Q2[1])}, {vr(Q2[1])}, 0, {sr(sHi,2)}
v_cndmask_b32_e64 {vr(Q2[1]+1)}, {vr(Q2[1]+1)}, 0, {sr(sHi,2)}
v_mov_b32 {vr(M[0])}, 0xff800000
v_mov_b32 {vr(M[1])}, 0xff800000
v_mov_b32 {vr(vT1)}, {OOB}
s_lshr_b32 {sr(sT)}, {sr(sW)}, 1
s_mul_i32 {sr(sT)}, {sr(sT)}, 10240
v_subrev_u32 {vr(vT0)}, {sr(sT)}, {vr(vbV)}
v_cmp_eq_u32 vcc, 1, {vr(vmV)}
s_mov_b32 {sr(sT)}, {sr(sKV)}
s_mov_b32 {sr(sG)}, 0
v_cndmask_b32 {vr(vVo)}, {vr(vT1)}, {vr(vT0)}, vcc
s_mov_b64 {sr(sM2,2)}, vcc
s_waitcnt vmcnt(0)''')
    a.label(f'{name}_fb1')
    a(f'''buffer_load_dwordx4 {vr(K1[0],4)}, {vr(vQo)}, {sr(SWS,4)}, {sr(sT)} offen{SC}
buffer_load_dwordx2 {vr(K2[0],2)}, {vr(vQo2)}, {sr(SWS,4)}, {sr(sT)} offen{SC}
s_waitcnt vmcnt(0)''')
    qk16(0, 0); qk16(1, 0); qk8(0, 0); qk8(1, 0)
    a('s_nop 15')
    for t in range(2):
        rowmax(t, vT0)
        a(f'v_max_f32 {vr(M[t])}, {vr(M[t])}, {vr(vT0)}')
    a(f'''s_add_u32 {sr(sT)}, {sr(sT)}, 2560
s_add_u32 {sr(sG)}, {sr(sG)}, 1
s_cmp_lt_u32 {sr(sG)}, 64
s_cbranch_scc1 {name}_fb1''')
    for t in range(2):
        crosshalf(M[t], vT1)
        a(f'v_max_f32 {vr(M[t])}, {vr(M[t])}, {vr(vT1)}')
        for i in range(16):
            a(f'v_mov_b32 {vr(O[t]+i)}, 0')
    a(f's_mov_b32 {sr(sT)}, {sr(sKV)}')
    a(f's_mov_b32 {sr(sG)}, 0')
    a(f'v_mov_b32 {vr(vT1)}, 0x3f803f80')
    a.label(f'{name}_fb2')
    a(f'''buffer_load_dwordx4 {vr(K1[0],4)}, {vr(vQo)}, {sr(SWS,4)}, {sr(sT)} offen{SC}
buffer_load_dwordx2 {vr(K2[0],2)}, {vr(vQo2)}, {sr(SWS,4)}, {sr(sT)} offen{SC}
buffer_load_dwordx4 {vr(V0[0],4)}, {vr(vVo)}, {sr(SWS,4)}, {sr(sT)} offen{SC}
buffer_load_dwordx4 {vr(V1[0],4)}, {vr(vVo)}, {sr(SWS,4)}, {sr(sT)} offen offset:640{SC}
s_waitcnt vmcnt(0)''')
    qk16(0, 0); qk16(1, 0); qk8(0, 0); qk8(1, 0)
    for i in range(4):
        a(f'v_cndmask_b32_e64 {vr(V0[0]+i)}, {vr(vT1)}, {vr(V0[0]+i)}, {sr(sM2,2)}')
        a(f'v_cndmask_b32_e64 {vr(V1[0]+i)}, {vr(vT1)}, {vr(V1[0]+i)}, {sr(sM2,2)}')
    a('s_nop 15')
    for t in range(2):
        for i in range(16):
            a(f'v_sub_f32 {vr(S[t]+i)}, {vr(S[t]+i)}, {vr(M[t])}')
        for i in range(16):
            ex(t, i)
    a('s_nop 1')
    for t in range(2):
        pv(t, 0, 0); pv(t, 0, 1)
    a(f'''s_add_u32 {sr(sT)}, {sr(sT)}, 2560
s_add_u32 {sr(sG)}, {sr(sG)}, 1
s_cmp_lt_u32 {sr(sG)}, 64
s_cbranch_scc1 {name}_fb2''')
    a('s_nop 15')
    a(f's_mov_b32 {sr(sI)}, 1')
    a(f's_branch {name}_store')

    a.label(f'{name}_helper')
    st.n = n_common
    V = VAlloc(VBASE)
    vEp = V(); vL16 = V(); vFl = V()
    VH = V.n
    a('s_setprio 3')
    if opts.get('cpf', 0):
        a(f'''s_getpc_b64 {sr(sM,2)}
{name}_pc:
s_sub_u32 {sr(sM)}, {sr(sM)}, {name}_pc - {name}
s_subb_u32 {sr(sM+1)}, {sr(sM+1)}, 0
s_lshr_b32 {sr(sT)}, s2, 3
v_lshlrev_b32 {vr(vT0)}, 5, {vr(vLane)}
v_add_u32 {vr(vT0)}, {sr(sT)}, {vr(vT0)}
v_lshlrev_b32 {vr(vT0)}, 7, {vr(vT0)}
v_min_u32 {vr(vT0)}, {name}_end - {name} - 4, {vr(vT0)}
s_mov_b64 exec, 0xfff
global_load_dword {vr(vFl)}, {vr(vT0)}, {sr(sM,2)}
s_mov_b64 exec, -1''')
    elate = opts.get('elate', 0)
    if not elate:
        a(f'v_mov_b32 {vr(vT0)}, {F_EPOCH}')
        a(f'buffer_load_dword {vr(vEp)}, {vr(vT0)}, {sr(SWS,4)}, 0 offen{SC}')
    stl = opts.get('stl', 0)
    if stl:
        ns = max(ns, 72)
        if stl & 1:
            a(f's_mul_i32 {sr(sT)}, {sr(sMt3)}, {128*2560}')
            a(f's_load_dword s64, {sr(SOUT,2)}, {sr(sT)}')
            a(f's_add_u32 {sr(sT)}, {sr(sT)}, {128*2560-4}')
            a(f's_load_dword s65, {sr(SOUT,2)}, {sr(sT)}')
        if stl & 2:
            a(f's_load_dword s66, {sr(SWO,2)}, 0')
        if stl & 4:
            a(f's_load_dword s67, {sr(SWS,2)}, {sr(sKV)}')
            a(f's_add_u32 {sr(sT)}, {sr(sKV)}, {4*KV_HEAD-4}')
            a(f's_load_dword s68, {sr(SWS,2)}, {sr(sT)}')
        if stl & 8:
            for k, m in ((69, sMt), (70, sMt3)):
                a(f's_lshl_b32 {sr(sT)}, {sr(sB)}, 4')
                a(f's_add_u32 {sr(sT)}, {sr(sT)}, {sr(m)}')
                a(f's_mul_i32 {sr(sT)}, {sr(sT)}, {2*32*2560}')
                a(f's_add_u32 {sr(sT)}, {sr(sT)}, {F_WS_O}')
                a(f's_load_dword s{k}, {sr(SWS,2)}, {sr(sT)}')
    tlb = opts.get('tlb', 0)
    if tlb & 1:
        a(f'''v_lshlrev_b32 {vr(vT1)}, 18, {vr(vLane)}
buffer_load_dword {vr(vFl)}, {vr(vT1)}, {sr(SWS,4)}, 0 offen''')
    if tlb & 2:
        a(f'''v_lshlrev_b32 {vr(vT1)}, 18, {vr(vLane)}
buffer_load_dword {vr(vT2)}, {vr(vT1)}, {sr(SOUT,4)}, 0 offen
buffer_load_dword {vr(vT3)}, {vr(vT1)}, {sr(SWO,4)}, 0 offen''')
    if tlb & 4:
        a(f'''v_lshlrev_b32 {vr(vT1)}, 21, {vr(vLane)}
buffer_load_dword {vr(vFl)}, {vr(vT1)}, {sr(SWS,4)}, 0 offen
buffer_load_dword {vr(vT4)}, {vr(vT1)}, {sr(SOUT,4)}, 0 offen
buffer_load_dword {vr(vT5)}, {vr(vT1)}, {sr(SWO,4)}, 0 offen''')
    a(f'v_lshlrev_b32 {vr(vL16)}, 4, {vr(vLane)}')
    vP = V(); vC8 = V(8); vPwa = V(); vFu = V(); vPo1 = V(); vPo2 = V(); vPo = V(); vLw = V()
    vW3 = [V() for _ in range(5)]
    vPf = [V() for _ in range(4)]
    vHX = [V() for _ in range(4)]
    vHW = [V() for _ in range(15)]
    vIx = V(); vIw = V(); vSx = V(); vSw = V(); vJ = [V() for _ in range(6)]
    done_alloc(V)
    if stag:
        a(f'''s_lshr_b32 {sr(sT)}, s2, 3
s_and_b32 {sr(sT2)}, s2, 1
s_lshl_b32 {sr(sT2)}, {sr(sT2)}, 5
s_add_u32 {sr(sT2)}, {sr(sT2)}, {sr(sT)}
s_lshl_b32 {sr(sT2)}, {sr(sT2)}, 5
v_and_b32 {vr(vT0)}, 31, {vr(vLane)}
v_add_u32 {vr(vT2)}, {sr(sT2)}, {vr(vT0)}
v_mul_u32_u24 {vr(vT2)}, 1280, {vr(vT2)}
v_lshrrev_b32 {vr(vT1)}, 5, {vr(vLane)}
v_lshl_add_u32 {vr(vIx)}, {vr(vT1)}, 7, {vr(vT2)}
buffer_load_dword {vr(vJ[0])}, {vr(vIx)}, {sr(SX,4)}, 0 offen
v_cmp_le_u32 vcc, 15, {vr(vT0)}
s_lshl_b32 {sr(sT)}, {sr(sT)}, 1
s_bfe_u32 {sr(sT2)}, s2, 0x10001
v_cndmask_b32_e64 {vr(vT2)}, 0, 1, vcc
v_mul_u32_u24 {vr(vT3)}, 15, {vr(vT2)}
v_sub_u32 {vr(vT3)}, {vr(vT0)}, {vr(vT3)}
v_lshl_add_u32 {vr(vT2)}, {vr(vT1)}, 6, {vr(vT2)}
v_add_u32 {vr(vT2)}, {sr(sT)}, {vr(vT2)}
v_mul_u32_u24 {vr(vT2)}, 3840, {vr(vT2)}
v_mul_u32_u24 {vr(vT4)}, 52, {vr(vT3)}
v_lshrrev_b32 {vr(vT4)}, 8, {vr(vT4)}
v_mul_u32_u24 {vr(vT4)}, {1280-640}, {vr(vT4)}
v_lshl_add_u32 {vr(vT4)}, {vr(vT3)}, 7, {vr(vT4)}
s_mul_i32 {sr(sT2)}, {sr(sT2)}, 640
v_add3_u32 {vr(vIw)}, {vr(vT2)}, {vr(vT4)}, {sr(sT2)}
v_cmp_le_u32 vcc, 30, {vr(vT0)}
v_mov_b32 {vr(vT2)}, {OOB}
s_mov_b32 {sr(sT)}, {128*3840}
v_cndmask_b32 {vr(vIw)}, {vr(vIw)}, {vr(vT2)}, vcc
buffer_load_dword {vr(vJ[1])}, {vr(vIw)}, {sr(SWQ,4)}, 0 offen''')
        if stag >= 2:
            a(f'buffer_load_dword {vr(vJ[2])}, {vr(vIx)}, {sr(SX,4)}, 0 offen offset:256')
            a(f'buffer_load_dword {vr(vJ[3])}, {vr(vIw)}, {sr(SWQ,4)}, {sr(sT)} offen')
        a(f'''s_bfe_u32 {sr(sT)}, s2, 0x30003
s_and_b32 {sr(sI)}, s2, 1
s_lshl_b32 {sr(sI)}, {sr(sI)}, 3
s_add_u32 {sr(sI)}, {sr(sI)}, {sr(sT)}
s_lshl_b32 {sr(sI)}, {sr(sI)}, 7
v_add_u32 {vr(vT0)}, {sr(sI)}, {vr(vLane)}
v_mul_u32_u24 {vr(vSx)}, 1280, {vr(vT0)}
v_mul_u32_u24 {vr(vT1)}, 4370, {vr(vLane)}
v_lshrrev_b32 {vr(vT1)}, 16, {vr(vT1)}
v_mul_u32_u24 {vr(vT2)}, 15, {vr(vT1)}
v_sub_u32 {vr(vT3)}, {vr(vLane)}, {vr(vT2)}
s_lshl_b32 {sr(sT)}, {sr(sT)}, 3
v_add_u32 {vr(vT1)}, {sr(sT)}, {vr(vT1)}
v_mul_u32_u24 {vr(vT1)}, 3840, {vr(vT1)}
v_mul_u32_u24 {vr(vT4)}, 52, {vr(vT3)}
v_lshrrev_b32 {vr(vT4)}, 8, {vr(vT4)}
v_mul_u32_u24 {vr(vT4)}, {1280-640}, {vr(vT4)}
v_lshl_add_u32 {vr(vT4)}, {vr(vT3)}, 7, {vr(vT4)}
v_add3_u32 {vr(vSw)}, {vr(vT1)}, {vr(vT4)}, {sr(sT2)}
v_cmp_le_u32 vcc, 60, {vr(vLane)}
v_mov_b32 {vr(vT2)}, {OOB}
s_lshr_b32 {sr(sM0a)}, s2, 6
v_cndmask_b32 {vr(vSw)}, {vr(vSw)}, {vr(vT2)}, vcc''')
    sgid = [0]
    def stag_pf():
        if not stag: return
        n = sgid[0]; sgid[0] += 1
        AH = opts.get('ahead', 2)
        a(f'''s_add_u32 {sr(sT)}, {sr(sKK)}, {1 + AH}
s_and_b32 {sr(sT2)}, {sr(sT)}, 3
s_cmp_eq_u32 {sr(sT2)}, {sr(sM0a)}
s_cselect_b32 {sr(sT2)}, {sr(sT)}, 99
s_cmp_lt_u32 {sr(sT2)}, {2*stag}
s_cselect_b32 {sr(sT2)}, 99, {sr(sT2)}
s_cmp_lt_u32 {sr(sT2)}, 10
s_cbranch_scc0 {name}_sp{n}
s_lshl_b32 {sr(sT2)}, {sr(sT)}, 7
buffer_load_dword {vr(vJ[0])}, {vr(vSx)}, {sr(SX,4)}, {sr(sT2)} offen
s_add_u32 {sr(sT2)}, {sr(sT2)}, {64*1280}
buffer_load_dword {vr(vJ[1])}, {vr(vSx)}, {sr(SX,4)}, {sr(sT2)} offen
s_mul_i32 {sr(sT2)}, {sr(sT)}, {64*3840}
buffer_load_dword {vr(vJ[2])}, {vr(vSw)}, {sr(SWQ,4)}, {sr(sT2)} offen
s_add_u32 {sr(sT2)}, {sr(sT2)}, {4*3840}
buffer_load_dword {vr(vJ[3])}, {vr(vSw)}, {sr(SWQ,4)}, {sr(sT2)} offen''')
        a.label(f'{name}_sp{n}')
    a(f'''s_lshl_b32 {sr(sT)}, {sr(sMt)}, 7
v_lshrrev_b32 {vr(vT0)}, 3, {vr(vLane)}
v_add_u32 {vr(vT0)}, {sr(sT)}, {vr(vT0)}
v_mul_u32_u24 {vr(vT0)}, 1280, {vr(vT0)}
v_lshrrev_b32 {vr(vT1)}, 4, {vr(vLane)}
v_and_b32 {vr(vT3)}, 7, {vr(vLane)}
v_xor_b32 {vr(vT2)}, {vr(vT1)}, {vr(vT3)}
v_lshl_add_u32 {vr(vHX[0])}, {vr(vT2)}, 4, {vr(vT0)}
v_xor_b32 {vr(vT2)}, 64, {vr(vHX[0])}
v_add_u32 {vr(vHX[1])}, {10240-1024}, {vr(vT2)}
v_add_u32 {vr(vHX[2])}, {2*(10240-1024)}, {vr(vHX[0])}
v_add_u32 {vr(vHX[3])}, {3*(10240-1024)}, {vr(vT2)}''')
    for pi in range(15):
        a(f's_sub_u32 {sr(sT)}, {sr(sT3)}, {(pi%4)*1024}')
        w_pattern(vHW[pi], f'v_add_u32 {vr(vT0)}, {64*pi}, {vr(vLane)}', sr(sT))
    def next_k():
        a(f'''s_add_u32 {sr(sKK)}, {sr(sKK)}, 1
s_cmp_eq_u32 {sr(sKK)}, 10
s_cselect_b32 {sr(sKK)}, 0, {sr(sKK)}
s_lshl_b32 {sr(sXo)}, {sr(sKK)}, 7
s_mul_i32 {sr(sWo)}, {sr(sKK)}, {64*3840}''')
    def issue_x():
        for jj in range(16):
            if jj % 4 == 0:
                a(f's_add_u32 m0, {sr(sSlot)}, {jj*1024}')
                a(f's_add_u32 {sr(sT)}, {sr(sXo)}, {jj*10240}')
            a(f'buffer_load_dwordx4 {vr(vHX[jj%4])}, {sr(SX,4)}, {sr(sT)} offen offset:{(jj%4)*1024} lds')
    def issue_w():
        for half in range(2):
            for pi in range(15):
                if pi % 4 == 0:
                    a(f's_add_u32 m0, {sr(sSlot)}, {XSZ + half*15360 + pi*1024}')
                    a(f's_add_u32 {sr(sT)}, {sr(sWo)}, {half*32*3840}')
                a(f'buffer_load_dwordx4 {vr(vHW[pi])}, {sr(SWQ,4)}, {sr(sT)} offen offset:{(pi%4)*1024} lds')
    def issue_stage():
        stag_pf(); next_k(); issue_x(); issue_w()
        a(f'''s_add_u32 {sr(sSlot)}, {sr(sSlot)}, {STG}
s_cmp_ge_u32 {sr(sSlot)}, {3*STG}
s_cselect_b32 {sr(sSlot)}, 0, {sr(sSlot)}''')
    pfw = opts.get('pfw', 1) and not stag and not opts.get('rot0')
    if pfw:
        a(f'''s_lshr_b32 {sr(sT)}, s2, 6
s_mul_i32 {sr(sT)}, {sr(sT)}, 3
s_add_u32 {sr(sT)}, {sr(sT)}, 8
s_bfe_u32 {sr(sT2)}, s2, 0x30003
s_lshr_b32 {sr(sI)}, {sr(sT2)}, 2
s_add_u32 {sr(sT)}, {sr(sT)}, {sr(sI)}
s_cmp_ge_u32 {sr(sT)}, 10
s_cselect_b32 {sr(sI)}, 10, 0
s_sub_u32 {sr(sT)}, {sr(sT)}, {sr(sI)}
s_lshl_b32 {sr(sT)}, {sr(sT)}, 6
s_and_b32 {sr(sT2)}, {sr(sT2)}, 3
s_lshl_b32 {sr(sT2)}, {sr(sT2)}, 4
s_add_u32 {sr(sT)}, {sr(sT)}, {sr(sT2)}
s_mul_i32 {sr(sT)}, {sr(sT)}, 3840
s_add_u32 {sr(sRdy)}, {sr(sT)}, {sr(sT3)}
v_lshrrev_b32 {vr(vT0)}, 3, {vr(vLane)}
v_mul_u32_u24 {vr(vT0)}, 3840, {vr(vT0)}
v_bfe_u32 {vr(vT1)}, {vr(vLane)}, 1, 2
v_mul_u32_u24 {vr(vT2)}, 1280, {vr(vT1)}
v_and_b32 {vr(vT3)}, 1, {vr(vLane)}
v_mul_u32_u24 {vr(vT3)}, 156, {vr(vT3)}
v_add3_u32 {vr(vT0)}, {vr(vT0)}, {vr(vT2)}, {vr(vT3)}
v_cmp_eq_u32 vcc, 3, {vr(vT1)}
v_mov_b32 {vr(vT2)}, {OOB}
s_nop 0
v_cndmask_b32 {vr(vPo)}, {vr(vT0)}, {vr(vT2)}, vcc''')
    a(f's_mov_b32 {sr(sSlot)}, {STG}')
    st1()
    a('s_barrier')
    st1()
    if elate:
        a(f'v_mov_b32 {vr(vT0)}, {F_EPOCH}')
        a(f'buffer_load_dword {vr(vEp)}, {vr(vT0)}, {sr(SWS,4)}, 0 offen{SC}')
    if pfw:
        a(f'buffer_load_dword {vr(vPf[0])}, {vr(vPo)}, {sr(SWQ,4)}, {sr(sRdy)} offen')
        a(f's_add_u32 {sr(sRdy)}, {sr(sRdy)}, {8*3840}')
        a(f'buffer_load_dword {vr(vPf[1])}, {vr(vPo)}, {sr(SWQ,4)}, {sr(sRdy)} offen')
    if opts.get('xfirst', 0):
        next_k(); issue_x()
        a(f's_mov_b32 {sr(sSrc)}, {sr(sWo)}')
        a(f's_mov_b32 {sr(sSlot)}, {2*STG}')
        next_k(); issue_x()
        st1()
        if opts.get('xfirst') == 1: a('s_barrier')
        a(f's_mov_b32 {sr(sSlot)}, {STG}')
        a(f's_mov_b32 {sr(sI)}, {sr(sWo)}')
        a(f's_mov_b32 {sr(sWo)}, {sr(sSrc)}')
        issue_w()
        if opts.get('xfirst') == 2: a('s_barrier')
        a(f's_mov_b32 {sr(sSlot)}, {2*STG}')
        a(f's_mov_b32 {sr(sWo)}, {sr(sI)}')
        issue_w()
        a(f's_mov_b32 {sr(sSlot)}, 0')
        a('s_waitcnt vmcnt(30)')
        a('s_barrier')
        st1()
        a(f's_mov_b32 {sr(sI)}, 1')
    else:
        issue_stage()
        st1()
        a('s_barrier')
        st1()
        a(f's_mov_b32 {sr(sI)}, 0')
    a.label(f'{name}_hg')
    issue_stage()
    a('s_waitcnt vmcnt(46)')
    a('s_barrier')
    a(f's_add_u32 {sr(sI)}, {sr(sI)}, 1')
    a(f's_cmp_lt_u32 {sr(sI)}, 8')
    a(f's_cbranch_scc1 {name}_hg')
    st1()
    a(f'''s_lshl_b32 {sr(sT)}, {sr(sB)}, 3
s_add_u32 {sr(sT)}, {sr(sT)}, {sr(sHg)}
s_lshl_b32 {sr(sT)}, {sr(sT)}, 8
s_add_u32 {sr(sT)}, {sr(sT)}, {F_FLAG1}
v_lshl_add_u32 {vr(vT0)}, {vr(vLane)}, 2, {sr(sT)}
v_cmp_gt_u32 vcc, 16, {vr(vLane)}
v_mov_b32 {vr(vT1)}, {OOB}
s_lshl_b32 {sr(sT)}, {sr(sB)}, 4
v_cndmask_b32 {vr(vPo1)}, {vr(vT1)}, {vr(vT0)}, vcc
s_add_u32 {sr(sT)}, {sr(sT)}, {sr(sMt3)}
s_lshl_b32 {sr(sT)}, {sr(sT)}, 8
s_add_u32 {sr(sT)}, {sr(sT)}, {F_FLAG2}
v_lshl_add_u32 {vr(vT0)}, {vr(vLane)}, 2, {sr(sT)}
v_cmp_gt_u32 vcc, 8, {vr(vLane)}
v_mov_b32 {vr(vLw)}, {LW_RDY}
s_mul_i32 {sr(sT3)}, {sr(sCg)}, 160
v_cndmask_b32 {vr(vPo2)}, {vr(vT1)}, {vr(vT0)}, vcc''')
    for r in range(5):
        a(f'''v_add_u32 {vr(vT0)}, {64*r}, {vr(vLane)}
v_mul_u32_u24 {vr(vT1)}, 6554, {vr(vT0)}
v_lshrrev_b32 {vr(vT1)}, 16, {vr(vT1)}
v_mul_u32_u24 {vr(vT1)}, {1280-160}, {vr(vT1)}
v_lshl_add_u32 {vr(vT0)}, {vr(vT0)}, 4, {vr(vT1)}
v_add_u32 {vr(vT0)}, {sr(sT3)}, {vr(vT0)}
v_subrev_u32 {vr(vW3[r])}, {(r%4)*1024}, {vr(vT0)}''')
    a(f'''s_lshr_b32 {sr(sT)}, s2, 3
s_mul_i32 {sr(sT)}, {sr(sT)}, {20*1280}
v_lshl_add_u32 {vr(vT0)}, {vr(vLane)}, 7, {sr(sT)}
v_cmp_gt_u32 vcc, 50, {vr(vLane)}
v_mov_b32 {vr(vT1)}, {OOB}
s_mov_b32 {sr(sRdy)}, 0
v_cndmask_b32 {vr(vPo)}, {vr(vT1)}, {vr(vT0)}, vcc
v_readfirstlane_b32 {sr(sTag)}, {vr(vEp)}
s_lshl_b32 {sr(sDone)}, 1, {sr(sMt)}
s_waitcnt vmcnt({15 if hsplit else 0})
s_add_u32 {sr(sTag)}, {sr(sTag)}, {TAGK}
s_barrier
s_waitcnt vmcnt(0)
{'s_barrier' if hsplit else 's_nop 0'}
v_bfe_u32 {vr(vT2)}, {vr(vLane)}, 1, 2
v_mul_u32_u24 {vr(vT2)}, 2560, {vr(vT2)}
v_and_b32 {vr(vT3)}, 1, {vr(vLane)}
v_mul_u32_u24 {vr(vT3)}, 640, {vr(vT3)}
v_add_u32 {vr(vT2)}, {vr(vT2)}, {vr(vT3)}
v_add_u32 {vr(vT2)}, {ONES}, {vr(vT2)}
v_mov_b32 {vr(vC8)}, 0x3f803f80
v_mov_b32 {vr(vC8+1)}, 0x3f803f80
v_mov_b32 {vr(vC8+2)}, 0x3f803f80
v_mov_b32 {vr(vC8+3)}, 0x3f803f80
v_mov_b32 {vr(vC8+4)}, 0
v_mov_b32 {vr(vC8+5)}, 0
v_mov_b32 {vr(vC8+6)}, 0
v_mov_b32 {vr(vC8+7)}, 0
s_barrier
ds_write_b128 {vr(vT2)}, {vr(vC8,4)}
ds_write_b128 {vr(vT2)}, {vr(vC8+4,4)} offset:16
ds_write_b128 {vr(vLw)}, {vr(vC8+4,4)}
s_waitcnt lgkmcnt(0)''')
    st0()
    a('s_barrier')
    a('s_barrier')
    gid = [0]
    def issue_group():
        n = gid[0]; gid[0] += 1
        a(f'''s_andn2_b32 {sr(sT)}, {sr(sRdy)}, {sr(sDone)}
s_cbranch_scc1 {name}_pd{n}
s_mov_b32 {sr(sCnt)}, {POLL_LIMIT}''')
        a.label(f'{name}_pl{n}')
        a(f'''buffer_load_dword {vr(vP)}, {vr(vPo1)}, {sr(SWS,4)}, 0 offen{SC}
s_waitcnt vmcnt(0)
v_cmp_eq_u32 vcc, {sr(sTag)}, {vr(vP)}
s_and_b32 {sr(sRdy)}, vcc_lo, 0xffff
s_andn2_b32 {sr(sT)}, {sr(sRdy)}, {sr(sDone)}
s_cbranch_scc1 {name}_pd{n}
s_sleep 1
s_sub_u32 {sr(sCnt)}, {sr(sCnt)}, 1
s_cmp_lg_u32 {sr(sCnt)}, 0
s_cbranch_scc1 {name}_pl{n}
s_mov_b32 {sr(sRdy)}, 0xffff
s_andn2_b32 {sr(sT)}, {sr(sRdy)}, {sr(sDone)}''')
        a.label(f'{name}_pd{n}')
        a(f'''s_lshl_b32 {sr(sT2)}, {sr(sT)}, 16
s_or_b32 {sr(sT)}, {sr(sT)}, {sr(sT2)}
s_lshr_b32 {sr(sT)}, {sr(sT)}, {sr(sMt)}
s_ff1_i32_b32 {sr(sT)}, {sr(sT)}
s_add_u32 {sr(sNeed)}, {sr(sT)}, {sr(sMt)}
s_and_b32 {sr(sNeed)}, {sr(sNeed)}, 15
s_bitset1_b32 {sr(sDone)}, {sr(sNeed)}
s_mul_i32 {sr(sT)}, {sr(sNeed)}, 10240
s_add_u32 {sr(sSrc)}, {sr(sKV)}, {sr(sT)}''')
        for hs in range(4):
            for q in range(10):
                if q % 4 == 0:
                    a(f's_add_u32 m0, {sr(sSlot)}, {hs*10240 + q*1024}')
                    a(f's_add_u32 {sr(sT)}, {sr(sSrc)}, {hs*KV_HEAD + q*1024}')
                a(f'buffer_load_dwordx4 {vr(vL16)}, {sr(SWS,4)}, {sr(sT)} offen offset:{(q%4)*1024}{SLD} lds')
        a(f'''s_add_u32 {sr(sSlot)}, {sr(sSlot)}, {SLOT}
s_cmp_ge_u32 {sr(sSlot)}, {3*SLOT}
s_cselect_b32 {sr(sSlot)}, 0, {sr(sSlot)}
s_add_u32 {sr(sI)}, {sr(sI)}, 1''')
    a(f's_mov_b32 {sr(sI)}, 1')
    a(f's_mov_b32 {sr(sSlot)}, {SLOT}')
    wq = [0]
    def wait_prog(val):
        n = wq[0]; wq[0] += 1
        a.label(f'{name}_wp{n}')
        a(f'''ds_read_b32 {vr(vP)}, {vr(vPwa)} offset:4
s_waitcnt lgkmcnt(0)
v_cmp_le_u32 vcc, {val}, {vr(vP)}
s_and_b32 {sr(sT)}, vcc_lo, 0x1ff
s_cmp_eq_u32 {sr(sT)}, 0x1ff
s_cbranch_scc1 {name}_wpd{n}
s_sleep 2
s_branch {name}_wp{n}''')
        a.label(f'{name}_wpd{n}')
    def set_full(val):
        a(f'v_mov_b32 {vr(vFu)}, {val}')
        a(f'ds_write_b32 {vr(vPwa)}, {vr(vFu)}')
    if nobar:
        a(f'v_min_u32 {vr(vPwa)}, 8, {vr(vLane)}')
        a(f'v_lshlrev_b32 {vr(vPwa)}, 3, {vr(vPwa)}')
        a(f'v_add_u32 {vr(vPwa)}, {LW_PW}, {vr(vPwa)}')
    issue_group()
    st0()
    if opts.get('b1', 1) and not nobar:
        a('s_waitcnt vmcnt(0)')
        a('s_barrier')
        issue_group()
    a.label(f'{name}_hl')
    if nobar:
        a('s_waitcnt vmcnt(0)')
        set_full(sr(sI))
        a(f's_max_u32 {sr(sSrc)}, {sr(sI)}, 2')
        a(f's_sub_u32 {sr(sSrc)}, {sr(sSrc)}, 2')
        wait_prog(sr(sSrc))
        issue_group()
    else:
        issue_group()
        a('s_waitcnt vmcnt(40)')
        a('s_barrier')
    wid = [0]
    def wo_rows(r0, r1, lds):
        n = wid[0]; wid[0] += 1
        a(f's_mov_b32 {sr(sSrc)}, {r0*1280}')
        a(f's_mov_b32 {sr(sT2)}, {lds}')
        a.label(f'{name}_hw{n}x')
        a(f's_mov_b32 m0, {sr(sT2)}')
        a(f's_add_u32 {sr(sT)}, {sr(sT2)}, 4096')
        for r in range(4):
            a(f'buffer_load_dwordx4 {vr(vW3[r])}, {sr(SWO,4)}, {sr(sSrc)} offen offset:{r*1024} lds')
        a(f's_mov_b32 m0, {sr(sT)}')
        a(f's_add_u32 {sr(sT2)}, {sr(sT2)}, 5120')
        a(f'buffer_load_dwordx4 {vr(vW3[4])}, {sr(SWO,4)}, {sr(sSrc)} offen lds')
        a(f's_add_u32 {sr(sSrc)}, {sr(sSrc)}, {32*1280}')
        a(f's_cmp_lt_u32 {sr(sSrc)}, {r1*1280}')
        a(f's_cbranch_scc1 {name}_hw{n}x')
    a(f's_cmp_eq_u32 {sr(sI)}, 6')
    a(f's_cbranch_scc0 {name}_hnp')
    for q in range(4):
        a(f's_mov_b32 {sr(sT)}, {q*6400}')
        a(f'buffer_load_dword {vr(vPf[q])}, {vr(vPo)}, {sr(SWO,4)}, {sr(sT)} offen')
    a.label(f'{name}_hnp')
    a(f's_cmp_eq_u32 {sr(sI)}, 10')
    a(f's_cbranch_scc0 {name}_hnq')
    wo_rows(480, 640, QST)
    a.label(f'{name}_hnq')
    a(f's_cmp_lt_u32 {sr(sI)}, 16')
    a(f's_cbranch_scc1 {name}_hl')
    if nobar:
        a('s_waitcnt vmcnt(0)')
        set_full(64)
        wait_prog(14)
        wo_rows(0, 256, WO_LO)
        wait_prog(15)
    else:
        wo_rows(0, 256, WO_LO)
        a('s_waitcnt vmcnt(40)')
        a('s_barrier')
    wo_rows(256, 480, WO_LO + 40960)
    a(f'''s_lshl_b32 {sr(sT)}, {sr(sB)}, 4
s_add_u32 {sr(sT)}, {sr(sT)}, {sr(sMt3)}
s_lshl_b32 {sr(sT)}, {sr(sT)}, 1
s_lshr_b32 {sr(sT2)}, {sr(sCg)}, 2
s_add_u32 {sr(sT)}, {sr(sT)}, {sr(sT2)}
s_mul_i32 {sr(sT)}, {sr(sT)}, {32*2560}
s_and_b32 {sr(sT2)}, {sr(sCg)}, 3
s_mul_i32 {sr(sT2)}, {sr(sT2)}, 5120
s_add_u32 {sr(sT)}, {sr(sT)}, {sr(sT2)}
s_add_u32 {sr(sT)}, {sr(sT)}, {F_WS_O}
v_lshl_add_u32 {vr(vT0)}, {vr(vLane)}, 7, {sr(sT)}
v_cmp_gt_u32 vcc, 40, {vr(vLane)}
v_mov_b32 {vr(vT1)}, {OOB}
s_mov_b32 {sr(sDone)}, 0
s_mov_b32 {sr(sCnt)}, {POLL_LIMIT}
v_cndmask_b32 {vr(vPo)}, {vr(vT1)}, {vr(vT0)}, vcc''')
    pid = [0]
    pfo = opts.get('pfo', 2)
    def poll2():
        a(f'''buffer_load_dword {vr(vP)}, {vr(vPo2)}, {sr(SWS,4)}, 0 offen{SC}
s_sub_u32 {sr(sCnt)}, {sr(sCnt)}, 1
s_waitcnt vmcnt(0)
v_cmp_eq_u32 vcc, {sr(sTag)}, {vr(vP)}
s_cmp_eq_u32 {sr(sCnt)}, 0
s_cselect_b32 {sr(sT)}, 0xff, vcc_lo
s_lshr_b32 {sr(sT2)}, {sr(sT)}, 1
s_and_b32 {sr(sT)}, {sr(sT)}, {sr(sT2)}
s_and_b32 {sr(sRdy)}, {sr(sT)}, 0x55''')
        if pfo:
            a(f's_andn2_b32 {sr(sSrc)}, {sr(sRdy)}, {sr(sDone)}')
            a(f's_or_b32 {sr(sDone)}, {sr(sDone)}, {sr(sRdy)}')
            for j in range(4):
                n = pid[0]; pid[0] += 1
                a(f's_bitcmp1_b32 {sr(sSrc)}, {2*j}')
                a(f's_cbranch_scc0 {name}_po{n}')
                a(f's_mov_b32 {sr(sT)}, {j*20480}')
                a(f'buffer_load_dword {vr(vPf[j])}, {vr(vPo)}, {sr(SWS,4)}, {sr(sT)} offen{SC}')
                a.label(f'{name}_po{n}')
            if pfo == 2:
                a('s_waitcnt vmcnt(0)')
        a(f'v_mov_b32 {vr(vP)}, {sr(sRdy)}')
        a(f'ds_write_b32 {vr(vLw)}, {vr(vP)}')
    poll2()
    if nobar:
        wait_prog(16)
    else:
        a('s_barrier')
    st0()
    st0()
    a.label(f'{name}_p3l')
    if opts.get('psl'): a(f's_sleep {opts.get("psl")}')
    poll2()
    a(f's_cmp_eq_u32 {sr(sRdy)}, 0x55')
    a(f's_cbranch_scc0 {name}_p3l')
    a.label(f'{name}_p3e')
    if st.on:
        while st.n < n_total - 1: st()
        st.rt(); st.flush(sW)
    a('s_endpgm')
    a.label(f'{name}_end')
    nv = maxv[0]
    assert nv <= 168, nv
    return a.text(), descriptor(name, nv, ns), f'; @launch kernel={name} grid=(256,1,1) block=(576,1,1) lds={LDS_TOTAL}', n_total
```

```python
from common import *
import math, struct

def f32bits(x):
    return struct.unpack('<I', struct.pack('<f', x))[0]
QSCALE = f32bits(math.log2(math.e) / math.sqrt(20.0))

XSZ = 16384
STG = XSZ + 30720
SLOT = 40960
LW_RDY = 3 * SLOT
LW_CNT = 3 * SLOT + 8
LW_CNT1 = 3 * SLOT + 12
LW_PW = 131392
ONES = 3 * SLOT + 128
QST = 131584
LDS_TOTAL = QST + 25600
WO_LO = SLOT
F_WS_KV = 0
F_WS_O = 64 * KV_HEAD
F_FLAG1 = F_WS_O + 2 * 32 * 32 * 2560
F_FLAG2 = F_FLAG1 + 16 * 256
F_EPOCH = F_FLAG2 + 32 * 256
F_WS_END = F_EPOCH + 256
TAGK = 0x9E3779B9
POLL_LIMIT = 1 << 18
OOB = 0x40000000

def gen_fused(name='fused_kernel', opts=None):
    opts = opts or {}
    a = Asm()
    SC = ' sc1'
    FL = {0: ' sc1', 1: ' sc0 sc1', 2: '', 3: ' sc1 nt', 4: ' nt'}
    SST = FL[opts.get('sst', 0)]
    SLD = FL[opts.get('sld', 0)]
    stag = opts.get('stag', 0)
    pub4 = opts.get('pub4', 1)
    hsplit = opts.get('hsplit', 1)
    nobar = opts.get('nobar', 0)
    loc = opts.get('loc', 1)
    sKK, sMt3, sCg = 3, 4, 5
    SX, SWQ, SWS, SDBG, SWO, SOUT = 8, 12, 16, 20, 24, 28
    sW, sB, sMt, sHg, sT, sT2, sT3 = 32, 33, 34, 35, 36, 37, 38
    sM0a, sM0b = 39, 40
    sDone = 41
    sHi = 42
    sG, sOff, sOo, sKV = 44, 45, 46, 47
    sM, sM2 = 48, 50
    sRdy, sCnt, sNeed, sI, sSlot, sSrc = 52, 53, 54, 55, 56, 57
    sXo, sWo = 53, 54
    sScale = 58
    sA, sTag = 60, 61
    sPub, sPub2 = 56, 57
    ns = 64
    vLane, vT0, vT1, vT2, vT3, vT4, vT5 = 1, 2, 3, 4, 5, 6, 7
    VBASE = 8
    st = Stamper(a, opts.get('stamp'), 0, 62, 6, vT0)
    if st.on: ns = st.nsgpr()
    sset = opts.get('sset', 0)
    def st0():
        if sset == 0: st()
    def st1():
        if sset == 1: st()
    def st4():
        if sset == 4: st()
    maxv = [0]
    def done_alloc(V):
        maxv[0] = max(maxv[0], V.n)

    a(f'.globl {name}\n.p2align 8\n.type {name},@function')
    a.label(name)
    if st.on:
        a('s_memrealtime s[62:63]\ns_memtime s[64:65]')
        st.n = 2
    dbgt = opts.get('dbgt')
    SWAP = 's_nop 0'
    if opts.get('swap', 0):
        SWAP = f's_lshr_b32 {sr(sT)}, s2, 1\ns_xor_b32 {sr(sT)}, {sr(sT)}, s2\ns_and_b32 {sr(sT)}, {sr(sT)}, 1\ns_mul_i32 {sr(sT)}, {sr(sT)}, 3\ns_xor_b32 s2, s2, {sr(sT)}'
    if dbgt:
        ns = 80
        a('s_memrealtime s[62:63]')
    def rts(k):
        if dbgt: a(f's_memrealtime s[{62+2*k}:{63+2*k}]\ns_waitcnt lgkmcnt(0)')
    a(f'''s_cmp_ge_u32 s2, 256
s_cbranch_scc1 {name}_done
{SWAP}
s_bfe_u32 {sr(sB)}, s2, 0x10002
s_load_dwordx4 {sr(SOUT,4)}, s[0:1], 48
s_load_dwordx2 s[6:7], s[0:1], 64
s_mul_i32 {sr(sT2)}, {sr(sB)}, 24
s_add_u32 s0, s0, {sr(sT2)}
s_addc_u32 s1, s1, 0
s_load_dwordx4 {sr(SX,4)}, s[0:1], 0
s_load_dwordx2 {sr(SWO,2)}, s[0:1], 16
v_lshrrev_b32 {vr(vT0)}, 6, v0
v_and_b32 {vr(vLane)}, 63, v0
s_lshr_b32 {sr(sT)}, s2, 3
v_readfirstlane_b32 {sr(sW)}, {vr(vT0)}
s_and_b32 {sr(sMt)}, {sr(sT)}, 7
s_lshr_b32 {sr(sHg)}, {sr(sT)}, 3
s_mul_i32 {sr(sKK)}, {sr(sHg)}, 3
s_add_u32 {sr(sKK)}, {sr(sKK)}, {sr(sMt)}
s_cmp_ge_u32 {sr(sKK)}, 10
s_cselect_b32 {sr(sT)}, 10, 0
s_sub_u32 {sr(sKK)}, {sr(sKK)}, {sr(sT)}
{f's_mov_b32 {sr(sKK)}, 0' if (stag or opts.get('rot0')) else 's_nop 0'}
s_and_b32 {sr(sT)}, s2, 1
s_lshl_b32 {sr(sT)}, {sr(sT)}, 3
s_add_u32 {sr(sMt)}, {sr(sMt)}, {sr(sT)}
s_and_b32 {sr(sT)}, s2, 2
s_lshl_b32 {sr(sT)}, {sr(sT)}, 1
s_add_u32 {sr(sHg)}, {sr(sHg)}, {sr(sT)}
s_mov_b32 {sr(sHi)}, 0
s_mov_b32 {sr(sHi+1)}, -1
s_bfe_u32 {sr(sCg)}, s2, 0x30003
s_and_b32 {sr(sMt3)}, s2, 1
s_lshl_b32 {sr(sMt3)}, {sr(sMt3)}, 2
s_and_b32 {sr(sT)}, s2, 2
s_add_u32 {sr(sMt3)}, {sr(sMt3)}, {sr(sT)}
s_lshl_b32 {sr(sMt3)}, {sr(sMt3)}, 1
s_lshr_b32 {sr(sT)}, s2, 6
s_add_u32 {sr(sMt3)}, {sr(sMt3)}, {sr(sT)}
s_lshl_b32 {sr(sT)}, {sr(sB)}, 3
s_add_u32 {sr(sT)}, {sr(sT)}, {sr(sHg)}
s_mul_i32 {sr(sKV)}, {sr(sT)}, {4*KV_HEAD}
s_mul_i32 {sr(sT3)}, {sr(sHg)}, 160''')
    SRDS = f'''s_waitcnt lgkmcnt(0)
s_mov_b32 {sr(SWQ)}, {sr(SX+2)}
s_mov_b32 {sr(SWQ+1)}, {sr(SX+3)}
s_mov_b32 {sr(SDBG)}, {sr(SOUT+2)}
s_mov_b32 {sr(SDBG+1)}, {sr(SOUT+3)}
s_mov_b32 {sr(SWS)}, s6
s_mov_b32 {sr(SWS+1)}, s7
s_mov_b32 {sr(SX+2)}, {2048*1280}
s_mov_b32 {sr(SX+3)}, 0x20000
s_mov_b32 {sr(SWQ+2)}, {640*3840}
s_mov_b32 {sr(SWQ+3)}, 0x20000
s_mov_b32 {sr(SWS+2)}, {F_WS_END}
s_mov_b32 {sr(SWS+3)}, 0x20000
s_mov_b32 {sr(SDBG+2)}, 256
s_mov_b32 {sr(SDBG+3)}, 0x20000
s_mov_b32 {sr(SWO+2)}, {640*1280}
s_mov_b32 {sr(SWO+3)}, 0x20000
s_mov_b32 {sr(SOUT+2)}, {2048*2560}
s_mov_b32 {sr(SOUT+3)}, 0x20000'''
    st1()
    n_common = st.n
    a(f'''s_cmp_ge_u32 {sr(sW)}, 8
s_cbranch_scc1 {name}_helper''')

    def w_pattern(dst, first, last):
        a(f'''{first}
v_mul_u32_u24 {vr(vT1)}, 2185, {vr(vT0)}
v_lshrrev_b32 {vr(vT1)}, 16, {vr(vT1)}
v_mul_u32_u24 {vr(vT2)}, 30, {vr(vT1)}
v_sub_u32 {vr(vT0)}, {vr(vT0)}, {vr(vT2)}
v_and_b32 {vr(vT2)}, 0x13, {vr(vT1)}
v_bfe_u32 {vr(vT3)}, {vr(vT1)}, 2, 1
v_lshl_or_b32 {vr(vT2)}, {vr(vT3)}, 3, {vr(vT2)}
v_bfe_u32 {vr(vT3)}, {vr(vT1)}, 3, 1
v_lshl_or_b32 {vr(vT2)}, {vr(vT3)}, 2, {vr(vT2)}
v_mul_u32_u24 {vr(vT2)}, 3840, {vr(vT2)}
v_mul_u32_u24 {vr(vT1)}, 26, {vr(vT0)}
v_lshrrev_b32 {vr(vT1)}, 8, {vr(vT1)}
v_mul_u32_u24 {vr(vT1)}, {1280-160}, {vr(vT1)}
v_lshl_add_u32 {vr(vT0)}, {vr(vT0)}, 4, {vr(vT1)}
v_add3_u32 {vr(dst)}, {vr(vT0)}, {vr(vT2)}, {last}''')

    VP = VAlloc(VBASE)
    vIdx = VP()
    vaK1 = VP(); vaK2 = VP(); vaV = VP()
    vbK1 = VP(); vbK2 = VP(); vbV = VP(); vmK2 = VP(); vmV = VP()
    vQo = VP(); vQo2 = VP(); vQs1 = VP(); vQs2 = VP(); vPub = VP()
    VB2 = VP.n
    V = VAlloc(VB2)
    vEp7 = V(); vCi7 = V(); vZ7 = V()
    vXr = [[V(), V()] for _ in range(3)]
    vWa = [V() for _ in range(3)]
    vWb = [V() for _ in range(3)]
    vE = [V() for _ in range(6)]
    Xf = [[V(4), V(4)], [V(4), V(4)]]
    Wf = [[V(4) for _ in range(4)] for _ in range(2)]
    acc = [[V(4), V(4)] for _ in range(8)]
    done_alloc(V)
    vDX = Wf[0][0]; vDW = [Wf[0][0] + 1, Wf[0][0] + 2]
    a(f'''s_lshl_b32 {sr(sT)}, {sr(sMt)}, 7
s_lshl_b32 {sr(sT2)}, {sr(sW)}, 3
s_add_u32 {sr(sT)}, {sr(sT)}, {sr(sT2)}
v_lshrrev_b32 {vr(vT0)}, 3, {vr(vLane)}
v_add_u32 {vr(vT0)}, {sr(sT)}, {vr(vT0)}
v_mul_u32_u24 {vr(vT0)}, 1280, {vr(vT0)}
s_and_b32 {sr(sT)}, {sr(sW)}, 1
s_lshl_b32 {sr(sT)}, {sr(sT)}, 2
v_lshrrev_b32 {vr(vT1)}, 4, {vr(vLane)}
v_add_u32 {vr(vT2)}, {sr(sT)}, {vr(vT1)}
v_and_b32 {vr(vT3)}, 7, {vr(vLane)}
v_xor_b32 {vr(vT2)}, {vr(vT2)}, {vr(vT3)}
v_lshl_add_u32 {vr(vDX)}, {vr(vT2)}, 4, {vr(vT0)}
s_lshl_b32 {sr(sM0a)}, {sr(sW)}, 10
s_lshl_b32 {sr(sXo)}, {sr(sKK)}, 7
s_mul_i32 {sr(sWo)}, {sr(sKK)}, {64*3840}
s_add_u32 {sr(sT2)}, {sr(sW)}, 8
s_cmp_eq_u32 {sr(sW)}, 7
s_cselect_b32 {sr(sT2)}, 7, {sr(sT2)}
s_lshl_b32 {sr(sM0b)}, {sr(sT2)}, 10''')
    for pi, sm in ((0, sM0a), (1, sM0b)):
        a(f's_lshr_b32 {sr(sT)}, {sr(sm)}, 4')
        w_pattern(vDW[pi], f'v_add_u32 {vr(vT0)}, {sr(sT)}, {vr(vLane)}', sr(sT3))
    a(SRDS)
    a(f'''s_mov_b32 m0, {sr(sM0a)}
s_add_u32 {sr(sT)}, {sr(sXo)}, 81920
buffer_load_dwordx4 {vr(vDX)}, {sr(SX,4)}, {sr(sXo)} offen lds
s_add_u32 m0, {sr(sM0a)}, 8192
s_nop 0
buffer_load_dwordx4 {vr(vDX)}, {sr(SX,4)}, {sr(sT)} offen lds''')
    for pi, sm in ((0, sM0a), (1, sM0b)):
        for half in range(2):
            a(f's_add_u32 m0, {sr(sm)}, {XSZ + half*15360}')
            a(f's_add_u32 {sr(sT)}, {sr(sWo)}, {half*32*3840}')
            a(f'buffer_load_dwordx4 {vr(vDW[pi])}, {sr(SWQ,4)}, {sr(sT)} offen lds')
    st1()
    a('s_barrier')
    st1()
    a(f'''s_cmp_eq_u32 {sr(sW)}, 7
s_cselect_b32 {sr(sM)}, 1, 0
s_mov_b32 {sr(sM+1)}, 0
v_mov_b32 {vr(vT1)}, {OOB}
v_cndmask_b32_e64 {vr(vZ7)}, {vr(vT1)}, 0, {sr(sM,2)}
v_mov_b32 {vr(vT0)}, {F_EPOCH}
buffer_load_dword {vr(vEp7)}, {vr(vT0)}, {sr(SWS,4)}, 0 offen{SC}''')
    a(f'''s_and_b32 {sr(sT)}, {sr(sW)}, 3
s_lshl_b32 {sr(sT)}, {sr(sT)}, 5
v_and_b32 {vr(vT0)}, 15, {vr(vLane)}
v_lshrrev_b32 {vr(vT1)}, 4, {vr(vLane)}
v_lshrrev_b32 {vr(vT2)}, 1, {vr(vT0)}
v_xor_b32 {vr(vT2)}, {vr(vT2)}, {vr(vT1)}
v_add_u32 {vr(vT0)}, {sr(sT)}, {vr(vT0)}
v_lshlrev_b32 {vr(vT0)}, 7, {vr(vT0)}
v_lshl_add_u32 {vr(vXr[0][0])}, {vr(vT2)}, 4, {vr(vT0)}
v_xor_b32 {vr(vXr[0][1])}, 64, {vr(vXr[0][0])}
v_lshrrev_b32 {vr(vT0)}, 5, {vr(vLane)}
v_lshlrev_b32 {vr(vT0)}, 4, {vr(vT0)}
v_bfe_u32 {vr(vT2)}, {vr(vLane)}, 4, 1
v_lshl_add_u32 {vr(vT0)}, {vr(vT2)}, 2, {vr(vT0)}
v_bfe_u32 {vr(vT2)}, {vr(vLane)}, 2, 2
v_add_u32 {vr(vT0)}, {vr(vT0)}, {vr(vT2)}
v_mul_u32_u24 {vr(vT0)}, 480, {vr(vT0)}
v_add_u32 {vr(vT5)}, {XSZ}, {vr(vT0)}
v_bfe_u32 {vr(vT2)}, {vr(vLane)}, 1, 1
v_mul_u32_u24 {vr(vT2)}, 40, {vr(vT2)}
v_and_b32 {vr(vT3)}, 1, {vr(vLane)}
v_lshl_add_u32 {vr(vT2)}, {vr(vT3)}, 4, {vr(vT2)}
v_add_u32 {vr(vWa[0])}, {vr(vT5)}, {vr(vT2)}
s_cmp_ge_u32 {sr(sW)}, 4
s_cselect_b32 {sr(sT)}, 8, 40
v_and_b32 {vr(vT2)}, 3, {vr(vLane)}
v_mad_u32_u24 {vr(vWb[0])}, {vr(vT2)}, {sr(sT)}, {vr(vT5)}''')
    for s_ in (1, 2):
        a(f'v_add_u32 {vr(vXr[s_][0])}, {s_*STG}, {vr(vXr[0][0])}')
        a(f'v_add_u32 {vr(vXr[s_][1])}, {s_*STG}, {vr(vXr[0][1])}')
        a(f'v_add_u32 {vr(vWa[s_])}, {s_*STG}, {vr(vWa[0])}')
        a(f'v_add_u32 {vr(vWb[s_])}, {s_*STG}, {vr(vWb[0])}')
    a(f'''s_lshr_b32 {sr(sT)}, {sr(sW)}, 1
s_mul_i32 {sr(sT2)}, {sr(sT)}, 10240
v_lshlrev_b32 {vr(vQo)}, 4, {vr(vLane)}
v_lshlrev_b32 {vr(vT0)}, 3, {vr(vLane)}
v_add_u32 {vr(vT0)}, 1024, {vr(vT0)}
v_mov_b32 {vr(vT1)}, {OOB}
v_cndmask_b32_e64 {vr(vQo2)}, {vr(vT0)}, {vr(vT1)}, {sr(sHi,2)}
v_add_u32 {vr(vbK1)}, {sr(sT2)}, {vr(vQo)}
v_add_u32 {vr(vT0)}, {sr(sT2)}, {vr(vT0)}
v_mov_b32 {vr(vT1)}, {ONES}
v_cndmask_b32_e64 {vr(vbK2)}, {vr(vT0)}, {vr(vT1)}, {sr(sHi,2)}
v_cndmask_b32_e64 {vr(vmK2)}, 1, 0, {sr(sHi,2)}
v_and_b32 {vr(vT2)}, 31, {vr(vLane)}
v_lshrrev_b32 {vr(vT3)}, 5, {vr(vLane)}
v_mul_u32_u24 {vr(vT3)}, 320, {vr(vT3)}
v_lshl_add_u32 {vr(vT3)}, {vr(vT2)}, 4, {vr(vT3)}
s_add_u32 {sr(sT3)}, {sr(sT2)}, 1280
v_add_u32 {vr(vT3)}, {sr(sT3)}, {vr(vT3)}
v_cmp_gt_u32 vcc, 20, {vr(vT2)}
v_mov_b32 {vr(vIdx)}, 0xdddddddd
v_mov_b32 {vr(vaK1)}, {vr(vbK1)}
v_cndmask_b32 {vr(vbV)}, {vr(vT1)}, {vr(vT3)}, vcc
v_cndmask_b32_e64 {vr(vmV)}, 0, 1, vcc
v_cmp_lt_u32 vcc, 20, {vr(vT2)}
v_add_u32 {vr(vT3)}, 16, {vr(vT1)}
v_mov_b32 {vr(vaK2)}, {vr(vbK2)}
v_cndmask_b32 {vr(vbV)}, {vr(vbV)}, {vr(vT3)}, vcc
v_mov_b32 {vr(vaV)}, {vr(vbV)}
s_mul_i32 {sr(sT2)}, {sr(sW)}, 2560
s_add_u32 {sr(sT2)}, {sr(sT2)}, {QST}
v_add_u32 {vr(vQs1)}, {sr(sT2)}, {vr(vQo)}
v_and_b32 {vr(vQs2)}, 31, {vr(vLane)}
v_lshlrev_b32 {vr(vQs2)}, 3, {vr(vQs2)}
s_add_u32 {sr(sT2)}, {sr(sT2)}, 1024
v_add_u32 {vr(vQs2)}, {sr(sT2)}, {vr(vQs2)}
s_lshl_b32 {sr(sT2)}, {sr(sB)}, 4
s_add_u32 {sr(sT2)}, {sr(sT2)}, {sr(sMt)}
s_lshl_b32 {sr(sT2)}, {sr(sT2)}, 1
s_and_b32 {sr(sT3)}, {sr(sW)}, 1
s_add_u32 {sr(sT2)}, {sr(sT2)}, {sr(sT3)}
s_lshl_b32 {sr(sT2)}, {sr(sT2)}, 5
s_lshl_b32 {sr(sT3)}, {sr(sHg)}, 2
s_add_u32 {sr(sT2)}, {sr(sT2)}, {sr(sT3)}
s_add_u32 {sr(sT2)}, {sr(sT2)}, {sr(sT)}
s_mul_i32 {sr(sOo)}, {sr(sT2)}, 2560
s_add_u32 {sr(sOo)}, {sr(sOo)}, {F_WS_O}
s_mov_b32 {sr(sPub2)}, {sr(sKV)}
s_mul_i32 {sr(sT)}, {sr(sT)}, {KV_HEAD}
s_add_u32 {sr(sKV)}, {sr(sKV)}, {sr(sT)}''')
    if pub4:
        a(f'''s_and_b32 {sr(sT)}, {sr(sW)}, 3
s_mul_i32 {sr(sT2)}, {sr(sT)}, 10240
v_add_u32 {vr(vPub)}, {sr(sT2)}, {vr(vQo)}
s_mul_i32 {sr(sT)}, {sr(sT)}, {KV_HEAD}
s_mul_i32 {sr(sT2)}, {sr(sMt)}, 10240
s_add_u32 {sr(sT)}, {sr(sT)}, {sr(sT2)}
s_add_u32 {sr(sPub)}, {sr(sT)}, {sr(sPub2)}''')
    else:
        a(f'''s_and_b32 {sr(sT)}, {sr(sW)}, 1
s_mul_i32 {sr(sT)}, {sr(sT)}, 5120
v_add_u32 {vr(vPub)}, {sr(sT)}, {vr(vbK1)}
s_mul_i32 {sr(sT2)}, {sr(sMt)}, 10240
s_add_u32 {sr(sT)}, {sr(sT)}, {sr(sT2)}
s_add_u32 {sr(sPub)}, {sr(sT)}, {sr(sKV)}
s_add_u32 {sr(sPub2)}, {sr(sPub)}, 4096''')
    for ct in range(8):
        for tt in range(2):
            for i in range(4):
                a(f'v_mov_b32 {vr(acc[ct][tt]+i)}, 0')
    a(f'''s_mov_b32 {sr(sScale)}, {QSCALE}
s_mov_b32 {sr(sScale+1)}, {QSCALE}
s_and_b32 {sr(sT3)}, {sr(sW)}, 3
v_and_b32 {vr(vT0)}, 15, {vr(vLane)}
v_lshrrev_b32 {vr(vT1)}, 4, {vr(vLane)}
v_lshrrev_b32 {vr(vT2)}, 2, {vr(vT0)}
v_and_b32 {vr(vT3)}, 3, {vr(vT0)}
v_lshl_add_u32 {vr(vT4)}, {vr(vT2)}, 3, {vr(vT3)}
v_lshrrev_b32 {vr(vT2)}, 1, {vr(vT1)}
v_and_b32 {vr(vT3)}, 1, {vr(vT1)}
s_mul_i32 {sr(sT)}, {sr(sT3)}, 2560
v_mul_u32_u24 {vr(vE[0])}, 10240, {vr(vT2)}
v_lshl_add_u32 {vr(vE[0])}, {vr(vT3)}, 9, {vr(vE[0])}
v_lshl_add_u32 {vr(vE[0])}, {vr(vT4)}, 4, {vr(vE[0])}
v_add_u32 {vr(vE[0])}, {sr(sT)}, {vr(vE[0])}
s_cmp_ge_u32 {sr(sW)}, 4
s_cbranch_scc1 {name}_p1b''')

    def p1_variant(wn):
        if wn == 0:
            kinds = [('P', 0, 0, 0), ('P', 0, 0, 1), ('P', 0, 1, 0), ('P', 0, 1, 1), ('T', 0, 0, 0), ('P', 1, 0, 0), ('P', 1, 0, 1), ('T', 1, 0, 0)]
            a(f'''s_add_u32 {sr(sT2)}, {sr(sT)}, 1024
v_mul_u32_u24 {vr(vE[1])}, 10240, {vr(vT1)}
v_lshl_add_u32 {vr(vE[1])}, {vr(vT4)}, 3, {vr(vE[1])}
v_add_u32 {vr(vE[1])}, {sr(sT2)}, {vr(vE[1])}
s_mul_i32 {sr(sT)}, {sr(sT3)}, 1280
s_add_u32 {sr(sT)}, {sr(sT)}, {QST}
v_mul_u32_u24 {vr(vE[2])}, 5120, {vr(vT2)}
v_lshl_add_u32 {vr(vE[2])}, {vr(vT3)}, 9, {vr(vE[2])}
v_lshl_add_u32 {vr(vE[2])}, {vr(vT0)}, 4, {vr(vE[2])}
v_add_u32 {vr(vE[2])}, {sr(sT)}, {vr(vE[2])}
s_add_u32 {sr(sT)}, {sr(sT)}, 1024
v_mul_u32_u24 {vr(vE[3])}, 5120, {vr(vT1)}
v_lshl_add_u32 {vr(vE[3])}, {vr(vT0)}, 3, {vr(vE[3])}
v_add_u32 {vr(vE[3])}, {sr(sT)}, {vr(vE[3])}''')
        else:
            kinds = [('P', 1, 1, 0), ('P', 1, 1, 1)] + [('V', 2, i, 0) for i in range(5)]
            a(f'''s_add_u32 {sr(sT)}, {sr(sT)}, 1280
v_mul_u32_u24 {vr(vT2)}, 640, {vr(vT2)}
v_mul_u32_u24 {vr(vT3)}, 320, {vr(vT3)}
v_add3_u32 {vr(vT5)}, {vr(vT2)}, {vr(vT3)}, {sr(sT)}''')
            for i in range(5):
                a(f'''v_add_u32 {vr(vT2)}, {16*i}, {vr(vT0)}
v_mul_u32_u24 {vr(vT3)}, 3277, {vr(vT2)}
v_lshrrev_b32 {vr(vT3)}, 16, {vr(vT3)}
v_mul_u32_u24 {vr(vT3)}, {10240-320}, {vr(vT3)}
v_lshl_add_u32 {vr(vT2)}, {vr(vT2)}, 4, {vr(vT3)}
v_add_u32 {vr(vE[1+i])}, {vr(vT2)}, {vr(vT5)}''')
        nct = len(kinds)
        grp = [list(range(0, 4)), list(range(4, nct))]
        def rd_x(step, s2):
            return [f'ds_read_b128 {vr(Xf[s2][tt],4)}, {vr(vXr[step%3][s2])} offset:{tt*2048}' for tt in range(2)]
        def rd_w(step, s2, h, idx):
            ty, sec, sub, e = kinds[grp[h][idx]]
            base = (vWa if ty == 'P' else vWb)[step % 3]
            col = sec*160 + {'P': sub*80 + e*8, 'T': 32, 'V': sub*32}[ty]
            return [f'ds_read_b64_tr_b16 {vr(Wf[h][idx]+2*rd,2)}, {vr(base)} offset:{(32*s2+8*rd)*480 + col}' for rd in range(2)]
        def mf(s2, h, idx):
            ct = grp[h][idx]
            out = []
            for tt in range(2):
                A, B = Wf[h][idx], Xf[s2][tt]
                if kinds[ct][0] == 'V':
                    A, B = B, A
                out.append(f'v_mfma_f32_16x16x32_bf16 {vr(acc[ct][tt],4)}, {vr(A,4)}, {vr(B,4)}, {vr(acc[ct][tt],4)}')
            return out
        n0, n1 = 2 + 2*len(grp[0]), 2*len(grp[1])
        def phase(s2, h, nxt):
            if nxt is not None and h == 0:
                for r in rd_x(*nxt): a(r)
            for idx in range(len(grp[h])):
                for m in mf(s2, h, idx): a(m)
                if nxt is not None:
                    for r in rd_w(nxt[0], nxt[1], h, idx): a(r)
        st1()
        a('s_waitcnt vmcnt(0)')
        a(f'v_readfirstlane_b32 {sr(sTag)}, {vr(vEp7)}')
        a('s_barrier')
        a(f's_add_u32 {sr(sTag)}, {sr(sTag)}, {TAGK}')
        rts(1)
        st()
        for r in rd_x(0, 0): a(r)
        for h in range(2):
            for idx in range(len(grp[h])):
                for r in rd_w(0, 0, h, idx): a(r)
        for step in range(10):
            if step == 9 and hsplit:
                a('s_barrier')
            a(f's_waitcnt lgkmcnt({n1})')
            phase(0, 0, (step, 1))
            a(f's_waitcnt lgkmcnt({n0})')
            phase(0, 1, (step, 1))
            a('s_waitcnt lgkmcnt(0)')
            a('s_barrier')
            if step == 0 and wn == 1:
                a(f'v_mov_b32 {vr(vCi7)}, 1')
                a(f'buffer_atomic_add {vr(vCi7)}, {vr(vZ7)}, {sr(SDBG,4)}, 0 offen sc0')
            if step in (0, 4): st0()
            if step in (0, 1, 2, 8): st1()
            if step in (8, 9): st4()
            nx = (step + 1, 0) if step < 9 else None
            phase(1, 0, nx)
            phase(1, 1, nx)
        st0(); st4()
        rts(2)
        if wn == 1:
            a(f'''s_waitcnt vmcnt(0)
v_cmp_eq_u32 vcc, 255, {vr(vCi7)}
v_add_u32 {vr(vEp7)}, {TAGK}, {vr(vEp7)}
v_mov_b32 {vr(vT1)}, {OOB}
s_mov_b32 {sr(sT)}, {F_EPOCH}
v_cndmask_b32 {vr(vZ7)}, {vr(vT1)}, {vr(vZ7)}, vcc
buffer_store_dword {vr(vEp7)}, {vr(vZ7)}, {sr(SWS,4)}, {sr(sT)} offen{SC}''')
        def scale(r0):
            a(f'v_pk_mul_f32 {vr(r0,2)}, {vr(r0,2)}, {sr(sScale,2)}')
            a(f'v_pk_mul_f32 {vr(r0+2,2)}, {vr(r0+2,2)}, {sr(sScale,2)}')
        def pack4(d, x, y):
            a(f'v_cvt_pk_bf16_f32 {vr(d)}, {vr(x)}, {vr(x+1)}')
            a(f'v_cvt_pk_bf16_f32 {vr(d+1)}, {vr(x+2)}, {vr(x+3)}')
            if y is not None:
                a(f'v_cvt_pk_bf16_f32 {vr(d+2)}, {vr(y)}, {vr(y+1)}')
                a(f'v_cvt_pk_bf16_f32 {vr(d+3)}, {vr(y+2)}, {vr(y+3)}')
        def stage(want):
          ct = 0
          while ct < nct:
            ty, sec, sub, e = kinds[ct]
            if (sec == 0) != want:
                ct += 1
                continue
            if ty == 'P':
                for tt in range(2):
                    x, y = acc[ct][tt], acc[ct+1][tt]
                    if sec == 0:
                        scale(x); scale(y)
                    pack4(x, x, y)
                    if sec == 0:
                        a(f'ds_write_b128 {vr(vE[2])}, {vr(x,4)} offset:{sub*10240 + tt*256}')
                    else:
                        a(f'ds_write_b128 {vr(vE[0])}, {vr(x,4)} offset:{sub*20480 + tt*64}')
                ct += 2
            elif ty == 'T':
                for tt in range(2):
                    x = acc[ct][tt]
                    if sec == 0:
                        scale(x)
                    pack4(x, x, None)
                    if sec == 0:
                        a(f'ds_write_b64 {vr(vE[3])}, {vr(x,2)} offset:{tt*128}')
                    else:
                        a(f'ds_write_b64 {vr(vE[1])}, {vr(x,2)} offset:{tt*32}')
                ct += 1
            else:
                x, y = acc[ct][0], acc[ct][1]
                pack4(x, x, y)
                a(f'ds_write_b128 {vr(vE[1+sub])}, {vr(x,4)}')
                ct += 1
        stage(False)
        a('s_waitcnt lgkmcnt(0)')
        st4()
        a('s_barrier')
        st4()
        PB = Xf[0][0]
        assert Wf[0][0] == PB + 16
        if pub4:
            if wn == 0:
                stage(True)
            else:
                for q in range(10):
                    a(f'ds_read_b128 {vr(PB+4*q,4)}, {vr(vPub)} offset:{q*1024}')
                for q in range(10):
                    if q == 4: a(f's_add_u32 {sr(sPub)}, {sr(sPub)}, 4096')
                    if q == 8: a(f's_add_u32 {sr(sPub)}, {sr(sPub)}, 4096')
                    a(f's_waitcnt lgkmcnt({9 - q})')
                    a(f'buffer_store_dwordx4 {vr(PB+4*q,4)}, {vr(vQo)}, {sr(SWS,4)}, {sr(sPub)} offen offset:{(q%4)*1024}{SST}')
        else:
          for q in range(5):
            a(f'ds_read_b128 {vr(PB+4*q,4)}, {vr(vPub)} offset:{q*1024}')
          stage(True)
          nq = 6 if wn == 0 else 0
          for q in range(5):
            a(f's_waitcnt lgkmcnt({4 - q + nq})')
            a(f'buffer_store_dwordx4 {vr(PB+4*q,4)}, {vr(vQo)}, {sr(SWS,4)}, {sr(sPub if q < 4 else sPub2)} offen offset:{(q%4)*1024}{SST}')
        a('s_nop 1')
        st4()
    n_st = st.n
    p1_variant(0)
    a(f's_branch {name}_p2')
    a.label(f'{name}_p1b')
    st.n = n_st
    p1_variant(1)
    a.label(f'{name}_p2')

    V = VAlloc(VB2 + 3)
    Q1 = [V(4), V(4)]; Q2 = [V(2), V(2)]
    K1 = [V(4), V(4)]; K2 = [V(2), V(2)]
    V0 = [V(4), V(4)]; V1 = [V(4), V(4)]
    O = [V(16), V(16)]
    S = [V(16), V(16)]
    st3 = opts.get('st3', 1) and not nobar
    if st3:
        aK1 = [vbK1, vaK1, V()]; aK2 = [vbK2, vaK2, V()]; aV = [vbV, vaV, V()]
    vPw = V(2); vPa = V(); vPo_ = V(); vPg = V()
    done_alloc(V)
    for t in range(2):
        for i in range(16):
            a(f'v_mov_b32 {vr(O[t]+i)}, 0')
    for i in range(4):
        a(f'v_mov_b32 {vr(V1[1]+i)}, 0')
    a(f's_mov_b32 {sr(sG)}, 0')
    a(f's_mov_b32 {sr(sOff)}, 0')
    if st3:
        for k in (1, 2):
            a(f's_mov_b32 {sr(sT)}, {k*SLOT}')
            a(f'v_add_u32 {vr(aK1[k])}, {sr(sT)}, {vr(vbK1)}')
            a(f'v_mad_u32_u24 {vr(aK2[k])}, {vr(vmK2)}, {sr(sT)}, {vr(vbK2)}')
            a(f'v_mad_u32_u24 {vr(aV[k])}, {vr(vmV)}, {sr(sT)}, {vr(vbV)}')
    if nobar:
        a(f'''s_lshl_b32 {sr(sT)}, {sr(sW)}, 3
s_add_u32 {sr(sT2)}, {sr(sT)}, {LW_PW + 4}
s_xor_b32 {sr(sT)}, {sr(sT)}, 32
s_add_u32 {sr(sT)}, {sr(sT)}, {LW_PW}
v_mov_b32 {vr(vPa)}, {sr(sT)}
v_mov_b32 {vr(vPo_)}, {sr(sT2)}
v_mov_b32 {vr(vPg)}, 0''')
    a('s_waitcnt lgkmcnt(0)')
    a('s_barrier')
    st0(); st4()
    def rdK(s_, u, part='R', sl=0):
        x1, x2 = (aK1[sl], aK2[sl]) if st3 else (vaK1, vaK2)
        if part != 'Rb': a(f'ds_read_b128 {vr(K1[s_],4)}, {vr(x1)} offset:{2560*u}')
        if part != 'Ra': a(f'ds_read_b64 {vr(K2[s_],2)}, {vr(x2)} offset:{2560*u}')
    def rdV(s_, u, part='R', sl=0):
        x1 = aV[sl] if st3 else vaV
        if part != 'Rb': a(f'ds_read_b128 {vr(V0[s_],4)}, {vr(x1)} offset:{2560*u}')
        if part != 'Ra': a(f'ds_read_b128 {vr(V1[s_],4)}, {vr(x1)} offset:{2560*u+640}')
    def qk16(t, s_):
        a(f'v_mfma_f32_32x32x16_bf16 {vr(S[t],16)}, {vr(K1[s_],4)}, {vr(Q1[t],4)}, 0')
    def qk8(t, s_):
        a(f'v_mfma_f32_32x32x8_bf16 {vr(S[t],16)}, {vr(K2[s_],2)}, {vr(Q2[t],2)}, {vr(S[t],16)}')
    def pv(t, s_, n):
        Vf = (V0, V1)[n][s_]
        a(f'v_smfmac_f32_32x32x32_bf16 {vr(O[t],16)}, {vr(Vf,4)}, {vr(S[t]+8*n,8)}, {vr(vIdx)}')
    def rowmax(t, dst):
        s = S[t]
        a(f'v_max3_f32 {vr(dst)}, {vr(s)}, {vr(s+1)}, {vr(s+2)}')
        for i in range(3, 15, 2):
            a(f'v_max3_f32 {vr(dst)}, {vr(dst)}, {vr(s+i)}, {vr(s+i+1)}')
        a(f'v_max_f32 {vr(dst)}, {vr(dst)}, {vr(s+15)}')
    def crosshalf(x, y):
        a(f'v_mov_b32 {vr(y)}, {vr(x)}')
        a('s_nop 1')
        a(f'v_permlane32_swap_b32 {vr(x)}, {vr(y)}')
        a('s_nop 1')
    for t in range(2):
        a(f'ds_read_b128 {vr(Q1[t],4)}, {vr(vQs1)} offset:{1280*t}')
        a(f'ds_read_b64 {vr(Q2[t],2)}, {vr(vQs2)} offset:{1280*t}')
    rdK(0, 0); rdK(1, 1); rdV(0, 0)
    a('s_waitcnt lgkmcnt(4)')
    for t in range(2):
        a(f'v_cndmask_b32_e64 {vr(Q2[t])}, {vr(Q2[t])}, 0, {sr(sHi,2)}')
        a(f'v_cndmask_b32_e64 {vr(Q2[t]+1)}, {vr(Q2[t]+1)}, 0, {sr(sHi,2)}')
    qk16(0, 0); qk8(0, 0); qk16(1, 0); qk8(1, 0)
    a('s_nop 9')
    for t in range(2):
        if t == 1: a('s_nop 1')
        rowmax(t, vT0)
        crosshalf(vT0, vT1)
        a(f'''v_max_f32 {vr(vT0)}, {vr(vT0)}, {vr(vT1)}
v_sub_f32 {vr(vT0)}, 0, {vr(vT0)}
v_and_b32 {vr(vT1)}, 0xffff0000, {vr(vT0)}
v_sub_f32 {vr(vT0)}, {vr(vT0)}, {vr(vT1)}
v_and_b32 {vr(vT2)}, 0xffff0000, {vr(vT0)}
v_sub_f32 {vr(vT0)}, {vr(vT0)}, {vr(vT2)}
v_lshrrev_b32 {vr(vT1)}, 16, {vr(vT1)}
v_or_b32 {vr(vT1)}, {vr(vT1)}, {vr(vT2)}
v_lshrrev_b32 {vr(vT0)}, 16, {vr(vT0)}
v_cndmask_b32_e64 {vr(Q2[t])}, {vr(Q2[t])}, {vr(vT1)}, {sr(sHi,2)}
v_cndmask_b32_e64 {vr(Q2[t]+1)}, {vr(Q2[t]+1)}, {vr(vT0)}, {sr(sHi,2)}''')
        if t == 0:
            qk16(0, 0)
            a('s_nop 0')
            qk8(0, 0)
    for i in range(8, 16):
        a(f'v_mov_b32 {vr(S[1]+i)}, 0')
    st4()
    a(f'''s_lshl_b32 {sr(sT)}, {sr(sB)}, 3
s_add_u32 {sr(sT)}, {sr(sT)}, {sr(sHg)}
s_lshl_b32 {sr(sT)}, {sr(sT)}, 6
s_add_u32 {sr(sT)}, {sr(sT)}, {sr(sMt)}
s_lshl_b32 {sr(sT)}, {sr(sT)}, 2
s_add_u32 {sr(sT)}, {sr(sT)}, {F_FLAG1}
s_mov_b64 exec, 1
v_mov_b32 {vr(vT0)}, 1
v_mov_b32 {vr(vT2)}, {LW_CNT1}
v_mov_b32 {vr(vT1)}, {sr(sTag)}
v_mov_b32 {vr(vT3)}, {sr(sT)}
s_waitcnt vmcnt(0)
ds_add_rtn_u32 {vr(vT0)}, {vr(vT2)}, {vr(vT0)}
s_waitcnt lgkmcnt(0)
v_readfirstlane_b32 {sr(sT)}, {vr(vT0)}
s_cmp_eq_u32 {sr(sT)}, 7
s_cbranch_scc0 {name}_nl1
buffer_store_dword {vr(vT1)}, {vr(vT3)}, {sr(SWS,4)}, 0 offen{SC}''')
    a.label(f'{name}_nl1')
    a('s_mov_b64 exec, -1')
    prio = opts.get('prio', 1)
    rts(3)
    st0(); st4()
    if sset == 2: st()
    a('.p2align 6')
    a.label(f'{name}_loop')
    def ex(t, i):
        a(f'v_exp_f32 {vr(S[t]+i)}, {vr(S[t]+i)}')
    scheds = {1: 'e e P2 e e e e Q16 e e e e Q8 R e e e e P1 W e e',
              2: 'e e P2 e e e e Q16 e e e Q8 R e e e e e P1 W e e',
              3: 'e e P2 e e e e Q16 e e e e Q8 e R e e e P1 e W e',
              4: 'e e P2 e e e Q16 e e e e Q8 R e e e e P1 W e e e',
              5: 'e e W P2 e e e e Ra Q16 e e e e Rb Q8 e e e e P1 e e',
              6: 'e e W P2 e e e e R Q16 e e e e Q8 e e e e P1 e e',
              7: 'e e W P2 e e e e Q16 e e e e Ra Q8 e e e e Rb P1 e e',
              8: 'e e P2 e e e e Ra Q16 e e e e Rb Q8 e e e e W P1 e e',
              9: 'e e P2 e e e e Q16 e e e e Q8 e e e e R W P1 e e',
              10: 'e e P2 Ra e e e e Q16 Rb e e e e Q8 W e e e e P1 e e',
              11: 'e e P2 Ra e e e e Q16 Rb e e e e Q8 e e e e P1 W e e',
              12: 'e e P2 R e e e e Q16 e e e e Q8 e e e e P1 W e e',
              13: 'e e P2 R W e e e e Q16 e e e e Q8 e e e e P1 e e',
              14: 'e e P2 Ra e e e e Q16 e e e e Q8 e e e e P1 Rb W e e',
              15: 'e e P2 R e e e e Q16 e e e e Q8 W e e e e P1 e e'}
    sched = scheds[opts.get('sched', 12)].split()
    unroll = 3 if st3 else opts.get('unroll', 1)
    ptab = {1: {(0, 0): 2, (1, 0): 1, (2, 0): 0, (3, 0): 3},
            2: {(3, 0): 1, (1, 0): 0},
            3: {(3, 0): 3, (3, 1): 2, (0, 1): 1, (1, 1): 0},
            6: {(3, 0): 3, (0, 1): 2, (1, 1): 1, (2, 0): 0}}.get(prio, {})
    for rep in range(unroll):
      for j in range(4):
        for t in range(2):
            pj = j if t == 1 else j - 1
            nj = j if t == 0 else j + 1
            if (j, t) in ptab and nobar != 1:
                a(f's_setprio {ptab[(j, t)]}')
            e = 0
            for tok in sched:
                if tok == 'e':
                    ex(t, e); e += 1
                elif tok == 'P2':
                    pv(1 - t, pj % 2, 1)
                elif tok == 'P1':
                    pv(t, j % 2, 0)
                elif tok == 'Q16':
                    qk16(1 - t, nj % 2)
                elif tok == 'Q8':
                    qk8(1 - t, nj % 2)
                elif tok == 'W':
                    a(f's_waitcnt lgkmcnt({3 if nobar and (j, t) in ((2, 0), (2, 1)) else 2})')
                elif tok == 'Rb':
                    if t == 0: rdV((j + 1) % 2, (j + 1) % 4, 'Rb', (rep + (j + 1) // 4) % 3)
                    else: rdK(j % 2, (j + 2) % 4, 'Rb', (rep + (j + 2) // 4) % 3)
                elif tok in ('R', 'Ra'):
                    if t == 0:
                        if j == 3 and not st3:
                            a(f'v_mad_u32_u24 {vr(vaV)}, {vr(vmV)}, {sr(sOff)}, {vr(vbV)}')
                        rdV((j + 1) % 2, (j + 1) % 4, tok, (rep + (j + 1) // 4) % 3)
                        if j == 2 and nobar:
                            a(f'ds_read_b64 {vr(vPw,2)}, {vr(vPa)}')
                    else:
                        if j == 2 and st3:
                            a('s_waitcnt lgkmcnt(0)')
                            a('s_barrier')
                        elif j == 2:
                            a(f'''s_add_u32 {sr(sOff)}, {sr(sOff)}, {SLOT}
s_cmp_ge_u32 {sr(sOff)}, {3*SLOT}
s_cselect_b32 {sr(sOff)}, 0, {sr(sOff)}''')
                            if nobar:
                                a(f'''v_add_u32 {vr(vPg)}, 1, {vr(vPg)}
s_add_u32 {sr(sT3)}, {sr(sG)}, {rep + 1}
s_waitcnt lgkmcnt(0)
v_readfirstlane_b32 {sr(sT)}, {vr(vPw)}
v_readfirstlane_b32 {sr(sT2)}, {vr(vPw+1)}
ds_write_b32 {vr(vPo_)}, {vr(vPg)}''')
                                if nobar == 1:
                                    a(f'''s_setprio 0
s_cmp_lt_u32 {sr(sT2)}, {sr(sT3)}
s_cbranch_scc1 {name}_lo{rep}
s_setprio 1''')
                                    a.label(f'{name}_lo{rep}')
                                elif nobar == 2:
                                    a(f's_add_u32 {sr(sT2)}, {sr(sT2)}, {1 + opts.get("slack", 0)}')
                                    a(f's_min_u32 {sr(sT)}, {sr(sT)}, {sr(sT2)}')
                                a(f's_cmp_gt_u32 {sr(sT)}, {sr(sT3)}')
                                a(f's_cbranch_scc0 {name}_spin{rep}')
                                a.label(f'{name}_spun{rep}')
                            else:
                                a('s_waitcnt lgkmcnt(0)')
                                a('s_barrier')
                            if sset == 2 and st.on:
                                for K in (0, 1, 2, 3, 8, 14):
                                    a(f's_cmp_eq_u32 {sr(sG)}, {K}')
                                    a(f's_cbranch_scc0 {name}_sk{K}')
                                    st()
                                    a.label(f'{name}_sk{K}')
                            a(f'''v_add_u32 {vr(vaK1)}, {sr(sOff)}, {vr(vbK1)}
v_mad_u32_u24 {vr(vaK2)}, {vr(vmK2)}, {sr(sOff)}, {vr(vbK2)}''')
                        rdK(j % 2, (j + 2) % 4, tok, (rep + (j + 2) // 4) % 3)
            assert e == 16
      if st3 and rep == 0:
        a(f's_cmp_eq_u32 {sr(sG)}, 15')
        a(f's_cbranch_scc1 {name}_lend')
    a(f'''s_add_u32 {sr(sG)}, {sr(sG)}, {unroll}
s_cmp_lt_u32 {sr(sG)}, 16
s_cbranch_scc1 {name}_loop''')
    a.label(f'{name}_lend')
    a('s_nop 1')
    pv(1, 1, 1)
    if ptab or nobar:
        a('s_setprio 0')
    st0()
    if sset in (2, 3): st()
    L = [vT2, vT3]
    rts(4)
    a('s_waitcnt lgkmcnt(0)')
    a(f's_mov_b32 {sr(sI)}, 0')
    a.label(f'{name}_store')
    a(f's_mov_b32 {sr(sM)}, 0xaaaaaaaa')
    a(f's_mov_b32 {sr(sM+1)}, 0xaaaaaaaa')
    for t in range(2):
        a(f'v_mov_b32 {vr(vT0)}, {vr(O[t]+8)}')
        crosshalf(vT0, L[t])
        a(f'v_rcp_f32 {vr(vT0)}, {vr(L[t])}')
        a('s_nop 0')
        for i in range(12):
            a(f'v_mul_f32 {vr(O[t]+i)}, {vr(O[t]+i)}, {vr(vT0)}')
        for i in range(4):
            a(f'v_cvt_pk_bf16_f32 {vr(S[t]+i)}, {vr(O[t]+2*i)}, {vr(O[t]+2*i+1)}')
        a(f'buffer_store_dwordx4 {vr(S[t],4)}, {vr(vQo)}, {sr(SWS,4)}, {sr(sOo)} offen offset:{1024*t}{SST}')
        for i in range(2):
            a(f'v_cvt_pk_bf16_f32 {vr(S[0]+4+2*t+i)}, {vr(O[t]+8+2*i)}, {vr(O[t]+8+2*i+1)}')
    ta, tb, X, Y = S[0]+4, S[0]+6, S[0]+8, S[0]+12
    a(f'''v_cndmask_b32_e64 {vr(X)}, {vr(tb)}, {vr(ta)}, {sr(sM,2)}
v_cndmask_b32_e64 {vr(X+1)}, {vr(tb+1)}, {vr(ta+1)}, {sr(sM,2)}
v_lshrrev_b32 {vr(vT0)}, 1, {vr(vLane)}
v_and_b32 {vr(vT1)}, 1, {vr(vLane)}
v_mov_b32_dpp {vr(X+2)}, {vr(X)} quad_perm:[1,0,3,2] row_mask:0xf bank_mask:0xf
v_mov_b32_dpp {vr(X+3)}, {vr(X+1)} quad_perm:[1,0,3,2] row_mask:0xf bank_mask:0xf
v_lshlrev_b32 {vr(vT0)}, 4, {vr(vT0)}
v_lshl_add_u32 {vr(vT0)}, {vr(vT1)}, 8, {vr(vT0)}
v_mov_b32 {vr(vT1)}, {OOB}
v_cndmask_b32_e64 {vr(Y)}, {vr(ta)}, {vr(X+2)}, {sr(sM,2)}
v_cndmask_b32_e64 {vr(Y+1)}, {vr(ta+1)}, {vr(X+3)}, {sr(sM,2)}
v_cndmask_b32_e64 {vr(Y+2)}, {vr(X+2)}, {vr(tb)}, {sr(sM,2)}
v_cndmask_b32_e64 {vr(Y+3)}, {vr(X+3)}, {vr(tb+1)}, {sr(sM,2)}
v_cndmask_b32_e64 {vr(vT0)}, {vr(vT0)}, {vr(vT1)}, {sr(sHi,2)}
buffer_store_dwordx4 {vr(Y,4)}, {vr(vT0)}, {sr(SWS,4)}, {sr(sOo)} offen offset:2048{SST}''')
    st0()
    for t in range(2):
        sm = sM if t == 0 else sM2
        a(f'v_mul_f32 {vr(vT1)}, 0, {vr(O[t])}')
        for i in range(1, 12):
            a(f'v_fmac_f32 {vr(vT1)}, 0, {vr(O[t]+i)}')
        a(f'v_add_f32 {vr(vT1)}, {vr(vT1)}, {vr(L[t])}')
        a(f'v_cmp_gt_f32 vcc, 0x53800000, {vr(vT1)}')
        a(f's_mov_b64 {sr(sm,2)}, vcc')
        a(f'v_cmp_lt_f32 vcc, 0x35800000, {vr(vT1)}')
        a(f's_and_b64 {sr(sm,2)}, {sr(sm,2)}, vcc')
    a(f'''s_and_b64 {sr(sM,2)}, {sr(sM,2)}, {sr(sM2,2)}
s_cmp_eq_u64 {sr(sM,2)}, -1
s_cselect_b32 {sr(sT)}, 1, {sr(sI)}
s_cmp_eq_u32 {sr(sT)}, 0
s_cbranch_scc1 {name}_fallback''')

    V = VAlloc(VBASE)
    vAo = V(); vAt = V(); vWm0 = V(); vWt0 = V(); vOo = V(); vRd = V(); vDn = V(); vOw = V(); vOr = V(); vOs = [V(), V(), V()]
    vWm = [V() for _ in range(4)]; vWt = [V() for _ in range(4)]
    acc3 = [V(4) for _ in range(5)]
    assert V.n <= S[0]
    Wg = [[V(4) for _ in range(5)] for _ in range(2)]
    A = [[V(4) for _ in range(5)] for _ in range(4)]
    done_alloc(V)
    a(f'''s_lshl_b32 {sr(sT)}, {sr(sB)}, 4
s_add_u32 {sr(sT)}, {sr(sT)}, {sr(sMt3)}
s_lshl_b32 {sr(sT)}, {sr(sT)}, 1
s_lshr_b32 {sr(sT2)}, {sr(sW)}, 2
s_add_u32 {sr(sT)}, {sr(sT)}, {sr(sT2)}
s_mul_i32 {sr(sA)}, {sr(sT)}, {32*2560}
s_add_u32 {sr(sA)}, {sr(sA)}, {F_WS_O}
s_and_b32 {sr(sT)}, {sr(sW)}, 1
s_lshl_b32 {sr(sT)}, {sr(sT)}, 4
s_bfe_u32 {sr(sT2)}, {sr(sW)}, 0x10001
v_and_b32 {vr(vT0)}, 15, {vr(vLane)}
v_add_u32 {vr(vT0)}, {sr(sT)}, {vr(vT0)}
v_lshlrev_b32 {vr(vT0)}, 4, {vr(vT0)}
v_lshrrev_b32 {vr(vT1)}, 5, {vr(vLane)}
v_mul_u32_u24 {vr(vT1)}, 2560, {vr(vT1)}
v_bfe_u32 {vr(vT2)}, {vr(vLane)}, 4, 1
v_lshl_add_u32 {vr(vT1)}, {vr(vT2)}, 9, {vr(vT1)}
s_lshl_b32 {sr(sT3)}, {sr(sT2)}, 10
v_add3_u32 {vr(vAo)}, {vr(vT0)}, {vr(vT1)}, {sr(sT3)}
v_lshrrev_b32 {vr(vT1)}, 4, {vr(vLane)}
v_mul_u32_u24 {vr(vT1)}, 2560, {vr(vT1)}
s_lshl_b32 {sr(sT3)}, {sr(sT2)}, 8
s_add_u32 {sr(sT3)}, {sr(sT3)}, 2048
v_lshrrev_b32 {vr(vT0)}, 1, {vr(vT0)}
v_add3_u32 {vr(vAt)}, {vr(vT0)}, {vr(vT1)}, {sr(sT3)}
v_bfe_u32 {vr(vT0)}, {vr(vLane)}, 2, 2
v_lshrrev_b32 {vr(vT1)}, 5, {vr(vLane)}
v_mul_u32_u24 {vr(vT1)}, 20, {vr(vT1)}
v_bfe_u32 {vr(vT2)}, {vr(vLane)}, 4, 1
v_lshl_add_u32 {vr(vT1)}, {vr(vT2)}, 2, {vr(vT1)}
v_add_u32 {vr(vT1)}, {vr(vT1)}, {vr(vT0)}
v_mul_u32_u24 {vr(vT1)}, 160, {vr(vT1)}
v_and_b32 {vr(vT2)}, 3, {vr(vLane)}
v_lshl_add_u32 {vr(vWm0)}, {vr(vT2)}, 3, {vr(vT1)}
v_lshrrev_b32 {vr(vT1)}, 4, {vr(vLane)}
v_mul_u32_u24 {vr(vT1)}, 20, {vr(vT1)}
v_add3_u32 {vr(vT1)}, {vr(vT1)}, {vr(vT0)}, 16
v_mul_u32_u24 {vr(vT1)}, 160, {vr(vT1)}
v_lshl_add_u32 {vr(vWt0)}, {vr(vT2)}, 3, {vr(vT1)}
s_lshl_b32 {sr(sT)}, {sr(sMt3)}, 7
s_lshl_b32 {sr(sT2)}, {sr(sW)}, 4
s_add_u32 {sr(sT)}, {sr(sT)}, {sr(sT2)}
v_and_b32 {vr(vT0)}, 15, {vr(vLane)}
v_add_u32 {vr(vT0)}, {sr(sT)}, {vr(vT0)}
v_mul_u32_u24 {vr(vT0)}, 2560, {vr(vT0)}
v_lshrrev_b32 {vr(vT1)}, 4, {vr(vLane)}
v_lshl_add_u32 {vr(vT0)}, {vr(vT1)}, 3, {vr(vT0)}
s_mul_i32 {sr(sT)}, {sr(sB)}, 1280
s_mul_i32 {sr(sT2)}, {sr(sCg)}, 160
s_add_u32 {sr(sT)}, {sr(sT)}, {sr(sT2)}
v_add_u32 {vr(vOo)}, {sr(sT)}, {vr(vT0)}
v_mov_b32 {vr(vRd)}, {LW_RDY}
s_lshl_b32 {sr(sT2)}, {sr(sMt3)}, 3
s_add_u32 {sr(sT2)}, {sr(sT2)}, {sr(sW)}
s_mul_i32 {sr(sT2)}, {sr(sT2)}, {16*2560}
s_add_u32 {sr(sOo)}, {sr(sT)}, {sr(sT2)}
s_mul_i32 {sr(sT2)}, {sr(sW)}, 3072
v_and_b32 {vr(vT0)}, 15, {vr(vLane)}
v_mul_u32_u24 {vr(vT0)}, 160, {vr(vT0)}
v_lshl_add_u32 {vr(vT0)}, {vr(vT1)}, 3, {vr(vT0)}
v_add_u32 {vr(vOw)}, {sr(sT2)}, {vr(vT0)}
v_lshlrev_b32 {vr(vT0)}, 4, {vr(vLane)}
v_add_u32 {vr(vOr)}, {sr(sT2)}, {vr(vT0)}
v_mul_u32_u24 {vr(vT1)}, 6554, {vr(vLane)}
v_lshrrev_b32 {vr(vT1)}, 16, {vr(vT1)}
v_mul_u32_u24 {vr(vT1)}, {2560-160}, {vr(vT1)}
v_add_u32 {vr(vOs[0])}, {vr(vT0)}, {vr(vT1)}
v_add_u32 {vr(vT2)}, 64, {vr(vLane)}
v_mul_u32_u24 {vr(vT1)}, 6554, {vr(vT2)}
v_lshrrev_b32 {vr(vT1)}, 16, {vr(vT1)}
v_mul_u32_u24 {vr(vT1)}, {2560-160}, {vr(vT1)}
v_lshl_add_u32 {vr(vOs[1])}, {vr(vT2)}, 4, {vr(vT1)}
v_add_u32 {vr(vT2)}, 128, {vr(vLane)}
v_mul_u32_u24 {vr(vT1)}, 6554, {vr(vT2)}
v_lshrrev_b32 {vr(vT1)}, 16, {vr(vT1)}
v_mul_u32_u24 {vr(vT1)}, {2560-160}, {vr(vT1)}
v_lshl_add_u32 {vr(vT1)}, {vr(vT2)}, 4, {vr(vT1)}
v_mov_b32 {vr(vT2)}, {OOB}
v_cndmask_b32_e64 {vr(vOs[2])}, {vr(vT1)}, {vr(vT2)}, {sr(sHi,2)}
s_lshl_b32 {sr(sT)}, {sr(sB)}, 4
s_add_u32 {sr(sT)}, {sr(sT)}, {sr(sMt)}
s_lshl_b32 {sr(sT)}, {sr(sT)}, 6
s_add_u32 {sr(sT)}, {sr(sT)}, {sr(sHg)}
s_lshl_b32 {sr(sT)}, {sr(sT)}, 2
s_add_u32 {sr(sT)}, {sr(sT)}, {F_FLAG2}
v_mov_b32 {vr(vDn)}, {sr(sT)}
v_add_u32 {vr(vWm0)}, {WO_LO}, {vr(vWm0)}
v_add_u32 {vr(vWt0)}, {WO_LO}, {vr(vWt0)}
s_and_b32 {sr(sT3)}, {sr(sCg)}, {opts.get('rot3', 3)}
s_lshl_b32 {sr(sT3)}, {sr(sT3)}, 1
s_mov_b32 {sr(sDone)}, 0''')
    for t in range(5):
        for i in range(4):
            a(f'v_mov_b32 {vr(acc3[t]+i)}, 0')
    tid_ = [0]
    base3 = st.n
    if sset == 3: st.n += 4
    def read_rdy():
        a(f'''ds_read_b64 {vr(vT0,2)}, {vr(vRd)}
s_waitcnt lgkmcnt(0)
v_and_b32 {vr(vT0)}, {vr(vT0)}, {vr(vT1)}
s_nop 0
v_readfirstlane_b32 {sr(sT)}, {vr(vT0)}
s_andn2_b32 {sr(sT)}, {sr(sT)}, {sr(sDone)}''')
    def loads(s_):
        a(f'''s_lshl_b32 {sr(sT2)}, {sr(sT)}, 8
s_or_b32 {sr(sT)}, {sr(sT)}, {sr(sT2)}
s_lshr_b32 {sr(sT)}, {sr(sT)}, {sr(sT3)}
s_ff1_i32_b32 {sr(sT)}, {sr(sT)}
s_add_u32 {sr(sT)}, {sr(sT)}, {sr(sT3)}
s_and_b32 {sr(sT)}, {sr(sT)}, 7
s_bitset1_b32 {sr(sDone)}, {sr(sT)}
s_mul_i32 {sr(sT2)}, {sr(sT)}, 10240
s_add_u32 {sr(sT2)}, {sr(sT2)}, {sr(sA)}
s_cmp_eq_u32 {sr(sT)}, 6
s_mul_i32 {sr(sT)}, {sr(sT)}, 12800
s_cselect_b32 {sr(sT)}, {QST - WO_LO}, {sr(sT)}''')
        for p in range(4):
            a(f'buffer_load_dwordx4 {vr(A[s_][p],4)}, {vr(vAo)}, {sr(SWS,4)}, {sr(sT2)} offen{SLD}')
            if p == 0:
                a(f'buffer_load_dwordx2 {vr(A[s_][4],2)}, {vr(vAt)}, {sr(SWS,4)}, {sr(sT2)} offen{SLD}')
            if p == 2:
                a(f'buffer_load_dwordx2 {vr(A[s_][4]+2,2)}, {vr(vAt)}, {sr(SWS,4)}, {sr(sT2)} offen{SLD}')
            if p < 3:
                a(f's_add_u32 {sr(sT2)}, {sr(sT2)}, 5120')
        a(f'v_add_u32 {vr(vWm[s_])}, {sr(sT)}, {vr(vWm0)}')
        a(f'v_add_u32 {vr(vWt[s_])}, {sr(sT)}, {vr(vWt0)}')
        if sset == 3 and st.on:
            a(f's_memtime s[{62+2*(base3+s_)}:{63+2*(base3+s_)}]\ns_waitcnt lgkmcnt(0)')
    def take_group(s_):
        n = tid_[0]; tid_[0] += 1
        a.label(f'{name}_tg{n}')
        read_rdy()
        a(f'''s_cbranch_scc1 {name}_tgd{n}
s_sleep 1
s_branch {name}_tg{n}''')
        a.label(f'{name}_tgd{n}')
        loads(s_)
    a('s_waitcnt vmcnt(0)')
    a(f'''s_mov_b64 exec, 1
v_mov_b32 {vr(vT0)}, 1
ds_add_rtn_u32 {vr(vT0)}, {vr(vRd)}, {vr(vT0)} offset:8
v_mov_b32 {vr(vT1)}, {sr(sTag)}
v_mov_b32 {vr(vT2)}, 0xff
s_waitcnt lgkmcnt(0)
v_readfirstlane_b32 {sr(sT)}, {vr(vT0)}
s_cmp_eq_u32 {sr(sT)}, 7
s_cbranch_scc0 {name}_nl
buffer_store_dword {vr(vT1)}, {vr(vDn)}, {sr(SWS,4)}, 0 offen{SC}
ds_write_b32 {vr(vRd)}, {vr(vT2)} offset:4''')
    a.label(f'{name}_nl')
    a('s_mov_b64 exec, -1')
    if sset == 3: st()
    def rdW3(fs, j, p, t):
        out = []
        for rd in range(2):
            if p < 4:
                base, off = vWm[j], (20*(2*p) + 8*rd)*160 + t*32
            else:
                base, off = vWt[j], (20*(4*rd))*160 + t*32
            out.append(f'ds_read_b64_tr_b16 {vr(Wg[fs][t]+2*rd,2)}, {vr(base)} offset:{off}')
        return out
    if opts.get('evt', 1):
        st0()
        sJ = sG
        a(f's_mov_b32 {sr(sI)}, 0')
        a(f's_mov_b32 {sr(sJ)}, 0')
        a.label(f'{name}_ev')
        a(f's_cmp_lt_u32 {sr(sI)}, 4')
        a(f's_cbranch_scc0 {name}_evc')
        read_rdy()
        a(f's_cbranch_scc0 {name}_evn')
        for i in range(4):
            if i < 3:
                a(f's_cmp_eq_u32 {sr(sI)}, {i}')
                a(f's_cbranch_scc0 {name}_evt{i}')
            loads(i)
            a(f's_mov_b32 {sr(sI)}, {i+1}')
            a(f's_branch {name}_ev')
            a.label(f'{name}_evt{i}')
        a.label(f'{name}_evn')
        a(f'''s_getreg_b32 {sr(sT)}, hwreg(HW_REG_IB_STS)
s_bfe_u32 {sr(sT2)}, {sr(sT)}, 0x20016
s_lshl_b32 {sr(sT2)}, {sr(sT2)}, 4
s_and_b32 {sr(sT)}, {sr(sT)}, 15
s_or_b32 {sr(sT)}, {sr(sT)}, {sr(sT2)}
s_add_u32 {sr(sT)}, {sr(sT)}, 6
s_sub_u32 {sr(sT2)}, {sr(sI)}, {sr(sJ)}
s_mul_i32 {sr(sT2)}, {sr(sT2)}, 6
s_cmp_le_u32 {sr(sT)}, {sr(sT2)}
s_cbranch_scc1 {name}_evc
{'s_sleep 1' if opts.get('sl2', 1) else 's_nop 0'}
s_branch {name}_ev''')
        a.label(f'{name}_evc')
        for j in range(4):
            if j < 3:
                a(f's_cmp_eq_u32 {sr(sJ)}, {j}')
                a(f's_cbranch_scc0 {name}_evk{j}')
            for p in range(2):
                for t in range(5):
                    for r in rdW3(p, j, p, t): a(r)
            for k in range(4, j + 1, -1):
                a(f's_cmp_eq_u32 {sr(sI)}, {k}')
                a(f's_cbranch_scc0 {name}_evw{j}_{k}')
                a(f's_waitcnt vmcnt({6*(k-j-1)})')
                a(f's_branch {name}_evx{j}')
                a.label(f'{name}_evw{j}_{k}')
            a('s_waitcnt vmcnt(0)')
            a.label(f'{name}_evx{j}')
            if sset == 3 and j in (0, 3): st()
            for p in range(5):
                fs = p % 2
                a(f's_waitcnt lgkmcnt({10 if p < 4 else 0})')
                for t in range(5):
                    a(f'v_mfma_f32_16x16x32_bf16 {vr(acc3[t],4)}, {vr(Wg[fs][t],4)}, {vr(A[j][p],4)}, {vr(acc3[t],4)}')
                    if p + 2 < 5:
                        for r in rdW3(fs, j, p + 2, t): a(r)
            if j < 3:
                a(f's_mov_b32 {sr(sJ)}, {j+1}')
                a(f's_branch {name}_ev')
                a.label(f'{name}_evk{j}')
    else:
        st0()
        steps = [(j, p) for j in range(4) for p in range(5)]
        for j in range(4):
            take_group(j)
        for n in range(2):
            for t in range(5):
                for r in rdW3(n, *steps[n], t): a(r)
        left = {0: 5, 1: 3, 2: 2, 3: 0, 4: 0}
        for n, (j, p) in enumerate(steps):
            fs = n % 2
            a(f's_waitcnt vmcnt({6*(3-j) + left[p]}) lgkmcnt({10 if n < 19 else 0})')
            if sset == 3 and n in (0, 18): st()
            for t in range(5):
                a(f'v_mfma_f32_16x16x32_bf16 {vr(acc3[t],4)}, {vr(Wg[fs][t],4)}, {vr(A[j][p],4)}, {vr(acc3[t],4)}')
                if n + 2 < 20:
                    for r in rdW3(fs, *steps[n+2], t): a(r)

    a('s_nop 3')
    st0()
    if sset == 3: st()
    OUTF = {0: '', 1: ' nt', 2: ' sc1', 3: ' sc0 sc1', 4: ' sc1 nt', 5: ' sc0 sc1 nt'}[opts.get('outf', 2)]
    if opts.get('ow', 1):
        for t in range(5):
            a(f'v_cvt_pk_bf16_f32 {vr(acc3[t])}, {vr(acc3[t])}, {vr(acc3[t]+1)}')
            a(f'v_cvt_pk_bf16_f32 {vr(acc3[t]+1)}, {vr(acc3[t]+2)}, {vr(acc3[t]+3)}')
            a(f'ds_write_b64 {vr(vOw)}, {vr(acc3[t],2)} offset:{t*32}')
        a('s_waitcnt lgkmcnt(0)')
        for k in range(3):
            a(f'ds_read_b128 {vr(Wg[0][k],4)}, {vr(vOr)} offset:{k*1024}')
        for k in range(3):
            a(f's_waitcnt lgkmcnt({2-k})')
            a(f'buffer_store_dwordx4 {vr(Wg[0][k],4)}, {vr(vOs[k])}, {sr(SOUT,4)}, {sr(sOo)} offen{OUTF}')
    else:
        for t in range(5):
            a(f'v_cvt_pk_bf16_f32 {vr(acc3[t])}, {vr(acc3[t])}, {vr(acc3[t]+1)}')
            a(f'v_cvt_pk_bf16_f32 {vr(acc3[t]+1)}, {vr(acc3[t]+2)}, {vr(acc3[t]+3)}')
            a(f'buffer_store_dwordx2 {vr(acc3[t],2)}, {vr(vOo)}, {sr(SOUT,4)}, 0 offen offset:{t*32}{OUTF}')

    if sset == 5:
        st(); st()
    if dbgt:
        a('s_waitcnt vmcnt(0)')
        rts(5)
        a('s_mov_b64 exec, 1')
        a(f's_not_b32 s62, s62')
        for k in range(6):
            a(f'v_mov_b32 {vr(vT0)}, {4+4*k}')
            a(f'v_mov_b32 {vr(vT1)}, s{62+2*k}')
            a(f'buffer_atomic_umax {vr(vT1)}, {vr(vT0)}, {sr(SDBG,4)}, 0 offen')
            a('s_nop 1')
    if st.on:
        a('s_waitcnt vmcnt(0)')
    st(); st.rt(); st.flush(sW)
    n_total = st.n
    a.label(f'{name}_done')
    a('s_endpgm')

    if nobar:
        for rep in range(unroll):
            a.label(f'{name}_spin{rep}')
            a(f'''ds_read_b64 {vr(vPw,2)}, {vr(vPa)}
s_waitcnt lgkmcnt(0)
v_readfirstlane_b32 {sr(sT)}, {vr(vPw)}''')
            if nobar == 2:
                a(f'''v_readfirstlane_b32 {sr(sT2)}, {vr(vPw+1)}
s_add_u32 {sr(sT2)}, {sr(sT2)}, {1 + opts.get("slack", 0)}
s_min_u32 {sr(sT)}, {sr(sT)}, {sr(sT2)}''')
            a(f'''s_cmp_gt_u32 {sr(sT)}, {sr(sT3)}
s_cbranch_scc0 {name}_spin{rep}
s_branch {name}_spun{rep}''')
    a.label(f'{name}_fallback')
    M = [vT4, vT5]
    vVo = vPa
    a(f'''v_cndmask_b32_e64 {vr(Q2[0])}, {vr(Q2[0])}, 0, {sr(sHi,2)}
v_cndmask_b32_e64 {vr(Q2[0]+1)}, {vr(Q2[0]+1)}, 0, {sr(sHi,2)}
v_cndmask_b32_e64 {vr(Q2[1])}, {vr(Q2[1])}, 0, {sr(sHi,2)}
v_cndmask_b32_e64 {vr(Q2[1]+1)}, {vr(Q2[1]+1)}, 0, {sr(sHi,2)}
v_mov_b32 {vr(M[0])}, 0xff800000
v_mov_b32 {vr(M[1])}, 0xff800000
v_mov_b32 {vr(vT1)}, {OOB}
s_lshr_b32 {sr(sT)}, {sr(sW)}, 1
s_mul_i32 {sr(sT)}, {sr(sT)}, 10240
v_subrev_u32 {vr(vT0)}, {sr(sT)}, {vr(vbV)}
v_cmp_eq_u32 vcc, 1, {vr(vmV)}
s_mov_b32 {sr(sT)}, {sr(sKV)}
s_mov_b32 {sr(sG)}, 0
v_cndmask_b32 {vr(vVo)}, {vr(vT1)}, {vr(vT0)}, vcc
s_mov_b64 {sr(sM2,2)}, vcc
s_waitcnt vmcnt(0)''')
    a.label(f'{name}_fb1')
    a(f'''buffer_load_dwordx4 {vr(K1[0],4)}, {vr(vQo)}, {sr(SWS,4)}, {sr(sT)} offen{SC}
buffer_load_dwordx2 {vr(K2[0],2)}, {vr(vQo2)}, {sr(SWS,4)}, {sr(sT)} offen{SC}
s_waitcnt vmcnt(0)''')
    qk16(0, 0); qk16(1, 0); qk8(0, 0); qk8(1, 0)
    a('s_nop 15')
    for t in range(2):
        rowmax(t, vT0)
        a(f'v_max_f32 {vr(M[t])}, {vr(M[t])}, {vr(vT0)}')
    a(f'''s_add_u32 {sr(sT)}, {sr(sT)}, 2560
s_add_u32 {sr(sG)}, {sr(sG)}, 1
s_cmp_lt_u32 {sr(sG)}, 64
s_cbranch_scc1 {name}_fb1''')
    for t in range(2):
        crosshalf(M[t], vT1)
        a(f'v_max_f32 {vr(M[t])}, {vr(M[t])}, {vr(vT1)}')
        for i in range(16):
            a(f'v_mov_b32 {vr(O[t]+i)}, 0')
    a(f's_mov_b32 {sr(sT)}, {sr(sKV)}')
    a(f's_mov_b32 {sr(sG)}, 0')
    a(f'v_mov_b32 {vr(vT1)}, 0x3f803f80')
    a.label(f'{name}_fb2')
    a(f'''buffer_load_dwordx4 {vr(K1[0],4)}, {vr(vQo)}, {sr(SWS,4)}, {sr(sT)} offen{SC}
buffer_load_dwordx2 {vr(K2[0],2)}, {vr(vQo2)}, {sr(SWS,4)}, {sr(sT)} offen{SC}
buffer_load_dwordx4 {vr(V0[0],4)}, {vr(vVo)}, {sr(SWS,4)}, {sr(sT)} offen{SC}
buffer_load_dwordx4 {vr(V1[0],4)}, {vr(vVo)}, {sr(SWS,4)}, {sr(sT)} offen offset:640{SC}
s_waitcnt vmcnt(0)''')
    qk16(0, 0); qk16(1, 0); qk8(0, 0); qk8(1, 0)
    for i in range(4):
        a(f'v_cndmask_b32_e64 {vr(V0[0]+i)}, {vr(vT1)}, {vr(V0[0]+i)}, {sr(sM2,2)}')
        a(f'v_cndmask_b32_e64 {vr(V1[0]+i)}, {vr(vT1)}, {vr(V1[0]+i)}, {sr(sM2,2)}')
    a('s_nop 15')
    for t in range(2):
        for i in range(16):
            a(f'v_sub_f32 {vr(S[t]+i)}, {vr(S[t]+i)}, {vr(M[t])}')
        for i in range(16):
            ex(t, i)
    a('s_nop 1')
    for t in range(2):
        pv(t, 0, 0); pv(t, 0, 1)
    a(f'''s_add_u32 {sr(sT)}, {sr(sT)}, 2560
s_add_u32 {sr(sG)}, {sr(sG)}, 1
s_cmp_lt_u32 {sr(sG)}, 64
s_cbranch_scc1 {name}_fb2''')
    a('s_nop 15')
    a(f's_mov_b32 {sr(sI)}, 1')
    a(f's_branch {name}_store')

    a.label(f'{name}_helper')
    st.n = n_common
    V = VAlloc(VBASE)
    vEp = V(); vL16 = V(); vFl = V()
    VH = V.n
    a('s_setprio 3')
    a(SRDS)
    if opts.get('cpf', 0):
        a(f'''s_getpc_b64 {sr(sM,2)}
{name}_pc:
s_sub_u32 {sr(sM)}, {sr(sM)}, {name}_pc - {name}
s_subb_u32 {sr(sM+1)}, {sr(sM+1)}, 0
s_lshr_b32 {sr(sT)}, s2, 3
v_lshlrev_b32 {vr(vT0)}, 5, {vr(vLane)}
v_add_u32 {vr(vT0)}, {sr(sT)}, {vr(vT0)}
v_lshlrev_b32 {vr(vT0)}, 7, {vr(vT0)}
v_min_u32 {vr(vT0)}, {name}_end - {name} - 4, {vr(vT0)}
s_mov_b64 exec, 0xfff
global_load_dword {vr(vFl)}, {vr(vT0)}, {sr(sM,2)}
s_mov_b64 exec, -1''')
    elate = opts.get('elate', 0)
    if not elate:
        a(f'v_mov_b32 {vr(vT0)}, {F_EPOCH}')
        a(f'buffer_load_dword {vr(vEp)}, {vr(vT0)}, {sr(SWS,4)}, 0 offen{SC}')
    stl = opts.get('stl', 0)
    if stl:
        ns = max(ns, 72)
        if stl & 1:
            a(f's_mul_i32 {sr(sT)}, {sr(sMt3)}, {128*2560}')
            a(f's_load_dword s64, {sr(SOUT,2)}, {sr(sT)}')
            a(f's_add_u32 {sr(sT)}, {sr(sT)}, {128*2560-4}')
            a(f's_load_dword s65, {sr(SOUT,2)}, {sr(sT)}')
        if stl & 2:
            a(f's_load_dword s66, {sr(SWO,2)}, 0')
        if stl & 4:
            a(f's_load_dword s67, {sr(SWS,2)}, {sr(sKV)}')
            a(f's_add_u32 {sr(sT)}, {sr(sKV)}, {4*KV_HEAD-4}')
            a(f's_load_dword s68, {sr(SWS,2)}, {sr(sT)}')
        if stl & 8:
            for k, m in ((69, sMt), (70, sMt3)):
                a(f's_lshl_b32 {sr(sT)}, {sr(sB)}, 4')
                a(f's_add_u32 {sr(sT)}, {sr(sT)}, {sr(m)}')
                a(f's_mul_i32 {sr(sT)}, {sr(sT)}, {2*32*2560}')
                a(f's_add_u32 {sr(sT)}, {sr(sT)}, {F_WS_O}')
                a(f's_load_dword s{k}, {sr(SWS,2)}, {sr(sT)}')
    tlb = opts.get('tlb', 0)
    if tlb & 1:
        a(f'''v_lshlrev_b32 {vr(vT1)}, 18, {vr(vLane)}
buffer_load_dword {vr(vFl)}, {vr(vT1)}, {sr(SWS,4)}, 0 offen''')
    if tlb & 2:
        a(f'''v_lshlrev_b32 {vr(vT1)}, 18, {vr(vLane)}
buffer_load_dword {vr(vT2)}, {vr(vT1)}, {sr(SOUT,4)}, 0 offen
buffer_load_dword {vr(vT3)}, {vr(vT1)}, {sr(SWO,4)}, 0 offen''')
    if tlb & 4:
        a(f'''v_lshlrev_b32 {vr(vT1)}, 21, {vr(vLane)}
buffer_load_dword {vr(vFl)}, {vr(vT1)}, {sr(SWS,4)}, 0 offen
buffer_load_dword {vr(vT4)}, {vr(vT1)}, {sr(SOUT,4)}, 0 offen
buffer_load_dword {vr(vT5)}, {vr(vT1)}, {sr(SWO,4)}, 0 offen''')
    a(f'v_lshlrev_b32 {vr(vL16)}, 4, {vr(vLane)}')
    vP = V(); vC8 = V(8); vPwa = V(); vFu = V(); vPo1 = V(); vPo2 = V(); vPo = V(); vLw = V()
    vW3 = [V() for _ in range(5)]
    vPf = [V() for _ in range(4)]
    vHX = [V() for _ in range(4)]
    vHW = [V() for _ in range(15)]
    vIx = V(); vIw = V(); vSx = V(); vSw = V(); vJ = [V() for _ in range(6)]
    done_alloc(V)
    if stag:
        a(f'''s_lshr_b32 {sr(sT)}, s2, 3
s_and_b32 {sr(sT2)}, s2, 1
s_lshl_b32 {sr(sT2)}, {sr(sT2)}, 5
s_add_u32 {sr(sT2)}, {sr(sT2)}, {sr(sT)}
s_lshl_b32 {sr(sT2)}, {sr(sT2)}, 5
v_and_b32 {vr(vT0)}, 31, {vr(vLane)}
v_add_u32 {vr(vT2)}, {sr(sT2)}, {vr(vT0)}
v_mul_u32_u24 {vr(vT2)}, 1280, {vr(vT2)}
v_lshrrev_b32 {vr(vT1)}, 5, {vr(vLane)}
v_lshl_add_u32 {vr(vIx)}, {vr(vT1)}, 7, {vr(vT2)}
buffer_load_dword {vr(vJ[0])}, {vr(vIx)}, {sr(SX,4)}, 0 offen
v_cmp_le_u32 vcc, 15, {vr(vT0)}
s_lshl_b32 {sr(sT)}, {sr(sT)}, 1
s_bfe_u32 {sr(sT2)}, s2, 0x10001
v_cndmask_b32_e64 {vr(vT2)}, 0, 1, vcc
v_mul_u32_u24 {vr(vT3)}, 15, {vr(vT2)}
v_sub_u32 {vr(vT3)}, {vr(vT0)}, {vr(vT3)}
v_lshl_add_u32 {vr(vT2)}, {vr(vT1)}, 6, {vr(vT2)}
v_add_u32 {vr(vT2)}, {sr(sT)}, {vr(vT2)}
v_mul_u32_u24 {vr(vT2)}, 3840, {vr(vT2)}
v_mul_u32_u24 {vr(vT4)}, 52, {vr(vT3)}
v_lshrrev_b32 {vr(vT4)}, 8, {vr(vT4)}
v_mul_u32_u24 {vr(vT4)}, {1280-640}, {vr(vT4)}
v_lshl_add_u32 {vr(vT4)}, {vr(vT3)}, 7, {vr(vT4)}
s_mul_i32 {sr(sT2)}, {sr(sT2)}, 640
v_add3_u32 {vr(vIw)}, {vr(vT2)}, {vr(vT4)}, {sr(sT2)}
v_cmp_le_u32 vcc, 30, {vr(vT0)}
v_mov_b32 {vr(vT2)}, {OOB}
s_mov_b32 {sr(sT)}, {128*3840}
v_cndmask_b32 {vr(vIw)}, {vr(vIw)}, {vr(vT2)}, vcc
buffer_load_dword {vr(vJ[1])}, {vr(vIw)}, {sr(SWQ,4)}, 0 offen''')
        if stag >= 2:
            a(f'buffer_load_dword {vr(vJ[2])}, {vr(vIx)}, {sr(SX,4)}, 0 offen offset:256')
            a(f'buffer_load_dword {vr(vJ[3])}, {vr(vIw)}, {sr(SWQ,4)}, {sr(sT)} offen')
        a(f'''s_bfe_u32 {sr(sT)}, s2, 0x30003
s_and_b32 {sr(sI)}, s2, 1
s_lshl_b32 {sr(sI)}, {sr(sI)}, 3
s_add_u32 {sr(sI)}, {sr(sI)}, {sr(sT)}
s_lshl_b32 {sr(sI)}, {sr(sI)}, 7
v_add_u32 {vr(vT0)}, {sr(sI)}, {vr(vLane)}
v_mul_u32_u24 {vr(vSx)}, 1280, {vr(vT0)}
v_mul_u32_u24 {vr(vT1)}, 4370, {vr(vLane)}
v_lshrrev_b32 {vr(vT1)}, 16, {vr(vT1)}
v_mul_u32_u24 {vr(vT2)}, 15, {vr(vT1)}
v_sub_u32 {vr(vT3)}, {vr(vLane)}, {vr(vT2)}
s_lshl_b32 {sr(sT)}, {sr(sT)}, 3
v_add_u32 {vr(vT1)}, {sr(sT)}, {vr(vT1)}
v_mul_u32_u24 {vr(vT1)}, 3840, {vr(vT1)}
v_mul_u32_u24 {vr(vT4)}, 52, {vr(vT3)}
v_lshrrev_b32 {vr(vT4)}, 8, {vr(vT4)}
v_mul_u32_u24 {vr(vT4)}, {1280-640}, {vr(vT4)}
v_lshl_add_u32 {vr(vT4)}, {vr(vT3)}, 7, {vr(vT4)}
v_add3_u32 {vr(vSw)}, {vr(vT1)}, {vr(vT4)}, {sr(sT2)}
v_cmp_le_u32 vcc, 60, {vr(vLane)}
v_mov_b32 {vr(vT2)}, {OOB}
s_lshr_b32 {sr(sM0a)}, s2, 6
v_cndmask_b32 {vr(vSw)}, {vr(vSw)}, {vr(vT2)}, vcc''')
    sgid = [0]
    def stag_pf():
        if not stag: return
        n = sgid[0]; sgid[0] += 1
        AH = opts.get('ahead', 2)
        a(f'''s_add_u32 {sr(sT)}, {sr(sKK)}, {1 + AH}
s_and_b32 {sr(sT2)}, {sr(sT)}, 3
s_cmp_eq_u32 {sr(sT2)}, {sr(sM0a)}
s_cselect_b32 {sr(sT2)}, {sr(sT)}, 99
s_cmp_lt_u32 {sr(sT2)}, {2*stag}
s_cselect_b32 {sr(sT2)}, 99, {sr(sT2)}
s_cmp_lt_u32 {sr(sT2)}, 10
s_cbranch_scc0 {name}_sp{n}
s_lshl_b32 {sr(sT2)}, {sr(sT)}, 7
buffer_load_dword {vr(vJ[0])}, {vr(vSx)}, {sr(SX,4)}, {sr(sT2)} offen
s_add_u32 {sr(sT2)}, {sr(sT2)}, {64*1280}
buffer_load_dword {vr(vJ[1])}, {vr(vSx)}, {sr(SX,4)}, {sr(sT2)} offen
s_mul_i32 {sr(sT2)}, {sr(sT)}, {64*3840}
buffer_load_dword {vr(vJ[2])}, {vr(vSw)}, {sr(SWQ,4)}, {sr(sT2)} offen
s_add_u32 {sr(sT2)}, {sr(sT2)}, {4*3840}
buffer_load_dword {vr(vJ[3])}, {vr(vSw)}, {sr(SWQ,4)}, {sr(sT2)} offen''')
        a.label(f'{name}_sp{n}')
    a(f'''s_lshl_b32 {sr(sT)}, {sr(sMt)}, 7
v_lshrrev_b32 {vr(vT0)}, 3, {vr(vLane)}
v_add_u32 {vr(vT0)}, {sr(sT)}, {vr(vT0)}
v_mul_u32_u24 {vr(vT0)}, 1280, {vr(vT0)}
v_lshrrev_b32 {vr(vT1)}, 4, {vr(vLane)}
v_and_b32 {vr(vT3)}, 7, {vr(vLane)}
v_xor_b32 {vr(vT2)}, {vr(vT1)}, {vr(vT3)}
v_lshl_add_u32 {vr(vHX[0])}, {vr(vT2)}, 4, {vr(vT0)}
v_xor_b32 {vr(vT2)}, 64, {vr(vHX[0])}
v_add_u32 {vr(vHX[1])}, {10240-1024}, {vr(vT2)}
v_add_u32 {vr(vHX[2])}, {2*(10240-1024)}, {vr(vHX[0])}
v_add_u32 {vr(vHX[3])}, {3*(10240-1024)}, {vr(vT2)}''')
    for pi in range(15):
        a(f's_sub_u32 {sr(sT)}, {sr(sT3)}, {(pi%4)*1024}')
        w_pattern(vHW[pi], f'v_add_u32 {vr(vT0)}, {64*pi}, {vr(vLane)}', sr(sT))
    def next_k():
        a(f'''s_add_u32 {sr(sKK)}, {sr(sKK)}, 1
s_cmp_eq_u32 {sr(sKK)}, 10
s_cselect_b32 {sr(sKK)}, 0, {sr(sKK)}
s_lshl_b32 {sr(sXo)}, {sr(sKK)}, 7
s_mul_i32 {sr(sWo)}, {sr(sKK)}, {64*3840}''')
    def issue_x():
        for jj in range(16):
            if jj % 4 == 0:
                a(f's_add_u32 m0, {sr(sSlot)}, {jj*1024}')
                a(f's_add_u32 {sr(sT)}, {sr(sXo)}, {jj*10240}')
            a(f'buffer_load_dwordx4 {vr(vHX[jj%4])}, {sr(SX,4)}, {sr(sT)} offen offset:{(jj%4)*1024} lds')
    def issue_w():
        for half in range(2):
            for pi in range(15):
                if pi % 4 == 0:
                    a(f's_add_u32 m0, {sr(sSlot)}, {XSZ + half*15360 + pi*1024}')
                    a(f's_add_u32 {sr(sT)}, {sr(sWo)}, {half*32*3840}')
                a(f'buffer_load_dwordx4 {vr(vHW[pi])}, {sr(SWQ,4)}, {sr(sT)} offen offset:{(pi%4)*1024} lds')
    def issue_stage():
        stag_pf(); next_k(); issue_x(); issue_w()
        a(f'''s_add_u32 {sr(sSlot)}, {sr(sSlot)}, {STG}
s_cmp_ge_u32 {sr(sSlot)}, {3*STG}
s_cselect_b32 {sr(sSlot)}, 0, {sr(sSlot)}''')
    pfw = opts.get('pfw', 1) and not stag and not opts.get('rot0')
    if pfw:
        a(f'''s_lshr_b32 {sr(sT)}, s2, 6
s_mul_i32 {sr(sT)}, {sr(sT)}, 3
s_add_u32 {sr(sT)}, {sr(sT)}, 8
s_bfe_u32 {sr(sT2)}, s2, 0x30003
s_lshr_b32 {sr(sI)}, {sr(sT2)}, 2
s_add_u32 {sr(sT)}, {sr(sT)}, {sr(sI)}
s_cmp_ge_u32 {sr(sT)}, 10
s_cselect_b32 {sr(sI)}, 10, 0
s_sub_u32 {sr(sT)}, {sr(sT)}, {sr(sI)}
s_lshl_b32 {sr(sT)}, {sr(sT)}, 6
s_and_b32 {sr(sT2)}, {sr(sT2)}, 3
s_lshl_b32 {sr(sT2)}, {sr(sT2)}, 4
s_add_u32 {sr(sT)}, {sr(sT)}, {sr(sT2)}
s_mul_i32 {sr(sT)}, {sr(sT)}, 3840
s_add_u32 {sr(sRdy)}, {sr(sT)}, {sr(sT3)}
v_lshrrev_b32 {vr(vT0)}, 3, {vr(vLane)}
v_mul_u32_u24 {vr(vT0)}, 3840, {vr(vT0)}
v_bfe_u32 {vr(vT1)}, {vr(vLane)}, 1, 2
v_mul_u32_u24 {vr(vT2)}, 1280, {vr(vT1)}
v_and_b32 {vr(vT3)}, 1, {vr(vLane)}
v_mul_u32_u24 {vr(vT3)}, 156, {vr(vT3)}
v_add3_u32 {vr(vT0)}, {vr(vT0)}, {vr(vT2)}, {vr(vT3)}
v_cmp_eq_u32 vcc, 3, {vr(vT1)}
v_mov_b32 {vr(vT2)}, {OOB}
s_nop 0
v_cndmask_b32 {vr(vPo)}, {vr(vT0)}, {vr(vT2)}, vcc''')
    a(f's_mov_b32 {sr(sSlot)}, {STG}')
    st1()
    a('s_barrier')
    st1()
    if elate:
        a(f'v_mov_b32 {vr(vT0)}, {F_EPOCH}')
        a(f'buffer_load_dword {vr(vEp)}, {vr(vT0)}, {sr(SWS,4)}, 0 offen{SC}')
    if pfw:
        a(f'buffer_load_dword {vr(vPf[0])}, {vr(vPo)}, {sr(SWQ,4)}, {sr(sRdy)} offen')
        a(f's_add_u32 {sr(sRdy)}, {sr(sRdy)}, {8*3840}')
        a(f'buffer_load_dword {vr(vPf[1])}, {vr(vPo)}, {sr(SWQ,4)}, {sr(sRdy)} offen')
    if opts.get('xfirst', 0):
        next_k(); issue_x()
        a(f's_mov_b32 {sr(sSrc)}, {sr(sWo)}')
        a(f's_mov_b32 {sr(sSlot)}, {2*STG}')
        next_k(); issue_x()
        st1()
        if opts.get('xfirst') == 1: a('s_barrier')
        a(f's_mov_b32 {sr(sSlot)}, {STG}')
        a(f's_mov_b32 {sr(sI)}, {sr(sWo)}')
        a(f's_mov_b32 {sr(sWo)}, {sr(sSrc)}')
        issue_w()
        if opts.get('xfirst') == 2: a('s_barrier')
        a(f's_mov_b32 {sr(sSlot)}, {2*STG}')
        a(f's_mov_b32 {sr(sWo)}, {sr(sI)}')
        issue_w()
        a(f's_mov_b32 {sr(sSlot)}, 0')
        a('s_waitcnt vmcnt(30)')
        a('s_barrier')
        st1()
        a(f's_mov_b32 {sr(sI)}, 1')
    else:
        issue_stage()
        st1()
        a('s_barrier')
        st1()
        a(f's_mov_b32 {sr(sI)}, 0')
    a.label(f'{name}_hg')
    issue_stage()
    a('s_waitcnt vmcnt(46)')
    a('s_barrier')
    a(f's_add_u32 {sr(sI)}, {sr(sI)}, 1')
    a(f's_cmp_lt_u32 {sr(sI)}, 8')
    a(f's_cbranch_scc1 {name}_hg')
    st1()
    a(f'''s_lshl_b32 {sr(sT)}, {sr(sB)}, 3
s_add_u32 {sr(sT)}, {sr(sT)}, {sr(sHg)}
s_lshl_b32 {sr(sT)}, {sr(sT)}, 8
s_add_u32 {sr(sT)}, {sr(sT)}, {F_FLAG1}
v_lshl_add_u32 {vr(vT0)}, {vr(vLane)}, 2, {sr(sT)}
v_cmp_gt_u32 vcc, 16, {vr(vLane)}
v_mov_b32 {vr(vT1)}, {OOB}
s_lshl_b32 {sr(sT)}, {sr(sB)}, 4
v_cndmask_b32 {vr(vPo1)}, {vr(vT1)}, {vr(vT0)}, vcc
s_add_u32 {sr(sT)}, {sr(sT)}, {sr(sMt3)}
s_lshl_b32 {sr(sT)}, {sr(sT)}, 8
s_add_u32 {sr(sT)}, {sr(sT)}, {F_FLAG2}
v_lshl_add_u32 {vr(vT0)}, {vr(vLane)}, 2, {sr(sT)}
v_cmp_gt_u32 vcc, 8, {vr(vLane)}
v_mov_b32 {vr(vLw)}, {LW_RDY}
s_mul_i32 {sr(sT3)}, {sr(sCg)}, 160
v_cndmask_b32 {vr(vPo2)}, {vr(vT1)}, {vr(vT0)}, vcc''')
    for r in range(5):
        a(f'''v_add_u32 {vr(vT0)}, {64*r}, {vr(vLane)}
v_mul_u32_u24 {vr(vT1)}, 6554, {vr(vT0)}
v_lshrrev_b32 {vr(vT1)}, 16, {vr(vT1)}
v_mul_u32_u24 {vr(vT1)}, {1280-160}, {vr(vT1)}
v_lshl_add_u32 {vr(vT0)}, {vr(vT0)}, 4, {vr(vT1)}
v_add_u32 {vr(vT0)}, {sr(sT3)}, {vr(vT0)}
v_subrev_u32 {vr(vW3[r])}, {(r%4)*1024}, {vr(vT0)}''')
    a(f'''s_lshr_b32 {sr(sT)}, s2, 3
s_mul_i32 {sr(sT)}, {sr(sT)}, {20*1280}
v_lshl_add_u32 {vr(vT0)}, {vr(vLane)}, 7, {sr(sT)}
v_cmp_gt_u32 vcc, 50, {vr(vLane)}
v_mov_b32 {vr(vT1)}, {OOB}
s_mov_b32 {sr(sRdy)}, 0
v_cndmask_b32 {vr(vPo)}, {vr(vT1)}, {vr(vT0)}, vcc
v_readfirstlane_b32 {sr(sTag)}, {vr(vEp)}
s_lshl_b32 {sr(sDone)}, 1, {sr(sMt)}
s_waitcnt vmcnt({15 if hsplit else 0})
s_add_u32 {sr(sTag)}, {sr(sTag)}, {TAGK}
s_barrier
s_waitcnt vmcnt(0)
{'s_barrier' if hsplit else 's_nop 0'}
v_bfe_u32 {vr(vT2)}, {vr(vLane)}, 1, 2
v_mul_u32_u24 {vr(vT2)}, 2560, {vr(vT2)}
v_and_b32 {vr(vT3)}, 1, {vr(vLane)}
v_mul_u32_u24 {vr(vT3)}, 640, {vr(vT3)}
v_add_u32 {vr(vT2)}, {vr(vT2)}, {vr(vT3)}
v_add_u32 {vr(vT2)}, {ONES}, {vr(vT2)}
v_mov_b32 {vr(vC8)}, 0x3f803f80
v_mov_b32 {vr(vC8+1)}, 0x3f803f80
v_mov_b32 {vr(vC8+2)}, 0x3f803f80
v_mov_b32 {vr(vC8+3)}, 0x3f803f80
v_mov_b32 {vr(vC8+4)}, 0
v_mov_b32 {vr(vC8+5)}, 0
v_mov_b32 {vr(vC8+6)}, 0
v_mov_b32 {vr(vC8+7)}, 0
s_barrier
ds_write_b128 {vr(vT2)}, {vr(vC8,4)}
ds_write_b128 {vr(vT2)}, {vr(vC8+4,4)} offset:16
ds_write_b128 {vr(vLw)}, {vr(vC8+4,4)}
s_waitcnt lgkmcnt(0)''')
    st0()
    a('s_barrier')
    a('s_barrier')
    gid = [0]
    def issue_group():
        n = gid[0]; gid[0] += 1
        a(f'''s_andn2_b32 {sr(sT)}, {sr(sRdy)}, {sr(sDone)}
s_cbranch_scc1 {name}_pd{n}
s_mov_b32 {sr(sCnt)}, {POLL_LIMIT}''')
        a.label(f'{name}_pl{n}')
        a(f'''buffer_load_dword {vr(vP)}, {vr(vPo1)}, {sr(SWS,4)}, 0 offen{SC}
s_waitcnt vmcnt(0)
v_cmp_eq_u32 vcc, {sr(sTag)}, {vr(vP)}
s_and_b32 {sr(sRdy)}, vcc_lo, 0xffff
s_andn2_b32 {sr(sT)}, {sr(sRdy)}, {sr(sDone)}
s_cbranch_scc1 {name}_pd{n}
{'s_sleep 1' if opts.get('sl1', 1) else 's_nop 0'}
s_sub_u32 {sr(sCnt)}, {sr(sCnt)}, 1
s_cmp_lg_u32 {sr(sCnt)}, 0
s_cbranch_scc1 {name}_pl{n}
s_mov_b32 {sr(sRdy)}, 0xffff
s_andn2_b32 {sr(sT)}, {sr(sRdy)}, {sr(sDone)}''')
        a.label(f'{name}_pd{n}')
        a(f'''s_lshl_b32 {sr(sT2)}, {sr(sT)}, 16
s_or_b32 {sr(sT)}, {sr(sT)}, {sr(sT2)}
s_lshr_b32 {sr(sT)}, {sr(sT)}, {sr(sMt)}
s_ff1_i32_b32 {sr(sT)}, {sr(sT)}
s_add_u32 {sr(sNeed)}, {sr(sT)}, {sr(sMt)}
s_and_b32 {sr(sNeed)}, {sr(sNeed)}, 15
s_bitset1_b32 {sr(sDone)}, {sr(sNeed)}
s_mul_i32 {sr(sT)}, {sr(sNeed)}, 10240
s_add_u32 {sr(sSrc)}, {sr(sKV)}, {sr(sT)}''')
        for hs in range(4):
            for q in range(10):
                if q % 4 == 0:
                    a(f's_add_u32 m0, {sr(sSlot)}, {hs*10240 + q*1024}')
                    a(f's_add_u32 {sr(sT)}, {sr(sSrc)}, {hs*KV_HEAD + q*1024}')
                a(f'buffer_load_dwordx4 {vr(vL16)}, {sr(SWS,4)}, {sr(sT)} offen offset:{(q%4)*1024}{SLD} lds')
        a(f'''s_add_u32 {sr(sSlot)}, {sr(sSlot)}, {SLOT}
s_cmp_ge_u32 {sr(sSlot)}, {3*SLOT}
s_cselect_b32 {sr(sSlot)}, 0, {sr(sSlot)}
s_add_u32 {sr(sI)}, {sr(sI)}, 1''')
    a(f's_mov_b32 {sr(sI)}, 1')
    a(f's_mov_b32 {sr(sSlot)}, {SLOT}')
    if 'hprio' in opts: a(f's_setprio {opts["hprio"]}')
    wq = [0]
    def wait_prog(val):
        n = wq[0]; wq[0] += 1
        a.label(f'{name}_wp{n}')
        a(f'''ds_read_b32 {vr(vP)}, {vr(vPwa)} offset:4
s_waitcnt lgkmcnt(0)
v_cmp_le_u32 vcc, {val}, {vr(vP)}
s_and_b32 {sr(sT)}, vcc_lo, 0x1ff
s_cmp_eq_u32 {sr(sT)}, 0x1ff
s_cbranch_scc1 {name}_wpd{n}
s_sleep 2
s_branch {name}_wp{n}''')
        a.label(f'{name}_wpd{n}')
    def set_full(val):
        a(f'v_mov_b32 {vr(vFu)}, {val}')
        a(f'ds_write_b32 {vr(vPwa)}, {vr(vFu)}')
    if nobar:
        a(f'v_min_u32 {vr(vPwa)}, 8, {vr(vLane)}')
        a(f'v_lshlrev_b32 {vr(vPwa)}, 3, {vr(vPwa)}')
        a(f'v_add_u32 {vr(vPwa)}, {LW_PW}, {vr(vPwa)}')
    issue_group()
    st0()
    if opts.get('b1', 1) and not nobar:
        a('s_waitcnt vmcnt(0)')
        a('s_barrier')
        issue_group()
    a.label(f'{name}_hl')
    if nobar:
        a('s_waitcnt vmcnt(0)')
        set_full(sr(sI))
        a(f's_max_u32 {sr(sSrc)}, {sr(sI)}, 2')
        a(f's_sub_u32 {sr(sSrc)}, {sr(sSrc)}, 2')
        wait_prog(sr(sSrc))
        issue_group()
    else:
        issue_group()
        a('s_waitcnt vmcnt(40)')
        a('s_barrier')
        if sset == 5 and st.on:
            for K in (5, 15):
                a(f's_cmp_eq_u32 {sr(sI)}, {K}')
                a(f's_cbranch_scc0 {name}_h5{K}')
                st()
                a.label(f'{name}_h5{K}')
    wid = [0]
    def wo_rows(r0, r1, lds):
        n = wid[0]; wid[0] += 1
        a(f's_mov_b32 {sr(sSrc)}, {r0*1280}')
        a(f's_mov_b32 {sr(sT2)}, {lds}')
        a.label(f'{name}_hw{n}x')
        a(f's_mov_b32 m0, {sr(sT2)}')
        a(f's_add_u32 {sr(sT)}, {sr(sT2)}, 4096')
        for r in range(4):
            a(f'buffer_load_dwordx4 {vr(vW3[r])}, {sr(SWO,4)}, {sr(sSrc)} offen offset:{r*1024} lds')
        a(f's_mov_b32 m0, {sr(sT)}')
        a(f's_add_u32 {sr(sT2)}, {sr(sT2)}, 5120')
        a(f'buffer_load_dwordx4 {vr(vW3[4])}, {sr(SWO,4)}, {sr(sSrc)} offen lds')
        a(f's_add_u32 {sr(sSrc)}, {sr(sSrc)}, {32*1280}')
        a(f's_cmp_lt_u32 {sr(sSrc)}, {r1*1280}')
        a(f's_cbranch_scc1 {name}_hw{n}x')
    a(f's_cmp_eq_u32 {sr(sI)}, 6')
    a(f's_cbranch_scc0 {name}_hnp')
    for q in range(4):
        a(f's_mov_b32 {sr(sT)}, {q*6400}')
        a(f'buffer_load_dword {vr(vPf[q])}, {vr(vPo)}, {sr(SWO,4)}, {sr(sT)} offen')
    a.label(f'{name}_hnp')
    a(f's_cmp_eq_u32 {sr(sI)}, 10')
    a(f's_cbranch_scc0 {name}_hnq')
    wo_rows(480, 640, QST)
    a.label(f'{name}_hnq')
    a(f's_cmp_lt_u32 {sr(sI)}, 16')
    a(f's_cbranch_scc1 {name}_hl')
    if nobar:
        a('s_waitcnt vmcnt(0)')
        set_full(64)
        wait_prog(14)
        wo_rows(0, 256, WO_LO)
        wait_prog(15)
    else:
        wo_rows(0, 256, WO_LO)
        a('s_waitcnt vmcnt(40)')
        a('s_barrier')
    wo_rows(256, 480, WO_LO + 40960)
    a(f'''s_lshl_b32 {sr(sT)}, {sr(sB)}, 4
s_add_u32 {sr(sT)}, {sr(sT)}, {sr(sMt3)}
s_lshl_b32 {sr(sT)}, {sr(sT)}, 1
s_lshr_b32 {sr(sT2)}, {sr(sCg)}, 2
s_add_u32 {sr(sT)}, {sr(sT)}, {sr(sT2)}
s_mul_i32 {sr(sT)}, {sr(sT)}, {32*2560}
s_and_b32 {sr(sT2)}, {sr(sCg)}, 3
s_mul_i32 {sr(sT2)}, {sr(sT2)}, 5120
s_add_u32 {sr(sT)}, {sr(sT)}, {sr(sT2)}
s_add_u32 {sr(sT)}, {sr(sT)}, {F_WS_O}
v_lshl_add_u32 {vr(vT0)}, {vr(vLane)}, 7, {sr(sT)}
v_cmp_gt_u32 vcc, 40, {vr(vLane)}
v_mov_b32 {vr(vT1)}, {OOB}
s_mov_b32 {sr(sDone)}, 0
s_mov_b32 {sr(sCnt)}, {POLL_LIMIT}
v_cndmask_b32 {vr(vPo)}, {vr(vT1)}, {vr(vT0)}, vcc''')
    pid = [0]
    pfo = opts.get('pfo', 2)
    def poll2():
        a(f'''buffer_load_dword {vr(vP)}, {vr(vPo2)}, {sr(SWS,4)}, 0 offen{SC}
s_sub_u32 {sr(sCnt)}, {sr(sCnt)}, 1
s_waitcnt vmcnt(0)
v_cmp_eq_u32 vcc, {sr(sTag)}, {vr(vP)}
s_cmp_eq_u32 {sr(sCnt)}, 0
s_cselect_b32 {sr(sT)}, 0xff, vcc_lo
s_lshr_b32 {sr(sT2)}, {sr(sT)}, 1
s_and_b32 {sr(sT)}, {sr(sT)}, {sr(sT2)}
s_and_b32 {sr(sRdy)}, {sr(sT)}, 0x55''')
        if pfo:
            a(f's_andn2_b32 {sr(sSrc)}, {sr(sRdy)}, {sr(sDone)}')
            a(f's_or_b32 {sr(sDone)}, {sr(sDone)}, {sr(sRdy)}')
            for j in range(4):
                n = pid[0]; pid[0] += 1
                a(f's_bitcmp1_b32 {sr(sSrc)}, {2*j}')
                a(f's_cbranch_scc0 {name}_po{n}')
                a(f's_mov_b32 {sr(sT)}, {j*20480}')
                a(f'buffer_load_dword {vr(vPf[j])}, {vr(vPo)}, {sr(SWS,4)}, {sr(sT)} offen{SC}')
                a.label(f'{name}_po{n}')
            if pfo == 2:
                a('s_waitcnt vmcnt(0)')
        a(f'v_mov_b32 {vr(vP)}, {sr(sRdy)}')
        a(f'ds_write_b32 {vr(vLw)}, {vr(vP)}')
    poll2()
    if nobar:
        wait_prog(16)
    else:
        a('s_barrier')
    st0()
    st0()
    a.label(f'{name}_p3l')
    if opts.get('psl'): a(f's_sleep {opts.get("psl")}')
    poll2()
    a(f's_cmp_eq_u32 {sr(sRdy)}, 0x55')
    a(f's_cbranch_scc0 {name}_p3l')
    a.label(f'{name}_p3e')
    if st.on:
        while st.n < n_total - 1: st()
        st.rt(); st.flush(sW)
    a('s_endpgm')
    a.label(f'{name}_end')
    nv = maxv[0]
    assert nv <= 168, nv
    return a.text(), descriptor(name, nv, ns), f'; @launch kernel={name} grid=(256,1,1) block=(576,1,1) lds={LDS_TOTAL}', n_total
```

```python
from common import *
import math, struct

def f32bits(x):
    return struct.unpack('<I', struct.pack('<f', x))[0]
QSCALE = f32bits(math.log2(math.e) / math.sqrt(20.0))

XSZ = 16384
STG = XSZ + 30720
SLOT = 40960
LW_RDY = 3 * SLOT
LW_CNT = 3 * SLOT + 8
LW_CNT1 = 3 * SLOT + 12
LW_G1 = 3 * SLOT + 16
LW_PW = 131392
ONES = 3 * SLOT + 128
QST = 131584
LDS_TOTAL = QST + 25600
WO_LO = SLOT
F_WS_KV = 0
F_WS_O = 64 * KV_HEAD
F_FLAG1 = F_WS_O + 2 * 32 * 32 * 2560
F_FLAG2 = F_FLAG1 + 16 * 256
F_EPOCH = F_FLAG2 + 32 * 256
F_WS_END = F_EPOCH + 256
TAGK = 0x9E3779B9
POLL_LIMIT = 1 << 18
OOB = 0x40000000

def gen_fused(name='fused_kernel', opts=None):
    opts = opts or {}
    a = Asm()
    SC = ' sc1'
    FL = {0: ' sc1', 1: ' sc0 sc1', 2: '', 3: ' sc1 nt', 4: ' nt'}
    SST = FL[opts.get('sst', 0)]
    SLD = FL[opts.get('sld', 0)]
    stag = opts.get('stag', 0)
    pub4 = opts.get('pub4', 1)
    one_e = opts.get('onee', 0) and pub4
    g1s = opts.get('g1s', 0)
    early = opts.get('early', 0)
    phys = (lambda k: (-k) % 3) if early else (lambda k: k % 3)
    hsplit = opts.get('hsplit', 1)
    nobar = opts.get('nobar', 0)
    loc = opts.get('loc', 1)
    sKK, sMt3, sCg = 3, 4, 5
    SX, SWQ, SWS, SDBG, SWO, SOUT = 8, 12, 16, 20, 24, 28
    sW, sB, sMt, sHg, sT, sT2, sT3 = 32, 33, 34, 35, 36, 37, 38
    sM0a, sM0b = 39, 40
    sDone = 41
    sHi = 42
    sG, sOff, sOo, sKV = 44, 45, 46, 47
    sM, sM2 = 48, 50
    sRdy, sCnt, sNeed, sI, sSlot, sSrc = 52, 53, 54, 55, 56, 57
    sXo, sWo = 53, 54
    sScale = 58
    sA, sTag = 60, 61
    sPub, sPub2 = 56, 57
    ns = 64
    vLane, vT0, vT1, vT2, vT3, vT4, vT5 = 1, 2, 3, 4, 5, 6, 7
    VBASE = 8
    st = Stamper(a, opts.get('stamp'), 0, 62, 6, vT0)
    if st.on: ns = st.nsgpr()
    sset = opts.get('sset', 0)
    def st0():
        if sset == 0: st()
    def st1():
        if sset == 1: st()
    def st6():
        if sset == 6: st.rt()
    def st4():
        if sset == 4: st()
    maxv = [0]
    def done_alloc(V):
        maxv[0] = max(maxv[0], V.n)

    a(f'.globl {name}\n.p2align 8\n.type {name},@function')
    a.label(name)
    if st.on:
        a('s_memrealtime s[62:63]\ns_memtime s[64:65]')
        st.n = 2
    dbgt = opts.get('dbgt')
    SWAP = 's_nop 0'
    if opts.get('swap', 0):
        SWAP = f's_lshr_b32 {sr(sT)}, s2, 1\ns_xor_b32 {sr(sT)}, {sr(sT)}, s2\ns_and_b32 {sr(sT)}, {sr(sT)}, 1\ns_mul_i32 {sr(sT)}, {sr(sT)}, 3\ns_xor_b32 s2, s2, {sr(sT)}'
    if dbgt:
        ns = 80
        a('s_memrealtime s[62:63]')
    def rts(k):
        if dbgt: a(f's_memrealtime s[{62+2*k}:{63+2*k}]\ns_waitcnt lgkmcnt(0)')
    a(f'''s_cmp_ge_u32 s2, 256
s_cbranch_scc1 {name}_done
{SWAP}
s_bfe_u32 {sr(sB)}, s2, 0x10002
s_load_dwordx4 {sr(SOUT,4)}, s[0:1], 48
s_load_dwordx2 s[6:7], s[0:1], 64
s_mul_i32 {sr(sT2)}, {sr(sB)}, {0 if opts.get('hack64') else 24}
s_add_u32 s0, s0, {sr(sT2)}
s_addc_u32 s1, s1, 0
s_load_dwordx4 {sr(SX,4)}, s[0:1], 0
s_load_dwordx2 {sr(SWO,2)}, s[0:1], 16
v_lshrrev_b32 {vr(vT0)}, 6, v0
v_and_b32 {vr(vLane)}, 63, v0
s_lshr_b32 {sr(sT)}, s2, 3
v_readfirstlane_b32 {sr(sW)}, {vr(vT0)}
s_and_b32 {sr(sMt)}, {sr(sT)}, 7
s_lshr_b32 {sr(sHg)}, {sr(sT)}, 3
s_mul_i32 {sr(sKK)}, {sr(sHg)}, 3
s_add_u32 {sr(sKK)}, {sr(sKK)}, {sr(sMt)}
s_cmp_ge_u32 {sr(sKK)}, 10
s_cselect_b32 {sr(sT)}, 10, 0
s_sub_u32 {sr(sKK)}, {sr(sKK)}, {sr(sT)}
{f's_mov_b32 {sr(sKK)}, 0' if (stag or opts.get('rot0')) else 's_nop 0'}
s_and_b32 {sr(sT)}, s2, 1
s_lshl_b32 {sr(sT)}, {sr(sT)}, 3
s_add_u32 {sr(sMt)}, {sr(sMt)}, {sr(sT)}
s_and_b32 {sr(sT)}, s2, 2
s_lshl_b32 {sr(sT)}, {sr(sT)}, 1
s_add_u32 {sr(sHg)}, {sr(sHg)}, {sr(sT)}
s_mov_b32 {sr(sHi)}, 0
s_mov_b32 {sr(sHi+1)}, -1
s_bfe_u32 {sr(sCg)}, s2, 0x30003
s_and_b32 {sr(sMt3)}, s2, 1
s_lshl_b32 {sr(sMt3)}, {sr(sMt3)}, 2
s_and_b32 {sr(sT)}, s2, 2
s_add_u32 {sr(sMt3)}, {sr(sMt3)}, {sr(sT)}
s_lshl_b32 {sr(sMt3)}, {sr(sMt3)}, 1
s_lshr_b32 {sr(sT)}, s2, 6
s_add_u32 {sr(sMt3)}, {sr(sMt3)}, {sr(sT)}
s_lshl_b32 {sr(sT)}, {sr(sB)}, 3
s_add_u32 {sr(sT)}, {sr(sT)}, {sr(sHg)}
s_mul_i32 {sr(sKV)}, {sr(sT)}, {4*KV_HEAD}
s_mul_i32 {sr(sT3)}, {sr(sHg)}, 160''')
    SRDS = f'''s_waitcnt lgkmcnt(0)
s_mov_b32 {sr(SWQ)}, {sr(SX+2)}
s_mov_b32 {sr(SWQ+1)}, {sr(SX+3)}
s_mov_b32 {sr(SDBG)}, {sr(SOUT+2)}
s_mov_b32 {sr(SDBG+1)}, {sr(SOUT+3)}
s_mov_b32 {sr(SWS)}, s6
s_mov_b32 {sr(SWS+1)}, s7
s_mov_b32 {sr(SX+2)}, {2048*1280}
s_mov_b32 {sr(SX+3)}, 0x20000
s_mov_b32 {sr(SWQ+2)}, {640*3840}
s_mov_b32 {sr(SWQ+3)}, 0x20000
s_mov_b32 {sr(SWS+2)}, {F_WS_END}
s_mov_b32 {sr(SWS+3)}, 0x20000
s_mov_b32 {sr(SDBG+2)}, 256
s_mov_b32 {sr(SDBG+3)}, 0x20000
s_mov_b32 {sr(SWO+2)}, {640*1280}
s_mov_b32 {sr(SWO+3)}, 0x20000
s_mov_b32 {sr(SOUT+2)}, {2048*2560}
s_mov_b32 {sr(SOUT+3)}, 0x20000'''
    st1()
    n_common = st.n
    a(f'''s_cmp_ge_u32 {sr(sW)}, 8
s_cbranch_scc1 {name}_helper''')

    def w_pattern(dst, first, last):
        a(f'''{first}
v_mul_u32_u24 {vr(vT1)}, 2185, {vr(vT0)}
v_lshrrev_b32 {vr(vT1)}, 16, {vr(vT1)}
v_mul_u32_u24 {vr(vT2)}, 30, {vr(vT1)}
v_sub_u32 {vr(vT0)}, {vr(vT0)}, {vr(vT2)}
v_and_b32 {vr(vT2)}, 0x13, {vr(vT1)}
v_bfe_u32 {vr(vT3)}, {vr(vT1)}, 2, 1
v_lshl_or_b32 {vr(vT2)}, {vr(vT3)}, 3, {vr(vT2)}
v_bfe_u32 {vr(vT3)}, {vr(vT1)}, 3, 1
v_lshl_or_b32 {vr(vT2)}, {vr(vT3)}, 2, {vr(vT2)}
v_mul_u32_u24 {vr(vT2)}, 3840, {vr(vT2)}
v_mul_u32_u24 {vr(vT1)}, 26, {vr(vT0)}
v_lshrrev_b32 {vr(vT1)}, 8, {vr(vT1)}
v_mul_u32_u24 {vr(vT1)}, {1280-160}, {vr(vT1)}
v_lshl_add_u32 {vr(vT0)}, {vr(vT0)}, 4, {vr(vT1)}
v_add3_u32 {vr(dst)}, {vr(vT0)}, {vr(vT2)}, {last}''')

    VP = VAlloc(VBASE)
    vIdx = VP()
    vaK1 = VP(); vaK2 = VP(); vaV = VP()
    vbK1 = VP(); vbK2 = VP(); vbV = VP(); vmK2 = VP(); vmV = VP()
    vQo = VP(); vQo2 = VP(); vQs1 = VP(); vQs2 = VP(); vPub = VP()
    VB2 = VP.n
    V = VAlloc(VB2)
    vEp7 = V(); vCi7 = V(); vZ7 = V()
    vXr = [[V(), V()] for _ in range(3)]
    vWa = [V() for _ in range(3)]
    vWb = [V() for _ in range(3)]
    vE = [V() for _ in range(6)]
    Xf = [[V(4), V(4)], [V(4), V(4)]]
    Wf = [[V(4) for _ in range(4)] for _ in range(2)]
    acc = [[V(4), V(4)] for _ in range(8)]
    done_alloc(V)
    vDX = Wf[0][0]; vDW = [Wf[0][0] + 1, Wf[0][0] + 2]
    XROW = f's_lshl_b32 {sr(sT)}, {sr(sMt)}, 7'
    if opts.get('hack64'):
        XROW = f's_lshl_b32 {sr(sT)}, {sr(sB)}, 4\ns_add_u32 {sr(sT)}, {sr(sT)}, {sr(sMt)}\ns_lshl_b32 {sr(sT)}, {sr(sT)}, 6'
    a(f'''{XROW}
s_lshl_b32 {sr(sT2)}, {sr(sW)}, 3
s_add_u32 {sr(sT)}, {sr(sT)}, {sr(sT2)}
v_lshrrev_b32 {vr(vT0)}, 3, {vr(vLane)}
v_add_u32 {vr(vT0)}, {sr(sT)}, {vr(vT0)}
v_mul_u32_u24 {vr(vT0)}, 1280, {vr(vT0)}
s_and_b32 {sr(sT)}, {sr(sW)}, 1
s_lshl_b32 {sr(sT)}, {sr(sT)}, 2
v_lshrrev_b32 {vr(vT1)}, 4, {vr(vLane)}
v_add_u32 {vr(vT2)}, {sr(sT)}, {vr(vT1)}
v_and_b32 {vr(vT3)}, 7, {vr(vLane)}
v_xor_b32 {vr(vT2)}, {vr(vT2)}, {vr(vT3)}
v_lshl_add_u32 {vr(vDX)}, {vr(vT2)}, 4, {vr(vT0)}
s_lshl_b32 {sr(sM0a)}, {sr(sW)}, 10
s_lshl_b32 {sr(sXo)}, {sr(sKK)}, 7
s_mul_i32 {sr(sWo)}, {sr(sKK)}, {64*3840}
s_add_u32 {sr(sT2)}, {sr(sW)}, 8
s_cmp_eq_u32 {sr(sW)}, 7
s_cselect_b32 {sr(sT2)}, 7, {sr(sT2)}
s_lshl_b32 {sr(sM0b)}, {sr(sT2)}, 10''')
    for pi, sm in ((0, sM0a), (1, sM0b)):
        a(f's_lshr_b32 {sr(sT)}, {sr(sm)}, 4')
        w_pattern(vDW[pi], f'v_add_u32 {vr(vT0)}, {sr(sT)}, {vr(vLane)}', sr(sT3))
    a(SRDS)
    a(f'''s_mov_b32 m0, {sr(sM0a)}
s_add_u32 {sr(sT)}, {sr(sXo)}, 81920
buffer_load_dwordx4 {vr(vDX)}, {sr(SX,4)}, {sr(sXo)} offen lds
s_add_u32 m0, {sr(sM0a)}, 8192
s_nop 0
{'s_nop 0' if opts.get('hack64') else f'buffer_load_dwordx4 {vr(vDX)}, {sr(SX,4)}, {sr(sT)} offen lds'}''')
    for pi, sm in ((0, sM0a), (1, sM0b)):
        for half in range(2):
            a(f's_add_u32 m0, {sr(sm)}, {XSZ + half*15360}')
            a(f's_add_u32 {sr(sT)}, {sr(sWo)}, {half*32*3840}')
            a(f'buffer_load_dwordx4 {vr(vDW[pi])}, {sr(SWQ,4)}, {sr(sT)} offen lds')
    st1()
    a('s_barrier')
    st1()
    a(f'''s_cmp_eq_u32 {sr(sW)}, 7
s_cselect_b32 {sr(sM)}, 1, 0
s_mov_b32 {sr(sM+1)}, 0
v_mov_b32 {vr(vT1)}, {OOB}
v_cndmask_b32_e64 {vr(vZ7)}, {vr(vT1)}, 0, {sr(sM,2)}
v_mov_b32 {vr(vT0)}, {F_EPOCH}
buffer_load_dword {vr(vEp7)}, {vr(vT0)}, {sr(SWS,4)}, 0 offen{SC}''')
    a(f'''s_and_b32 {sr(sT)}, {sr(sW)}, 3
s_lshl_b32 {sr(sT)}, {sr(sT)}, 5
v_and_b32 {vr(vT0)}, 15, {vr(vLane)}
v_lshrrev_b32 {vr(vT1)}, 4, {vr(vLane)}
v_lshrrev_b32 {vr(vT2)}, 1, {vr(vT0)}
v_xor_b32 {vr(vT2)}, {vr(vT2)}, {vr(vT1)}
v_add_u32 {vr(vT0)}, {sr(sT)}, {vr(vT0)}
v_lshlrev_b32 {vr(vT0)}, 7, {vr(vT0)}
v_lshl_add_u32 {vr(vXr[0][0])}, {vr(vT2)}, 4, {vr(vT0)}
v_xor_b32 {vr(vXr[0][1])}, 64, {vr(vXr[0][0])}
v_lshrrev_b32 {vr(vT0)}, 5, {vr(vLane)}
v_lshlrev_b32 {vr(vT0)}, 4, {vr(vT0)}
v_bfe_u32 {vr(vT2)}, {vr(vLane)}, 4, 1
v_lshl_add_u32 {vr(vT0)}, {vr(vT2)}, 2, {vr(vT0)}
v_bfe_u32 {vr(vT2)}, {vr(vLane)}, 2, 2
v_add_u32 {vr(vT0)}, {vr(vT0)}, {vr(vT2)}
v_mul_u32_u24 {vr(vT0)}, 480, {vr(vT0)}
v_add_u32 {vr(vT5)}, {XSZ}, {vr(vT0)}
v_bfe_u32 {vr(vT2)}, {vr(vLane)}, 1, 1
v_mul_u32_u24 {vr(vT2)}, 40, {vr(vT2)}
v_and_b32 {vr(vT3)}, 1, {vr(vLane)}
v_lshl_add_u32 {vr(vT2)}, {vr(vT3)}, 4, {vr(vT2)}
v_add_u32 {vr(vWa[0])}, {vr(vT5)}, {vr(vT2)}
s_cmp_ge_u32 {sr(sW)}, 4
s_cselect_b32 {sr(sT)}, 8, 40
v_and_b32 {vr(vT2)}, 3, {vr(vLane)}
v_mad_u32_u24 {vr(vWb[0])}, {vr(vT2)}, {sr(sT)}, {vr(vT5)}''')
    for s_ in (1, 2):
        a(f'v_add_u32 {vr(vXr[s_][0])}, {s_*STG}, {vr(vXr[0][0])}')
        a(f'v_add_u32 {vr(vXr[s_][1])}, {s_*STG}, {vr(vXr[0][1])}')
        a(f'v_add_u32 {vr(vWa[s_])}, {s_*STG}, {vr(vWa[0])}')
        a(f'v_add_u32 {vr(vWb[s_])}, {s_*STG}, {vr(vWb[0])}')
    a(f'''s_lshr_b32 {sr(sT)}, {sr(sW)}, 1
s_mul_i32 {sr(sT2)}, {sr(sT)}, 10240
v_lshlrev_b32 {vr(vQo)}, 4, {vr(vLane)}
v_lshlrev_b32 {vr(vT0)}, 3, {vr(vLane)}
v_add_u32 {vr(vT0)}, 1024, {vr(vT0)}
v_mov_b32 {vr(vT1)}, {OOB}
v_cndmask_b32_e64 {vr(vQo2)}, {vr(vT0)}, {vr(vT1)}, {sr(sHi,2)}
v_add_u32 {vr(vbK1)}, {sr(sT2)}, {vr(vQo)}
v_add_u32 {vr(vT0)}, {sr(sT2)}, {vr(vT0)}
v_mov_b32 {vr(vT1)}, {ONES}
v_cndmask_b32_e64 {vr(vbK2)}, {vr(vT0)}, {vr(vT1)}, {sr(sHi,2)}
v_cndmask_b32_e64 {vr(vmK2)}, 1, 0, {sr(sHi,2)}
v_and_b32 {vr(vT2)}, 31, {vr(vLane)}
v_lshrrev_b32 {vr(vT3)}, 5, {vr(vLane)}
v_mul_u32_u24 {vr(vT3)}, 320, {vr(vT3)}
v_lshl_add_u32 {vr(vT3)}, {vr(vT2)}, 4, {vr(vT3)}
s_add_u32 {sr(sT3)}, {sr(sT2)}, 1280
v_add_u32 {vr(vT3)}, {sr(sT3)}, {vr(vT3)}
v_cmp_gt_u32 vcc, 20, {vr(vT2)}
v_mov_b32 {vr(vIdx)}, 0xdddddddd
v_mov_b32 {vr(vaK1)}, {vr(vbK1)}
v_cndmask_b32 {vr(vbV)}, {vr(vT1)}, {vr(vT3)}, vcc
v_cndmask_b32_e64 {vr(vmV)}, 0, 1, vcc
v_cmp_lt_u32 vcc, 20, {vr(vT2)}
v_add_u32 {vr(vT3)}, 16, {vr(vT1)}
v_mov_b32 {vr(vaK2)}, {vr(vbK2)}
v_cndmask_b32 {vr(vbV)}, {vr(vbV)}, {vr(vT3)}, vcc
v_mov_b32 {vr(vaV)}, {vr(vbV)}
s_mul_i32 {sr(sT2)}, {sr(sW)}, 2560
s_add_u32 {sr(sT2)}, {sr(sT2)}, {QST}
v_add_u32 {vr(vQs1)}, {sr(sT2)}, {vr(vQo)}
v_and_b32 {vr(vQs2)}, 31, {vr(vLane)}
v_lshlrev_b32 {vr(vQs2)}, 3, {vr(vQs2)}
s_add_u32 {sr(sT2)}, {sr(sT2)}, 1024
v_add_u32 {vr(vQs2)}, {sr(sT2)}, {vr(vQs2)}
s_lshl_b32 {sr(sT2)}, {sr(sB)}, 4
s_add_u32 {sr(sT2)}, {sr(sT2)}, {sr(sMt)}
s_lshl_b32 {sr(sT2)}, {sr(sT2)}, 1
s_and_b32 {sr(sT3)}, {sr(sW)}, 1
s_add_u32 {sr(sT2)}, {sr(sT2)}, {sr(sT3)}
s_lshl_b32 {sr(sT2)}, {sr(sT2)}, 5
s_lshl_b32 {sr(sT3)}, {sr(sHg)}, 2
s_add_u32 {sr(sT2)}, {sr(sT2)}, {sr(sT3)}
s_add_u32 {sr(sT2)}, {sr(sT2)}, {sr(sT)}
s_mul_i32 {sr(sOo)}, {sr(sT2)}, 2560
s_add_u32 {sr(sOo)}, {sr(sOo)}, {F_WS_O}
s_mov_b32 {sr(sPub2)}, {sr(sKV)}
s_mul_i32 {sr(sT)}, {sr(sT)}, {KV_HEAD}
s_add_u32 {sr(sKV)}, {sr(sKV)}, {sr(sT)}''')
    if pub4:
        a(f'''s_and_b32 {sr(sT)}, {sr(sW)}, 3
s_mul_i32 {sr(sT2)}, {sr(sT)}, 10240
v_add_u32 {vr(vPub)}, {sr(sT2)}, {vr(vQo)}
s_mul_i32 {sr(sT)}, {sr(sT)}, {KV_HEAD}
s_mul_i32 {sr(sT2)}, {sr(sMt)}, 10240
s_add_u32 {sr(sT)}, {sr(sT)}, {sr(sT2)}
s_add_u32 {sr(sPub)}, {sr(sT)}, {sr(sPub2)}''')
    else:
        a(f'''s_and_b32 {sr(sT)}, {sr(sW)}, 1
s_mul_i32 {sr(sT)}, {sr(sT)}, 5120
v_add_u32 {vr(vPub)}, {sr(sT)}, {vr(vbK1)}
s_mul_i32 {sr(sT2)}, {sr(sMt)}, 10240
s_add_u32 {sr(sT)}, {sr(sT)}, {sr(sT2)}
s_add_u32 {sr(sPub)}, {sr(sT)}, {sr(sKV)}
s_add_u32 {sr(sPub2)}, {sr(sPub)}, 4096''')
    for ct in range(8):
        for tt in range(2):
            for i in range(4):
                a(f'v_mov_b32 {vr(acc[ct][tt]+i)}, 0')
    a(f'''s_mov_b32 {sr(sScale)}, {QSCALE}
s_mov_b32 {sr(sScale+1)}, {QSCALE}
s_and_b32 {sr(sT3)}, {sr(sW)}, 3
v_and_b32 {vr(vT0)}, 15, {vr(vLane)}
v_lshrrev_b32 {vr(vT1)}, 4, {vr(vLane)}
v_lshrrev_b32 {vr(vT2)}, 2, {vr(vT0)}
v_and_b32 {vr(vT3)}, 3, {vr(vT0)}
v_lshl_add_u32 {vr(vT4)}, {vr(vT2)}, 3, {vr(vT3)}
v_lshrrev_b32 {vr(vT2)}, 1, {vr(vT1)}
v_and_b32 {vr(vT3)}, 1, {vr(vT1)}
s_mul_i32 {sr(sT)}, {sr(sT3)}, 2560
v_mul_u32_u24 {vr(vE[0])}, 10240, {vr(vT2)}
v_lshl_add_u32 {vr(vE[0])}, {vr(vT3)}, 9, {vr(vE[0])}
v_lshl_add_u32 {vr(vE[0])}, {vr(vT4)}, 4, {vr(vE[0])}
v_add_u32 {vr(vE[0])}, {sr(sT)}, {vr(vE[0])}
s_cmp_ge_u32 {sr(sW)}, 4
s_cbranch_scc1 {name}_p1b''')

    def p1_variant(wn):
        if wn == 0:
            kinds = [('P', 0, 0, 0), ('P', 0, 0, 1), ('P', 0, 1, 0), ('P', 0, 1, 1), ('T', 0, 0, 0), ('P', 1, 0, 0), ('P', 1, 0, 1), ('T', 1, 0, 0)]
            a(f'''s_add_u32 {sr(sT2)}, {sr(sT)}, 1024
v_mul_u32_u24 {vr(vE[1])}, 10240, {vr(vT1)}
v_lshl_add_u32 {vr(vE[1])}, {vr(vT4)}, 3, {vr(vE[1])}
v_add_u32 {vr(vE[1])}, {sr(sT2)}, {vr(vE[1])}
s_mul_i32 {sr(sT)}, {sr(sT3)}, 1280
s_add_u32 {sr(sT)}, {sr(sT)}, {QST}
v_mul_u32_u24 {vr(vE[2])}, 5120, {vr(vT2)}
v_lshl_add_u32 {vr(vE[2])}, {vr(vT3)}, 9, {vr(vE[2])}
v_lshl_add_u32 {vr(vE[2])}, {vr(vT0)}, 4, {vr(vE[2])}
v_add_u32 {vr(vE[2])}, {sr(sT)}, {vr(vE[2])}
s_add_u32 {sr(sT)}, {sr(sT)}, 1024
v_mul_u32_u24 {vr(vE[3])}, 5120, {vr(vT1)}
v_lshl_add_u32 {vr(vE[3])}, {vr(vT0)}, 3, {vr(vE[3])}
v_add_u32 {vr(vE[3])}, {sr(sT)}, {vr(vE[3])}''')
        else:
            kinds = [('P', 1, 1, 0), ('P', 1, 1, 1)] + [('V', 2, i, 0) for i in range(5)]
            a(f'''s_add_u32 {sr(sT)}, {sr(sT)}, 1280
v_mul_u32_u24 {vr(vT2)}, 640, {vr(vT2)}
v_mul_u32_u24 {vr(vT3)}, 320, {vr(vT3)}
v_add3_u32 {vr(vT5)}, {vr(vT2)}, {vr(vT3)}, {sr(sT)}''')
            for i in range(5):
                a(f'''v_add_u32 {vr(vT2)}, {16*i}, {vr(vT0)}
v_mul_u32_u24 {vr(vT3)}, 3277, {vr(vT2)}
v_lshrrev_b32 {vr(vT3)}, 16, {vr(vT3)}
v_mul_u32_u24 {vr(vT3)}, {10240-320}, {vr(vT3)}
v_lshl_add_u32 {vr(vT2)}, {vr(vT2)}, 4, {vr(vT3)}
v_add_u32 {vr(vE[1+i])}, {vr(vT2)}, {vr(vT5)}''')
        nct = len(kinds)
        grp = [list(range(0, 4)), list(range(4, nct))]
        def rd_x(step, s2):
            return [f'ds_read_b128 {vr(Xf[s2][tt],4)}, {vr(vXr[step%3][s2])} offset:{tt*2048}' for tt in range(2)]
        def rd_w(step, s2, h, idx):
            ty, sec, sub, e = kinds[grp[h][idx]]
            base = (vWa if ty == 'P' else vWb)[step % 3]
            col = sec*160 + {'P': sub*80 + e*8, 'T': 32, 'V': sub*32}[ty]
            return [f'ds_read_b64_tr_b16 {vr(Wf[h][idx]+2*rd,2)}, {vr(base)} offset:{(32*s2+8*rd)*480 + col}' for rd in range(2)]
        def mf(s2, h, idx):
            ct = grp[h][idx]
            out = []
            for tt in range(2):
                A, B = Wf[h][idx], Xf[s2][tt]
                if kinds[ct][0] == 'V':
                    A, B = B, A
                out.append(f'v_mfma_f32_16x16x32_bf16 {vr(acc[ct][tt],4)}, {vr(A,4)}, {vr(B,4)}, {vr(acc[ct][tt],4)}')
            return out
        n0, n1 = 2 + 2*len(grp[0]), 2*len(grp[1])
        def phase(s2, h, nxt):
            if nxt is not None and h == 0:
                for r in rd_x(*nxt): a(r)
            for idx in range(len(grp[h])):
                for m in mf(s2, h, idx): a(m)
                if nxt is not None:
                    for r in rd_w(nxt[0], nxt[1], h, idx): a(r)
        st1()
        a('s_waitcnt vmcnt(0)')
        a(f'v_readfirstlane_b32 {sr(sTag)}, {vr(vEp7)}')
        a('s_barrier')
        a(f's_add_u32 {sr(sTag)}, {sr(sTag)}, {TAGK}')
        rts(1)
        st()
        for r in rd_x(0, 0): a(r)
        for h in range(2):
            for idx in range(len(grp[h])):
                for r in rd_w(0, 0, h, idx): a(r)
        for step in range(10):
            if step == 9 and hsplit:
                a('s_barrier')
            a(f's_waitcnt lgkmcnt({n1})')
            phase(0, 0, (step, 1))
            a(f's_waitcnt lgkmcnt({n0})')
            phase(0, 1, (step, 1))
            a('s_waitcnt lgkmcnt(0)')
            a('s_barrier')
            if step == 0 and wn == 1:
                a(f'v_mov_b32 {vr(vCi7)}, 1')
                a(f'buffer_atomic_add {vr(vCi7)}, {vr(vZ7)}, {sr(SDBG,4)}, 0 offen sc0')
            if step in (0, 4): st0()
            if step in (0, 1, 2, 8): st1()
            if step in (8, 9): st4()
            nx = (step + 1, 0) if step < 9 else None
            phase(1, 0, nx)
            phase(1, 1, nx)
        st0(); st4(); st6()
        rts(2)
        if wn == 1:
            a(f'''s_waitcnt vmcnt(0)
v_cmp_eq_u32 vcc, 255, {vr(vCi7)}
v_add_u32 {vr(vEp7)}, {TAGK}, {vr(vEp7)}
v_mov_b32 {vr(vT1)}, {OOB}
s_mov_b32 {sr(sT)}, {F_EPOCH}
v_cndmask_b32 {vr(vZ7)}, {vr(vT1)}, {vr(vZ7)}, vcc
buffer_store_dword {vr(vEp7)}, {vr(vZ7)}, {sr(SWS,4)}, {sr(sT)} offen{SC}''')
        def scale(r0):
            a(f'v_pk_mul_f32 {vr(r0,2)}, {vr(r0,2)}, {sr(sScale,2)}')
            a(f'v_pk_mul_f32 {vr(r0+2,2)}, {vr(r0+2,2)}, {sr(sScale,2)}')
        def pack4(d, x, y):
            a(f'v_cvt_pk_bf16_f32 {vr(d)}, {vr(x)}, {vr(x+1)}')
            a(f'v_cvt_pk_bf16_f32 {vr(d+1)}, {vr(x+2)}, {vr(x+3)}')
            if y is not None:
                a(f'v_cvt_pk_bf16_f32 {vr(d+2)}, {vr(y)}, {vr(y+1)}')
                a(f'v_cvt_pk_bf16_f32 {vr(d+3)}, {vr(y+2)}, {vr(y+3)}')
        def stage(want):
          ct = 0
          while ct < nct:
            ty, sec, sub, e = kinds[ct]
            if (sec == 0) != want:
                ct += 1
                continue
            if ty == 'P':
                for tt in range(2):
                    x, y = acc[ct][tt], acc[ct+1][tt]
                    if sec == 0:
                        scale(x); scale(y)
                    pack4(x, x, y)
                    if sec == 0:
                        a(f'ds_write_b128 {vr(vE[2])}, {vr(x,4)} offset:{sub*10240 + tt*256}')
                    else:
                        a(f'ds_write_b128 {vr(vE[0])}, {vr(x,4)} offset:{sub*20480 + tt*64}')
                ct += 2
            elif ty == 'T':
                for tt in range(2):
                    x = acc[ct][tt]
                    if sec == 0:
                        scale(x)
                    pack4(x, x, None)
                    if sec == 0:
                        a(f'ds_write_b64 {vr(vE[3])}, {vr(x,2)} offset:{tt*128}')
                    else:
                        a(f'ds_write_b64 {vr(vE[1])}, {vr(x,2)} offset:{tt*32}')
                ct += 1
            else:
                x, y = acc[ct][0], acc[ct][1]
                pack4(x, x, y)
                a(f'ds_write_b128 {vr(vE[1+sub])}, {vr(x,4)}')
                ct += 1
        if wn == 0: a('s_nop 2')
        stage(False)
        if one_e: stage(True)
        a('s_waitcnt lgkmcnt(0)')
        st4()
        a('s_barrier')
        st4(); st6()
        PB = Xf[0][0]
        assert Wf[0][0] == PB + 16
        if pub4:
            if wn == 0:
                if not one_e: stage(True)
            else:
                for q in range(10):
                    a(f'ds_read_b128 {vr(PB+4*q,4)}, {vr(vPub)} offset:{q*1024}')
                for q in range(10):
                    if q == 4: a(f's_add_u32 {sr(sPub)}, {sr(sPub)}, 4096')
                    if q == 8: a(f's_add_u32 {sr(sPub)}, {sr(sPub)}, 4096')
                    a(f's_waitcnt lgkmcnt({9 - q})')
                    a(f'buffer_store_dwordx4 {vr(PB+4*q,4)}, {vr(vQo)}, {sr(SWS,4)}, {sr(sPub)} offen offset:{(q%4)*1024}{SST}')
        else:
          for q in range(5):
            a(f'ds_read_b128 {vr(PB+4*q,4)}, {vr(vPub)} offset:{q*1024}')
          stage(True)
          nq = 6 if wn == 0 else 0
          for q in range(5):
            a(f's_waitcnt lgkmcnt({4 - q + nq})')
            a(f'buffer_store_dwordx4 {vr(PB+4*q,4)}, {vr(vQo)}, {sr(SWS,4)}, {sr(sPub if q < 4 else sPub2)} offen offset:{(q%4)*1024}{SST}')
        a('s_nop 1')
        st4()
    n_st = st.n
    p1_variant(0)
    a(f's_branch {name}_p2')
    a.label(f'{name}_p1b')
    st.n = n_st
    p1_variant(1)
    a.label(f'{name}_p2')

    V = VAlloc(VB2 + 3)
    Q1 = [V(4), V(4)]; Q2 = [V(2), V(2)]
    K1 = [V(4), V(4)]; K2 = [V(2), V(2)]
    V0 = [V(4), V(4)]; V1 = [V(4), V(4)]
    O = [V(16), V(16)]
    S = [V(16), V(16)]
    st3 = opts.get('st3', 1) and not nobar
    if st3:
        aK1 = [vbK1, vaK1, V()]; aK2 = [vbK2, vaK2, V()]; aV = [vbV, vaV, V()]
    vPw = V(2); vPa = V(); vPo_ = V(); vPg = V()
    done_alloc(V)
    for t in range(2):
        for i in range(16):
            a(f'v_mov_b32 {vr(O[t]+i)}, 0')
    for i in range(4):
        a(f'v_mov_b32 {vr(V1[1]+i)}, 0')
    a(f's_mov_b32 {sr(sG)}, 0')
    a(f's_mov_b32 {sr(sOff)}, 0')
    if st3:
        for k in (1, 2):
            a(f's_mov_b32 {sr(sT)}, {phys(k)*SLOT}')
            a(f'v_add_u32 {vr(aK1[k])}, {sr(sT)}, {vr(vbK1)}')
            a(f'v_mad_u32_u24 {vr(aK2[k])}, {vr(vmK2)}, {sr(sT)}, {vr(vbK2)}')
            a(f'v_mad_u32_u24 {vr(aV[k])}, {vr(vmV)}, {sr(sT)}, {vr(vbV)}')
    if nobar:
        a(f'''s_lshl_b32 {sr(sT)}, {sr(sW)}, 3
s_add_u32 {sr(sT2)}, {sr(sT)}, {LW_PW + 4}
s_xor_b32 {sr(sT)}, {sr(sT)}, 32
s_add_u32 {sr(sT)}, {sr(sT)}, {LW_PW}
v_mov_b32 {vr(vPa)}, {sr(sT)}
v_mov_b32 {vr(vPo_)}, {sr(sT2)}
v_mov_b32 {vr(vPg)}, 0''')
    if not one_e:
        a('s_waitcnt lgkmcnt(0)')
        a('s_barrier')
    st0(); st4()
    def rdK(s_, u, part='R', sl=0):
        x1, x2 = (aK1[sl], aK2[sl]) if st3 else (vaK1, vaK2)
        if part != 'Rb': a(f'ds_read_b128 {vr(K1[s_],4)}, {vr(x1)} offset:{2560*u}')
        if part != 'Ra': a(f'ds_read_b64 {vr(K2[s_],2)}, {vr(x2)} offset:{2560*u}')
    def rdV(s_, u, part='R', sl=0):
        x1 = aV[sl] if st3 else vaV
        if part != 'Rb': a(f'ds_read_b128 {vr(V0[s_],4)}, {vr(x1)} offset:{2560*u}')
        if part != 'Ra': a(f'ds_read_b128 {vr(V1[s_],4)}, {vr(x1)} offset:{2560*u+640}')
    def qk16(t, s_):
        a(f'v_mfma_f32_32x32x16_bf16 {vr(S[t],16)}, {vr(K1[s_],4)}, {vr(Q1[t],4)}, 0')
    def qk8(t, s_):
        a(f'v_mfma_f32_32x32x8_bf16 {vr(S[t],16)}, {vr(K2[s_],2)}, {vr(Q2[t],2)}, {vr(S[t],16)}')
    def pv(t, s_, n):
        Vf = (V0, V1)[n][s_]
        a(f'v_smfmac_f32_32x32x32_bf16 {vr(O[t],16)}, {vr(Vf,4)}, {vr(S[t]+8*n,8)}, {vr(vIdx)}')
    def rowmax(t, dst):
        s = S[t]
        a(f'v_max3_f32 {vr(dst)}, {vr(s)}, {vr(s+1)}, {vr(s+2)}')
        for i in range(3, 15, 2):
            a(f'v_max3_f32 {vr(dst)}, {vr(dst)}, {vr(s+i)}, {vr(s+i+1)}')
        a(f'v_max_f32 {vr(dst)}, {vr(dst)}, {vr(s+15)}')
    def crosshalf(x, y):
        a(f'v_mov_b32 {vr(y)}, {vr(x)}')
        a('s_nop 1')
        a(f'v_permlane32_swap_b32 {vr(x)}, {vr(y)}')
        a('s_nop 1')
    for t in range(2):
        a(f'ds_read_b128 {vr(Q1[t],4)}, {vr(vQs1)} offset:{1280*t}')
        a(f'ds_read_b64 {vr(Q2[t],2)}, {vr(vQs2)} offset:{1280*t}')
    rdK(0, 0); rdK(1, 1); rdV(0, 0)
    a('s_waitcnt lgkmcnt(4)')
    for t in range(2):
        a(f'v_cndmask_b32_e64 {vr(Q2[t])}, {vr(Q2[t])}, 0, {sr(sHi,2)}')
        a(f'v_cndmask_b32_e64 {vr(Q2[t]+1)}, {vr(Q2[t]+1)}, 0, {sr(sHi,2)}')
    qk16(0, 0); qk8(0, 0); qk16(1, 0); qk8(1, 0)
    a('s_nop 9')
    for t in range(2):
        if t == 1: a('s_nop 1')
        rowmax(t, vT0)
        crosshalf(vT0, vT1)
        a(f'''v_max_f32 {vr(vT0)}, {vr(vT0)}, {vr(vT1)}
v_sub_f32 {vr(vT0)}, 0, {vr(vT0)}
v_and_b32 {vr(vT1)}, 0xffff0000, {vr(vT0)}
v_sub_f32 {vr(vT0)}, {vr(vT0)}, {vr(vT1)}
v_and_b32 {vr(vT2)}, 0xffff0000, {vr(vT0)}
v_sub_f32 {vr(vT0)}, {vr(vT0)}, {vr(vT2)}
v_lshrrev_b32 {vr(vT1)}, 16, {vr(vT1)}
v_or_b32 {vr(vT1)}, {vr(vT1)}, {vr(vT2)}
v_lshrrev_b32 {vr(vT0)}, 16, {vr(vT0)}
v_cndmask_b32_e64 {vr(Q2[t])}, {vr(Q2[t])}, {vr(vT1)}, {sr(sHi,2)}
v_cndmask_b32_e64 {vr(Q2[t]+1)}, {vr(Q2[t]+1)}, {vr(vT0)}, {sr(sHi,2)}''')
        if t == 0:
            qk16(0, 0)
            a('s_nop 0')
            qk8(0, 0)
    for i in range(8, 16):
        a(f'v_mov_b32 {vr(S[1]+i)}, 0')
    st4()
    dsig = opts.get('dsig', 0) and pub4 and st3
    sSig, sFa = sOff, sPub2
    def sig_code(lbl, cnt):
        a(f'''s_mov_b64 exec, 1
v_mov_b32 {vr(vT0)}, 1
v_mov_b32 {vr(vT2)}, {LW_CNT1}
v_mov_b32 {vr(vT1)}, {sr(sTag)}
v_mov_b32 {vr(vT3)}, {sr(sFa)}
s_waitcnt vmcnt(0)
ds_add_rtn_u32 {vr(vT0)}, {vr(vT2)}, {vr(vT0)}
s_waitcnt lgkmcnt(0)
v_readfirstlane_b32 {sr(sT)}, {vr(vT0)}
s_cmp_eq_u32 {sr(sT)}, {cnt - 1}
s_cbranch_scc0 {lbl}
buffer_store_dword {vr(vT1)}, {vr(vT3)}, {sr(SWS,4)}, 0 offen{SC}''')
        a.label(lbl)
        a('s_mov_b64 exec, -1')
    a(f'''s_lshl_b32 {sr(sT)}, {sr(sB)}, 3
s_add_u32 {sr(sT)}, {sr(sT)}, {sr(sHg)}
s_lshl_b32 {sr(sT)}, {sr(sT)}, 6
s_add_u32 {sr(sT)}, {sr(sT)}, {sr(sMt)}
s_lshl_b32 {sr(sT)}, {sr(sT)}, 2
s_add_u32 {sr(sFa)}, {sr(sT)}, {F_FLAG1}''')
    sigpts = []
    if dsig:
        a(f's_lshr_b32 {sr(sSig)}, {sr(sW)}, 2')
        a('s_waitcnt lgkmcnt(0)')
    else:
        sig_code(f'{name}_nl1', 8)
    def sig_point(force):
        k = len(sigpts); sigpts.append(force)
        a(f's_cmp_lg_u32 {sr(sSig)}, 0')
        a(f's_cbranch_scc1 {name}_sg{k}')
        a.label(f'{name}_sgr{k}')
    prio = opts.get('prio', 1)
    rts(3)
    st0(); st4(); st6()
    if sset == 2: st()
    a('.p2align 6')
    a.label(f'{name}_loop')
    def ex(t, i):
        a(f'v_exp_f32 {vr(S[t]+i)}, {vr(S[t]+i)}')
    scheds = {1: 'e e P2 e e e e Q16 e e e e Q8 R e e e e P1 W e e',
              2: 'e e P2 e e e e Q16 e e e Q8 R e e e e e P1 W e e',
              3: 'e e P2 e e e e Q16 e e e e Q8 e R e e e P1 e W e',
              4: 'e e P2 e e e Q16 e e e e Q8 R e e e e P1 W e e e',
              5: 'e e W P2 e e e e Ra Q16 e e e e Rb Q8 e e e e P1 e e',
              6: 'e e W P2 e e e e R Q16 e e e e Q8 e e e e P1 e e',
              7: 'e e W P2 e e e e Q16 e e e e Ra Q8 e e e e Rb P1 e e',
              8: 'e e P2 e e e e Ra Q16 e e e e Rb Q8 e e e e W P1 e e',
              9: 'e e P2 e e e e Q16 e e e e Q8 e e e e R W P1 e e',
              10: 'e e P2 Ra e e e e Q16 Rb e e e e Q8 W e e e e P1 e e',
              11: 'e e P2 Ra e e e e Q16 Rb e e e e Q8 e e e e P1 W e e',
              12: 'e e P2 R e e e e Q16 e e e e Q8 e e e e P1 W e e',
              13: 'e e P2 R W e e e e Q16 e e e e Q8 e e e e P1 e e',
              14: 'e e P2 Ra e e e e Q16 e e e e Q8 e e e e P1 Rb W e e',
              15: 'e e P2 R e e e e Q16 e e e e Q8 W e e e e P1 e e'}
    sched = scheds[opts.get('sched', 12)].split()
    unroll = 3 if st3 else opts.get('unroll', 1)
    ptab = {1: {(0, 0): 2, (1, 0): 1, (2, 0): 0, (3, 0): 3},
            2: {(3, 0): 1, (1, 0): 0},
            3: {(3, 0): 3, (3, 1): 2, (0, 1): 1, (1, 1): 0},
            6: {(3, 0): 3, (0, 1): 2, (1, 1): 1, (2, 0): 0}}.get(prio, {})
    for rep in range(unroll):
      for j in range(4):
        for t in range(2):
            pj = j if t == 1 else j - 1
            nj = j if t == 0 else j + 1
            if (j, t) in ptab and nobar != 1:
                a(f's_setprio {ptab[(j, t)]}')
            if dsig and rep == 0 and (j, t) in ((0, 0), (0, 1), (1, 0), (1, 1), (2, 0)):
                sig_point(False)
            e = 0
            for tok in sched:
                if tok == 'e':
                    ex(t, e); e += 1
                elif tok == 'P2':
                    pv(1 - t, pj % 2, 1)
                elif tok == 'P1':
                    pv(t, j % 2, 0)
                elif tok == 'Q16':
                    qk16(1 - t, nj % 2)
                elif tok == 'Q8':
                    qk8(1 - t, nj % 2)
                elif tok == 'W':
                    a(f's_waitcnt lgkmcnt({3 if nobar and (j, t) in ((2, 0), (2, 1)) else 2})')
                elif tok == 'Rb':
                    if t == 0: rdV((j + 1) % 2, (j + 1) % 4, 'Rb', (rep + (j + 1) // 4) % 3)
                    else: rdK(j % 2, (j + 2) % 4, 'Rb', (rep + (j + 2) // 4) % 3)
                elif tok in ('R', 'Ra'):
                    if t == 0:
                        if j == 3 and not st3:
                            a(f'v_mad_u32_u24 {vr(vaV)}, {vr(vmV)}, {sr(sOff)}, {vr(vbV)}')
                        rdV((j + 1) % 2, (j + 1) % 4, tok, (rep + (j + 1) // 4) % 3)
                        if j == 2 and nobar:
                            a(f'ds_read_b64 {vr(vPw,2)}, {vr(vPa)}')
                    else:
                        if g1s and rep == 1 and j == 1:
                            a(f's_cmp_eq_u32 {sr(sG)}, 0')
                            a(f's_cbranch_scc1 {name}_g1w')
                            a.label(f'{name}_g1r')
                        if j == 2 and st3:
                            if dsig and rep == 0: sig_point(True)
                            a('s_waitcnt lgkmcnt(0)')
                            a('s_barrier')
                            if sset == 6 and st.on and rep == 0:
                                a(f's_cmp_eq_u32 {sr(sG)}, 0')
                                a(f's_cbranch_scc0 {name}_sk6')
                                st.rt()
                                a.label(f'{name}_sk6')
                        elif j == 2:
                            a(f'''s_add_u32 {sr(sOff)}, {sr(sOff)}, {SLOT}
s_cmp_ge_u32 {sr(sOff)}, {3*SLOT}
s_cselect_b32 {sr(sOff)}, 0, {sr(sOff)}''')
                            if nobar:
                                a(f'''v_add_u32 {vr(vPg)}, 1, {vr(vPg)}
s_add_u32 {sr(sT3)}, {sr(sG)}, {rep + 1}
s_waitcnt lgkmcnt(0)
v_readfirstlane_b32 {sr(sT)}, {vr(vPw)}
v_readfirstlane_b32 {sr(sT2)}, {vr(vPw+1)}
ds_write_b32 {vr(vPo_)}, {vr(vPg)}''')
                                if nobar == 1:
                                    a(f'''s_setprio 0
s_cmp_lt_u32 {sr(sT2)}, {sr(sT3)}
s_cbranch_scc1 {name}_lo{rep}
s_setprio 1''')
                                    a.label(f'{name}_lo{rep}')
                                elif nobar == 2:
                                    a(f's_add_u32 {sr(sT2)}, {sr(sT2)}, {1 + opts.get("slack", 0)}')
                                    a(f's_min_u32 {sr(sT)}, {sr(sT)}, {sr(sT2)}')
                                a(f's_cmp_gt_u32 {sr(sT)}, {sr(sT3)}')
                                a(f's_cbranch_scc0 {name}_spin{rep}')
                                a.label(f'{name}_spun{rep}')
                            else:
                                a('s_waitcnt lgkmcnt(0)')
                                a('s_barrier')
                            if sset == 2 and st.on:
                                for K in (0, 1, 2, 3, 8, 14):
                                    a(f's_cmp_eq_u32 {sr(sG)}, {K}')
                                    a(f's_cbranch_scc0 {name}_sk{K}')
                                    st()
                                    a.label(f'{name}_sk{K}')
                            a(f'''v_add_u32 {vr(vaK1)}, {sr(sOff)}, {vr(vbK1)}
v_mad_u32_u24 {vr(vaK2)}, {vr(vmK2)}, {sr(sOff)}, {vr(vbK2)}''')
                        rdK(j % 2, (j + 2) % 4, tok, (rep + (j + 2) // 4) % 3)
            assert e == 16
      if st3 and rep == 0:
        a(f's_cmp_eq_u32 {sr(sG)}, 15')
        a(f's_cbranch_scc1 {name}_lend')
    a(f'''s_add_u32 {sr(sG)}, {sr(sG)}, {unroll}
s_cmp_lt_u32 {sr(sG)}, 16
s_cbranch_scc1 {name}_loop''')
    a.label(f'{name}_lend')
    a('s_nop 1')
    pv(1, 1, 1)
    if ptab or nobar:
        a('s_setprio 0')
    st0()
    if sset in (2, 3): st()
    L = [vT2, vT3]
    st6()
    rts(4)
    a('s_waitcnt lgkmcnt(0)')
    a(f's_mov_b32 {sr(sI)}, 0')
    a.label(f'{name}_store')
    a(f's_mov_b32 {sr(sM)}, 0xaaaaaaaa')
    a(f's_mov_b32 {sr(sM+1)}, 0xaaaaaaaa')
    for t in range(2):
        a(f'v_mov_b32 {vr(vT0)}, {vr(O[t]+8)}')
        crosshalf(vT0, L[t])
        a(f'v_rcp_f32 {vr(vT0)}, {vr(L[t])}')
        a('s_nop 0')
        for i in range(12):
            a(f'v_mul_f32 {vr(O[t]+i)}, {vr(O[t]+i)}, {vr(vT0)}')
        for i in range(4):
            a(f'v_cvt_pk_bf16_f32 {vr(S[t]+i)}, {vr(O[t]+2*i)}, {vr(O[t]+2*i+1)}')
        a(f'buffer_store_dwordx4 {vr(S[t],4)}, {vr(vQo)}, {sr(SWS,4)}, {sr(sOo)} offen offset:{1024*t}{SST}')
        for i in range(2):
            a(f'v_cvt_pk_bf16_f32 {vr(S[0]+4+2*t+i)}, {vr(O[t]+8+2*i)}, {vr(O[t]+8+2*i+1)}')
    ta, tb, X, Y = S[0]+4, S[0]+6, S[0]+8, S[0]+12
    a(f'''v_cndmask_b32_e64 {vr(X)}, {vr(tb)}, {vr(ta)}, {sr(sM,2)}
v_cndmask_b32_e64 {vr(X+1)}, {vr(tb+1)}, {vr(ta+1)}, {sr(sM,2)}
v_lshrrev_b32 {vr(vT0)}, 1, {vr(vLane)}
v_and_b32 {vr(vT1)}, 1, {vr(vLane)}
v_mov_b32_dpp {vr(X+2)}, {vr(X)} quad_perm:[1,0,3,2] row_mask:0xf bank_mask:0xf
v_mov_b32_dpp {vr(X+3)}, {vr(X+1)} quad_perm:[1,0,3,2] row_mask:0xf bank_mask:0xf
v_lshlrev_b32 {vr(vT0)}, 4, {vr(vT0)}
v_lshl_add_u32 {vr(vT0)}, {vr(vT1)}, 8, {vr(vT0)}
v_mov_b32 {vr(vT1)}, {OOB}
v_cndmask_b32_e64 {vr(Y)}, {vr(ta)}, {vr(X+2)}, {sr(sM,2)}
v_cndmask_b32_e64 {vr(Y+1)}, {vr(ta+1)}, {vr(X+3)}, {sr(sM,2)}
v_cndmask_b32_e64 {vr(Y+2)}, {vr(X+2)}, {vr(tb)}, {sr(sM,2)}
v_cndmask_b32_e64 {vr(Y+3)}, {vr(X+3)}, {vr(tb+1)}, {sr(sM,2)}
v_cndmask_b32_e64 {vr(vT0)}, {vr(vT0)}, {vr(vT1)}, {sr(sHi,2)}
buffer_store_dwordx4 {vr(Y,4)}, {vr(vT0)}, {sr(SWS,4)}, {sr(sOo)} offen offset:2048{SST}''')
    st0()
    for t in range(2):
        sm = sM if t == 0 else sM2
        a(f'v_mul_f32 {vr(vT1)}, 0, {vr(O[t])}')
        for i in range(1, 12):
            a(f'v_fmac_f32 {vr(vT1)}, 0, {vr(O[t]+i)}')
        a(f'v_add_f32 {vr(vT1)}, {vr(vT1)}, {vr(L[t])}')
        a(f'v_cmp_gt_f32 vcc, 0x53800000, {vr(vT1)}')
        a(f's_mov_b64 {sr(sm,2)}, vcc')
        a(f'v_cmp_lt_f32 vcc, 0x35800000, {vr(vT1)}')
        a(f's_and_b64 {sr(sm,2)}, {sr(sm,2)}, vcc')
    a(f'''s_and_b64 {sr(sM,2)}, {sr(sM,2)}, {sr(sM2,2)}
s_cmp_eq_u64 {sr(sM,2)}, -1
s_cselect_b32 {sr(sT)}, 1, {sr(sI)}
s_cmp_eq_u32 {sr(sT)}, 0
s_cbranch_scc1 {name}_fallback''')

    V = VAlloc(VBASE)
    vAo = V(); vAt = V(); vWm0 = V(); vWt0 = V(); vOo = V(); vRd = V(); vDn = V(); vOw = V(); vOr = V(); vOs = [V(), V(), V()]
    vWm = [V() for _ in range(4)]; vWt = [V() for _ in range(4)]
    acc3 = [V(4) for _ in range(5)]
    assert V.n <= S[0]
    Wg = [[V(4) for _ in range(5)] for _ in range(2)]
    A = [[V(4) for _ in range(5)] for _ in range(4)]
    done_alloc(V)
    a(f'''s_lshl_b32 {sr(sT)}, {sr(sB)}, 4
s_add_u32 {sr(sT)}, {sr(sT)}, {sr(sMt3)}
s_lshl_b32 {sr(sT)}, {sr(sT)}, 1
s_lshr_b32 {sr(sT2)}, {sr(sW)}, 2
s_add_u32 {sr(sT)}, {sr(sT)}, {sr(sT2)}
s_mul_i32 {sr(sA)}, {sr(sT)}, {32*2560}
s_add_u32 {sr(sA)}, {sr(sA)}, {F_WS_O}
s_and_b32 {sr(sT)}, {sr(sW)}, 1
s_lshl_b32 {sr(sT)}, {sr(sT)}, 4
s_bfe_u32 {sr(sT2)}, {sr(sW)}, 0x10001
v_and_b32 {vr(vT0)}, 15, {vr(vLane)}
v_add_u32 {vr(vT0)}, {sr(sT)}, {vr(vT0)}
v_lshlrev_b32 {vr(vT0)}, 4, {vr(vT0)}
v_lshrrev_b32 {vr(vT1)}, 5, {vr(vLane)}
v_mul_u32_u24 {vr(vT1)}, 2560, {vr(vT1)}
v_bfe_u32 {vr(vT2)}, {vr(vLane)}, 4, 1
v_lshl_add_u32 {vr(vT1)}, {vr(vT2)}, 9, {vr(vT1)}
s_lshl_b32 {sr(sT3)}, {sr(sT2)}, 10
v_add3_u32 {vr(vAo)}, {vr(vT0)}, {vr(vT1)}, {sr(sT3)}
v_lshrrev_b32 {vr(vT1)}, 4, {vr(vLane)}
v_mul_u32_u24 {vr(vT1)}, 2560, {vr(vT1)}
s_lshl_b32 {sr(sT3)}, {sr(sT2)}, 8
s_add_u32 {sr(sT3)}, {sr(sT3)}, 2048
v_lshrrev_b32 {vr(vT0)}, 1, {vr(vT0)}
v_add3_u32 {vr(vAt)}, {vr(vT0)}, {vr(vT1)}, {sr(sT3)}
v_bfe_u32 {vr(vT0)}, {vr(vLane)}, 2, 2
v_lshrrev_b32 {vr(vT1)}, 5, {vr(vLane)}
v_mul_u32_u24 {vr(vT1)}, 20, {vr(vT1)}
v_bfe_u32 {vr(vT2)}, {vr(vLane)}, 4, 1
v_lshl_add_u32 {vr(vT1)}, {vr(vT2)}, 2, {vr(vT1)}
v_add_u32 {vr(vT1)}, {vr(vT1)}, {vr(vT0)}
v_mul_u32_u24 {vr(vT1)}, 160, {vr(vT1)}
v_and_b32 {vr(vT2)}, 3, {vr(vLane)}
v_lshl_add_u32 {vr(vWm0)}, {vr(vT2)}, 3, {vr(vT1)}
v_lshrrev_b32 {vr(vT1)}, 4, {vr(vLane)}
v_mul_u32_u24 {vr(vT1)}, 20, {vr(vT1)}
v_add3_u32 {vr(vT1)}, {vr(vT1)}, {vr(vT0)}, 16
v_mul_u32_u24 {vr(vT1)}, 160, {vr(vT1)}
v_lshl_add_u32 {vr(vWt0)}, {vr(vT2)}, 3, {vr(vT1)}
s_lshl_b32 {sr(sT)}, {sr(sMt3)}, 7
s_lshl_b32 {sr(sT2)}, {sr(sW)}, 4
s_add_u32 {sr(sT)}, {sr(sT)}, {sr(sT2)}
v_and_b32 {vr(vT0)}, 15, {vr(vLane)}
v_add_u32 {vr(vT0)}, {sr(sT)}, {vr(vT0)}
v_mul_u32_u24 {vr(vT0)}, 2560, {vr(vT0)}
v_lshrrev_b32 {vr(vT1)}, 4, {vr(vLane)}
v_lshl_add_u32 {vr(vT0)}, {vr(vT1)}, 3, {vr(vT0)}
s_mul_i32 {sr(sT)}, {sr(sB)}, 1280
s_mul_i32 {sr(sT2)}, {sr(sCg)}, 160
s_add_u32 {sr(sT)}, {sr(sT)}, {sr(sT2)}
v_add_u32 {vr(vOo)}, {sr(sT)}, {vr(vT0)}
v_mov_b32 {vr(vRd)}, {LW_RDY}
s_lshl_b32 {sr(sT2)}, {sr(sMt3)}, 3
s_add_u32 {sr(sT2)}, {sr(sT2)}, {sr(sW)}
s_mul_i32 {sr(sT2)}, {sr(sT2)}, {16*2560}
s_add_u32 {sr(sOo)}, {sr(sT)}, {sr(sT2)}
s_mul_i32 {sr(sT2)}, {sr(sW)}, 3072
v_and_b32 {vr(vT0)}, 15, {vr(vLane)}
v_mul_u32_u24 {vr(vT0)}, 160, {vr(vT0)}
v_lshl_add_u32 {vr(vT0)}, {vr(vT1)}, 3, {vr(vT0)}
v_add_u32 {vr(vOw)}, {sr(sT2)}, {vr(vT0)}
v_lshlrev_b32 {vr(vT0)}, 4, {vr(vLane)}
v_add_u32 {vr(vOr)}, {sr(sT2)}, {vr(vT0)}
v_mul_u32_u24 {vr(vT1)}, 6554, {vr(vLane)}
v_lshrrev_b32 {vr(vT1)}, 16, {vr(vT1)}
v_mul_u32_u24 {vr(vT1)}, {2560-160}, {vr(vT1)}
v_add_u32 {vr(vOs[0])}, {vr(vT0)}, {vr(vT1)}
v_add_u32 {vr(vT2)}, 64, {vr(vLane)}
v_mul_u32_u24 {vr(vT1)}, 6554, {vr(vT2)}
v_lshrrev_b32 {vr(vT1)}, 16, {vr(vT1)}
v_mul_u32_u24 {vr(vT1)}, {2560-160}, {vr(vT1)}
v_lshl_add_u32 {vr(vOs[1])}, {vr(vT2)}, 4, {vr(vT1)}
v_add_u32 {vr(vT2)}, 128, {vr(vLane)}
v_mul_u32_u24 {vr(vT1)}, 6554, {vr(vT2)}
v_lshrrev_b32 {vr(vT1)}, 16, {vr(vT1)}
v_mul_u32_u24 {vr(vT1)}, {2560-160}, {vr(vT1)}
v_lshl_add_u32 {vr(vT1)}, {vr(vT2)}, 4, {vr(vT1)}
v_mov_b32 {vr(vT2)}, {OOB}
v_cndmask_b32_e64 {vr(vOs[2])}, {vr(vT1)}, {vr(vT2)}, {sr(sHi,2)}
s_lshl_b32 {sr(sT)}, {sr(sB)}, 4
s_add_u32 {sr(sT)}, {sr(sT)}, {sr(sMt)}
s_lshl_b32 {sr(sT)}, {sr(sT)}, 6
s_add_u32 {sr(sT)}, {sr(sT)}, {sr(sHg)}
s_lshl_b32 {sr(sT)}, {sr(sT)}, 2
s_add_u32 {sr(sT)}, {sr(sT)}, {F_FLAG2}
v_mov_b32 {vr(vDn)}, {sr(sT)}
v_add_u32 {vr(vWm0)}, {WO_LO}, {vr(vWm0)}
v_add_u32 {vr(vWt0)}, {WO_LO}, {vr(vWt0)}
s_and_b32 {sr(sT3)}, {sr(sCg)}, {opts.get('rot3', 3)}
s_lshl_b32 {sr(sT3)}, {sr(sT3)}, 1
s_mov_b32 {sr(sDone)}, 0''')
    for t in range(5):
        for i in range(4):
            a(f'v_mov_b32 {vr(acc3[t]+i)}, 0')
    tid_ = [0]
    base3 = st.n
    if sset == 3: st.n += 4
    def read_rdy():
        a(f'''ds_read_b64 {vr(vT0,2)}, {vr(vRd)}
s_waitcnt lgkmcnt(0)
v_and_b32 {vr(vT0)}, {vr(vT0)}, {vr(vT1)}
s_nop 0
v_readfirstlane_b32 {sr(sT)}, {vr(vT0)}
s_andn2_b32 {sr(sT)}, {sr(sT)}, {sr(sDone)}''')
    def loads(s_):
        a(f'''s_lshl_b32 {sr(sT2)}, {sr(sT)}, 8
s_or_b32 {sr(sT)}, {sr(sT)}, {sr(sT2)}
s_lshr_b32 {sr(sT)}, {sr(sT)}, {sr(sT3)}
s_ff1_i32_b32 {sr(sT)}, {sr(sT)}
s_add_u32 {sr(sT)}, {sr(sT)}, {sr(sT3)}
s_and_b32 {sr(sT)}, {sr(sT)}, 7
s_bitset1_b32 {sr(sDone)}, {sr(sT)}
s_mul_i32 {sr(sT2)}, {sr(sT)}, 10240
s_add_u32 {sr(sT2)}, {sr(sT2)}, {sr(sA)}
s_cmp_eq_u32 {sr(sT)}, 6
s_mul_i32 {sr(sT)}, {sr(sT)}, 12800
s_cselect_b32 {sr(sT)}, {QST - WO_LO}, {sr(sT)}''')
        for p in range(4):
            a(f'buffer_load_dwordx4 {vr(A[s_][p],4)}, {vr(vAo)}, {sr(SWS,4)}, {sr(sT2)} offen{SLD}')
            if p == 0:
                a(f'buffer_load_dwordx2 {vr(A[s_][4],2)}, {vr(vAt)}, {sr(SWS,4)}, {sr(sT2)} offen{SLD}')
            if p == 2:
                a(f'buffer_load_dwordx2 {vr(A[s_][4]+2,2)}, {vr(vAt)}, {sr(SWS,4)}, {sr(sT2)} offen{SLD}')
            if p < 3:
                a(f's_add_u32 {sr(sT2)}, {sr(sT2)}, 5120')
        a(f'v_add_u32 {vr(vWm[s_])}, {sr(sT)}, {vr(vWm0)}')
        a(f'v_add_u32 {vr(vWt[s_])}, {sr(sT)}, {vr(vWt0)}')
        if sset == 3 and st.on:
            a(f's_memtime s[{62+2*(base3+s_)}:{63+2*(base3+s_)}]\ns_waitcnt lgkmcnt(0)')
    def take_group(s_):
        n = tid_[0]; tid_[0] += 1
        a.label(f'{name}_tg{n}')
        read_rdy()
        a(f'''s_cbranch_scc1 {name}_tgd{n}
s_sleep 1
s_branch {name}_tg{n}''')
        a.label(f'{name}_tgd{n}')
        loads(s_)
    a('s_waitcnt vmcnt(0)')
    a(f'''s_mov_b64 exec, 1
v_mov_b32 {vr(vT0)}, 1
ds_add_rtn_u32 {vr(vT0)}, {vr(vRd)}, {vr(vT0)} offset:8
v_mov_b32 {vr(vT1)}, {sr(sTag)}
v_mov_b32 {vr(vT2)}, 0xff
s_waitcnt lgkmcnt(0)
v_readfirstlane_b32 {sr(sT)}, {vr(vT0)}
s_cmp_eq_u32 {sr(sT)}, 7
s_cbranch_scc0 {name}_nl
buffer_store_dword {vr(vT1)}, {vr(vDn)}, {sr(SWS,4)}, 0 offen{SC}
ds_write_b32 {vr(vRd)}, {vr(vT2)} offset:4''')
    a.label(f'{name}_nl')
    a('s_mov_b64 exec, -1')
    if sset == 3: st()
    st6()
    def rdW3(fs, j, p, t):
        out = []
        for rd in range(2):
            if p < 4:
                base, off = vWm[j], (20*(2*p) + 8*rd)*160 + t*32
            else:
                base, off = vWt[j], (20*(4*rd))*160 + t*32
            out.append(f'ds_read_b64_tr_b16 {vr(Wg[fs][t]+2*rd,2)}, {vr(base)} offset:{off}')
        return out
    if opts.get('evt', 1):
        st0()
        sJ = sG
        a(f's_mov_b32 {sr(sI)}, 0')
        a(f's_mov_b32 {sr(sJ)}, 0')
        a.label(f'{name}_ev')
        a(f's_cmp_lt_u32 {sr(sI)}, 4')
        a(f's_cbranch_scc0 {name}_evc')
        read_rdy()
        a(f's_cbranch_scc0 {name}_evn')
        for i in range(4):
            if i < 3:
                a(f's_cmp_eq_u32 {sr(sI)}, {i}')
                a(f's_cbranch_scc0 {name}_evt{i}')
            loads(i)
            a(f's_mov_b32 {sr(sI)}, {i+1}')
            a(f's_branch {name}_ev')
            a.label(f'{name}_evt{i}')
        a.label(f'{name}_evn')
        a(f'''s_getreg_b32 {sr(sT)}, hwreg(HW_REG_IB_STS)
s_bfe_u32 {sr(sT2)}, {sr(sT)}, 0x20016
s_lshl_b32 {sr(sT2)}, {sr(sT2)}, 4
s_and_b32 {sr(sT)}, {sr(sT)}, 15
s_or_b32 {sr(sT)}, {sr(sT)}, {sr(sT2)}
s_add_u32 {sr(sT)}, {sr(sT)}, 6
s_sub_u32 {sr(sT2)}, {sr(sI)}, {sr(sJ)}
s_mul_i32 {sr(sT2)}, {sr(sT2)}, 6
s_cmp_le_u32 {sr(sT)}, {sr(sT2)}
s_cbranch_scc1 {name}_evc
{'s_sleep 1' if opts.get('sl2', 0) else 's_nop 0'}
s_branch {name}_ev''')
        a.label(f'{name}_evc')
        for j in range(4):
            if j < 3:
                a(f's_cmp_eq_u32 {sr(sJ)}, {j}')
                a(f's_cbranch_scc0 {name}_evk{j}')
            for p in range(2):
                for t in range(5):
                    for r in rdW3(p, j, p, t): a(r)
            for k in range(4, j + 1, -1):
                a(f's_cmp_eq_u32 {sr(sI)}, {k}')
                a(f's_cbranch_scc0 {name}_evw{j}_{k}')
                a(f's_waitcnt vmcnt({6*(k-j-1)})')
                a(f's_branch {name}_evx{j}')
                a.label(f'{name}_evw{j}_{k}')
            a('s_waitcnt vmcnt(0)')
            a.label(f'{name}_evx{j}')
            if sset == 3 and j in (0, 3): st()
            if j in (0, 3): st6()
            for p in range(5):
                fs = p % 2
                a(f's_waitcnt lgkmcnt({10 if p < 4 else 0})')
                for t in range(5):
                    a(f'v_mfma_f32_16x16x32_bf16 {vr(acc3[t],4)}, {vr(Wg[fs][t],4)}, {vr(A[j][p],4)}, {vr(acc3[t],4)}')
                    if p + 2 < 5:
                        for r in rdW3(fs, j, p + 2, t): a(r)
            if j < 3:
                a(f's_mov_b32 {sr(sJ)}, {j+1}')
                a(f's_branch {name}_ev')
                a.label(f'{name}_evk{j}')
    else:
        st0()
        steps = [(j, p) for j in range(4) for p in range(5)]
        for j in range(4):
            take_group(j)
        for n in range(2):
            for t in range(5):
                for r in rdW3(n, *steps[n], t): a(r)
        left = {0: 5, 1: 3, 2: 2, 3: 0, 4: 0}
        for n, (j, p) in enumerate(steps):
            fs = n % 2
            a(f's_waitcnt vmcnt({6*(3-j) + left[p]}) lgkmcnt({10 if n < 19 else 0})')
            if sset == 3 and n in (0, 18): st()
            for t in range(5):
                a(f'v_mfma_f32_16x16x32_bf16 {vr(acc3[t],4)}, {vr(Wg[fs][t],4)}, {vr(A[j][p],4)}, {vr(acc3[t],4)}')
                if n + 2 < 20:
                    for r in rdW3(fs, *steps[n+2], t): a(r)

    a('s_nop 3')
    st0()
    if sset == 3: st()
    OUTF = {0: '', 1: ' nt', 2: ' sc1', 3: ' sc0 sc1', 4: ' sc1 nt', 5: ' sc0 sc1 nt'}[opts.get('outf', 2)]
    if opts.get('ow', 1):
        for t in range(5):
            a(f'v_cvt_pk_bf16_f32 {vr(acc3[t])}, {vr(acc3[t])}, {vr(acc3[t]+1)}')
            a(f'v_cvt_pk_bf16_f32 {vr(acc3[t]+1)}, {vr(acc3[t]+2)}, {vr(acc3[t]+3)}')
            a(f'ds_write_b64 {vr(vOw)}, {vr(acc3[t],2)} offset:{t*32}')
        a('s_waitcnt lgkmcnt(0)')
        for k in range(3):
            a(f'ds_read_b128 {vr(Wg[0][k],4)}, {vr(vOr)} offset:{k*1024}')
        for k in range(3):
            a(f's_waitcnt lgkmcnt({2-k})')
            a(f'buffer_store_dwordx4 {vr(Wg[0][k],4)}, {vr(vOs[k])}, {sr(SOUT,4)}, {sr(sOo)} offen{OUTF}')
    else:
        for t in range(5):
            a(f'v_cvt_pk_bf16_f32 {vr(acc3[t])}, {vr(acc3[t])}, {vr(acc3[t]+1)}')
            a(f'v_cvt_pk_bf16_f32 {vr(acc3[t]+1)}, {vr(acc3[t]+2)}, {vr(acc3[t]+3)}')
            a(f'buffer_store_dwordx2 {vr(acc3[t],2)}, {vr(vOo)}, {sr(SOUT,4)}, 0 offen offset:{t*32}{OUTF}')

    if sset == 5:
        st(); st()
    if dbgt:
        a('s_waitcnt vmcnt(0)')
        rts(5)
        a('s_mov_b64 exec, 1')
        a(f's_not_b32 s62, s62')
        for k in range(6):
            a(f'v_mov_b32 {vr(vT0)}, {4+4*k}')
            a(f'v_mov_b32 {vr(vT1)}, s{62+2*k}')
            a(f'buffer_atomic_umax {vr(vT1)}, {vr(vT0)}, {sr(SDBG,4)}, 0 offen')
            a('s_nop 1')
    if st.on:
        a('s_waitcnt vmcnt(0)')
    st(); st.rt(); st.flush(sW)
    n_total = st.n
    a.label(f'{name}_done')
    a('s_endpgm')

    if nobar:
        for rep in range(unroll):
            a.label(f'{name}_spin{rep}')
            a(f'''ds_read_b64 {vr(vPw,2)}, {vr(vPa)}
s_waitcnt lgkmcnt(0)
v_readfirstlane_b32 {sr(sT)}, {vr(vPw)}''')
            if nobar == 2:
                a(f'''v_readfirstlane_b32 {sr(sT2)}, {vr(vPw+1)}
s_add_u32 {sr(sT2)}, {sr(sT2)}, {1 + opts.get("slack", 0)}
s_min_u32 {sr(sT)}, {sr(sT)}, {sr(sT2)}''')
            a(f'''s_cmp_gt_u32 {sr(sT)}, {sr(sT3)}
s_cbranch_scc0 {name}_spin{rep}
s_branch {name}_spun{rep}''')
    if g1s:
        a.label(f'{name}_g1w')
        a(f'''v_mov_b32 {vr(vT0)}, {LW_G1}
ds_read_b32 {vr(vT0)}, {vr(vT0)}
s_waitcnt lgkmcnt(0)
v_readfirstlane_b32 {sr(sT)}, {vr(vT0)}
s_cmp_eq_u32 {sr(sT)}, 0
s_cbranch_scc1 {name}_g1w
s_branch {name}_g1r''')
    for k, force in enumerate(sigpts):
        a.label(f'{name}_sg{k}')
        if not force:
            a(f'''s_getreg_b32 {sr(sT)}, hwreg(HW_REG_IB_STS)
s_and_b32 {sr(sT)}, {sr(sT)}, 0xc0000f
s_cbranch_scc1 {name}_sgr{k}''')
        sig_code(f'{name}_sgn{k}', 4)
        a(f's_mov_b32 {sr(sSig)}, 0')
        a(f's_branch {name}_sgr{k}')
    a.label(f'{name}_fallback')
    M = [vT4, vT5]
    vVo = vPa
    a(f'''v_cndmask_b32_e64 {vr(Q2[0])}, {vr(Q2[0])}, 0, {sr(sHi,2)}
v_cndmask_b32_e64 {vr(Q2[0]+1)}, {vr(Q2[0]+1)}, 0, {sr(sHi,2)}
v_cndmask_b32_e64 {vr(Q2[1])}, {vr(Q2[1])}, 0, {sr(sHi,2)}
v_cndmask_b32_e64 {vr(Q2[1]+1)}, {vr(Q2[1]+1)}, 0, {sr(sHi,2)}
v_mov_b32 {vr(M[0])}, 0xff800000
v_mov_b32 {vr(M[1])}, 0xff800000
v_mov_b32 {vr(vT1)}, {OOB}
s_lshr_b32 {sr(sT)}, {sr(sW)}, 1
s_mul_i32 {sr(sT)}, {sr(sT)}, 10240
v_subrev_u32 {vr(vT0)}, {sr(sT)}, {vr(vbV)}
v_cmp_eq_u32 vcc, 1, {vr(vmV)}
s_mov_b32 {sr(sT)}, {sr(sKV)}
s_mov_b32 {sr(sG)}, 0
v_cndmask_b32 {vr(vVo)}, {vr(vT1)}, {vr(vT0)}, vcc
s_mov_b64 {sr(sM2,2)}, vcc
s_waitcnt vmcnt(0)''')
    a.label(f'{name}_fb1')
    a(f'''buffer_load_dwordx4 {vr(K1[0],4)}, {vr(vQo)}, {sr(SWS,4)}, {sr(sT)} offen{SC}
buffer_load_dwordx2 {vr(K2[0],2)}, {vr(vQo2)}, {sr(SWS,4)}, {sr(sT)} offen{SC}
s_waitcnt vmcnt(0)''')
    qk16(0, 0); qk16(1, 0); qk8(0, 0); qk8(1, 0)
    a('s_nop 15')
    for t in range(2):
        rowmax(t, vT0)
        a(f'v_max_f32 {vr(M[t])}, {vr(M[t])}, {vr(vT0)}')
    a(f'''s_add_u32 {sr(sT)}, {sr(sT)}, 2560
s_add_u32 {sr(sG)}, {sr(sG)}, 1
s_cmp_lt_u32 {sr(sG)}, 64
s_cbranch_scc1 {name}_fb1''')
    for t in range(2):
        crosshalf(M[t], vT1)
        a(f'v_max_f32 {vr(M[t])}, {vr(M[t])}, {vr(vT1)}')
        for i in range(16):
            a(f'v_mov_b32 {vr(O[t]+i)}, 0')
    a(f's_mov_b32 {sr(sT)}, {sr(sKV)}')
    a(f's_mov_b32 {sr(sG)}, 0')
    a(f'v_mov_b32 {vr(vT1)}, 0x3f803f80')
    a.label(f'{name}_fb2')
    a(f'''buffer_load_dwordx4 {vr(K1[0],4)}, {vr(vQo)}, {sr(SWS,4)}, {sr(sT)} offen{SC}
buffer_load_dwordx2 {vr(K2[0],2)}, {vr(vQo2)}, {sr(SWS,4)}, {sr(sT)} offen{SC}
buffer_load_dwordx4 {vr(V0[0],4)}, {vr(vVo)}, {sr(SWS,4)}, {sr(sT)} offen{SC}
buffer_load_dwordx4 {vr(V1[0],4)}, {vr(vVo)}, {sr(SWS,4)}, {sr(sT)} offen offset:640{SC}
s_waitcnt vmcnt(0)''')
    qk16(0, 0); qk16(1, 0); qk8(0, 0); qk8(1, 0)
    for i in range(4):
        a(f'v_cndmask_b32_e64 {vr(V0[0]+i)}, {vr(vT1)}, {vr(V0[0]+i)}, {sr(sM2,2)}')
        a(f'v_cndmask_b32_e64 {vr(V1[0]+i)}, {vr(vT1)}, {vr(V1[0]+i)}, {sr(sM2,2)}')
    a('s_nop 15')
    for t in range(2):
        for i in range(16):
            a(f'v_sub_f32 {vr(S[t]+i)}, {vr(S[t]+i)}, {vr(M[t])}')
        for i in range(16):
            ex(t, i)
    a('s_nop 1')
    for t in range(2):
        pv(t, 0, 0); pv(t, 0, 1)
    a(f'''s_add_u32 {sr(sT)}, {sr(sT)}, 2560
s_add_u32 {sr(sG)}, {sr(sG)}, 1
s_cmp_lt_u32 {sr(sG)}, 64
s_cbranch_scc1 {name}_fb2''')
    a('s_nop 15')
    a(f's_mov_b32 {sr(sI)}, 1')
    a(f's_branch {name}_store')

    a.label(f'{name}_helper')
    st.n = n_common
    V = VAlloc(VBASE)
    vEp = V(); vL16 = V(); vFl = V()
    VH = V.n
    a('s_setprio 3')
    a(SRDS)
    if opts.get('cpf', 0):
        a(f'''s_getpc_b64 {sr(sM,2)}
{name}_pc:
s_sub_u32 {sr(sM)}, {sr(sM)}, {name}_pc - {name}
s_subb_u32 {sr(sM+1)}, {sr(sM+1)}, 0
s_lshr_b32 {sr(sT)}, s2, 3
v_lshlrev_b32 {vr(vT0)}, 5, {vr(vLane)}
v_add_u32 {vr(vT0)}, {sr(sT)}, {vr(vT0)}
v_lshlrev_b32 {vr(vT0)}, 7, {vr(vT0)}
v_min_u32 {vr(vT0)}, {name}_end - {name} - 4, {vr(vT0)}
s_mov_b64 exec, 0xfff
global_load_dword {vr(vFl)}, {vr(vT0)}, {sr(sM,2)}
s_mov_b64 exec, -1''')
    elate = opts.get('elate', 0)
    if not elate:
        a(f'v_mov_b32 {vr(vT0)}, {F_EPOCH}')
        a(f'buffer_load_dword {vr(vEp)}, {vr(vT0)}, {sr(SWS,4)}, 0 offen{SC}')
    stl = opts.get('stl', 0)
    if stl:
        ns = max(ns, 72)
        if stl & 1:
            a(f's_mul_i32 {sr(sT)}, {sr(sMt3)}, {128*2560}')
            a(f's_load_dword s64, {sr(SOUT,2)}, {sr(sT)}')
            a(f's_add_u32 {sr(sT)}, {sr(sT)}, {128*2560-4}')
            a(f's_load_dword s65, {sr(SOUT,2)}, {sr(sT)}')
        if stl & 2:
            a(f's_load_dword s66, {sr(SWO,2)}, 0')
        if stl & 4:
            a(f's_load_dword s67, {sr(SWS,2)}, {sr(sKV)}')
            a(f's_add_u32 {sr(sT)}, {sr(sKV)}, {4*KV_HEAD-4}')
            a(f's_load_dword s68, {sr(SWS,2)}, {sr(sT)}')
        if stl & 8:
            for k, m in ((69, sMt), (70, sMt3)):
                a(f's_lshl_b32 {sr(sT)}, {sr(sB)}, 4')
                a(f's_add_u32 {sr(sT)}, {sr(sT)}, {sr(m)}')
                a(f's_mul_i32 {sr(sT)}, {sr(sT)}, {2*32*2560}')
                a(f's_add_u32 {sr(sT)}, {sr(sT)}, {F_WS_O}')
                a(f's_load_dword s{k}, {sr(SWS,2)}, {sr(sT)}')
    tlb = opts.get('tlb', 0)
    if tlb & 1:
        a(f'''v_lshlrev_b32 {vr(vT1)}, 18, {vr(vLane)}
buffer_load_dword {vr(vFl)}, {vr(vT1)}, {sr(SWS,4)}, 0 offen''')
    if tlb & 2:
        a(f'''v_lshlrev_b32 {vr(vT1)}, 18, {vr(vLane)}
buffer_load_dword {vr(vT2)}, {vr(vT1)}, {sr(SOUT,4)}, 0 offen
buffer_load_dword {vr(vT3)}, {vr(vT1)}, {sr(SWO,4)}, 0 offen''')
    if tlb & 4:
        a(f'''v_lshlrev_b32 {vr(vT1)}, 21, {vr(vLane)}
buffer_load_dword {vr(vFl)}, {vr(vT1)}, {sr(SWS,4)}, 0 offen
buffer_load_dword {vr(vT4)}, {vr(vT1)}, {sr(SOUT,4)}, 0 offen
buffer_load_dword {vr(vT5)}, {vr(vT1)}, {sr(SWO,4)}, 0 offen''')
    a(f'v_lshlrev_b32 {vr(vL16)}, 4, {vr(vLane)}')
    vP = V(); vC8 = V(8); vPwa = V(); vFu = V(); vPo1 = V(); vPo2 = V(); vPo = V(); vLw = V()
    vW3 = [V() for _ in range(5)]
    vPf = [V() for _ in range(4)]
    vHX = [V() for _ in range(4)]
    vHW = [V() for _ in range(15)]
    vIx = V(); vIw = V(); vSx = V(); vSw = V(); vJ = [V() for _ in range(6)]
    done_alloc(V)
    if stag:
        a(f'''s_lshr_b32 {sr(sT)}, s2, 3
s_and_b32 {sr(sT2)}, s2, 1
s_lshl_b32 {sr(sT2)}, {sr(sT2)}, 5
s_add_u32 {sr(sT2)}, {sr(sT2)}, {sr(sT)}
s_lshl_b32 {sr(sT2)}, {sr(sT2)}, 5
v_and_b32 {vr(vT0)}, 31, {vr(vLane)}
v_add_u32 {vr(vT2)}, {sr(sT2)}, {vr(vT0)}
v_mul_u32_u24 {vr(vT2)}, 1280, {vr(vT2)}
v_lshrrev_b32 {vr(vT1)}, 5, {vr(vLane)}
v_lshl_add_u32 {vr(vIx)}, {vr(vT1)}, 7, {vr(vT2)}
buffer_load_dword {vr(vJ[0])}, {vr(vIx)}, {sr(SX,4)}, 0 offen
v_cmp_le_u32 vcc, 15, {vr(vT0)}
s_lshl_b32 {sr(sT)}, {sr(sT)}, 1
s_bfe_u32 {sr(sT2)}, s2, 0x10001
v_cndmask_b32_e64 {vr(vT2)}, 0, 1, vcc
v_mul_u32_u24 {vr(vT3)}, 15, {vr(vT2)}
v_sub_u32 {vr(vT3)}, {vr(vT0)}, {vr(vT3)}
v_lshl_add_u32 {vr(vT2)}, {vr(vT1)}, 6, {vr(vT2)}
v_add_u32 {vr(vT2)}, {sr(sT)}, {vr(vT2)}
v_mul_u32_u24 {vr(vT2)}, 3840, {vr(vT2)}
v_mul_u32_u24 {vr(vT4)}, 52, {vr(vT3)}
v_lshrrev_b32 {vr(vT4)}, 8, {vr(vT4)}
v_mul_u32_u24 {vr(vT4)}, {1280-640}, {vr(vT4)}
v_lshl_add_u32 {vr(vT4)}, {vr(vT3)}, 7, {vr(vT4)}
s_mul_i32 {sr(sT2)}, {sr(sT2)}, 640
v_add3_u32 {vr(vIw)}, {vr(vT2)}, {vr(vT4)}, {sr(sT2)}
v_cmp_le_u32 vcc, 30, {vr(vT0)}
v_mov_b32 {vr(vT2)}, {OOB}
s_mov_b32 {sr(sT)}, {128*3840}
v_cndmask_b32 {vr(vIw)}, {vr(vIw)}, {vr(vT2)}, vcc
buffer_load_dword {vr(vJ[1])}, {vr(vIw)}, {sr(SWQ,4)}, 0 offen''')
        if stag >= 2:
            a(f'buffer_load_dword {vr(vJ[2])}, {vr(vIx)}, {sr(SX,4)}, 0 offen offset:256')
            a(f'buffer_load_dword {vr(vJ[3])}, {vr(vIw)}, {sr(SWQ,4)}, {sr(sT)} offen')
        a(f'''s_bfe_u32 {sr(sT)}, s2, 0x30003
s_and_b32 {sr(sI)}, s2, 1
s_lshl_b32 {sr(sI)}, {sr(sI)}, 3
s_add_u32 {sr(sI)}, {sr(sI)}, {sr(sT)}
s_lshl_b32 {sr(sI)}, {sr(sI)}, 7
v_add_u32 {vr(vT0)}, {sr(sI)}, {vr(vLane)}
v_mul_u32_u24 {vr(vSx)}, 1280, {vr(vT0)}
v_mul_u32_u24 {vr(vT1)}, 4370, {vr(vLane)}
v_lshrrev_b32 {vr(vT1)}, 16, {vr(vT1)}
v_mul_u32_u24 {vr(vT2)}, 15, {vr(vT1)}
v_sub_u32 {vr(vT3)}, {vr(vLane)}, {vr(vT2)}
s_lshl_b32 {sr(sT)}, {sr(sT)}, 3
v_add_u32 {vr(vT1)}, {sr(sT)}, {vr(vT1)}
v_mul_u32_u24 {vr(vT1)}, 3840, {vr(vT1)}
v_mul_u32_u24 {vr(vT4)}, 52, {vr(vT3)}
v_lshrrev_b32 {vr(vT4)}, 8, {vr(vT4)}
v_mul_u32_u24 {vr(vT4)}, {1280-640}, {vr(vT4)}
v_lshl_add_u32 {vr(vT4)}, {vr(vT3)}, 7, {vr(vT4)}
v_add3_u32 {vr(vSw)}, {vr(vT1)}, {vr(vT4)}, {sr(sT2)}
v_cmp_le_u32 vcc, 60, {vr(vLane)}
v_mov_b32 {vr(vT2)}, {OOB}
s_lshr_b32 {sr(sM0a)}, s2, 6
v_cndmask_b32 {vr(vSw)}, {vr(vSw)}, {vr(vT2)}, vcc''')
    sgid = [0]
    def stag_pf():
        if not stag: return
        n = sgid[0]; sgid[0] += 1
        AH = opts.get('ahead', 2)
        a(f'''s_add_u32 {sr(sT)}, {sr(sKK)}, {1 + AH}
s_and_b32 {sr(sT2)}, {sr(sT)}, 3
s_cmp_eq_u32 {sr(sT2)}, {sr(sM0a)}
s_cselect_b32 {sr(sT2)}, {sr(sT)}, 99
s_cmp_lt_u32 {sr(sT2)}, {2*stag}
s_cselect_b32 {sr(sT2)}, 99, {sr(sT2)}
s_cmp_lt_u32 {sr(sT2)}, 10
s_cbranch_scc0 {name}_sp{n}
s_lshl_b32 {sr(sT2)}, {sr(sT)}, 7
buffer_load_dword {vr(vJ[0])}, {vr(vSx)}, {sr(SX,4)}, {sr(sT2)} offen
s_add_u32 {sr(sT2)}, {sr(sT2)}, {64*1280}
buffer_load_dword {vr(vJ[1])}, {vr(vSx)}, {sr(SX,4)}, {sr(sT2)} offen
s_mul_i32 {sr(sT2)}, {sr(sT)}, {64*3840}
buffer_load_dword {vr(vJ[2])}, {vr(vSw)}, {sr(SWQ,4)}, {sr(sT2)} offen
s_add_u32 {sr(sT2)}, {sr(sT2)}, {4*3840}
buffer_load_dword {vr(vJ[3])}, {vr(vSw)}, {sr(SWQ,4)}, {sr(sT2)} offen''')
        a.label(f'{name}_sp{n}')
    a(f'''{XROW}
v_lshrrev_b32 {vr(vT0)}, 3, {vr(vLane)}
v_add_u32 {vr(vT0)}, {sr(sT)}, {vr(vT0)}
v_mul_u32_u24 {vr(vT0)}, 1280, {vr(vT0)}
v_lshrrev_b32 {vr(vT1)}, 4, {vr(vLane)}
v_and_b32 {vr(vT3)}, 7, {vr(vLane)}
v_xor_b32 {vr(vT2)}, {vr(vT1)}, {vr(vT3)}
v_lshl_add_u32 {vr(vHX[0])}, {vr(vT2)}, 4, {vr(vT0)}
v_xor_b32 {vr(vT2)}, 64, {vr(vHX[0])}
v_add_u32 {vr(vHX[1])}, {10240-1024}, {vr(vT2)}
v_add_u32 {vr(vHX[2])}, {2*(10240-1024)}, {vr(vHX[0])}
v_add_u32 {vr(vHX[3])}, {3*(10240-1024)}, {vr(vT2)}''')
    for pi in range(15):
        a(f's_sub_u32 {sr(sT)}, {sr(sT3)}, {(pi%4)*1024}')
        w_pattern(vHW[pi], f'v_add_u32 {vr(vT0)}, {64*pi}, {vr(vLane)}', sr(sT))
    def next_k():
        a(f'''s_add_u32 {sr(sKK)}, {sr(sKK)}, 1
s_cmp_eq_u32 {sr(sKK)}, 10
s_cselect_b32 {sr(sKK)}, 0, {sr(sKK)}
s_lshl_b32 {sr(sXo)}, {sr(sKK)}, 7
s_mul_i32 {sr(sWo)}, {sr(sKK)}, {64*3840}''')
    def issue_x():
        for jj in range(8 if opts.get('hack64') else 16):
            if jj % 4 == 0:
                a(f's_add_u32 m0, {sr(sSlot)}, {jj*1024}')
                a(f's_add_u32 {sr(sT)}, {sr(sXo)}, {jj*10240}')
            a(f'buffer_load_dwordx4 {vr(vHX[jj%4])}, {sr(SX,4)}, {sr(sT)} offen offset:{(jj%4)*1024} lds')
    def issue_w():
        for half in range(2):
            for pi in range(15):
                if pi % 4 == 0:
                    a(f's_add_u32 m0, {sr(sSlot)}, {XSZ + half*15360 + pi*1024}')
                    a(f's_add_u32 {sr(sT)}, {sr(sWo)}, {half*32*3840}')
                a(f'buffer_load_dwordx4 {vr(vHW[pi])}, {sr(SWQ,4)}, {sr(sT)} offen offset:{(pi%4)*1024} lds')
    def issue_stage():
        stag_pf(); next_k(); issue_x(); issue_w()
        a(f'''s_add_u32 {sr(sSlot)}, {sr(sSlot)}, {STG}
s_cmp_ge_u32 {sr(sSlot)}, {3*STG}
s_cselect_b32 {sr(sSlot)}, 0, {sr(sSlot)}''')
    pfw = opts.get('pfw', 1) and not stag and not opts.get('rot0')
    if pfw:
        a(f'''s_lshr_b32 {sr(sT)}, s2, 6
s_mul_i32 {sr(sT)}, {sr(sT)}, 3
s_add_u32 {sr(sT)}, {sr(sT)}, 8
s_bfe_u32 {sr(sT2)}, s2, 0x30003
s_lshr_b32 {sr(sI)}, {sr(sT2)}, 2
s_add_u32 {sr(sT)}, {sr(sT)}, {sr(sI)}
s_cmp_ge_u32 {sr(sT)}, 10
s_cselect_b32 {sr(sI)}, 10, 0
s_sub_u32 {sr(sT)}, {sr(sT)}, {sr(sI)}
s_lshl_b32 {sr(sT)}, {sr(sT)}, 6
s_and_b32 {sr(sT2)}, {sr(sT2)}, 3
s_lshl_b32 {sr(sT2)}, {sr(sT2)}, 4
s_add_u32 {sr(sT)}, {sr(sT)}, {sr(sT2)}
s_mul_i32 {sr(sT)}, {sr(sT)}, 3840
s_add_u32 {sr(sRdy)}, {sr(sT)}, {sr(sT3)}
v_lshrrev_b32 {vr(vT0)}, 3, {vr(vLane)}
v_mul_u32_u24 {vr(vT0)}, 3840, {vr(vT0)}
v_bfe_u32 {vr(vT1)}, {vr(vLane)}, 1, 2
v_mul_u32_u24 {vr(vT2)}, 1280, {vr(vT1)}
v_and_b32 {vr(vT3)}, 1, {vr(vLane)}
v_mul_u32_u24 {vr(vT3)}, 156, {vr(vT3)}
v_add3_u32 {vr(vT0)}, {vr(vT0)}, {vr(vT2)}, {vr(vT3)}
v_cmp_eq_u32 vcc, 3, {vr(vT1)}
v_mov_b32 {vr(vT2)}, {OOB}
s_nop 0
v_cndmask_b32 {vr(vPo)}, {vr(vT0)}, {vr(vT2)}, vcc''')
    a(f's_mov_b32 {sr(sSlot)}, {STG}')
    st1()
    a('s_barrier')
    st1()
    if elate:
        a(f'v_mov_b32 {vr(vT0)}, {F_EPOCH}')
        a(f'buffer_load_dword {vr(vEp)}, {vr(vT0)}, {sr(SWS,4)}, 0 offen{SC}')
    if pfw:
        a(f'buffer_load_dword {vr(vPf[0])}, {vr(vPo)}, {sr(SWQ,4)}, {sr(sRdy)} offen')
        a(f's_add_u32 {sr(sRdy)}, {sr(sRdy)}, {8*3840}')
        a(f'buffer_load_dword {vr(vPf[1])}, {vr(vPo)}, {sr(SWQ,4)}, {sr(sRdy)} offen')
    if opts.get('xfirst', 0):
        next_k(); issue_x()
        a(f's_mov_b32 {sr(sSrc)}, {sr(sWo)}')
        a(f's_mov_b32 {sr(sSlot)}, {2*STG}')
        next_k(); issue_x()
        st1()
        if opts.get('xfirst') == 1: a('s_barrier')
        a(f's_mov_b32 {sr(sSlot)}, {STG}')
        a(f's_mov_b32 {sr(sI)}, {sr(sWo)}')
        a(f's_mov_b32 {sr(sWo)}, {sr(sSrc)}')
        issue_w()
        if opts.get('xfirst') == 2: a('s_barrier')
        a(f's_mov_b32 {sr(sSlot)}, {2*STG}')
        a(f's_mov_b32 {sr(sWo)}, {sr(sI)}')
        issue_w()
        a(f's_mov_b32 {sr(sSlot)}, 0')
        a('s_waitcnt vmcnt(30)')
        a('s_barrier')
        st1()
        a(f's_mov_b32 {sr(sI)}, 1')
    else:
        issue_stage()
        st1()
        a('s_barrier')
        st1()
        a(f's_mov_b32 {sr(sI)}, 0')
    a.label(f'{name}_hg')
    issue_stage()
    a(f's_waitcnt vmcnt({38 if opts.get("hack64") else 46})')
    a('s_barrier')
    a(f's_add_u32 {sr(sI)}, {sr(sI)}, 1')
    a(f's_cmp_lt_u32 {sr(sI)}, 8')
    a(f's_cbranch_scc1 {name}_hg')
    st1()
    a(f'''s_lshl_b32 {sr(sT)}, {sr(sB)}, 3
s_add_u32 {sr(sT)}, {sr(sT)}, {sr(sHg)}
s_lshl_b32 {sr(sT)}, {sr(sT)}, 8
s_add_u32 {sr(sT)}, {sr(sT)}, {F_FLAG1}
v_lshl_add_u32 {vr(vT0)}, {vr(vLane)}, 2, {sr(sT)}
v_cmp_gt_u32 vcc, 16, {vr(vLane)}
v_mov_b32 {vr(vT1)}, {OOB}
s_lshl_b32 {sr(sT)}, {sr(sB)}, 4
v_cndmask_b32 {vr(vPo1)}, {vr(vT1)}, {vr(vT0)}, vcc
s_add_u32 {sr(sT)}, {sr(sT)}, {sr(sMt3)}
s_lshl_b32 {sr(sT)}, {sr(sT)}, 8
s_add_u32 {sr(sT)}, {sr(sT)}, {F_FLAG2}
v_lshl_add_u32 {vr(vT0)}, {vr(vLane)}, 2, {sr(sT)}
v_cmp_gt_u32 vcc, 8, {vr(vLane)}
v_mov_b32 {vr(vLw)}, {LW_RDY}
s_mul_i32 {sr(sT3)}, {sr(sCg)}, 160
v_cndmask_b32 {vr(vPo2)}, {vr(vT1)}, {vr(vT0)}, vcc''')
    for r in range(5):
        a(f'''v_add_u32 {vr(vT0)}, {64*r}, {vr(vLane)}
v_mul_u32_u24 {vr(vT1)}, 6554, {vr(vT0)}
v_lshrrev_b32 {vr(vT1)}, 16, {vr(vT1)}
v_mul_u32_u24 {vr(vT1)}, {1280-160}, {vr(vT1)}
v_lshl_add_u32 {vr(vT0)}, {vr(vT0)}, 4, {vr(vT1)}
v_add_u32 {vr(vT0)}, {sr(sT3)}, {vr(vT0)}
v_subrev_u32 {vr(vW3[r])}, {(r%4)*1024}, {vr(vT0)}''')
    a(f'''s_lshr_b32 {sr(sT)}, s2, 3
s_mul_i32 {sr(sT)}, {sr(sT)}, {20*1280}
v_lshl_add_u32 {vr(vT0)}, {vr(vLane)}, 7, {sr(sT)}
v_cmp_gt_u32 vcc, 50, {vr(vLane)}
v_mov_b32 {vr(vT1)}, {OOB}
s_mov_b32 {sr(sRdy)}, 0
v_cndmask_b32 {vr(vPo)}, {vr(vT1)}, {vr(vT0)}, vcc
v_readfirstlane_b32 {sr(sTag)}, {vr(vEp)}
s_lshl_b32 {sr(sDone)}, 1, {sr(sMt)}
s_waitcnt vmcnt({15 if hsplit else 0})
s_add_u32 {sr(sTag)}, {sr(sTag)}, {TAGK}
s_barrier''')
    if early:
        a(f'buffer_load_dword {vr(vP)}, {vr(vPo1)}, {sr(SWS,4)}, 0 offen{SC}')
    a(f'''v_bfe_u32 {vr(vT2)}, {vr(vLane)}, 1, 2
v_mul_u32_u24 {vr(vT2)}, 2560, {vr(vT2)}
v_and_b32 {vr(vT3)}, 1, {vr(vLane)}
v_mul_u32_u24 {vr(vT3)}, 640, {vr(vT3)}
v_add_u32 {vr(vT2)}, {vr(vT2)}, {vr(vT3)}
v_add_u32 {vr(vT2)}, {ONES}, {vr(vT2)}
v_mov_b32 {vr(vC8)}, 0x3f803f80
v_mov_b32 {vr(vC8+1)}, 0x3f803f80
v_mov_b32 {vr(vC8+2)}, 0x3f803f80
v_mov_b32 {vr(vC8+3)}, 0x3f803f80
v_mov_b32 {vr(vC8+4)}, 0
v_mov_b32 {vr(vC8+5)}, 0
v_mov_b32 {vr(vC8+6)}, 0
v_mov_b32 {vr(vC8+7)}, 0
s_mov_b32 {sr(sI)}, 1
s_mov_b32 {sr(sSlot)}, {phys(1)*SLOT}
s_waitcnt vmcnt(0)''')
    if hsplit: a('s_barrier')
    def lds_init():
        a(f'''s_barrier
ds_write_b128 {vr(vT2)}, {vr(vC8,4)}
ds_write_b128 {vr(vT2)}, {vr(vC8+4,4)} offset:16
ds_write_b128 {vr(vLw)}, {vr(vC8+4,4)}
ds_write_b128 {vr(vLw)}, {vr(vC8+4,4)} offset:16''')
    def e_bars():
        a('s_waitcnt lgkmcnt(0)')
        a('s_barrier')
        if not one_e: a('s_barrier')
    gid = [0]
    def issue_group(qmajor=False):
        n = gid[0]; gid[0] += 1
        a(f'''s_andn2_b32 {sr(sT)}, {sr(sRdy)}, {sr(sDone)}
s_cbranch_scc1 {name}_pd{n}
s_mov_b32 {sr(sCnt)}, {POLL_LIMIT}''')
        a.label(f'{name}_pl{n}')
        a(f'''buffer_load_dword {vr(vP)}, {vr(vPo1)}, {sr(SWS,4)}, 0 offen{SC}
s_waitcnt vmcnt(0)
v_cmp_eq_u32 vcc, {sr(sTag)}, {vr(vP)}
s_and_b32 {sr(sRdy)}, vcc_lo, 0xffff
s_andn2_b32 {sr(sT)}, {sr(sRdy)}, {sr(sDone)}
s_cbranch_scc1 {name}_pd{n}
{'s_sleep 1' if opts.get('sl1', 0) else 's_nop 0'}
s_sub_u32 {sr(sCnt)}, {sr(sCnt)}, 1
s_cmp_lg_u32 {sr(sCnt)}, 0
s_cbranch_scc1 {name}_pl{n}
s_mov_b32 {sr(sRdy)}, 0xffff
s_andn2_b32 {sr(sT)}, {sr(sRdy)}, {sr(sDone)}''')
        a.label(f'{name}_pd{n}')
        g_select(); g_loads(0, 40, qmajor); g_finish()
    def g_select():
        a(f'''s_lshl_b32 {sr(sT2)}, {sr(sT)}, 16
s_or_b32 {sr(sT)}, {sr(sT)}, {sr(sT2)}
s_lshr_b32 {sr(sT)}, {sr(sT)}, {sr(sMt)}
s_ff1_i32_b32 {sr(sT)}, {sr(sT)}
s_add_u32 {sr(sNeed)}, {sr(sT)}, {sr(sMt)}
s_and_b32 {sr(sNeed)}, {sr(sNeed)}, 15
s_bitset1_b32 {sr(sDone)}, {sr(sNeed)}
s_mul_i32 {sr(sT)}, {sr(sNeed)}, 10240
s_add_u32 {sr(sSrc)}, {sr(sKV)}, {sr(sT)}''')
    def g_loads(lo, hi, qmajor=False):
        order = [(hs, q) for hs in range(4) for q in range(10)]
        if qmajor:
            order = [(hs, q) for hs in range(4) for q in range(8)] + [(hs, q) for hs in range(4) for q in (8, 9)]
        for hs, q in order[lo:hi]:
            if q % 4 == 0:
                a(f's_add_u32 m0, {sr(sSlot)}, {hs*10240 + q*1024}')
                a(f's_add_u32 {sr(sT)}, {sr(sSrc)}, {hs*KV_HEAD + q*1024}')
            a(f'buffer_load_dwordx4 {vr(vL16)}, {sr(SWS,4)}, {sr(sT)} offen offset:{(q%4)*1024}{SLD} lds')
    def g_finish():
        if early:
            a(f'''s_sub_u32 {sr(sSlot)}, {sr(sSlot)}, {SLOT}
s_cselect_b32 {sr(sSlot)}, {2*SLOT}, {sr(sSlot)}
s_add_u32 {sr(sI)}, {sr(sI)}, 1''')
        else:
            a(f'''s_add_u32 {sr(sSlot)}, {sr(sSlot)}, {SLOT}
s_cmp_ge_u32 {sr(sSlot)}, {3*SLOT}
s_cselect_b32 {sr(sSlot)}, 0, {sr(sSlot)}
s_add_u32 {sr(sI)}, {sr(sI)}, 1''')
    if 'hprio' in opts: a(f's_setprio {opts["hprio"]}')
    wq = [0]
    def wait_prog(val):
        n = wq[0]; wq[0] += 1
        a.label(f'{name}_wp{n}')
        a(f'''ds_read_b32 {vr(vP)}, {vr(vPwa)} offset:4
s_waitcnt lgkmcnt(0)
v_cmp_le_u32 vcc, {val}, {vr(vP)}
s_and_b32 {sr(sT)}, vcc_lo, 0x1ff
s_cmp_eq_u32 {sr(sT)}, 0x1ff
s_cbranch_scc1 {name}_wpd{n}
s_sleep 2
s_branch {name}_wp{n}''')
        a.label(f'{name}_wpd{n}')
    def set_full(val):
        a(f'v_mov_b32 {vr(vFu)}, {val}')
        a(f'ds_write_b32 {vr(vPwa)}, {vr(vFu)}')
    if nobar:
        a(f'v_min_u32 {vr(vPwa)}, 8, {vr(vLane)}')
        a(f'v_lshlrev_b32 {vr(vPwa)}, 3, {vr(vPwa)}')
        a(f'v_add_u32 {vr(vPwa)}, {LW_PW}, {vr(vPwa)}')
    if early:
        a(f'''v_cmp_eq_u32 vcc, {sr(sTag)}, {vr(vP)}
s_and_b32 {sr(sRdy)}, vcc_lo, 0xffff
s_andn2_b32 {sr(sT)}, {sr(sRdy)}, {sr(sDone)}
s_cbranch_scc0 {name}_ne''')
        g_select(); g_loads(0, 20)
        lds_init()
        g_loads(20, 40); g_finish()
        e_bars()
        a(f's_branch {name}_g1d')
        a.label(f'{name}_ne')
    lds_init()
    e_bars()
    issue_group(g1s)
    a.label(f'{name}_g1d')
    st0()
    if g1s:
        a('s_waitcnt vmcnt(8)')
        a('s_barrier')
        a(f'v_mov_b32 {vr(vP)}, 1')
        a('s_waitcnt vmcnt(0)')
        a(f'ds_write_b32 {vr(vLw)}, {vr(vP)} offset:16')
        issue_group()
    elif opts.get('b1', 1) and not nobar:
        a('s_waitcnt vmcnt(0)')
        a('s_barrier')
        issue_group()
    a.label(f'{name}_hl')
    if nobar:
        a('s_waitcnt vmcnt(0)')
        set_full(sr(sI))
        a(f's_max_u32 {sr(sSrc)}, {sr(sI)}, 2')
        a(f's_sub_u32 {sr(sSrc)}, {sr(sSrc)}, 2')
        wait_prog(sr(sSrc))
        issue_group()
    else:
        issue_group()
        a('s_waitcnt vmcnt(40)')
        a('s_barrier')
        if sset == 5 and st.on:
            for K in (5, 15):
                a(f's_cmp_eq_u32 {sr(sI)}, {K}')
                a(f's_cbranch_scc0 {name}_h5{K}')
                st()
                a.label(f'{name}_h5{K}')
    wid = [0]
    def wo_rows(r0, r1, lds):
        n = wid[0]; wid[0] += 1
        a(f's_mov_b32 {sr(sSrc)}, {r0*1280}')
        a(f's_mov_b32 {sr(sT2)}, {lds}')
        a.label(f'{name}_hw{n}x')
        a(f's_mov_b32 m0, {sr(sT2)}')
        a(f's_add_u32 {sr(sT)}, {sr(sT2)}, 4096')
        for r in range(4):
            a(f'buffer_load_dwordx4 {vr(vW3[r])}, {sr(SWO,4)}, {sr(sSrc)} offen offset:{r*1024} lds')
        a(f's_mov_b32 m0, {sr(sT)}')
        a(f's_add_u32 {sr(sT2)}, {sr(sT2)}, 5120')
        a(f'buffer_load_dwordx4 {vr(vW3[4])}, {sr(SWO,4)}, {sr(sSrc)} offen lds')
        a(f's_add_u32 {sr(sSrc)}, {sr(sSrc)}, {32*1280}')
        a(f's_cmp_lt_u32 {sr(sSrc)}, {r1*1280}')
        a(f's_cbranch_scc1 {name}_hw{n}x')
    a(f's_cmp_eq_u32 {sr(sI)}, 6')
    a(f's_cbranch_scc0 {name}_hnp')
    for q in range(4):
        a(f's_mov_b32 {sr(sT)}, {q*6400}')
        a(f'buffer_load_dword {vr(vPf[q])}, {vr(vPo)}, {sr(SWO,4)}, {sr(sT)} offen')
    a.label(f'{name}_hnp')
    a(f's_cmp_eq_u32 {sr(sI)}, 10')
    a(f's_cbranch_scc0 {name}_hnq')
    wo_rows(480, 640, QST)
    a.label(f'{name}_hnq')
    a(f's_cmp_lt_u32 {sr(sI)}, 16')
    a(f's_cbranch_scc1 {name}_hl')
    if nobar:
        a('s_waitcnt vmcnt(0)')
        set_full(64)
        wait_prog(14)
        wo_rows(0, 256, WO_LO)
        wait_prog(15)
    else:
        if early: wo_rows(256, 480, WO_LO + 40960)
        else: wo_rows(0, 256, WO_LO)
        a(f's_waitcnt vmcnt({35 if early else 40})')
        a('s_barrier')
    if early: wo_rows(0, 256, WO_LO)
    else: wo_rows(256, 480, WO_LO + 40960)
    a(f'''s_lshl_b32 {sr(sT)}, {sr(sB)}, 4
s_add_u32 {sr(sT)}, {sr(sT)}, {sr(sMt3)}
s_lshl_b32 {sr(sT)}, {sr(sT)}, 1
s_lshr_b32 {sr(sT2)}, {sr(sCg)}, 2
s_add_u32 {sr(sT)}, {sr(sT)}, {sr(sT2)}
s_mul_i32 {sr(sT)}, {sr(sT)}, {32*2560}
s_and_b32 {sr(sT2)}, {sr(sCg)}, 3
s_mul_i32 {sr(sT2)}, {sr(sT2)}, 5120
s_add_u32 {sr(sT)}, {sr(sT)}, {sr(sT2)}
s_add_u32 {sr(sT)}, {sr(sT)}, {F_WS_O}
v_lshl_add_u32 {vr(vT0)}, {vr(vLane)}, 7, {sr(sT)}
v_cmp_gt_u32 vcc, 40, {vr(vLane)}
v_mov_b32 {vr(vT1)}, {OOB}
s_mov_b32 {sr(sDone)}, 0
s_mov_b32 {sr(sCnt)}, {1 if opts.get('cheat', 0) & 2 else POLL_LIMIT}
v_cndmask_b32 {vr(vPo)}, {vr(vT1)}, {vr(vT0)}, vcc''')
    pid = [0]
    pfo = opts.get('pfo', 2)
    def poll2():
        a(f'''buffer_load_dword {vr(vP)}, {vr(vPo2)}, {sr(SWS,4)}, 0 offen{SC}
s_sub_u32 {sr(sCnt)}, {sr(sCnt)}, 1
s_waitcnt vmcnt(0)
v_cmp_eq_u32 vcc, {sr(sTag)}, {vr(vP)}
s_cmp_eq_u32 {sr(sCnt)}, 0
s_cselect_b32 {sr(sT)}, 0xff, vcc_lo
s_lshr_b32 {sr(sT2)}, {sr(sT)}, 1
s_and_b32 {sr(sT)}, {sr(sT)}, {sr(sT2)}
s_and_b32 {sr(sRdy)}, {sr(sT)}, 0x55''')
        if pfo:
            a(f's_andn2_b32 {sr(sSrc)}, {sr(sRdy)}, {sr(sDone)}')
            a(f's_or_b32 {sr(sDone)}, {sr(sDone)}, {sr(sRdy)}')
            for j in range(4):
                n = pid[0]; pid[0] += 1
                a(f's_bitcmp1_b32 {sr(sSrc)}, {2*j}')
                a(f's_cbranch_scc0 {name}_po{n}')
                a(f's_mov_b32 {sr(sT)}, {j*20480}')
                a(f'buffer_load_dword {vr(vPf[j])}, {vr(vPo)}, {sr(SWS,4)}, {sr(sT)} offen{SC}')
                a.label(f'{name}_po{n}')
            if pfo == 2:
                a('s_waitcnt vmcnt(0)')
        a(f'v_mov_b32 {vr(vP)}, {sr(sRdy)}')
        a(f'ds_write_b32 {vr(vLw)}, {vr(vP)}')
    poll2()
    if nobar:
        wait_prog(16)
    else:
        a('s_barrier')
    st0()
    st0()
    a.label(f'{name}_p3l')
    if opts.get('psl'): a(f's_sleep {opts.get("psl")}')
    poll2()
    a(f's_cmp_eq_u32 {sr(sRdy)}, 0x55')
    a(f's_cbranch_scc0 {name}_p3l')
    a.label(f'{name}_p3e')
    if st.on:
        while st.n < n_total - 1: st()
        st.rt(); st.flush(sW)
    a('s_endpgm')
    a.label(f'{name}_end')
    nv = maxv[0]
    assert nv <= 168, nv
    return a.text(), descriptor(name, nv, ns), f'; @launch kernel={name} grid=(256,1,1) block=(576,1,1) lds={LDS_TOTAL}', n_total
```

```python
from common import *
import math, struct

def f32bits(x):
    return struct.unpack('<I', struct.pack('<f', x))[0]
QSCALE = f32bits(math.log2(math.e) / math.sqrt(20.0))

XSZ = 16384
STG = XSZ + 30720
SLOT = 40960
LW_RDY = 3 * SLOT
LW_CNT = 3 * SLOT + 8
LW_CNT1 = 3 * SLOT + 12
LW_G1 = 3 * SLOT + 16
LW_PW = 131392
ONES = 3 * SLOT + 128
QST = 131584
LDS_TOTAL = QST + 25600
WO_LO = SLOT
F_WS_KV = 0
F_WS_O = 64 * KV_HEAD
F_FLAG1 = F_WS_O + 2 * 32 * 32 * 2560
F_FLAG2 = F_FLAG1 + 16 * 256
F_EPOCH = F_FLAG2 + 32 * 256
F_WS_END = F_EPOCH + 256
TAGK = 0x9E3779B9
POLL_LIMIT = 1 << 18
OOB = 0x40000000

def gen_fused(name='fused_kernel', opts=None):
    opts = opts or {}
    a = Asm()
    SC = ' sc1'
    FL = {0: ' sc1', 1: ' sc0 sc1', 2: '', 3: ' sc1 nt', 4: ' nt'}
    SST = FL[opts.get('sst', 0)]
    SLD = FL[opts.get('sld', 0)]
    stag = opts.get('stag', 0)
    pub4 = opts.get('pub4', 1)
    one_e = opts.get('onee', 0) and pub4
    g1s = opts.get('g1s', 0)
    early = opts.get('early', 1)
    spoll = opts.get('spoll', 3)
    phys = (lambda k: (-k) % 3) if early else (lambda k: k % 3)
    hsplit = opts.get('hsplit', 1)
    nobar = opts.get('nobar', 0)
    loc = opts.get('loc', 1)
    sKK, sMt3, sCg = 3, 4, 5
    SX, SWQ, SWS, SDBG, SWO, SOUT = 8, 12, 16, 20, 24, 28
    sW, sB, sMt, sHg, sT, sT2, sT3 = 32, 33, 34, 35, 36, 37, 38
    sM0a, sM0b = 39, 40
    sDone = 41
    sHi = 42
    sG, sOff, sOo, sKV = 44, 45, 46, 47
    sM, sM2 = 48, 50
    sRdy, sCnt, sNeed, sI, sSlot, sSrc = 52, 53, 54, 55, 56, 57
    sXo, sWo = 53, 54
    sScale = 58
    sA, sTag = 60, 61
    sPub, sPub2 = 56, 57
    ns = 64
    vLane, vT0, vT1, vT2, vT3, vT4, vT5 = 1, 2, 3, 4, 5, 6, 7
    VBASE = 8
    st = Stamper(a, opts.get('stamp'), 0, 62, 6, vT0)
    if st.on: ns = st.nsgpr()
    sset = opts.get('sset', 0)
    def st0():
        if sset == 0: st()
    def st1():
        if sset == 1: st()
    def st6():
        if sset == 6: st.rt()
    def st4():
        if sset == 4: st()
    maxv = [0]
    def done_alloc(V):
        maxv[0] = max(maxv[0], V.n)

    a(f'.globl {name}\n.p2align 8\n.type {name},@function')
    a.label(name)
    if st.on:
        a('s_memrealtime s[62:63]\ns_memtime s[64:65]')
        st.n = 2
    dbgt = opts.get('dbgt')
    SWAP = 's_nop 0'
    if opts.get('swap', 0):
        SWAP = f's_lshr_b32 {sr(sT)}, s2, 1\ns_xor_b32 {sr(sT)}, {sr(sT)}, s2\ns_and_b32 {sr(sT)}, {sr(sT)}, 1\ns_mul_i32 {sr(sT)}, {sr(sT)}, 3\ns_xor_b32 s2, s2, {sr(sT)}'
    if dbgt:
        ns = 80
        a('s_memrealtime s[62:63]')
    def rts(k):
        if dbgt: a(f's_memrealtime s[{62+2*k}:{63+2*k}]\ns_waitcnt lgkmcnt(0)')
    a(f'''s_cmp_ge_u32 s2, 256
s_cbranch_scc1 {name}_done
{SWAP}
s_bfe_u32 {sr(sB)}, s2, 0x10002
s_load_dwordx4 {sr(SOUT,4)}, s[0:1], 48
s_load_dwordx2 s[6:7], s[0:1], 64
s_mul_i32 {sr(sT2)}, {sr(sB)}, {0 if opts.get('hack64') else 24}
s_add_u32 s0, s0, {sr(sT2)}
s_addc_u32 s1, s1, 0
s_load_dwordx4 {sr(SX,4)}, s[0:1], 0
s_load_dwordx2 {sr(SWO,2)}, s[0:1], 16
v_lshrrev_b32 {vr(vT0)}, 6, v0
v_and_b32 {vr(vLane)}, 63, v0
s_lshr_b32 {sr(sT)}, s2, 3
v_readfirstlane_b32 {sr(sW)}, {vr(vT0)}
s_and_b32 {sr(sMt)}, {sr(sT)}, 7
s_lshr_b32 {sr(sHg)}, {sr(sT)}, 3
s_mul_i32 {sr(sKK)}, {sr(sHg)}, 3
s_add_u32 {sr(sKK)}, {sr(sKK)}, {sr(sMt)}
s_cmp_ge_u32 {sr(sKK)}, 10
s_cselect_b32 {sr(sT)}, 10, 0
s_sub_u32 {sr(sKK)}, {sr(sKK)}, {sr(sT)}
{f's_mov_b32 {sr(sKK)}, 0' if (stag or opts.get('rot0')) else 's_nop 0'}
s_and_b32 {sr(sT)}, s2, 1
s_lshl_b32 {sr(sT)}, {sr(sT)}, 3
s_add_u32 {sr(sMt)}, {sr(sMt)}, {sr(sT)}
s_and_b32 {sr(sT)}, s2, 2
s_lshl_b32 {sr(sT)}, {sr(sT)}, 1
s_add_u32 {sr(sHg)}, {sr(sHg)}, {sr(sT)}
s_mov_b32 {sr(sHi)}, 0
s_mov_b32 {sr(sHi+1)}, -1
s_bfe_u32 {sr(sCg)}, s2, 0x30003
s_and_b32 {sr(sMt3)}, s2, 1
s_lshl_b32 {sr(sMt3)}, {sr(sMt3)}, 2
s_and_b32 {sr(sT)}, s2, 2
s_add_u32 {sr(sMt3)}, {sr(sMt3)}, {sr(sT)}
s_lshl_b32 {sr(sMt3)}, {sr(sMt3)}, 1
s_lshr_b32 {sr(sT)}, s2, 6
s_add_u32 {sr(sMt3)}, {sr(sMt3)}, {sr(sT)}
s_lshl_b32 {sr(sT)}, {sr(sB)}, 3
s_add_u32 {sr(sT)}, {sr(sT)}, {sr(sHg)}
s_mul_i32 {sr(sKV)}, {sr(sT)}, {4*KV_HEAD}
s_mul_i32 {sr(sT3)}, {sr(sHg)}, 160''')
    SRDS = f'''s_waitcnt lgkmcnt(0)
s_mov_b32 {sr(SWQ)}, {sr(SX+2)}
s_mov_b32 {sr(SWQ+1)}, {sr(SX+3)}
s_mov_b32 {sr(SDBG)}, {sr(SOUT+2)}
s_mov_b32 {sr(SDBG+1)}, {sr(SOUT+3)}
s_mov_b32 {sr(SWS)}, s6
s_mov_b32 {sr(SWS+1)}, s7
s_mov_b32 {sr(SX+2)}, {2048*1280}
s_mov_b32 {sr(SX+3)}, 0x20000
s_mov_b32 {sr(SWQ+2)}, {640*3840}
s_mov_b32 {sr(SWQ+3)}, 0x20000
s_mov_b32 {sr(SWS+2)}, {F_WS_END}
s_mov_b32 {sr(SWS+3)}, 0x20000
s_mov_b32 {sr(SDBG+2)}, 256
s_mov_b32 {sr(SDBG+3)}, 0x20000
s_mov_b32 {sr(SWO+2)}, {640*1280}
s_mov_b32 {sr(SWO+3)}, 0x20000
s_mov_b32 {sr(SOUT+2)}, {2048*2560}
s_mov_b32 {sr(SOUT+3)}, 0x20000'''
    st1()
    n_common = st.n
    a(f'''s_cmp_ge_u32 {sr(sW)}, 8
s_cbranch_scc1 {name}_helper''')

    def w_pattern(dst, first, last):
        a(f'''{first}
v_mul_u32_u24 {vr(vT1)}, 2185, {vr(vT0)}
v_lshrrev_b32 {vr(vT1)}, 16, {vr(vT1)}
v_mul_u32_u24 {vr(vT2)}, 30, {vr(vT1)}
v_sub_u32 {vr(vT0)}, {vr(vT0)}, {vr(vT2)}
v_and_b32 {vr(vT2)}, 0x13, {vr(vT1)}
v_bfe_u32 {vr(vT3)}, {vr(vT1)}, 2, 1
v_lshl_or_b32 {vr(vT2)}, {vr(vT3)}, 3, {vr(vT2)}
v_bfe_u32 {vr(vT3)}, {vr(vT1)}, 3, 1
v_lshl_or_b32 {vr(vT2)}, {vr(vT3)}, 2, {vr(vT2)}
v_mul_u32_u24 {vr(vT2)}, 3840, {vr(vT2)}
v_mul_u32_u24 {vr(vT1)}, 26, {vr(vT0)}
v_lshrrev_b32 {vr(vT1)}, 8, {vr(vT1)}
v_mul_u32_u24 {vr(vT1)}, {1280-160}, {vr(vT1)}
v_lshl_add_u32 {vr(vT0)}, {vr(vT0)}, 4, {vr(vT1)}
v_add3_u32 {vr(dst)}, {vr(vT0)}, {vr(vT2)}, {last}''')

    VP = VAlloc(VBASE)
    vIdx = VP()
    vaK1 = VP(); vaK2 = VP(); vaV = VP()
    vbK1 = VP(); vbK2 = VP(); vbV = VP(); vmK2 = VP(); vmV = VP()
    vQo = VP(); vQo2 = VP(); vQs1 = VP(); vQs2 = VP(); vPub = VP()
    VB2 = VP.n
    V = VAlloc(VB2)
    vEp7 = V(); vCi7 = V(); vZ7 = V()
    vXr = [[V(), V()] for _ in range(3)]
    vWa = [V() for _ in range(3)]
    vWb = [V() for _ in range(3)]
    vE = [V() for _ in range(6)]
    Xf = [[V(4), V(4)], [V(4), V(4)]]
    Wf = [[V(4) for _ in range(4)] for _ in range(2)]
    acc = [[V(4), V(4)] for _ in range(8)]
    done_alloc(V)
    vDX = Wf[0][0]; vDW = [Wf[0][0] + 1, Wf[0][0] + 2]
    XROW = f's_lshl_b32 {sr(sT)}, {sr(sMt)}, 7'
    if opts.get('hack64'):
        XROW = f's_lshl_b32 {sr(sT)}, {sr(sB)}, 4\ns_add_u32 {sr(sT)}, {sr(sT)}, {sr(sMt)}\ns_lshl_b32 {sr(sT)}, {sr(sT)}, 6'
    a(f'''{XROW}
s_lshl_b32 {sr(sT2)}, {sr(sW)}, 3
s_add_u32 {sr(sT)}, {sr(sT)}, {sr(sT2)}
v_lshrrev_b32 {vr(vT0)}, 3, {vr(vLane)}
v_add_u32 {vr(vT0)}, {sr(sT)}, {vr(vT0)}
v_mul_u32_u24 {vr(vT0)}, 1280, {vr(vT0)}
s_and_b32 {sr(sT)}, {sr(sW)}, 1
s_lshl_b32 {sr(sT)}, {sr(sT)}, 2
v_lshrrev_b32 {vr(vT1)}, 4, {vr(vLane)}
v_add_u32 {vr(vT2)}, {sr(sT)}, {vr(vT1)}
v_and_b32 {vr(vT3)}, 7, {vr(vLane)}
v_xor_b32 {vr(vT2)}, {vr(vT2)}, {vr(vT3)}
v_lshl_add_u32 {vr(vDX)}, {vr(vT2)}, 4, {vr(vT0)}
s_lshl_b32 {sr(sM0a)}, {sr(sW)}, 10
s_lshl_b32 {sr(sXo)}, {sr(sKK)}, 7
s_mul_i32 {sr(sWo)}, {sr(sKK)}, {64*3840}
s_add_u32 {sr(sT2)}, {sr(sW)}, 8
s_cmp_eq_u32 {sr(sW)}, 7
s_cselect_b32 {sr(sT2)}, 7, {sr(sT2)}
s_lshl_b32 {sr(sM0b)}, {sr(sT2)}, 10''')
    for pi, sm in ((0, sM0a), (1, sM0b)):
        a(f's_lshr_b32 {sr(sT)}, {sr(sm)}, 4')
        w_pattern(vDW[pi], f'v_add_u32 {vr(vT0)}, {sr(sT)}, {vr(vLane)}', sr(sT3))
    a(SRDS)
    a(f'''s_mov_b32 m0, {sr(sM0a)}
s_add_u32 {sr(sT)}, {sr(sXo)}, 81920
buffer_load_dwordx4 {vr(vDX)}, {sr(SX,4)}, {sr(sXo)} offen lds
s_add_u32 m0, {sr(sM0a)}, 8192
s_nop 0
{'s_nop 0' if opts.get('hack64') else f'buffer_load_dwordx4 {vr(vDX)}, {sr(SX,4)}, {sr(sT)} offen lds'}''')
    for pi, sm in ((0, sM0a), (1, sM0b)):
        for half in range(2):
            a(f's_add_u32 m0, {sr(sm)}, {XSZ + half*15360}')
            a(f's_add_u32 {sr(sT)}, {sr(sWo)}, {half*32*3840}')
            a(f'buffer_load_dwordx4 {vr(vDW[pi])}, {sr(SWQ,4)}, {sr(sT)} offen lds')
    st1()
    a('s_barrier')
    st1()
    a(f'''s_cmp_eq_u32 {sr(sW)}, 7
s_cselect_b32 {sr(sM)}, 1, 0
s_mov_b32 {sr(sM+1)}, 0
v_mov_b32 {vr(vT1)}, {OOB}
v_cndmask_b32_e64 {vr(vZ7)}, {vr(vT1)}, 0, {sr(sM,2)}
v_mov_b32 {vr(vT0)}, {F_EPOCH}
buffer_load_dword {vr(vEp7)}, {vr(vT0)}, {sr(SWS,4)}, 0 offen{SC}''')
    a(f'''s_and_b32 {sr(sT)}, {sr(sW)}, 3
s_lshl_b32 {sr(sT)}, {sr(sT)}, 5
v_and_b32 {vr(vT0)}, 15, {vr(vLane)}
v_lshrrev_b32 {vr(vT1)}, 4, {vr(vLane)}
v_lshrrev_b32 {vr(vT2)}, 1, {vr(vT0)}
v_xor_b32 {vr(vT2)}, {vr(vT2)}, {vr(vT1)}
v_add_u32 {vr(vT0)}, {sr(sT)}, {vr(vT0)}
v_lshlrev_b32 {vr(vT0)}, 7, {vr(vT0)}
v_lshl_add_u32 {vr(vXr[0][0])}, {vr(vT2)}, 4, {vr(vT0)}
v_xor_b32 {vr(vXr[0][1])}, 64, {vr(vXr[0][0])}
v_lshrrev_b32 {vr(vT0)}, 5, {vr(vLane)}
v_lshlrev_b32 {vr(vT0)}, 4, {vr(vT0)}
v_bfe_u32 {vr(vT2)}, {vr(vLane)}, 4, 1
v_lshl_add_u32 {vr(vT0)}, {vr(vT2)}, 2, {vr(vT0)}
v_bfe_u32 {vr(vT2)}, {vr(vLane)}, 2, 2
v_add_u32 {vr(vT0)}, {vr(vT0)}, {vr(vT2)}
v_mul_u32_u24 {vr(vT0)}, 480, {vr(vT0)}
v_add_u32 {vr(vT5)}, {XSZ}, {vr(vT0)}
v_bfe_u32 {vr(vT2)}, {vr(vLane)}, 1, 1
v_mul_u32_u24 {vr(vT2)}, 40, {vr(vT2)}
v_and_b32 {vr(vT3)}, 1, {vr(vLane)}
v_lshl_add_u32 {vr(vT2)}, {vr(vT3)}, 4, {vr(vT2)}
v_add_u32 {vr(vWa[0])}, {vr(vT5)}, {vr(vT2)}
s_cmp_ge_u32 {sr(sW)}, 4
s_cselect_b32 {sr(sT)}, 8, 40
v_and_b32 {vr(vT2)}, 3, {vr(vLane)}
v_mad_u32_u24 {vr(vWb[0])}, {vr(vT2)}, {sr(sT)}, {vr(vT5)}''')
    for s_ in (1, 2):
        a(f'v_add_u32 {vr(vXr[s_][0])}, {s_*STG}, {vr(vXr[0][0])}')
        a(f'v_add_u32 {vr(vXr[s_][1])}, {s_*STG}, {vr(vXr[0][1])}')
        a(f'v_add_u32 {vr(vWa[s_])}, {s_*STG}, {vr(vWa[0])}')
        a(f'v_add_u32 {vr(vWb[s_])}, {s_*STG}, {vr(vWb[0])}')
    a(f'''s_lshr_b32 {sr(sT)}, {sr(sW)}, 1
s_mul_i32 {sr(sT2)}, {sr(sT)}, 10240
v_lshlrev_b32 {vr(vQo)}, 4, {vr(vLane)}
v_lshlrev_b32 {vr(vT0)}, 3, {vr(vLane)}
v_add_u32 {vr(vT0)}, 1024, {vr(vT0)}
v_mov_b32 {vr(vT1)}, {OOB}
v_cndmask_b32_e64 {vr(vQo2)}, {vr(vT0)}, {vr(vT1)}, {sr(sHi,2)}
v_add_u32 {vr(vbK1)}, {sr(sT2)}, {vr(vQo)}
v_add_u32 {vr(vT0)}, {sr(sT2)}, {vr(vT0)}
v_mov_b32 {vr(vT1)}, {ONES}
v_cndmask_b32_e64 {vr(vbK2)}, {vr(vT0)}, {vr(vT1)}, {sr(sHi,2)}
v_cndmask_b32_e64 {vr(vmK2)}, 1, 0, {sr(sHi,2)}
v_and_b32 {vr(vT2)}, 31, {vr(vLane)}
v_lshrrev_b32 {vr(vT3)}, 5, {vr(vLane)}
v_mul_u32_u24 {vr(vT3)}, 320, {vr(vT3)}
v_lshl_add_u32 {vr(vT3)}, {vr(vT2)}, 4, {vr(vT3)}
s_add_u32 {sr(sT3)}, {sr(sT2)}, 1280
v_add_u32 {vr(vT3)}, {sr(sT3)}, {vr(vT3)}
v_cmp_gt_u32 vcc, 20, {vr(vT2)}
v_mov_b32 {vr(vIdx)}, 0xdddddddd
v_mov_b32 {vr(vaK1)}, {vr(vbK1)}
v_cndmask_b32 {vr(vbV)}, {vr(vT1)}, {vr(vT3)}, vcc
v_cndmask_b32_e64 {vr(vmV)}, 0, 1, vcc
v_cmp_lt_u32 vcc, 20, {vr(vT2)}
v_add_u32 {vr(vT3)}, 16, {vr(vT1)}
v_mov_b32 {vr(vaK2)}, {vr(vbK2)}
v_cndmask_b32 {vr(vbV)}, {vr(vbV)}, {vr(vT3)}, vcc
v_mov_b32 {vr(vaV)}, {vr(vbV)}
s_mul_i32 {sr(sT2)}, {sr(sW)}, 2560
s_add_u32 {sr(sT2)}, {sr(sT2)}, {QST}
v_add_u32 {vr(vQs1)}, {sr(sT2)}, {vr(vQo)}
v_and_b32 {vr(vQs2)}, 31, {vr(vLane)}
v_lshlrev_b32 {vr(vQs2)}, 3, {vr(vQs2)}
s_add_u32 {sr(sT2)}, {sr(sT2)}, 1024
v_add_u32 {vr(vQs2)}, {sr(sT2)}, {vr(vQs2)}
s_lshl_b32 {sr(sT2)}, {sr(sB)}, 4
s_add_u32 {sr(sT2)}, {sr(sT2)}, {sr(sMt)}
s_lshl_b32 {sr(sT2)}, {sr(sT2)}, 1
s_and_b32 {sr(sT3)}, {sr(sW)}, 1
s_add_u32 {sr(sT2)}, {sr(sT2)}, {sr(sT3)}
s_lshl_b32 {sr(sT2)}, {sr(sT2)}, 5
s_lshl_b32 {sr(sT3)}, {sr(sHg)}, 2
s_add_u32 {sr(sT2)}, {sr(sT2)}, {sr(sT3)}
s_add_u32 {sr(sT2)}, {sr(sT2)}, {sr(sT)}
s_mul_i32 {sr(sOo)}, {sr(sT2)}, 2560
s_add_u32 {sr(sOo)}, {sr(sOo)}, {F_WS_O}
s_mov_b32 {sr(sPub2)}, {sr(sKV)}
s_mul_i32 {sr(sT)}, {sr(sT)}, {KV_HEAD}
s_add_u32 {sr(sKV)}, {sr(sKV)}, {sr(sT)}''')
    if pub4:
        a(f'''s_and_b32 {sr(sT)}, {sr(sW)}, 3
s_mul_i32 {sr(sT2)}, {sr(sT)}, 10240
v_add_u32 {vr(vPub)}, {sr(sT2)}, {vr(vQo)}
s_mul_i32 {sr(sT)}, {sr(sT)}, {KV_HEAD}
s_mul_i32 {sr(sT2)}, {sr(sMt)}, 10240
s_add_u32 {sr(sT)}, {sr(sT)}, {sr(sT2)}
s_add_u32 {sr(sPub)}, {sr(sT)}, {sr(sPub2)}''')
    else:
        a(f'''s_and_b32 {sr(sT)}, {sr(sW)}, 1
s_mul_i32 {sr(sT)}, {sr(sT)}, 5120
v_add_u32 {vr(vPub)}, {sr(sT)}, {vr(vbK1)}
s_mul_i32 {sr(sT2)}, {sr(sMt)}, 10240
s_add_u32 {sr(sT)}, {sr(sT)}, {sr(sT2)}
s_add_u32 {sr(sPub)}, {sr(sT)}, {sr(sKV)}
s_add_u32 {sr(sPub2)}, {sr(sPub)}, 4096''')
    for ct in range(8):
        for tt in range(2):
            for i in range(4):
                a(f'v_mov_b32 {vr(acc[ct][tt]+i)}, 0')
    a(f'''s_mov_b32 {sr(sScale)}, {QSCALE}
s_mov_b32 {sr(sScale+1)}, {QSCALE}
s_and_b32 {sr(sT3)}, {sr(sW)}, 3
v_and_b32 {vr(vT0)}, 15, {vr(vLane)}
v_lshrrev_b32 {vr(vT1)}, 4, {vr(vLane)}
v_lshrrev_b32 {vr(vT2)}, 2, {vr(vT0)}
v_and_b32 {vr(vT3)}, 3, {vr(vT0)}
v_lshl_add_u32 {vr(vT4)}, {vr(vT2)}, 3, {vr(vT3)}
v_lshrrev_b32 {vr(vT2)}, 1, {vr(vT1)}
v_and_b32 {vr(vT3)}, 1, {vr(vT1)}
s_mul_i32 {sr(sT)}, {sr(sT3)}, 2560
v_mul_u32_u24 {vr(vE[0])}, 10240, {vr(vT2)}
v_lshl_add_u32 {vr(vE[0])}, {vr(vT3)}, 9, {vr(vE[0])}
v_lshl_add_u32 {vr(vE[0])}, {vr(vT4)}, 4, {vr(vE[0])}
v_add_u32 {vr(vE[0])}, {sr(sT)}, {vr(vE[0])}
s_cmp_ge_u32 {sr(sW)}, 4
s_cbranch_scc1 {name}_p1b''')

    def p1_variant(wn):
        if wn == 0:
            kinds = [('P', 0, 0, 0), ('P', 0, 0, 1), ('P', 0, 1, 0), ('P', 0, 1, 1), ('T', 0, 0, 0), ('P', 1, 0, 0), ('P', 1, 0, 1), ('T', 1, 0, 0)]
            a(f'''s_add_u32 {sr(sT2)}, {sr(sT)}, 1024
v_mul_u32_u24 {vr(vE[1])}, 10240, {vr(vT1)}
v_lshl_add_u32 {vr(vE[1])}, {vr(vT4)}, 3, {vr(vE[1])}
v_add_u32 {vr(vE[1])}, {sr(sT2)}, {vr(vE[1])}
s_mul_i32 {sr(sT)}, {sr(sT3)}, 1280
s_add_u32 {sr(sT)}, {sr(sT)}, {QST}
v_mul_u32_u24 {vr(vE[2])}, 5120, {vr(vT2)}
v_lshl_add_u32 {vr(vE[2])}, {vr(vT3)}, 9, {vr(vE[2])}
v_lshl_add_u32 {vr(vE[2])}, {vr(vT0)}, 4, {vr(vE[2])}
v_add_u32 {vr(vE[2])}, {sr(sT)}, {vr(vE[2])}
s_add_u32 {sr(sT)}, {sr(sT)}, 1024
v_mul_u32_u24 {vr(vE[3])}, 5120, {vr(vT1)}
v_lshl_add_u32 {vr(vE[3])}, {vr(vT0)}, 3, {vr(vE[3])}
v_add_u32 {vr(vE[3])}, {sr(sT)}, {vr(vE[3])}''')
        else:
            kinds = [('P', 1, 1, 0), ('P', 1, 1, 1)] + [('V', 2, i, 0) for i in range(5)]
            a(f'''s_add_u32 {sr(sT)}, {sr(sT)}, 1280
v_mul_u32_u24 {vr(vT2)}, 640, {vr(vT2)}
v_mul_u32_u24 {vr(vT3)}, 320, {vr(vT3)}
v_add3_u32 {vr(vT5)}, {vr(vT2)}, {vr(vT3)}, {sr(sT)}''')
            for i in range(5):
                a(f'''v_add_u32 {vr(vT2)}, {16*i}, {vr(vT0)}
v_mul_u32_u24 {vr(vT3)}, 3277, {vr(vT2)}
v_lshrrev_b32 {vr(vT3)}, 16, {vr(vT3)}
v_mul_u32_u24 {vr(vT3)}, {10240-320}, {vr(vT3)}
v_lshl_add_u32 {vr(vT2)}, {vr(vT2)}, 4, {vr(vT3)}
v_add_u32 {vr(vE[1+i])}, {vr(vT2)}, {vr(vT5)}''')
        nct = len(kinds)
        grp = [list(range(0, 4)), list(range(4, nct))]
        def rd_x(step, s2):
            return [f'ds_read_b128 {vr(Xf[s2][tt],4)}, {vr(vXr[step%3][s2])} offset:{tt*2048}' for tt in range(2)]
        def rd_w(step, s2, h, idx):
            ty, sec, sub, e = kinds[grp[h][idx]]
            base = (vWa if ty == 'P' else vWb)[step % 3]
            col = sec*160 + {'P': sub*80 + e*8, 'T': 32, 'V': sub*32}[ty]
            return [f'ds_read_b64_tr_b16 {vr(Wf[h][idx]+2*rd,2)}, {vr(base)} offset:{(32*s2+8*rd)*480 + col}' for rd in range(2)]
        def mf(s2, h, idx):
            ct = grp[h][idx]
            out = []
            for tt in range(2):
                A, B = Wf[h][idx], Xf[s2][tt]
                if kinds[ct][0] == 'V':
                    A, B = B, A
                out.append(f'v_mfma_f32_16x16x32_bf16 {vr(acc[ct][tt],4)}, {vr(A,4)}, {vr(B,4)}, {vr(acc[ct][tt],4)}')
            return out
        n0, n1 = 2 + 2*len(grp[0]), 2*len(grp[1])
        def phase(s2, h, nxt):
            if nxt is not None and h == 0:
                for r in rd_x(*nxt): a(r)
            for idx in range(len(grp[h])):
                for m in mf(s2, h, idx): a(m)
                if nxt is not None:
                    for r in rd_w(nxt[0], nxt[1], h, idx): a(r)
        st1()
        a('s_waitcnt vmcnt(0)')
        a(f'v_readfirstlane_b32 {sr(sTag)}, {vr(vEp7)}')
        a('s_barrier')
        a(f's_add_u32 {sr(sTag)}, {sr(sTag)}, {TAGK}')
        rts(1)
        st()
        for r in rd_x(0, 0): a(r)
        for h in range(2):
            for idx in range(len(grp[h])):
                for r in rd_w(0, 0, h, idx): a(r)
        for step in range(10):
            if step == 9 and hsplit:
                a('s_barrier')
            a(f's_waitcnt lgkmcnt({n1})')
            phase(0, 0, (step, 1))
            a(f's_waitcnt lgkmcnt({n0})')
            phase(0, 1, (step, 1))
            a('s_waitcnt lgkmcnt(0)')
            a('s_barrier')
            if step == 0 and wn == 1:
                a(f'v_mov_b32 {vr(vCi7)}, 1')
                a(f'buffer_atomic_add {vr(vCi7)}, {vr(vZ7)}, {sr(SDBG,4)}, 0 offen sc0')
            if step in (0, 4): st0()
            if step in (0, 1, 2, 8): st1()
            if step in (8, 9): st4()
            nx = (step + 1, 0) if step < 9 else None
            phase(1, 0, nx)
            phase(1, 1, nx)
        st0(); st4(); st6()
        rts(2)
        if wn == 1:
            a(f'''s_waitcnt vmcnt(0)
v_cmp_eq_u32 vcc, 255, {vr(vCi7)}
v_add_u32 {vr(vEp7)}, {TAGK}, {vr(vEp7)}
v_mov_b32 {vr(vT1)}, {OOB}
s_mov_b32 {sr(sT)}, {F_EPOCH}
v_cndmask_b32 {vr(vZ7)}, {vr(vT1)}, {vr(vZ7)}, vcc
buffer_store_dword {vr(vEp7)}, {vr(vZ7)}, {sr(SWS,4)}, {sr(sT)} offen{SC}''')
        def scale(r0):
            a(f'v_pk_mul_f32 {vr(r0,2)}, {vr(r0,2)}, {sr(sScale,2)}')
            a(f'v_pk_mul_f32 {vr(r0+2,2)}, {vr(r0+2,2)}, {sr(sScale,2)}')
        def pack4(d, x, y):
            a(f'v_cvt_pk_bf16_f32 {vr(d)}, {vr(x)}, {vr(x+1)}')
            a(f'v_cvt_pk_bf16_f32 {vr(d+1)}, {vr(x+2)}, {vr(x+3)}')
            if y is not None:
                a(f'v_cvt_pk_bf16_f32 {vr(d+2)}, {vr(y)}, {vr(y+1)}')
                a(f'v_cvt_pk_bf16_f32 {vr(d+3)}, {vr(y+2)}, {vr(y+3)}')
        def stage(want):
          ct = 0
          while ct < nct:
            ty, sec, sub, e = kinds[ct]
            if (sec == 0) != want:
                ct += 1
                continue
            if ty == 'P':
                for tt in range(2):
                    x, y = acc[ct][tt], acc[ct+1][tt]
                    if sec == 0:
                        scale(x); scale(y)
                    pack4(x, x, y)
                    if sec == 0:
                        a(f'ds_write_b128 {vr(vE[2])}, {vr(x,4)} offset:{sub*10240 + tt*256}')
                    else:
                        a(f'ds_write_b128 {vr(vE[0])}, {vr(x,4)} offset:{sub*20480 + tt*64}')
                ct += 2
            elif ty == 'T':
                for tt in range(2):
                    x = acc[ct][tt]
                    if sec == 0:
                        scale(x)
                    pack4(x, x, None)
                    if sec == 0:
                        a(f'ds_write_b64 {vr(vE[3])}, {vr(x,2)} offset:{tt*128}')
                    else:
                        a(f'ds_write_b64 {vr(vE[1])}, {vr(x,2)} offset:{tt*32}')
                ct += 1
            else:
                x, y = acc[ct][0], acc[ct][1]
                pack4(x, x, y)
                a(f'ds_write_b128 {vr(vE[1+sub])}, {vr(x,4)}')
                ct += 1
        if wn == 0: a('s_nop 2')
        stage(False)
        if one_e: stage(True)
        a('s_waitcnt lgkmcnt(0)')
        st4()
        a('s_barrier')
        st4(); st6()
        PB = Xf[0][0]
        assert Wf[0][0] == PB + 16
        if pub4:
            if wn == 0:
                if not one_e: stage(True)
            else:
                for q in range(10):
                    a(f'ds_read_b128 {vr(PB+4*q,4)}, {vr(vPub)} offset:{q*1024}')
                for q in range(10):
                    if q == 4: a(f's_add_u32 {sr(sPub)}, {sr(sPub)}, 4096')
                    if q == 8: a(f's_add_u32 {sr(sPub)}, {sr(sPub)}, 4096')
                    a(f's_waitcnt lgkmcnt({9 - q})')
                    a(f'buffer_store_dwordx4 {vr(PB+4*q,4)}, {vr(vQo)}, {sr(SWS,4)}, {sr(sPub)} offen offset:{(q%4)*1024}{SST}')
        else:
          for q in range(5):
            a(f'ds_read_b128 {vr(PB+4*q,4)}, {vr(vPub)} offset:{q*1024}')
          stage(True)
          nq = 6 if wn == 0 else 0
          for q in range(5):
            a(f's_waitcnt lgkmcnt({4 - q + nq})')
            a(f'buffer_store_dwordx4 {vr(PB+4*q,4)}, {vr(vQo)}, {sr(SWS,4)}, {sr(sPub if q < 4 else sPub2)} offen offset:{(q%4)*1024}{SST}')
        a('s_nop 1')
        st4()
    n_st = st.n
    p1_variant(0)
    a(f's_branch {name}_p2')
    a.label(f'{name}_p1b')
    st.n = n_st
    p1_variant(1)
    a.label(f'{name}_p2')

    V = VAlloc(VB2 + 3)
    Q1 = [V(4), V(4)]; Q2 = [V(2), V(2)]
    K1 = [V(4), V(4)]; K2 = [V(2), V(2)]
    V0 = [V(4), V(4)]; V1 = [V(4), V(4)]
    O = [V(16), V(16)]
    S = [V(16), V(16)]
    st3 = opts.get('st3', 1) and not nobar
    if st3:
        aK1 = [vbK1, vaK1, V()]; aK2 = [vbK2, vaK2, V()]; aV = [vbV, vaV, V()]
    vPw = V(2); vPa = V(); vPo_ = V(); vPg = V()
    done_alloc(V)
    for t in range(2):
        for i in range(16):
            a(f'v_mov_b32 {vr(O[t]+i)}, 0')
    for i in range(4):
        a(f'v_mov_b32 {vr(V1[1]+i)}, 0')
    a(f's_mov_b32 {sr(sG)}, 0')
    a(f's_mov_b32 {sr(sOff)}, 0')
    if st3:
        for k in (1, 2):
            a(f's_mov_b32 {sr(sT)}, {phys(k)*SLOT}')
            a(f'v_add_u32 {vr(aK1[k])}, {sr(sT)}, {vr(vbK1)}')
            a(f'v_mad_u32_u24 {vr(aK2[k])}, {vr(vmK2)}, {sr(sT)}, {vr(vbK2)}')
            a(f'v_mad_u32_u24 {vr(aV[k])}, {vr(vmV)}, {sr(sT)}, {vr(vbV)}')
    if nobar:
        a(f'''s_lshl_b32 {sr(sT)}, {sr(sW)}, 3
s_add_u32 {sr(sT2)}, {sr(sT)}, {LW_PW + 4}
s_xor_b32 {sr(sT)}, {sr(sT)}, 32
s_add_u32 {sr(sT)}, {sr(sT)}, {LW_PW}
v_mov_b32 {vr(vPa)}, {sr(sT)}
v_mov_b32 {vr(vPo_)}, {sr(sT2)}
v_mov_b32 {vr(vPg)}, 0''')
    if not one_e:
        a('s_waitcnt lgkmcnt(0)')
        a('s_barrier')
    st0(); st4()
    def rdK(s_, u, part='R', sl=0):
        x1, x2 = (aK1[sl], aK2[sl]) if st3 else (vaK1, vaK2)
        if part != 'Rb': a(f'ds_read_b128 {vr(K1[s_],4)}, {vr(x1)} offset:{2560*u}')
        if part != 'Ra': a(f'ds_read_b64 {vr(K2[s_],2)}, {vr(x2)} offset:{2560*u}')
    def rdV(s_, u, part='R', sl=0):
        x1 = aV[sl] if st3 else vaV
        if part != 'Rb': a(f'ds_read_b128 {vr(V0[s_],4)}, {vr(x1)} offset:{2560*u}')
        if part != 'Ra': a(f'ds_read_b128 {vr(V1[s_],4)}, {vr(x1)} offset:{2560*u+640}')
    def qk16(t, s_):
        a(f'v_mfma_f32_32x32x16_bf16 {vr(S[t],16)}, {vr(K1[s_],4)}, {vr(Q1[t],4)}, 0')
    def qk8(t, s_):
        a(f'v_mfma_f32_32x32x8_bf16 {vr(S[t],16)}, {vr(K2[s_],2)}, {vr(Q2[t],2)}, {vr(S[t],16)}')
    def pv(t, s_, n):
        Vf = (V0, V1)[n][s_]
        a(f'v_smfmac_f32_32x32x32_bf16 {vr(O[t],16)}, {vr(Vf,4)}, {vr(S[t]+8*n,8)}, {vr(vIdx)}')
    def rowmax(t, dst):
        s = S[t]
        a(f'v_max3_f32 {vr(dst)}, {vr(s)}, {vr(s+1)}, {vr(s+2)}')
        for i in range(3, 15, 2):
            a(f'v_max3_f32 {vr(dst)}, {vr(dst)}, {vr(s+i)}, {vr(s+i+1)}')
        a(f'v_max_f32 {vr(dst)}, {vr(dst)}, {vr(s+15)}')
    def crosshalf(x, y):
        a(f'v_mov_b32 {vr(y)}, {vr(x)}')
        a('s_nop 1')
        a(f'v_permlane32_swap_b32 {vr(x)}, {vr(y)}')
        a('s_nop 1')
    for t in range(2):
        a(f'ds_read_b128 {vr(Q1[t],4)}, {vr(vQs1)} offset:{1280*t}')
        a(f'ds_read_b64 {vr(Q2[t],2)}, {vr(vQs2)} offset:{1280*t}')
    rdK(0, 0); rdK(1, 1); rdV(0, 0)
    a('s_waitcnt lgkmcnt(4)')
    for t in range(2):
        a(f'v_cndmask_b32_e64 {vr(Q2[t])}, {vr(Q2[t])}, 0, {sr(sHi,2)}')
        a(f'v_cndmask_b32_e64 {vr(Q2[t]+1)}, {vr(Q2[t]+1)}, 0, {sr(sHi,2)}')
    qk16(0, 0); qk8(0, 0); qk16(1, 0); qk8(1, 0)
    a('s_nop 9')
    for t in range(2):
        if t == 1: a('s_nop 1')
        rowmax(t, vT0)
        crosshalf(vT0, vT1)
        a(f'''v_max_f32 {vr(vT0)}, {vr(vT0)}, {vr(vT1)}
v_sub_f32 {vr(vT0)}, 0, {vr(vT0)}
v_and_b32 {vr(vT1)}, 0xffff0000, {vr(vT0)}
v_sub_f32 {vr(vT0)}, {vr(vT0)}, {vr(vT1)}
v_and_b32 {vr(vT2)}, 0xffff0000, {vr(vT0)}
v_sub_f32 {vr(vT0)}, {vr(vT0)}, {vr(vT2)}
v_lshrrev_b32 {vr(vT1)}, 16, {vr(vT1)}
v_or_b32 {vr(vT1)}, {vr(vT1)}, {vr(vT2)}
v_lshrrev_b32 {vr(vT0)}, 16, {vr(vT0)}
v_cndmask_b32_e64 {vr(Q2[t])}, {vr(Q2[t])}, {vr(vT1)}, {sr(sHi,2)}
v_cndmask_b32_e64 {vr(Q2[t]+1)}, {vr(Q2[t]+1)}, {vr(vT0)}, {sr(sHi,2)}''')
        if t == 0:
            qk16(0, 0)
            a('s_nop 0')
            qk8(0, 0)
    for i in range(8, 16):
        a(f'v_mov_b32 {vr(S[1]+i)}, 0')
    st4()
    dsig = opts.get('dsig', 0) and pub4 and st3
    sSig, sFa = sOff, sPub2
    def sig_code(lbl, cnt):
        a(f'''s_mov_b64 exec, 1
v_mov_b32 {vr(vT0)}, 1
v_mov_b32 {vr(vT2)}, {LW_CNT1}
v_mov_b32 {vr(vT1)}, {sr(sTag)}
v_mov_b32 {vr(vT3)}, {sr(sFa)}
s_waitcnt vmcnt(0)
ds_add_rtn_u32 {vr(vT0)}, {vr(vT2)}, {vr(vT0)}
s_waitcnt lgkmcnt(0)
v_readfirstlane_b32 {sr(sT)}, {vr(vT0)}
s_cmp_eq_u32 {sr(sT)}, {cnt - 1}
s_cbranch_scc0 {lbl}
buffer_store_dword {vr(vT1)}, {vr(vT3)}, {sr(SWS,4)}, 0 offen{SC}''')
        a.label(lbl)
        a('s_mov_b64 exec, -1')
    a(f'''s_lshl_b32 {sr(sT)}, {sr(sB)}, 3
s_add_u32 {sr(sT)}, {sr(sT)}, {sr(sHg)}
s_lshl_b32 {sr(sT)}, {sr(sT)}, 6
s_add_u32 {sr(sT)}, {sr(sT)}, {sr(sMt)}
s_lshl_b32 {sr(sT)}, {sr(sT)}, 2
s_add_u32 {sr(sFa)}, {sr(sT)}, {F_FLAG1}''')
    sigpts = []
    if dsig:
        a(f's_lshr_b32 {sr(sSig)}, {sr(sW)}, 2')
        a('s_waitcnt lgkmcnt(0)')
    else:
        sig_code(f'{name}_nl1', 8)
    def sig_point(force):
        k = len(sigpts); sigpts.append(force)
        a(f's_cmp_lg_u32 {sr(sSig)}, 0')
        a(f's_cbranch_scc1 {name}_sg{k}')
        a.label(f'{name}_sgr{k}')
    prio = opts.get('prio', 1)
    rts(3)
    st0(); st4(); st6()
    if sset == 2: st()
    a('.p2align 6')
    a.label(f'{name}_loop')
    def ex(t, i):
        a(f'v_exp_f32 {vr(S[t]+i)}, {vr(S[t]+i)}')
    scheds = {1: 'e e P2 e e e e Q16 e e e e Q8 R e e e e P1 W e e',
              2: 'e e P2 e e e e Q16 e e e Q8 R e e e e e P1 W e e',
              3: 'e e P2 e e e e Q16 e e e e Q8 e R e e e P1 e W e',
              4: 'e e P2 e e e Q16 e e e e Q8 R e e e e P1 W e e e',
              5: 'e e W P2 e e e e Ra Q16 e e e e Rb Q8 e e e e P1 e e',
              6: 'e e W P2 e e e e R Q16 e e e e Q8 e e e e P1 e e',
              7: 'e e W P2 e e e e Q16 e e e e Ra Q8 e e e e Rb P1 e e',
              8: 'e e P2 e e e e Ra Q16 e e e e Rb Q8 e e e e W P1 e e',
              9: 'e e P2 e e e e Q16 e e e e Q8 e e e e R W P1 e e',
              10: 'e e P2 Ra e e e e Q16 Rb e e e e Q8 W e e e e P1 e e',
              11: 'e e P2 Ra e e e e Q16 Rb e e e e Q8 e e e e P1 W e e',
              12: 'e e P2 R e e e e Q16 e e e e Q8 e e e e P1 W e e',
              13: 'e e P2 R W e e e e Q16 e e e e Q8 e e e e P1 e e',
              14: 'e e P2 Ra e e e e Q16 e e e e Q8 e e e e P1 Rb W e e',
              15: 'e e P2 R e e e e Q16 e e e e Q8 W e e e e P1 e e'}
    sched = scheds[opts.get('sched', 12)].split()
    unroll = 3 if st3 else opts.get('unroll', 1)
    ptab = {1: {(0, 0): 2, (1, 0): 1, (2, 0): 0, (3, 0): 3},
            2: {(3, 0): 1, (1, 0): 0},
            3: {(3, 0): 3, (3, 1): 2, (0, 1): 1, (1, 1): 0},
            6: {(3, 0): 3, (0, 1): 2, (1, 1): 1, (2, 0): 0}}.get(prio, {})
    for rep in range(unroll):
      for j in range(4):
        for t in range(2):
            pj = j if t == 1 else j - 1
            nj = j if t == 0 else j + 1
            if (j, t) in ptab and nobar != 1:
                a(f's_setprio {ptab[(j, t)]}')
            if dsig and rep == 0 and (j, t) in ((0, 0), (0, 1), (1, 0), (1, 1), (2, 0)):
                sig_point(False)
            e = 0
            for tok in sched:
                if tok == 'e':
                    ex(t, e); e += 1
                elif tok == 'P2':
                    pv(1 - t, pj % 2, 1)
                elif tok == 'P1':
                    pv(t, j % 2, 0)
                elif tok == 'Q16':
                    qk16(1 - t, nj % 2)
                elif tok == 'Q8':
                    qk8(1 - t, nj % 2)
                elif tok == 'W':
                    a(f's_waitcnt lgkmcnt({3 if nobar and (j, t) in ((2, 0), (2, 1)) else 2})')
                elif tok == 'Rb':
                    if t == 0: rdV((j + 1) % 2, (j + 1) % 4, 'Rb', (rep + (j + 1) // 4) % 3)
                    else: rdK(j % 2, (j + 2) % 4, 'Rb', (rep + (j + 2) // 4) % 3)
                elif tok in ('R', 'Ra'):
                    if t == 0:
                        if j == 3 and not st3:
                            a(f'v_mad_u32_u24 {vr(vaV)}, {vr(vmV)}, {sr(sOff)}, {vr(vbV)}')
                        rdV((j + 1) % 2, (j + 1) % 4, tok, (rep + (j + 1) // 4) % 3)
                        if j == 2 and nobar:
                            a(f'ds_read_b64 {vr(vPw,2)}, {vr(vPa)}')
                    else:
                        if g1s and rep == 1 and j == 1:
                            a(f's_cmp_eq_u32 {sr(sG)}, 0')
                            a(f's_cbranch_scc1 {name}_g1w')
                            a.label(f'{name}_g1r')
                        if j == 2 and st3:
                            if dsig and rep == 0: sig_point(True)
                            a('s_waitcnt lgkmcnt(0)')
                            a('s_barrier')
                            if sset == 6 and st.on and rep == 0:
                                a(f's_cmp_eq_u32 {sr(sG)}, 0')
                                a(f's_cbranch_scc0 {name}_sk6')
                                st.rt()
                                a.label(f'{name}_sk6')
                        elif j == 2:
                            a(f'''s_add_u32 {sr(sOff)}, {sr(sOff)}, {SLOT}
s_cmp_ge_u32 {sr(sOff)}, {3*SLOT}
s_cselect_b32 {sr(sOff)}, 0, {sr(sOff)}''')
                            if nobar:
                                a(f'''v_add_u32 {vr(vPg)}, 1, {vr(vPg)}
s_add_u32 {sr(sT3)}, {sr(sG)}, {rep + 1}
s_waitcnt lgkmcnt(0)
v_readfirstlane_b32 {sr(sT)}, {vr(vPw)}
v_readfirstlane_b32 {sr(sT2)}, {vr(vPw+1)}
ds_write_b32 {vr(vPo_)}, {vr(vPg)}''')
                                if nobar == 1:
                                    a(f'''s_setprio 0
s_cmp_lt_u32 {sr(sT2)}, {sr(sT3)}
s_cbranch_scc1 {name}_lo{rep}
s_setprio 1''')
                                    a.label(f'{name}_lo{rep}')
                                elif nobar == 2:
                                    a(f's_add_u32 {sr(sT2)}, {sr(sT2)}, {1 + opts.get("slack", 0)}')
                                    a(f's_min_u32 {sr(sT)}, {sr(sT)}, {sr(sT2)}')
                                a(f's_cmp_gt_u32 {sr(sT)}, {sr(sT3)}')
                                a(f's_cbranch_scc0 {name}_spin{rep}')
                                a.label(f'{name}_spun{rep}')
                            else:
                                a('s_waitcnt lgkmcnt(0)')
                                a('s_barrier')
                            if sset == 2 and st.on:
                                for K in (0, 1, 2, 3, 8, 14):
                                    a(f's_cmp_eq_u32 {sr(sG)}, {K}')
                                    a(f's_cbranch_scc0 {name}_sk{K}')
                                    st()
                                    a.label(f'{name}_sk{K}')
                            a(f'''v_add_u32 {vr(vaK1)}, {sr(sOff)}, {vr(vbK1)}
v_mad_u32_u24 {vr(vaK2)}, {vr(vmK2)}, {sr(sOff)}, {vr(vbK2)}''')
                        rdK(j % 2, (j + 2) % 4, tok, (rep + (j + 2) // 4) % 3)
            assert e == 16
      if st3 and rep == 0:
        a(f's_cmp_eq_u32 {sr(sG)}, 15')
        a(f's_cbranch_scc1 {name}_lend')
    a(f'''s_add_u32 {sr(sG)}, {sr(sG)}, {unroll}
s_cmp_lt_u32 {sr(sG)}, 16
s_cbranch_scc1 {name}_loop''')
    a.label(f'{name}_lend')
    a('s_nop 1')
    pv(1, 1, 1)
    if ptab or nobar:
        a('s_setprio 0')
    st0()
    if sset in (2, 3): st()
    L = [vT2, vT3]
    st6()
    rts(4)
    a('s_waitcnt lgkmcnt(0)')
    a(f's_mov_b32 {sr(sI)}, 0')
    a.label(f'{name}_store')
    a(f's_mov_b32 {sr(sM)}, 0xaaaaaaaa')
    a(f's_mov_b32 {sr(sM+1)}, 0xaaaaaaaa')
    for t in range(2):
        a(f'v_mov_b32 {vr(vT0)}, {vr(O[t]+8)}')
        crosshalf(vT0, L[t])
        a(f'v_rcp_f32 {vr(vT0)}, {vr(L[t])}')
        a('s_nop 0')
        for i in range(12):
            a(f'v_mul_f32 {vr(O[t]+i)}, {vr(O[t]+i)}, {vr(vT0)}')
        for i in range(4):
            a(f'v_cvt_pk_bf16_f32 {vr(S[t]+i)}, {vr(O[t]+2*i)}, {vr(O[t]+2*i+1)}')
        a(f'buffer_store_dwordx4 {vr(S[t],4)}, {vr(vQo)}, {sr(SWS,4)}, {sr(sOo)} offen offset:{1024*t}{SST}')
        for i in range(2):
            a(f'v_cvt_pk_bf16_f32 {vr(S[0]+4+2*t+i)}, {vr(O[t]+8+2*i)}, {vr(O[t]+8+2*i+1)}')
    ta, tb, X, Y = S[0]+4, S[0]+6, S[0]+8, S[0]+12
    a(f'''v_cndmask_b32_e64 {vr(X)}, {vr(tb)}, {vr(ta)}, {sr(sM,2)}
v_cndmask_b32_e64 {vr(X+1)}, {vr(tb+1)}, {vr(ta+1)}, {sr(sM,2)}
v_lshrrev_b32 {vr(vT0)}, 1, {vr(vLane)}
v_and_b32 {vr(vT1)}, 1, {vr(vLane)}
v_mov_b32_dpp {vr(X+2)}, {vr(X)} quad_perm:[1,0,3,2] row_mask:0xf bank_mask:0xf
v_mov_b32_dpp {vr(X+3)}, {vr(X+1)} quad_perm:[1,0,3,2] row_mask:0xf bank_mask:0xf
v_lshlrev_b32 {vr(vT0)}, 4, {vr(vT0)}
v_lshl_add_u32 {vr(vT0)}, {vr(vT1)}, 8, {vr(vT0)}
v_mov_b32 {vr(vT1)}, {OOB}
v_cndmask_b32_e64 {vr(Y)}, {vr(ta)}, {vr(X+2)}, {sr(sM,2)}
v_cndmask_b32_e64 {vr(Y+1)}, {vr(ta+1)}, {vr(X+3)}, {sr(sM,2)}
v_cndmask_b32_e64 {vr(Y+2)}, {vr(X+2)}, {vr(tb)}, {sr(sM,2)}
v_cndmask_b32_e64 {vr(Y+3)}, {vr(X+3)}, {vr(tb+1)}, {sr(sM,2)}
v_cndmask_b32_e64 {vr(vT0)}, {vr(vT0)}, {vr(vT1)}, {sr(sHi,2)}
buffer_store_dwordx4 {vr(Y,4)}, {vr(vT0)}, {sr(SWS,4)}, {sr(sOo)} offen offset:2048{SST}''')
    st0()
    for t in range(2):
        sm = sM if t == 0 else sM2
        a(f'v_mul_f32 {vr(vT1)}, 0, {vr(O[t])}')
        for i in range(1, 12):
            a(f'v_fmac_f32 {vr(vT1)}, 0, {vr(O[t]+i)}')
        a(f'v_add_f32 {vr(vT1)}, {vr(vT1)}, {vr(L[t])}')
        a(f'v_cmp_gt_f32 vcc, 0x53800000, {vr(vT1)}')
        a(f's_mov_b64 {sr(sm,2)}, vcc')
        a(f'v_cmp_lt_f32 vcc, 0x35800000, {vr(vT1)}')
        a(f's_and_b64 {sr(sm,2)}, {sr(sm,2)}, vcc')
    a(f'''s_and_b64 {sr(sM,2)}, {sr(sM,2)}, {sr(sM2,2)}
s_cmp_eq_u64 {sr(sM,2)}, -1
s_cselect_b32 {sr(sT)}, 1, {sr(sI)}
s_cmp_eq_u32 {sr(sT)}, 0
s_cbranch_scc1 {name}_fallback''')

    V = VAlloc(VBASE)
    vAo = V(); vAt = V(); vWm0 = V(); vWt0 = V(); vOo = V(); vRd = V(); vDn = V(); vOw = V(); vOr = V(); vOs = [V(), V(), V()]
    vWm = [V() for _ in range(4)]; vWt = [V() for _ in range(4)]
    acc3 = [V(4) for _ in range(5)]
    assert V.n <= S[0]
    Wg = [[V(4) for _ in range(5)] for _ in range(2)]
    A = [[V(4) for _ in range(5)] for _ in range(4)]
    done_alloc(V)
    a(f'''s_lshl_b32 {sr(sT)}, {sr(sB)}, 4
s_add_u32 {sr(sT)}, {sr(sT)}, {sr(sMt3)}
s_lshl_b32 {sr(sT)}, {sr(sT)}, 1
s_lshr_b32 {sr(sT2)}, {sr(sW)}, 2
s_add_u32 {sr(sT)}, {sr(sT)}, {sr(sT2)}
s_mul_i32 {sr(sA)}, {sr(sT)}, {32*2560}
s_add_u32 {sr(sA)}, {sr(sA)}, {F_WS_O}
s_and_b32 {sr(sT)}, {sr(sW)}, 1
s_lshl_b32 {sr(sT)}, {sr(sT)}, 4
s_bfe_u32 {sr(sT2)}, {sr(sW)}, 0x10001
v_and_b32 {vr(vT0)}, 15, {vr(vLane)}
v_add_u32 {vr(vT0)}, {sr(sT)}, {vr(vT0)}
v_lshlrev_b32 {vr(vT0)}, 4, {vr(vT0)}
v_lshrrev_b32 {vr(vT1)}, 5, {vr(vLane)}
v_mul_u32_u24 {vr(vT1)}, 2560, {vr(vT1)}
v_bfe_u32 {vr(vT2)}, {vr(vLane)}, 4, 1
v_lshl_add_u32 {vr(vT1)}, {vr(vT2)}, 9, {vr(vT1)}
s_lshl_b32 {sr(sT3)}, {sr(sT2)}, 10
v_add3_u32 {vr(vAo)}, {vr(vT0)}, {vr(vT1)}, {sr(sT3)}
v_lshrrev_b32 {vr(vT1)}, 4, {vr(vLane)}
v_mul_u32_u24 {vr(vT1)}, 2560, {vr(vT1)}
s_lshl_b32 {sr(sT3)}, {sr(sT2)}, 8
s_add_u32 {sr(sT3)}, {sr(sT3)}, 2048
v_lshrrev_b32 {vr(vT0)}, 1, {vr(vT0)}
v_add3_u32 {vr(vAt)}, {vr(vT0)}, {vr(vT1)}, {sr(sT3)}
v_bfe_u32 {vr(vT0)}, {vr(vLane)}, 2, 2
v_lshrrev_b32 {vr(vT1)}, 5, {vr(vLane)}
v_mul_u32_u24 {vr(vT1)}, 20, {vr(vT1)}
v_bfe_u32 {vr(vT2)}, {vr(vLane)}, 4, 1
v_lshl_add_u32 {vr(vT1)}, {vr(vT2)}, 2, {vr(vT1)}
v_add_u32 {vr(vT1)}, {vr(vT1)}, {vr(vT0)}
v_mul_u32_u24 {vr(vT1)}, 160, {vr(vT1)}
v_and_b32 {vr(vT2)}, 3, {vr(vLane)}
v_lshl_add_u32 {vr(vWm0)}, {vr(vT2)}, 3, {vr(vT1)}
v_lshrrev_b32 {vr(vT1)}, 4, {vr(vLane)}
v_mul_u32_u24 {vr(vT1)}, 20, {vr(vT1)}
v_add3_u32 {vr(vT1)}, {vr(vT1)}, {vr(vT0)}, 16
v_mul_u32_u24 {vr(vT1)}, 160, {vr(vT1)}
v_lshl_add_u32 {vr(vWt0)}, {vr(vT2)}, 3, {vr(vT1)}
s_lshl_b32 {sr(sT)}, {sr(sMt3)}, 7
s_lshl_b32 {sr(sT2)}, {sr(sW)}, 4
s_add_u32 {sr(sT)}, {sr(sT)}, {sr(sT2)}
v_and_b32 {vr(vT0)}, 15, {vr(vLane)}
v_add_u32 {vr(vT0)}, {sr(sT)}, {vr(vT0)}
v_mul_u32_u24 {vr(vT0)}, 2560, {vr(vT0)}
v_lshrrev_b32 {vr(vT1)}, 4, {vr(vLane)}
v_lshl_add_u32 {vr(vT0)}, {vr(vT1)}, 3, {vr(vT0)}
s_mul_i32 {sr(sT)}, {sr(sB)}, 1280
s_mul_i32 {sr(sT2)}, {sr(sCg)}, 160
s_add_u32 {sr(sT)}, {sr(sT)}, {sr(sT2)}
v_add_u32 {vr(vOo)}, {sr(sT)}, {vr(vT0)}
v_mov_b32 {vr(vRd)}, {LW_RDY}
s_lshl_b32 {sr(sT2)}, {sr(sMt3)}, 3
s_add_u32 {sr(sT2)}, {sr(sT2)}, {sr(sW)}
s_mul_i32 {sr(sT2)}, {sr(sT2)}, {16*2560}
s_add_u32 {sr(sOo)}, {sr(sT)}, {sr(sT2)}
s_mul_i32 {sr(sT2)}, {sr(sW)}, 3072
v_and_b32 {vr(vT0)}, 15, {vr(vLane)}
v_mul_u32_u24 {vr(vT0)}, 160, {vr(vT0)}
v_lshl_add_u32 {vr(vT0)}, {vr(vT1)}, 3, {vr(vT0)}
v_add_u32 {vr(vOw)}, {sr(sT2)}, {vr(vT0)}
v_lshlrev_b32 {vr(vT0)}, 4, {vr(vLane)}
v_add_u32 {vr(vOr)}, {sr(sT2)}, {vr(vT0)}
v_mul_u32_u24 {vr(vT1)}, 6554, {vr(vLane)}
v_lshrrev_b32 {vr(vT1)}, 16, {vr(vT1)}
v_mul_u32_u24 {vr(vT1)}, {2560-160}, {vr(vT1)}
v_add_u32 {vr(vOs[0])}, {vr(vT0)}, {vr(vT1)}
v_add_u32 {vr(vT2)}, 64, {vr(vLane)}
v_mul_u32_u24 {vr(vT1)}, 6554, {vr(vT2)}
v_lshrrev_b32 {vr(vT1)}, 16, {vr(vT1)}
v_mul_u32_u24 {vr(vT1)}, {2560-160}, {vr(vT1)}
v_lshl_add_u32 {vr(vOs[1])}, {vr(vT2)}, 4, {vr(vT1)}
v_add_u32 {vr(vT2)}, 128, {vr(vLane)}
v_mul_u32_u24 {vr(vT1)}, 6554, {vr(vT2)}
v_lshrrev_b32 {vr(vT1)}, 16, {vr(vT1)}
v_mul_u32_u24 {vr(vT1)}, {2560-160}, {vr(vT1)}
v_lshl_add_u32 {vr(vT1)}, {vr(vT2)}, 4, {vr(vT1)}
v_mov_b32 {vr(vT2)}, {OOB}
v_cndmask_b32_e64 {vr(vOs[2])}, {vr(vT1)}, {vr(vT2)}, {sr(sHi,2)}
s_lshl_b32 {sr(sT)}, {sr(sB)}, 4
s_add_u32 {sr(sT)}, {sr(sT)}, {sr(sMt)}
s_lshl_b32 {sr(sT)}, {sr(sT)}, 6
s_add_u32 {sr(sT)}, {sr(sT)}, {sr(sHg)}
s_lshl_b32 {sr(sT)}, {sr(sT)}, 2
s_add_u32 {sr(sT)}, {sr(sT)}, {F_FLAG2}
v_mov_b32 {vr(vDn)}, {sr(sT)}
v_add_u32 {vr(vWm0)}, {WO_LO}, {vr(vWm0)}
v_add_u32 {vr(vWt0)}, {WO_LO}, {vr(vWt0)}
s_and_b32 {sr(sT3)}, {sr(sCg)}, {opts.get('rot3', 3)}
s_lshl_b32 {sr(sT3)}, {sr(sT3)}, 1
s_mov_b32 {sr(sDone)}, 0''')
    for t in range(5):
        for i in range(4):
            a(f'v_mov_b32 {vr(acc3[t]+i)}, 0')
    tid_ = [0]
    base3 = st.n
    if sset == 3: st.n += 4
    def read_rdy():
        a(f'''ds_read_b64 {vr(vT0,2)}, {vr(vRd)}
s_waitcnt lgkmcnt(0)
v_and_b32 {vr(vT0)}, {vr(vT0)}, {vr(vT1)}
s_nop 0
v_readfirstlane_b32 {sr(sT)}, {vr(vT0)}
s_andn2_b32 {sr(sT)}, {sr(sT)}, {sr(sDone)}''')
    def loads(s_):
        a(f'''s_lshl_b32 {sr(sT2)}, {sr(sT)}, 8
s_or_b32 {sr(sT)}, {sr(sT)}, {sr(sT2)}
s_lshr_b32 {sr(sT)}, {sr(sT)}, {sr(sT3)}
s_ff1_i32_b32 {sr(sT)}, {sr(sT)}
s_add_u32 {sr(sT)}, {sr(sT)}, {sr(sT3)}
s_and_b32 {sr(sT)}, {sr(sT)}, 7
s_bitset1_b32 {sr(sDone)}, {sr(sT)}
s_mul_i32 {sr(sT2)}, {sr(sT)}, 10240
s_add_u32 {sr(sT2)}, {sr(sT2)}, {sr(sA)}
s_cmp_eq_u32 {sr(sT)}, 6
s_mul_i32 {sr(sT)}, {sr(sT)}, 12800
s_cselect_b32 {sr(sT)}, {QST - WO_LO}, {sr(sT)}''')
        for p in range(4):
            a(f'buffer_load_dwordx4 {vr(A[s_][p],4)}, {vr(vAo)}, {sr(SWS,4)}, {sr(sT2)} offen{SLD}')
            if p == 0:
                a(f'buffer_load_dwordx2 {vr(A[s_][4],2)}, {vr(vAt)}, {sr(SWS,4)}, {sr(sT2)} offen{SLD}')
            if p == 2:
                a(f'buffer_load_dwordx2 {vr(A[s_][4]+2,2)}, {vr(vAt)}, {sr(SWS,4)}, {sr(sT2)} offen{SLD}')
            if p < 3:
                a(f's_add_u32 {sr(sT2)}, {sr(sT2)}, 5120')
        a(f'v_add_u32 {vr(vWm[s_])}, {sr(sT)}, {vr(vWm0)}')
        a(f'v_add_u32 {vr(vWt[s_])}, {sr(sT)}, {vr(vWt0)}')
        if sset == 3 and st.on:
            a(f's_memtime s[{62+2*(base3+s_)}:{63+2*(base3+s_)}]\ns_waitcnt lgkmcnt(0)')
    def take_group(s_):
        n = tid_[0]; tid_[0] += 1
        a.label(f'{name}_tg{n}')
        read_rdy()
        a(f'''s_cbranch_scc1 {name}_tgd{n}
s_sleep 1
s_branch {name}_tg{n}''')
        a.label(f'{name}_tgd{n}')
        loads(s_)
    a('s_waitcnt vmcnt(0)')
    a(f'''s_mov_b64 exec, 1
v_mov_b32 {vr(vT0)}, 1
ds_add_rtn_u32 {vr(vT0)}, {vr(vRd)}, {vr(vT0)} offset:8
v_mov_b32 {vr(vT1)}, {sr(sTag)}
v_mov_b32 {vr(vT2)}, 0xff
s_waitcnt lgkmcnt(0)
v_readfirstlane_b32 {sr(sT)}, {vr(vT0)}
s_cmp_eq_u32 {sr(sT)}, 7
s_cbranch_scc0 {name}_nl
buffer_store_dword {vr(vT1)}, {vr(vDn)}, {sr(SWS,4)}, 0 offen{SC}
ds_write_b32 {vr(vRd)}, {vr(vT2)} offset:4''')
    a.label(f'{name}_nl')
    a('s_mov_b64 exec, -1')
    if sset == 3: st()
    st6()
    def rdW3(fs, j, p, t):
        out = []
        for rd in range(2):
            if p < 4:
                base, off = vWm[j], (20*(2*p) + 8*rd)*160 + t*32
            else:
                base, off = vWt[j], (20*(4*rd))*160 + t*32
            out.append(f'ds_read_b64_tr_b16 {vr(Wg[fs][t]+2*rd,2)}, {vr(base)} offset:{off}')
        return out
    if opts.get('evt', 1):
        st0()
        sJ = sG
        a(f's_mov_b32 {sr(sI)}, 0')
        a(f's_mov_b32 {sr(sJ)}, 0')
        a.label(f'{name}_ev')
        dep3 = opts.get('dep3', 3)
        LANDED = f'''s_getreg_b32 {sr(sT)}, hwreg(HW_REG_IB_STS)
s_bfe_u32 {sr(sT2)}, {sr(sT)}, 0x20016
s_lshl_b32 {sr(sT2)}, {sr(sT2)}, 4
s_and_b32 {sr(sT)}, {sr(sT)}, 15
s_or_b32 {sr(sT)}, {sr(sT)}, {sr(sT2)}
s_add_u32 {sr(sT)}, {sr(sT)}, 6
s_sub_u32 {sr(sT2)}, {sr(sI)}, {sr(sJ)}
s_mul_i32 {sr(sT2)}, {sr(sT2)}, 6
s_cmp_le_u32 {sr(sT)}, {sr(sT2)}
s_cbranch_scc1 {name}_evc'''
        a(f's_cmp_lt_u32 {sr(sI)}, 4')
        a(f's_cbranch_scc0 {name}_evc')
        if dep3 < 4:
            a(f's_sub_u32 {sr(sT)}, {sr(sI)}, {sr(sJ)}')
            a(f's_cmp_ge_u32 {sr(sT)}, {dep3}')
            a(f's_cbranch_scc1 {name}_evc')
        read_rdy()
        a(f's_cbranch_scc0 {name}_evn')
        for i in range(4):
            if i < 3:
                a(f's_cmp_eq_u32 {sr(sI)}, {i}')
                a(f's_cbranch_scc0 {name}_evt{i}')
            loads(i)
            a(f's_mov_b32 {sr(sI)}, {i+1}')
            a(f's_branch {name}_ev')
            a.label(f'{name}_evt{i}')
        a.label(f'{name}_evn')
        a(LANDED)
        a(f's_branch {name}_ev')
        a.label(f'{name}_evc')
        for j in range(4):
            if j < 3:
                a(f's_cmp_eq_u32 {sr(sJ)}, {j}')
                a(f's_cbranch_scc0 {name}_evk{j}')
            for p in range(2):
                for t in range(5):
                    for r in rdW3(p, j, p, t): a(r)
            for k in range(4, j + 1, -1):
                a(f's_cmp_eq_u32 {sr(sI)}, {k}')
                a(f's_cbranch_scc0 {name}_evw{j}_{k}')
                a(f's_waitcnt vmcnt({6*(k-j-1)})')
                a(f's_branch {name}_evx{j}')
                a.label(f'{name}_evw{j}_{k}')
            a('s_waitcnt vmcnt(0)')
            a.label(f'{name}_evx{j}')
            if sset == 3 and j in (0, 3): st()
            if j in (0, 3): st6()
            for p in range(5):
                fs = p % 2
                a(f's_waitcnt lgkmcnt({10 if p < 4 else 0})')
                for t in range(5):
                    a(f'v_mfma_f32_16x16x32_bf16 {vr(acc3[t],4)}, {vr(Wg[fs][t],4)}, {vr(A[j][p],4)}, {vr(acc3[t],4)}')
                    if p + 2 < 5:
                        for r in rdW3(fs, j, p + 2, t): a(r)
            if j < 3:
                a(f's_mov_b32 {sr(sJ)}, {j+1}')
                a(f's_branch {name}_ev')
                a.label(f'{name}_evk{j}')
    else:
        st0()
        steps = [(j, p) for j in range(4) for p in range(5)]
        for j in range(4):
            take_group(j)
        for n in range(2):
            for t in range(5):
                for r in rdW3(n, *steps[n], t): a(r)
        left = {0: 5, 1: 3, 2: 2, 3: 0, 4: 0}
        for n, (j, p) in enumerate(steps):
            fs = n % 2
            a(f's_waitcnt vmcnt({6*(3-j) + left[p]}) lgkmcnt({10 if n < 19 else 0})')
            if sset == 3 and n in (0, 18): st()
            for t in range(5):
                a(f'v_mfma_f32_16x16x32_bf16 {vr(acc3[t],4)}, {vr(Wg[fs][t],4)}, {vr(A[j][p],4)}, {vr(acc3[t],4)}')
                if n + 2 < 20:
                    for r in rdW3(fs, *steps[n+2], t): a(r)

    a('s_nop 3')
    st0()
    if sset == 3: st()
    OUTF = {0: '', 1: ' nt', 2: ' sc1', 3: ' sc0 sc1', 4: ' sc1 nt', 5: ' sc0 sc1 nt'}[opts.get('outf', 2)]
    if opts.get('ow', 1):
        for t in range(5):
            a(f'v_cvt_pk_bf16_f32 {vr(acc3[t])}, {vr(acc3[t])}, {vr(acc3[t]+1)}')
            a(f'v_cvt_pk_bf16_f32 {vr(acc3[t]+1)}, {vr(acc3[t]+2)}, {vr(acc3[t]+3)}')
            a(f'ds_write_b64 {vr(vOw)}, {vr(acc3[t],2)} offset:{t*32}')
        a('s_waitcnt lgkmcnt(0)')
        for k in range(3):
            a(f'ds_read_b128 {vr(Wg[0][k],4)}, {vr(vOr)} offset:{k*1024}')
        for k in range(3):
            a(f's_waitcnt lgkmcnt({2-k})')
            a(f'buffer_store_dwordx4 {vr(Wg[0][k],4)}, {vr(vOs[k])}, {sr(SOUT,4)}, {sr(sOo)} offen{OUTF}')
    else:
        for t in range(5):
            a(f'v_cvt_pk_bf16_f32 {vr(acc3[t])}, {vr(acc3[t])}, {vr(acc3[t]+1)}')
            a(f'v_cvt_pk_bf16_f32 {vr(acc3[t]+1)}, {vr(acc3[t]+2)}, {vr(acc3[t]+3)}')
            a(f'buffer_store_dwordx2 {vr(acc3[t],2)}, {vr(vOo)}, {sr(SOUT,4)}, 0 offen offset:{t*32}{OUTF}')

    if sset == 5:
        st(); st()
    if dbgt:
        a('s_waitcnt vmcnt(0)')
        rts(5)
        a('s_mov_b64 exec, 1')
        a(f's_not_b32 s62, s62')
        for k in range(6):
            a(f'v_mov_b32 {vr(vT0)}, {4+4*k}')
            a(f'v_mov_b32 {vr(vT1)}, s{62+2*k}')
            a(f'buffer_atomic_umax {vr(vT1)}, {vr(vT0)}, {sr(SDBG,4)}, 0 offen')
            a('s_nop 1')
    if st.on:
        a('s_waitcnt vmcnt(0)')
    st(); st.rt(); st.flush(sW)
    n_total = st.n
    a.label(f'{name}_done')
    a('s_endpgm')

    if nobar:
        for rep in range(unroll):
            a.label(f'{name}_spin{rep}')
            a(f'''ds_read_b64 {vr(vPw,2)}, {vr(vPa)}
s_waitcnt lgkmcnt(0)
v_readfirstlane_b32 {sr(sT)}, {vr(vPw)}''')
            if nobar == 2:
                a(f'''v_readfirstlane_b32 {sr(sT2)}, {vr(vPw+1)}
s_add_u32 {sr(sT2)}, {sr(sT2)}, {1 + opts.get("slack", 0)}
s_min_u32 {sr(sT)}, {sr(sT)}, {sr(sT2)}''')
            a(f'''s_cmp_gt_u32 {sr(sT)}, {sr(sT3)}
s_cbranch_scc0 {name}_spin{rep}
s_branch {name}_spun{rep}''')
    if g1s:
        a.label(f'{name}_g1w')
        a(f'''v_mov_b32 {vr(vT0)}, {LW_G1}
ds_read_b32 {vr(vT0)}, {vr(vT0)}
s_waitcnt lgkmcnt(0)
v_readfirstlane_b32 {sr(sT)}, {vr(vT0)}
s_cmp_eq_u32 {sr(sT)}, 0
s_cbranch_scc1 {name}_g1w
s_branch {name}_g1r''')
    for k, force in enumerate(sigpts):
        a.label(f'{name}_sg{k}')
        if not force:
            a(f'''s_getreg_b32 {sr(sT)}, hwreg(HW_REG_IB_STS)
s_and_b32 {sr(sT)}, {sr(sT)}, 0xc0000f
s_cbranch_scc1 {name}_sgr{k}''')
        sig_code(f'{name}_sgn{k}', 4)
        a(f's_mov_b32 {sr(sSig)}, 0')
        a(f's_branch {name}_sgr{k}')
    a.label(f'{name}_fallback')
    M = [vT4, vT5]
    vVo = vPa
    a(f'''v_cndmask_b32_e64 {vr(Q2[0])}, {vr(Q2[0])}, 0, {sr(sHi,2)}
v_cndmask_b32_e64 {vr(Q2[0]+1)}, {vr(Q2[0]+1)}, 0, {sr(sHi,2)}
v_cndmask_b32_e64 {vr(Q2[1])}, {vr(Q2[1])}, 0, {sr(sHi,2)}
v_cndmask_b32_e64 {vr(Q2[1]+1)}, {vr(Q2[1]+1)}, 0, {sr(sHi,2)}
v_mov_b32 {vr(M[0])}, 0xff800000
v_mov_b32 {vr(M[1])}, 0xff800000
v_mov_b32 {vr(vT1)}, {OOB}
s_lshr_b32 {sr(sT)}, {sr(sW)}, 1
s_mul_i32 {sr(sT)}, {sr(sT)}, 10240
v_subrev_u32 {vr(vT0)}, {sr(sT)}, {vr(vbV)}
v_cmp_eq_u32 vcc, 1, {vr(vmV)}
s_mov_b32 {sr(sT)}, {sr(sKV)}
s_mov_b32 {sr(sG)}, 0
v_cndmask_b32 {vr(vVo)}, {vr(vT1)}, {vr(vT0)}, vcc
s_mov_b64 {sr(sM2,2)}, vcc
s_waitcnt vmcnt(0)''')
    a.label(f'{name}_fb1')
    a(f'''buffer_load_dwordx4 {vr(K1[0],4)}, {vr(vQo)}, {sr(SWS,4)}, {sr(sT)} offen{SC}
buffer_load_dwordx2 {vr(K2[0],2)}, {vr(vQo2)}, {sr(SWS,4)}, {sr(sT)} offen{SC}
s_waitcnt vmcnt(0)''')
    qk16(0, 0); qk16(1, 0); qk8(0, 0); qk8(1, 0)
    a('s_nop 15')
    for t in range(2):
        rowmax(t, vT0)
        a(f'v_max_f32 {vr(M[t])}, {vr(M[t])}, {vr(vT0)}')
    a(f'''s_add_u32 {sr(sT)}, {sr(sT)}, 2560
s_add_u32 {sr(sG)}, {sr(sG)}, 1
s_cmp_lt_u32 {sr(sG)}, 64
s_cbranch_scc1 {name}_fb1''')
    for t in range(2):
        crosshalf(M[t], vT1)
        a(f'v_max_f32 {vr(M[t])}, {vr(M[t])}, {vr(vT1)}')
        for i in range(16):
            a(f'v_mov_b32 {vr(O[t]+i)}, 0')
    a(f's_mov_b32 {sr(sT)}, {sr(sKV)}')
    a(f's_mov_b32 {sr(sG)}, 0')
    a(f'v_mov_b32 {vr(vT1)}, 0x3f803f80')
    a.label(f'{name}_fb2')
    a(f'''buffer_load_dwordx4 {vr(K1[0],4)}, {vr(vQo)}, {sr(SWS,4)}, {sr(sT)} offen{SC}
buffer_load_dwordx2 {vr(K2[0],2)}, {vr(vQo2)}, {sr(SWS,4)}, {sr(sT)} offen{SC}
buffer_load_dwordx4 {vr(V0[0],4)}, {vr(vVo)}, {sr(SWS,4)}, {sr(sT)} offen{SC}
buffer_load_dwordx4 {vr(V1[0],4)}, {vr(vVo)}, {sr(SWS,4)}, {sr(sT)} offen offset:640{SC}
s_waitcnt vmcnt(0)''')
    qk16(0, 0); qk16(1, 0); qk8(0, 0); qk8(1, 0)
    for i in range(4):
        a(f'v_cndmask_b32_e64 {vr(V0[0]+i)}, {vr(vT1)}, {vr(V0[0]+i)}, {sr(sM2,2)}')
        a(f'v_cndmask_b32_e64 {vr(V1[0]+i)}, {vr(vT1)}, {vr(V1[0]+i)}, {sr(sM2,2)}')
    a('s_nop 15')
    for t in range(2):
        for i in range(16):
            a(f'v_sub_f32 {vr(S[t]+i)}, {vr(S[t]+i)}, {vr(M[t])}')
        for i in range(16):
            ex(t, i)
    a('s_nop 1')
    for t in range(2):
        pv(t, 0, 0); pv(t, 0, 1)
    a(f'''s_add_u32 {sr(sT)}, {sr(sT)}, 2560
s_add_u32 {sr(sG)}, {sr(sG)}, 1
s_cmp_lt_u32 {sr(sG)}, 64
s_cbranch_scc1 {name}_fb2''')
    a('s_nop 15')
    a(f's_mov_b32 {sr(sI)}, 1')
    a(f's_branch {name}_store')

    a.label(f'{name}_helper')
    st.n = n_common
    V = VAlloc(VBASE)
    vEp = V(); vL16 = V(); vFl = V()
    VH = V.n
    a('s_setprio 3')
    a(SRDS)
    if opts.get('cpf', 0):
        a(f'''s_getpc_b64 {sr(sM,2)}
{name}_pc:
s_sub_u32 {sr(sM)}, {sr(sM)}, {name}_pc - {name}
s_subb_u32 {sr(sM+1)}, {sr(sM+1)}, 0
s_lshr_b32 {sr(sT)}, s2, 3
v_lshlrev_b32 {vr(vT0)}, 5, {vr(vLane)}
v_add_u32 {vr(vT0)}, {sr(sT)}, {vr(vT0)}
v_lshlrev_b32 {vr(vT0)}, 7, {vr(vT0)}
v_min_u32 {vr(vT0)}, {name}_end - {name} - 4, {vr(vT0)}
s_mov_b64 exec, 0xfff
global_load_dword {vr(vFl)}, {vr(vT0)}, {sr(sM,2)}
s_mov_b64 exec, -1''')
    elate = opts.get('elate', 0)
    if not elate:
        a(f'v_mov_b32 {vr(vT0)}, {F_EPOCH}')
        a(f'buffer_load_dword {vr(vEp)}, {vr(vT0)}, {sr(SWS,4)}, 0 offen{SC}')
    stl = opts.get('stl', 0)
    if stl:
        ns = max(ns, 72)
        if stl & 1:
            a(f's_mul_i32 {sr(sT)}, {sr(sMt3)}, {128*2560}')
            a(f's_load_dword s64, {sr(SOUT,2)}, {sr(sT)}')
            a(f's_add_u32 {sr(sT)}, {sr(sT)}, {128*2560-4}')
            a(f's_load_dword s65, {sr(SOUT,2)}, {sr(sT)}')
        if stl & 2:
            a(f's_load_dword s66, {sr(SWO,2)}, 0')
        if stl & 4:
            a(f's_load_dword s67, {sr(SWS,2)}, {sr(sKV)}')
            a(f's_add_u32 {sr(sT)}, {sr(sKV)}, {4*KV_HEAD-4}')
            a(f's_load_dword s68, {sr(SWS,2)}, {sr(sT)}')
        if stl & 8:
            for k, m in ((69, sMt), (70, sMt3)):
                a(f's_lshl_b32 {sr(sT)}, {sr(sB)}, 4')
                a(f's_add_u32 {sr(sT)}, {sr(sT)}, {sr(m)}')
                a(f's_mul_i32 {sr(sT)}, {sr(sT)}, {2*32*2560}')
                a(f's_add_u32 {sr(sT)}, {sr(sT)}, {F_WS_O}')
                a(f's_load_dword s{k}, {sr(SWS,2)}, {sr(sT)}')
    tlb = opts.get('tlb', 0)
    if tlb & 1:
        a(f'''v_lshlrev_b32 {vr(vT1)}, 18, {vr(vLane)}
buffer_load_dword {vr(vFl)}, {vr(vT1)}, {sr(SWS,4)}, 0 offen''')
    if tlb & 2:
        a(f'''v_lshlrev_b32 {vr(vT1)}, 18, {vr(vLane)}
buffer_load_dword {vr(vT2)}, {vr(vT1)}, {sr(SOUT,4)}, 0 offen
buffer_load_dword {vr(vT3)}, {vr(vT1)}, {sr(SWO,4)}, 0 offen''')
    if tlb & 4:
        a(f'''v_lshlrev_b32 {vr(vT1)}, 21, {vr(vLane)}
buffer_load_dword {vr(vFl)}, {vr(vT1)}, {sr(SWS,4)}, 0 offen
buffer_load_dword {vr(vT4)}, {vr(vT1)}, {sr(SOUT,4)}, 0 offen
buffer_load_dword {vr(vT5)}, {vr(vT1)}, {sr(SWO,4)}, 0 offen''')
    a(f'v_lshlrev_b32 {vr(vL16)}, 4, {vr(vLane)}')
    vP = V(); vC8 = V(8); vPwa = V(); vFu = V(); vPo1 = V(); vPo2 = V(); vPo = V(); vLw = V()
    vW3 = [V() for _ in range(5)]
    vPf = [V() for _ in range(4)]
    vHX = [V() for _ in range(4)]
    vHW = [V() for _ in range(15)]
    vIx = V(); vIw = V(); vSx = V(); vSw = V(); vJ = [V() for _ in range(6)]
    done_alloc(V)
    if stag:
        a(f'''s_lshr_b32 {sr(sT)}, s2, 3
s_and_b32 {sr(sT2)}, s2, 1
s_lshl_b32 {sr(sT2)}, {sr(sT2)}, 5
s_add_u32 {sr(sT2)}, {sr(sT2)}, {sr(sT)}
s_lshl_b32 {sr(sT2)}, {sr(sT2)}, 5
v_and_b32 {vr(vT0)}, 31, {vr(vLane)}
v_add_u32 {vr(vT2)}, {sr(sT2)}, {vr(vT0)}
v_mul_u32_u24 {vr(vT2)}, 1280, {vr(vT2)}
v_lshrrev_b32 {vr(vT1)}, 5, {vr(vLane)}
v_lshl_add_u32 {vr(vIx)}, {vr(vT1)}, 7, {vr(vT2)}
buffer_load_dword {vr(vJ[0])}, {vr(vIx)}, {sr(SX,4)}, 0 offen
v_cmp_le_u32 vcc, 15, {vr(vT0)}
s_lshl_b32 {sr(sT)}, {sr(sT)}, 1
s_bfe_u32 {sr(sT2)}, s2, 0x10001
v_cndmask_b32_e64 {vr(vT2)}, 0, 1, vcc
v_mul_u32_u24 {vr(vT3)}, 15, {vr(vT2)}
v_sub_u32 {vr(vT3)}, {vr(vT0)}, {vr(vT3)}
v_lshl_add_u32 {vr(vT2)}, {vr(vT1)}, 6, {vr(vT2)}
v_add_u32 {vr(vT2)}, {sr(sT)}, {vr(vT2)}
v_mul_u32_u24 {vr(vT2)}, 3840, {vr(vT2)}
v_mul_u32_u24 {vr(vT4)}, 52, {vr(vT3)}
v_lshrrev_b32 {vr(vT4)}, 8, {vr(vT4)}
v_mul_u32_u24 {vr(vT4)}, {1280-640}, {vr(vT4)}
v_lshl_add_u32 {vr(vT4)}, {vr(vT3)}, 7, {vr(vT4)}
s_mul_i32 {sr(sT2)}, {sr(sT2)}, 640
v_add3_u32 {vr(vIw)}, {vr(vT2)}, {vr(vT4)}, {sr(sT2)}
v_cmp_le_u32 vcc, 30, {vr(vT0)}
v_mov_b32 {vr(vT2)}, {OOB}
s_mov_b32 {sr(sT)}, {128*3840}
v_cndmask_b32 {vr(vIw)}, {vr(vIw)}, {vr(vT2)}, vcc
buffer_load_dword {vr(vJ[1])}, {vr(vIw)}, {sr(SWQ,4)}, 0 offen''')
        if stag >= 2:
            a(f'buffer_load_dword {vr(vJ[2])}, {vr(vIx)}, {sr(SX,4)}, 0 offen offset:256')
            a(f'buffer_load_dword {vr(vJ[3])}, {vr(vIw)}, {sr(SWQ,4)}, {sr(sT)} offen')
        a(f'''s_bfe_u32 {sr(sT)}, s2, 0x30003
s_and_b32 {sr(sI)}, s2, 1
s_lshl_b32 {sr(sI)}, {sr(sI)}, 3
s_add_u32 {sr(sI)}, {sr(sI)}, {sr(sT)}
s_lshl_b32 {sr(sI)}, {sr(sI)}, 7
v_add_u32 {vr(vT0)}, {sr(sI)}, {vr(vLane)}
v_mul_u32_u24 {vr(vSx)}, 1280, {vr(vT0)}
v_mul_u32_u24 {vr(vT1)}, 4370, {vr(vLane)}
v_lshrrev_b32 {vr(vT1)}, 16, {vr(vT1)}
v_mul_u32_u24 {vr(vT2)}, 15, {vr(vT1)}
v_sub_u32 {vr(vT3)}, {vr(vLane)}, {vr(vT2)}
s_lshl_b32 {sr(sT)}, {sr(sT)}, 3
v_add_u32 {vr(vT1)}, {sr(sT)}, {vr(vT1)}
v_mul_u32_u24 {vr(vT1)}, 3840, {vr(vT1)}
v_mul_u32_u24 {vr(vT4)}, 52, {vr(vT3)}
v_lshrrev_b32 {vr(vT4)}, 8, {vr(vT4)}
v_mul_u32_u24 {vr(vT4)}, {1280-640}, {vr(vT4)}
v_lshl_add_u32 {vr(vT4)}, {vr(vT3)}, 7, {vr(vT4)}
v_add3_u32 {vr(vSw)}, {vr(vT1)}, {vr(vT4)}, {sr(sT2)}
v_cmp_le_u32 vcc, 60, {vr(vLane)}
v_mov_b32 {vr(vT2)}, {OOB}
s_lshr_b32 {sr(sM0a)}, s2, 6
v_cndmask_b32 {vr(vSw)}, {vr(vSw)}, {vr(vT2)}, vcc''')
    sgid = [0]
    def stag_pf():
        if not stag: return
        n = sgid[0]; sgid[0] += 1
        AH = opts.get('ahead', 2)
        a(f'''s_add_u32 {sr(sT)}, {sr(sKK)}, {1 + AH}
s_and_b32 {sr(sT2)}, {sr(sT)}, 3
s_cmp_eq_u32 {sr(sT2)}, {sr(sM0a)}
s_cselect_b32 {sr(sT2)}, {sr(sT)}, 99
s_cmp_lt_u32 {sr(sT2)}, {2*stag}
s_cselect_b32 {sr(sT2)}, 99, {sr(sT2)}
s_cmp_lt_u32 {sr(sT2)}, 10
s_cbranch_scc0 {name}_sp{n}
s_lshl_b32 {sr(sT2)}, {sr(sT)}, 7
buffer_load_dword {vr(vJ[0])}, {vr(vSx)}, {sr(SX,4)}, {sr(sT2)} offen
s_add_u32 {sr(sT2)}, {sr(sT2)}, {64*1280}
buffer_load_dword {vr(vJ[1])}, {vr(vSx)}, {sr(SX,4)}, {sr(sT2)} offen
s_mul_i32 {sr(sT2)}, {sr(sT)}, {64*3840}
buffer_load_dword {vr(vJ[2])}, {vr(vSw)}, {sr(SWQ,4)}, {sr(sT2)} offen
s_add_u32 {sr(sT2)}, {sr(sT2)}, {4*3840}
buffer_load_dword {vr(vJ[3])}, {vr(vSw)}, {sr(SWQ,4)}, {sr(sT2)} offen''')
        a.label(f'{name}_sp{n}')
    a(f'''{XROW}
v_lshrrev_b32 {vr(vT0)}, 3, {vr(vLane)}
v_add_u32 {vr(vT0)}, {sr(sT)}, {vr(vT0)}
v_mul_u32_u24 {vr(vT0)}, 1280, {vr(vT0)}
v_lshrrev_b32 {vr(vT1)}, 4, {vr(vLane)}
v_and_b32 {vr(vT3)}, 7, {vr(vLane)}
v_xor_b32 {vr(vT2)}, {vr(vT1)}, {vr(vT3)}
v_lshl_add_u32 {vr(vHX[0])}, {vr(vT2)}, 4, {vr(vT0)}
v_xor_b32 {vr(vT2)}, 64, {vr(vHX[0])}
v_add_u32 {vr(vHX[1])}, {10240-1024}, {vr(vT2)}
v_add_u32 {vr(vHX[2])}, {2*(10240-1024)}, {vr(vHX[0])}
v_add_u32 {vr(vHX[3])}, {3*(10240-1024)}, {vr(vT2)}''')
    for pi in range(15):
        a(f's_sub_u32 {sr(sT)}, {sr(sT3)}, {(pi%4)*1024}')
        w_pattern(vHW[pi], f'v_add_u32 {vr(vT0)}, {64*pi}, {vr(vLane)}', sr(sT))
    def next_k():
        a(f'''s_add_u32 {sr(sKK)}, {sr(sKK)}, 1
s_cmp_eq_u32 {sr(sKK)}, 10
s_cselect_b32 {sr(sKK)}, 0, {sr(sKK)}
s_lshl_b32 {sr(sXo)}, {sr(sKK)}, 7
s_mul_i32 {sr(sWo)}, {sr(sKK)}, {64*3840}''')
    def issue_x():
        for jj in range(8 if opts.get('hack64') else 16):
            if jj % 4 == 0:
                a(f's_add_u32 m0, {sr(sSlot)}, {jj*1024}')
                a(f's_add_u32 {sr(sT)}, {sr(sXo)}, {jj*10240}')
            a(f'buffer_load_dwordx4 {vr(vHX[jj%4])}, {sr(SX,4)}, {sr(sT)} offen offset:{(jj%4)*1024} lds')
    def issue_w():
        for half in range(2):
            for pi in range(15):
                if pi % 4 == 0:
                    a(f's_add_u32 m0, {sr(sSlot)}, {XSZ + half*15360 + pi*1024}')
                    a(f's_add_u32 {sr(sT)}, {sr(sWo)}, {half*32*3840}')
                a(f'buffer_load_dwordx4 {vr(vHW[pi])}, {sr(SWQ,4)}, {sr(sT)} offen offset:{(pi%4)*1024} lds')
    def issue_stage():
        stag_pf(); next_k(); issue_x(); issue_w()
        a(f'''s_add_u32 {sr(sSlot)}, {sr(sSlot)}, {STG}
s_cmp_ge_u32 {sr(sSlot)}, {3*STG}
s_cselect_b32 {sr(sSlot)}, 0, {sr(sSlot)}''')
    pfw = opts.get('pfw', 1) and not stag and not opts.get('rot0')
    if pfw:
        a(f'''s_lshr_b32 {sr(sT)}, s2, 6
s_mul_i32 {sr(sT)}, {sr(sT)}, 3
s_add_u32 {sr(sT)}, {sr(sT)}, 8
s_bfe_u32 {sr(sT2)}, s2, 0x30003
s_lshr_b32 {sr(sI)}, {sr(sT2)}, 2
s_add_u32 {sr(sT)}, {sr(sT)}, {sr(sI)}
s_cmp_ge_u32 {sr(sT)}, 10
s_cselect_b32 {sr(sI)}, 10, 0
s_sub_u32 {sr(sT)}, {sr(sT)}, {sr(sI)}
s_lshl_b32 {sr(sT)}, {sr(sT)}, 6
s_and_b32 {sr(sT2)}, {sr(sT2)}, 3
s_lshl_b32 {sr(sT2)}, {sr(sT2)}, 4
s_add_u32 {sr(sT)}, {sr(sT)}, {sr(sT2)}
s_mul_i32 {sr(sT)}, {sr(sT)}, 3840
s_add_u32 {sr(sRdy)}, {sr(sT)}, {sr(sT3)}
v_lshrrev_b32 {vr(vT0)}, 3, {vr(vLane)}
v_mul_u32_u24 {vr(vT0)}, 3840, {vr(vT0)}
v_bfe_u32 {vr(vT1)}, {vr(vLane)}, 1, 2
v_mul_u32_u24 {vr(vT2)}, 1280, {vr(vT1)}
v_and_b32 {vr(vT3)}, 1, {vr(vLane)}
v_mul_u32_u24 {vr(vT3)}, 156, {vr(vT3)}
v_add3_u32 {vr(vT0)}, {vr(vT0)}, {vr(vT2)}, {vr(vT3)}
v_cmp_eq_u32 vcc, 3, {vr(vT1)}
v_mov_b32 {vr(vT2)}, {OOB}
s_nop 0
v_cndmask_b32 {vr(vPo)}, {vr(vT0)}, {vr(vT2)}, vcc''')
    a(f's_mov_b32 {sr(sSlot)}, {STG}')
    st1()
    a('s_barrier')
    st1()
    if elate:
        a(f'v_mov_b32 {vr(vT0)}, {F_EPOCH}')
        a(f'buffer_load_dword {vr(vEp)}, {vr(vT0)}, {sr(SWS,4)}, 0 offen{SC}')
    if pfw:
        a(f'buffer_load_dword {vr(vPf[0])}, {vr(vPo)}, {sr(SWQ,4)}, {sr(sRdy)} offen')
        a(f's_add_u32 {sr(sRdy)}, {sr(sRdy)}, {8*3840}')
        a(f'buffer_load_dword {vr(vPf[1])}, {vr(vPo)}, {sr(SWQ,4)}, {sr(sRdy)} offen')
    if opts.get('xfirst', 0):
        next_k(); issue_x()
        a(f's_mov_b32 {sr(sSrc)}, {sr(sWo)}')
        a(f's_mov_b32 {sr(sSlot)}, {2*STG}')
        next_k(); issue_x()
        st1()
        if opts.get('xfirst') == 1: a('s_barrier')
        a(f's_mov_b32 {sr(sSlot)}, {STG}')
        a(f's_mov_b32 {sr(sI)}, {sr(sWo)}')
        a(f's_mov_b32 {sr(sWo)}, {sr(sSrc)}')
        issue_w()
        if opts.get('xfirst') == 2: a('s_barrier')
        a(f's_mov_b32 {sr(sSlot)}, {2*STG}')
        a(f's_mov_b32 {sr(sWo)}, {sr(sI)}')
        issue_w()
        a(f's_mov_b32 {sr(sSlot)}, 0')
        a('s_waitcnt vmcnt(30)')
        a('s_barrier')
        st1()
        a(f's_mov_b32 {sr(sI)}, 1')
    else:
        issue_stage()
        st1()
        a('s_barrier')
        st1()
        a(f's_mov_b32 {sr(sI)}, 0')
    a.label(f'{name}_hg')
    issue_stage()
    a(f's_waitcnt vmcnt({38 if opts.get("hack64") else 46})')
    a('s_barrier')
    a(f's_add_u32 {sr(sI)}, {sr(sI)}, 1')
    a(f's_cmp_lt_u32 {sr(sI)}, 8')
    a(f's_cbranch_scc1 {name}_hg')
    st1()
    a(f'''s_lshl_b32 {sr(sT)}, {sr(sB)}, 3
s_add_u32 {sr(sT)}, {sr(sT)}, {sr(sHg)}
s_lshl_b32 {sr(sT)}, {sr(sT)}, 8
s_add_u32 {sr(sT)}, {sr(sT)}, {F_FLAG1}
s_mov_b32 {sr(sM0a)}, {sr(sT)}
v_lshl_add_u32 {vr(vT0)}, {vr(vLane)}, 2, {sr(sT)}
v_cmp_gt_u32 vcc, 16, {vr(vLane)}
v_mov_b32 {vr(vT1)}, {OOB}
s_lshl_b32 {sr(sT)}, {sr(sB)}, 4
v_cndmask_b32 {vr(vPo1)}, {vr(vT1)}, {vr(vT0)}, vcc
s_add_u32 {sr(sT)}, {sr(sT)}, {sr(sMt3)}
s_lshl_b32 {sr(sT)}, {sr(sT)}, 8
s_add_u32 {sr(sT)}, {sr(sT)}, {F_FLAG2}
s_mov_b32 {sr(sM0b)}, {sr(sT)}
v_lshl_add_u32 {vr(vT0)}, {vr(vLane)}, 2, {sr(sT)}
v_cmp_gt_u32 vcc, 8, {vr(vLane)}
v_mov_b32 {vr(vLw)}, {LW_RDY}
s_mul_i32 {sr(sT3)}, {sr(sCg)}, 160
v_cndmask_b32 {vr(vPo2)}, {vr(vT1)}, {vr(vT0)}, vcc''')
    for r in range(5):
        a(f'''v_add_u32 {vr(vT0)}, {64*r}, {vr(vLane)}
v_mul_u32_u24 {vr(vT1)}, 6554, {vr(vT0)}
v_lshrrev_b32 {vr(vT1)}, 16, {vr(vT1)}
v_mul_u32_u24 {vr(vT1)}, {1280-160}, {vr(vT1)}
v_lshl_add_u32 {vr(vT0)}, {vr(vT0)}, 4, {vr(vT1)}
v_add_u32 {vr(vT0)}, {sr(sT3)}, {vr(vT0)}
v_subrev_u32 {vr(vW3[r])}, {(r%4)*1024}, {vr(vT0)}''')
    a(f'''s_lshr_b32 {sr(sT)}, s2, 3
s_mul_i32 {sr(sT)}, {sr(sT)}, {20*1280}
v_lshl_add_u32 {vr(vT0)}, {vr(vLane)}, 7, {sr(sT)}
v_cmp_gt_u32 vcc, 50, {vr(vLane)}
v_mov_b32 {vr(vT1)}, {OOB}
s_mov_b32 {sr(sRdy)}, 0
v_cndmask_b32 {vr(vPo)}, {vr(vT1)}, {vr(vT0)}, vcc
v_readfirstlane_b32 {sr(sTag)}, {vr(vEp)}
s_lshl_b32 {sr(sDone)}, 1, {sr(sMt)}
s_waitcnt vmcnt({15 if hsplit else 0})
s_add_u32 {sr(sTag)}, {sr(sTag)}, {TAGK}
s_barrier''')
    if early == 1:
        a(f'buffer_load_dword {vr(vP)}, {vr(vPo1)}, {sr(SWS,4)}, 0 offen{SC}')
    a(f'''v_bfe_u32 {vr(vT2)}, {vr(vLane)}, 1, 2
v_mul_u32_u24 {vr(vT2)}, 2560, {vr(vT2)}
v_and_b32 {vr(vT3)}, 1, {vr(vLane)}
v_mul_u32_u24 {vr(vT3)}, 640, {vr(vT3)}
v_add_u32 {vr(vT2)}, {vr(vT2)}, {vr(vT3)}
v_add_u32 {vr(vT2)}, {ONES}, {vr(vT2)}
v_mov_b32 {vr(vC8)}, 0x3f803f80
v_mov_b32 {vr(vC8+1)}, 0x3f803f80
v_mov_b32 {vr(vC8+2)}, 0x3f803f80
v_mov_b32 {vr(vC8+3)}, 0x3f803f80
v_mov_b32 {vr(vC8+4)}, 0
v_mov_b32 {vr(vC8+5)}, 0
v_mov_b32 {vr(vC8+6)}, 0
v_mov_b32 {vr(vC8+7)}, 0
s_mov_b32 {sr(sI)}, 1
s_mov_b32 {sr(sSlot)}, {phys(1)*SLOT}
s_waitcnt vmcnt(0)''')
    if hsplit: a('s_barrier')
    def lds_init():
        a(f'''s_barrier
ds_write_b128 {vr(vT2)}, {vr(vC8,4)}
ds_write_b128 {vr(vT2)}, {vr(vC8+4,4)} offset:16
ds_write_b128 {vr(vLw)}, {vr(vC8+4,4)}
ds_write_b128 {vr(vLw)}, {vr(vC8+4,4)} offset:16''')
    def e_bars():
        a('s_waitcnt lgkmcnt(0)')
        a('s_barrier')
        if not one_e: a('s_barrier')
    gid = [0]
    def smask(n, off, dst):
        a(f's_load_dwordx{n} s[64:{63+n}], s[6:7], {sr(off)} glc')
        a(f's_mov_b32 {sr(dst)}, 0')
        a('s_waitcnt lgkmcnt(0)')
        for i in range(n - 1, -1, -1):
            a(f's_cmp_eq_u32 s{64+i}, {sr(sTag)}')
            a(f's_addc_u32 {sr(dst)}, {sr(dst)}, {sr(dst)}')
    if spoll: ns = max(ns, 80)
    def issue_group(qmajor=False):
        n = gid[0]; gid[0] += 1
        a(f'''s_andn2_b32 {sr(sT)}, {sr(sRdy)}, {sr(sDone)}
s_cbranch_scc1 {name}_pd{n}
s_mov_b32 {sr(sCnt)}, {POLL_LIMIT}''')
        a.label(f'{name}_pl{n}')
        if spoll & 1:
            smask(16, sM0a, sRdy)
        else:
            a(f'''buffer_load_dword {vr(vP)}, {vr(vPo1)}, {sr(SWS,4)}, 0 offen{SC}
s_waitcnt vmcnt(0)
v_cmp_eq_u32 vcc, {sr(sTag)}, {vr(vP)}
s_and_b32 {sr(sRdy)}, vcc_lo, 0xffff''')
        a(f'''s_andn2_b32 {sr(sT)}, {sr(sRdy)}, {sr(sDone)}
s_cbranch_scc1 {name}_pd{n}
{'s_sleep 1' if opts.get('sl1', 0) else 's_nop 0'}
s_sub_u32 {sr(sCnt)}, {sr(sCnt)}, 1
s_cmp_lg_u32 {sr(sCnt)}, 0
s_cbranch_scc1 {name}_pl{n}
s_mov_b32 {sr(sRdy)}, 0xffff
s_andn2_b32 {sr(sT)}, {sr(sRdy)}, {sr(sDone)}''')
        a.label(f'{name}_pd{n}')
        g_select(); g_loads(0, 40, qmajor); g_finish()
    def g_select():
        a(f'''s_lshl_b32 {sr(sT2)}, {sr(sT)}, 16
s_or_b32 {sr(sT)}, {sr(sT)}, {sr(sT2)}
s_lshr_b32 {sr(sT)}, {sr(sT)}, {sr(sMt)}
s_ff1_i32_b32 {sr(sT)}, {sr(sT)}
s_add_u32 {sr(sNeed)}, {sr(sT)}, {sr(sMt)}
s_and_b32 {sr(sNeed)}, {sr(sNeed)}, 15
s_bitset1_b32 {sr(sDone)}, {sr(sNeed)}
s_mul_i32 {sr(sT)}, {sr(sNeed)}, 10240
s_add_u32 {sr(sSrc)}, {sr(sKV)}, {sr(sT)}''')
    def g_loads(lo, hi, qmajor=False):
        order = [(hs, q) for hs in range(4) for q in range(10)]
        if qmajor:
            order = [(hs, q) for hs in range(4) for q in range(8)] + [(hs, q) for hs in range(4) for q in (8, 9)]
        for hs, q in order[lo:hi]:
            if q % 4 == 0:
                a(f's_add_u32 m0, {sr(sSlot)}, {hs*10240 + q*1024}')
                a(f's_add_u32 {sr(sT)}, {sr(sSrc)}, {hs*KV_HEAD + q*1024}')
            a(f'buffer_load_dwordx4 {vr(vL16)}, {sr(SWS,4)}, {sr(sT)} offen offset:{(q%4)*1024}{SLD} lds')
    def g_finish():
        if early:
            a(f'''s_sub_u32 {sr(sSlot)}, {sr(sSlot)}, {SLOT}
s_cselect_b32 {sr(sSlot)}, {2*SLOT}, {sr(sSlot)}
s_add_u32 {sr(sI)}, {sr(sI)}, 1''')
        else:
            a(f'''s_add_u32 {sr(sSlot)}, {sr(sSlot)}, {SLOT}
s_cmp_ge_u32 {sr(sSlot)}, {3*SLOT}
s_cselect_b32 {sr(sSlot)}, 0, {sr(sSlot)}
s_add_u32 {sr(sI)}, {sr(sI)}, 1''')
    if 'hprio' in opts: a(f's_setprio {opts["hprio"]}')
    wq = [0]
    def wait_prog(val):
        n = wq[0]; wq[0] += 1
        a.label(f'{name}_wp{n}')
        a(f'''ds_read_b32 {vr(vP)}, {vr(vPwa)} offset:4
s_waitcnt lgkmcnt(0)
v_cmp_le_u32 vcc, {val}, {vr(vP)}
s_and_b32 {sr(sT)}, vcc_lo, 0x1ff
s_cmp_eq_u32 {sr(sT)}, 0x1ff
s_cbranch_scc1 {name}_wpd{n}
s_sleep 2
s_branch {name}_wp{n}''')
        a.label(f'{name}_wpd{n}')
    def set_full(val):
        a(f'v_mov_b32 {vr(vFu)}, {val}')
        a(f'ds_write_b32 {vr(vPwa)}, {vr(vFu)}')
    if nobar:
        a(f'v_min_u32 {vr(vPwa)}, 8, {vr(vLane)}')
        a(f'v_lshlrev_b32 {vr(vPwa)}, 3, {vr(vPwa)}')
        a(f'v_add_u32 {vr(vPwa)}, {LW_PW}, {vr(vPwa)}')
    if early:
        if early == 1:
            a(f'''v_cmp_eq_u32 vcc, {sr(sTag)}, {vr(vP)}
s_and_b32 {sr(sRdy)}, vcc_lo, 0xffff''')
        else:
            smask(16, sM0a, sRdy)
        a(f'''s_andn2_b32 {sr(sT)}, {sr(sRdy)}, {sr(sDone)}
s_cbranch_scc0 {name}_ne''')
        g_select(); g_loads(0, 20)
        lds_init()
        g_loads(20, 40); g_finish()
        e_bars()
        a(f's_branch {name}_g1d')
        a.label(f'{name}_ne')
    lds_init()
    if early >= 2:
        smask(16, sM0a, sRdy)
        a(f'''s_andn2_b32 {sr(sT)}, {sr(sRdy)}, {sr(sDone)}
s_cbranch_scc0 {name}_ne2''')
        g_select(); g_loads(0, 40 if early == 2 else 24)
        if early == 2:
            g_finish(); e_bars()
        else:
            a('s_barrier')
            g_loads(24, 40); g_finish()
            a('s_barrier')
        a(f's_branch {name}_g1d')
        a.label(f'{name}_ne2')
    e_bars()
    issue_group(g1s)
    a.label(f'{name}_g1d')
    st0()
    if g1s:
        a('s_waitcnt vmcnt(8)')
        a('s_barrier')
        a(f'v_mov_b32 {vr(vP)}, 1')
        a('s_waitcnt vmcnt(0)')
        a(f'ds_write_b32 {vr(vLw)}, {vr(vP)} offset:16')
        issue_group()
    elif opts.get('b1', 1) and not nobar:
        a('s_waitcnt vmcnt(0)')
        a('s_barrier')
        issue_group()
    a.label(f'{name}_hl')
    if nobar:
        a('s_waitcnt vmcnt(0)')
        set_full(sr(sI))
        a(f's_max_u32 {sr(sSrc)}, {sr(sI)}, 2')
        a(f's_sub_u32 {sr(sSrc)}, {sr(sSrc)}, 2')
        wait_prog(sr(sSrc))
        issue_group()
    else:
        issue_group()
        a('s_waitcnt vmcnt(40)')
        a('s_barrier')
        if sset == 5 and st.on:
            for K in (5, 15):
                a(f's_cmp_eq_u32 {sr(sI)}, {K}')
                a(f's_cbranch_scc0 {name}_h5{K}')
                st()
                a.label(f'{name}_h5{K}')
    wid = [0]
    def wo_rows(r0, r1, lds):
        n = wid[0]; wid[0] += 1
        a(f's_mov_b32 {sr(sSrc)}, {r0*1280}')
        a(f's_mov_b32 {sr(sT2)}, {lds}')
        a.label(f'{name}_hw{n}x')
        a(f's_mov_b32 m0, {sr(sT2)}')
        a(f's_add_u32 {sr(sT)}, {sr(sT2)}, 4096')
        for r in range(4):
            a(f'buffer_load_dwordx4 {vr(vW3[r])}, {sr(SWO,4)}, {sr(sSrc)} offen offset:{r*1024} lds')
        a(f's_mov_b32 m0, {sr(sT)}')
        a(f's_add_u32 {sr(sT2)}, {sr(sT2)}, 5120')
        a(f'buffer_load_dwordx4 {vr(vW3[4])}, {sr(SWO,4)}, {sr(sSrc)} offen lds')
        a(f's_add_u32 {sr(sSrc)}, {sr(sSrc)}, {32*1280}')
        a(f's_cmp_lt_u32 {sr(sSrc)}, {r1*1280}')
        a(f's_cbranch_scc1 {name}_hw{n}x')
    a(f's_cmp_eq_u32 {sr(sI)}, 6')
    a(f's_cbranch_scc0 {name}_hnp')
    for q in range(4):
        a(f's_mov_b32 {sr(sT)}, {q*6400}')
        a(f'buffer_load_dword {vr(vPf[q])}, {vr(vPo)}, {sr(SWO,4)}, {sr(sT)} offen')
    a.label(f'{name}_hnp')
    a(f's_cmp_eq_u32 {sr(sI)}, 10')
    a(f's_cbranch_scc0 {name}_hnq')
    wo_rows(480, 640, QST)
    a.label(f'{name}_hnq')
    a(f's_cmp_lt_u32 {sr(sI)}, 16')
    a(f's_cbranch_scc1 {name}_hl')
    if nobar:
        a('s_waitcnt vmcnt(0)')
        set_full(64)
        wait_prog(14)
        wo_rows(0, 256, WO_LO)
        wait_prog(15)
    else:
        if early: wo_rows(256, 480, WO_LO + 40960)
        else: wo_rows(0, 256, WO_LO)
        a(f's_waitcnt vmcnt({35 if early else 40})')
        a('s_barrier')
    if early: wo_rows(0, 256, WO_LO)
    else: wo_rows(256, 480, WO_LO + 40960)
    a(f'''s_lshl_b32 {sr(sT)}, {sr(sB)}, 4
s_add_u32 {sr(sT)}, {sr(sT)}, {sr(sMt3)}
s_lshl_b32 {sr(sT)}, {sr(sT)}, 1
s_lshr_b32 {sr(sT2)}, {sr(sCg)}, 2
s_add_u32 {sr(sT)}, {sr(sT)}, {sr(sT2)}
s_mul_i32 {sr(sT)}, {sr(sT)}, {32*2560}
s_and_b32 {sr(sT2)}, {sr(sCg)}, 3
s_mul_i32 {sr(sT2)}, {sr(sT2)}, 5120
s_add_u32 {sr(sT)}, {sr(sT)}, {sr(sT2)}
s_add_u32 {sr(sT)}, {sr(sT)}, {F_WS_O}
v_lshl_add_u32 {vr(vT0)}, {vr(vLane)}, 7, {sr(sT)}
v_cmp_gt_u32 vcc, 40, {vr(vLane)}
v_mov_b32 {vr(vT1)}, {OOB}
s_mov_b32 {sr(sDone)}, 0
s_mov_b32 {sr(sCnt)}, {1 if opts.get('cheat', 0) & 2 else POLL_LIMIT}
v_cndmask_b32 {vr(vPo)}, {vr(vT1)}, {vr(vT0)}, vcc''')
    pid = [0]
    pfo = opts.get('pfo', 1)
    def poll2():
        if spoll & 2:
            smask(8, sM0b, sNeed)
            a(f'''s_sub_u32 {sr(sCnt)}, {sr(sCnt)}, 1
s_cmp_eq_u32 {sr(sCnt)}, 0
s_cselect_b32 {sr(sT)}, 0xff, {sr(sNeed)}''')
        else:
            a(f'''buffer_load_dword {vr(vP)}, {vr(vPo2)}, {sr(SWS,4)}, 0 offen{SC}
s_sub_u32 {sr(sCnt)}, {sr(sCnt)}, 1
s_waitcnt vmcnt(0)
v_cmp_eq_u32 vcc, {sr(sTag)}, {vr(vP)}
s_cmp_eq_u32 {sr(sCnt)}, 0
s_cselect_b32 {sr(sT)}, 0xff, vcc_lo''')
        a(f'''s_lshr_b32 {sr(sT2)}, {sr(sT)}, 1
s_and_b32 {sr(sT)}, {sr(sT)}, {sr(sT2)}
s_and_b32 {sr(sRdy)}, {sr(sT)}, 0x55''')
        if pfo:
            a(f's_andn2_b32 {sr(sSrc)}, {sr(sRdy)}, {sr(sDone)}')
            a(f's_or_b32 {sr(sDone)}, {sr(sDone)}, {sr(sRdy)}')
            for j in range(4):
                n = pid[0]; pid[0] += 1
                a(f's_bitcmp1_b32 {sr(sSrc)}, {2*j}')
                a(f's_cbranch_scc0 {name}_po{n}')
                a(f's_mov_b32 {sr(sT)}, {j*20480}')
                a(f'buffer_load_dword {vr(vPf[j])}, {vr(vPo)}, {sr(SWS,4)}, {sr(sT)} offen{SC}')
                a.label(f'{name}_po{n}')
            if pfo == 2:
                a('s_waitcnt vmcnt(0)')
        a(f'v_mov_b32 {vr(vP)}, {sr(sRdy)}')
        a(f'ds_write_b32 {vr(vLw)}, {vr(vP)}')
    if spoll & 2: a('s_waitcnt vmcnt(0)')
    poll2()
    if nobar:
        wait_prog(16)
    else:
        a('s_barrier')
    st0()
    st0()
    a.label(f'{name}_p3l')
    if opts.get('psl'): a(f's_sleep {opts.get("psl")}')
    poll2()
    a(f's_cmp_eq_u32 {sr(sRdy)}, 0x55')
    a(f's_cbranch_scc0 {name}_p3l')
    a.label(f'{name}_p3e')
    if st.on:
        while st.n < n_total - 1: st()
        st.rt(); st.flush(sW)
    a('s_endpgm')
    a.label(f'{name}_end')
    nv = maxv[0]
    assert nv <= 168, nv
    return a.text(), descriptor(name, nv, ns), f'; @launch kernel={name} grid=(256,1,1) block=(576,1,1) lds={LDS_TOTAL}', n_total
```

```python
from common import *
import math, struct

def f32bits(x):
    return struct.unpack('<I', struct.pack('<f', x))[0]
QSCALE = f32bits(math.log2(math.e) / math.sqrt(20.0))

XSZ = 16384
STG = XSZ + 30720
SLOT = 40960
LW_RDY = 3 * SLOT
LW_CNT = 3 * SLOT + 8
LW_CNT1 = 3 * SLOT + 12
LW_G1 = 3 * SLOT + 16
LW_PW = 131392
ONES = 3 * SLOT + 128
QST = 131584
LDS_TOTAL = QST + 25600
WO_LO = SLOT
F_WS_KV = 0
F_WS_O = 64 * KV_HEAD
F_FLAG1 = F_WS_O + 2 * 32 * 32 * 2560
F_FLAG2 = F_FLAG1 + 16 * 256
F_EPOCH = F_FLAG2 + 32 * 256
F_WS_END = F_EPOCH + 256
TAGK = 0x9E3779B9
POLL_LIMIT = 1 << 18
OOB = 0x40000000

def gen_fused(name='fused_kernel', opts=None):
    opts = opts or {}
    a = Asm()
    SC = ' sc1'
    FL = {0: ' sc1', 1: ' sc0 sc1', 2: '', 3: ' sc1 nt', 4: ' nt'}
    SST = FL[opts.get('sst', 0)]
    SLD = FL[opts.get('sld', 0)]
    stag = opts.get('stag', 0)
    pub4 = opts.get('pub4', 1)
    one_e = opts.get('onee', 0) and pub4
    g1s = opts.get('g1s', 0)
    early = opts.get('early', 1)
    spoll = opts.get('spoll', 3)
    sep = opts.get('sep', 1)
    phys = (lambda k: (-k) % 3) if early else (lambda k: k % 3)
    hsplit = opts.get('hsplit', 1)
    nobar = opts.get('nobar', 0)
    loc = opts.get('loc', 1)
    sKK, sMt3, sCg = 3, 4, 5
    SX, SWQ, SWS, SDBG, SWO, SOUT = 8, 12, 16, 20, 24, 28
    sW, sB, sMt, sHg, sT, sT2, sT3 = 32, 33, 34, 35, 36, 37, 38
    sM0a, sM0b = 39, 40
    sDone = 41
    sHi = 42
    sG, sOff, sOo, sKV = 44, 45, 46, 47
    sM, sM2 = 48, 50
    sRdy, sCnt, sNeed, sI, sSlot, sSrc = 52, 53, 54, 55, 56, 57
    sXo, sWo = 53, 54
    sScale = 58
    sA, sTag = 60, 61
    sPub, sPub2 = 56, 57
    ns = 64
    vLane, vT0, vT1, vT2, vT3, vT4, vT5 = 1, 2, 3, 4, 5, 6, 7
    VBASE = 8
    st = Stamper(a, opts.get('stamp'), 0, 62, 6, vT0)
    if st.on: ns = st.nsgpr()
    sset = opts.get('sset', 0)
    def st0():
        if sset == 0: st()
    def st1():
        if sset == 1: st()
    def st6():
        if sset == 6: st.rt()
    def st4():
        if sset == 4: st()
    maxv = [0]
    def done_alloc(V):
        maxv[0] = max(maxv[0], V.n)

    a(f'.globl {name}\n.p2align 8\n.type {name},@function')
    a.label(name)
    if st.on:
        a('s_memrealtime s[62:63]\ns_memtime s[64:65]')
        st.n = 2
    dbgt = opts.get('dbgt')
    SWAP = 's_nop 0'
    if opts.get('swap', 0):
        SWAP = f's_lshr_b32 {sr(sT)}, s2, 1\ns_xor_b32 {sr(sT)}, {sr(sT)}, s2\ns_and_b32 {sr(sT)}, {sr(sT)}, 1\ns_mul_i32 {sr(sT)}, {sr(sT)}, 3\ns_xor_b32 s2, s2, {sr(sT)}'
    if dbgt:
        ns = 80
        a('s_memrealtime s[62:63]')
    def rts(k):
        if dbgt: a(f's_memrealtime s[{62+2*k}:{63+2*k}]\ns_waitcnt lgkmcnt(0)')
    a(f'''s_cmp_ge_u32 s2, 256
s_cbranch_scc1 {name}_done
{SWAP}
s_bfe_u32 {sr(sB)}, s2, 0x10002
s_load_dwordx4 {sr(SOUT,4)}, s[0:1], 48
s_load_dwordx2 s[6:7], s[0:1], 64
s_mul_i32 {sr(sT2)}, {sr(sB)}, {0 if opts.get('hack64') else 24}
s_add_u32 s0, s0, {sr(sT2)}
s_addc_u32 s1, s1, 0
s_load_dwordx4 {sr(SX,4)}, s[0:1], 0
s_load_dwordx2 {sr(SWO,2)}, s[0:1], 16
v_lshrrev_b32 {vr(vT0)}, 6, v0
v_and_b32 {vr(vLane)}, 63, v0
s_lshr_b32 {sr(sT)}, s2, 3
v_readfirstlane_b32 {sr(sW)}, {vr(vT0)}
s_and_b32 {sr(sMt)}, {sr(sT)}, 7
s_lshr_b32 {sr(sHg)}, {sr(sT)}, 3
s_mul_i32 {sr(sKK)}, {sr(sHg)}, 3
s_add_u32 {sr(sKK)}, {sr(sKK)}, {sr(sMt)}
s_cmp_ge_u32 {sr(sKK)}, 10
s_cselect_b32 {sr(sT)}, 10, 0
s_sub_u32 {sr(sKK)}, {sr(sKK)}, {sr(sT)}
{f's_mov_b32 {sr(sKK)}, 0' if (stag or opts.get('rot0')) else 's_nop 0'}
s_and_b32 {sr(sT)}, s2, 1
s_lshl_b32 {sr(sT)}, {sr(sT)}, 3
s_add_u32 {sr(sMt)}, {sr(sMt)}, {sr(sT)}
s_and_b32 {sr(sT)}, s2, 2
s_lshl_b32 {sr(sT)}, {sr(sT)}, 1
s_add_u32 {sr(sHg)}, {sr(sHg)}, {sr(sT)}
s_mov_b32 {sr(sHi)}, 0
s_mov_b32 {sr(sHi+1)}, -1
s_bfe_u32 {sr(sCg)}, s2, 0x30003
s_and_b32 {sr(sMt3)}, s2, 1
s_lshl_b32 {sr(sMt3)}, {sr(sMt3)}, 2
s_and_b32 {sr(sT)}, s2, 2
s_add_u32 {sr(sMt3)}, {sr(sMt3)}, {sr(sT)}
s_lshl_b32 {sr(sMt3)}, {sr(sMt3)}, 1
s_lshr_b32 {sr(sT)}, s2, 6
s_add_u32 {sr(sMt3)}, {sr(sMt3)}, {sr(sT)}
s_lshl_b32 {sr(sT)}, {sr(sB)}, 3
s_add_u32 {sr(sT)}, {sr(sT)}, {sr(sHg)}
s_mul_i32 {sr(sKV)}, {sr(sT)}, {4*KV_HEAD}
s_mul_i32 {sr(sT3)}, {sr(sHg)}, 160''')
    SRDS = f'''s_waitcnt lgkmcnt(0)
s_mov_b32 {sr(SWQ)}, {sr(SX+2)}
s_mov_b32 {sr(SWQ+1)}, {sr(SX+3)}
s_mov_b32 {sr(SDBG)}, {sr(SOUT+2)}
s_mov_b32 {sr(SDBG+1)}, {sr(SOUT+3)}
s_mov_b32 {sr(SWS)}, s6
s_mov_b32 {sr(SWS+1)}, s7
s_mov_b32 {sr(SX+2)}, {2048*1280}
s_mov_b32 {sr(SX+3)}, 0x20000
s_mov_b32 {sr(SWQ+2)}, {640*3840}
s_mov_b32 {sr(SWQ+3)}, 0x20000
s_mov_b32 {sr(SWS+2)}, {F_WS_END}
s_mov_b32 {sr(SWS+3)}, 0x20000
s_mov_b32 {sr(SDBG+2)}, 256
s_mov_b32 {sr(SDBG+3)}, 0x20000
s_mov_b32 {sr(SWO+2)}, {640*1280}
s_mov_b32 {sr(SWO+3)}, 0x20000
s_mov_b32 {sr(SOUT+2)}, {2048*2560}
s_mov_b32 {sr(SOUT+3)}, 0x20000'''
    if sep:
        SRDS += f'''
s_lshl_b32 {sr(sI)}, {sr(sB)}, 7
s_add_u32 {sr(sI)}, {sr(sI)}, {F_EPOCH}
s_load_dword {sr(sTag)}, s[6:7], {sr(sI)}'''
    st1()
    n_common = st.n
    a(f'''s_cmp_ge_u32 {sr(sW)}, 8
s_cbranch_scc1 {name}_helper''')

    def w_pattern(dst, first, last):
        a(f'''{first}
v_mul_u32_u24 {vr(vT1)}, 2185, {vr(vT0)}
v_lshrrev_b32 {vr(vT1)}, 16, {vr(vT1)}
v_mul_u32_u24 {vr(vT2)}, 30, {vr(vT1)}
v_sub_u32 {vr(vT0)}, {vr(vT0)}, {vr(vT2)}
v_and_b32 {vr(vT2)}, 0x13, {vr(vT1)}
v_bfe_u32 {vr(vT3)}, {vr(vT1)}, 2, 1
v_lshl_or_b32 {vr(vT2)}, {vr(vT3)}, 3, {vr(vT2)}
v_bfe_u32 {vr(vT3)}, {vr(vT1)}, 3, 1
v_lshl_or_b32 {vr(vT2)}, {vr(vT3)}, 2, {vr(vT2)}
v_mul_u32_u24 {vr(vT2)}, 3840, {vr(vT2)}
v_mul_u32_u24 {vr(vT1)}, 26, {vr(vT0)}
v_lshrrev_b32 {vr(vT1)}, 8, {vr(vT1)}
v_mul_u32_u24 {vr(vT1)}, {1280-160}, {vr(vT1)}
v_lshl_add_u32 {vr(vT0)}, {vr(vT0)}, 4, {vr(vT1)}
v_add3_u32 {vr(dst)}, {vr(vT0)}, {vr(vT2)}, {last}''')

    VP = VAlloc(VBASE)
    vIdx = VP()
    vaK1 = VP(); vaK2 = VP(); vaV = VP()
    vbK1 = VP(); vbK2 = VP(); vbV = VP(); vmK2 = VP(); vmV = VP()
    vQo = VP(); vQo2 = VP(); vQs1 = VP(); vQs2 = VP(); vPub = VP()
    VB2 = VP.n
    V = VAlloc(VB2)
    vEp7 = V(); vCi7 = V(); vZ7 = V()
    vXr = [[V(), V()] for _ in range(3)]
    vWa = [V() for _ in range(3)]
    vWb = [V() for _ in range(3)]
    vE = [V() for _ in range(6)]
    Xf = [[V(4), V(4)], [V(4), V(4)]]
    Wf = [[V(4) for _ in range(4)] for _ in range(2)]
    acc = [[V(4), V(4)] for _ in range(8)]
    done_alloc(V)
    vDX = Wf[0][0]; vDW = [Wf[0][0] + 1, Wf[0][0] + 2]
    XROW = f's_lshl_b32 {sr(sT)}, {sr(sMt)}, 7'
    if opts.get('hack64'):
        XROW = f's_lshl_b32 {sr(sT)}, {sr(sB)}, 4\ns_add_u32 {sr(sT)}, {sr(sT)}, {sr(sMt)}\ns_lshl_b32 {sr(sT)}, {sr(sT)}, 6'
    a(f'''{XROW}
s_lshl_b32 {sr(sT2)}, {sr(sW)}, 3
s_add_u32 {sr(sT)}, {sr(sT)}, {sr(sT2)}
v_lshrrev_b32 {vr(vT0)}, 3, {vr(vLane)}
v_add_u32 {vr(vT0)}, {sr(sT)}, {vr(vT0)}
v_mul_u32_u24 {vr(vT0)}, 1280, {vr(vT0)}
s_and_b32 {sr(sT)}, {sr(sW)}, 1
s_lshl_b32 {sr(sT)}, {sr(sT)}, 2
v_lshrrev_b32 {vr(vT1)}, 4, {vr(vLane)}
v_add_u32 {vr(vT2)}, {sr(sT)}, {vr(vT1)}
v_and_b32 {vr(vT3)}, 7, {vr(vLane)}
v_xor_b32 {vr(vT2)}, {vr(vT2)}, {vr(vT3)}
v_lshl_add_u32 {vr(vDX)}, {vr(vT2)}, 4, {vr(vT0)}
s_lshl_b32 {sr(sM0a)}, {sr(sW)}, 10
s_lshl_b32 {sr(sXo)}, {sr(sKK)}, 7
s_mul_i32 {sr(sWo)}, {sr(sKK)}, {64*3840}
s_add_u32 {sr(sT2)}, {sr(sW)}, 8
s_cmp_eq_u32 {sr(sW)}, 7
s_cselect_b32 {sr(sT2)}, 7, {sr(sT2)}
s_lshl_b32 {sr(sM0b)}, {sr(sT2)}, 10''')
    for pi, sm in ((0, sM0a), (1, sM0b)):
        a(f's_lshr_b32 {sr(sT)}, {sr(sm)}, 4')
        w_pattern(vDW[pi], f'v_add_u32 {vr(vT0)}, {sr(sT)}, {vr(vLane)}', sr(sT3))
    a(SRDS)
    a(f'''s_mov_b32 m0, {sr(sM0a)}
s_add_u32 {sr(sT)}, {sr(sXo)}, 81920
buffer_load_dwordx4 {vr(vDX)}, {sr(SX,4)}, {sr(sXo)} offen lds
s_add_u32 m0, {sr(sM0a)}, 8192
s_nop 0
{'s_nop 0' if opts.get('hack64') else f'buffer_load_dwordx4 {vr(vDX)}, {sr(SX,4)}, {sr(sT)} offen lds'}''')
    for pi, sm in ((0, sM0a), (1, sM0b)):
        for half in range(2):
            a(f's_add_u32 m0, {sr(sm)}, {XSZ + half*15360}')
            a(f's_add_u32 {sr(sT)}, {sr(sWo)}, {half*32*3840}')
            a(f'buffer_load_dwordx4 {vr(vDW[pi])}, {sr(SWQ,4)}, {sr(sT)} offen lds')
    st1()
    a('s_barrier')
    st1()
    if not sep:
        a(f'''s_cmp_eq_u32 {sr(sW)}, 7
s_cselect_b32 {sr(sM)}, 1, 0
s_mov_b32 {sr(sM+1)}, 0
v_mov_b32 {vr(vT1)}, {OOB}
v_cndmask_b32_e64 {vr(vZ7)}, {vr(vT1)}, 0, {sr(sM,2)}
v_mov_b32 {vr(vT0)}, {F_EPOCH}
buffer_load_dword {vr(vEp7)}, {vr(vT0)}, {sr(SWS,4)}, 0 offen{SC}''')
    a(f'''s_and_b32 {sr(sT)}, {sr(sW)}, 3
s_lshl_b32 {sr(sT)}, {sr(sT)}, 5
v_and_b32 {vr(vT0)}, 15, {vr(vLane)}
v_lshrrev_b32 {vr(vT1)}, 4, {vr(vLane)}
v_lshrrev_b32 {vr(vT2)}, 1, {vr(vT0)}
v_xor_b32 {vr(vT2)}, {vr(vT2)}, {vr(vT1)}
v_add_u32 {vr(vT0)}, {sr(sT)}, {vr(vT0)}
v_lshlrev_b32 {vr(vT0)}, 7, {vr(vT0)}
v_lshl_add_u32 {vr(vXr[0][0])}, {vr(vT2)}, 4, {vr(vT0)}
v_xor_b32 {vr(vXr[0][1])}, 64, {vr(vXr[0][0])}
v_lshrrev_b32 {vr(vT0)}, 5, {vr(vLane)}
v_lshlrev_b32 {vr(vT0)}, 4, {vr(vT0)}
v_bfe_u32 {vr(vT2)}, {vr(vLane)}, 4, 1
v_lshl_add_u32 {vr(vT0)}, {vr(vT2)}, 2, {vr(vT0)}
v_bfe_u32 {vr(vT2)}, {vr(vLane)}, 2, 2
v_add_u32 {vr(vT0)}, {vr(vT0)}, {vr(vT2)}
v_mul_u32_u24 {vr(vT0)}, 480, {vr(vT0)}
v_add_u32 {vr(vT5)}, {XSZ}, {vr(vT0)}
v_bfe_u32 {vr(vT2)}, {vr(vLane)}, 1, 1
v_mul_u32_u24 {vr(vT2)}, 40, {vr(vT2)}
v_and_b32 {vr(vT3)}, 1, {vr(vLane)}
v_lshl_add_u32 {vr(vT2)}, {vr(vT3)}, 4, {vr(vT2)}
v_add_u32 {vr(vWa[0])}, {vr(vT5)}, {vr(vT2)}
s_cmp_ge_u32 {sr(sW)}, 4
s_cselect_b32 {sr(sT)}, 8, 40
v_and_b32 {vr(vT2)}, 3, {vr(vLane)}
v_mad_u32_u24 {vr(vWb[0])}, {vr(vT2)}, {sr(sT)}, {vr(vT5)}''')
    for s_ in (1, 2):
        a(f'v_add_u32 {vr(vXr[s_][0])}, {s_*STG}, {vr(vXr[0][0])}')
        a(f'v_add_u32 {vr(vXr[s_][1])}, {s_*STG}, {vr(vXr[0][1])}')
        a(f'v_add_u32 {vr(vWa[s_])}, {s_*STG}, {vr(vWa[0])}')
        a(f'v_add_u32 {vr(vWb[s_])}, {s_*STG}, {vr(vWb[0])}')
    a(f'''s_lshr_b32 {sr(sT)}, {sr(sW)}, 1
s_mul_i32 {sr(sT2)}, {sr(sT)}, 10240
v_lshlrev_b32 {vr(vQo)}, 4, {vr(vLane)}
v_lshlrev_b32 {vr(vT0)}, 3, {vr(vLane)}
v_add_u32 {vr(vT0)}, 1024, {vr(vT0)}
v_mov_b32 {vr(vT1)}, {OOB}
v_cndmask_b32_e64 {vr(vQo2)}, {vr(vT0)}, {vr(vT1)}, {sr(sHi,2)}
v_add_u32 {vr(vbK1)}, {sr(sT2)}, {vr(vQo)}
v_add_u32 {vr(vT0)}, {sr(sT2)}, {vr(vT0)}
v_mov_b32 {vr(vT1)}, {ONES}
v_cndmask_b32_e64 {vr(vbK2)}, {vr(vT0)}, {vr(vT1)}, {sr(sHi,2)}
v_cndmask_b32_e64 {vr(vmK2)}, 1, 0, {sr(sHi,2)}
v_and_b32 {vr(vT2)}, 31, {vr(vLane)}
v_lshrrev_b32 {vr(vT3)}, 5, {vr(vLane)}
v_mul_u32_u24 {vr(vT3)}, 320, {vr(vT3)}
v_lshl_add_u32 {vr(vT3)}, {vr(vT2)}, 4, {vr(vT3)}
s_add_u32 {sr(sT3)}, {sr(sT2)}, 1280
v_add_u32 {vr(vT3)}, {sr(sT3)}, {vr(vT3)}
v_cmp_gt_u32 vcc, 20, {vr(vT2)}
v_mov_b32 {vr(vIdx)}, 0xdddddddd
v_mov_b32 {vr(vaK1)}, {vr(vbK1)}
v_cndmask_b32 {vr(vbV)}, {vr(vT1)}, {vr(vT3)}, vcc
v_cndmask_b32_e64 {vr(vmV)}, 0, 1, vcc
v_cmp_lt_u32 vcc, 20, {vr(vT2)}
v_add_u32 {vr(vT3)}, 16, {vr(vT1)}
v_mov_b32 {vr(vaK2)}, {vr(vbK2)}
v_cndmask_b32 {vr(vbV)}, {vr(vbV)}, {vr(vT3)}, vcc
v_mov_b32 {vr(vaV)}, {vr(vbV)}
s_mul_i32 {sr(sT2)}, {sr(sW)}, 2560
s_add_u32 {sr(sT2)}, {sr(sT2)}, {QST}
v_add_u32 {vr(vQs1)}, {sr(sT2)}, {vr(vQo)}
v_and_b32 {vr(vQs2)}, 31, {vr(vLane)}
v_lshlrev_b32 {vr(vQs2)}, 3, {vr(vQs2)}
s_add_u32 {sr(sT2)}, {sr(sT2)}, 1024
v_add_u32 {vr(vQs2)}, {sr(sT2)}, {vr(vQs2)}
s_lshl_b32 {sr(sT2)}, {sr(sB)}, 4
s_add_u32 {sr(sT2)}, {sr(sT2)}, {sr(sMt)}
s_lshl_b32 {sr(sT2)}, {sr(sT2)}, 1
s_and_b32 {sr(sT3)}, {sr(sW)}, 1
s_add_u32 {sr(sT2)}, {sr(sT2)}, {sr(sT3)}
s_lshl_b32 {sr(sT2)}, {sr(sT2)}, 5
s_lshl_b32 {sr(sT3)}, {sr(sHg)}, 2
s_add_u32 {sr(sT2)}, {sr(sT2)}, {sr(sT3)}
s_add_u32 {sr(sT2)}, {sr(sT2)}, {sr(sT)}
s_mul_i32 {sr(sOo)}, {sr(sT2)}, 2560
s_add_u32 {sr(sOo)}, {sr(sOo)}, {F_WS_O}
s_mov_b32 {sr(sPub2)}, {sr(sKV)}
s_mul_i32 {sr(sT)}, {sr(sT)}, {KV_HEAD}
s_add_u32 {sr(sKV)}, {sr(sKV)}, {sr(sT)}''')
    if pub4:
        a(f'''s_and_b32 {sr(sT)}, {sr(sW)}, 3
s_mul_i32 {sr(sT2)}, {sr(sT)}, 10240
v_add_u32 {vr(vPub)}, {sr(sT2)}, {vr(vQo)}
s_mul_i32 {sr(sT)}, {sr(sT)}, {KV_HEAD}
s_mul_i32 {sr(sT2)}, {sr(sMt)}, 10240
s_add_u32 {sr(sT)}, {sr(sT)}, {sr(sT2)}
s_add_u32 {sr(sPub)}, {sr(sT)}, {sr(sPub2)}''')
    else:
        a(f'''s_and_b32 {sr(sT)}, {sr(sW)}, 1
s_mul_i32 {sr(sT)}, {sr(sT)}, 5120
v_add_u32 {vr(vPub)}, {sr(sT)}, {vr(vbK1)}
s_mul_i32 {sr(sT2)}, {sr(sMt)}, 10240
s_add_u32 {sr(sT)}, {sr(sT)}, {sr(sT2)}
s_add_u32 {sr(sPub)}, {sr(sT)}, {sr(sKV)}
s_add_u32 {sr(sPub2)}, {sr(sPub)}, 4096''')
    for ct in range(8):
        for tt in range(2):
            for i in range(4):
                a(f'v_mov_b32 {vr(acc[ct][tt]+i)}, 0')
    a(f'''s_mov_b32 {sr(sScale)}, {QSCALE}
s_mov_b32 {sr(sScale+1)}, {QSCALE}
s_and_b32 {sr(sT3)}, {sr(sW)}, 3
v_and_b32 {vr(vT0)}, 15, {vr(vLane)}
v_lshrrev_b32 {vr(vT1)}, 4, {vr(vLane)}
v_lshrrev_b32 {vr(vT2)}, 2, {vr(vT0)}
v_and_b32 {vr(vT3)}, 3, {vr(vT0)}
v_lshl_add_u32 {vr(vT4)}, {vr(vT2)}, 3, {vr(vT3)}
v_lshrrev_b32 {vr(vT2)}, 1, {vr(vT1)}
v_and_b32 {vr(vT3)}, 1, {vr(vT1)}
s_mul_i32 {sr(sT)}, {sr(sT3)}, 2560
v_mul_u32_u24 {vr(vE[0])}, 10240, {vr(vT2)}
v_lshl_add_u32 {vr(vE[0])}, {vr(vT3)}, 9, {vr(vE[0])}
v_lshl_add_u32 {vr(vE[0])}, {vr(vT4)}, 4, {vr(vE[0])}
v_add_u32 {vr(vE[0])}, {sr(sT)}, {vr(vE[0])}
s_cmp_ge_u32 {sr(sW)}, 4
s_cbranch_scc1 {name}_p1b''')

    def p1_variant(wn):
        if wn == 0:
            kinds = [('P', 0, 0, 0), ('P', 0, 0, 1), ('P', 0, 1, 0), ('P', 0, 1, 1), ('T', 0, 0, 0), ('P', 1, 0, 0), ('P', 1, 0, 1), ('T', 1, 0, 0)]
            a(f'''s_add_u32 {sr(sT2)}, {sr(sT)}, 1024
v_mul_u32_u24 {vr(vE[1])}, 10240, {vr(vT1)}
v_lshl_add_u32 {vr(vE[1])}, {vr(vT4)}, 3, {vr(vE[1])}
v_add_u32 {vr(vE[1])}, {sr(sT2)}, {vr(vE[1])}
s_mul_i32 {sr(sT)}, {sr(sT3)}, 1280
s_add_u32 {sr(sT)}, {sr(sT)}, {QST}
v_mul_u32_u24 {vr(vE[2])}, 5120, {vr(vT2)}
v_lshl_add_u32 {vr(vE[2])}, {vr(vT3)}, 9, {vr(vE[2])}
v_lshl_add_u32 {vr(vE[2])}, {vr(vT0)}, 4, {vr(vE[2])}
v_add_u32 {vr(vE[2])}, {sr(sT)}, {vr(vE[2])}
s_add_u32 {sr(sT)}, {sr(sT)}, 1024
v_mul_u32_u24 {vr(vE[3])}, 5120, {vr(vT1)}
v_lshl_add_u32 {vr(vE[3])}, {vr(vT0)}, 3, {vr(vE[3])}
v_add_u32 {vr(vE[3])}, {sr(sT)}, {vr(vE[3])}''')
        else:
            kinds = [('P', 1, 1, 0), ('P', 1, 1, 1)] + [('V', 2, i, 0) for i in range(5)]
            a(f'''s_add_u32 {sr(sT)}, {sr(sT)}, 1280
v_mul_u32_u24 {vr(vT2)}, 640, {vr(vT2)}
v_mul_u32_u24 {vr(vT3)}, 320, {vr(vT3)}
v_add3_u32 {vr(vT5)}, {vr(vT2)}, {vr(vT3)}, {sr(sT)}''')
            for i in range(5):
                a(f'''v_add_u32 {vr(vT2)}, {16*i}, {vr(vT0)}
v_mul_u32_u24 {vr(vT3)}, 3277, {vr(vT2)}
v_lshrrev_b32 {vr(vT3)}, 16, {vr(vT3)}
v_mul_u32_u24 {vr(vT3)}, {10240-320}, {vr(vT3)}
v_lshl_add_u32 {vr(vT2)}, {vr(vT2)}, 4, {vr(vT3)}
v_add_u32 {vr(vE[1+i])}, {vr(vT2)}, {vr(vT5)}''')
        nct = len(kinds)
        grp = [list(range(0, 4)), list(range(4, nct))]
        def rd_x(step, s2):
            return [f'ds_read_b128 {vr(Xf[s2][tt],4)}, {vr(vXr[step%3][s2])} offset:{tt*2048}' for tt in range(2)]
        def rd_w(step, s2, h, idx):
            ty, sec, sub, e = kinds[grp[h][idx]]
            base = (vWa if ty == 'P' else vWb)[step % 3]
            col = sec*160 + {'P': sub*80 + e*8, 'T': 32, 'V': sub*32}[ty]
            return [f'ds_read_b64_tr_b16 {vr(Wf[h][idx]+2*rd,2)}, {vr(base)} offset:{(32*s2+8*rd)*480 + col}' for rd in range(2)]
        def mf(s2, h, idx):
            ct = grp[h][idx]
            out = []
            for tt in range(2):
                A, B = Wf[h][idx], Xf[s2][tt]
                if kinds[ct][0] == 'V':
                    A, B = B, A
                out.append(f'v_mfma_f32_16x16x32_bf16 {vr(acc[ct][tt],4)}, {vr(A,4)}, {vr(B,4)}, {vr(acc[ct][tt],4)}')
            return out
        n0, n1 = 2 + 2*len(grp[0]), 2*len(grp[1])
        def phase(s2, h, nxt):
            if nxt is not None and h == 0:
                for r in rd_x(*nxt): a(r)
            for idx in range(len(grp[h])):
                for m in mf(s2, h, idx): a(m)
                if nxt is not None:
                    for r in rd_w(nxt[0], nxt[1], h, idx): a(r)
        st1()
        a('s_waitcnt vmcnt(0) lgkmcnt(0)')
        if not sep: a(f'v_readfirstlane_b32 {sr(sTag)}, {vr(vEp7)}')
        a('s_barrier')
        a(f's_add_u32 {sr(sTag)}, {sr(sTag)}, {TAGK}')
        rts(1)
        st()
        for r in rd_x(0, 0): a(r)
        for h in range(2):
            for idx in range(len(grp[h])):
                for r in rd_w(0, 0, h, idx): a(r)
        for step in range(10):
            if step == 9 and hsplit:
                a('s_barrier')
            a(f's_waitcnt lgkmcnt({n1})')
            phase(0, 0, (step, 1))
            a(f's_waitcnt lgkmcnt({n0})')
            phase(0, 1, (step, 1))
            a('s_waitcnt lgkmcnt(0)')
            a('s_barrier')
            if step == 0 and wn == 1 and not sep:
                a(f'v_mov_b32 {vr(vCi7)}, 1')
                a(f'buffer_atomic_add {vr(vCi7)}, {vr(vZ7)}, {sr(SDBG,4)}, 0 offen sc0')
            if step in (0, 4): st0()
            if step in (0, 1, 2, 8): st1()
            if step in (8, 9): st4()
            nx = (step + 1, 0) if step < 9 else None
            phase(1, 0, nx)
            phase(1, 1, nx)
        st0(); st4(); st6()
        rts(2)
        if wn == 1 and not sep:
            a(f'''s_waitcnt vmcnt(0)
v_cmp_eq_u32 vcc, 255, {vr(vCi7)}
v_add_u32 {vr(vEp7)}, {TAGK}, {vr(vEp7)}
v_mov_b32 {vr(vT1)}, {OOB}
s_mov_b32 {sr(sT)}, {F_EPOCH}
v_cndmask_b32 {vr(vZ7)}, {vr(vT1)}, {vr(vZ7)}, vcc
buffer_store_dword {vr(vEp7)}, {vr(vZ7)}, {sr(SWS,4)}, {sr(sT)} offen{SC}''')
        def scale(r0):
            a(f'v_pk_mul_f32 {vr(r0,2)}, {vr(r0,2)}, {sr(sScale,2)}')
            a(f'v_pk_mul_f32 {vr(r0+2,2)}, {vr(r0+2,2)}, {sr(sScale,2)}')
        def pack4(d, x, y):
            a(f'v_cvt_pk_bf16_f32 {vr(d)}, {vr(x)}, {vr(x+1)}')
            a(f'v_cvt_pk_bf16_f32 {vr(d+1)}, {vr(x+2)}, {vr(x+3)}')
            if y is not None:
                a(f'v_cvt_pk_bf16_f32 {vr(d+2)}, {vr(y)}, {vr(y+1)}')
                a(f'v_cvt_pk_bf16_f32 {vr(d+3)}, {vr(y+2)}, {vr(y+3)}')
        def stage(want):
          ct = 0
          while ct < nct:
            ty, sec, sub, e = kinds[ct]
            if (sec == 0) != want:
                ct += 1
                continue
            if ty == 'P':
                for tt in range(2):
                    x, y = acc[ct][tt], acc[ct+1][tt]
                    if sec == 0:
                        scale(x); scale(y)
                    pack4(x, x, y)
                    if sec == 0:
                        a(f'ds_write_b128 {vr(vE[2])}, {vr(x,4)} offset:{sub*10240 + tt*256}')
                    else:
                        a(f'ds_write_b128 {vr(vE[0])}, {vr(x,4)} offset:{sub*20480 + tt*64}')
                ct += 2
            elif ty == 'T':
                for tt in range(2):
                    x = acc[ct][tt]
                    if sec == 0:
                        scale(x)
                    pack4(x, x, None)
                    if sec == 0:
                        a(f'ds_write_b64 {vr(vE[3])}, {vr(x,2)} offset:{tt*128}')
                    else:
                        a(f'ds_write_b64 {vr(vE[1])}, {vr(x,2)} offset:{tt*32}')
                ct += 1
            else:
                x, y = acc[ct][0], acc[ct][1]
                pack4(x, x, y)
                a(f'ds_write_b128 {vr(vE[1+sub])}, {vr(x,4)}')
                ct += 1
        if wn == 0: a('s_nop 2')
        stage(False)
        if one_e: stage(True)
        a('s_waitcnt lgkmcnt(0)')
        st4()
        a('s_barrier')
        st4(); st6()
        PB = Xf[0][0]
        assert Wf[0][0] == PB + 16
        if pub4:
            if wn == 0:
                if not one_e: stage(True)
            else:
                for q in range(10):
                    a(f'ds_read_b128 {vr(PB+4*q,4)}, {vr(vPub)} offset:{q*1024}')
                for q in range(10):
                    if q == 4: a(f's_add_u32 {sr(sPub)}, {sr(sPub)}, 4096')
                    if q == 8: a(f's_add_u32 {sr(sPub)}, {sr(sPub)}, 4096')
                    a(f's_waitcnt lgkmcnt({9 - q})')
                    a(f'buffer_store_dwordx4 {vr(PB+4*q,4)}, {vr(vQo)}, {sr(SWS,4)}, {sr(sPub)} offen offset:{(q%4)*1024}{SST}')
        else:
          for q in range(5):
            a(f'ds_read_b128 {vr(PB+4*q,4)}, {vr(vPub)} offset:{q*1024}')
          stage(True)
          nq = 6 if wn == 0 else 0
          for q in range(5):
            a(f's_waitcnt lgkmcnt({4 - q + nq})')
            a(f'buffer_store_dwordx4 {vr(PB+4*q,4)}, {vr(vQo)}, {sr(SWS,4)}, {sr(sPub if q < 4 else sPub2)} offen offset:{(q%4)*1024}{SST}')
        a('s_nop 1')
        st4()
    n_st = st.n
    p1_variant(0)
    a(f's_branch {name}_p2')
    a.label(f'{name}_p1b')
    st.n = n_st
    p1_variant(1)
    a.label(f'{name}_p2')

    V = VAlloc(VB2 + 3)
    Q1 = [V(4), V(4)]; Q2 = [V(2), V(2)]
    K1 = [V(4), V(4)]; K2 = [V(2), V(2)]
    V0 = [V(4), V(4)]; V1 = [V(4), V(4)]
    O = [V(16), V(16)]
    S = [V(16), V(16)]
    st3 = opts.get('st3', 1) and not nobar
    if st3:
        aK1 = [vbK1, vaK1, V()]; aK2 = [vbK2, vaK2, V()]; aV = [vbV, vaV, V()]
    vPw = V(2); vPa = V(); vPo_ = V(); vPg = V()
    done_alloc(V)
    for t in range(2):
        for i in range(16):
            a(f'v_mov_b32 {vr(O[t]+i)}, 0')
    for i in range(4):
        a(f'v_mov_b32 {vr(V1[1]+i)}, 0')
    a(f's_mov_b32 {sr(sG)}, 0')
    a(f's_mov_b32 {sr(sOff)}, 0')
    if st3:
        for k in (1, 2):
            a(f's_mov_b32 {sr(sT)}, {phys(k)*SLOT}')
            a(f'v_add_u32 {vr(aK1[k])}, {sr(sT)}, {vr(vbK1)}')
            a(f'v_mad_u32_u24 {vr(aK2[k])}, {vr(vmK2)}, {sr(sT)}, {vr(vbK2)}')
            a(f'v_mad_u32_u24 {vr(aV[k])}, {vr(vmV)}, {sr(sT)}, {vr(vbV)}')
    if nobar:
        a(f'''s_lshl_b32 {sr(sT)}, {sr(sW)}, 3
s_add_u32 {sr(sT2)}, {sr(sT)}, {LW_PW + 4}
s_xor_b32 {sr(sT)}, {sr(sT)}, 32
s_add_u32 {sr(sT)}, {sr(sT)}, {LW_PW}
v_mov_b32 {vr(vPa)}, {sr(sT)}
v_mov_b32 {vr(vPo_)}, {sr(sT2)}
v_mov_b32 {vr(vPg)}, 0''')
    if not one_e:
        a('s_waitcnt lgkmcnt(0)')
        a('s_barrier')
    st0(); st4()
    def rdK(s_, u, part='R', sl=0):
        x1, x2 = (aK1[sl], aK2[sl]) if st3 else (vaK1, vaK2)
        if part != 'Rb': a(f'ds_read_b128 {vr(K1[s_],4)}, {vr(x1)} offset:{2560*u}')
        if part != 'Ra': a(f'ds_read_b64 {vr(K2[s_],2)}, {vr(x2)} offset:{2560*u}')
    def rdV(s_, u, part='R', sl=0):
        x1 = aV[sl] if st3 else vaV
        if part != 'Rb': a(f'ds_read_b128 {vr(V0[s_],4)}, {vr(x1)} offset:{2560*u}')
        if part != 'Ra': a(f'ds_read_b128 {vr(V1[s_],4)}, {vr(x1)} offset:{2560*u+640}')
    def qk16(t, s_):
        a(f'v_mfma_f32_32x32x16_bf16 {vr(S[t],16)}, {vr(K1[s_],4)}, {vr(Q1[t],4)}, 0')
    def qk8(t, s_):
        a(f'v_mfma_f32_32x32x8_bf16 {vr(S[t],16)}, {vr(K2[s_],2)}, {vr(Q2[t],2)}, {vr(S[t],16)}')
    def pv(t, s_, n):
        Vf = (V0, V1)[n][s_]
        a(f'v_smfmac_f32_32x32x32_bf16 {vr(O[t],16)}, {vr(Vf,4)}, {vr(S[t]+8*n,8)}, {vr(vIdx)}')
    def rowmax(t, dst):
        s = S[t]
        a(f'v_max3_f32 {vr(dst)}, {vr(s)}, {vr(s+1)}, {vr(s+2)}')
        for i in range(3, 15, 2):
            a(f'v_max3_f32 {vr(dst)}, {vr(dst)}, {vr(s+i)}, {vr(s+i+1)}')
        a(f'v_max_f32 {vr(dst)}, {vr(dst)}, {vr(s+15)}')
    def crosshalf(x, y):
        a(f'v_mov_b32 {vr(y)}, {vr(x)}')
        a('s_nop 1')
        a(f'v_permlane32_swap_b32 {vr(x)}, {vr(y)}')
        a('s_nop 1')
    for t in range(2):
        a(f'ds_read_b128 {vr(Q1[t],4)}, {vr(vQs1)} offset:{1280*t}')
        a(f'ds_read_b64 {vr(Q2[t],2)}, {vr(vQs2)} offset:{1280*t}')
    rdK(0, 0); rdK(1, 1); rdV(0, 0)
    a('s_waitcnt lgkmcnt(4)')
    for t in range(2):
        a(f'v_cndmask_b32_e64 {vr(Q2[t])}, {vr(Q2[t])}, 0, {sr(sHi,2)}')
        a(f'v_cndmask_b32_e64 {vr(Q2[t]+1)}, {vr(Q2[t]+1)}, 0, {sr(sHi,2)}')
    qk16(0, 0); qk8(0, 0); qk16(1, 0); qk8(1, 0)
    a('s_nop 9')
    for t in range(2):
        if t == 1: a('s_nop 1')
        rowmax(t, vT0)
        crosshalf(vT0, vT1)
        a(f'''v_max_f32 {vr(vT0)}, {vr(vT0)}, {vr(vT1)}
v_sub_f32 {vr(vT0)}, 0, {vr(vT0)}
v_and_b32 {vr(vT1)}, 0xffff0000, {vr(vT0)}
v_sub_f32 {vr(vT0)}, {vr(vT0)}, {vr(vT1)}
v_and_b32 {vr(vT2)}, 0xffff0000, {vr(vT0)}
v_sub_f32 {vr(vT0)}, {vr(vT0)}, {vr(vT2)}
v_lshrrev_b32 {vr(vT1)}, 16, {vr(vT1)}
v_or_b32 {vr(vT1)}, {vr(vT1)}, {vr(vT2)}
v_lshrrev_b32 {vr(vT0)}, 16, {vr(vT0)}
v_cndmask_b32_e64 {vr(Q2[t])}, {vr(Q2[t])}, {vr(vT1)}, {sr(sHi,2)}
v_cndmask_b32_e64 {vr(Q2[t]+1)}, {vr(Q2[t]+1)}, {vr(vT0)}, {sr(sHi,2)}''')
        if t == 0:
            qk16(0, 0)
            a('s_nop 0')
            qk8(0, 0)
    for i in range(8, 16):
        a(f'v_mov_b32 {vr(S[1]+i)}, 0')
    st4()
    dsig = opts.get('dsig', 0) and pub4 and st3
    sSig, sFa = sOff, sPub2
    def sig_code(lbl, cnt):
        a(f'''s_mov_b64 exec, 1
v_mov_b32 {vr(vT0)}, 1
v_mov_b32 {vr(vT2)}, {LW_CNT1}
v_mov_b32 {vr(vT1)}, {sr(sTag)}
v_mov_b32 {vr(vT3)}, {sr(sFa)}
s_waitcnt vmcnt(0)
ds_add_rtn_u32 {vr(vT0)}, {vr(vT2)}, {vr(vT0)}
s_waitcnt lgkmcnt(0)
v_readfirstlane_b32 {sr(sT)}, {vr(vT0)}
s_cmp_eq_u32 {sr(sT)}, {cnt - 1}
s_cbranch_scc0 {lbl}
buffer_store_dword {vr(vT1)}, {vr(vT3)}, {sr(SWS,4)}, 0 offen{SC}''')
        a.label(lbl)
        a('s_mov_b64 exec, -1')
    a(f'''s_lshl_b32 {sr(sT)}, {sr(sB)}, 3
s_add_u32 {sr(sT)}, {sr(sT)}, {sr(sHg)}
s_lshl_b32 {sr(sT)}, {sr(sT)}, 6
s_add_u32 {sr(sT)}, {sr(sT)}, {sr(sMt)}
s_lshl_b32 {sr(sT)}, {sr(sT)}, 2
s_add_u32 {sr(sFa)}, {sr(sT)}, {F_FLAG1}''')
    sigpts = []
    if dsig:
        a(f's_lshr_b32 {sr(sSig)}, {sr(sW)}, 2')
        a('s_waitcnt lgkmcnt(0)')
    else:
        sig_code(f'{name}_nl1', 8)
    def sig_point(force):
        k = len(sigpts); sigpts.append(force)
        a(f's_cmp_lg_u32 {sr(sSig)}, 0')
        a(f's_cbranch_scc1 {name}_sg{k}')
        a.label(f'{name}_sgr{k}')
    prio = opts.get('prio', 1)
    rts(3)
    st0(); st4(); st6()
    if sset == 2: st()
    a('.p2align 6')
    a.label(f'{name}_loop')
    def ex(t, i):
        a(f'v_exp_f32 {vr(S[t]+i)}, {vr(S[t]+i)}')
    scheds = {1: 'e e P2 e e e e Q16 e e e e Q8 R e e e e P1 W e e',
              2: 'e e P2 e e e e Q16 e e e Q8 R e e e e e P1 W e e',
              3: 'e e P2 e e e e Q16 e e e e Q8 e R e e e P1 e W e',
              4: 'e e P2 e e e Q16 e e e e Q8 R e e e e P1 W e e e',
              5: 'e e W P2 e e e e Ra Q16 e e e e Rb Q8 e e e e P1 e e',
              6: 'e e W P2 e e e e R Q16 e e e e Q8 e e e e P1 e e',
              7: 'e e W P2 e e e e Q16 e e e e Ra Q8 e e e e Rb P1 e e',
              8: 'e e P2 e e e e Ra Q16 e e e e Rb Q8 e e e e W P1 e e',
              9: 'e e P2 e e e e Q16 e e e e Q8 e e e e R W P1 e e',
              10: 'e e P2 Ra e e e e Q16 Rb e e e e Q8 W e e e e P1 e e',
              11: 'e e P2 Ra e e e e Q16 Rb e e e e Q8 e e e e P1 W e e',
              12: 'e e P2 R e e e e Q16 e e e e Q8 e e e e P1 W e e',
              13: 'e e P2 R W e e e e Q16 e e e e Q8 e e e e P1 e e',
              14: 'e e P2 Ra e e e e Q16 e e e e Q8 e e e e P1 Rb W e e',
              15: 'e e P2 R e e e e Q16 e e e e Q8 W e e e e P1 e e'}
    sched = scheds[opts.get('sched', 12)].split()
    unroll = 3 if st3 else opts.get('unroll', 1)
    ptab = {1: {(0, 0): 2, (1, 0): 1, (2, 0): 0, (3, 0): 3},
            2: {(3, 0): 1, (1, 0): 0},
            3: {(3, 0): 3, (3, 1): 2, (0, 1): 1, (1, 1): 0},
            6: {(3, 0): 3, (0, 1): 2, (1, 1): 1, (2, 0): 0}}.get(prio, {})
    for rep in range(unroll):
      for j in range(4):
        for t in range(2):
            pj = j if t == 1 else j - 1
            nj = j if t == 0 else j + 1
            if (j, t) in ptab and nobar != 1:
                a(f's_setprio {ptab[(j, t)]}')
            if dsig and rep == 0 and (j, t) in ((0, 0), (0, 1), (1, 0), (1, 1), (2, 0)):
                sig_point(False)
            e = 0
            for tok in sched:
                if tok == 'e':
                    ex(t, e); e += 1
                elif tok == 'P2':
                    pv(1 - t, pj % 2, 1)
                elif tok == 'P1':
                    pv(t, j % 2, 0)
                elif tok == 'Q16':
                    qk16(1 - t, nj % 2)
                elif tok == 'Q8':
                    qk8(1 - t, nj % 2)
                elif tok == 'W':
                    a(f's_waitcnt lgkmcnt({3 if nobar and (j, t) in ((2, 0), (2, 1)) else 2})')
                elif tok == 'Rb':
                    if t == 0: rdV((j + 1) % 2, (j + 1) % 4, 'Rb', (rep + (j + 1) // 4) % 3)
                    else: rdK(j % 2, (j + 2) % 4, 'Rb', (rep + (j + 2) // 4) % 3)
                elif tok in ('R', 'Ra'):
                    if t == 0:
                        if j == 3 and not st3:
                            a(f'v_mad_u32_u24 {vr(vaV)}, {vr(vmV)}, {sr(sOff)}, {vr(vbV)}')
                        rdV((j + 1) % 2, (j + 1) % 4, tok, (rep + (j + 1) // 4) % 3)
                        if j == 2 and nobar:
                            a(f'ds_read_b64 {vr(vPw,2)}, {vr(vPa)}')
                    else:
                        if g1s and rep == 1 and j == 1:
                            a(f's_cmp_eq_u32 {sr(sG)}, 0')
                            a(f's_cbranch_scc1 {name}_g1w')
                            a.label(f'{name}_g1r')
                        if j == 2 and st3:
                            if dsig and rep == 0: sig_point(True)
                            a('s_waitcnt lgkmcnt(0)')
                            a('s_barrier')
                            if sset == 6 and st.on and rep == 0:
                                a(f's_cmp_eq_u32 {sr(sG)}, 0')
                                a(f's_cbranch_scc0 {name}_sk6')
                                st.rt()
                                a.label(f'{name}_sk6')
                        elif j == 2:
                            a(f'''s_add_u32 {sr(sOff)}, {sr(sOff)}, {SLOT}
s_cmp_ge_u32 {sr(sOff)}, {3*SLOT}
s_cselect_b32 {sr(sOff)}, 0, {sr(sOff)}''')
                            if nobar:
                                a(f'''v_add_u32 {vr(vPg)}, 1, {vr(vPg)}
s_add_u32 {sr(sT3)}, {sr(sG)}, {rep + 1}
s_waitcnt lgkmcnt(0)
v_readfirstlane_b32 {sr(sT)}, {vr(vPw)}
v_readfirstlane_b32 {sr(sT2)}, {vr(vPw+1)}
ds_write_b32 {vr(vPo_)}, {vr(vPg)}''')
                                if nobar == 1:
                                    a(f'''s_setprio 0
s_cmp_lt_u32 {sr(sT2)}, {sr(sT3)}
s_cbranch_scc1 {name}_lo{rep}
s_setprio 1''')
                                    a.label(f'{name}_lo{rep}')
                                elif nobar == 2:
                                    a(f's_add_u32 {sr(sT2)}, {sr(sT2)}, {1 + opts.get("slack", 0)}')
                                    a(f's_min_u32 {sr(sT)}, {sr(sT)}, {sr(sT2)}')
                                a(f's_cmp_gt_u32 {sr(sT)}, {sr(sT3)}')
                                a(f's_cbranch_scc0 {name}_spin{rep}')
                                a.label(f'{name}_spun{rep}')
                            else:
                                a('s_waitcnt lgkmcnt(0)')
                                a('s_barrier')
                            if sset == 2 and st.on:
                                for K in (0, 1, 2, 3, 8, 14):
                                    a(f's_cmp_eq_u32 {sr(sG)}, {K}')
                                    a(f's_cbranch_scc0 {name}_sk{K}')
                                    st()
                                    a.label(f'{name}_sk{K}')
                            a(f'''v_add_u32 {vr(vaK1)}, {sr(sOff)}, {vr(vbK1)}
v_mad_u32_u24 {vr(vaK2)}, {vr(vmK2)}, {sr(sOff)}, {vr(vbK2)}''')
                        rdK(j % 2, (j + 2) % 4, tok, (rep + (j + 2) // 4) % 3)
            assert e == 16
      if st3 and rep == 0:
        a(f's_cmp_eq_u32 {sr(sG)}, 15')
        a(f's_cbranch_scc1 {name}_lend')
    a(f'''s_add_u32 {sr(sG)}, {sr(sG)}, {unroll}
s_cmp_lt_u32 {sr(sG)}, 16
s_cbranch_scc1 {name}_loop''')
    a.label(f'{name}_lend')
    a('s_nop 1')
    pv(1, 1, 1)
    if ptab or nobar:
        a('s_setprio 0')
    st0()
    if sset in (2, 3): st()
    L = [vT2, vT3]
    st6()
    rts(4)
    a('s_waitcnt lgkmcnt(0)')
    a(f's_mov_b32 {sr(sI)}, 0')
    a.label(f'{name}_store')
    a(f's_mov_b32 {sr(sM)}, 0xaaaaaaaa')
    a(f's_mov_b32 {sr(sM+1)}, 0xaaaaaaaa')
    for t in range(2):
        a(f'v_mov_b32 {vr(vT0)}, {vr(O[t]+8)}')
        crosshalf(vT0, L[t])
        a(f'v_rcp_f32 {vr(vT0)}, {vr(L[t])}')
        a('s_nop 0')
        for i in range(12):
            a(f'v_mul_f32 {vr(O[t]+i)}, {vr(O[t]+i)}, {vr(vT0)}')
        for i in range(4):
            a(f'v_cvt_pk_bf16_f32 {vr(S[t]+i)}, {vr(O[t]+2*i)}, {vr(O[t]+2*i+1)}')
        a(f'buffer_store_dwordx4 {vr(S[t],4)}, {vr(vQo)}, {sr(SWS,4)}, {sr(sOo)} offen offset:{1024*t}{SST}')
        for i in range(2):
            a(f'v_cvt_pk_bf16_f32 {vr(S[0]+4+2*t+i)}, {vr(O[t]+8+2*i)}, {vr(O[t]+8+2*i+1)}')
    ta, tb, X, Y = S[0]+4, S[0]+6, S[0]+8, S[0]+12
    a(f'''v_cndmask_b32_e64 {vr(X)}, {vr(tb)}, {vr(ta)}, {sr(sM,2)}
v_cndmask_b32_e64 {vr(X+1)}, {vr(tb+1)}, {vr(ta+1)}, {sr(sM,2)}
v_lshrrev_b32 {vr(vT0)}, 1, {vr(vLane)}
v_and_b32 {vr(vT1)}, 1, {vr(vLane)}
v_mov_b32_dpp {vr(X+2)}, {vr(X)} quad_perm:[1,0,3,2] row_mask:0xf bank_mask:0xf
v_mov_b32_dpp {vr(X+3)}, {vr(X+1)} quad_perm:[1,0,3,2] row_mask:0xf bank_mask:0xf
v_lshlrev_b32 {vr(vT0)}, 4, {vr(vT0)}
v_lshl_add_u32 {vr(vT0)}, {vr(vT1)}, 8, {vr(vT0)}
v_mov_b32 {vr(vT1)}, {OOB}
v_cndmask_b32_e64 {vr(Y)}, {vr(ta)}, {vr(X+2)}, {sr(sM,2)}
v_cndmask_b32_e64 {vr(Y+1)}, {vr(ta+1)}, {vr(X+3)}, {sr(sM,2)}
v_cndmask_b32_e64 {vr(Y+2)}, {vr(X+2)}, {vr(tb)}, {sr(sM,2)}
v_cndmask_b32_e64 {vr(Y+3)}, {vr(X+3)}, {vr(tb+1)}, {sr(sM,2)}
v_cndmask_b32_e64 {vr(vT0)}, {vr(vT0)}, {vr(vT1)}, {sr(sHi,2)}
buffer_store_dwordx4 {vr(Y,4)}, {vr(vT0)}, {sr(SWS,4)}, {sr(sOo)} offen offset:2048{SST}''')
    st0()
    for t in range(2):
        sm = sM if t == 0 else sM2
        a(f'v_mul_f32 {vr(vT1)}, 0, {vr(O[t])}')
        for i in range(1, 12):
            a(f'v_fmac_f32 {vr(vT1)}, 0, {vr(O[t]+i)}')
        a(f'v_add_f32 {vr(vT1)}, {vr(vT1)}, {vr(L[t])}')
        a(f'v_cmp_gt_f32 vcc, 0x53800000, {vr(vT1)}')
        a(f's_mov_b64 {sr(sm,2)}, vcc')
        a(f'v_cmp_lt_f32 vcc, 0x35800000, {vr(vT1)}')
        a(f's_and_b64 {sr(sm,2)}, {sr(sm,2)}, vcc')
    a(f'''s_and_b64 {sr(sM,2)}, {sr(sM,2)}, {sr(sM2,2)}
s_cmp_eq_u64 {sr(sM,2)}, -1
s_cselect_b32 {sr(sT)}, 1, {sr(sI)}
s_cmp_eq_u32 {sr(sT)}, 0
s_cbranch_scc1 {name}_fallback''')

    V = VAlloc(VBASE)
    vAo = V(); vAt = V(); vWm0 = V(); vWt0 = V(); vOo = V(); vRd = V(); vDn = V(); vOw = V(); vOr = V(); vOs = [V(), V(), V()]
    vWm = [V() for _ in range(4)]; vWt = [V() for _ in range(4)]
    acc3 = [V(4) for _ in range(5)]
    assert V.n <= S[0]
    Wg = [[V(4) for _ in range(5)] for _ in range(2)]
    A = [[V(4) for _ in range(5)] for _ in range(4)]
    done_alloc(V)
    a(f'''s_lshl_b32 {sr(sT)}, {sr(sB)}, 4
s_add_u32 {sr(sT)}, {sr(sT)}, {sr(sMt3)}
s_lshl_b32 {sr(sT)}, {sr(sT)}, 1
s_lshr_b32 {sr(sT2)}, {sr(sW)}, 2
s_add_u32 {sr(sT)}, {sr(sT)}, {sr(sT2)}
s_mul_i32 {sr(sA)}, {sr(sT)}, {32*2560}
s_add_u32 {sr(sA)}, {sr(sA)}, {F_WS_O}
s_and_b32 {sr(sT)}, {sr(sW)}, 1
s_lshl_b32 {sr(sT)}, {sr(sT)}, 4
s_bfe_u32 {sr(sT2)}, {sr(sW)}, 0x10001
v_and_b32 {vr(vT0)}, 15, {vr(vLane)}
v_add_u32 {vr(vT0)}, {sr(sT)}, {vr(vT0)}
v_lshlrev_b32 {vr(vT0)}, 4, {vr(vT0)}
v_lshrrev_b32 {vr(vT1)}, 5, {vr(vLane)}
v_mul_u32_u24 {vr(vT1)}, 2560, {vr(vT1)}
v_bfe_u32 {vr(vT2)}, {vr(vLane)}, 4, 1
v_lshl_add_u32 {vr(vT1)}, {vr(vT2)}, 9, {vr(vT1)}
s_lshl_b32 {sr(sT3)}, {sr(sT2)}, 10
v_add3_u32 {vr(vAo)}, {vr(vT0)}, {vr(vT1)}, {sr(sT3)}
v_lshrrev_b32 {vr(vT1)}, 4, {vr(vLane)}
v_mul_u32_u24 {vr(vT1)}, 2560, {vr(vT1)}
s_lshl_b32 {sr(sT3)}, {sr(sT2)}, 8
s_add_u32 {sr(sT3)}, {sr(sT3)}, 2048
v_lshrrev_b32 {vr(vT0)}, 1, {vr(vT0)}
v_add3_u32 {vr(vAt)}, {vr(vT0)}, {vr(vT1)}, {sr(sT3)}
v_bfe_u32 {vr(vT0)}, {vr(vLane)}, 2, 2
v_lshrrev_b32 {vr(vT1)}, 5, {vr(vLane)}
v_mul_u32_u24 {vr(vT1)}, 20, {vr(vT1)}
v_bfe_u32 {vr(vT2)}, {vr(vLane)}, 4, 1
v_lshl_add_u32 {vr(vT1)}, {vr(vT2)}, 2, {vr(vT1)}
v_add_u32 {vr(vT1)}, {vr(vT1)}, {vr(vT0)}
v_mul_u32_u24 {vr(vT1)}, 160, {vr(vT1)}
v_and_b32 {vr(vT2)}, 3, {vr(vLane)}
v_lshl_add_u32 {vr(vWm0)}, {vr(vT2)}, 3, {vr(vT1)}
v_lshrrev_b32 {vr(vT1)}, 4, {vr(vLane)}
v_mul_u32_u24 {vr(vT1)}, 20, {vr(vT1)}
v_add3_u32 {vr(vT1)}, {vr(vT1)}, {vr(vT0)}, 16
v_mul_u32_u24 {vr(vT1)}, 160, {vr(vT1)}
v_lshl_add_u32 {vr(vWt0)}, {vr(vT2)}, 3, {vr(vT1)}
s_lshl_b32 {sr(sT)}, {sr(sMt3)}, 7
s_lshl_b32 {sr(sT2)}, {sr(sW)}, 4
s_add_u32 {sr(sT)}, {sr(sT)}, {sr(sT2)}
v_and_b32 {vr(vT0)}, 15, {vr(vLane)}
v_add_u32 {vr(vT0)}, {sr(sT)}, {vr(vT0)}
v_mul_u32_u24 {vr(vT0)}, 2560, {vr(vT0)}
v_lshrrev_b32 {vr(vT1)}, 4, {vr(vLane)}
v_lshl_add_u32 {vr(vT0)}, {vr(vT1)}, 3, {vr(vT0)}
s_mul_i32 {sr(sT)}, {sr(sB)}, 1280
s_mul_i32 {sr(sT2)}, {sr(sCg)}, 160
s_add_u32 {sr(sT)}, {sr(sT)}, {sr(sT2)}
v_add_u32 {vr(vOo)}, {sr(sT)}, {vr(vT0)}
v_mov_b32 {vr(vRd)}, {LW_RDY}
s_lshl_b32 {sr(sT2)}, {sr(sMt3)}, 3
s_add_u32 {sr(sT2)}, {sr(sT2)}, {sr(sW)}
s_mul_i32 {sr(sT2)}, {sr(sT2)}, {16*2560}
s_add_u32 {sr(sOo)}, {sr(sT)}, {sr(sT2)}
s_mul_i32 {sr(sT2)}, {sr(sW)}, 3072
v_and_b32 {vr(vT0)}, 15, {vr(vLane)}
v_mul_u32_u24 {vr(vT0)}, 160, {vr(vT0)}
v_lshl_add_u32 {vr(vT0)}, {vr(vT1)}, 3, {vr(vT0)}
v_add_u32 {vr(vOw)}, {sr(sT2)}, {vr(vT0)}
v_lshlrev_b32 {vr(vT0)}, 4, {vr(vLane)}
v_add_u32 {vr(vOr)}, {sr(sT2)}, {vr(vT0)}
v_mul_u32_u24 {vr(vT1)}, 6554, {vr(vLane)}
v_lshrrev_b32 {vr(vT1)}, 16, {vr(vT1)}
v_mul_u32_u24 {vr(vT1)}, {2560-160}, {vr(vT1)}
v_add_u32 {vr(vOs[0])}, {vr(vT0)}, {vr(vT1)}
v_add_u32 {vr(vT2)}, 64, {vr(vLane)}
v_mul_u32_u24 {vr(vT1)}, 6554, {vr(vT2)}
v_lshrrev_b32 {vr(vT1)}, 16, {vr(vT1)}
v_mul_u32_u24 {vr(vT1)}, {2560-160}, {vr(vT1)}
v_lshl_add_u32 {vr(vOs[1])}, {vr(vT2)}, 4, {vr(vT1)}
v_add_u32 {vr(vT2)}, 128, {vr(vLane)}
v_mul_u32_u24 {vr(vT1)}, 6554, {vr(vT2)}
v_lshrrev_b32 {vr(vT1)}, 16, {vr(vT1)}
v_mul_u32_u24 {vr(vT1)}, {2560-160}, {vr(vT1)}
v_lshl_add_u32 {vr(vT1)}, {vr(vT2)}, 4, {vr(vT1)}
v_mov_b32 {vr(vT2)}, {OOB}
v_cndmask_b32_e64 {vr(vOs[2])}, {vr(vT1)}, {vr(vT2)}, {sr(sHi,2)}
s_lshl_b32 {sr(sT)}, {sr(sB)}, 4
s_add_u32 {sr(sT)}, {sr(sT)}, {sr(sMt)}
s_lshl_b32 {sr(sT)}, {sr(sT)}, 6
s_add_u32 {sr(sT)}, {sr(sT)}, {sr(sHg)}
s_lshl_b32 {sr(sT)}, {sr(sT)}, 2
s_add_u32 {sr(sT)}, {sr(sT)}, {F_FLAG2}
v_mov_b32 {vr(vDn)}, {sr(sT)}
v_add_u32 {vr(vWm0)}, {WO_LO}, {vr(vWm0)}
v_add_u32 {vr(vWt0)}, {WO_LO}, {vr(vWt0)}
s_and_b32 {sr(sT3)}, {sr(sCg)}, {opts.get('rot3', 3)}
s_lshl_b32 {sr(sT3)}, {sr(sT3)}, 1
s_mov_b32 {sr(sDone)}, 0''')
    for t in range(5):
        for i in range(4):
            a(f'v_mov_b32 {vr(acc3[t]+i)}, 0')
    tid_ = [0]
    base3 = st.n
    if sset == 3: st.n += 4
    def read_rdy():
        a(f'''ds_read_b64 {vr(vT0,2)}, {vr(vRd)}
s_waitcnt lgkmcnt(0)
v_and_b32 {vr(vT0)}, {vr(vT0)}, {vr(vT1)}
s_nop 0
v_readfirstlane_b32 {sr(sT)}, {vr(vT0)}
s_andn2_b32 {sr(sT)}, {sr(sT)}, {sr(sDone)}''')
    def loads(s_):
        a(f'''s_lshl_b32 {sr(sT2)}, {sr(sT)}, 8
s_or_b32 {sr(sT)}, {sr(sT)}, {sr(sT2)}
s_lshr_b32 {sr(sT)}, {sr(sT)}, {sr(sT3)}
s_ff1_i32_b32 {sr(sT)}, {sr(sT)}
s_add_u32 {sr(sT)}, {sr(sT)}, {sr(sT3)}
s_and_b32 {sr(sT)}, {sr(sT)}, 7
s_bitset1_b32 {sr(sDone)}, {sr(sT)}
s_mul_i32 {sr(sT2)}, {sr(sT)}, 10240
s_add_u32 {sr(sT2)}, {sr(sT2)}, {sr(sA)}
s_cmp_eq_u32 {sr(sT)}, 6
s_mul_i32 {sr(sT)}, {sr(sT)}, 12800
s_cselect_b32 {sr(sT)}, {QST - WO_LO}, {sr(sT)}''')
        for p in range(4):
            a(f'buffer_load_dwordx4 {vr(A[s_][p],4)}, {vr(vAo)}, {sr(SWS,4)}, {sr(sT2)} offen{SLD}')
            if p == 0:
                a(f'buffer_load_dwordx2 {vr(A[s_][4],2)}, {vr(vAt)}, {sr(SWS,4)}, {sr(sT2)} offen{SLD}')
            if p == 2:
                a(f'buffer_load_dwordx2 {vr(A[s_][4]+2,2)}, {vr(vAt)}, {sr(SWS,4)}, {sr(sT2)} offen{SLD}')
            if p < 3:
                a(f's_add_u32 {sr(sT2)}, {sr(sT2)}, 5120')
        a(f'v_add_u32 {vr(vWm[s_])}, {sr(sT)}, {vr(vWm0)}')
        a(f'v_add_u32 {vr(vWt[s_])}, {sr(sT)}, {vr(vWt0)}')
        if sset == 3 and st.on:
            a(f's_memtime s[{62+2*(base3+s_)}:{63+2*(base3+s_)}]\ns_waitcnt lgkmcnt(0)')
    def take_group(s_):
        n = tid_[0]; tid_[0] += 1
        a.label(f'{name}_tg{n}')
        read_rdy()
        a(f'''s_cbranch_scc1 {name}_tgd{n}
s_sleep 1
s_branch {name}_tg{n}''')
        a.label(f'{name}_tgd{n}')
        loads(s_)
    a('s_waitcnt vmcnt(0)')
    a(f'''s_mov_b64 exec, 1
v_mov_b32 {vr(vT0)}, 1
ds_add_rtn_u32 {vr(vT0)}, {vr(vRd)}, {vr(vT0)} offset:8
v_mov_b32 {vr(vT1)}, {sr(sTag)}
v_mov_b32 {vr(vT2)}, 0xff
s_waitcnt lgkmcnt(0)
v_readfirstlane_b32 {sr(sT)}, {vr(vT0)}
s_cmp_eq_u32 {sr(sT)}, 7
s_cbranch_scc0 {name}_nl
buffer_store_dword {vr(vT1)}, {vr(vDn)}, {sr(SWS,4)}, 0 offen{SC}
ds_write_b32 {vr(vRd)}, {vr(vT2)} offset:4''')
    a.label(f'{name}_nl')
    a('s_mov_b64 exec, -1')
    if sset == 3: st()
    st6()
    def rdW3(fs, j, p, t):
        out = []
        for rd in range(2):
            if p < 4:
                base, off = vWm[j], (20*(2*p) + 8*rd)*160 + t*32
            else:
                base, off = vWt[j], (20*(4*rd))*160 + t*32
            out.append(f'ds_read_b64_tr_b16 {vr(Wg[fs][t]+2*rd,2)}, {vr(base)} offset:{off}')
        return out
    if opts.get('evt', 1):
        st0()
        sJ = sG
        a(f's_mov_b32 {sr(sI)}, 0')
        a(f's_mov_b32 {sr(sJ)}, 0')
        a.label(f'{name}_ev')
        dep3 = opts.get('dep3', 3)
        LANDED = f'''s_getreg_b32 {sr(sT)}, hwreg(HW_REG_IB_STS)
s_bfe_u32 {sr(sT2)}, {sr(sT)}, 0x20016
s_lshl_b32 {sr(sT2)}, {sr(sT2)}, 4
s_and_b32 {sr(sT)}, {sr(sT)}, 15
s_or_b32 {sr(sT)}, {sr(sT)}, {sr(sT2)}
s_add_u32 {sr(sT)}, {sr(sT)}, 6
s_sub_u32 {sr(sT2)}, {sr(sI)}, {sr(sJ)}
s_mul_i32 {sr(sT2)}, {sr(sT2)}, 6
s_cmp_le_u32 {sr(sT)}, {sr(sT2)}
s_cbranch_scc1 {name}_evc'''
        a(f's_cmp_lt_u32 {sr(sI)}, 4')
        a(f's_cbranch_scc0 {name}_evc')
        if dep3 < 4:
            a(f's_sub_u32 {sr(sT)}, {sr(sI)}, {sr(sJ)}')
            a(f's_cmp_ge_u32 {sr(sT)}, {dep3}')
            a(f's_cbranch_scc1 {name}_evc')
        read_rdy()
        a(f's_cbranch_scc0 {name}_evn')
        for i in range(4):
            if i < 3:
                a(f's_cmp_eq_u32 {sr(sI)}, {i}')
                a(f's_cbranch_scc0 {name}_evt{i}')
            loads(i)
            a(f's_mov_b32 {sr(sI)}, {i+1}')
            a(f's_branch {name}_ev')
            a.label(f'{name}_evt{i}')
        a.label(f'{name}_evn')
        a(LANDED)
        a(f's_branch {name}_ev')
        a.label(f'{name}_evc')
        for j in range(4):
            if j < 3:
                a(f's_cmp_eq_u32 {sr(sJ)}, {j}')
                a(f's_cbranch_scc0 {name}_evk{j}')
            for p in range(2):
                for t in range(5):
                    for r in rdW3(p, j, p, t): a(r)
            for k in range(4, j + 1, -1):
                a(f's_cmp_eq_u32 {sr(sI)}, {k}')
                a(f's_cbranch_scc0 {name}_evw{j}_{k}')
                a(f's_waitcnt vmcnt({6*(k-j-1)})')
                a(f's_branch {name}_evx{j}')
                a.label(f'{name}_evw{j}_{k}')
            a('s_waitcnt vmcnt(0)')
            a.label(f'{name}_evx{j}')
            if sset == 3 and j in (0, 3): st()
            if j in (0, 3): st6()
            for p in range(5):
                fs = p % 2
                a(f's_waitcnt lgkmcnt({10 if p < 4 else 0})')
                for t in range(5):
                    a(f'v_mfma_f32_16x16x32_bf16 {vr(acc3[t],4)}, {vr(Wg[fs][t],4)}, {vr(A[j][p],4)}, {vr(acc3[t],4)}')
                    if p + 2 < 5:
                        for r in rdW3(fs, j, p + 2, t): a(r)
            if j < 3:
                a(f's_mov_b32 {sr(sJ)}, {j+1}')
                a(f's_branch {name}_ev')
                a.label(f'{name}_evk{j}')
    else:
        st0()
        steps = [(j, p) for j in range(4) for p in range(5)]
        for j in range(4):
            take_group(j)
        for n in range(2):
            for t in range(5):
                for r in rdW3(n, *steps[n], t): a(r)
        left = {0: 5, 1: 3, 2: 2, 3: 0, 4: 0}
        for n, (j, p) in enumerate(steps):
            fs = n % 2
            a(f's_waitcnt vmcnt({6*(3-j) + left[p]}) lgkmcnt({10 if n < 19 else 0})')
            if sset == 3 and n in (0, 18): st()
            for t in range(5):
                a(f'v_mfma_f32_16x16x32_bf16 {vr(acc3[t],4)}, {vr(Wg[fs][t],4)}, {vr(A[j][p],4)}, {vr(acc3[t],4)}')
                if n + 2 < 20:
                    for r in rdW3(fs, *steps[n+2], t): a(r)

    a('s_nop 3')
    st0()
    if sset == 3: st()
    OUTF = {0: '', 1: ' nt', 2: ' sc1', 3: ' sc0 sc1', 4: ' sc1 nt', 5: ' sc0 sc1 nt'}[opts.get('outf', 2)]
    if opts.get('ow', 1):
        for t in range(5):
            a(f'v_cvt_pk_bf16_f32 {vr(acc3[t])}, {vr(acc3[t])}, {vr(acc3[t]+1)}')
            a(f'v_cvt_pk_bf16_f32 {vr(acc3[t]+1)}, {vr(acc3[t]+2)}, {vr(acc3[t]+3)}')
            a(f'ds_write_b64 {vr(vOw)}, {vr(acc3[t],2)} offset:{t*32}')
        a('s_waitcnt lgkmcnt(0)')
        for k in range(3):
            a(f'ds_read_b128 {vr(Wg[0][k],4)}, {vr(vOr)} offset:{k*1024}')
        for k in range(3):
            a(f's_waitcnt lgkmcnt({2-k})')
            a(f'buffer_store_dwordx4 {vr(Wg[0][k],4)}, {vr(vOs[k])}, {sr(SOUT,4)}, {sr(sOo)} offen{OUTF}')
    else:
        for t in range(5):
            a(f'v_cvt_pk_bf16_f32 {vr(acc3[t])}, {vr(acc3[t])}, {vr(acc3[t]+1)}')
            a(f'v_cvt_pk_bf16_f32 {vr(acc3[t]+1)}, {vr(acc3[t]+2)}, {vr(acc3[t]+3)}')
            a(f'buffer_store_dwordx2 {vr(acc3[t],2)}, {vr(vOo)}, {sr(SOUT,4)}, 0 offen offset:{t*32}{OUTF}')

    if sset == 5:
        st(); st()
    if dbgt:
        a('s_waitcnt vmcnt(0)')
        rts(5)
        a('s_mov_b64 exec, 1')
        a(f's_not_b32 s62, s62')
        for k in range(6):
            a(f'v_mov_b32 {vr(vT0)}, {4+4*k}')
            a(f'v_mov_b32 {vr(vT1)}, s{62+2*k}')
            a(f'buffer_atomic_umax {vr(vT1)}, {vr(vT0)}, {sr(SDBG,4)}, 0 offen')
            a('s_nop 1')
    if st.on:
        a('s_waitcnt vmcnt(0)')
    st(); st.rt(); st.flush(sW)
    n_total = st.n
    a.label(f'{name}_done')
    a('s_endpgm')

    if nobar:
        for rep in range(unroll):
            a.label(f'{name}_spin{rep}')
            a(f'''ds_read_b64 {vr(vPw,2)}, {vr(vPa)}
s_waitcnt lgkmcnt(0)
v_readfirstlane_b32 {sr(sT)}, {vr(vPw)}''')
            if nobar == 2:
                a(f'''v_readfirstlane_b32 {sr(sT2)}, {vr(vPw+1)}
s_add_u32 {sr(sT2)}, {sr(sT2)}, {1 + opts.get("slack", 0)}
s_min_u32 {sr(sT)}, {sr(sT)}, {sr(sT2)}''')
            a(f'''s_cmp_gt_u32 {sr(sT)}, {sr(sT3)}
s_cbranch_scc0 {name}_spin{rep}
s_branch {name}_spun{rep}''')
    if g1s:
        a.label(f'{name}_g1w')
        a(f'''v_mov_b32 {vr(vT0)}, {LW_G1}
ds_read_b32 {vr(vT0)}, {vr(vT0)}
s_waitcnt lgkmcnt(0)
v_readfirstlane_b32 {sr(sT)}, {vr(vT0)}
s_cmp_eq_u32 {sr(sT)}, 0
s_cbranch_scc1 {name}_g1w
s_branch {name}_g1r''')
    for k, force in enumerate(sigpts):
        a.label(f'{name}_sg{k}')
        if not force:
            a(f'''s_getreg_b32 {sr(sT)}, hwreg(HW_REG_IB_STS)
s_and_b32 {sr(sT)}, {sr(sT)}, 0xc0000f
s_cbranch_scc1 {name}_sgr{k}''')
        sig_code(f'{name}_sgn{k}', 4)
        a(f's_mov_b32 {sr(sSig)}, 0')
        a(f's_branch {name}_sgr{k}')
    a.label(f'{name}_fallback')
    M = [vT4, vT5]
    vVo = vPa
    a(f'''v_cndmask_b32_e64 {vr(Q2[0])}, {vr(Q2[0])}, 0, {sr(sHi,2)}
v_cndmask_b32_e64 {vr(Q2[0]+1)}, {vr(Q2[0]+1)}, 0, {sr(sHi,2)}
v_cndmask_b32_e64 {vr(Q2[1])}, {vr(Q2[1])}, 0, {sr(sHi,2)}
v_cndmask_b32_e64 {vr(Q2[1]+1)}, {vr(Q2[1]+1)}, 0, {sr(sHi,2)}
v_mov_b32 {vr(M[0])}, 0xff800000
v_mov_b32 {vr(M[1])}, 0xff800000
v_mov_b32 {vr(vT1)}, {OOB}
s_lshr_b32 {sr(sT)}, {sr(sW)}, 1
s_mul_i32 {sr(sT)}, {sr(sT)}, 10240
v_subrev_u32 {vr(vT0)}, {sr(sT)}, {vr(vbV)}
v_cmp_eq_u32 vcc, 1, {vr(vmV)}
s_mov_b32 {sr(sT)}, {sr(sKV)}
s_mov_b32 {sr(sG)}, 0
v_cndmask_b32 {vr(vVo)}, {vr(vT1)}, {vr(vT0)}, vcc
s_mov_b64 {sr(sM2,2)}, vcc
s_waitcnt vmcnt(0)''')
    a.label(f'{name}_fb1')
    a(f'''buffer_load_dwordx4 {vr(K1[0],4)}, {vr(vQo)}, {sr(SWS,4)}, {sr(sT)} offen{SC}
buffer_load_dwordx2 {vr(K2[0],2)}, {vr(vQo2)}, {sr(SWS,4)}, {sr(sT)} offen{SC}
s_waitcnt vmcnt(0)''')
    qk16(0, 0); qk16(1, 0); qk8(0, 0); qk8(1, 0)
    a('s_nop 15')
    for t in range(2):
        rowmax(t, vT0)
        a(f'v_max_f32 {vr(M[t])}, {vr(M[t])}, {vr(vT0)}')
    a(f'''s_add_u32 {sr(sT)}, {sr(sT)}, 2560
s_add_u32 {sr(sG)}, {sr(sG)}, 1
s_cmp_lt_u32 {sr(sG)}, 64
s_cbranch_scc1 {name}_fb1''')
    for t in range(2):
        crosshalf(M[t], vT1)
        a(f'v_max_f32 {vr(M[t])}, {vr(M[t])}, {vr(vT1)}')
        for i in range(16):
            a(f'v_mov_b32 {vr(O[t]+i)}, 0')
    a(f's_mov_b32 {sr(sT)}, {sr(sKV)}')
    a(f's_mov_b32 {sr(sG)}, 0')
    a(f'v_mov_b32 {vr(vT1)}, 0x3f803f80')
    a.label(f'{name}_fb2')
    a(f'''buffer_load_dwordx4 {vr(K1[0],4)}, {vr(vQo)}, {sr(SWS,4)}, {sr(sT)} offen{SC}
buffer_load_dwordx2 {vr(K2[0],2)}, {vr(vQo2)}, {sr(SWS,4)}, {sr(sT)} offen{SC}
buffer_load_dwordx4 {vr(V0[0],4)}, {vr(vVo)}, {sr(SWS,4)}, {sr(sT)} offen{SC}
buffer_load_dwordx4 {vr(V1[0],4)}, {vr(vVo)}, {sr(SWS,4)}, {sr(sT)} offen offset:640{SC}
s_waitcnt vmcnt(0)''')
    qk16(0, 0); qk16(1, 0); qk8(0, 0); qk8(1, 0)
    for i in range(4):
        a(f'v_cndmask_b32_e64 {vr(V0[0]+i)}, {vr(vT1)}, {vr(V0[0]+i)}, {sr(sM2,2)}')
        a(f'v_cndmask_b32_e64 {vr(V1[0]+i)}, {vr(vT1)}, {vr(V1[0]+i)}, {sr(sM2,2)}')
    a('s_nop 15')
    for t in range(2):
        for i in range(16):
            a(f'v_sub_f32 {vr(S[t]+i)}, {vr(S[t]+i)}, {vr(M[t])}')
        for i in range(16):
            ex(t, i)
    a('s_nop 1')
    for t in range(2):
        pv(t, 0, 0); pv(t, 0, 1)
    a(f'''s_add_u32 {sr(sT)}, {sr(sT)}, 2560
s_add_u32 {sr(sG)}, {sr(sG)}, 1
s_cmp_lt_u32 {sr(sG)}, 64
s_cbranch_scc1 {name}_fb2''')
    a('s_nop 15')
    a(f's_mov_b32 {sr(sI)}, 1')
    a(f's_branch {name}_store')

    a.label(f'{name}_helper')
    st.n = n_common
    V = VAlloc(VBASE)
    vEp = V(); vL16 = V(); vFl = V()
    VH = V.n
    a('s_setprio 3')
    a(SRDS)
    if opts.get('cpf', 0):
        a(f'''s_getpc_b64 {sr(sM,2)}
{name}_pc:
s_sub_u32 {sr(sM)}, {sr(sM)}, {name}_pc - {name}
s_subb_u32 {sr(sM+1)}, {sr(sM+1)}, 0
s_lshr_b32 {sr(sT)}, s2, 3
v_lshlrev_b32 {vr(vT0)}, 5, {vr(vLane)}
v_add_u32 {vr(vT0)}, {sr(sT)}, {vr(vT0)}
v_lshlrev_b32 {vr(vT0)}, 7, {vr(vT0)}
v_min_u32 {vr(vT0)}, {name}_end - {name} - 4, {vr(vT0)}
s_mov_b64 exec, 0xfff
global_load_dword {vr(vFl)}, {vr(vT0)}, {sr(sM,2)}
s_mov_b64 exec, -1''')
    elate = opts.get('elate', 0)
    if not elate and not sep:
        a(f'v_mov_b32 {vr(vT0)}, {F_EPOCH}')
        a(f'buffer_load_dword {vr(vEp)}, {vr(vT0)}, {sr(SWS,4)}, 0 offen{SC}')
    stl = opts.get('stl', 0)
    if stl:
        ns = max(ns, 72)
        if stl & 1:
            a(f's_mul_i32 {sr(sT)}, {sr(sMt3)}, {128*2560}')
            a(f's_load_dword s64, {sr(SOUT,2)}, {sr(sT)}')
            a(f's_add_u32 {sr(sT)}, {sr(sT)}, {128*2560-4}')
            a(f's_load_dword s65, {sr(SOUT,2)}, {sr(sT)}')
        if stl & 2:
            a(f's_load_dword s66, {sr(SWO,2)}, 0')
        if stl & 4:
            a(f's_load_dword s67, {sr(SWS,2)}, {sr(sKV)}')
            a(f's_add_u32 {sr(sT)}, {sr(sKV)}, {4*KV_HEAD-4}')
            a(f's_load_dword s68, {sr(SWS,2)}, {sr(sT)}')
        if stl & 8:
            for k, m in ((69, sMt), (70, sMt3)):
                a(f's_lshl_b32 {sr(sT)}, {sr(sB)}, 4')
                a(f's_add_u32 {sr(sT)}, {sr(sT)}, {sr(m)}')
                a(f's_mul_i32 {sr(sT)}, {sr(sT)}, {2*32*2560}')
                a(f's_add_u32 {sr(sT)}, {sr(sT)}, {F_WS_O}')
                a(f's_load_dword s{k}, {sr(SWS,2)}, {sr(sT)}')
    tlb = opts.get('tlb', 0)
    if tlb & 1:
        a(f'''v_lshlrev_b32 {vr(vT1)}, 18, {vr(vLane)}
buffer_load_dword {vr(vFl)}, {vr(vT1)}, {sr(SWS,4)}, 0 offen''')
    if tlb & 2:
        a(f'''v_lshlrev_b32 {vr(vT1)}, 18, {vr(vLane)}
buffer_load_dword {vr(vT2)}, {vr(vT1)}, {sr(SOUT,4)}, 0 offen
buffer_load_dword {vr(vT3)}, {vr(vT1)}, {sr(SWO,4)}, 0 offen''')
    if tlb & 4:
        a(f'''v_lshlrev_b32 {vr(vT1)}, 21, {vr(vLane)}
buffer_load_dword {vr(vFl)}, {vr(vT1)}, {sr(SWS,4)}, 0 offen
buffer_load_dword {vr(vT4)}, {vr(vT1)}, {sr(SOUT,4)}, 0 offen
buffer_load_dword {vr(vT5)}, {vr(vT1)}, {sr(SWO,4)}, 0 offen''')
    a(f'v_lshlrev_b32 {vr(vL16)}, 4, {vr(vLane)}')
    vP = V(); vC8 = V(8); vPwa = V(); vFu = V(); vPo1 = V(); vPo2 = V(); vPo = V(); vLw = V()
    vW3 = [V() for _ in range(5)]
    vPf = [V() for _ in range(4)]
    vHX = [V() for _ in range(4)]
    vHW = [V() for _ in range(15)]
    vIx = V(); vIw = V(); vSx = V(); vSw = V(); vJ = [V() for _ in range(6)]
    done_alloc(V)
    if stag:
        a(f'''s_lshr_b32 {sr(sT)}, s2, 3
s_and_b32 {sr(sT2)}, s2, 1
s_lshl_b32 {sr(sT2)}, {sr(sT2)}, 5
s_add_u32 {sr(sT2)}, {sr(sT2)}, {sr(sT)}
s_lshl_b32 {sr(sT2)}, {sr(sT2)}, 5
v_and_b32 {vr(vT0)}, 31, {vr(vLane)}
v_add_u32 {vr(vT2)}, {sr(sT2)}, {vr(vT0)}
v_mul_u32_u24 {vr(vT2)}, 1280, {vr(vT2)}
v_lshrrev_b32 {vr(vT1)}, 5, {vr(vLane)}
v_lshl_add_u32 {vr(vIx)}, {vr(vT1)}, 7, {vr(vT2)}
buffer_load_dword {vr(vJ[0])}, {vr(vIx)}, {sr(SX,4)}, 0 offen
v_cmp_le_u32 vcc, 15, {vr(vT0)}
s_lshl_b32 {sr(sT)}, {sr(sT)}, 1
s_bfe_u32 {sr(sT2)}, s2, 0x10001
v_cndmask_b32_e64 {vr(vT2)}, 0, 1, vcc
v_mul_u32_u24 {vr(vT3)}, 15, {vr(vT2)}
v_sub_u32 {vr(vT3)}, {vr(vT0)}, {vr(vT3)}
v_lshl_add_u32 {vr(vT2)}, {vr(vT1)}, 6, {vr(vT2)}
v_add_u32 {vr(vT2)}, {sr(sT)}, {vr(vT2)}
v_mul_u32_u24 {vr(vT2)}, 3840, {vr(vT2)}
v_mul_u32_u24 {vr(vT4)}, 52, {vr(vT3)}
v_lshrrev_b32 {vr(vT4)}, 8, {vr(vT4)}
v_mul_u32_u24 {vr(vT4)}, {1280-640}, {vr(vT4)}
v_lshl_add_u32 {vr(vT4)}, {vr(vT3)}, 7, {vr(vT4)}
s_mul_i32 {sr(sT2)}, {sr(sT2)}, 640
v_add3_u32 {vr(vIw)}, {vr(vT2)}, {vr(vT4)}, {sr(sT2)}
v_cmp_le_u32 vcc, 30, {vr(vT0)}
v_mov_b32 {vr(vT2)}, {OOB}
s_mov_b32 {sr(sT)}, {128*3840}
v_cndmask_b32 {vr(vIw)}, {vr(vIw)}, {vr(vT2)}, vcc
buffer_load_dword {vr(vJ[1])}, {vr(vIw)}, {sr(SWQ,4)}, 0 offen''')
        if stag >= 2:
            a(f'buffer_load_dword {vr(vJ[2])}, {vr(vIx)}, {sr(SX,4)}, 0 offen offset:256')
            a(f'buffer_load_dword {vr(vJ[3])}, {vr(vIw)}, {sr(SWQ,4)}, {sr(sT)} offen')
        a(f'''s_bfe_u32 {sr(sT)}, s2, 0x30003
s_and_b32 {sr(sI)}, s2, 1
s_lshl_b32 {sr(sI)}, {sr(sI)}, 3
s_add_u32 {sr(sI)}, {sr(sI)}, {sr(sT)}
s_lshl_b32 {sr(sI)}, {sr(sI)}, 7
v_add_u32 {vr(vT0)}, {sr(sI)}, {vr(vLane)}
v_mul_u32_u24 {vr(vSx)}, 1280, {vr(vT0)}
v_mul_u32_u24 {vr(vT1)}, 4370, {vr(vLane)}
v_lshrrev_b32 {vr(vT1)}, 16, {vr(vT1)}
v_mul_u32_u24 {vr(vT2)}, 15, {vr(vT1)}
v_sub_u32 {vr(vT3)}, {vr(vLane)}, {vr(vT2)}
s_lshl_b32 {sr(sT)}, {sr(sT)}, 3
v_add_u32 {vr(vT1)}, {sr(sT)}, {vr(vT1)}
v_mul_u32_u24 {vr(vT1)}, 3840, {vr(vT1)}
v_mul_u32_u24 {vr(vT4)}, 52, {vr(vT3)}
v_lshrrev_b32 {vr(vT4)}, 8, {vr(vT4)}
v_mul_u32_u24 {vr(vT4)}, {1280-640}, {vr(vT4)}
v_lshl_add_u32 {vr(vT4)}, {vr(vT3)}, 7, {vr(vT4)}
v_add3_u32 {vr(vSw)}, {vr(vT1)}, {vr(vT4)}, {sr(sT2)}
v_cmp_le_u32 vcc, 60, {vr(vLane)}
v_mov_b32 {vr(vT2)}, {OOB}
s_lshr_b32 {sr(sM0a)}, s2, 6
v_cndmask_b32 {vr(vSw)}, {vr(vSw)}, {vr(vT2)}, vcc''')
    sgid = [0]
    def stag_pf():
        if not stag: return
        n = sgid[0]; sgid[0] += 1
        AH = opts.get('ahead', 2)
        a(f'''s_add_u32 {sr(sT)}, {sr(sKK)}, {1 + AH}
s_and_b32 {sr(sT2)}, {sr(sT)}, 3
s_cmp_eq_u32 {sr(sT2)}, {sr(sM0a)}
s_cselect_b32 {sr(sT2)}, {sr(sT)}, 99
s_cmp_lt_u32 {sr(sT2)}, {2*stag}
s_cselect_b32 {sr(sT2)}, 99, {sr(sT2)}
s_cmp_lt_u32 {sr(sT2)}, 10
s_cbranch_scc0 {name}_sp{n}
s_lshl_b32 {sr(sT2)}, {sr(sT)}, 7
buffer_load_dword {vr(vJ[0])}, {vr(vSx)}, {sr(SX,4)}, {sr(sT2)} offen
s_add_u32 {sr(sT2)}, {sr(sT2)}, {64*1280}
buffer_load_dword {vr(vJ[1])}, {vr(vSx)}, {sr(SX,4)}, {sr(sT2)} offen
s_mul_i32 {sr(sT2)}, {sr(sT)}, {64*3840}
buffer_load_dword {vr(vJ[2])}, {vr(vSw)}, {sr(SWQ,4)}, {sr(sT2)} offen
s_add_u32 {sr(sT2)}, {sr(sT2)}, {4*3840}
buffer_load_dword {vr(vJ[3])}, {vr(vSw)}, {sr(SWQ,4)}, {sr(sT2)} offen''')
        a.label(f'{name}_sp{n}')
    a(f'''{XROW}
v_lshrrev_b32 {vr(vT0)}, 3, {vr(vLane)}
v_add_u32 {vr(vT0)}, {sr(sT)}, {vr(vT0)}
v_mul_u32_u24 {vr(vT0)}, 1280, {vr(vT0)}
v_lshrrev_b32 {vr(vT1)}, 4, {vr(vLane)}
v_and_b32 {vr(vT3)}, 7, {vr(vLane)}
v_xor_b32 {vr(vT2)}, {vr(vT1)}, {vr(vT3)}
v_lshl_add_u32 {vr(vHX[0])}, {vr(vT2)}, 4, {vr(vT0)}
v_xor_b32 {vr(vT2)}, 64, {vr(vHX[0])}
v_add_u32 {vr(vHX[1])}, {10240-1024}, {vr(vT2)}
v_add_u32 {vr(vHX[2])}, {2*(10240-1024)}, {vr(vHX[0])}
v_add_u32 {vr(vHX[3])}, {3*(10240-1024)}, {vr(vT2)}''')
    for pi in range(15):
        a(f's_sub_u32 {sr(sT)}, {sr(sT3)}, {(pi%4)*1024}')
        w_pattern(vHW[pi], f'v_add_u32 {vr(vT0)}, {64*pi}, {vr(vLane)}', sr(sT))
    def next_k():
        a(f'''s_add_u32 {sr(sKK)}, {sr(sKK)}, 1
s_cmp_eq_u32 {sr(sKK)}, 10
s_cselect_b32 {sr(sKK)}, 0, {sr(sKK)}
s_lshl_b32 {sr(sXo)}, {sr(sKK)}, 7
s_mul_i32 {sr(sWo)}, {sr(sKK)}, {64*3840}''')
    def issue_x():
        for jj in range(8 if opts.get('hack64') else 16):
            if jj % 4 == 0:
                a(f's_add_u32 m0, {sr(sSlot)}, {jj*1024}')
                a(f's_add_u32 {sr(sT)}, {sr(sXo)}, {jj*10240}')
            a(f'buffer_load_dwordx4 {vr(vHX[jj%4])}, {sr(SX,4)}, {sr(sT)} offen offset:{(jj%4)*1024} lds')
    def issue_w():
        for half in range(2):
            for pi in range(15):
                if pi % 4 == 0:
                    a(f's_add_u32 m0, {sr(sSlot)}, {XSZ + half*15360 + pi*1024}')
                    a(f's_add_u32 {sr(sT)}, {sr(sWo)}, {half*32*3840}')
                a(f'buffer_load_dwordx4 {vr(vHW[pi])}, {sr(SWQ,4)}, {sr(sT)} offen offset:{(pi%4)*1024} lds')
    def issue_stage():
        stag_pf(); next_k(); issue_x(); issue_w()
        a(f'''s_add_u32 {sr(sSlot)}, {sr(sSlot)}, {STG}
s_cmp_ge_u32 {sr(sSlot)}, {3*STG}
s_cselect_b32 {sr(sSlot)}, 0, {sr(sSlot)}''')
    pfw = opts.get('pfw', 1) and not stag and not opts.get('rot0')
    if pfw:
        a(f'''s_lshr_b32 {sr(sT)}, s2, 6
s_mul_i32 {sr(sT)}, {sr(sT)}, 3
s_add_u32 {sr(sT)}, {sr(sT)}, 8
s_bfe_u32 {sr(sT2)}, s2, 0x30003
s_lshr_b32 {sr(sI)}, {sr(sT2)}, 2
s_add_u32 {sr(sT)}, {sr(sT)}, {sr(sI)}
s_cmp_ge_u32 {sr(sT)}, 10
s_cselect_b32 {sr(sI)}, 10, 0
s_sub_u32 {sr(sT)}, {sr(sT)}, {sr(sI)}
s_lshl_b32 {sr(sT)}, {sr(sT)}, 6
s_and_b32 {sr(sT2)}, {sr(sT2)}, 3
s_lshl_b32 {sr(sT2)}, {sr(sT2)}, 4
s_add_u32 {sr(sT)}, {sr(sT)}, {sr(sT2)}
s_mul_i32 {sr(sT)}, {sr(sT)}, 3840
s_add_u32 {sr(sRdy)}, {sr(sT)}, {sr(sT3)}
v_lshrrev_b32 {vr(vT0)}, 3, {vr(vLane)}
v_mul_u32_u24 {vr(vT0)}, 3840, {vr(vT0)}
v_bfe_u32 {vr(vT1)}, {vr(vLane)}, 1, 2
v_mul_u32_u24 {vr(vT2)}, 1280, {vr(vT1)}
v_and_b32 {vr(vT3)}, 1, {vr(vLane)}
v_mul_u32_u24 {vr(vT3)}, 156, {vr(vT3)}
v_add3_u32 {vr(vT0)}, {vr(vT0)}, {vr(vT2)}, {vr(vT3)}
v_cmp_eq_u32 vcc, 3, {vr(vT1)}
v_mov_b32 {vr(vT2)}, {OOB}
s_nop 0
v_cndmask_b32 {vr(vPo)}, {vr(vT0)}, {vr(vT2)}, vcc''')
    a(f's_mov_b32 {sr(sSlot)}, {STG}')
    st1()
    a('s_barrier')
    st1()
    if elate and not sep:
        a(f'v_mov_b32 {vr(vT0)}, {F_EPOCH}')
        a(f'buffer_load_dword {vr(vEp)}, {vr(vT0)}, {sr(SWS,4)}, 0 offen{SC}')
    if pfw:
        a(f'buffer_load_dword {vr(vPf[0])}, {vr(vPo)}, {sr(SWQ,4)}, {sr(sRdy)} offen')
        a(f's_add_u32 {sr(sRdy)}, {sr(sRdy)}, {8*3840}')
        a(f'buffer_load_dword {vr(vPf[1])}, {vr(vPo)}, {sr(SWQ,4)}, {sr(sRdy)} offen')
    if opts.get('xfirst', 0):
        next_k(); issue_x()
        a(f's_mov_b32 {sr(sSrc)}, {sr(sWo)}')
        a(f's_mov_b32 {sr(sSlot)}, {2*STG}')
        next_k(); issue_x()
        st1()
        if opts.get('xfirst') == 1: a('s_barrier')
        a(f's_mov_b32 {sr(sSlot)}, {STG}')
        a(f's_mov_b32 {sr(sI)}, {sr(sWo)}')
        a(f's_mov_b32 {sr(sWo)}, {sr(sSrc)}')
        issue_w()
        if opts.get('xfirst') == 2: a('s_barrier')
        a(f's_mov_b32 {sr(sSlot)}, {2*STG}')
        a(f's_mov_b32 {sr(sWo)}, {sr(sI)}')
        issue_w()
        a(f's_mov_b32 {sr(sSlot)}, 0')
        a('s_waitcnt vmcnt(30)')
        a('s_barrier')
        st1()
        a(f's_mov_b32 {sr(sI)}, 1')
    else:
        issue_stage()
        st1()
        a('s_barrier')
        st1()
        a(f's_mov_b32 {sr(sI)}, 0')
    a.label(f'{name}_hg')
    issue_stage()
    a(f's_waitcnt vmcnt({38 if opts.get("hack64") else 46})')
    a('s_barrier')
    a(f's_add_u32 {sr(sI)}, {sr(sI)}, 1')
    a(f's_cmp_lt_u32 {sr(sI)}, 8')
    a(f's_cbranch_scc1 {name}_hg')
    st1()
    a(f'''s_lshl_b32 {sr(sT)}, {sr(sB)}, 3
s_add_u32 {sr(sT)}, {sr(sT)}, {sr(sHg)}
s_lshl_b32 {sr(sT)}, {sr(sT)}, 8
s_add_u32 {sr(sT)}, {sr(sT)}, {F_FLAG1}
s_mov_b32 {sr(sM0a)}, {sr(sT)}
v_lshl_add_u32 {vr(vT0)}, {vr(vLane)}, 2, {sr(sT)}
v_cmp_gt_u32 vcc, 16, {vr(vLane)}
v_mov_b32 {vr(vT1)}, {OOB}
s_lshl_b32 {sr(sT)}, {sr(sB)}, 4
v_cndmask_b32 {vr(vPo1)}, {vr(vT1)}, {vr(vT0)}, vcc
s_add_u32 {sr(sT)}, {sr(sT)}, {sr(sMt3)}
s_lshl_b32 {sr(sT)}, {sr(sT)}, 8
s_add_u32 {sr(sT)}, {sr(sT)}, {F_FLAG2}
s_mov_b32 {sr(sM0b)}, {sr(sT)}
v_lshl_add_u32 {vr(vT0)}, {vr(vLane)}, 2, {sr(sT)}
v_cmp_gt_u32 vcc, 8, {vr(vLane)}
v_mov_b32 {vr(vLw)}, {LW_RDY}
s_mul_i32 {sr(sT3)}, {sr(sCg)}, 160
v_cndmask_b32 {vr(vPo2)}, {vr(vT1)}, {vr(vT0)}, vcc''')
    for r in range(5):
        a(f'''v_add_u32 {vr(vT0)}, {64*r}, {vr(vLane)}
v_mul_u32_u24 {vr(vT1)}, 6554, {vr(vT0)}
v_lshrrev_b32 {vr(vT1)}, 16, {vr(vT1)}
v_mul_u32_u24 {vr(vT1)}, {1280-160}, {vr(vT1)}
v_lshl_add_u32 {vr(vT0)}, {vr(vT0)}, 4, {vr(vT1)}
v_add_u32 {vr(vT0)}, {sr(sT3)}, {vr(vT0)}
v_subrev_u32 {vr(vW3[r])}, {(r%4)*1024}, {vr(vT0)}''')
    a(f'''s_lshr_b32 {sr(sT)}, s2, 3
s_mul_i32 {sr(sT)}, {sr(sT)}, {20*1280}
v_lshl_add_u32 {vr(vT0)}, {vr(vLane)}, 7, {sr(sT)}
v_cmp_gt_u32 vcc, 50, {vr(vLane)}
v_mov_b32 {vr(vT1)}, {OOB}
s_mov_b32 {sr(sRdy)}, 0
v_cndmask_b32 {vr(vPo)}, {vr(vT1)}, {vr(vT0)}, vcc
{'s_waitcnt lgkmcnt(0)' if sep else f'v_readfirstlane_b32 {sr(sTag)}, {vr(vEp)}'}
s_lshl_b32 {sr(sDone)}, 1, {sr(sMt)}
s_waitcnt vmcnt({15 if hsplit else 0})
s_add_u32 {sr(sTag)}, {sr(sTag)}, {TAGK}
s_barrier''')
    if early == 1:
        a(f'buffer_load_dword {vr(vP)}, {vr(vPo1)}, {sr(SWS,4)}, 0 offen{SC}')
    a(f'''v_bfe_u32 {vr(vT2)}, {vr(vLane)}, 1, 2
v_mul_u32_u24 {vr(vT2)}, 2560, {vr(vT2)}
v_and_b32 {vr(vT3)}, 1, {vr(vLane)}
v_mul_u32_u24 {vr(vT3)}, 640, {vr(vT3)}
v_add_u32 {vr(vT2)}, {vr(vT2)}, {vr(vT3)}
v_add_u32 {vr(vT2)}, {ONES}, {vr(vT2)}
v_mov_b32 {vr(vC8)}, 0x3f803f80
v_mov_b32 {vr(vC8+1)}, 0x3f803f80
v_mov_b32 {vr(vC8+2)}, 0x3f803f80
v_mov_b32 {vr(vC8+3)}, 0x3f803f80
v_mov_b32 {vr(vC8+4)}, 0
v_mov_b32 {vr(vC8+5)}, 0
v_mov_b32 {vr(vC8+6)}, 0
v_mov_b32 {vr(vC8+7)}, 0
s_mov_b32 {sr(sI)}, 1
s_mov_b32 {sr(sSlot)}, {phys(1)*SLOT}
s_waitcnt vmcnt(0)''')
    if hsplit: a('s_barrier')
    def lds_init():
        a(f'''s_barrier
ds_write_b128 {vr(vT2)}, {vr(vC8,4)}
ds_write_b128 {vr(vT2)}, {vr(vC8+4,4)} offset:16
ds_write_b128 {vr(vLw)}, {vr(vC8+4,4)}
ds_write_b128 {vr(vLw)}, {vr(vC8+4,4)} offset:16''')
    def e_bars():
        a('s_waitcnt lgkmcnt(0)')
        a('s_barrier')
        if not one_e: a('s_barrier')
    gid = [0]
    def smask(n, off, dst):
        a(f's_load_dwordx{n} s[64:{63+n}], s[6:7], {sr(off)} glc')
        a(f's_mov_b32 {sr(dst)}, 0')
        a('s_waitcnt lgkmcnt(0)')
        for i in range(n - 1, -1, -1):
            a(f's_cmp_eq_u32 s{64+i}, {sr(sTag)}')
            a(f's_addc_u32 {sr(dst)}, {sr(dst)}, {sr(dst)}')
    if spoll: ns = max(ns, 80)
    def issue_group(qmajor=False):
        n = gid[0]; gid[0] += 1
        a(f'''s_andn2_b32 {sr(sT)}, {sr(sRdy)}, {sr(sDone)}
s_cbranch_scc1 {name}_pd{n}
s_mov_b32 {sr(sCnt)}, {POLL_LIMIT}''')
        a.label(f'{name}_pl{n}')
        if spoll & 1:
            smask(16, sM0a, sRdy)
        else:
            a(f'''buffer_load_dword {vr(vP)}, {vr(vPo1)}, {sr(SWS,4)}, 0 offen{SC}
s_waitcnt vmcnt(0)
v_cmp_eq_u32 vcc, {sr(sTag)}, {vr(vP)}
s_and_b32 {sr(sRdy)}, vcc_lo, 0xffff''')
        a(f'''s_andn2_b32 {sr(sT)}, {sr(sRdy)}, {sr(sDone)}
s_cbranch_scc1 {name}_pd{n}
{'s_sleep 1' if opts.get('sl1', 0) else 's_nop 0'}
s_sub_u32 {sr(sCnt)}, {sr(sCnt)}, 1
s_cmp_lg_u32 {sr(sCnt)}, 0
s_cbranch_scc1 {name}_pl{n}
s_mov_b32 {sr(sRdy)}, 0xffff
s_andn2_b32 {sr(sT)}, {sr(sRdy)}, {sr(sDone)}''')
        a.label(f'{name}_pd{n}')
        g_select(); g_loads(0, 40, qmajor); g_finish()
    def g_select():
        a(f'''s_lshl_b32 {sr(sT2)}, {sr(sT)}, 16
s_or_b32 {sr(sT)}, {sr(sT)}, {sr(sT2)}
s_lshr_b32 {sr(sT)}, {sr(sT)}, {sr(sMt)}
s_ff1_i32_b32 {sr(sT)}, {sr(sT)}
s_add_u32 {sr(sNeed)}, {sr(sT)}, {sr(sMt)}
s_and_b32 {sr(sNeed)}, {sr(sNeed)}, 15
s_bitset1_b32 {sr(sDone)}, {sr(sNeed)}
s_mul_i32 {sr(sT)}, {sr(sNeed)}, 10240
s_add_u32 {sr(sSrc)}, {sr(sKV)}, {sr(sT)}''')
    def g_loads(lo, hi, qmajor=False):
        order = [(hs, q) for hs in range(4) for q in range(10)]
        if qmajor:
            order = [(hs, q) for hs in range(4) for q in range(8)] + [(hs, q) for hs in range(4) for q in (8, 9)]
        for hs, q in order[lo:hi]:
            if q % 4 == 0:
                a(f's_add_u32 m0, {sr(sSlot)}, {hs*10240 + q*1024}')
                a(f's_add_u32 {sr(sT)}, {sr(sSrc)}, {hs*KV_HEAD + q*1024}')
            a(f'buffer_load_dwordx4 {vr(vL16)}, {sr(SWS,4)}, {sr(sT)} offen offset:{(q%4)*1024}{SLD} lds')
    def g_finish():
        if early:
            a(f'''s_sub_u32 {sr(sSlot)}, {sr(sSlot)}, {SLOT}
s_cselect_b32 {sr(sSlot)}, {2*SLOT}, {sr(sSlot)}
s_add_u32 {sr(sI)}, {sr(sI)}, 1''')
        else:
            a(f'''s_add_u32 {sr(sSlot)}, {sr(sSlot)}, {SLOT}
s_cmp_ge_u32 {sr(sSlot)}, {3*SLOT}
s_cselect_b32 {sr(sSlot)}, 0, {sr(sSlot)}
s_add_u32 {sr(sI)}, {sr(sI)}, 1''')
    if 'hprio' in opts: a(f's_setprio {opts["hprio"]}')
    wq = [0]
    def wait_prog(val):
        n = wq[0]; wq[0] += 1
        a.label(f'{name}_wp{n}')
        a(f'''ds_read_b32 {vr(vP)}, {vr(vPwa)} offset:4
s_waitcnt lgkmcnt(0)
v_cmp_le_u32 vcc, {val}, {vr(vP)}
s_and_b32 {sr(sT)}, vcc_lo, 0x1ff
s_cmp_eq_u32 {sr(sT)}, 0x1ff
s_cbranch_scc1 {name}_wpd{n}
s_sleep 2
s_branch {name}_wp{n}''')
        a.label(f'{name}_wpd{n}')
    def set_full(val):
        a(f'v_mov_b32 {vr(vFu)}, {val}')
        a(f'ds_write_b32 {vr(vPwa)}, {vr(vFu)}')
    if nobar:
        a(f'v_min_u32 {vr(vPwa)}, 8, {vr(vLane)}')
        a(f'v_lshlrev_b32 {vr(vPwa)}, 3, {vr(vPwa)}')
        a(f'v_add_u32 {vr(vPwa)}, {LW_PW}, {vr(vPwa)}')
    if early:
        if early == 1:
            a(f'''v_cmp_eq_u32 vcc, {sr(sTag)}, {vr(vP)}
s_and_b32 {sr(sRdy)}, vcc_lo, 0xffff''')
        else:
            smask(16, sM0a, sRdy)
        a(f'''s_andn2_b32 {sr(sT)}, {sr(sRdy)}, {sr(sDone)}
s_cbranch_scc0 {name}_ne''')
        g_select(); g_loads(0, 20)
        lds_init()
        g_loads(20, 40); g_finish()
        e_bars()
        a(f's_branch {name}_g1d')
        a.label(f'{name}_ne')
    lds_init()
    if early >= 2:
        smask(16, sM0a, sRdy)
        a(f'''s_andn2_b32 {sr(sT)}, {sr(sRdy)}, {sr(sDone)}
s_cbranch_scc0 {name}_ne2''')
        g_select(); g_loads(0, 40 if early == 2 else 24)
        if early == 2:
            g_finish(); e_bars()
        else:
            a('s_barrier')
            g_loads(24, 40); g_finish()
            a('s_barrier')
        a(f's_branch {name}_g1d')
        a.label(f'{name}_ne2')
    e_bars()
    issue_group(g1s)
    a.label(f'{name}_g1d')
    st0()
    if g1s:
        a('s_waitcnt vmcnt(8)')
        a('s_barrier')
        a(f'v_mov_b32 {vr(vP)}, 1')
        a('s_waitcnt vmcnt(0)')
        a(f'ds_write_b32 {vr(vLw)}, {vr(vP)} offset:16')
        issue_group()
    elif opts.get('b1', 1) and not nobar:
        a('s_waitcnt vmcnt(0)')
        a('s_barrier')
        issue_group()
    a.label(f'{name}_hl')
    if nobar:
        a('s_waitcnt vmcnt(0)')
        set_full(sr(sI))
        a(f's_max_u32 {sr(sSrc)}, {sr(sI)}, 2')
        a(f's_sub_u32 {sr(sSrc)}, {sr(sSrc)}, 2')
        wait_prog(sr(sSrc))
        issue_group()
    else:
        issue_group()
        a('s_waitcnt vmcnt(40)')
        a('s_barrier')
        if sset == 5 and st.on:
            for K in (5, 15):
                a(f's_cmp_eq_u32 {sr(sI)}, {K}')
                a(f's_cbranch_scc0 {name}_h5{K}')
                st()
                a.label(f'{name}_h5{K}')
    wid = [0]
    def wo_rows(r0, r1, lds):
        n = wid[0]; wid[0] += 1
        a(f's_mov_b32 {sr(sSrc)}, {r0*1280}')
        a(f's_mov_b32 {sr(sT2)}, {lds}')
        a.label(f'{name}_hw{n}x')
        a(f's_mov_b32 m0, {sr(sT2)}')
        a(f's_add_u32 {sr(sT)}, {sr(sT2)}, 4096')
        for r in range(4):
            a(f'buffer_load_dwordx4 {vr(vW3[r])}, {sr(SWO,4)}, {sr(sSrc)} offen offset:{r*1024} lds')
        a(f's_mov_b32 m0, {sr(sT)}')
        a(f's_add_u32 {sr(sT2)}, {sr(sT2)}, 5120')
        a(f'buffer_load_dwordx4 {vr(vW3[4])}, {sr(SWO,4)}, {sr(sSrc)} offen lds')
        a(f's_add_u32 {sr(sSrc)}, {sr(sSrc)}, {32*1280}')
        a(f's_cmp_lt_u32 {sr(sSrc)}, {r1*1280}')
        a(f's_cbranch_scc1 {name}_hw{n}x')
    a(f's_cmp_eq_u32 {sr(sI)}, 6')
    a(f's_cbranch_scc0 {name}_hnp')
    for q in range(4):
        a(f's_mov_b32 {sr(sT)}, {q*6400}')
        a(f'buffer_load_dword {vr(vPf[q])}, {vr(vPo)}, {sr(SWO,4)}, {sr(sT)} offen')
    a.label(f'{name}_hnp')
    a(f's_cmp_eq_u32 {sr(sI)}, 10')
    a(f's_cbranch_scc0 {name}_hnq')
    wo_rows(480, 640, QST)
    a.label(f'{name}_hnq')
    a(f's_cmp_lt_u32 {sr(sI)}, 16')
    a(f's_cbranch_scc1 {name}_hl')
    if nobar:
        a('s_waitcnt vmcnt(0)')
        set_full(64)
        wait_prog(14)
        wo_rows(0, 256, WO_LO)
        wait_prog(15)
    else:
        if early: wo_rows(256, 480, WO_LO + 40960)
        else: wo_rows(0, 256, WO_LO)
        a(f's_waitcnt vmcnt({35 if early else 40})')
        a('s_barrier')
    if early: wo_rows(0, 256, WO_LO)
    else: wo_rows(256, 480, WO_LO + 40960)
    a(f'''s_lshl_b32 {sr(sT)}, {sr(sB)}, 4
s_add_u32 {sr(sT)}, {sr(sT)}, {sr(sMt3)}
s_lshl_b32 {sr(sT)}, {sr(sT)}, 1
s_lshr_b32 {sr(sT2)}, {sr(sCg)}, 2
s_add_u32 {sr(sT)}, {sr(sT)}, {sr(sT2)}
s_mul_i32 {sr(sT)}, {sr(sT)}, {32*2560}
s_and_b32 {sr(sT2)}, {sr(sCg)}, 3
s_mul_i32 {sr(sT2)}, {sr(sT2)}, 5120
s_add_u32 {sr(sT)}, {sr(sT)}, {sr(sT2)}
s_add_u32 {sr(sT)}, {sr(sT)}, {F_WS_O}
v_lshl_add_u32 {vr(vT0)}, {vr(vLane)}, 7, {sr(sT)}
v_cmp_gt_u32 vcc, 40, {vr(vLane)}
v_mov_b32 {vr(vT1)}, {OOB}
s_mov_b32 {sr(sDone)}, 0
s_mov_b32 {sr(sCnt)}, {1 if opts.get('cheat', 0) & 2 else POLL_LIMIT}
v_cndmask_b32 {vr(vPo)}, {vr(vT1)}, {vr(vT0)}, vcc''')
    pid = [0]
    pfo = opts.get('pfo', 1)
    def poll2():
        if spoll & 2:
            smask(8, sM0b, sNeed)
            a(f'''s_sub_u32 {sr(sCnt)}, {sr(sCnt)}, 1
s_cmp_eq_u32 {sr(sCnt)}, 0
s_cselect_b32 {sr(sT)}, 0xff, {sr(sNeed)}''')
        else:
            a(f'''buffer_load_dword {vr(vP)}, {vr(vPo2)}, {sr(SWS,4)}, 0 offen{SC}
s_sub_u32 {sr(sCnt)}, {sr(sCnt)}, 1
s_waitcnt vmcnt(0)
v_cmp_eq_u32 vcc, {sr(sTag)}, {vr(vP)}
s_cmp_eq_u32 {sr(sCnt)}, 0
s_cselect_b32 {sr(sT)}, 0xff, vcc_lo''')
        a(f'''s_lshr_b32 {sr(sT2)}, {sr(sT)}, 1
s_and_b32 {sr(sT)}, {sr(sT)}, {sr(sT2)}
s_and_b32 {sr(sRdy)}, {sr(sT)}, 0x55''')
        if pfo:
            a(f's_andn2_b32 {sr(sSrc)}, {sr(sRdy)}, {sr(sDone)}')
            a(f's_or_b32 {sr(sDone)}, {sr(sDone)}, {sr(sRdy)}')
            for j in range(4):
                n = pid[0]; pid[0] += 1
                a(f's_bitcmp1_b32 {sr(sSrc)}, {2*j}')
                a(f's_cbranch_scc0 {name}_po{n}')
                a(f's_mov_b32 {sr(sT)}, {j*20480}')
                a(f'buffer_load_dword {vr(vPf[j])}, {vr(vPo)}, {sr(SWS,4)}, {sr(sT)} offen{SC}')
                a.label(f'{name}_po{n}')
            if pfo == 2:
                a('s_waitcnt vmcnt(0)')
        a(f'v_mov_b32 {vr(vP)}, {sr(sRdy)}')
        a(f'ds_write_b32 {vr(vLw)}, {vr(vP)}')
    if spoll & 2: a('s_waitcnt vmcnt(0)')
    poll2()
    if nobar:
        wait_prog(16)
    else:
        a('s_barrier')
    st0()
    st0()
    a.label(f'{name}_p3l')
    if opts.get('psl'): a(f's_sleep {opts.get("psl")}')
    poll2()
    a(f's_cmp_eq_u32 {sr(sRdy)}, 0x55')
    a(f's_cbranch_scc0 {name}_p3l')
    a.label(f'{name}_p3e')
    if sep:
        a(f'''s_or_b32 {sr(sT)}, {sr(sMt3)}, {sr(sCg)}
s_cbranch_scc1 {name}_nb
s_lshl_b32 {sr(sT)}, {sr(sB)}, 7
s_add_u32 {sr(sT)}, {sr(sT)}, {F_EPOCH}
s_mov_b64 exec, 1
v_mov_b32 {vr(vT0)}, 0
v_mov_b32 {vr(vT1)}, {sr(sTag)}
buffer_store_dword {vr(vT1)}, {vr(vT0)}, {sr(SWS,4)}, {sr(sT)} offen{SC}
s_mov_b64 exec, -1''')
        a.label(f'{name}_nb')
    if st.on:
        while st.n < n_total - 1: st()
        st.rt(); st.flush(sW)
    a('s_endpgm')
    a.label(f'{name}_end')
    nv = maxv[0]
    assert nv <= 168, nv
    return a.text(), descriptor(name, nv, ns), f'; @launch kernel={name} grid=(256,1,1) block=(576,1,1) lds={LDS_TOTAL}', n_total
```

```python
from common import *
import math, struct

def f32bits(x):
    return struct.unpack('<I', struct.pack('<f', x))[0]
QSCALE = f32bits(math.log2(math.e) / math.sqrt(20.0))

XSZ = 16384
STG = XSZ + 30720
SLOT = 40960
LW_RDY = 3 * SLOT
LW_CNT = 3 * SLOT + 8
LW_CNT1 = 3 * SLOT + 12
LW_G1 = 3 * SLOT + 16
LW_PW = 131392
ONES = 3 * SLOT + 128
QST = 131584
LDS_TOTAL = QST + 25600
WO_LO = SLOT
F_WS_KV = 0
F_WS_O = 64 * KV_HEAD
F_FLAG1 = F_WS_O + 2 * 32 * 32 * 2560
F_FLAG2 = F_FLAG1 + 16 * 256
F_EPOCH = F_FLAG2 + 32 * 256
F_R1 = F_EPOCH + 256
F_R2 = F_R1 + 256 * 128
F_WS_END = F_R2 + 256 * 128
TAGK = 0x9E3779B9
POLL_LIMIT = 1 << 18
OOB = 0x40000000

def gen_fused(name='fused_kernel', opts=None):
    opts = opts or {}
    a = Asm()
    SC = ' sc1'
    FL = {0: ' sc1', 1: ' sc0 sc1', 2: '', 3: ' sc1 nt', 4: ' nt'}
    SST = FL[opts.get('sst', 0)]
    SLD = FL[opts.get('sld', 0)]
    stag = opts.get('stag', 0)
    pub4 = opts.get('pub4', 1)
    one_e = opts.get('onee', 0) and pub4
    g1s = opts.get('g1s', 0)
    early = opts.get('early', 1)
    spoll = opts.get('spoll', 3)
    sep = opts.get('sep', 1)
    rep_ = opts.get('rep', 1) and spoll == 3 and early != 1
    phys = (lambda k: (-k) % 3) if early else (lambda k: k % 3)
    hsplit = opts.get('hsplit', 1)
    nobar = opts.get('nobar', 0)
    loc = opts.get('loc', 1)
    sKK, sMt3, sCg = 3, 4, 5
    SX, SWQ, SWS, SDBG, SWO, SOUT = 8, 12, 16, 20, 24, 28
    sW, sB, sMt, sHg, sT, sT2, sT3 = 32, 33, 34, 35, 36, 37, 38
    sM0a, sM0b = 39, 40
    sDone = 41
    sHi = 42
    sG, sOff, sOo, sKV = 44, 45, 46, 47
    sM, sM2 = 48, 50
    sRdy, sCnt, sNeed, sI, sSlot, sSrc = 52, 53, 54, 55, 56, 57
    sXo, sWo = 53, 54
    sScale = 58
    sA, sTag = 60, 61
    sPub, sPub2 = 56, 57
    ns = 64
    vLane, vT0, vT1, vT2, vT3, vT4, vT5 = 1, 2, 3, 4, 5, 6, 7
    VBASE = 8
    st = Stamper(a, opts.get('stamp'), 0, 62, 6, vT0)
    if st.on: ns = st.nsgpr()
    sset = opts.get('sset', 0)
    def st0():
        if sset == 0: st()
    def st1():
        if sset == 1: st()
    def st6(k=0):
        if sset == 6 or (sset == 7 and k): st.rt()
    def st4():
        if sset == 4: st()
    maxv = [0]
    def done_alloc(V):
        maxv[0] = max(maxv[0], V.n)

    a(f'.globl {name}\n.p2align 8\n.type {name},@function')
    a.label(name)
    if st.on:
        a('s_memrealtime s[62:63]\ns_memtime s[64:65]')
        st.n = 2
    dbgt = opts.get('dbgt')
    SWAP = 's_nop 0'
    if opts.get('swap', 0):
        SWAP = f's_lshr_b32 {sr(sT)}, s2, 1\ns_xor_b32 {sr(sT)}, {sr(sT)}, s2\ns_and_b32 {sr(sT)}, {sr(sT)}, 1\ns_mul_i32 {sr(sT)}, {sr(sT)}, 3\ns_xor_b32 s2, s2, {sr(sT)}'
    if dbgt:
        ns = 80
        a('s_memrealtime s[62:63]')
    def rts(k):
        if dbgt: a(f's_memrealtime s[{62+2*k}:{63+2*k}]\ns_waitcnt lgkmcnt(0)')
    a(f'''s_cmp_ge_u32 s2, 256
s_cbranch_scc1 {name}_done
{SWAP}
s_bfe_u32 {sr(sB)}, s2, 0x10002
s_load_dwordx4 {sr(SOUT,4)}, s[0:1], 48
s_load_dwordx2 s[6:7], s[0:1], 64
s_mul_i32 {sr(sT2)}, {sr(sB)}, {0 if opts.get('hack64') else 24}
s_add_u32 s0, s0, {sr(sT2)}
s_addc_u32 s1, s1, 0
s_load_dwordx4 {sr(SX,4)}, s[0:1], 0
s_load_dwordx2 {sr(SWO,2)}, s[0:1], 16
v_lshrrev_b32 {vr(vT0)}, 6, v0
v_and_b32 {vr(vLane)}, 63, v0
s_lshr_b32 {sr(sT)}, s2, 3
v_readfirstlane_b32 {sr(sW)}, {vr(vT0)}
s_and_b32 {sr(sMt)}, {sr(sT)}, 7
s_lshr_b32 {sr(sHg)}, {sr(sT)}, 3
s_mul_i32 {sr(sKK)}, {sr(sHg)}, 3
s_add_u32 {sr(sKK)}, {sr(sKK)}, {sr(sMt)}
s_cmp_ge_u32 {sr(sKK)}, 10
s_cselect_b32 {sr(sT)}, 10, 0
s_sub_u32 {sr(sKK)}, {sr(sKK)}, {sr(sT)}
{f's_mov_b32 {sr(sKK)}, 0' if (stag or opts.get('rot0')) else 's_nop 0'}
s_and_b32 {sr(sT)}, s2, 1
s_lshl_b32 {sr(sT)}, {sr(sT)}, 3
s_add_u32 {sr(sMt)}, {sr(sMt)}, {sr(sT)}
s_and_b32 {sr(sT)}, s2, 2
s_lshl_b32 {sr(sT)}, {sr(sT)}, 1
s_add_u32 {sr(sHg)}, {sr(sHg)}, {sr(sT)}
s_mov_b32 {sr(sHi)}, 0
s_mov_b32 {sr(sHi+1)}, -1
s_bfe_u32 {sr(sCg)}, s2, 0x30003
s_and_b32 {sr(sMt3)}, s2, 1
s_lshl_b32 {sr(sMt3)}, {sr(sMt3)}, 2
s_and_b32 {sr(sT)}, s2, 2
s_add_u32 {sr(sMt3)}, {sr(sMt3)}, {sr(sT)}
s_lshl_b32 {sr(sMt3)}, {sr(sMt3)}, 1
s_lshr_b32 {sr(sT)}, s2, 6
s_add_u32 {sr(sMt3)}, {sr(sMt3)}, {sr(sT)}
s_lshl_b32 {sr(sT)}, {sr(sB)}, 3
s_add_u32 {sr(sT)}, {sr(sT)}, {sr(sHg)}
s_mul_i32 {sr(sKV)}, {sr(sT)}, {4*KV_HEAD}
s_mul_i32 {sr(sT3)}, {sr(sHg)}, 160''')
    SRDS = f'''s_waitcnt lgkmcnt(0)
s_mov_b32 {sr(SWQ)}, {sr(SX+2)}
s_mov_b32 {sr(SWQ+1)}, {sr(SX+3)}
s_mov_b32 {sr(SDBG)}, {sr(SOUT+2)}
s_mov_b32 {sr(SDBG+1)}, {sr(SOUT+3)}
s_mov_b32 {sr(SWS)}, s6
s_mov_b32 {sr(SWS+1)}, s7
s_mov_b32 {sr(SX+2)}, {2048*1280}
s_mov_b32 {sr(SX+3)}, 0x20000
s_mov_b32 {sr(SWQ+2)}, {640*3840}
s_mov_b32 {sr(SWQ+3)}, 0x20000
s_mov_b32 {sr(SWS+2)}, {F_WS_END}
s_mov_b32 {sr(SWS+3)}, 0x20000
s_mov_b32 {sr(SDBG+2)}, 256
s_mov_b32 {sr(SDBG+3)}, 0x20000
s_mov_b32 {sr(SWO+2)}, {640*1280}
s_mov_b32 {sr(SWO+3)}, 0x20000
s_mov_b32 {sr(SOUT+2)}, {2048*2560}
s_mov_b32 {sr(SOUT+3)}, 0x20000'''
    if sep:
        SRDS += f'''
s_lshl_b32 {sr(sI)}, {sr(sB)}, 7
s_add_u32 {sr(sI)}, {sr(sI)}, {F_EPOCH}
s_load_dword {sr(sTag)}, s[6:7], {sr(sI)}'''
    st1()
    n_common = st.n
    a(f'''s_cmp_ge_u32 {sr(sW)}, 8
s_cbranch_scc1 {name}_helper''')

    def w_pattern(dst, first, last):
        a(f'''{first}
v_mul_u32_u24 {vr(vT1)}, 2185, {vr(vT0)}
v_lshrrev_b32 {vr(vT1)}, 16, {vr(vT1)}
v_mul_u32_u24 {vr(vT2)}, 30, {vr(vT1)}
v_sub_u32 {vr(vT0)}, {vr(vT0)}, {vr(vT2)}
v_and_b32 {vr(vT2)}, 0x13, {vr(vT1)}
v_bfe_u32 {vr(vT3)}, {vr(vT1)}, 2, 1
v_lshl_or_b32 {vr(vT2)}, {vr(vT3)}, 3, {vr(vT2)}
v_bfe_u32 {vr(vT3)}, {vr(vT1)}, 3, 1
v_lshl_or_b32 {vr(vT2)}, {vr(vT3)}, 2, {vr(vT2)}
v_mul_u32_u24 {vr(vT2)}, 3840, {vr(vT2)}
v_mul_u32_u24 {vr(vT1)}, 26, {vr(vT0)}
v_lshrrev_b32 {vr(vT1)}, 8, {vr(vT1)}
v_mul_u32_u24 {vr(vT1)}, {1280-160}, {vr(vT1)}
v_lshl_add_u32 {vr(vT0)}, {vr(vT0)}, 4, {vr(vT1)}
v_add3_u32 {vr(dst)}, {vr(vT0)}, {vr(vT2)}, {last}''')

    VP = VAlloc(VBASE)
    vIdx = VP()
    vaK1 = VP(); vaK2 = VP(); vaV = VP()
    vbK1 = VP(); vbK2 = VP(); vbV = VP(); vmK2 = VP(); vmV = VP()
    vQo = VP(); vQo2 = VP(); vQs1 = VP(); vQs2 = VP(); vPub = VP()
    VB2 = VP.n
    V = VAlloc(VB2)
    vEp7 = V(); vCi7 = V(); vZ7 = V()
    vXr = [[V(), V()] for _ in range(3)]
    vWa = [V() for _ in range(3)]
    vWb = [V() for _ in range(3)]
    vE = [V() for _ in range(6)]
    Xf = [[V(4), V(4)], [V(4), V(4)]]
    Wf = [[V(4) for _ in range(4)] for _ in range(2)]
    acc = [[V(4), V(4)] for _ in range(8)]
    done_alloc(V)
    vDX = Wf[0][0]; vDW = [Wf[0][0] + 1, Wf[0][0] + 2]
    XROW = f's_lshl_b32 {sr(sT)}, {sr(sMt)}, 7'
    if opts.get('hack64'):
        XROW = f's_lshl_b32 {sr(sT)}, {sr(sB)}, 4\ns_add_u32 {sr(sT)}, {sr(sT)}, {sr(sMt)}\ns_lshl_b32 {sr(sT)}, {sr(sT)}, 6'
    a(f'''{XROW}
s_lshl_b32 {sr(sT2)}, {sr(sW)}, 3
s_add_u32 {sr(sT)}, {sr(sT)}, {sr(sT2)}
v_lshrrev_b32 {vr(vT0)}, 3, {vr(vLane)}
v_add_u32 {vr(vT0)}, {sr(sT)}, {vr(vT0)}
v_mul_u32_u24 {vr(vT0)}, 1280, {vr(vT0)}
s_and_b32 {sr(sT)}, {sr(sW)}, 1
s_lshl_b32 {sr(sT)}, {sr(sT)}, 2
v_lshrrev_b32 {vr(vT1)}, 4, {vr(vLane)}
v_add_u32 {vr(vT2)}, {sr(sT)}, {vr(vT1)}
v_and_b32 {vr(vT3)}, 7, {vr(vLane)}
v_xor_b32 {vr(vT2)}, {vr(vT2)}, {vr(vT3)}
v_lshl_add_u32 {vr(vDX)}, {vr(vT2)}, 4, {vr(vT0)}
s_lshl_b32 {sr(sM0a)}, {sr(sW)}, 10
s_lshl_b32 {sr(sXo)}, {sr(sKK)}, 7
s_mul_i32 {sr(sWo)}, {sr(sKK)}, {64*3840}
s_add_u32 {sr(sT2)}, {sr(sW)}, 8
s_cmp_eq_u32 {sr(sW)}, 7
s_cselect_b32 {sr(sT2)}, 7, {sr(sT2)}
s_lshl_b32 {sr(sM0b)}, {sr(sT2)}, 10''')
    for pi, sm in ((0, sM0a), (1, sM0b)):
        a(f's_lshr_b32 {sr(sT)}, {sr(sm)}, 4')
        w_pattern(vDW[pi], f'v_add_u32 {vr(vT0)}, {sr(sT)}, {vr(vLane)}', sr(sT3))
    a(SRDS)
    a(f'''s_mov_b32 m0, {sr(sM0a)}
s_add_u32 {sr(sT)}, {sr(sXo)}, 81920
buffer_load_dwordx4 {vr(vDX)}, {sr(SX,4)}, {sr(sXo)} offen lds
s_add_u32 m0, {sr(sM0a)}, 8192
s_nop 0
{'s_nop 0' if opts.get('hack64') else f'buffer_load_dwordx4 {vr(vDX)}, {sr(SX,4)}, {sr(sT)} offen lds'}''')
    for pi, sm in ((0, sM0a), (1, sM0b)):
        for half in range(2):
            a(f's_add_u32 m0, {sr(sm)}, {XSZ + half*15360}')
            a(f's_add_u32 {sr(sT)}, {sr(sWo)}, {half*32*3840}')
            a(f'buffer_load_dwordx4 {vr(vDW[pi])}, {sr(SWQ,4)}, {sr(sT)} offen lds')
    st1()
    a('s_barrier')
    st1()
    if not sep:
        a(f'''s_cmp_eq_u32 {sr(sW)}, 7
s_cselect_b32 {sr(sM)}, 1, 0
s_mov_b32 {sr(sM+1)}, 0
v_mov_b32 {vr(vT1)}, {OOB}
v_cndmask_b32_e64 {vr(vZ7)}, {vr(vT1)}, 0, {sr(sM,2)}
v_mov_b32 {vr(vT0)}, {F_EPOCH}
buffer_load_dword {vr(vEp7)}, {vr(vT0)}, {sr(SWS,4)}, 0 offen{SC}''')
    a(f'''s_and_b32 {sr(sT)}, {sr(sW)}, 3
s_lshl_b32 {sr(sT)}, {sr(sT)}, 5
v_and_b32 {vr(vT0)}, 15, {vr(vLane)}
v_lshrrev_b32 {vr(vT1)}, 4, {vr(vLane)}
v_lshrrev_b32 {vr(vT2)}, 1, {vr(vT0)}
v_xor_b32 {vr(vT2)}, {vr(vT2)}, {vr(vT1)}
v_add_u32 {vr(vT0)}, {sr(sT)}, {vr(vT0)}
v_lshlrev_b32 {vr(vT0)}, 7, {vr(vT0)}
v_lshl_add_u32 {vr(vXr[0][0])}, {vr(vT2)}, 4, {vr(vT0)}
v_xor_b32 {vr(vXr[0][1])}, 64, {vr(vXr[0][0])}
v_lshrrev_b32 {vr(vT0)}, 5, {vr(vLane)}
v_lshlrev_b32 {vr(vT0)}, 4, {vr(vT0)}
v_bfe_u32 {vr(vT2)}, {vr(vLane)}, 4, 1
v_lshl_add_u32 {vr(vT0)}, {vr(vT2)}, 2, {vr(vT0)}
v_bfe_u32 {vr(vT2)}, {vr(vLane)}, 2, 2
v_add_u32 {vr(vT0)}, {vr(vT0)}, {vr(vT2)}
v_mul_u32_u24 {vr(vT0)}, 480, {vr(vT0)}
v_add_u32 {vr(vT5)}, {XSZ}, {vr(vT0)}
v_bfe_u32 {vr(vT2)}, {vr(vLane)}, 1, 1
v_mul_u32_u24 {vr(vT2)}, 40, {vr(vT2)}
v_and_b32 {vr(vT3)}, 1, {vr(vLane)}
v_lshl_add_u32 {vr(vT2)}, {vr(vT3)}, 4, {vr(vT2)}
v_add_u32 {vr(vWa[0])}, {vr(vT5)}, {vr(vT2)}
s_cmp_ge_u32 {sr(sW)}, 4
s_cselect_b32 {sr(sT)}, 8, 40
v_and_b32 {vr(vT2)}, 3, {vr(vLane)}
v_mad_u32_u24 {vr(vWb[0])}, {vr(vT2)}, {sr(sT)}, {vr(vT5)}''')
    for s_ in (1, 2):
        a(f'v_add_u32 {vr(vXr[s_][0])}, {s_*STG}, {vr(vXr[0][0])}')
        a(f'v_add_u32 {vr(vXr[s_][1])}, {s_*STG}, {vr(vXr[0][1])}')
        a(f'v_add_u32 {vr(vWa[s_])}, {s_*STG}, {vr(vWa[0])}')
        a(f'v_add_u32 {vr(vWb[s_])}, {s_*STG}, {vr(vWb[0])}')
    a(f'''s_lshr_b32 {sr(sT)}, {sr(sW)}, 1
s_mul_i32 {sr(sT2)}, {sr(sT)}, 10240
v_lshlrev_b32 {vr(vQo)}, 4, {vr(vLane)}
v_lshlrev_b32 {vr(vT0)}, 3, {vr(vLane)}
v_add_u32 {vr(vT0)}, 1024, {vr(vT0)}
v_mov_b32 {vr(vT1)}, {OOB}
v_cndmask_b32_e64 {vr(vQo2)}, {vr(vT0)}, {vr(vT1)}, {sr(sHi,2)}
v_add_u32 {vr(vbK1)}, {sr(sT2)}, {vr(vQo)}
v_add_u32 {vr(vT0)}, {sr(sT2)}, {vr(vT0)}
v_mov_b32 {vr(vT1)}, {ONES}
v_cndmask_b32_e64 {vr(vbK2)}, {vr(vT0)}, {vr(vT1)}, {sr(sHi,2)}
v_cndmask_b32_e64 {vr(vmK2)}, 1, 0, {sr(sHi,2)}
v_and_b32 {vr(vT2)}, 31, {vr(vLane)}
v_lshrrev_b32 {vr(vT3)}, 5, {vr(vLane)}
v_mul_u32_u24 {vr(vT3)}, 320, {vr(vT3)}
v_lshl_add_u32 {vr(vT3)}, {vr(vT2)}, 4, {vr(vT3)}
s_add_u32 {sr(sT3)}, {sr(sT2)}, 1280
v_add_u32 {vr(vT3)}, {sr(sT3)}, {vr(vT3)}
v_cmp_gt_u32 vcc, 20, {vr(vT2)}
v_mov_b32 {vr(vIdx)}, 0xdddddddd
v_mov_b32 {vr(vaK1)}, {vr(vbK1)}
v_cndmask_b32 {vr(vbV)}, {vr(vT1)}, {vr(vT3)}, vcc
v_cndmask_b32_e64 {vr(vmV)}, 0, 1, vcc
v_cmp_lt_u32 vcc, 20, {vr(vT2)}
v_add_u32 {vr(vT3)}, 16, {vr(vT1)}
v_mov_b32 {vr(vaK2)}, {vr(vbK2)}
v_cndmask_b32 {vr(vbV)}, {vr(vbV)}, {vr(vT3)}, vcc
v_mov_b32 {vr(vaV)}, {vr(vbV)}
s_mul_i32 {sr(sT2)}, {sr(sW)}, 2560
s_add_u32 {sr(sT2)}, {sr(sT2)}, {QST}
v_add_u32 {vr(vQs1)}, {sr(sT2)}, {vr(vQo)}
v_and_b32 {vr(vQs2)}, 31, {vr(vLane)}
v_lshlrev_b32 {vr(vQs2)}, 3, {vr(vQs2)}
s_add_u32 {sr(sT2)}, {sr(sT2)}, 1024
v_add_u32 {vr(vQs2)}, {sr(sT2)}, {vr(vQs2)}
s_lshl_b32 {sr(sT2)}, {sr(sB)}, 4
s_add_u32 {sr(sT2)}, {sr(sT2)}, {sr(sMt)}
s_lshl_b32 {sr(sT2)}, {sr(sT2)}, 1
s_and_b32 {sr(sT3)}, {sr(sW)}, 1
s_add_u32 {sr(sT2)}, {sr(sT2)}, {sr(sT3)}
s_lshl_b32 {sr(sT2)}, {sr(sT2)}, 5
s_lshl_b32 {sr(sT3)}, {sr(sHg)}, 2
s_add_u32 {sr(sT2)}, {sr(sT2)}, {sr(sT3)}
s_add_u32 {sr(sT2)}, {sr(sT2)}, {sr(sT)}
s_mul_i32 {sr(sOo)}, {sr(sT2)}, 2560
s_add_u32 {sr(sOo)}, {sr(sOo)}, {F_WS_O}
s_mov_b32 {sr(sPub2)}, {sr(sKV)}
s_mul_i32 {sr(sT)}, {sr(sT)}, {KV_HEAD}
s_add_u32 {sr(sKV)}, {sr(sKV)}, {sr(sT)}''')
    if pub4:
        a(f'''s_and_b32 {sr(sT)}, {sr(sW)}, 3
s_mul_i32 {sr(sT2)}, {sr(sT)}, 10240
v_add_u32 {vr(vPub)}, {sr(sT2)}, {vr(vQo)}
s_mul_i32 {sr(sT)}, {sr(sT)}, {KV_HEAD}
s_mul_i32 {sr(sT2)}, {sr(sMt)}, 10240
s_add_u32 {sr(sT)}, {sr(sT)}, {sr(sT2)}
s_add_u32 {sr(sPub)}, {sr(sT)}, {sr(sPub2)}''')
    else:
        a(f'''s_and_b32 {sr(sT)}, {sr(sW)}, 1
s_mul_i32 {sr(sT)}, {sr(sT)}, 5120
v_add_u32 {vr(vPub)}, {sr(sT)}, {vr(vbK1)}
s_mul_i32 {sr(sT2)}, {sr(sMt)}, 10240
s_add_u32 {sr(sT)}, {sr(sT)}, {sr(sT2)}
s_add_u32 {sr(sPub)}, {sr(sT)}, {sr(sKV)}
s_add_u32 {sr(sPub2)}, {sr(sPub)}, 4096''')
    for ct in range(8):
        for tt in range(2):
            for i in range(4):
                a(f'v_mov_b32 {vr(acc[ct][tt]+i)}, 0')
    a(f'''s_mov_b32 {sr(sScale)}, {QSCALE}
s_mov_b32 {sr(sScale+1)}, {QSCALE}
s_and_b32 {sr(sT3)}, {sr(sW)}, 3
v_and_b32 {vr(vT0)}, 15, {vr(vLane)}
v_lshrrev_b32 {vr(vT1)}, 4, {vr(vLane)}
v_lshrrev_b32 {vr(vT2)}, 2, {vr(vT0)}
v_and_b32 {vr(vT3)}, 3, {vr(vT0)}
v_lshl_add_u32 {vr(vT4)}, {vr(vT2)}, 3, {vr(vT3)}
v_lshrrev_b32 {vr(vT2)}, 1, {vr(vT1)}
v_and_b32 {vr(vT3)}, 1, {vr(vT1)}
s_mul_i32 {sr(sT)}, {sr(sT3)}, 2560
v_mul_u32_u24 {vr(vE[0])}, 10240, {vr(vT2)}
v_lshl_add_u32 {vr(vE[0])}, {vr(vT3)}, 9, {vr(vE[0])}
v_lshl_add_u32 {vr(vE[0])}, {vr(vT4)}, 4, {vr(vE[0])}
v_add_u32 {vr(vE[0])}, {sr(sT)}, {vr(vE[0])}
s_cmp_ge_u32 {sr(sW)}, 4
s_cbranch_scc1 {name}_p1b''')

    def p1_variant(wn):
        if wn == 0:
            kinds = [('P', 0, 0, 0), ('P', 0, 0, 1), ('P', 0, 1, 0), ('P', 0, 1, 1), ('T', 0, 0, 0), ('P', 1, 0, 0), ('P', 1, 0, 1), ('T', 1, 0, 0)]
            a(f'''s_add_u32 {sr(sT2)}, {sr(sT)}, 1024
v_mul_u32_u24 {vr(vE[1])}, 10240, {vr(vT1)}
v_lshl_add_u32 {vr(vE[1])}, {vr(vT4)}, 3, {vr(vE[1])}
v_add_u32 {vr(vE[1])}, {sr(sT2)}, {vr(vE[1])}
s_mul_i32 {sr(sT)}, {sr(sT3)}, 1280
s_add_u32 {sr(sT)}, {sr(sT)}, {QST}
v_mul_u32_u24 {vr(vE[2])}, 5120, {vr(vT2)}
v_lshl_add_u32 {vr(vE[2])}, {vr(vT3)}, 9, {vr(vE[2])}
v_lshl_add_u32 {vr(vE[2])}, {vr(vT0)}, 4, {vr(vE[2])}
v_add_u32 {vr(vE[2])}, {sr(sT)}, {vr(vE[2])}
s_add_u32 {sr(sT)}, {sr(sT)}, 1024
v_mul_u32_u24 {vr(vE[3])}, 5120, {vr(vT1)}
v_lshl_add_u32 {vr(vE[3])}, {vr(vT0)}, 3, {vr(vE[3])}
v_add_u32 {vr(vE[3])}, {sr(sT)}, {vr(vE[3])}''')
        else:
            kinds = [('P', 1, 1, 0), ('P', 1, 1, 1)] + [('V', 2, i, 0) for i in range(5)]
            a(f'''s_add_u32 {sr(sT)}, {sr(sT)}, 1280
v_mul_u32_u24 {vr(vT2)}, 640, {vr(vT2)}
v_mul_u32_u24 {vr(vT3)}, 320, {vr(vT3)}
v_add3_u32 {vr(vT5)}, {vr(vT2)}, {vr(vT3)}, {sr(sT)}''')
            for i in range(5):
                a(f'''v_add_u32 {vr(vT2)}, {16*i}, {vr(vT0)}
v_mul_u32_u24 {vr(vT3)}, 3277, {vr(vT2)}
v_lshrrev_b32 {vr(vT3)}, 16, {vr(vT3)}
v_mul_u32_u24 {vr(vT3)}, {10240-320}, {vr(vT3)}
v_lshl_add_u32 {vr(vT2)}, {vr(vT2)}, 4, {vr(vT3)}
v_add_u32 {vr(vE[1+i])}, {vr(vT2)}, {vr(vT5)}''')
        nct = len(kinds)
        grp = [list(range(0, 4)), list(range(4, nct))]
        def rd_x(step, s2):
            return [f'ds_read_b128 {vr(Xf[s2][tt],4)}, {vr(vXr[step%3][s2])} offset:{tt*2048}' for tt in range(2)]
        def rd_w(step, s2, h, idx):
            ty, sec, sub, e = kinds[grp[h][idx]]
            base = (vWa if ty == 'P' else vWb)[step % 3]
            col = sec*160 + {'P': sub*80 + e*8, 'T': 32, 'V': sub*32}[ty]
            return [f'ds_read_b64_tr_b16 {vr(Wf[h][idx]+2*rd,2)}, {vr(base)} offset:{(32*s2+8*rd)*480 + col}' for rd in range(2)]
        def mf(s2, h, idx):
            ct = grp[h][idx]
            out = []
            for tt in range(2):
                A, B = Wf[h][idx], Xf[s2][tt]
                if kinds[ct][0] == 'V':
                    A, B = B, A
                out.append(f'v_mfma_f32_16x16x32_bf16 {vr(acc[ct][tt],4)}, {vr(A,4)}, {vr(B,4)}, {vr(acc[ct][tt],4)}')
            return out
        n0, n1 = 2 + 2*len(grp[0]), 2*len(grp[1])
        def phase(s2, h, nxt):
            if nxt is not None and h == 0:
                for r in rd_x(*nxt): a(r)
            for idx in range(len(grp[h])):
                for m in mf(s2, h, idx): a(m)
                if nxt is not None:
                    for r in rd_w(nxt[0], nxt[1], h, idx): a(r)
        st1()
        a('s_waitcnt vmcnt(0) lgkmcnt(0)')
        if not sep: a(f'v_readfirstlane_b32 {sr(sTag)}, {vr(vEp7)}')
        a('s_barrier')
        a(f's_add_u32 {sr(sTag)}, {sr(sTag)}, {TAGK}')
        rts(1)
        st()
        for r in rd_x(0, 0): a(r)
        for h in range(2):
            for idx in range(len(grp[h])):
                for r in rd_w(0, 0, h, idx): a(r)
        for step in range(10):
            if step == 9 and hsplit:
                a('s_barrier')
            a(f's_waitcnt lgkmcnt({n1})')
            phase(0, 0, (step, 1))
            a(f's_waitcnt lgkmcnt({n0})')
            phase(0, 1, (step, 1))
            a('s_waitcnt lgkmcnt(0)')
            a('s_barrier')
            if step == 0 and wn == 1 and not sep:
                a(f'v_mov_b32 {vr(vCi7)}, 1')
                a(f'buffer_atomic_add {vr(vCi7)}, {vr(vZ7)}, {sr(SDBG,4)}, 0 offen sc0')
            if step in (0, 4): st0()
            if step in (0, 1, 2, 8): st1()
            if step in (8, 9): st4()
            nx = (step + 1, 0) if step < 9 else None
            phase(1, 0, nx)
            phase(1, 1, nx)
        st0(); st4(); st6()
        rts(2)
        if wn == 1 and not sep:
            a(f'''s_waitcnt vmcnt(0)
v_cmp_eq_u32 vcc, 255, {vr(vCi7)}
v_add_u32 {vr(vEp7)}, {TAGK}, {vr(vEp7)}
v_mov_b32 {vr(vT1)}, {OOB}
s_mov_b32 {sr(sT)}, {F_EPOCH}
v_cndmask_b32 {vr(vZ7)}, {vr(vT1)}, {vr(vZ7)}, vcc
buffer_store_dword {vr(vEp7)}, {vr(vZ7)}, {sr(SWS,4)}, {sr(sT)} offen{SC}''')
        def scale(r0):
            a(f'v_pk_mul_f32 {vr(r0,2)}, {vr(r0,2)}, {sr(sScale,2)}')
            a(f'v_pk_mul_f32 {vr(r0+2,2)}, {vr(r0+2,2)}, {sr(sScale,2)}')
        def pack4(d, x, y):
            a(f'v_cvt_pk_bf16_f32 {vr(d)}, {vr(x)}, {vr(x+1)}')
            a(f'v_cvt_pk_bf16_f32 {vr(d+1)}, {vr(x+2)}, {vr(x+3)}')
            if y is not None:
                a(f'v_cvt_pk_bf16_f32 {vr(d+2)}, {vr(y)}, {vr(y+1)}')
                a(f'v_cvt_pk_bf16_f32 {vr(d+3)}, {vr(y+2)}, {vr(y+3)}')
        def stage(want):
          ct = 0
          while ct < nct:
            ty, sec, sub, e = kinds[ct]
            if (sec == 0) != want:
                ct += 1
                continue
            if ty == 'P':
                for tt in range(2):
                    x, y = acc[ct][tt], acc[ct+1][tt]
                    if sec == 0:
                        scale(x); scale(y)
                    pack4(x, x, y)
                    if sec == 0:
                        a(f'ds_write_b128 {vr(vE[2])}, {vr(x,4)} offset:{sub*10240 + tt*256}')
                    else:
                        a(f'ds_write_b128 {vr(vE[0])}, {vr(x,4)} offset:{sub*20480 + tt*64}')
                ct += 2
            elif ty == 'T':
                for tt in range(2):
                    x = acc[ct][tt]
                    if sec == 0:
                        scale(x)
                    pack4(x, x, None)
                    if sec == 0:
                        a(f'ds_write_b64 {vr(vE[3])}, {vr(x,2)} offset:{tt*128}')
                    else:
                        a(f'ds_write_b64 {vr(vE[1])}, {vr(x,2)} offset:{tt*32}')
                ct += 1
            else:
                x, y = acc[ct][0], acc[ct][1]
                pack4(x, x, y)
                a(f'ds_write_b128 {vr(vE[1+sub])}, {vr(x,4)}')
                ct += 1
        if wn == 0: a('s_nop 2')
        stage(False)
        if one_e: stage(True)
        a('s_waitcnt lgkmcnt(0)')
        st4()
        a('s_barrier')
        st4(); st6()
        PB = Xf[0][0]
        assert Wf[0][0] == PB + 16
        if pub4:
            if wn == 0:
                if not one_e: stage(True)
            else:
                for q in range(10):
                    a(f'ds_read_b128 {vr(PB+4*q,4)}, {vr(vPub)} offset:{q*1024}')
                for q in range(10):
                    if q == 4: a(f's_add_u32 {sr(sPub)}, {sr(sPub)}, 4096')
                    if q == 8: a(f's_add_u32 {sr(sPub)}, {sr(sPub)}, 4096')
                    a(f's_waitcnt lgkmcnt({9 - q})')
                    a(f'buffer_store_dwordx4 {vr(PB+4*q,4)}, {vr(vQo)}, {sr(SWS,4)}, {sr(sPub)} offen offset:{(q%4)*1024}{SST}')
        else:
          for q in range(5):
            a(f'ds_read_b128 {vr(PB+4*q,4)}, {vr(vPub)} offset:{q*1024}')
          stage(True)
          nq = 6 if wn == 0 else 0
          for q in range(5):
            a(f's_waitcnt lgkmcnt({4 - q + nq})')
            a(f'buffer_store_dwordx4 {vr(PB+4*q,4)}, {vr(vQo)}, {sr(SWS,4)}, {sr(sPub if q < 4 else sPub2)} offen offset:{(q%4)*1024}{SST}')
        a('s_nop 1')
        st4()
    n_st = st.n
    p1_variant(0)
    a(f's_branch {name}_p2')
    a.label(f'{name}_p1b')
    st.n = n_st
    p1_variant(1)
    a.label(f'{name}_p2')

    V = VAlloc(VB2 + 3)
    Q1 = [V(4), V(4)]; Q2 = [V(2), V(2)]
    K1 = [V(4), V(4)]; K2 = [V(2), V(2)]
    V0 = [V(4), V(4)]; V1 = [V(4), V(4)]
    O = [V(16), V(16)]
    S = [V(16), V(16)]
    st3 = opts.get('st3', 1) and not nobar
    if st3:
        aK1 = [vbK1, vaK1, V()]; aK2 = [vbK2, vaK2, V()]; aV = [vbV, vaV, V()]
    vPw = V(2); vPa = V(); vPo_ = V(); vPg = V()
    done_alloc(V)
    for t in range(2):
        for i in range(16):
            a(f'v_mov_b32 {vr(O[t]+i)}, 0')
    for i in range(4):
        a(f'v_mov_b32 {vr(V1[1]+i)}, 0')
    a(f's_mov_b32 {sr(sG)}, 0')
    a(f's_mov_b32 {sr(sOff)}, 0')
    if st3:
        for k in (1, 2):
            a(f's_mov_b32 {sr(sT)}, {phys(k)*SLOT}')
            a(f'v_add_u32 {vr(aK1[k])}, {sr(sT)}, {vr(vbK1)}')
            a(f'v_mad_u32_u24 {vr(aK2[k])}, {vr(vmK2)}, {sr(sT)}, {vr(vbK2)}')
            a(f'v_mad_u32_u24 {vr(aV[k])}, {vr(vmV)}, {sr(sT)}, {vr(vbV)}')
    if nobar:
        a(f'''s_lshl_b32 {sr(sT)}, {sr(sW)}, 3
s_add_u32 {sr(sT2)}, {sr(sT)}, {LW_PW + 4}
s_xor_b32 {sr(sT)}, {sr(sT)}, 32
s_add_u32 {sr(sT)}, {sr(sT)}, {LW_PW}
v_mov_b32 {vr(vPa)}, {sr(sT)}
v_mov_b32 {vr(vPo_)}, {sr(sT2)}
v_mov_b32 {vr(vPg)}, 0''')
    if not one_e:
        a('s_waitcnt lgkmcnt(0)')
        a('s_barrier')
    st0(); st4()
    def rdK(s_, u, part='R', sl=0):
        x1, x2 = (aK1[sl], aK2[sl]) if st3 else (vaK1, vaK2)
        if part != 'Rb': a(f'ds_read_b128 {vr(K1[s_],4)}, {vr(x1)} offset:{2560*u}')
        if part != 'Ra': a(f'ds_read_b64 {vr(K2[s_],2)}, {vr(x2)} offset:{2560*u}')
    def rdV(s_, u, part='R', sl=0):
        x1 = aV[sl] if st3 else vaV
        if part != 'Rb': a(f'ds_read_b128 {vr(V0[s_],4)}, {vr(x1)} offset:{2560*u}')
        if part != 'Ra': a(f'ds_read_b128 {vr(V1[s_],4)}, {vr(x1)} offset:{2560*u+640}')
    def qk16(t, s_):
        a(f'v_mfma_f32_32x32x16_bf16 {vr(S[t],16)}, {vr(K1[s_],4)}, {vr(Q1[t],4)}, 0')
    def qk8(t, s_):
        a(f'v_mfma_f32_32x32x8_bf16 {vr(S[t],16)}, {vr(K2[s_],2)}, {vr(Q2[t],2)}, {vr(S[t],16)}')
    def pv(t, s_, n):
        Vf = (V0, V1)[n][s_]
        a(f'v_smfmac_f32_32x32x32_bf16 {vr(O[t],16)}, {vr(Vf,4)}, {vr(S[t]+8*n,8)}, {vr(vIdx)}')
    def rowmax(t, dst):
        s = S[t]
        a(f'v_max3_f32 {vr(dst)}, {vr(s)}, {vr(s+1)}, {vr(s+2)}')
        for i in range(3, 15, 2):
            a(f'v_max3_f32 {vr(dst)}, {vr(dst)}, {vr(s+i)}, {vr(s+i+1)}')
        a(f'v_max_f32 {vr(dst)}, {vr(dst)}, {vr(s+15)}')
    def crosshalf(x, y):
        a(f'v_mov_b32 {vr(y)}, {vr(x)}')
        a('s_nop 1')
        a(f'v_permlane32_swap_b32 {vr(x)}, {vr(y)}')
        a('s_nop 1')
    for t in range(2):
        a(f'ds_read_b128 {vr(Q1[t],4)}, {vr(vQs1)} offset:{1280*t}')
        a(f'ds_read_b64 {vr(Q2[t],2)}, {vr(vQs2)} offset:{1280*t}')
    rdK(0, 0); rdK(1, 1); rdV(0, 0)
    a('s_waitcnt lgkmcnt(4)')
    for t in range(2):
        a(f'v_cndmask_b32_e64 {vr(Q2[t])}, {vr(Q2[t])}, 0, {sr(sHi,2)}')
        a(f'v_cndmask_b32_e64 {vr(Q2[t]+1)}, {vr(Q2[t]+1)}, 0, {sr(sHi,2)}')
    qk16(0, 0); qk8(0, 0); qk16(1, 0); qk8(1, 0)
    a('s_nop 9')
    for t in range(2):
        if t == 1: a('s_nop 1')
        rowmax(t, vT0)
        crosshalf(vT0, vT1)
        a(f'''v_max_f32 {vr(vT0)}, {vr(vT0)}, {vr(vT1)}
v_sub_f32 {vr(vT0)}, 0, {vr(vT0)}
v_and_b32 {vr(vT1)}, 0xffff0000, {vr(vT0)}
v_sub_f32 {vr(vT0)}, {vr(vT0)}, {vr(vT1)}
v_and_b32 {vr(vT2)}, 0xffff0000, {vr(vT0)}
v_sub_f32 {vr(vT0)}, {vr(vT0)}, {vr(vT2)}
v_lshrrev_b32 {vr(vT1)}, 16, {vr(vT1)}
v_or_b32 {vr(vT1)}, {vr(vT1)}, {vr(vT2)}
v_lshrrev_b32 {vr(vT0)}, 16, {vr(vT0)}
v_cndmask_b32_e64 {vr(Q2[t])}, {vr(Q2[t])}, {vr(vT1)}, {sr(sHi,2)}
v_cndmask_b32_e64 {vr(Q2[t]+1)}, {vr(Q2[t]+1)}, {vr(vT0)}, {sr(sHi,2)}''')
        if t == 0:
            qk16(0, 0)
            a('s_nop 0')
            qk8(0, 0)
    for i in range(8, 16):
        a(f'v_mov_b32 {vr(S[1]+i)}, 0')
    st4()
    dsig = opts.get('dsig', 0) and pub4 and st3
    sSig, sFa = sOff, sPub2
    def sig_code(lbl, cnt):
        a(f'''s_mov_b64 exec, 1
v_mov_b32 {vr(vT0)}, 1
v_mov_b32 {vr(vT2)}, {LW_CNT1}
v_mov_b32 {vr(vT1)}, {sr(sTag)}
v_mov_b32 {vr(vT3)}, {sr(sFa)}
s_waitcnt vmcnt(0)
ds_add_rtn_u32 {vr(vT0)}, {vr(vT2)}, {vr(vT0)}
s_waitcnt lgkmcnt(0)
v_readfirstlane_b32 {sr(sT)}, {vr(vT0)}
s_cmp_eq_u32 {sr(sT)}, {cnt - 1}
s_cbranch_scc0 {lbl}''')
        if rep_:
            a(f'''s_mov_b64 exec, 0xffff
v_mov_b32 {vr(vT1)}, {sr(sTag)}
v_lshl_add_u32 {vr(vT3)}, {vr(vLane)}, 7, {sr(sFa)}''')
        a(f'buffer_store_dword {vr(vT1)}, {vr(vT3)}, {sr(SWS,4)}, 0 offen{SC}')
        a.label(lbl)
        a('s_mov_b64 exec, -1')
    a(f'''s_lshl_b32 {sr(sT)}, {sr(sB)}, 3
s_add_u32 {sr(sT)}, {sr(sT)}, {sr(sHg)}
s_lshl_b32 {sr(sT)}, {sr(sT)}, {9 if rep_ else 6}
s_add_u32 {sr(sT)}, {sr(sT)}, {sr(sMt)}
s_lshl_b32 {sr(sT)}, {sr(sT)}, 2
s_add_u32 {sr(sFa)}, {sr(sT)}, {F_R1 if rep_ else F_FLAG1}''')
    sigpts = []
    if dsig:
        a(f's_lshr_b32 {sr(sSig)}, {sr(sW)}, 2')
        a('s_waitcnt lgkmcnt(0)')
    else:
        sig_code(f'{name}_nl1', 8)
    def sig_point(force):
        k = len(sigpts); sigpts.append(force)
        a(f's_cmp_lg_u32 {sr(sSig)}, 0')
        a(f's_cbranch_scc1 {name}_sg{k}')
        a.label(f'{name}_sgr{k}')
    prio = opts.get('prio', 1)
    rts(3)
    st0(); st4(); st6()
    if sset == 2: st()
    a('.p2align 6')
    a.label(f'{name}_loop')
    def ex(t, i):
        a(f'v_exp_f32 {vr(S[t]+i)}, {vr(S[t]+i)}')
    scheds = {1: 'e e P2 e e e e Q16 e e e e Q8 R e e e e P1 W e e',
              2: 'e e P2 e e e e Q16 e e e Q8 R e e e e e P1 W e e',
              3: 'e e P2 e e e e Q16 e e e e Q8 e R e e e P1 e W e',
              4: 'e e P2 e e e Q16 e e e e Q8 R e e e e P1 W e e e',
              5: 'e e W P2 e e e e Ra Q16 e e e e Rb Q8 e e e e P1 e e',
              6: 'e e W P2 e e e e R Q16 e e e e Q8 e e e e P1 e e',
              7: 'e e W P2 e e e e Q16 e e e e Ra Q8 e e e e Rb P1 e e',
              8: 'e e P2 e e e e Ra Q16 e e e e Rb Q8 e e e e W P1 e e',
              9: 'e e P2 e e e e Q16 e e e e Q8 e e e e R W P1 e e',
              10: 'e e P2 Ra e e e e Q16 Rb e e e e Q8 W e e e e P1 e e',
              11: 'e e P2 Ra e e e e Q16 Rb e e e e Q8 e e e e P1 W e e',
              12: 'e e P2 R e e e e Q16 e e e e Q8 e e e e P1 W e e',
              13: 'e e P2 R W e e e e Q16 e e e e Q8 e e e e P1 e e',
              14: 'e e P2 Ra e e e e Q16 e e e e Q8 e e e e P1 Rb W e e',
              15: 'e e P2 R e e e e Q16 e e e e Q8 W e e e e P1 e e'}
    sched = scheds[opts.get('sched', 12)].split()
    unroll = 3 if st3 else opts.get('unroll', 1)
    ptab = {1: {(0, 0): 2, (1, 0): 1, (2, 0): 0, (3, 0): 3},
            2: {(3, 0): 1, (1, 0): 0},
            3: {(3, 0): 3, (3, 1): 2, (0, 1): 1, (1, 1): 0},
            6: {(3, 0): 3, (0, 1): 2, (1, 1): 1, (2, 0): 0}}.get(prio, {})
    for rep in range(unroll):
      for j in range(4):
        for t in range(2):
            pj = j if t == 1 else j - 1
            nj = j if t == 0 else j + 1
            if (j, t) in ptab and nobar != 1:
                a(f's_setprio {ptab[(j, t)]}')
            if dsig and rep == 0 and (j, t) in ((0, 0), (0, 1), (1, 0), (1, 1), (2, 0)):
                sig_point(False)
            e = 0
            for tok in sched:
                if tok == 'e':
                    ex(t, e); e += 1
                elif tok == 'P2':
                    pv(1 - t, pj % 2, 1)
                elif tok == 'P1':
                    pv(t, j % 2, 0)
                elif tok == 'Q16':
                    qk16(1 - t, nj % 2)
                elif tok == 'Q8':
                    qk8(1 - t, nj % 2)
                elif tok == 'W':
                    a(f's_waitcnt lgkmcnt({3 if nobar and (j, t) in ((2, 0), (2, 1)) else 2})')
                elif tok == 'Rb':
                    if t == 0: rdV((j + 1) % 2, (j + 1) % 4, 'Rb', (rep + (j + 1) // 4) % 3)
                    else: rdK(j % 2, (j + 2) % 4, 'Rb', (rep + (j + 2) // 4) % 3)
                elif tok in ('R', 'Ra'):
                    if t == 0:
                        if j == 3 and not st3:
                            a(f'v_mad_u32_u24 {vr(vaV)}, {vr(vmV)}, {sr(sOff)}, {vr(vbV)}')
                        rdV((j + 1) % 2, (j + 1) % 4, tok, (rep + (j + 1) // 4) % 3)
                        if j == 2 and nobar:
                            a(f'ds_read_b64 {vr(vPw,2)}, {vr(vPa)}')
                    else:
                        if g1s and rep == 1 and j == 1:
                            a(f's_cmp_eq_u32 {sr(sG)}, 0')
                            a(f's_cbranch_scc1 {name}_g1w')
                            a.label(f'{name}_g1r')
                        if j == 2 and st3:
                            if dsig and rep == 0: sig_point(True)
                            a('s_waitcnt lgkmcnt(0)')
                            a('s_barrier')
                            if sset == 6 and st.on and rep == 0:
                                a(f's_cmp_eq_u32 {sr(sG)}, 0')
                                a(f's_cbranch_scc0 {name}_sk6')
                                st.rt()
                                a.label(f'{name}_sk6')
                        elif j == 2:
                            a(f'''s_add_u32 {sr(sOff)}, {sr(sOff)}, {SLOT}
s_cmp_ge_u32 {sr(sOff)}, {3*SLOT}
s_cselect_b32 {sr(sOff)}, 0, {sr(sOff)}''')
                            if nobar:
                                a(f'''v_add_u32 {vr(vPg)}, 1, {vr(vPg)}
s_add_u32 {sr(sT3)}, {sr(sG)}, {rep + 1}
s_waitcnt lgkmcnt(0)
v_readfirstlane_b32 {sr(sT)}, {vr(vPw)}
v_readfirstlane_b32 {sr(sT2)}, {vr(vPw+1)}
ds_write_b32 {vr(vPo_)}, {vr(vPg)}''')
                                if nobar == 1:
                                    a(f'''s_setprio 0
s_cmp_lt_u32 {sr(sT2)}, {sr(sT3)}
s_cbranch_scc1 {name}_lo{rep}
s_setprio 1''')
                                    a.label(f'{name}_lo{rep}')
                                elif nobar == 2:
                                    a(f's_add_u32 {sr(sT2)}, {sr(sT2)}, {1 + opts.get("slack", 0)}')
                                    a(f's_min_u32 {sr(sT)}, {sr(sT)}, {sr(sT2)}')
                                a(f's_cmp_gt_u32 {sr(sT)}, {sr(sT3)}')
                                a(f's_cbranch_scc0 {name}_spin{rep}')
                                a.label(f'{name}_spun{rep}')
                            else:
                                a('s_waitcnt lgkmcnt(0)')
                                a('s_barrier')
                            if sset == 2 and st.on:
                                for K in (0, 1, 2, 3, 8, 14):
                                    a(f's_cmp_eq_u32 {sr(sG)}, {K}')
                                    a(f's_cbranch_scc0 {name}_sk{K}')
                                    st()
                                    a.label(f'{name}_sk{K}')
                            a(f'''v_add_u32 {vr(vaK1)}, {sr(sOff)}, {vr(vbK1)}
v_mad_u32_u24 {vr(vaK2)}, {vr(vmK2)}, {sr(sOff)}, {vr(vbK2)}''')
                        rdK(j % 2, (j + 2) % 4, tok, (rep + (j + 2) // 4) % 3)
            assert e == 16
      if st3 and rep == 0:
        a(f's_cmp_eq_u32 {sr(sG)}, 15')
        a(f's_cbranch_scc1 {name}_lend')
    a(f'''s_add_u32 {sr(sG)}, {sr(sG)}, {unroll}
s_cmp_lt_u32 {sr(sG)}, 16
s_cbranch_scc1 {name}_loop''')
    a.label(f'{name}_lend')
    tail0 = len(a.lines)
    a('s_nop 1')
    pv(1, 1, 1)
    if ptab or nobar:
        a('s_setprio 0')
    st0()
    if sset in (2, 3): st()
    L = [vT2, vT3]
    st6(1)
    rts(4)
    a('s_waitcnt lgkmcnt(0)')
    a(f's_mov_b32 {sr(sI)}, 0')
    a.label(f'{name}_store')
    a(f's_mov_b32 {sr(sM)}, 0xaaaaaaaa')
    a(f's_mov_b32 {sr(sM+1)}, 0xaaaaaaaa')
    for t in range(2):
        a(f'v_mov_b32 {vr(vT0)}, {vr(O[t]+8)}')
        crosshalf(vT0, L[t])
        a(f'v_rcp_f32 {vr(vT0)}, {vr(L[t])}')
        a('s_nop 0')
        for i in range(12):
            a(f'v_mul_f32 {vr(O[t]+i)}, {vr(O[t]+i)}, {vr(vT0)}')
        for i in range(4):
            a(f'v_cvt_pk_bf16_f32 {vr(S[t]+i)}, {vr(O[t]+2*i)}, {vr(O[t]+2*i+1)}')
        a(f'buffer_store_dwordx4 {vr(S[t],4)}, {vr(vQo)}, {sr(SWS,4)}, {sr(sOo)} offen offset:{1024*t}{SST}')
        for i in range(2):
            a(f'v_cvt_pk_bf16_f32 {vr(S[0]+4+2*t+i)}, {vr(O[t]+8+2*i)}, {vr(O[t]+8+2*i+1)}')
    ta, tb, X, Y = S[0]+4, S[0]+6, S[0]+8, S[0]+12
    a(f'''v_cndmask_b32_e64 {vr(X)}, {vr(tb)}, {vr(ta)}, {sr(sM,2)}
v_cndmask_b32_e64 {vr(X+1)}, {vr(tb+1)}, {vr(ta+1)}, {sr(sM,2)}
v_lshrrev_b32 {vr(vT0)}, 1, {vr(vLane)}
v_and_b32 {vr(vT1)}, 1, {vr(vLane)}
v_mov_b32_dpp {vr(X+2)}, {vr(X)} quad_perm:[1,0,3,2] row_mask:0xf bank_mask:0xf
v_mov_b32_dpp {vr(X+3)}, {vr(X+1)} quad_perm:[1,0,3,2] row_mask:0xf bank_mask:0xf
v_lshlrev_b32 {vr(vT0)}, 4, {vr(vT0)}
v_lshl_add_u32 {vr(vT0)}, {vr(vT1)}, 8, {vr(vT0)}
v_mov_b32 {vr(vT1)}, {OOB}
v_cndmask_b32_e64 {vr(Y)}, {vr(ta)}, {vr(X+2)}, {sr(sM,2)}
v_cndmask_b32_e64 {vr(Y+1)}, {vr(ta+1)}, {vr(X+3)}, {sr(sM,2)}
v_cndmask_b32_e64 {vr(Y+2)}, {vr(X+2)}, {vr(tb)}, {sr(sM,2)}
v_cndmask_b32_e64 {vr(Y+3)}, {vr(X+3)}, {vr(tb+1)}, {sr(sM,2)}
v_cndmask_b32_e64 {vr(vT0)}, {vr(vT0)}, {vr(vT1)}, {sr(sHi,2)}
buffer_store_dwordx4 {vr(Y,4)}, {vr(vT0)}, {sr(SWS,4)}, {sr(sOo)} offen offset:2048{SST}''')
    st0()
    for t in range(2):
        sm = sM if t == 0 else sM2
        a(f'v_mul_f32 {vr(vT1)}, 0, {vr(O[t])}')
        for i in range(1, 12):
            a(f'v_fmac_f32 {vr(vT1)}, 0, {vr(O[t]+i)}')
        a(f'v_add_f32 {vr(vT1)}, {vr(vT1)}, {vr(L[t])}')
        a(f'v_cmp_gt_f32 vcc, 0x53800000, {vr(vT1)}')
        a(f's_mov_b64 {sr(sm,2)}, vcc')
        a(f'v_cmp_lt_f32 vcc, 0x35800000, {vr(vT1)}')
        a(f's_and_b64 {sr(sm,2)}, {sr(sm,2)}, vcc')
    a(f'''s_and_b64 {sr(sM,2)}, {sr(sM,2)}, {sr(sM2,2)}
s_cmp_eq_u64 {sr(sM,2)}, -1
s_cselect_b32 {sr(sT)}, 1, {sr(sI)}
s_cmp_eq_u32 {sr(sT)}, 0
s_cbranch_scc1 {name}_fallback''')

    V = VAlloc(VBASE)
    vAo = V(); vAt = V(); vWm0 = V(); vWt0 = V(); vOo = V(); vRd = V(); vDn = V(); vOw = V(); vOr = V(); vOs = [V(), V(), V()]
    vWm = [V() for _ in range(4)]; vWt = [V() for _ in range(4)]
    acc3 = [V(4) for _ in range(5)]
    assert V.n <= S[0]
    Wg = [[V(4) for _ in range(5)] for _ in range(2)]
    A = [[V(4) for _ in range(5)] for _ in range(4)]
    done_alloc(V)
    a(f'''s_lshl_b32 {sr(sT)}, {sr(sB)}, 4
s_add_u32 {sr(sT)}, {sr(sT)}, {sr(sMt3)}
s_lshl_b32 {sr(sT)}, {sr(sT)}, 1
s_lshr_b32 {sr(sT2)}, {sr(sW)}, 2
s_add_u32 {sr(sT)}, {sr(sT)}, {sr(sT2)}
s_mul_i32 {sr(sA)}, {sr(sT)}, {32*2560}
s_add_u32 {sr(sA)}, {sr(sA)}, {F_WS_O}
s_and_b32 {sr(sT)}, {sr(sW)}, 1
s_lshl_b32 {sr(sT)}, {sr(sT)}, 4
s_bfe_u32 {sr(sT2)}, {sr(sW)}, 0x10001
v_and_b32 {vr(vT0)}, 15, {vr(vLane)}
v_add_u32 {vr(vT0)}, {sr(sT)}, {vr(vT0)}
v_lshlrev_b32 {vr(vT0)}, 4, {vr(vT0)}
v_lshrrev_b32 {vr(vT1)}, 5, {vr(vLane)}
v_mul_u32_u24 {vr(vT1)}, 2560, {vr(vT1)}
v_bfe_u32 {vr(vT2)}, {vr(vLane)}, 4, 1
v_lshl_add_u32 {vr(vT1)}, {vr(vT2)}, 9, {vr(vT1)}
s_lshl_b32 {sr(sT3)}, {sr(sT2)}, 10
v_add3_u32 {vr(vAo)}, {vr(vT0)}, {vr(vT1)}, {sr(sT3)}
v_lshrrev_b32 {vr(vT1)}, 4, {vr(vLane)}
v_mul_u32_u24 {vr(vT1)}, 2560, {vr(vT1)}
s_lshl_b32 {sr(sT3)}, {sr(sT2)}, 8
s_add_u32 {sr(sT3)}, {sr(sT3)}, 2048
v_lshrrev_b32 {vr(vT0)}, 1, {vr(vT0)}
v_add3_u32 {vr(vAt)}, {vr(vT0)}, {vr(vT1)}, {sr(sT3)}
v_bfe_u32 {vr(vT0)}, {vr(vLane)}, 2, 2
v_lshrrev_b32 {vr(vT1)}, 5, {vr(vLane)}
v_mul_u32_u24 {vr(vT1)}, 20, {vr(vT1)}
v_bfe_u32 {vr(vT2)}, {vr(vLane)}, 4, 1
v_lshl_add_u32 {vr(vT1)}, {vr(vT2)}, 2, {vr(vT1)}
v_add_u32 {vr(vT1)}, {vr(vT1)}, {vr(vT0)}
v_mul_u32_u24 {vr(vT1)}, 160, {vr(vT1)}
v_and_b32 {vr(vT2)}, 3, {vr(vLane)}
v_lshl_add_u32 {vr(vWm0)}, {vr(vT2)}, 3, {vr(vT1)}
v_lshrrev_b32 {vr(vT1)}, 4, {vr(vLane)}
v_mul_u32_u24 {vr(vT1)}, 20, {vr(vT1)}
v_add3_u32 {vr(vT1)}, {vr(vT1)}, {vr(vT0)}, 16
v_mul_u32_u24 {vr(vT1)}, 160, {vr(vT1)}
v_lshl_add_u32 {vr(vWt0)}, {vr(vT2)}, 3, {vr(vT1)}
s_lshl_b32 {sr(sT)}, {sr(sMt3)}, 7
s_lshl_b32 {sr(sT2)}, {sr(sW)}, 4
s_add_u32 {sr(sT)}, {sr(sT)}, {sr(sT2)}
v_and_b32 {vr(vT0)}, 15, {vr(vLane)}
v_add_u32 {vr(vT0)}, {sr(sT)}, {vr(vT0)}
v_mul_u32_u24 {vr(vT0)}, 2560, {vr(vT0)}
v_lshrrev_b32 {vr(vT1)}, 4, {vr(vLane)}
v_lshl_add_u32 {vr(vT0)}, {vr(vT1)}, 3, {vr(vT0)}
s_mul_i32 {sr(sT)}, {sr(sB)}, 1280
s_mul_i32 {sr(sT2)}, {sr(sCg)}, 160
s_add_u32 {sr(sT)}, {sr(sT)}, {sr(sT2)}
v_add_u32 {vr(vOo)}, {sr(sT)}, {vr(vT0)}
v_mov_b32 {vr(vRd)}, {LW_RDY}
s_lshl_b32 {sr(sT2)}, {sr(sMt3)}, 3
s_add_u32 {sr(sT2)}, {sr(sT2)}, {sr(sW)}
s_mul_i32 {sr(sT2)}, {sr(sT2)}, {16*2560}
s_add_u32 {sr(sOo)}, {sr(sT)}, {sr(sT2)}
s_mul_i32 {sr(sT2)}, {sr(sW)}, 3072
v_and_b32 {vr(vT0)}, 15, {vr(vLane)}
v_mul_u32_u24 {vr(vT0)}, 160, {vr(vT0)}
v_lshl_add_u32 {vr(vT0)}, {vr(vT1)}, 3, {vr(vT0)}
v_add_u32 {vr(vOw)}, {sr(sT2)}, {vr(vT0)}
v_lshlrev_b32 {vr(vT0)}, 4, {vr(vLane)}
v_add_u32 {vr(vOr)}, {sr(sT2)}, {vr(vT0)}
v_mul_u32_u24 {vr(vT1)}, 6554, {vr(vLane)}
v_lshrrev_b32 {vr(vT1)}, 16, {vr(vT1)}
v_mul_u32_u24 {vr(vT1)}, {2560-160}, {vr(vT1)}
v_add_u32 {vr(vOs[0])}, {vr(vT0)}, {vr(vT1)}
v_add_u32 {vr(vT2)}, 64, {vr(vLane)}
v_mul_u32_u24 {vr(vT1)}, 6554, {vr(vT2)}
v_lshrrev_b32 {vr(vT1)}, 16, {vr(vT1)}
v_mul_u32_u24 {vr(vT1)}, {2560-160}, {vr(vT1)}
v_lshl_add_u32 {vr(vOs[1])}, {vr(vT2)}, 4, {vr(vT1)}
v_add_u32 {vr(vT2)}, 128, {vr(vLane)}
v_mul_u32_u24 {vr(vT1)}, 6554, {vr(vT2)}
v_lshrrev_b32 {vr(vT1)}, 16, {vr(vT1)}
v_mul_u32_u24 {vr(vT1)}, {2560-160}, {vr(vT1)}
v_lshl_add_u32 {vr(vT1)}, {vr(vT2)}, 4, {vr(vT1)}
v_mov_b32 {vr(vT2)}, {OOB}
v_cndmask_b32_e64 {vr(vOs[2])}, {vr(vT1)}, {vr(vT2)}, {sr(sHi,2)}
s_lshl_b32 {sr(sT)}, {sr(sB)}, 4
s_add_u32 {sr(sT)}, {sr(sT)}, {sr(sMt)}
s_lshl_b32 {sr(sT)}, {sr(sT)}, {8 if rep_ else 6}
s_add_u32 {sr(sT)}, {sr(sT)}, {sr(sHg)}
s_lshl_b32 {sr(sT)}, {sr(sT)}, 2
s_add_u32 {sr(sT)}, {sr(sT)}, {F_R2 if rep_ else F_FLAG2}
{f'v_lshl_add_u32 {vr(vDn)}, {vr(vLane)}, 7, {sr(sT)}' if rep_ else f'v_mov_b32 {vr(vDn)}, {sr(sT)}'}
v_add_u32 {vr(vWm0)}, {WO_LO}, {vr(vWm0)}
v_add_u32 {vr(vWt0)}, {WO_LO}, {vr(vWt0)}
s_and_b32 {sr(sT3)}, {sr(sCg)}, {opts.get('rot3', 3)}
s_lshl_b32 {sr(sT3)}, {sr(sT3)}, 1
s_mov_b32 {sr(sDone)}, 0''')
    for t in range(5):
        for i in range(4):
            a(f'v_mov_b32 {vr(acc3[t]+i)}, 0')
    tid_ = [0]
    base3 = st.n
    if sset == 3: st.n += 4
    def read_rdy():
        a(f'''ds_read_b64 {vr(vT0,2)}, {vr(vRd)}
s_waitcnt lgkmcnt(0)
v_and_b32 {vr(vT0)}, {vr(vT0)}, {vr(vT1)}
s_nop 0
v_readfirstlane_b32 {sr(sT)}, {vr(vT0)}
s_andn2_b32 {sr(sT)}, {sr(sT)}, {sr(sDone)}''')
    def loads(s_):
        a(f'''s_lshl_b32 {sr(sT2)}, {sr(sT)}, 8
s_or_b32 {sr(sT)}, {sr(sT)}, {sr(sT2)}
s_lshr_b32 {sr(sT)}, {sr(sT)}, {sr(sT3)}
s_ff1_i32_b32 {sr(sT)}, {sr(sT)}
s_add_u32 {sr(sT)}, {sr(sT)}, {sr(sT3)}
s_and_b32 {sr(sT)}, {sr(sT)}, 7
s_bitset1_b32 {sr(sDone)}, {sr(sT)}
s_mul_i32 {sr(sT2)}, {sr(sT)}, 10240
s_add_u32 {sr(sT2)}, {sr(sT2)}, {sr(sA)}
s_cmp_eq_u32 {sr(sT)}, 6
s_mul_i32 {sr(sT)}, {sr(sT)}, 12800
s_cselect_b32 {sr(sT)}, {QST - WO_LO}, {sr(sT)}''')
        for p in range(4):
            a(f'buffer_load_dwordx4 {vr(A[s_][p],4)}, {vr(vAo)}, {sr(SWS,4)}, {sr(sT2)} offen{SLD}')
            if p == 0:
                a(f'buffer_load_dwordx2 {vr(A[s_][4],2)}, {vr(vAt)}, {sr(SWS,4)}, {sr(sT2)} offen{SLD}')
            if p == 2:
                a(f'buffer_load_dwordx2 {vr(A[s_][4]+2,2)}, {vr(vAt)}, {sr(SWS,4)}, {sr(sT2)} offen{SLD}')
            if p < 3:
                a(f's_add_u32 {sr(sT2)}, {sr(sT2)}, 5120')
        a(f'v_add_u32 {vr(vWm[s_])}, {sr(sT)}, {vr(vWm0)}')
        a(f'v_add_u32 {vr(vWt[s_])}, {sr(sT)}, {vr(vWt0)}')
        if sset == 3 and st.on:
            a(f's_memtime s[{62+2*(base3+s_)}:{63+2*(base3+s_)}]\ns_waitcnt lgkmcnt(0)')
    def take_group(s_):
        n = tid_[0]; tid_[0] += 1
        a.label(f'{name}_tg{n}')
        read_rdy()
        a(f'''s_cbranch_scc1 {name}_tgd{n}
s_sleep 1
s_branch {name}_tg{n}''')
        a.label(f'{name}_tgd{n}')
        loads(s_)
    a('s_waitcnt vmcnt(0)')
    a(f'''s_mov_b64 exec, 1
v_mov_b32 {vr(vT0)}, 1
ds_add_rtn_u32 {vr(vT0)}, {vr(vRd)}, {vr(vT0)} offset:8
v_mov_b32 {vr(vT1)}, {sr(sTag)}
v_mov_b32 {vr(vT2)}, 0xff
s_waitcnt lgkmcnt(0)
v_readfirstlane_b32 {sr(sT)}, {vr(vT0)}
s_cmp_eq_u32 {sr(sT)}, 7
s_cbranch_scc0 {name}_nl
ds_write_b32 {vr(vRd)}, {vr(vT2)} offset:4
{'s_mov_b64 exec, 0xff' if rep_ else 's_nop 0'}
v_mov_b32 {vr(vT1)}, {sr(sTag)}
buffer_store_dword {vr(vT1)}, {vr(vDn)}, {sr(SWS,4)}, 0 offen{SC}''')
    a.label(f'{name}_nl')
    a('s_mov_b64 exec, -1')
    if sset == 3: st()
    st6(1)
    def rdW3(fs, j, p, t):
        out = []
        for rd in range(2):
            if p < 4:
                base, off = vWm[j], (20*(2*p) + 8*rd)*160 + t*32
            else:
                base, off = vWt[j], (20*(4*rd))*160 + t*32
            out.append(f'ds_read_b64_tr_b16 {vr(Wg[fs][t]+2*rd,2)}, {vr(base)} offset:{off}')
        return out
    if opts.get('evt', 1):
        st0()
        sJ = sG
        a(f's_mov_b32 {sr(sI)}, 0')
        a(f's_mov_b32 {sr(sJ)}, 0')
        a.label(f'{name}_ev')
        dep3 = opts.get('dep3', 2)
        LANDED = f'''s_getreg_b32 {sr(sT)}, hwreg(HW_REG_IB_STS)
s_bfe_u32 {sr(sT2)}, {sr(sT)}, 0x20016
s_lshl_b32 {sr(sT2)}, {sr(sT2)}, 4
s_and_b32 {sr(sT)}, {sr(sT)}, 15
s_or_b32 {sr(sT)}, {sr(sT)}, {sr(sT2)}
s_add_u32 {sr(sT)}, {sr(sT)}, 6
s_sub_u32 {sr(sT2)}, {sr(sI)}, {sr(sJ)}
s_mul_i32 {sr(sT2)}, {sr(sT2)}, 6
s_cmp_le_u32 {sr(sT)}, {sr(sT2)}
s_cbranch_scc1 {name}_evc'''
        a(f's_cmp_lt_u32 {sr(sI)}, 4')
        a(f's_cbranch_scc0 {name}_evc')
        if dep3 < 4:
            a(f's_sub_u32 {sr(sT)}, {sr(sI)}, {sr(sJ)}')
            a(f's_cmp_ge_u32 {sr(sT)}, {dep3}')
            a(f's_cbranch_scc1 {name}_evc')
        read_rdy()
        a(f's_cbranch_scc0 {name}_evn')
        for i in range(4):
            if i < 3:
                a(f's_cmp_eq_u32 {sr(sI)}, {i}')
                a(f's_cbranch_scc0 {name}_evt{i}')
            if opts.get('p3p', 1) & 1: a(f's_setprio {3 - i}')
            loads(i)
            a(f's_mov_b32 {sr(sI)}, {i+1}')
            a(f's_branch {name}_ev')
            a.label(f'{name}_evt{i}')
        a.label(f'{name}_evn')
        a(LANDED)
        a(f's_branch {name}_ev')
        a.label(f'{name}_evc')
        for j in range(4):
            if j < 3:
                a(f's_cmp_eq_u32 {sr(sJ)}, {j}')
                a(f's_cbranch_scc0 {name}_evk{j}')
            if sset == 8 and j in (1, 3): st()
            if opts.get('p3p', 1) & 2: a(f's_setprio {3 - j}')
            for p in range(2):
                for t in range(5):
                    for r in rdW3(p, j, p, t): a(r)
            for k in range(4, j + 1, -1):
                a(f's_cmp_eq_u32 {sr(sI)}, {k}')
                a(f's_cbranch_scc0 {name}_evw{j}_{k}')
                a(f's_waitcnt vmcnt({6*(k-j-1)})')
                a(f's_branch {name}_evx{j}')
                a.label(f'{name}_evw{j}_{k}')
            a('s_waitcnt vmcnt(0)')
            a.label(f'{name}_evx{j}')
            if sset == 3 and j in (0, 3): st()
            if j in (0, 3): st6(1)
            if sset == 8 and j == 3: st()
            for p in range(5):
                fs = p % 2
                a(f's_waitcnt lgkmcnt({10 if p < 4 else 0})')
                for t in range(5):
                    a(f'v_mfma_f32_16x16x32_bf16 {vr(acc3[t],4)}, {vr(Wg[fs][t],4)}, {vr(A[j][p],4)}, {vr(acc3[t],4)}')
                    if p + 2 < 5:
                        for r in rdW3(fs, j, p + 2, t): a(r)
            if sset == 8 and j in (1, 3): st()
            if j < 3:
                a(f's_mov_b32 {sr(sJ)}, {j+1}')
                a(f's_branch {name}_ev')
                a.label(f'{name}_evk{j}')
    else:
        st0()
        steps = [(j, p) for j in range(4) for p in range(5)]
        for j in range(4):
            take_group(j)
        for n in range(2):
            for t in range(5):
                for r in rdW3(n, *steps[n], t): a(r)
        left = {0: 5, 1: 3, 2: 2, 3: 0, 4: 0}
        for n, (j, p) in enumerate(steps):
            fs = n % 2
            a(f's_waitcnt vmcnt({6*(3-j) + left[p]}) lgkmcnt({10 if n < 19 else 0})')
            if sset == 3 and n in (0, 18): st()
            for t in range(5):
                a(f'v_mfma_f32_16x16x32_bf16 {vr(acc3[t],4)}, {vr(Wg[fs][t],4)}, {vr(A[j][p],4)}, {vr(acc3[t],4)}')
                if n + 2 < 20:
                    for r in rdW3(fs, *steps[n+2], t): a(r)

    a('s_nop 3')
    st0()
    if sset == 3: st()
    OUTF = {0: '', 1: ' nt', 2: ' sc1', 3: ' sc0 sc1', 4: ' sc1 nt', 5: ' sc0 sc1 nt'}[opts.get('outf', 2)]
    if opts.get('ow', 1):
        for t in range(5):
            a(f'v_cvt_pk_bf16_f32 {vr(acc3[t])}, {vr(acc3[t])}, {vr(acc3[t]+1)}')
            a(f'v_cvt_pk_bf16_f32 {vr(acc3[t]+1)}, {vr(acc3[t]+2)}, {vr(acc3[t]+3)}')
            a(f'ds_write_b64 {vr(vOw)}, {vr(acc3[t],2)} offset:{t*32}')
        a('s_waitcnt lgkmcnt(0)')
        for k in range(3):
            a(f'ds_read_b128 {vr(Wg[0][k],4)}, {vr(vOr)} offset:{k*1024}')
        for k in range(3):
            a(f's_waitcnt lgkmcnt({2-k})')
            a(f'buffer_store_dwordx4 {vr(Wg[0][k],4)}, {vr(vOs[k])}, {sr(SOUT,4)}, {sr(sOo)} offen{OUTF}')
    else:
        for t in range(5):
            a(f'v_cvt_pk_bf16_f32 {vr(acc3[t])}, {vr(acc3[t])}, {vr(acc3[t]+1)}')
            a(f'v_cvt_pk_bf16_f32 {vr(acc3[t]+1)}, {vr(acc3[t]+2)}, {vr(acc3[t]+3)}')
            a(f'buffer_store_dwordx2 {vr(acc3[t],2)}, {vr(vOo)}, {sr(SOUT,4)}, 0 offen offset:{t*32}{OUTF}')

    if sset == 5:
        st(); st()
    if dbgt:
        a('s_waitcnt vmcnt(0)')
        rts(5)
        a('s_mov_b64 exec, 1')
        a(f's_not_b32 s62, s62')
        for k in range(6):
            a(f'v_mov_b32 {vr(vT0)}, {4+4*k}')
            a(f'v_mov_b32 {vr(vT1)}, s{62+2*k}')
            a(f'buffer_atomic_umax {vr(vT1)}, {vr(vT0)}, {sr(SDBG,4)}, 0 offen')
            a('s_nop 1')
    if st.on:
        a('s_waitcnt vmcnt(0)')
    st(); st.rt(); st.flush(sW)
    n_total = st.n
    iw = opts.get('iw', 0)
    nseg = 0
    if iw:
        import re as _re
        def nbytes(l):
            l = l.strip()
            if not l or l.endswith(':') or l.startswith((';', '.')): return 0
            op = l.split()[0]
            if op.startswith(('ds_', 'buffer_', 'global_', 'v_mfma', 'v_smfmac', 'v_pk_', 'v_cvt_pk', 'v_lshl_add', 'v_add3', 'v_mad', 'v_bfe', 'v_readfirstlane_x')) or '_e64' in op or '_dpp' in op: return 8
            return 8 if _re.search(r'(?<![\w\[:])(0x[0-9a-f]{3,}|\d{3,})(?![\w\]:])', l.split(None, 1)[1] if ' ' in l else '') and not op.startswith(('s_waitcnt', 's_cbranch', 's_branch')) else 4
        body = a.lines[tail0:]
        out = []; acc_b = iw; k = 0
        SEG = opts.get('iwseg', 6)
        for l in body:
            if acc_b >= iw and nbytes(l):
                out.append(f'{name}_pad{k}:')
                out.append(f'    s_cbranch_execz PADNEXT{k}')
                k += 1; acc_b = 4
            out.append(l); acc_b += nbytes(l)
        for i in range(k):
            tgt = f'{name}_padret' if (i % SEG == SEG - 1 or i == k - 1) else f'{name}_pad{i+1}'
            out = [x.replace(f'PADNEXT{i}', tgt) if x.endswith(f'PADNEXT{i}') else x for x in out]
        a.lines[tail0:] = out
        nseg = (k + SEG - 1) // SEG
        print('pads', k, 'segments', nseg)
    a.label(f'{name}_done')
    a('s_endpgm')

    if nobar:
        for rep in range(unroll):
            a.label(f'{name}_spin{rep}')
            a(f'''ds_read_b64 {vr(vPw,2)}, {vr(vPa)}
s_waitcnt lgkmcnt(0)
v_readfirstlane_b32 {sr(sT)}, {vr(vPw)}''')
            if nobar == 2:
                a(f'''v_readfirstlane_b32 {sr(sT2)}, {vr(vPw+1)}
s_add_u32 {sr(sT2)}, {sr(sT2)}, {1 + opts.get("slack", 0)}
s_min_u32 {sr(sT)}, {sr(sT)}, {sr(sT2)}''')
            a(f'''s_cmp_gt_u32 {sr(sT)}, {sr(sT3)}
s_cbranch_scc0 {name}_spin{rep}
s_branch {name}_spun{rep}''')
    if g1s:
        a.label(f'{name}_g1w')
        a(f'''v_mov_b32 {vr(vT0)}, {LW_G1}
ds_read_b32 {vr(vT0)}, {vr(vT0)}
s_waitcnt lgkmcnt(0)
v_readfirstlane_b32 {sr(sT)}, {vr(vT0)}
s_cmp_eq_u32 {sr(sT)}, 0
s_cbranch_scc1 {name}_g1w
s_branch {name}_g1r''')
    for k, force in enumerate(sigpts):
        a.label(f'{name}_sg{k}')
        if not force:
            a(f'''s_getreg_b32 {sr(sT)}, hwreg(HW_REG_IB_STS)
s_and_b32 {sr(sT)}, {sr(sT)}, 0xc0000f
s_cbranch_scc1 {name}_sgr{k}''')
        sig_code(f'{name}_sgn{k}', 4)
        a(f's_mov_b32 {sr(sSig)}, 0')
        a(f's_branch {name}_sgr{k}')
    a.label(f'{name}_fallback')
    M = [vT4, vT5]
    vVo = vPa
    a(f'''v_cndmask_b32_e64 {vr(Q2[0])}, {vr(Q2[0])}, 0, {sr(sHi,2)}
v_cndmask_b32_e64 {vr(Q2[0]+1)}, {vr(Q2[0]+1)}, 0, {sr(sHi,2)}
v_cndmask_b32_e64 {vr(Q2[1])}, {vr(Q2[1])}, 0, {sr(sHi,2)}
v_cndmask_b32_e64 {vr(Q2[1]+1)}, {vr(Q2[1]+1)}, 0, {sr(sHi,2)}
v_mov_b32 {vr(M[0])}, 0xff800000
v_mov_b32 {vr(M[1])}, 0xff800000
v_mov_b32 {vr(vT1)}, {OOB}
s_lshr_b32 {sr(sT)}, {sr(sW)}, 1
s_mul_i32 {sr(sT)}, {sr(sT)}, 10240
v_subrev_u32 {vr(vT0)}, {sr(sT)}, {vr(vbV)}
v_cmp_eq_u32 vcc, 1, {vr(vmV)}
s_mov_b32 {sr(sT)}, {sr(sKV)}
s_mov_b32 {sr(sG)}, 0
v_cndmask_b32 {vr(vVo)}, {vr(vT1)}, {vr(vT0)}, vcc
s_mov_b64 {sr(sM2,2)}, vcc
s_waitcnt vmcnt(0)''')
    a.label(f'{name}_fb1')
    a(f'''buffer_load_dwordx4 {vr(K1[0],4)}, {vr(vQo)}, {sr(SWS,4)}, {sr(sT)} offen{SC}
buffer_load_dwordx2 {vr(K2[0],2)}, {vr(vQo2)}, {sr(SWS,4)}, {sr(sT)} offen{SC}
s_waitcnt vmcnt(0)''')
    qk16(0, 0); qk16(1, 0); qk8(0, 0); qk8(1, 0)
    a('s_nop 15')
    for t in range(2):
        rowmax(t, vT0)
        a(f'v_max_f32 {vr(M[t])}, {vr(M[t])}, {vr(vT0)}')
    a(f'''s_add_u32 {sr(sT)}, {sr(sT)}, 2560
s_add_u32 {sr(sG)}, {sr(sG)}, 1
s_cmp_lt_u32 {sr(sG)}, 64
s_cbranch_scc1 {name}_fb1''')
    for t in range(2):
        crosshalf(M[t], vT1)
        a(f'v_max_f32 {vr(M[t])}, {vr(M[t])}, {vr(vT1)}')
        for i in range(16):
            a(f'v_mov_b32 {vr(O[t]+i)}, 0')
    a(f's_mov_b32 {sr(sT)}, {sr(sKV)}')
    a(f's_mov_b32 {sr(sG)}, 0')
    a(f'v_mov_b32 {vr(vT1)}, 0x3f803f80')
    a.label(f'{name}_fb2')
    a(f'''buffer_load_dwordx4 {vr(K1[0],4)}, {vr(vQo)}, {sr(SWS,4)}, {sr(sT)} offen{SC}
buffer_load_dwordx2 {vr(K2[0],2)}, {vr(vQo2)}, {sr(SWS,4)}, {sr(sT)} offen{SC}
buffer_load_dwordx4 {vr(V0[0],4)}, {vr(vVo)}, {sr(SWS,4)}, {sr(sT)} offen{SC}
buffer_load_dwordx4 {vr(V1[0],4)}, {vr(vVo)}, {sr(SWS,4)}, {sr(sT)} offen offset:640{SC}
s_waitcnt vmcnt(0)''')
    qk16(0, 0); qk16(1, 0); qk8(0, 0); qk8(1, 0)
    for i in range(4):
        a(f'v_cndmask_b32_e64 {vr(V0[0]+i)}, {vr(vT1)}, {vr(V0[0]+i)}, {sr(sM2,2)}')
        a(f'v_cndmask_b32_e64 {vr(V1[0]+i)}, {vr(vT1)}, {vr(V1[0]+i)}, {sr(sM2,2)}')
    a('s_nop 15')
    for t in range(2):
        for i in range(16):
            a(f'v_sub_f32 {vr(S[t]+i)}, {vr(S[t]+i)}, {vr(M[t])}')
        for i in range(16):
            ex(t, i)
    a('s_nop 1')
    for t in range(2):
        pv(t, 0, 0); pv(t, 0, 1)
    a(f'''s_add_u32 {sr(sT)}, {sr(sT)}, 2560
s_add_u32 {sr(sG)}, {sr(sG)}, 1
s_cmp_lt_u32 {sr(sG)}, 64
s_cbranch_scc1 {name}_fb2''')
    a('s_nop 15')
    a(f's_mov_b32 {sr(sI)}, 1')
    a(f's_branch {name}_store')

    a.label(f'{name}_helper')
    st.n = n_common
    V = VAlloc(VBASE)
    vEp = V(); vL16 = V(); vFl = V()
    VH = V.n
    a('s_setprio 3')
    a(SRDS)
    if opts.get('cpf', 1) == 2:
        a(f'''s_getpc_b64 {sr(sM,2)}
{name}_pc:
s_sub_u32 {sr(sM)}, {sr(sM)}, {name}_pc - {name}
s_subb_u32 {sr(sM+1)}, {sr(sM+1)}, 0
s_lshr_b32 {sr(sT)}, s2, 3
s_lshl_b32 {sr(sT)}, {sr(sT)}, 6''')
        for i in range(14):
            a(f's_load_dword s{64+i}, {sr(sM,2)}, {sr(sT)}')
            a(f's_add_u32 {sr(sT)}, {sr(sT)}, 2048')
            a(f's_min_u32 {sr(sT)}, {sr(sT)}, {name}_end - {name} - 4')
    elif opts.get('cpf', 1):
        a(f'''s_getpc_b64 {sr(sM,2)}
{name}_pc:
s_sub_u32 {sr(sM)}, {sr(sM)}, {name}_pc - {name}
s_subb_u32 {sr(sM+1)}, {sr(sM+1)}, 0
s_lshr_b32 {sr(sT)}, s2, 3
v_lshlrev_b32 {vr(vT0)}, 5, {vr(vLane)}
v_add_u32 {vr(vT0)}, {sr(sT)}, {vr(vT0)}
v_lshlrev_b32 {vr(vT0)}, 7, {vr(vT0)}
v_min_u32 {vr(vT0)}, {name}_end - {name} - 4, {vr(vT0)}
s_mov_b64 exec, 0xfff
global_load_dword {vr(vFl)}, {vr(vT0)}, {sr(sM,2)}
s_mov_b64 exec, -1''')
    elate = opts.get('elate', 0)
    if not elate and not sep:
        a(f'v_mov_b32 {vr(vT0)}, {F_EPOCH}')
        a(f'buffer_load_dword {vr(vEp)}, {vr(vT0)}, {sr(SWS,4)}, 0 offen{SC}')
    stl = opts.get('stl', 0)
    if stl:
        ns = max(ns, 72)
        if stl & 1:
            a(f's_mul_i32 {sr(sT)}, {sr(sMt3)}, {128*2560}')
            a(f's_load_dword s64, {sr(SOUT,2)}, {sr(sT)}')
            a(f's_add_u32 {sr(sT)}, {sr(sT)}, {128*2560-4}')
            a(f's_load_dword s65, {sr(SOUT,2)}, {sr(sT)}')
        if stl & 2:
            a(f's_load_dword s66, {sr(SWO,2)}, 0')
        if stl & 4:
            a(f's_load_dword s67, {sr(SWS,2)}, {sr(sKV)}')
            a(f's_add_u32 {sr(sT)}, {sr(sKV)}, {4*KV_HEAD-4}')
            a(f's_load_dword s68, {sr(SWS,2)}, {sr(sT)}')
        if stl & 8:
            for k, m in ((69, sMt), (70, sMt3)):
                a(f's_lshl_b32 {sr(sT)}, {sr(sB)}, 4')
                a(f's_add_u32 {sr(sT)}, {sr(sT)}, {sr(m)}')
                a(f's_mul_i32 {sr(sT)}, {sr(sT)}, {2*32*2560}')
                a(f's_add_u32 {sr(sT)}, {sr(sT)}, {F_WS_O}')
                a(f's_load_dword s{k}, {sr(SWS,2)}, {sr(sT)}')
    tlb = opts.get('tlb', 0)
    if tlb & 1:
        a(f'''v_lshlrev_b32 {vr(vT1)}, 18, {vr(vLane)}
buffer_load_dword {vr(vFl)}, {vr(vT1)}, {sr(SWS,4)}, 0 offen''')
    if tlb & 2:
        a(f'''v_lshlrev_b32 {vr(vT1)}, 18, {vr(vLane)}
buffer_load_dword {vr(vT2)}, {vr(vT1)}, {sr(SOUT,4)}, 0 offen
buffer_load_dword {vr(vT3)}, {vr(vT1)}, {sr(SWO,4)}, 0 offen''')
    if tlb & 4:
        a(f'''v_lshlrev_b32 {vr(vT1)}, 21, {vr(vLane)}
buffer_load_dword {vr(vFl)}, {vr(vT1)}, {sr(SWS,4)}, 0 offen
buffer_load_dword {vr(vT4)}, {vr(vT1)}, {sr(SOUT,4)}, 0 offen
buffer_load_dword {vr(vT5)}, {vr(vT1)}, {sr(SWO,4)}, 0 offen''')
    a(f'v_lshlrev_b32 {vr(vL16)}, 4, {vr(vLane)}')
    vP = V(); vC8 = V(8); vPwa = V(); vFu = V(); vPo1 = V(); vPo2 = V(); vPo = V(); vLw = V()
    vW3 = [V() for _ in range(5)]
    vPf = [V() for _ in range(4)]
    vHX = [V() for _ in range(4)]
    vHW = [V() for _ in range(15)]
    vIx = V(); vIw = V(); vSx = V(); vSw = V(); vJ = [V() for _ in range(6)]
    done_alloc(V)
    if stag:
        a(f'''s_lshr_b32 {sr(sT)}, s2, 3
s_and_b32 {sr(sT2)}, s2, 1
s_lshl_b32 {sr(sT2)}, {sr(sT2)}, 5
s_add_u32 {sr(sT2)}, {sr(sT2)}, {sr(sT)}
s_lshl_b32 {sr(sT2)}, {sr(sT2)}, 5
v_and_b32 {vr(vT0)}, 31, {vr(vLane)}
v_add_u32 {vr(vT2)}, {sr(sT2)}, {vr(vT0)}
v_mul_u32_u24 {vr(vT2)}, 1280, {vr(vT2)}
v_lshrrev_b32 {vr(vT1)}, 5, {vr(vLane)}
v_lshl_add_u32 {vr(vIx)}, {vr(vT1)}, 7, {vr(vT2)}
buffer_load_dword {vr(vJ[0])}, {vr(vIx)}, {sr(SX,4)}, 0 offen
v_cmp_le_u32 vcc, 15, {vr(vT0)}
s_lshl_b32 {sr(sT)}, {sr(sT)}, 1
s_bfe_u32 {sr(sT2)}, s2, 0x10001
v_cndmask_b32_e64 {vr(vT2)}, 0, 1, vcc
v_mul_u32_u24 {vr(vT3)}, 15, {vr(vT2)}
v_sub_u32 {vr(vT3)}, {vr(vT0)}, {vr(vT3)}
v_lshl_add_u32 {vr(vT2)}, {vr(vT1)}, 6, {vr(vT2)}
v_add_u32 {vr(vT2)}, {sr(sT)}, {vr(vT2)}
v_mul_u32_u24 {vr(vT2)}, 3840, {vr(vT2)}
v_mul_u32_u24 {vr(vT4)}, 52, {vr(vT3)}
v_lshrrev_b32 {vr(vT4)}, 8, {vr(vT4)}
v_mul_u32_u24 {vr(vT4)}, {1280-640}, {vr(vT4)}
v_lshl_add_u32 {vr(vT4)}, {vr(vT3)}, 7, {vr(vT4)}
s_mul_i32 {sr(sT2)}, {sr(sT2)}, 640
v_add3_u32 {vr(vIw)}, {vr(vT2)}, {vr(vT4)}, {sr(sT2)}
v_cmp_le_u32 vcc, 30, {vr(vT0)}
v_mov_b32 {vr(vT2)}, {OOB}
s_mov_b32 {sr(sT)}, {128*3840}
v_cndmask_b32 {vr(vIw)}, {vr(vIw)}, {vr(vT2)}, vcc
buffer_load_dword {vr(vJ[1])}, {vr(vIw)}, {sr(SWQ,4)}, 0 offen''')
        if stag >= 2:
            a(f'buffer_load_dword {vr(vJ[2])}, {vr(vIx)}, {sr(SX,4)}, 0 offen offset:256')
            a(f'buffer_load_dword {vr(vJ[3])}, {vr(vIw)}, {sr(SWQ,4)}, {sr(sT)} offen')
        a(f'''s_bfe_u32 {sr(sT)}, s2, 0x30003
s_and_b32 {sr(sI)}, s2, 1
s_lshl_b32 {sr(sI)}, {sr(sI)}, 3
s_add_u32 {sr(sI)}, {sr(sI)}, {sr(sT)}
s_lshl_b32 {sr(sI)}, {sr(sI)}, 7
v_add_u32 {vr(vT0)}, {sr(sI)}, {vr(vLane)}
v_mul_u32_u24 {vr(vSx)}, 1280, {vr(vT0)}
v_mul_u32_u24 {vr(vT1)}, 4370, {vr(vLane)}
v_lshrrev_b32 {vr(vT1)}, 16, {vr(vT1)}
v_mul_u32_u24 {vr(vT2)}, 15, {vr(vT1)}
v_sub_u32 {vr(vT3)}, {vr(vLane)}, {vr(vT2)}
s_lshl_b32 {sr(sT)}, {sr(sT)}, 3
v_add_u32 {vr(vT1)}, {sr(sT)}, {vr(vT1)}
v_mul_u32_u24 {vr(vT1)}, 3840, {vr(vT1)}
v_mul_u32_u24 {vr(vT4)}, 52, {vr(vT3)}
v_lshrrev_b32 {vr(vT4)}, 8, {vr(vT4)}
v_mul_u32_u24 {vr(vT4)}, {1280-640}, {vr(vT4)}
v_lshl_add_u32 {vr(vT4)}, {vr(vT3)}, 7, {vr(vT4)}
v_add3_u32 {vr(vSw)}, {vr(vT1)}, {vr(vT4)}, {sr(sT2)}
v_cmp_le_u32 vcc, 60, {vr(vLane)}
v_mov_b32 {vr(vT2)}, {OOB}
s_lshr_b32 {sr(sM0a)}, s2, 6
v_cndmask_b32 {vr(vSw)}, {vr(vSw)}, {vr(vT2)}, vcc''')
    sgid = [0]
    def stag_pf():
        if not stag: return
        n = sgid[0]; sgid[0] += 1
        AH = opts.get('ahead', 2)
        a(f'''s_add_u32 {sr(sT)}, {sr(sKK)}, {1 + AH}
s_and_b32 {sr(sT2)}, {sr(sT)}, 3
s_cmp_eq_u32 {sr(sT2)}, {sr(sM0a)}
s_cselect_b32 {sr(sT2)}, {sr(sT)}, 99
s_cmp_lt_u32 {sr(sT2)}, {2*stag}
s_cselect_b32 {sr(sT2)}, 99, {sr(sT2)}
s_cmp_lt_u32 {sr(sT2)}, 10
s_cbranch_scc0 {name}_sp{n}
s_lshl_b32 {sr(sT2)}, {sr(sT)}, 7
buffer_load_dword {vr(vJ[0])}, {vr(vSx)}, {sr(SX,4)}, {sr(sT2)} offen
s_add_u32 {sr(sT2)}, {sr(sT2)}, {64*1280}
buffer_load_dword {vr(vJ[1])}, {vr(vSx)}, {sr(SX,4)}, {sr(sT2)} offen
s_mul_i32 {sr(sT2)}, {sr(sT)}, {64*3840}
buffer_load_dword {vr(vJ[2])}, {vr(vSw)}, {sr(SWQ,4)}, {sr(sT2)} offen
s_add_u32 {sr(sT2)}, {sr(sT2)}, {4*3840}
buffer_load_dword {vr(vJ[3])}, {vr(vSw)}, {sr(SWQ,4)}, {sr(sT2)} offen''')
        a.label(f'{name}_sp{n}')
    a(f'''{XROW}
v_lshrrev_b32 {vr(vT0)}, 3, {vr(vLane)}
v_add_u32 {vr(vT0)}, {sr(sT)}, {vr(vT0)}
v_mul_u32_u24 {vr(vT0)}, 1280, {vr(vT0)}
v_lshrrev_b32 {vr(vT1)}, 4, {vr(vLane)}
v_and_b32 {vr(vT3)}, 7, {vr(vLane)}
v_xor_b32 {vr(vT2)}, {vr(vT1)}, {vr(vT3)}
v_lshl_add_u32 {vr(vHX[0])}, {vr(vT2)}, 4, {vr(vT0)}
v_xor_b32 {vr(vT2)}, 64, {vr(vHX[0])}
v_add_u32 {vr(vHX[1])}, {10240-1024}, {vr(vT2)}
v_add_u32 {vr(vHX[2])}, {2*(10240-1024)}, {vr(vHX[0])}
v_add_u32 {vr(vHX[3])}, {3*(10240-1024)}, {vr(vT2)}''')
    for pi in range(15):
        a(f's_sub_u32 {sr(sT)}, {sr(sT3)}, {(pi%4)*1024}')
        w_pattern(vHW[pi], f'v_add_u32 {vr(vT0)}, {64*pi}, {vr(vLane)}', sr(sT))
    def next_k():
        a(f'''s_add_u32 {sr(sKK)}, {sr(sKK)}, 1
s_cmp_eq_u32 {sr(sKK)}, 10
s_cselect_b32 {sr(sKK)}, 0, {sr(sKK)}
s_lshl_b32 {sr(sXo)}, {sr(sKK)}, 7
s_mul_i32 {sr(sWo)}, {sr(sKK)}, {64*3840}''')
    def issue_x():
        for jj in range(8 if opts.get('hack64') else 16):
            if jj % 4 == 0:
                a(f's_add_u32 m0, {sr(sSlot)}, {jj*1024}')
                a(f's_add_u32 {sr(sT)}, {sr(sXo)}, {jj*10240}')
            a(f'buffer_load_dwordx4 {vr(vHX[jj%4])}, {sr(SX,4)}, {sr(sT)} offen offset:{(jj%4)*1024} lds')
    def issue_w():
        for half in range(2):
            for pi in range(15):
                if pi % 4 == 0:
                    a(f's_add_u32 m0, {sr(sSlot)}, {XSZ + half*15360 + pi*1024}')
                    a(f's_add_u32 {sr(sT)}, {sr(sWo)}, {half*32*3840}')
                a(f'buffer_load_dwordx4 {vr(vHW[pi])}, {sr(SWQ,4)}, {sr(sT)} offen offset:{(pi%4)*1024} lds')
    def issue_stage():
        stag_pf(); next_k(); issue_x(); issue_w()
        a(f'''s_add_u32 {sr(sSlot)}, {sr(sSlot)}, {STG}
s_cmp_ge_u32 {sr(sSlot)}, {3*STG}
s_cselect_b32 {sr(sSlot)}, 0, {sr(sSlot)}''')
    pfw = opts.get('pfw', 0) and not stag and not opts.get('rot0')
    if pfw:
        a(f'''s_lshr_b32 {sr(sT)}, s2, 6
s_mul_i32 {sr(sT)}, {sr(sT)}, 3
s_add_u32 {sr(sT)}, {sr(sT)}, 8
s_bfe_u32 {sr(sT2)}, s2, 0x30003
s_lshr_b32 {sr(sI)}, {sr(sT2)}, 2
s_add_u32 {sr(sT)}, {sr(sT)}, {sr(sI)}
s_cmp_ge_u32 {sr(sT)}, 10
s_cselect_b32 {sr(sI)}, 10, 0
s_sub_u32 {sr(sT)}, {sr(sT)}, {sr(sI)}
s_lshl_b32 {sr(sT)}, {sr(sT)}, 6
s_and_b32 {sr(sT2)}, {sr(sT2)}, 3
s_lshl_b32 {sr(sT2)}, {sr(sT2)}, 4
s_add_u32 {sr(sT)}, {sr(sT)}, {sr(sT2)}
s_mul_i32 {sr(sT)}, {sr(sT)}, 3840
s_add_u32 {sr(sRdy)}, {sr(sT)}, {sr(sT3)}
v_lshrrev_b32 {vr(vT0)}, 3, {vr(vLane)}
v_mul_u32_u24 {vr(vT0)}, 3840, {vr(vT0)}
v_bfe_u32 {vr(vT1)}, {vr(vLane)}, 1, 2
v_mul_u32_u24 {vr(vT2)}, 1280, {vr(vT1)}
v_and_b32 {vr(vT3)}, 1, {vr(vLane)}
v_mul_u32_u24 {vr(vT3)}, 156, {vr(vT3)}
v_add3_u32 {vr(vT0)}, {vr(vT0)}, {vr(vT2)}, {vr(vT3)}
v_cmp_eq_u32 vcc, 3, {vr(vT1)}
v_mov_b32 {vr(vT2)}, {OOB}
s_nop 0
v_cndmask_b32 {vr(vPo)}, {vr(vT0)}, {vr(vT2)}, vcc''')
    a(f's_mov_b32 {sr(sSlot)}, {STG}')
    st1()
    a('s_barrier')
    st1()
    if elate and not sep:
        a(f'v_mov_b32 {vr(vT0)}, {F_EPOCH}')
        a(f'buffer_load_dword {vr(vEp)}, {vr(vT0)}, {sr(SWS,4)}, 0 offen{SC}')
    if pfw:
        a(f'buffer_load_dword {vr(vPf[0])}, {vr(vPo)}, {sr(SWQ,4)}, {sr(sRdy)} offen')
        a(f's_add_u32 {sr(sRdy)}, {sr(sRdy)}, {8*3840}')
        a(f'buffer_load_dword {vr(vPf[1])}, {vr(vPo)}, {sr(SWQ,4)}, {sr(sRdy)} offen')
    if opts.get('xfirst', 0):
        next_k(); issue_x()
        a(f's_mov_b32 {sr(sSrc)}, {sr(sWo)}')
        a(f's_mov_b32 {sr(sSlot)}, {2*STG}')
        next_k(); issue_x()
        st1()
        if opts.get('xfirst') == 1: a('s_barrier')
        a(f's_mov_b32 {sr(sSlot)}, {STG}')
        a(f's_mov_b32 {sr(sI)}, {sr(sWo)}')
        a(f's_mov_b32 {sr(sWo)}, {sr(sSrc)}')
        issue_w()
        if opts.get('xfirst') == 2: a('s_barrier')
        a(f's_mov_b32 {sr(sSlot)}, {2*STG}')
        a(f's_mov_b32 {sr(sWo)}, {sr(sI)}')
        issue_w()
        a(f's_mov_b32 {sr(sSlot)}, 0')
        a('s_waitcnt vmcnt(30)')
        a('s_barrier')
        st1()
        a(f's_mov_b32 {sr(sI)}, 1')
    else:
        issue_stage()
        st1()
        a('s_barrier')
        st1()
        a(f's_mov_b32 {sr(sI)}, 0')
    a.label(f'{name}_hg')
    issue_stage()
    a(f's_waitcnt vmcnt({38 if opts.get("hack64") else 46})')
    a('s_barrier')
    a(f's_add_u32 {sr(sI)}, {sr(sI)}, 1')
    a(f's_cmp_lt_u32 {sr(sI)}, 8')
    a(f's_cbranch_scc1 {name}_hg')
    st1()
    a(f'''s_lshl_b32 {sr(sT)}, {sr(sB)}, 3
s_add_u32 {sr(sT)}, {sr(sT)}, {sr(sHg)}
s_lshl_b32 {sr(sT)}, {sr(sT)}, 8
s_add_u32 {sr(sT)}, {sr(sT)}, {F_FLAG1}
s_mov_b32 {sr(sM0a)}, {sr(sT)}
{f's_lshl_b32 {sr(sM0a)}, {sr(sB)}, 3' if rep_ else 's_nop 0'}
{f's_add_u32 {sr(sM0a)}, {sr(sM0a)}, {sr(sHg)}' if rep_ else 's_nop 0'}
{f's_lshl_b32 {sr(sM0a)}, {sr(sM0a)}, 4' if rep_ else 's_nop 0'}
{f's_add_u32 {sr(sM0a)}, {sr(sM0a)}, {sr(sMt)}' if rep_ else 's_nop 0'}
{f's_lshl_b32 {sr(sM0a)}, {sr(sM0a)}, 7' if rep_ else 's_nop 0'}
{f's_add_u32 {sr(sM0a)}, {sr(sM0a)}, {F_R1}' if rep_ else 's_nop 0'}
v_lshl_add_u32 {vr(vT0)}, {vr(vLane)}, 2, {sr(sT)}
v_cmp_gt_u32 vcc, 16, {vr(vLane)}
v_mov_b32 {vr(vT1)}, {OOB}
s_lshl_b32 {sr(sT)}, {sr(sB)}, 4
v_cndmask_b32 {vr(vPo1)}, {vr(vT1)}, {vr(vT0)}, vcc
s_add_u32 {sr(sT)}, {sr(sT)}, {sr(sMt3)}
s_lshl_b32 {sr(sT)}, {sr(sT)}, 8
s_add_u32 {sr(sT)}, {sr(sT)}, {F_FLAG2}
s_mov_b32 {sr(sM0b)}, {sr(sT)}
{f's_lshl_b32 {sr(sM0b)}, {sr(sB)}, 4' if rep_ else 's_nop 0'}
{f's_add_u32 {sr(sM0b)}, {sr(sM0b)}, {sr(sMt3)}' if rep_ else 's_nop 0'}
{f's_lshl_b32 {sr(sM0b)}, {sr(sM0b)}, 3' if rep_ else 's_nop 0'}
{f's_add_u32 {sr(sM0b)}, {sr(sM0b)}, {sr(sCg)}' if rep_ else 's_nop 0'}
{f's_lshl_b32 {sr(sM0b)}, {sr(sM0b)}, 7' if rep_ else 's_nop 0'}
{f's_add_u32 {sr(sM0b)}, {sr(sM0b)}, {F_R2}' if rep_ else 's_nop 0'}
v_lshl_add_u32 {vr(vT0)}, {vr(vLane)}, 2, {sr(sT)}
v_cmp_gt_u32 vcc, 8, {vr(vLane)}
v_mov_b32 {vr(vLw)}, {LW_RDY}
s_mul_i32 {sr(sT3)}, {sr(sCg)}, 160
v_cndmask_b32 {vr(vPo2)}, {vr(vT1)}, {vr(vT0)}, vcc''')
    for r in range(5):
        a(f'''v_add_u32 {vr(vT0)}, {64*r}, {vr(vLane)}
v_mul_u32_u24 {vr(vT1)}, 6554, {vr(vT0)}
v_lshrrev_b32 {vr(vT1)}, 16, {vr(vT1)}
v_mul_u32_u24 {vr(vT1)}, {1280-160}, {vr(vT1)}
v_lshl_add_u32 {vr(vT0)}, {vr(vT0)}, 4, {vr(vT1)}
v_add_u32 {vr(vT0)}, {sr(sT3)}, {vr(vT0)}
v_subrev_u32 {vr(vW3[r])}, {(r%4)*1024}, {vr(vT0)}''')
    a(f'''s_lshr_b32 {sr(sT)}, s2, 3
s_mul_i32 {sr(sT)}, {sr(sT)}, {20*1280}
v_lshl_add_u32 {vr(vT0)}, {vr(vLane)}, 7, {sr(sT)}
v_cmp_gt_u32 vcc, 50, {vr(vLane)}
v_mov_b32 {vr(vT1)}, {OOB}
s_mov_b32 {sr(sRdy)}, 0
v_cndmask_b32 {vr(vPo)}, {vr(vT1)}, {vr(vT0)}, vcc
{'s_waitcnt lgkmcnt(0)' if sep else f'v_readfirstlane_b32 {sr(sTag)}, {vr(vEp)}'}
s_lshl_b32 {sr(sDone)}, 1, {sr(sMt)}
s_waitcnt vmcnt({15 if hsplit else 0})
s_add_u32 {sr(sTag)}, {sr(sTag)}, {TAGK}
s_barrier''')
    if early == 1:
        a(f'buffer_load_dword {vr(vP)}, {vr(vPo1)}, {sr(SWS,4)}, 0 offen{SC}')
    a(f'''v_bfe_u32 {vr(vT2)}, {vr(vLane)}, 1, 2
v_mul_u32_u24 {vr(vT2)}, 2560, {vr(vT2)}
v_and_b32 {vr(vT3)}, 1, {vr(vLane)}
v_mul_u32_u24 {vr(vT3)}, 640, {vr(vT3)}
v_add_u32 {vr(vT2)}, {vr(vT2)}, {vr(vT3)}
v_add_u32 {vr(vT2)}, {ONES}, {vr(vT2)}
v_mov_b32 {vr(vC8)}, 0x3f803f80
v_mov_b32 {vr(vC8+1)}, 0x3f803f80
v_mov_b32 {vr(vC8+2)}, 0x3f803f80
v_mov_b32 {vr(vC8+3)}, 0x3f803f80
v_mov_b32 {vr(vC8+4)}, 0
v_mov_b32 {vr(vC8+5)}, 0
v_mov_b32 {vr(vC8+6)}, 0
v_mov_b32 {vr(vC8+7)}, 0
s_mov_b32 {sr(sI)}, 1
s_mov_b32 {sr(sSlot)}, {phys(1)*SLOT}
s_waitcnt vmcnt(0)''')
    if hsplit: a('s_barrier')
    def lds_init():
        a(f'''s_barrier
ds_write_b128 {vr(vT2)}, {vr(vC8,4)}
ds_write_b128 {vr(vT2)}, {vr(vC8+4,4)} offset:16
ds_write_b128 {vr(vLw)}, {vr(vC8+4,4)}
ds_write_b128 {vr(vLw)}, {vr(vC8+4,4)} offset:16''')
    def e_bars():
        a('s_waitcnt lgkmcnt(0)')
        a('s_barrier')
        if not one_e: a('s_barrier')
    gid = [0]
    def smask(n, off, dst):
        SB_ = 80 if st.on else 64
        a(f's_load_dwordx{n} s[{SB_}:{SB_-1+n}], s[6:7], {sr(off)} glc')
        a(f's_mov_b32 {sr(dst)}, 0')
        a('s_waitcnt lgkmcnt(0)')
        for i in range(n - 1, -1, -1):
            a(f's_cmp_eq_u32 s{SB_+i}, {sr(sTag)}')
            a(f's_addc_u32 {sr(dst)}, {sr(dst)}, {sr(dst)}')
    if spoll: ns = max(ns, 80)
    def issue_group(qmajor=False):
        n = gid[0]; gid[0] += 1
        a(f'''s_andn2_b32 {sr(sT)}, {sr(sRdy)}, {sr(sDone)}
s_cbranch_scc1 {name}_pd{n}
s_mov_b32 {sr(sCnt)}, {POLL_LIMIT}''')
        a.label(f'{name}_pl{n}')
        if spoll & 1:
            smask(16, sM0a, sRdy)
        else:
            a(f'''buffer_load_dword {vr(vP)}, {vr(vPo1)}, {sr(SWS,4)}, 0 offen{SC}
s_waitcnt vmcnt(0)
v_cmp_eq_u32 vcc, {sr(sTag)}, {vr(vP)}
s_and_b32 {sr(sRdy)}, vcc_lo, 0xffff''')
        a(f'''s_andn2_b32 {sr(sT)}, {sr(sRdy)}, {sr(sDone)}
s_cbranch_scc1 {name}_pd{n}
{'s_sleep 1' if opts.get('sl1', 0) else 's_nop 0'}
s_sub_u32 {sr(sCnt)}, {sr(sCnt)}, 1
s_cmp_lg_u32 {sr(sCnt)}, 0
s_cbranch_scc1 {name}_pl{n}
s_mov_b32 {sr(sRdy)}, 0xffff
s_andn2_b32 {sr(sT)}, {sr(sRdy)}, {sr(sDone)}''')
        a.label(f'{name}_pd{n}')
        g_select(); g_loads(0, 40, qmajor); g_finish()
    def g_select():
        a(f'''s_lshl_b32 {sr(sT2)}, {sr(sT)}, 16
s_or_b32 {sr(sT)}, {sr(sT)}, {sr(sT2)}
s_lshr_b32 {sr(sT)}, {sr(sT)}, {sr(sMt)}
s_ff1_i32_b32 {sr(sT)}, {sr(sT)}
s_add_u32 {sr(sNeed)}, {sr(sT)}, {sr(sMt)}
s_and_b32 {sr(sNeed)}, {sr(sNeed)}, 15
s_bitset1_b32 {sr(sDone)}, {sr(sNeed)}
s_mul_i32 {sr(sT)}, {sr(sNeed)}, 10240
s_add_u32 {sr(sSrc)}, {sr(sKV)}, {sr(sT)}''')
    def g_loads(lo, hi, qmajor=False):
        order = [(hs, q) for hs in range(4) for q in range(10)]
        if qmajor:
            order = [(hs, q) for hs in range(4) for q in range(8)] + [(hs, q) for hs in range(4) for q in (8, 9)]
        for hs, q in order[lo:hi]:
            if q % 4 == 0:
                a(f's_add_u32 m0, {sr(sSlot)}, {hs*10240 + q*1024}')
                a(f's_add_u32 {sr(sT)}, {sr(sSrc)}, {hs*KV_HEAD + q*1024}')
            a(f'buffer_load_dwordx4 {vr(vL16)}, {sr(SWS,4)}, {sr(sT)} offen offset:{(q%4)*1024}{SLD} lds')
    def g_finish():
        if early:
            a(f'''s_sub_u32 {sr(sSlot)}, {sr(sSlot)}, {SLOT}
s_cselect_b32 {sr(sSlot)}, {2*SLOT}, {sr(sSlot)}
s_add_u32 {sr(sI)}, {sr(sI)}, 1''')
        else:
            a(f'''s_add_u32 {sr(sSlot)}, {sr(sSlot)}, {SLOT}
s_cmp_ge_u32 {sr(sSlot)}, {3*SLOT}
s_cselect_b32 {sr(sSlot)}, 0, {sr(sSlot)}
s_add_u32 {sr(sI)}, {sr(sI)}, 1''')
    if 'hprio' in opts: a(f's_setprio {opts["hprio"]}')
    wq = [0]
    def wait_prog(val):
        n = wq[0]; wq[0] += 1
        a.label(f'{name}_wp{n}')
        a(f'''ds_read_b32 {vr(vP)}, {vr(vPwa)} offset:4
s_waitcnt lgkmcnt(0)
v_cmp_le_u32 vcc, {val}, {vr(vP)}
s_and_b32 {sr(sT)}, vcc_lo, 0x1ff
s_cmp_eq_u32 {sr(sT)}, 0x1ff
s_cbranch_scc1 {name}_wpd{n}
s_sleep 2
s_branch {name}_wp{n}''')
        a.label(f'{name}_wpd{n}')
    def set_full(val):
        a(f'v_mov_b32 {vr(vFu)}, {val}')
        a(f'ds_write_b32 {vr(vPwa)}, {vr(vFu)}')
    if nobar:
        a(f'v_min_u32 {vr(vPwa)}, 8, {vr(vLane)}')
        a(f'v_lshlrev_b32 {vr(vPwa)}, 3, {vr(vPwa)}')
        a(f'v_add_u32 {vr(vPwa)}, {LW_PW}, {vr(vPwa)}')
    if early:
        if early == 1:
            a(f'''v_cmp_eq_u32 vcc, {sr(sTag)}, {vr(vP)}
s_and_b32 {sr(sRdy)}, vcc_lo, 0xffff''')
        else:
            smask(16, sM0a, sRdy)
        a(f'''s_andn2_b32 {sr(sT)}, {sr(sRdy)}, {sr(sDone)}
s_cbranch_scc0 {name}_ne''')
        g_select(); g_loads(0, 20)
        lds_init()
        g_loads(20, 40); g_finish()
        e_bars()
        a(f's_branch {name}_g1d')
        a.label(f'{name}_ne')
    lds_init()
    if early in (2, 3):
        smask(16, sM0a, sRdy)
        a(f'''s_andn2_b32 {sr(sT)}, {sr(sRdy)}, {sr(sDone)}
s_cbranch_scc0 {name}_ne2''')
        g_select(); g_loads(0, 40 if early == 2 else 24)
        if early == 2:
            g_finish(); e_bars()
        else:
            a('s_barrier')
            g_loads(24, 40); g_finish()
            a('s_barrier')
        a(f's_branch {name}_g1d')
        a.label(f'{name}_ne2')
    e_bars()
    issue_group(g1s)
    a.label(f'{name}_g1d')
    st0()
    if g1s:
        a('s_waitcnt vmcnt(8)')
        a('s_barrier')
        a(f'v_mov_b32 {vr(vP)}, 1')
        a('s_waitcnt vmcnt(0)')
        a(f'ds_write_b32 {vr(vLw)}, {vr(vP)} offset:16')
        issue_group()
    elif opts.get('b1', 1) and not nobar:
        a('s_waitcnt vmcnt(0)')
        a('s_barrier')
        issue_group()
    a.label(f'{name}_hl')
    if nobar:
        a('s_waitcnt vmcnt(0)')
        set_full(sr(sI))
        a(f's_max_u32 {sr(sSrc)}, {sr(sI)}, 2')
        a(f's_sub_u32 {sr(sSrc)}, {sr(sSrc)}, 2')
        wait_prog(sr(sSrc))
        issue_group()
    else:
        issue_group()
        a('s_waitcnt vmcnt(40)')
        a('s_barrier')
        if sset == 5 and st.on:
            for K in (5, 15):
                a(f's_cmp_eq_u32 {sr(sI)}, {K}')
                a(f's_cbranch_scc0 {name}_h5{K}')
                st()
                a.label(f'{name}_h5{K}')
    wid = [0]
    def wo_rows(r0, r1, lds):
        n = wid[0]; wid[0] += 1
        a(f's_mov_b32 {sr(sSrc)}, {r0*1280}')
        a(f's_mov_b32 {sr(sT2)}, {lds}')
        a.label(f'{name}_hw{n}x')
        a(f's_mov_b32 m0, {sr(sT2)}')
        a(f's_add_u32 {sr(sT)}, {sr(sT2)}, 4096')
        for r in range(4):
            a(f'buffer_load_dwordx4 {vr(vW3[r])}, {sr(SWO,4)}, {sr(sSrc)} offen offset:{r*1024} lds')
        a(f's_mov_b32 m0, {sr(sT)}')
        a(f's_add_u32 {sr(sT2)}, {sr(sT2)}, 5120')
        a(f'buffer_load_dwordx4 {vr(vW3[4])}, {sr(SWO,4)}, {sr(sSrc)} offen lds')
        a(f's_add_u32 {sr(sSrc)}, {sr(sSrc)}, {32*1280}')
        a(f's_cmp_lt_u32 {sr(sSrc)}, {r1*1280}')
        a(f's_cbranch_scc1 {name}_hw{n}x')
    if iw:
        first = max(4, 15 - nseg)
        assert first + nseg <= 17
        a('s_mov_b64 exec, 0')
        for g in range(nseg):
            a(f's_cmp_eq_u32 {sr(sI)}, {first + g}')
            a(f's_cbranch_scc1 {name}_pad{g*SEG}')
        a.label(f'{name}_padret')
        a('s_mov_b64 exec, -1')
    a(f's_cmp_eq_u32 {sr(sI)}, 6')
    a(f's_cbranch_scc0 {name}_hnp')
    for q in range(4):
        a(f's_mov_b32 {sr(sT)}, {q*6400}')
        a(f'buffer_load_dword {vr(vPf[q])}, {vr(vPo)}, {sr(SWO,4)}, {sr(sT)} offen')
    a.label(f'{name}_hnp')
    a(f's_cmp_eq_u32 {sr(sI)}, 10')
    a(f's_cbranch_scc0 {name}_hnq')
    wo_rows(480, 640, QST)
    a.label(f'{name}_hnq')
    a(f's_cmp_lt_u32 {sr(sI)}, 16')
    a(f's_cbranch_scc1 {name}_hl')
    if nobar:
        a('s_waitcnt vmcnt(0)')
        set_full(64)
        wait_prog(14)
        wo_rows(0, 256, WO_LO)
        wait_prog(15)
    else:
        if early: wo_rows(256, 480, WO_LO + 40960)
        else: wo_rows(0, 256, WO_LO)
        a(f's_waitcnt vmcnt({35 if early else 40})')
        a('s_barrier')
    if early: wo_rows(0, 256, WO_LO)
    else: wo_rows(256, 480, WO_LO + 40960)
    a(f'''s_lshl_b32 {sr(sT)}, {sr(sB)}, 4
s_add_u32 {sr(sT)}, {sr(sT)}, {sr(sMt3)}
s_lshl_b32 {sr(sT)}, {sr(sT)}, 1
s_lshr_b32 {sr(sT2)}, {sr(sCg)}, 2
s_add_u32 {sr(sT)}, {sr(sT)}, {sr(sT2)}
s_mul_i32 {sr(sT)}, {sr(sT)}, {32*2560}
s_and_b32 {sr(sT2)}, {sr(sCg)}, 3
s_mul_i32 {sr(sT2)}, {sr(sT2)}, 5120
s_add_u32 {sr(sT)}, {sr(sT)}, {sr(sT2)}
s_add_u32 {sr(sT)}, {sr(sT)}, {F_WS_O}
v_lshl_add_u32 {vr(vT0)}, {vr(vLane)}, 7, {sr(sT)}
v_cmp_gt_u32 vcc, 40, {vr(vLane)}
v_mov_b32 {vr(vT1)}, {OOB}
s_mov_b32 {sr(sDone)}, 0
s_mov_b32 {sr(sCnt)}, {1 if opts.get('cheat', 0) & 2 else POLL_LIMIT}
v_cndmask_b32 {vr(vPo)}, {vr(vT1)}, {vr(vT0)}, vcc''')
    pid = [0]
    pfo = opts.get('pfo', 1)
    def poll2():
        if spoll & 2:
            smask(8, sM0b, sNeed)
            a(f'''s_sub_u32 {sr(sCnt)}, {sr(sCnt)}, 1
s_cmp_eq_u32 {sr(sCnt)}, 0
s_cselect_b32 {sr(sT)}, 0xff, {sr(sNeed)}''')
        else:
            a(f'''buffer_load_dword {vr(vP)}, {vr(vPo2)}, {sr(SWS,4)}, 0 offen{SC}
s_sub_u32 {sr(sCnt)}, {sr(sCnt)}, 1
s_waitcnt vmcnt(0)
v_cmp_eq_u32 vcc, {sr(sTag)}, {vr(vP)}
s_cmp_eq_u32 {sr(sCnt)}, 0
s_cselect_b32 {sr(sT)}, 0xff, vcc_lo''')
        a(f'''s_lshr_b32 {sr(sT2)}, {sr(sT)}, 1
s_and_b32 {sr(sT)}, {sr(sT)}, {sr(sT2)}
s_and_b32 {sr(sRdy)}, {sr(sT)}, 0x55''')
        if pfo:
            a(f's_andn2_b32 {sr(sSrc)}, {sr(sRdy)}, {sr(sDone)}')
            a(f's_or_b32 {sr(sDone)}, {sr(sDone)}, {sr(sRdy)}')
            for j in range(4):
                n = pid[0]; pid[0] += 1
                a(f's_bitcmp1_b32 {sr(sSrc)}, {2*j}')
                a(f's_cbranch_scc0 {name}_po{n}')
                a(f's_mov_b32 {sr(sT)}, {j*20480}')
                a(f'buffer_load_dword {vr(vPf[j])}, {vr(vPo)}, {sr(SWS,4)}, {sr(sT)} offen{SC}')
                a.label(f'{name}_po{n}')
            if pfo == 2:
                a('s_waitcnt vmcnt(0)')
        a(f'v_mov_b32 {vr(vP)}, {sr(sRdy)}')
        a(f'ds_write_b32 {vr(vLw)}, {vr(vP)}')
    if spoll & 2: a('s_waitcnt vmcnt(0)')
    poll2()
    if nobar:
        wait_prog(16)
    else:
        a('s_barrier')
    st0()
    st0()
    a.label(f'{name}_p3l')
    if opts.get('psl'): a(f's_sleep {opts.get("psl")}')
    poll2()
    a(f's_cmp_eq_u32 {sr(sRdy)}, 0x55')
    a(f's_cbranch_scc0 {name}_p3l')
    a.label(f'{name}_p3e')
    if sset == 7 and st.on: st.rt()
    if sep:
        a(f'''s_or_b32 {sr(sT)}, {sr(sMt3)}, {sr(sCg)}
s_cbranch_scc1 {name}_nb
s_lshl_b32 {sr(sT)}, {sr(sB)}, 7
s_add_u32 {sr(sT)}, {sr(sT)}, {F_EPOCH}
s_mov_b64 exec, 1
v_mov_b32 {vr(vT0)}, 0
v_mov_b32 {vr(vT1)}, {sr(sTag)}
buffer_store_dword {vr(vT1)}, {vr(vT0)}, {sr(SWS,4)}, {sr(sT)} offen{SC}
s_mov_b64 exec, -1''')
        a.label(f'{name}_nb')
    if st.on:
        while st.n < n_total - 1: st()
        st.rt(); st.flush(sW)
    a('s_endpgm')
    a.label(f'{name}_end')
    nv = maxv[0]
    assert nv <= 168, nv
    return a.text(), descriptor(name, nv, ns), f'; @launch kernel={name} grid=(256,1,1) block=(576,1,1) lds={LDS_TOTAL}', n_total
```

```python
from common import *
import math, struct

def f32bits(x):
    return struct.unpack('<I', struct.pack('<f', x))[0]
QSCALE = f32bits(math.log2(math.e) / math.sqrt(20.0))

XSZ = 16384
STG = XSZ + 30720
SLOT = 40960
LW_RDY = 3 * SLOT
LW_CNT = 3 * SLOT + 8
LW_CNT1 = 3 * SLOT + 12
LW_G1 = 3 * SLOT + 16
LW_PW = 131392
ONES = 3 * SLOT + 128
QST = 131584
LDS_TOTAL = QST + 25600
WO_LO = SLOT
F_WS_KV = 0
F_WS_O = 64 * KV_HEAD
F_FLAG1 = F_WS_O + 2 * 32 * 32 * 2560
F_FLAG2 = F_FLAG1 + 16 * 256
F_EPOCH = F_FLAG2 + 32 * 256
F_R1 = F_EPOCH + 256
F_R2 = F_R1 + 256 * 128
F_WS_END = F_R2 + 256 * 128
TAGK = 0x9E3779B9
POLL_LIMIT = 1 << 18
OOB = 0x40000000

def gen_fused(name='fused_kernel', opts=None):
    opts = opts or {}
    a = Asm()
    SC = ' sc1'
    FL = {0: ' sc1', 1: ' sc0 sc1', 2: '', 3: ' sc1 nt', 4: ' nt'}
    SST = FL[opts.get('sst', 0)]
    SLD = FL[opts.get('sld', 0)]
    stag = opts.get('stag', 0)
    pub4 = opts.get('pub4', 1)
    one_e = opts.get('onee', 0) and pub4
    g1s = opts.get('g1s', 0)
    early = opts.get('early', 1)
    spoll = opts.get('spoll', 3)
    sep = opts.get('sep', 1)
    pre = opts.get('pre', 0)
    sRot, sPre = 39, 40
    rep_ = opts.get('rep', 1) and spoll == 3 and early != 1
    phys = (lambda k: (-k) % 3) if early else (lambda k: k % 3)
    hsplit = opts.get('hsplit', 1)
    nobar = opts.get('nobar', 0)
    loc = opts.get('loc', 1)
    sKK, sMt3, sCg = 3, 4, 5
    SX, SWQ, SWS, SDBG, SWO, SOUT = 8, 12, 16, 20, 24, 28
    sW, sB, sMt, sHg, sT, sT2, sT3 = 32, 33, 34, 35, 36, 37, 38
    sM0a, sM0b = 39, 40
    sDone = 41
    sHi = 42
    sG, sOff, sOo, sKV = 44, 45, 46, 47
    sM, sM2 = 48, 50
    sRdy, sCnt, sNeed, sI, sSlot, sSrc = 52, 53, 54, 55, 56, 57
    sXo, sWo = 53, 54
    sScale = 58
    sA, sTag = 60, 61
    sPub, sPub2 = 56, 57
    ns = 64
    vLane, vT0, vT1, vT2, vT3, vT4, vT5 = 1, 2, 3, 4, 5, 6, 7
    VBASE = 8
    st = Stamper(a, opts.get('stamp'), 0, 62, 6, vT0)
    if st.on: ns = st.nsgpr()
    sset = opts.get('sset', 0)
    def st0():
        if sset == 0: st()
    def st1():
        if sset == 1: st()
    def st6(k=0):
        if sset == 6 or (sset == 7 and k): st.rt()
    def st4():
        if sset == 4: st()
    maxv = [0]
    def done_alloc(V):
        maxv[0] = max(maxv[0], V.n)

    a(f'.globl {name}\n.p2align 8\n.type {name},@function')
    a.label(name)
    if st.on:
        a('s_memrealtime s[62:63]\ns_memtime s[64:65]')
        st.n = 2
    dbgt = opts.get('dbgt')
    SWAP = 'SKIP'
    if opts.get('swap', 0):
        SWAP = f's_lshr_b32 {sr(sT)}, s2, 1\ns_xor_b32 {sr(sT)}, {sr(sT)}, s2\ns_and_b32 {sr(sT)}, {sr(sT)}, 1\ns_mul_i32 {sr(sT)}, {sr(sT)}, 3\ns_xor_b32 s2, s2, {sr(sT)}'
    if dbgt:
        ns = 80
        a('s_memrealtime s[62:63]')
    def rts(k):
        if dbgt: a(f's_memrealtime s[{62+2*k}:{63+2*k}]\ns_waitcnt lgkmcnt(0)')
    a(f'''s_cmp_ge_u32 s2, 256
s_cbranch_scc1 {name}_done
{SWAP}
s_bfe_u32 {sr(sB)}, s2, 0x10002
s_load_dwordx4 {sr(SOUT,4)}, s[0:1], 48
s_load_dwordx2 s[6:7], s[0:1], 64
s_mul_i32 {sr(sT2)}, {sr(sB)}, {0 if opts.get('hack64') else 24}
s_add_u32 s0, s0, {sr(sT2)}
s_addc_u32 s1, s1, 0
s_load_dwordx4 {sr(SX,4)}, s[0:1], 0
s_load_dwordx2 {sr(SWO,2)}, s[0:1], 16
v_lshrrev_b32 {vr(vT0)}, 6, v0
v_and_b32 {vr(vLane)}, 63, v0
s_lshr_b32 {sr(sT)}, s2, 3
v_readfirstlane_b32 {sr(sW)}, {vr(vT0)}
s_and_b32 {sr(sMt)}, {sr(sT)}, 7
s_lshr_b32 {sr(sHg)}, {sr(sT)}, 3
{f's_mul_i32 {sr(sKK)}, {sr(sHg)}, 3' if not opts.get('rx') else f's_mul_i32 {sr(sKK)}, {sr(sHg)}, 5'}
{f's_add_u32 {sr(sKK)}, {sr(sKK)}, 1' if opts.get('rx') else 'SKIP'}
{f's_lshr_b32 {sr(sKK)}, {sr(sKK)}, 1' if opts.get('rx') else 'SKIP'}
s_add_u32 {sr(sKK)}, {sr(sKK)}, {sr(sMt)}
s_cmp_ge_u32 {sr(sKK)}, 10
s_cselect_b32 {sr(sT)}, 10, 0
s_sub_u32 {sr(sKK)}, {sr(sKK)}, {sr(sT)}
{f's_mov_b32 {sr(sKK)}, 0' if (stag or opts.get('rot0')) else 'SKIP'}
s_and_b32 {sr(sT)}, s2, 1
s_lshl_b32 {sr(sT)}, {sr(sT)}, 3
s_add_u32 {sr(sMt)}, {sr(sMt)}, {sr(sT)}
s_and_b32 {sr(sT)}, s2, 2
s_lshl_b32 {sr(sT)}, {sr(sT)}, 1
s_add_u32 {sr(sHg)}, {sr(sHg)}, {sr(sT)}
s_mov_b32 {sr(sHi)}, 0
s_mov_b32 {sr(sHi+1)}, -1
s_bfe_u32 {sr(sCg)}, s2, 0x30003
s_and_b32 {sr(sMt3)}, s2, 1
s_lshl_b32 {sr(sMt3)}, {sr(sMt3)}, 2
s_and_b32 {sr(sT)}, s2, 2
s_add_u32 {sr(sMt3)}, {sr(sMt3)}, {sr(sT)}
s_lshl_b32 {sr(sMt3)}, {sr(sMt3)}, 1
s_lshr_b32 {sr(sT)}, s2, 6
s_add_u32 {sr(sMt3)}, {sr(sMt3)}, {sr(sT)}
s_lshl_b32 {sr(sT)}, {sr(sB)}, 3
s_add_u32 {sr(sT)}, {sr(sT)}, {sr(sHg)}
s_mul_i32 {sr(sKV)}, {sr(sT)}, {4*KV_HEAD}
s_mul_i32 {sr(sT3)}, {sr(sHg)}, 160''')
    SRDS = f'''s_waitcnt lgkmcnt(0)
s_mov_b32 {sr(SWQ)}, {sr(SX+2)}
s_mov_b32 {sr(SWQ+1)}, {sr(SX+3)}
s_mov_b32 {sr(SDBG)}, {sr(SOUT+2)}
s_mov_b32 {sr(SDBG+1)}, {sr(SOUT+3)}
s_mov_b32 {sr(SWS)}, s6
s_mov_b32 {sr(SWS+1)}, s7
s_mov_b32 {sr(SX+2)}, {2048*1280}
s_mov_b32 {sr(SX+3)}, 0x20000
s_mov_b32 {sr(SWQ+2)}, {640*3840}
s_mov_b32 {sr(SWQ+3)}, 0x20000
s_mov_b32 {sr(SWS+2)}, {F_WS_END}
s_mov_b32 {sr(SWS+3)}, 0x20000
s_mov_b32 {sr(SDBG+2)}, 256
s_mov_b32 {sr(SDBG+3)}, 0x20000
s_mov_b32 {sr(SWO+2)}, {640*1280}
s_mov_b32 {sr(SWO+3)}, 0x20000
s_mov_b32 {sr(SOUT+2)}, {2048*2560}
s_mov_b32 {sr(SOUT+3)}, 0x20000'''
    if sep:
        SRDS += f'''
s_lshl_b32 {sr(sI)}, {sr(sB)}, 7
s_add_u32 {sr(sI)}, {sr(sI)}, {F_EPOCH}
s_load_dword {sr(sTag)}, s[6:7], {sr(sI)}'''
    st1()
    n_common = st.n
    a(f'''s_cmp_ge_u32 {sr(sW)}, 8
s_cbranch_scc1 {name}_helper''')

    def w_pattern(dst, first, last):
        a(f'''{first}
v_mul_u32_u24 {vr(vT1)}, 2185, {vr(vT0)}
v_lshrrev_b32 {vr(vT1)}, 16, {vr(vT1)}
v_mul_u32_u24 {vr(vT2)}, 30, {vr(vT1)}
v_sub_u32 {vr(vT0)}, {vr(vT0)}, {vr(vT2)}
v_and_b32 {vr(vT2)}, 0x13, {vr(vT1)}
v_bfe_u32 {vr(vT3)}, {vr(vT1)}, 2, 1
v_lshl_or_b32 {vr(vT2)}, {vr(vT3)}, 3, {vr(vT2)}
v_bfe_u32 {vr(vT3)}, {vr(vT1)}, 3, 1
v_lshl_or_b32 {vr(vT2)}, {vr(vT3)}, 2, {vr(vT2)}
v_mul_u32_u24 {vr(vT2)}, 3840, {vr(vT2)}
v_mul_u32_u24 {vr(vT1)}, 26, {vr(vT0)}
v_lshrrev_b32 {vr(vT1)}, 8, {vr(vT1)}
v_mul_u32_u24 {vr(vT1)}, {1280-160}, {vr(vT1)}
v_lshl_add_u32 {vr(vT0)}, {vr(vT0)}, 4, {vr(vT1)}
v_add3_u32 {vr(dst)}, {vr(vT0)}, {vr(vT2)}, {last}''')

    VP = VAlloc(VBASE)
    vIdx = VP()
    vaK1 = VP(); vaK2 = VP(); vaV = VP()
    vbK1 = VP(); vbK2 = VP(); vbV = VP(); vmK2 = VP(); vmV = VP()
    vQo = VP(); vQo2 = VP(); vQs1 = VP(); vQs2 = VP(); vPub = VP()
    VB2 = VP.n
    V = VAlloc(VB2)
    vEp7 = V(); vCi7 = V(); vZ7 = V()
    vXr = [[V(), V()] for _ in range(3)]
    vWa = [V() for _ in range(3)]
    vWb = [V() for _ in range(3)]
    vE = [V() for _ in range(6)]
    Xf = [[V(4), V(4)], [V(4), V(4)]]
    Wf = [[V(4) for _ in range(4)] for _ in range(2)]
    acc = [[V(4), V(4)] for _ in range(8)]
    done_alloc(V)
    vDX = Wf[0][0]; vDW = [Wf[0][0] + 1, Wf[0][0] + 2]
    XROW = f's_lshl_b32 {sr(sT)}, {sr(sMt)}, 7'
    if opts.get('hack64'):
        XROW = f's_lshl_b32 {sr(sT)}, {sr(sB)}, 4\ns_add_u32 {sr(sT)}, {sr(sT)}, {sr(sMt)}\ns_lshl_b32 {sr(sT)}, {sr(sT)}, 6'
    a(f'''{XROW}
s_lshl_b32 {sr(sT2)}, {sr(sW)}, 3
s_add_u32 {sr(sT)}, {sr(sT)}, {sr(sT2)}
v_lshrrev_b32 {vr(vT0)}, 3, {vr(vLane)}
v_add_u32 {vr(vT0)}, {sr(sT)}, {vr(vT0)}
v_mul_u32_u24 {vr(vT0)}, 1280, {vr(vT0)}
s_and_b32 {sr(sT)}, {sr(sW)}, 1
s_lshl_b32 {sr(sT)}, {sr(sT)}, 2
v_lshrrev_b32 {vr(vT1)}, 4, {vr(vLane)}
v_add_u32 {vr(vT2)}, {sr(sT)}, {vr(vT1)}
v_and_b32 {vr(vT3)}, 7, {vr(vLane)}
v_xor_b32 {vr(vT2)}, {vr(vT2)}, {vr(vT3)}
v_lshl_add_u32 {vr(vDX)}, {vr(vT2)}, 4, {vr(vT0)}
s_lshl_b32 {sr(sM0a)}, {sr(sW)}, 10
s_lshl_b32 {sr(sXo)}, {sr(sKK)}, 7
s_mul_i32 {sr(sWo)}, {sr(sKK)}, {64*3840}
s_add_u32 {sr(sT2)}, {sr(sW)}, 8
s_cmp_eq_u32 {sr(sW)}, 7
s_cselect_b32 {sr(sT2)}, 7, {sr(sT2)}
s_lshl_b32 {sr(sM0b)}, {sr(sT2)}, 10''')
    for pi, sm in ((0, sM0a), (1, sM0b)):
        a(f's_lshr_b32 {sr(sT)}, {sr(sm)}, 4')
        w_pattern(vDW[pi], f'v_add_u32 {vr(vT0)}, {sr(sT)}, {vr(vLane)}', sr(sT3))
    a(SRDS)
    if opts.get('nodup', 0):
        a(f's_cmp_eq_u32 {sr(sW)}, 7')
        a(f's_cselect_b64 {sr(sM,2)}, -1, 0')
        a(f'v_mov_b32 {vr(vT0)}, {OOB}')
        a(f'v_cndmask_b32_e64 {vr(vDW[1])}, {vr(vDW[1])}, {vr(vT0)}, {sr(sM,2)}')
        a(f's_cselect_b32 {sr(sM0b)}, {150000 - XSZ - 15360}, {sr(sM0b)}')
    a(f'''s_mov_b32 m0, {sr(sM0a)}
s_add_u32 {sr(sT)}, {sr(sXo)}, 81920
buffer_load_dwordx4 {vr(vDX)}, {sr(SX,4)}, {sr(sXo)} offen lds
s_add_u32 m0, {sr(sM0a)}, 8192
s_nop 0
{'s_nop 0' if opts.get('hack64') else f'buffer_load_dwordx4 {vr(vDX)}, {sr(SX,4)}, {sr(sT)} offen lds'}''')
    for pi, sm in ((0, sM0a), (1, sM0b)):
        for half in range(2):
            a(f's_add_u32 m0, {sr(sm)}, {XSZ + half*15360}')
            a(f's_add_u32 {sr(sT)}, {sr(sWo)}, {half*32*3840}')
            a(f'buffer_load_dwordx4 {vr(vDW[pi])}, {sr(SWQ,4)}, {sr(sT)} offen lds')
    st1()
    if opts.get('s0', 1): a('s_barrier')
    st1()
    if not sep:
        a(f'''s_cmp_eq_u32 {sr(sW)}, 7
s_cselect_b32 {sr(sM)}, 1, 0
s_mov_b32 {sr(sM+1)}, 0
v_mov_b32 {vr(vT1)}, {OOB}
v_cndmask_b32_e64 {vr(vZ7)}, {vr(vT1)}, 0, {sr(sM,2)}
v_mov_b32 {vr(vT0)}, {F_EPOCH}
buffer_load_dword {vr(vEp7)}, {vr(vT0)}, {sr(SWS,4)}, 0 offen{SC}''')
    a(f'''s_and_b32 {sr(sT)}, {sr(sW)}, 3
s_lshl_b32 {sr(sT)}, {sr(sT)}, 5
v_and_b32 {vr(vT0)}, 15, {vr(vLane)}
v_lshrrev_b32 {vr(vT1)}, 4, {vr(vLane)}
v_lshrrev_b32 {vr(vT2)}, 1, {vr(vT0)}
v_xor_b32 {vr(vT2)}, {vr(vT2)}, {vr(vT1)}
v_add_u32 {vr(vT0)}, {sr(sT)}, {vr(vT0)}
v_lshlrev_b32 {vr(vT0)}, 7, {vr(vT0)}
v_lshl_add_u32 {vr(vXr[0][0])}, {vr(vT2)}, 4, {vr(vT0)}
v_xor_b32 {vr(vXr[0][1])}, 64, {vr(vXr[0][0])}
v_lshrrev_b32 {vr(vT0)}, 5, {vr(vLane)}
v_lshlrev_b32 {vr(vT0)}, 4, {vr(vT0)}
v_bfe_u32 {vr(vT2)}, {vr(vLane)}, 4, 1
v_lshl_add_u32 {vr(vT0)}, {vr(vT2)}, 2, {vr(vT0)}
v_bfe_u32 {vr(vT2)}, {vr(vLane)}, 2, 2
v_add_u32 {vr(vT0)}, {vr(vT0)}, {vr(vT2)}
v_mul_u32_u24 {vr(vT0)}, 480, {vr(vT0)}
v_add_u32 {vr(vT5)}, {XSZ}, {vr(vT0)}
v_bfe_u32 {vr(vT2)}, {vr(vLane)}, 1, 1
v_mul_u32_u24 {vr(vT2)}, 40, {vr(vT2)}
v_and_b32 {vr(vT3)}, 1, {vr(vLane)}
v_lshl_add_u32 {vr(vT2)}, {vr(vT3)}, 4, {vr(vT2)}
v_add_u32 {vr(vWa[0])}, {vr(vT5)}, {vr(vT2)}
s_cmp_ge_u32 {sr(sW)}, 4
s_cselect_b32 {sr(sT)}, 8, 40
v_and_b32 {vr(vT2)}, 3, {vr(vLane)}
v_mad_u32_u24 {vr(vWb[0])}, {vr(vT2)}, {sr(sT)}, {vr(vT5)}''')
    for s_ in (1, 2):
        a(f'v_add_u32 {vr(vXr[s_][0])}, {s_*STG}, {vr(vXr[0][0])}')
        a(f'v_add_u32 {vr(vXr[s_][1])}, {s_*STG}, {vr(vXr[0][1])}')
        a(f'v_add_u32 {vr(vWa[s_])}, {s_*STG}, {vr(vWa[0])}')
        a(f'v_add_u32 {vr(vWb[s_])}, {s_*STG}, {vr(vWb[0])}')
    vAo, vAt = 164, 165
    def a_addr():
        a(f'''s_lshl_b32 {sr(sT)}, {sr(sB)}, 4
s_add_u32 {sr(sT)}, {sr(sT)}, {sr(sMt3)}
s_lshl_b32 {sr(sT)}, {sr(sT)}, 1
s_lshr_b32 {sr(sT2)}, {sr(sW)}, 2
s_add_u32 {sr(sT)}, {sr(sT)}, {sr(sT2)}
s_mul_i32 {sr(sA)}, {sr(sT)}, {32*2560}
s_add_u32 {sr(sA)}, {sr(sA)}, {F_WS_O}
s_and_b32 {sr(sT)}, {sr(sW)}, 1
s_lshl_b32 {sr(sT)}, {sr(sT)}, 4
s_bfe_u32 {sr(sT2)}, {sr(sW)}, 0x10001
v_and_b32 {vr(vT0)}, 15, {vr(vLane)}
v_add_u32 {vr(vT0)}, {sr(sT)}, {vr(vT0)}
v_lshlrev_b32 {vr(vT0)}, 4, {vr(vT0)}
v_lshrrev_b32 {vr(vT1)}, 5, {vr(vLane)}
v_mul_u32_u24 {vr(vT1)}, 2560, {vr(vT1)}
v_bfe_u32 {vr(vT2)}, {vr(vLane)}, 4, 1
v_lshl_add_u32 {vr(vT1)}, {vr(vT2)}, 9, {vr(vT1)}
s_lshl_b32 {sr(sT3)}, {sr(sT2)}, 10
v_add3_u32 {vr(vAo)}, {vr(vT0)}, {vr(vT1)}, {sr(sT3)}
v_lshrrev_b32 {vr(vT1)}, 4, {vr(vLane)}
v_mul_u32_u24 {vr(vT1)}, 2560, {vr(vT1)}
s_lshl_b32 {sr(sT3)}, {sr(sT2)}, 8
s_add_u32 {sr(sT3)}, {sr(sT3)}, 2048
v_lshrrev_b32 {vr(vT0)}, 1, {vr(vT0)}
v_add3_u32 {vr(vAt)}, {vr(vT0)}, {vr(vT1)}, {sr(sT3)}
s_and_b32 {sr(sRot)}, {sr(sCg)}, {opts.get('rot3', 3)}
s_lshl_b32 {sr(sRot)}, {sr(sRot)}, 1
s_mov_b32 {sr(sPre)}, -1
s_mov_b32 {sr(sDone)}, 0''')
    if pre: a_addr()
    a(f'''s_lshr_b32 {sr(sT)}, {sr(sW)}, 1
s_mul_i32 {sr(sT2)}, {sr(sT)}, 10240
v_lshlrev_b32 {vr(vQo)}, 4, {vr(vLane)}
v_lshlrev_b32 {vr(vT0)}, 3, {vr(vLane)}
v_add_u32 {vr(vT0)}, 1024, {vr(vT0)}
v_mov_b32 {vr(vT1)}, {OOB}
v_cndmask_b32_e64 {vr(vQo2)}, {vr(vT0)}, {vr(vT1)}, {sr(sHi,2)}
v_add_u32 {vr(vbK1)}, {sr(sT2)}, {vr(vQo)}
v_add_u32 {vr(vT0)}, {sr(sT2)}, {vr(vT0)}
v_mov_b32 {vr(vT1)}, {ONES}
v_cndmask_b32_e64 {vr(vbK2)}, {vr(vT0)}, {vr(vT1)}, {sr(sHi,2)}
v_cndmask_b32_e64 {vr(vmK2)}, 1, 0, {sr(sHi,2)}
v_and_b32 {vr(vT2)}, 31, {vr(vLane)}
v_lshrrev_b32 {vr(vT3)}, 5, {vr(vLane)}
v_mul_u32_u24 {vr(vT3)}, 320, {vr(vT3)}
v_lshl_add_u32 {vr(vT3)}, {vr(vT2)}, 4, {vr(vT3)}
s_add_u32 {sr(sT3)}, {sr(sT2)}, 1280
v_add_u32 {vr(vT3)}, {sr(sT3)}, {vr(vT3)}
v_cmp_gt_u32 vcc, 20, {vr(vT2)}
v_mov_b32 {vr(vIdx)}, 0xdddddddd
v_mov_b32 {vr(vaK1)}, {vr(vbK1)}
v_cndmask_b32 {vr(vbV)}, {vr(vT1)}, {vr(vT3)}, vcc
v_cndmask_b32_e64 {vr(vmV)}, 0, 1, vcc
v_cmp_lt_u32 vcc, 20, {vr(vT2)}
v_add_u32 {vr(vT3)}, 16, {vr(vT1)}
v_mov_b32 {vr(vaK2)}, {vr(vbK2)}
v_cndmask_b32 {vr(vbV)}, {vr(vbV)}, {vr(vT3)}, vcc
v_mov_b32 {vr(vaV)}, {vr(vbV)}
s_mul_i32 {sr(sT2)}, {sr(sW)}, 2560
s_add_u32 {sr(sT2)}, {sr(sT2)}, {QST}
v_add_u32 {vr(vQs1)}, {sr(sT2)}, {vr(vQo)}
v_and_b32 {vr(vQs2)}, 31, {vr(vLane)}
v_lshlrev_b32 {vr(vQs2)}, 3, {vr(vQs2)}
s_add_u32 {sr(sT2)}, {sr(sT2)}, 1024
v_add_u32 {vr(vQs2)}, {sr(sT2)}, {vr(vQs2)}
s_lshl_b32 {sr(sT2)}, {sr(sB)}, 4
s_add_u32 {sr(sT2)}, {sr(sT2)}, {sr(sMt)}
s_lshl_b32 {sr(sT2)}, {sr(sT2)}, 1
s_and_b32 {sr(sT3)}, {sr(sW)}, 1
s_add_u32 {sr(sT2)}, {sr(sT2)}, {sr(sT3)}
s_lshl_b32 {sr(sT2)}, {sr(sT2)}, 5
s_lshl_b32 {sr(sT3)}, {sr(sHg)}, 2
s_add_u32 {sr(sT2)}, {sr(sT2)}, {sr(sT3)}
s_add_u32 {sr(sT2)}, {sr(sT2)}, {sr(sT)}
s_mul_i32 {sr(sOo)}, {sr(sT2)}, 2560
s_add_u32 {sr(sOo)}, {sr(sOo)}, {F_WS_O}
s_mov_b32 {sr(sPub2)}, {sr(sKV)}
s_mul_i32 {sr(sT)}, {sr(sT)}, {KV_HEAD}
s_add_u32 {sr(sKV)}, {sr(sKV)}, {sr(sT)}''')
    if pub4:
        a(f'''s_and_b32 {sr(sT)}, {sr(sW)}, 3
s_mul_i32 {sr(sT2)}, {sr(sT)}, 10240
v_add_u32 {vr(vPub)}, {sr(sT2)}, {vr(vQo)}
s_mul_i32 {sr(sT)}, {sr(sT)}, {KV_HEAD}
s_mul_i32 {sr(sT2)}, {sr(sMt)}, 10240
s_add_u32 {sr(sT)}, {sr(sT)}, {sr(sT2)}
s_add_u32 {sr(sPub)}, {sr(sT)}, {sr(sPub2)}''')
    else:
        a(f'''s_and_b32 {sr(sT)}, {sr(sW)}, 1
s_mul_i32 {sr(sT)}, {sr(sT)}, 5120
v_add_u32 {vr(vPub)}, {sr(sT)}, {vr(vbK1)}
s_mul_i32 {sr(sT2)}, {sr(sMt)}, 10240
s_add_u32 {sr(sT)}, {sr(sT)}, {sr(sT2)}
s_add_u32 {sr(sPub)}, {sr(sT)}, {sr(sKV)}
s_add_u32 {sr(sPub2)}, {sr(sPub)}, 4096''')
    for ct in range(8):
        for tt in range(2):
            for i in range(4):
                a(f'v_mov_b32 {vr(acc[ct][tt]+i)}, 0')
    a(f'''s_mov_b32 {sr(sScale)}, {QSCALE}
s_mov_b32 {sr(sScale+1)}, {QSCALE}
s_and_b32 {sr(sT3)}, {sr(sW)}, 3
v_and_b32 {vr(vT0)}, 15, {vr(vLane)}
v_lshrrev_b32 {vr(vT1)}, 4, {vr(vLane)}
v_lshrrev_b32 {vr(vT2)}, 2, {vr(vT0)}
v_and_b32 {vr(vT3)}, 3, {vr(vT0)}
v_lshl_add_u32 {vr(vT4)}, {vr(vT2)}, 3, {vr(vT3)}
v_lshrrev_b32 {vr(vT2)}, 1, {vr(vT1)}
v_and_b32 {vr(vT3)}, 1, {vr(vT1)}
s_mul_i32 {sr(sT)}, {sr(sT3)}, 2560
v_mul_u32_u24 {vr(vE[0])}, 10240, {vr(vT2)}
v_lshl_add_u32 {vr(vE[0])}, {vr(vT3)}, 9, {vr(vE[0])}
v_lshl_add_u32 {vr(vE[0])}, {vr(vT4)}, 4, {vr(vE[0])}
v_add_u32 {vr(vE[0])}, {sr(sT)}, {vr(vE[0])}
s_cmp_ge_u32 {sr(sW)}, 4
s_cbranch_scc1 {name}_p1b''')

    def p1_variant(wn):
        if wn == 0:
            kinds = [('P', 0, 0, 0), ('P', 0, 0, 1), ('P', 0, 1, 0), ('P', 0, 1, 1), ('T', 0, 0, 0), ('P', 1, 0, 0), ('P', 1, 0, 1), ('T', 1, 0, 0)]
            a(f'''s_add_u32 {sr(sT2)}, {sr(sT)}, 1024
v_mul_u32_u24 {vr(vE[1])}, 10240, {vr(vT1)}
v_lshl_add_u32 {vr(vE[1])}, {vr(vT4)}, 3, {vr(vE[1])}
v_add_u32 {vr(vE[1])}, {sr(sT2)}, {vr(vE[1])}
s_mul_i32 {sr(sT)}, {sr(sT3)}, 1280
s_add_u32 {sr(sT)}, {sr(sT)}, {QST}
v_mul_u32_u24 {vr(vE[2])}, 5120, {vr(vT2)}
v_lshl_add_u32 {vr(vE[2])}, {vr(vT3)}, 9, {vr(vE[2])}
v_lshl_add_u32 {vr(vE[2])}, {vr(vT0)}, 4, {vr(vE[2])}
v_add_u32 {vr(vE[2])}, {sr(sT)}, {vr(vE[2])}
s_add_u32 {sr(sT)}, {sr(sT)}, 1024
v_mul_u32_u24 {vr(vE[3])}, 5120, {vr(vT1)}
v_lshl_add_u32 {vr(vE[3])}, {vr(vT0)}, 3, {vr(vE[3])}
v_add_u32 {vr(vE[3])}, {sr(sT)}, {vr(vE[3])}''')
        else:
            kinds = [('P', 1, 1, 0), ('P', 1, 1, 1)] + [('V', 2, i, 0) for i in range(5)]
            a(f'''s_add_u32 {sr(sT)}, {sr(sT)}, 1280
v_mul_u32_u24 {vr(vT2)}, 640, {vr(vT2)}
v_mul_u32_u24 {vr(vT3)}, 320, {vr(vT3)}
v_add3_u32 {vr(vT5)}, {vr(vT2)}, {vr(vT3)}, {sr(sT)}''')
            for i in range(5):
                a(f'''v_add_u32 {vr(vT2)}, {16*i}, {vr(vT0)}
v_mul_u32_u24 {vr(vT3)}, 3277, {vr(vT2)}
v_lshrrev_b32 {vr(vT3)}, 16, {vr(vT3)}
v_mul_u32_u24 {vr(vT3)}, {10240-320}, {vr(vT3)}
v_lshl_add_u32 {vr(vT2)}, {vr(vT2)}, 4, {vr(vT3)}
v_add_u32 {vr(vE[1+i])}, {vr(vT2)}, {vr(vT5)}''')
        nct = len(kinds)
        grp = [list(range(0, 4)), list(range(4, nct))]
        def rd_x(step, s2):
            return [f'ds_read_b128 {vr(Xf[s2][tt],4)}, {vr(vXr[step%3][s2])} offset:{tt*2048}' for tt in range(2)]
        def rd_w(step, s2, h, idx):
            ty, sec, sub, e = kinds[grp[h][idx]]
            base = (vWa if ty == 'P' else vWb)[step % 3]
            col = sec*160 + {'P': sub*80 + e*8, 'T': 32, 'V': sub*32}[ty]
            return [f'ds_read_b64_tr_b16 {vr(Wf[h][idx]+2*rd,2)}, {vr(base)} offset:{(32*s2+8*rd)*480 + col}' for rd in range(2)]
        def mf(s2, h, idx):
            ct = grp[h][idx]
            out = []
            for tt in range(2):
                A, B = Wf[h][idx], Xf[s2][tt]
                if kinds[ct][0] == 'V':
                    A, B = B, A
                out.append(f'v_mfma_f32_16x16x32_bf16 {vr(acc[ct][tt],4)}, {vr(A,4)}, {vr(B,4)}, {vr(acc[ct][tt],4)}')
            return out
        n0, n1 = 2 + 2*len(grp[0]), 2*len(grp[1])
        def phase(s2, h, nxt):
            if nxt is not None and h == 0:
                for r in rd_x(*nxt): a(r)
            for idx in range(len(grp[h])):
                for m in mf(s2, h, idx): a(m)
                if nxt is not None:
                    for r in rd_w(nxt[0], nxt[1], h, idx): a(r)
        st1()
        a('s_waitcnt vmcnt(0) lgkmcnt(0)')
        if not sep: a(f'v_readfirstlane_b32 {sr(sTag)}, {vr(vEp7)}')
        a('s_barrier')
        a(f's_add_u32 {sr(sTag)}, {sr(sTag)}, {TAGK}')
        rts(1)
        st()
        for r in rd_x(0, 0): a(r)
        for h in range(2):
            for idx in range(len(grp[h])):
                for r in rd_w(0, 0, h, idx): a(r)
        for step in range(10):
            if step == 9 and hsplit:
                a('s_barrier')
            a(f's_waitcnt lgkmcnt({n1})')
            phase(0, 0, (step, 1))
            a(f's_waitcnt lgkmcnt({n0})')
            phase(0, 1, (step, 1))
            a('s_waitcnt lgkmcnt(0)')
            a('s_barrier')
            if step == 0 and wn == 1 and not sep:
                a(f'v_mov_b32 {vr(vCi7)}, 1')
                a(f'buffer_atomic_add {vr(vCi7)}, {vr(vZ7)}, {sr(SDBG,4)}, 0 offen sc0')
            if step in (0, 4): st0()
            if step in (0, 1, 2, 8): st1()
            if step in (8, 9): st4()
            nx = (step + 1, 0) if step < 9 else None
            phase(1, 0, nx)
            phase(1, 1, nx)
        st0(); st4(); st6()
        rts(2)
        if wn == 1 and not sep:
            a(f'''s_waitcnt vmcnt(0)
v_cmp_eq_u32 vcc, 255, {vr(vCi7)}
v_add_u32 {vr(vEp7)}, {TAGK}, {vr(vEp7)}
v_mov_b32 {vr(vT1)}, {OOB}
s_mov_b32 {sr(sT)}, {F_EPOCH}
v_cndmask_b32 {vr(vZ7)}, {vr(vT1)}, {vr(vZ7)}, vcc
buffer_store_dword {vr(vEp7)}, {vr(vZ7)}, {sr(SWS,4)}, {sr(sT)} offen{SC}''')
        def scale(r0):
            a(f'v_pk_mul_f32 {vr(r0,2)}, {vr(r0,2)}, {sr(sScale,2)}')
            a(f'v_pk_mul_f32 {vr(r0+2,2)}, {vr(r0+2,2)}, {sr(sScale,2)}')
        def pack4(d, x, y):
            a(f'v_cvt_pk_bf16_f32 {vr(d)}, {vr(x)}, {vr(x+1)}')
            a(f'v_cvt_pk_bf16_f32 {vr(d+1)}, {vr(x+2)}, {vr(x+3)}')
            if y is not None:
                a(f'v_cvt_pk_bf16_f32 {vr(d+2)}, {vr(y)}, {vr(y+1)}')
                a(f'v_cvt_pk_bf16_f32 {vr(d+3)}, {vr(y+2)}, {vr(y+3)}')
        def stage(want):
          ct = 0
          while ct < nct:
            ty, sec, sub, e = kinds[ct]
            if (sec == 0) != want:
                ct += 1
                continue
            if ty == 'P':
                for tt in range(2):
                    x, y = acc[ct][tt], acc[ct+1][tt]
                    if sec == 0:
                        scale(x); scale(y)
                    pack4(x, x, y)
                    if sec == 0:
                        a(f'ds_write_b128 {vr(vE[2])}, {vr(x,4)} offset:{sub*10240 + tt*256}')
                    else:
                        a(f'ds_write_b128 {vr(vE[0])}, {vr(x,4)} offset:{sub*20480 + tt*64}')
                ct += 2
            elif ty == 'T':
                for tt in range(2):
                    x = acc[ct][tt]
                    if sec == 0:
                        scale(x)
                    pack4(x, x, None)
                    if sec == 0:
                        a(f'ds_write_b64 {vr(vE[3])}, {vr(x,2)} offset:{tt*128}')
                    else:
                        a(f'ds_write_b64 {vr(vE[1])}, {vr(x,2)} offset:{tt*32}')
                ct += 1
            else:
                x, y = acc[ct][0], acc[ct][1]
                pack4(x, x, y)
                a(f'ds_write_b128 {vr(vE[1+sub])}, {vr(x,4)}')
                ct += 1
        if wn == 0: a('s_nop 2')
        stage(False)
        if one_e: stage(True)
        a('s_waitcnt lgkmcnt(0)')
        st4()
        a('s_barrier')
        st4(); st6()
        PB = Xf[0][0]
        assert Wf[0][0] == PB + 16
        if pub4:
            if wn == 0:
                if not one_e: stage(True)
            else:
                for q in range(10):
                    a(f'ds_read_b128 {vr(PB+4*q,4)}, {vr(vPub)} offset:{q*1024}')
                for q in range(10):
                    if q == 4: a(f's_add_u32 {sr(sPub)}, {sr(sPub)}, 4096')
                    if q == 8: a(f's_add_u32 {sr(sPub)}, {sr(sPub)}, 4096')
                    a(f's_waitcnt lgkmcnt({9 - q})')
                    a(f'buffer_store_dwordx4 {vr(PB+4*q,4)}, {vr(vQo)}, {sr(SWS,4)}, {sr(sPub)} offen offset:{(q%4)*1024}{SST}')
        else:
          for q in range(5):
            a(f'ds_read_b128 {vr(PB+4*q,4)}, {vr(vPub)} offset:{q*1024}')
          stage(True)
          nq = 6 if wn == 0 else 0
          for q in range(5):
            a(f's_waitcnt lgkmcnt({4 - q + nq})')
            a(f'buffer_store_dwordx4 {vr(PB+4*q,4)}, {vr(vQo)}, {sr(SWS,4)}, {sr(sPub if q < 4 else sPub2)} offen offset:{(q%4)*1024}{SST}')
        a('s_nop 1')
        st4()
    n_st = st.n
    p1_variant(0)
    a(f's_branch {name}_p2')
    a.label(f'{name}_p1b')
    st.n = n_st
    p1_variant(1)
    a.label(f'{name}_p2')

    V = VAlloc(VB2 + 3)
    Q1 = [V(4), V(4)]; Q2 = [V(2), V(2)]
    K1 = [V(4), V(4)]; K2 = [V(2), V(2)]
    V0 = [V(4), V(4)]; V1 = [V(4), V(4)]
    O = [V(16), V(16)]
    S = [V(16), V(16)]
    st3 = opts.get('st3', 1) and not nobar
    if st3:
        aK1 = [vbK1, vaK1, V()]; aK2 = [vbK2, vaK2, V()]; aV = [vbV, vaV, V()]
    vPw = V(2); vPa = V(); vPo_ = V(); vPg = V()
    done_alloc(V)
    for t in range(2):
        for i in range(16):
            a(f'v_mov_b32 {vr(O[t]+i)}, 0')
    for i in range(4):
        a(f'v_mov_b32 {vr(V1[1]+i)}, 0')
    a(f's_mov_b32 {sr(sG)}, 0')
    a(f's_mov_b32 {sr(sOff)}, 0')
    if st3:
        for k in (1, 2):
            a(f's_mov_b32 {sr(sT)}, {phys(k)*SLOT}')
            a(f'v_add_u32 {vr(aK1[k])}, {sr(sT)}, {vr(vbK1)}')
            a(f'v_mad_u32_u24 {vr(aK2[k])}, {vr(vmK2)}, {sr(sT)}, {vr(vbK2)}')
            a(f'v_mad_u32_u24 {vr(aV[k])}, {vr(vmV)}, {sr(sT)}, {vr(vbV)}')
    if nobar:
        a(f'''s_lshl_b32 {sr(sT)}, {sr(sW)}, 3
s_add_u32 {sr(sT2)}, {sr(sT)}, {LW_PW + 4}
s_xor_b32 {sr(sT)}, {sr(sT)}, 32
s_add_u32 {sr(sT)}, {sr(sT)}, {LW_PW}
v_mov_b32 {vr(vPa)}, {sr(sT)}
v_mov_b32 {vr(vPo_)}, {sr(sT2)}
v_mov_b32 {vr(vPg)}, 0''')
    if not one_e:
        a('s_waitcnt lgkmcnt(0)')
        a('s_barrier')
    st0(); st4()
    def rdK(s_, u, part='R', sl=0):
        x1, x2 = (aK1[sl], aK2[sl]) if st3 else (vaK1, vaK2)
        if part != 'Rb': a(f'ds_read_b128 {vr(K1[s_],4)}, {vr(x1)} offset:{2560*u}')
        if part != 'Ra': a(f'ds_read_b64 {vr(K2[s_],2)}, {vr(x2)} offset:{2560*u}')
    def rdV(s_, u, part='R', sl=0):
        x1 = aV[sl] if st3 else vaV
        if part != 'Rb': a(f'ds_read_b128 {vr(V0[s_],4)}, {vr(x1)} offset:{2560*u}')
        if part != 'Ra': a(f'ds_read_b128 {vr(V1[s_],4)}, {vr(x1)} offset:{2560*u+640}')
    def qk16(t, s_):
        a(f'v_mfma_f32_32x32x16_bf16 {vr(S[t],16)}, {vr(K1[s_],4)}, {vr(Q1[t],4)}, 0')
    def qk8(t, s_):
        a(f'v_mfma_f32_32x32x8_bf16 {vr(S[t],16)}, {vr(K2[s_],2)}, {vr(Q2[t],2)}, {vr(S[t],16)}')
    def pv(t, s_, n):
        Vf = (V0, V1)[n][s_]
        a(f'v_smfmac_f32_32x32x32_bf16 {vr(O[t],16)}, {vr(Vf,4)}, {vr(S[t]+8*n,8)}, {vr(vIdx)}')
    def rowmax(t, dst):
        s = S[t]
        a(f'v_max3_f32 {vr(dst)}, {vr(s)}, {vr(s+1)}, {vr(s+2)}')
        for i in range(3, 15, 2):
            a(f'v_max3_f32 {vr(dst)}, {vr(dst)}, {vr(s+i)}, {vr(s+i+1)}')
        a(f'v_max_f32 {vr(dst)}, {vr(dst)}, {vr(s+15)}')
    def crosshalf(x, y):
        a(f'v_mov_b32 {vr(y)}, {vr(x)}')
        a('s_nop 1')
        a(f'v_permlane32_swap_b32 {vr(x)}, {vr(y)}')
        a('s_nop 1')
    for t in range(2):
        a(f'ds_read_b128 {vr(Q1[t],4)}, {vr(vQs1)} offset:{1280*t}')
        a(f'ds_read_b64 {vr(Q2[t],2)}, {vr(vQs2)} offset:{1280*t}')
    rdK(0, 0); rdK(1, 1); rdV(0, 0)
    a('s_waitcnt lgkmcnt(4)')
    for t in range(2):
        a(f'v_cndmask_b32_e64 {vr(Q2[t])}, {vr(Q2[t])}, 0, {sr(sHi,2)}')
        a(f'v_cndmask_b32_e64 {vr(Q2[t]+1)}, {vr(Q2[t]+1)}, 0, {sr(sHi,2)}')
    qk16(0, 0); qk8(0, 0); qk16(1, 0); qk8(1, 0)
    a('s_nop 9')
    for t in range(2):
        if t == 1: a('s_nop 1')
        rowmax(t, vT0)
        crosshalf(vT0, vT1)
        a(f'''v_max_f32 {vr(vT0)}, {vr(vT0)}, {vr(vT1)}
v_sub_f32 {vr(vT0)}, 0, {vr(vT0)}
v_and_b32 {vr(vT1)}, 0xffff0000, {vr(vT0)}
v_sub_f32 {vr(vT0)}, {vr(vT0)}, {vr(vT1)}
v_and_b32 {vr(vT2)}, 0xffff0000, {vr(vT0)}
v_sub_f32 {vr(vT0)}, {vr(vT0)}, {vr(vT2)}
v_lshrrev_b32 {vr(vT1)}, 16, {vr(vT1)}
v_or_b32 {vr(vT1)}, {vr(vT1)}, {vr(vT2)}
v_lshrrev_b32 {vr(vT0)}, 16, {vr(vT0)}
v_cndmask_b32_e64 {vr(Q2[t])}, {vr(Q2[t])}, {vr(vT1)}, {sr(sHi,2)}
v_cndmask_b32_e64 {vr(Q2[t]+1)}, {vr(Q2[t]+1)}, {vr(vT0)}, {sr(sHi,2)}''')
        if t == 0:
            qk16(0, 0)
            a('s_nop 0')
            qk8(0, 0)
    for i in range(8, 16):
        a(f'v_mov_b32 {vr(S[1]+i)}, 0')
    st4()
    dsig = opts.get('dsig', 0) and pub4 and st3
    sSig, sFa = sOff, sPub2
    def sig_code(lbl, cnt):
        a(f'''s_mov_b64 exec, 1
v_mov_b32 {vr(vT0)}, 1
v_mov_b32 {vr(vT2)}, {LW_CNT1}
v_mov_b32 {vr(vT1)}, {sr(sTag)}
v_mov_b32 {vr(vT3)}, {sr(sFa)}
s_waitcnt vmcnt(0)
ds_add_rtn_u32 {vr(vT0)}, {vr(vT2)}, {vr(vT0)}
s_waitcnt lgkmcnt(0)
v_readfirstlane_b32 {sr(sT)}, {vr(vT0)}
s_cmp_eq_u32 {sr(sT)}, {cnt - 1}
s_cbranch_scc0 {lbl}''')
        if rep_:
            a(f'''s_mov_b64 exec, 0xffff
v_mov_b32 {vr(vT1)}, {sr(sTag)}
v_lshl_add_u32 {vr(vT3)}, {vr(vLane)}, 7, {sr(sFa)}''')
        a(f'buffer_store_dword {vr(vT1)}, {vr(vT3)}, {sr(SWS,4)}, 0 offen{SC}')
        a.label(lbl)
        a('s_mov_b64 exec, -1')
    a(f'''s_lshl_b32 {sr(sT)}, {sr(sB)}, 3
s_add_u32 {sr(sT)}, {sr(sT)}, {sr(sHg)}
s_lshl_b32 {sr(sT)}, {sr(sT)}, {9 if rep_ else 6}
s_add_u32 {sr(sT)}, {sr(sT)}, {sr(sMt)}
s_lshl_b32 {sr(sT)}, {sr(sT)}, 2
s_add_u32 {sr(sFa)}, {sr(sT)}, {F_R1 if rep_ else F_FLAG1}''')
    sigpts = []
    if dsig:
        a(f's_lshr_b32 {sr(sSig)}, {sr(sW)}, 2')
        if opts.get('dsig') == 2:
            a(f's_cmp_eq_u32 {sr(sSig)}, 0')
            a(f's_cbranch_scc1 {name}_lp')
            a(f's_setprio {opts.get("sgp", 1)}')
            a.label(f'{name}_lp')
        a('s_waitcnt lgkmcnt(0)')
    else:
        sig_code(f'{name}_nl1', 8)
    def sig_point(force):
        k = len(sigpts); sigpts.append(force)
        a(f's_cmp_lg_u32 {sr(sSig)}, 0')
        a(f's_cbranch_scc1 {name}_sg{k}')
        a.label(f'{name}_sgr{k}')
    prio = opts.get('prio', 11)
    rts(3)
    st0(); st4(); st6()
    if sset == 2: st()
    peel = (opts.get('dsig', 0) == 2) and dsig
    if not peel:
        a('.p2align 6')
        a.label(f'{name}_loop')
    def ex(t, i):
        a(f'v_exp_f32 {vr(S[t]+i)}, {vr(S[t]+i)}')
    scheds = {1: 'e e P2 e e e e Q16 e e e e Q8 R e e e e P1 W e e',
              2: 'e e P2 e e e e Q16 e e e Q8 R e e e e e P1 W e e',
              3: 'e e P2 e e e e Q16 e e e e Q8 e R e e e P1 e W e',
              4: 'e e P2 e e e Q16 e e e e Q8 R e e e e P1 W e e e',
              5: 'e e W P2 e e e e Ra Q16 e e e e Rb Q8 e e e e P1 e e',
              6: 'e e W P2 e e e e R Q16 e e e e Q8 e e e e P1 e e',
              7: 'e e W P2 e e e e Q16 e e e e Ra Q8 e e e e Rb P1 e e',
              8: 'e e P2 e e e e Ra Q16 e e e e Rb Q8 e e e e W P1 e e',
              9: 'e e P2 e e e e Q16 e e e e Q8 e e e e R W P1 e e',
              10: 'e e P2 Ra e e e e Q16 Rb e e e e Q8 W e e e e P1 e e',
              11: 'e e P2 Ra e e e e Q16 Rb e e e e Q8 e e e e P1 W e e',
              12: 'e e P2 R e e e e Q16 e e e e Q8 e e e e P1 W e e',
              13: 'e e P2 R W e e e e Q16 e e e e Q8 e e e e P1 e e',
              14: 'e e P2 Ra e e e e Q16 e e e e Q8 e e e e P1 Rb W e e',
              15: 'e e P2 R e e e e Q16 e e e e Q8 W e e e e P1 e e',
              16: 'e e P2 R e e e e Q16 W e e e e Q8 e e e e P1 e e',
              17: 'e e e P2 R e e e e Q16 e e e e Q8 e e e P1 W e e',
              18: 'e e P2 R e e e e e Q16 e e e Q8 e e e e P1 W e e'}
    sched = scheds[opts.get('sched', 12)].split()
    unroll = 3 if st3 else opts.get('unroll', 1)
    ptab = {1: {(0, 0): 2, (1, 0): 1, (2, 0): 0, (3, 0): 3},
            2: {(3, 0): 1, (1, 0): 0},
            3: {(3, 0): 3, (3, 1): 2, (0, 1): 1, (1, 1): 0},
            6: {(3, 0): 3, (0, 1): 2, (1, 1): 1, (2, 0): 0},
            7: {(3, 0): 3, (0, 0): 2, (1, 1): 1, (2, 0): 0},
            8: {(3, 1): 3, (0, 1): 2, (1, 1): 1, (2, 0): 0},
            9: {(3, 0): 3, (0, 0): 2, (1, 0): 1, (2, 1): 0},
            10: {(3, 0): 2, (0, 1): 1, (2, 0): 0},
            11: {(3, 0): 3, (3, 1): 2, (0, 0): 3, (0, 1): 2, (1, 0): 1, (2, 0): 0}}.get(prio, {})
    for ri, rep in enumerate([0, 1, 2, 0] if peel else range(unroll)):
      first = peel and ri == 0
      if peel and ri == 1:
        a('.p2align 6')
        a.label(f'{name}_loop')
      for j in range(4):
        for t in range(2):
            pj = j if t == 1 else j - 1
            nj = j if t == 0 else j + 1
            if (j, t) in ptab and nobar != 1 and not (first and j < 3):
                a(f's_setprio {ptab[(j, t)]}')
            if dsig and not peel and rep == 0 and (j, t) in ((0, 0), (0, 1), (1, 0), (1, 1), (2, 0)):
                sig_point(False)
            e = 0
            for tok in sched:
                if tok == 'e':
                    ex(t, e); e += 1
                elif tok == 'P2':
                    pv(1 - t, pj % 2, 1)
                elif tok == 'P1':
                    pv(t, j % 2, 0)
                    if first and (j, t) < (2, 1): sig_point(False)
                elif tok == 'Q16':
                    qk16(1 - t, nj % 2)
                    if first and (j, t) < (2, 1): sig_point(False)
                elif tok == 'Q8':
                    qk8(1 - t, nj % 2)
                elif tok == 'W':
                    a(f's_waitcnt lgkmcnt({3 if nobar and (j, t) in ((2, 0), (2, 1)) else 2})')
                elif tok == 'Rb':
                    if t == 0: rdV((j + 1) % 2, (j + 1) % 4, 'Rb', (rep + (j + 1) // 4) % 3)
                    else: rdK(j % 2, (j + 2) % 4, 'Rb', (rep + (j + 2) // 4) % 3)
                elif tok in ('R', 'Ra'):
                    if t == 0:
                        if j == 3 and not st3:
                            a(f'v_mad_u32_u24 {vr(vaV)}, {vr(vmV)}, {sr(sOff)}, {vr(vbV)}')
                        rdV((j + 1) % 2, (j + 1) % 4, tok, (rep + (j + 1) // 4) % 3)
                        if j == 2 and nobar:
                            a(f'ds_read_b64 {vr(vPw,2)}, {vr(vPa)}')
                    else:
                        if g1s and rep == 1 and j == 1:
                            a(f's_cmp_eq_u32 {sr(sG)}, 0')
                            a(f's_cbranch_scc1 {name}_g1w')
                            a.label(f'{name}_g1r')
                        if j == 2 and st3:
                            if dsig and (first if peel else rep == 0): sig_point(True)
                            a('s_waitcnt lgkmcnt(0)')
                            a('s_barrier')
                            if pre == 1 and rep == 0:
                                a(f's_cmp_eq_u32 {sr(sG)}, 15')
                                a(f's_cbranch_scc1 {name}_pre')
                                a.label(f'{name}_prer')
                            if sset == 6 and st.on and rep == 0:
                                a(f's_cmp_eq_u32 {sr(sG)}, 0')
                                a(f's_cbranch_scc0 {name}_sk6')
                                st.rt()
                                a.label(f'{name}_sk6')
                        elif j == 2:
                            a(f'''s_add_u32 {sr(sOff)}, {sr(sOff)}, {SLOT}
s_cmp_ge_u32 {sr(sOff)}, {3*SLOT}
s_cselect_b32 {sr(sOff)}, 0, {sr(sOff)}''')
                            if nobar:
                                a(f'''v_add_u32 {vr(vPg)}, 1, {vr(vPg)}
s_add_u32 {sr(sT3)}, {sr(sG)}, {rep + 1}
s_waitcnt lgkmcnt(0)
v_readfirstlane_b32 {sr(sT)}, {vr(vPw)}
v_readfirstlane_b32 {sr(sT2)}, {vr(vPw+1)}
ds_write_b32 {vr(vPo_)}, {vr(vPg)}''')
                                if nobar == 1:
                                    a(f'''s_setprio 0
s_cmp_lt_u32 {sr(sT2)}, {sr(sT3)}
s_cbranch_scc1 {name}_lo{rep}
s_setprio 1''')
                                    a.label(f'{name}_lo{rep}')
                                elif nobar == 2:
                                    a(f's_add_u32 {sr(sT2)}, {sr(sT2)}, {1 + opts.get("slack", 0)}')
                                    a(f's_min_u32 {sr(sT)}, {sr(sT)}, {sr(sT2)}')
                                a(f's_cmp_gt_u32 {sr(sT)}, {sr(sT3)}')
                                a(f's_cbranch_scc0 {name}_spin{rep}')
                                a.label(f'{name}_spun{rep}')
                            else:
                                a('s_waitcnt lgkmcnt(0)')
                                a('s_barrier')
                            if sset == 2 and st.on:
                                for K in (0, 1, 2, 3, 8, 14):
                                    a(f's_cmp_eq_u32 {sr(sG)}, {K}')
                                    a(f's_cbranch_scc0 {name}_sk{K}')
                                    st()
                                    a.label(f'{name}_sk{K}')
                            a(f'''v_add_u32 {vr(vaK1)}, {sr(sOff)}, {vr(vbK1)}
v_mad_u32_u24 {vr(vaK2)}, {vr(vmK2)}, {sr(sOff)}, {vr(vbK2)}''')
                        rdK(j % 2, (j + 2) % 4, tok, (rep + (j + 2) // 4) % 3)
            assert e == 16
      if st3 and rep == 0 and not peel:
        a(f's_cmp_eq_u32 {sr(sG)}, 15')
        a(f's_cbranch_scc1 {name}_lend')
    a(f'''s_add_u32 {sr(sG)}, {sr(sG)}, {unroll}
s_cmp_lt_u32 {sr(sG)}, {15 if peel else 16}
s_cbranch_scc1 {name}_loop''')
    a.label(f'{name}_lend')
    tail0 = len(a.lines)
    if pre == 2:
        a(f's_branch {name}_pre')
        a.label(f'{name}_prer')
    a('s_nop 1')
    pv(1, 1, 1)
    if ptab or nobar:
        a('s_setprio 0')
    st0()
    if sset in (2, 3): st()
    L = [vT2, vT3]
    st6(1)
    rts(4)
    a('s_waitcnt lgkmcnt(0)')
    a(f's_mov_b32 {sr(sI)}, 0')
    a.label(f'{name}_store')
    a(f's_mov_b32 {sr(sM)}, 0xaaaaaaaa')
    a(f's_mov_b32 {sr(sM+1)}, 0xaaaaaaaa')
    for t in range(2):
        a(f'v_mov_b32 {vr(vT0)}, {vr(O[t]+8)}')
        crosshalf(vT0, L[t])
        a(f'v_rcp_f32 {vr(vT0)}, {vr(L[t])}')
        a('s_nop 0')
        for i in range(12):
            a(f'v_mul_f32 {vr(O[t]+i)}, {vr(O[t]+i)}, {vr(vT0)}')
        for i in range(4):
            a(f'v_cvt_pk_bf16_f32 {vr(S[t]+i)}, {vr(O[t]+2*i)}, {vr(O[t]+2*i+1)}')
        a(f'buffer_store_dwordx4 {vr(S[t],4)}, {vr(vQo)}, {sr(SWS,4)}, {sr(sOo)} offen offset:{1024*t}{SST}')
        for i in range(2):
            a(f'v_cvt_pk_bf16_f32 {vr(S[0]+4+2*t+i)}, {vr(O[t]+8+2*i)}, {vr(O[t]+8+2*i+1)}')
    ta, tb, X, Y = S[0]+4, S[0]+6, S[0]+8, S[0]+12
    a(f'''v_cndmask_b32_e64 {vr(X)}, {vr(tb)}, {vr(ta)}, {sr(sM,2)}
v_cndmask_b32_e64 {vr(X+1)}, {vr(tb+1)}, {vr(ta+1)}, {sr(sM,2)}
v_lshrrev_b32 {vr(vT0)}, 1, {vr(vLane)}
v_and_b32 {vr(vT1)}, 1, {vr(vLane)}
v_mov_b32_dpp {vr(X+2)}, {vr(X)} quad_perm:[1,0,3,2] row_mask:0xf bank_mask:0xf
v_mov_b32_dpp {vr(X+3)}, {vr(X+1)} quad_perm:[1,0,3,2] row_mask:0xf bank_mask:0xf
v_lshlrev_b32 {vr(vT0)}, 4, {vr(vT0)}
v_lshl_add_u32 {vr(vT0)}, {vr(vT1)}, 8, {vr(vT0)}
v_mov_b32 {vr(vT1)}, {OOB}
v_cndmask_b32_e64 {vr(Y)}, {vr(ta)}, {vr(X+2)}, {sr(sM,2)}
v_cndmask_b32_e64 {vr(Y+1)}, {vr(ta+1)}, {vr(X+3)}, {sr(sM,2)}
v_cndmask_b32_e64 {vr(Y+2)}, {vr(X+2)}, {vr(tb)}, {sr(sM,2)}
v_cndmask_b32_e64 {vr(Y+3)}, {vr(X+3)}, {vr(tb+1)}, {sr(sM,2)}
v_cndmask_b32_e64 {vr(vT0)}, {vr(vT0)}, {vr(vT1)}, {sr(sHi,2)}
buffer_store_dwordx4 {vr(Y,4)}, {vr(vT0)}, {sr(SWS,4)}, {sr(sOo)} offen offset:2048{SST}''')
    st0()
    for t in range(2):
        sm = sM if t == 0 else sM2
        a(f'v_mul_f32 {vr(vT1)}, 0, {vr(O[t])}')
        for i in range(1, 12):
            a(f'v_fmac_f32 {vr(vT1)}, 0, {vr(O[t]+i)}')
        a(f'v_add_f32 {vr(vT1)}, {vr(vT1)}, {vr(L[t])}')
        a(f'v_cmp_gt_f32 vcc, 0x53800000, {vr(vT1)}')
        a(f's_mov_b64 {sr(sm,2)}, vcc')
        a(f'v_cmp_lt_f32 vcc, 0x35800000, {vr(vT1)}')
        a(f's_and_b64 {sr(sm,2)}, {sr(sm,2)}, vcc')
    a(f'''s_and_b64 {sr(sM,2)}, {sr(sM,2)}, {sr(sM2,2)}
s_cmp_eq_u64 {sr(sM,2)}, -1
s_cselect_b32 {sr(sT)}, 1, {sr(sI)}
s_cmp_eq_u32 {sr(sT)}, 0
s_cbranch_scc1 {name}_fallback''')

    V = VAlloc(VBASE)
    vWm0 = V(); vWt0 = V(); vRd = V(); vDn = V(); vOs = [V(), V(), V()]; vOo = vOs[0]; vOw, vOr = 166, 167
    assert opts.get('ow', 1)
    vWm = [V() for _ in range(4)]; vWt = [V() for _ in range(4)]
    acc3 = [V(4) for _ in range(5)]
    assert V.n <= S[0]
    Wg = [[V(4) for _ in range(5)] for _ in range(2)]
    A = [[V(4) for _ in range(5)] for _ in range(3)]
    assert V.n <= 144, V.n
    A = [[144 + 4*p for p in range(5)]] + A
    maxv[0] = max(maxv[0], 168)
    done_alloc(V)
    if not pre: a_addr()
    a(f'''v_bfe_u32 {vr(vT0)}, {vr(vLane)}, 2, 2
v_lshrrev_b32 {vr(vT1)}, 5, {vr(vLane)}
v_mul_u32_u24 {vr(vT1)}, 20, {vr(vT1)}
v_bfe_u32 {vr(vT2)}, {vr(vLane)}, 4, 1
v_lshl_add_u32 {vr(vT1)}, {vr(vT2)}, 2, {vr(vT1)}
v_add_u32 {vr(vT1)}, {vr(vT1)}, {vr(vT0)}
v_mul_u32_u24 {vr(vT1)}, 160, {vr(vT1)}
v_and_b32 {vr(vT2)}, 3, {vr(vLane)}
v_lshl_add_u32 {vr(vWm0)}, {vr(vT2)}, 3, {vr(vT1)}
v_lshrrev_b32 {vr(vT1)}, 4, {vr(vLane)}
v_mul_u32_u24 {vr(vT1)}, 20, {vr(vT1)}
v_add3_u32 {vr(vT1)}, {vr(vT1)}, {vr(vT0)}, 16
v_mul_u32_u24 {vr(vT1)}, 160, {vr(vT1)}
v_lshl_add_u32 {vr(vWt0)}, {vr(vT2)}, 3, {vr(vT1)}
s_lshl_b32 {sr(sT)}, {sr(sMt3)}, 7
s_lshl_b32 {sr(sT2)}, {sr(sW)}, 4
s_add_u32 {sr(sT)}, {sr(sT)}, {sr(sT2)}
v_and_b32 {vr(vT0)}, 15, {vr(vLane)}
v_add_u32 {vr(vT0)}, {sr(sT)}, {vr(vT0)}
v_mul_u32_u24 {vr(vT0)}, 2560, {vr(vT0)}
v_lshrrev_b32 {vr(vT1)}, 4, {vr(vLane)}
v_lshl_add_u32 {vr(vT0)}, {vr(vT1)}, 3, {vr(vT0)}
s_mul_i32 {sr(sT)}, {sr(sB)}, 1280
s_mul_i32 {sr(sT2)}, {sr(sCg)}, 160
s_add_u32 {sr(sT)}, {sr(sT)}, {sr(sT2)}
v_add_u32 {vr(vOo)}, {sr(sT)}, {vr(vT0)}
v_mov_b32 {vr(vRd)}, {LW_RDY}
s_lshl_b32 {sr(sT2)}, {sr(sMt3)}, 3
s_add_u32 {sr(sT2)}, {sr(sT2)}, {sr(sW)}
s_mul_i32 {sr(sT2)}, {sr(sT2)}, {16*2560}
s_add_u32 {sr(sOo)}, {sr(sT)}, {sr(sT2)}
s_mul_i32 {sr(sT2)}, {sr(sW)}, 3072
v_and_b32 {vr(vT0)}, 15, {vr(vLane)}
v_mul_u32_u24 {vr(vT0)}, 160, {vr(vT0)}
v_lshl_add_u32 {vr(vT0)}, {vr(vT1)}, 3, {vr(vT0)}
v_add_u32 {vr(vOw)}, {sr(sT2)}, {vr(vT0)}
v_lshlrev_b32 {vr(vT0)}, 4, {vr(vLane)}
v_add_u32 {vr(vOr)}, {sr(sT2)}, {vr(vT0)}
v_mul_u32_u24 {vr(vT1)}, 6554, {vr(vLane)}
v_lshrrev_b32 {vr(vT1)}, 16, {vr(vT1)}
v_mul_u32_u24 {vr(vT1)}, {2560-160}, {vr(vT1)}
v_add_u32 {vr(vOs[0])}, {vr(vT0)}, {vr(vT1)}
v_add_u32 {vr(vT2)}, 64, {vr(vLane)}
v_mul_u32_u24 {vr(vT1)}, 6554, {vr(vT2)}
v_lshrrev_b32 {vr(vT1)}, 16, {vr(vT1)}
v_mul_u32_u24 {vr(vT1)}, {2560-160}, {vr(vT1)}
v_lshl_add_u32 {vr(vOs[1])}, {vr(vT2)}, 4, {vr(vT1)}
v_add_u32 {vr(vT2)}, 128, {vr(vLane)}
v_mul_u32_u24 {vr(vT1)}, 6554, {vr(vT2)}
v_lshrrev_b32 {vr(vT1)}, 16, {vr(vT1)}
v_mul_u32_u24 {vr(vT1)}, {2560-160}, {vr(vT1)}
v_lshl_add_u32 {vr(vT1)}, {vr(vT2)}, 4, {vr(vT1)}
v_mov_b32 {vr(vT2)}, {OOB}
v_cndmask_b32_e64 {vr(vOs[2])}, {vr(vT1)}, {vr(vT2)}, {sr(sHi,2)}
s_lshl_b32 {sr(sT)}, {sr(sB)}, 4
s_add_u32 {sr(sT)}, {sr(sT)}, {sr(sMt)}
s_lshl_b32 {sr(sT)}, {sr(sT)}, {8 if rep_ else 6}
s_add_u32 {sr(sT)}, {sr(sT)}, {sr(sHg)}
s_lshl_b32 {sr(sT)}, {sr(sT)}, 2
s_add_u32 {sr(sT)}, {sr(sT)}, {F_R2 if rep_ else F_FLAG2}
{f'v_lshl_add_u32 {vr(vDn)}, {vr(vLane)}, 7, {sr(sT)}' if rep_ else f'v_mov_b32 {vr(vDn)}, {sr(sT)}'}
v_add_u32 {vr(vWm0)}, {WO_LO}, {vr(vWm0)}
v_add_u32 {vr(vWt0)}, {WO_LO}, {vr(vWt0)}
SKIP''')
    for t in range(5):
        for i in range(4):
            a(f'v_mov_b32 {vr(acc3[t]+i)}, 0')
    tid_ = [0]
    base3 = st.n
    if sset == 3: st.n += 4
    def read_rdy():
        a(f'''ds_read_b64 {vr(vT0,2)}, {vr(vRd)}
s_waitcnt lgkmcnt(0)
v_and_b32 {vr(vT0)}, {vr(vT0)}, {vr(vT1)}
s_nop 0
v_readfirstlane_b32 {sr(sT)}, {vr(vT0)}
s_andn2_b32 {sr(sT)}, {sr(sT)}, {sr(sDone)}''')
    def loads(s_, early_=False):
        a(f'''s_lshl_b32 {sr(sT2)}, {sr(sT)}, 8
s_or_b32 {sr(sT)}, {sr(sT)}, {sr(sT2)}
s_lshr_b32 {sr(sT)}, {sr(sT)}, {sr(sRot)}
s_ff1_i32_b32 {sr(sT)}, {sr(sT)}
s_add_u32 {sr(sT)}, {sr(sT)}, {sr(sRot)}
s_and_b32 {sr(sT)}, {sr(sT)}, 7
s_bitset1_b32 {sr(sDone)}, {sr(sT)}
s_mul_i32 {sr(sT2)}, {sr(sT)}, 10240
s_add_u32 {sr(sT2)}, {sr(sT2)}, {sr(sA)}
s_cmp_eq_u32 {sr(sT)}, 6
s_mul_i32 {sr(sT)}, {sr(sT)}, 12800
s_cselect_b32 {sr(sT)}, {QST - WO_LO}, {sr(sT)}''')
        for p in range(4):
            a(f'buffer_load_dwordx4 {vr(A[s_][p],4)}, {vr(vAo)}, {sr(SWS,4)}, {sr(sT2)} offen{SLD}')
            if p == 0:
                a(f'buffer_load_dwordx2 {vr(A[s_][4],2)}, {vr(vAt)}, {sr(SWS,4)}, {sr(sT2)} offen{SLD}')
            if p == 2:
                a(f'buffer_load_dwordx2 {vr(A[s_][4]+2,2)}, {vr(vAt)}, {sr(SWS,4)}, {sr(sT2)} offen{SLD}')
            if p < 3:
                a(f's_add_u32 {sr(sT2)}, {sr(sT2)}, 5120')
        if early_:
            a(f's_mov_b32 {sr(sPre)}, {sr(sT)}')
            return
        a(f'v_add_u32 {vr(vWm[s_])}, {sr(sT)}, {vr(vWm0)}')
        a(f'v_add_u32 {vr(vWt[s_])}, {sr(sT)}, {vr(vWt0)}')
        if sset == 3 and st.on:
            a(f's_memtime s[{62+2*(base3+s_)}:{63+2*(base3+s_)}]\ns_waitcnt lgkmcnt(0)')
    def take_group(s_):
        n = tid_[0]; tid_[0] += 1
        a.label(f'{name}_tg{n}')
        read_rdy()
        a(f'''s_cbranch_scc1 {name}_tgd{n}
s_sleep 1
s_branch {name}_tg{n}''')
        a.label(f'{name}_tgd{n}')
        loads(s_)
    a('s_waitcnt vmcnt(0)')
    a(f'''s_mov_b64 exec, 1
v_mov_b32 {vr(vT0)}, 1
ds_add_rtn_u32 {vr(vT0)}, {vr(vRd)}, {vr(vT0)} offset:8
v_mov_b32 {vr(vT1)}, {sr(sTag)}
v_mov_b32 {vr(vT2)}, 0xff
s_waitcnt lgkmcnt(0)
v_readfirstlane_b32 {sr(sT)}, {vr(vT0)}
s_cmp_eq_u32 {sr(sT)}, 7
s_cbranch_scc0 {name}_nl
ds_write_b32 {vr(vRd)}, {vr(vT2)} offset:4
{'s_mov_b64 exec, 0xff' if rep_ else 'SKIP'}
v_mov_b32 {vr(vT1)}, {sr(sTag)}
buffer_store_dword {vr(vT1)}, {vr(vDn)}, {sr(SWS,4)}, 0 offen{SC}''')
    a.label(f'{name}_nl')
    a('s_mov_b64 exec, -1')
    if sset == 3: st()
    st6(1)
    def rdW3(fs, j, p, t):
        out = []
        for rd in range(2):
            if p < 4:
                base, off = vWm[j], (20*(2*p) + 8*rd)*160 + t*32
            else:
                base, off = vWt[j], (20*(4*rd))*160 + t*32
            out.append(f'ds_read_b64_tr_b16 {vr(Wg[fs][t]+2*rd,2)}, {vr(base)} offset:{off}')
        return out
    if opts.get('evt', 1):
        st0()
        sJ = sG
        a(f's_cmp_lg_u32 {sr(sPre)}, -1')
        a(f's_cselect_b32 {sr(sI)}, 1, 0')
        a(f'v_add_u32 {vr(vWm[0])}, {sr(sPre)}, {vr(vWm0)}')
        a(f'v_add_u32 {vr(vWt[0])}, {sr(sPre)}, {vr(vWt0)}')
        a(f's_mov_b32 {sr(sJ)}, 0')
        a.label(f'{name}_ev')
        dep3 = opts.get('dep3', 2)
        LANDED = f'''s_getreg_b32 {sr(sT)}, hwreg(HW_REG_IB_STS)
s_bfe_u32 {sr(sT2)}, {sr(sT)}, 0x20016
s_lshl_b32 {sr(sT2)}, {sr(sT2)}, 4
s_and_b32 {sr(sT)}, {sr(sT)}, 15
s_or_b32 {sr(sT)}, {sr(sT)}, {sr(sT2)}
s_add_u32 {sr(sT)}, {sr(sT)}, 6
s_sub_u32 {sr(sT2)}, {sr(sI)}, {sr(sJ)}
s_mul_i32 {sr(sT2)}, {sr(sT2)}, 6
s_cmp_le_u32 {sr(sT)}, {sr(sT2)}
s_cbranch_scc1 {name}_evc'''
        a(f's_cmp_lt_u32 {sr(sI)}, 4')
        a(f's_cbranch_scc0 {name}_evc')
        if dep3 < 4:
            a(f's_sub_u32 {sr(sT)}, {sr(sI)}, {sr(sJ)}')
            a(f's_cmp_ge_u32 {sr(sT)}, {dep3}')
            a(f's_cbranch_scc1 {name}_evc')
        read_rdy()
        a(f's_cbranch_scc0 {name}_evn')
        for i in range(4):
            if i < 3:
                a(f's_cmp_eq_u32 {sr(sI)}, {i}')
                a(f's_cbranch_scc0 {name}_evt{i}')
            if opts.get('p3p', 1) & 1: a(f's_setprio {3 - i}')
            loads(i)
            a(f's_mov_b32 {sr(sI)}, {i+1}')
            a(f's_branch {name}_ev')
            a.label(f'{name}_evt{i}')
        a.label(f'{name}_evn')
        a(LANDED)
        a(f's_branch {name}_ev')
        a.label(f'{name}_evc')
        for j in range(4):
            if j < 3:
                a(f's_cmp_eq_u32 {sr(sJ)}, {j}')
                a(f's_cbranch_scc0 {name}_evk{j}')
            if sset == 8 and j in (1, 3): st()
            if opts.get('p3p', 1) & 2: a(f's_setprio {3 - j}')
            for p in range(2):
                for t in range(5):
                    for r in rdW3(p, j, p, t): a(r)
            for k in range(4, j + 1, -1):
                a(f's_cmp_eq_u32 {sr(sI)}, {k}')
                a(f's_cbranch_scc0 {name}_evw{j}_{k}')
                a(f's_waitcnt vmcnt({6*(k-j-1)})')
                a(f's_branch {name}_evx{j}')
                a.label(f'{name}_evw{j}_{k}')
            a('s_waitcnt vmcnt(0)')
            a.label(f'{name}_evx{j}')
            if sset == 3 and j in (0, 3): st()
            if j in (0, 3): st6(1)
            if sset == 8 and j == 3: st()
            for p in range(5):
                fs = p % 2
                a(f's_waitcnt lgkmcnt({10 if p < 4 else 0})')
                for t in range(5):
                    a(f'v_mfma_f32_16x16x32_bf16 {vr(acc3[t],4)}, {vr(Wg[fs][t],4)}, {vr(A[j][p],4)}, {vr(acc3[t],4)}')
                    if p + 2 < 5:
                        for r in rdW3(fs, j, p + 2, t): a(r)
            if sset == 8 and j in (1, 3): st()
            if j < 3:
                a(f's_mov_b32 {sr(sJ)}, {j+1}')
                a(f's_branch {name}_ev')
                a.label(f'{name}_evk{j}')
    else:
        st0()
        steps = [(j, p) for j in range(4) for p in range(5)]
        for j in range(4):
            take_group(j)
        for n in range(2):
            for t in range(5):
                for r in rdW3(n, *steps[n], t): a(r)
        left = {0: 5, 1: 3, 2: 2, 3: 0, 4: 0}
        for n, (j, p) in enumerate(steps):
            fs = n % 2
            a(f's_waitcnt vmcnt({6*(3-j) + left[p]}) lgkmcnt({10 if n < 19 else 0})')
            if sset == 3 and n in (0, 18): st()
            for t in range(5):
                a(f'v_mfma_f32_16x16x32_bf16 {vr(acc3[t],4)}, {vr(Wg[fs][t],4)}, {vr(A[j][p],4)}, {vr(acc3[t],4)}')
                if n + 2 < 20:
                    for r in rdW3(fs, *steps[n+2], t): a(r)

    a('s_nop 3')
    st0()
    if sset == 3: st()
    OUTF = {0: '', 1: ' nt', 2: ' sc1', 3: ' sc0 sc1', 4: ' sc1 nt', 5: ' sc0 sc1 nt'}[opts.get('outf', 2)]
    if opts.get('ow', 1):
        for t in range(5):
            a(f'v_cvt_pk_bf16_f32 {vr(acc3[t])}, {vr(acc3[t])}, {vr(acc3[t]+1)}')
            a(f'v_cvt_pk_bf16_f32 {vr(acc3[t]+1)}, {vr(acc3[t]+2)}, {vr(acc3[t]+3)}')
            a(f'ds_write_b64 {vr(vOw)}, {vr(acc3[t],2)} offset:{t*32}')
        a('s_waitcnt lgkmcnt(0)')
        for k in range(3):
            a(f'ds_read_b128 {vr(Wg[0][k],4)}, {vr(vOr)} offset:{k*1024}')
        for k in range(3):
            a(f's_waitcnt lgkmcnt({2-k})')
            a(f'buffer_store_dwordx4 {vr(Wg[0][k],4)}, {vr(vOs[k])}, {sr(SOUT,4)}, {sr(sOo)} offen{OUTF}')
    else:
        for t in range(5):
            a(f'v_cvt_pk_bf16_f32 {vr(acc3[t])}, {vr(acc3[t])}, {vr(acc3[t]+1)}')
            a(f'v_cvt_pk_bf16_f32 {vr(acc3[t]+1)}, {vr(acc3[t]+2)}, {vr(acc3[t]+3)}')
            a(f'buffer_store_dwordx2 {vr(acc3[t],2)}, {vr(vOo)}, {sr(SOUT,4)}, 0 offen offset:{t*32}{OUTF}')

    if sset == 5:
        st(); st()
    if dbgt:
        a('s_waitcnt vmcnt(0)')
        rts(5)
        a('s_mov_b64 exec, 1')
        a(f's_not_b32 s62, s62')
        for k in range(6):
            a(f'v_mov_b32 {vr(vT0)}, {4+4*k}')
            a(f'v_mov_b32 {vr(vT1)}, s{62+2*k}')
            a(f'buffer_atomic_umax {vr(vT1)}, {vr(vT0)}, {sr(SDBG,4)}, 0 offen')
            a('s_nop 1')
    if st.on:
        a('s_waitcnt vmcnt(0)')
    st(); st.rt(); st.flush(sW)
    n_total = st.n
    iw = opts.get('iw', 0)
    nseg = 0
    if iw:
        import re as _re
        def nbytes(l):
            l = l.strip()
            if not l or l.endswith(':') or l.startswith((';', '.')): return 0
            op = l.split()[0]
            if op.startswith(('ds_', 'buffer_', 'global_', 'v_mfma', 'v_smfmac', 'v_pk_', 'v_cvt_pk', 'v_lshl_add', 'v_add3', 'v_mad', 'v_bfe', 'v_readfirstlane_x')) or '_e64' in op or '_dpp' in op: return 8
            return 8 if _re.search(r'(?<![\w\[:])(0x[0-9a-f]{3,}|\d{3,})(?![\w\]:])', l.split(None, 1)[1] if ' ' in l else '') and not op.startswith(('s_waitcnt', 's_cbranch', 's_branch')) else 4
        body = a.lines[tail0:]
        out = []; acc_b = iw; k = 0
        SEG = opts.get('iwseg', 6)
        for l in body:
            if acc_b >= iw and nbytes(l):
                out.append(f'{name}_pad{k}:')
                out.append(f'    s_cbranch_execz PADNEXT{k}')
                k += 1; acc_b = 4
            out.append(l); acc_b += nbytes(l)
        for i in range(k):
            tgt = f'{name}_padret' if (i % SEG == SEG - 1 or i == k - 1) else f'{name}_pad{i+1}'
            out = [x.replace(f'PADNEXT{i}', tgt) if x.endswith(f'PADNEXT{i}') else x for x in out]
        a.lines[tail0:] = out
        nseg = (k + SEG - 1) // SEG
        print('pads', k, 'segments', nseg)
    a.label(f'{name}_done')
    a('s_endpgm')

    if nobar:
        for rep in range(unroll):
            a.label(f'{name}_spin{rep}')
            a(f'''ds_read_b64 {vr(vPw,2)}, {vr(vPa)}
s_waitcnt lgkmcnt(0)
v_readfirstlane_b32 {sr(sT)}, {vr(vPw)}''')
            if nobar == 2:
                a(f'''v_readfirstlane_b32 {sr(sT2)}, {vr(vPw+1)}
s_add_u32 {sr(sT2)}, {sr(sT2)}, {1 + opts.get("slack", 0)}
s_min_u32 {sr(sT)}, {sr(sT)}, {sr(sT2)}''')
            a(f'''s_cmp_gt_u32 {sr(sT)}, {sr(sT3)}
s_cbranch_scc0 {name}_spin{rep}
s_branch {name}_spun{rep}''')
    if g1s:
        a.label(f'{name}_g1w')
        a(f'''v_mov_b32 {vr(vT0)}, {LW_G1}
ds_read_b32 {vr(vT0)}, {vr(vT0)}
s_waitcnt lgkmcnt(0)
v_readfirstlane_b32 {sr(sT)}, {vr(vT0)}
s_cmp_eq_u32 {sr(sT)}, 0
s_cbranch_scc1 {name}_g1w
s_branch {name}_g1r''')
    if pre:
        a.label(f'{name}_pre')
        a(f'''v_mov_b32 {vr(vT0)}, {LW_RDY}
ds_read_b32 {vr(vT0)}, {vr(vT0)}
s_waitcnt lgkmcnt(0)
v_readfirstlane_b32 {sr(sT)}, {vr(vT0)}
s_cmp_eq_u32 {sr(sT)}, 0
s_cbranch_scc1 {name}_prer''')
        loads(0, True)
        a(f's_branch {name}_prer')
    for k, force in enumerate(sigpts):
        a.label(f'{name}_sg{k}')
        if not force:
            a(f'''s_getreg_b32 {sr(sT)}, hwreg(HW_REG_IB_STS)
s_and_b32 {sr(sT)}, {sr(sT)}, 0xc0000f
s_cbranch_scc1 {name}_sgr{k}''')
        sig_code(f'{name}_sgn{k}', 4)
        a(f's_mov_b32 {sr(sSig)}, 0')
        if opts.get('dsig') == 2: a('s_setprio 0')
        a(f's_branch {name}_sgr{k}')
    a.label(f'{name}_fallback')
    M = [vT4, vT5]
    vVo = vPa
    a(f'''v_cndmask_b32_e64 {vr(Q2[0])}, {vr(Q2[0])}, 0, {sr(sHi,2)}
v_cndmask_b32_e64 {vr(Q2[0]+1)}, {vr(Q2[0]+1)}, 0, {sr(sHi,2)}
v_cndmask_b32_e64 {vr(Q2[1])}, {vr(Q2[1])}, 0, {sr(sHi,2)}
v_cndmask_b32_e64 {vr(Q2[1]+1)}, {vr(Q2[1]+1)}, 0, {sr(sHi,2)}
v_mov_b32 {vr(M[0])}, 0xff800000
v_mov_b32 {vr(M[1])}, 0xff800000
v_mov_b32 {vr(vT1)}, {OOB}
s_lshr_b32 {sr(sT)}, {sr(sW)}, 1
s_mul_i32 {sr(sT)}, {sr(sT)}, 10240
v_subrev_u32 {vr(vT0)}, {sr(sT)}, {vr(vbV)}
v_cmp_eq_u32 vcc, 1, {vr(vmV)}
s_mov_b32 {sr(sT)}, {sr(sKV)}
s_mov_b32 {sr(sG)}, 0
v_cndmask_b32 {vr(vVo)}, {vr(vT1)}, {vr(vT0)}, vcc
s_mov_b64 {sr(sM2,2)}, vcc
s_waitcnt vmcnt(0)''')
    a.label(f'{name}_fb1')
    a(f'''buffer_load_dwordx4 {vr(K1[0],4)}, {vr(vQo)}, {sr(SWS,4)}, {sr(sT)} offen{SC}
buffer_load_dwordx2 {vr(K2[0],2)}, {vr(vQo2)}, {sr(SWS,4)}, {sr(sT)} offen{SC}
s_waitcnt vmcnt(0)''')
    qk16(0, 0); qk16(1, 0); qk8(0, 0); qk8(1, 0)
    a('s_nop 15')
    for t in range(2):
        rowmax(t, vT0)
        a(f'v_max_f32 {vr(M[t])}, {vr(M[t])}, {vr(vT0)}')
    a(f'''s_add_u32 {sr(sT)}, {sr(sT)}, 2560
s_add_u32 {sr(sG)}, {sr(sG)}, 1
s_cmp_lt_u32 {sr(sG)}, 64
s_cbranch_scc1 {name}_fb1''')
    for t in range(2):
        crosshalf(M[t], vT1)
        a(f'v_max_f32 {vr(M[t])}, {vr(M[t])}, {vr(vT1)}')
        for i in range(16):
            a(f'v_mov_b32 {vr(O[t]+i)}, 0')
    a(f's_mov_b32 {sr(sT)}, {sr(sKV)}')
    a(f's_mov_b32 {sr(sG)}, 0')
    a(f'v_mov_b32 {vr(vT1)}, 0x3f803f80')
    a.label(f'{name}_fb2')
    a(f'''buffer_load_dwordx4 {vr(K1[0],4)}, {vr(vQo)}, {sr(SWS,4)}, {sr(sT)} offen{SC}
buffer_load_dwordx2 {vr(K2[0],2)}, {vr(vQo2)}, {sr(SWS,4)}, {sr(sT)} offen{SC}
buffer_load_dwordx4 {vr(V0[0],4)}, {vr(vVo)}, {sr(SWS,4)}, {sr(sT)} offen{SC}
buffer_load_dwordx4 {vr(V1[0],4)}, {vr(vVo)}, {sr(SWS,4)}, {sr(sT)} offen offset:640{SC}
s_waitcnt vmcnt(0)''')
    qk16(0, 0); qk16(1, 0); qk8(0, 0); qk8(1, 0)
    for i in range(4):
        a(f'v_cndmask_b32_e64 {vr(V0[0]+i)}, {vr(vT1)}, {vr(V0[0]+i)}, {sr(sM2,2)}')
        a(f'v_cndmask_b32_e64 {vr(V1[0]+i)}, {vr(vT1)}, {vr(V1[0]+i)}, {sr(sM2,2)}')
    a('s_nop 15')
    for t in range(2):
        for i in range(16):
            a(f'v_sub_f32 {vr(S[t]+i)}, {vr(S[t]+i)}, {vr(M[t])}')
        for i in range(16):
            ex(t, i)
    a('s_nop 1')
    for t in range(2):
        pv(t, 0, 0); pv(t, 0, 1)
    a(f'''s_add_u32 {sr(sT)}, {sr(sT)}, 2560
s_add_u32 {sr(sG)}, {sr(sG)}, 1
s_cmp_lt_u32 {sr(sG)}, 64
s_cbranch_scc1 {name}_fb2''')
    a('s_nop 15')
    a(f's_mov_b32 {sr(sI)}, 1')
    a(f's_branch {name}_store')

    a.label(f'{name}_helper')
    st.n = n_common
    V = VAlloc(VBASE)
    vEp = V(); vL16 = V(); vFl = V()
    VH = V.n
    a('s_setprio 3')
    a(SRDS)
    if opts.get('cpf', 1) == 2:
        a(f'''s_getpc_b64 {sr(sM,2)}
{name}_pc:
s_sub_u32 {sr(sM)}, {sr(sM)}, {name}_pc - {name}
s_subb_u32 {sr(sM+1)}, {sr(sM+1)}, 0
s_lshr_b32 {sr(sT)}, s2, 3
s_lshl_b32 {sr(sT)}, {sr(sT)}, 6''')
        for i in range(14):
            a(f's_load_dword s{64+i}, {sr(sM,2)}, {sr(sT)}')
            a(f's_add_u32 {sr(sT)}, {sr(sT)}, 2048')
            a(f's_min_u32 {sr(sT)}, {sr(sT)}, {name}_end - {name} - 4')
    elif opts.get('cpf', 1):
        a(f'''s_getpc_b64 {sr(sM,2)}
{name}_pc:
s_sub_u32 {sr(sM)}, {sr(sM)}, {name}_pc - {name}
s_subb_u32 {sr(sM+1)}, {sr(sM+1)}, 0
s_lshr_b32 {sr(sT)}, s2, 3
v_lshlrev_b32 {vr(vT0)}, 5, {vr(vLane)}
v_add_u32 {vr(vT0)}, {sr(sT)}, {vr(vT0)}
v_lshlrev_b32 {vr(vT0)}, 7, {vr(vT0)}
v_min_u32 {vr(vT0)}, {name}_end - {name} - 4, {vr(vT0)}
s_mov_b64 exec, 0xfff
global_load_dword {vr(vFl)}, {vr(vT0)}, {sr(sM,2)}
s_mov_b64 exec, -1''')
    elate = opts.get('elate', 0)
    if not elate and not sep:
        a(f'v_mov_b32 {vr(vT0)}, {F_EPOCH}')
        a(f'buffer_load_dword {vr(vEp)}, {vr(vT0)}, {sr(SWS,4)}, 0 offen{SC}')
    stl = opts.get('stl', 0)
    if stl:
        ns = max(ns, 72)
        if stl & 1:
            a(f's_mul_i32 {sr(sT)}, {sr(sMt3)}, {128*2560}')
            a(f's_load_dword s64, {sr(SOUT,2)}, {sr(sT)}')
            a(f's_add_u32 {sr(sT)}, {sr(sT)}, {128*2560-4}')
            a(f's_load_dword s65, {sr(SOUT,2)}, {sr(sT)}')
        if stl & 2:
            a(f's_load_dword s66, {sr(SWO,2)}, 0')
        if stl & 4:
            a(f's_load_dword s67, {sr(SWS,2)}, {sr(sKV)}')
            a(f's_add_u32 {sr(sT)}, {sr(sKV)}, {4*KV_HEAD-4}')
            a(f's_load_dword s68, {sr(SWS,2)}, {sr(sT)}')
        if stl & 8:
            for k, m in ((69, sMt), (70, sMt3)):
                a(f's_lshl_b32 {sr(sT)}, {sr(sB)}, 4')
                a(f's_add_u32 {sr(sT)}, {sr(sT)}, {sr(m)}')
                a(f's_mul_i32 {sr(sT)}, {sr(sT)}, {2*32*2560}')
                a(f's_add_u32 {sr(sT)}, {sr(sT)}, {F_WS_O}')
                a(f's_load_dword s{k}, {sr(SWS,2)}, {sr(sT)}')
    tlb = opts.get('tlb', 0)
    if tlb & 1:
        a(f'''v_lshlrev_b32 {vr(vT1)}, 18, {vr(vLane)}
buffer_load_dword {vr(vFl)}, {vr(vT1)}, {sr(SWS,4)}, 0 offen''')
    if tlb & 2:
        a(f'''v_lshlrev_b32 {vr(vT1)}, 18, {vr(vLane)}
buffer_load_dword {vr(vT2)}, {vr(vT1)}, {sr(SOUT,4)}, 0 offen
buffer_load_dword {vr(vT3)}, {vr(vT1)}, {sr(SWO,4)}, 0 offen''')
    if tlb & 4:
        a(f'''v_lshlrev_b32 {vr(vT1)}, 21, {vr(vLane)}
buffer_load_dword {vr(vFl)}, {vr(vT1)}, {sr(SWS,4)}, 0 offen
buffer_load_dword {vr(vT4)}, {vr(vT1)}, {sr(SOUT,4)}, 0 offen
buffer_load_dword {vr(vT5)}, {vr(vT1)}, {sr(SWO,4)}, 0 offen''')
    a(f'v_lshlrev_b32 {vr(vL16)}, 4, {vr(vLane)}')
    vP = V(); vC8 = V(8); vPwa = V(); vFu = V(); vPo1 = V(); vPo2 = V(); vPo = V(); vLw = V()
    vW3 = [V() for _ in range(5)]
    vPf = [V() for _ in range(4)]
    vHX = [V() for _ in range(4)]
    vHW = [V() for _ in range(15)]
    vIx = V(); vIw = V(); vSx = V(); vSw = V(); vJ = [V() for _ in range(6)]
    done_alloc(V)
    if stag:
        a(f'''s_lshr_b32 {sr(sT)}, s2, 3
s_and_b32 {sr(sT2)}, s2, 1
s_lshl_b32 {sr(sT2)}, {sr(sT2)}, 5
s_add_u32 {sr(sT2)}, {sr(sT2)}, {sr(sT)}
s_lshl_b32 {sr(sT2)}, {sr(sT2)}, 5
v_and_b32 {vr(vT0)}, 31, {vr(vLane)}
v_add_u32 {vr(vT2)}, {sr(sT2)}, {vr(vT0)}
v_mul_u32_u24 {vr(vT2)}, 1280, {vr(vT2)}
v_lshrrev_b32 {vr(vT1)}, 5, {vr(vLane)}
v_lshl_add_u32 {vr(vIx)}, {vr(vT1)}, 7, {vr(vT2)}
buffer_load_dword {vr(vJ[0])}, {vr(vIx)}, {sr(SX,4)}, 0 offen
v_cmp_le_u32 vcc, 15, {vr(vT0)}
s_lshl_b32 {sr(sT)}, {sr(sT)}, 1
s_bfe_u32 {sr(sT2)}, s2, 0x10001
v_cndmask_b32_e64 {vr(vT2)}, 0, 1, vcc
v_mul_u32_u24 {vr(vT3)}, 15, {vr(vT2)}
v_sub_u32 {vr(vT3)}, {vr(vT0)}, {vr(vT3)}
v_lshl_add_u32 {vr(vT2)}, {vr(vT1)}, 6, {vr(vT2)}
v_add_u32 {vr(vT2)}, {sr(sT)}, {vr(vT2)}
v_mul_u32_u24 {vr(vT2)}, 3840, {vr(vT2)}
v_mul_u32_u24 {vr(vT4)}, 52, {vr(vT3)}
v_lshrrev_b32 {vr(vT4)}, 8, {vr(vT4)}
v_mul_u32_u24 {vr(vT4)}, {1280-640}, {vr(vT4)}
v_lshl_add_u32 {vr(vT4)}, {vr(vT3)}, 7, {vr(vT4)}
s_mul_i32 {sr(sT2)}, {sr(sT2)}, 640
v_add3_u32 {vr(vIw)}, {vr(vT2)}, {vr(vT4)}, {sr(sT2)}
v_cmp_le_u32 vcc, 30, {vr(vT0)}
v_mov_b32 {vr(vT2)}, {OOB}
s_mov_b32 {sr(sT)}, {128*3840}
v_cndmask_b32 {vr(vIw)}, {vr(vIw)}, {vr(vT2)}, vcc
buffer_load_dword {vr(vJ[1])}, {vr(vIw)}, {sr(SWQ,4)}, 0 offen''')
        if stag >= 2:
            a(f'buffer_load_dword {vr(vJ[2])}, {vr(vIx)}, {sr(SX,4)}, 0 offen offset:256')
            a(f'buffer_load_dword {vr(vJ[3])}, {vr(vIw)}, {sr(SWQ,4)}, {sr(sT)} offen')
        a(f'''s_bfe_u32 {sr(sT)}, s2, 0x30003
s_and_b32 {sr(sI)}, s2, 1
s_lshl_b32 {sr(sI)}, {sr(sI)}, 3
s_add_u32 {sr(sI)}, {sr(sI)}, {sr(sT)}
s_lshl_b32 {sr(sI)}, {sr(sI)}, 7
v_add_u32 {vr(vT0)}, {sr(sI)}, {vr(vLane)}
v_mul_u32_u24 {vr(vSx)}, 1280, {vr(vT0)}
v_mul_u32_u24 {vr(vT1)}, 4370, {vr(vLane)}
v_lshrrev_b32 {vr(vT1)}, 16, {vr(vT1)}
v_mul_u32_u24 {vr(vT2)}, 15, {vr(vT1)}
v_sub_u32 {vr(vT3)}, {vr(vLane)}, {vr(vT2)}
s_lshl_b32 {sr(sT)}, {sr(sT)}, 3
v_add_u32 {vr(vT1)}, {sr(sT)}, {vr(vT1)}
v_mul_u32_u24 {vr(vT1)}, 3840, {vr(vT1)}
v_mul_u32_u24 {vr(vT4)}, 52, {vr(vT3)}
v_lshrrev_b32 {vr(vT4)}, 8, {vr(vT4)}
v_mul_u32_u24 {vr(vT4)}, {1280-640}, {vr(vT4)}
v_lshl_add_u32 {vr(vT4)}, {vr(vT3)}, 7, {vr(vT4)}
v_add3_u32 {vr(vSw)}, {vr(vT1)}, {vr(vT4)}, {sr(sT2)}
v_cmp_le_u32 vcc, 60, {vr(vLane)}
v_mov_b32 {vr(vT2)}, {OOB}
s_lshr_b32 {sr(sM0a)}, s2, 6
v_cndmask_b32 {vr(vSw)}, {vr(vSw)}, {vr(vT2)}, vcc''')
    sgid = [0]
    def stag_pf():
        if not stag: return
        n = sgid[0]; sgid[0] += 1
        AH = opts.get('ahead', 2)
        a(f'''s_add_u32 {sr(sT)}, {sr(sKK)}, {1 + AH}
s_and_b32 {sr(sT2)}, {sr(sT)}, 3
s_cmp_eq_u32 {sr(sT2)}, {sr(sM0a)}
s_cselect_b32 {sr(sT2)}, {sr(sT)}, 99
s_cmp_lt_u32 {sr(sT2)}, {2*stag}
s_cselect_b32 {sr(sT2)}, 99, {sr(sT2)}
s_cmp_lt_u32 {sr(sT2)}, 10
s_cbranch_scc0 {name}_sp{n}
s_lshl_b32 {sr(sT2)}, {sr(sT)}, 7
buffer_load_dword {vr(vJ[0])}, {vr(vSx)}, {sr(SX,4)}, {sr(sT2)} offen
s_add_u32 {sr(sT2)}, {sr(sT2)}, {64*1280}
buffer_load_dword {vr(vJ[1])}, {vr(vSx)}, {sr(SX,4)}, {sr(sT2)} offen
s_mul_i32 {sr(sT2)}, {sr(sT)}, {64*3840}
buffer_load_dword {vr(vJ[2])}, {vr(vSw)}, {sr(SWQ,4)}, {sr(sT2)} offen
s_add_u32 {sr(sT2)}, {sr(sT2)}, {4*3840}
buffer_load_dword {vr(vJ[3])}, {vr(vSw)}, {sr(SWQ,4)}, {sr(sT2)} offen''')
        a.label(f'{name}_sp{n}')
    a(f'''{XROW}
v_lshrrev_b32 {vr(vT0)}, 3, {vr(vLane)}
v_add_u32 {vr(vT0)}, {sr(sT)}, {vr(vT0)}
v_mul_u32_u24 {vr(vT0)}, 1280, {vr(vT0)}
v_lshrrev_b32 {vr(vT1)}, 4, {vr(vLane)}
v_and_b32 {vr(vT3)}, 7, {vr(vLane)}
v_xor_b32 {vr(vT2)}, {vr(vT1)}, {vr(vT3)}
v_lshl_add_u32 {vr(vHX[0])}, {vr(vT2)}, 4, {vr(vT0)}
v_xor_b32 {vr(vT2)}, 64, {vr(vHX[0])}
v_add_u32 {vr(vHX[1])}, {10240-1024}, {vr(vT2)}
v_add_u32 {vr(vHX[2])}, {2*(10240-1024)}, {vr(vHX[0])}
v_add_u32 {vr(vHX[3])}, {3*(10240-1024)}, {vr(vT2)}''')
    for pi in range(15):
        a(f's_sub_u32 {sr(sT)}, {sr(sT3)}, {(pi%4)*1024}')
        w_pattern(vHW[pi], f'v_add_u32 {vr(vT0)}, {64*pi}, {vr(vLane)}', sr(sT))
    def next_k():
        a(f'''s_add_u32 {sr(sKK)}, {sr(sKK)}, 1
s_cmp_eq_u32 {sr(sKK)}, 10
s_cselect_b32 {sr(sKK)}, 0, {sr(sKK)}
s_lshl_b32 {sr(sXo)}, {sr(sKK)}, 7
s_mul_i32 {sr(sWo)}, {sr(sKK)}, {64*3840}''')
    def issue_x():
        for jj in range(8 if opts.get('hack64') else 16):
            if jj % 4 == 0:
                a(f's_add_u32 m0, {sr(sSlot)}, {jj*1024}')
                a(f's_add_u32 {sr(sT)}, {sr(sXo)}, {jj*10240}')
            a(f'buffer_load_dwordx4 {vr(vHX[jj%4])}, {sr(SX,4)}, {sr(sT)} offen offset:{(jj%4)*1024} lds')
    def issue_w(only=None):
        for half in (range(2) if only is None else [only]):
            for pi in range(15):
                if pi % 4 == 0:
                    a(f's_add_u32 m0, {sr(sSlot)}, {XSZ + half*15360 + pi*1024}')
                    a(f's_add_u32 {sr(sT)}, {sr(sWo)}, {half*32*3840}')
                a(f'buffer_load_dwordx4 {vr(vHW[pi])}, {sr(SWQ,4)}, {sr(sT)} offen offset:{(pi%4)*1024} lds')
    def issue_stage():
        stag_pf(); next_k()
        if opts.get('wfirst'):
            issue_w(0); issue_x(); issue_w(1)
        else:
            issue_x(); issue_w()
        a(f'''s_add_u32 {sr(sSlot)}, {sr(sSlot)}, {STG}
s_cmp_ge_u32 {sr(sSlot)}, {3*STG}
s_cselect_b32 {sr(sSlot)}, 0, {sr(sSlot)}''')
    pfw = opts.get('pfw', 0) and not stag and not opts.get('rot0')
    if pfw:
        a(f'''s_lshr_b32 {sr(sT)}, s2, 6
s_mul_i32 {sr(sT)}, {sr(sT)}, 3
s_add_u32 {sr(sT)}, {sr(sT)}, 8
s_bfe_u32 {sr(sT2)}, s2, 0x30003
s_lshr_b32 {sr(sI)}, {sr(sT2)}, 2
s_add_u32 {sr(sT)}, {sr(sT)}, {sr(sI)}
s_cmp_ge_u32 {sr(sT)}, 10
s_cselect_b32 {sr(sI)}, 10, 0
s_sub_u32 {sr(sT)}, {sr(sT)}, {sr(sI)}
s_lshl_b32 {sr(sT)}, {sr(sT)}, 6
s_and_b32 {sr(sT2)}, {sr(sT2)}, 3
s_lshl_b32 {sr(sT2)}, {sr(sT2)}, 4
s_add_u32 {sr(sT)}, {sr(sT)}, {sr(sT2)}
s_mul_i32 {sr(sT)}, {sr(sT)}, 3840
s_add_u32 {sr(sRdy)}, {sr(sT)}, {sr(sT3)}
v_lshrrev_b32 {vr(vT0)}, 3, {vr(vLane)}
v_mul_u32_u24 {vr(vT0)}, 3840, {vr(vT0)}
v_bfe_u32 {vr(vT1)}, {vr(vLane)}, 1, 2
v_mul_u32_u24 {vr(vT2)}, 1280, {vr(vT1)}
v_and_b32 {vr(vT3)}, 1, {vr(vLane)}
v_mul_u32_u24 {vr(vT3)}, 156, {vr(vT3)}
v_add3_u32 {vr(vT0)}, {vr(vT0)}, {vr(vT2)}, {vr(vT3)}
v_cmp_eq_u32 vcc, 3, {vr(vT1)}
v_mov_b32 {vr(vT2)}, {OOB}
s_nop 0
v_cndmask_b32 {vr(vPo)}, {vr(vT0)}, {vr(vT2)}, vcc''')
    a(f's_mov_b32 {sr(sSlot)}, {STG}')
    st1()
    if opts.get('s0', 1): a('s_barrier')
    st1()
    if elate and not sep:
        a(f'v_mov_b32 {vr(vT0)}, {F_EPOCH}')
        a(f'buffer_load_dword {vr(vEp)}, {vr(vT0)}, {sr(SWS,4)}, 0 offen{SC}')
    if pfw:
        a(f'buffer_load_dword {vr(vPf[0])}, {vr(vPo)}, {sr(SWQ,4)}, {sr(sRdy)} offen')
        a(f's_add_u32 {sr(sRdy)}, {sr(sRdy)}, {8*3840}')
        a(f'buffer_load_dword {vr(vPf[1])}, {vr(vPo)}, {sr(SWQ,4)}, {sr(sRdy)} offen')
    if opts.get('xfirst', 0):
        next_k(); issue_x()
        a(f's_mov_b32 {sr(sSrc)}, {sr(sWo)}')
        a(f's_mov_b32 {sr(sSlot)}, {2*STG}')
        next_k(); issue_x()
        st1()
        if opts.get('xfirst') == 1: a('s_barrier')
        a(f's_mov_b32 {sr(sSlot)}, {STG}')
        a(f's_mov_b32 {sr(sI)}, {sr(sWo)}')
        a(f's_mov_b32 {sr(sWo)}, {sr(sSrc)}')
        issue_w()
        if opts.get('xfirst') == 2: a('s_barrier')
        a(f's_mov_b32 {sr(sSlot)}, {2*STG}')
        a(f's_mov_b32 {sr(sWo)}, {sr(sI)}')
        issue_w()
        a(f's_mov_b32 {sr(sSlot)}, 0')
        a('s_waitcnt vmcnt(30)')
        a('s_barrier')
        st1()
        a(f's_mov_b32 {sr(sI)}, 1')
    else:
        issue_stage()
        st1()
        a('s_barrier')
        st1()
        a(f's_mov_b32 {sr(sI)}, 0')
    a.label(f'{name}_hg')
    issue_stage()
    a(f's_waitcnt vmcnt({38 if opts.get("hack64") else 46})')
    a('s_barrier')
    a(f's_add_u32 {sr(sI)}, {sr(sI)}, 1')
    a(f's_cmp_lt_u32 {sr(sI)}, 8')
    a(f's_cbranch_scc1 {name}_hg')
    st1()
    a(f'''s_lshl_b32 {sr(sT)}, {sr(sB)}, 3
s_add_u32 {sr(sT)}, {sr(sT)}, {sr(sHg)}
s_lshl_b32 {sr(sT)}, {sr(sT)}, 8
s_add_u32 {sr(sT)}, {sr(sT)}, {F_FLAG1}
s_mov_b32 {sr(sM0a)}, {sr(sT)}
{f's_lshl_b32 {sr(sM0a)}, {sr(sB)}, 3' if rep_ else 'SKIP'}
{f's_add_u32 {sr(sM0a)}, {sr(sM0a)}, {sr(sHg)}' if rep_ else 'SKIP'}
{f's_lshl_b32 {sr(sM0a)}, {sr(sM0a)}, 4' if rep_ else 'SKIP'}
{f's_add_u32 {sr(sM0a)}, {sr(sM0a)}, {sr(sMt)}' if rep_ else 'SKIP'}
{f's_lshl_b32 {sr(sM0a)}, {sr(sM0a)}, 7' if rep_ else 'SKIP'}
{f's_add_u32 {sr(sM0a)}, {sr(sM0a)}, {F_R1}' if rep_ else 'SKIP'}
v_lshl_add_u32 {vr(vT0)}, {vr(vLane)}, 2, {sr(sT)}
v_cmp_gt_u32 vcc, 16, {vr(vLane)}
v_mov_b32 {vr(vT1)}, {OOB}
s_lshl_b32 {sr(sT)}, {sr(sB)}, 4
v_cndmask_b32 {vr(vPo1)}, {vr(vT1)}, {vr(vT0)}, vcc
s_add_u32 {sr(sT)}, {sr(sT)}, {sr(sMt3)}
s_lshl_b32 {sr(sT)}, {sr(sT)}, 8
s_add_u32 {sr(sT)}, {sr(sT)}, {F_FLAG2}
s_mov_b32 {sr(sM0b)}, {sr(sT)}
{f's_lshl_b32 {sr(sM0b)}, {sr(sB)}, 4' if rep_ else 'SKIP'}
{f's_add_u32 {sr(sM0b)}, {sr(sM0b)}, {sr(sMt3)}' if rep_ else 'SKIP'}
{f's_lshl_b32 {sr(sM0b)}, {sr(sM0b)}, 3' if rep_ else 'SKIP'}
{f's_add_u32 {sr(sM0b)}, {sr(sM0b)}, {sr(sCg)}' if rep_ else 'SKIP'}
{f's_lshl_b32 {sr(sM0b)}, {sr(sM0b)}, 7' if rep_ else 'SKIP'}
{f's_add_u32 {sr(sM0b)}, {sr(sM0b)}, {F_R2}' if rep_ else 'SKIP'}
v_lshl_add_u32 {vr(vT0)}, {vr(vLane)}, 2, {sr(sT)}
v_cmp_gt_u32 vcc, 8, {vr(vLane)}
v_mov_b32 {vr(vLw)}, {LW_RDY}
s_mul_i32 {sr(sT3)}, {sr(sCg)}, 160
v_cndmask_b32 {vr(vPo2)}, {vr(vT1)}, {vr(vT0)}, vcc''')
    for r in range(5):
        a(f'''v_add_u32 {vr(vT0)}, {64*r}, {vr(vLane)}
v_mul_u32_u24 {vr(vT1)}, 6554, {vr(vT0)}
v_lshrrev_b32 {vr(vT1)}, 16, {vr(vT1)}
v_mul_u32_u24 {vr(vT1)}, {1280-160}, {vr(vT1)}
v_lshl_add_u32 {vr(vT0)}, {vr(vT0)}, 4, {vr(vT1)}
v_add_u32 {vr(vT0)}, {sr(sT3)}, {vr(vT0)}
v_subrev_u32 {vr(vW3[r])}, {(r%4)*1024}, {vr(vT0)}''')
    a(f'''s_lshr_b32 {sr(sT)}, s2, 3
s_mul_i32 {sr(sT)}, {sr(sT)}, {20*1280}
v_lshl_add_u32 {vr(vT0)}, {vr(vLane)}, 7, {sr(sT)}
v_cmp_gt_u32 vcc, 50, {vr(vLane)}
v_mov_b32 {vr(vT1)}, {OOB}
s_mov_b32 {sr(sRdy)}, 0
v_cndmask_b32 {vr(vPo)}, {vr(vT1)}, {vr(vT0)}, vcc
{'s_waitcnt lgkmcnt(0)' if sep else f'v_readfirstlane_b32 {sr(sTag)}, {vr(vEp)}'}
s_lshl_b32 {sr(sDone)}, 1, {sr(sMt)}
s_waitcnt vmcnt({15 if hsplit else 0})
s_add_u32 {sr(sTag)}, {sr(sTag)}, {TAGK}
s_barrier''')
    if early == 1:
        a(f'buffer_load_dword {vr(vP)}, {vr(vPo1)}, {sr(SWS,4)}, 0 offen{SC}')
    a(f'''v_bfe_u32 {vr(vT2)}, {vr(vLane)}, 1, 2
v_mul_u32_u24 {vr(vT2)}, 2560, {vr(vT2)}
v_and_b32 {vr(vT3)}, 1, {vr(vLane)}
v_mul_u32_u24 {vr(vT3)}, 640, {vr(vT3)}
v_add_u32 {vr(vT2)}, {vr(vT2)}, {vr(vT3)}
v_add_u32 {vr(vT2)}, {ONES}, {vr(vT2)}
v_mov_b32 {vr(vC8)}, 0x3f803f80
v_mov_b32 {vr(vC8+1)}, 0x3f803f80
v_mov_b32 {vr(vC8+2)}, 0x3f803f80
v_mov_b32 {vr(vC8+3)}, 0x3f803f80
v_mov_b32 {vr(vC8+4)}, 0
v_mov_b32 {vr(vC8+5)}, 0
v_mov_b32 {vr(vC8+6)}, 0
v_mov_b32 {vr(vC8+7)}, 0
s_mov_b32 {sr(sI)}, 1
s_mov_b32 {sr(sSlot)}, {phys(1)*SLOT}
s_waitcnt vmcnt(0)''')
    if hsplit: a('s_barrier')
    def lds_init():
        a(f'''s_barrier
ds_write_b128 {vr(vT2)}, {vr(vC8,4)}
ds_write_b128 {vr(vT2)}, {vr(vC8+4,4)} offset:16
ds_write_b128 {vr(vLw)}, {vr(vC8+4,4)}
ds_write_b128 {vr(vLw)}, {vr(vC8+4,4)} offset:16''')
    def e_bars():
        a('s_waitcnt lgkmcnt(0)')
        a('s_barrier')
        if not one_e: a('s_barrier')
    gid = [0]
    def smask(n, off, dst):
        SB_ = 80 if st.on else 64
        a(f's_load_dwordx{n} s[{SB_}:{SB_-1+n}], s[6:7], {sr(off)} glc')
        a(f's_mov_b32 {sr(dst)}, 0')
        a('s_waitcnt lgkmcnt(0)')
        for i in range(n - 1, -1, -1):
            a(f's_cmp_eq_u32 s{SB_+i}, {sr(sTag)}')
            a(f's_addc_u32 {sr(dst)}, {sr(dst)}, {sr(dst)}')
    if spoll: ns = max(ns, 80)
    def issue_group(qmajor=False):
        n = gid[0]; gid[0] += 1
        a(f'''s_andn2_b32 {sr(sT)}, {sr(sRdy)}, {sr(sDone)}
s_cbranch_scc1 {name}_pd{n}
s_mov_b32 {sr(sCnt)}, {POLL_LIMIT}''')
        a.label(f'{name}_pl{n}')
        if spoll & 1:
            smask(16, sM0a, sRdy)
        else:
            a(f'''buffer_load_dword {vr(vP)}, {vr(vPo1)}, {sr(SWS,4)}, 0 offen{SC}
s_waitcnt vmcnt(0)
v_cmp_eq_u32 vcc, {sr(sTag)}, {vr(vP)}
s_and_b32 {sr(sRdy)}, vcc_lo, 0xffff''')
        a(f'''s_andn2_b32 {sr(sT)}, {sr(sRdy)}, {sr(sDone)}
s_cbranch_scc1 {name}_pd{n}
{'s_sleep 1' if opts.get('sl1', 0) else 'SKIP'}
s_sub_u32 {sr(sCnt)}, {sr(sCnt)}, 1
s_cmp_lg_u32 {sr(sCnt)}, 0
s_cbranch_scc1 {name}_pl{n}
s_mov_b32 {sr(sRdy)}, 0xffff
s_andn2_b32 {sr(sT)}, {sr(sRdy)}, {sr(sDone)}''')
        a.label(f'{name}_pd{n}')
        g_select(); g_loads(0, 40, qmajor); g_finish()
    def g_select():
        a(f'''s_lshl_b32 {sr(sT2)}, {sr(sT)}, 16
s_or_b32 {sr(sT)}, {sr(sT)}, {sr(sT2)}
s_lshr_b32 {sr(sT)}, {sr(sT)}, {sr(sMt)}
s_ff1_i32_b32 {sr(sT)}, {sr(sT)}
s_add_u32 {sr(sNeed)}, {sr(sT)}, {sr(sMt)}
s_and_b32 {sr(sNeed)}, {sr(sNeed)}, 15
s_bitset1_b32 {sr(sDone)}, {sr(sNeed)}
s_mul_i32 {sr(sT)}, {sr(sNeed)}, 10240
s_add_u32 {sr(sSrc)}, {sr(sKV)}, {sr(sT)}''')
    def g_loads(lo, hi, qmajor=False):
        order = [(hs, q) for hs in range(4) for q in range(10)]
        if qmajor:
            order = [(hs, q) for hs in range(4) for q in range(8)] + [(hs, q) for hs in range(4) for q in (8, 9)]
        for hs, q in order[lo:hi]:
            if q % 4 == 0:
                a(f's_add_u32 m0, {sr(sSlot)}, {hs*10240 + q*1024}')
                a(f's_add_u32 {sr(sT)}, {sr(sSrc)}, {hs*KV_HEAD + q*1024}')
            a(f'buffer_load_dwordx4 {vr(vL16)}, {sr(SWS,4)}, {sr(sT)} offen offset:{(q%4)*1024}{SLD} lds')
    def g_finish():
        if early:
            a(f'''s_sub_u32 {sr(sSlot)}, {sr(sSlot)}, {SLOT}
s_cselect_b32 {sr(sSlot)}, {2*SLOT}, {sr(sSlot)}
s_add_u32 {sr(sI)}, {sr(sI)}, 1''')
        else:
            a(f'''s_add_u32 {sr(sSlot)}, {sr(sSlot)}, {SLOT}
s_cmp_ge_u32 {sr(sSlot)}, {3*SLOT}
s_cselect_b32 {sr(sSlot)}, 0, {sr(sSlot)}
s_add_u32 {sr(sI)}, {sr(sI)}, 1''')
    if 'hprio' in opts: a(f's_setprio {opts["hprio"]}')
    wq = [0]
    def wait_prog(val):
        n = wq[0]; wq[0] += 1
        a.label(f'{name}_wp{n}')
        a(f'''ds_read_b32 {vr(vP)}, {vr(vPwa)} offset:4
s_waitcnt lgkmcnt(0)
v_cmp_le_u32 vcc, {val}, {vr(vP)}
s_and_b32 {sr(sT)}, vcc_lo, 0x1ff
s_cmp_eq_u32 {sr(sT)}, 0x1ff
s_cbranch_scc1 {name}_wpd{n}
s_sleep 2
s_branch {name}_wp{n}''')
        a.label(f'{name}_wpd{n}')
    def set_full(val):
        a(f'v_mov_b32 {vr(vFu)}, {val}')
        a(f'ds_write_b32 {vr(vPwa)}, {vr(vFu)}')
    if nobar:
        a(f'v_min_u32 {vr(vPwa)}, 8, {vr(vLane)}')
        a(f'v_lshlrev_b32 {vr(vPwa)}, 3, {vr(vPwa)}')
        a(f'v_add_u32 {vr(vPwa)}, {LW_PW}, {vr(vPwa)}')
    if early:
        if early == 1:
            a(f'''v_cmp_eq_u32 vcc, {sr(sTag)}, {vr(vP)}
s_and_b32 {sr(sRdy)}, vcc_lo, 0xffff''')
        else:
            smask(16, sM0a, sRdy)
        a(f'''s_andn2_b32 {sr(sT)}, {sr(sRdy)}, {sr(sDone)}
s_cbranch_scc0 {name}_ne''')
        g_select(); g_loads(0, 20)
        lds_init()
        g_loads(20, 40); g_finish()
        e_bars()
        a(f's_branch {name}_g1d')
        a.label(f'{name}_ne')
    lds_init()
    if early in (2, 3):
        smask(16, sM0a, sRdy)
        a(f'''s_andn2_b32 {sr(sT)}, {sr(sRdy)}, {sr(sDone)}
s_cbranch_scc0 {name}_ne2''')
        g_select(); g_loads(0, 40 if early == 2 else 24)
        if early == 2:
            g_finish(); e_bars()
        else:
            a('s_barrier')
            g_loads(24, 40); g_finish()
            a('s_barrier')
        a(f's_branch {name}_g1d')
        a.label(f'{name}_ne2')
    e_bars()
    issue_group(g1s)
    a.label(f'{name}_g1d')
    st0()
    if g1s:
        a('s_waitcnt vmcnt(8)')
        a('s_barrier')
        a(f'v_mov_b32 {vr(vP)}, 1')
        a('s_waitcnt vmcnt(0)')
        a(f'ds_write_b32 {vr(vLw)}, {vr(vP)} offset:16')
        issue_group()
    elif opts.get('b1', 1) and not nobar:
        a('s_waitcnt vmcnt(0)')
        a('s_barrier')
        issue_group()
    a.label(f'{name}_hl')
    if nobar:
        a('s_waitcnt vmcnt(0)')
        set_full(sr(sI))
        a(f's_max_u32 {sr(sSrc)}, {sr(sI)}, 2')
        a(f's_sub_u32 {sr(sSrc)}, {sr(sSrc)}, 2')
        wait_prog(sr(sSrc))
        issue_group()
    else:
        issue_group()
        a('s_waitcnt vmcnt(40)')
        a('s_barrier')
        if sset == 5 and st.on:
            for K in (5, 15):
                a(f's_cmp_eq_u32 {sr(sI)}, {K}')
                a(f's_cbranch_scc0 {name}_h5{K}')
                st()
                a.label(f'{name}_h5{K}')
    wid = [0]
    def wo_rows(r0, r1, lds):
        n = wid[0]; wid[0] += 1
        a(f's_mov_b32 {sr(sSrc)}, {r0*1280}')
        a(f's_mov_b32 {sr(sT2)}, {lds}')
        a.label(f'{name}_hw{n}x')
        a(f's_mov_b32 m0, {sr(sT2)}')
        a(f's_add_u32 {sr(sT)}, {sr(sT2)}, 4096')
        for r in range(4):
            a(f'buffer_load_dwordx4 {vr(vW3[r])}, {sr(SWO,4)}, {sr(sSrc)} offen offset:{r*1024} lds')
        a(f's_mov_b32 m0, {sr(sT)}')
        a(f's_add_u32 {sr(sT2)}, {sr(sT2)}, 5120')
        a(f'buffer_load_dwordx4 {vr(vW3[4])}, {sr(SWO,4)}, {sr(sSrc)} offen lds')
        a(f's_add_u32 {sr(sSrc)}, {sr(sSrc)}, {32*1280}')
        a(f's_cmp_lt_u32 {sr(sSrc)}, {r1*1280}')
        a(f's_cbranch_scc1 {name}_hw{n}x')
    if iw:
        first = max(4, 15 - nseg)
        assert first + nseg <= 17
        a('s_mov_b64 exec, 0')
        for g in range(nseg):
            a(f's_cmp_eq_u32 {sr(sI)}, {first + g}')
            a(f's_cbranch_scc1 {name}_pad{g*SEG}')
        a.label(f'{name}_padret')
        a('s_mov_b64 exec, -1')
    a(f's_cmp_eq_u32 {sr(sI)}, 6')
    a(f's_cbranch_scc0 {name}_hnp')
    for q in range(4):
        a(f's_mov_b32 {sr(sT)}, {q*6400}')
        a(f'buffer_load_dword {vr(vPf[q])}, {vr(vPo)}, {sr(SWO,4)}, {sr(sT)} offen')
    a.label(f'{name}_hnp')
    a(f's_cmp_eq_u32 {sr(sI)}, 10')
    a(f's_cbranch_scc0 {name}_hnq')
    wo_rows(480, 640, QST)
    a.label(f'{name}_hnq')
    a(f's_cmp_lt_u32 {sr(sI)}, 16')
    a(f's_cbranch_scc1 {name}_hl')
    if nobar:
        a('s_waitcnt vmcnt(0)')
        set_full(64)
        wait_prog(14)
        wo_rows(0, 256, WO_LO)
        wait_prog(15)
    else:
        if early: wo_rows(256, 480, WO_LO + 40960)
        else: wo_rows(0, 256, WO_LO)
        a(f's_waitcnt vmcnt({35 if early else 40})')
        a('s_barrier')
    if early: wo_rows(0, 256, WO_LO)
    else: wo_rows(256, 480, WO_LO + 40960)
    a(f'''s_lshl_b32 {sr(sT)}, {sr(sB)}, 4
s_add_u32 {sr(sT)}, {sr(sT)}, {sr(sMt3)}
s_lshl_b32 {sr(sT)}, {sr(sT)}, 1
s_lshr_b32 {sr(sT2)}, {sr(sCg)}, 2
s_add_u32 {sr(sT)}, {sr(sT)}, {sr(sT2)}
s_mul_i32 {sr(sT)}, {sr(sT)}, {32*2560}
s_and_b32 {sr(sT2)}, {sr(sCg)}, 3
s_mul_i32 {sr(sT2)}, {sr(sT2)}, 5120
s_add_u32 {sr(sT)}, {sr(sT)}, {sr(sT2)}
s_add_u32 {sr(sT)}, {sr(sT)}, {F_WS_O}
v_lshl_add_u32 {vr(vT0)}, {vr(vLane)}, 7, {sr(sT)}
v_cmp_gt_u32 vcc, 40, {vr(vLane)}
v_mov_b32 {vr(vT1)}, {OOB}
s_mov_b32 {sr(sDone)}, 0
s_mov_b32 {sr(sCnt)}, {1 if opts.get('cheat', 0) & 2 else POLL_LIMIT}
v_cndmask_b32 {vr(vPo)}, {vr(vT1)}, {vr(vT0)}, vcc''')
    pid = [0]
    pfo = opts.get('pfo', 1)
    def poll2():
        if spoll & 2:
            smask(8, sM0b, sNeed)
            a(f'''s_sub_u32 {sr(sCnt)}, {sr(sCnt)}, 1
s_cmp_eq_u32 {sr(sCnt)}, 0
s_cselect_b32 {sr(sT)}, 0xff, {sr(sNeed)}''')
        else:
            a(f'''buffer_load_dword {vr(vP)}, {vr(vPo2)}, {sr(SWS,4)}, 0 offen{SC}
s_sub_u32 {sr(sCnt)}, {sr(sCnt)}, 1
s_waitcnt vmcnt(0)
v_cmp_eq_u32 vcc, {sr(sTag)}, {vr(vP)}
s_cmp_eq_u32 {sr(sCnt)}, 0
s_cselect_b32 {sr(sT)}, 0xff, vcc_lo''')
        a(f'''s_lshr_b32 {sr(sT2)}, {sr(sT)}, 1
s_and_b32 {sr(sT)}, {sr(sT)}, {sr(sT2)}
s_and_b32 {sr(sRdy)}, {sr(sT)}, 0x55''')
        if pfo:
            a(f's_andn2_b32 {sr(sSrc)}, {sr(sRdy)}, {sr(sDone)}')
            a(f's_or_b32 {sr(sDone)}, {sr(sDone)}, {sr(sRdy)}')
            for j in range(4):
                n = pid[0]; pid[0] += 1
                a(f's_bitcmp1_b32 {sr(sSrc)}, {2*j}')
                a(f's_cbranch_scc0 {name}_po{n}')
                a(f's_mov_b32 {sr(sT)}, {j*20480}')
                a(f'buffer_load_dword {vr(vPf[j])}, {vr(vPo)}, {sr(SWS,4)}, {sr(sT)} offen{SC}')
                a.label(f'{name}_po{n}')
            if pfo == 2:
                a('s_waitcnt vmcnt(0)')
        a(f'v_mov_b32 {vr(vP)}, {sr(sRdy)}')
        a(f'ds_write_b32 {vr(vLw)}, {vr(vP)}')
    if spoll & 2: a('s_waitcnt vmcnt(0)')
    for _ in range(opts.get('npoll', 1)):
        poll2()
    if nobar:
        wait_prog(16)
    else:
        a('s_barrier')
    st0()
    st0()
    a.label(f'{name}_p3l')
    if opts.get('psl'): a(f's_sleep {opts.get("psl")}')
    poll2()
    a(f's_cmp_eq_u32 {sr(sRdy)}, 0x55')
    a(f's_cbranch_scc0 {name}_p3l')
    a.label(f'{name}_p3e')
    if sset == 7 and st.on: st.rt()
    if sep:
        a(f'''s_or_b32 {sr(sT)}, {sr(sMt3)}, {sr(sCg)}
s_cbranch_scc1 {name}_nb
s_lshl_b32 {sr(sT)}, {sr(sB)}, 7
s_add_u32 {sr(sT)}, {sr(sT)}, {F_EPOCH}
s_mov_b64 exec, 1
v_mov_b32 {vr(vT0)}, 0
v_mov_b32 {vr(vT1)}, {sr(sTag)}
buffer_store_dword {vr(vT1)}, {vr(vT0)}, {sr(SWS,4)}, {sr(sT)} offen{SC}
s_mov_b64 exec, -1''')
        a.label(f'{name}_nb')
    if st.on:
        while st.n < n_total - 1: st()
        st.rt(); st.flush(sW)
    a('s_endpgm')
    a.label(f'{name}_end')
    nv = maxv[0]
    assert nv <= 168, nv
    return a.text(), descriptor(name, nv, ns), f'; @launch kernel={name} grid=(256,1,1) block=(576,1,1) lds={LDS_TOTAL}', n_total
```

```python
from common import *
import math, struct

def f32bits(x):
    return struct.unpack('<I', struct.pack('<f', x))[0]
QSCALE = f32bits(math.log2(math.e) / math.sqrt(20.0))

XSZ = 16384
STG = XSZ + 30720
SLOT = 40960
LW_RDY = 3 * SLOT
LW_CNT = 3 * SLOT + 8
LW_CNT1 = 3 * SLOT + 12
LW_G1 = 3 * SLOT + 16
LW_PW = 131392
ONES = 3 * SLOT + 128
QST = 131584
LDS_TOTAL = QST + 25600
WO_LO = SLOT
F_WS_KV = 0
F_WS_O = 64 * KV_HEAD
F_FLAG1 = F_WS_O + 2 * 32 * 32 * 2560
F_FLAG2 = F_FLAG1 + 16 * 256
F_EPOCH = F_FLAG2 + 32 * 256
F_R1 = F_EPOCH + 256
F_R2 = F_R1 + 256 * 128
F_WS_END = F_R2 + 256 * 128
TAGK = 0x9E3779B9
POLL_LIMIT = 1 << 18
OOB = 0x40000000

def gen_fused(name='fused_kernel', opts=None):
    opts = opts or {}
    a = Asm()
    SC = ' sc1'
    FL = {0: ' sc1', 1: ' sc0 sc1', 2: '', 3: ' sc1 nt', 4: ' nt'}
    SST = FL[opts.get('sst', 0)]
    SLD = FL[opts.get('sld', 0)]
    stag = opts.get('stag', 2)
    pub4 = opts.get('pub4', 1)
    one_e = opts.get('onee', 0) and pub4
    g1s = opts.get('g1s', 0)
    early = opts.get('early', 1)
    spoll = opts.get('spoll', 3)
    sep = opts.get('sep', 1)
    pre = opts.get('pre', 0)
    sRot, sPre = 39, 40
    rep_ = opts.get('rep', 1) and spoll == 3 and early != 1
    phys = (lambda k: (-k) % 3) if early else (lambda k: k % 3)
    hsplit = opts.get('hsplit', 1)
    nobar = opts.get('nobar', 0)
    loc = opts.get('loc', 1)
    sKK, sMt3, sCg = 3, 4, 5
    SX, SWQ, SWS, SDBG, SWO, SOUT = 8, 12, 16, 20, 24, 28
    sW, sB, sMt, sHg, sT, sT2, sT3 = 32, 33, 34, 35, 36, 37, 38
    sM0a, sM0b = 39, 40
    sDone = 41
    sHi = 42
    sG, sOff, sOo, sKV = 44, 45, 46, 47
    sM, sM2 = 48, 50
    sRdy, sCnt, sNeed, sI, sSlot, sSrc = 52, 53, 54, 55, 56, 57
    sXo, sWo = 53, 54
    sScale = 58
    sA, sTag = 60, 61
    sPub, sPub2 = 56, 57
    ns = 64
    vLane, vT0, vT1, vT2, vT3, vT4, vT5 = 1, 2, 3, 4, 5, 6, 7
    VBASE = 8
    st = Stamper(a, opts.get('stamp'), 0, 62, 6, vT0)
    if st.on: ns = st.nsgpr()
    sset = opts.get('sset', 0)
    def st0():
        if sset == 0: st()
    def st1():
        if sset == 1: st()
    def st6(k=0):
        if sset == 6 or (sset == 7 and k): st.rt()
    def st4():
        if sset == 4: st()
    maxv = [0]
    def done_alloc(V):
        maxv[0] = max(maxv[0], V.n)

    a(f'.globl {name}\n.p2align 8\n.type {name},@function')
    a.label(name)
    if st.on:
        a('s_memrealtime s[62:63]\ns_memtime s[64:65]')
        st.n = 2
    dbgt = opts.get('dbgt')
    SWAP = 'SKIP'
    if opts.get('swap', 0):
        SWAP = f's_lshr_b32 {sr(sT)}, s2, 1\ns_xor_b32 {sr(sT)}, {sr(sT)}, s2\ns_and_b32 {sr(sT)}, {sr(sT)}, 1\ns_mul_i32 {sr(sT)}, {sr(sT)}, 3\ns_xor_b32 s2, s2, {sr(sT)}'
    if dbgt:
        ns = 80
        a('s_memrealtime s[62:63]')
    def rts(k):
        if dbgt: a(f's_memrealtime s[{62+2*k}:{63+2*k}]\ns_waitcnt lgkmcnt(0)')
    a(f'''s_cmp_ge_u32 s2, 256
s_cbranch_scc1 {name}_done
{SWAP}
s_bfe_u32 {sr(sB)}, s2, 0x10002
s_load_dwordx4 {sr(SOUT,4)}, s[0:1], 48
s_load_dwordx2 s[6:7], s[0:1], 64
s_mul_i32 {sr(sT2)}, {sr(sB)}, {0 if opts.get('hack64') else 24}
s_add_u32 s0, s0, {sr(sT2)}
s_addc_u32 s1, s1, 0
s_load_dwordx4 {sr(SX,4)}, s[0:1], 0
s_load_dwordx2 {sr(SWO,2)}, s[0:1], 16
v_lshrrev_b32 {vr(vT0)}, 6, v0
v_and_b32 {vr(vLane)}, 63, v0
s_lshr_b32 {sr(sT)}, s2, 3
v_readfirstlane_b32 {sr(sW)}, {vr(vT0)}
s_and_b32 {sr(sMt)}, {sr(sT)}, 7
s_lshr_b32 {sr(sHg)}, {sr(sT)}, 3
{f's_mul_i32 {sr(sKK)}, {sr(sHg)}, 3' if not opts.get('rx') else f's_mul_i32 {sr(sKK)}, {sr(sHg)}, 5'}
{f's_add_u32 {sr(sKK)}, {sr(sKK)}, 1' if opts.get('rx') else 'SKIP'}
{f's_lshr_b32 {sr(sKK)}, {sr(sKK)}, 1' if opts.get('rx') else 'SKIP'}
s_add_u32 {sr(sKK)}, {sr(sKK)}, {sr(sMt)}
s_cmp_ge_u32 {sr(sKK)}, 10
s_cselect_b32 {sr(sT)}, 10, 0
s_sub_u32 {sr(sKK)}, {sr(sKK)}, {sr(sT)}
{f's_mov_b32 {sr(sKK)}, 0' if (stag or opts.get('rot0')) else 'SKIP'}
s_and_b32 {sr(sT)}, s2, 1
s_lshl_b32 {sr(sT)}, {sr(sT)}, 3
s_add_u32 {sr(sMt)}, {sr(sMt)}, {sr(sT)}
s_and_b32 {sr(sT)}, s2, 2
s_lshl_b32 {sr(sT)}, {sr(sT)}, 1
s_add_u32 {sr(sHg)}, {sr(sHg)}, {sr(sT)}
s_mov_b32 {sr(sHi)}, 0
s_mov_b32 {sr(sHi+1)}, -1
s_bfe_u32 {sr(sCg)}, s2, 0x30003
s_and_b32 {sr(sMt3)}, s2, 1
s_lshl_b32 {sr(sMt3)}, {sr(sMt3)}, 2
s_and_b32 {sr(sT)}, s2, 2
s_add_u32 {sr(sMt3)}, {sr(sMt3)}, {sr(sT)}
s_lshl_b32 {sr(sMt3)}, {sr(sMt3)}, 1
s_lshr_b32 {sr(sT)}, s2, 6
s_add_u32 {sr(sMt3)}, {sr(sMt3)}, {sr(sT)}
s_lshl_b32 {sr(sT)}, {sr(sB)}, 3
s_add_u32 {sr(sT)}, {sr(sT)}, {sr(sHg)}
s_mul_i32 {sr(sKV)}, {sr(sT)}, {4*KV_HEAD}
s_mul_i32 {sr(sT3)}, {sr(sHg)}, 160''')
    SRDS = f'''s_waitcnt lgkmcnt(0)
s_mov_b32 {sr(SWQ)}, {sr(SX+2)}
s_mov_b32 {sr(SWQ+1)}, {sr(SX+3)}
s_mov_b32 {sr(SDBG)}, {sr(SOUT+2)}
s_mov_b32 {sr(SDBG+1)}, {sr(SOUT+3)}
s_mov_b32 {sr(SWS)}, s6
s_mov_b32 {sr(SWS+1)}, s7
s_mov_b32 {sr(SX+2)}, {2048*1280}
s_mov_b32 {sr(SX+3)}, 0x20000
s_mov_b32 {sr(SWQ+2)}, {640*3840}
s_mov_b32 {sr(SWQ+3)}, 0x20000
s_mov_b32 {sr(SWS+2)}, {F_WS_END}
s_mov_b32 {sr(SWS+3)}, 0x20000
s_mov_b32 {sr(SDBG+2)}, 256
s_mov_b32 {sr(SDBG+3)}, 0x20000
s_mov_b32 {sr(SWO+2)}, {640*1280}
s_mov_b32 {sr(SWO+3)}, 0x20000
s_mov_b32 {sr(SOUT+2)}, {2048*2560}
s_mov_b32 {sr(SOUT+3)}, 0x20000'''
    if sep:
        SRDS += f'''
s_lshl_b32 {sr(sI)}, {sr(sB)}, 7
s_add_u32 {sr(sI)}, {sr(sI)}, {F_EPOCH}
s_load_dword {sr(sTag)}, s[6:7], {sr(sI)}'''
    st1()
    n_common = st.n
    a(f'''s_cmp_ge_u32 {sr(sW)}, 8
s_cbranch_scc1 {name}_helper''')

    def w_pattern(dst, first, last):
        a(f'''{first}
v_mul_u32_u24 {vr(vT1)}, 2185, {vr(vT0)}
v_lshrrev_b32 {vr(vT1)}, 16, {vr(vT1)}
v_mul_u32_u24 {vr(vT2)}, 30, {vr(vT1)}
v_sub_u32 {vr(vT0)}, {vr(vT0)}, {vr(vT2)}
v_and_b32 {vr(vT2)}, 0x13, {vr(vT1)}
v_bfe_u32 {vr(vT3)}, {vr(vT1)}, 2, 1
v_lshl_or_b32 {vr(vT2)}, {vr(vT3)}, 3, {vr(vT2)}
v_bfe_u32 {vr(vT3)}, {vr(vT1)}, 3, 1
v_lshl_or_b32 {vr(vT2)}, {vr(vT3)}, 2, {vr(vT2)}
v_mul_u32_u24 {vr(vT2)}, 3840, {vr(vT2)}
v_mul_u32_u24 {vr(vT1)}, 26, {vr(vT0)}
v_lshrrev_b32 {vr(vT1)}, 8, {vr(vT1)}
v_mul_u32_u24 {vr(vT1)}, {1280-160}, {vr(vT1)}
v_lshl_add_u32 {vr(vT0)}, {vr(vT0)}, 4, {vr(vT1)}
v_add3_u32 {vr(dst)}, {vr(vT0)}, {vr(vT2)}, {last}''')

    VP = VAlloc(VBASE)
    vIdx = VP()
    vaK1 = VP(); vaK2 = VP(); vaV = VP()
    vbK1 = VP(); vbK2 = VP(); vbV = VP(); vmK2 = VP(); vmV = VP()
    vQo = VP(); vQo2 = VP(); vQs1 = VP(); vQs2 = VP(); vPub = VP()
    VB2 = VP.n
    V = VAlloc(VB2)
    vEp7 = V(); vCi7 = V(); vZ7 = V()
    vXr = [[V(), V()] for _ in range(3)]
    vWa = [V() for _ in range(3)]
    vWb = [V() for _ in range(3)]
    vE = [V() for _ in range(6)]
    Xf = [[V(4), V(4)], [V(4), V(4)]]
    Wf = [[V(4) for _ in range(4)] for _ in range(2)]
    acc = [[V(4), V(4)] for _ in range(8)]
    done_alloc(V)
    vDX = Wf[0][0]; vDW = [Wf[0][0] + 1, Wf[0][0] + 2]
    XROW = f's_lshl_b32 {sr(sT)}, {sr(sMt)}, 7'
    if opts.get('hack64'):
        XROW = f's_lshl_b32 {sr(sT)}, {sr(sB)}, 4\ns_add_u32 {sr(sT)}, {sr(sT)}, {sr(sMt)}\ns_lshl_b32 {sr(sT)}, {sr(sT)}, 6'
    a(f'''{XROW}
s_lshl_b32 {sr(sT2)}, {sr(sW)}, 3
s_add_u32 {sr(sT)}, {sr(sT)}, {sr(sT2)}
v_lshrrev_b32 {vr(vT0)}, 3, {vr(vLane)}
v_add_u32 {vr(vT0)}, {sr(sT)}, {vr(vT0)}
v_mul_u32_u24 {vr(vT0)}, 1280, {vr(vT0)}
s_and_b32 {sr(sT)}, {sr(sW)}, 1
s_lshl_b32 {sr(sT)}, {sr(sT)}, 2
v_lshrrev_b32 {vr(vT1)}, 4, {vr(vLane)}
v_add_u32 {vr(vT2)}, {sr(sT)}, {vr(vT1)}
v_and_b32 {vr(vT3)}, 7, {vr(vLane)}
v_xor_b32 {vr(vT2)}, {vr(vT2)}, {vr(vT3)}
v_lshl_add_u32 {vr(vDX)}, {vr(vT2)}, 4, {vr(vT0)}
s_lshl_b32 {sr(sM0a)}, {sr(sW)}, 10
s_lshl_b32 {sr(sXo)}, {sr(sKK)}, 7
s_mul_i32 {sr(sWo)}, {sr(sKK)}, {64*3840}
s_add_u32 {sr(sT2)}, {sr(sW)}, 8
s_cmp_eq_u32 {sr(sW)}, 7
s_cselect_b32 {sr(sT2)}, 7, {sr(sT2)}
s_lshl_b32 {sr(sM0b)}, {sr(sT2)}, 10''')
    for pi, sm in ((0, sM0a), (1, sM0b)):
        a(f's_lshr_b32 {sr(sT)}, {sr(sm)}, 4')
        w_pattern(vDW[pi], f'v_add_u32 {vr(vT0)}, {sr(sT)}, {vr(vLane)}', sr(sT3))
    a(SRDS)
    if opts.get('nodup', 0):
        a(f's_cmp_eq_u32 {sr(sW)}, 7')
        a(f's_cselect_b64 {sr(sM,2)}, -1, 0')
        a(f'v_mov_b32 {vr(vT0)}, {OOB}')
        a(f'v_cndmask_b32_e64 {vr(vDW[1])}, {vr(vDW[1])}, {vr(vT0)}, {sr(sM,2)}')
        a(f's_cselect_b32 {sr(sM0b)}, {150000 - XSZ - 15360}, {sr(sM0b)}')
    a(f'''s_mov_b32 m0, {sr(sM0a)}
s_add_u32 {sr(sT)}, {sr(sXo)}, 81920
buffer_load_dwordx4 {vr(vDX)}, {sr(SX,4)}, {sr(sXo)} offen lds
s_add_u32 m0, {sr(sM0a)}, 8192
s_nop 0
{'s_nop 0' if opts.get('hack64') else f'buffer_load_dwordx4 {vr(vDX)}, {sr(SX,4)}, {sr(sT)} offen lds'}''')
    for pi, sm in ((0, sM0a), (1, sM0b)):
        for half in range(2):
            a(f's_add_u32 m0, {sr(sm)}, {XSZ + half*15360}')
            a(f's_add_u32 {sr(sT)}, {sr(sWo)}, {half*32*3840}')
            a(f'buffer_load_dwordx4 {vr(vDW[pi])}, {sr(SWQ,4)}, {sr(sT)} offen lds')
    st1()
    if opts.get('s0', 1): a('s_barrier')
    st1()
    if not sep:
        a(f'''s_cmp_eq_u32 {sr(sW)}, 7
s_cselect_b32 {sr(sM)}, 1, 0
s_mov_b32 {sr(sM+1)}, 0
v_mov_b32 {vr(vT1)}, {OOB}
v_cndmask_b32_e64 {vr(vZ7)}, {vr(vT1)}, 0, {sr(sM,2)}
v_mov_b32 {vr(vT0)}, {F_EPOCH}
buffer_load_dword {vr(vEp7)}, {vr(vT0)}, {sr(SWS,4)}, 0 offen{SC}''')
    a(f'''s_and_b32 {sr(sT)}, {sr(sW)}, 3
s_lshl_b32 {sr(sT)}, {sr(sT)}, 5
v_and_b32 {vr(vT0)}, 15, {vr(vLane)}
v_lshrrev_b32 {vr(vT1)}, 4, {vr(vLane)}
v_lshrrev_b32 {vr(vT2)}, 1, {vr(vT0)}
v_xor_b32 {vr(vT2)}, {vr(vT2)}, {vr(vT1)}
v_add_u32 {vr(vT0)}, {sr(sT)}, {vr(vT0)}
v_lshlrev_b32 {vr(vT0)}, 7, {vr(vT0)}
v_lshl_add_u32 {vr(vXr[0][0])}, {vr(vT2)}, 4, {vr(vT0)}
v_xor_b32 {vr(vXr[0][1])}, 64, {vr(vXr[0][0])}
v_lshrrev_b32 {vr(vT0)}, 5, {vr(vLane)}
v_lshlrev_b32 {vr(vT0)}, 4, {vr(vT0)}
v_bfe_u32 {vr(vT2)}, {vr(vLane)}, 4, 1
v_lshl_add_u32 {vr(vT0)}, {vr(vT2)}, 2, {vr(vT0)}
v_bfe_u32 {vr(vT2)}, {vr(vLane)}, 2, 2
v_add_u32 {vr(vT0)}, {vr(vT0)}, {vr(vT2)}
v_mul_u32_u24 {vr(vT0)}, 480, {vr(vT0)}
v_add_u32 {vr(vT5)}, {XSZ}, {vr(vT0)}
v_bfe_u32 {vr(vT2)}, {vr(vLane)}, 1, 1
v_mul_u32_u24 {vr(vT2)}, 40, {vr(vT2)}
v_and_b32 {vr(vT3)}, 1, {vr(vLane)}
v_lshl_add_u32 {vr(vT2)}, {vr(vT3)}, 4, {vr(vT2)}
v_add_u32 {vr(vWa[0])}, {vr(vT5)}, {vr(vT2)}
s_cmp_ge_u32 {sr(sW)}, 4
s_cselect_b32 {sr(sT)}, 8, 40
v_and_b32 {vr(vT2)}, 3, {vr(vLane)}
v_mad_u32_u24 {vr(vWb[0])}, {vr(vT2)}, {sr(sT)}, {vr(vT5)}''')
    for s_ in (1, 2):
        a(f'v_add_u32 {vr(vXr[s_][0])}, {s_*STG}, {vr(vXr[0][0])}')
        a(f'v_add_u32 {vr(vXr[s_][1])}, {s_*STG}, {vr(vXr[0][1])}')
        a(f'v_add_u32 {vr(vWa[s_])}, {s_*STG}, {vr(vWa[0])}')
        a(f'v_add_u32 {vr(vWb[s_])}, {s_*STG}, {vr(vWb[0])}')
    vAo, vAt = 164, 165
    def a_addr():
        a(f'''s_lshl_b32 {sr(sT)}, {sr(sB)}, 4
s_add_u32 {sr(sT)}, {sr(sT)}, {sr(sMt3)}
s_lshl_b32 {sr(sT)}, {sr(sT)}, 1
s_lshr_b32 {sr(sT2)}, {sr(sW)}, 2
s_add_u32 {sr(sT)}, {sr(sT)}, {sr(sT2)}
s_mul_i32 {sr(sA)}, {sr(sT)}, {32*2560}
s_add_u32 {sr(sA)}, {sr(sA)}, {F_WS_O}
s_and_b32 {sr(sT)}, {sr(sW)}, 1
s_lshl_b32 {sr(sT)}, {sr(sT)}, 4
s_bfe_u32 {sr(sT2)}, {sr(sW)}, 0x10001
v_and_b32 {vr(vT0)}, 15, {vr(vLane)}
v_add_u32 {vr(vT0)}, {sr(sT)}, {vr(vT0)}
v_lshlrev_b32 {vr(vT0)}, 4, {vr(vT0)}
v_lshrrev_b32 {vr(vT1)}, 5, {vr(vLane)}
v_mul_u32_u24 {vr(vT1)}, 2560, {vr(vT1)}
v_bfe_u32 {vr(vT2)}, {vr(vLane)}, 4, 1
v_lshl_add_u32 {vr(vT1)}, {vr(vT2)}, 9, {vr(vT1)}
s_lshl_b32 {sr(sT3)}, {sr(sT2)}, 10
v_add3_u32 {vr(vAo)}, {vr(vT0)}, {vr(vT1)}, {sr(sT3)}
v_lshrrev_b32 {vr(vT1)}, 4, {vr(vLane)}
v_mul_u32_u24 {vr(vT1)}, 2560, {vr(vT1)}
s_lshl_b32 {sr(sT3)}, {sr(sT2)}, 8
s_add_u32 {sr(sT3)}, {sr(sT3)}, 2048
v_lshrrev_b32 {vr(vT0)}, 1, {vr(vT0)}
v_add3_u32 {vr(vAt)}, {vr(vT0)}, {vr(vT1)}, {sr(sT3)}
s_and_b32 {sr(sRot)}, {sr(sCg)}, {opts.get('rot3', 3)}
s_lshl_b32 {sr(sRot)}, {sr(sRot)}, 1
s_mov_b32 {sr(sPre)}, -1
s_mov_b32 {sr(sDone)}, 0''')
    if pre: a_addr()
    a(f'''s_lshr_b32 {sr(sT)}, {sr(sW)}, 1
s_mul_i32 {sr(sT2)}, {sr(sT)}, 10240
v_lshlrev_b32 {vr(vQo)}, 4, {vr(vLane)}
v_lshlrev_b32 {vr(vT0)}, 3, {vr(vLane)}
v_add_u32 {vr(vT0)}, 1024, {vr(vT0)}
v_mov_b32 {vr(vT1)}, {OOB}
v_cndmask_b32_e64 {vr(vQo2)}, {vr(vT0)}, {vr(vT1)}, {sr(sHi,2)}
v_add_u32 {vr(vbK1)}, {sr(sT2)}, {vr(vQo)}
v_add_u32 {vr(vT0)}, {sr(sT2)}, {vr(vT0)}
v_mov_b32 {vr(vT1)}, {ONES}
v_cndmask_b32_e64 {vr(vbK2)}, {vr(vT0)}, {vr(vT1)}, {sr(sHi,2)}
v_cndmask_b32_e64 {vr(vmK2)}, 1, 0, {sr(sHi,2)}
v_and_b32 {vr(vT2)}, 31, {vr(vLane)}
v_lshrrev_b32 {vr(vT3)}, 5, {vr(vLane)}
v_mul_u32_u24 {vr(vT3)}, 320, {vr(vT3)}
v_lshl_add_u32 {vr(vT3)}, {vr(vT2)}, 4, {vr(vT3)}
s_add_u32 {sr(sT3)}, {sr(sT2)}, 1280
v_add_u32 {vr(vT3)}, {sr(sT3)}, {vr(vT3)}
v_cmp_gt_u32 vcc, 20, {vr(vT2)}
v_mov_b32 {vr(vIdx)}, 0xdddddddd
v_mov_b32 {vr(vaK1)}, {vr(vbK1)}
v_cndmask_b32 {vr(vbV)}, {vr(vT1)}, {vr(vT3)}, vcc
v_cndmask_b32_e64 {vr(vmV)}, 0, 1, vcc
v_cmp_lt_u32 vcc, 20, {vr(vT2)}
v_add_u32 {vr(vT3)}, 16, {vr(vT1)}
v_mov_b32 {vr(vaK2)}, {vr(vbK2)}
v_cndmask_b32 {vr(vbV)}, {vr(vbV)}, {vr(vT3)}, vcc
v_mov_b32 {vr(vaV)}, {vr(vbV)}
s_mul_i32 {sr(sT2)}, {sr(sW)}, 2560
s_add_u32 {sr(sT2)}, {sr(sT2)}, {QST}
v_add_u32 {vr(vQs1)}, {sr(sT2)}, {vr(vQo)}
v_and_b32 {vr(vQs2)}, 31, {vr(vLane)}
v_lshlrev_b32 {vr(vQs2)}, 3, {vr(vQs2)}
s_add_u32 {sr(sT2)}, {sr(sT2)}, 1024
v_add_u32 {vr(vQs2)}, {sr(sT2)}, {vr(vQs2)}
s_lshl_b32 {sr(sT2)}, {sr(sB)}, 4
s_add_u32 {sr(sT2)}, {sr(sT2)}, {sr(sMt)}
s_lshl_b32 {sr(sT2)}, {sr(sT2)}, 1
s_and_b32 {sr(sT3)}, {sr(sW)}, 1
s_add_u32 {sr(sT2)}, {sr(sT2)}, {sr(sT3)}
s_lshl_b32 {sr(sT2)}, {sr(sT2)}, 5
s_lshl_b32 {sr(sT3)}, {sr(sHg)}, 2
s_add_u32 {sr(sT2)}, {sr(sT2)}, {sr(sT3)}
s_add_u32 {sr(sT2)}, {sr(sT2)}, {sr(sT)}
s_mul_i32 {sr(sOo)}, {sr(sT2)}, 2560
s_add_u32 {sr(sOo)}, {sr(sOo)}, {F_WS_O}
s_mov_b32 {sr(sPub2)}, {sr(sKV)}
s_mul_i32 {sr(sT)}, {sr(sT)}, {KV_HEAD}
s_add_u32 {sr(sKV)}, {sr(sKV)}, {sr(sT)}''')
    if pub4:
        a(f'''s_and_b32 {sr(sT)}, {sr(sW)}, 3
s_mul_i32 {sr(sT2)}, {sr(sT)}, 10240
v_add_u32 {vr(vPub)}, {sr(sT2)}, {vr(vQo)}
s_mul_i32 {sr(sT)}, {sr(sT)}, {KV_HEAD}
s_mul_i32 {sr(sT2)}, {sr(sMt)}, 10240
s_add_u32 {sr(sT)}, {sr(sT)}, {sr(sT2)}
s_add_u32 {sr(sPub)}, {sr(sT)}, {sr(sPub2)}''')
    else:
        a(f'''s_and_b32 {sr(sT)}, {sr(sW)}, 1
s_mul_i32 {sr(sT)}, {sr(sT)}, 5120
v_add_u32 {vr(vPub)}, {sr(sT)}, {vr(vbK1)}
s_mul_i32 {sr(sT2)}, {sr(sMt)}, 10240
s_add_u32 {sr(sT)}, {sr(sT)}, {sr(sT2)}
s_add_u32 {sr(sPub)}, {sr(sT)}, {sr(sKV)}
s_add_u32 {sr(sPub2)}, {sr(sPub)}, 4096''')
    for ct in range(8):
        for tt in range(2):
            for i in range(4):
                a(f'v_mov_b32 {vr(acc[ct][tt]+i)}, 0')
    a(f'''s_mov_b32 {sr(sScale)}, {QSCALE}
s_mov_b32 {sr(sScale+1)}, {QSCALE}
s_and_b32 {sr(sT3)}, {sr(sW)}, 3
v_and_b32 {vr(vT0)}, 15, {vr(vLane)}
v_lshrrev_b32 {vr(vT1)}, 4, {vr(vLane)}
v_lshrrev_b32 {vr(vT2)}, 2, {vr(vT0)}
v_and_b32 {vr(vT3)}, 3, {vr(vT0)}
v_lshl_add_u32 {vr(vT4)}, {vr(vT2)}, 3, {vr(vT3)}
v_lshrrev_b32 {vr(vT2)}, 1, {vr(vT1)}
v_and_b32 {vr(vT3)}, 1, {vr(vT1)}
s_mul_i32 {sr(sT)}, {sr(sT3)}, 2560
v_mul_u32_u24 {vr(vE[0])}, 10240, {vr(vT2)}
v_lshl_add_u32 {vr(vE[0])}, {vr(vT3)}, 9, {vr(vE[0])}
v_lshl_add_u32 {vr(vE[0])}, {vr(vT4)}, 4, {vr(vE[0])}
v_add_u32 {vr(vE[0])}, {sr(sT)}, {vr(vE[0])}
s_cmp_ge_u32 {sr(sW)}, 4
s_cbranch_scc1 {name}_p1b''')

    def p1_variant(wn):
        if wn == 0:
            kinds = [('P', 0, 0, 0), ('P', 0, 0, 1), ('P', 0, 1, 0), ('P', 0, 1, 1), ('T', 0, 0, 0), ('P', 1, 0, 0), ('P', 1, 0, 1), ('T', 1, 0, 0)]
            a(f'''s_add_u32 {sr(sT2)}, {sr(sT)}, 1024
v_mul_u32_u24 {vr(vE[1])}, 10240, {vr(vT1)}
v_lshl_add_u32 {vr(vE[1])}, {vr(vT4)}, 3, {vr(vE[1])}
v_add_u32 {vr(vE[1])}, {sr(sT2)}, {vr(vE[1])}
s_mul_i32 {sr(sT)}, {sr(sT3)}, 1280
s_add_u32 {sr(sT)}, {sr(sT)}, {QST}
v_mul_u32_u24 {vr(vE[2])}, 5120, {vr(vT2)}
v_lshl_add_u32 {vr(vE[2])}, {vr(vT3)}, 9, {vr(vE[2])}
v_lshl_add_u32 {vr(vE[2])}, {vr(vT0)}, 4, {vr(vE[2])}
v_add_u32 {vr(vE[2])}, {sr(sT)}, {vr(vE[2])}
s_add_u32 {sr(sT)}, {sr(sT)}, 1024
v_mul_u32_u24 {vr(vE[3])}, 5120, {vr(vT1)}
v_lshl_add_u32 {vr(vE[3])}, {vr(vT0)}, 3, {vr(vE[3])}
v_add_u32 {vr(vE[3])}, {sr(sT)}, {vr(vE[3])}''')
        else:
            kinds = [('P', 1, 1, 0), ('P', 1, 1, 1)] + [('V', 2, i, 0) for i in range(5)]
            a(f'''s_add_u32 {sr(sT)}, {sr(sT)}, 1280
v_mul_u32_u24 {vr(vT2)}, 640, {vr(vT2)}
v_mul_u32_u24 {vr(vT3)}, 320, {vr(vT3)}
v_add3_u32 {vr(vT5)}, {vr(vT2)}, {vr(vT3)}, {sr(sT)}''')
            for i in range(5):
                a(f'''v_add_u32 {vr(vT2)}, {16*i}, {vr(vT0)}
v_mul_u32_u24 {vr(vT3)}, 3277, {vr(vT2)}
v_lshrrev_b32 {vr(vT3)}, 16, {vr(vT3)}
v_mul_u32_u24 {vr(vT3)}, {10240-320}, {vr(vT3)}
v_lshl_add_u32 {vr(vT2)}, {vr(vT2)}, 4, {vr(vT3)}
v_add_u32 {vr(vE[1+i])}, {vr(vT2)}, {vr(vT5)}''')
        nct = len(kinds)
        grp = [list(range(0, 4)), list(range(4, nct))]
        def rd_x(step, s2):
            return [f'ds_read_b128 {vr(Xf[s2][tt],4)}, {vr(vXr[step%3][s2])} offset:{tt*2048}' for tt in range(2)]
        def rd_w(step, s2, h, idx):
            ty, sec, sub, e = kinds[grp[h][idx]]
            base = (vWa if ty == 'P' else vWb)[step % 3]
            col = sec*160 + {'P': sub*80 + e*8, 'T': 32, 'V': sub*32}[ty]
            return [f'ds_read_b64_tr_b16 {vr(Wf[h][idx]+2*rd,2)}, {vr(base)} offset:{(32*s2+8*rd)*480 + col}' for rd in range(2)]
        def mf(s2, h, idx):
            ct = grp[h][idx]
            out = []
            for tt in range(2):
                A, B = Wf[h][idx], Xf[s2][tt]
                if kinds[ct][0] == 'V':
                    A, B = B, A
                out.append(f'v_mfma_f32_16x16x32_bf16 {vr(acc[ct][tt],4)}, {vr(A,4)}, {vr(B,4)}, {vr(acc[ct][tt],4)}')
            return out
        n0, n1 = 2 + 2*len(grp[0]), 2*len(grp[1])
        def phase(s2, h, nxt):
            if nxt is not None and h == 0:
                for r in rd_x(*nxt): a(r)
            for idx in range(len(grp[h])):
                for m in mf(s2, h, idx): a(m)
                if nxt is not None:
                    for r in rd_w(nxt[0], nxt[1], h, idx): a(r)
        st1()
        a('s_waitcnt vmcnt(0) lgkmcnt(0)')
        if not sep: a(f'v_readfirstlane_b32 {sr(sTag)}, {vr(vEp7)}')
        a('s_barrier')
        a(f's_add_u32 {sr(sTag)}, {sr(sTag)}, {TAGK}')
        rts(1)
        st()
        for r in rd_x(0, 0): a(r)
        for h in range(2):
            for idx in range(len(grp[h])):
                for r in rd_w(0, 0, h, idx): a(r)
        for step in range(10):
            if step == 9 and hsplit:
                a('s_barrier')
            a(f's_waitcnt lgkmcnt({n1})')
            phase(0, 0, (step, 1))
            a(f's_waitcnt lgkmcnt({n0})')
            phase(0, 1, (step, 1))
            a('s_waitcnt lgkmcnt(0)')
            a('s_barrier')
            if step == 0 and wn == 1 and not sep:
                a(f'v_mov_b32 {vr(vCi7)}, 1')
                a(f'buffer_atomic_add {vr(vCi7)}, {vr(vZ7)}, {sr(SDBG,4)}, 0 offen sc0')
            if step in (0, 4): st0()
            if step in (0, 1, 2, 8): st1()
            if step in (8, 9): st4()
            nx = (step + 1, 0) if step < 9 else None
            phase(1, 0, nx)
            phase(1, 1, nx)
        st0(); st4(); st6()
        rts(2)
        if wn == 1 and not sep:
            a(f'''s_waitcnt vmcnt(0)
v_cmp_eq_u32 vcc, 255, {vr(vCi7)}
v_add_u32 {vr(vEp7)}, {TAGK}, {vr(vEp7)}
v_mov_b32 {vr(vT1)}, {OOB}
s_mov_b32 {sr(sT)}, {F_EPOCH}
v_cndmask_b32 {vr(vZ7)}, {vr(vT1)}, {vr(vZ7)}, vcc
buffer_store_dword {vr(vEp7)}, {vr(vZ7)}, {sr(SWS,4)}, {sr(sT)} offen{SC}''')
        def scale(r0):
            a(f'v_pk_mul_f32 {vr(r0,2)}, {vr(r0,2)}, {sr(sScale,2)}')
            a(f'v_pk_mul_f32 {vr(r0+2,2)}, {vr(r0+2,2)}, {sr(sScale,2)}')
        def pack4(d, x, y):
            a(f'v_cvt_pk_bf16_f32 {vr(d)}, {vr(x)}, {vr(x+1)}')
            a(f'v_cvt_pk_bf16_f32 {vr(d+1)}, {vr(x+2)}, {vr(x+3)}')
            if y is not None:
                a(f'v_cvt_pk_bf16_f32 {vr(d+2)}, {vr(y)}, {vr(y+1)}')
                a(f'v_cvt_pk_bf16_f32 {vr(d+3)}, {vr(y+2)}, {vr(y+3)}')
        def stage(want):
          ct = 0
          while ct < nct:
            ty, sec, sub, e = kinds[ct]
            if (sec == 0) != want:
                ct += 1
                continue
            if ty == 'P':
                for tt in range(2):
                    x, y = acc[ct][tt], acc[ct+1][tt]
                    if sec == 0:
                        scale(x); scale(y)
                    pack4(x, x, y)
                    if sec == 0:
                        a(f'ds_write_b128 {vr(vE[2])}, {vr(x,4)} offset:{sub*10240 + tt*256}')
                    else:
                        a(f'ds_write_b128 {vr(vE[0])}, {vr(x,4)} offset:{sub*20480 + tt*64}')
                ct += 2
            elif ty == 'T':
                for tt in range(2):
                    x = acc[ct][tt]
                    if sec == 0:
                        scale(x)
                    pack4(x, x, None)
                    if sec == 0:
                        a(f'ds_write_b64 {vr(vE[3])}, {vr(x,2)} offset:{tt*128}')
                    else:
                        a(f'ds_write_b64 {vr(vE[1])}, {vr(x,2)} offset:{tt*32}')
                ct += 1
            else:
                x, y = acc[ct][0], acc[ct][1]
                pack4(x, x, y)
                a(f'ds_write_b128 {vr(vE[1+sub])}, {vr(x,4)}')
                ct += 1
        if wn == 0: a('s_nop 2')
        stage(False)
        if one_e: stage(True)
        a('s_waitcnt lgkmcnt(0)')
        st4()
        a('s_barrier')
        st4(); st6()
        PB = Xf[0][0]
        assert Wf[0][0] == PB + 16
        if pub4:
            if wn == 0:
                if not one_e: stage(True)
            else:
                for q in range(10):
                    a(f'ds_read_b128 {vr(PB+4*q,4)}, {vr(vPub)} offset:{q*1024}')
                for q in range(10):
                    if q == 4: a(f's_add_u32 {sr(sPub)}, {sr(sPub)}, 4096')
                    if q == 8: a(f's_add_u32 {sr(sPub)}, {sr(sPub)}, 4096')
                    a(f's_waitcnt lgkmcnt({9 - q})')
                    a(f'buffer_store_dwordx4 {vr(PB+4*q,4)}, {vr(vQo)}, {sr(SWS,4)}, {sr(sPub)} offen offset:{(q%4)*1024}{SST}')
        else:
          for q in range(5):
            a(f'ds_read_b128 {vr(PB+4*q,4)}, {vr(vPub)} offset:{q*1024}')
          stage(True)
          nq = 6 if wn == 0 else 0
          for q in range(5):
            a(f's_waitcnt lgkmcnt({4 - q + nq})')
            a(f'buffer_store_dwordx4 {vr(PB+4*q,4)}, {vr(vQo)}, {sr(SWS,4)}, {sr(sPub if q < 4 else sPub2)} offen offset:{(q%4)*1024}{SST}')
        a('s_nop 1')
        st4()
    n_st = st.n
    p1_variant(0)
    a(f's_branch {name}_p2')
    a.label(f'{name}_p1b')
    st.n = n_st
    p1_variant(1)
    a.label(f'{name}_p2')

    V = VAlloc(VB2 + 3)
    Q1 = [V(4), V(4)]; Q2 = [V(2), V(2)]
    K1 = [V(4), V(4)]; K2 = [V(2), V(2)]
    V0 = [V(4), V(4)]; V1 = [V(4), V(4)]
    O = [V(16), V(16)]
    S = [V(16), V(16)]
    st3 = opts.get('st3', 1) and not nobar
    if st3:
        aK1 = [vbK1, vaK1, V()]; aK2 = [vbK2, vaK2, V()]; aV = [vbV, vaV, V()]
    vPw = V(2); vPa = V(); vPo_ = V(); vPg = V()
    done_alloc(V)
    for t in range(2):
        for i in range(16):
            a(f'v_mov_b32 {vr(O[t]+i)}, 0')
    for i in range(4):
        a(f'v_mov_b32 {vr(V1[1]+i)}, 0')
    a(f's_mov_b32 {sr(sG)}, 0')
    a(f's_mov_b32 {sr(sOff)}, 0')
    if st3:
        for k in (1, 2):
            a(f's_mov_b32 {sr(sT)}, {phys(k)*SLOT}')
            a(f'v_add_u32 {vr(aK1[k])}, {sr(sT)}, {vr(vbK1)}')
            a(f'v_mad_u32_u24 {vr(aK2[k])}, {vr(vmK2)}, {sr(sT)}, {vr(vbK2)}')
            a(f'v_mad_u32_u24 {vr(aV[k])}, {vr(vmV)}, {sr(sT)}, {vr(vbV)}')
    if nobar:
        a(f'''s_lshl_b32 {sr(sT)}, {sr(sW)}, 3
s_add_u32 {sr(sT2)}, {sr(sT)}, {LW_PW + 4}
s_xor_b32 {sr(sT)}, {sr(sT)}, 32
s_add_u32 {sr(sT)}, {sr(sT)}, {LW_PW}
v_mov_b32 {vr(vPa)}, {sr(sT)}
v_mov_b32 {vr(vPo_)}, {sr(sT2)}
v_mov_b32 {vr(vPg)}, 0''')
    if not one_e:
        a('s_waitcnt lgkmcnt(0)')
        a('s_barrier')
    st0(); st4()
    def rdK(s_, u, part='R', sl=0):
        x1, x2 = (aK1[sl], aK2[sl]) if st3 else (vaK1, vaK2)
        if part != 'Rb': a(f'ds_read_b128 {vr(K1[s_],4)}, {vr(x1)} offset:{2560*u}')
        if part != 'Ra': a(f'ds_read_b64 {vr(K2[s_],2)}, {vr(x2)} offset:{2560*u}')
    def rdV(s_, u, part='R', sl=0):
        x1 = aV[sl] if st3 else vaV
        if part != 'Rb': a(f'ds_read_b128 {vr(V0[s_],4)}, {vr(x1)} offset:{2560*u}')
        if part != 'Ra': a(f'ds_read_b128 {vr(V1[s_],4)}, {vr(x1)} offset:{2560*u+640}')
    def qk16(t, s_):
        a(f'v_mfma_f32_32x32x16_bf16 {vr(S[t],16)}, {vr(K1[s_],4)}, {vr(Q1[t],4)}, 0')
    def qk8(t, s_):
        a(f'v_mfma_f32_32x32x8_bf16 {vr(S[t],16)}, {vr(K2[s_],2)}, {vr(Q2[t],2)}, {vr(S[t],16)}')
    def pv(t, s_, n):
        Vf = (V0, V1)[n][s_]
        a(f'v_smfmac_f32_32x32x32_bf16 {vr(O[t],16)}, {vr(Vf,4)}, {vr(S[t]+8*n,8)}, {vr(vIdx)}')
    def rowmax(t, dst):
        s = S[t]
        a(f'v_max3_f32 {vr(dst)}, {vr(s)}, {vr(s+1)}, {vr(s+2)}')
        for i in range(3, 15, 2):
            a(f'v_max3_f32 {vr(dst)}, {vr(dst)}, {vr(s+i)}, {vr(s+i+1)}')
        a(f'v_max_f32 {vr(dst)}, {vr(dst)}, {vr(s+15)}')
    def crosshalf(x, y):
        a(f'v_mov_b32 {vr(y)}, {vr(x)}')
        a('s_nop 1')
        a(f'v_permlane32_swap_b32 {vr(x)}, {vr(y)}')
        a('s_nop 1')
    for t in range(2):
        a(f'ds_read_b128 {vr(Q1[t],4)}, {vr(vQs1)} offset:{1280*t}')
        a(f'ds_read_b64 {vr(Q2[t],2)}, {vr(vQs2)} offset:{1280*t}')
    rdK(0, 0); rdK(1, 1); rdV(0, 0)
    a('s_waitcnt lgkmcnt(4)')
    for t in range(2):
        a(f'v_cndmask_b32_e64 {vr(Q2[t])}, {vr(Q2[t])}, 0, {sr(sHi,2)}')
        a(f'v_cndmask_b32_e64 {vr(Q2[t]+1)}, {vr(Q2[t]+1)}, 0, {sr(sHi,2)}')
    qk16(0, 0); qk8(0, 0); qk16(1, 0); qk8(1, 0)
    a('s_nop 9')
    for t in range(2):
        if t == 1: a('s_nop 1')
        rowmax(t, vT0)
        crosshalf(vT0, vT1)
        a(f'''v_max_f32 {vr(vT0)}, {vr(vT0)}, {vr(vT1)}
v_sub_f32 {vr(vT0)}, 0, {vr(vT0)}
v_and_b32 {vr(vT1)}, 0xffff0000, {vr(vT0)}
v_sub_f32 {vr(vT0)}, {vr(vT0)}, {vr(vT1)}
v_and_b32 {vr(vT2)}, 0xffff0000, {vr(vT0)}
v_sub_f32 {vr(vT0)}, {vr(vT0)}, {vr(vT2)}
v_lshrrev_b32 {vr(vT1)}, 16, {vr(vT1)}
v_or_b32 {vr(vT1)}, {vr(vT1)}, {vr(vT2)}
v_lshrrev_b32 {vr(vT0)}, 16, {vr(vT0)}
v_cndmask_b32_e64 {vr(Q2[t])}, {vr(Q2[t])}, {vr(vT1)}, {sr(sHi,2)}
v_cndmask_b32_e64 {vr(Q2[t]+1)}, {vr(Q2[t]+1)}, {vr(vT0)}, {sr(sHi,2)}''')
        if t == 0:
            qk16(0, 0)
            a('s_nop 0')
            qk8(0, 0)
    for i in range(8, 16):
        a(f'v_mov_b32 {vr(S[1]+i)}, 0')
    st4()
    dsig = opts.get('dsig', 0) and pub4 and st3
    sSig, sFa = sOff, sPub2
    def sig_code(lbl, cnt):
        a(f'''s_mov_b64 exec, 1
v_mov_b32 {vr(vT0)}, 1
v_mov_b32 {vr(vT2)}, {LW_CNT1}
v_mov_b32 {vr(vT1)}, {sr(sTag)}
v_mov_b32 {vr(vT3)}, {sr(sFa)}
s_waitcnt vmcnt(0)
ds_add_rtn_u32 {vr(vT0)}, {vr(vT2)}, {vr(vT0)}
s_waitcnt lgkmcnt(0)
v_readfirstlane_b32 {sr(sT)}, {vr(vT0)}
s_cmp_eq_u32 {sr(sT)}, {cnt - 1}
s_cbranch_scc0 {lbl}''')
        if rep_:
            a(f'''s_mov_b64 exec, 0xffff
v_mov_b32 {vr(vT1)}, {sr(sTag)}
v_lshl_add_u32 {vr(vT3)}, {vr(vLane)}, 7, {sr(sFa)}''')
        a(f'buffer_store_dword {vr(vT1)}, {vr(vT3)}, {sr(SWS,4)}, 0 offen{SC}')
        a.label(lbl)
        a('s_mov_b64 exec, -1')
    a(f'''s_lshl_b32 {sr(sT)}, {sr(sB)}, 3
s_add_u32 {sr(sT)}, {sr(sT)}, {sr(sHg)}
s_lshl_b32 {sr(sT)}, {sr(sT)}, {9 if rep_ else 6}
s_add_u32 {sr(sT)}, {sr(sT)}, {sr(sMt)}
s_lshl_b32 {sr(sT)}, {sr(sT)}, 2
s_add_u32 {sr(sFa)}, {sr(sT)}, {F_R1 if rep_ else F_FLAG1}''')
    sigpts = []
    if dsig:
        a(f's_lshr_b32 {sr(sSig)}, {sr(sW)}, 2')
        if opts.get('dsig') == 2:
            a(f's_cmp_eq_u32 {sr(sSig)}, 0')
            a(f's_cbranch_scc1 {name}_lp')
            a(f's_setprio {opts.get("sgp", 1)}')
            a.label(f'{name}_lp')
        a('s_waitcnt lgkmcnt(0)')
    else:
        sig_code(f'{name}_nl1', 8)
    def sig_point(force):
        k = len(sigpts); sigpts.append(force)
        a(f's_cmp_lg_u32 {sr(sSig)}, 0')
        a(f's_cbranch_scc1 {name}_sg{k}')
        a.label(f'{name}_sgr{k}')
    prio = opts.get('prio', 11)
    rts(3)
    st0(); st4(); st6()
    if sset == 2: st()
    peel = (opts.get('dsig', 0) == 2) and dsig
    if not peel:
        a('.p2align 6')
        a.label(f'{name}_loop')
    def ex(t, i):
        a(f'v_exp_f32 {vr(S[t]+i)}, {vr(S[t]+i)}')
    scheds = {1: 'e e P2 e e e e Q16 e e e e Q8 R e e e e P1 W e e',
              2: 'e e P2 e e e e Q16 e e e Q8 R e e e e e P1 W e e',
              3: 'e e P2 e e e e Q16 e e e e Q8 e R e e e P1 e W e',
              4: 'e e P2 e e e Q16 e e e e Q8 R e e e e P1 W e e e',
              5: 'e e W P2 e e e e Ra Q16 e e e e Rb Q8 e e e e P1 e e',
              6: 'e e W P2 e e e e R Q16 e e e e Q8 e e e e P1 e e',
              7: 'e e W P2 e e e e Q16 e e e e Ra Q8 e e e e Rb P1 e e',
              8: 'e e P2 e e e e Ra Q16 e e e e Rb Q8 e e e e W P1 e e',
              9: 'e e P2 e e e e Q16 e e e e Q8 e e e e R W P1 e e',
              10: 'e e P2 Ra e e e e Q16 Rb e e e e Q8 W e e e e P1 e e',
              11: 'e e P2 Ra e e e e Q16 Rb e e e e Q8 e e e e P1 W e e',
              12: 'e e P2 R e e e e Q16 e e e e Q8 e e e e P1 W e e',
              13: 'e e P2 R W e e e e Q16 e e e e Q8 e e e e P1 e e',
              14: 'e e P2 Ra e e e e Q16 e e e e Q8 e e e e P1 Rb W e e',
              15: 'e e P2 R e e e e Q16 e e e e Q8 W e e e e P1 e e',
              16: 'e e P2 R e e e e Q16 W e e e e Q8 e e e e P1 e e',
              17: 'e e e P2 R e e e e Q16 e e e e Q8 e e e P1 W e e',
              18: 'e e P2 R e e e e e Q16 e e e Q8 e e e e P1 W e e'}
    sched = scheds[opts.get('sched', 12)].split()
    unroll = 3 if st3 else opts.get('unroll', 1)
    ptab = {1: {(0, 0): 2, (1, 0): 1, (2, 0): 0, (3, 0): 3},
            2: {(3, 0): 1, (1, 0): 0},
            3: {(3, 0): 3, (3, 1): 2, (0, 1): 1, (1, 1): 0},
            6: {(3, 0): 3, (0, 1): 2, (1, 1): 1, (2, 0): 0},
            7: {(3, 0): 3, (0, 0): 2, (1, 1): 1, (2, 0): 0},
            8: {(3, 1): 3, (0, 1): 2, (1, 1): 1, (2, 0): 0},
            9: {(3, 0): 3, (0, 0): 2, (1, 0): 1, (2, 1): 0},
            10: {(3, 0): 2, (0, 1): 1, (2, 0): 0},
            11: {(3, 0): 3, (3, 1): 2, (0, 0): 3, (0, 1): 2, (1, 0): 1, (2, 0): 0}}.get(prio, {})
    for ri, rep in enumerate([0, 1, 2, 0] if peel else range(unroll)):
      first = peel and ri == 0
      if peel and ri == 1:
        a('.p2align 6')
        a.label(f'{name}_loop')
      for j in range(4):
        for t in range(2):
            pj = j if t == 1 else j - 1
            nj = j if t == 0 else j + 1
            if (j, t) in ptab and nobar != 1 and not (first and j < 3):
                a(f's_setprio {ptab[(j, t)]}')
            if dsig and not peel and rep == 0 and (j, t) in ((0, 0), (0, 1), (1, 0), (1, 1), (2, 0)):
                sig_point(False)
            e = 0
            for tok in sched:
                if tok == 'e':
                    ex(t, e); e += 1
                elif tok == 'P2':
                    pv(1 - t, pj % 2, 1)
                elif tok == 'P1':
                    pv(t, j % 2, 0)
                    if first and (j, t) < (2, 1): sig_point(False)
                elif tok == 'Q16':
                    qk16(1 - t, nj % 2)
                    if first and (j, t) < (2, 1): sig_point(False)
                elif tok == 'Q8':
                    qk8(1 - t, nj % 2)
                elif tok == 'W':
                    a(f's_waitcnt lgkmcnt({3 if nobar and (j, t) in ((2, 0), (2, 1)) else 2})')
                elif tok == 'Rb':
                    if t == 0: rdV((j + 1) % 2, (j + 1) % 4, 'Rb', (rep + (j + 1) // 4) % 3)
                    else: rdK(j % 2, (j + 2) % 4, 'Rb', (rep + (j + 2) // 4) % 3)
                elif tok in ('R', 'Ra'):
                    if t == 0:
                        if j == 3 and not st3:
                            a(f'v_mad_u32_u24 {vr(vaV)}, {vr(vmV)}, {sr(sOff)}, {vr(vbV)}')
                        rdV((j + 1) % 2, (j + 1) % 4, tok, (rep + (j + 1) // 4) % 3)
                        if j == 2 and nobar:
                            a(f'ds_read_b64 {vr(vPw,2)}, {vr(vPa)}')
                    else:
                        if g1s and rep == 1 and j == 1:
                            a(f's_cmp_eq_u32 {sr(sG)}, 0')
                            a(f's_cbranch_scc1 {name}_g1w')
                            a.label(f'{name}_g1r')
                        if j == 2 and st3:
                            if dsig and (first if peel else rep == 0): sig_point(True)
                            a('s_waitcnt lgkmcnt(0)')
                            a('s_barrier')
                            if pre == 1 and rep == 0:
                                a(f's_cmp_eq_u32 {sr(sG)}, 15')
                                a(f's_cbranch_scc1 {name}_pre')
                                a.label(f'{name}_prer')
                            if sset == 6 and st.on and rep == 0:
                                a(f's_cmp_eq_u32 {sr(sG)}, 0')
                                a(f's_cbranch_scc0 {name}_sk6')
                                st.rt()
                                a.label(f'{name}_sk6')
                        elif j == 2:
                            a(f'''s_add_u32 {sr(sOff)}, {sr(sOff)}, {SLOT}
s_cmp_ge_u32 {sr(sOff)}, {3*SLOT}
s_cselect_b32 {sr(sOff)}, 0, {sr(sOff)}''')
                            if nobar:
                                a(f'''v_add_u32 {vr(vPg)}, 1, {vr(vPg)}
s_add_u32 {sr(sT3)}, {sr(sG)}, {rep + 1}
s_waitcnt lgkmcnt(0)
v_readfirstlane_b32 {sr(sT)}, {vr(vPw)}
v_readfirstlane_b32 {sr(sT2)}, {vr(vPw+1)}
ds_write_b32 {vr(vPo_)}, {vr(vPg)}''')
                                if nobar == 1:
                                    a(f'''s_setprio 0
s_cmp_lt_u32 {sr(sT2)}, {sr(sT3)}
s_cbranch_scc1 {name}_lo{rep}
s_setprio 1''')
                                    a.label(f'{name}_lo{rep}')
                                elif nobar == 2:
                                    a(f's_add_u32 {sr(sT2)}, {sr(sT2)}, {1 + opts.get("slack", 0)}')
                                    a(f's_min_u32 {sr(sT)}, {sr(sT)}, {sr(sT2)}')
                                a(f's_cmp_gt_u32 {sr(sT)}, {sr(sT3)}')
                                a(f's_cbranch_scc0 {name}_spin{rep}')
                                a.label(f'{name}_spun{rep}')
                            else:
                                a('s_waitcnt lgkmcnt(0)')
                                a('s_barrier')
                            if sset == 2 and st.on:
                                for K in (0, 1, 2, 3, 8, 14):
                                    a(f's_cmp_eq_u32 {sr(sG)}, {K}')
                                    a(f's_cbranch_scc0 {name}_sk{K}')
                                    st()
                                    a.label(f'{name}_sk{K}')
                            a(f'''v_add_u32 {vr(vaK1)}, {sr(sOff)}, {vr(vbK1)}
v_mad_u32_u24 {vr(vaK2)}, {vr(vmK2)}, {sr(sOff)}, {vr(vbK2)}''')
                        rdK(j % 2, (j + 2) % 4, tok, (rep + (j + 2) // 4) % 3)
            assert e == 16
      if st3 and rep == 0 and not peel:
        a(f's_cmp_eq_u32 {sr(sG)}, 15')
        a(f's_cbranch_scc1 {name}_lend')
    a(f'''s_add_u32 {sr(sG)}, {sr(sG)}, {unroll}
s_cmp_lt_u32 {sr(sG)}, {15 if peel else 16}
s_cbranch_scc1 {name}_loop''')
    a.label(f'{name}_lend')
    tail0 = len(a.lines)
    if pre == 2:
        a(f's_branch {name}_pre')
        a.label(f'{name}_prer')
    a('s_nop 1')
    pv(1, 1, 1)
    if ptab or nobar:
        a('s_setprio 0')
    st0()
    if sset in (2, 3): st()
    L = [vT2, vT3]
    st6(1)
    rts(4)
    a('s_waitcnt lgkmcnt(0)')
    a(f's_mov_b32 {sr(sI)}, 0')
    a.label(f'{name}_store')
    a(f's_mov_b32 {sr(sM)}, 0xaaaaaaaa')
    a(f's_mov_b32 {sr(sM+1)}, 0xaaaaaaaa')
    for t in range(2):
        a(f'v_mov_b32 {vr(vT0)}, {vr(O[t]+8)}')
        crosshalf(vT0, L[t])
        a(f'v_rcp_f32 {vr(vT0)}, {vr(L[t])}')
        a('s_nop 0')
        for i in range(12):
            a(f'v_mul_f32 {vr(O[t]+i)}, {vr(O[t]+i)}, {vr(vT0)}')
        for i in range(4):
            a(f'v_cvt_pk_bf16_f32 {vr(S[t]+i)}, {vr(O[t]+2*i)}, {vr(O[t]+2*i+1)}')
        a(f'buffer_store_dwordx4 {vr(S[t],4)}, {vr(vQo)}, {sr(SWS,4)}, {sr(sOo)} offen offset:{1024*t}{SST}')
        for i in range(2):
            a(f'v_cvt_pk_bf16_f32 {vr(S[0]+4+2*t+i)}, {vr(O[t]+8+2*i)}, {vr(O[t]+8+2*i+1)}')
    ta, tb, X, Y = S[0]+4, S[0]+6, S[0]+8, S[0]+12
    a(f'''v_cndmask_b32_e64 {vr(X)}, {vr(tb)}, {vr(ta)}, {sr(sM,2)}
v_cndmask_b32_e64 {vr(X+1)}, {vr(tb+1)}, {vr(ta+1)}, {sr(sM,2)}
v_lshrrev_b32 {vr(vT0)}, 1, {vr(vLane)}
v_and_b32 {vr(vT1)}, 1, {vr(vLane)}
v_mov_b32_dpp {vr(X+2)}, {vr(X)} quad_perm:[1,0,3,2] row_mask:0xf bank_mask:0xf
v_mov_b32_dpp {vr(X+3)}, {vr(X+1)} quad_perm:[1,0,3,2] row_mask:0xf bank_mask:0xf
v_lshlrev_b32 {vr(vT0)}, 4, {vr(vT0)}
v_lshl_add_u32 {vr(vT0)}, {vr(vT1)}, 8, {vr(vT0)}
v_mov_b32 {vr(vT1)}, {OOB}
v_cndmask_b32_e64 {vr(Y)}, {vr(ta)}, {vr(X+2)}, {sr(sM,2)}
v_cndmask_b32_e64 {vr(Y+1)}, {vr(ta+1)}, {vr(X+3)}, {sr(sM,2)}
v_cndmask_b32_e64 {vr(Y+2)}, {vr(X+2)}, {vr(tb)}, {sr(sM,2)}
v_cndmask_b32_e64 {vr(Y+3)}, {vr(X+3)}, {vr(tb+1)}, {sr(sM,2)}
v_cndmask_b32_e64 {vr(vT0)}, {vr(vT0)}, {vr(vT1)}, {sr(sHi,2)}
buffer_store_dwordx4 {vr(Y,4)}, {vr(vT0)}, {sr(SWS,4)}, {sr(sOo)} offen offset:2048{SST}''')
    st0()
    for t in range(2):
        sm = sM if t == 0 else sM2
        a(f'v_mul_f32 {vr(vT1)}, 0, {vr(O[t])}')
        for i in range(1, 12):
            a(f'v_fmac_f32 {vr(vT1)}, 0, {vr(O[t]+i)}')
        a(f'v_add_f32 {vr(vT1)}, {vr(vT1)}, {vr(L[t])}')
        a(f'v_cmp_gt_f32 vcc, 0x53800000, {vr(vT1)}')
        a(f's_mov_b64 {sr(sm,2)}, vcc')
        a(f'v_cmp_lt_f32 vcc, 0x35800000, {vr(vT1)}')
        a(f's_and_b64 {sr(sm,2)}, {sr(sm,2)}, vcc')
    a(f'''s_and_b64 {sr(sM,2)}, {sr(sM,2)}, {sr(sM2,2)}
s_cmp_eq_u64 {sr(sM,2)}, -1
s_cselect_b32 {sr(sT)}, 1, {sr(sI)}
s_cmp_eq_u32 {sr(sT)}, 0
s_cbranch_scc1 {name}_fallback''')

    V = VAlloc(VBASE)
    vWm0 = V(); vWt0 = V(); vRd = V(); vDn = V(); vOs = [V(), V(), V()]; vOo = vOs[0]; vOw, vOr = 166, 167
    assert opts.get('ow', 1)
    vWm = [V() for _ in range(4)]; vWt = [V() for _ in range(4)]
    acc3 = [V(4) for _ in range(5)]
    assert V.n <= S[0]
    Wg = [[V(4) for _ in range(5)] for _ in range(2)]
    A = [[V(4) for _ in range(5)] for _ in range(3)]
    assert V.n <= 144, V.n
    A = [[144 + 4*p for p in range(5)]] + A
    maxv[0] = max(maxv[0], 168)
    done_alloc(V)
    if not pre: a_addr()
    a(f'''v_bfe_u32 {vr(vT0)}, {vr(vLane)}, 2, 2
v_lshrrev_b32 {vr(vT1)}, 5, {vr(vLane)}
v_mul_u32_u24 {vr(vT1)}, 20, {vr(vT1)}
v_bfe_u32 {vr(vT2)}, {vr(vLane)}, 4, 1
v_lshl_add_u32 {vr(vT1)}, {vr(vT2)}, 2, {vr(vT1)}
v_add_u32 {vr(vT1)}, {vr(vT1)}, {vr(vT0)}
v_mul_u32_u24 {vr(vT1)}, 160, {vr(vT1)}
v_and_b32 {vr(vT2)}, 3, {vr(vLane)}
v_lshl_add_u32 {vr(vWm0)}, {vr(vT2)}, 3, {vr(vT1)}
v_lshrrev_b32 {vr(vT1)}, 4, {vr(vLane)}
v_mul_u32_u24 {vr(vT1)}, 20, {vr(vT1)}
v_add3_u32 {vr(vT1)}, {vr(vT1)}, {vr(vT0)}, 16
v_mul_u32_u24 {vr(vT1)}, 160, {vr(vT1)}
v_lshl_add_u32 {vr(vWt0)}, {vr(vT2)}, 3, {vr(vT1)}
s_lshl_b32 {sr(sT)}, {sr(sMt3)}, 7
s_lshl_b32 {sr(sT2)}, {sr(sW)}, 4
s_add_u32 {sr(sT)}, {sr(sT)}, {sr(sT2)}
v_and_b32 {vr(vT0)}, 15, {vr(vLane)}
v_add_u32 {vr(vT0)}, {sr(sT)}, {vr(vT0)}
v_mul_u32_u24 {vr(vT0)}, 2560, {vr(vT0)}
v_lshrrev_b32 {vr(vT1)}, 4, {vr(vLane)}
v_lshl_add_u32 {vr(vT0)}, {vr(vT1)}, 3, {vr(vT0)}
s_mul_i32 {sr(sT)}, {sr(sB)}, 1280
s_mul_i32 {sr(sT2)}, {sr(sCg)}, 160
s_add_u32 {sr(sT)}, {sr(sT)}, {sr(sT2)}
v_add_u32 {vr(vOo)}, {sr(sT)}, {vr(vT0)}
v_mov_b32 {vr(vRd)}, {LW_RDY}
s_lshl_b32 {sr(sT2)}, {sr(sMt3)}, 3
s_add_u32 {sr(sT2)}, {sr(sT2)}, {sr(sW)}
s_mul_i32 {sr(sT2)}, {sr(sT2)}, {16*2560}
s_add_u32 {sr(sOo)}, {sr(sT)}, {sr(sT2)}
s_mul_i32 {sr(sT2)}, {sr(sW)}, 3072
v_and_b32 {vr(vT0)}, 15, {vr(vLane)}
v_mul_u32_u24 {vr(vT0)}, 160, {vr(vT0)}
v_lshl_add_u32 {vr(vT0)}, {vr(vT1)}, 3, {vr(vT0)}
v_add_u32 {vr(vOw)}, {sr(sT2)}, {vr(vT0)}
v_lshlrev_b32 {vr(vT0)}, 4, {vr(vLane)}
v_add_u32 {vr(vOr)}, {sr(sT2)}, {vr(vT0)}
v_mul_u32_u24 {vr(vT1)}, 6554, {vr(vLane)}
v_lshrrev_b32 {vr(vT1)}, 16, {vr(vT1)}
v_mul_u32_u24 {vr(vT1)}, {2560-160}, {vr(vT1)}
v_add_u32 {vr(vOs[0])}, {vr(vT0)}, {vr(vT1)}
v_add_u32 {vr(vT2)}, 64, {vr(vLane)}
v_mul_u32_u24 {vr(vT1)}, 6554, {vr(vT2)}
v_lshrrev_b32 {vr(vT1)}, 16, {vr(vT1)}
v_mul_u32_u24 {vr(vT1)}, {2560-160}, {vr(vT1)}
v_lshl_add_u32 {vr(vOs[1])}, {vr(vT2)}, 4, {vr(vT1)}
v_add_u32 {vr(vT2)}, 128, {vr(vLane)}
v_mul_u32_u24 {vr(vT1)}, 6554, {vr(vT2)}
v_lshrrev_b32 {vr(vT1)}, 16, {vr(vT1)}
v_mul_u32_u24 {vr(vT1)}, {2560-160}, {vr(vT1)}
v_lshl_add_u32 {vr(vT1)}, {vr(vT2)}, 4, {vr(vT1)}
v_mov_b32 {vr(vT2)}, {OOB}
v_cndmask_b32_e64 {vr(vOs[2])}, {vr(vT1)}, {vr(vT2)}, {sr(sHi,2)}
s_lshl_b32 {sr(sT)}, {sr(sB)}, 4
s_add_u32 {sr(sT)}, {sr(sT)}, {sr(sMt)}
s_lshl_b32 {sr(sT)}, {sr(sT)}, {8 if rep_ else 6}
s_add_u32 {sr(sT)}, {sr(sT)}, {sr(sHg)}
s_lshl_b32 {sr(sT)}, {sr(sT)}, 2
s_add_u32 {sr(sT)}, {sr(sT)}, {F_R2 if rep_ else F_FLAG2}
{f'v_lshl_add_u32 {vr(vDn)}, {vr(vLane)}, 7, {sr(sT)}' if rep_ else f'v_mov_b32 {vr(vDn)}, {sr(sT)}'}
v_add_u32 {vr(vWm0)}, {WO_LO}, {vr(vWm0)}
v_add_u32 {vr(vWt0)}, {WO_LO}, {vr(vWt0)}
SKIP''')
    for t in range(5):
        for i in range(4):
            a(f'v_mov_b32 {vr(acc3[t]+i)}, 0')
    tid_ = [0]
    base3 = st.n
    if sset == 3: st.n += 4
    def read_rdy():
        a(f'''ds_read_b64 {vr(vT0,2)}, {vr(vRd)}
s_waitcnt lgkmcnt(0)
v_and_b32 {vr(vT0)}, {vr(vT0)}, {vr(vT1)}
s_nop 0
v_readfirstlane_b32 {sr(sT)}, {vr(vT0)}
s_andn2_b32 {sr(sT)}, {sr(sT)}, {sr(sDone)}''')
    def loads(s_, early_=False):
        a(f'''s_lshl_b32 {sr(sT2)}, {sr(sT)}, 8
s_or_b32 {sr(sT)}, {sr(sT)}, {sr(sT2)}
s_lshr_b32 {sr(sT)}, {sr(sT)}, {sr(sRot)}
s_ff1_i32_b32 {sr(sT)}, {sr(sT)}
s_add_u32 {sr(sT)}, {sr(sT)}, {sr(sRot)}
s_and_b32 {sr(sT)}, {sr(sT)}, 7
s_bitset1_b32 {sr(sDone)}, {sr(sT)}
s_mul_i32 {sr(sT2)}, {sr(sT)}, 10240
s_add_u32 {sr(sT2)}, {sr(sT2)}, {sr(sA)}
s_cmp_eq_u32 {sr(sT)}, 6
s_mul_i32 {sr(sT)}, {sr(sT)}, 12800
s_cselect_b32 {sr(sT)}, {QST - WO_LO}, {sr(sT)}''')
        for p in range(4):
            a(f'buffer_load_dwordx4 {vr(A[s_][p],4)}, {vr(vAo)}, {sr(SWS,4)}, {sr(sT2)} offen{SLD}')
            if p == 0:
                a(f'buffer_load_dwordx2 {vr(A[s_][4],2)}, {vr(vAt)}, {sr(SWS,4)}, {sr(sT2)} offen{SLD}')
            if p == 2:
                a(f'buffer_load_dwordx2 {vr(A[s_][4]+2,2)}, {vr(vAt)}, {sr(SWS,4)}, {sr(sT2)} offen{SLD}')
            if p < 3:
                a(f's_add_u32 {sr(sT2)}, {sr(sT2)}, 5120')
        if early_:
            a(f's_mov_b32 {sr(sPre)}, {sr(sT)}')
            return
        a(f'v_add_u32 {vr(vWm[s_])}, {sr(sT)}, {vr(vWm0)}')
        a(f'v_add_u32 {vr(vWt[s_])}, {sr(sT)}, {vr(vWt0)}')
        if sset == 3 and st.on:
            a(f's_memtime s[{62+2*(base3+s_)}:{63+2*(base3+s_)}]\ns_waitcnt lgkmcnt(0)')
    def take_group(s_):
        n = tid_[0]; tid_[0] += 1
        a.label(f'{name}_tg{n}')
        read_rdy()
        a(f'''s_cbranch_scc1 {name}_tgd{n}
s_sleep 1
s_branch {name}_tg{n}''')
        a.label(f'{name}_tgd{n}')
        loads(s_)
    a('s_waitcnt vmcnt(0)')
    a(f'''s_mov_b64 exec, 1
v_mov_b32 {vr(vT0)}, 1
ds_add_rtn_u32 {vr(vT0)}, {vr(vRd)}, {vr(vT0)} offset:8
v_mov_b32 {vr(vT1)}, {sr(sTag)}
v_mov_b32 {vr(vT2)}, 0xff
s_waitcnt lgkmcnt(0)
v_readfirstlane_b32 {sr(sT)}, {vr(vT0)}
s_cmp_eq_u32 {sr(sT)}, 7
s_cbranch_scc0 {name}_nl
ds_write_b32 {vr(vRd)}, {vr(vT2)} offset:4
{'s_mov_b64 exec, 0xff' if rep_ else 'SKIP'}
v_mov_b32 {vr(vT1)}, {sr(sTag)}
buffer_store_dword {vr(vT1)}, {vr(vDn)}, {sr(SWS,4)}, 0 offen{SC}''')
    a.label(f'{name}_nl')
    a('s_mov_b64 exec, -1')
    if sset == 3: st()
    st6(1)
    def rdW3(fs, j, p, t):
        out = []
        for rd in range(2):
            if p < 4:
                base, off = vWm[j], (20*(2*p) + 8*rd)*160 + t*32
            else:
                base, off = vWt[j], (20*(4*rd))*160 + t*32
            out.append(f'ds_read_b64_tr_b16 {vr(Wg[fs][t]+2*rd,2)}, {vr(base)} offset:{off}')
        return out
    if opts.get('evt', 1):
        st0()
        sJ = sG
        a(f's_cmp_lg_u32 {sr(sPre)}, -1')
        a(f's_cselect_b32 {sr(sI)}, 1, 0')
        a(f'v_add_u32 {vr(vWm[0])}, {sr(sPre)}, {vr(vWm0)}')
        a(f'v_add_u32 {vr(vWt[0])}, {sr(sPre)}, {vr(vWt0)}')
        a(f's_mov_b32 {sr(sJ)}, 0')
        a.label(f'{name}_ev')
        dep3 = opts.get('dep3', 2)
        LANDED = f'''s_getreg_b32 {sr(sT)}, hwreg(HW_REG_IB_STS)
s_bfe_u32 {sr(sT2)}, {sr(sT)}, 0x20016
s_lshl_b32 {sr(sT2)}, {sr(sT2)}, 4
s_and_b32 {sr(sT)}, {sr(sT)}, 15
s_or_b32 {sr(sT)}, {sr(sT)}, {sr(sT2)}
s_add_u32 {sr(sT)}, {sr(sT)}, 6
s_sub_u32 {sr(sT2)}, {sr(sI)}, {sr(sJ)}
s_mul_i32 {sr(sT2)}, {sr(sT2)}, 6
s_cmp_le_u32 {sr(sT)}, {sr(sT2)}
s_cbranch_scc1 {name}_evc'''
        a(f's_cmp_lt_u32 {sr(sI)}, 4')
        a(f's_cbranch_scc0 {name}_evc')
        if dep3 < 4:
            a(f's_sub_u32 {sr(sT)}, {sr(sI)}, {sr(sJ)}')
            a(f's_cmp_ge_u32 {sr(sT)}, {dep3}')
            a(f's_cbranch_scc1 {name}_evc')
        read_rdy()
        a(f's_cbranch_scc0 {name}_evn')
        for i in range(4):
            if i < 3:
                a(f's_cmp_eq_u32 {sr(sI)}, {i}')
                a(f's_cbranch_scc0 {name}_evt{i}')
            if opts.get('p3p', 1) & 1: a(f's_setprio {3 - i}')
            loads(i)
            a(f's_mov_b32 {sr(sI)}, {i+1}')
            a(f's_branch {name}_ev')
            a.label(f'{name}_evt{i}')
        a.label(f'{name}_evn')
        a(LANDED)
        a(f's_branch {name}_ev')
        a.label(f'{name}_evc')
        for j in range(4):
            if j < 3:
                a(f's_cmp_eq_u32 {sr(sJ)}, {j}')
                a(f's_cbranch_scc0 {name}_evk{j}')
            if sset == 8 and j in (1, 3): st()
            if opts.get('p3p', 1) & 2: a(f's_setprio {3 - j}')
            for p in range(2):
                for t in range(5):
                    for r in rdW3(p, j, p, t): a(r)
            for k in range(4, j + 1, -1):
                a(f's_cmp_eq_u32 {sr(sI)}, {k}')
                a(f's_cbranch_scc0 {name}_evw{j}_{k}')
                a(f's_waitcnt vmcnt({6*(k-j-1)})')
                a(f's_branch {name}_evx{j}')
                a.label(f'{name}_evw{j}_{k}')
            a('s_waitcnt vmcnt(0)')
            a.label(f'{name}_evx{j}')
            if sset == 3 and j in (0, 3): st()
            if j in (0, 3): st6(1)
            if sset == 8 and j == 3: st()
            for p in range(5):
                fs = p % 2
                a(f's_waitcnt lgkmcnt({10 if p < 4 else 0})')
                for t in range(5):
                    a(f'v_mfma_f32_16x16x32_bf16 {vr(acc3[t],4)}, {vr(Wg[fs][t],4)}, {vr(A[j][p],4)}, {vr(acc3[t],4)}')
                    if p + 2 < 5:
                        for r in rdW3(fs, j, p + 2, t): a(r)
            if sset == 8 and j in (1, 3): st()
            if j < 3:
                a(f's_mov_b32 {sr(sJ)}, {j+1}')
                a(f's_branch {name}_ev')
                a.label(f'{name}_evk{j}')
    else:
        st0()
        steps = [(j, p) for j in range(4) for p in range(5)]
        for j in range(4):
            take_group(j)
        for n in range(2):
            for t in range(5):
                for r in rdW3(n, *steps[n], t): a(r)
        left = {0: 5, 1: 3, 2: 2, 3: 0, 4: 0}
        for n, (j, p) in enumerate(steps):
            fs = n % 2
            a(f's_waitcnt vmcnt({6*(3-j) + left[p]}) lgkmcnt({10 if n < 19 else 0})')
            if sset == 3 and n in (0, 18): st()
            for t in range(5):
                a(f'v_mfma_f32_16x16x32_bf16 {vr(acc3[t],4)}, {vr(Wg[fs][t],4)}, {vr(A[j][p],4)}, {vr(acc3[t],4)}')
                if n + 2 < 20:
                    for r in rdW3(fs, *steps[n+2], t): a(r)

    a('s_nop 3')
    st0()
    if sset == 3: st()
    OUTF = {0: '', 1: ' nt', 2: ' sc1', 3: ' sc0 sc1', 4: ' sc1 nt', 5: ' sc0 sc1 nt'}[opts.get('outf', 2)]
    if opts.get('ow', 1):
        for t in range(5):
            a(f'v_cvt_pk_bf16_f32 {vr(acc3[t])}, {vr(acc3[t])}, {vr(acc3[t]+1)}')
            a(f'v_cvt_pk_bf16_f32 {vr(acc3[t]+1)}, {vr(acc3[t]+2)}, {vr(acc3[t]+3)}')
            a(f'ds_write_b64 {vr(vOw)}, {vr(acc3[t],2)} offset:{t*32}')
        a('s_waitcnt lgkmcnt(0)')
        for k in range(3):
            a(f'ds_read_b128 {vr(Wg[0][k],4)}, {vr(vOr)} offset:{k*1024}')
        for k in range(3):
            a(f's_waitcnt lgkmcnt({2-k})')
            a(f'buffer_store_dwordx4 {vr(Wg[0][k],4)}, {vr(vOs[k])}, {sr(SOUT,4)}, {sr(sOo)} offen{OUTF}')
    else:
        for t in range(5):
            a(f'v_cvt_pk_bf16_f32 {vr(acc3[t])}, {vr(acc3[t])}, {vr(acc3[t]+1)}')
            a(f'v_cvt_pk_bf16_f32 {vr(acc3[t]+1)}, {vr(acc3[t]+2)}, {vr(acc3[t]+3)}')
            a(f'buffer_store_dwordx2 {vr(acc3[t],2)}, {vr(vOo)}, {sr(SOUT,4)}, 0 offen offset:{t*32}{OUTF}')

    if sset == 5:
        st(); st()
    if dbgt:
        a('s_waitcnt vmcnt(0)')
        rts(5)
        a('s_mov_b64 exec, 1')
        a(f's_not_b32 s62, s62')
        for k in range(6):
            a(f'v_mov_b32 {vr(vT0)}, {4+4*k}')
            a(f'v_mov_b32 {vr(vT1)}, s{62+2*k}')
            a(f'buffer_atomic_umax {vr(vT1)}, {vr(vT0)}, {sr(SDBG,4)}, 0 offen')
            a('s_nop 1')
    if st.on:
        a('s_waitcnt vmcnt(0)')
    st(); st.rt(); st.flush(sW)
    n_total = st.n
    iw = opts.get('iw', 0)
    nseg = 0
    if iw:
        import re as _re
        def nbytes(l):
            l = l.strip()
            if not l or l.endswith(':') or l.startswith((';', '.')): return 0
            op = l.split()[0]
            if op.startswith(('ds_', 'buffer_', 'global_', 'v_mfma', 'v_smfmac', 'v_pk_', 'v_cvt_pk', 'v_lshl_add', 'v_add3', 'v_mad', 'v_bfe', 'v_readfirstlane_x')) or '_e64' in op or '_dpp' in op: return 8
            return 8 if _re.search(r'(?<![\w\[:])(0x[0-9a-f]{3,}|\d{3,})(?![\w\]:])', l.split(None, 1)[1] if ' ' in l else '') and not op.startswith(('s_waitcnt', 's_cbranch', 's_branch')) else 4
        body = a.lines[tail0:]
        out = []; acc_b = iw; k = 0
        SEG = opts.get('iwseg', 6)
        for l in body:
            if acc_b >= iw and nbytes(l):
                out.append(f'{name}_pad{k}:')
                out.append(f'    s_cbranch_execz PADNEXT{k}')
                k += 1; acc_b = 4
            out.append(l); acc_b += nbytes(l)
        for i in range(k):
            tgt = f'{name}_padret' if (i % SEG == SEG - 1 or i == k - 1) else f'{name}_pad{i+1}'
            out = [x.replace(f'PADNEXT{i}', tgt) if x.endswith(f'PADNEXT{i}') else x for x in out]
        a.lines[tail0:] = out
        nseg = (k + SEG - 1) // SEG
        print('pads', k, 'segments', nseg)
    a.label(f'{name}_done')
    a('s_endpgm')

    if nobar:
        for rep in range(unroll):
            a.label(f'{name}_spin{rep}')
            a(f'''ds_read_b64 {vr(vPw,2)}, {vr(vPa)}
s_waitcnt lgkmcnt(0)
v_readfirstlane_b32 {sr(sT)}, {vr(vPw)}''')
            if nobar == 2:
                a(f'''v_readfirstlane_b32 {sr(sT2)}, {vr(vPw+1)}
s_add_u32 {sr(sT2)}, {sr(sT2)}, {1 + opts.get("slack", 0)}
s_min_u32 {sr(sT)}, {sr(sT)}, {sr(sT2)}''')
            a(f'''s_cmp_gt_u32 {sr(sT)}, {sr(sT3)}
s_cbranch_scc0 {name}_spin{rep}
s_branch {name}_spun{rep}''')
    if g1s:
        a.label(f'{name}_g1w')
        a(f'''v_mov_b32 {vr(vT0)}, {LW_G1}
ds_read_b32 {vr(vT0)}, {vr(vT0)}
s_waitcnt lgkmcnt(0)
v_readfirstlane_b32 {sr(sT)}, {vr(vT0)}
s_cmp_eq_u32 {sr(sT)}, 0
s_cbranch_scc1 {name}_g1w
s_branch {name}_g1r''')
    if pre:
        a.label(f'{name}_pre')
        a(f'''v_mov_b32 {vr(vT0)}, {LW_RDY}
ds_read_b32 {vr(vT0)}, {vr(vT0)}
s_waitcnt lgkmcnt(0)
v_readfirstlane_b32 {sr(sT)}, {vr(vT0)}
s_cmp_eq_u32 {sr(sT)}, 0
s_cbranch_scc1 {name}_prer''')
        loads(0, True)
        a(f's_branch {name}_prer')
    for k, force in enumerate(sigpts):
        a.label(f'{name}_sg{k}')
        if not force:
            a(f'''s_getreg_b32 {sr(sT)}, hwreg(HW_REG_IB_STS)
s_and_b32 {sr(sT)}, {sr(sT)}, 0xc0000f
s_cbranch_scc1 {name}_sgr{k}''')
        sig_code(f'{name}_sgn{k}', 4)
        a(f's_mov_b32 {sr(sSig)}, 0')
        if opts.get('dsig') == 2: a('s_setprio 0')
        a(f's_branch {name}_sgr{k}')
    a.label(f'{name}_fallback')
    M = [vT4, vT5]
    vVo = vPa
    a(f'''v_cndmask_b32_e64 {vr(Q2[0])}, {vr(Q2[0])}, 0, {sr(sHi,2)}
v_cndmask_b32_e64 {vr(Q2[0]+1)}, {vr(Q2[0]+1)}, 0, {sr(sHi,2)}
v_cndmask_b32_e64 {vr(Q2[1])}, {vr(Q2[1])}, 0, {sr(sHi,2)}
v_cndmask_b32_e64 {vr(Q2[1]+1)}, {vr(Q2[1]+1)}, 0, {sr(sHi,2)}
v_mov_b32 {vr(M[0])}, 0xff800000
v_mov_b32 {vr(M[1])}, 0xff800000
v_mov_b32 {vr(vT1)}, {OOB}
s_lshr_b32 {sr(sT)}, {sr(sW)}, 1
s_mul_i32 {sr(sT)}, {sr(sT)}, 10240
v_subrev_u32 {vr(vT0)}, {sr(sT)}, {vr(vbV)}
v_cmp_eq_u32 vcc, 1, {vr(vmV)}
s_mov_b32 {sr(sT)}, {sr(sKV)}
s_mov_b32 {sr(sG)}, 0
v_cndmask_b32 {vr(vVo)}, {vr(vT1)}, {vr(vT0)}, vcc
s_mov_b64 {sr(sM2,2)}, vcc
s_waitcnt vmcnt(0)''')
    a.label(f'{name}_fb1')
    a(f'''buffer_load_dwordx4 {vr(K1[0],4)}, {vr(vQo)}, {sr(SWS,4)}, {sr(sT)} offen{SC}
buffer_load_dwordx2 {vr(K2[0],2)}, {vr(vQo2)}, {sr(SWS,4)}, {sr(sT)} offen{SC}
s_waitcnt vmcnt(0)''')
    qk16(0, 0); qk16(1, 0); qk8(0, 0); qk8(1, 0)
    a('s_nop 15')
    for t in range(2):
        rowmax(t, vT0)
        a(f'v_max_f32 {vr(M[t])}, {vr(M[t])}, {vr(vT0)}')
    a(f'''s_add_u32 {sr(sT)}, {sr(sT)}, 2560
s_add_u32 {sr(sG)}, {sr(sG)}, 1
s_cmp_lt_u32 {sr(sG)}, 64
s_cbranch_scc1 {name}_fb1''')
    for t in range(2):
        crosshalf(M[t], vT1)
        a(f'v_max_f32 {vr(M[t])}, {vr(M[t])}, {vr(vT1)}')
        for i in range(16):
            a(f'v_mov_b32 {vr(O[t]+i)}, 0')
    a(f's_mov_b32 {sr(sT)}, {sr(sKV)}')
    a(f's_mov_b32 {sr(sG)}, 0')
    a(f'v_mov_b32 {vr(vT1)}, 0x3f803f80')
    a.label(f'{name}_fb2')
    a(f'''buffer_load_dwordx4 {vr(K1[0],4)}, {vr(vQo)}, {sr(SWS,4)}, {sr(sT)} offen{SC}
buffer_load_dwordx2 {vr(K2[0],2)}, {vr(vQo2)}, {sr(SWS,4)}, {sr(sT)} offen{SC}
buffer_load_dwordx4 {vr(V0[0],4)}, {vr(vVo)}, {sr(SWS,4)}, {sr(sT)} offen{SC}
buffer_load_dwordx4 {vr(V1[0],4)}, {vr(vVo)}, {sr(SWS,4)}, {sr(sT)} offen offset:640{SC}
s_waitcnt vmcnt(0)''')
    qk16(0, 0); qk16(1, 0); qk8(0, 0); qk8(1, 0)
    for i in range(4):
        a(f'v_cndmask_b32_e64 {vr(V0[0]+i)}, {vr(vT1)}, {vr(V0[0]+i)}, {sr(sM2,2)}')
        a(f'v_cndmask_b32_e64 {vr(V1[0]+i)}, {vr(vT1)}, {vr(V1[0]+i)}, {sr(sM2,2)}')
    a('s_nop 15')
    for t in range(2):
        for i in range(16):
            a(f'v_sub_f32 {vr(S[t]+i)}, {vr(S[t]+i)}, {vr(M[t])}')
        for i in range(16):
            ex(t, i)
    a('s_nop 1')
    for t in range(2):
        pv(t, 0, 0); pv(t, 0, 1)
    a(f'''s_add_u32 {sr(sT)}, {sr(sT)}, 2560
s_add_u32 {sr(sG)}, {sr(sG)}, 1
s_cmp_lt_u32 {sr(sG)}, 64
s_cbranch_scc1 {name}_fb2''')
    a('s_nop 15')
    a(f's_mov_b32 {sr(sI)}, 1')
    a(f's_branch {name}_store')

    a.label(f'{name}_helper')
    st.n = n_common
    V = VAlloc(VBASE)
    vEp = V(); vL16 = V(); vFl = V()
    VH = V.n
    a('s_setprio 3')
    a(SRDS)
    if opts.get('cpf', 1) == 2:
        a(f'''s_getpc_b64 {sr(sM,2)}
{name}_pc:
s_sub_u32 {sr(sM)}, {sr(sM)}, {name}_pc - {name}
s_subb_u32 {sr(sM+1)}, {sr(sM+1)}, 0
s_lshr_b32 {sr(sT)}, s2, 3
s_lshl_b32 {sr(sT)}, {sr(sT)}, 6''')
        for i in range(14):
            a(f's_load_dword s{64+i}, {sr(sM,2)}, {sr(sT)}')
            a(f's_add_u32 {sr(sT)}, {sr(sT)}, 2048')
            a(f's_min_u32 {sr(sT)}, {sr(sT)}, {name}_end - {name} - 4')
    elif opts.get('cpf', 1):
        a(f'''s_getpc_b64 {sr(sM,2)}
{name}_pc:
s_sub_u32 {sr(sM)}, {sr(sM)}, {name}_pc - {name}
s_subb_u32 {sr(sM+1)}, {sr(sM+1)}, 0
s_lshr_b32 {sr(sT)}, s2, 3
v_lshlrev_b32 {vr(vT0)}, 5, {vr(vLane)}
v_add_u32 {vr(vT0)}, {sr(sT)}, {vr(vT0)}
v_lshlrev_b32 {vr(vT0)}, 7, {vr(vT0)}
v_min_u32 {vr(vT0)}, {name}_end - {name} - 4, {vr(vT0)}
s_mov_b64 exec, 0xfff
global_load_dword {vr(vFl)}, {vr(vT0)}, {sr(sM,2)}
s_mov_b64 exec, -1''')
    elate = opts.get('elate', 0)
    if not elate and not sep:
        a(f'v_mov_b32 {vr(vT0)}, {F_EPOCH}')
        a(f'buffer_load_dword {vr(vEp)}, {vr(vT0)}, {sr(SWS,4)}, 0 offen{SC}')
    stl = opts.get('stl', 0)
    if stl:
        ns = max(ns, 72)
        if stl & 1:
            a(f's_mul_i32 {sr(sT)}, {sr(sMt3)}, {128*2560}')
            a(f's_load_dword s64, {sr(SOUT,2)}, {sr(sT)}')
            a(f's_add_u32 {sr(sT)}, {sr(sT)}, {128*2560-4}')
            a(f's_load_dword s65, {sr(SOUT,2)}, {sr(sT)}')
        if stl & 2:
            a(f's_load_dword s66, {sr(SWO,2)}, 0')
        if stl & 4:
            a(f's_load_dword s67, {sr(SWS,2)}, {sr(sKV)}')
            a(f's_add_u32 {sr(sT)}, {sr(sKV)}, {4*KV_HEAD-4}')
            a(f's_load_dword s68, {sr(SWS,2)}, {sr(sT)}')
        if stl & 8:
            for k, m in ((69, sMt), (70, sMt3)):
                a(f's_lshl_b32 {sr(sT)}, {sr(sB)}, 4')
                a(f's_add_u32 {sr(sT)}, {sr(sT)}, {sr(m)}')
                a(f's_mul_i32 {sr(sT)}, {sr(sT)}, {2*32*2560}')
                a(f's_add_u32 {sr(sT)}, {sr(sT)}, {F_WS_O}')
                a(f's_load_dword s{k}, {sr(SWS,2)}, {sr(sT)}')
    tlb = opts.get('tlb', 0)
    if tlb & 1:
        a(f'''v_lshlrev_b32 {vr(vT1)}, 18, {vr(vLane)}
buffer_load_dword {vr(vFl)}, {vr(vT1)}, {sr(SWS,4)}, 0 offen''')
    if tlb & 2:
        a(f'''v_lshlrev_b32 {vr(vT1)}, 18, {vr(vLane)}
buffer_load_dword {vr(vT2)}, {vr(vT1)}, {sr(SOUT,4)}, 0 offen
buffer_load_dword {vr(vT3)}, {vr(vT1)}, {sr(SWO,4)}, 0 offen''')
    if tlb & 4:
        a(f'''v_lshlrev_b32 {vr(vT1)}, 21, {vr(vLane)}
buffer_load_dword {vr(vFl)}, {vr(vT1)}, {sr(SWS,4)}, 0 offen
buffer_load_dword {vr(vT4)}, {vr(vT1)}, {sr(SOUT,4)}, 0 offen
buffer_load_dword {vr(vT5)}, {vr(vT1)}, {sr(SWO,4)}, 0 offen''')
    a(f'v_lshlrev_b32 {vr(vL16)}, 4, {vr(vLane)}')
    vP = V(); vC8 = V(8); vPwa = V(); vFu = V(); vPo1 = V(); vPo2 = V(); vPo = V(); vLw = V()
    vW3 = [V() for _ in range(5)]
    vPf = [V() for _ in range(4)]
    vHX = [V() for _ in range(4)]
    vHW = [V() for _ in range(15)]
    vIx = V(); vIw = V(); vSx = V(); vSw = V(); vJ = [V() for _ in range(6)]
    done_alloc(V)
    if stag:
        a(f'''s_lshr_b32 {sr(sT)}, s2, 3
s_and_b32 {sr(sT2)}, s2, 1
s_lshl_b32 {sr(sT2)}, {sr(sT2)}, 5
s_add_u32 {sr(sT2)}, {sr(sT2)}, {sr(sT)}
s_lshl_b32 {sr(sT2)}, {sr(sT2)}, 5
v_and_b32 {vr(vT0)}, 31, {vr(vLane)}
v_add_u32 {vr(vT2)}, {sr(sT2)}, {vr(vT0)}
v_mul_u32_u24 {vr(vT2)}, 1280, {vr(vT2)}
v_lshrrev_b32 {vr(vT1)}, 5, {vr(vLane)}
v_lshl_add_u32 {vr(vIx)}, {vr(vT1)}, 7, {vr(vT2)}
buffer_load_dword {vr(vJ[0])}, {vr(vIx)}, {sr(SX,4)}, 0 offen
v_cmp_le_u32 vcc, 15, {vr(vT0)}
s_lshl_b32 {sr(sT)}, {sr(sT)}, 1
s_bfe_u32 {sr(sT2)}, s2, 0x10001
v_cndmask_b32_e64 {vr(vT2)}, 0, 1, vcc
v_mul_u32_u24 {vr(vT3)}, 15, {vr(vT2)}
v_sub_u32 {vr(vT3)}, {vr(vT0)}, {vr(vT3)}
v_lshl_add_u32 {vr(vT2)}, {vr(vT1)}, 6, {vr(vT2)}
v_add_u32 {vr(vT2)}, {sr(sT)}, {vr(vT2)}
v_mul_u32_u24 {vr(vT2)}, 3840, {vr(vT2)}
v_mul_u32_u24 {vr(vT4)}, 52, {vr(vT3)}
v_lshrrev_b32 {vr(vT4)}, 8, {vr(vT4)}
v_mul_u32_u24 {vr(vT4)}, {1280-640}, {vr(vT4)}
v_lshl_add_u32 {vr(vT4)}, {vr(vT3)}, 7, {vr(vT4)}
s_mul_i32 {sr(sT2)}, {sr(sT2)}, 640
v_add3_u32 {vr(vIw)}, {vr(vT2)}, {vr(vT4)}, {sr(sT2)}
v_cmp_le_u32 vcc, 30, {vr(vT0)}
v_mov_b32 {vr(vT2)}, {OOB}
s_mov_b32 {sr(sT)}, {128*3840}
v_cndmask_b32 {vr(vIw)}, {vr(vIw)}, {vr(vT2)}, vcc
buffer_load_dword {vr(vJ[1])}, {vr(vIw)}, {sr(SWQ,4)}, 0 offen''')
        for jb in range(1, stag):
            a(f'buffer_load_dword {vr(vJ[2])}, {vr(vIx)}, {sr(SX,4)}, 0 offen offset:{256*jb}')
            a(f's_mov_b32 {sr(sT)}, {128*jb*3840}')
            a(f'buffer_load_dword {vr(vJ[3])}, {vr(vIw)}, {sr(SWQ,4)}, {sr(sT)} offen')
        sg = opts.get('sg', 4)
        nb = {4: 3, 2: 4, 1: 5}[sg]
        a(f'''s_bfe_u32 {sr(sT)}, s2, {(nb << 16) | 3}
s_and_b32 {sr(sI)}, s2, 1
s_lshl_b32 {sr(sI)}, {sr(sI)}, {nb}
s_add_u32 {sr(sI)}, {sr(sI)}, {sr(sT)}
s_lshl_b32 {sr(sI)}, {sr(sI)}, {10 - nb}
v_add_u32 {vr(vT0)}, {sr(sI)}, {vr(vLane)}
v_mul_u32_u24 {vr(vSx)}, 1280, {vr(vT0)}
v_mul_u32_u24 {vr(vT1)}, 4370, {vr(vLane)}
v_lshrrev_b32 {vr(vT1)}, 16, {vr(vT1)}
v_mul_u32_u24 {vr(vT2)}, 15, {vr(vT1)}
v_sub_u32 {vr(vT3)}, {vr(vLane)}, {vr(vT2)}
s_lshl_b32 {sr(sT)}, {sr(sT)}, {6 - nb}
v_add_u32 {vr(vT1)}, {sr(sT)}, {vr(vT1)}
v_mul_u32_u24 {vr(vT1)}, 3840, {vr(vT1)}
v_mul_u32_u24 {vr(vT4)}, 52, {vr(vT3)}
v_lshrrev_b32 {vr(vT4)}, 8, {vr(vT4)}
v_mul_u32_u24 {vr(vT4)}, {1280-640}, {vr(vT4)}
v_lshl_add_u32 {vr(vT4)}, {vr(vT3)}, 7, {vr(vT4)}
v_add3_u32 {vr(vSw)}, {vr(vT1)}, {vr(vT4)}, {sr(sT2)}
v_cmp_le_u32 vcc, 60, {vr(vLane)}
v_mov_b32 {vr(vT2)}, {OOB}
s_lshr_b32 {sr(sM0a)}, s2, {3 + nb}
v_cndmask_b32 {vr(vSw)}, {vr(vSw)}, {vr(vT2)}, vcc''')
    sgid = [0]
    def stag_pf():
        if not stag: return
        n = sgid[0]; sgid[0] += 1
        AH = opts.get('ahead', 2)
        a(f'''s_add_u32 {sr(sT)}, {sr(sKK)}, {1 + AH}
s_and_b32 {sr(sT2)}, {sr(sT)}, {sg - 1}
s_cmp_eq_u32 {sr(sT2)}, {sr(sM0a)}
s_cselect_b32 {sr(sT2)}, {sr(sT)}, 99
s_cmp_lt_u32 {sr(sT2)}, {2*stag}
s_cselect_b32 {sr(sT2)}, 99, {sr(sT2)}
s_cmp_lt_u32 {sr(sT2)}, 10
s_cbranch_scc0 {name}_sp{n}
s_lshl_b32 {sr(sT2)}, {sr(sT)}, 7
buffer_load_dword {vr(vJ[0])}, {vr(vSx)}, {sr(SX,4)}, {sr(sT2)} offen
s_add_u32 {sr(sT2)}, {sr(sT2)}, {64*1280}
{f'buffer_load_dword {vr(vJ[1])}, {vr(vSx)}, {sr(SX,4)}, {sr(sT2)} offen' if sg == 4 else 'SKIP'}
s_mul_i32 {sr(sT2)}, {sr(sT)}, {64*3840}
buffer_load_dword {vr(vJ[2])}, {vr(vSw)}, {sr(SWQ,4)}, {sr(sT2)} offen
s_add_u32 {sr(sT2)}, {sr(sT2)}, {4*3840}
{f'buffer_load_dword {vr(vJ[3])}, {vr(vSw)}, {sr(SWQ,4)}, {sr(sT2)} offen' if sg == 4 else 'SKIP'}''')
        a.label(f'{name}_sp{n}')
    a(f'''{XROW}
v_lshrrev_b32 {vr(vT0)}, 3, {vr(vLane)}
v_add_u32 {vr(vT0)}, {sr(sT)}, {vr(vT0)}
v_mul_u32_u24 {vr(vT0)}, 1280, {vr(vT0)}
v_lshrrev_b32 {vr(vT1)}, 4, {vr(vLane)}
v_and_b32 {vr(vT3)}, 7, {vr(vLane)}
v_xor_b32 {vr(vT2)}, {vr(vT1)}, {vr(vT3)}
v_lshl_add_u32 {vr(vHX[0])}, {vr(vT2)}, 4, {vr(vT0)}
v_xor_b32 {vr(vT2)}, 64, {vr(vHX[0])}
v_add_u32 {vr(vHX[1])}, {10240-1024}, {vr(vT2)}
v_add_u32 {vr(vHX[2])}, {2*(10240-1024)}, {vr(vHX[0])}
v_add_u32 {vr(vHX[3])}, {3*(10240-1024)}, {vr(vT2)}''')
    for pi in range(15):
        a(f's_sub_u32 {sr(sT)}, {sr(sT3)}, {(pi%4)*1024}')
        w_pattern(vHW[pi], f'v_add_u32 {vr(vT0)}, {64*pi}, {vr(vLane)}', sr(sT))
    def next_k():
        a(f'''s_add_u32 {sr(sKK)}, {sr(sKK)}, 1
s_cmp_eq_u32 {sr(sKK)}, 10
s_cselect_b32 {sr(sKK)}, 0, {sr(sKK)}
s_lshl_b32 {sr(sXo)}, {sr(sKK)}, 7
s_mul_i32 {sr(sWo)}, {sr(sKK)}, {64*3840}''')
    def issue_x():
        for jj in range(8 if opts.get('hack64') else 16):
            if jj % 4 == 0:
                a(f's_add_u32 m0, {sr(sSlot)}, {jj*1024}')
                a(f's_add_u32 {sr(sT)}, {sr(sXo)}, {jj*10240}')
            a(f'buffer_load_dwordx4 {vr(vHX[jj%4])}, {sr(SX,4)}, {sr(sT)} offen offset:{(jj%4)*1024} lds')
    def issue_w(only=None):
        for half in (range(2) if only is None else [only]):
            for pi in range(15):
                if pi % 4 == 0:
                    a(f's_add_u32 m0, {sr(sSlot)}, {XSZ + half*15360 + pi*1024}')
                    a(f's_add_u32 {sr(sT)}, {sr(sWo)}, {half*32*3840}')
                a(f'buffer_load_dwordx4 {vr(vHW[pi])}, {sr(SWQ,4)}, {sr(sT)} offen offset:{(pi%4)*1024} lds')
    def issue_stage():
        stag_pf(); next_k()
        if opts.get('wfirst'):
            issue_w(0); issue_x(); issue_w(1)
        else:
            issue_x(); issue_w()
        a(f'''s_add_u32 {sr(sSlot)}, {sr(sSlot)}, {STG}
s_cmp_ge_u32 {sr(sSlot)}, {3*STG}
s_cselect_b32 {sr(sSlot)}, 0, {sr(sSlot)}''')
    pfw = opts.get('pfw', 0) and not stag and not opts.get('rot0')
    if pfw:
        a(f'''s_lshr_b32 {sr(sT)}, s2, 6
s_mul_i32 {sr(sT)}, {sr(sT)}, 3
s_add_u32 {sr(sT)}, {sr(sT)}, 8
s_bfe_u32 {sr(sT2)}, s2, 0x30003
s_lshr_b32 {sr(sI)}, {sr(sT2)}, 2
s_add_u32 {sr(sT)}, {sr(sT)}, {sr(sI)}
s_cmp_ge_u32 {sr(sT)}, 10
s_cselect_b32 {sr(sI)}, 10, 0
s_sub_u32 {sr(sT)}, {sr(sT)}, {sr(sI)}
s_lshl_b32 {sr(sT)}, {sr(sT)}, 6
s_and_b32 {sr(sT2)}, {sr(sT2)}, 3
s_lshl_b32 {sr(sT2)}, {sr(sT2)}, 4
s_add_u32 {sr(sT)}, {sr(sT)}, {sr(sT2)}
s_mul_i32 {sr(sT)}, {sr(sT)}, 3840
s_add_u32 {sr(sRdy)}, {sr(sT)}, {sr(sT3)}
v_lshrrev_b32 {vr(vT0)}, 3, {vr(vLane)}
v_mul_u32_u24 {vr(vT0)}, 3840, {vr(vT0)}
v_bfe_u32 {vr(vT1)}, {vr(vLane)}, 1, 2
v_mul_u32_u24 {vr(vT2)}, 1280, {vr(vT1)}
v_and_b32 {vr(vT3)}, 1, {vr(vLane)}
v_mul_u32_u24 {vr(vT3)}, 156, {vr(vT3)}
v_add3_u32 {vr(vT0)}, {vr(vT0)}, {vr(vT2)}, {vr(vT3)}
v_cmp_eq_u32 vcc, 3, {vr(vT1)}
v_mov_b32 {vr(vT2)}, {OOB}
s_nop 0
v_cndmask_b32 {vr(vPo)}, {vr(vT0)}, {vr(vT2)}, vcc''')
    a(f's_mov_b32 {sr(sSlot)}, {STG}')
    st1()
    if opts.get('s0', 1): a('s_barrier')
    st1()
    if elate and not sep:
        a(f'v_mov_b32 {vr(vT0)}, {F_EPOCH}')
        a(f'buffer_load_dword {vr(vEp)}, {vr(vT0)}, {sr(SWS,4)}, 0 offen{SC}')
    if pfw:
        a(f'buffer_load_dword {vr(vPf[0])}, {vr(vPo)}, {sr(SWQ,4)}, {sr(sRdy)} offen')
        a(f's_add_u32 {sr(sRdy)}, {sr(sRdy)}, {8*3840}')
        a(f'buffer_load_dword {vr(vPf[1])}, {vr(vPo)}, {sr(SWQ,4)}, {sr(sRdy)} offen')
    if opts.get('xfirst', 0):
        next_k(); issue_x()
        a(f's_mov_b32 {sr(sSrc)}, {sr(sWo)}')
        a(f's_mov_b32 {sr(sSlot)}, {2*STG}')
        next_k(); issue_x()
        st1()
        if opts.get('xfirst') == 1: a('s_barrier')
        a(f's_mov_b32 {sr(sSlot)}, {STG}')
        a(f's_mov_b32 {sr(sI)}, {sr(sWo)}')
        a(f's_mov_b32 {sr(sWo)}, {sr(sSrc)}')
        issue_w()
        if opts.get('xfirst') == 2: a('s_barrier')
        a(f's_mov_b32 {sr(sSlot)}, {2*STG}')
        a(f's_mov_b32 {sr(sWo)}, {sr(sI)}')
        issue_w()
        a(f's_mov_b32 {sr(sSlot)}, 0')
        a('s_waitcnt vmcnt(30)')
        a('s_barrier')
        st1()
        a(f's_mov_b32 {sr(sI)}, 1')
    else:
        issue_stage()
        st1()
        a('s_barrier')
        st1()
        a(f's_mov_b32 {sr(sI)}, 0')
    a.label(f'{name}_hg')
    issue_stage()
    a(f's_waitcnt vmcnt({38 if opts.get("hack64") else 46})')
    a('s_barrier')
    a(f's_add_u32 {sr(sI)}, {sr(sI)}, 1')
    a(f's_cmp_lt_u32 {sr(sI)}, 8')
    a(f's_cbranch_scc1 {name}_hg')
    st1()
    a(f'''s_lshl_b32 {sr(sT)}, {sr(sB)}, 3
s_add_u32 {sr(sT)}, {sr(sT)}, {sr(sHg)}
s_lshl_b32 {sr(sT)}, {sr(sT)}, 8
s_add_u32 {sr(sT)}, {sr(sT)}, {F_FLAG1}
s_mov_b32 {sr(sM0a)}, {sr(sT)}
{f's_lshl_b32 {sr(sM0a)}, {sr(sB)}, 3' if rep_ else 'SKIP'}
{f's_add_u32 {sr(sM0a)}, {sr(sM0a)}, {sr(sHg)}' if rep_ else 'SKIP'}
{f's_lshl_b32 {sr(sM0a)}, {sr(sM0a)}, 4' if rep_ else 'SKIP'}
{f's_add_u32 {sr(sM0a)}, {sr(sM0a)}, {sr(sMt)}' if rep_ else 'SKIP'}
{f's_lshl_b32 {sr(sM0a)}, {sr(sM0a)}, 7' if rep_ else 'SKIP'}
{f's_add_u32 {sr(sM0a)}, {sr(sM0a)}, {F_R1}' if rep_ else 'SKIP'}
v_lshl_add_u32 {vr(vT0)}, {vr(vLane)}, 2, {sr(sT)}
v_cmp_gt_u32 vcc, 16, {vr(vLane)}
v_mov_b32 {vr(vT1)}, {OOB}
s_lshl_b32 {sr(sT)}, {sr(sB)}, 4
v_cndmask_b32 {vr(vPo1)}, {vr(vT1)}, {vr(vT0)}, vcc
s_add_u32 {sr(sT)}, {sr(sT)}, {sr(sMt3)}
s_lshl_b32 {sr(sT)}, {sr(sT)}, 8
s_add_u32 {sr(sT)}, {sr(sT)}, {F_FLAG2}
s_mov_b32 {sr(sM0b)}, {sr(sT)}
{f's_lshl_b32 {sr(sM0b)}, {sr(sB)}, 4' if rep_ else 'SKIP'}
{f's_add_u32 {sr(sM0b)}, {sr(sM0b)}, {sr(sMt3)}' if rep_ else 'SKIP'}
{f's_lshl_b32 {sr(sM0b)}, {sr(sM0b)}, 3' if rep_ else 'SKIP'}
{f's_add_u32 {sr(sM0b)}, {sr(sM0b)}, {sr(sCg)}' if rep_ else 'SKIP'}
{f's_lshl_b32 {sr(sM0b)}, {sr(sM0b)}, 7' if rep_ else 'SKIP'}
{f's_add_u32 {sr(sM0b)}, {sr(sM0b)}, {F_R2}' if rep_ else 'SKIP'}
v_lshl_add_u32 {vr(vT0)}, {vr(vLane)}, 2, {sr(sT)}
v_cmp_gt_u32 vcc, 8, {vr(vLane)}
v_mov_b32 {vr(vLw)}, {LW_RDY}
s_mul_i32 {sr(sT3)}, {sr(sCg)}, 160
v_cndmask_b32 {vr(vPo2)}, {vr(vT1)}, {vr(vT0)}, vcc''')
    for r in range(5):
        a(f'''v_add_u32 {vr(vT0)}, {64*r}, {vr(vLane)}
v_mul_u32_u24 {vr(vT1)}, 6554, {vr(vT0)}
v_lshrrev_b32 {vr(vT1)}, 16, {vr(vT1)}
v_mul_u32_u24 {vr(vT1)}, {1280-160}, {vr(vT1)}
v_lshl_add_u32 {vr(vT0)}, {vr(vT0)}, 4, {vr(vT1)}
v_add_u32 {vr(vT0)}, {sr(sT3)}, {vr(vT0)}
v_subrev_u32 {vr(vW3[r])}, {(r%4)*1024}, {vr(vT0)}''')
    a(f'''s_lshr_b32 {sr(sT)}, s2, 3
s_mul_i32 {sr(sT)}, {sr(sT)}, {20*1280}
v_lshl_add_u32 {vr(vT0)}, {vr(vLane)}, 7, {sr(sT)}
v_cmp_gt_u32 vcc, 50, {vr(vLane)}
v_mov_b32 {vr(vT1)}, {OOB}
s_mov_b32 {sr(sRdy)}, 0
v_cndmask_b32 {vr(vPo)}, {vr(vT1)}, {vr(vT0)}, vcc
{'s_waitcnt lgkmcnt(0)' if sep else f'v_readfirstlane_b32 {sr(sTag)}, {vr(vEp)}'}
s_lshl_b32 {sr(sDone)}, 1, {sr(sMt)}
s_waitcnt vmcnt({15 if hsplit else 0})
s_add_u32 {sr(sTag)}, {sr(sTag)}, {TAGK}
s_barrier''')
    if early == 1:
        a(f'buffer_load_dword {vr(vP)}, {vr(vPo1)}, {sr(SWS,4)}, 0 offen{SC}')
    a(f'''v_bfe_u32 {vr(vT2)}, {vr(vLane)}, 1, 2
v_mul_u32_u24 {vr(vT2)}, 2560, {vr(vT2)}
v_and_b32 {vr(vT3)}, 1, {vr(vLane)}
v_mul_u32_u24 {vr(vT3)}, 640, {vr(vT3)}
v_add_u32 {vr(vT2)}, {vr(vT2)}, {vr(vT3)}
v_add_u32 {vr(vT2)}, {ONES}, {vr(vT2)}
v_mov_b32 {vr(vC8)}, 0x3f803f80
v_mov_b32 {vr(vC8+1)}, 0x3f803f80
v_mov_b32 {vr(vC8+2)}, 0x3f803f80
v_mov_b32 {vr(vC8+3)}, 0x3f803f80
v_mov_b32 {vr(vC8+4)}, 0
v_mov_b32 {vr(vC8+5)}, 0
v_mov_b32 {vr(vC8+6)}, 0
v_mov_b32 {vr(vC8+7)}, 0
s_mov_b32 {sr(sI)}, 1
s_mov_b32 {sr(sSlot)}, {phys(1)*SLOT}
s_waitcnt vmcnt(0)''')
    if hsplit: a('s_barrier')
    def lds_init():
        a(f'''s_barrier
ds_write_b128 {vr(vT2)}, {vr(vC8,4)}
ds_write_b128 {vr(vT2)}, {vr(vC8+4,4)} offset:16
ds_write_b128 {vr(vLw)}, {vr(vC8+4,4)}
ds_write_b128 {vr(vLw)}, {vr(vC8+4,4)} offset:16''')
    def e_bars():
        a('s_waitcnt lgkmcnt(0)')
        a('s_barrier')
        if not one_e: a('s_barrier')
    gid = [0]
    def smask(n, off, dst):
        SB_ = 80 if st.on else 64
        a(f's_load_dwordx{n} s[{SB_}:{SB_-1+n}], s[6:7], {sr(off)} glc')
        a(f's_mov_b32 {sr(dst)}, 0')
        a('s_waitcnt lgkmcnt(0)')
        for i in range(n - 1, -1, -1):
            a(f's_cmp_eq_u32 s{SB_+i}, {sr(sTag)}')
            a(f's_addc_u32 {sr(dst)}, {sr(dst)}, {sr(dst)}')
    if spoll: ns = max(ns, 80)
    def issue_group(qmajor=False):
        n = gid[0]; gid[0] += 1
        a(f'''s_andn2_b32 {sr(sT)}, {sr(sRdy)}, {sr(sDone)}
s_cbranch_scc1 {name}_pd{n}
s_mov_b32 {sr(sCnt)}, {POLL_LIMIT}''')
        a.label(f'{name}_pl{n}')
        if spoll & 1:
            smask(16, sM0a, sRdy)
        else:
            a(f'''buffer_load_dword {vr(vP)}, {vr(vPo1)}, {sr(SWS,4)}, 0 offen{SC}
s_waitcnt vmcnt(0)
v_cmp_eq_u32 vcc, {sr(sTag)}, {vr(vP)}
s_and_b32 {sr(sRdy)}, vcc_lo, 0xffff''')
        a(f'''s_andn2_b32 {sr(sT)}, {sr(sRdy)}, {sr(sDone)}
s_cbranch_scc1 {name}_pd{n}
{'s_sleep 1' if opts.get('sl1', 0) else 'SKIP'}
s_sub_u32 {sr(sCnt)}, {sr(sCnt)}, 1
s_cmp_lg_u32 {sr(sCnt)}, 0
s_cbranch_scc1 {name}_pl{n}
s_mov_b32 {sr(sRdy)}, 0xffff
s_andn2_b32 {sr(sT)}, {sr(sRdy)}, {sr(sDone)}''')
        a.label(f'{name}_pd{n}')
        g_select(); g_loads(0, 40, qmajor); g_finish()
    def g_select():
        a(f'''s_lshl_b32 {sr(sT2)}, {sr(sT)}, 16
s_or_b32 {sr(sT)}, {sr(sT)}, {sr(sT2)}
s_lshr_b32 {sr(sT)}, {sr(sT)}, {sr(sMt)}
s_ff1_i32_b32 {sr(sT)}, {sr(sT)}
s_add_u32 {sr(sNeed)}, {sr(sT)}, {sr(sMt)}
s_and_b32 {sr(sNeed)}, {sr(sNeed)}, 15
s_bitset1_b32 {sr(sDone)}, {sr(sNeed)}
s_mul_i32 {sr(sT)}, {sr(sNeed)}, 10240
s_add_u32 {sr(sSrc)}, {sr(sKV)}, {sr(sT)}''')
    def g_loads(lo, hi, qmajor=False):
        order = [(hs, q) for hs in range(4) for q in range(10)]
        if qmajor:
            order = [(hs, q) for hs in range(4) for q in range(8)] + [(hs, q) for hs in range(4) for q in (8, 9)]
        for hs, q in order[lo:hi]:
            if q % 4 == 0:
                a(f's_add_u32 m0, {sr(sSlot)}, {hs*10240 + q*1024}')
                a(f's_add_u32 {sr(sT)}, {sr(sSrc)}, {hs*KV_HEAD + q*1024}')
            a(f'buffer_load_dwordx4 {vr(vL16)}, {sr(SWS,4)}, {sr(sT)} offen offset:{(q%4)*1024}{SLD} lds')
    def g_finish():
        if early:
            a(f'''s_sub_u32 {sr(sSlot)}, {sr(sSlot)}, {SLOT}
s_cselect_b32 {sr(sSlot)}, {2*SLOT}, {sr(sSlot)}
s_add_u32 {sr(sI)}, {sr(sI)}, 1''')
        else:
            a(f'''s_add_u32 {sr(sSlot)}, {sr(sSlot)}, {SLOT}
s_cmp_ge_u32 {sr(sSlot)}, {3*SLOT}
s_cselect_b32 {sr(sSlot)}, 0, {sr(sSlot)}
s_add_u32 {sr(sI)}, {sr(sI)}, 1''')
    if 'hprio' in opts: a(f's_setprio {opts["hprio"]}')
    wq = [0]
    def wait_prog(val):
        n = wq[0]; wq[0] += 1
        a.label(f'{name}_wp{n}')
        a(f'''ds_read_b32 {vr(vP)}, {vr(vPwa)} offset:4
s_waitcnt lgkmcnt(0)
v_cmp_le_u32 vcc, {val}, {vr(vP)}
s_and_b32 {sr(sT)}, vcc_lo, 0x1ff
s_cmp_eq_u32 {sr(sT)}, 0x1ff
s_cbranch_scc1 {name}_wpd{n}
s_sleep 2
s_branch {name}_wp{n}''')
        a.label(f'{name}_wpd{n}')
    def set_full(val):
        a(f'v_mov_b32 {vr(vFu)}, {val}')
        a(f'ds_write_b32 {vr(vPwa)}, {vr(vFu)}')
    if nobar:
        a(f'v_min_u32 {vr(vPwa)}, 8, {vr(vLane)}')
        a(f'v_lshlrev_b32 {vr(vPwa)}, 3, {vr(vPwa)}')
        a(f'v_add_u32 {vr(vPwa)}, {LW_PW}, {vr(vPwa)}')
    if early:
        if early == 1:
            a(f'''v_cmp_eq_u32 vcc, {sr(sTag)}, {vr(vP)}
s_and_b32 {sr(sRdy)}, vcc_lo, 0xffff''')
        else:
            smask(16, sM0a, sRdy)
        a(f'''s_andn2_b32 {sr(sT)}, {sr(sRdy)}, {sr(sDone)}
s_cbranch_scc0 {name}_ne''')
        g_select(); g_loads(0, 20)
        lds_init()
        g_loads(20, 40); g_finish()
        e_bars()
        a(f's_branch {name}_g1d')
        a.label(f'{name}_ne')
    lds_init()
    if early in (2, 3):
        smask(16, sM0a, sRdy)
        a(f'''s_andn2_b32 {sr(sT)}, {sr(sRdy)}, {sr(sDone)}
s_cbranch_scc0 {name}_ne2''')
        g_select(); g_loads(0, 40 if early == 2 else 24)
        if early == 2:
            g_finish(); e_bars()
        else:
            a('s_barrier')
            g_loads(24, 40); g_finish()
            a('s_barrier')
        a(f's_branch {name}_g1d')
        a.label(f'{name}_ne2')
    e_bars()
    issue_group(g1s)
    a.label(f'{name}_g1d')
    st0()
    if g1s:
        a('s_waitcnt vmcnt(8)')
        a('s_barrier')
        a(f'v_mov_b32 {vr(vP)}, 1')
        a('s_waitcnt vmcnt(0)')
        a(f'ds_write_b32 {vr(vLw)}, {vr(vP)} offset:16')
        issue_group()
    elif opts.get('b1', 1) and not nobar:
        a('s_waitcnt vmcnt(0)')
        a('s_barrier')
        issue_group()
    a.label(f'{name}_hl')
    if nobar:
        a('s_waitcnt vmcnt(0)')
        set_full(sr(sI))
        a(f's_max_u32 {sr(sSrc)}, {sr(sI)}, 2')
        a(f's_sub_u32 {sr(sSrc)}, {sr(sSrc)}, 2')
        wait_prog(sr(sSrc))
        issue_group()
    else:
        issue_group()
        a('s_waitcnt vmcnt(40)')
        a('s_barrier')
        if sset == 5 and st.on:
            for K in (5, 15):
                a(f's_cmp_eq_u32 {sr(sI)}, {K}')
                a(f's_cbranch_scc0 {name}_h5{K}')
                st()
                a.label(f'{name}_h5{K}')
    wid = [0]
    def wo_rows(r0, r1, lds):
        n = wid[0]; wid[0] += 1
        a(f's_mov_b32 {sr(sSrc)}, {r0*1280}')
        a(f's_mov_b32 {sr(sT2)}, {lds}')
        a.label(f'{name}_hw{n}x')
        a(f's_mov_b32 m0, {sr(sT2)}')
        a(f's_add_u32 {sr(sT)}, {sr(sT2)}, 4096')
        for r in range(4):
            a(f'buffer_load_dwordx4 {vr(vW3[r])}, {sr(SWO,4)}, {sr(sSrc)} offen offset:{r*1024} lds')
        a(f's_mov_b32 m0, {sr(sT)}')
        a(f's_add_u32 {sr(sT2)}, {sr(sT2)}, 5120')
        a(f'buffer_load_dwordx4 {vr(vW3[4])}, {sr(SWO,4)}, {sr(sSrc)} offen lds')
        a(f's_add_u32 {sr(sSrc)}, {sr(sSrc)}, {32*1280}')
        a(f's_cmp_lt_u32 {sr(sSrc)}, {r1*1280}')
        a(f's_cbranch_scc1 {name}_hw{n}x')
    if iw:
        first = max(4, 15 - nseg)
        assert first + nseg <= 17
        a('s_mov_b64 exec, 0')
        for g in range(nseg):
            a(f's_cmp_eq_u32 {sr(sI)}, {first + g}')
            a(f's_cbranch_scc1 {name}_pad{g*SEG}')
        a.label(f'{name}_padret')
        a('s_mov_b64 exec, -1')
    a(f's_cmp_eq_u32 {sr(sI)}, 6')
    a(f's_cbranch_scc0 {name}_hnp')
    for q in range(4):
        a(f's_mov_b32 {sr(sT)}, {q*6400}')
        a(f'buffer_load_dword {vr(vPf[q])}, {vr(vPo)}, {sr(SWO,4)}, {sr(sT)} offen')
    a.label(f'{name}_hnp')
    a(f's_cmp_eq_u32 {sr(sI)}, 10')
    a(f's_cbranch_scc0 {name}_hnq')
    wo_rows(480, 640, QST)
    a.label(f'{name}_hnq')
    a(f's_cmp_lt_u32 {sr(sI)}, 16')
    a(f's_cbranch_scc1 {name}_hl')
    if nobar:
        a('s_waitcnt vmcnt(0)')
        set_full(64)
        wait_prog(14)
        wo_rows(0, 256, WO_LO)
        wait_prog(15)
    else:
        if early: wo_rows(256, 480, WO_LO + 40960)
        else: wo_rows(0, 256, WO_LO)
        a(f's_waitcnt vmcnt({35 if early else 40})')
        a('s_barrier')
    if early: wo_rows(0, 256, WO_LO)
    else: wo_rows(256, 480, WO_LO + 40960)
    a(f'''s_lshl_b32 {sr(sT)}, {sr(sB)}, 4
s_add_u32 {sr(sT)}, {sr(sT)}, {sr(sMt3)}
s_lshl_b32 {sr(sT)}, {sr(sT)}, 1
s_lshr_b32 {sr(sT2)}, {sr(sCg)}, 2
s_add_u32 {sr(sT)}, {sr(sT)}, {sr(sT2)}
s_mul_i32 {sr(sT)}, {sr(sT)}, {32*2560}
s_and_b32 {sr(sT2)}, {sr(sCg)}, 3
s_mul_i32 {sr(sT2)}, {sr(sT2)}, 5120
s_add_u32 {sr(sT)}, {sr(sT)}, {sr(sT2)}
s_add_u32 {sr(sT)}, {sr(sT)}, {F_WS_O}
v_lshl_add_u32 {vr(vT0)}, {vr(vLane)}, 7, {sr(sT)}
v_cmp_gt_u32 vcc, 40, {vr(vLane)}
v_mov_b32 {vr(vT1)}, {OOB}
s_mov_b32 {sr(sDone)}, 0
s_mov_b32 {sr(sCnt)}, {1 if opts.get('cheat', 0) & 2 else POLL_LIMIT}
v_cndmask_b32 {vr(vPo)}, {vr(vT1)}, {vr(vT0)}, vcc''')
    pid = [0]
    pfo = opts.get('pfo', 1)
    def poll2():
        if spoll & 2:
            smask(8, sM0b, sNeed)
            a(f'''s_sub_u32 {sr(sCnt)}, {sr(sCnt)}, 1
s_cmp_eq_u32 {sr(sCnt)}, 0
s_cselect_b32 {sr(sT)}, 0xff, {sr(sNeed)}''')
        else:
            a(f'''buffer_load_dword {vr(vP)}, {vr(vPo2)}, {sr(SWS,4)}, 0 offen{SC}
s_sub_u32 {sr(sCnt)}, {sr(sCnt)}, 1
s_waitcnt vmcnt(0)
v_cmp_eq_u32 vcc, {sr(sTag)}, {vr(vP)}
s_cmp_eq_u32 {sr(sCnt)}, 0
s_cselect_b32 {sr(sT)}, 0xff, vcc_lo''')
        a(f'''s_lshr_b32 {sr(sT2)}, {sr(sT)}, 1
s_and_b32 {sr(sT)}, {sr(sT)}, {sr(sT2)}
s_and_b32 {sr(sRdy)}, {sr(sT)}, 0x55''')
        if pfo:
            a(f's_andn2_b32 {sr(sSrc)}, {sr(sRdy)}, {sr(sDone)}')
            a(f's_or_b32 {sr(sDone)}, {sr(sDone)}, {sr(sRdy)}')
            for j in range(4):
                n = pid[0]; pid[0] += 1
                a(f's_bitcmp1_b32 {sr(sSrc)}, {2*j}')
                a(f's_cbranch_scc0 {name}_po{n}')
                a(f's_mov_b32 {sr(sT)}, {j*20480}')
                a(f'buffer_load_dword {vr(vPf[j])}, {vr(vPo)}, {sr(SWS,4)}, {sr(sT)} offen{SC}')
                a.label(f'{name}_po{n}')
            if pfo == 2:
                a('s_waitcnt vmcnt(0)')
        a(f'v_mov_b32 {vr(vP)}, {sr(sRdy)}')
        a(f'ds_write_b32 {vr(vLw)}, {vr(vP)}')
    if spoll & 2: a('s_waitcnt vmcnt(0)')
    for _ in range(opts.get('npoll', 1)):
        poll2()
    if nobar:
        wait_prog(16)
    else:
        a('s_barrier')
    st0()
    st0()
    a.label(f'{name}_p3l')
    if opts.get('psl'): a(f's_sleep {opts.get("psl")}')
    poll2()
    a(f's_cmp_eq_u32 {sr(sRdy)}, 0x55')
    a(f's_cbranch_scc0 {name}_p3l')
    a.label(f'{name}_p3e')
    if sset == 7 and st.on: st.rt()
    if sep:
        a(f'''s_or_b32 {sr(sT)}, {sr(sMt3)}, {sr(sCg)}
s_cbranch_scc1 {name}_nb
s_lshl_b32 {sr(sT)}, {sr(sB)}, 7
s_add_u32 {sr(sT)}, {sr(sT)}, {F_EPOCH}
s_mov_b64 exec, 1
v_mov_b32 {vr(vT0)}, 0
v_mov_b32 {vr(vT1)}, {sr(sTag)}
buffer_store_dword {vr(vT1)}, {vr(vT0)}, {sr(SWS,4)}, {sr(sT)} offen{SC}
s_mov_b64 exec, -1''')
        a.label(f'{name}_nb')
    if st.on:
        while st.n < n_total - 1: st()
        st.rt(); st.flush(sW)
    a('s_endpgm')
    a.label(f'{name}_end')
    nv = maxv[0]
    assert nv <= 168, nv
    return a.text(), descriptor(name, nv, ns), f'; @launch kernel={name} grid=(256,1,1) block=(576,1,1) lds={LDS_TOTAL}', n_total
```
